```python
import torch

def _softmax(x, axis=-1):
    return torch.softmax(x, dim=axis)

def _gelu(x):
    return torch.nn.functional.gelu(x, approximate='tanh')

def _silu(x):
    return torch.nn.functional.silu(x)

def _sigmoid(x):
    return torch.sigmoid(x)

def _layernorm(x, axis=-1, eps=1e-05):
    m = x.mean(dim=axis, keepdim=True)
    v = x.var(dim=axis, keepdim=True, unbiased=False)
    return (x - m) / torch.sqrt(v + eps)

def _scatter_add(tgt, idx, src, axis=0):
    return tgt.clone().index_add_(axis, idx, src)

def _segment_sum(src, seg, n):
    out = torch.zeros((n,) + src.shape[1:], dtype=src.dtype)
    return out.index_add_(0, seg, src)

def _pad(x, pw):
    flat = tuple((v for pair in reversed(pw) for v in pair))
    return torch.nn.functional.pad(x, flat)
kernel_name = 'gated_mix__memory_aug_recurrent_mem_tr__moe_arch_mod__prompt'

def setup_inputs():

    _w = lambda a: (lambda t: t.to(torch.bfloat16) if t.is_floating_point() else t)(torch.as_tensor(a))

    def _A_setup():
        B, S, Dm = (1, 2048, 1024)
        H, Dh = (32, 128)
        M, seg = (8, 32)
        seg = min(seg, S)
        S = S // seg * seg
        return {'x': _w((lambda *s: torch.randn(*s, dtype=torch.bfloat16) * 0.05)(B, S, Dm)), 'mem0': _w((lambda *s: torch.randn(*s, dtype=torch.bfloat16) * 0.8)(B, M, Dm)), 'Wq': _w((lambda *s: torch.randn(*s, dtype=torch.bfloat16) * 3.2)(Dm, H, Dh) * Dm ** (-0.5)), 'Wk': _w((lambda *s: torch.randn(*s, dtype=torch.bfloat16) * 3.2)(Dm, H, Dh) * Dm ** (-0.5)), 'Wv': _w((lambda *s: torch.randn(*s, dtype=torch.bfloat16) * 0.8)(Dm, H, Dh) * Dm ** (-0.5)), 'Wo': _w((lambda *s: torch.randn(*s, dtype=torch.bfloat16) * 0.8)(H, Dh, Dm) * (H * Dh) ** (-0.5)), 'seg_len': seg}
    _A_in = _A_setup()

    def _B_setup():
        B, S, D, F, C = (1, 2048, 1024, 3584, 8)
        return {'x': _w((lambda *s: torch.randn(*s, dtype=torch.bfloat16) * 0.05)(B, S, D)), 'w_r': _w((lambda *s: torch.randn(*s, dtype=torch.bfloat16) * 1.6)(D)), 'w_gate': _w((lambda *s: torch.randn(*s, dtype=torch.bfloat16) * 0.1)(D, F)), 'w_up': _w((lambda *s: torch.randn(*s, dtype=torch.bfloat16) * 0.1)(D, F)), 'w_down': _w((lambda *s: torch.randn(*s, dtype=torch.bfloat16) * 0.1)(F, D))}
    _B_in = _B_setup()
    return {'A_x': _A_in['x'], 'A_mem0': _A_in['mem0'], 'A_Wq': _A_in['Wq'], 'A_Wk': _A_in['Wk'], 'A_Wv': _A_in['Wv'], 'A_Wo': _A_in['Wo'], 'A_seg_len': _A_in['seg_len'], 'B_x': _B_in['x'], 'B_w_r': _B_in['w_r'], 'B_w_gate': _B_in['w_gate'], 'B_w_up': _B_in['w_up'], 'B_w_down': _B_in['w_down'], 'gate_w': _w((lambda *s: torch.randn(*s, dtype=torch.bfloat16) * 0.05)(1024) * 16.0)}

def reference(A_x, A_mem0, A_Wq, A_Wk, A_Wv, A_Wo, A_seg_len, B_x, B_w_r, B_w_gate, B_w_up, B_w_down, gate_w):

    def _A_ref(x, mem0, Wq, Wk, Wv, Wo, seg_len):
        B, S, Dm = x.shape
        H, Dh = (Wq.shape[1], Wq.shape[2])
        M = mem0.shape[1]
        scale = Dh ** (-0.5)
        n_seg = S // seg_len
        L = M + seg_len
        idx = torch.arange(L)
        mask = (idx[:, None] < M) | (idx[:, None] >= idx[None, :])
        mem = mem0
        outs = []
        for s in range(n_seg):
            xs = x[:, s * seg_len:(s + 1) * seg_len, :].clone()
            h = torch.concatenate([mem, xs], axis=1)
            q = torch.einsum('btd,dhe->bhte', h, Wq)
            k = torch.einsum('btd,dhe->bhte', h, Wk)
            v = torch.einsum('btd,dhe->bhte', h, Wv)
            scores = torch.einsum('bhqe,bhke->bhqk', q, k) * scale
            scores = torch.where(mask[None, None], scores, -1000000000.0)
            p = _softmax(scores, axis=-1)
            o = torch.einsum('bhqk,bhke->bhqe', p, v)
            o = torch.einsum('bhte,hed->btd', o, Wo)
            mem = o[:, :M, :].clone()
            outs.append(o[:, M:, :])
        return torch.concatenate(outs, axis=1)

    def _B_ref(x, w_r, w_gate, w_up, w_down):
        B, S, D = x.shape
        C = 8
        r = x @ w_r
        idx = torch.argsort(-r, axis=-1)[:, :C]
        idx_e = (lambda x, n, axis: torch.repeat_interleave(x, n, dim=axis))(idx.reshape(B, C, 1), D, axis=2)
        x_sel = (lambda x, i, axis: torch.take_along_dim(x, i, dim=axis))(x, idx_e, axis=1)
        g = _silu(x_sel @ w_gate)
        u = x_sel @ w_up
        y = g * u @ w_down
        r_sel = _sigmoid((lambda x, i, axis: torch.take_along_dim(x, i, dim=axis))(r, idx, axis=1))
        y = y * r_sel.reshape(B, C, 1)
        b_off = (torch.arange(B) * S).reshape(B, 1)
        flat_idx = (idx + b_off).reshape(B * C)
        zero = (x * 0.0).reshape(B * S, D)
        upd = _scatter_add(zero, flat_idx, y.reshape(B * C, D), axis=0)
        return x + upd.reshape(B, S, D)
    x = A_x
    g = _sigmoid((x * gate_w).sum(-1, keepdims=True))
    a = _A_ref(x, A_mem0, A_Wq, A_Wk, A_Wv, A_Wo, A_seg_len)
    b = _B_ref(x, B_w_r, B_w_gate, B_w_up, B_w_down)
    return g * a + (1 - g) * b
```

```python
import re

REG_RE = re.compile(r'^(-|abs\()?([vas])(\d+)\)?$')
RNG_RE = re.compile(r'^(-|abs\()?([vas])\[(\d+):(\d+)\]\)?$')
SPECIAL = {'vcc': ['vcc_lo', 'vcc_hi'], 'vcc_lo': ['vcc_lo'], 'vcc_hi': ['vcc_hi'],
           'exec': ['exec_lo', 'exec_hi'], 'exec_lo': ['exec_lo'], 'exec_hi': ['exec_hi'], 'm0': ['m0']}
TRANS = ('v_exp_f32', 'v_log_f32', 'v_rcp_f32', 'v_rsq_f32', 'v_sqrt_f32', 'v_sin_f32', 'v_cos_f32',
         'v_rcp_iflag_f32')


def regs_of(op):
    op = op.strip()
    if op.startswith('|') and op.endswith('|'):
        op = op[1:-1]
    m = REG_RE.match(op)
    if m:
        return [m.group(2) + m.group(3)]
    m = RNG_RE.match(op)
    if m:
        return [m.group(2) + str(i) for i in range(int(m.group(3)), int(m.group(4)) + 1)]
    return list(SPECIAL.get(op, []))


class Ins:
    def __init__(self, text):
        self.text = text
        self.label = None
        self.pre = 0
        self.kind = 'other'
        self.rd = set()
        self.wr = set()
        t = text.split(';')[0].strip()
        if not t or t.startswith('.') and not t.endswith(':'):
            self.kind = 'none'
            return
        if t.endswith(':'):
            self.kind = 'label'
            self.label = t[:-1]
            return
        parts = t.split(None, 1)
        mn = parts[0]
        self.mn = mn
        rest = parts[1] if len(parts) > 1 else ''
        mods0 = ''
        mo = re.search(r'\s(op_sel|neg_lo|neg_hi|quad_perm)', rest)
        if mo:
            mods0 = rest[mo.start():]
            rest = rest[:mo.start()]
        ops = [o.strip() for o in rest.split(',')] if rest else []
        mods = ''
        if ops:
            last = ops[-1].split(None, 1)
            ops[-1] = last[0]
            mods = last[1] if len(last) > 1 else ''
        mods += mods0
        self.ops, self.mods = ops, mods
        R = lambda i: set(regs_of(ops[i])) if i < len(ops) else set()
        allr = lambda a: set().union(*[R(i) for i in range(a, len(ops))]) if len(ops) > a else set()
        self.target = None
        if mn.startswith('v_mfma') or mn.startswith('v_smfmac'):
            self.kind = 'mfma'
            self.passes = 8 if '32x32' in mn else 4
            self.wr = R(0)
            if mn.startswith('v_smfmac'):
                self.ab = R(1) | R(2) | R(3)
                self.c = R(0)
            else:
                self.ab = R(1) | R(2)
                self.c = R(3)
            self.rd = self.ab | self.c
        elif mn.startswith('v_'):
            self.kind = 'valu'
            base = mn.replace('_e32', '').replace('_e64', '').replace('_dpp', '').replace('_sdwa', '')
            self.base = base
            self.dpp = mn.endswith('_dpp') or 'row_' in mods or 'quad_perm' in mods
            self.sdwa = mn.endswith('_sdwa') or ('op_sel' in mods and not mn.startswith('v_pk_'))
            self.trans = base in TRANS
            self.perm = base.startswith('v_permlane')
            self.dot = base.startswith('v_dot')
            self.lane = base in ('v_readlane_b32', 'v_readfirstlane_b32', 'v_writelane_b32')
            if base == 'v_nop':
                pass
            elif self.perm or base == 'v_swap_b32':
                self.wr = R(0) | R(1)
                self.rd = R(0) | R(1)
            elif '_co_' in base or base.startswith('v_div_scale') or base.startswith('v_mad_u64'):
                self.wr = R(0) | R(1)
                self.rd = allr(2)
            else:
                self.wr = R(0)
                self.rd = allr(1)
                if base.startswith('v_fmac') or base.startswith('v_dot2c') or self.dpp or base == 'v_writelane_b32' or self.sdwa:
                    self.rd |= R(0)
                if base.startswith('v_cmpx'):
                    self.wr |= {'exec_lo', 'exec_hi'}
                if base.startswith('v_div_fmas'):
                    self.rd |= {'vcc_lo', 'vcc_hi'}
        elif mn.startswith('buffer_') or mn.startswith('global_'):
            self.kind = 'vmem'
            self.lds = (' lds' in ' ' + mods) or 'load_lds' in mn
            self.wide = False
            self.data = set()
            if mn in ('buffer_wbl2', 'buffer_inv'):
                pass
            elif 'load' in mn and not self.lds:
                self.wr = R(0)
                self.rd = allr(1)
            elif 'load' in mn:
                self.rd = allr(0) | {'m0'}
            elif 'store' in mn:
                self.rd = allr(0)
                self.data = R(0) if mn.startswith('buffer_') else R(1)
                self.wide = 'x3' in mn or 'x4' in mn
            else:
                self.rd = allr(0)
                if 'sc0' in mods:
                    self.wr = R(0)
        elif mn.startswith('ds_'):
            self.kind = 'ds'
            if 'read' in mn or 'permute' in mn or 'swizzle' in mn or 'rtn' in mn:
                self.wr = R(0)
                self.rd = allr(1)
            else:
                self.rd = allr(0)
        elif mn == 's_nop':
            self.kind = 'nop'
            self.n = int(ops[0], 0) + 1
        elif mn.startswith('s_cbranch') or mn == 's_branch':
            self.kind = 'branch'
            self.target = ops[0]
        elif mn == 's_endpgm':
            self.kind = 'end'
        elif mn.startswith('s_'):
            self.kind = 'salu'
            if mn.startswith('s_cmp') or mn.startswith('s_bitcmp') or mn in ('s_waitcnt', 's_barrier', 's_sleep', 's_setprio'):
                self.rd = allr(0)
            else:
                self.wr = R(0)
                self.rd = allr(1)
                if 'saveexec' in mn:
                    self.wr |= {'exec_lo', 'exec_hi'}
        else:
            raise ValueError('unknown instruction: ' + text)


def is_s(r):
    return r[0] == 's' or r.startswith('vcc')


def need(p, c):
    n = 0
    if p.kind == 'valu':
        vw = {r for r in p.wr if r[0] in 'va' and not r.startswith('vcc')}
        sw = {r for r in p.wr if is_s(r)}
        ew = {r for r in p.wr if r.startswith('exec')}
        if c.kind == 'mfma':
            if vw & c.rd:
                n = max(n, 3 if p.dot else 2)
            if ew:
                n = max(n, 4)
        if c.kind == 'valu':
            if vw & c.rd:
                if c.dpp or c.perm:
                    n = max(n, 2)
                if c.lane:
                    n = max(n, 1)
                if p.trans and not c.trans:
                    n = max(n, 1)
                if p.sdwa:
                    n = max(n, 1)
            if p.dot and (vw & (c.rd | c.wr)):
                same_c = c.dot and c.base == p.base and not (vw & set().union(*[set(regs_of(o)) for o in c.ops[1:3]]))
                if not same_c:
                    n = max(n, 3)
            if sw & c.rd:
                n = max(n, 4 if (c.lane or c.base.startswith('v_div_fmas')) else 2)
            if ew:
                if c.dpp:
                    n = max(n, 5)
                if c.lane or c.perm:
                    n = max(n, 4)
                if ew & c.rd:
                    n = max(n, 2)
        if c.kind in ('vmem', 'ds') and p.dot and (vw & c.rd):
            n = max(n, 3)
        if c.kind == 'vmem' and (sw & c.rd):
            n = max(n, 5)
        if c.kind == 'salu' and (sw & c.rd):
            n = max(n, 1)
    if p.kind == 'mfma':
        big = {4: 8, 8: 12}[p.passes]
        if c.kind == 'mfma':
            if p.wr & c.ab:
                n = max(n, big)
            if p.wr & c.c:
                if not (p.wr == c.c and p.passes == c.passes):
                    n = max(n, {4: 6, 8: 10}[p.passes])
            elif p.wr & c.wr:
                if not (p.wr == c.wr and p.passes == c.passes):
                    n = max(n, {4: 6, 8: 10}[p.passes])
        elif c.kind in ('valu', 'vmem', 'ds'):
            if p.wr & (c.rd | c.wr):
                n = max(n, big)
            if c.kind == 'valu' and (p.c & c.wr):
                n = max(n, {4: 3, 8: 7}[p.passes])
    if p.kind == 'vmem' and getattr(p, 'wide', False):
        if p.data & c.wr:
            n = max(n, 2 if c.kind in ('valu', 'mfma') else 1)
    if p.kind == 'salu' and 'm0' in p.wr and c.kind == 'vmem' and getattr(c, 'lds', False):
        n = max(n, 1)
    return n


def fix_hazards(lines, verbose=False):
    ins = [Ins(l) for l in lines]
    lab = {x.label: i for i, x in enumerate(ins) if x.kind == 'label'}
    preds_br = {}
    for i, x in enumerate(ins):
        if x.kind == 'branch':
            preds_br.setdefault(lab[x.target], []).append(i)
    MAXD = 12

    def preds(i):
        out = []
        if i > 0:
            p = ins[i - 1]
            if not (p.kind == 'end' or (p.kind == 'branch' and p.mn == 's_branch')):
                out.append(i - 1)
        if ins[i].kind == 'label':
            out += preds_br.get(i, [])
        return out

    def ws(x):
        if x.kind in ('label', 'none'):
            return 0
        return (x.n if x.kind == 'nop' else 1)

    def dist(path):
        t = 0
        tm = path[0].passes if path[0].kind == 'mfma' else 0
        prev = path[0]
        for x in path[1:]:
            if x.kind in ('label', 'none'):
                continue
            t += ws(prev) + x.pre
            if x.kind == 'mfma':
                t = max(t, tm)
                tm = t + x.passes
            prev = x
        return t - 1

    changed = True
    total = 0
    while changed:
        changed = False
        for i, c in enumerate(ins):
            if c.kind in ('label', 'none', 'nop', 'end', 'branch'):
                continue
            worst = 0
            stack = [(j, c.pre, [c]) for j in preds(i)]
            while stack:
                j, d, path = stack.pop()
                if d >= MAXD or len(path) > 40:
                    continue
                p = ins[j]
                path = [p] + path
                n = need(p, c)
                if n > d:
                    dd = dist(path)
                    if n - dd > worst:
                        worst = n - dd
                        why = p.text
                d2 = d + ws(p) + p.pre
                for k in preds(j):
                    stack.append((k, d2, path))
            if worst > 0:
                c.pre += worst
                c.why = why
                total += worst
                changed = True
    out = []
    for x in ins:
        if x.pre:
            out.append('    s_nop %d' % (x.pre - 1) + ('   ; hz: ' + x.why.split(';')[0].strip() if verbose else ''))
        out.append(x.text)
    return out, total


class Asm:
    def __init__(self):
        self.lines = []
        self.uid = 0

    def __call__(self, s):
        for l in s.split('\n'):
            l = l.strip()
            if not l:
                continue
            self.lines.append(l if l.endswith(':') else '    ' + l)

    def label(self, name):
        self.lines.append(name + ':')

    def newlabel(self, prefix='L'):
        self.uid += 1
        return '%s_%d' % (prefix, self.uid)

    def c(self, s):
        self.lines.append('    ; ' + s)


def v(a, n=1):
    return 'v%d' % a if n == 1 else 'v[%d:%d]' % (a, a + n - 1)


def a(a_, n=1):
    return 'a%d' % a_ if n == 1 else 'a[%d:%d]' % (a_, a_ + n - 1)


def s(a_, n=1):
    return 's%d' % a_ if n == 1 else 's[%d:%d]' % (a_, a_ + n - 1)


class Alloc:
    def __init__(self, start, end):
        self.p, self.end = start, end
        self.names = {}

    def __call__(self, name, n=1, align=1):
        if n >= 2:
            align = max(align, 2)
        self.p = (self.p + align - 1) // align * align
        r = self.p
        self.p += n
        assert self.p <= self.end, 'out of registers at ' + name
        self.names[name] = (r, n)
        return r
```

```python
import struct, math
from asmlib import *
from layout import *

NAME = 'gated_mix__memory_aug_recurrent_mem_tr__moe_arch_mod__prompt'


def f32(x):
    return '0x%08x' % struct.unpack('<I', struct.pack('<f', x))[0]


P_X, P_MEM0, P_WQ, P_WK, P_WV, P_WO = 64, 66, 68, 70, 72, 74
P_WR, P_WG, P_WU, P_WD, P_GW, P_OUT, P_DBG, P_WS = 80, 82, 84, 86, 88, 90, 92, 94
WS, DBG = 4, 8
SRD_A, SRD_B, SRD_C, SRD_D, SRD_E = 12, 16, 20, 24, 28
sW, sG, sC, sTO = 32, 33, 34, 35
sX = 100
sT0 = 76
TIMEOUT = 1 << 20
LOG2E = math.log2(math.e)


def srd(A, d, p, nbytes):
    A('s_mov_b32 s%d, s%d' % (d, p))
    A('s_and_b32 s%d, s%d, 0xffff' % (d + 1, p + 1))
    A('s_mov_b32 s%d, 0x%x' % (d + 2, nbytes))
    A('s_mov_b32 s%d, 0x20000' % (d + 3))


def S4(d):
    return s(d, 4)


def timeout_stub(A, back):
    A('s_sub_u32 s%d, s%d, 1' % (sTO, sTO))
    A('s_cbranch_scc0 %s' % back)
    A('s_endpgm')


def arrive_init(A, t0, t1, sa):
    L = A.newlabel('L_arr')
    A('s_barrier')
    A('s_cmp_lg_u32 s%d, 0' % sW)
    A('s_cbranch_scc1 %s' % L)
    A('s_lshl_b32 s%d, s%d, 5' % (sa, sX))
    A('v_mov_b32 v%d, 1' % t0)
    A('v_mov_b32 v%d, 4' % t1)
    A('s_mov_b64 exec, 1')
    A('buffer_atomic_add v%d, v%d, %s, s%d offen sc1' % (t0, t1, S4(DBG), sa))
    A('s_mov_b64 exec, -1')
    A.label(L)


def sum8(A, vx, sa, sb):
    A('v_readlane_b32 s%d, v%d, 0' % (sa, vx))
    for i in range(1, 8):
        A('v_readlane_b32 s%d, v%d, %d' % (sb, vx, i))
        A('s_add_u32 s%d, s%d, s%d' % (sa, sa, sb))


def wait_init(A, t0, t1, sa, sb, total=256):
    L, L2 = A.newlabel('L_wi'), A.newlabel('L_wiok')
    A('v_lshlrev_b32 v%d, 5, v0' % t1)
    A.label(L)
    A('buffer_load_dword v%d, v%d, %s, 0 offen offset:4 sc1' % (t0, t1, S4(DBG)))
    A('s_waitcnt vmcnt(0)')
    sum8(A, t0, sa, sb)
    A('s_cmp_ge_u32 s%d, %d' % (sa, total))
    A('s_cbranch_scc1 %s' % L2)
    A('s_sleep 4')
    timeout_stub(A, L)
    A.label(L2)


def wait_flags(A, vf, vaddr, need, sleep=1):
    L, L2 = A.newlabel('L_wf'), A.newlabel('L_wfok')
    A.label(L)
    A('buffer_load_dword v%d, v%d, %s, 0 offen sc1' % (vf, vaddr, S4(WS)))
    A('s_waitcnt vmcnt(0)')
    A('v_cmp_gt_u32 vcc, %s, v%d' % (need, vf))
    A('s_cbranch_vccz %s' % L2)
    if sleep:
        A('s_sleep %d' % sleep)
    timeout_stub(A, L)
    A.label(L2)


def lane0_addr(A, dst, sval, tmp):
    A('v_mov_b32 v%d, 0x%x' % (tmp, OOB))
    A('v_mov_b32 v%d, s%d' % (dst, sval))
    A('v_cmp_eq_u32 vcc, 0, v0')
    A('v_cndmask_b32 v%d, v%d, v%d, vcc' % (dst, tmp, dst))


def bits(A, dst, terms, tmp, base=None):
    first = True
    for (si, wd, so) in terms:
        A('v_bfe_u32 v%d, v0, %d, %d' % (tmp, si, wd))
        if first:
            A('v_lshlrev_b32 v%d, %d, v%d' % (dst, so, tmp))
            first = False
        else:
            A('v_lshl_add_u32 v%d, v%d, %d, v%d' % (dst, tmp, so, dst))
    if base is not None:
        A('v_add_u32 v%d, %s, v%d' % (dst, base, dst))


def tstamp(A, opt, slot, t0, t1, sa, now=True):
    if not opt.get('prof'):
        return
    if now:
        A('s_memrealtime s[78:79]')
    A('s_lshl_b32 s%d, s%d, 5' % (sa, sG))
    A('s_add_u32 s%d, s%d, s%d' % (sa, sa, sC))
    A('s_lshl_b32 s%d, s%d, 2' % (sa, sa))
    A('s_add_u32 s%d, s%d, s%d' % (sa, sa, sW))
    A('s_lshl_b32 s%d, s%d, 6' % (sa, sa))
    A('s_add_u32 s%d, s%d, 0x%x' % (sa, sa, PROF + 2 * MB + slot * 4))
    A('s_waitcnt lgkmcnt(0)')
    A('v_mov_b32 v%d, s78' % t0)
    A('v_mov_b32 v%d, 0' % t1)
    A('buffer_store_dword v%d, v%d, %s, s%d offen' % (t0, t1, S4(WS), sa))
```

```python
MB = 1 << 20
KX = 0 * MB
VX = 16 * MB
VT = 32 * MB
OO = 48 * MB
KVM = 64 * MB
RING = 72 * MB
MEMR = RING
QKVR = RING + 512 * 1024
FLAGS = 74 * MB
F_KV = FLAGS
F_KVM = FLAGS + 0x1000
F_O = FLAGS + 0x2000
F_TK = FLAGS + 0x3000
F_M1 = FLAGS + 0x4000
F_M2 = FLAGS + 0x4100
F_VOTE = FLAGS + 0x5000
MISC = 75 * MB
KEYS = MISC
GATE = MISC + 0x2000
HH = MISC + 0x10000
YY = MISC + 0x20000
PROF = 80 * MB
PART = 96 * MB
WS_BYTES = 256 * MB
SENT = 0xFFFFFFFF
OOB = 0x40000000
```

```python
from common import *
from workers import load_weights


def orole(A, opt):
    S = Alloc(36, 64)
    sI = S('i')
    sA, sB, sCc, sD, sSeg, sBase, sRot, sHi, sPrev = [S(n) for n in 'a b cc d seg base rot hi prev'.split()]
    sIdx = S('idx', 8)
    cvt = lambda d, x, y: A('v_cvt_pk_bf16_f32 v%d, v%d, v%d' % (d, x, y))

    def rnd2(x, y, t):
        cvt(t, x, y)
        A('v_lshlrev_b32 v%d, 16, v%d' % (x, t))
        A('v_and_b32 v%d, s%d, v%d' % (y, sHi, t))

    def sigmoid(d, x):
        A('v_mul_f32 v%d, %s, v%d' % (d, f32(-LOG2E), x))
        A('v_exp_f32 v%d, v%d' % (d, d))
        A('v_add_f32 v%d, 1.0, v%d' % (d, d))
        A('v_rcp_f32 v%d, v%d' % (d, d))

    V = Alloc(1, 256)
    vL16, vL4, vFl, vKey, vRaw = [V(n) for n in 'l16 l4 fl key raw'.split()]
    t0, t1, t2, t3, t4, t5 = [V('t%d' % i) for i in range(6)]
    vAcc = V('acc', 8, 4)
    vPm = V('perm', 32, 4)
    NB = 6
    vRing = V('ring', 32 * NB, 4)
    A.label('L_o')
    A('s_lshl_b32 s%d, s%d, 2' % (sI, sG))
    A('s_add_u32 s%d, s%d, s%d' % (sI, sI, sC))
    A('s_sub_u32 s%d, s%d, 28' % (sI, sI))
    srd(A, SRD_A, P_WR, 2048)
    srd(A, SRD_B, P_X, 4 * MB)
    srd(A, SRD_C, P_GW, 2048)
    srd(A, SRD_D, P_WG, 7 * MB)
    srd(A, SRD_E, P_WU, 7 * MB)
    A('s_mov_b32 s%d, 0xffff0000' % sHi)
    A('v_lshlrev_b32 v%d, 4, v0' % vL16)
    A('v_lshlrev_b32 v%d, 2, v0' % vL4)
    A('s_cmp_eq_u32 s%d, 0' % sW)
    A('s_cselect_b32 s%d, 0, 0x%x' % (sB, OOB))
    A('s_lshl_b32 s%d, s%d, 2' % (sA, sI))
    A('s_add_u32 s%d, s%d, s%d' % (sA, sA, sB))
    A('s_add_u32 s%d, s%d, 0x%x' % (sA, sA, F_M1))
    lane0_addr(A, vFl, sA, t0)
    A('v_mov_b32 v%d, 0' % t1)
    A('buffer_store_dword v%d, v%d, %s, 0 offen sc1' % (t1, vFl, S4(WS)))
    A('buffer_store_dword v%d, v%d, %s, 0 offen offset:256 sc1' % (t1, vFl, S4(WS)))
    A('s_lshl_b32 s%d, s%d, 7' % (sA, sI))
    A('s_add_u32 s%d, s%d, 0x%x' % (sA, sA, F_TK))
    bits(A, t2, [(0, 5, 2)], t0, 's%d' % sB)
    A('buffer_store_dword v%d, v%d, %s, s%d offen sc1' % (t1, t2, S4(WS), sA))
    for i in range(2):
        A('buffer_load_dwordx4 %s, v%d, %s, 0 offen offset:%d' % (v(vPm + 4 * i, 4), vL16, S4(SRD_A), 1024 * i))
    for i in range(2):
        A('buffer_load_dwordx4 %s, v%d, %s, 0 offen offset:%d' % (v(vPm + 8 + 4 * i, 4), vL16, S4(SRD_C), 1024 * i))
    bits(A, t2, [(0, 4, 11), (4, 2, 4)], t0)
    A('s_lshl_b32 s%d, s%d, 2' % (sA, sI))
    A('s_add_u32 s%d, s%d, s%d' % (sA, sA, sW))
    A('s_lshl_b32 s%d, s%d, 4' % (sD, sA))
    A('s_lshl_b32 s%d, s%d, 15' % (sA, sA))
    for ks in range(32):
        A('buffer_load_dwordx4 %s, v%d, %s, s%d offen offset:%d' % (a(4 * ks, 4), t2, S4(SRD_B), sA, 64 * ks))
    A('v_lshrrev_b32 v%d, 4, v0' % t0)
    A('v_mul_u32_u24 v%d, %d, v%d' % (t0, 8 * 7168, t0))
    A('v_and_b32 v%d, 15, v0' % t3)
    A('v_lshl_add_u32 v%d, v%d, 4, v%d' % (vRaw, t3, t0))
    A('s_cmp_lt_u32 s%d, 28' % sI)
    A('s_cselect_b32 s%d, 0, 0x%x' % (sB, OOB))
    A('v_add_u32 v%d, s%d, v%d' % (vRaw, sB, vRaw))
    A('s_mul_i32 s%d, s%d, %d' % (sBase, sW, 256 * 7168))
    A('s_lshl_b32 s%d, s%d, 8' % (sA, sI))
    A('s_add_u32 s%d, s%d, s%d' % (sBase, sBase, sA))

    def batch(b):
        for i in range(8):
            A('s_add_u32 s%d, s%d, 0x%x' % (sA, sBase, (32 * (b >> 1) + i) * 7168))
            A('buffer_load_dwordx4 %s, v%d, %s, s%d offen' % (v(vRing + 32 * (b % NB) + 4 * i, 4), vRaw, S4((SRD_D, SRD_E)[b & 1]), sA))
    batch(0); batch(1)
    A('s_lshl_b32 s%d, s%d, 12' % (sA, sW))
    A('v_add_u32 v%d, s%d, v%d' % (t3, sA, vL16))
    bits(A, t4, [(0, 1, 11), (4, 2, 4)], t0, 's%d' % sA)
    A('s_waitcnt vmcnt(48)')
    arrive_init(A, t0, t1, sA)
    for i in range(4):
        A('ds_write_b128 v%d, %s offset:%d' % (t3, v(vPm + 4 * i, 4), 1024 * i))
    A('s_waitcnt vmcnt(16) lgkmcnt(0)')
    for k0 in range(0, 32, 8):
        for ks in range(k0, k0 + 8):
            A('ds_read_b128 %s, v%d offset:%d' % (v(vPm + 4 * (ks & 7), 4), t4, 64 * ks))
        A('s_waitcnt lgkmcnt(0)')
        for ks in range(k0, k0 + 8):
            A('v_mfma_f32_16x16x32_bf16 %s, %s, %s, %s' % (v(vAcc, 4), v(vPm + 4 * (ks & 7), 4), a(4 * ks, 4), v(vAcc, 4) if ks else '0'))
    rnd2(vAcc + 1, vAcc, t0)
    sigmoid(t1, vAcc + 1)
    A('v_ashrrev_i32 v%d, 31, v%d' % (t2, vAcc))
    A('v_or_b32 v%d, 0x80000000, v%d' % (t2, t2))
    cvt(t1, t1, t1)
    A('v_and_b32 v%d, s%d, v%d' % (t1, sHi, t1))
    A('v_xor_b32 v%d, v%d, v%d' % (t2, t2, vAcc))
    A('s_sub_u32 s%d, 2047, s%d' % (sA, sD))
    A('v_sub_u32 v%d, s%d, v0' % (t3, sA))
    A('v_and_or_b32 v%d, v%d, s%d, v%d' % (t2, t2, sHi, t3))
    A('v_mov_b32 v%d, 0x%x' % (t3, OOB))
    A('v_cmp_gt_u32 vcc, 16, v0')
    A('v_cndmask_b32 v%d, v%d, v%d, vcc' % (t3, t3, vL4))
    A('s_lshl_b32 s%d, s%d, 2' % (sA, sD))
    A('s_add_u32 s%d, s%d, 0x%x' % (sB, sA, KEYS))
    A('s_add_u32 s%d, s%d, 0x%x' % (sA, sA, GATE))
    A('buffer_store_dword v%d, v%d, %s, s%d offen sc1' % (t2, t3, S4(WS), sB))
    A('buffer_store_dword v%d, v%d, %s, s%d offen sc1' % (t1, t3, S4(WS), sA))
    A('s_waitcnt vmcnt(0)')
    A('s_barrier')
    A('v_mov_b32 v%d, 1' % t1)
    A('buffer_store_dword v%d, v%d, %s, 0 offen sc1' % (t1, vFl, S4(WS)))
    wait_init(A, t0, t1, sA, sB)
    bits(A, t5, [(0, 5, 2)], t0, '0x%x' % F_M1)
    wait_flags(A, t0, t5, '1')
    tstamp(A, opt, 3, t0, t1, sA)
    A('s_mov_b32 s%d, 0x%x' % (sA, KEYS))
    A('s_mov_b32 s%d, 0x%x' % (sB, KEYS + 4096))
    for i in range(8):
        A('buffer_load_dwordx4 %s, v%d, %s, s%d offen offset:%d sc1' % (v(vPm + 4 * i, 4), vL16, S4(WS), (sA, sB)[i >> 2], 1024 * (i & 3)))
    for b in range(2, NB):
        batch(b)
    A('s_mov_b32 s%d, 0' % sPrev)
    A('s_mov_b32 s%d, 0' % sCc)
    A('v_mov_b32 v%d, 0' % vKey)
    A('s_waitcnt vmcnt(%d)' % (8 * (NB - 2)))
    A.label('L_top')
    A('v_mov_b32 v%d, 0' % t0)
    for i in range(0, 32, 2):
        A('v_subrev_u32 v%d, s%d, v%d' % (t1, sPrev, vPm + i))
        A('v_subrev_u32 v%d, s%d, v%d' % (t2, sPrev, vPm + i + 1))
        A('v_max3_u32 v%d, v%d, v%d, v%d' % (t0, t0, t1, t2))
    for sh in (8, 4, 2, 1):
        A('v_max_u32_dpp v%d, v%d, v%d row_ror:%d row_mask:0xf bank_mask:0xf' % (t0, t0, t0, sh))
    for sw in ('v_permlane32_swap_b32', 'v_permlane16_swap_b32'):
        A('v_mov_b32 v%d, v%d' % (t1, t0))
        A('%s v%d, v%d' % (sw, t0, t1))
        A('v_max_u32 v%d, v%d, v%d' % (t0, t0, t1))
    A('v_readfirstlane_b32 s%d, v%d' % (sA, t0))
    A('s_mov_b32 m0, s%d' % sCc)
    A('s_add_u32 s%d, s%d, s%d' % (sPrev, sPrev, sA))
    A('v_writelane_b32 v%d, s%d, m0' % (vKey, sPrev))
    A('s_add_u32 s%d, s%d, 1' % (sCc, sCc))
    A('s_cmp_lt_u32 s%d, 8' % sCc)
    A('s_cbranch_scc1 L_top')
    bits(A, t1, [(0, 3, 2)], t0)
    A('ds_bpermute_b32 v%d, v%d, v%d' % (t2, t1, vKey))
    A('s_waitcnt lgkmcnt(0)')
    A('v_and_b32 v%d, 0x7ff, v%d' % (t2, t2))
    A('v_sub_u32 v%d, 2047, v%d' % (t2, t2))
    A('v_lshlrev_b32 v%d, 11, v%d' % (t2, t2))
    A('v_lshrrev_b32 v%d, 4, v0' % t0)
    A('v_lshl_add_u32 v%d, v%d, 4, v%d' % (t2, t0, t2))
    A('s_lshl_b32 s%d, s%d, 9' % (sA, sW))
    for ks in range(8):
        A('buffer_load_dwordx4 %s, v%d, %s, s%d offen offset:%d' % (a(128 + 4 * ks, 4), t2, S4(SRD_B), sA, 64 * ks))
    A('s_mov_b32 s%d, 0x05040100' % sCc)
    A('s_mov_b32 s%d, 0x07060302' % sD)
    A('s_waitcnt vmcnt(0)')
    for b in range(16):
        if b >= NB:
            A('s_waitcnt vmcnt(%d)' % (8 * min(NB - 1, 15 - b)))
        r0 = vRing + 32 * (b % NB)
        for t in range(8):
            for p in range(4):
                A('v_perm_b32 v%d, v%d, v%d, s%d' % (vPm + 4 * t + p, r0 + 4 * (2 * p + 1) + (t >> 1), r0 + 4 * (2 * p) + (t >> 1), (sCc, sD)[t & 1]))
            if t:
                acc = a(160 + 32 * (b & 1) + 4 * (t - 1), 4)
                A('v_mfma_f32_16x16x32_bf16 %s, %s, %s, %s' % (acc, a(128 + 4 * (b >> 1), 4), v(vPm + 4 * (t - 1), 4), acc if b > 1 else '0'))
        if b + NB < 16:
            batch(b + NB)
        acc = a(160 + 32 * (b & 1) + 28, 4)
        A('v_mfma_f32_16x16x32_bf16 %s, %s, %s, %s' % (acc, a(128 + 4 * (b >> 1), 4), v(vPm + 28, 4), acc if b > 1 else '0'))
    A('s_lshl_b32 s%d, s%d, 14' % (sA, sW))
    A('v_add_u32 v%d, s%d, v%d' % (t3, sA, vL16))
    A('s_barrier')
    for i in range(16):
        A('ds_write_b128 v%d, %s offset:%d' % (t3, a(160 + 4 * i, 4), 1024 * i))
        if i == 7:
            A('s_waitcnt lgkmcnt(0)')
    A('s_and_b32 s%d, s%d, 1' % (sA, sW))
    A('s_lshl_b32 s%d, s%d, 8' % (sA, sA))
    A('s_lshr_b32 s%d, s%d, 1' % (sB, sW))
    A('s_lshl_b32 s%d, s%d, 3' % (sB, sB))
    A('s_add_u32 s%d, s%d, s%d' % (sA, sA, sB))
    bits(A, t3, [(0, 2, 11), (2, 4, 4)], t0, 's%d' % sA)
    A('s_waitcnt lgkmcnt(0)')
    A('s_barrier')
    for m in range(2):
        for tt in range(2):
            for wv in range(4):
                A('ds_read_b64 %s, v%d offset:%d' % (v(vPm + ((m * 2 + tt) * 4 + wv) * 2, 2), t3, wv * 16384 + m * 8192 + tt * 1024))
        A('s_waitcnt lgkmcnt(0)')
    for q in range(4):
        b0 = vPm + 8 * q
        A('v_pk_add_f32 %s, %s, %s' % (v(b0, 2), v(b0, 2), v(b0 + 2, 2)))
        A('v_pk_add_f32 %s, %s, %s' % (v(b0 + 4, 2), v(b0 + 4, 2), v(b0 + 6, 2)))
        A('v_pk_add_f32 %s, %s, %s' % (v(b0, 2), v(b0, 2), v(b0 + 4, 2)))
        rnd2(b0, b0 + 1, t0)
    for tt in range(2):
        b0 = vPm + 8 * tt
        for j in range(2):
            sigmoid(b0 + 2 + j, b0 + j)
            A('v_mul_f32 v%d, v%d, v%d' % (b0 + j, b0 + j, b0 + 2 + j))
        rnd2(b0, b0 + 1, t0)
        for j in range(2):
            A('v_mul_f32 v%d, v%d, v%d' % (b0 + j, b0 + j, b0 + 16 + j))
    cvt(t1, vPm, vPm + 8)
    cvt(t2, vPm + 1, vPm + 9)
    A('s_and_b32 s%d, s%d, 1' % (sA, sW))
    A('s_lshl_b32 s%d, s%d, 2' % (sA, sA))
    A('s_and_b32 s%d, s%d, 2' % (sB, sW))
    A('s_add_u32 s%d, s%d, s%d' % (sA, sA, sB))
    A('s_mul_i32 s%d, s%d, 7168' % (sA, sA))
    A('s_lshl_b32 s%d, s%d, 8' % (sB, sI))
    A('s_add_u32 s%d, s%d, s%d' % (sA, sA, sB))
    A('s_add_u32 s%d, s%d, 0x%x' % (sA, sA, HH))
    A('s_add_u32 s%d, s%d, 7168' % (sB, sA))
    A('s_cmp_lt_u32 s%d, 28' % sI)
    A('s_cselect_b32 s%d, 0, 0x%x' % (sD, OOB))
    A('v_add_u32 v%d, s%d, v%d' % (t3, sD, vL4))
    A('buffer_store_dword v%d, v%d, %s, s%d offen sc1' % (t1, t3, S4(WS), sA))
    A('buffer_store_dword v%d, v%d, %s, s%d offen sc1' % (t2, t3, S4(WS), sB))
    tstamp(A, opt, 4, t0, t4, sA)
    srd(A, SRD_A, P_WD, 7 * MB)
    A('s_mul_i32 s%d, s%d, %d' % (sBase, sW, 896 * 2048))
    A('s_lshl_b32 s%d, s%d, 6' % (sA, sI))
    A('s_add_u32 s%d, s%d, s%d' % (sBase, sBase, sA))

    def h_done():
        A('s_barrier')
        A('v_mov_b32 v%d, 1' % t1)
        A('buffer_store_dword v%d, v%d, %s, 0 offen offset:256 sc1' % (t1, vFl, S4(WS)))
    load_weights(A, SRD_A, sBase, 2048, lambda gi, i: 64 * gi + 16 * i, [(4, 2, 9), (2, 2, 6), (0, 2, 3)],
                 lambda ksl, pp, tile: (32 * ksl + 4 * pp) * 64 + tile * 32, 14, vRaw, t3, t4, t0, sA, sB, 65536, h_done, 4)
    A('v_add_u32 v%d, 256, v%d' % (t5, t5))
    wait_flags(A, t0, t5, '1')
    A('v_and_b32 v%d, 7, v0' % t0)
    A('v_mul_u32_u24 v%d, 7168, v%d' % (t2, t0))
    A('v_lshrrev_b32 v%d, 4, v0' % t0)
    A('v_lshl_add_u32 v%d, v%d, 4, v%d' % (t2, t0, t2))
    A('s_mul_i32 s%d, s%d, 1792' % (sA, sW))
    A('s_add_u32 s%d, s%d, 0x%x' % (sA, sA, HH))
    for ks in range(28):
        A('buffer_load_dwordx4 %s, v%d, %s, s%d offen offset:%d sc1' % (v(vRing + 4 * ks, 4), t2, S4(WS), sA, 64 * ks))
    bits(A, t1, [(3, 3, 2)], t0)
    A('ds_bpermute_b32 v%d, v%d, v%d' % (t5, t1, vKey))
    A('s_lshl_b32 s%d, s%d, 11' % (sA, sW))
    A('v_add_u32 v%d, s%d, v%d' % (t3, sA, vL16))
    bits(A, t4, [(2, 1, 10), (0, 2, 8), (3, 3, 4)], t0)
    A('s_waitcnt lgkmcnt(0)')
    A('v_not_b32 v%d, v%d' % (t1, t5))
    A('v_ashrrev_i32 v%d, 31, v%d' % (t1, t1))
    A('v_or_b32 v%d, 0x80000000, v%d' % (t1, t1))
    A('v_xor_b32 v%d, v%d, v%d' % (t5, t5, t1))
    A('v_and_b32 v%d, s%d, v%d' % (t5, sHi, t5))
    sigmoid(t5, t5)
    cvt(t5, t5, t5)
    A('v_and_b32 v%d, s%d, v%d' % (t5, sHi, t5))
    A('s_waitcnt vmcnt(0)')
    for ks in range(28):
        for ct in range(2):
            acc = v(vAcc + 4 * ct, 4)
            A('v_mfma_f32_16x16x32_bf16 %s, %s, %s, %s' % (acc, a((ks * 2 + ct) * 4, 4), v(vRing + 4 * ks, 4), acc if ks else '0'))
    A('ds_write_b128 v%d, %s' % (t3, v(vAcc, 4)))
    A('ds_write_b128 v%d, %s offset:1024' % (t3, v(vAcc + 4, 4)))
    A('s_waitcnt lgkmcnt(0)')
    A('s_barrier')
    for wv in range(4):
        A('ds_read_b128 %s, v%d offset:%d' % (v(vPm + 4 * wv, 4), t4, wv * 2048))
    A('s_waitcnt lgkmcnt(0)')
    for wv in range(1, 4):
        for h in range(2):
            A('v_pk_add_f32 %s, %s, %s' % (v(vPm + 2 * h, 2), v(vPm + 2 * h, 2), v(vPm + 4 * wv + 2 * h, 2)))
    rnd2(vPm, vPm + 1, t0)
    rnd2(vPm + 2, vPm + 3, t0)
    for i in range(4):
        A('v_mul_f32 v%d, v%d, v%d' % (vPm + i, vPm + i, t5))
    cvt(vPm + 4, vPm, vPm + 1)
    cvt(vPm + 5, vPm + 2, vPm + 3)
    A('v_and_b32 v%d, 0x7ff, v%d' % (t1, vKey))
    A('v_sub_u32 v%d, 2047, v%d' % (t1, t1))
    A('s_cmp_lg_u32 s%d, 0' % sW)
    A('s_cbranch_scc1 L_o_join')
    A('s_lshl_b32 s%d, s%d, 10' % (sA, sI))
    A('s_add_u32 s%d, s%d, 0x%x' % (sA, sA, YY))
    A('v_lshlrev_b32 v%d, 3, v0' % t2)
    A('buffer_store_dwordx2 %s, v%d, %s, s%d offen sc1' % (v(vPm + 4, 2), t2, S4(WS), sA))
    A('buffer_store_dword v%d, v%d, %s, s%d offen offset:512 sc1' % (t1, vL4, S4(WS), sA))
    A('s_lshl_b32 s%d, s%d, 7' % (sA, sI))
    A('s_add_u32 s%d, s%d, 0x%x' % (sA, sA, F_TK + 64))
    lane0_addr(A, t2, sA, t0)
    A('v_mov_b32 v%d, 1' % t1)
    A('s_waitcnt vmcnt(0)')
    A('buffer_store_dword v%d, v%d, %s, 0 offen sc1' % (t1, t2, S4(WS)))

    V = Alloc(1, 256)
    vL16, vTk, vTa, vFa, vFv, vWr, vRr, vXa, vGa, vTok, vG, vOne = [V(n) for n in 'l16 tk ta fa fv wr rr xa ga tok g one'.split()]
    t0, t1, t2, t3 = [V('t%d' % i) for i in range(4)]
    vXv = V('xv', 2)
    vU = V('u', 2)
    vY = V('y', 16, 4)
    vD = V('d', 16, 4)
    vR = V('r', 16, 4)
    vO = V('o', 128, 4)
    LRED = 0
    A.label('L_o_join')
    tstamp(A, opt, 5, t0, t1, sA)
    srd(A, SRD_A, P_WO, 8 * MB)
    srd(A, SRD_B, P_X, 4 * MB)
    srd(A, SRD_C, P_OUT, 4 * MB)
    A('s_mov_b32 s%d, 0xffff0000' % sHi)
    A('v_lshlrev_b32 v%d, 4, v0' % vL16)
    A('s_and_b32 s%d, s%d, 3' % (sRot, sI))
    A('s_lshl_b32 s%d, s%d, 1' % (sRot, sRot))
    A('s_barrier')
    for part in range(4):
        A('s_add_u32 s%d, s%d, %d' % (sA, sRot, 2 * part))
        A('s_and_b32 s%d, s%d, 7' % (sA, sA))
        A('s_lshl_b32 s%d, s%d, 3' % (sB, sW))
        A('s_add_u32 s%d, s%d, s%d' % (sA, sA, sB))
        A('s_lshl_b32 s%d, s%d, 18' % (sA, sA))
        A('s_lshl_b32 s%d, s%d, 6' % (sB, sI))
        A('s_add_u32 s%d, s%d, s%d' % (sIdx + part, sA, sB))
    load_weights(A, SRD_A, lambda gi: sIdx + (gi >> 2), 2048, lambda gi, i: 64 * (gi & 3) + 16 * i,
                 [(2, 1, 10), (4, 2, 8), (3, 1, 6), (0, 2, 3)], lambda ksl, pp, tile: (32 * ksl + 2 * pp) * 64 + tile * 32,
                 16, t1, t2, t3, t0, sA, sB, 65536, None, 4)
    tstamp(A, opt, 6, t0, t1, sA)
    wait_init(A, t0, t1, sA, sB)
    A('s_lshl_b32 s%d, s%d, 7' % (sA, sI))
    A('s_add_u32 s%d, s%d, 0x%x' % (sA, sA, F_TK + 64))
    A('v_mov_b32 v%d, s%d' % (t1, sA))
    wait_flags(A, t0, t1, '1')
    A('s_cmp_eq_u32 s%d, 0' % sW)
    A('s_cselect_b32 s%d, 0, 0x%x' % (sB, OOB))
    A('s_add_u32 s%d, s%d, s%d' % (sA, sA, sB))
    A('s_sub_u32 s%d, s%d, 64' % (sA, sA))
    lane0_addr(A, vTa, sA, t0)
    A('v_mov_b32 v%d, 1' % vTk)
    A('buffer_atomic_add v%d, v%d, %s, 0 offen sc0 sc1' % (vTk, vTa, S4(WS)))
    A('s_lshl_b32 s%d, s%d, 10' % (sA, sI))
    A('s_add_u32 s%d, s%d, 0x%x' % (sA, sA, YY))
    bits(A, t1, [(0, 3, 3)], t0)
    for j in range(8):
        A('buffer_load_dwordx2 %s, v%d, %s, s%d offen offset:%d sc1' % (v(vY + 2 * j, 2), t1, S4(WS), sA, 64 * j))
    A('v_lshlrev_b32 v%d, 2, v0' % t2)
    A('buffer_load_dword v%d, v%d, %s, s%d offen offset:512 sc1' % (t3, t2, S4(WS), sA))
    A('s_lshl_b32 s%d, s%d, 7' % (sA, sW))
    A('s_add_u32 s%d, s%d, 0x%x' % (sA, sA, F_O))
    bits(A, vFa, [(0, 5, 2)], t0, 's%d' % sA)
    A('s_lshl_b32 s%d, s%d, 12' % (sA, sW))
    A('v_add_u32 v%d, s%d, v%d' % (vWr, sA, vL16))
    A('s_lshr_b32 s%d, s%d, 1' % (sA, sW))
    A('s_lshl_b32 s%d, s%d, 10' % (sA, sA))
    A('s_and_b32 s%d, s%d, 1' % (sB, sW))
    A('s_lshl_b32 s%d, s%d, 7' % (sB, sB))
    A('s_add_u32 s%d, s%d, s%d' % (sA, sA, sB))
    bits(A, vRr, [(2, 1, 11), (0, 2, 8), (3, 3, 4)], t0, 's%d' % sA)
    A('s_lshl_b32 s%d, s%d, 14' % (sA, sW))
    A('s_lshl_b32 s%d, s%d, 6' % (sB, sI))
    A('s_add_u32 s%d, s%d, s%d' % (sA, sA, sB))
    bits(A, vXa, [(3, 3, 11), (0, 3, 3)], t0, 's%d' % sA)
    A('s_lshl_b32 s%d, s%d, 5' % (sA, sW))
    A('s_add_u32 s%d, s%d, 0x%x' % (sA, sA, GATE))
    bits(A, vGa, [(3, 3, 2)], t0, 's%d' % sA)
    A('v_mov_b32 v%d, 0' % vFv)
    A('v_mov_b32 v%d, 32768' % vOne)
    A('s_waitcnt vmcnt(0)')
    for j in range(8):
        A('v_readlane_b32 s%d, v%d, %d' % (sIdx + j, t3, j))
    A('s_cmp_lg_u32 s%d, 0' % sW)
    A('s_cbranch_scc1 L_o_t0')
    A('s_mov_b64 exec, 1')
    A('ds_write_b32 v%d, v%d' % (vOne, vTk))
    A('s_mov_b64 exec, -1')
    A.label('L_o_t0')
    A('s_waitcnt lgkmcnt(0)')
    A('s_barrier')
    A('ds_read_b32 v%d, v%d' % (t0, vOne))
    A('s_waitcnt lgkmcnt(0)')
    A('v_readfirstlane_b32 s%d, v%d' % (sSeg, t0))
    A('v_xor_b32 v%d, 4, v%d' % (vOne, vOne))

    A('.p2align 6')
    A.label('L_o_loop')
    A('s_cmp_ge_u32 s%d, 64' % sSeg)
    A('s_cbranch_scc1 L_o_end')
    A('s_add_u32 s%d, s%d, 1' % (sD, sSeg))
    A('v_cmp_gt_u32 vcc, s%d, v%d' % (sD, vFv))
    A('s_cbranch_vccz L_o_go')
    wait_flags(A, vFv, vFa, 's%d' % sD, 1)
    A.label('L_o_go')
    A('s_lshl_b32 s%d, s%d, 18' % (sBase, sSeg))
    A('s_lshl_b32 s%d, s%d, 16' % (sA, sW))
    A('s_add_u32 s%d, s%d, s%d' % (sBase, sBase, sA))
    A('s_add_u32 s%d, s%d, 0x%x' % (sBase, sBase, OO))

    def head_loads(hl):
        ops = ['s_add_u32 s%d, s%d, %d' % (sA, sRot, hl), 's_and_b32 s%d, s%d, 7' % (sA, sA), 's_lshl_b32 s%d, s%d, 13' % (sA, sA),
               's_add_u32 s%d, s%d, s%d' % (sA, sA, sBase), 's_add_u32 s%d, s%d, 4096' % (sB, sA)]
        lo = []
        for j in range(4):
            for tt2 in range(2):
                lo.append('buffer_load_dwordx4 %s, v%d, %s, s%d offen offset:%d sc1' % (v(vO + 32 * (hl & 3) + (j * 2 + tt2) * 4, 4), vL16, S4(WS), (sA, sB)[tt2], j * 1024))
        return ops, lo
    for hl in range(4):
        ops, lo = head_loads(hl)
        for o in ops + lo:
            A(o)
    for hl in range(8):
        ops, lo = head_loads(hl + 4) if hl < 4 else ([], [])
        for o in ops:
            A(o)
        for j in range(4):
            for tt2 in range(2):
                f = j * 2 + tt2
                younger = 31 if hl < 4 else (7 - hl) * 8 + 7 - f + 3
                A('s_waitcnt vmcnt(%d)' % younger)
                for ct in range(2):
                    acc = v(vD + (ct * 2 + tt2) * 4, 4)
                    first = hl == 0 and j == 0
                    A('v_mfma_f32_16x16x32_bf16 %s, %s, %s, %s' % (acc, a(((hl * 4 + j) * 2 + ct) * 4, 4), v(vO + 32 * (hl & 3) + f * 4, 4), '0' if first else acc))
                if lo:
                    A(lo[f])
        if hl == 3:
            A('s_lshl_b32 s%d, s%d, 16' % (sCc, sSeg))
            A('s_lshl_b32 s%d, s%d, 7' % (sA, sSeg))
            A('v_mov_b32 v%d, 1' % vTk)
            A('buffer_load_dwordx2 %s, v%d, %s, s%d offen' % (v(vXv, 2), vXa, S4(SRD_B), sCc))
            A('buffer_load_dword v%d, v%d, %s, s%d offen sc1' % (vG, vGa, S4(WS), sA))
            A('buffer_atomic_add v%d, v%d, %s, 0 offen sc0 sc1' % (vTk, vTa, S4(WS)))
    A('s_lshl_b32 s%d, s%d, 2' % (sA, sSeg))
    A('s_add_u32 s%d, s%d, s%d' % (sA, sA, sW))
    A('s_lshl_b32 s%d, s%d, 3' % (sA, sA))
    A('v_lshrrev_b32 v%d, 3, v0' % vTok)
    A('v_add_u32 v%d, s%d, v%d' % (vTok, sA, vTok))
    A('v_mov_b32 v%d, 0' % vU)
    A('v_mov_b32 v%d, 0' % (vU + 1))
    for i in range(4):
        A('ds_write_b128 v%d, %s offset:%d' % (vWr, v(vD + 4 * i, 4), 1024 * i))
    A('s_waitcnt vmcnt(0)')
    A('s_cmp_lg_u32 s%d, 0' % sW)
    A('s_cbranch_scc1 L_o_t1')
    A('s_mov_b64 exec, 1')
    A('ds_write_b32 v%d, v%d' % (vOne, vTk))
    A('s_mov_b64 exec, -1')
    A.label('L_o_t1')
    A('s_waitcnt lgkmcnt(0)')
    A('s_barrier')
    for wv in range(4):
        A('ds_read_b128 %s, v%d offset:%d' % (v(vR + 4 * wv, 4), vRr, wv * 4096))
    A('ds_read_b32 v%d, v%d' % (t3, vOne))
    for j in range(8):
        A('v_cmp_eq_u32 vcc, s%d, v%d' % (sIdx + j, vTok))
        A('v_cndmask_b32 v%d, v%d, v%d, vcc' % (vU, vU, vY + 2 * j))
        A('v_cndmask_b32 v%d, v%d, v%d, vcc' % (vU + 1, vU + 1, vY + 2 * j + 1))
    vB = vD
    for h in range(2):
        A('v_lshlrev_b32 v%d, 16, v%d' % (vB + 2 * h, vXv + h))
        A('v_and_b32 v%d, s%d, v%d' % (vB + 2 * h + 1, sHi, vXv + h))
        A('v_lshlrev_b32 v%d, 16, v%d' % (vB + 4 + 2 * h, vU + h))
        A('v_and_b32 v%d, s%d, v%d' % (vB + 4 + 2 * h + 1, sHi, vU + h))
        A('v_pk_add_f32 %s, %s, %s' % (v(vB + 2 * h, 2), v(vB + 2 * h, 2), v(vB + 4 + 2 * h, 2)))
        rnd2(vB + 2 * h, vB + 2 * h + 1, t0)
    A('v_sub_f32 v%d, 1.0, v%d' % (t1, vG))
    cvt(t1, t1, t1)
    A('v_and_b32 v%d, s%d, v%d' % (t1, sHi, t1))
    for i in range(4):
        A('v_mul_f32 v%d, v%d, v%d' % (vB + i, vB + i, t1))
    rnd2(vB, vB + 1, t0)
    rnd2(vB + 2, vB + 3, t0)
    A('v_xor_b32 v%d, 0x4000, v%d' % (vWr, vWr))
    A('s_waitcnt lgkmcnt(0)')
    A('v_readfirstlane_b32 s%d, v%d' % (sSeg, t3))
    A('v_xor_b32 v%d, 0x4000, v%d' % (vRr, vRr))
    A('v_xor_b32 v%d, 4, v%d' % (vOne, vOne))
    for wv in range(1, 4):
        for h in range(2):
            A('v_pk_add_f32 %s, %s, %s' % (v(vR + 2 * h, 2), v(vR + 2 * h, 2), v(vR + 4 * wv + 2 * h, 2)))
    rnd2(vR, vR + 1, t0)
    rnd2(vR + 2, vR + 3, t0)
    for i in range(4):
        A('v_mul_f32 v%d, v%d, v%d' % (vR + i, vR + i, vG))
    rnd2(vR, vR + 1, t0)
    rnd2(vR + 2, vR + 3, t0)
    for h in range(2):
        A('v_pk_add_f32 %s, %s, %s' % (v(vR + 2 * h, 2), v(vR + 2 * h, 2), v(vB + 2 * h, 2)))
        cvt(vU + h, vR + 2 * h, vR + 2 * h + 1)
    A('buffer_store_dwordx2 %s, v%d, %s, s%d offen' % (v(vU, 2), vXa, S4(SRD_C), sCc))
    A('s_branch L_o_loop')
    A.label('L_o_end')
    tstamp(A, opt, 7, t0, t1, sA)
    A('s_endpgm')
```

```python
from common import *

XROW = 2064
XBUF = 32 * XROW
LSCR = 2 * XBUF


def load_weights(A, srdw, sBase, row_bytes, rows_of, tr_lane_terms, tr_off, ngroups, vRaw, vWr, vTr, t0, sa, sb,
                 scr, after_first=None, pre_out=0):
    bits(A, vRaw, [(0, 2, 4)], t0)
    A('v_lshrrev_b32 v%d, 2, v0' % t0)
    A('s_mov_b32 s%d, %d' % (sa, row_bytes))
    A('v_mul_lo_u32 v%d, v%d, s%d' % (t0, t0, sa))
    A('v_add_u32 v%d, v%d, v%d' % (vRaw, vRaw, t0))
    A('s_lshl_b32 s%d, s%d, 12' % (sa, sW))
    A('s_add_u32 s%d, s%d, %d' % (sa, sa, scr))
    bits(A, vWr, [(0, 6, 4)], t0, 's%d' % sa)
    bits(A, vTr, tr_lane_terms, t0, 's%d' % sa)
    depth = min(ngroups, (60 - pre_out) // 4)

    def issue(gi):
        for i in range(4):
            A('s_add_u32 s%d, s%d, 0x%x' % (sb, sBase(gi) if callable(sBase) else sBase, rows_of(gi, i) * row_bytes))
            A('buffer_load_dwordx4 %s, v%d, %s, s%d offen' % (a(16 * gi + 4 * i, 4), vRaw, S4(srdw), sb))
    for gi in range(depth):
        issue(gi)
    issued = depth
    for gi in range(ngroups):
        A('s_waitcnt vmcnt(%d)' % ((issued - 1 - gi) * 4))
        if gi == 0 and after_first:
            after_first()
        while issued < ngroups and issued - (gi + 1) < 14:
            issue(issued)
            issued += 1
        for i in range(4):
            A('ds_write_b128 v%d, %s offset:%d' % (vWr, a(16 * gi + 4 * i, 4), i * 1024))
        for ksl in range(2):
            for tile in range(2):
                for pp in range(2):
                    A('ds_read_b64_tr_b16 %s, v%d offset:%d' % (a(16 * gi + (ksl * 2 + tile) * 4 + 2 * pp, 2), vTr, tr_off(ksl, pp, tile)))
        A('s_waitcnt lgkmcnt(0)')


def sel_frag(A, dst, et, t0, t1):
    A('v_bfe_u32 v%d, v0, 2, 2' % t0)
    A('v_lshrrev_b32 v%d, 4, v0' % t1)
    A('v_cmp_eq_u32 vcc, v%d, v%d' % (t0, t1))
    A('v_mov_b32 v%d, 0x%x' % (t1, 0x3f80 << (16 * et)))
    A('v_cndmask_b32 v%d, 0, v%d, vcc' % (t1, t1))
    A('v_and_b32 v%d, 3, v0' % t0)
    for i in range(4):
        A('v_cmp_eq_u32 vcc, %d, v%d' % (i, t0))
        A('v_cndmask_b32 v%d, 0, v%d, vcc' % (dst + i, t1))


def proj(A, opt, kind):
    P = 'L_' + kind
    V = Alloc(1, 256)
    vL16, vRd, vRdSum, vFl, vArm = [V(n) for n in 'l16 rd rdsum fl arm'.split()]
    t0, t1, t2, t3 = V('t0'), V('t1'), V('t2'), V('t3')
    vX = V('x', 32, 4)
    vD = V('d', 16, 4)
    vF = V('f', 8, 4)
    vJ = V('junk', 4, 4)
    S = Alloc(36, 64)
    sH, sSeg, sXo, sM, sMsum, sOut, sOut2, sArm, sPf, sA, sB, sCc = [S(n) for n in 'h seg xo m msum out out2 arm pf a b cc'.split()]
    base = {'k': 16, 'v': 20, 'q': 24}[kind]
    A.label(P)
    srd(A, SRD_A, {'k': P_WK, 'v': P_WV, 'q': P_WQ}[kind], 8 * MB)
    srd(A, SRD_B, P_X, 4 * MB)
    A('s_lshl_b32 s%d, s%d, 2' % (sH, sG))
    A('s_add_u32 s%d, s%d, s%d' % (sH, sH, sC))
    A('s_sub_u32 s%d, s%d, %d' % (sH, sH, base))
    A('v_lshlrev_b32 v%d, 4, v0' % vL16)
    if kind == 'q':
        A('s_lshl_b32 s%d, s%d, 4' % (sA, sH))
        A('s_add_u32 s%d, s%d, 0x%x' % (sA, sA, F_O))
    else:
        A('s_lshl_b32 s%d, s%d, 7' % (sA, sH))
        A('s_add_u32 s%d, s%d, 0x%x' % (sA, sA, F_KV + (16 if kind == 'v' else 0)))
    A('s_lshl_b32 s%d, s%d, 2' % (sB, sW))
    A('s_add_u32 s%d, s%d, s%d' % (sA, sA, sB))
    lane0_addr(A, vFl, sA, t0)
    A('v_mov_b32 v%d, 0' % t1)
    A('buffer_store_dword v%d, v%d, %s, 0 offen sc1' % (t1, vFl, S4(WS)))
    npre = 1
    if kind == 'q':
        A('s_cmp_eq_u32 s%d, 0' % sH)
        A('s_cselect_b32 s%d, 0x%x, s7' % (sA, F_VOTE))
        A('s_cselect_b32 s%d, 0, 0x%x' % (sB, OOB))
        A('v_add_u32 v%d, s%d, v%d' % (t2, sB, vL16))
        A('buffer_store_dword v%d, v%d, %s, s%d offen sc1' % (t1, t2, S4(WS), sA))
        npre += 1
    A('v_and_b32 v%d, 15, v0' % t0)
    A('v_mul_u32_u24 v%d, %d, v%d' % (vRd, XROW, t0))
    A('v_lshrrev_b32 v%d, 4, v0' % t0)
    A('v_lshl_add_u32 v%d, v%d, 8, v%d' % (vRd, t0, vRd))
    A('v_lshlrev_b32 v%d, 1, v%d' % (vRdSum, vRd))
    A('v_add_u32 v%d, %d, v%d' % (vRdSum, XBUF, vRdSum))
    A('s_mul_i32 s%d, s%d, %d' % (sM, sW, 8 * XROW))
    A('s_lshl_b32 s%d, s%d, 1' % (sMsum, sM))
    A('s_add_u32 s%d, s%d, %d' % (sMsum, sMsum, XBUF))
    A('s_lshl_b32 s%d, s%d, 14' % (sXo, sW))

    def dma_row(i):
        return ['s_add_u32 m0, s%d, %d' % (sM, i * XROW), 's_add_u32 s%d, s%d, %d' % (sA, sXo, i * 2048),
                'buffer_load_dwordx4 v%d, %s, s%d offen lds' % (vL16, S4(SRD_B), sA),
                'buffer_load_dwordx4 v%d, %s, s%d offen offset:1024 lds' % (vL16, S4(SRD_B), sA)]
    for i in range(8):
        for o in dma_row(i):
            A(o)
    npre += 16
    A('s_sub_u32 s%d, s%d, s%d' % (sM, sMsum, sM))
    A('s_add_u32 s%d, s%d, 0x10000' % (sXo, sXo))
    A('s_lshl_b32 s%d, s%d, 8' % (sCc, sH))
    A('s_lshl_b32 s%d, s%d, 6' % (sA, sW))
    A('s_add_u32 s%d, s%d, s%d' % (sCc, sCc, sA))
    load_weights(A, SRD_A, sCc, 8192, lambda gi, i: 16 * (gi & 7) + 128 * i + 512 * (gi >> 3),
                 [(4, 2, 10), (2, 2, 6), (0, 2, 3)], lambda ksl, pp, tile: (8 * ksl + 4 * pp) * 64 + tile * 32,
                 16, vX, vX + 1, vX + 2, t0, sA, sB, LSCR, lambda: arrive_init(A, t0, t1, sA), npre)
    tstamp(A, opt, 1, t0, t1, sA)
    A('s_lshl_b32 s%d, s%d, 13' % (sOut, sH))
    if kind != 'q':
        A('s_lshl_b32 s%d, s%d, 11' % (sA, sW))
        A('s_add_u32 s%d, s%d, s%d' % (sOut2, sOut, sA))
        A('s_add_u32 s%d, s%d, 0x%x' % (sOut2, sOut2, VT))
        A('s_lshl_b32 s%d, s%d, 10' % (sA, sW))
        A('s_add_u32 s%d, s%d, s%d' % (sOut, sOut, sA))
        A('s_add_u32 s%d, s%d, 0x%x' % (sOut, sOut, KX if kind == 'k' else VX))
        bits(A, vArm, [(4, 2, 14), (0, 4, 4)], t0)
        A('s_lshl_b32 s%d, s%d, 16' % (sArm, sW))
        A('s_and_b32 s%d, s%d, 3' % (sA, sH))
        A('s_lshl_b32 s%d, s%d, 11' % (sA, sA))
        A('s_add_u32 s%d, s%d, s%d' % (sArm, sArm, sA))
        A('s_lshr_b32 s%d, s%d, 2' % (sA, sH))
        A('s_lshl_b32 s%d, s%d, 8' % (sA, sA))
        A('s_add_u32 s%d, s%d, s%d' % (sArm, sArm, sA))
        A('s_add_u32 s%d, s%d, %d' % (sArm, sArm, 0x2000 if kind == 'v' else 0))
        A('v_add_u32 v%d, s%d, v%d' % (vArm, sArm, vArm))
        A('s_mov_b32 s%d, 0x%x' % (sArm, PART))
        vSent = V('sent', 4, 4)
        for i in range(4):
            A('v_mov_b32 v%d, -1' % (vSent + i))
        A('s_sub_u32 s%d, s%d, 16' % (sPf, sC))
        A('s_lshl_b32 s%d, s%d, 2' % (sPf, sPf))
        A('s_add_u32 s%d, s%d, s%d' % (sPf, sPf, sW))
        A('s_lshl_b32 s%d, s%d, 11' % (sPf, sPf))
        A('s_add_u32 s%d, s%d, 0x20000' % (sPf, sPf))
    if kind == 'v':
        vSel = V('sel', 8, 4)
        vD2 = V('d2', 16, 4)
        vG = V('g', 8, 4)
        sel_frag(A, vSel, 0, t0, t1)
        sel_frag(A, vSel + 4, 1, t0, t1)
    cvt = lambda d, x, y: A('v_cvt_pk_bf16_f32 v%d, v%d, v%d' % (d, x, y))
    ldx4 = lambda dst, so, off: 'buffer_load_dwordx4 %s, v%d, %s, s%d offen offset:%d sc1' % (v(dst, 4), vL16, S4(WS), so, off)
    stx4 = lambda src, so, off: 'buffer_store_dwordx4 %s, v%d, %s, s%d offen offset:%d sc1' % (v(src, 4), vL16, S4(WS), so, off)
    if kind == 'q':
        vQw, vIdx, vFm, vFv = V('qw'), V('idx'), V('fm'), V('fv')
        vQr = vArm
        vKx = V('kx', 32, 4)
        vVT = V('vt', 16, 4)
        vKm, vVm = V('km', 8, 4), V('vm', 4, 4)
        vQ = vX
        vD3 = vX + 16
        vO = vD
        vS = V('s', 8, 4)
        MM = V('mm', 4, 4)
        vBias = V('bias', 8, 4)
        vStrip = V('strip', 20, 4)
        vLs = V('ls', 4, 4)
        vP = V('p', 4, 4)
        vOne = V('one', 4, 4)
        vVmT = V('vmt', 8, 4)
        vPm, vHalf = V('pm', 2), V('half', 2)
        sKx, sKx2, sVt, sKm, sVm, sScale, sNeed, sGot = [S(n) for n in 'kx kx2 vt km vm scale need got'.split()]
        A('s_add_u32 s%d, s%d, 0x%x' % (sKx, sOut, KX))
        A('s_add_u32 s%d, s%d, 4096' % (sKx2, sKx))
        A('s_lshr_b32 s%d, s%d, 1' % (sA, sW))
        A('s_lshl_b32 s%d, s%d, 12' % (sB, sA))
        A('s_add_u32 s%d, s%d, s%d' % (sVt, sOut, sB))
        A('s_add_u32 s%d, s%d, 0x%x' % (sVt, sVt, VT))
        A('s_lshl_b32 s%d, s%d, 12' % (sKm, sH))
        A('s_add_u32 s%d, s%d, 0x%x' % (sKm, sKm, KVM))
        A('s_lshl_b32 s%d, s%d, 10' % (sB, sA))
        A('s_add_u32 s%d, s%d, s%d' % (sVm, sKm, sB))
        A('s_lshl_b32 s%d, s%d, 11' % (sB, sA))
        A('s_add_u32 s%d, s%d, s%d' % (sOut, sOut, sB))
        A('s_and_b32 s%d, s%d, 1' % (sA, sW))
        A('s_lshl_b32 s%d, s%d, 12' % (sB, sA))
        A('s_add_u32 s%d, s%d, s%d' % (sOut, sOut, sB))
        A('s_add_u32 s%d, s%d, 0x%x' % (sOut, sOut, OO))
        A('s_add_u32 s%d, s%d, %d' % (sB, sB, LSCR))
        A('v_add_u32 v%d, s%d, v%d' % (vQr, sB, vL16))
        A('s_lshl_b32 s%d, s%d, 10' % (sB, sW))
        A('s_add_u32 s%d, s%d, %d' % (sB, sB, LSCR))
        A('v_add_u32 v%d, s%d, v%d' % (vQw, sB, vL16))
        A('s_mov_b32 s%d, %s' % (sScale, f32(128 ** -0.5 * LOG2E)))
        A('s_lshl_b32 s%d, s%d, 4' % (sA, sA))
        A('v_and_b32 v%d, 15, v0' % t0)
        A('v_add_u32 v%d, s%d, v%d' % (t0, sA, t0))
        A('v_lshrrev_b32 v%d, 4, v0' % t1)
        A('v_lshlrev_b32 v%d, 2, v%d' % (t1, t1))
        A('v_sub_u32 v%d, v%d, v%d' % (t0, t0, t1))
        A('v_mov_b32 v%d, %s' % (t1, f32(-1e30)))
        for i in range(8):
            A('v_cmp_gt_i32 vcc, %d, v%d' % (16 * (i >> 2) + (i & 3), t0))
            A('v_cndmask_b32 v%d, 0, v%d, vcc' % (vBias + i, t1))
        for i in range(20):
            A('v_mov_b32 v%d, 0' % (vStrip + i))
        sel_frag(A, vStrip + 4, 0, t0, t1)
        sel_frag(A, vStrip + 12, 1, t0, t1)
        for i in range(4):
            A('v_mov_b32 v%d, 0x3f803f80' % (vOne + i))
        for i in range(2):
            A('v_mov_b32 v%d, 0x3f003f00' % (vHalf + i))
        A('v_and_b32 v%d, 8, v0' % t0)
        A('v_cmp_eq_u32 vcc, 0, v%d' % t0)
        A('v_mov_b32 v%d, 0xeeee' % t1)
        A('v_mov_b32 v%d, 0x4444' % t2)
        A('v_cndmask_b32 v%d, v%d, v%d, vcc' % (vIdx, t1, t2))
        A('s_lshl_b32 s%d, s%d, 7' % (sA, sH))
        A('s_add_u32 s%d, s%d, 0x%x' % (sB, sA, F_KVM))
        bits(A, vFm, [(0, 4, 2)], t0, 's%d' % sB)
        A('s_add_u32 s%d, s%d, 0x%x' % (sB, sA, F_KV))
        bits(A, t3, [(0, 3, 2)], t0, 's%d' % sB)
        wait_init(A, t0, t1, sA, sB)
        if not opt.get('novote'):
            vote(A, sH, t0, t1, t2, sA, sB, sCc, sArm, sPf, sOut2)
        wait_flags(A, t0, t3, '1')

    A('s_mov_b32 s%d, 0' % sSeg)
    A('s_waitcnt vmcnt(0)')
    A('s_barrier')
    A('.p2align 6')
    A.label(P + '_loop')
    rd = lambda ks, tt2: A('ds_read_b128 %s, v%d offset:%d' % (v(vX + (ks & 3) * 8 + tt2 * 4, 4), vRd, tt2 * 16 * XROW + 16 * (ks & 15) + 1024 * (ks >> 4)))
    for ks in range(3):
        rd(ks, 0); rd(ks, 1)
    fill = {}
    for i in range(8):
        d = dma_row(i)
        fill[(i, 0)] = d[0:2]
        fill[(i, 1)] = d[2:3]
        fill[(i, 3)] = d[3:4]
    nv = 16
    if kind != 'q':
        fill[(8, 0)] = ['buffer_load_dwordx4 %s, v%d, %s, s%d offen' % (v(vJ, 4), vL16, S4(SRD_B), sPf)]
        fill[(9, 0)] = ['buffer_load_dwordx4 %s, v%d, %s, s%d offen offset:1024' % (v(vJ, 4), vL16, S4(SRD_B), sPf)]
        fill[(9, 2)] = ['s_add_u32 s%d, s%d, 0x10000' % (sPf, sPf)]
        nv += 2
    fill[(13, 0)] = ['v_mov_b32 v%d, s%d' % (t3, sSeg)]
    fill[(14, 0)] = ['s_waitcnt vmcnt(%d)' % nv, 'buffer_store_dword v%d, v%d, %s, 0 offen sc1' % (t3, vFl, S4(WS))]
    nv += 1
    fill[(15, 0)] = ['s_sub_u32 s%d, s%d, s%d' % (sM, sMsum, sM), 's_add_u32 s%d, s%d, 0x10000' % (sXo, sXo)]
    if kind == 'q':
        fill[(15, 2)] = ['buffer_load_dword v%d, v%d, %s, 0 offen sc1' % (vFv, vFm, S4(WS)), 's_add_u32 s%d, s%d, 1' % (sNeed, sSeg)]
        lds_ = [ldx4(vKx + 4 * f, (sKx, sKx2)[f >> 2], (f & 3) * 1024) for f in range(8)] + [ldx4(vVT + 4 * f, sVt, f * 1024) for f in range(4)]
        for i, o in enumerate(lds_):
            fill[(16 + i, 0)] = [o]
        ld_m = [ldx4(vKm, sKm, 0), ldx4(vKm + 4, sKm, 1024), ldx4(vVm, sVm, 2048)]
        fill[(28, 0)] = ['s_waitcnt vmcnt(12)', 'v_cmp_gt_u32 vcc, s%d, v%d' % (sNeed, vFv), 's_mov_b32 s%d, 0' % sGot]
        fill[(28, 2)] = ['s_cbranch_vccnz L_q_ne'] + ld_m + ['s_mov_b32 s%d, 1' % sGot, 'L_q_ne:']
    for ks in range(32):
        if ks + 3 < 32:
            rd(ks + 3, 0); rd(ks + 3, 1)
        A('s_waitcnt lgkmcnt(%d)' % (2 * min(3, 31 - ks)))
        n = 0
        for tt2 in range(2):
            for tt in range(2):
                acc = v(vD + (tt * 2 + tt2) * 4, 4)
                A('v_mfma_f32_16x16x32_bf16 %s, %s, %s, %s' % (acc, a((ks * 2 + tt) * 4, 4), v(vX + (ks & 3) * 8 + tt2 * 4, 4), acc if ks else '0'))
                for o in fill.get((ks, n), []):
                    A(o)
                n += 1
    A('v_sub_u32 v%d, v%d, v%d' % (vRd, vRdSum, vRd))
    for tt2 in range(2):
        for j in range(4):
            cvt(vF + 4 * tt2 + j, vD + 4 * tt2 + j, vD + 8 + 4 * tt2 + j)
    if kind != 'q':
        A('s_add_u32 s%d, s%d, 4096' % (sA, sOut))
        A(stx4(vF, sOut, 0))
        A(stx4(vF + 4, sA, 0))
        A('buffer_store_dwordx4 %s, v%d, %s, s%d offen sc1' % (v(vSent, 4), vArm, S4(WS), sArm))
        ne = 3
        if kind == 'v':
            for et in range(2):
                for tt2 in range(2):
                    A('v_mfma_f32_16x16x32_bf16 %s, %s, %s, 0' % (v(vD2 + (et * 2 + tt2) * 4, 4), v(vF + 4 * tt2, 4), v(vSel + 4 * et, 4)))
            for et in range(2):
                for i in range(4):
                    cvt(vG + 4 * et + i, vD2 + 8 * et + 2 * i, vD2 + 8 * et + 2 * i + 1)
                A(stx4(vG + 4 * et, sOut2, et * 1024))
            A('s_add_u32 s%d, s%d, 0x40000' % (sOut2, sOut2))
            ne += 2
        A('s_add_u32 s%d, s%d, 0x40000' % (sArm, sArm))
        A('s_and_b32 s%d, s%d, 0x1c0000' % (sA, sArm))
        A('s_cmp_eq_u32 s%d, 0x1c0000' % sA)
        A('s_cselect_b32 s%d, 0x40000, 0' % sA)
        A('s_add_u32 s%d, s%d, s%d' % (sArm, sArm, sA))
        A('s_waitcnt vmcnt(%d)' % (nv - 16 + ne))
    else:
        A('ds_write_b128 v%d, %s' % (vQw, v(vF, 4)))
        A('ds_write_b128 v%d, %s offset:4096' % (vQw, v(vF + 4, 4)))
        for i in range(4):
            A('v_mov_b32 v%d, 0' % (MM + i))
        for i in range(16):
            A('v_mov_b32 v%d, 0' % (vD3 + i))
            if i & 3 == 3:
                A('s_nop 0')
        A('s_waitcnt lgkmcnt(0)')
        A('s_barrier')
        for j in range(4):
            A('ds_read_b128 %s, v%d offset:%d' % (v(vQ + 4 * j, 4), vQr, j * 1024))
        A('s_cmp_eq_u32 s%d, 1' % sGot)
        A('s_cbranch_scc1 L_q_got')
        wait_flags(A, vFv, vFm, 's%d' % sNeed, 0)
        for o in ld_m:
            A(o)
        A.label('L_q_got')
        A('s_waitcnt vmcnt(3) lgkmcnt(0)')
        for j in range(4):
            for tt in range(2):
                acc = v(vS + 4 * tt, 4)
                A('v_mfma_f32_16x16x32_bf16 %s, %s, %s, %s' % (acc, v(vKx + (tt * 4 + j) * 4, 4), v(vQ + 4 * j, 4), acc if j else v(vBias + 4 * tt, 4)))
        A('s_waitcnt vmcnt(0)')
        for u in range(2):
            A('v_smfmac_f32_16x16x64_bf16 %s, %s, %s, v%d' % (v(MM, 4), v(vKm + 4 * u, 4), v(vQ + 8 * u, 8), vIdx))
        win = {(0, 0): 4, (1, 0): 0, (0, 1): 12, (1, 1): 8}
        for qp in range(2):
            for et in range(2):
                A('v_smfmac_f32_16x16x64_bf16 %s, %s, %s, v%d' % (v(vD3 + (qp * 2 + et) * 4, 4), v(vVm, 4), v(vStrip + win[(qp, et)], 8), vIdx))
        A('v_max3_f32 v%d, v%d, v%d, v%d' % (t0, vS, vS + 1, vS + 2))
        A('v_max3_f32 v%d, v%d, v%d, v%d' % (t0, t0, vS + 3, vS + 4))
        A('v_max3_f32 v%d, v%d, v%d, v%d' % (t0, t0, vS + 5, vS + 6))
        A('v_permlane32_swap_b32 v%d, v%d' % (MM, MM + 2))
        A('v_permlane32_swap_b32 v%d, v%d' % (MM + 1, MM + 3))
        A('v_pk_add_f32 %s, %s, %s' % (v(MM, 2), v(MM, 2), v(MM + 2, 2)))
        A('v_max_f32 v%d, v%d, v%d' % (t0, t0, vS + 7))
        A('v_max3_f32 v%d, v%d, v%d, v%d' % (t0, t0, MM, MM + 1))
        for sw in ('v_permlane32_swap_b32', 'v_permlane16_swap_b32'):
            A('v_mov_b32 v%d, v%d' % (t1, t0))
            A('%s v%d, v%d' % (sw, t0, t1))
            A('v_max_f32 v%d, v%d, v%d' % (t0, t0, t1))
        A('v_mul_f32 v%d, s%d, v%d' % (t0, sScale, t0))
        regs = [vS + i for i in range(8)] + [MM, MM + 1]
        for r_ in regs:
            A('v_fma_f32 v%d, v%d, s%d, -v%d' % (r_, r_, sScale, t0))
        for r_ in regs:
            A('v_exp_f32 v%d, v%d' % (r_, r_))
        for i in range(4):
            cvt(vP + i, vS + 2 * i, vS + 2 * i + 1)
        cvt(vPm, MM, MM + 1)
        cvt(vPm + 1, MM, MM + 1)
        A('v_mfma_f32_16x16x32_bf16 %s, %s, %s, 0' % (v(vLs, 4), v(vOne, 4), v(vP, 4)))
        A('v_permlane32_swap_b32 v%d, v%d' % (vPm, vPm + 1))
        for e in range(4):
            A('v_mfma_f32_16x16x32_bf16 %s, %s, %s, 0' % (v(vO + 4 * e, 4), v(vVT + 4 * e, 4), v(vP, 4)))
            cvt(vVmT + 2 * e, vD3 + 4 * e, vD3 + 4 * e + 1)
            cvt(vVmT + 2 * e + 1, vD3 + 4 * e + 2, vD3 + 4 * e + 3)
        A('v_mfma_f32_16x16x16_bf16 %s, %s, %s, %s' % (v(vLs, 4), v(vHalf, 2), v(vPm, 2), v(vLs, 4)))
        for e in range(4):
            A('v_mfma_f32_16x16x16_bf16 %s, %s, %s, %s' % (v(vO + 4 * e, 4), v(vVmT + 2 * e, 2), v(vPm, 2), v(vO + 4 * e, 4)))
        A('v_rcp_f32 v%d, v%d' % (t0, vLs))
        for n_ in (sKx, sKx2, sVt):
            A('s_add_u32 s%d, s%d, 0x40000' % (n_, n_))
        for n_ in (sKm, sVm):
            A('s_add_u32 s%d, s%d, 0x20000' % (n_, n_))
        for qp in range(2):
            for i in range(8):
                A('v_mul_f32 v%d, v%d, v%d' % (vO + 8 * qp + i, vO + 8 * qp + i, t0))
            for j in range(4):
                cvt(vF + 4 * qp + j, vO + 8 * qp + j, vO + 8 * qp + 4 + j)
            A(stx4(vF + 4 * qp, sOut, qp * 1024))
    A('s_add_u32 s%d, s%d, 0x40000' % (sOut, sOut))
    A('s_add_u32 s%d, s%d, 1' % (sSeg, sSeg))
    A('s_cmp_lt_u32 s%d, 64' % sSeg)
    A('s_barrier')
    A('s_cbranch_scc1 %s_loop' % P)
    A('v_mov_b32 v%d, 64' % t3)
    A('s_waitcnt vmcnt(0)')
    A('buffer_store_dword v%d, v%d, %s, 0 offen sc1' % (t3, vFl, S4(WS)))
    tstamp(A, opt, 2, t0, t1, sA)
    if kind == 'q' or opt.get('nojoin'):
        A('s_endpgm')
    else:
        A('s_mov_b32 s36, s%d' % sH)
        A('s_branch L_o_join')


def vote(A, sH, t0, t1, t2, sA, sB, sP, sBase, sL0, sL1):
    A('s_cmp_lg_u32 s%d, 0' % sW)
    A('s_cbranch_scc1 L_vote_done')
    A('s_mul_i32 s%d, s%d, 43' % (sA, sH))
    A('s_lshr_b32 s%d, s%d, 7' % (sA, sA))
    A('s_mul_i32 s%d, s%d, 3' % (sA, sA))
    A('s_sub_u32 s%d, s%d, s%d' % (sP, sH, sA))
    A('v_lshlrev_b32 v%d, 2, v0' % t1)
    A('v_mov_b32 v%d, 0' % t2)
    A.label('L_vote_page')
    A('s_lshl_b32 s%d, s%d, 21' % (sBase, sP))
    A('s_lshr_b32 s%d, s%d, 1' % (sA, sH))
    A('s_lshl_b32 s%d, s%d, 14' % (sA, sA))
    A('s_add_u32 s%d, s%d, s%d' % (sBase, sBase, sA))
    A('s_and_b32 s%d, s%d, 1' % (sA, sH))
    A('s_lshl_b32 s%d, s%d, 12' % (sA, sA))
    A('s_add_u32 s%d, s%d, s%d' % (sBase, sBase, sA))
    A('s_add_u32 s%d, s%d, 0x%x' % (sBase, sBase, PART + 0x1c0000))
    A('s_mov_b32 s%d, -1' % sL0)
    A('s_mov_b32 s%d, -1' % sL1)
    for smp in range(3):
        for par in range(2):
            A('s_memtime s[96:97]')
            A('s_waitcnt lgkmcnt(0)')
            A('buffer_store_dword v%d, v%d, %s, s%d offen offset:%d sc1' % (t2, t1, S4(WS), sBase, smp * 256))
            A('s_waitcnt vmcnt(0)')
            A('s_memtime s[98:99]')
            A('s_xor_b32 s%d, s%d, 0x2000' % (sBase, sBase))
            A('s_waitcnt lgkmcnt(0)')
            A('s_sub_u32 s98, s98, s96')
            A('s_min_u32 s%d, s%d, s98' % ((sL0, sL1)[par], (sL0, sL1)[par]))
    A('s_cmp_lt_u32 s%d, s%d' % (sL1, sL0))
    A('s_cselect_b32 s%d, 1, 0' % sA)
    A('s_lshr_b32 s%d, s%d, 2' % (sB, sX))
    A('s_xor_b32 s%d, s%d, s%d' % (sA, sA, sB))
    A('s_add_u32 s%d, s%d, 256' % (sA, sA))
    A('v_mov_b32 v%d, s%d' % (t0, sA))
    A('s_lshl_b32 s%d, s%d, 6' % (sA, sP))
    A('s_add_u32 s%d, s%d, 0x%x' % (sA, sA, F_VOTE))
    A('s_mov_b64 exec, 1')
    A('buffer_atomic_add v%d, v%d, %s, s%d offen sc1' % (t0, t2, S4(WS), sA))
    A('s_mov_b64 exec, -1')
    A('s_waitcnt vmcnt(0)')
    A('s_add_u32 s%d, s%d, 3' % (sP, sP))
    A('s_cmp_lt_u32 s%d, 9' % sP)
    A('s_cbranch_scc1 L_vote_page')
    A.label('L_vote_done')
    A('s_barrier')
```

```python
import sys, re
from common import *
from workers import proj
from orole import orole


def prologue(A, opt):
    A('s_cmp_ge_u32 s2, 256')
    A('s_cbranch_scc1 L_end0')
    A('s_load_dwordx16 s[64:79], s[0:1], 0')
    A('s_load_dwordx16 s[80:95], s[0:1], 64')
    A('s_getreg_b32 s%d, hwreg(HW_REG_XCC_ID)' % sX)
    A('s_and_b32 s%d, s%d, 7' % (sX, sX))
    A('v_lshrrev_b32 v1, 6, v0')
    A('v_and_b32 v0, 63, v0')
    A('v_readfirstlane_b32 s%d, v1' % sW)
    A('s_mov_b32 s%d, %d' % (sTO, TIMEOUT))
    A('s_waitcnt lgkmcnt(0)')
    srd(A, WS, P_WS, WS_BYTES)
    srd(A, DBG, P_DBG, 256)
    if opt.get('prof'):
        A('s_memrealtime s[76:77]')
    A('v_mov_b32 v2, 0')
    A('s_cmp_lg_u32 s%d, 0' % sW)
    A('s_cbranch_scc1 L_tk')
    A('s_lshl_b32 s36, s%d, 5' % sX)
    if opt.get('fakex'):
        A('s_cmp_eq_u32 s%d, 7' % sX)
        A('s_cbranch_scc0 L_fk')
        A('v_lshlrev_b32 v3, 5, v0')
        A.label('L_fk1')
        A('buffer_load_dword v1, v3, %s, 0 offen sc1' % S4(DBG))
        A('s_waitcnt vmcnt(0)')
        A('v_readlane_b32 s37, v1, 6')
        A('s_cmp_lt_u32 s37, 32')
        A('s_cbranch_scc1 L_fk1')
        A('s_bitcmp1_b32 s2, 3')
        A('s_cbranch_scc1 L_fk2')
        A('s_bitcmp1_b32 s2, 4')
        A('s_cbranch_scc0 L_fk')
        A.label('L_fk2')
        A('s_mov_b32 s36, 0xc0')
        A.label('L_fk')
    A('v_mov_b32 v1, 1')
    A('s_mov_b64 exec, 1')
    A('buffer_atomic_add v1, v2, %s, s36 offen sc0 sc1' % S4(DBG))
    A('s_mov_b64 exec, -1')
    A('s_waitcnt vmcnt(0)')
    A('v_readfirstlane_b32 s37, v1')
    A('s_add_u32 s36, s36, s37')
    A('s_cmp_lt_u32 s37, 32')
    A('s_cbranch_scc1 L_tk_w')
    A('v_mov_b32 v1, 1')
    A('s_mov_b64 exec, 1')
    A('buffer_atomic_add v1, v2, %s, 0 offen offset:8 sc0 sc1' % S4(DBG))
    A('s_mov_b64 exec, -1')
    A('s_waitcnt vmcnt(0)')
    A('v_readfirstlane_b32 s37, v1')
    A('v_lshlrev_b32 v3, 5, v0')
    A.label('L_ov')
    A('buffer_load_dword v1, v3, %s, 0 offen sc1' % S4(DBG))
    A('s_waitcnt vmcnt(0)')
    sum8(A, 1, 38, 39)
    A('s_cmp_ge_u32 s38, 256')
    A('s_cbranch_scc1 L_ov1')
    A('s_sleep 4')
    timeout_stub(A, 'L_ov')
    A.label('L_ov1')
    for x in range(8):
        A('v_readlane_b32 s38, v1, %d' % x)
        A('s_min_u32 s38, s38, 32')
        A('s_add_u32 s36, s38, s37')
        A('s_cmp_lt_u32 s36, 32')
        A('s_cselect_b32 s39, 1, 0')
        A('s_sub_u32 s37, s36, 32')
        A('s_add_u32 s36, s36, %d' % (32 * x))
        A('s_cmp_eq_u32 s39, 1')
        A('s_cbranch_scc1 L_tk_w')
    A('s_endpgm')
    A.label('L_tk_w')
    A('v_mov_b32 v1, s36')
    A('ds_write_b32 v2, v1')
    A('s_waitcnt lgkmcnt(0)')
    A.label('L_tk')
    A('s_barrier')
    A('ds_read_b32 v1, v2')
    A('s_waitcnt lgkmcnt(0)')
    A('v_readfirstlane_b32 s%d, v1' % sC)
    A('s_barrier')
    A('s_lshr_b32 s%d, s%d, 5' % (sG, sC))
    A('s_and_b32 s%d, s%d, 7' % (sG, sG))
    A('s_and_b32 s%d, s%d, 31' % (sC, sC))
    if opt.get('prof'):
        A('s_mov_b32 s78, s76')
        tstamp(A, opt, 8, 1, 2, 36, now=False)
        tstamp(A, opt, 0, 1, 2, 36)
    A('s_cmp_lt_u32 s%d, 16' % sC)
    A('s_cbranch_scc1 L_chain')
    A('s_cmp_lt_u32 s%d, 20' % sC)
    A('s_cbranch_scc1 L_k')
    A('s_cmp_lt_u32 s%d, 24' % sC)
    A('s_cbranch_scc1 L_v')
    A('s_cmp_lt_u32 s%d, 28' % sC)
    A('s_cbranch_scc1 L_q')
    A('s_branch L_o')
    A.label('L_end0')
    A('s_endpgm')


def chain(A, opt):
    prof = opt.get('prof', 0) == 1
    lite = opt.get('prof', 0) >= 1
    V = Alloc(1, 256)
    vL16, vL4, vQst, vVst, vKst, vIdx, vSent = [V(n) for n in 'l16 l4 qst vst kst idx sent'.split()]
    vW1q, vW1k, vR1, vR1v = V('w1q'), V('w1k'), V('r1'), V('r1v')
    vW2, vR2, vW2l, vR2l = V('w2'), V('r2'), V('w2l'), V('r2l')
    vT0, vT1, vT2, vT3 = V('t0'), V('t1'), V('t2'), V('t3')
    vQK, vVv, vBias = V('qk'), V('vv'), V('bias')
    vFa, vFv, vFst = V('fa'), V('fv'), V('fst')
    vM = V('m', 16, 4)
    vA = V('acc', 24, 4)
    vQ = V('q', 16, 4)
    vKm, vVm = V('km', 8, 4), V('vm', 8, 4)
    vKx, vVx = V('kx', 32, 4), V('vx', 32, 4)
    vS = V('s', 8, 4)
    MM = V('mm', 4, 4)
    vP, vPs = V('p', 4, 4), V('ps', 4, 4)
    vPm, vPms = V('pm', 2), V('pms', 2)
    vOne, vSel, vHalf = V('one', 4, 4), V('sel', 4, 4), V('half', 2)
    vVOx = V('vox', 16, 4)
    vT = V('tacc', 32, 4)
    vVOm = vT + 16
    vF = vT + 16
    vR = vVm
    vO = vA
    vLs = vA + 8
    vR2d = vA + 12
    vPt = vQ
    S = Alloc(36, 64)
    sStep, sMemR, sMemW, sQkvW, sQkvR, sQkvR2 = S('step'), S('memr'), S('memw'), S('qkvw'), S('qkvr'), S('qkvr2')
    sKx, sKx2, sVx, sVx2, sPartW, sPartR, sPartA, sPartB, sKvm = [S(n) for n in 'kx kx2 vx vx2 pw pr pa pb kvm'.split()]
    sA, sB, sCc, sD = S('a'), S('b'), S('cc'), S('d')
    sScale, sHi, sPf = S('scale'), S('hi'), S('pf')
    sN1, sN2, sN3 = S('n1'), S('n2'), S('n3')
    sLo = 0
    sHome, sPo = S('home'), S('po')
    sPure, sSide = 101, 3
    LDSL = 20480
    LDS1, LDS2, LDSW = 0, 12288, 32768
    W1 = lambda t, m, tt: (t * 3 + m) * 16 + tt * 8
    WO = lambda n, j: 192 + n * 16 + j * 4

    A.label('L_chain')
    srd(A, SRD_A, P_WQ, 8 * MB)
    srd(A, SRD_B, P_WK, 8 * MB)
    srd(A, SRD_C, P_WV, 8 * MB)
    srd(A, SRD_D, P_WO, 8 * MB)
    srd(A, SRD_E, P_MEM0, 16384)
    A('v_lshlrev_b32 v%d, 4, v0' % vL16)
    A('v_lshlrev_b32 v%d, 2, v0' % vL4)
    A('v_mov_b32 v%d, -1' % vSent)
    A('v_and_b32 v%d, 8, v0' % vT0)
    A('v_cmp_eq_u32 vcc, 0, v%d' % vT0)
    A('v_mov_b32 v%d, 0xeeee' % vT1)
    A('v_mov_b32 v%d, 0x4444' % vT2)
    A('v_cndmask_b32 v%d, v%d, v%d, vcc' % (vIdx, vT1, vT2))
    A('s_mov_b32 s%d, 0' % sStep)
    A('s_lshl_b32 s%d, s%d, 15' % (sA, sG))
    A('s_add_u32 s%d, s%d, 0x%x' % (sA, sA, MEMR))
    A('s_lshl_b32 s%d, s%d, 12' % (sB, sW))
    A('s_add_u32 s%d, s%d, s%d' % (sMemR, sA, sB))
    A('s_lshl_b32 s%d, s%d, 10' % (sB, sC))
    A('s_add_u32 s%d, s%d, s%d' % (sA, sA, sB))
    A('s_lshl_b32 s%d, s%d, 8' % (sB, sW))
    A('s_add_u32 s%d, s%d, s%d' % (sMemW, sA, sB))
    A('s_lshl_b32 s%d, s%d, 16' % (sA, sG))
    A('s_add_u32 s%d, s%d, 0x%x' % (sQkvW, sA, QKVR))
    A('s_mul_i32 s%d, s%d, 6144' % (sB, sW))
    A('s_add_u32 s%d, s%d, s%d' % (sQkvR, sQkvW, sB))
    A('s_add_u32 s%d, s%d, 4096' % (sQkvR2, sQkvR))
    A('s_lshr_b32 s%d, s%d, 2' % (sB, sC))
    A('s_mul_i32 s%d, s%d, 6144' % (sB, sB))
    A('s_add_u32 s%d, s%d, s%d' % (sQkvW, sQkvW, sB))
    A('s_lshl_b32 s%d, s%d, 2' % (sA, sG))
    A('s_add_u32 s%d, s%d, s%d' % (sA, sA, sW))
    A('s_lshl_b32 s%d, s%d, 13' % (sA, sA))
    A('s_add_u32 s%d, s%d, 0x%x' % (sKx, sA, KX))
    A('s_add_u32 s%d, s%d, 4096' % (sKx2, sKx))
    A('s_add_u32 s%d, s%d, 0x%x' % (sVx, sA, VX))
    A('s_add_u32 s%d, s%d, 4096' % (sVx2, sVx))
    A('s_and_b32 s%d, s%d, 7' % (sB, sC))
    A('s_lshl_b32 s%d, s%d, 10' % (sB, sB))
    A('s_cmp_lt_u32 s%d, 8' % sC)
    A('s_cselect_b32 s%d, s%d, s%d' % (sPf, sKx, sVx))
    A('s_add_u32 s%d, s%d, s%d' % (sPf, sPf, sB))
    A('s_add_u32 s%d, s%d, 0x40000' % (sPf, sPf))
    for n_ in (sN1, sN2, sN3):
        A('s_mov_b32 s%d, 0' % n_)
    A('s_lshl_b32 s%d, s%d, 3' % (sA, sC))
    A('s_add_u32 s%d, s%d, s%d' % (sA, sA, sW))
    A('s_lshl_b32 s%d, s%d, 11' % (sA, sA))
    A('s_add_u32 s%d, s%d, 0x%x' % (sPartB, sA, PART))
    A('s_lshl_b32 s%d, s%d, 2' % (sA, sG))
    A('s_lshr_b32 s%d, s%d, 2' % (sB, sC))
    A('s_add_u32 s%d, s%d, s%d' % (sA, sA, sB))
    A('s_lshl_b32 s%d, s%d, 12' % (sKvm, sA))
    A('s_add_u32 s%d, s%d, 0x%x' % (sKvm, sKvm, KVM - 2048))
    A('s_mov_b32 s%d, %s' % (sScale, f32(128 ** -0.5 * LOG2E)))
    A('s_mov_b32 s%d, 0xffff0000' % sHi)
    A('s_and_b32 s%d, s%d, 1' % (sA, sW))
    A('s_lshl_b32 s%d, s%d, 1' % (sA, sA))
    A('v_lshrrev_b32 v%d, 5, v0' % vT0)
    A('v_add_u32 v%d, s%d, v%d' % (vT0, sA, vT0))
    A('v_and_b32 v%d, 31, v0' % vT1)
    A('v_lshlrev_b32 v%d, 2, v%d' % (vT1, vT1))
    A('s_bfe_u32 s%d, s%d, 0x10001' % (sB, sC))
    A('s_lshl_b32 s%d, s%d, 10' % (sB, sB))
    A('s_and_b32 s%d, s%d, 1' % (sA, sC))
    A('s_lshl_b32 s%d, s%d, 7' % (sCc, sA))
    A('s_add_u32 s%d, s%d, s%d' % (sCc, sCc, sB))
    A('s_lshl_b32 s%d, s%d, 9' % (sA, sA))
    A('s_add_u32 s%d, s%d, s%d' % (sA, sA, sB))
    A('s_add_u32 s%d, s%d, 2048' % (sA, sA))
    A('v_lshl_add_u32 v%d, v%d, 8, v%d' % (vT2, vT0, vT1))
    A('v_add_u32 v%d, s%d, v%d' % (vT2, sCc, vT2))
    A('v_lshl_add_u32 v%d, v%d, 7, v%d' % (vT3, vT0, vT1))
    A('v_add_u32 v%d, s%d, v%d' % (vT3, sA, vT3))
    A('s_cmp_lt_u32 s%d, 2' % sW)
    A('s_cselect_b64 %s, -1, 0' % s(sLo, 2))
    A('v_cndmask_b32 v%d, v%d, v%d, %s' % (vQst, vT3, vT2, s(sLo, 2)))
    A('v_add_u32 v%d, 2048, v%d' % (vT2, vT3))
    A('v_cndmask_b32 v%d, v%d, v%d, %s' % (vKst, vT3, vT2, s(sLo, 2)))
    A('v_mov_b32 v%d, 0x40000000' % vT3)
    A('v_cndmask_b32 v%d, v%d, v%d, %s' % (vVst, vT3, vT2, s(sLo, 2)))
    A('v_bfe_u32 v%d, v0, 3, 2' % vT1)
    A('v_xor_b32 v%d, v%d, v%d' % (vT1, vT1, vT0))
    A('v_lshlrev_b32 v%d, 5, v%d' % (vT1, vT1))
    A('v_lshl_add_u32 v%d, v%d, 7, v%d' % (vT1, vT0, vT1))
    A('v_and_b32 v%d, 3, v0' % vT2)
    A('v_lshl_add_u32 v%d, v%d, 3, v%d' % (vT1, vT2, vT1))
    A('v_bfe_u32 v%d, v0, 2, 1' % vT2)
    A('v_lshl_add_u32 v%d, v%d, 2, v%d' % (vT1, vT2, vT1))
    A('v_add_u32 v%d, 2048, v%d' % (vR1v, vT1))
    A('s_lshr_b32 s%d, s%d, 1' % (sA, sW))
    A('s_lshl_b32 s%d, s%d, 10' % (sA, sA))
    A('v_add_u32 v%d, s%d, v%d' % (vR1, sA, vT1))
    A('v_bfe_u32 v%d, v0, 4, 1' % vT0)
    A('v_lshrrev_b32 v%d, 5, v0' % vT1)
    A('v_lshl_add_u32 v%d, v%d, 1, v%d' % (vT0, vT0, vT1))
    A('s_mul_i32 s%d, s%d, 3072' % (sA, sW))
    for (dst, kind) in ((vW1q, 0), (vW1k, 1)):
        if kind == 0:
            A('v_bfe_u32 v%d, v0, 2, 2' % vT1)
            A('v_and_b32 v%d, 3, v0' % vT3)
        else:
            A('v_bfe_u32 v%d, v0, 3, 1' % vT1)
            A('v_and_b32 v%d, 1, v0' % vT2)
            A('v_lshl_add_u32 v%d, v%d, 1, v%d' % (vT1, vT1, vT2))
            A('v_bfe_u32 v%d, v0, 1, 2' % vT3)
        A('v_xor_b32 v%d, v%d, v%d' % (vT2, vT1, vT0))
        A('v_lshlrev_b32 v%d, 5, v%d' % (vT2, vT2))
        A('v_lshl_add_u32 v%d, v%d, 7, v%d' % (vT2, vT1, vT2))
        A('v_lshl_add_u32 v%d, v%d, 3, v%d' % (vT2, vT3, vT2))
        A('v_add_u32 v%d, s%d, v%d' % (dst, sA, vT2))
    for i in range(4):
        A('v_mov_b32 v%d, 0x3f803f80' % (vOne + i))
        A('v_mov_b32 v%d, 0' % (vPs + i))
    for i in range(2):
        A('v_mov_b32 v%d, 0x3f003f00' % (vHalf + i))
        A('v_mov_b32 v%d, 0' % (vPms + i))
    A('v_and_b32 v%d, 8, v0' % vT0)
    A('v_cmp_eq_u32 vcc, 0, v%d' % vT0)
    A('v_mov_b32 v%d, 0x7f800000' % vT1)
    A('v_mov_b32 v%d, 0xff800000' % vT2)
    A('v_cndmask_b32 v%d, v%d, v%d, vcc' % (vBias, vT1, vT2))
    A('v_and_b32 v%d, 3, v0' % vT0)
    A('v_lshlrev_b32 v%d, 4, v%d' % (vT1, vT0))
    A('v_mov_b32 v%d, 0x3f80' % vT2)
    A('v_lshlrev_b32 v%d, v%d, v%d' % (vT1, vT1, vT2))
    A('v_cmp_gt_u32 vcc, 2, v%d' % vT0)
    A('v_cndmask_b32 v%d, 0, v%d, vcc' % (vT1, vT1))
    A('v_bfe_u32 v%d, v0, 2, 2' % vT0)
    for i in range(4):
        A('v_cmp_eq_u32 vcc, %d, v%d' % (i, vT0))
        A('v_cndmask_b32 v%d, 0, v%d, vcc' % (vSel + i, vT1))
    A('s_lshl_b32 s%d, s%d, 2' % (sA, sW))
    A('s_add_u32 s%d, s%d, %d' % (sA, sA, LDSL))
    A('v_add_u32 v%d, s%d, v%d' % (vW2l, sA, vL16))
    A('v_and_b32 v%d, 1, v0' % vT0)
    A('v_lshrrev_b32 v%d, 4, v0' % vT1)
    A('v_lshl_add_u32 v%d, v%d, 2, v%d' % (vT0, vT0, vT1))
    A('v_lshlrev_b32 v%d, 4, v%d' % (vT1, vT0))
    A('v_add_u32 v%d, %d, v%d' % (vR2l, LDSL, vT1))
    A('v_and_b32 v%d, 2, v0' % vT1)
    A('v_xor_b32 v%d, v%d, v%d' % (vT0, vT0, vT1))
    A('v_lshlrev_b32 v%d, 4, v%d' % (vT0, vT0))
    A('v_lshl_add_u32 v%d, v%d, 7, v%d' % (vT0, vT1, vT0))
    A('v_bfe_u32 v%d, v0, 3, 1' % vT1)
    A('v_lshl_add_u32 v%d, v%d, 7, v%d' % (vT0, vT1, vT0))
    A('v_bfe_u32 v%d, v0, 2, 1' % vT1)
    A('v_lshl_add_u32 v%d, v%d, 3, v%d' % (vT0, vT1, vT0))
    A('s_lshl_b32 s%d, s%d, 9' % (sA, sW))
    A('s_add_u32 s%d, s%d, %d' % (sA, sA, LDS2))
    A('v_add_u32 v%d, s%d, v%d' % (vR2, sA, vT0))
    A('v_bfe_u32 v%d, v0, 3, 1' % vT0)
    A('v_lshlrev_b32 v%d, 9, v%d' % (vT0, vT0))
    A('v_lshrrev_b32 v%d, 4, v0' % vT1)
    A('v_lshl_add_u32 v%d, v%d, 7, v%d' % (vT0, vT1, vT0))
    A('v_and_b32 v%d, 2, v%d' % (vT1, vT1))
    A('v_and_b32 v%d, 7, v0' % vT2)
    A('v_xor_b32 v%d, v%d, v%d' % (vT1, vT1, vT2))
    A('v_lshl_add_u32 v%d, v%d, 4, v%d' % (vT0, vT1, vT0))
    A('s_lshl_b32 s%d, s%d, 11' % (sA, sW))
    A('s_add_u32 s%d, s%d, %d' % (sA, sA, LDS2))
    A('v_add_u32 v%d, s%d, v%d' % (vW2, sA, vT0))

    A('s_lshl_b32 s%d, s%d, 9' % (sA, sG))
    A('s_lshr_b32 s%d, s%d, 2' % (sB, sC))
    A('s_lshl_b32 s%d, s%d, 7' % (sB, sB))
    A('s_add_u32 s%d, s%d, s%d' % (sB, sA, sB))
    A('s_and_b32 s%d, s%d, 3' % (sCc, sC))
    A('s_lshl_b32 s%d, s%d, 2' % (sCc, sCc))
    A('s_add_u32 s%d, s%d, s%d' % (sCc, sCc, sW))
    A('s_lshl_b32 s%d, s%d, 2' % (sCc, sCc))
    A('s_add_u32 s%d, s%d, s%d' % (sB, sB, sCc))
    A('s_add_u32 s%d, s%d, 0x%x' % (sB, sB, F_KVM))
    lane0_addr(A, vFst, sB, vT0)
    A('s_lshl_b32 s%d, s%d, 7' % (sB, sW))
    A('s_add_u32 s%d, s%d, s%d' % (sA, sA, sB))
    A('s_add_u32 s%d, s%d, 0x%x' % (sA, sA, F_KV))
    bits(A, vT1, [(0, 3, 2)], vT0, 's%d' % sA)
    bits(A, vT2, [(0, 4, 6)], vT0, '0x%x' % F_VOTE)
    A('v_and_b32 v%d, 48, v0' % vT0)
    A('v_cmp_eq_u32 vcc, 16, v%d' % vT0)
    A('v_cndmask_b32 v%d, v%d, v%d, vcc' % (vFa, vT1, vT2))
    A('v_mov_b32 v%d, 0' % vT0)
    A('buffer_store_dword v%d, v%d, %s, 0 offen sc1' % (vT0, vFst, S4(WS)))
    A('buffer_store_dword v%d, v%d, %s, s%d offen sc1' % (vSent, vL4, S4(WS), sMemW))
    A('s_xor_b32 s%d, s%d, 0x4000' % (sA, sMemW))
    A('buffer_store_dword v%d, v%d, %s, s%d offen sc1' % (vSent, vL4, S4(WS), sA))
    A('s_lshl_b32 s%d, s%d, 8' % (sB, sG))
    A('s_add_u32 s%d, s%d, s%d' % (sPartW, sPartB, sB))
    A('s_add_u32 s%d, s%d, 0x2000' % (sPartA, sPartW))
    for so in (sPartW, sPartA):
        A('buffer_store_dword v%d, v%d, %s, s%d offen sc1' % (vSent, vL4, S4(WS), so))
    A('s_xor_b32 s%d, s%d, 0x8000' % (sA, sQkvW))
    for so in (sQkvW, sA):
        A('buffer_store_dword v%d, v%d, %s, s%d offen sc1' % (vSent, vQst, S4(WS), so))
        A('buffer_store_dword v%d, v%d, %s, s%d offen sc1' % (vSent, vVst, S4(WS), so))

    vWa, vWb, vWc = vM, vM + 1, vM + 2
    A('v_lshrrev_b32 v%d, 2, v0' % vT0)
    A('v_lshlrev_b32 v%d, 13, v%d' % (vT0, vT0))
    A('v_and_b32 v%d, 3, v0' % vT1)
    A('v_lshl_add_u32 v%d, v%d, 4, v%d' % (vWa, vT1, vT0))
    A('s_lshl_b32 s%d, s%d, 21' % (sA, sW))
    A('s_lshl_b32 s%d, s%d, 10' % (sB, sG))
    A('s_add_u32 s%d, s%d, s%d' % (sA, sA, sB))
    A('s_lshl_b32 s%d, s%d, 6' % (sB, sC))
    A('s_add_u32 s%d, s%d, s%d' % (sA, sA, sB))
    for t in range(4):
        for m in range(3):
            for i in range(4):
                A('s_add_u32 s%d, s%d, 0x%x' % (sB, sA, (64 * t + 16 * i) * 8192))
                A('buffer_load_dwordx4 %s, v%d, %s, s%d offen' % (a(W1(t, m, 0) + 4 * i, 4), vWa, S4((SRD_A, SRD_B, SRD_C)[m]), sB))
    A('s_lshl_b32 s%d, s%d, 14' % (sCc, sW))
    A('s_add_u32 s%d, s%d, %d' % (sCc, sCc, LDSW))
    A('v_add_u32 v%d, s%d, v%d' % (vWb, sCc, vL16))
    A('v_bfe_u32 v%d, v0, 5, 1' % vT0)
    A('v_lshlrev_b32 v%d, 10, v%d' % (vT0, vT0))
    A('v_bfe_u32 v%d, v0, 4, 1' % vT1)
    A('v_lshl_add_u32 v%d, v%d, 8, v%d' % (vT0, vT1, vT0))
    A('v_bfe_u32 v%d, v0, 3, 1' % vT1)
    A('v_lshl_add_u32 v%d, v%d, 9, v%d' % (vT0, vT1, vT0))
    A('v_bfe_u32 v%d, v0, 2, 1' % vT1)
    A('v_lshl_add_u32 v%d, v%d, 6, v%d' % (vT0, vT1, vT0))
    A('v_and_b32 v%d, 3, v0' % vT1)
    A('v_lshl_add_u32 v%d, v%d, 3, v%d' % (vT0, vT1, vT0))
    A('v_add_u32 v%d, s%d, v%d' % (vWc, sCc, vT0))
    vWd = vM + 3
    A('v_lshrrev_b32 v%d, 3, v0' % vT0)
    A('v_lshlrev_b32 v%d, 11, v%d' % (vT0, vT0))
    A('v_and_b32 v%d, 7, v0' % vT1)
    A('v_lshl_add_u32 v%d, v%d, 4, v%d' % (vWd, vT1, vT0))
    A('s_lshl_b32 s%d, s%d, 2' % (sA, sG))
    A('s_add_u32 s%d, s%d, s%d' % (sA, sA, sW))
    A('s_lshl_b32 s%d, s%d, 18' % (sA, sA))
    A('s_lshl_b32 s%d, s%d, 7' % (sB, sC))
    A('s_add_u32 s%d, s%d, s%d' % (sA, sA, sB))
    issued_wo = 0
    for gi in range(12):
        t, m = divmod(gi, 3)
        younger = (11 - gi) * 4 + issued_wo
        A('s_waitcnt vmcnt(%d)' % younger)
        if gi == 0:
            arrive_init(A, vT0, vT1, sB)
        sl = (gi & 3) * 4096
        for i in range(4):
            A('ds_write_b128 v%d, %s offset:%d' % (vWb, a(W1(t, m, 0) + 4 * i, 4), sl + i * 1024))
        for tt in range(2):
            for pp in range(4):
                off = sl + (32 * (pp >> 1) + 2 * (pp & 1)) * 64 + tt * 32
                A('ds_read_b64_tr_b16 %s, v%d offset:%d' % (a(W1(t, m, tt) + 2 * pp, 2), vWc, off))
        if 1 <= gi <= 4:
            for i in range(4):
                k = issued_wo
                A('s_add_u32 s%d, s%d, 0x%x' % (sB, sA, k * 8 * 2048))
                A('buffer_load_dwordx4 %s, v%d, %s, s%d offen' % (a(192 + 4 * k, 4), vWd, S4(SRD_D), sB))
                issued_wo += 1
        A('s_waitcnt lgkmcnt(0)')
    A('v_bfe_u32 v%d, v0, 2, 1' % vT0)
    A('v_lshlrev_b32 v%d, 11, v%d' % (vT0, vT0))
    A('v_lshrrev_b32 v%d, 4, v0' % vT1)
    A('v_lshl_add_u32 v%d, v%d, 9, v%d' % (vT0, vT1, vT0))
    A('v_bfe_u32 v%d, v0, 3, 1' % vT1)
    A('v_lshl_add_u32 v%d, v%d, 7, v%d' % (vT0, vT1, vT0))
    A('v_and_b32 v%d, 3, v0' % vT1)
    A('v_lshl_add_u32 v%d, v%d, 3, v%d' % (vT0, vT1, vT0))
    A('v_add_u32 v%d, s%d, v%d' % (vWc, sCc, vT0))
    A('s_waitcnt vmcnt(0)')
    for k in range(16):
        A('ds_write_b128 v%d, %s offset:%d' % (vWb, a(192 + 4 * k, 4), k * 1024))
        if k == 7:
            A('s_waitcnt lgkmcnt(0)')
    A('s_waitcnt lgkmcnt(0)')
    for n in range(4):
        for j in range(4):
            for pp in range(2):
                A('ds_read_b64_tr_b16 %s, v%d offset:%d' % (a(WO(n, j) + 2 * pp, 2), vWc, (32 * j + 2 * pp) * 128 + n * 32))
        A('s_waitcnt lgkmcnt(0)')
    A('v_and_b32 v%d, 7, v0' % vT0)
    A('v_lshlrev_b32 v%d, 11, v%d' % (vT0, vT0))
    A('v_lshrrev_b32 v%d, 3, v0' % vT1)
    A('v_lshl_add_u32 v%d, v%d, 4, v%d' % (vT0, vT1, vT0))
    A('s_lshl_b32 s%d, s%d, 9' % (sA, sW))
    for t in range(4):
        A('buffer_load_dwordx4 %s, v%d, %s, s%d offen offset:%d' % (v(vM + 4 * t, 4), vT0, S4(SRD_E), sA, t * 128))

    def vox(fill=None):
        fill = fill or {}
        k = 0
        for n in range(4):
            for j in range(4):
                for tt in range(2):
                    acc = v(vT + (n * 2 + tt) * 4, 4)
                    A('v_mfma_f32_16x16x32_bf16 %s, %s, %s, %s' % (acc, v(vVx + (tt * 4 + j) * 4, 4), a(WO(n, j), 4), acc if j else '0'))
                    for o in fill.get(k, []):
                        A(o)
                    k += 1
                    if n > 0 and j in (1, 2):
                        jj = 2 * (j - 1) + tt
                        b = vT + (n - 1) * 8 + 2 * jj
                        A('v_cvt_pk_bf16_f32 v%d, v%d, v%d' % (vVOx + (n - 1) * 4 + jj, b, b + 1))

    def vox_tail():
        return ['v_cvt_pk_bf16_f32 v%d, v%d, v%d' % (vVOx + 12 + jj, vT + 24 + 2 * jj, vT + 25 + 2 * jj) for jj in range(4)]

    def paced(ops, every=4):
        for i, o in enumerate(ops):
            A(o)
            if i % every == every - 1 and i != len(ops) - 1:
                A('s_nop 0')

    def zeros(base, n, val='0'):
        return ['v_mov_b32 v%d, %s' % (base + i, val) for i in range(n)]

    tstamp(A, opt, 1, vT0, vT1, sA)
    wait_init(A, vT0, vT1, sA, sB)
    A('s_lshl_b32 s%d, s%d, 5' % (sA, sG))
    A('v_mov_b32 v%d, 0' % vT1)
    A('buffer_load_dword v%d, v%d, %s, s%d offen sc1' % (vT0, vT1, S4(DBG), sA))
    A('s_waitcnt vmcnt(0)')
    A('v_readfirstlane_b32 s%d, v%d' % (sPure, vT0))
    A('s_lshr_b32 s%d, s%d, 2' % (sSide, sX))
    A('s_sub_u32 s%d, 0, s%d' % (sSide, sSide))

    def kv_check(lab, retlab):
        A('s_add_u32 s%d, s%d, 2' % (sA, sStep))
        A('s_min_u32 s%d, s%d, 64' % (sA, sA))
        A('v_cmp_gt_u32 vcc, s%d, v%d' % (sA, vFv))
        A('v_and_b32 v%d, 0xff, v%d' % (vT1, vFv))
        A('v_lshlrev_b32 v%d, 9, v%d' % (vT1, vT1))
        A('s_and_b32 s%d, vcc_lo, 0xff' % sA)
        A('v_cmp_gt_u32 vcc, v%d, v%d' % (vT1, vFv))
        A('s_cbranch_scc1 %s' % lab)
        A('s_xor_b32 s%d, vcc_lo, s%d' % (sHome, sSide))

    ld_flags = 'buffer_load_dword v%d, v%d, %s, 0 offen sc1' % (vFv, vFa, S4(WS))
    A.label('L_c_kv0')
    A(ld_flags)
    A('s_waitcnt vmcnt(0)')
    kv_check('L_c_kv1', None)
    A('s_branch L_c_kv2')
    A.label('L_c_kv1')
    A('s_sleep 1')
    timeout_stub(A, 'L_c_kv0')
    A.label('L_c_kv2')
    for f in range(8):
        A('buffer_load_dwordx4 %s, v%d, %s, s%d offen offset:%d sc1' % (v(vVx + 4 * f, 4), vL16, S4(WS), (sVx, sVx2)[f >> 2], (f & 3) * 1024))
    for f in range(8):
        A('buffer_load_dwordx4 %s, v%d, %s, s%d offen offset:%d sc1' % (v(vKx + 4 * f, 4), vL16, S4(WS), (sKx, sKx2)[f >> 2], (f & 3) * 1024))
    for i in range(16):
        A('v_min_u32 v%d, -2, v%d' % (vM + i, vM + i))
    A('s_add_u32 s%d, s%d, 0x40000' % (sVx, sVx))
    A('s_add_u32 s%d, s%d, 0x40000' % (sVx2, sVx2))
    A('s_mov_b32 s%d, 0' % sPo)
    A('s_waitcnt vmcnt(8)')
    vox()
    paced(zeros(vA, 24) + vox_tail() + zeros(vT, 16) + zeros(MM, 4))
    A('s_waitcnt vmcnt(0)')
    tstamp(A, opt, 2, vT0, vT1, sA)

    def part_slots():
        A('s_lshr_b32 s%d, s%d, 21' % (sA, sPo))
        A('s_add_u32 s%d, s%d, 3' % (sA, sA))
        A('s_lshr_b32 s%d, s%d, s%d' % (sA, sHome, sA))
        A('s_and_b32 s%d, s%d, 0x2000' % (sA, sA))
        A('s_add_u32 s%d, s%d, s%d' % (sA, sA, sPo))
        A('s_add_u32 s%d, s%d, s%d' % (sPartR, sPartB, sA))
        A('s_lshl_b32 s%d, s%d, 8' % (sB, sG))
        A('s_add_u32 s%d, s%d, s%d' % (sPartA, sPartR, sB))
        A('s_xor_b32 s%d, s%d, 0x2000' % (sPartW, sPartA))
    part_slots()

    PT = 96
    stamps = []

    names = opt.get('marks', 'm0ok,st1end,qkvst,q0ok,Send,st2end,partst').split(',') + ['gath', 'gathok']
    assert len(names) == 9

    def stamp(nm):
        if prof and nm in names:
            i = names.index(nm)
            A('s_memtime s[%d:%d]' % (12 + 2 * i, 13 + 2 * i))

    if lite:
        vTr = V('trace')
        A('v_mov_b32 v%d, 0' % vTr)
        A('s_memtime s[28:29]')
        A('s_memtime s[96:97]')
        A('s_memrealtime s[98:99]')
        A('s_waitcnt lgkmcnt(0)')
        A('s_mov_b32 s31, s28')

    SEG = 0 if opt.get('sameseg') else 0x40000
    loc = '@LOC@'

    def ldx4(dst, so, off):
        return 'buffer_load_dwordx4 %s, v%d, %s, s%d offen offset:%d sc1' % (v(dst, 4), vL16, S4(WS), so, off)

    def ld_mem(t):
        A(ldx4(vM + 4 * t, sMemR, t * 1024))

    def chk4(b, tmp):
        return ['v_max3_u32 v%d, v%d, v%d, v%d' % (tmp, b, b + 1, b + 2), 'v_max_u32 v%d, v%d, v%d' % (tmp, tmp, b + 3)]

    def chk4more(b, tmp):
        return ['v_max3_u32 v%d, v%d, v%d, v%d' % (tmp, tmp, b, b + 1), 'v_max3_u32 v%d, v%d, v%d, v%d' % (tmp, tmp, b + 2, b + 3)]

    def cmpv(tmp):
        return 'v_cmp_eq_u32 vcc, -1, v%d' % tmp

    def smf1(t, m, tt):
        A('v_smfmac_f32_16x16x64_bf16 %s, %s, %s, v%d' % (v(vA + 8 * m + 4 * tt, 4), v(vM + 4 * t, 4), a(W1(t, m, tt), 8), vIdx))

    def add2(d, x, y):
        if opt.get('pk', 1):
            A('v_pk_add_f32 %s, %s, %s' % (v(d, 2), v(x, 2), v(y, 2)))
        else:
            A('v_add_f32 v%d, v%d, v%d' % (d, x, y))
            A('v_add_f32 v%d, v%d, v%d' % (d + 1, x + 1, y + 1))

    def fold(m):
        b = vA + 8 * m
        f = vF + 4 * m
        for tt in range(2):
            for j in range(2):
                A('v_permlane32_swap_b32 v%d, v%d' % (b + 4 * tt + j, b + 4 * tt + j + 2))
        for tt in range(2):
            add2(f + 2 * tt, b + 4 * tt, b + 4 * tt + 2)
        A('ds_write2st64_b64 v%d, %s, %s offset0:%d offset1:%d' % (vW1q if m == 0 else vW1k, v(f, 2), v(f + 2, 2), 2 * m, 2 * m + 1))

    def rd1(ad):
        for w in range(4):
            A('ds_read2st64_b32 %s, v%d offset0:%d offset1:%d' % (v(vR + 2 * w, 2), ad, 12 * w, 12 * w + 2))

    def red1(dst, extra=''):
        A('s_waitcnt lgkmcnt(%d)' % (0 if prof else 2))
        A(extra)
        add2(vR, vR, vR + 2)
        A('s_waitcnt lgkmcnt(0)')
        add2(vR + 4, vR + 4, vR + 6)
        add2(vR, vR, vR + 4)
        A('v_cvt_pk_bf16_f32 v%d, v%d, v%d' % (dst, vR, vR + 1))
        A('v_min_u32 v%d, -2, v%d' % (dst, dst))

    def st4(src, ad, so, mod):
        return 'buffer_store_dword v%d, v%d, %s, s%d offen%s' % (src, ad, S4(WS), so, mod)

    ld_q = [ldx4(vQ, sQkvR, 0), ldx4(vQ + 8, sQkvR, 1024)]
    ld_k = [ldx4(vKm, sQkvR, 2048), ldx4(vKm + 4, sQkvR, 3072)]
    ld_v = [ldx4(vVm, sQkvR2, 0), ldx4(vVm + 4, sQkvR2, 1024)]
    st_v = st4(vVv, vVst, sQkvW, loc)
    ld_part = [ldx4(vPt, sPartR, 0), ldx4(vPt + 4, sPartR, 1024)]
    X0, X1 = vS, vS + 4
    cnt = lambda n_: A('s_add_u32 s%d, s%d, 1' % (n_, n_)) if lite else None

    def nxt(Sm, t):
        for d in range(1, 5):
            if Sm >> ((t + d) & 3) & 1:
                return (t + d) & 3

    def block(Sm, t, wait=None):
        rest = Sm & ~(1 << t)
        n = nxt(rest, t) if rest else None
        smf1(t, 0, 0)
        if rest:
            if wait is not None:
                A('s_waitcnt vmcnt(%d)' % wait)
            for o in chk4(vM + 4 * n, vT0):
                A(o)
        smf1(t, 0, 1)
        if rest:
            A(cmpv(vT0))
        smf1(t, 1, 0)
        smf1(t, 1, 1)
        return rest, n

    def first_pass():
        A('s_waitcnt vmcnt(3)')
        for o in chk4(vM, vT0):
            A(o)
        A(cmpv(vT0))
        A('s_cbranch_vccnz L_F15_0')
        stamp('m0ok')
        Sm = 15
        for t in range(4):
            stamp('B%d' % t)
            Sm, n = block(Sm, t, 2 - t)
            if Sm:
                A('s_cbranch_vccnz L_F%d_%d' % (Sm, n))

    def poll_nodes_ooo():
        for Sm in sorted(range(1, 16), key=lambda x: -bin(x).count('1')):
            ts = [t for t in range(4) if Sm >> t & 1]
            for t in ts:
                A.label('L_P%d_%d' % (Sm, t))
                A('s_waitcnt vmcnt(3)')
                for o in chk4(vM + 4 * t, vT0):
                    A(o)
                A(cmpv(vT0))
                A('s_cbranch_vccz L_V%d_%d' % (Sm, t))
                A.label('L_F%d_%d' % (Sm, t))
                ld_mem(t)
                cnt(sN1)
            timeout_stub(A, 'L_P%d_%d' % (Sm, ts[0]))
            for t in ts:
                A.label('L_V%d_%d' % (Sm, t))
                if Sm == 15:
                    stamp('m0ok')
                stamp('B%d' % (4 - len(ts)))
                rest, n = block(Sm, t)
                if rest:
                    A('s_cbranch_vccz L_V%d_%d' % (rest, n))
                    A('s_branch L_F%d_%d' % (rest, n))
                else:
                    A('s_branch L_T1')

    def poll_nodes():
        if opt.get('ooo', 1):
            return poll_nodes_ooo()
        for k in range(4):
            full = 15 & ~((1 << k) - 1)
            for Sm in sorted(range(1, 16), key=lambda x: -bin(x).count('1')):
                if Sm & ~full:
                    continue
                ts = [t for t in range(4) if Sm >> t & 1]
                for t in ts:
                    rest = Sm & ~(1 << t)
                    A.label('L_P%d_%d_%d' % (k, Sm, t))
                    A('s_waitcnt vmcnt(%d)' % opt.get('lim', 3))
                    for o in chk4(vM + 4 * t, vT0):
                        A(o)
                    A(cmpv(vT0))
                    A('s_cbranch_vccz %s' % ('L_P%d_%d_%d' % (k, rest, nxt(rest, t)) if rest else 'L_G%d' % k))
                    if Sm == full and t == k:
                        A.label('L_F%d_%d' % (Sm, t))
                    ld_mem(t)
                    cnt(sN1)
                timeout_stub(A, 'L_P%d_%d_%d' % (k, Sm, ts[0]))
        for k in range(4):
            A.label('L_G%d' % k)
            if k == 0:
                stamp('m0ok')
            stamp('B%d' % k)
            block(1 << k, k)
        A('s_branch L_T1')

    A('s_cmp_lt_u32 s%d, 16' % sPure)
    A('s_cbranch_scc1 L_loop_i')
    loop_start = len(A.lines)
    A('.p2align 6')
    A.label('L_loop')
    first_pass()
    A.label('L_T1')
    stamp('T1')
    kxl = [ldx4(vKx + 4 * f, (sKx, sKx2)[f >> 2], (f & 3) * 1024) for f in range(8)]
    na = opt.get('na', 3)
    ka = kxl[8 - na:]
    nk = lambda: A(ka.pop(0)) if ka else None
    fold(0)
    stamp('f0')
    fold(1)
    stamp('f1')
    for t in range(3):
        smf1(t, 2, 0)
        nk()
        smf1(t, 2, 1)
    A('s_waitcnt lgkmcnt(0)')
    stamp('st1end')
    A('s_barrier')
    stamp('bar1')
    rd1(vR1)
    smf1(3, 2, 0); nk(); smf1(3, 2, 1)
    while ka:
        nk()
    red1(vQK)
    A(st4(vQK, vQst, sQkvW, loc))
    stamp('qkvst')
    qk = ld_q + ld_k
    slots = [int(ch) for ch in str(opt.get('h2s', '2244')).zfill(4)]
    order = []

    def slot(i):
        for n_, sl_ in enumerate(slots):
            if sl_ == i:
                A(qk[n_]); order.append(qk[n_])
    fold(2)
    slot(0)
    A('s_add_u32 s%d, s%d, 0x%x' % (sKx, sKx, SEG))
    A('s_add_u32 s%d, s%d, 0x%x' % (sKx2, sKx2, SEG))
    A('s_cmp_eq_u32 s%d, 63' % sStep)
    A('s_cbranch_scc1 L_c_tail')
    A('s_waitcnt lgkmcnt(0)')
    A('s_barrier')
    stamp('bar1b')
    slot(1)
    rd1(vR1v)
    slot(2)
    A('s_waitcnt lgkmcnt(%d)' % (0 if prof else 3))
    slot(3)
    red1(vVv)
    A(st_v); order.append(st_v)
    stamp('vst')
    slot(4)
    younger = lambda o: len(order) - 1 - order.index(o)
    A.label('L_h2')
    mx = lambda tt, j, first=False: A('v_mfma_f32_16x16x32_bf16 %s, %s, %s, %s' % (v(vS + 4 * tt, 4), v(vKx + (tt * 4 + j) * 4, 4), v(vQ + 4 * j, 4), '0' if first else v(vS + 4 * tt, 4)))
    ror = lambda r_: A('v_mov_b32_dpp v%d, v%d row_ror:8 row_mask:0xf bank_mask:0xf' % (r_ + 4, r_))
    stamp('q0w')
    A('s_waitcnt vmcnt(%d)' % younger(qk[0]))
    stamp('q0l')
    mx(0, 0, True); ror(vQ); ror(vQ + 1)
    mx(1, 0, True); ror(vQ + 2); ror(vQ + 3)
    A('s_waitcnt vmcnt(%d)' % younger(qk[1]))
    stamp('q1l')
    c1, c2 = chk4(vQ, vT3), chk4more(vQ + 8, vT3)
    mx(0, 2); A(c1[0]); A(c1[1])
    mx(1, 2); A(c2[0]); A(c2[1])
    mx(0, 1); A(cmpv(vT3)); ror(vQ + 8); ror(vQ + 9)
    mx(1, 1); ror(vQ + 10); ror(vQ + 11)
    A('s_cbranch_vccnz L_r2')
    stamp('q0ok')
    order_q = list(order)
    mx(0, 3); A(ld_v[0])
    mx(1, 3); A(ld_v[1])
    order += ld_v
    A.label('L_h2k')
    smm = lambda u: A('v_smfmac_f32_16x16x64_bf16 %s, %s, %s, v%d' % (v(MM, 4), v(vKm + 4 * u, 4), v(vQ + 8 * u, 8), vIdx))
    stamp('k0w')
    A('s_waitcnt vmcnt(%d)' % younger(qk[2]))
    smm(0)
    stamp('k1w')
    A('s_waitcnt vmcnt(%d)' % younger(qk[3]))
    stamp('k1l')
    smm(1)
    for o in chk4(vKm, vT3) + chk4more(vKm + 4, vT3):
        A(o)
    A(cmpv(vT3))
    A('v_max3_f32 v%d, v%d, v%d, v%d' % (vT0, vBias, X0, X0 + 1))
    A('v_permlane32_swap_b32 v%d, v%d' % (MM, MM + 2))
    A('v_permlane32_swap_b32 v%d, v%d' % (MM + 1, MM + 3))
    A('v_max3_f32 v%d, v%d, v%d, v%d' % (vT0, vT0, X0 + 2, X0 + 3))
    A('v_max3_f32 v%d, v%d, v%d, v%d' % (vT0, vT0, X1, X1 + 1))
    A('v_max3_f32 v%d, v%d, v%d, v%d' % (vT0, vT0, X1 + 2, X1 + 3))
    order_k = order[order.index(qk[2]):]
    vxl = [ldx4(vVx + 4 * f, (sVx, sVx2)[f >> 2], (f & 3) * 1024) for f in range(8)]
    bulk = vxl + kxl[:8 - na]
    nbulk = len(bulk)
    nb = lambda: A(bulk.pop(0)) if bulk else None
    add2(MM, MM, MM + 2)
    A('v_max3_f32 v%d, v%d, v%d, v%d' % (vT0, vT0, MM, MM + 1))
    A('v_mov_b32 v%d, v%d' % (vT1, vT0))
    A('s_cbranch_vccnz L_r2k')
    stamp('kok')
    early = opt.get('be', 2)
    for i in range(min(early, 1)):
        nb()
    A('v_permlane32_swap_b32 v%d, v%d' % (vT0, vT1))
    A('v_max_f32 v%d, v%d, v%d' % (vT0, vT0, vT1))
    A('v_mov_b32 v%d, v%d' % (vT1, vT0))
    for i in range(max(early - 1, 0)):
        nb()
    A('v_permlane16_swap_b32 v%d, v%d' % (vT0, vT1))
    A('v_max_f32 v%d, v%d, v%d' % (vT0, vT0, vT1))
    A('v_mul_f32 v%d, s%d, v%d' % (vT0, sScale, vT0))
    fma = lambda r_: A('v_fma_f32 v%d, v%d, s%d, -v%d' % (r_, r_, sScale, vT0))
    ex = lambda r_: A('v_exp_f32 v%d, v%d' % (r_, r_))
    cvt = lambda d, x: A('v_cvt_pk_bf16_f32 v%d, v%d, v%d' % (d, x, x + 1))
    shr = lambda d, x: A('v_mov_b32_dpp v%d, v%d row_shr:8 row_mask:0xf bank_mask:0xc' % (d, x))
    for i in range(8):
        fma(vS + i)
    stamp('vw')
    A('s_waitcnt vmcnt(%d)' % early)
    stamp('vl')
    for o in chk4(vVm, vT3) + chk4more(vVm + 4, vT3):
        A(o)
    A(cmpv(vT3))
    for i in range(3):
        ex(vS + i)
    A('s_cbranch_vccnz L_r2v')
    A.label('L_h2v')
    stamp('Send')
    vom = lambda u, n: A('v_smfmac_f32_16x16x64_bf16 %s, %s, %s, v%d' % (v(vT + 4 * n, 4), v(vVm + 4 * u, 4), a(WO(n, 2 * u), 8), vIdx))
    for i in range(8):
        vom(i & 1, i >> 1)
        if i & 1:
            nb()
        if i < 5:
            ex(vS + 3 + i)
        else:
            cvt(vP + i - 5, vS + 2 * (i - 5))
    stamp('vomend')
    cvt(vP + 3, vS + 6)
    fma(MM); fma(MM + 1)
    m32 = lambda d, x, p, c_: A('v_mfma_f32_16x16x32_bf16 %s, %s, %s, %s' % (v(d, 4), v(x, 4), v(p, 4), v(d, 4) if c_ else '0'))
    m16 = lambda d, x, p: A('v_mfma_f32_16x16x16_bf16 %s, %s, %s, %s' % (v(d, 4), v(x, 2), v(p, 2), v(d, 4)))
    cvm = lambda k: cvt(vVOm + k, vT + 2 * k)
    m32(vO, vVOx, vP, 0)
    nb()
    ex(MM)
    m32(vO + 4, vVOx + 8, vP, 0)
    ex(MM + 1)
    m32(vLs, vOne, vP, 0)
    nb()
    shr(vPs, vP); shr(vPs + 1, vP + 1); shr(vPs + 2, vP + 2); shr(vPs + 3, vP + 3)
    cvt(vPm, MM)
    cvt(vPm + 1, MM)
    m32(vO, vVOx + 4, vPs, 1)
    cvm(0)
    A('v_permlane32_swap_b32 v%d, v%d' % (vPm, vPm + 1))
    m32(vO + 4, vVOx + 12, vPs, 1)
    nb()
    cvm(1); cvm(2)
    stamp('m16')
    m16(vLs, vHalf, vPm)
    shr(vPms, vPm); shr(vPms + 1, vPm + 1)
    m16(vO, vVOm, vPm)
    nb()
    cvm(3); cvm(4); cvm(5)
    m16(vO, vVOm + 2, vPms)
    cvm(6); cvm(7)
    m16(vO + 4, vVOm + 4, vPm)
    nb()
    A('v_rcp_f32 v%d, v%d' % (vT1, vLs))
    m16(vO + 4, vVOm + 6, vPms)
    stamp('mend')
    A('ds_write_b32 v%d, v%d' % (vW2l, vT1))
    A('ds_write_b128 v%d, %s' % (vW2, v(vO, 4)))
    while bulk:
        nb()
    A('ds_write_b128 v%d, %s offset:1024' % (vW2, v(vO + 4, 4)))
    A('s_waitcnt lgkmcnt(0)')
    stamp('st2end')
    A('s_barrier')
    stamp('bar2')
    A('ds_read_b128 %s, v%d' % (v(vR2d + 8, 4), vR2l))
    for w in range(4):
        A('ds_read_b64 %s, v%d offset:%d' % (v(vR2d + 2 * w, 2), vR2, w * 2048))
    for w in range(4):
        A('s_waitcnt lgkmcnt(%d)' % (0 if prof else 3 - w))
        sel = 'op_sel:[0,%d%s] op_sel_hi:[1,%d%s]' % (w & 1, ',0' if w else '', w & 1, ',1' if w else '')
        if w == 0:
            A('v_pk_mul_f32 %s, %s, %s %s' % (v(vR2d, 2), v(vR2d, 2), v(vR2d + 8, 2), sel))
        else:
            A('v_pk_fma_f32 %s, %s, %s, %s %s' % (v(vR2d, 2), v(vR2d + 2 * w, 2), v(vR2d + 8 + (w & 2), 2), v(vR2d, 2), sel))
    cvt(vT0, vR2d)
    A('v_min_u32 v%d, -2, v%d' % (vT0, vT0))
    A(st4(vT0, vL4, sPartW, ' sc1'))
    A(st4(vT0, vL4, sPartA, ' sc1'))
    stamp('partst')
    A('s_waitcnt vmcnt(%d)' % (2 + nbulk - 8))
    stamp('vxok')
    A('v_cndmask_b32 v%d, v%d, v%d, %s' % (vQK, vQK, vVv, s(sLo, 2)))
    pre = [st4(vSent, vL4, sMemW, loc),
           's_xor_b32 s%d, s%d, 0x8000' % (sQkvW, sQkvW),
           st4(vSent, vQst, sQkvW, loc), st4(vSent, vVst, sQkvW, loc)]
    if not opt.get('nokvm'):
        pre += [st4(vQK, vKst, sKvm, ' sc1')]
    pre += ['v_mov_b32 v%d, s%d' % (vT1, sStep), 'buffer_store_dword v%d, v%d, %s, 0 offen sc1' % (vT1, vFst, S4(WS)), ld_flags]
    if opt.get('pf', 1):
        pre += ['s_add_u32 s%d, s%d, 0x40000' % (sPf, sPf), ldx4(vKm, sPf, 0)]
    pre += ['s_xor_b32 s%d, s%d, 0x8000' % (sQkvR, sQkvR), 's_xor_b32 s%d, s%d, 0x8000' % (sQkvR2, sQkvR2),
            's_add_u32 s%d, s%d, 0x20000' % (sKvm, sKvm), 's_xor_b32 s%d, s%d, 0x4000' % (sMemW, sMemW),
            's_xor_b32 s%d, s%d, 0x4000' % (sMemR, sMemR),
            's_add_u32 s%d, s%d, 0x%x' % (sVx, sVx, SEG), 's_add_u32 s%d, s%d, 0x%x' % (sVx2, sVx2, SEG)]
    gpos = opt.get('gpos', 29)
    fill = {}
    for i, o in enumerate(pre):
        fill.setdefault(i, []).append(o)
    sl = ['s_memtime s[26:27]'] if prof else []
    fill.setdefault(gpos, []).extend(['s_nop 15'] * opt.get('w3', 0) + sl + ld_part)
    vox(fill)
    zz = zeros(vA, 24) + zeros(vT, 16) + zeros(MM, 4)
    zw = opt.get('zw', 4)
    paced(zeros(vM, 16, '-1') + vox_tail() + zz[:zw])
    zz = zz[zw:]
    if prof:
        A('s_waitcnt lgkmcnt(0)')
        A('s_sub_u32 s%d, s%d, 33' % (sA, sStep))
        A('s_cmp_lt_u32 s%d, 6' % sA)
        A('s_cbranch_scc0 L_notr')
        A('s_mul_i32 s%d, s%d, 9' % (sA, sA))
        A('s_add_u32 s%d, s%d, 8' % (sA, sA))
        for i in [8] + list(range(8)):
            A('s_mov_b32 m0, s%d' % sA)
            A('v_writelane_b32 v%d, s%d, m0' % (vTr, 12 + 2 * i))
            A('s_add_u32 s%d, s%d, 1' % (sA, sA))
        A.label('L_notr')
    A.label('L_h3')
    lo = vPt + 8
    A('s_waitcnt vmcnt(1)')
    A('v_mfma_f32_16x16x32_bf16 %s, %s, %s, 0' % (v(lo, 4), v(vSel, 4), v(vPt, 4)))
    for o in chk4(vPt, vT0):
        A(o)
    A('s_waitcnt vmcnt(0)')
    A('v_mfma_f32_16x16x32_bf16 %s, %s, %s, %s' % (v(lo, 4), v(vSel, 4), v(vPt + 4, 4), v(lo, 4)))
    for o in chk4more(vPt + 4, vT0):
        A(o)
    A(cmpv(vT0))
    A('s_cbranch_vccnz L_r3')
    stamp('gathok')
    cvt(vT0, lo)
    A('v_min_u32 v%d, -2, v%d' % (vT0, vT0))
    A(st4(vT0, vL4, sMemW, loc))
    stamp('memst')
    A('s_add_u32 s%d, s%d, 1' % (sStep, sStep))
    A('s_add_u32 s%d, s%d, 0x40000' % (sPo, sPo))
    A('s_and_b32 s%d, s%d, 0x1c0000' % (sA, sPo))
    A('s_cmp_eq_u32 s%d, 0x1c0000' % sA)
    A('s_cselect_b32 s%d, 0x40000, 0' % sA)
    A('s_add_u32 s%d, s%d, s%d' % (sPo, sPo, sA))
    z0 = opt.get('h1d', 12)
    zs = opt.get('h1s', 12)
    paced(zz[:z0]); zz = zz[z0:]
    for t in range(4):
        ld_mem(t)
        stamp('mi%d' % t)
        if t == 2:
            part_slots()
            paced(zz); zz = []
        paced(zz[:zs]); zz = zz[zs:]
    A.label('L_kvc')
    kv_check('L_kvw', None)
    A('s_branch L_loop')
    poll_nodes()
    A.label('L_kvw')
    A(ld_flags)
    A('s_waitcnt vmcnt(0)')
    timeout_stub(A, 'L_kvc')
    A.label('L_r2')
    for o in order_q:
        A(o)
    cnt(sN2)
    timeout_stub(A, 'L_h2')
    A.label('L_r2k')
    for o in order_k + zeros(MM, 4):
        A(o)
    cnt(sN2)
    timeout_stub(A, 'L_h2k')
    A.label('L_r2v')
    for o in ld_v:
        A(o)
    cnt(sN2)
    A('s_waitcnt vmcnt(0)')
    for o in chk4(vVm, vT3) + chk4more(vVm + 4, vT3):
        A(o)
    A(cmpv(vT3))
    A('s_cbranch_vccz L_h2v')
    timeout_stub(A, 'L_r2v')
    A.label('L_r3')
    for o in ld_part:
        A(o)
    cnt(sN3)
    timeout_stub(A, 'L_h3')
    body = A.lines[loop_start:]
    labs = [l[:-1] for l in body if l.endswith(':')]
    pat = re.compile(r'\b(' + '|'.join(labs) + r')\b')
    A.lines[loop_start:] = [l.replace('@LOC@', '') for l in body] + [pat.sub(r'\1_i', l).replace('@LOC@', ' sc1') for l in body]
    A.label('L_c_tail')
    A('s_waitcnt lgkmcnt(0)')
    A('s_barrier')
    rd1(vR1v)
    red1(vVv)
    A('v_cndmask_b32 v%d, v%d, v%d, %s' % (vQK, vQK, vVv, s(sLo, 2)))
    A(st4(vQK, vKst, sKvm, ' sc1'))
    A('v_mov_b32 v%d, 64' % vT1)
    A('s_waitcnt vmcnt(0)')
    A('buffer_store_dword v%d, v%d, %s, 0 offen sc1' % (vT1, vFst, S4(WS)))
    tstamp(A, opt, 7, vT2, vT3, sA)
    if lite:
        A('s_memtime s[12:13]')
        A('s_memrealtime s[14:15]')
        A('s_waitcnt lgkmcnt(0)')
        A('s_sub_u32 s12, s12, s96')
        A('s_sub_u32 s14, s14, s98')
        A('v_mov_b32 v%d, s12' % (vM + 3))
        A('v_mov_b32 v%d, s14' % (vM + 4))
        A('s_lshl_b32 s%d, s%d, 4' % (sA, sG))
        A('s_add_u32 s%d, s%d, s%d' % (sA, sA, sC))
        A('s_lshl_b32 s%d, s%d, 2' % (sA, sA))
        A('s_add_u32 s%d, s%d, s%d' % (sA, sA, sW))
        A('s_lshl_b32 s%d, s%d, 6' % (sA, sA))
        A('s_add_u32 s%d, s%d, 0x%x' % (sA, sA, PROF))
        A('v_mov_b32 v%d, s%d' % (vM, sN1))
        A('v_mov_b32 v%d, s%d' % (vM + 1, sN2))
        A('v_mov_b32 v%d, s%d' % (vM + 2, sN3))
        A('v_mov_b32 v%d, 0' % vT0)
        for i in range(9, 14):
            A('buffer_store_dword v%d, v%d, %s, s%d offen offset:%d' % (vM + i - 9, vT0, S4(WS), sA, 4 * i))
    if lite:
        A('v_mov_b32 v%d, s96' % vT1)
        A('buffer_store_dword v%d, v%d, %s, s%d offen offset:56' % (vT1, vT0, S4(WS), sA))
        A('v_mov_b32 v%d, s98' % vT2)
        A('buffer_store_dword v%d, v%d, %s, s%d offen offset:60' % (vT2, vT0, S4(WS), sA))
        A('s_sub_u32 s%d, s%d, 0x%x' % (sA, sA, PROF))
        A('s_lshl_b32 s%d, s%d, 2' % (sA, sA))
        A('s_add_u32 s%d, s%d, 0x%x' % (sA, sA, PROF + MB))
        A('buffer_store_dword v%d, v%d, %s, s%d offen' % (vTr, vL4, S4(WS), sA))
    A('s_waitcnt vmcnt(0)')
    A('s_endpgm')


def build(opt):
    A = Asm()
    prologue(A, opt)
    chain(A, opt)
    for kind in 'kvq':
        proj(A, opt, kind)
    orole(A, opt)
    body, nn = fix_hazards(A.lines, verbose=True)
    hdr = open('cdna_kernels/%s.s.ref' % NAME).read().split('\n')
    hdr = [l for l in hdr if l.startswith(';') and '@launch' not in l]
    hdr.append('; opts ' + ' '.join('%s=%s' % kv for kv in opt.items()))
    if opt.get('prof'):
        hdr.append('; marks=' + opt.get('marks', 'm0ok,st1end,qkvst,q0ok,Send,st2end,partst') + ',gath,gathok')
    out = hdr + ['; @launch grid=(256,1,1) block=(256,1,1) lds=%d' % opt.get('lds', 163840),
                 '.amdgcn_target "amdgcn-amd-amdhsa--gfx950"', '.text', '.globl %s_kernel' % NAME, '.p2align 8',
                 '.type %s_kernel,@function' % NAME, '%s_kernel:' % NAME]
    out += body
    out += ['.section .rodata,"a"', '.p2align 6', '.amdhsa_kernel %s_kernel' % NAME,
            '  .amdhsa_next_free_vgpr 512', '  .amdhsa_next_free_sgpr 102', '  .amdhsa_accum_offset 256',
            '  .amdhsa_group_segment_fixed_size 0', '  .amdhsa_kernarg_size 128', '  .amdhsa_user_sgpr_count 2',
            '  .amdhsa_user_sgpr_kernarg_segment_ptr 1', '  .amdhsa_system_sgpr_workgroup_id_x 1',
            '  .amdhsa_float_denorm_mode_32 3', '.end_amdhsa_kernel', '']
    return '\n'.join(out), nn


if __name__ == '__main__':
    opt = {}
    outp = sys.argv[1]
    for a_ in sys.argv[2:]:
        k, val = a_.split('=')
        opt[k] = int(val) if val.lstrip('-').isdigit() else val
    txt, nn = build(opt)
    open(outp, 'w').write(txt)
    print('wrote', outp, 'nops inserted:', nn)
```

```python
import struct, math
from asmlib import *
from layout import *

NAME = 'gated_mix__memory_aug_recurrent_mem_tr__moe_arch_mod__prompt'


def f32(x):
    return '0x%08x' % struct.unpack('<I', struct.pack('<f', x))[0]


P_X, P_MEM0, P_WQ, P_WK, P_WV, P_WO = 64, 66, 68, 70, 72, 74
P_WR, P_WG, P_WU, P_WD, P_GW, P_OUT, P_DBG, P_WS = 80, 82, 84, 86, 88, 90, 92, 94
WS, DBG = 4, 8
SRD_A, SRD_B, SRD_C, SRD_D, SRD_E = 12, 16, 20, 24, 28
sW, sG, sC, sTO = 32, 33, 34, 35
sX = 100
sPure = 101
NPURE = 32
sR = 63
sT0 = 76
TIMEOUT = 1 << 20
LOG2E = math.log2(math.e)


def srd(A, d, p, nbytes):
    A('s_mov_b32 s%d, s%d' % (d, p))
    A('s_and_b32 s%d, s%d, 0xffff' % (d + 1, p + 1))
    A('s_mov_b32 s%d, 0x%x' % (d + 2, nbytes))
    A('s_mov_b32 s%d, 0x20000' % (d + 3))


def S4(d):
    return s(d, 4)


def timeout_stub(A, back):
    A('s_sub_u32 s%d, s%d, 1' % (sTO, sTO))
    A('s_cbranch_scc0 %s' % back)
    A('s_endpgm')


def sum8(A, vx, sa, sb):
    A('v_readlane_b32 s%d, v%d, 0' % (sa, vx))
    for i in range(1, 8):
        A('v_readlane_b32 s%d, v%d, %d' % (sb, vx, i))
        A('s_add_u32 s%d, s%d, s%d' % (sa, sa, sb))


def wait_init(A, t0, t1, sa, sb):
    L, L2 = A.newlabel('L_wi'), A.newlabel('L_wiok')
    A('v_lshlrev_b32 v%d, 5, v0' % t1)
    A.label(L)
    A('buffer_load_dword v%d, v%d, %s, 0 offen sc1' % (t0, t1, S4(DBG)))
    A('s_waitcnt vmcnt(0)')
    sum8(A, t0, sa, sb)
    A('s_cmp_ge_u32 s%d, 256' % sa)
    A('s_cbranch_scc1 %s' % L2)
    A('s_sleep 16')
    timeout_stub(A, L)
    A.label(L2)
    A('s_lshr_b32 s%d, s%d, 5' % (sa, sR))
    A('v_readlane_b32 s%d, v%d, s%d' % (sPure, t0, sa))


def poll_data(A, loads, regs, tmp, sleep):
    L, L2 = A.newlabel('L_pd'), A.newlabel('L_pdok')
    A.label(L)
    for o in loads:
        A(o)
    A('s_waitcnt vmcnt(0)')
    maxall(A, regs, tmp)
    A('v_cmp_eq_u32 vcc, -1, v%d' % tmp)
    A('s_cbranch_vccz %s' % L2)
    if sleep:
        A('s_sleep %d' % sleep)
    timeout_stub(A, L)
    A.label(L2)


def maxall(A, regs, tmp):
    regs = list(regs)
    A('v_max_u32 v%d, v%d, v%d' % (tmp, regs[0], regs[-1]))
    regs = regs[1:-1]
    while regs:
        x = regs[:2]
        regs = regs[2:]
        A('v_max3_u32 v%d, v%d, v%d, v%d' % (tmp, tmp, x[0], x[-1]))


def wait_flags(A, vf, vaddr, need, sleep=1):
    L, L2 = A.newlabel('L_wf'), A.newlabel('L_wfok')
    A.label(L)
    A('buffer_load_dword v%d, v%d, %s, 0 offen sc1' % (vf, vaddr, S4(WS)))
    A('s_waitcnt vmcnt(0)')
    A('v_cmp_gt_i32 vcc, %s, v%d' % (need, vf))
    A('s_cbranch_vccz %s' % L2)
    if sleep:
        A('s_sleep %d' % sleep)
    timeout_stub(A, L)
    A.label(L2)


def lane0_addr(A, dst, sval, tmp):
    A('v_mov_b32 v%d, 0x%x' % (tmp, OOB))
    A('v_mov_b32 v%d, s%d' % (dst, sval))
    A('v_cmp_eq_u32 vcc, 0, v0')
    A('v_cndmask_b32 v%d, v%d, v%d, vcc' % (dst, tmp, dst))


def bits(A, dst, terms, tmp, base=None):
    first = True
    for (si, wd, so) in terms:
        A('v_bfe_u32 v%d, v0, %d, %d' % (tmp, si, wd))
        if first:
            A('v_lshlrev_b32 v%d, %d, v%d' % (dst, so, tmp))
            first = False
        else:
            A('v_lshl_add_u32 v%d, v%d, %d, v%d' % (dst, tmp, so, dst))
    if base is not None:
        A('v_add_u32 v%d, %s, v%d' % (dst, base, dst))


def tstamp(A, opt, slot, t0, t1, sa, now=True):
    if not opt.get('prof'):
        return
    if now:
        A('s_memrealtime s[78:79]')
    A('s_lshl_b32 s%d, s%d, 2' % (sa, sR))
    A('s_add_u32 s%d, s%d, s%d' % (sa, sa, sW))
    A('s_lshl_b32 s%d, s%d, 6' % (sa, sa))
    A('s_add_u32 s%d, s%d, 0x%x' % (sa, sa, PROF + 2 * MB + slot * 4))
    A('s_waitcnt lgkmcnt(0)')
    A('v_mov_b32 v%d, s78' % t0)
    A('v_mov_b32 v%d, 0' % t1)
    A('buffer_store_dword v%d, v%d, %s, s%d offen' % (t0, t1, S4(WS), sa))
    A('s_memtime s[78:79]')
    A('s_add_u32 s%d, s%d, 0x100000' % (sa, sa))
    A('s_waitcnt lgkmcnt(0)')
    A('v_mov_b32 v%d, s78' % t0)
    A('buffer_store_dword v%d, v%d, %s, s%d offen' % (t0, t1, S4(WS), sa))


def cap_vm(A, start, already=28):
    out, n, done = [], already, False
    for l in A.lines[start:]:
        t = l.strip()
        if t.startswith('s_waitcnt') and 'vmcnt' in t:
            done = True
        if not done and t.startswith('buffer_'):
            n += 1
            if n > 60:
                out.append('    s_waitcnt vmcnt(59)')
        out.append(l)
    A.lines[start:] = out
```

```python
MB = 1 << 20
KB = 1024
KX = 0 * MB
VX = 16 * MB
VT = 32 * MB
OO = 48 * MB
KVM = 64 * MB
PROF = 80 * MB
PART = 96 * MB
INIT1 = PART - 768 * KB
MEMR = INIT1
QKVR = INIT1 + 256 * KB
INIT2 = INIT1 - 256 * KB
F_KV = INIT2 + 0x30000
F_TK = INIT2 + 0x1000
F_VOTE = INIT2 + 0x2000
KEYS = INIT2 + 0x4000
GATE = INIT2 + 0x6000
F_O = INIT2 + 0x8000
HH = INIT2 + 0x10000
YY = INIT2 + 0x20000
WS_BYTES = 256 * MB
SENT = 0xFFFFFFFF
OOB = 0x40000000
```

```python
from common import *
from workers import load_weights


def orole(A, opt):
    S = Alloc(36, 63)
    sI = S('i')
    sA, sB, sCc, sD, sSeg, sBase, sRot, sHi, sPrev, sCnt = [S(n) for n in 'a b cc d seg base rot hi prev cnt'.split()]
    sIdx = S('idx', 8)
    cvt = lambda d, x, y: A('v_cvt_pk_bf16_f32 v%d, v%d, v%d' % (d, x, y))

    def rnd2(x, y, t):
        cvt(t, x, y)
        A('v_lshlrev_b32 v%d, 16, v%d' % (x, t))
        A('v_and_b32 v%d, s%d, v%d' % (y, sHi, t))

    def sigmoid(d, x):
        A('v_mul_f32 v%d, %s, v%d' % (d, f32(-LOG2E), x))
        A('v_exp_f32 v%d, v%d' % (d, d))
        A('v_add_f32 v%d, 1.0, v%d' % (d, d))
        A('v_rcp_f32 v%d, v%d' % (d, d))

    V = Alloc(1, 252)
    vL16, vL4, vFl, vKey, vRaw = [V(n) for n in 'l16 l4 fl key raw'.split()]
    t0, t1, t2, t3, t4, t5 = [V('t%d' % i) for i in range(6)]
    vAcc = V('acc', 8, 4)
    vPm = V('perm', 32, 4)
    NB = 6
    vRing = V('ring', 32 * NB, 4)
    A.label('L_o')
    cap0 = len(A.lines)
    srd(A, SRD_A, P_WR, 2048)
    srd(A, SRD_B, P_X, 4 * MB)
    srd(A, SRD_C, P_GW, 2048)
    srd(A, SRD_D, P_WG, 7 * MB)
    srd(A, SRD_E, P_WU, 7 * MB)
    A('s_mov_b32 s%d, 0xffff0000' % sHi)
    A('v_lshlrev_b32 v%d, 4, v0' % vL16)
    A('v_lshlrev_b32 v%d, 2, v0' % vL4)
    for i in range(2):
        A('buffer_load_dwordx4 %s, v%d, %s, 0 offen offset:%d' % (v(vPm + 4 * i, 4), vL16, S4(SRD_A), 1024 * i))
    for i in range(2):
        A('buffer_load_dwordx4 %s, v%d, %s, 0 offen offset:%d' % (v(vPm + 8 + 4 * i, 4), vL16, S4(SRD_C), 1024 * i))
    bits(A, t2, [(0, 4, 11), (4, 2, 4)], t0)
    A('s_lshl_b32 s%d, s%d, 2' % (sA, sI))
    A('s_add_u32 s%d, s%d, s%d' % (sA, sA, sW))
    A('s_lshl_b32 s%d, s%d, 4' % (sD, sA))
    A('s_lshl_b32 s%d, s%d, 15' % (sA, sA))
    for ks in range(32):
        A('buffer_load_dwordx4 %s, v%d, %s, s%d offen offset:%d' % (a(4 * ks, 4), t2, S4(SRD_B), sA, 64 * ks))
    A('v_lshrrev_b32 v%d, 4, v0' % t0)
    A('v_mul_u32_u24 v%d, %d, v%d' % (t0, 8 * 7168, t0))
    A('v_and_b32 v%d, 15, v0' % t3)
    A('v_lshl_add_u32 v%d, v%d, 4, v%d' % (vRaw, t3, t0))
    A('s_cmp_lt_u32 s%d, 28' % sI)
    A('s_cselect_b32 s%d, 0, 0x%x' % (sB, OOB))
    A('v_add_u32 v%d, s%d, v%d' % (vRaw, sB, vRaw))
    A('s_mul_i32 s%d, s%d, %d' % (sBase, sW, 256 * 7168))
    A('s_lshl_b32 s%d, s%d, 8' % (sA, sI))
    A('s_add_u32 s%d, s%d, s%d' % (sBase, sBase, sA))

    def batch(b):
        for i in range(8):
            A('s_add_u32 s%d, s%d, 0x%x' % (sA, sBase, (32 * (b >> 1) + i) * 7168))
            A('buffer_load_dwordx4 %s, v%d, %s, s%d offen' % (v(vRing + 32 * (b % NB) + 4 * i, 4), vRaw, S4((SRD_D, SRD_E)[b & 1]), sA))
    batch(0); batch(1)
    A('s_lshl_b32 s%d, s%d, 12' % (sA, sW))
    A('v_add_u32 v%d, s%d, v%d' % (t3, sA, vL16))
    bits(A, t4, [(0, 1, 11), (4, 2, 4)], t0, 's%d' % sA)
    A('s_waitcnt vmcnt(48)')
    cap_vm(A, cap0)
    for i in range(4):
        A('ds_write_b128 v%d, %s offset:%d' % (t3, v(vPm + 4 * i, 4), 1024 * i))
    A('s_waitcnt vmcnt(16) lgkmcnt(0)')
    for k0 in range(0, 32, 8):
        for ks in range(k0, k0 + 8):
            A('ds_read_b128 %s, v%d offset:%d' % (v(vPm + 4 * (ks & 7), 4), t4, 64 * ks))
        A('s_waitcnt lgkmcnt(0)')
        for ks in range(k0, k0 + 8):
            A('v_mfma_f32_16x16x32_bf16 %s, %s, %s, %s' % (v(vAcc, 4), v(vPm + 4 * (ks & 7), 4), a(4 * ks, 4), v(vAcc, 4) if ks else '0'))
    rnd2(vAcc + 1, vAcc, t0)
    sigmoid(t1, vAcc + 1)
    A('v_ashrrev_i32 v%d, 31, v%d' % (t2, vAcc))
    A('v_or_b32 v%d, 0x80000000, v%d' % (t2, t2))
    cvt(t1, t1, t1)
    A('v_and_b32 v%d, s%d, v%d' % (t1, sHi, t1))
    A('v_xor_b32 v%d, v%d, v%d' % (t2, t2, vAcc))
    A('s_sub_u32 s%d, 2047, s%d' % (sA, sD))
    A('v_sub_u32 v%d, s%d, v0' % (t3, sA))
    A('v_and_or_b32 v%d, v%d, s%d, v%d' % (t2, t2, sHi, t3))
    A('v_mov_b32 v%d, 0x%x' % (t3, OOB))
    A('v_cmp_gt_u32 vcc, 16, v0')
    A('v_cndmask_b32 v%d, v%d, v%d, vcc' % (t3, t3, vL4))
    wait_init(A, t0, t4, sA, sB)
    A('s_lshl_b32 s%d, s%d, 2' % (sA, sD))
    A('s_add_u32 s%d, s%d, 0x%x' % (sB, sA, KEYS))
    A('s_add_u32 s%d, s%d, 0x%x' % (sA, sA, GATE))
    A('buffer_store_dword v%d, v%d, %s, s%d offen sc1' % (t1, t3, S4(WS), sA))
    A('s_waitcnt vmcnt(0)')
    A('buffer_store_dword v%d, v%d, %s, s%d offen sc1' % (t2, t3, S4(WS), sB))
    for b in range(2, NB):
        batch(b)
    A('s_mov_b32 s%d, 0x%x' % (sA, KEYS))
    A('s_mov_b32 s%d, 0x%x' % (sB, KEYS + 4096))
    A('s_waitcnt vmcnt(16)')
    poll_data(A, ['buffer_load_dwordx4 %s, v%d, %s, s%d offen offset:%d sc1' % (v(vPm + 4 * i, 4), vL16, S4(WS), (sA, sB)[i >> 2], 1024 * (i & 3)) for i in range(8)],
              range(vPm, vPm + 32), t0, 16)
    tstamp(A, opt, 3, t0, t1, sA)
    A('s_mov_b32 s%d, 0' % sPrev)
    A('s_mov_b32 s%d, 0' % sCc)
    A('v_mov_b32 v%d, 0' % vKey)
    A.label('L_top')
    A('v_mov_b32 v%d, 0' % t0)
    for i in range(0, 32, 2):
        A('v_subrev_u32 v%d, s%d, v%d' % (t1, sPrev, vPm + i))
        A('v_subrev_u32 v%d, s%d, v%d' % (t2, sPrev, vPm + i + 1))
        A('v_max3_u32 v%d, v%d, v%d, v%d' % (t0, t0, t1, t2))
    for sh in (8, 4, 2, 1):
        A('v_max_u32_dpp v%d, v%d, v%d row_ror:%d row_mask:0xf bank_mask:0xf' % (t0, t0, t0, sh))
    for sw in ('v_permlane32_swap_b32', 'v_permlane16_swap_b32'):
        A('v_mov_b32 v%d, v%d' % (t1, t0))
        A('%s v%d, v%d' % (sw, t0, t1))
        A('v_max_u32 v%d, v%d, v%d' % (t0, t0, t1))
    A('v_readfirstlane_b32 s%d, v%d' % (sA, t0))
    A('s_mov_b32 m0, s%d' % sCc)
    A('s_add_u32 s%d, s%d, s%d' % (sPrev, sPrev, sA))
    A('v_writelane_b32 v%d, s%d, m0' % (vKey, sPrev))
    A('s_add_u32 s%d, s%d, 1' % (sCc, sCc))
    A('s_cmp_lt_u32 s%d, 8' % sCc)
    A('s_cbranch_scc1 L_top')
    bits(A, t1, [(0, 3, 2)], t0)
    A('ds_bpermute_b32 v%d, v%d, v%d' % (t2, t1, vKey))
    A('s_waitcnt lgkmcnt(0)')
    A('v_and_b32 v%d, 0x7ff, v%d' % (t2, t2))
    A('v_sub_u32 v%d, 2047, v%d' % (t2, t2))
    A('v_lshlrev_b32 v%d, 11, v%d' % (t2, t2))
    A('v_lshrrev_b32 v%d, 4, v0' % t0)
    A('v_lshl_add_u32 v%d, v%d, 4, v%d' % (t2, t0, t2))
    A('s_lshl_b32 s%d, s%d, 9' % (sA, sW))
    for ks in range(8):
        A('buffer_load_dwordx4 %s, v%d, %s, s%d offen offset:%d' % (a(128 + 4 * ks, 4), t2, S4(SRD_B), sA, 64 * ks))
    A('s_mov_b32 s%d, 0x05040100' % sCc)
    A('s_mov_b32 s%d, 0x07060302' % sD)
    A('s_waitcnt vmcnt(0)')
    for b in range(16):
        if b >= NB:
            A('s_waitcnt vmcnt(%d)' % (8 * min(NB - 1, 15 - b)))
        r0 = vRing + 32 * (b % NB)
        for t in range(8):
            for p in range(4):
                A('v_perm_b32 v%d, v%d, v%d, s%d' % (vPm + 4 * t + p, r0 + 4 * (2 * p + 1) + (t >> 1), r0 + 4 * (2 * p) + (t >> 1), (sCc, sD)[t & 1]))
            if t:
                acc = a(160 + 32 * (b & 1) + 4 * (t - 1), 4)
                A('v_mfma_f32_16x16x32_bf16 %s, %s, %s, %s' % (acc, a(128 + 4 * (b >> 1), 4), v(vPm + 4 * (t - 1), 4), acc if b > 1 else '0'))
        if b + NB < 16:
            batch(b + NB)
        acc = a(160 + 32 * (b & 1) + 28, 4)
        A('v_mfma_f32_16x16x32_bf16 %s, %s, %s, %s' % (acc, a(128 + 4 * (b >> 1), 4), v(vPm + 28, 4), acc if b > 1 else '0'))
    A('s_lshl_b32 s%d, s%d, 14' % (sA, sW))
    A('v_add_u32 v%d, s%d, v%d' % (t3, sA, vL16))
    A('s_barrier')
    for i in range(16):
        A('ds_write_b128 v%d, %s offset:%d' % (t3, a(160 + 4 * i, 4), 1024 * i))
        if i == 7:
            A('s_waitcnt lgkmcnt(0)')
    A('s_and_b32 s%d, s%d, 1' % (sA, sW))
    A('s_lshl_b32 s%d, s%d, 8' % (sA, sA))
    A('s_lshr_b32 s%d, s%d, 1' % (sB, sW))
    A('s_lshl_b32 s%d, s%d, 3' % (sB, sB))
    A('s_add_u32 s%d, s%d, s%d' % (sA, sA, sB))
    bits(A, t3, [(0, 2, 11), (2, 4, 4)], t0, 's%d' % sA)
    A('s_waitcnt lgkmcnt(0)')
    A('s_barrier')
    for m in range(2):
        for tt in range(2):
            for wv in range(4):
                A('ds_read_b64 %s, v%d offset:%d' % (v(vPm + ((m * 2 + tt) * 4 + wv) * 2, 2), t3, wv * 16384 + m * 8192 + tt * 1024))
        A('s_waitcnt lgkmcnt(0)')
    for q in range(4):
        b0 = vPm + 8 * q
        A('v_pk_add_f32 %s, %s, %s' % (v(b0, 2), v(b0, 2), v(b0 + 2, 2)))
        A('v_pk_add_f32 %s, %s, %s' % (v(b0 + 4, 2), v(b0 + 4, 2), v(b0 + 6, 2)))
        A('v_pk_add_f32 %s, %s, %s' % (v(b0, 2), v(b0, 2), v(b0 + 4, 2)))
        rnd2(b0, b0 + 1, t0)
    for tt in range(2):
        b0 = vPm + 8 * tt
        for j in range(2):
            sigmoid(b0 + 2 + j, b0 + j)
            A('v_mul_f32 v%d, v%d, v%d' % (b0 + j, b0 + j, b0 + 2 + j))
        rnd2(b0, b0 + 1, t0)
        for j in range(2):
            A('v_mul_f32 v%d, v%d, v%d' % (b0 + j, b0 + j, b0 + 16 + j))
    cvt(t1, vPm, vPm + 8)
    cvt(t2, vPm + 1, vPm + 9)
    A('v_min_u32 v%d, -2, v%d' % (t1, t1))
    A('v_min_u32 v%d, -2, v%d' % (t2, t2))
    A('s_and_b32 s%d, s%d, 1' % (sA, sW))
    A('s_lshl_b32 s%d, s%d, 2' % (sA, sA))
    A('s_and_b32 s%d, s%d, 2' % (sB, sW))
    A('s_add_u32 s%d, s%d, s%d' % (sA, sA, sB))
    A('s_mul_i32 s%d, s%d, 7168' % (sA, sA))
    A('s_lshl_b32 s%d, s%d, 8' % (sB, sI))
    A('s_add_u32 s%d, s%d, s%d' % (sA, sA, sB))
    A('s_add_u32 s%d, s%d, 0x%x' % (sA, sA, HH))
    A('s_add_u32 s%d, s%d, 7168' % (sB, sA))
    A('s_cmp_lt_u32 s%d, 28' % sI)
    A('s_cselect_b32 s%d, 0, 0x%x' % (sD, OOB))
    A('v_add_u32 v%d, s%d, v%d' % (t3, sD, vL4))
    A('buffer_store_dword v%d, v%d, %s, s%d offen sc1' % (t1, t3, S4(WS), sA))
    A('buffer_store_dword v%d, v%d, %s, s%d offen sc1' % (t2, t3, S4(WS), sB))
    tstamp(A, opt, 4, t0, t4, sA)
    srd(A, SRD_A, P_WD, 7 * MB)
    A('s_mul_i32 s%d, s%d, %d' % (sBase, sW, 896 * 2048))
    A('s_lshl_b32 s%d, s%d, 6' % (sA, sI))
    A('s_add_u32 s%d, s%d, s%d' % (sBase, sBase, sA))

    load_weights(A, SRD_A, sBase, 2048, lambda gi, i: 64 * gi + 16 * i, [(4, 2, 9), (2, 2, 6), (0, 2, 3)],
                 lambda ksl, pp, tile: (32 * ksl + 4 * pp) * 64 + tile * 32, 14, vRaw, t3, t4, t0, sA, sB, 65536, None, 8)
    A('v_and_b32 v%d, 7, v0' % t0)
    A('v_mul_u32_u24 v%d, 7168, v%d' % (t2, t0))
    A('v_lshrrev_b32 v%d, 4, v0' % t0)
    A('v_lshl_add_u32 v%d, v%d, 4, v%d' % (t2, t0, t2))
    A('s_mul_i32 s%d, s%d, 1792' % (sA, sW))
    A('s_add_u32 s%d, s%d, 0x%x' % (sA, sA, HH))
    poll_data(A, ['buffer_load_dwordx4 %s, v%d, %s, s%d offen offset:%d sc1' % (v(vRing + 4 * ks, 4), t2, S4(WS), sA, 64 * ks) for ks in range(28)],
              range(vRing, vRing + 112), t0, 16)
    A('s_barrier')
    bits(A, t1, [(3, 3, 2)], t0)
    A('ds_bpermute_b32 v%d, v%d, v%d' % (t5, t1, vKey))
    A('s_lshl_b32 s%d, s%d, 11' % (sA, sW))
    A('v_add_u32 v%d, s%d, v%d' % (t3, sA, vL16))
    bits(A, t4, [(2, 1, 10), (0, 2, 8), (3, 3, 4)], t0)
    A('s_waitcnt lgkmcnt(0)')
    A('v_not_b32 v%d, v%d' % (t1, t5))
    A('v_ashrrev_i32 v%d, 31, v%d' % (t1, t1))
    A('v_or_b32 v%d, 0x80000000, v%d' % (t1, t1))
    A('v_xor_b32 v%d, v%d, v%d' % (t5, t5, t1))
    A('v_and_b32 v%d, s%d, v%d' % (t5, sHi, t5))
    sigmoid(t5, t5)
    cvt(t5, t5, t5)
    A('v_and_b32 v%d, s%d, v%d' % (t5, sHi, t5))
    A('s_waitcnt vmcnt(0)')
    for ks in range(28):
        for ct in range(2):
            acc = v(vAcc + 4 * ct, 4)
            A('v_mfma_f32_16x16x32_bf16 %s, %s, %s, %s' % (acc, a((ks * 2 + ct) * 4, 4), v(vRing + 4 * ks, 4), acc if ks else '0'))
    A('ds_write_b128 v%d, %s' % (t3, v(vAcc, 4)))
    A('ds_write_b128 v%d, %s offset:1024' % (t3, v(vAcc + 4, 4)))
    A('s_waitcnt lgkmcnt(0)')
    A('s_barrier')
    for wv in range(4):
        A('ds_read_b128 %s, v%d offset:%d' % (v(vPm + 4 * wv, 4), t4, wv * 2048))
    A('s_waitcnt lgkmcnt(0)')
    for wv in range(1, 4):
        for h in range(2):
            A('v_pk_add_f32 %s, %s, %s' % (v(vPm + 2 * h, 2), v(vPm + 2 * h, 2), v(vPm + 4 * wv + 2 * h, 2)))
    rnd2(vPm, vPm + 1, t0)
    rnd2(vPm + 2, vPm + 3, t0)
    for i in range(4):
        A('v_mul_f32 v%d, v%d, v%d' % (vPm + i, vPm + i, t5))
    cvt(vPm + 4, vPm, vPm + 1)
    cvt(vPm + 5, vPm + 2, vPm + 3)
    A('v_min_u32 v%d, -2, v%d' % (vPm + 4, vPm + 4))
    A('v_min_u32 v%d, -2, v%d' % (vPm + 5, vPm + 5))
    A('v_and_b32 v%d, 0x7ff, v%d' % (t1, vKey))
    A('v_sub_u32 v%d, 2047, v%d' % (t1, t1))
    A('s_cmp_lg_u32 s%d, 0' % sW)
    A('s_cbranch_scc1 L_o_join')
    A('s_lshl_b32 s%d, s%d, 10' % (sA, sI))
    A('s_add_u32 s%d, s%d, 0x%x' % (sA, sA, YY))
    A('v_lshlrev_b32 v%d, 3, v0' % t2)
    A('buffer_store_dwordx2 %s, v%d, %s, s%d offen sc1' % (v(vPm + 4, 2), t2, S4(WS), sA))
    A('buffer_store_dword v%d, v%d, %s, s%d offen offset:512 sc1' % (t1, vL4, S4(WS), sA))

    V = Alloc(1, 256)
    vL16, vFa, vFv, vFn, vWr, vRr, vXa, vLw, vG = [V(n) for n in 'l16 fa fv fn wr rr xa lw g'.split()]
    t0, t1 = V('t0'), V('t1')
    vXv = V('xv', 2)
    vU = V('u', 2)
    vY = V('y', 16, 4)
    vD = V('d', 16, 4)
    vZ = V('z', 12, 4)
    vO = V('o', 64, 4)
    vW = V('w', 128, 4)
    t2, t3 = vXv, vXv + 1
    LW, LRED = 0, 131072
    sTeam, sU, sUn, sNb, sPre = sPrev, sSeg, S('un'), S('nb'), S('pre')
    U0 = opt.get('u0', 84)
    assert U0 % 2 == 0
    A.label('L_o_join')
    tstamp(A, opt, 5, t0, t1, sA)
    srd(A, SRD_A, P_WO, 8 * MB)
    srd(A, SRD_B, P_X, 4 * MB)
    srd(A, SRD_C, P_OUT, 4 * MB)
    A('s_mov_b32 s%d, 0xffff0000' % sHi)
    A('v_lshlrev_b32 v%d, 4, v0' % vL16)
    A('s_add_u32 s%d, s%d, 1' % (sTeam, sC))
    A('s_and_b32 s%d, s%d, 3' % (sTeam, sTeam))
    A('s_lshl_b32 s%d, s%d, 1' % (sTeam, sTeam))
    A('s_lshr_b32 s%d, s%d, 4' % (sA, sI))
    A('s_add_u32 s%d, s%d, s%d' % (sTeam, sTeam, sA))
    A('s_and_b32 s%d, s%d, 15' % (sI, sI))
    A('s_and_b32 s%d, s%d, 7' % (sRot, sI))
    A('s_barrier')
    for hl in range(8):
        A('s_add_u32 s%d, s%d, %d' % (sA, sRot, hl))
        A('s_and_b32 s%d, s%d, 7' % (sA, sA))
        A('s_lshl_b32 s%d, s%d, 3' % (sB, sW))
        A('s_add_u32 s%d, s%d, s%d' % (sA, sA, sB))
        A('s_lshl_b32 s%d, s%d, 18' % (sA, sA))
        A('s_lshl_b32 s%d, s%d, 7' % (sB, sI))
        A('s_add_u32 s%d, s%d, s%d' % (sIdx + hl, sA, sB))
    vRaw, vTr = vFa, vFv
    bits(A, vRaw, [(3, 3, 11), (0, 3, 4)], t0)
    A('s_lshl_b32 s%d, s%d, 13' % (sA, sW))
    A('s_add_u32 s%d, s%d, %d' % (sA, sA, LRED))
    A('v_add_u32 v%d, s%d, v%d' % (vWr, sA, vL16))
    bits(A, vTr, [(2, 1, 11), (4, 2, 9), (3, 1, 7), (0, 2, 3)], t0, 's%d' % sA)
    A('s_lshl_b32 s%d, s%d, 15' % (sA, sW))
    A('v_add_u32 v%d, s%d, v%d' % (vLw, sA, vL16))
    home = lambda ks, i: (a(8 * ks + 4 * i, 4) if i < 2 else v(vW + 4 * ks, 4) if i == 2 else v(vO + 4 * (ks & 15), 4))
    home2 = lambda ks, i, pp: (a(8 * ks + 4 * i + 2 * pp, 2) if i < 2 else v(vW + 4 * ks + 2 * pp, 2) if i == 2 else v(vD + 4 * (ks & 1) + 2 * pp, 2))

    def wissue(ks):
        for i in range(4):
            A('s_add_u32 s%d, s%d, 0x%x' % (sB, sIdx + (ks >> 2), (32 * (ks & 3) + 8 * i) * 2048))
            A('buffer_load_dwordx4 %s, v%d, %s, s%d offen' % (home(ks, i), vRaw, S4(SRD_A), sB))
    DEP = 13
    for ks in range(DEP):
        wissue(ks)
    for ks in range(32):
        A('s_waitcnt vmcnt(%d)' % (4 * (min(32, ks + DEP) - 1 - ks)))
        sl = (ks & 1) * 4096
        for i in range(4):
            A('ds_write_b128 v%d, %s offset:%d' % (vWr, home(ks, i), sl + i * 1024))
        if ks + DEP < 32:
            wissue(ks + DEP)
        if ks:
            A('s_waitcnt lgkmcnt(4)')
            A('ds_write_b128 v%d, %s offset:%d' % (vLw, v(vD + 4 * ((ks - 1) & 1), 4), (ks - 1) * 1024))
        for ct in range(4):
            for pp in range(2):
                A('ds_read_b64_tr_b16 %s, v%d offset:%d' % (home2(ks, ct, pp), vTr, sl + 2 * pp * 128 + ct * 32))
    A('s_waitcnt lgkmcnt(0)')
    A('ds_write_b128 v%d, %s offset:%d' % (vLw, v(vD + 4, 4), 31 * 1024))
    tstamp(A, opt, 6, t0, t1, sA)
    A('s_lshl_b32 s%d, s%d, 11' % (sA, sI))
    A('s_add_u32 s%d, s%d, 0x%x' % (sA, sA, YY))
    bits(A, t1, [(3, 1, 10), (0, 3, 3)], t0)
    A('v_lshlrev_b32 v%d, 2, v0' % t2)
    poll_data(A, ['buffer_load_dwordx2 %s, v%d, %s, s%d offen offset:%d sc1' % (v(vY + 2 * j, 2), t1, S4(WS), sA, 64 * j) for j in range(8)]
              + ['buffer_load_dword v%d, v%d, %s, s%d offen offset:512 sc1' % (t3, t2, S4(WS), sA)], list(range(vY, vY + 16)) + [t3], t0, 16)
    for j in range(8):
        A('v_readlane_b32 s%d, v%d, %d' % (sIdx + j, t3, j))
    A('s_lshl_b32 s%d, s%d, 2' % (sA, sX))
    A('s_add_u32 s%d, s%d, s%d' % (sA, sA, sW))
    A('s_lshl_b32 s%d, s%d, 10' % (sA, sA))
    A('s_add_u32 s%d, s%d, 0x%x' % (sA, sA, F_O))
    bits(A, vFa, [(0, 3, 7)], t0, 's%d' % sA)
    A('s_lshl_b32 s%d, s%d, 12' % (sA, sW))
    A('s_add_u32 s%d, s%d, %d' % (sA, sA, LRED))
    A('v_and_b32 v%d, 0x30, v0' % t0)
    A('v_xor_b32 v%d, v%d, v%d' % (t0, t0, vL16))
    A('v_add_u32 v%d, s%d, v%d' % (vWr, sA, t0))
    A('s_lshl_b32 s%d, s%d, 2' % (sA, sW))
    A('v_lshrrev_b32 v%d, 4, v0' % t0)
    A('v_add_u32 v%d, s%d, v%d' % (t0, sA, t0))
    A('v_and_b32 v%d, 15, v0' % t1)
    A('v_xor_b32 v%d, v%d, v%d' % (t0, t0, t1))
    A('v_lshlrev_b32 v%d, 4, v%d' % (t0, t0))
    A('v_lshl_add_u32 v%d, v%d, 8, v%d' % (t0, t1, t0))
    A('v_add_u32 v%d, %d, v%d' % (vRr, LRED, t0))
    A('s_lshl_b32 s%d, s%d, 13' % (sA, sW))
    A('s_lshl_b32 s%d, s%d, 7' % (sB, sI))
    A('s_add_u32 s%d, s%d, s%d' % (sA, sA, sB))
    bits(A, vXa, [(4, 2, 11), (0, 4, 3)], t0, 's%d' % sA)
    A('v_mov_b32 v%d, 0' % vFv)
    A('s_cmp_lt_u32 s%d, 2' % sTeam)
    A('s_cselect_b32 s%d, 0, %d' % (sUn, U0))
    A('s_add_u32 s%d, s%d, s%d' % (sUn, sUn, sTeam))
    A('s_mov_b32 s%d, 0' % sPre)
    A('s_mov_b32 s%d, 0' % sCnt)
    A('s_waitcnt lgkmcnt(0)')
    A('s_barrier')

    def ubase(dst, u):
        return ['s_lshr_b32 s%d, s%d, 1' % (dst, u), 's_lshl_b32 s%d, s%d, 18' % (dst, dst), 's_and_b32 s%d, s%d, 1' % (sA, u),
                's_lshl_b32 s%d, s%d, 12' % (sA, sA), 's_add_u32 s%d, s%d, s%d' % (dst, dst, sA), 's_lshl_b32 s%d, s%d, 16' % (sA, sW),
                's_add_u32 s%d, s%d, s%d' % (dst, dst, sA), 's_add_u32 s%d, s%d, 0x%x' % (dst, dst, OO)]

    def hbase(base, hl):
        return ['s_add_u32 s%d, s%d, %d' % (sB, sRot, hl), 's_and_b32 s%d, s%d, 7' % (sB, sB), 's_lshl_b32 s%d, s%d, 13' % (sB, sB),
                's_add_u32 s%d, s%d, s%d' % (sB, sB, base)]
    old_ = lambda ks: 'buffer_load_dwordx4 %s, v%d, %s, s%d offen offset:%d sc1' % (v(vO + 4 * (ks & 15), 4), vL16, S4(WS), sB, (ks & 3) * 1024)
    zrd = lambda ks: 'ds_read_b128 %s, v%d offset:%d' % (v(vZ + 4 * (ks % 3), 4), vLw, ks * 1024)

    A('.p2align 6')
    A.label('L_o_loop')
    A('s_mov_b32 s%d, s%d' % (sU, sUn))
    A('s_cmp_ge_u32 s%d, 128' % sU)
    A('s_cbranch_scc1 L_o_end')
    A('s_cmp_lt_u32 s%d, %d' % (sU, U0))
    A('s_cselect_b32 s%d, 2, 6' % sA)
    A('s_add_u32 s%d, s%d, s%d' % (sUn, sU, sA))
    for o in ubase(sBase, sU):
        A(o)
    A('s_cmp_eq_u32 s%d, 1' % sPre)
    A('s_cbranch_scc1 L_o_go')
    A('s_lshr_b32 s%d, s%d, 1' % (sD, sU))
    A('s_add_u32 s%d, s%d, 1' % (sD, sD))
    wait_flags(A, vFv, vFa, 's%d' % sD, opt.get('osl', 2))
    for ks in range(16):
        if ks & 3 == 0:
            for o in hbase(sBase, ks >> 2):
                A(o)
        A(old_(ks))
    A('v_mov_b32 v%d, 0x%x' % (t0, OOB))
    A('buffer_load_dword v%d, v%d, %s, 0 offen' % (vFn, t0, S4(WS)))
    A.label('L_o_go')
    A(zrd(0)); A(zrd(1))
    A('s_lshr_b32 s%d, s%d, 1' % (sD, sUn))
    A('s_add_u32 s%d, s%d, 1' % (sD, sD))
    A('v_cmp_gt_i32 vcc, s%d, v%d' % (sD, vFv))
    A('s_lshl_b32 s%d, s%d, 15' % (sCc, sU))
    A('s_cmp_lg_u64 vcc, 0')
    A('s_cselect_b32 s%d, 0, 0x%x' % (sA, OOB))
    A('buffer_load_dword v%d, v%d, %s, s%d offen sc1' % (vFn, vFa, S4(WS), sA))
    A('s_lshl_b32 s%d, s%d, 2' % (sA, sU))
    A('s_add_u32 s%d, s%d, s%d' % (sA, sA, sW))
    A('s_lshl_b32 s%d, s%d, 2' % (sA, sA))
    A('v_lshrrev_b32 v%d, 4, v0' % t1)
    A('v_add_u32 v%d, s%d, v%d' % (t1, sA, t1))
    A('v_lshlrev_b32 v%d, 2, v%d' % (t0, t1))
    A('s_mov_b32 s%d, 0x%x' % (sA, GATE))
    A('buffer_load_dwordx2 %s, v%d, %s, s%d offen' % (v(vXv, 2), vXa, S4(SRD_B), sCc))
    A('buffer_load_dword v%d, v%d, %s, s%d offen sc1' % (vG, t0, S4(WS), sA))
    upd = ['v_mov_b32 v%d, 0' % vU, 'v_mov_b32 v%d, 0' % (vU + 1)]
    for j in range(8):
        upd += ['v_cmp_eq_u32 vcc, s%d, v%d' % (sIdx + j, t1), None, 'v_cndmask_b32 v%d, v%d, v%d, vcc' % (vU, vU, vY + 2 * j),
                'v_cndmask_b32 v%d, v%d, v%d, vcc' % (vU + 1, vU + 1, vY + 2 * j + 1)]
    for ks in range(32):
        A('s_waitcnt vmcnt(%d) lgkmcnt(1)' % (19 if ks < 16 else 15) if ks < 31 else 's_waitcnt vmcnt(15) lgkmcnt(0)')
        extra = []
        if ks == 16:
            A('v_max_i32 v%d, v%d, v%d' % (vFv, vFv, vFn))
            A('v_cmp_gt_i32 vcc, s%d, v%d' % (sD, vFv))
            extra = ubase(sNb, sUn) + ['s_cmp_eq_u64 vcc, 0', 's_cselect_b32 s%d, 1, 0' % sPre, 's_cselect_b32 s%d, s%d, 0x%x' % (sNb, sNb, OOB)]
        if ks & 3 == 0:
            extra += hbase(sBase if ks < 16 else sNb, ((ks + 16) >> 2) & 7)
        for ct in range(4):
            acc = v(vD + 4 * ct, 4)
            src = home(ks, ct) if ct < 3 else v(vZ + 4 * (ks % 3), 4)
            A('v_mfma_f32_16x16x32_bf16 %s, %s, %s, %s' % (acc, src, v(vO + 4 * (ks & 15), 4), acc if ks else '0'))
            if ct == 0 and ks + 2 < 32:
                A(zrd(ks + 2))
            n_ = (len(extra) + 2 - ct) // (3 - ct) if ct < 3 else 0
            for o in extra[:n_]:
                A(o)
            extra = extra[n_:]
            if 2 <= ks < 16 and ct in (1, 2):
                for o in upd[:2]:
                    if o:
                        A(o)
                upd = upd[2:]
        A(old_(ks + 16))
    assert not upd
    vB, vR = vZ, vD
    for h in range(2):
        A('v_lshlrev_b32 v%d, 16, v%d' % (vB + 2 * h, vXv + h))
        A('v_and_b32 v%d, s%d, v%d' % (vB + 2 * h + 1, sHi, vXv + h))
        A('v_lshlrev_b32 v%d, 16, v%d' % (vB + 8 + 2 * h, vU + h))
        A('v_and_b32 v%d, s%d, v%d' % (vB + 8 + 2 * h + 1, sHi, vU + h))
    for i in range(4):
        A('ds_write_b128 v%d, %s offset:%d' % (vWr, v(vD + 4 * i, 4), 1024 * i))
        A('v_xor_b32 v%d, 0x%x, v%d' % (vWr, (0x40, 0xc0, 0x40, 0x40c0)[i], vWr))
    for h in range(2):
        A('v_pk_add_f32 %s, %s, %s' % (v(vB + 2 * h, 2), v(vB + 2 * h, 2), v(vB + 8 + 2 * h, 2)))
        rnd2(vB + 2 * h, vB + 2 * h + 1, t0)
    A('v_sub_f32 v%d, 1.0, v%d' % (t1, vG))
    cvt(t1, t1, t1)
    A('v_and_b32 v%d, s%d, v%d' % (t1, sHi, t1))
    A('s_waitcnt lgkmcnt(0)')
    A('s_barrier')
    for wv in range(4):
        A('ds_read_b128 %s, v%d offset:%d' % (v(vR + 4 * wv, 4), vRr, wv * 4096))
    for i in range(4):
        A('v_mul_f32 v%d, v%d, v%d' % (vB + i, vB + i, t1))
    rnd2(vB, vB + 1, t0)
    rnd2(vB + 2, vB + 3, t0)
    A('v_xor_b32 v%d, 0x4000, v%d' % (vRr, vRr))
    for wv in range(1, 4):
        A('s_waitcnt lgkmcnt(%d)' % (3 - wv))
        for h in range(2):
            A('v_pk_add_f32 %s, %s, %s' % (v(vR + 2 * h, 2), v(vR + 2 * h, 2), v(vR + 4 * wv + 2 * h, 2)))
    rnd2(vR, vR + 1, t0)
    rnd2(vR + 2, vR + 3, t0)
    for i in range(4):
        A('v_mul_f32 v%d, v%d, v%d' % (vR + i, vR + i, vG))
    rnd2(vR, vR + 1, t0)
    rnd2(vR + 2, vR + 3, t0)
    for h in range(2):
        A('v_pk_add_f32 %s, %s, %s' % (v(vR + 2 * h, 2), v(vR + 2 * h, 2), v(vB + 2 * h, 2)))
        cvt(vU + h, vR + 2 * h, vR + 2 * h + 1)
    A('buffer_store_dwordx2 %s, v%d, %s, s%d offen' % (v(vU, 2), vXa, S4(SRD_C), sCc))
    if opt.get('prof'):
        A('s_add_u32 s%d, s%d, 1' % (sCnt, sCnt))
        A('s_cmp_lg_u32 s%d, 6' % sCnt)
        A('s_cbranch_scc1 L_o_loop')
        tstamp(A, opt, 9, t0, t1, sA)
        A('s_waitcnt vmcnt(0)')
    A('s_branch L_o_loop')
    A.label('L_o_end')
    tstamp(A, opt, 7, t0, t1, sA)
    if opt.get('prof'):
        A('s_mov_b32 s78, s%d' % sCnt)
        tstamp(A, opt, 10, t0, t1, sA, now=False)
    A('s_endpgm')
```

```python
from common import *

XROW = 2064
XBUF = 32 * XROW
LSCR = 2 * XBUF


def load_weights(A, srdw, sBase, row_bytes, rows_of, tr_lane_terms, tr_off, ngroups, vRaw, vWr, vTr, t0, sa, sb,
                 scr, after_first=None, pre_out=0):
    bits(A, vRaw, [(0, 2, 4)], t0)
    A('v_lshrrev_b32 v%d, 2, v0' % t0)
    A('s_mov_b32 s%d, %d' % (sa, row_bytes))
    A('v_mul_lo_u32 v%d, v%d, s%d' % (t0, t0, sa))
    A('v_add_u32 v%d, v%d, v%d' % (vRaw, vRaw, t0))
    A('s_lshl_b32 s%d, s%d, 12' % (sa, sW))
    A('s_add_u32 s%d, s%d, %d' % (sa, sa, scr))
    bits(A, vWr, [(0, 6, 4)], t0, 's%d' % sa)
    bits(A, vTr, tr_lane_terms, t0, 's%d' % sa)
    depth = min(ngroups, (60 - pre_out) // 4)

    def issue(gi):
        for i in range(4):
            A('s_add_u32 s%d, s%d, 0x%x' % (sb, sBase(gi) if callable(sBase) else sBase, rows_of(gi, i) * row_bytes))
            A('buffer_load_dwordx4 %s, v%d, %s, s%d offen' % (a(16 * gi + 4 * i, 4), vRaw, S4(srdw), sb))
    for gi in range(depth):
        issue(gi)
    issued = depth
    for gi in range(ngroups):
        A('s_waitcnt vmcnt(%d)' % ((issued - 1 - gi) * 4))
        if gi == 0 and after_first:
            after_first()
        while issued < ngroups and issued - (gi + 1) < 14:
            issue(issued)
            issued += 1
        for i in range(4):
            A('ds_write_b128 v%d, %s offset:%d' % (vWr, a(16 * gi + 4 * i, 4), i * 1024))
        for ksl in range(2):
            for tile in range(2):
                for pp in range(2):
                    A('ds_read_b64_tr_b16 %s, v%d offset:%d' % (a(16 * gi + (ksl * 2 + tile) * 4 + 2 * pp, 2), vTr, tr_off(ksl, pp, tile)))
        A('s_waitcnt lgkmcnt(0)')


def sel_frag(A, dst, et, t0, t1):
    A('v_bfe_u32 v%d, v0, 2, 2' % t0)
    A('v_lshrrev_b32 v%d, 4, v0' % t1)
    A('v_cmp_eq_u32 vcc, v%d, v%d' % (t0, t1))
    A('v_mov_b32 v%d, 0x%x' % (t1, 0x3f80 << (16 * et)))
    A('v_cndmask_b32 v%d, 0, v%d, vcc' % (t1, t1))
    A('v_and_b32 v%d, 3, v0' % t0)
    for i in range(4):
        A('v_cmp_eq_u32 vcc, %d, v%d' % (i, t0))
        A('v_cndmask_b32 v%d, 0, v%d, vcc' % (dst + i, t1))


def proj(A, opt, kind):
    P = 'L_' + kind
    V = Alloc(1, 252)
    vL16, vRd, vRdSum, vFl, vArm = [V(n) for n in 'l16 rd rdsum fl arm'.split()]
    t0, t1, t2, t3 = V('t0'), V('t1'), V('t2'), V('t3')
    vX = V('x', 32, 4)
    vD = V('d', 16, 4)
    vF = V('f', 8, 4)
    vJ = V('junk', 4, 4)
    S = Alloc(36, 63)
    sH, sSeg, sXo, sM, sMsum, sOut, sOut2, sArm, sPf, sA, sB, sCc = [S(n) for n in 'h seg xo m msum out out2 arm pf a b cc'.split()]
    base = {'k': 16, 'v': 20, 'q': 24}[kind]
    A.label(P)
    cap0 = len(A.lines)
    srd(A, SRD_A, {'k': P_WK, 'v': P_WV, 'q': P_WQ}[kind], 8 * MB)
    srd(A, SRD_B, P_X, 4 * MB)
    assert sH == 36
    A('v_lshlrev_b32 v%d, 4, v0' % vL16)
    A('s_lshl_b32 s%d, s%d, 7' % (sA, sH))
    if kind == 'q':
        A('s_add_u32 s%d, s%d, 0x%x' % (sA, sA, F_O))
        A('s_cmp_eq_u32 s%d, 0' % sW)
        A('s_cselect_b32 s%d, 8, 0' % sB)
        bits(A, vFl, [(0, 3, 12)], t0, 's%d' % sA)
        A('v_mov_b32 v%d, 0x%x' % (t0, OOB))
        A('v_cmp_gt_u32 vcc, s%d, v0' % sB)
        A('v_cndmask_b32 v%d, v%d, v%d, vcc' % (vFl, t0, vFl))
    else:
        A('s_lshl_b32 s%d, s%d, 1' % (sA, sA))
        A('s_add_u32 s%d, s%d, 0x%x' % (sA, sA, F_KV + (128 if kind == 'v' else 0)))
        A('s_cmp_eq_u32 s%d, 0' % sW)
        A('s_cselect_b32 s%d, s%d, 0x%x' % (sA, sA, OOB))
        lane0_addr(A, vFl, sA, t0)
    npre = 1
    A('v_and_b32 v%d, 15, v0' % t0)
    A('v_mul_u32_u24 v%d, %d, v%d' % (vRd, XROW, t0))
    A('v_lshrrev_b32 v%d, 4, v0' % t0)
    A('v_lshl_add_u32 v%d, v%d, 8, v%d' % (vRd, t0, vRd))
    A('v_lshlrev_b32 v%d, 1, v%d' % (vRdSum, vRd))
    A('v_add_u32 v%d, %d, v%d' % (vRdSum, XBUF, vRdSum))
    A('s_mul_i32 s%d, s%d, %d' % (sM, sW, 8 * XROW))
    A('s_lshl_b32 s%d, s%d, 1' % (sMsum, sM))
    A('s_add_u32 s%d, s%d, %d' % (sMsum, sMsum, XBUF))
    A('s_lshl_b32 s%d, s%d, 14' % (sXo, sW))

    def dma_row(i):
        return ['s_add_u32 m0, s%d, %d' % (sM, i * XROW), 's_add_u32 s%d, s%d, %d' % (sA, sXo, i * 2048),
                'buffer_load_dwordx4 v%d, %s, s%d offen lds' % (vL16, S4(SRD_B), sA),
                'buffer_load_dwordx4 v%d, %s, s%d offen offset:1024 lds' % (vL16, S4(SRD_B), sA)]
    for i in range(8):
        for o in dma_row(i):
            A(o)
    npre += 16
    A('s_sub_u32 s%d, s%d, s%d' % (sM, sMsum, sM))
    A('s_add_u32 s%d, s%d, 0x10000' % (sXo, sXo))
    A('s_lshl_b32 s%d, s%d, 8' % (sCc, sH))
    A('s_lshl_b32 s%d, s%d, 6' % (sA, sW))
    A('s_add_u32 s%d, s%d, s%d' % (sCc, sCc, sA))
    load_weights(A, SRD_A, sCc, 8192, lambda gi, i: 16 * (gi & 7) + 128 * i + 512 * (gi >> 3),
                 [(4, 2, 10), (2, 2, 6), (0, 2, 3)], lambda ksl, pp, tile: (8 * ksl + 4 * pp) * 64 + tile * 32,
                 16, vX, vX + 1, vX + 2, t0, sA, sB, LSCR, None, npre)
    cap_vm(A, cap0)
    tstamp(A, opt, 1, t0, t1, sA)
    wait_init(A, t0, t1, sA, sB)
    A('s_lshl_b32 s%d, s%d, 13' % (sOut, sH))
    if kind != 'q':
        A('s_lshl_b32 s%d, s%d, 11' % (sA, sW))
        A('s_add_u32 s%d, s%d, s%d' % (sOut2, sOut, sA))
        A('s_add_u32 s%d, s%d, 0x%x' % (sOut2, sOut2, VT))
        A('s_lshl_b32 s%d, s%d, 10' % (sA, sW))
        A('s_add_u32 s%d, s%d, s%d' % (sOut, sOut, sA))
        A('s_add_u32 s%d, s%d, 0x%x' % (sOut, sOut, KX if kind == 'k' else VX))
        bits(A, vArm, [(4, 2, 14), (0, 4, 4)], t0)
        A('s_lshl_b32 s%d, s%d, 16' % (sArm, sW))
        A('s_and_b32 s%d, s%d, 3' % (sA, sH))
        A('s_lshl_b32 s%d, s%d, 11' % (sA, sA))
        A('s_add_u32 s%d, s%d, s%d' % (sArm, sArm, sA))
        A('s_lshr_b32 s%d, s%d, 2' % (sA, sH))
        A('s_lshl_b32 s%d, s%d, 8' % (sA, sA))
        A('s_add_u32 s%d, s%d, s%d' % (sArm, sArm, sA))
        A('s_add_u32 s%d, s%d, %d' % (sArm, sArm, 0x2000 if kind == 'v' else 0))
        A('v_add_u32 v%d, s%d, v%d' % (vArm, sArm, vArm))
        A('s_mov_b32 s%d, 0x%x' % (sArm, PART))
        vL8 = V('l8')
        sKa = S('ka')
        A('v_lshlrev_b32 v%d, 3, v0' % vL8)
        A('s_lshl_b32 s%d, s%d, 12' % (sKa, sH))
        A('s_lshl_b32 s%d, s%d, 9' % (sA, sW))
        A('s_add_u32 s%d, s%d, s%d' % (sKa, sKa, sA))
        A('s_add_u32 s%d, s%d, 0x%x' % (sKa, sKa, KVM + (2048 if kind == 'v' else 0)))
        vSent = V('sent', 4, 4)
        for i in range(4):
            A('v_mov_b32 v%d, -1' % (vSent + i))
        A('s_and_b32 s%d, s%d, 15' % (sPf, sR))
        A('s_lshl_b32 s%d, s%d, 2' % (sPf, sPf))
        A('s_add_u32 s%d, s%d, s%d' % (sPf, sPf, sW))
        A('s_lshl_b32 s%d, s%d, 10' % (sPf, sPf))
        A('s_add_u32 s%d, s%d, 0x20000' % (sPf, sPf))
    if kind == 'v':
        vSel = V('sel', 8, 4)
        vD2 = V('d2', 16, 4)
        vG = V('g', 8, 4)
        sel_frag(A, vSel, 0, t0, t1)
        sel_frag(A, vSel + 4, 1, t0, t1)
    cvt = lambda d, x, y: A('v_cvt_pk_bf16_f32 v%d, v%d, v%d' % (d, x, y))
    ldx4 = lambda dst, so, off: 'buffer_load_dwordx4 %s, v%d, %s, s%d offen offset:%d sc1' % (v(dst, 4), vL16, S4(WS), so, off)
    stx4 = lambda src, so, off: 'buffer_store_dwordx4 %s, v%d, %s, s%d offen offset:%d sc1' % (v(src, 4), vL16, S4(WS), so, off)
    LQ, LKV = LSCR, LSCR + 8192
    if kind == 'q':
        vQw, vIdx, vFm, vFv, vKr = V('qw'), V('idx'), V('fm'), V('fv'), V('kr')
        vQr = vArm
        vKx = V('kx', 32, 4)
        vVT = V('vt', 16, 4)
        vKm, vVm = V('km', 8, 4), V('vm', 4, 4)
        vQ = V('q', 16, 4)
        vD3 = vKx
        vO = vKx + 16
        vG = vQ
        vVmT = vQ + 8
        vS = V('s', 8, 4)
        MM = V('mm', 4, 4)
        vBias = V('bias', 8, 4)
        vStrip = V('strip', 20, 4)
        vLs = V('ls', 4, 4)
        vP = V('p', 4, 4)
        vOne = V('one', 4, 4)
        vPm, vHalf = V('pm', 2), V('half', 2)
        sKs, sKm, sVm, sScale, sMk = [S(n) for n in 'ks km vm scale mk'.split()]
        A('s_cmp_lt_u32 s%d, 2' % sW)
        A('s_cselect_b32 s%d, 0, 0x%x' % (sKs, VT - KX - 8192))
        A('s_lshl_b32 s%d, s%d, 12' % (sB, sW))
        A('s_add_u32 s%d, s%d, %d' % (sMk, sB, LKV))
        A('s_add_u32 s%d, s%d, s%d' % (sKs, sKs, sB))
        A('s_add_u32 s%d, s%d, s%d' % (sKs, sKs, sOut))
        A('s_add_u32 s%d, s%d, 0x%x' % (sKs, sKs, KX))
        A('s_lshr_b32 s%d, s%d, 1' % (sA, sW))
        A('s_lshl_b32 s%d, s%d, 12' % (sB, sA))
        A('s_add_u32 s%d, s%d, %d' % (sB, sB, LKV + 8192))
        A('v_add_u32 v%d, s%d, v%d' % (t2, sB, vL16))
        vVr = V('vr')
        A('v_mov_b32 v%d, v%d' % (vVr, t2))
        A('v_add_u32 v%d, %d, v%d' % (vKr, LKV, vL16))
        A('s_lshl_b32 s%d, s%d, 12' % (sKm, sH))
        A('s_add_u32 s%d, s%d, 0x%x' % (sKm, sKm, KVM))
        A('s_lshl_b32 s%d, s%d, 10' % (sB, sA))
        A('s_add_u32 s%d, s%d, s%d' % (sVm, sKm, sB))
        A('s_lshl_b32 s%d, s%d, 11' % (sB, sA))
        A('s_add_u32 s%d, s%d, s%d' % (sOut, sOut, sB))
        A('s_and_b32 s%d, s%d, 1' % (sA, sW))
        A('s_lshl_b32 s%d, s%d, 12' % (sB, sA))
        A('s_add_u32 s%d, s%d, s%d' % (sOut, sOut, sB))
        A('s_add_u32 s%d, s%d, 0x%x' % (sOut, sOut, OO))
        A('s_add_u32 s%d, s%d, %d' % (sB, sB, LQ))
        A('v_add_u32 v%d, s%d, v%d' % (vQr, sB, vL16))
        A('s_lshl_b32 s%d, s%d, 10' % (sB, sW))
        A('s_add_u32 s%d, s%d, %d' % (sB, sB, LQ))
        A('v_add_u32 v%d, s%d, v%d' % (vQw, sB, vL16))
        A('s_mov_b32 s%d, %s' % (sScale, f32(128 ** -0.5 * LOG2E)))
        A('s_lshl_b32 s%d, s%d, 4' % (sA, sA))
        A('v_and_b32 v%d, 15, v0' % t0)
        A('v_add_u32 v%d, s%d, v%d' % (t0, sA, t0))
        A('v_lshrrev_b32 v%d, 4, v0' % t1)
        A('v_lshlrev_b32 v%d, 2, v%d' % (t1, t1))
        A('v_sub_u32 v%d, v%d, v%d' % (t0, t0, t1))
        A('v_mov_b32 v%d, %s' % (t1, f32(-1e30)))
        for i in range(8):
            A('v_cmp_gt_i32 vcc, %d, v%d' % (16 * (i >> 2) + (i & 3), t0))
            A('v_cndmask_b32 v%d, 0, v%d, vcc' % (vBias + i, t1))
        for i in range(20):
            A('v_mov_b32 v%d, 0' % (vStrip + i))
        sel_frag(A, vStrip + 4, 0, t0, t1)
        sel_frag(A, vStrip + 12, 1, t0, t1)
        for i in range(4):
            A('v_mov_b32 v%d, 0x3f803f80' % (vOne + i))
        for i in range(2):
            A('v_mov_b32 v%d, 0x3f003f00' % (vHalf + i))
        A('v_and_b32 v%d, 8, v0' % t0)
        A('v_cmp_eq_u32 vcc, 0, v%d' % t0)
        A('v_mov_b32 v%d, 0xeeee' % t1)
        A('v_mov_b32 v%d, 0x4444' % t2)
        A('v_cndmask_b32 v%d, v%d, v%d, vcc' % (vIdx, t1, t2))
        A('s_lshl_b32 s%d, s%d, 8' % (sA, sH))
        A('s_add_u32 s%d, s%d, 0x%x' % (sB, sA, F_KV))
        bits(A, t3, [(0, 1, 7)], t0, 's%d' % sB)
        bits(A, vFm, [(0, 5, 7), (5, 1, 30)], t0)
        if not opt.get('novote'):
            vote(A, sH, t0, t1, t2, sA, sB, sCc, sArm, sPf, sOut2)
        wait_flags(A, t0, t3, '1', 4)

    A('s_mov_b32 s%d, 0' % sSeg)
    A('s_waitcnt vmcnt(0)')
    A('s_barrier')
    flag_st = 'buffer_store_dword v%d, v%d, %s, 0 offen sc1' % (t3, vFl, S4(WS))
    mfma = lambda d, x, y, c_: 'v_mfma_f32_16x16x32_bf16 %s, %s, %s, %s' % (d, x, y, c_)
    cv = lambda d, x, y: 'v_cvt_pk_bf16_f32 v%d, v%d, v%d' % (d, x, y)

    class Order:
        def __init__(self, name, lim):
            self.name, self.lim, self.ops = name, lim, []

        def add(self, tag):
            self.ops.append(tag)

        def wait(self, tag):
            last = max(i for i, t in enumerate(self.ops) if t == tag)
            n = len(self.ops) - 1 - last
            assert n <= self.lim, (self.name, tag, n)
            return 's_waitcnt %s(%d)' % (self.name, n)

    def gemm(fill, stream=(), start=0):
        L, M = Order('lgkmcnt', 15), Order('vmcnt', 63)
        M.add('old')
        stream = list(stream)

        def emit(o):
            if isinstance(o, tuple):
                if o[0] in ('lds', 'vm'):
                    (L if o[0] == 'lds' else M).add(o[1])
                    A(o[2])
                else:
                    A((L if o[0] == 'wl' else M).wait(o[1]))
            else:
                assert not o.startswith('ds_') and not o.startswith('buffer_'), o
                A(o)

        def cost(o):
            if isinstance(o, tuple) or not o.startswith('v_'):
                return 1
            if 'mfma' in o:
                return 0
            return 4 if (o.startswith('v_exp') or o.startswith('v_rcp') or o.startswith('v_perml')) else 2

        def rd(ks):
            for tt2 in range(2):
                emit(('lds', 'x%d' % ks, 'ds_read_b128 %s, v%d offset:%d' % (v(vX + (ks & 3) * 8 + tt2 * 4, 4), vRd, tt2 * 16 * XROW + 16 * (ks & 15) + 1024 * (ks >> 4))))
        for o in fill.get('head', []):
            emit(o)
        for ks in range(3):
            rd(ks)
        for ks in range(32):
            emit(('wl', 'x%d' % ks))
            n = 0
            for tt2 in range(2):
                for tt in range(2):
                    acc = v(vD + (tt * 2 + tt2) * 4, 4)
                    A(mfma(acc, a((ks * 2 + tt) * 4, 4), v(vX + (ks & 3) * 8 + tt2 * 4, 4), acc if ks else '0'))
                    budget = 4
                    if n == 0 and ks + 3 < 32:
                        rd(ks + 3)
                        budget = 2
                    for o in fill.get((ks, n), []):
                        emit(o)
                        budget -= 2
                    while stream and ks >= start and (cost(stream[0]) <= budget):
                        o = stream.pop(0)
                        emit(o)
                        budget = (2 if 'smfmac' in o else 4) if cost(o) == 0 else budget - cost(o)
                    n += 1
        for o in stream:
            emit(o)
        A('v_sub_u32 v%d, v%d, v%d' % (vRd, vRdSum, vRd))
        for tt2 in range(2):
            for j in range(4):
                A(cv(vF + 4 * tt2 + j, vD + 4 * tt2 + j, vD + 8 + 4 * tt2 + j))
        return L, M, emit

    dsp = opt.get('dsp' + ('q' if kind == 'q' else ''), 5)
    dend = (16 * dsp + 3) // 4

    def base_fill():
        fill = {}
        put = lambda g_, os_: fill.setdefault((g_ >> 2, g_ & 3), []).extend(os_)
        for i in range(8):
            d = dma_row(i)
            put(2 * i * dsp, d[0:2])
            put(2 * i * dsp + 1, [('vm', 'dma', d[2])])
            put((2 * i + 1) * dsp + 1, [('vm', 'dma', d[3])])
        put(15 * dsp + 2, ['s_sub_u32 s%d, s%d, s%d' % (sM, sMsum, sM), 's_add_u32 s%d, s%d, 0x10000' % (sXo, sXo)])
        return fill

    if kind != 'q':
        outs = ['s_add_u32 s%d, s%d, 4096' % (sB, sOut), ('vm', 'st', stx4(vF, sOut, 0)), ('vm', 'st', stx4(vF + 4, sB, 0)),
                ('vm', 'st', 'buffer_store_dwordx4 %s, v%d, %s, s%d offen sc1' % (v(vSent, 4), vArm, S4(WS), sArm)),
                ('vm', 'st', 'buffer_store_dwordx2 %s, v%d, %s, s%d offen sc1' % (v(vSent, 2), vL8, S4(WS), sKa))]
        if kind == 'v':
            outs += [('vm', 'st', stx4(vG + 4 * et, sOut2, et * 1024)) for et in range(2)]
            outs += ['s_add_u32 s%d, s%d, 0x40000' % (sOut2, sOut2)]
        outs += ['s_add_u32 s%d, s%d, 0x20000' % (sKa, sKa), 's_add_u32 s%d, s%d, 0x40000' % (sOut, sOut),
                 's_add_u32 s%d, s%d, 0x40000' % (sArm, sArm), 's_and_b32 s%d, s%d, 0x1c0000' % (sB, sArm),
                 's_cmp_eq_u32 s%d, 0x1c0000' % sB, 's_cselect_b32 s%d, 0x40000, 0' % sB, 's_add_u32 s%d, s%d, s%d' % (sArm, sArm, sB)]
        pf = [('vm', 'pf', 'buffer_load_dwordx4 %s, v%d, %s, s%d offen' % (v(vJ, 4), vL16, S4(SRD_B), sPf)), 's_add_u32 s%d, s%d, 0x10000' % (sPf, sPf)]

        def transpose_v():
            if kind == 'v':
                for et in range(2):
                    for tt2 in range(2):
                        A(mfma(v(vD2 + (et * 2 + tt2) * 4, 4), v(vF + 4 * tt2, 4), v(vSel + 4 * et, 4), '0'))
                for i in range(8):
                    A(cv(vG + i, vD2 + 2 * i, vD2 + 2 * i + 1))
        NI = opt.get('ni', 4)
        A.label(P + '_loop0')
        L, M, emit = gemm(base_fill(), pf, dend)
        transpose_v()
        A('s_add_u32 s%d, s%d, 1' % (sSeg, sSeg))
        A('s_cmp_gt_u32 s%d, %d' % (sSeg, NI))
        A('s_cbranch_scc1 %s_ent0' % P)
        for o in outs:
            emit(o)
        A('v_mov_b32 v%d, s%d' % (t3, sSeg))
        A('s_waitcnt vmcnt(0)')
        A('s_barrier')
        A(flag_st)
        A('s_branch %s_loop0' % P)
        A.label(P + '_ent0')
        A('s_waitcnt vmcnt(0)')
        A('s_barrier')
        A('.p2align 6')
        A.label(P + '_loop')
        L, M, emit = gemm(base_fill(), ['s_sub_u32 s%d, s%d, 2' % (sB, sSeg), 's_max_u32 s%d, s%d, %d' % (sB, sB, NI), 'v_mov_b32 v%d, s%d' % (t3, sB), ('vm', 'fl', flag_st)] + outs + pf, dend)
        transpose_v()
        A('s_add_u32 s%d, s%d, 1' % (sSeg, sSeg))
        A('s_cmp_lt_u32 s%d, 64' % sSeg)
        A(M.wait('dma'))
        A('s_barrier')
        A('s_cbranch_scc1 %s_loop' % P)
        for o in outs:
            emit(o)
    else:
        ld_m = [ldx4(vKm, sKm, 0), ldx4(vKm + 4, sKm, 1024), ldx4(vVm, sVm, 2048)]
        mregs = list(range(vKm, vKm + 8)) + list(range(vVm, vVm + 4))
        probe = ['v_mov_b32 v%d, 0' % vFv, 'buffer_atomic_add v%d, v%d, %s, s%d offen sc0 sc1' % (vFv, vFm, S4(WS), sKm)]
        stage = ['s_mov_b32 m0, s%d' % sMk, 's_nop 0'] + [('vm', 'kv', 'buffer_load_dwordx4 v%d, %s, s%d offen offset:%d sc1 lds' % (vL16, S4(WS), sKs, 1024 * f)) for f in range(4)] \
            + ['s_add_u32 s%d, s%d, 0x40000' % (sKs, sKs)]
        reads = [('lds', 'q', 'ds_read_b128 %s, v%d offset:%d' % (v(vQ + 4 * j, 4), vQr, j * 1024)) for j in range(4)] \
            + [('lds', 'k', 'ds_read_b128 %s, v%d offset:%d' % (v(vKx + 4 * f, 4), vKr, f * 1024)) for f in range(8)] \
            + [('lds', 'vt', 'ds_read_b128 %s, v%d offset:%d' % (v(vVT + 4 * f, 4), vVr, f * 1024)) for f in range(4)]

        def attention(tag):
            p1 = ['v_mov_b32 v%d, 0' % (MM + i) for i in range(4)]
            for j in range(4):
                for tt in range(2):
                    acc = v(vS + 4 * tt, 4)
                    p1.append(mfma(acc, v(vKx + (tt * 4 + j) * 4, 4), v(vQ + 4 * j, 4), acc if j else v(vBias + 4 * tt, 4)))
            T = Asm()
            maxall(T, mregs, t0)
            p2 = [('wv', 'm')] + [l.strip() for l in T.lines] + ['v_cmp_eq_u32 vcc, -1, v%d' % t0]
            p2 += ['v_mov_b32 v%d, 0' % (vD3 + i) for i in range(16)]
            p2 += ['s_cbranch_vccnz L_q_bad%s' % tag, 'L_q_ok%s:' % tag]
            T = Asm()
            for u in range(2):
                T('v_smfmac_f32_16x16x64_bf16 %s, %s, %s, v%d' % (v(MM, 4), v(vKm + 4 * u, 4), v(vQ + 8 * u, 8), vIdx))
            win = {(0, 0): 4, (1, 0): 0, (0, 1): 12, (1, 1): 8}
            mx = ['v_max3_f32 v%d, v%d, v%d, v%d' % (t0, vS, vS + 1, vS + 2), 'v_max3_f32 v%d, v%d, v%d, v%d' % (t0, t0, vS + 3, vS + 4),
                  'v_max3_f32 v%d, v%d, v%d, v%d' % (t0, t0, vS + 5, vS + 6), 'v_max_f32 v%d, v%d, v%d' % (t0, t0, vS + 7)]
            for qp in range(2):
                for et in range(2):
                    T('v_smfmac_f32_16x16x64_bf16 %s, %s, %s, v%d' % (v(vD3 + (qp * 2 + et) * 4, 4), v(vVm, 4), v(vStrip + win[(qp, et)], 8), vIdx))
                    T(mx.pop(0))
            T('v_permlane32_swap_b32 v%d, v%d' % (MM, MM + 2))
            T('v_permlane32_swap_b32 v%d, v%d' % (MM + 1, MM + 3))
            T('v_add_f32 v%d, v%d, v%d' % (MM, MM, MM + 2))
            T('v_add_f32 v%d, v%d, v%d' % (MM + 1, MM + 1, MM + 3))
            T('v_max3_f32 v%d, v%d, v%d, v%d' % (t0, t0, MM, MM + 1))
            cm = [cv(vVmT + i, vD3 + 2 * i, vD3 + 2 * i + 1) for i in range(8)]
            for sw in ('v_permlane32_swap_b32', 'v_permlane16_swap_b32'):
                T('v_mov_b32 v%d, v%d' % (t1, t0))
                T(cm.pop(0)); T(cm.pop(0))
                T('%s v%d, v%d' % (sw, t0, t1))
                T('v_max_f32 v%d, v%d, v%d' % (t0, t0, t1))
            T('v_mul_f32 v%d, s%d, v%d' % (t0, sScale, t0))
            regs = [vS + i for i in range(8)] + [MM, MM + 1]
            for r_ in regs:
                T('v_fma_f32 v%d, v%d, s%d, -v%d' % (r_, r_, sScale, t0))
            for r_ in regs:
                T('v_exp_f32 v%d, v%d' % (r_, r_))
            for i in range(4):
                T(cv(vP + i, vS + 2 * i, vS + 2 * i + 1))
            T(cv(vPm, MM, MM + 1))
            T(cv(vPm + 1, MM, MM + 1))
            T(mfma(v(vLs, 4), v(vOne, 4), v(vP, 4), '0'))
            T(cm.pop(0))
            T('v_permlane32_swap_b32 v%d, v%d' % (vPm, vPm + 1))
            for e in range(4):
                T(mfma(v(vO + 4 * e, 4), v(vVT + 4 * e, 4), v(vP, 4), '0'))
                if cm:
                    T(cm.pop(0))
            m16 = lambda d, x: 'v_mfma_f32_16x16x16_bf16 %s, %s, %s, %s' % (v(d, 4), v(x, 2), v(vPm, 2), v(d, 4))
            T(m16(vLs, vHalf))
            for e in range(4):
                T(m16(vO + 4 * e, vVmT + 2 * e))
            T('v_rcp_f32 v%d, v%d' % (t0, vLs))
            p2 += [l.strip() for l in T.lines]
            p3 = []
            for qp in range(2):
                p3 += ['v_mul_f32 v%d, v%d, v%d' % (vO + 8 * qp + i, vO + 8 * qp + i, t0) for i in range(8)]
                p3 += [cv(vG + 4 * qp + j, vO + 8 * qp + j, vO + 8 * qp + 4 + j) for j in range(4)]
                p3 += [('vm', 'o', stx4(vG + 4 * qp, sOut, qp * 1024))]
            p3 += ['s_add_u32 s%d, s%d, 0x40000' % (sOut, sOut)]
            return p1, p2, p3

        def q_out(M, tags):
            A('ds_write_b128 v%d, %s' % (vQw, v(vF, 4)))
            A('ds_write_b128 v%d, %s offset:4096' % (vQw, v(vF + 4, 4)))
            A('s_add_u32 s%d, s%d, 1' % (sSeg, sSeg))
            A(min((M.wait(t) for t in tags), key=lambda x: int(x[x.index('(') + 1:-1])))
            A('v_cmp_eq_u32 vcc, -1, v%d' % vFv)
            A('s_waitcnt lgkmcnt(0)')
            A('s_barrier')
        L, M, emit = gemm(base_fill(), stage + [probe[0], ('vm', 'pr', probe[1])], dend)
        q_out(M, ['pr'])
        A('.p2align 6')
        A.label('L_q_loop')
        A('s_cbranch_vccz L_q_go')
        poll_data(A, probe, [vFv, vFv], t0, opt.get('qsl', 2))
        A.label('L_q_go')
        A('s_cmp_eq_u32 s%d, 64' % sSeg)
        A('s_cbranch_scc1 L_q_last')
        fill = base_fill()
        fill['head'] = [('vm', 'm', o) for o in ld_m]
        for i in range(8):
            fill.setdefault((i, 2), []).append(reads[2 * i])
            fill.setdefault((i, 3), []).append(reads[2 * i + 1])
        fill.setdefault((dend, 0), []).extend(['; stage', stage[0]])
        for i in range(4):
            fill.setdefault((dend + i, 1), []).append(stage[2 + i])
        fill.setdefault((dend + 4, 1), []).extend([stage[6], ('vm', 'fl', flag_st)])
        p1, p2, p3 = attention('')
        adv = ['s_add_u32 s%d, s%d, 0x20000' % (n_, n_) for n_ in (sKm, sVm)]
        mid = [('wl', 'vt'), ('wv', 'old'), 's_sub_u32 s%d, s%d, 1' % (sB, sSeg), 'v_mov_b32 v%d, s%d' % (t3, sB), 's_barrier']
        k1 = p2.index('L_q_ok:') + 1
        L, M, emit = gemm(fill, [('wl', 'k')] + p1 + p2[:k1] + mid + p2[k1:] + adv + [probe[0], ('vm', 'pr', probe[1])] + p3, opt.get('qst', 9))
        q_out(M, ['pr', 'kv'])
        body = A.lines[A.lines.index('L_q_go:'):]
        assert body.index('    s_barrier') < body.index('    ; stage')
        A('s_branch L_q_loop')
        for tag in ('', 'z'):
            A.label('L_q_bad' + tag)
            poll_data(A, ld_m, mregs, t0, 1)
            A('s_branch L_q_ok' + tag)
        A.label('L_q_last')
        for o in ld_m:
            A(o)
        for i, o in enumerate(reads):
            A(o[2])
            if i == 11:
                A('s_waitcnt lgkmcnt(0)')
        A('v_mov_b32 v%d, 63' % t3)
        A('s_waitcnt vmcnt(3)')
        A('s_barrier')
        A(flag_st)
        p1, p2, p3 = attention('z')
        for o in p1 + p2 + p3:
            if isinstance(o, tuple):
                A(o[2] if o[0] == 'vm' else 's_waitcnt vmcnt(1) lgkmcnt(0)')
            else:
                A(o)
    A('s_waitcnt vmcnt(0)')
    A('v_mov_b32 v%d, 64' % t3)
    A('s_barrier')
    A(flag_st)
    tstamp(A, opt, 2, t0, t1, sA)
    if kind == 'q' or opt.get('nojoin'):
        A('s_endpgm')
    else:
        A('s_branch L_o_join')


def vote(A, sH, t0, t1, t2, sA, sB, sP, sBase, sL0, sL1):
    A('s_cmp_lg_u32 s%d, 0' % sW)
    A('s_cbranch_scc1 L_vote_done')
    A('s_mul_i32 s%d, s%d, 43' % (sA, sH))
    A('s_lshr_b32 s%d, s%d, 7' % (sA, sA))
    A('s_mul_i32 s%d, s%d, 3' % (sA, sA))
    A('s_sub_u32 s%d, s%d, s%d' % (sP, sH, sA))
    A('v_lshlrev_b32 v%d, 2, v0' % t1)
    A('v_mov_b32 v%d, 0' % t2)
    A.label('L_vote_page')
    A('s_lshl_b32 s%d, s%d, 21' % (sBase, sP))
    A('s_lshr_b32 s%d, s%d, 1' % (sA, sH))
    A('s_lshl_b32 s%d, s%d, 14' % (sA, sA))
    A('s_add_u32 s%d, s%d, s%d' % (sBase, sBase, sA))
    A('s_and_b32 s%d, s%d, 1' % (sA, sH))
    A('s_lshl_b32 s%d, s%d, 12' % (sA, sA))
    A('s_add_u32 s%d, s%d, s%d' % (sBase, sBase, sA))
    A('s_add_u32 s%d, s%d, 0x%x' % (sBase, sBase, PART + 0x1c0000))
    A('s_mov_b32 s%d, -1' % sL0)
    A('s_mov_b32 s%d, -1' % sL1)
    for smp in range(3):
        for par in range(2):
            A('s_memtime s[96:97]')
            A('s_waitcnt lgkmcnt(0)')
            A('buffer_store_dword v%d, v%d, %s, s%d offen offset:%d sc1' % (t2, t1, S4(WS), sBase, smp * 256))
            A('s_waitcnt vmcnt(0)')
            A('s_memtime s[98:99]')
            A('s_xor_b32 s%d, s%d, 0x2000' % (sBase, sBase))
            A('s_waitcnt lgkmcnt(0)')
            A('s_sub_u32 s98, s98, s96')
            A('s_min_u32 s%d, s%d, s98' % ((sL0, sL1)[par], (sL0, sL1)[par]))
    A('s_cmp_lt_u32 s%d, s%d' % (sL1, sL0))
    A('s_cselect_b32 s%d, 1, 0' % sA)
    A('s_lshr_b32 s%d, s%d, 2' % (sB, sX))
    A('s_xor_b32 s%d, s%d, s%d' % (sA, sA, sB))
    A('s_lshl_b32 s%d, s%d, 1' % (sA, sA))
    A('s_sub_u32 s%d, s%d, 1' % (sA, sA))
    A('v_mov_b32 v%d, s%d' % (t0, sA))
    A('s_lshl_b32 s%d, s%d, 6' % (sA, sP))
    A('s_add_u32 s%d, s%d, 0x%x' % (sA, sA, F_VOTE))
    A('s_mov_b64 exec, 1')
    A('buffer_atomic_add v%d, v%d, %s, s%d offen sc1' % (t0, t2, S4(WS), sA))
    A('s_mov_b64 exec, -1')
    A('s_waitcnt vmcnt(0)')
    A('s_add_u32 s%d, s%d, 3' % (sP, sP))
    A('s_cmp_lt_u32 s%d, 9' % sP)
    A('s_cbranch_scc1 L_vote_page')
    A.label('L_vote_done')
    A('s_barrier')
```

```python
import sys, re
from common import *
from workers import proj
from orole import orole


def prologue(A, opt):
    A('s_cmp_ge_u32 s2, 256')
    A('s_cbranch_scc1 L_end0')
    A('s_load_dwordx16 s[64:79], s[0:1], 0')
    A('s_load_dwordx16 s[80:95], s[0:1], 64')
    A('s_getreg_b32 s%d, hwreg(HW_REG_XCC_ID)' % sX)
    A('s_and_b32 s%d, s%d, 7' % (sX, sX))
    A('v_lshrrev_b32 v1, 6, v0')
    A('v_and_b32 v0, 63, v0')
    A('v_readfirstlane_b32 s%d, v1' % sW)
    A('s_mov_b32 s%d, %d' % (sTO, TIMEOUT))
    A('s_waitcnt lgkmcnt(0)')
    srd(A, WS, P_WS, WS_BYTES)
    srd(A, DBG, P_DBG, 256)
    if opt.get('prof'):
        A('s_memrealtime s[76:77]')
    for i in range(4):
        A('v_mov_b32 v%d, -1' % (4 + i))
    A('s_lshl_b32 s36, s2, 2')
    A('s_add_u32 s36, s36, s%d' % sW)
    A('s_lshl_b32 s37, s36, 10')
    A('s_add_u32 s37, s37, 0x%x' % INIT1)
    A('s_lshl_b32 s36, s36, 8')
    A('s_add_u32 s36, s36, 0x%x' % INIT2)
    A('v_lshlrev_b32 v2, 4, v0')
    A('v_lshlrev_b32 v3, 2, v0')
    A('buffer_store_dwordx4 v[4:7], v2, %s, s37 offen sc1' % S4(WS))
    A('buffer_store_dword v4, v3, %s, s36 offen sc1' % S4(WS))
    wu = opt.get('wu', 0)

    def warm(lo, hi):
        for n in range(lo, hi):
            m, i = (1, 2, 0)[n % 3], n // 3
            if n % 3 == 0:
                A('s_add_u32 s39, s38, 0x%x' % (i * 128 * 8192))
            A('buffer_load_dwordx4 v[252:255], v2, %s, s39 offen' % S4((SRD_A, SRD_B, SRD_C)[m]))
    if wu:
        srd(A, SRD_A, P_WQ, 8 * MB)
        srd(A, SRD_B, P_WK, 8 * MB)
        srd(A, SRD_C, P_WV, 8 * MB)
        A('s_lshr_b32 s38, s2, 3')
        A('s_lshl_b32 s38, s38, 2')
        A('s_add_u32 s38, s38, s%d' % sW)
        A('s_lshl_b32 s38, s38, 13')
        A('s_lshl_b32 s39, s%d, 10' % sX)
        A('s_add_u32 s38, s38, s39')
        npre = opt.get('wupre', 0)
        warm(0, npre)
        A('s_waitcnt vmcnt(%d)' % npre)
    else:
        A('s_waitcnt vmcnt(0)')
    A('s_barrier')
    A('v_mov_b32 v12, 0')
    A('s_cmp_eq_u32 s%d, 0' % sW)
    A('s_cbranch_scc1 L_tk0')
    if wu:
        A('s_nop 7')
        warm(npre, 24)
    A('s_branch L_tk')
    A.label('L_tk0')
    A('s_lshl_b32 s36, s%d, 5' % sX)
    if opt.get('fakex'):
        A('s_cmp_eq_u32 s%d, 3' % sX)
        A('s_cbranch_scc0 L_fk')
        A('v_lshlrev_b32 v3, 5, v0')
        A.label('L_fk1')
        A('buffer_load_dword v1, v3, %s, 0 offen sc1' % S4(DBG))
        A('s_waitcnt vmcnt(0)')
        A('v_readlane_b32 s37, v1, 2')
        A('s_cmp_lt_u32 s37, 32')
        A('s_cbranch_scc1 L_fk1')
        A('s_bitcmp1_b32 s2, 3')
        A('s_cbranch_scc1 L_fk2')
        A('s_bitcmp1_b32 s2, 4')
        A('s_cbranch_scc0 L_fk')
        A.label('L_fk2')
        A('s_mov_b32 s36, 0x40')
        A.label('L_fk')
    A('v_mov_b32 v1, 1')
    A('s_mov_b64 exec, 1')
    A('buffer_atomic_add v1, v12, %s, s36 offen sc0 sc1' % S4(DBG))
    A('s_mov_b64 exec, -1')
    if wu:
        warm(npre, 24)
    A('s_waitcnt vmcnt(%d)' % (24 - npre if wu else 0))
    A('v_readfirstlane_b32 s37, v1')
    A('s_add_u32 s36, s36, s37')
    A('s_cmp_lt_u32 s37, 32')
    A('s_cbranch_scc1 L_tk_w')
    A('v_mov_b32 v1, 1')
    A('s_mov_b64 exec, 1')
    A('buffer_atomic_add v1, v12, %s, 0 offen offset:8 sc0 sc1' % S4(DBG))
    A('s_mov_b64 exec, -1')
    A('s_waitcnt vmcnt(0)')
    A('v_readfirstlane_b32 s37, v1')
    A('v_lshlrev_b32 v3, 5, v0')
    A.label('L_ov')
    A('buffer_load_dword v1, v3, %s, 0 offen sc1' % S4(DBG))
    A('s_waitcnt vmcnt(0)')
    sum8(A, 1, 38, 39)
    A('s_cmp_ge_u32 s38, 256')
    A('s_cbranch_scc1 L_ov1')
    A('s_sleep 4')
    timeout_stub(A, 'L_ov')
    A.label('L_ov1')
    for x in range(8):
        A('v_readlane_b32 s38, v1, %d' % x)
        A('s_min_u32 s38, s38, 32')
        A('s_add_u32 s36, s38, s37')
        A('s_cmp_lt_u32 s36, 32')
        A('s_cselect_b32 s39, 1, 0')
        A('s_sub_u32 s37, s36, 32')
        A('s_add_u32 s36, s36, %d' % (32 * x))
        A('s_cmp_eq_u32 s39, 1')
        A('s_cbranch_scc1 L_tk_w')
    A('s_endpgm')
    A.label('L_tk_w')
    A('v_mov_b32 v1, s36')
    A('ds_write_b32 v12, v1')
    A('s_waitcnt lgkmcnt(0)')
    A.label('L_tk')
    A('s_barrier')
    A('ds_read_b32 v1, v12')
    A('s_waitcnt lgkmcnt(0)')
    A('v_readfirstlane_b32 s%d, v1' % sR)
    A('s_barrier')
    A('s_and_b32 s%d, s%d, 255' % (sR, sR))
    if opt.get('prof'):
        A('s_mov_b32 s78, s76')
        tstamp(A, opt, 8, 1, 2, 36, now=False)
        tstamp(A, opt, 0, 1, 2, 36)
    A('s_lshr_b32 s%d, s%d, 4' % (sG, sR))
    A('s_and_b32 s%d, s%d, 15' % (sC, sR))
    A('s_cmp_lt_u32 s%d, 128' % sR)
    A('s_cbranch_scc1 L_chain')
    A('s_bfe_u32 s%d, s%d, 0x20005' % (sG, sR))
    A('s_lshl_b32 s%d, s%d, 3' % (sG, sG))
    A('s_and_b32 s36, s%d, 7' % sR)
    A('s_add_u32 s36, s36, s%d' % sG)
    A('s_bfe_u32 s%d, s%d, 0x20003' % (sC, sR))
    A('s_cmp_eq_u32 s%d, 0' % sC)
    A('s_cbranch_scc1 L_k')
    A('s_cmp_eq_u32 s%d, 1' % sC)
    A('s_cbranch_scc1 L_v')
    A('s_cmp_eq_u32 s%d, 2' % sC)
    A('s_cbranch_scc1 L_q')
    A('s_branch L_o')
    A.label('L_end0')
    A('s_endpgm')


def chain(A, opt):
    prof = opt.get('prof', 0) == 1
    lite = opt.get('prof', 0) >= 1
    V = Alloc(1, 252)
    vL16, vL4, vQst, vVst, vKst, vIdx, vSent = [V(n) for n in 'l16 l4 qst vst kst idx sent'.split()]
    vW1q, vW1k, vR1, vR1v = V('w1q'), V('w1k'), V('r1'), V('r1v')
    vW2, vR2, vW2l, vR2l = V('w2'), V('r2'), V('w2l'), V('r2l')
    vT0, vT1, vT2, vT3 = V('t0'), V('t1'), V('t2'), V('t3')
    vQK, vVv, vBias = V('qk'), V('vv'), V('bias')
    vFa, vFv = V('fa'), V('fv')
    vM = V('m', 16, 4)
    vA = V('acc', 24, 4)
    vQ = V('q', 16, 4)
    vKm, vVm = V('km', 8, 4), V('vm', 8, 4)
    vKx, vVx = V('kx', 32, 4), V('vx', 32, 4)
    vS = V('s', 8, 4)
    MM = V('mm', 4, 4)
    vP, vPs = V('p', 4, 4), V('ps', 4, 4)
    vPm, vPms = V('pm', 2), V('pms', 2)
    vOne, vSel, vHalf = V('one', 4, 4), V('sel', 4, 4), V('half', 2)
    vVOx = V('vox', 16, 4)
    vT = V('tacc', 32, 4)
    vVOm = vT + 16
    vF = vT + 16
    vR = vVm
    vO = vA
    vLs = vA + 8
    vR2d = vA + 12
    vPt = vQ
    S = Alloc(36, 63)
    sStep, sMemR, sMemW, sQkvW, sQkvR, sQkvR2 = S('step'), S('memr'), S('memw'), S('qkvw'), S('qkvr'), S('qkvr2')
    sKx, sKx2, sVx, sVx2, sPartW, sPartR, sPartA, sPartB, sKvm = [S(n) for n in 'kx kx2 vx vx2 pw pr pa pb kvm'.split()]
    sA, sB, sCc, sD = S('a'), S('b'), S('cc'), S('d')
    sScale, sHi, sPf = S('scale'), S('hi'), S('pf')
    sN1, sN2, sN3 = 64, 65, 78
    sLo = 0
    sHome, sPo, sKn = S('home'), S('po'), S('kn')
    sSide = 3
    LDSL = 20480
    LDS1, LDS2, LDSW = 0, 12288, 32768
    W1 = lambda t, m, tt: (t * 3 + m) * 16 + tt * 8
    WO = lambda n, j: 192 + n * 16 + j * 4

    A.label('L_chain')
    cap0 = len(A.lines)
    srd(A, SRD_A, P_WQ, 8 * MB)
    srd(A, SRD_B, P_WK, 8 * MB)
    srd(A, SRD_C, P_WV, 8 * MB)
    srd(A, SRD_D, P_WO, 8 * MB)
    srd(A, SRD_E, P_MEM0, 16384)
    A('v_lshlrev_b32 v%d, 4, v0' % vL16)
    A('v_lshlrev_b32 v%d, 2, v0' % vL4)
    A('v_mov_b32 v%d, -1' % vSent)
    A('v_and_b32 v%d, 8, v0' % vT0)
    A('v_cmp_eq_u32 vcc, 0, v%d' % vT0)
    A('v_mov_b32 v%d, 0xeeee' % vT1)
    A('v_mov_b32 v%d, 0x4444' % vT2)
    A('v_cndmask_b32 v%d, v%d, v%d, vcc' % (vIdx, vT1, vT2))
    A('s_mov_b32 s%d, 0' % sStep)
    A('s_lshl_b32 s%d, s%d, 15' % (sA, sG))
    A('s_add_u32 s%d, s%d, 0x%x' % (sA, sA, MEMR))
    A('s_lshl_b32 s%d, s%d, 12' % (sB, sW))
    A('s_add_u32 s%d, s%d, s%d' % (sMemR, sA, sB))
    A('s_lshl_b32 s%d, s%d, 10' % (sB, sC))
    A('s_add_u32 s%d, s%d, s%d' % (sA, sA, sB))
    A('s_lshl_b32 s%d, s%d, 8' % (sB, sW))
    A('s_add_u32 s%d, s%d, s%d' % (sMemW, sA, sB))
    A('s_lshl_b32 s%d, s%d, 16' % (sA, sG))
    A('s_add_u32 s%d, s%d, 0x%x' % (sQkvW, sA, QKVR))
    A('s_mul_i32 s%d, s%d, 6144' % (sB, sW))
    A('s_add_u32 s%d, s%d, s%d' % (sQkvR, sQkvW, sB))
    A('s_add_u32 s%d, s%d, 4096' % (sQkvR2, sQkvR))
    A('s_lshr_b32 s%d, s%d, 2' % (sB, sC))
    A('s_mul_i32 s%d, s%d, 6144' % (sB, sB))
    A('s_add_u32 s%d, s%d, s%d' % (sQkvW, sQkvW, sB))
    A('s_lshl_b32 s%d, s%d, 2' % (sA, sG))
    A('s_add_u32 s%d, s%d, s%d' % (sA, sA, sW))
    A('s_lshl_b32 s%d, s%d, 13' % (sA, sA))
    A('s_add_u32 s%d, s%d, 0x%x' % (sKx, sA, KX))
    A('s_add_u32 s%d, s%d, 4096' % (sKx2, sKx))
    A('s_add_u32 s%d, s%d, 0x%x' % (sVx, sA, VX))
    A('s_add_u32 s%d, s%d, 4096' % (sVx2, sVx))
    A('s_and_b32 s%d, s%d, 7' % (sB, sC))
    A('s_lshl_b32 s%d, s%d, 10' % (sB, sB))
    A('s_cmp_lt_u32 s%d, 8' % sC)
    A('s_cselect_b32 s%d, s%d, s%d' % (sPf, sKx, sVx))
    A('s_add_u32 s%d, s%d, s%d' % (sPf, sPf, sB))
    A('s_add_u32 s%d, s%d, 0x40000' % (sPf, sPf))
    A('s_lshl_b32 s%d, s%d, 3' % (sA, sC))
    A('s_add_u32 s%d, s%d, s%d' % (sA, sA, sW))
    A('s_lshl_b32 s%d, s%d, 11' % (sA, sA))
    A('s_add_u32 s%d, s%d, 0x%x' % (sPartB, sA, PART))
    A('s_lshl_b32 s%d, s%d, 2' % (sA, sG))
    A('s_lshr_b32 s%d, s%d, 2' % (sB, sC))
    A('s_add_u32 s%d, s%d, s%d' % (sA, sA, sB))
    A('s_lshl_b32 s%d, s%d, 12' % (sKvm, sA))
    A('s_add_u32 s%d, s%d, 0x%x' % (sKvm, sKvm, KVM - 2048))
    A('s_mov_b32 s%d, %s' % (sScale, f32(128 ** -0.5 * LOG2E)))
    A('s_mov_b32 s%d, 0xffff0000' % sHi)
    A('s_and_b32 s%d, s%d, 1' % (sA, sW))
    A('s_lshl_b32 s%d, s%d, 1' % (sA, sA))
    A('v_lshrrev_b32 v%d, 5, v0' % vT0)
    A('v_add_u32 v%d, s%d, v%d' % (vT0, sA, vT0))
    A('v_and_b32 v%d, 31, v0' % vT1)
    A('v_lshlrev_b32 v%d, 2, v%d' % (vT1, vT1))
    A('s_bfe_u32 s%d, s%d, 0x10001' % (sB, sC))
    A('s_lshl_b32 s%d, s%d, 10' % (sB, sB))
    A('s_and_b32 s%d, s%d, 1' % (sA, sC))
    A('s_lshl_b32 s%d, s%d, 7' % (sCc, sA))
    A('s_add_u32 s%d, s%d, s%d' % (sCc, sCc, sB))
    A('s_lshl_b32 s%d, s%d, 9' % (sA, sA))
    A('s_add_u32 s%d, s%d, s%d' % (sA, sA, sB))
    A('s_add_u32 s%d, s%d, 2048' % (sA, sA))
    A('v_lshl_add_u32 v%d, v%d, 8, v%d' % (vT2, vT0, vT1))
    A('v_add_u32 v%d, s%d, v%d' % (vT2, sCc, vT2))
    A('v_lshl_add_u32 v%d, v%d, 7, v%d' % (vT3, vT0, vT1))
    A('v_add_u32 v%d, s%d, v%d' % (vT3, sA, vT3))
    A('s_cmp_lt_u32 s%d, 2' % sW)
    A('s_cselect_b64 %s, -1, 0' % s(sLo, 2))
    A('v_cndmask_b32 v%d, v%d, v%d, %s' % (vQst, vT3, vT2, s(sLo, 2)))
    A('v_add_u32 v%d, 2048, v%d' % (vT2, vT3))
    A('v_cndmask_b32 v%d, v%d, v%d, %s' % (vKst, vT3, vT2, s(sLo, 2)))
    A('v_mov_b32 v%d, 0x40000000' % vT3)
    A('v_cndmask_b32 v%d, v%d, v%d, %s' % (vVst, vT3, vT2, s(sLo, 2)))
    A('v_bfe_u32 v%d, v0, 3, 2' % vT1)
    A('v_xor_b32 v%d, v%d, v%d' % (vT1, vT1, vT0))
    A('v_lshlrev_b32 v%d, 5, v%d' % (vT1, vT1))
    A('v_lshl_add_u32 v%d, v%d, 7, v%d' % (vT1, vT0, vT1))
    A('v_and_b32 v%d, 3, v0' % vT2)
    A('v_lshl_add_u32 v%d, v%d, 3, v%d' % (vT1, vT2, vT1))
    A('v_bfe_u32 v%d, v0, 2, 1' % vT2)
    A('v_lshl_add_u32 v%d, v%d, 2, v%d' % (vT1, vT2, vT1))
    A('v_add_u32 v%d, 2048, v%d' % (vR1v, vT1))
    A('s_lshr_b32 s%d, s%d, 1' % (sA, sW))
    A('s_lshl_b32 s%d, s%d, 10' % (sA, sA))
    A('v_add_u32 v%d, s%d, v%d' % (vR1, sA, vT1))
    A('v_bfe_u32 v%d, v0, 4, 1' % vT0)
    A('v_lshrrev_b32 v%d, 5, v0' % vT1)
    A('v_lshl_add_u32 v%d, v%d, 1, v%d' % (vT0, vT0, vT1))
    A('s_mul_i32 s%d, s%d, 3072' % (sA, sW))
    for (dst, kind) in ((vW1q, 0), (vW1k, 1)):
        if kind == 0:
            A('v_bfe_u32 v%d, v0, 2, 2' % vT1)
            A('v_and_b32 v%d, 3, v0' % vT3)
        else:
            A('v_bfe_u32 v%d, v0, 3, 1' % vT1)
            A('v_and_b32 v%d, 1, v0' % vT2)
            A('v_lshl_add_u32 v%d, v%d, 1, v%d' % (vT1, vT1, vT2))
            A('v_bfe_u32 v%d, v0, 1, 2' % vT3)
        A('v_xor_b32 v%d, v%d, v%d' % (vT2, vT1, vT0))
        A('v_lshlrev_b32 v%d, 5, v%d' % (vT2, vT2))
        A('v_lshl_add_u32 v%d, v%d, 7, v%d' % (vT2, vT1, vT2))
        A('v_lshl_add_u32 v%d, v%d, 3, v%d' % (vT2, vT3, vT2))
        A('v_add_u32 v%d, s%d, v%d' % (dst, sA, vT2))
    for i in range(4):
        A('v_mov_b32 v%d, 0x3f803f80' % (vOne + i))
        A('v_mov_b32 v%d, 0' % (vPs + i))
    for i in range(2):
        A('v_mov_b32 v%d, 0x3f003f00' % (vHalf + i))
        A('v_mov_b32 v%d, 0' % (vPms + i))
    A('v_and_b32 v%d, 8, v0' % vT0)
    A('v_cmp_eq_u32 vcc, 0, v%d' % vT0)
    A('v_mov_b32 v%d, 0x7f800000' % vT1)
    A('v_mov_b32 v%d, 0xff800000' % vT2)
    A('v_cndmask_b32 v%d, v%d, v%d, vcc' % (vBias, vT1, vT2))
    A('v_and_b32 v%d, 3, v0' % vT0)
    A('v_lshlrev_b32 v%d, 4, v%d' % (vT1, vT0))
    A('v_mov_b32 v%d, 0x3f80' % vT2)
    A('v_lshlrev_b32 v%d, v%d, v%d' % (vT1, vT1, vT2))
    A('v_cmp_gt_u32 vcc, 2, v%d' % vT0)
    A('v_cndmask_b32 v%d, 0, v%d, vcc' % (vT1, vT1))
    A('v_bfe_u32 v%d, v0, 2, 2' % vT0)
    for i in range(4):
        A('v_cmp_eq_u32 vcc, %d, v%d' % (i, vT0))
        A('v_cndmask_b32 v%d, 0, v%d, vcc' % (vSel + i, vT1))
    A('s_lshl_b32 s%d, s%d, 2' % (sA, sW))
    A('s_add_u32 s%d, s%d, %d' % (sA, sA, LDSL))
    A('v_add_u32 v%d, s%d, v%d' % (vW2l, sA, vL16))
    A('v_and_b32 v%d, 1, v0' % vT0)
    A('v_lshrrev_b32 v%d, 4, v0' % vT1)
    A('v_lshl_add_u32 v%d, v%d, 2, v%d' % (vT0, vT0, vT1))
    A('v_lshlrev_b32 v%d, 4, v%d' % (vT1, vT0))
    A('v_add_u32 v%d, %d, v%d' % (vR2l, LDSL, vT1))
    A('v_and_b32 v%d, 2, v0' % vT1)
    A('v_xor_b32 v%d, v%d, v%d' % (vT0, vT0, vT1))
    A('v_lshlrev_b32 v%d, 4, v%d' % (vT0, vT0))
    A('v_lshl_add_u32 v%d, v%d, 7, v%d' % (vT0, vT1, vT0))
    A('v_bfe_u32 v%d, v0, 3, 1' % vT1)
    A('v_lshl_add_u32 v%d, v%d, 7, v%d' % (vT0, vT1, vT0))
    A('v_bfe_u32 v%d, v0, 2, 1' % vT1)
    A('v_lshl_add_u32 v%d, v%d, 3, v%d' % (vT0, vT1, vT0))
    A('s_lshl_b32 s%d, s%d, 9' % (sA, sW))
    A('s_add_u32 s%d, s%d, %d' % (sA, sA, LDS2))
    A('v_add_u32 v%d, s%d, v%d' % (vR2, sA, vT0))
    A('v_bfe_u32 v%d, v0, 3, 1' % vT0)
    A('v_lshlrev_b32 v%d, 9, v%d' % (vT0, vT0))
    A('v_lshrrev_b32 v%d, 4, v0' % vT1)
    A('v_lshl_add_u32 v%d, v%d, 7, v%d' % (vT0, vT1, vT0))
    A('v_and_b32 v%d, 2, v%d' % (vT1, vT1))
    A('v_and_b32 v%d, 7, v0' % vT2)
    A('v_xor_b32 v%d, v%d, v%d' % (vT1, vT1, vT2))
    A('v_lshl_add_u32 v%d, v%d, 4, v%d' % (vT0, vT1, vT0))
    A('s_lshl_b32 s%d, s%d, 11' % (sA, sW))
    A('s_add_u32 s%d, s%d, %d' % (sA, sA, LDS2))
    A('v_add_u32 v%d, s%d, v%d' % (vW2, sA, vT0))

    A('s_lshl_b32 s%d, s%d, 10' % (sA, sG))
    A('s_lshl_b32 s%d, s%d, 8' % (sB, sW))
    A('s_add_u32 s%d, s%d, s%d' % (sA, sA, sB))
    A('s_add_u32 s%d, s%d, 0x%x' % (sA, sA, F_KV))
    bits(A, vT1, [(0, 1, 7)], vT0, 's%d' % sA)
    bits(A, vT2, [(0, 4, 6)], vT0, '0x%x' % F_VOTE)
    A('v_and_b32 v%d, 48, v0' % vT0)
    A('v_cmp_eq_u32 vcc, 16, v%d' % vT0)
    A('v_cndmask_b32 v%d, v%d, v%d, vcc' % (vFa, vT1, vT2))

    vWa, vWb, vWc = vM, vM + 1, vM + 2
    A('v_lshrrev_b32 v%d, 2, v0' % vT0)
    A('v_lshlrev_b32 v%d, 13, v%d' % (vT0, vT0))
    A('v_and_b32 v%d, 3, v0' % vT1)
    A('v_lshl_add_u32 v%d, v%d, 4, v%d' % (vWa, vT1, vT0))
    A('s_lshl_b32 s%d, s%d, 21' % (sA, sW))
    A('s_lshl_b32 s%d, s%d, 10' % (sB, sG))
    A('s_add_u32 s%d, s%d, s%d' % (sA, sA, sB))
    A('s_lshl_b32 s%d, s%d, 6' % (sB, sC))
    A('s_add_u32 s%d, s%d, s%d' % (sA, sA, sB))
    for t in range(4):
        for m in range(3):
            for i in range(4):
                A('s_add_u32 s%d, s%d, 0x%x' % (sB, sA, (64 * t + 16 * i) * 8192))
                A('buffer_load_dwordx4 %s, v%d, %s, s%d offen' % (a(W1(t, m, 0) + 4 * i, 4), vWa, S4((SRD_A, SRD_B, SRD_C)[m]), sB))
    A('s_lshl_b32 s%d, s%d, 14' % (sCc, sW))
    A('s_add_u32 s%d, s%d, %d' % (sCc, sCc, LDSW))
    A('v_add_u32 v%d, s%d, v%d' % (vWb, sCc, vL16))
    A('v_bfe_u32 v%d, v0, 5, 1' % vT0)
    A('v_lshlrev_b32 v%d, 10, v%d' % (vT0, vT0))
    A('v_bfe_u32 v%d, v0, 4, 1' % vT1)
    A('v_lshl_add_u32 v%d, v%d, 8, v%d' % (vT0, vT1, vT0))
    A('v_bfe_u32 v%d, v0, 3, 1' % vT1)
    A('v_lshl_add_u32 v%d, v%d, 9, v%d' % (vT0, vT1, vT0))
    A('v_bfe_u32 v%d, v0, 2, 1' % vT1)
    A('v_lshl_add_u32 v%d, v%d, 6, v%d' % (vT0, vT1, vT0))
    A('v_and_b32 v%d, 3, v0' % vT1)
    A('v_lshl_add_u32 v%d, v%d, 3, v%d' % (vT0, vT1, vT0))
    A('v_add_u32 v%d, s%d, v%d' % (vWc, sCc, vT0))
    vWd = vM + 3
    A('v_lshrrev_b32 v%d, 3, v0' % vT0)
    A('v_lshlrev_b32 v%d, 11, v%d' % (vT0, vT0))
    A('v_and_b32 v%d, 7, v0' % vT1)
    A('v_lshl_add_u32 v%d, v%d, 4, v%d' % (vWd, vT1, vT0))
    A('s_lshl_b32 s%d, s%d, 2' % (sA, sG))
    A('s_add_u32 s%d, s%d, s%d' % (sA, sA, sW))
    A('s_lshl_b32 s%d, s%d, 18' % (sA, sA))
    A('s_lshl_b32 s%d, s%d, 7' % (sB, sC))
    A('s_add_u32 s%d, s%d, s%d' % (sA, sA, sB))
    issued_wo = 0
    for gi in range(12):
        t, m = divmod(gi, 3)
        younger = (11 - gi) * 4 + issued_wo
        A('s_waitcnt vmcnt(%d)' % younger)
        sl = (gi & 3) * 4096
        for i in range(4):
            A('ds_write_b128 v%d, %s offset:%d' % (vWb, a(W1(t, m, 0) + 4 * i, 4), sl + i * 1024))
        for tt in range(2):
            for pp in range(4):
                off = sl + (32 * (pp >> 1) + 2 * (pp & 1)) * 64 + tt * 32
                A('ds_read_b64_tr_b16 %s, v%d offset:%d' % (a(W1(t, m, tt) + 2 * pp, 2), vWc, off))
        if 1 <= gi <= 4:
            for i in range(4):
                k = issued_wo
                A('s_add_u32 s%d, s%d, 0x%x' % (sB, sA, k * 8 * 2048))
                A('buffer_load_dwordx4 %s, v%d, %s, s%d offen' % (a(192 + 4 * k, 4), vWd, S4(SRD_D), sB))
                issued_wo += 1
        A('s_waitcnt lgkmcnt(0)')
    A('v_bfe_u32 v%d, v0, 2, 1' % vT0)
    A('v_lshlrev_b32 v%d, 11, v%d' % (vT0, vT0))
    A('v_lshrrev_b32 v%d, 4, v0' % vT1)
    A('v_lshl_add_u32 v%d, v%d, 9, v%d' % (vT0, vT1, vT0))
    A('v_bfe_u32 v%d, v0, 3, 1' % vT1)
    A('v_lshl_add_u32 v%d, v%d, 7, v%d' % (vT0, vT1, vT0))
    A('v_and_b32 v%d, 3, v0' % vT1)
    A('v_lshl_add_u32 v%d, v%d, 3, v%d' % (vT0, vT1, vT0))
    A('v_add_u32 v%d, s%d, v%d' % (vWc, sCc, vT0))
    A('s_waitcnt vmcnt(0)')
    for k in range(16):
        A('ds_write_b128 v%d, %s offset:%d' % (vWb, a(192 + 4 * k, 4), k * 1024))
        if k == 7:
            A('s_waitcnt lgkmcnt(0)')
    A('s_waitcnt lgkmcnt(0)')
    for n in range(4):
        for j in range(4):
            for pp in range(2):
                A('ds_read_b64_tr_b16 %s, v%d offset:%d' % (a(WO(n, j) + 2 * pp, 2), vWc, (32 * j + 2 * pp) * 128 + n * 32))
        A('s_waitcnt lgkmcnt(0)')
    A('v_and_b32 v%d, 7, v0' % vT0)
    A('v_lshlrev_b32 v%d, 11, v%d' % (vT0, vT0))
    A('v_lshrrev_b32 v%d, 3, v0' % vT1)
    A('v_lshl_add_u32 v%d, v%d, 4, v%d' % (vT0, vT1, vT0))
    A('s_lshl_b32 s%d, s%d, 9' % (sA, sW))
    for t in range(4):
        A('buffer_load_dwordx4 %s, v%d, %s, s%d offen offset:%d' % (v(vM + 4 * t, 4), vT0, S4(SRD_E), sA, t * 128))

    def vox(fill=None):
        fill = fill or {}
        k = 0
        for n in range(4):
            for j in range(4):
                for tt in range(2):
                    acc = v(vT + (n * 2 + tt) * 4, 4)
                    A('v_mfma_f32_16x16x32_bf16 %s, %s, %s, %s' % (acc, v(vVx + (tt * 4 + j) * 4, 4), a(WO(n, j), 4), acc if j else '0'))
                    for o in fill.get(k, []):
                        A(o)
                    k += 1
                    if n > 0 and j in (1, 2):
                        jj = 2 * (j - 1) + tt
                        b = vT + (n - 1) * 8 + 2 * jj
                        A('v_cvt_pk_bf16_f32 v%d, v%d, v%d' % (vVOx + (n - 1) * 4 + jj, b, b + 1))

    def vox_tail():
        return ['v_cvt_pk_bf16_f32 v%d, v%d, v%d' % (vVOx + 12 + jj, vT + 24 + 2 * jj, vT + 25 + 2 * jj) for jj in range(4)]

    def paced(ops, every=4):
        for i, o in enumerate(ops):
            A(o)
            if i % every == every - 1 and i != len(ops) - 1:
                A('s_nop 0')

    def zeros(base, n, val='0'):
        return ['v_mov_b32 v%d, %s' % (base + i, val) for i in range(n)]

    cap_vm(A, cap0)
    tstamp(A, opt, 1, vT0, vT1, sA)
    wait_init(A, vT0, vT1, sA, sB)
    A('s_lshr_b32 s%d, s%d, 2' % (sSide, sX))
    A('s_sub_u32 s%d, 0, s%d' % (sSide, sSide))

    def kv_check(lab, retlab):
        A('v_readlane_b32 s%d, v%d, 0' % (sKn, vFv))
        A('v_readlane_b32 s%d, v%d, 1' % (sB, vFv))
        A('v_cmp_lt_i32 vcc, -1, v%d' % vFv)
        A('s_add_u32 s%d, s%d, 2' % (sA, sStep))
        A('s_min_u32 s%d, s%d, 64' % (sA, sA))
        A('s_min_i32 s%d, s%d, s%d' % (sKn, sKn, sB))
        A('s_xor_b32 s%d, vcc_lo, s%d' % (sHome, sSide))
        A('s_cmp_lt_i32 s%d, s%d' % (sKn, sA))
        A('s_cbranch_scc1 %s' % lab)

    ld_flags = 'buffer_load_dword v%d, v%d, %s, 0 offen sc1' % (vFv, vFa, S4(WS))
    A.label('L_c_kv0')
    A(ld_flags)
    A('s_waitcnt vmcnt(0)')
    kv_check('L_c_kv1', None)
    A('s_branch L_c_kv2')
    A.label('L_c_kv1')
    A('s_sleep 1')
    timeout_stub(A, 'L_c_kv0')
    A.label('L_c_kv2')
    for f in range(8):
        A('buffer_load_dwordx4 %s, v%d, %s, s%d offen offset:%d sc1' % (v(vVx + 4 * f, 4), vL16, S4(WS), (sVx, sVx2)[f >> 2], (f & 3) * 1024))
    for f in range(8):
        A('buffer_load_dwordx4 %s, v%d, %s, s%d offen offset:%d sc1' % (v(vKx + 4 * f, 4), vL16, S4(WS), (sKx, sKx2)[f >> 2], (f & 3) * 1024))
    for i in range(16):
        A('v_min_u32 v%d, -2, v%d' % (vM + i, vM + i))
    A('s_add_u32 s%d, s%d, 0x40000' % (sVx, sVx))
    A('s_add_u32 s%d, s%d, 0x40000' % (sVx2, sVx2))
    A('s_mov_b32 s%d, 0' % sPo)
    A('s_waitcnt vmcnt(8)')
    vox()
    paced(zeros(vA, 24) + vox_tail() + zeros(vT, 16) + zeros(MM, 4))
    A('s_waitcnt vmcnt(0)')
    tstamp(A, opt, 2, vT0, vT1, sA)

    def part_slots():
        A('s_lshr_b32 s%d, s%d, 21' % (sA, sPo))
        A('s_add_u32 s%d, s%d, 3' % (sA, sA))
        A('s_lshr_b32 s%d, s%d, s%d' % (sA, sHome, sA))
        A('s_and_b32 s%d, s%d, 0x2000' % (sA, sA))
        A('s_add_u32 s%d, s%d, s%d' % (sA, sA, sPo))
        A('s_add_u32 s%d, s%d, s%d' % (sPartR, sPartB, sA))
        A('s_lshl_b32 s%d, s%d, 8' % (sB, sG))
        A('s_add_u32 s%d, s%d, s%d' % (sPartA, sPartR, sB))
        A('s_xor_b32 s%d, s%d, 0x2000' % (sPartW, sPartA))
    part_slots()

    PT = 96
    stamps = []

    names = opt.get('marks', 'm0ok,st1end,qkvst,q0ok,Send,st2end,partst').split(',') + ['gath', 'gathok']
    assert len(names) == 9

    def stamp(nm):
        if prof and nm in names:
            i = names.index(nm)
            A('s_memtime s[%d:%d]' % (12 + 2 * i, 13 + 2 * i))

    if lite:
        vTr = V('trace')
        A('v_mov_b32 v%d, 0' % vTr)
        A('s_memtime s[28:29]')
        A('s_memtime s[96:97]')
        A('s_memrealtime s[98:99]')
        A('s_waitcnt lgkmcnt(0)')
        for n_ in (sN1, sN2, sN3):
            A('s_mov_b32 s%d, 0' % n_)

    SEG = 0 if opt.get('sameseg') else 0x40000
    loc = '@LOC@'

    def ldx4(dst, so, off):
        return 'buffer_load_dwordx4 %s, v%d, %s, s%d offen offset:%d sc1' % (v(dst, 4), vL16, S4(WS), so, off)

    def ld_mem(t):
        A(ldx4(vM + 4 * t, sMemR, t * 1024))

    def chk4(b, tmp):
        return ['v_max3_u32 v%d, v%d, v%d, v%d' % (tmp, b, b + 1, b + 2), 'v_max_u32 v%d, v%d, v%d' % (tmp, tmp, b + 3)]

    def chk4more(b, tmp):
        return ['v_max3_u32 v%d, v%d, v%d, v%d' % (tmp, tmp, b, b + 1), 'v_max3_u32 v%d, v%d, v%d, v%d' % (tmp, tmp, b + 2, b + 3)]

    def cmpv(tmp):
        return 'v_cmp_eq_u32 vcc, -1, v%d' % tmp

    def smf1(t, m, tt):
        A('v_smfmac_f32_16x16x64_bf16 %s, %s, %s, v%d' % (v(vA + 8 * m + 4 * tt, 4), v(vM + 4 * t, 4), a(W1(t, m, tt), 8), vIdx))

    def add2(d, x, y):
        if opt.get('pk', 1):
            A('v_pk_add_f32 %s, %s, %s' % (v(d, 2), v(x, 2), v(y, 2)))
        else:
            A('v_add_f32 v%d, v%d, v%d' % (d, x, y))
            A('v_add_f32 v%d, v%d, v%d' % (d + 1, x + 1, y + 1))

    def fold(m):
        b = vA + 8 * m
        f = vF + 4 * m
        for tt in range(2):
            for j in range(2):
                A('v_permlane32_swap_b32 v%d, v%d' % (b + 4 * tt + j, b + 4 * tt + j + 2))
        for tt in range(2):
            add2(f + 2 * tt, b + 4 * tt, b + 4 * tt + 2)
        A('ds_write2st64_b64 v%d, %s, %s offset0:%d offset1:%d' % (vW1q if m == 0 else vW1k, v(f, 2), v(f + 2, 2), 2 * m, 2 * m + 1))

    def rd1(ad):
        for w in range(4):
            A('ds_read2st64_b32 %s, v%d offset0:%d offset1:%d' % (v(vR + 2 * w, 2), ad, 12 * w, 12 * w + 2))

    def red1(dst, extra=''):
        A('s_waitcnt lgkmcnt(%d)' % (0 if prof else 2))
        A(extra)
        add2(vR, vR, vR + 2)
        A('s_waitcnt lgkmcnt(0)')
        add2(vR + 4, vR + 4, vR + 6)
        add2(vR, vR, vR + 4)
        A('v_cvt_pk_bf16_f32 v%d, v%d, v%d' % (dst, vR, vR + 1))
        A('v_min_u32 v%d, -2, v%d' % (dst, dst))

    def st4(src, ad, so, mod):
        return 'buffer_store_dword v%d, v%d, %s, s%d offen%s' % (src, ad, S4(WS), so, mod)

    ld_q = [ldx4(vQ, sQkvR, 0), ldx4(vQ + 8, sQkvR, 1024)]
    ld_k = [ldx4(vKm, sQkvR, 2048), ldx4(vKm + 4, sQkvR, 3072)]
    ld_v = [ldx4(vVm, sQkvR2, 0), ldx4(vVm + 4, sQkvR2, 1024)]
    st_v = st4(vVv, vVst, sQkvW, loc)
    ld_part = [ldx4(vPt, sPartR, 0), ldx4(vPt + 4, sPartR, 1024)]
    X0, X1 = vS, vS + 4
    cnt = lambda n_: A('s_add_u32 s%d, s%d, 1' % (n_, n_)) if lite else None

    def nxt(Sm, t):
        for d in range(1, 5):
            if Sm >> ((t + d) & 3) & 1:
                return (t + d) & 3

    def block(Sm, t, wait=None):
        rest = Sm & ~(1 << t)
        n = nxt(rest, t) if rest else None
        smf1(t, 0, 0)
        if rest:
            if wait is not None:
                A('s_waitcnt vmcnt(%d)' % wait)
            for o in chk4(vM + 4 * n, vT0):
                A(o)
        smf1(t, 0, 1)
        if rest:
            A(cmpv(vT0))
        smf1(t, 1, 0)
        smf1(t, 1, 1)
        return rest, n

    def first_pass():
        A('s_waitcnt vmcnt(3)')
        for o in chk4(vM, vT0):
            A(o)
        A(cmpv(vT0))
        A('s_cbranch_vccnz L_F15_0')
        stamp('m0ok')
        Sm = 15
        for t in range(4):
            stamp('B%d' % t)
            Sm, n = block(Sm, t, 2 - t)
            if Sm:
                A('s_cbranch_vccnz L_F%d_%d' % (Sm, n))

    def poll_nodes_ooo():
        for Sm in sorted(range(1, 16), key=lambda x: -bin(x).count('1')):
            ts = [t for t in range(4) if Sm >> t & 1]
            for t in ts:
                A.label('L_P%d_%d' % (Sm, t))
                A('s_waitcnt vmcnt(3)')
                for o in chk4(vM + 4 * t, vT0):
                    A(o)
                A(cmpv(vT0))
                A('s_cbranch_vccz L_V%d_%d' % (Sm, t))
                A.label('L_F%d_%d' % (Sm, t))
                ld_mem(t)
                cnt(sN1)
            timeout_stub(A, 'L_P%d_%d' % (Sm, ts[0]))
            for t in ts:
                A.label('L_V%d_%d' % (Sm, t))
                if Sm == 15:
                    stamp('m0ok')
                stamp('B%d' % (4 - len(ts)))
                rest, n = block(Sm, t)
                if rest:
                    A('s_cbranch_vccz L_V%d_%d' % (rest, n))
                    A('s_branch L_F%d_%d' % (rest, n))
                else:
                    A('s_branch L_T1')

    def poll_nodes():
        if opt.get('ooo', 1):
            return poll_nodes_ooo()
        for k in range(4):
            full = 15 & ~((1 << k) - 1)
            for Sm in sorted(range(1, 16), key=lambda x: -bin(x).count('1')):
                if Sm & ~full:
                    continue
                ts = [t for t in range(4) if Sm >> t & 1]
                for t in ts:
                    rest = Sm & ~(1 << t)
                    A.label('L_P%d_%d_%d' % (k, Sm, t))
                    A('s_waitcnt vmcnt(%d)' % opt.get('lim', 3))
                    for o in chk4(vM + 4 * t, vT0):
                        A(o)
                    A(cmpv(vT0))
                    A('s_cbranch_vccz %s' % ('L_P%d_%d_%d' % (k, rest, nxt(rest, t)) if rest else 'L_G%d' % k))
                    if Sm == full and t == k:
                        A.label('L_F%d_%d' % (Sm, t))
                    ld_mem(t)
                    cnt(sN1)
                timeout_stub(A, 'L_P%d_%d_%d' % (k, Sm, ts[0]))
        for k in range(4):
            A.label('L_G%d' % k)
            if k == 0:
                stamp('m0ok')
            stamp('B%d' % k)
            block(1 << k, k)
        A('s_branch L_T1')

    A('s_cmp_lt_u32 s%d, %d' % (sPure, NPURE))
    A('s_cbranch_scc1 L_loop_i')
    loop_start = len(A.lines)
    A('.p2align 6')
    A.label('L_loop')
    first_pass()
    A.label('L_T1')
    stamp('T1')
    kxl = [ldx4(vKx + 4 * f, (sKx, sKx2)[f >> 2], (f & 3) * 1024) for f in range(8)]
    na = opt.get('na', 3)
    ka = kxl[8 - na:]
    nk = lambda: A(ka.pop(0)) if ka else None
    fold(0)
    stamp('f0')
    fold(1)
    stamp('f1')
    for t in range(3):
        smf1(t, 2, 0)
        nk()
        smf1(t, 2, 1)
    A('s_waitcnt lgkmcnt(0)')
    stamp('st1end')
    A('s_barrier')
    stamp('bar1')
    rd1(vR1)
    smf1(3, 2, 0); nk(); smf1(3, 2, 1)
    while ka:
        nk()
    red1(vQK)
    A(st4(vQK, vQst, sQkvW, loc))
    stamp('qkvst')
    qk = ld_q + ld_k
    slots = [int(ch) for ch in str(opt.get('h2s', '2244')).zfill(4)]
    order = []

    def slot(i):
        for n_, sl_ in enumerate(slots):
            if sl_ == i:
                A(qk[n_]); order.append(qk[n_])
    fold(2)
    slot(0)
    A('s_add_u32 s%d, s%d, 0x%x' % (sKx, sKx, SEG))
    A('s_add_u32 s%d, s%d, 0x%x' % (sKx2, sKx2, SEG))
    A('s_cmp_eq_u32 s%d, 63' % sStep)
    A('s_cbranch_scc1 L_c_tail')
    A('s_waitcnt lgkmcnt(0)')
    A('s_barrier')
    stamp('bar1b')
    slot(1)
    rd1(vR1v)
    slot(2)
    A('s_waitcnt lgkmcnt(%d)' % (0 if prof else 3))
    slot(3)
    red1(vVv)
    A(st_v); order.append(st_v)
    stamp('vst')
    slot(4)
    younger = lambda o: len(order) - 1 - order.index(o)
    A.label('L_h2')
    mx = lambda tt, j, first=False: A('v_mfma_f32_16x16x32_bf16 %s, %s, %s, %s' % (v(vS + 4 * tt, 4), v(vKx + (tt * 4 + j) * 4, 4), v(vQ + 4 * j, 4), '0' if first else v(vS + 4 * tt, 4)))
    ror = lambda r_: A('v_mov_b32_dpp v%d, v%d row_ror:8 row_mask:0xf bank_mask:0xf' % (r_ + 4, r_))
    stamp('q0w')
    A('s_waitcnt vmcnt(%d)' % younger(qk[0]))
    stamp('q0l')
    mx(0, 0, True); ror(vQ); ror(vQ + 1)
    mx(1, 0, True); ror(vQ + 2); ror(vQ + 3)
    A('s_waitcnt vmcnt(%d)' % younger(qk[1]))
    stamp('q1l')
    c1, c2 = chk4(vQ, vT3), chk4more(vQ + 8, vT3)
    mx(0, 2); A(c1[0]); A(c1[1])
    mx(1, 2); A(c2[0]); A(c2[1])
    mx(0, 1); A(cmpv(vT3)); ror(vQ + 8); ror(vQ + 9)
    mx(1, 1); ror(vQ + 10); ror(vQ + 11)
    A('s_cbranch_vccnz L_r2')
    stamp('q0ok')
    order_q = list(order)
    mx(0, 3); A(ld_v[0])
    mx(1, 3); A(ld_v[1])
    order += ld_v
    A.label('L_h2k')
    smm = lambda u: A('v_smfmac_f32_16x16x64_bf16 %s, %s, %s, v%d' % (v(MM, 4), v(vKm + 4 * u, 4), v(vQ + 8 * u, 8), vIdx))
    stamp('k0w')
    A('s_waitcnt vmcnt(%d)' % younger(qk[2]))
    smm(0)
    stamp('k1w')
    A('s_waitcnt vmcnt(%d)' % younger(qk[3]))
    stamp('k1l')
    smm(1)
    for o in chk4(vKm, vT3) + chk4more(vKm + 4, vT3):
        A(o)
    A(cmpv(vT3))
    A('v_max3_f32 v%d, v%d, v%d, v%d' % (vT0, vBias, X0, X0 + 1))
    A('v_permlane32_swap_b32 v%d, v%d' % (MM, MM + 2))
    A('v_permlane32_swap_b32 v%d, v%d' % (MM + 1, MM + 3))
    A('v_max3_f32 v%d, v%d, v%d, v%d' % (vT0, vT0, X0 + 2, X0 + 3))
    A('v_max3_f32 v%d, v%d, v%d, v%d' % (vT0, vT0, X1, X1 + 1))
    A('v_max3_f32 v%d, v%d, v%d, v%d' % (vT0, vT0, X1 + 2, X1 + 3))
    order_k = order[order.index(qk[2]):]
    vxl = [ldx4(vVx + 4 * f, (sVx, sVx2)[f >> 2], (f & 3) * 1024) for f in range(8)]
    bulk = vxl + kxl[:8 - na]
    nbulk = len(bulk)
    nb = lambda: A(bulk.pop(0)) if bulk else None
    add2(MM, MM, MM + 2)
    A('v_max3_f32 v%d, v%d, v%d, v%d' % (vT0, vT0, MM, MM + 1))
    A('v_mov_b32 v%d, v%d' % (vT1, vT0))
    A('s_cbranch_vccnz L_r2k')
    stamp('kok')
    early = opt.get('be', 2)
    for i in range(min(early, 1)):
        nb()
    A('v_permlane32_swap_b32 v%d, v%d' % (vT0, vT1))
    A('v_max_f32 v%d, v%d, v%d' % (vT0, vT0, vT1))
    A('v_mov_b32 v%d, v%d' % (vT1, vT0))
    for i in range(max(early - 1, 0)):
        nb()
    A('v_permlane16_swap_b32 v%d, v%d' % (vT0, vT1))
    A('v_max_f32 v%d, v%d, v%d' % (vT0, vT0, vT1))
    A('v_mul_f32 v%d, s%d, v%d' % (vT0, sScale, vT0))
    fma = lambda r_: A('v_fma_f32 v%d, v%d, s%d, -v%d' % (r_, r_, sScale, vT0))
    ex = lambda r_: A('v_exp_f32 v%d, v%d' % (r_, r_))
    cvt = lambda d, x: A('v_cvt_pk_bf16_f32 v%d, v%d, v%d' % (d, x, x + 1))
    shr = lambda d, x: A('v_mov_b32_dpp v%d, v%d row_shr:8 row_mask:0xf bank_mask:0xc' % (d, x))
    for i in range(8):
        fma(vS + i)
    stamp('vw')
    A('s_waitcnt vmcnt(%d)' % early)
    stamp('vl')
    for o in chk4(vVm, vT3) + chk4more(vVm + 4, vT3):
        A(o)
    A(cmpv(vT3))
    for i in range(3):
        ex(vS + i)
    A('s_cbranch_vccnz L_r2v')
    A.label('L_h2v')
    stamp('Send')
    vom = lambda u, n: A('v_smfmac_f32_16x16x64_bf16 %s, %s, %s, v%d' % (v(vT + 4 * n, 4), v(vVm + 4 * u, 4), a(WO(n, 2 * u), 8), vIdx))
    for i in range(8):
        vom(i & 1, i >> 1)
        if i & 1:
            nb()
        if i < 5:
            ex(vS + 3 + i)
        else:
            cvt(vP + i - 5, vS + 2 * (i - 5))
    stamp('vomend')
    cvt(vP + 3, vS + 6)
    fma(MM); fma(MM + 1)
    m32 = lambda d, x, p, c_: A('v_mfma_f32_16x16x32_bf16 %s, %s, %s, %s' % (v(d, 4), v(x, 4), v(p, 4), v(d, 4) if c_ else '0'))
    m16 = lambda d, x, p: A('v_mfma_f32_16x16x16_bf16 %s, %s, %s, %s' % (v(d, 4), v(x, 2), v(p, 2), v(d, 4)))
    cvm = lambda k: cvt(vVOm + k, vT + 2 * k)
    m32(vO, vVOx, vP, 0)
    nb()
    ex(MM)
    m32(vO + 4, vVOx + 8, vP, 0)
    ex(MM + 1)
    m32(vLs, vOne, vP, 0)
    nb()
    shr(vPs, vP); shr(vPs + 1, vP + 1); shr(vPs + 2, vP + 2); shr(vPs + 3, vP + 3)
    cvt(vPm, MM)
    cvt(vPm + 1, MM)
    m32(vO, vVOx + 4, vPs, 1)
    cvm(0)
    A('v_permlane32_swap_b32 v%d, v%d' % (vPm, vPm + 1))
    m32(vO + 4, vVOx + 12, vPs, 1)
    nb()
    cvm(1); cvm(2)
    stamp('m16')
    m16(vLs, vHalf, vPm)
    shr(vPms, vPm); shr(vPms + 1, vPm + 1)
    m16(vO, vVOm, vPm)
    nb()
    cvm(3); cvm(4); cvm(5)
    m16(vO, vVOm + 2, vPms)
    cvm(6); cvm(7)
    m16(vO + 4, vVOm + 4, vPm)
    nb()
    A('v_rcp_f32 v%d, v%d' % (vT1, vLs))
    m16(vO + 4, vVOm + 6, vPms)
    stamp('mend')
    A('ds_write_b32 v%d, v%d' % (vW2l, vT1))
    A('ds_write_b128 v%d, %s' % (vW2, v(vO, 4)))
    while bulk:
        nb()
    A('ds_write_b128 v%d, %s offset:1024' % (vW2, v(vO + 4, 4)))
    A('v_cndmask_b32 v%d, v%d, v%d, %s' % (vQK, vQK, vVv, s(sLo, 2)))
    A('s_add_u32 s%d, s%d, 0x40000' % (sPf, sPf))
    A('s_waitcnt lgkmcnt(0)')
    stamp('st2end')
    A('s_barrier')
    stamp('bar2')
    A('ds_read_b128 %s, v%d' % (v(vR2d + 8, 4), vR2l))
    for w in range(4):
        A('ds_read_b64 %s, v%d offset:%d' % (v(vR2d + 2 * w, 2), vR2, w * 2048))
    side = []
    if not opt.get('nokvm'):
        side += [st4(vQK, vKst, sKvm, ' sc1')]
    if opt.get('pf', 1):
        side += [ldx4(vKm, sPf, 0)]
    nse = opt.get('nse', 2)
    for o in side[:nse]:
        A(o)
    for w in range(4):
        A('s_waitcnt lgkmcnt(%d)' % (0 if prof else 3 - w))
        sel = 'op_sel:[0,%d%s] op_sel_hi:[1,%d%s]' % (w & 1, ',0' if w else '', w & 1, ',1' if w else '')
        if w == 0:
            A('v_pk_mul_f32 %s, %s, %s %s' % (v(vR2d, 2), v(vR2d, 2), v(vR2d + 8, 2), sel))
        else:
            A('v_pk_fma_f32 %s, %s, %s, %s %s' % (v(vR2d, 2), v(vR2d + 2 * w, 2), v(vR2d + 8 + (w & 2), 2), v(vR2d, 2), sel))
    cvt(vT0, vR2d)
    A('v_min_u32 v%d, -2, v%d' % (vT0, vT0))
    A(st4(vT0, vL4, sPartA, ' sc1'))
    A(st4(vT0, vL4, sPartW, ' sc1'))
    stamp('partst')
    A('s_waitcnt vmcnt(%d)' % (2 + nbulk - 8 + len(side[:nse])))
    stamp('vxok')
    A('s_add_u32 s%d, s%d, 3' % (sA, sStep))
    A('s_min_u32 s%d, s%d, 64' % (sA, sA))
    A('s_max_u32 s%d, s%d, 16' % (sA, sA))
    A('s_cmp_ge_i32 s%d, s%d' % (sKn, sA))
    A('s_cbranch_scc1 L_nofl')
    A(ld_flags)
    A.label('L_nofl')
    pre = [st4(vSent, vL4, sMemW, loc),
           's_xor_b32 s%d, s%d, 0x8000' % (sQkvW, sQkvW),
           st4(vSent, vQst, sQkvW, loc), st4(vSent, vVst, sQkvW, loc)]
    pre = side[nse:] + pre
    pre += ['s_xor_b32 s%d, s%d, 0x8000' % (sQkvR, sQkvR), 's_xor_b32 s%d, s%d, 0x8000' % (sQkvR2, sQkvR2),
            's_add_u32 s%d, s%d, 0x20000' % (sKvm, sKvm), 's_xor_b32 s%d, s%d, 0x4000' % (sMemW, sMemW),
            's_xor_b32 s%d, s%d, 0x4000' % (sMemR, sMemR),
            's_add_u32 s%d, s%d, 0x%x' % (sVx, sVx, SEG), 's_add_u32 s%d, s%d, 0x%x' % (sVx2, sVx2, SEG)]
    gpos = opt.get('gpos', 24)
    fill = {}
    for i, o in enumerate(pre):
        fill.setdefault(i, []).append(o)
    sl = ['s_memtime s[26:27]'] if prof else []
    fill.setdefault(gpos, []).extend(['s_nop 15'] * opt.get('w3', 0) + sl + ld_part)
    vox(fill)
    zz = zeros(vA, 24) + zeros(vT, 16) + zeros(MM, 4)
    zw = opt.get('zw', 4)
    paced(zeros(vM, 16, '-1') + vox_tail() + zz[:zw])
    zz = zz[zw:]
    if lite and not prof:
        A('s_and_b32 s%d, s%d, 3' % (sA, sStep))
        A('s_cbranch_scc1 L_notr')
        A('s_memtime s[12:13]')
        A('s_memrealtime s[14:15]')
        A('s_lshr_b32 s%d, s%d, 1' % (sA, sStep))
        A('s_mov_b32 m0, s%d' % sA)
        A('s_waitcnt lgkmcnt(0)')
        A('v_writelane_b32 v%d, s12, m0' % vTr)
        A('s_add_u32 m0, s%d, 1' % sA)
        A('v_writelane_b32 v%d, s14, m0' % vTr)
        A.label('L_notr')
    if prof:
        A('s_waitcnt lgkmcnt(0)')
        A('s_sub_u32 s%d, s%d, 33' % (sA, sStep))
        A('s_cmp_lt_u32 s%d, 6' % sA)
        A('s_cbranch_scc0 L_notr')
        A('s_mul_i32 s%d, s%d, 9' % (sA, sA))
        A('s_add_u32 s%d, s%d, 8' % (sA, sA))
        for i in [8] + list(range(8)):
            A('s_mov_b32 m0, s%d' % sA)
            A('v_writelane_b32 v%d, s%d, m0' % (vTr, 12 + 2 * i))
            A('s_add_u32 s%d, s%d, 1' % (sA, sA))
        A.label('L_notr')
    A.label('L_h3')
    lo = vPt + 8
    A('s_waitcnt vmcnt(1)')
    A('v_mfma_f32_16x16x32_bf16 %s, %s, %s, 0' % (v(lo, 4), v(vSel, 4), v(vPt, 4)))
    for o in chk4(vPt, vT0):
        A(o)
    A('s_waitcnt vmcnt(0)')
    A('v_mfma_f32_16x16x32_bf16 %s, %s, %s, %s' % (v(lo, 4), v(vSel, 4), v(vPt + 4, 4), v(lo, 4)))
    for o in chk4more(vPt + 4, vT0):
        A(o)
    A(cmpv(vT0))
    A('s_cbranch_vccnz L_r3')
    stamp('gathok')
    cvt(vT0, lo)
    A('v_min_u32 v%d, -2, v%d' % (vT0, vT0))
    A(st4(vT0, vL4, sMemW, loc))
    stamp('memst')
    A('s_add_u32 s%d, s%d, 1' % (sStep, sStep))
    A('s_add_u32 s%d, s%d, 0x40000' % (sPo, sPo))
    A('s_and_b32 s%d, s%d, 0x1c0000' % (sA, sPo))
    A('s_cmp_eq_u32 s%d, 0x1c0000' % sA)
    A('s_cselect_b32 s%d, 0x40000, 0' % sA)
    A('s_add_u32 s%d, s%d, s%d' % (sPo, sPo, sA))
    z0 = opt.get('h1d', 12)
    zs = opt.get('h1s', 12)
    paced(zz[:z0]); zz = zz[z0:]
    for t in range(4):
        ld_mem(t)
        stamp('mi%d' % t)
        if t == 2:
            part_slots()
            paced(zz); zz = []
        paced(zz[:zs]); zz = zz[zs:]
    A.label('L_kvc')
    kv_check('L_kvw', None)
    A('s_branch L_loop')
    poll_nodes()
    A.label('L_kvw')
    A(ld_flags)
    A('s_waitcnt vmcnt(0)')
    timeout_stub(A, 'L_kvc')
    A.label('L_r2')
    for o in order_q:
        A(o)
    cnt(sN2)
    timeout_stub(A, 'L_h2')
    A.label('L_r2k')
    for o in order_k + zeros(MM, 4):
        A(o)
    cnt(sN2)
    timeout_stub(A, 'L_h2k')
    A.label('L_r2v')
    for o in ld_v:
        A(o)
    cnt(sN2)
    A('s_waitcnt vmcnt(0)')
    for o in chk4(vVm, vT3) + chk4more(vVm + 4, vT3):
        A(o)
    A(cmpv(vT3))
    A('s_cbranch_vccz L_h2v')
    timeout_stub(A, 'L_r2v')
    A.label('L_r3')
    for o in ld_part:
        A(o)
    cnt(sN3)
    timeout_stub(A, 'L_h3')
    body = A.lines[loop_start:]
    labs = [l[:-1] for l in body if l.endswith(':')]
    pat = re.compile(r'\b(' + '|'.join(labs) + r')\b')
    A.lines[loop_start:] = [l.replace('@LOC@', '') for l in body] + [pat.sub(r'\1_i', l).replace('@LOC@', ' sc1') for l in body]
    A.label('L_c_tail')
    A('s_waitcnt lgkmcnt(0)')
    A('s_barrier')
    rd1(vR1v)
    red1(vVv)
    A('v_cndmask_b32 v%d, v%d, v%d, %s' % (vQK, vQK, vVv, s(sLo, 2)))
    A(st4(vQK, vKst, sKvm, ' sc1'))
    if lite:
        A('s_mov_b32 s66, s78')
        sN3 = 66
    tstamp(A, opt, 7, vT2, vT3, sA)
    if lite:
        A('s_memtime s[12:13]')
        A('s_memrealtime s[14:15]')
        A('s_waitcnt lgkmcnt(0)')
        A('s_sub_u32 s12, s12, s96')
        A('s_sub_u32 s14, s14, s98')
        A('v_mov_b32 v%d, s12' % (vM + 3))
        A('v_mov_b32 v%d, s14' % (vM + 4))
        A('s_lshl_b32 s%d, s%d, 4' % (sA, sG))
        A('s_add_u32 s%d, s%d, s%d' % (sA, sA, sC))
        A('s_lshl_b32 s%d, s%d, 2' % (sA, sA))
        A('s_add_u32 s%d, s%d, s%d' % (sA, sA, sW))
        A('s_lshl_b32 s%d, s%d, 6' % (sA, sA))
        A('s_add_u32 s%d, s%d, 0x%x' % (sA, sA, PROF))
        A('v_mov_b32 v%d, s%d' % (vM, sN1))
        A('v_mov_b32 v%d, s%d' % (vM + 1, sN2))
        A('v_mov_b32 v%d, s%d' % (vM + 2, sN3))
        A('v_mov_b32 v%d, 0' % vT0)
        for i in range(9, 14):
            A('buffer_store_dword v%d, v%d, %s, s%d offen offset:%d' % (vM + i - 9, vT0, S4(WS), sA, 4 * i))
    if lite:
        A('v_mov_b32 v%d, s96' % vT1)
        A('buffer_store_dword v%d, v%d, %s, s%d offen offset:56' % (vT1, vT0, S4(WS), sA))
        A('v_mov_b32 v%d, s98' % vT2)
        A('buffer_store_dword v%d, v%d, %s, s%d offen offset:60' % (vT2, vT0, S4(WS), sA))
        A('s_sub_u32 s%d, s%d, 0x%x' % (sA, sA, PROF))
        A('s_lshl_b32 s%d, s%d, 2' % (sA, sA))
        A('s_add_u32 s%d, s%d, 0x%x' % (sA, sA, PROF + MB))
        A('buffer_store_dword v%d, v%d, %s, s%d offen' % (vTr, vL4, S4(WS), sA))
    A('s_waitcnt vmcnt(0)')
    A('s_endpgm')


def build(opt):
    A = Asm()
    prologue(A, opt)
    chain(A, opt)
    for kind in 'kvq':
        proj(A, opt, kind)
    orole(A, opt)
    body, nn = fix_hazards(A.lines, verbose=True)
    hdr = open('cdna_kernels/%s.s.ref' % NAME).read().split('\n')
    hdr = [l for l in hdr if l.startswith(';') and '@launch' not in l]
    hdr.append('; opts ' + ' '.join('%s=%s' % kv for kv in opt.items()))
    if opt.get('prof'):
        hdr.append('; marks=' + opt.get('marks', 'm0ok,st1end,qkvst,q0ok,Send,st2end,partst') + ',gath,gathok')
    out = hdr + ['; @launch grid=(256,1,1) block=(256,1,1) lds=%d' % opt.get('lds', 163840),
                 '.amdgcn_target "amdgcn-amd-amdhsa--gfx950"', '.text', '.globl %s_kernel' % NAME, '.p2align 8',
                 '.type %s_kernel,@function' % NAME, '%s_kernel:' % NAME]
    out += body
    out += ['.section .rodata,"a"', '.p2align 6', '.amdhsa_kernel %s_kernel' % NAME,
            '  .amdhsa_next_free_vgpr 512', '  .amdhsa_next_free_sgpr 102', '  .amdhsa_accum_offset 256',
            '  .amdhsa_group_segment_fixed_size 0', '  .amdhsa_kernarg_size 128', '  .amdhsa_user_sgpr_count 2',
            '  .amdhsa_user_sgpr_kernarg_segment_ptr 1', '  .amdhsa_system_sgpr_workgroup_id_x 1',
            '  .amdhsa_float_denorm_mode_32 3', '.end_amdhsa_kernel', '']
    return '\n'.join(out), nn


if __name__ == '__main__':
    opt = {}
    outp = sys.argv[1]
    for a_ in sys.argv[2:]:
        k, val = a_.split('=')
        opt[k] = int(val) if val.lstrip('-').isdigit() else val
    txt, nn = build(opt)
    open(outp, 'w').write(txt)
    print('wrote', outp, 'nops inserted:', nn)
```

```python
import re

REG_RE = re.compile(r'^(-|abs\()?([vas])(\d+)\)?$')
RNG_RE = re.compile(r'^(-|abs\()?([vas])\[(\d+):(\d+)\]\)?$')
SPECIAL = {'vcc': ['vcc_lo', 'vcc_hi'], 'vcc_lo': ['vcc_lo'], 'vcc_hi': ['vcc_hi'],
           'exec': ['exec_lo', 'exec_hi'], 'exec_lo': ['exec_lo'], 'exec_hi': ['exec_hi'], 'm0': ['m0']}
TRANS = ('v_exp_f32', 'v_log_f32', 'v_rcp_f32', 'v_rsq_f32', 'v_sqrt_f32', 'v_sin_f32', 'v_cos_f32',
         'v_rcp_iflag_f32')


def regs_of(op):
    op = op.strip()
    if op.startswith('|') and op.endswith('|'):
        op = op[1:-1]
    m = REG_RE.match(op)
    if m:
        return [m.group(2) + m.group(3)]
    m = RNG_RE.match(op)
    if m:
        return [m.group(2) + str(i) for i in range(int(m.group(3)), int(m.group(4)) + 1)]
    return list(SPECIAL.get(op, []))


class Ins:
    def __init__(self, text):
        self.text = text
        self.label = None
        self.pre = 0
        self.kind = 'other'
        self.rd = set()
        self.wr = set()
        t = text.split(';')[0].strip()
        if not t or t.startswith('.') and not t.endswith(':'):
            self.kind = 'none'
            return
        if t.endswith(':'):
            self.kind = 'label'
            self.label = t[:-1]
            return
        parts = t.split(None, 1)
        mn = parts[0]
        self.mn = mn
        rest = parts[1] if len(parts) > 1 else ''
        mods0 = ''
        mo = re.search(r'\s(op_sel|neg_lo|neg_hi|quad_perm)', rest)
        if mo:
            mods0 = rest[mo.start():]
            rest = rest[:mo.start()]
        ops = [o.strip() for o in rest.split(',')] if rest else []
        mods = ''
        if ops:
            last = ops[-1].split(None, 1)
            ops[-1] = last[0]
            mods = last[1] if len(last) > 1 else ''
        mods += mods0
        self.ops, self.mods = ops, mods
        R = lambda i: set(regs_of(ops[i])) if i < len(ops) else set()
        allr = lambda a: set().union(*[R(i) for i in range(a, len(ops))]) if len(ops) > a else set()
        self.target = None
        if mn.startswith('v_mfma') or mn.startswith('v_smfmac'):
            self.kind = 'mfma'
            self.passes = 8 if '32x32' in mn else 4
            self.wr = R(0)
            if mn.startswith('v_smfmac'):
                self.ab = R(1) | R(2) | R(3)
                self.c = R(0)
            else:
                self.ab = R(1) | R(2)
                self.c = R(3)
            self.rd = self.ab | self.c
        elif mn.startswith('v_'):
            self.kind = 'valu'
            base = mn.replace('_e32', '').replace('_e64', '').replace('_dpp', '').replace('_sdwa', '')
            self.base = base
            self.dpp = mn.endswith('_dpp') or 'row_' in mods or 'quad_perm' in mods
            self.sdwa = mn.endswith('_sdwa') or ('op_sel' in mods and not mn.startswith('v_pk_'))
            self.trans = base in TRANS
            self.perm = base.startswith('v_permlane')
            self.dot = base.startswith('v_dot')
            self.lane = base in ('v_readlane_b32', 'v_readfirstlane_b32', 'v_writelane_b32')
            if base == 'v_nop':
                pass
            elif self.perm or base == 'v_swap_b32':
                self.wr = R(0) | R(1)
                self.rd = R(0) | R(1)
            elif '_co_' in base or base.startswith('v_div_scale') or base.startswith('v_mad_u64'):
                self.wr = R(0) | R(1)
                self.rd = allr(2)
            else:
                self.wr = R(0)
                self.rd = allr(1)
                if base.startswith('v_fmac') or base.startswith('v_dot2c') or self.dpp or base == 'v_writelane_b32' or self.sdwa:
                    self.rd |= R(0)
                if base.startswith('v_cmpx'):
                    self.wr |= {'exec_lo', 'exec_hi'}
                if base.startswith('v_div_fmas'):
                    self.rd |= {'vcc_lo', 'vcc_hi'}
        elif mn.startswith('buffer_') or mn.startswith('global_'):
            self.kind = 'vmem'
            self.lds = (' lds' in ' ' + mods) or 'load_lds' in mn
            self.wide = False
            self.data = set()
            if mn in ('buffer_wbl2', 'buffer_inv'):
                pass
            elif 'load' in mn and not self.lds:
                self.wr = R(0)
                self.rd = allr(1)
            elif 'load' in mn:
                self.rd = allr(0) | {'m0'}
            elif 'store' in mn:
                self.rd = allr(0)
                self.data = R(0) if mn.startswith('buffer_') else R(1)
                self.wide = 'x3' in mn or 'x4' in mn
            else:
                self.rd = allr(0)
                if 'sc0' in mods:
                    self.wr = R(0)
        elif mn.startswith('ds_'):
            self.kind = 'ds'
            if 'read' in mn or 'permute' in mn or 'swizzle' in mn or 'rtn' in mn:
                self.wr = R(0)
                self.rd = allr(1)
            else:
                self.rd = allr(0)
        elif mn == 's_nop':
            self.kind = 'nop'
            self.n = int(ops[0], 0) + 1
        elif mn.startswith('s_cbranch') or mn == 's_branch':
            self.kind = 'branch'
            self.target = ops[0]
        elif mn == 's_endpgm':
            self.kind = 'end'
        elif mn.startswith('s_'):
            self.kind = 'salu'
            if mn.startswith('s_cmp') or mn.startswith('s_bitcmp') or mn in ('s_waitcnt', 's_barrier', 's_sleep', 's_setprio'):
                self.rd = allr(0)
            else:
                self.wr = R(0)
                self.rd = allr(1)
                if 'saveexec' in mn:
                    self.wr |= {'exec_lo', 'exec_hi'}
        else:
            raise ValueError('unknown instruction: ' + text)


def is_s(r):
    return r[0] == 's' or r.startswith('vcc')


def need(p, c):
    n = 0
    if p.kind == 'valu':
        vw = {r for r in p.wr if r[0] in 'va' and not r.startswith('vcc')}
        sw = {r for r in p.wr if is_s(r)}
        ew = {r for r in p.wr if r.startswith('exec')}
        if c.kind == 'mfma':
            if vw & c.rd:
                n = max(n, 3 if p.dot else 2)
            if ew:
                n = max(n, 4)
        if c.kind == 'valu':
            if vw & c.rd:
                if c.dpp or c.perm:
                    n = max(n, 2)
                if c.lane:
                    n = max(n, 1)
                if p.trans and not c.trans:
                    n = max(n, 1)
                if p.sdwa:
                    n = max(n, 1)
            if p.dot and (vw & (c.rd | c.wr)):
                same_c = c.dot and c.base == p.base and not (vw & set().union(*[set(regs_of(o)) for o in c.ops[1:3]]))
                if not same_c:
                    n = max(n, 3)
            if sw & c.rd:
                n = max(n, 4 if (c.lane or c.base.startswith('v_div_fmas')) else 2)
            if ew:
                if c.dpp:
                    n = max(n, 5)
                if c.lane or c.perm:
                    n = max(n, 4)
                if ew & c.rd:
                    n = max(n, 2)
        if c.kind in ('vmem', 'ds') and p.dot and (vw & c.rd):
            n = max(n, 3)
        if c.kind == 'vmem' and (sw & c.rd):
            n = max(n, 5)
        if c.kind == 'salu' and (sw & c.rd):
            n = max(n, 1)
    if p.kind == 'mfma':
        big = {4: 8, 8: 12}[p.passes]
        if c.kind == 'mfma':
            if p.wr & c.ab:
                n = max(n, big)
            if p.wr & c.c:
                if not (p.wr == c.c and p.passes == c.passes):
                    n = max(n, {4: 6, 8: 10}[p.passes])
            elif p.wr & c.wr:
                if not (p.wr == c.wr and p.passes == c.passes):
                    n = max(n, {4: 6, 8: 10}[p.passes])
        elif c.kind in ('valu', 'vmem', 'ds'):
            if p.wr & (c.rd | c.wr):
                n = max(n, big)
            if c.kind == 'valu' and (p.c & c.wr):
                n = max(n, {4: 3, 8: 7}[p.passes])
    if p.kind == 'vmem' and getattr(p, 'wide', False):
        if p.data & c.wr:
            n = max(n, 2 if c.kind in ('valu', 'mfma') else 1)
    if p.kind == 'salu' and 'm0' in p.wr and c.kind == 'vmem' and getattr(c, 'lds', False):
        n = max(n, 1)
    return n


def fix_hazards(lines, verbose=False):
    ins = [Ins(l) for l in lines]
    lab = {x.label: i for i, x in enumerate(ins) if x.kind == 'label'}
    preds_br = {}
    for i, x in enumerate(ins):
        if x.kind == 'branch':
            preds_br.setdefault(lab[x.target], []).append(i)
    MAXD = 12

    def preds(i):
        out = []
        if i > 0:
            p = ins[i - 1]
            if not (p.kind == 'end' or (p.kind == 'branch' and p.mn == 's_branch')):
                out.append(i - 1)
        if ins[i].kind == 'label':
            out += preds_br.get(i, [])
        return out

    def ws(x):
        if x.kind in ('label', 'none'):
            return 0
        return (x.n if x.kind == 'nop' else 1)

    def hold(x):
        if x.kind == 'mfma':
            return 3 if x.mn.startswith('v_smfmac') else 2
        if x.kind == 'valu' and (x.trans or x.perm):
            return 2
        return 0

    def dist(path):
        t = 0
        tm = path[0].passes if path[0].kind == 'mfma' else 0
        tv = hold(path[0])
        prev = path[0]
        for x in path[1:]:
            if x.kind in ('label', 'none'):
                continue
            t += ws(prev) + x.pre
            if x.kind in ('mfma', 'valu'):
                t = max(t, tv)
            if x.kind == 'mfma':
                t = max(t, tm)
                tm = t + x.passes
            if x.kind in ('mfma', 'valu'):
                tv = t + hold(x)
            prev = x
        return t - 1

    changed = True
    total = 0
    while changed:
        changed = False
        for i, c in enumerate(ins):
            if c.kind in ('label', 'none', 'nop', 'end', 'branch'):
                continue
            worst = 0
            stack = [(j, c.pre, [c]) for j in preds(i)]
            while stack:
                j, d, path = stack.pop()
                if d >= MAXD or len(path) > 40:
                    continue
                p = ins[j]
                path = [p] + path
                n = need(p, c)
                if n > d:
                    dd = dist(path) if p.kind == 'mfma' or c.kind == 'mfma' else d
                    if n - dd > worst:
                        worst = n - dd
                        why = p.text
                d2 = d + ws(p) + p.pre
                for k in preds(j):
                    stack.append((k, d2, path))
            if worst > 0:
                c.pre += worst
                c.why = why
                total += worst
                changed = True
    out = []
    for x in ins:
        if x.pre:
            out.append('    s_nop %d' % (x.pre - 1) + ('   ; hz: ' + x.why.split(';')[0].strip() if verbose else ''))
        out.append(x.text)
    return out, total


class Asm:
    def __init__(self):
        self.lines = []
        self.uid = 0

    def __call__(self, s):
        for l in s.split('\n'):
            l = l.strip()
            if not l:
                continue
            self.lines.append(l if l.endswith(':') else '    ' + l)

    def label(self, name):
        self.lines.append(name + ':')

    def newlabel(self, prefix='L'):
        self.uid += 1
        return '%s_%d' % (prefix, self.uid)

    def c(self, s):
        self.lines.append('    ; ' + s)


def v(a, n=1):
    return 'v%d' % a if n == 1 else 'v[%d:%d]' % (a, a + n - 1)


def a(a_, n=1):
    return 'a%d' % a_ if n == 1 else 'a[%d:%d]' % (a_, a_ + n - 1)


def s(a_, n=1):
    return 's%d' % a_ if n == 1 else 's[%d:%d]' % (a_, a_ + n - 1)


class Alloc:
    def __init__(self, start, end):
        self.p, self.end = start, end
        self.names = {}

    def __call__(self, name, n=1, align=1):
        if n >= 2:
            align = max(align, 2)
        self.p = (self.p + align - 1) // align * align
        r = self.p
        self.p += n
        assert self.p <= self.end, 'out of registers at ' + name
        self.names[name] = (r, n)
        return r
```

```python
import struct, math
from asmlib import *
from layout import *

NAME = 'gated_mix__memory_aug_recurrent_mem_tr__moe_arch_mod__prompt'


def f32(x):
    return '0x%08x' % struct.unpack('<I', struct.pack('<f', x))[0]


P_X, P_MEM0, P_WQ, P_WK, P_WV, P_WO = 64, 66, 68, 70, 72, 74
P_WR, P_WG, P_WU, P_WD, P_GW, P_OUT, P_DBG, P_WS = 80, 82, 84, 86, 88, 90, 92, 94
WS, DBG = 4, 8
SRD_A, SRD_B, SRD_C, SRD_D, SRD_E = 12, 16, 20, 24, 28
sW, sG, sC, sTO = 32, 33, 34, 35
sX = 100
sPure = 101
NPURE = 32
sR = 63
sT0 = 76
TIMEOUT = 1 << 20
LOG2E = math.log2(math.e)


def srd(A, d, p, nbytes):
    A('s_mov_b32 s%d, s%d' % (d, p))
    A('s_and_b32 s%d, s%d, 0xffff' % (d + 1, p + 1))
    A('s_mov_b32 s%d, 0x%x' % (d + 2, nbytes))
    A('s_mov_b32 s%d, 0x20000' % (d + 3))


def S4(d):
    return s(d, 4)


def timeout_stub(A, back):
    A('s_sub_u32 s%d, s%d, 1' % (sTO, sTO))
    A('s_cbranch_scc0 %s' % back)
    A('s_endpgm')


def sum8(A, vx, sa, sb):
    A('v_readlane_b32 s%d, v%d, 0' % (sa, vx))
    for i in range(1, 8):
        A('v_readlane_b32 s%d, v%d, %d' % (sb, vx, i))
        A('s_add_u32 s%d, s%d, s%d' % (sa, sa, sb))


def init_load(A, t0, t1):
    A('v_lshlrev_b32 v%d, 5, v0' % t1)
    A('buffer_load_dword v%d, v%d, %s, 0 offen sc1' % (t0, t1, S4(DBG)))


def wait_init(A, t0, t1, sa, sb, issued=False):
    L, L2 = A.newlabel('L_wi'), A.newlabel('L_wiok')
    L3 = A.newlabel('L_wi')
    if issued:
        A('s_branch ' + L3)
    A.label(L)
    init_load(A, t0, t1)
    A.label(L3)
    A('s_waitcnt vmcnt(0)')
    sum8(A, t0, sa, sb)
    A('s_cmp_ge_u32 s%d, 256' % sa)
    A('s_cbranch_scc1 %s' % L2)
    A('s_sleep 16')
    timeout_stub(A, L)
    A.label(L2)
    A('s_lshr_b32 s%d, s%d, 5' % (sa, sR))
    A('v_readlane_b32 s%d, v%d, s%d' % (sPure, t0, sa))


def poll_data(A, loads, regs, tmp, sleep):
    L, L2 = A.newlabel('L_pd'), A.newlabel('L_pdok')
    A.label(L)
    for o in loads:
        A(o)
    A('s_waitcnt vmcnt(0)')
    maxall(A, regs, tmp)
    A('v_cmp_eq_u32 vcc, -1, v%d' % tmp)
    A('s_cbranch_vccz %s' % L2)
    if sleep:
        A('s_sleep %d' % sleep)
    timeout_stub(A, L)
    A.label(L2)


def maxall(A, regs, tmp):
    regs = list(regs)
    A('v_max_u32 v%d, v%d, v%d' % (tmp, regs[0], regs[-1]))
    regs = regs[1:-1]
    while regs:
        x = regs[:2]
        regs = regs[2:]
        A('v_max3_u32 v%d, v%d, v%d, v%d' % (tmp, tmp, x[0], x[-1]))


def wait_flags(A, vf, vaddr, need, sleep=1):
    L, L2 = A.newlabel('L_wf'), A.newlabel('L_wfok')
    A.label(L)
    A('buffer_load_dword v%d, v%d, %s, 0 offen sc1' % (vf, vaddr, S4(WS)))
    A('s_waitcnt vmcnt(0)')
    A('v_cmp_gt_i32 vcc, %s, v%d' % (need, vf))
    A('s_cbranch_vccz %s' % L2)
    if sleep:
        A('s_sleep %d' % sleep)
    timeout_stub(A, L)
    A.label(L2)


def lane0_addr(A, dst, sval, tmp):
    A('v_mov_b32 v%d, 0x%x' % (tmp, OOB))
    A('v_mov_b32 v%d, s%d' % (dst, sval))
    A('v_cmp_eq_u32 vcc, 0, v0')
    A('v_cndmask_b32 v%d, v%d, v%d, vcc' % (dst, tmp, dst))


def bits(A, dst, terms, tmp, base=None):
    first = True
    for (si, wd, so) in terms:
        A('v_bfe_u32 v%d, v0, %d, %d' % (tmp, si, wd))
        if first:
            A('v_lshlrev_b32 v%d, %d, v%d' % (dst, so, tmp))
            first = False
        else:
            A('v_lshl_add_u32 v%d, v%d, %d, v%d' % (dst, tmp, so, dst))
    if base is not None:
        A('v_add_u32 v%d, %s, v%d' % (dst, base, dst))


def tstamp(A, opt, slot, t0, t1, sa, now=True):
    if not opt.get('prof'):
        return
    if now:
        A('s_memrealtime s[78:79]')
    A('s_lshl_b32 s%d, s%d, 2' % (sa, sR))
    A('s_add_u32 s%d, s%d, s%d' % (sa, sa, sW))
    A('s_lshl_b32 s%d, s%d, 6' % (sa, sa))
    A('s_add_u32 s%d, s%d, 0x%x' % (sa, sa, PROF + 2 * MB + slot * 4))
    A('s_waitcnt lgkmcnt(0)')
    A('v_mov_b32 v%d, s78' % t0)
    A('v_mov_b32 v%d, 0' % t1)
    A('buffer_store_dword v%d, v%d, %s, s%d offen' % (t0, t1, S4(WS), sa))
    A('s_memtime s[78:79]')
    A('s_add_u32 s%d, s%d, 0x100000' % (sa, sa))
    A('s_waitcnt lgkmcnt(0)')
    A('v_mov_b32 v%d, s78' % t0)
    A('buffer_store_dword v%d, v%d, %s, s%d offen' % (t0, t1, S4(WS), sa))


def cap_vm(A, start, already=28):
    out, n, done = [], already, False
    for l in A.lines[start:]:
        t = l.strip()
        if t.startswith('s_waitcnt') and 'vmcnt' in t:
            done = True
        if not done and t.startswith('buffer_'):
            n += 1
            if n > 60:
                out.append('    s_waitcnt vmcnt(59)')
        out.append(l)
    A.lines[start:] = out


def help_kv(A, opt, ptr, sh, t0, t1, sa):
    hk = opt.get('hk', 0)
    if not hk:
        return
    srd(A, SRD_C, ptr, 8 * MB)
    bits(A, t1, [(1, 3, 13), (4, 2, 20), (0, 1, 7)], t0)
    A('s_lshl_b32 s%d, s%d, 16' % (sa, sW))
    A('v_add_u32 v%d, s%d, v%d' % (t1, sa, t1))
    A('s_lshl_b32 s%d, s%d, 8' % (sa, sh))
    A('s_add_u32 s%d, s%d, 0x400000' % (sa, sa))
    for i in range(4):
        A('buffer_load_dword v252, v%d, %s, s%d offen%s' % (t1, S4(SRD_C), sa, ' nt' if hk == 2 else ''))
        A('s_add_u32 s%d, s%d, 0x40000' % (sa, sa))
```

```python
from common import *
from workers import load_weights, vote


def orole(A, opt):
    S = Alloc(36, 63)
    sI = S('i')
    sA, sB, sCc, sD, sSeg, sBase, sRot, sHi, sPrev, sCnt = [S(n) for n in 'a b cc d seg base rot hi prev cnt'.split()]
    sIdx = S('idx', 8)
    cvt = lambda d, x, y: A('v_cvt_pk_bf16_f32 v%d, v%d, v%d' % (d, x, y))

    def rnd2(x, y, t):
        cvt(t, x, y)
        A('v_lshlrev_b32 v%d, 16, v%d' % (x, t))
        A('v_and_b32 v%d, s%d, v%d' % (y, sHi, t))

    def sigmoid(d, x):
        A('v_mul_f32 v%d, %s, v%d' % (d, f32(-LOG2E), x))
        A('v_exp_f32 v%d, v%d' % (d, d))
        A('v_add_f32 v%d, 1.0, v%d' % (d, d))
        A('v_rcp_f32 v%d, v%d' % (d, d))

    V = Alloc(1, 252)
    vL16, vL4, vFl, vKey, vRaw = [V(n) for n in 'l16 l4 fl key raw'.split()]
    t0, t1, t2, t3, t4, t5 = [V('t%d' % i) for i in range(6)]
    vAcc = V('acc', 8, 4)
    vPm = V('perm', 32, 4)
    NB = 6
    vRing = V('ring', 32 * NB, 4)
    A.label('L_o')
    cap0 = len(A.lines)
    help_kv(A, opt, P_WV, sI, t0, t1, sA)
    srd(A, SRD_A, P_WR, 2048)
    srd(A, SRD_B, P_X, 4 * MB)
    srd(A, SRD_C, P_GW, 2048)
    srd(A, SRD_D, P_WG, 7 * MB)
    srd(A, SRD_E, P_WU, 7 * MB)
    A('s_mov_b32 s%d, 0xffff0000' % sHi)
    A('v_lshlrev_b32 v%d, 4, v0' % vL16)
    A('v_lshlrev_b32 v%d, 2, v0' % vL4)
    wait_init(A, t0, t1, sA, sB)
    vote(A, sI, t0, t1, t2, sA, sB, sCc, sD, sSeg, sBase)
    tstamp(A, opt, 1, t0, t1, sA)
    if opt.get('chainonly'):
        A('s_endpgm')
    for i in range(2):
        A('buffer_load_dwordx4 %s, v%d, %s, 0 offen offset:%d' % (v(vPm + 4 * i, 4), vL16, S4(SRD_A), 1024 * i))
    for i in range(2):
        A('buffer_load_dwordx4 %s, v%d, %s, 0 offen offset:%d' % (v(vPm + 8 + 4 * i, 4), vL16, S4(SRD_C), 1024 * i))
    bits(A, t2, [(0, 4, 11), (4, 2, 4)], t0)
    A('s_lshl_b32 s%d, s%d, 2' % (sA, sI))
    A('s_add_u32 s%d, s%d, s%d' % (sA, sA, sW))
    A('s_lshl_b32 s%d, s%d, 4' % (sD, sA))
    A('s_lshl_b32 s%d, s%d, 15' % (sA, sA))
    for ks in range(32):
        A('buffer_load_dwordx4 %s, v%d, %s, s%d offen offset:%d' % (a(4 * ks, 4), t2, S4(SRD_B), sA, 64 * ks))
    A('v_lshrrev_b32 v%d, 4, v0' % t0)
    A('v_mul_u32_u24 v%d, %d, v%d' % (t0, 8 * 7168, t0))
    A('v_and_b32 v%d, 15, v0' % t3)
    A('v_lshl_add_u32 v%d, v%d, 4, v%d' % (vRaw, t3, t0))
    A('s_cmp_lt_u32 s%d, 28' % sI)
    A('s_cselect_b32 s%d, 0, 0x%x' % (sB, OOB))
    A('v_add_u32 v%d, s%d, v%d' % (vRaw, sB, vRaw))
    A('s_mul_i32 s%d, s%d, %d' % (sBase, sW, 256 * 7168))
    A('s_lshl_b32 s%d, s%d, 8' % (sA, sI))
    A('s_add_u32 s%d, s%d, s%d' % (sBase, sBase, sA))

    def batch(b):
        for i in range(8):
            A('s_add_u32 s%d, s%d, 0x%x' % (sA, sBase, (32 * (b >> 1) + i) * 7168))
            A('buffer_load_dwordx4 %s, v%d, %s, s%d offen%s' % (v(vRing + 32 * (b % NB) + 4 * i, 4), vRaw, S4((SRD_D, SRD_E)[b & 1]), sA, ' nt' if opt.get('nt', 31) & 4 else ''))
    batch(0); batch(1)
    A('s_lshl_b32 s%d, s%d, 12' % (sA, sW))
    A('v_add_u32 v%d, s%d, v%d' % (t3, sA, vL16))
    bits(A, t4, [(0, 1, 11), (4, 2, 4)], t0, 's%d' % sA)
    A('s_waitcnt vmcnt(48)')
    for i in range(4):
        A('ds_write_b128 v%d, %s offset:%d' % (t3, v(vPm + 4 * i, 4), 1024 * i))
    A('s_waitcnt vmcnt(16) lgkmcnt(0)')
    for k0 in range(0, 32, 8):
        for ks in range(k0, k0 + 8):
            A('ds_read_b128 %s, v%d offset:%d' % (v(vPm + 4 * (ks & 7), 4), t4, 64 * ks))
        A('s_waitcnt lgkmcnt(0)')
        for ks in range(k0, k0 + 8):
            A('v_mfma_f32_16x16x32_bf16 %s, %s, %s, %s' % (v(vAcc, 4), v(vPm + 4 * (ks & 7), 4), a(4 * ks, 4), v(vAcc, 4) if ks else '0'))
    rnd2(vAcc + 1, vAcc, t0)
    sigmoid(t1, vAcc + 1)
    A('v_ashrrev_i32 v%d, 31, v%d' % (t2, vAcc))
    A('v_or_b32 v%d, 0x80000000, v%d' % (t2, t2))
    cvt(t1, t1, t1)
    A('v_and_b32 v%d, s%d, v%d' % (t1, sHi, t1))
    A('v_xor_b32 v%d, v%d, v%d' % (t2, t2, vAcc))
    A('s_sub_u32 s%d, 2047, s%d' % (sA, sD))
    A('v_sub_u32 v%d, s%d, v0' % (t3, sA))
    A('v_and_or_b32 v%d, v%d, s%d, v%d' % (t2, t2, sHi, t3))
    A('v_mov_b32 v%d, 0x%x' % (t3, OOB))
    A('v_cmp_gt_u32 vcc, 16, v0')
    A('v_cndmask_b32 v%d, v%d, v%d, vcc' % (t3, t3, vL4))
    A('s_lshl_b32 s%d, s%d, 2' % (sA, sD))
    A('s_add_u32 s%d, s%d, 0x%x' % (sB, sA, KEYS))
    A('s_add_u32 s%d, s%d, 0x%x' % (sA, sA, GATE))
    A('buffer_store_dword v%d, v%d, %s, s%d offen sc1' % (t1, t3, S4(WS), sA))
    A('s_waitcnt vmcnt(0)')
    A('buffer_store_dword v%d, v%d, %s, s%d offen sc1' % (t2, t3, S4(WS), sB))
    for b in range(2, NB):
        batch(b)
    A('s_mov_b32 s%d, 0x%x' % (sA, KEYS))
    A('s_mov_b32 s%d, 0x%x' % (sB, KEYS + 4096))
    A('s_waitcnt vmcnt(16)')
    poll_data(A, ['buffer_load_dwordx4 %s, v%d, %s, s%d offen offset:%d sc1' % (v(vPm + 4 * i, 4), vL16, S4(WS), (sA, sB)[i >> 2], 1024 * (i & 3)) for i in range(8)],
              range(vPm, vPm + 32), t0, 16)
    tstamp(A, opt, 3, t0, t1, sA)
    A('s_mov_b32 s%d, 0' % sPrev)
    A('s_mov_b32 s%d, 0' % sCc)
    A('v_mov_b32 v%d, 0' % vKey)
    A.label('L_top')
    A('v_mov_b32 v%d, 0' % t0)
    for i in range(0, 32, 2):
        A('v_subrev_u32 v%d, s%d, v%d' % (t1, sPrev, vPm + i))
        A('v_subrev_u32 v%d, s%d, v%d' % (t2, sPrev, vPm + i + 1))
        A('v_max3_u32 v%d, v%d, v%d, v%d' % (t0, t0, t1, t2))
    for sh in (8, 4, 2, 1):
        A('v_max_u32_dpp v%d, v%d, v%d row_ror:%d row_mask:0xf bank_mask:0xf' % (t0, t0, t0, sh))
    for sw in ('v_permlane32_swap_b32', 'v_permlane16_swap_b32'):
        A('v_mov_b32 v%d, v%d' % (t1, t0))
        A('%s v%d, v%d' % (sw, t0, t1))
        A('v_max_u32 v%d, v%d, v%d' % (t0, t0, t1))
    A('v_readfirstlane_b32 s%d, v%d' % (sA, t0))
    A('s_mov_b32 m0, s%d' % sCc)
    A('s_add_u32 s%d, s%d, s%d' % (sPrev, sPrev, sA))
    A('v_writelane_b32 v%d, s%d, m0' % (vKey, sPrev))
    A('s_add_u32 s%d, s%d, 1' % (sCc, sCc))
    A('s_cmp_lt_u32 s%d, 8' % sCc)
    A('s_cbranch_scc1 L_top')
    bits(A, t1, [(0, 3, 2)], t0)
    A('ds_bpermute_b32 v%d, v%d, v%d' % (t2, t1, vKey))
    A('s_waitcnt lgkmcnt(0)')
    A('v_and_b32 v%d, 0x7ff, v%d' % (t2, t2))
    A('v_sub_u32 v%d, 2047, v%d' % (t2, t2))
    A('v_lshlrev_b32 v%d, 11, v%d' % (t2, t2))
    A('v_lshrrev_b32 v%d, 4, v0' % t0)
    A('v_lshl_add_u32 v%d, v%d, 4, v%d' % (t2, t0, t2))
    A('s_lshl_b32 s%d, s%d, 9' % (sA, sW))
    for ks in range(8):
        A('buffer_load_dwordx4 %s, v%d, %s, s%d offen offset:%d' % (a(128 + 4 * ks, 4), t2, S4(SRD_B), sA, 64 * ks))
    A('s_mov_b32 s%d, 0x05040100' % sCc)
    A('s_mov_b32 s%d, 0x07060302' % sD)
    A('s_waitcnt vmcnt(0)')
    for b in range(16):
        if b >= NB:
            A('s_waitcnt vmcnt(%d)' % (8 * min(NB - 1, 15 - b)))
        r0 = vRing + 32 * (b % NB)
        for t in range(8):
            for p in range(4):
                A('v_perm_b32 v%d, v%d, v%d, s%d' % (vPm + 4 * t + p, r0 + 4 * (2 * p + 1) + (t >> 1), r0 + 4 * (2 * p) + (t >> 1), (sCc, sD)[t & 1]))
            if t:
                acc = a(160 + 32 * (b & 1) + 4 * (t - 1), 4)
                A('v_mfma_f32_16x16x32_bf16 %s, %s, %s, %s' % (acc, a(128 + 4 * (b >> 1), 4), v(vPm + 4 * (t - 1), 4), acc if b > 1 else '0'))
        if b + NB < 16:
            batch(b + NB)
        acc = a(160 + 32 * (b & 1) + 28, 4)
        A('v_mfma_f32_16x16x32_bf16 %s, %s, %s, %s' % (acc, a(128 + 4 * (b >> 1), 4), v(vPm + 28, 4), acc if b > 1 else '0'))
    A('s_lshl_b32 s%d, s%d, 14' % (sA, sW))
    A('v_add_u32 v%d, s%d, v%d' % (t3, sA, vL16))
    A('s_barrier')
    for i in range(16):
        A('ds_write_b128 v%d, %s offset:%d' % (t3, a(160 + 4 * i, 4), 1024 * i))
        if i == 7:
            A('s_waitcnt lgkmcnt(0)')
    A('s_and_b32 s%d, s%d, 1' % (sA, sW))
    A('s_lshl_b32 s%d, s%d, 8' % (sA, sA))
    A('s_lshr_b32 s%d, s%d, 1' % (sB, sW))
    A('s_lshl_b32 s%d, s%d, 3' % (sB, sB))
    A('s_add_u32 s%d, s%d, s%d' % (sA, sA, sB))
    bits(A, t3, [(0, 2, 11), (2, 4, 4)], t0, 's%d' % sA)
    A('s_waitcnt lgkmcnt(0)')
    A('s_barrier')
    for m in range(2):
        for tt in range(2):
            for wv in range(4):
                A('ds_read_b64 %s, v%d offset:%d' % (v(vPm + ((m * 2 + tt) * 4 + wv) * 2, 2), t3, wv * 16384 + m * 8192 + tt * 1024))
        A('s_waitcnt lgkmcnt(0)')
    for q in range(4):
        b0 = vPm + 8 * q
        A('v_pk_add_f32 %s, %s, %s' % (v(b0, 2), v(b0, 2), v(b0 + 2, 2)))
        A('v_pk_add_f32 %s, %s, %s' % (v(b0 + 4, 2), v(b0 + 4, 2), v(b0 + 6, 2)))
        A('v_pk_add_f32 %s, %s, %s' % (v(b0, 2), v(b0, 2), v(b0 + 4, 2)))
        rnd2(b0, b0 + 1, t0)
    for tt in range(2):
        b0 = vPm + 8 * tt
        for j in range(2):
            sigmoid(b0 + 2 + j, b0 + j)
            A('v_mul_f32 v%d, v%d, v%d' % (b0 + j, b0 + j, b0 + 2 + j))
        rnd2(b0, b0 + 1, t0)
        for j in range(2):
            A('v_mul_f32 v%d, v%d, v%d' % (b0 + j, b0 + j, b0 + 16 + j))
    cvt(t1, vPm, vPm + 8)
    cvt(t2, vPm + 1, vPm + 9)
    A('v_min_u32 v%d, -2, v%d' % (t1, t1))
    A('v_min_u32 v%d, -2, v%d' % (t2, t2))
    A('s_and_b32 s%d, s%d, 1' % (sA, sW))
    A('s_lshl_b32 s%d, s%d, 2' % (sA, sA))
    A('s_and_b32 s%d, s%d, 2' % (sB, sW))
    A('s_add_u32 s%d, s%d, s%d' % (sA, sA, sB))
    A('s_mul_i32 s%d, s%d, 7168' % (sA, sA))
    A('s_lshl_b32 s%d, s%d, 8' % (sB, sI))
    A('s_add_u32 s%d, s%d, s%d' % (sA, sA, sB))
    A('s_add_u32 s%d, s%d, 0x%x' % (sA, sA, HH))
    A('s_add_u32 s%d, s%d, 7168' % (sB, sA))
    A('s_cmp_lt_u32 s%d, 28' % sI)
    A('s_cselect_b32 s%d, 0, 0x%x' % (sD, OOB))
    A('v_add_u32 v%d, s%d, v%d' % (t3, sD, vL4))
    A('buffer_store_dword v%d, v%d, %s, s%d offen sc1' % (t1, t3, S4(WS), sA))
    A('buffer_store_dword v%d, v%d, %s, s%d offen sc1' % (t2, t3, S4(WS), sB))
    tstamp(A, opt, 4, t0, t4, sA)
    srd(A, SRD_A, P_WD, 7 * MB)
    A('s_mul_i32 s%d, s%d, %d' % (sBase, sW, 896 * 2048))
    A('s_lshl_b32 s%d, s%d, 6' % (sA, sI))
    A('s_add_u32 s%d, s%d, s%d' % (sBase, sBase, sA))

    load_weights(A, SRD_A, sBase, 2048, lambda gi, i: 64 * gi + 16 * i, [(4, 2, 9), (2, 2, 6), (0, 2, 3)],
                 lambda ksl, pp, tile: (32 * ksl + 4 * pp) * 64 + tile * 32, 14, vRaw, t3, t4, t0, sA, sB, 65536, None, 8, ' nt' if opt.get('nt', 31) & 8 else '')
    A('v_and_b32 v%d, 7, v0' % t0)
    A('v_mul_u32_u24 v%d, 7168, v%d' % (t2, t0))
    A('v_lshrrev_b32 v%d, 4, v0' % t0)
    A('v_lshl_add_u32 v%d, v%d, 4, v%d' % (t2, t0, t2))
    A('s_mul_i32 s%d, s%d, 1792' % (sA, sW))
    A('s_add_u32 s%d, s%d, 0x%x' % (sA, sA, HH))
    poll_data(A, ['buffer_load_dwordx4 %s, v%d, %s, s%d offen offset:%d sc1' % (v(vRing + 4 * ks, 4), t2, S4(WS), sA, 64 * ks) for ks in range(28)],
              range(vRing, vRing + 112), t0, 16)
    A('s_barrier')
    bits(A, t1, [(3, 3, 2)], t0)
    A('ds_bpermute_b32 v%d, v%d, v%d' % (t5, t1, vKey))
    A('s_lshl_b32 s%d, s%d, 11' % (sA, sW))
    A('v_add_u32 v%d, s%d, v%d' % (t3, sA, vL16))
    bits(A, t4, [(2, 1, 10), (0, 2, 8), (3, 3, 4)], t0)
    A('s_waitcnt lgkmcnt(0)')
    A('v_not_b32 v%d, v%d' % (t1, t5))
    A('v_ashrrev_i32 v%d, 31, v%d' % (t1, t1))
    A('v_or_b32 v%d, 0x80000000, v%d' % (t1, t1))
    A('v_xor_b32 v%d, v%d, v%d' % (t5, t5, t1))
    A('v_and_b32 v%d, s%d, v%d' % (t5, sHi, t5))
    sigmoid(t5, t5)
    cvt(t5, t5, t5)
    A('v_and_b32 v%d, s%d, v%d' % (t5, sHi, t5))
    A('s_waitcnt vmcnt(0)')
    for ks in range(28):
        for ct in range(2):
            acc = v(vAcc + 4 * ct, 4)
            A('v_mfma_f32_16x16x32_bf16 %s, %s, %s, %s' % (acc, a((ks * 2 + ct) * 4, 4), v(vRing + 4 * ks, 4), acc if ks else '0'))
    A('ds_write_b128 v%d, %s' % (t3, v(vAcc, 4)))
    A('ds_write_b128 v%d, %s offset:1024' % (t3, v(vAcc + 4, 4)))
    A('s_waitcnt lgkmcnt(0)')
    A('s_barrier')
    for wv in range(4):
        A('ds_read_b128 %s, v%d offset:%d' % (v(vPm + 4 * wv, 4), t4, wv * 2048))
    A('s_waitcnt lgkmcnt(0)')
    for wv in range(1, 4):
        for h in range(2):
            A('v_pk_add_f32 %s, %s, %s' % (v(vPm + 2 * h, 2), v(vPm + 2 * h, 2), v(vPm + 4 * wv + 2 * h, 2)))
    rnd2(vPm, vPm + 1, t0)
    rnd2(vPm + 2, vPm + 3, t0)
    for i in range(4):
        A('v_mul_f32 v%d, v%d, v%d' % (vPm + i, vPm + i, t5))
    cvt(vPm + 4, vPm, vPm + 1)
    cvt(vPm + 5, vPm + 2, vPm + 3)
    A('v_min_u32 v%d, -2, v%d' % (vPm + 4, vPm + 4))
    A('v_min_u32 v%d, -2, v%d' % (vPm + 5, vPm + 5))
    A('v_and_b32 v%d, 0x7ff, v%d' % (t1, vKey))
    A('v_sub_u32 v%d, 2047, v%d' % (t1, t1))
    A('s_cmp_lg_u32 s%d, 0' % sW)
    A('s_cbranch_scc1 L_o_join')
    A('s_lshl_b32 s%d, s%d, 10' % (sA, sI))
    A('s_add_u32 s%d, s%d, 0x%x' % (sA, sA, YY))
    A('v_lshlrev_b32 v%d, 3, v0' % t2)
    A('buffer_store_dwordx2 %s, v%d, %s, s%d offen sc1' % (v(vPm + 4, 2), t2, S4(WS), sA))
    A('buffer_store_dword v%d, v%d, %s, s%d offen offset:512 sc1' % (t1, vL4, S4(WS), sA))

    V = Alloc(1, 256)
    vL16, vFa, vFv, vFn, vWr, vRr, vXa, vLw, vG = [V(n) for n in 'l16 fa fv fn wr rr xa lw g'.split()]
    t0, t1 = V('t0'), V('t1')
    vXv = V('xv', 2)
    vU = V('u', 2)
    vY = V('y', 16, 4)
    vD = V('d', 16, 4)
    vZ = V('z', 12, 4)
    vO = V('o', 64, 4)
    vW = V('w', 128, 4)
    t2, t3 = vXv, vXv + 1
    LW, LRED = 0, 131072
    sTeam, sU, sUn, sNb, sPre = sPrev, sSeg, S('un'), S('nb'), S('pre')
    U0 = opt.get('u0', 48)
    assert U0 % 2 == 0
    A.label('L_o_join')
    tstamp(A, opt, 5, t0, t1, sA)
    srd(A, SRD_A, P_WO, 8 * MB)
    srd(A, SRD_B, P_X, 4 * MB)
    srd(A, SRD_C, P_OUT, 4 * MB)
    A('s_mov_b32 s%d, 0xffff0000' % sHi)
    A('v_lshlrev_b32 v%d, 4, v0' % vL16)
    A('s_add_u32 s%d, s%d, 1' % (sTeam, sC))
    A('s_and_b32 s%d, s%d, 3' % (sTeam, sTeam))
    A('s_lshl_b32 s%d, s%d, 1' % (sTeam, sTeam))
    A('s_lshr_b32 s%d, s%d, 4' % (sA, sI))
    A('s_add_u32 s%d, s%d, s%d' % (sTeam, sTeam, sA))
    A('s_and_b32 s%d, s%d, 15' % (sI, sI))
    A('s_and_b32 s%d, s%d, 7' % (sRot, sI))
    A('s_barrier')
    for hl in range(8):
        A('s_add_u32 s%d, s%d, %d' % (sA, sRot, hl))
        A('s_and_b32 s%d, s%d, 7' % (sA, sA))
        A('s_lshl_b32 s%d, s%d, 3' % (sB, sW))
        A('s_add_u32 s%d, s%d, s%d' % (sA, sA, sB))
        A('s_lshl_b32 s%d, s%d, 18' % (sA, sA))
        A('s_lshl_b32 s%d, s%d, 7' % (sB, sI))
        A('s_add_u32 s%d, s%d, s%d' % (sIdx + hl, sA, sB))
    vRaw, vTr = vFa, vFv
    bits(A, vRaw, [(3, 3, 11), (0, 3, 4)], t0)
    A('s_lshl_b32 s%d, s%d, 13' % (sA, sW))
    A('s_add_u32 s%d, s%d, %d' % (sA, sA, LRED))
    A('v_add_u32 v%d, s%d, v%d' % (vWr, sA, vL16))
    bits(A, vTr, [(2, 1, 11), (4, 2, 9), (3, 1, 7), (0, 2, 3)], t0, 's%d' % sA)
    A('s_lshl_b32 s%d, s%d, 15' % (sA, sW))
    A('v_add_u32 v%d, s%d, v%d' % (vLw, sA, vL16))
    home = lambda ks, i: (a(8 * ks + 4 * i, 4) if i < 2 else v(vW + 4 * ks, 4) if i == 2 else v(vO + 4 * (ks & 15), 4))
    home2 = lambda ks, i, pp: (a(8 * ks + 4 * i + 2 * pp, 2) if i < 2 else v(vW + 4 * ks + 2 * pp, 2) if i == 2 else v(vD + 4 * (ks & 1) + 2 * pp, 2))

    def wissue(ks):
        for i in range(4):
            A('s_add_u32 s%d, s%d, 0x%x' % (sB, sIdx + (ks >> 2), (32 * (ks & 3) + 8 * i) * 2048))
            A('buffer_load_dwordx4 %s, v%d, %s, s%d offen%s' % (home(ks, i), vRaw, S4(SRD_A), sB, ' nt' if opt.get('nt', 31) & 16 else ''))
    DEP = opt.get('depo', 4)
    for ks in range(DEP):
        wissue(ks)
    for ks in range(32):
        A('s_waitcnt vmcnt(%d)' % (4 * (min(32, ks + DEP) - 1 - ks)))
        sl = (ks & 1) * 4096
        for i in range(4):
            A('ds_write_b128 v%d, %s offset:%d' % (vWr, home(ks, i), sl + i * 1024))
        if ks + DEP < 32:
            wissue(ks + DEP)
        if ks:
            A('s_waitcnt lgkmcnt(4)')
            A('ds_write_b128 v%d, %s offset:%d' % (vLw, v(vD + 4 * ((ks - 1) & 1), 4), (ks - 1) * 1024))
        for ct in range(4):
            for pp in range(2):
                A('ds_read_b64_tr_b16 %s, v%d offset:%d' % (home2(ks, ct, pp), vTr, sl + 2 * pp * 128 + ct * 32))
    A('s_waitcnt lgkmcnt(0)')
    A('ds_write_b128 v%d, %s offset:%d' % (vLw, v(vD + 4, 4), 31 * 1024))
    tstamp(A, opt, 6, t0, t1, sA)
    A('s_lshl_b32 s%d, s%d, 11' % (sA, sI))
    A('s_add_u32 s%d, s%d, 0x%x' % (sA, sA, YY))
    bits(A, t1, [(3, 1, 10), (0, 3, 3)], t0)
    A('v_lshlrev_b32 v%d, 2, v0' % t2)
    poll_data(A, ['buffer_load_dwordx2 %s, v%d, %s, s%d offen offset:%d sc1' % (v(vY + 2 * j, 2), t1, S4(WS), sA, 64 * j) for j in range(8)]
              + ['buffer_load_dword v%d, v%d, %s, s%d offen offset:512 sc1' % (t3, t2, S4(WS), sA)], list(range(vY, vY + 16)) + [t3], t0, 16)
    for j in range(8):
        A('v_readlane_b32 s%d, v%d, %d' % (sIdx + j, t3, j))
    A('s_lshl_b32 s%d, s%d, 2' % (sA, sX))
    A('s_add_u32 s%d, s%d, s%d' % (sA, sA, sW))
    A('s_lshl_b32 s%d, s%d, 10' % (sA, sA))
    A('s_add_u32 s%d, s%d, 0x%x' % (sA, sA, F_O))
    bits(A, vFa, [(0, 3, 7)], t0, 's%d' % sA)
    A('s_lshl_b32 s%d, s%d, 12' % (sA, sW))
    A('s_add_u32 s%d, s%d, %d' % (sA, sA, LRED))
    A('v_and_b32 v%d, 0x30, v0' % t0)
    A('v_xor_b32 v%d, v%d, v%d' % (t0, t0, vL16))
    A('v_add_u32 v%d, s%d, v%d' % (vWr, sA, t0))
    A('s_lshl_b32 s%d, s%d, 2' % (sA, sW))
    A('v_lshrrev_b32 v%d, 4, v0' % t0)
    A('v_add_u32 v%d, s%d, v%d' % (t0, sA, t0))
    A('v_and_b32 v%d, 15, v0' % t1)
    A('v_xor_b32 v%d, v%d, v%d' % (t0, t0, t1))
    A('v_lshlrev_b32 v%d, 4, v%d' % (t0, t0))
    A('v_lshl_add_u32 v%d, v%d, 8, v%d' % (t0, t1, t0))
    A('v_add_u32 v%d, %d, v%d' % (vRr, LRED, t0))
    A('s_lshl_b32 s%d, s%d, 13' % (sA, sW))
    A('s_lshl_b32 s%d, s%d, 7' % (sB, sI))
    A('s_add_u32 s%d, s%d, s%d' % (sA, sA, sB))
    bits(A, vXa, [(4, 2, 11), (0, 4, 3)], t0, 's%d' % sA)
    A('v_mov_b32 v%d, 0' % vFv)
    A('s_cmp_lt_u32 s%d, 2' % sTeam)
    A('s_cselect_b32 s%d, 0, %d' % (sUn, U0))
    A('s_add_u32 s%d, s%d, s%d' % (sUn, sUn, sTeam))
    A('s_mov_b32 s%d, 0' % sPre)
    A('s_mov_b32 s%d, 0' % sCnt)
    A('s_waitcnt lgkmcnt(0)')
    A('s_barrier')

    def ubase(dst, u):
        return ['s_lshr_b32 s%d, s%d, 1' % (dst, u), 's_lshl_b32 s%d, s%d, 18' % (dst, dst), 's_and_b32 s%d, s%d, 1' % (sA, u),
                's_lshl_b32 s%d, s%d, 12' % (sA, sA), 's_add_u32 s%d, s%d, s%d' % (dst, dst, sA), 's_lshl_b32 s%d, s%d, 16' % (sA, sW),
                's_add_u32 s%d, s%d, s%d' % (dst, dst, sA), 's_add_u32 s%d, s%d, 0x%x' % (dst, dst, OO)]

    def hbase(base, hl):
        return ['s_add_u32 s%d, s%d, %d' % (sB, sRot, hl), 's_and_b32 s%d, s%d, 7' % (sB, sB), 's_lshl_b32 s%d, s%d, 13' % (sB, sB),
                's_add_u32 s%d, s%d, s%d' % (sB, sB, base)]
    old_ = lambda ks: 'buffer_load_dwordx4 %s, v%d, %s, s%d offen offset:%d sc1' % (v(vO + 4 * (ks & 15), 4), vL16, S4(WS), sB, (ks & 3) * 1024)
    zrd = lambda ks: 'ds_read_b128 %s, v%d offset:%d' % (v(vZ + 4 * (ks % 3), 4), vLw, ks * 1024)

    A('.p2align 6')
    A.label('L_o_loop')
    A('s_mov_b32 s%d, s%d' % (sU, sUn))
    A('s_cmp_ge_u32 s%d, 128' % sU)
    A('s_cbranch_scc1 L_o_end')
    A('s_cmp_lt_u32 s%d, %d' % (sU, U0))
    A('s_cselect_b32 s%d, 2, 6' % sA)
    A('s_add_u32 s%d, s%d, s%d' % (sUn, sU, sA))
    for o in ubase(sBase, sU):
        A(o)
    A('s_cmp_eq_u32 s%d, 1' % sPre)
    A('s_cbranch_scc1 L_o_go')
    A('s_lshr_b32 s%d, s%d, 1' % (sD, sU))
    A('s_add_u32 s%d, s%d, 1' % (sD, sD))
    wait_flags(A, vFv, vFa, 's%d' % sD, opt.get('osl', 2))
    for ks in range(16):
        if ks & 3 == 0:
            for o in hbase(sBase, ks >> 2):
                A(o)
        A(old_(ks))
    A('v_mov_b32 v%d, 0x%x' % (t0, OOB))
    A('buffer_load_dword v%d, v%d, %s, 0 offen' % (vFn, t0, S4(WS)))
    A.label('L_o_go')
    A(zrd(0)); A(zrd(1))
    A('s_lshr_b32 s%d, s%d, 1' % (sD, sUn))
    A('s_add_u32 s%d, s%d, 1' % (sD, sD))
    A('v_cmp_gt_i32 vcc, s%d, v%d' % (sD, vFv))
    A('s_lshl_b32 s%d, s%d, 15' % (sCc, sU))
    A('s_cmp_lg_u64 vcc, 0')
    A('s_cselect_b32 s%d, 0, 0x%x' % (sA, OOB))
    A('buffer_load_dword v%d, v%d, %s, s%d offen sc1' % (vFn, vFa, S4(WS), sA))
    A('s_lshl_b32 s%d, s%d, 2' % (sA, sU))
    A('s_add_u32 s%d, s%d, s%d' % (sA, sA, sW))
    A('s_lshl_b32 s%d, s%d, 2' % (sA, sA))
    A('v_lshrrev_b32 v%d, 4, v0' % t1)
    A('v_add_u32 v%d, s%d, v%d' % (t1, sA, t1))
    A('v_lshlrev_b32 v%d, 2, v%d' % (t0, t1))
    A('s_mov_b32 s%d, 0x%x' % (sA, GATE))
    A('buffer_load_dwordx2 %s, v%d, %s, s%d offen' % (v(vXv, 2), vXa, S4(SRD_B), sCc))
    A('buffer_load_dword v%d, v%d, %s, s%d offen sc1' % (vG, t0, S4(WS), sA))
    upd = ['v_mov_b32 v%d, 0' % vU, 'v_mov_b32 v%d, 0' % (vU + 1)]
    for j in range(8):
        upd += ['v_cmp_eq_u32 vcc, s%d, v%d' % (sIdx + j, t1), None, 'v_cndmask_b32 v%d, v%d, v%d, vcc' % (vU, vU, vY + 2 * j),
                'v_cndmask_b32 v%d, v%d, v%d, vcc' % (vU + 1, vU + 1, vY + 2 * j + 1)]
    for ks in range(32):
        A('s_waitcnt vmcnt(%d) lgkmcnt(1)' % (19 if ks < 16 else 15) if ks < 31 else 's_waitcnt vmcnt(15) lgkmcnt(0)')
        extra = []
        if ks == 16:
            A('v_max_i32 v%d, v%d, v%d' % (vFv, vFv, vFn))
            A('v_cmp_gt_i32 vcc, s%d, v%d' % (sD, vFv))
            extra = ubase(sNb, sUn) + ['s_cmp_eq_u64 vcc, 0', 's_cselect_b32 s%d, 1, 0' % sPre, 's_cselect_b32 s%d, s%d, 0x%x' % (sNb, sNb, OOB)]
        if ks & 3 == 0:
            extra += hbase(sBase if ks < 16 else sNb, ((ks + 16) >> 2) & 7)
        for ct in range(4):
            acc = v(vD + 4 * ct, 4)
            src = home(ks, ct) if ct < 3 else v(vZ + 4 * (ks % 3), 4)
            A('v_mfma_f32_16x16x32_bf16 %s, %s, %s, %s' % (acc, src, v(vO + 4 * (ks & 15), 4), acc if ks else '0'))
            if ct == 0 and ks + 2 < 32:
                A(zrd(ks + 2))
            n_ = (len(extra) + 2 - ct) // (3 - ct) if ct < 3 else 0
            for o in extra[:n_]:
                A(o)
            extra = extra[n_:]
            if 2 <= ks < 16 and ct in (1, 2):
                for o in upd[:2]:
                    if o:
                        A(o)
                upd = upd[2:]
        A(old_(ks + 16))
    assert not upd
    vB, vR = vZ, vD
    for h in range(2):
        A('v_lshlrev_b32 v%d, 16, v%d' % (vB + 2 * h, vXv + h))
        A('v_and_b32 v%d, s%d, v%d' % (vB + 2 * h + 1, sHi, vXv + h))
        A('v_lshlrev_b32 v%d, 16, v%d' % (vB + 8 + 2 * h, vU + h))
        A('v_and_b32 v%d, s%d, v%d' % (vB + 8 + 2 * h + 1, sHi, vU + h))
    for i in range(4):
        A('ds_write_b128 v%d, %s offset:%d' % (vWr, v(vD + 4 * i, 4), 1024 * i))
        A('v_xor_b32 v%d, 0x%x, v%d' % (vWr, (0x40, 0xc0, 0x40, 0x40c0)[i], vWr))
    for h in range(2):
        A('v_pk_add_f32 %s, %s, %s' % (v(vB + 2 * h, 2), v(vB + 2 * h, 2), v(vB + 8 + 2 * h, 2)))
        rnd2(vB + 2 * h, vB + 2 * h + 1, t0)
    A('v_sub_f32 v%d, 1.0, v%d' % (t1, vG))
    cvt(t1, t1, t1)
    A('v_and_b32 v%d, s%d, v%d' % (t1, sHi, t1))
    A('s_waitcnt lgkmcnt(0)')
    A('s_barrier')
    for wv in range(4):
        A('ds_read_b128 %s, v%d offset:%d' % (v(vR + 4 * wv, 4), vRr, wv * 4096))
    for i in range(4):
        A('v_mul_f32 v%d, v%d, v%d' % (vB + i, vB + i, t1))
    rnd2(vB, vB + 1, t0)
    rnd2(vB + 2, vB + 3, t0)
    A('v_xor_b32 v%d, 0x4000, v%d' % (vRr, vRr))
    for wv in range(1, 4):
        A('s_waitcnt lgkmcnt(%d)' % (3 - wv))
        for h in range(2):
            A('v_pk_add_f32 %s, %s, %s' % (v(vR + 2 * h, 2), v(vR + 2 * h, 2), v(vR + 4 * wv + 2 * h, 2)))
    rnd2(vR, vR + 1, t0)
    rnd2(vR + 2, vR + 3, t0)
    for i in range(4):
        A('v_mul_f32 v%d, v%d, v%d' % (vR + i, vR + i, vG))
    rnd2(vR, vR + 1, t0)
    rnd2(vR + 2, vR + 3, t0)
    for h in range(2):
        A('v_pk_add_f32 %s, %s, %s' % (v(vR + 2 * h, 2), v(vR + 2 * h, 2), v(vB + 2 * h, 2)))
        cvt(vU + h, vR + 2 * h, vR + 2 * h + 1)
    A('buffer_store_dwordx2 %s, v%d, %s, s%d offen' % (v(vU, 2), vXa, S4(SRD_C), sCc))
    if opt.get('prof'):
        A('s_add_u32 s%d, s%d, 1' % (sCnt, sCnt))
        A('s_cmp_lg_u32 s%d, 3' % sC)
        A('s_cbranch_scc1 L_o_loop')
        for sg, sl_ in ((4, 9), (16, 11)):
            Lx = A.newlabel('L_pf')
            A('s_cmp_lg_u32 s%d, %d' % (sCnt, sg))
            A('s_cbranch_scc1 ' + Lx)
            tstamp(A, opt, sl_, t0, t1, sA)
            A('s_waitcnt vmcnt(0)')
            A.label(Lx)
    A('s_branch L_o_loop')
    A.label('L_o_end')
    tstamp(A, opt, 7, t0, t1, sA)
    if opt.get('prof'):
        A('s_mov_b32 s78, s%d' % sCnt)
        tstamp(A, opt, 10, t0, t1, sA, now=False)
    A('s_endpgm')
```

```python
from common import *

XROW = 2064
XBUF = 32 * XROW
LSCR = 2 * XBUF


def load_weights(A, srdw, sBase, row_bytes, rows_of, tr_lane_terms, tr_off, ngroups, vRaw, vWr, vTr, t0, sa, sb,
                 scr, after_first=None, pre_out=0, mod=''):
    bits(A, vRaw, [(0, 2, 4)], t0)
    A('v_lshrrev_b32 v%d, 2, v0' % t0)
    A('s_mov_b32 s%d, %d' % (sa, row_bytes))
    A('v_mul_lo_u32 v%d, v%d, s%d' % (t0, t0, sa))
    A('v_add_u32 v%d, v%d, v%d' % (vRaw, vRaw, t0))
    A('s_lshl_b32 s%d, s%d, 12' % (sa, sW))
    A('s_add_u32 s%d, s%d, %d' % (sa, sa, scr))
    bits(A, vWr, [(0, 6, 4)], t0, 's%d' % sa)
    bits(A, vTr, tr_lane_terms, t0, 's%d' % sa)
    depth = min(ngroups, (60 - pre_out) // 4)

    def issue(gi):
        for i in range(4):
            A('s_add_u32 s%d, s%d, 0x%x' % (sb, sBase(gi) if callable(sBase) else sBase, rows_of(gi, i) * row_bytes))
            A('buffer_load_dwordx4 %s, v%d, %s, s%d offen%s' % (a(16 * gi + 4 * i, 4), vRaw, S4(srdw), sb, mod))
    for gi in range(depth):
        issue(gi)
    issued = depth
    for gi in range(ngroups):
        A('s_waitcnt vmcnt(%d)' % ((issued - 1 - gi) * 4))
        if gi == 0 and after_first:
            after_first()
        while issued < ngroups and issued - (gi + 1) < 14:
            issue(issued)
            issued += 1
        for i in range(4):
            A('ds_write_b128 v%d, %s offset:%d' % (vWr, a(16 * gi + 4 * i, 4), i * 1024))
        for ksl in range(2):
            for tile in range(2):
                for pp in range(2):
                    A('ds_read_b64_tr_b16 %s, v%d offset:%d' % (a(16 * gi + (ksl * 2 + tile) * 4 + 2 * pp, 2), vTr, tr_off(ksl, pp, tile)))
        A('s_waitcnt lgkmcnt(0)')


def sel_frag(A, dst, et, t0, t1):
    A('v_bfe_u32 v%d, v0, 2, 2' % t0)
    A('v_lshrrev_b32 v%d, 4, v0' % t1)
    A('v_cmp_eq_u32 vcc, v%d, v%d' % (t0, t1))
    A('v_mov_b32 v%d, 0x%x' % (t1, 0x3f80 << (16 * et)))
    A('v_cndmask_b32 v%d, 0, v%d, vcc' % (t1, t1))
    A('v_and_b32 v%d, 3, v0' % t0)
    for i in range(4):
        A('v_cmp_eq_u32 vcc, %d, v%d' % (i, t0))
        A('v_cndmask_b32 v%d, 0, v%d, vcc' % (dst + i, t1))


def proj(A, opt, kind):
    P = 'L_' + kind
    V = Alloc(1, 252)
    vL16, vRd, vRdSum, vFl, vArm = [V(n) for n in 'l16 rd rdsum fl arm'.split()]
    t0, t1, t2, t3 = V('t0'), V('t1'), V('t2'), V('t3')
    vX = V('x', 32, 4)
    vD = V('d', 16, 4)
    vF = V('f', 8, 4)
    vJ = V('junk', 4, 4)
    S = Alloc(36, 63)
    sH, sSeg, sXo, sM, sMsum, sOut, sOut2, sArm, sPf, sA, sB, sCc = [S(n) for n in 'h seg xo m msum out out2 arm pf a b cc'.split()]
    base = {'k': 16, 'v': 20, 'q': 24}[kind]
    A.label(P)
    if kind == 'q' and opt.get('chainonly'):
        A('s_endpgm')
    cap0 = len(A.lines)
    srd(A, SRD_A, {'k': P_WK, 'v': P_WV, 'q': P_WQ}[kind], 8 * MB)
    srd(A, SRD_B, P_X, 4 * MB)
    assert sH == 36
    if kind == 'q':
        help_kv(A, opt, P_WK, sH, t0, t1, sA)
    A('v_lshlrev_b32 v%d, 4, v0' % vL16)
    A('s_lshl_b32 s%d, s%d, 7' % (sA, sH))
    if kind == 'q':
        A('s_add_u32 s%d, s%d, 0x%x' % (sA, sA, F_O))
        A('s_cmp_eq_u32 s%d, 0' % sW)
        A('s_cselect_b32 s%d, 8, 0' % sB)
        bits(A, vFl, [(0, 3, 12)], t0, 's%d' % sA)
        A('v_mov_b32 v%d, 0x%x' % (t0, OOB))
        A('v_cmp_gt_u32 vcc, s%d, v0' % sB)
        A('v_cndmask_b32 v%d, v%d, v%d, vcc' % (vFl, t0, vFl))
    else:
        A('s_lshl_b32 s%d, s%d, 1' % (sA, sA))
        A('s_add_u32 s%d, s%d, 0x%x' % (sA, sA, F_KV + (128 if kind == 'v' else 0)))
        A('s_cmp_eq_u32 s%d, 0' % sW)
        A('s_cselect_b32 s%d, 2, 0' % sB)
        bits(A, vFl, [(0, 1, 13)], t0, 's%d' % sA)
        A('v_mov_b32 v%d, 0x%x' % (t0, OOB))
        A('v_cmp_gt_u32 vcc, s%d, v0' % sB)
        A('v_cndmask_b32 v%d, v%d, v%d, vcc' % (vFl, t0, vFl))
    npre = 1
    A('v_and_b32 v%d, 15, v0' % t0)
    A('v_mul_u32_u24 v%d, %d, v%d' % (vRd, XROW, t0))
    A('v_lshrrev_b32 v%d, 4, v0' % t0)
    A('v_lshl_add_u32 v%d, v%d, 8, v%d' % (vRd, t0, vRd))
    A('v_lshlrev_b32 v%d, 1, v%d' % (vRdSum, vRd))
    A('v_add_u32 v%d, %d, v%d' % (vRdSum, XBUF, vRdSum))
    A('s_mul_i32 s%d, s%d, %d' % (sM, sW, 8 * XROW))
    A('s_lshl_b32 s%d, s%d, 1' % (sMsum, sM))
    A('s_add_u32 s%d, s%d, %d' % (sMsum, sMsum, XBUF))
    A('s_lshl_b32 s%d, s%d, 14' % (sXo, sW))

    def dma_row(i):
        return ['s_add_u32 m0, s%d, %d' % (sM, i * XROW), 's_add_u32 s%d, s%d, %d' % (sA, sXo, i * 2048),
                'buffer_load_dwordx4 v%d, %s, s%d offen lds' % (vL16, S4(SRD_B), sA),
                'buffer_load_dwordx4 v%d, %s, s%d offen offset:1024 lds' % (vL16, S4(SRD_B), sA)]
    for i in range(8):
        for o in dma_row(i):
            A(o)
    npre += 16
    A('s_sub_u32 s%d, s%d, s%d' % (sM, sMsum, sM))
    A('s_add_u32 s%d, s%d, 0x10000' % (sXo, sXo))
    nt = ' nt' if opt.get('nt', 31) & 2 else ''
    vRaw, vWr, vTr = vX, vX + 1, vX + 2
    A('s_and_b32 s%d, s%d, 1' % (sA, sW))
    A('s_lshl_b32 s%d, s%d, 3' % (sA, sA))
    bits(A, t1, [(4, 2, 1)], t0, 's%d' % sA)
    A('v_and_b32 v%d, 15, v0' % t0)
    A('v_xor_b32 v%d, v%d, v%d' % (t1, t1, t0))
    bits(A, vRaw, [(4, 2, 13)], t0)
    A('v_lshl_add_u32 v%d, v%d, 4, v%d' % (vRaw, t1, vRaw))
    A('s_lshl_b32 s%d, s%d, 12' % (sA, sW))
    A('s_add_u32 s%d, s%d, %d' % (sA, sA, XBUF))
    A('v_add_u32 v%d, s%d, v%d' % (vWr, sA, vL16))
    A('s_lshl_b32 s%d, s%d, 1' % (sA, sW))
    A('v_bfe_u32 v%d, v0, 2, 3' % t1)
    A('v_xor_b32 v%d, s%d, v%d' % (t1, sA, t1))
    bits(A, vTr, [(4, 2, 12), (2, 2, 8), (0, 2, 3)], t0, '%d' % XBUF)
    A('v_lshl_add_u32 v%d, v%d, 5, v%d' % (vTr, t1, vTr))
    A('v_xor_b32 v%d, 32, v%d' % (vTr + 1, vTr))
    A('s_lshl_b32 s%d, s%d, 8' % (sCc, sH))
    A('s_lshl_b32 s%d, s%d, 20' % (sA, sW))
    A('s_add_u32 s%d, s%d, s%d' % (sCc, sCc, sA))

    def wissue(gi):
        for i in range(4):
            A('s_add_u32 s%d, s%d, 0x%x' % (sB, sCc, (16 * (gi & 7) + 4 * i + 512 * (gi >> 3)) * 8192))
            A('buffer_load_dwordx4 %s, v%d, %s, s%d offen%s' % (a(16 * gi + 4 * i, 4), vRaw, S4(SRD_A), sB, nt))
    if kind == 'q':
        for i in range(opt.get('qdl', 6)):
            A('s_sleep 32')
    DEP = opt.get('dep', 3)
    for gi in range(DEP):
        wissue(gi)
    cap_vm(A, cap0)

    def weights_rest():
        fuse = kind != 'q'

        def mm(gi):
            for ksl in range(2):
                for tt2 in range(2):
                    for tt in range(2):
                        acc = v(vD + (tt * 2 + tt2) * 4, 4)
                        A('v_mfma_f32_16x16x32_bf16 %s, %s, %s, %s' % (acc, a(16 * gi + (ksl * 2 + tt) * 4, 4), v(vX + 16 + ksl * 8 + tt2 * 4, 4), acc if gi or ksl else '0'))
        for gi in range(16):
            A('s_waitcnt lgkmcnt(0)')
            if fuse and gi:
                mm(gi - 1)
            A('s_waitcnt vmcnt(%d)' % (4 * (min(16, gi + DEP) - 1 - gi) + (gi > 16 - DEP)))
            sl = (gi & 1) * 16384
            for i in range(4):
                A('ds_write_b128 v%d, %s offset:%d' % (vWr, a(16 * gi + 4 * i, 4), sl + i * 1024))
            if gi + DEP < 16:
                wissue(gi + DEP)
            if gi + DEP == 16:
                init_load(A, t0, t1)
            A('s_waitcnt lgkmcnt(0)')
            A('s_barrier')
            for ksl in range(2):
                for tile in range(2):
                    for pp in range(2):
                        A('ds_read_b64_tr_b16 %s, v%d offset:%d' % (a(16 * gi + (ksl * 2 + tile) * 4 + 2 * pp, 2), vTr + tile, sl + (8 * ksl + 4 * pp) * 256))
                if fuse:
                    ks = 2 * gi + ksl
                    for tt2 in range(2):
                        A('ds_read_b128 %s, v%d offset:%d' % (v(vX + 16 + ksl * 8 + tt2 * 4, 4), vRd, tt2 * 16 * XROW + 16 * (ks & 15) + 1024 * (ks >> 4)))
        A('s_waitcnt lgkmcnt(0)')
        if fuse:
            mm(15)
        wait_init(A, t0, t1, sA, sB, True)
        tstamp(A, opt, 1, t0, t1, sA)
    A('s_lshl_b32 s%d, s%d, 13' % (sOut, sH))
    if kind != 'q':
        A('s_lshl_b32 s%d, s%d, 11' % (sA, sW))
        A('s_add_u32 s%d, s%d, s%d' % (sOut2, sOut, sA))
        A('s_add_u32 s%d, s%d, 0x%x' % (sOut2, sOut2, VT))
        A('s_lshl_b32 s%d, s%d, 10' % (sA, sW))
        A('s_add_u32 s%d, s%d, s%d' % (sOut, sOut, sA))
        A('s_add_u32 s%d, s%d, 0x%x' % (sOut, sOut, KX if kind == 'k' else VX))
        bits(A, vArm, [(4, 2, 14), (0, 4, 4)], t0)
        A('s_lshl_b32 s%d, s%d, 16' % (sArm, sW))
        A('s_and_b32 s%d, s%d, 3' % (sA, sH))
        A('s_lshl_b32 s%d, s%d, 11' % (sA, sA))
        A('s_add_u32 s%d, s%d, s%d' % (sArm, sArm, sA))
        A('s_lshr_b32 s%d, s%d, 2' % (sA, sH))
        A('s_lshl_b32 s%d, s%d, 8' % (sA, sA))
        A('s_add_u32 s%d, s%d, s%d' % (sArm, sArm, sA))
        A('s_add_u32 s%d, s%d, %d' % (sArm, sArm, 0x2000 if kind == 'v' else 0))
        A('v_add_u32 v%d, s%d, v%d' % (vArm, sArm, vArm))
        A('s_mov_b32 s%d, 0x%x' % (sArm, PART))
        vL8 = V('l8')
        sKa = S('ka')
        A('v_lshlrev_b32 v%d, 3, v0' % vL8)
        A('s_lshl_b32 s%d, s%d, 12' % (sKa, sH))
        A('s_lshl_b32 s%d, s%d, 9' % (sA, sW))
        A('s_add_u32 s%d, s%d, s%d' % (sKa, sKa, sA))
        A('s_add_u32 s%d, s%d, 0x%x' % (sKa, sKa, KVM + (2048 if kind == 'v' else 0)))
        vSent = V('sent', 4, 4)
        for i in range(4):
            A('v_mov_b32 v%d, -1' % (vSent + i))
        A('s_and_b32 s%d, s%d, 15' % (sPf, sR))
        A('s_lshl_b32 s%d, s%d, 2' % (sPf, sPf))
        A('s_add_u32 s%d, s%d, s%d' % (sPf, sPf, sW))
        A('s_lshl_b32 s%d, s%d, 10' % (sPf, sPf))
        A('s_add_u32 s%d, s%d, 0x20000' % (sPf, sPf))
    if kind == 'v':
        vSel = V('sel', 8, 4)
        vD2 = V('d2', 16, 4)
        vG = V('g', 8, 4)
        sel_frag(A, vSel, 0, t0, t1)
        sel_frag(A, vSel + 4, 1, t0, t1)
    cvt = lambda d, x, y: A('v_cvt_pk_bf16_f32 v%d, v%d, v%d' % (d, x, y))
    ldx4 = lambda dst, so, off: 'buffer_load_dwordx4 %s, v%d, %s, s%d offen offset:%d sc1' % (v(dst, 4), vL16, S4(WS), so, off)
    stx4 = lambda src, so, off: 'buffer_store_dwordx4 %s, v%d, %s, s%d offen offset:%d sc1' % (v(src, 4), vL16, S4(WS), so, off)
    LQ, LKV = LSCR, LSCR + 8192
    if kind == 'q':
        vQw, vIdx, vFm, vFv, vKr = V('qw'), V('idx'), V('fm'), V('fv'), V('kr')
        vQr = vArm
        vKx = V('kx', 32, 4)
        vVT = V('vt', 16, 4)
        vKm, vVm = V('km', 8, 4), V('vm', 4, 4)
        vQ = V('q', 16, 4)
        vD3 = vKx
        vO = vKx + 16
        vG = vQ
        vVmT = vQ + 8
        vS = V('s', 8, 4)
        MM = V('mm', 4, 4)
        vBias = V('bias', 8, 4)
        vStrip = V('strip', 20, 4)
        vLs = V('ls', 4, 4)
        vP = V('p', 4, 4)
        vOne = V('one', 4, 4)
        vPm, vHalf = V('pm', 2), V('half', 2)
        sKs, sKm, sVm, sScale, sMk = [S(n) for n in 'ks km vm scale mk'.split()]
        A('s_cmp_lt_u32 s%d, 2' % sW)
        A('s_cselect_b32 s%d, 0, 0x%x' % (sKs, VT - KX - 8192))
        A('s_lshl_b32 s%d, s%d, 12' % (sB, sW))
        A('s_add_u32 s%d, s%d, %d' % (sMk, sB, LKV))
        A('s_add_u32 s%d, s%d, s%d' % (sKs, sKs, sB))
        A('s_add_u32 s%d, s%d, s%d' % (sKs, sKs, sOut))
        A('s_add_u32 s%d, s%d, 0x%x' % (sKs, sKs, KX))
        A('s_lshr_b32 s%d, s%d, 1' % (sA, sW))
        A('s_lshl_b32 s%d, s%d, 12' % (sB, sA))
        A('s_add_u32 s%d, s%d, %d' % (sB, sB, LKV + 8192))
        A('v_add_u32 v%d, s%d, v%d' % (t2, sB, vL16))
        vVr = V('vr')
        A('v_mov_b32 v%d, v%d' % (vVr, t2))
        A('v_add_u32 v%d, %d, v%d' % (vKr, LKV, vL16))
        A('s_lshl_b32 s%d, s%d, 12' % (sKm, sH))
        A('s_add_u32 s%d, s%d, 0x%x' % (sKm, sKm, KVM))
        A('s_lshl_b32 s%d, s%d, 10' % (sB, sA))
        A('s_add_u32 s%d, s%d, s%d' % (sVm, sKm, sB))
        A('s_lshl_b32 s%d, s%d, 11' % (sB, sA))
        A('s_add_u32 s%d, s%d, s%d' % (sOut, sOut, sB))
        A('s_and_b32 s%d, s%d, 1' % (sA, sW))
        A('s_lshl_b32 s%d, s%d, 12' % (sB, sA))
        A('s_add_u32 s%d, s%d, s%d' % (sOut, sOut, sB))
        A('s_add_u32 s%d, s%d, 0x%x' % (sOut, sOut, OO))
        A('s_add_u32 s%d, s%d, %d' % (sB, sB, LQ))
        A('v_add_u32 v%d, s%d, v%d' % (vQr, sB, vL16))
        A('s_lshl_b32 s%d, s%d, 10' % (sB, sW))
        A('s_add_u32 s%d, s%d, %d' % (sB, sB, LQ))
        A('v_add_u32 v%d, s%d, v%d' % (vQw, sB, vL16))
        A('s_mov_b32 s%d, %s' % (sScale, f32(128 ** -0.5 * LOG2E)))
        A('s_lshl_b32 s%d, s%d, 4' % (sA, sA))
        A('v_and_b32 v%d, 15, v0' % t0)
        A('v_add_u32 v%d, s%d, v%d' % (t0, sA, t0))
        A('v_lshrrev_b32 v%d, 4, v0' % t1)
        A('v_lshlrev_b32 v%d, 2, v%d' % (t1, t1))
        A('v_sub_u32 v%d, v%d, v%d' % (t0, t0, t1))
        A('v_mov_b32 v%d, %s' % (t1, f32(-1e30)))
        for i in range(8):
            A('v_cmp_gt_i32 vcc, %d, v%d' % (16 * (i >> 2) + (i & 3), t0))
            A('v_cndmask_b32 v%d, 0, v%d, vcc' % (vBias + i, t1))
        for i in range(20):
            A('v_mov_b32 v%d, 0' % (vStrip + i))
        sel_frag(A, vStrip + 4, 0, t0, t1)
        sel_frag(A, vStrip + 12, 1, t0, t1)
        for i in range(4):
            A('v_mov_b32 v%d, 0x3f803f80' % (vOne + i))
        for i in range(2):
            A('v_mov_b32 v%d, 0x3f003f00' % (vHalf + i))
        A('v_and_b32 v%d, 8, v0' % t0)
        A('v_cmp_eq_u32 vcc, 0, v%d' % t0)
        A('v_mov_b32 v%d, 0xeeee' % t1)
        A('v_mov_b32 v%d, 0x4444' % t2)
        A('v_cndmask_b32 v%d, v%d, v%d, vcc' % (vIdx, t1, t2))
        A('s_lshl_b32 s%d, s%d, 8' % (sA, sH))
        A('s_add_u32 s%d, s%d, 0x%x' % (sB, sA, F_KV))
        bits(A, t3, [(0, 1, 7)], t0, 's%d' % sB)
        bits(A, vFm, [(0, 5, 7), (5, 1, 30)], t0)

    weights_rest()
    if kind == 'q':
        wait_flags(A, t0, t3, '1', 4)
    A('s_mov_b32 s%d, 0' % sSeg)
    A('s_barrier')
    flag_st = 'buffer_store_dword v%d, v%d, %s, 0 offen sc1' % (t3, vFl, S4(WS))
    mfma = lambda d, x, y, c_: 'v_mfma_f32_16x16x32_bf16 %s, %s, %s, %s' % (d, x, y, c_)
    cv = lambda d, x, y: 'v_cvt_pk_bf16_f32 v%d, v%d, v%d' % (d, x, y)

    class Order:
        def __init__(self, name, lim):
            self.name, self.lim, self.ops = name, lim, []

        def add(self, tag):
            self.ops.append(tag)

        def wait(self, tag):
            last = max(i for i, t in enumerate(self.ops) if t == tag)
            n = len(self.ops) - 1 - last
            assert n <= self.lim, (self.name, tag, n)
            return 's_waitcnt %s(%d)' % (self.name, n)

    def gemm(fill, stream=(), start=0, vsp=4):
        L, M = Order('lgkmcnt', 15), Order('vmcnt', 63)
        M.add('old')
        stream = list(stream)

        def emit(o):
            if isinstance(o, tuple):
                if o[0] in ('lds', 'vm'):
                    (L if o[0] == 'lds' else M).add(o[1])
                    A(o[2])
                else:
                    A((L if o[0] == 'wl' else M).wait(o[1]))
            else:
                assert not o.startswith('ds_') and not o.startswith('buffer_'), o
                A(o)

        def cost(o):
            if isinstance(o, tuple) or not o.startswith('v_'):
                return 1
            if 'mfma' in o:
                return 0
            return 4 if (o.startswith('v_exp') or o.startswith('v_rcp') or o.startswith('v_perml')) else 2

        def rd(ks, tt2):
            emit(('lds', 'x%d' % ks, 'ds_read_b128 %s, v%d offset:%d' % (v(vX + (ks & 3) * 8 + tt2 * 4, 4), vRd, tt2 * 16 * XROW + 16 * (ks & 15) + 1024 * (ks >> 4))))
        for o in fill.get('head', []):
            emit(o)
        for ks in range(3):
            rd(ks, 0); rd(ks, 1)
        last_vm = -99
        for ks in range(32):
            emit(('wl', 'x%d' % ks))
            n = 0
            for tt2 in range(2):
                for tt in range(2):
                    acc = v(vD + (tt * 2 + tt2) * 4, 4)
                    A(mfma(acc, a((ks * 2 + tt) * 4, 4), v(vX + (ks & 3) * 8 + tt2 * 4, 4), acc if ks else '0'))
                    budget = 4
                    if n in (0, 2) and ks + 3 < 32:
                        rd(ks + 3, n >> 1)
                    for o in fill.get((ks, n), []):
                        emit(o)
                        budget -= 2
                    while stream and ks >= start and (cost(stream[0]) <= budget):
                        if isinstance(stream[0], tuple) and stream[0][0] == 'vm':
                            if n != 1 and vsp or 4 * ks + n - last_vm < vsp:
                                break
                            last_vm = 4 * ks + n
                        o = stream.pop(0)
                        emit(o)
                        budget = (2 if 'smfmac' in o else 4) if cost(o) == 0 else budget - cost(o)
                    n += 1
        for o in stream:
            emit(o)
        A('v_sub_u32 v%d, v%d, v%d' % (vRd, vRdSum, vRd))
        for tt2 in range(2):
            for j in range(4):
                A(cv(vF + 4 * tt2 + j, vD + 4 * tt2 + j, vD + 8 + 4 * tt2 + j))
        return L, M, emit

    dsp = opt.get('dsp' + ('q' if kind == 'q' else ''), 4)
    dend = (16 * dsp + 3) // 4

    def base_fill(d0=0):
        fill = {}
        put = lambda g_, os_: fill.setdefault(((g_ >> 2) + d0, g_ & 3), []).extend(os_)
        for i in range(8):
            d = dma_row(i)
            put(2 * i * dsp, d[0:2])
            put(2 * i * dsp + 1, [('vm', 'dma', d[2])])
            put((2 * i + 1) * dsp + 1, [('vm', 'dma', d[3])])
        put(15 * dsp + 2, ['s_sub_u32 s%d, s%d, s%d' % (sM, sMsum, sM), 's_add_u32 s%d, s%d, 0x10000' % (sXo, sXo)])
        return fill

    if kind != 'q':
        outs = ['s_add_u32 s%d, s%d, 4096' % (sB, sOut), ('vm', 'st', stx4(vF, sOut, 0)), ('vm', 'st', stx4(vF + 4, sB, 0)),
                ('vm', 'st', 'buffer_store_dwordx4 %s, v%d, %s, s%d offen sc1' % (v(vSent, 4), vArm, S4(WS), sArm)),
                ('vm', 'st', 'buffer_store_dwordx2 %s, v%d, %s, s%d offen sc1' % (v(vSent, 2), vL8, S4(WS), sKa))]
        if kind == 'v':
            outs += [('vm', 'st', stx4(vG + 4 * et, sOut2, et * 1024)) for et in range(2)]
            outs += ['s_add_u32 s%d, s%d, 0x40000' % (sOut2, sOut2)]
        outs += ['s_add_u32 s%d, s%d, 0x20000' % (sKa, sKa), 's_add_u32 s%d, s%d, 0x40000' % (sOut, sOut),
                 's_add_u32 s%d, s%d, 0x40000' % (sArm, sArm), 's_and_b32 s%d, s%d, 0x1c0000' % (sB, sArm),
                 's_cmp_eq_u32 s%d, 0x1c0000' % sB, 's_cselect_b32 s%d, 0x40000, 0' % sB, 's_add_u32 s%d, s%d, s%d' % (sArm, sArm, sB)]
        pf = [('vm', 'pf', 'buffer_load_dwordx4 %s, v%d, %s, s%d offen' % (v(vJ, 4), vL16, S4(SRD_B), sPf)), 's_add_u32 s%d, s%d, 0x10000' % (sPf, sPf)]

        def transpose_v():
            if kind == 'v':
                for et in range(2):
                    for tt2 in range(2):
                        A(mfma(v(vD2 + (et * 2 + tt2) * 4, 4), v(vF + 4 * tt2, 4), v(vSel + 4 * et, 4), '0'))
                for i in range(8):
                    A(cv(vG + i, vD2 + 2 * i, vD2 + 2 * i + 1))
        NI = opt.get('ni', 6)
        A('v_sub_u32 v%d, v%d, v%d' % (vRd, vRdSum, vRd))
        for tt2 in range(2):
            for j in range(4):
                A(cv(vF + 4 * tt2 + j, vD + 4 * tt2 + j, vD + 8 + 4 * tt2 + j))
        transpose_v()
        for o in outs:
            A(o[2] if isinstance(o, tuple) else o)
        for i in range(8):
            for o in dma_row(i):
                A(o)
        A('s_sub_u32 s%d, s%d, s%d' % (sM, sMsum, sM))
        A('s_add_u32 s%d, s%d, 0x10000' % (sXo, sXo))
        A('s_add_u32 s%d, s%d, 0x10000' % (sPf, sPf))
        A('s_mov_b32 s%d, 1' % sSeg)
        A('v_mov_b32 v%d, 1' % t3)
        A('s_waitcnt vmcnt(16)')
        A('s_barrier')
        A(flag_st)
        A('s_waitcnt vmcnt(1)')
        A('s_barrier')
        if opt.get('kvm', 1):
            L, M, emit = gemm(base_fill(), pf, dend)
            transpose_v()
            A('s_mov_b32 s%d, 2' % sSeg)
            A(M.wait('dma'))
            A('s_barrier')
            A('.p2align 6')
            A.label(P + '_loop')
            nst = sum(isinstance(o, tuple) for o in outs)
            fill = base_fill(nst)
            fk = opt.get('fk', 20)
            fill.setdefault((fk, 3), []).extend([('wv', 'st'), 's_barrier', ('vm', 'fl', flag_st)])
            fill.setdefault((nst + dend, 1), []).extend(pf)
            L, M, emit = gemm(fill, outs + ['v_mov_b32 v%d, s%d' % (t3, sSeg)], 0)
            transpose_v()
            A('s_add_u32 s%d, s%d, 1' % (sSeg, sSeg))
        else:
            A.label(P + '_loop0')
            L, M, emit = gemm(base_fill(), pf, dend)
            transpose_v()
            A('s_add_u32 s%d, s%d, 1' % (sSeg, sSeg))
            A('s_cmp_gt_u32 s%d, %d' % (sSeg, NI))
            A('s_cbranch_scc1 %s_ent0' % P)
            for o in outs:
                emit(o)
            A('v_mov_b32 v%d, s%d' % (t3, sSeg))
            A('s_waitcnt vmcnt(0)')
            A('s_barrier')
            A(flag_st)
            A('s_branch %s_loop0' % P)
            A.label(P + '_ent0')
            A('s_waitcnt vmcnt(0)')
            A('s_barrier')
            A('.p2align 6')
            A.label(P + '_loop')
            L, M, emit = gemm(base_fill(), ['s_sub_u32 s%d, s%d, 2' % (sB, sSeg), 's_max_u32 s%d, s%d, %d' % (sB, sB, NI), 'v_mov_b32 v%d, s%d' % (t3, sB), ('vm', 'fl', flag_st)] + outs + pf, dend)
            transpose_v()
            A('s_add_u32 s%d, s%d, 1' % (sSeg, sSeg))
        if opt.get('prof'):
            for sg, sl_ in ((16, 11), (48, 12)):
                Lx = A.newlabel('L_pf')
                A('s_cmp_lg_u32 s%d, %d' % (sSeg, sg))
                A('s_cbranch_scc1 ' + Lx)
                tstamp(A, opt, sl_, t0, t1, sA)
                A('s_waitcnt vmcnt(0)')
                A.label(Lx)
        A('s_cmp_lt_u32 s%d, 64' % sSeg)
        A(M.wait('dma'))
        A('s_barrier')
        A('s_cbranch_scc1 %s_loop' % P)
        for o in outs:
            emit(o)
    else:
        ld_m = [ldx4(vKm, sKm, 0), ldx4(vKm + 4, sKm, 1024), ldx4(vVm, sVm, 2048)]
        mregs = list(range(vKm, vKm + 8)) + list(range(vVm, vVm + 4))
        probe = ['v_mov_b32 v%d, 0' % vFv, 'buffer_atomic_add v%d, v%d, %s, s%d offen sc0 sc1' % (vFv, vFm, S4(WS), sKm)]
        stage = ['s_mov_b32 m0, s%d' % sMk, 's_nop 0'] + [('vm', 'kv', 'buffer_load_dwordx4 v%d, %s, s%d offen offset:%d sc1 lds' % (vL16, S4(WS), sKs, 1024 * f)) for f in range(4)] \
            + ['s_add_u32 s%d, s%d, 0x40000' % (sKs, sKs)]
        reads = [('lds', 'q', 'ds_read_b128 %s, v%d offset:%d' % (v(vQ + 4 * j, 4), vQr, j * 1024)) for j in range(4)] \
            + [('lds', 'k', 'ds_read_b128 %s, v%d offset:%d' % (v(vKx + 4 * f, 4), vKr, f * 1024)) for f in range(8)] \
            + [('lds', 'vt', 'ds_read_b128 %s, v%d offset:%d' % (v(vVT + 4 * f, 4), vVr, f * 1024)) for f in range(4)]

        def attention(tag):
            p1 = ['v_mov_b32 v%d, 0' % (MM + i) for i in range(4)]
            for j in range(4):
                for tt in range(2):
                    acc = v(vS + 4 * tt, 4)
                    p1.append(mfma(acc, v(vKx + (tt * 4 + j) * 4, 4), v(vQ + 4 * j, 4), acc if j else v(vBias + 4 * tt, 4)))
            T = Asm()
            maxall(T, mregs, t0)
            p2 = [('wv', 'm')] + [l.strip() for l in T.lines] + ['v_cmp_eq_u32 vcc, -1, v%d' % t0]
            p2 += ['v_mov_b32 v%d, 0' % (vD3 + i) for i in range(16)]
            p2 += ['s_cbranch_vccnz L_q_bad%s' % tag, 'L_q_ok%s:' % tag]
            T = Asm()
            for u in range(2):
                T('v_smfmac_f32_16x16x64_bf16 %s, %s, %s, v%d' % (v(MM, 4), v(vKm + 4 * u, 4), v(vQ + 8 * u, 8), vIdx))
            win = {(0, 0): 4, (1, 0): 0, (0, 1): 12, (1, 1): 8}
            mx = ['v_max3_f32 v%d, v%d, v%d, v%d' % (t0, vS, vS + 1, vS + 2), 'v_max3_f32 v%d, v%d, v%d, v%d' % (t0, t0, vS + 3, vS + 4),
                  'v_max3_f32 v%d, v%d, v%d, v%d' % (t0, t0, vS + 5, vS + 6), 'v_max_f32 v%d, v%d, v%d' % (t0, t0, vS + 7)]
            for qp in range(2):
                for et in range(2):
                    T('v_smfmac_f32_16x16x64_bf16 %s, %s, %s, v%d' % (v(vD3 + (qp * 2 + et) * 4, 4), v(vVm, 4), v(vStrip + win[(qp, et)], 8), vIdx))
                    T(mx.pop(0))
            T('v_permlane32_swap_b32 v%d, v%d' % (MM, MM + 2))
            T('v_permlane32_swap_b32 v%d, v%d' % (MM + 1, MM + 3))
            T('v_add_f32 v%d, v%d, v%d' % (MM, MM, MM + 2))
            T('v_add_f32 v%d, v%d, v%d' % (MM + 1, MM + 1, MM + 3))
            T('v_max3_f32 v%d, v%d, v%d, v%d' % (t0, t0, MM, MM + 1))
            cm = [cv(vVmT + i, vD3 + 2 * i, vD3 + 2 * i + 1) for i in range(8)]
            for sw in ('v_permlane32_swap_b32', 'v_permlane16_swap_b32'):
                T('v_mov_b32 v%d, v%d' % (t1, t0))
                T(cm.pop(0)); T(cm.pop(0))
                T('%s v%d, v%d' % (sw, t0, t1))
                T('v_max_f32 v%d, v%d, v%d' % (t0, t0, t1))
            T('v_mul_f32 v%d, s%d, v%d' % (t0, sScale, t0))
            regs = [vS + i for i in range(8)] + [MM, MM + 1]
            for r_ in regs:
                T('v_fma_f32 v%d, v%d, s%d, -v%d' % (r_, r_, sScale, t0))
            for r_ in regs:
                T('v_exp_f32 v%d, v%d' % (r_, r_))
            for i in range(4):
                T(cv(vP + i, vS + 2 * i, vS + 2 * i + 1))
            T(cv(vPm, MM, MM + 1))
            T(cv(vPm + 1, MM, MM + 1))
            T(mfma(v(vLs, 4), v(vOne, 4), v(vP, 4), '0'))
            T(cm.pop(0))
            T('v_permlane32_swap_b32 v%d, v%d' % (vPm, vPm + 1))
            for e in range(4):
                T(mfma(v(vO + 4 * e, 4), v(vVT + 4 * e, 4), v(vP, 4), '0'))
                if cm:
                    T(cm.pop(0))
            m16 = lambda d, x: 'v_mfma_f32_16x16x16_bf16 %s, %s, %s, %s' % (v(d, 4), v(x, 2), v(vPm, 2), v(d, 4))
            T(m16(vLs, vHalf))
            for e in range(4):
                T(m16(vO + 4 * e, vVmT + 2 * e))
            T('v_rcp_f32 v%d, v%d' % (t0, vLs))
            p2 += [l.strip() for l in T.lines]
            p3 = []
            for qp in range(2):
                p3 += ['v_mul_f32 v%d, v%d, v%d' % (vO + 8 * qp + i, vO + 8 * qp + i, t0) for i in range(8)]
                p3 += [cv(vG + 4 * qp + j, vO + 8 * qp + j, vO + 8 * qp + 4 + j) for j in range(4)]
                p3 += [('vm', 'o', stx4(vG + 4 * qp, sOut, qp * 1024))]
            p3 += ['s_add_u32 s%d, s%d, 0x40000' % (sOut, sOut)]
            return p1, p2, p3

        def q_out(M, tags):
            A('ds_write_b128 v%d, %s' % (vQw, v(vF, 4)))
            A('ds_write_b128 v%d, %s offset:4096' % (vQw, v(vF + 4, 4)))
            A('s_add_u32 s%d, s%d, 1' % (sSeg, sSeg))
            A(min((M.wait(t) for t in tags), key=lambda x: int(x[x.index('(') + 1:-1])))
            A('v_cmp_eq_u32 vcc, -1, v%d' % vFv)
            A('s_waitcnt lgkmcnt(0)')
            A('s_barrier')
        L, M, emit = gemm(base_fill(), stage + [probe[0], ('vm', 'pr', probe[1])], dend)
        q_out(M, ['pr'])
        A('.p2align 6')
        A.label('L_q_loop')
        A('s_cbranch_vccz L_q_go')
        poll_data(A, probe, [vFv, vFv], t0, opt.get('qsl', 2))
        A.label('L_q_go')
        A('s_cmp_eq_u32 s%d, 64' % sSeg)
        A('s_cbranch_scc1 L_q_last')
        fill = base_fill()
        fill['head'] = [('vm', 'm', o) for o in ld_m]
        for i in range(8):
            fill.setdefault((i, 2), []).append(reads[2 * i])
            fill.setdefault((i, 3), []).append(reads[2 * i + 1])
        fill.setdefault((dend, 0), []).extend(['; stage', stage[0]])
        for i in range(4):
            fill.setdefault((dend + i, 1), []).append(stage[2 + i])
        fill.setdefault((dend + 4, 1), []).extend([stage[6], ('vm', 'fl', flag_st)])
        p1, p2, p3 = attention('')
        adv = ['s_add_u32 s%d, s%d, 0x20000' % (n_, n_) for n_ in (sKm, sVm)]
        mid = [('wl', 'vt'), ('wv', 'old'), 's_sub_u32 s%d, s%d, 1' % (sB, sSeg), 'v_mov_b32 v%d, s%d' % (t3, sB), 's_barrier']
        k1 = p2.index('L_q_ok:') + 1
        L, M, emit = gemm(fill, [('wl', 'k')] + p1 + p2[:k1] + mid + p2[k1:] + adv + [probe[0], ('vm', 'pr', probe[1])] + p3, opt.get('qst', 9), 0)
        q_out(M, ['pr', 'kv'])
        body = A.lines[A.lines.index('L_q_go:'):]
        assert body.index('    s_barrier') < body.index('    ; stage')
        A('s_branch L_q_loop')
        for tag in ('', 'z'):
            A.label('L_q_bad' + tag)
            poll_data(A, ld_m, mregs, t0, 1)
            A('s_branch L_q_ok' + tag)
        A.label('L_q_last')
        for o in ld_m:
            A(o)
        for i, o in enumerate(reads):
            A(o[2])
            if i == 11:
                A('s_waitcnt lgkmcnt(0)')
        A('v_mov_b32 v%d, 63' % t3)
        A('s_waitcnt vmcnt(3)')
        A('s_barrier')
        A(flag_st)
        p1, p2, p3 = attention('z')
        for o in p1 + p2 + p3:
            if isinstance(o, tuple):
                A(o[2] if o[0] == 'vm' else 's_waitcnt vmcnt(1) lgkmcnt(0)')
            else:
                A(o)
    A('s_waitcnt vmcnt(0)')
    A('v_mov_b32 v%d, 64' % t3)
    A('s_barrier')
    A(flag_st)
    tstamp(A, opt, 2, t0, t1, sA)
    if kind == 'q' or opt.get('chainonly'):
        A('s_endpgm')
    else:
        A('s_branch L_o_join')


def vote(A, sH, t0, t1, t2, sA, sB, sP, sBase, sL0, sL1):
    A('s_cmp_lg_u32 s%d, 0' % sW)
    A('s_cbranch_scc1 L_vote_done')
    A('s_mul_i32 s%d, s%d, 43' % (sA, sH))
    A('s_lshr_b32 s%d, s%d, 7' % (sA, sA))
    A('s_mul_i32 s%d, s%d, 3' % (sA, sA))
    A('s_sub_u32 s%d, s%d, s%d' % (sP, sH, sA))
    A('v_lshlrev_b32 v%d, 2, v0' % t1)
    A('v_mov_b32 v%d, 0' % t2)
    A.label('L_vote_page')
    A('s_lshl_b32 s%d, s%d, 21' % (sBase, sP))
    A('s_lshr_b32 s%d, s%d, 1' % (sA, sH))
    A('s_lshl_b32 s%d, s%d, 14' % (sA, sA))
    A('s_add_u32 s%d, s%d, s%d' % (sBase, sBase, sA))
    A('s_and_b32 s%d, s%d, 1' % (sA, sH))
    A('s_lshl_b32 s%d, s%d, 12' % (sA, sA))
    A('s_add_u32 s%d, s%d, s%d' % (sBase, sBase, sA))
    A('s_add_u32 s%d, s%d, 0x%x' % (sBase, sBase, PART + 0x1c0000))
    A('s_mov_b32 s%d, -1' % sL0)
    A('s_mov_b32 s%d, -1' % sL1)
    for smp in range(3):
        for par in range(2):
            A('s_memtime s[96:97]')
            A('s_waitcnt lgkmcnt(0)')
            A('buffer_store_dword v%d, v%d, %s, s%d offen offset:%d sc1' % (t2, t1, S4(WS), sBase, smp * 256))
            A('s_waitcnt vmcnt(0)')
            A('s_memtime s[98:99]')
            A('s_xor_b32 s%d, s%d, 0x2000' % (sBase, sBase))
            A('s_waitcnt lgkmcnt(0)')
            A('s_sub_u32 s98, s98, s96')
            A('s_min_u32 s%d, s%d, s98' % ((sL0, sL1)[par], (sL0, sL1)[par]))
    A('s_cmp_lt_u32 s%d, s%d' % (sL1, sL0))
    A('s_cselect_b32 s%d, 1, 0' % sA)
    A('s_lshr_b32 s%d, s%d, 2' % (sB, sX))
    A('s_xor_b32 s%d, s%d, s%d' % (sA, sA, sB))
    A('s_lshl_b32 s%d, s%d, 1' % (sA, sA))
    A('s_sub_u32 s%d, s%d, 1' % (sA, sA))
    A('v_mov_b32 v%d, s%d' % (t0, sA))
    A('s_lshl_b32 s%d, s%d, 6' % (sA, sP))
    A('s_add_u32 s%d, s%d, 0x%x' % (sA, sA, F_VOTE))
    A('s_mov_b64 exec, 1')
    A('buffer_atomic_add v%d, v%d, %s, s%d offen sc1' % (t0, t2, S4(WS), sA))
    A('s_mov_b64 exec, -1')
    A('s_waitcnt vmcnt(0)')
    A('s_add_u32 s%d, s%d, 3' % (sP, sP))
    A('s_cmp_lt_u32 s%d, 9' % sP)
    A('s_cbranch_scc1 L_vote_page')
    A.label('L_vote_done')
    A('s_barrier')
```

```python
import sys, re
from common import *
from workers import proj
from orole import orole


def prologue(A, opt):
    A('s_cmp_ge_u32 s2, 256')
    A('s_cbranch_scc1 L_end0')
    A('s_load_dwordx16 s[64:79], s[0:1], 0')
    A('s_load_dwordx16 s[80:95], s[0:1], 64')
    A('s_getreg_b32 s%d, hwreg(HW_REG_XCC_ID)' % sX)
    A('s_and_b32 s%d, s%d, 7' % (sX, sX))
    A('v_lshrrev_b32 v1, 6, v0')
    A('v_and_b32 v0, 63, v0')
    A('v_readfirstlane_b32 s%d, v1' % sW)
    A('s_mov_b32 s%d, %d' % (sTO, TIMEOUT))
    A('s_waitcnt lgkmcnt(0)')
    srd(A, WS, P_WS, WS_BYTES)
    srd(A, DBG, P_DBG, 256)
    if opt.get('prof'):
        A('s_memrealtime s[76:77]')
    for i in range(4):
        A('v_mov_b32 v%d, -1' % (4 + i))
    A('s_lshl_b32 s36, s2, 2')
    A('s_add_u32 s36, s36, s%d' % sW)
    A('s_lshl_b32 s37, s36, 10')
    A('s_add_u32 s37, s37, 0x%x' % INIT1)
    A('s_lshl_b32 s36, s36, 8')
    A('s_add_u32 s36, s36, 0x%x' % INIT2)
    A('v_lshlrev_b32 v2, 4, v0')
    A('v_lshlrev_b32 v3, 2, v0')
    A('buffer_store_dwordx4 v[4:7], v2, %s, s37 offen sc1' % S4(WS))
    A('buffer_store_dword v4, v3, %s, s36 offen sc1' % S4(WS))
    wu = opt.get('wu', 1)
    wu = 2 * wu
    npre = opt.get('wupre', 0)

    def warm(lo, hi):
        for o in ['buffer_load_dword v252, v8, %s, s38 offen' % S4(SRD_A), 'buffer_load_dword v252, v9, %s, s38 offen offset:0x780' % S4(SRD_A)][lo:hi]:
            A(o)
    if wu:
        A('s_lshr_b32 s38, s2, 3')
        A('s_lshl_b32 s38, s38, 2')
        A('s_add_u32 s38, s38, s%d' % sW)
        A('s_lshr_b32 s39, s38, 5')
        A('s_and_b32 s38, s38, 31')
        A('s_and_b32 s42, s%d, 3' % sX)
        A('s_mov_b64 s[40:41], s[%d:%d]' % (P_WK, P_WK + 1))
        for m_, p_ in ((1, P_WV), (2, P_WQ), (3, P_WO)):
            A('s_cmp_eq_u32 s39, %d' % m_)
            A('s_cselect_b64 s[40:41], s[%d:%d], s[40:41]' % (p_, p_ + 1))
        A('s_cselect_b32 s43, 11, 13')
        A('s_cselect_b32 s44, 21, 11')
        A('s_lshl_b32 s42, s42, s44')
        A('s_add_u32 s44, s43, 5')
        A('s_lshl_b32 s38, s38, s44')
        A('s_add_u32 s38, s38, s42')
        A('v_lshrrev_b32 v8, 1, v0')
        A('v_lshlrev_b32 v8, s43, v8')
        A('v_and_b32 v9, 1, v0')
        A('v_lshl_add_u32 v8, v9, 10, v8')
        A('s_and_b32 s42, s%d, 3' % sX)
        A('s_cmp_eq_u32 s42, 3')
        A('s_cselect_b32 s42, 0, 0x%x' % OOB)
        A('v_lshlrev_b32 v9, 29, v9')
        A('v_add3_u32 v9, v8, v9, s42')
        A('v_add_u32 v8, 384, v8')
        A('s_mov_b32 s43, 0x%x' % (8 * MB))
        A('s_lshr_b32 s42, s%d, 2' % sX)
        A('s_lshr_b32 s39, s39, 1')
        A('s_and_b32 s39, s39, s42')
        A('s_cbranch_scc0 L_wu')
        A('s_mov_b64 s[40:41], s[%d:%d]' % (P_X, P_X + 1))
        A('s_mov_b32 s43, 0x%x' % (4 * MB))
        A('s_bfe_u32 s38, s2, 0x40003')
        A('s_lshl_b32 s38, s38, 2')
        A('s_add_u32 s38, s38, s%d' % sW)
        A('s_lshl_b32 s38, s38, 13')
        A('v_lshlrev_b32 v8, 7, v0')
        A('v_mov_b32 v9, 0x%x' % OOB)
        A.label('L_wu')
        srd(A, SRD_A, 40, 0)
        A('s_mov_b32 s%d, s43' % (SRD_A + 2))
        warm(0, npre)
    A('s_waitcnt vmcnt(%d)' % npre)
    A('s_barrier')
    A('v_mov_b32 v12, 0')
    A('s_cmp_eq_u32 s%d, 0' % sW)
    A('s_cbranch_scc1 L_tk0')
    if wu:
        A('s_nop 7')
        warm(npre, wu)
    A('s_branch L_tk')
    A.label('L_tk0')
    A('s_lshl_b32 s36, s%d, 5' % sX)
    if opt.get('fakex'):
        A('s_cmp_eq_u32 s%d, 3' % sX)
        A('s_cbranch_scc0 L_fk')
        A('v_lshlrev_b32 v3, 5, v0')
        A.label('L_fk1')
        A('buffer_load_dword v1, v3, %s, 0 offen sc1' % S4(DBG))
        A('s_waitcnt vmcnt(0)')
        A('v_readlane_b32 s37, v1, 2')
        A('s_cmp_lt_u32 s37, 32')
        A('s_cbranch_scc1 L_fk1')
        A('s_bitcmp1_b32 s2, 3')
        A('s_cbranch_scc1 L_fk2')
        A('s_bitcmp1_b32 s2, 4')
        A('s_cbranch_scc0 L_fk')
        A.label('L_fk2')
        A('s_mov_b32 s36, 0x40')
        A.label('L_fk')
    A('v_mov_b32 v1, 1')
    A('s_mov_b64 exec, 1')
    A('buffer_atomic_add v1, v12, %s, s36 offen sc0 sc1' % S4(DBG))
    A('s_mov_b64 exec, -1')
    if wu:
        warm(npre, wu)
    A('s_waitcnt vmcnt(%d)' % (wu - npre))
    A('v_readfirstlane_b32 s37, v1')
    A('s_add_u32 s36, s36, s37')
    A('s_cmp_lt_u32 s37, 32')
    A('s_cbranch_scc1 L_tk_w')
    A('v_mov_b32 v1, 1')
    A('s_mov_b64 exec, 1')
    A('buffer_atomic_add v1, v12, %s, 0 offen offset:8 sc0 sc1' % S4(DBG))
    A('s_mov_b64 exec, -1')
    A('s_waitcnt vmcnt(0)')
    A('v_readfirstlane_b32 s37, v1')
    A('v_lshlrev_b32 v3, 5, v0')
    A.label('L_ov')
    A('buffer_load_dword v1, v3, %s, 0 offen sc1' % S4(DBG))
    A('s_waitcnt vmcnt(0)')
    sum8(A, 1, 38, 39)
    A('s_cmp_ge_u32 s38, 256')
    A('s_cbranch_scc1 L_ov1')
    A('s_sleep 4')
    timeout_stub(A, 'L_ov')
    A.label('L_ov1')
    for x in range(8):
        A('v_readlane_b32 s38, v1, %d' % x)
        A('s_min_u32 s38, s38, 32')
        A('s_add_u32 s36, s38, s37')
        A('s_cmp_lt_u32 s36, 32')
        A('s_cselect_b32 s39, 1, 0')
        A('s_sub_u32 s37, s36, 32')
        A('s_add_u32 s36, s36, %d' % (32 * x))
        A('s_cmp_eq_u32 s39, 1')
        A('s_cbranch_scc1 L_tk_w')
    A('s_mov_b32 s36, 256')
    A.label('L_tk_w')
    A('v_mov_b32 v1, s36')
    A('ds_write_b32 v12, v1')
    A('s_waitcnt lgkmcnt(0)')
    A.label('L_tk')
    A('s_barrier')
    A('ds_read_b32 v1, v12')
    A('s_waitcnt lgkmcnt(0)')
    A('v_readfirstlane_b32 s%d, v1' % sR)
    A('s_barrier')
    A('s_cmp_ge_u32 s%d, 256' % sR)
    A('s_cbranch_scc1 L_end0')
    if opt.get('prof'):
        A('s_mov_b32 s78, s76')
        tstamp(A, opt, 8, 1, 2, 36, now=False)
        tstamp(A, opt, 0, 1, 2, 36)
    A('s_lshr_b32 s%d, s%d, 4' % (sG, sR))
    A('s_and_b32 s%d, s%d, 15' % (sC, sR))
    A('s_cmp_lt_u32 s%d, 128' % sR)
    A('s_cbranch_scc1 L_chain')
    A('s_bfe_u32 s%d, s%d, 0x20005' % (sG, sR))
    A('s_lshl_b32 s%d, s%d, 3' % (sG, sG))
    A('s_and_b32 s36, s%d, 7' % sR)
    A('s_add_u32 s36, s36, s%d' % sG)
    A('s_bfe_u32 s%d, s%d, 0x20003' % (sC, sR))
    A('s_cmp_eq_u32 s%d, 0' % sC)
    A('s_cbranch_scc1 L_k')
    A('s_cmp_eq_u32 s%d, 1' % sC)
    A('s_cbranch_scc1 L_v')
    A('s_cmp_eq_u32 s%d, 2' % sC)
    A('s_cbranch_scc1 L_q')
    A('s_branch L_o')
    A.label('L_end0')
    A('s_endpgm')


def chain(A, opt):
    prof = opt.get('prof', 0) == 1
    lite = opt.get('prof', 0) >= 1
    V = Alloc(1, 252)
    vL16, vL4, vQst, vVst, vKst, vIdx, vSent = [V(n) for n in 'l16 l4 qst vst kst idx sent'.split()]
    vW1q, vW1k, vR1, vR1v = V('w1q'), V('w1k'), V('r1'), V('r1v')
    vW2, vR2, vW2l, vR2l = V('w2'), V('r2'), V('w2l'), V('r2l')
    vT0, vT1, vT2, vT3 = V('t0'), V('t1'), V('t2'), V('t3')
    vQK, vVv, vBias = V('qk'), V('vv'), V('bias')
    vFa, vFv = V('fa'), V('fv')
    vM = V('m', 16, 4)
    vA = V('acc', 24, 4)
    vQ = V('q', 16, 4)
    vKm, vVm = V('km', 8, 4), V('vm', 8, 4)
    vKx, vVx = V('kx', 32, 4), V('vx', 32, 4)
    vS = V('s', 8, 4)
    MM = V('mm', 4, 4)
    vP, vPs = V('p', 4, 4), V('ps', 4, 4)
    vPm, vPms = V('pm', 2), V('pms', 2)
    vOne, vSel, vHalf = V('one', 4, 4), V('sel', 4, 4), V('half', 2)
    vVOx = V('vox', 16, 4)
    vT = V('tacc', 32, 4)
    vVOm = vT + 16
    vF = vT + 16
    vR = vVm
    vO = vA
    vLs = vA + 8
    vR2d = vA + 12
    vPt = vS
    S = Alloc(36, 63)
    sStep, sMemR, sMemW, sQkvW, sQkvR, sQkvR2 = S('step'), S('memr'), S('memw'), S('qkvw'), S('qkvr'), S('qkvr2')
    sKx, sKx2, sVx, sVx2, sPartW, sPartR, sPartA, sPartB, sKvm = [S(n) for n in 'kx kx2 vx vx2 pw pr pa pb kvm'.split()]
    sA, sB, sCc, sD = S('a'), S('b'), S('cc'), S('d')
    sScale, sFo, sPf = S('scale'), S('fo'), S('pf')
    sN1, sN2, sN3 = 64, 65, 78
    sLo = 0
    sHome, sPo, sKn = S('home'), S('po'), S('kn')
    sSide = 3
    LDSL = 20480
    LDS1, LDS2, LDSW = 0, 12288, 32768
    W1 = lambda t, m, tt: (t * 3 + m) * 16 + tt * 8
    WO = lambda n, j: 192 + n * 16 + j * 4

    A.label('L_chain')
    cap0 = len(A.lines)
    A('s_bitcmp1_b32 s%d, 0' % sC)
    A('s_cselect_b64 s[2:3], s[%d:%d], s[%d:%d]' % (P_WK, P_WK + 1, P_WQ, P_WQ + 1))
    srd(A, SRD_A, 2, 8 * MB)
    srd(A, SRD_C, P_WV, 8 * MB)
    srd(A, SRD_D, P_WO, 8 * MB)
    srd(A, SRD_E, P_MEM0, 16384)
    if opt.get('iw', 0):
        A('s_getpc_b64 s[2:3]')
        A.label('L_pc')
        A('s_add_u32 s2, s2, L_loop-L_pc')
        A('s_addc_u32 s3, s3, 0')
        srd(A, SRD_B, 2, 0)
        A('s_mov_b32 s%d, L_loop_end-L_loop' % (SRD_B + 2))
        A('s_lshl_b32 s%d, s%d, 13' % (sA, sW))
        A('v_lshlrev_b32 v%d, 7, v0' % vT0)
        A('buffer_load_dword v252, v%d, %s, s%d offen' % (vT0, S4(SRD_B), sA))
    vWa, vWb, vWc, vWd, vWe = vA, vA + 1, vA + 2, vA + 3, vA + 4
    nt = ' nt' if opt.get('nt', 31) & 1 else ''
    bits(A, vWd, [(3, 3, 11), (0, 3, 4)], vT0)
    A('s_lshl_b32 s%d, s%d, 2' % (sA, sG))
    A('s_add_u32 s%d, s%d, s%d' % (sA, sA, sW))
    A('s_lshl_b32 s%d, s%d, 18' % (sA, sA))
    A('s_lshl_b32 s%d, s%d, 7' % (sB, sC))
    A('s_add_u32 s%d, s%d, s%d' % (sA, sA, sB))
    if opt.get('wox'):
        A('s_xor_b32 s%d, s%d, %d' % (sA, sA, opt['wox']))
    for k in range(16):
        A('s_add_u32 s%d, s%d, 0x%x' % (sB, sA, k * 8 * 2048))
        A('buffer_load_dwordx4 %s, v%d, %s, s%d offen%s' % (a(192 + 4 * k, 4), vWd, S4(SRD_D), sB, (nt, '', ' sc1')[opt.get('opl', 0)]))
    bits(A, vWa, [(2, 4, 13), (0, 2, 4)], vT0)
    bits(A, vWe, [(3, 3, 13), (0, 3, 4)], vT0)
    sW1v, sW1q = sHome, sKn
    A('s_lshl_b32 s%d, s%d, 21' % (sA, sW))
    A('s_lshl_b32 s%d, s%d, 10' % (sB, sG))
    A('s_add_u32 s%d, s%d, s%d' % (sA, sA, sB))
    A('s_lshl_b32 s%d, s%d, 6' % (sB, sC))
    A('s_add_u32 s%d, s%d, s%d' % (sW1v, sA, sB))
    A('s_and_b32 s%d, s%d, 0xffffff80' % (sW1q, sW1v))

    def w1q(t):
        for i in range(8):
            A('s_add_u32 s%d, s%d, 0x%x' % (sB, sW1q, (64 * t + 8 * i) * 8192))
            A('buffer_load_dwordx4 %s, v%d, %s, s%d offen%s' % (a(W1(t, 0, 0) + 4 * i, 4), vWe, S4(SRD_A), sB, nt))

    def w1v(t):
        for i in range(4):
            A('s_add_u32 s%d, s%d, 0x%x' % (sB, sW1v, (64 * t + 16 * i) * 8192))
            A('buffer_load_dwordx4 %s, v%d, %s, s%d offen%s' % (a(W1(t, 2, 0) + 4 * i, 4), vWa, S4(SRD_C), sB, (nt, '', ' sc1')[opt.get('vpl', 0)]))
    A('v_lshlrev_b32 v%d, 4, v0' % vL16)
    A('v_lshlrev_b32 v%d, 2, v0' % vL4)
    A('v_mov_b32 v%d, -1' % vSent)
    A('v_and_b32 v%d, 8, v0' % vT0)
    A('v_cmp_eq_u32 vcc, 0, v%d' % vT0)
    A('v_mov_b32 v%d, 0xeeee' % vT1)
    A('v_mov_b32 v%d, 0x4444' % vT2)
    A('v_cndmask_b32 v%d, v%d, v%d, vcc' % (vIdx, vT1, vT2))
    A('s_mov_b32 s%d, 0' % sStep)
    A('s_lshl_b32 s%d, s%d, 15' % (sA, sG))
    A('s_add_u32 s%d, s%d, 0x%x' % (sA, sA, MEMR))
    A('s_lshl_b32 s%d, s%d, 12' % (sB, sW))
    A('s_add_u32 s%d, s%d, s%d' % (sMemR, sA, sB))
    A('s_lshl_b32 s%d, s%d, 10' % (sB, sC))
    A('s_add_u32 s%d, s%d, s%d' % (sA, sA, sB))
    A('s_lshl_b32 s%d, s%d, 8' % (sB, sW))
    A('s_add_u32 s%d, s%d, s%d' % (sMemW, sA, sB))
    A('s_lshl_b32 s%d, s%d, 16' % (sA, sG))
    A('s_add_u32 s%d, s%d, 0x%x' % (sQkvW, sA, QKVR))
    A('s_mul_i32 s%d, s%d, 6144' % (sB, sW))
    A('s_add_u32 s%d, s%d, s%d' % (sQkvR, sQkvW, sB))
    A('s_add_u32 s%d, s%d, 4096' % (sQkvR2, sQkvR))
    A('s_lshr_b32 s%d, s%d, 2' % (sB, sC))
    A('s_mul_i32 s%d, s%d, 6144' % (sB, sB))
    A('s_add_u32 s%d, s%d, s%d' % (sQkvW, sQkvW, sB))
    A('s_lshl_b32 s%d, s%d, 2' % (sA, sG))
    A('s_add_u32 s%d, s%d, s%d' % (sA, sA, sW))
    A('s_lshl_b32 s%d, s%d, 13' % (sA, sA))
    A('s_add_u32 s%d, s%d, 0x%x' % (sKx, sA, KX))
    A('s_add_u32 s%d, s%d, 4096' % (sKx2, sKx))
    A('s_add_u32 s%d, s%d, 0x%x' % (sVx, sA, VX))
    A('s_add_u32 s%d, s%d, 4096' % (sVx2, sVx))
    A('s_and_b32 s%d, s%d, 7' % (sB, sC))
    A('s_lshl_b32 s%d, s%d, 10' % (sB, sB))
    A('s_cmp_lt_u32 s%d, 8' % sC)
    A('s_cselect_b32 s%d, s%d, s%d' % (sPf, sKx, sVx))
    A('s_add_u32 s%d, s%d, s%d' % (sPf, sPf, sB))
    A('s_add_u32 s%d, s%d, 0x40000' % (sPf, sPf))
    A('s_lshl_b32 s%d, s%d, 3' % (sA, sC))
    A('s_add_u32 s%d, s%d, s%d' % (sA, sA, sW))
    A('s_lshl_b32 s%d, s%d, 11' % (sA, sA))
    A('s_add_u32 s%d, s%d, 0x%x' % (sPartB, sA, PART))
    A('s_lshl_b32 s%d, s%d, 2' % (sA, sG))
    A('s_lshr_b32 s%d, s%d, 2' % (sB, sC))
    A('s_add_u32 s%d, s%d, s%d' % (sA, sA, sB))
    A('s_lshl_b32 s%d, s%d, 12' % (sKvm, sA))
    A('s_add_u32 s%d, s%d, 0x%x' % (sKvm, sKvm, KVM - 2048))
    A('s_mov_b32 s%d, %s' % (sScale, f32(128 ** -0.5 * LOG2E)))
    A('s_and_b32 s%d, s%d, 1' % (sA, sW))
    A('s_lshl_b32 s%d, s%d, 1' % (sA, sA))
    A('v_lshrrev_b32 v%d, 5, v0' % vT0)
    A('v_add_u32 v%d, s%d, v%d' % (vT0, sA, vT0))
    A('v_and_b32 v%d, 31, v0' % vT1)
    A('v_lshlrev_b32 v%d, 2, v%d' % (vT1, vT1))
    A('s_bfe_u32 s%d, s%d, 0x10001' % (sB, sC))
    A('s_lshl_b32 s%d, s%d, 10' % (sB, sB))
    A('s_lshr_b32 s%d, s%d, 1' % (sA, sW))
    A('s_lshl_b32 s%d, s%d, 7' % (sCc, sA))
    A('s_add_u32 s%d, s%d, s%d' % (sCc, sCc, sB))
    A('s_lshl_b32 s%d, s%d, 9' % (sA, sA))
    A('s_add_u32 s%d, s%d, s%d' % (sA, sA, sB))
    A('s_add_u32 s%d, s%d, 2048' % (sA, sA))
    A('v_lshl_add_u32 v%d, v%d, 8, v%d' % (vT2, vT0, vT1))
    A('v_add_u32 v%d, s%d, v%d' % (vT2, sCc, vT2))
    A('v_lshl_add_u32 v%d, v%d, 7, v%d' % (vT1, vT0, vT1))
    A('v_add_u32 v%d, s%d, v%d' % (vT3, sA, vT1))
    A('s_bitcmp1_b32 s%d, 0' % sC)
    A('s_cselect_b64 %s, -1, 0' % s(sLo, 2))
    A('s_cselect_b32 s%d, 0, 0x%x' % (sA, OOB))
    A('v_cndmask_b32 v%d, v%d, v%d, %s' % (vQst, vT2, vT3, s(sLo, 2)))
    A('v_add_u32 v%d, s%d, v%d' % (vKst, sA, vT3))
    A('s_and_b32 s%d, s%d, 1' % (sA, sC))
    A('s_lshl_b32 s%d, s%d, 9' % (sA, sA))
    A('s_add_u32 s%d, s%d, s%d' % (sA, sA, sB))
    A('s_add_u32 s%d, s%d, 4096' % (sA, sA))
    A('s_cmp_lt_u32 s%d, 2' % sW)
    A('s_cselect_b32 s%d, s%d, 0x%x' % (sA, sA, OOB))
    A('v_add_u32 v%d, s%d, v%d' % (vVst, sA, vT1))
    A('v_bfe_u32 v%d, v0, 3, 2' % vT1)
    A('v_xor_b32 v%d, v%d, v%d' % (vT1, vT1, vT0))
    A('v_lshlrev_b32 v%d, 5, v%d' % (vT1, vT1))
    A('v_lshl_add_u32 v%d, v%d, 7, v%d' % (vT1, vT0, vT1))
    A('v_and_b32 v%d, 3, v0' % vT2)
    A('v_lshl_add_u32 v%d, v%d, 3, v%d' % (vT1, vT2, vT1))
    A('v_bfe_u32 v%d, v0, 2, 1' % vT2)
    A('v_lshl_add_u32 v%d, v%d, 2, v%d' % (vT1, vT2, vT1))
    A('v_add_u32 v%d, 2048, v%d' % (vR1v, vT1))
    A('s_lshr_b32 s%d, s%d, 1' % (sA, sW))
    A('s_lshl_b32 s%d, s%d, 10' % (sA, sA))
    A('v_add_u32 v%d, s%d, v%d' % (vR1, sA, vT1))
    A('v_bfe_u32 v%d, v0, 4, 1' % vT0)
    A('v_lshrrev_b32 v%d, 5, v0' % vT1)
    A('v_lshl_add_u32 v%d, v%d, 1, v%d' % (vT0, vT0, vT1))
    A('s_mul_i32 s%d, s%d, 3072' % (sA, sW))
    for (dst, kind) in ((vW1q, 0), (vW1k, 1)):
        if kind == 0:
            A('v_bfe_u32 v%d, v0, 2, 2' % vT1)
            A('v_and_b32 v%d, 3, v0' % vT3)
        else:
            A('v_bfe_u32 v%d, v0, 3, 1' % vT1)
            A('v_and_b32 v%d, 1, v0' % vT2)
            A('v_lshl_add_u32 v%d, v%d, 1, v%d' % (vT1, vT1, vT2))
            A('v_bfe_u32 v%d, v0, 1, 2' % vT3)
        A('v_xor_b32 v%d, v%d, v%d' % (vT2, vT1, vT0))
        A('v_lshlrev_b32 v%d, 5, v%d' % (vT2, vT2))
        A('v_lshl_add_u32 v%d, v%d, 7, v%d' % (vT2, vT1, vT2))
        A('v_lshl_add_u32 v%d, v%d, 3, v%d' % (vT2, vT3, vT2))
        A('v_add_u32 v%d, s%d, v%d' % (dst, sA, vT2))
    A('v_cndmask_b32 v%d, v%d, v%d, %s' % (vW1q, vW1q, vW1k, s(sLo, 2)))
    for i in range(4):
        A('v_mov_b32 v%d, 0x3f803f80' % (vOne + i))
        A('v_mov_b32 v%d, 0' % (vPs + i))
    for i in range(2):
        A('v_mov_b32 v%d, 0x3f003f00' % (vHalf + i))
        A('v_mov_b32 v%d, 0' % (vPms + i))
    A('v_and_b32 v%d, 8, v0' % vT0)
    A('v_cmp_eq_u32 vcc, 0, v%d' % vT0)
    A('v_mov_b32 v%d, 0x7f800000' % vT1)
    A('v_mov_b32 v%d, 0xff800000' % vT2)
    A('v_cndmask_b32 v%d, v%d, v%d, vcc' % (vBias, vT1, vT2))
    A('v_and_b32 v%d, 3, v0' % vT0)
    A('v_lshlrev_b32 v%d, 4, v%d' % (vT1, vT0))
    A('v_mov_b32 v%d, 0x3f80' % vT2)
    A('v_lshlrev_b32 v%d, v%d, v%d' % (vT1, vT1, vT2))
    A('v_cmp_gt_u32 vcc, 2, v%d' % vT0)
    A('v_cndmask_b32 v%d, 0, v%d, vcc' % (vT1, vT1))
    A('v_bfe_u32 v%d, v0, 2, 2' % vT0)
    for i in range(4):
        A('v_cmp_eq_u32 vcc, %d, v%d' % (i, vT0))
        A('v_cndmask_b32 v%d, 0, v%d, vcc' % (vSel + i, vT1))
    A('s_lshl_b32 s%d, s%d, 2' % (sA, sW))
    A('s_add_u32 s%d, s%d, %d' % (sA, sA, LDSL))
    A('v_add_u32 v%d, s%d, v%d' % (vW2l, sA, vL16))
    A('v_and_b32 v%d, 1, v0' % vT0)
    A('v_lshrrev_b32 v%d, 4, v0' % vT1)
    A('v_lshl_add_u32 v%d, v%d, 2, v%d' % (vT0, vT0, vT1))
    A('v_lshlrev_b32 v%d, 4, v%d' % (vT1, vT0))
    A('v_add_u32 v%d, %d, v%d' % (vR2l, LDSL, vT1))
    A('v_and_b32 v%d, 2, v0' % vT1)
    A('v_xor_b32 v%d, v%d, v%d' % (vT0, vT0, vT1))
    A('v_lshlrev_b32 v%d, 4, v%d' % (vT0, vT0))
    A('v_lshl_add_u32 v%d, v%d, 7, v%d' % (vT0, vT1, vT0))
    A('v_bfe_u32 v%d, v0, 3, 1' % vT1)
    A('v_lshl_add_u32 v%d, v%d, 7, v%d' % (vT0, vT1, vT0))
    A('v_bfe_u32 v%d, v0, 2, 1' % vT1)
    A('v_lshl_add_u32 v%d, v%d, 3, v%d' % (vT0, vT1, vT0))
    A('s_lshl_b32 s%d, s%d, 9' % (sA, sW))
    A('s_add_u32 s%d, s%d, %d' % (sA, sA, LDS2))
    A('v_add_u32 v%d, s%d, v%d' % (vR2, sA, vT0))
    A('v_bfe_u32 v%d, v0, 3, 1' % vT0)
    A('v_lshlrev_b32 v%d, 9, v%d' % (vT0, vT0))
    A('v_lshrrev_b32 v%d, 4, v0' % vT1)
    A('v_lshl_add_u32 v%d, v%d, 7, v%d' % (vT0, vT1, vT0))
    A('v_and_b32 v%d, 2, v%d' % (vT1, vT1))
    A('v_and_b32 v%d, 7, v0' % vT2)
    A('v_xor_b32 v%d, v%d, v%d' % (vT1, vT1, vT2))
    A('v_lshl_add_u32 v%d, v%d, 4, v%d' % (vT0, vT1, vT0))
    A('s_lshl_b32 s%d, s%d, 11' % (sA, sW))
    A('s_add_u32 s%d, s%d, %d' % (sA, sA, LDS2))
    A('v_add_u32 v%d, s%d, v%d' % (vW2, sA, vT0))

    A('s_lshl_b32 s%d, s%d, 10' % (sA, sG))
    A('s_lshl_b32 s%d, s%d, 8' % (sB, sW))
    A('s_add_u32 s%d, s%d, s%d' % (sA, sA, sB))
    A('s_add_u32 s%d, s%d, 0x%x' % (sA, sA, F_KV))
    bits(A, vT1, [(0, 1, 7)], vT0, 's%d' % sA)
    bits(A, vT2, [(0, 4, 6)], vT0, '0x%x' % F_VOTE)
    A('v_and_b32 v%d, 48, v0' % vT0)
    A('v_cmp_eq_u32 vcc, 16, v%d' % vT0)
    A('v_cndmask_b32 v%d, v%d, v%d, vcc' % (vFa, vT1, vT2))

    if opt.get('iw', 0):
        A('s_barrier')
        for w in range(3):
            A('s_cmp_eq_u32 s%d, %d' % (sW, w))
            A('s_cbranch_scc1 L_hk%d' % w)
        A('s_branch L_hk3')
        A.label('L_hkret')
    def mem0_loads():
        bits(A, vT2, [(0, 3, 11), (3, 3, 4)], vT0)
        A('s_lshl_b32 s%d, s%d, 9' % (sA, sW))
        for t in range(4):
            A('buffer_load_dwordx4 %s, v%d, %s, s%d offen offset:%d' % (v(vM + 4 * t, 4), vT2, S4(SRD_E), sA, t * 128))
    A('s_lshl_b32 s%d, s%d, 14' % (sCc, sW))
    A('s_add_u32 s%d, s%d, %d' % (sCc, sCc, LDSW))
    A('v_add_u32 v%d, s%d, v%d' % (vWb, sCc, vL16))
    bits(A, vWc, [(2, 1, 11), (4, 2, 9), (3, 1, 7), (0, 2, 3)], vT0, 's%d' % sCc)
    w1q(0); w1v(0)
    A('s_waitcnt vmcnt(12)')
    for k in range(16):
        A('ds_write_b128 v%d, %s offset:%d' % (vWb, a(192 + 4 * k, 4), k * 1024))
        if k == 7:
            A('s_waitcnt lgkmcnt(0)')
    A('s_waitcnt lgkmcnt(0)')
    for n in range(4):
        for j in range(4):
            for pp in range(2):
                A('ds_read_b64_tr_b16 %s, v%d offset:%d' % (a(WO(n, j) + 2 * pp, 2), vWc, (32 * j + 2 * pp) * 128 + n * 32))
        A('s_waitcnt lgkmcnt(0)')
    if opt.get('prof'):
        A('s_memrealtime s[98:99]')
    bits(A, vWc, [(5, 1, 11), (4, 1, 9), (3, 1, 10), (2, 1, 7), (0, 2, 3)], vT0, 's%d' % sCc)
    bits(A, vWd, [(5, 1, 10), (4, 1, 8), (3, 1, 9), (2, 1, 6), (0, 2, 3)], vT0, 's%d' % sCc)
    for t in range(4):
        if t < 3:
            w1q(t + 1)
        A('s_waitcnt vmcnt(%d)' % (12 if t < 3 else 4))
        for i in range(8):
            A('ds_write_b128 v%d, %s offset:%d' % (vWb, a(W1(t, 0, 0) + 4 * i, 4), i * 1024))
        for m in range(2):
            A('s_waitcnt lgkmcnt(4)')
            for tt in range(2):
                for pp in range(4):
                    A('ds_read_b64_tr_b16 %s, v%d offset:%d' % (a(W1(t, m, tt) + 2 * pp, 2), vWc, (32 * (pp >> 1) + 2 * (pp & 1)) * 128 + m * 64 + tt * 32))
        if t < 3:
            w1v(t + 1)
        else:
            mem0_loads()
            init_load(A, vT0, vT1)
        A('s_waitcnt vmcnt(%d) lgkmcnt(0)' % (12 if t < 3 else 5))
        for i in range(4):
            A('ds_write_b128 v%d, %s offset:%d' % (vWb, a(W1(t, 2, 0) + 4 * i, 4), 8192 + i * 1024))
        for tt in range(2):
            for pp in range(4):
                A('ds_read_b64_tr_b16 %s, v%d offset:%d' % (a(W1(t, 2, tt) + 2 * pp, 2), vWd, 8192 + (32 * (pp >> 1) + 2 * (pp & 1)) * 64 + tt * 32))
        A('s_waitcnt lgkmcnt(0)')
    def vox(fill=None):
        fill = fill or {}
        k = 0
        for n in range(4):
            for j in range(4):
                for tt in range(2):
                    acc = v(vT + (n * 2 + tt) * 4, 4)
                    A('v_mfma_f32_16x16x32_bf16 %s, %s, %s, %s' % (acc, v(vVx + (tt * 4 + j) * 4, 4), a(WO(n, j), 4), acc if j else '0'))
                    for o in fill.get(k, []):
                        A(o)
                    k += 1
                    if n > 0 and j in (1, 2):
                        jj = 2 * (j - 1) + tt
                        b = vT + (n - 1) * 8 + 2 * jj
                        A('v_cvt_pk_bf16_f32 v%d, v%d, v%d' % (vVOx + (n - 1) * 4 + jj, b, b + 1))

    def vox_tail():
        return ['v_cvt_pk_bf16_f32 v%d, v%d, v%d' % (vVOx + 12 + jj, vT + 24 + 2 * jj, vT + 25 + 2 * jj) for jj in range(4)]

    def paced(ops, every=4):
        for i, o in enumerate(ops):
            A(o)
            if i % every == every - 1 and i != len(ops) - 1:
                A('s_nop 0')

    def zeros(base, n, val='0'):
        return ['v_mov_b32 v%d, %s' % (base + i, val) for i in range(n)]

    cap_vm(A, cap0)
    tstamp(A, opt, 1, vT2, vT3, sA)
    if opt.get('prof'):
        A('s_mov_b32 s78, s98')
        tstamp(A, opt, 3, vT2, vT3, sA, now=False)
    wait_init(A, vT0, vT1, sA, sB, True)
    A('s_lshr_b32 s%d, s%d, 2' % (sSide, sX))
    A('s_sub_u32 s%d, 0, s%d' % (sSide, sSide))

    def kv_ops(lab, ahead=2):
        return ['v_readlane_b32 s%d, v%d, 0' % (sCc, vFv), 'v_readlane_b32 s%d, v%d, 1' % (sB, vFv),
                's_add_u32 s%d, s%d, %d' % (sA, sStep, ahead), 's_min_u32 s%d, s%d, 64' % (sA, sA),
                's_min_i32 s%d, s%d, s%d' % (sB, sB, sCc), 's_max_i32 s%d, s%d, s%d' % (sKn, sKn, sB),
                's_cmp_lt_i32 s%d, s%d' % (sKn, sA), 's_cbranch_scc1 %s' % lab]

    def kv_check(lab, ahead=2):
        for o in kv_ops(lab, ahead):
            A(o)

    ld_flags = 'buffer_load_dword v%d, v%d, %s, 0 offen sc1' % (vFv, vFa, S4(WS))
    A('s_mov_b32 s%d, 0' % sKn)
    A.label('L_c_kv0')
    A(ld_flags)
    A('s_waitcnt vmcnt(0)')
    kv_check('L_c_kv1', 1)
    A('s_branch L_c_kv2')
    A.label('L_c_kv1')
    A('s_sleep 1')
    timeout_stub(A, 'L_c_kv0')
    A.label('L_c_kv2')
    A('v_cmp_lt_i32 vcc, -1, v%d' % vFv)
    A('s_xor_b32 s%d, vcc_lo, s%d' % (sHome, sSide))
    A('s_lshr_b32 s%d, s%d, 3' % (sA, sHome))
    A('s_andn2_b32 s%d, 0x2000, s%d' % (sA, sA))
    A('v_readlane_b32 s%d, v%d, 0' % (sB, vFa))
    A('s_add_u32 s%d, s%d, s%d' % (sA, sA, sB))
    bits(A, vFa, [(0, 1, 7)], vT0, 's%d' % sA)
    rmask = sum(1 << int(x) for x in str(opt.get('rf', '0.1.2.4.7.11.17.26.38.48')).split('.'))
    A('s_mov_b32 s%d, 0x%x' % (sLo, rmask & 0xffffffff))
    A('s_mov_b32 s%d, 0x%x' % (sLo + 1, rmask >> 32))
    A('s_mov_b32 s%d, 0' % sFo)
    for f in range(8):
        A('buffer_load_dwordx4 %s, v%d, %s, s%d offen offset:%d sc1' % (v(vVx + 4 * f, 4), vL16, S4(WS), (sVx, sVx2)[f >> 2], (f & 3) * 1024))
    for f in range(8):
        A('buffer_load_dwordx4 %s, v%d, %s, s%d offen offset:%d sc1' % (v(vKx + 4 * f, 4), vL16, S4(WS), (sKx, sKx2)[f >> 2], (f & 3) * 1024))
    for i in range(16):
        A('v_min_u32 v%d, -2, v%d' % (vM + i, vM + i))
    A('s_add_u32 s%d, s%d, 0x40000' % (sVx, sVx))
    A('s_add_u32 s%d, s%d, 0x40000' % (sVx2, sVx2))
    A('s_mov_b32 s%d, 0' % sPo)
    A('s_mov_b32 s%d, 0' % sD)
    A('s_waitcnt vmcnt(8)')
    vox()
    paced(zeros(vA, 24) + vox_tail() + zeros(vT, 16) + zeros(MM, 4) + zeros(vQ, 4, '-1') + zeros(vQ + 8, 4, '-1') + zeros(vKm, 8, '-1'))
    A('s_waitcnt vmcnt(0)')
    tstamp(A, opt, 2, vT0, vT1, sA)

    def part_slots():
        A('s_lshr_b32 s%d, s%d, 21' % (sA, sPo))
        A('s_add_u32 s%d, s%d, 3' % (sA, sA))
        A('s_lshr_b32 s%d, s%d, s%d' % (sA, sHome, sA))
        A('s_and_b32 s%d, s%d, 0x2000' % (sA, sA))
        A('s_add_u32 s%d, s%d, s%d' % (sA, sA, sPo))
        A('s_add_u32 s%d, s%d, s%d' % (sPartR, sPartB, sA))
        A('s_lshl_b32 s%d, s%d, 8' % (sB, sG))
        A('s_add_u32 s%d, s%d, s%d' % (sPartA, sPartR, sB))
        A('s_xor_b32 s%d, s%d, 0x2000' % (sPartW, sPartA))
    part_slots()

    PT = 96
    stamps = []

    names = opt.get('marks', 'm0ok,st1end,qkvst,q0ok,Send,st2end,partst').split(',') + ['gath', 'gathok']
    assert len(names) == 9

    def stamp(nm):
        if prof and nm in names:
            i = names.index(nm)
            A('s_memtime s[%d:%d]' % (12 + 2 * i, 13 + 2 * i))

    if lite:
        vTr = V('trace')
        A('v_mov_b32 v%d, 0' % vTr)
        A('s_memtime s[28:29]')
        A('s_memtime s[96:97]')
        A('s_memrealtime s[98:99]')
        A('s_waitcnt lgkmcnt(0)')
        for n_ in (sN1, sN2, sN3):
            A('s_mov_b32 s%d, 0' % n_)

    SEG = 0 if opt.get('sameseg') else 0x40000
    loc = '@LOC@'

    def ldx4(dst, so, off):
        return 'buffer_load_dwordx4 %s, v%d, %s, s%d offen offset:%d sc1' % (v(dst, 4), vL16, S4(WS), so, off)

    def ld_mem(t):
        A(ldx4(vM + 4 * t, sMemR, t * 1024))

    def chk4(b, tmp):
        return ['v_max3_u32 v%d, v%d, v%d, v%d' % (tmp, b, b + 1, b + 2), 'v_max_u32 v%d, v%d, v%d' % (tmp, tmp, b + 3)]

    def chk4more(b, tmp):
        return ['v_max3_u32 v%d, v%d, v%d, v%d' % (tmp, tmp, b, b + 1), 'v_max3_u32 v%d, v%d, v%d, v%d' % (tmp, tmp, b + 2, b + 3)]

    def cmpv(tmp):
        return 'v_cmp_eq_u32 vcc, -1, v%d' % tmp

    def smf1(t, m, tt):
        A('v_smfmac_f32_16x16x64_bf16 %s, %s, %s, v%d' % (v(vA + 8 * m + 4 * tt, 4), v(vM + 4 * t, 4), a(W1(t, m, tt), 8), vIdx))

    def add2(d, x, y):
        if opt.get('pk', 1):
            A('v_pk_add_f32 %s, %s, %s' % (v(d, 2), v(x, 2), v(y, 2)))
        else:
            A('v_add_f32 v%d, v%d, v%d' % (d, x, y))
            A('v_add_f32 v%d, v%d, v%d' % (d + 1, x + 1, y + 1))

    def fold(m, vs=None):
        b = vA + 8 * m
        f = vF + 4 * m
        n_ = 0
        for tt in range(2):
            for j in range(2):
                A('v_permlane32_swap_b32 v%d, v%d' % (b + 4 * tt + j, b + 4 * tt + j + 2))
                if vs and n_ < 3:
                    smf1(*vs.pop(0))
                n_ += 1
        for tt in range(2):
            add2(f + 2 * tt, b + 4 * tt, b + 4 * tt + 2)
        if vs:
            smf1(*vs.pop(0))
        A('ds_write2st64_b64 v%d, %s, %s offset0:%d offset1:%d' % (vW1q if m < 2 else vW1k, v(f, 2), v(f + 2, 2), 2 * m, 2 * m + 1))

    def rd1(ad, r_=None):
        r_ = vR if r_ is None else r_
        for w in range(4):
            A('ds_read2st64_b32 %s, v%d offset0:%d offset1:%d' % (v(r_ + 2 * w, 2), ad, 12 * w, 12 * w + 2))

    def red1(dst, extra='', r_=None, more=0):
        r_ = vR if r_ is None else r_
        A('s_waitcnt lgkmcnt(%d)' % (0 if prof else 2 + more))
        A(extra)
        add2(r_, r_, r_ + 2)
        A('s_waitcnt lgkmcnt(%d)' % (0 if prof else more))
        add2(r_ + 4, r_ + 4, r_ + 6)
        add2(r_, r_, r_ + 4)
        A('v_cvt_pk_bf16_f32 v%d, v%d, v%d' % (dst, r_, r_ + 1))
        A('v_min_u32 v%d, -2, v%d' % (dst, dst))

    def st4(src, ad, so, mod):
        return 'buffer_store_dword v%d, v%d, %s, s%d offen%s' % (src, ad, S4(WS), so, mod)

    ld_q = [ldx4(vQ, sQkvR, 0), ldx4(vQ + 8, sQkvR, 1024)]
    ld_k = [ldx4(vKm, sQkvR, 2048), ldx4(vKm + 4, sQkvR, 3072)]
    ld_v = [ldx4(vVm, sQkvR2, 0), ldx4(vVm + 4, sQkvR2, 1024)]
    st_v = st4(vVv, vVst, sQkvW, loc)
    ld_part = [ldx4(vPt, sPartR, 0), ldx4(vPt + 4, sPartR, 1024)]
    X0, X1 = vS, vS + 4
    cnt = lambda n_: A('s_add_u32 s%d, s%d, 1' % (n_, n_)) if lite else None

    hooks = []

    def hook(align=False):
        if not opt.get('iw', 0):
            return
        if align:
            A('.p2align 6')
        hooks.append(len(hooks))
        A.label('L_hk%d' % hooks[-1])
        A('s_branch @HK%d@' % hooks[-1])

    def nxt(Sm, t):
        for d in range(1, 5):
            if Sm >> ((t + d) & 3) & 1:
                return (t + d) & 3

    def block(Sm, t, wait=None):
        rest = Sm & ~(1 << t)
        n = nxt(rest, t) if rest else None
        smf1(t, 0, 0)
        if rest:
            if wait is not None:
                A('s_waitcnt vmcnt(%d)' % wait)
            for o in chk4(vM + 4 * n, vT0):
                A(o)
        smf1(t, 0, 1)
        if rest:
            A(cmpv(vT0))
        smf1(t, 1, 0)
        smf1(t, 1, 1)
        return rest, n

    def first_pass():
        A('s_waitcnt vmcnt(3)')
        for o in chk4(vM, vT0):
            A(o)
        A(cmpv(vT0))
        A('s_cbranch_vccnz L_F15_0')
        stamp('m0ok')
        Sm = 15
        for t in range(4):
            stamp('B%d' % t)
            Sm, n = block(Sm, t, 2 - t)
            if Sm:
                A('s_cbranch_vccnz L_F%d_%d' % (Sm, n))

    def poll_nodes_ooo():
        for Sm in sorted(range(1, 16), key=lambda x: -bin(x).count('1')):
            ts = [t for t in range(4) if Sm >> t & 1]
            hook(True)
            for t in ts:
                A.label('L_P%d_%d' % (Sm, t))
                A('s_waitcnt vmcnt(3)')
                for o in chk4(vM + 4 * t, vT0):
                    A(o)
                A(cmpv(vT0))
                A('s_cbranch_vccz L_V%d_%d' % (Sm, t))
                A.label('L_F%d_%d' % (Sm, t))
                ld_mem(t)
                cnt(sN1)
            timeout_stub(A, 'L_P%d_%d' % (Sm, ts[0]))
            if len(ts) > 1:
                hook()
            for t in ts:
                hook(True)
                A.label('L_V%d_%d' % (Sm, t))
                if Sm == 15:
                    stamp('m0ok')
                stamp('B%d' % (4 - len(ts)))
                rest, n = block(Sm, t)
                if rest:
                    A('s_cbranch_vccz L_V%d_%d' % (rest, n))
                    A('s_branch L_F%d_%d' % (rest, n))
                else:
                    A('s_branch L_T1')

    def poll_nodes():
        if opt.get('ooo', 1):
            return poll_nodes_ooo()
        for k in range(4):
            full = 15 & ~((1 << k) - 1)
            for Sm in sorted(range(1, 16), key=lambda x: -bin(x).count('1')):
                if Sm & ~full:
                    continue
                ts = [t for t in range(4) if Sm >> t & 1]
                for t in ts:
                    rest = Sm & ~(1 << t)
                    A.label('L_P%d_%d_%d' % (k, Sm, t))
                    A('s_waitcnt vmcnt(%d)' % opt.get('lim', 3))
                    for o in chk4(vM + 4 * t, vT0):
                        A(o)
                    A(cmpv(vT0))
                    A('s_cbranch_vccz %s' % ('L_P%d_%d_%d' % (k, rest, nxt(rest, t)) if rest else 'L_G%d' % k))
                    if Sm == full and t == k:
                        A.label('L_F%d_%d' % (Sm, t))
                    ld_mem(t)
                    cnt(sN1)
                timeout_stub(A, 'L_P%d_%d_%d' % (k, Sm, ts[0]))
        for k in range(4):
            A.label('L_G%d' % k)
            if k == 0:
                stamp('m0ok')
            stamp('B%d' % k)
            block(1 << k, k)
        A('s_branch L_T1')

    A('s_cmp_lt_u32 s%d, %d' % (sPure, NPURE))
    A('s_cbranch_scc1 L_loop_i')
    loop_start = len(A.lines)
    A('.p2align 6')
    A.label('L_loop')
    first_pass()
    A.label('L_T1')
    stamp('T1')
    kxl = [ldx4(vKx + 4 * f, (sKx, sKx2)[f >> 2], (f & 3) * 1024) for f in range(8)]
    na = opt.get('na', 3)
    ka = kxl[8 - na:]
    nk = lambda: A(ka.pop(0)) if ka else None
    qk = ld_q + ld_k
    order = []
    zq = []
    if opt.get('split', 1):
        fold(0)
        stamp('f0')
        fold(1)
        stamp('f1')
        for t in range(3):
            smf1(t, 2, 0)
            nk()
            smf1(t, 2, 1)
        A('s_waitcnt lgkmcnt(0)')
        stamp('st1end')
        A('s_barrier')
        stamp('bar1')
        rd1(vR1)
        smf1(3, 2, 0); nk(); smf1(3, 2, 1)
        while ka:
            nk()
        red1(vQK)
        A(st4(vQK, vQst, sQkvW, loc))
        stamp('qkvst')
        slots = [int(ch) for ch in str(opt.get('h2s', '2244')).zfill(4)]

        def slot(i):
            for n_, sl_ in enumerate(slots):
                if sl_ == i:
                    A(qk[n_]); order.append(qk[n_])
        fold(2)
        slot(0)
        A('s_add_u32 s%d, s%d, 0x%x' % (sKx, sKx, SEG))
        A('s_add_u32 s%d, s%d, 0x%x' % (sKx2, sKx2, SEG))
        A('s_cmp_eq_u32 s%d, s%d' % (sStep, sD))
        A('s_cbranch_scc1 L_sp')
        A.label('L_spr')
        A('s_waitcnt lgkmcnt(0)')
        A('s_barrier')
        stamp('bar1b')
        slot(1)
        rd1(vR1v)
        slot(2)
        A('s_waitcnt lgkmcnt(%d)' % (0 if prof else 3))
        slot(3)
        red1(vVv)
        A(st_v); order.append(st_v)
        stamp('vst')
        slot(4)
    else:
        vs = [(t, 2, tt) for t in range(4) for tt in range(2)]
        fold(0, vs)
        stamp('f0')
        fold(1, vs)
        stamp('f1')
        fold(2)
        while ka:
            nk()
        A('s_add_u32 s%d, s%d, 0x%x' % (sKx, sKx, SEG))
        A('s_add_u32 s%d, s%d, 0x%x' % (sKx2, sKx2, SEG))
        A('s_waitcnt lgkmcnt(0)')
        stamp('st1end')
        A('s_barrier')
        stamp('bar1')
        rd1(vR1)
        rd1(vR1v, vA)
        red1(vQK, '', vR, 4)
        A(st4(vQK, vQst, sQkvW, loc))
        stamp('qkvst')
        red1(vVv, '', vA)
        A(st_v)
        stamp('vst')
        A('s_cmp_eq_u32 s%d, s%d' % (sStep, sD))
        A('s_cbranch_scc1 L_sp')
        A.label('L_spr')
        zq = zeros(vT, 16) + zeros(MM, 4)
        fz = zq + ['s_nop 0'] * 60
        for i, n_ in enumerate([opt.get('h2d', 6)] + [opt.get('h2p', 10)] * 3):
            paced(fz[:n_]); fz = fz[n_:]
            A(qk[i]); order.append(qk[i])
        paced([o for o in fz if o.startswith('v_')])
    younger = lambda o: len(order) - 1 - order.index(o)
    A.label('L_h2')
    mx = lambda tt, j, first=False: A('v_mfma_f32_16x16x32_bf16 %s, %s, %s, %s' % (v(vS + 4 * tt, 4), v(vKx + (tt * 4 + j) * 4, 4), v(vQ + 4 * j, 4), '0' if first else v(vS + 4 * tt, 4)))
    ror = lambda r_: A('v_mov_b32_dpp v%d, v%d row_ror:8 row_mask:0xf bank_mask:0xf' % (r_ + 4, r_))
    smm = lambda u: A('v_smfmac_f32_16x16x64_bf16 %s, %s, %s, v%d' % (v(MM, 4), v(vKm + 4 * u, 4), v(vQ + 8 * u, 8), vIdx))
    qkr = [vQ, vQ + 8, vKm, vKm + 4]
    mxo = ['v_max3_f32 v%d, v%d, v%d, v%d' % (vT0, vBias, X0, X0 + 1), 'v_max3_f32 v%d, v%d, v%d, v%d' % (vT0, vT0, X0 + 2, X0 + 3),
           'v_max3_f32 v%d, v%d, v%d, v%d' % (vT0, vT0, X1, X1 + 1), 'v_max3_f32 v%d, v%d, v%d, v%d' % (vT0, vT0, X1 + 2, X1 + 3)]
    swm = ['v_permlane32_swap_b32 v%d, v%d' % (MM, MM + 2), 'v_permlane32_swap_b32 v%d, v%d' % (MM + 1, MM + 3)]

    def ck(i):
        for o in chk4(qkr[i], vT3):
            A(o)

    def s_end():
        add2(MM, MM, MM + 2)
        A('v_max3_f32 v%d, v%d, v%d, v%d' % (vT0, vT0, MM, MM + 1))
        A('v_mov_b32 v%d, v%d' % (vT1, vT0))
    h2m = opt.get('h2m', 0)
    if h2m == 2:
        stamp('q0w')
        A('s_waitcnt vmcnt(%d)' % younger(qk[0]))
        stamp('q0l')
        mx(0, 0, True); ck(0)
        mx(1, 0, True); A(cmpv(vT3)); ror(vQ); ror(vQ + 1); ror(vQ + 2); ror(vQ + 3)
        A('s_cbranch_vccnz L_FA15_0')
        mx(0, 1)
        A('s_waitcnt vmcnt(%d)' % younger(qk[1]))
        stamp('q1l')
        ck(1)
        mx(1, 1); A(cmpv(vT3)); ror(vQ + 8)
        mx(0, 2); ror(vQ + 9); ror(vQ + 10)
        mx(1, 2); ror(vQ + 11)
        A('s_cbranch_vccnz L_FA14_1')
        stamp('q0ok')
        mx(0, 3); A(ld_v[0])
        mx(1, 3); A(ld_v[1])
        order += ld_v
        stamp('k0w')
        A('s_waitcnt vmcnt(%d)' % younger(qk[2]))
        smm(0)
        if opt.get('k0c', 1):
            ck(2); A(cmpv(vT3)); A(mxo[0]); A(mxo[1]); A(mxo[2]); A(mxo[3])
            A('s_cbranch_vccnz L_FK12_2')
            stamp('k1w')
            A('s_waitcnt vmcnt(%d)' % younger(qk[3]))
            stamp('k1l')
            smm(1)
            ck(3); A(cmpv(vT3))
            A(swm[0]); A(swm[1])
            s_end()
            A('s_cbranch_vccnz L_FK8_3')
        else:
            stamp('k1w')
            A('s_waitcnt vmcnt(%d)' % younger(qk[3]))
            stamp('k1l')
            smm(1)
            for o in chk4(vKm, vT3) + chk4more(vKm + 4, vT3):
                A(o)
            A(cmpv(vT3))
            A(mxo[0]); A(swm[0]); A(swm[1]); A(mxo[1]); A(mxo[2]); A(mxo[3])
            s_end()
            A('s_cbranch_vccnz L_PK12_2')
    else:
        stamp('q0w')
        A('s_waitcnt vmcnt(%d)' % younger(qk[0]))
        stamp('q0l')
        mx(0, 0, True); ror(vQ); ror(vQ + 1)
        mx(1, 0, True); ror(vQ + 2); ror(vQ + 3)
        A('s_waitcnt vmcnt(%d)' % younger(qk[1]))
        stamp('q1l')
        c1, c2 = chk4(vQ, vT3), chk4more(vQ + 8, vT3)
        mx(0, 2); A(c1[0]); A(c1[1])
        mx(1, 2); A(c2[0]); A(c2[1])
        mx(0, 1); A(cmpv(vT3)); ror(vQ + 8); ror(vQ + 9)
        mx(1, 1); ror(vQ + 10); ror(vQ + 11)
        A('s_cbranch_vccnz %s' % ('L_r2' if h2m == 0 else 'L_PA15_0'))
        stamp('q0ok')
        order_q = list(order)
        mx(0, 3); A(ld_v[0])
        mx(1, 3); A(ld_v[1])
        order += ld_v
        A.label('L_h2k')
        stamp('k0w')
        A('s_waitcnt vmcnt(%d)' % younger(qk[2]))
        smm(0)
        stamp('k1w')
        A('s_waitcnt vmcnt(%d)' % younger(qk[3]))
        stamp('k1l')
        smm(1)
        for o in chk4(vKm, vT3) + chk4more(vKm + 4, vT3):
            A(o)
        A(cmpv(vT3))
        A(mxo[0]); A(swm[0]); A(swm[1]); A(mxo[1]); A(mxo[2]); A(mxo[3])
        order_k = order[order.index(qk[2]):]
        s_end()
        A('s_cbranch_vccnz %s' % ('L_r2k' if h2m == 0 else 'L_PK12_2'))
    A.label('L_sj')
    stamp('kok')
    vxl = [ldx4(vVx + 4 * f, (sVx, sVx2)[f >> 2], (f & 3) * 1024) for f in range(8)]
    bulk = vxl + kxl[:8 - na]
    nbulk = len(bulk)
    nb = lambda: A(bulk.pop(0)) if bulk else None
    early = opt.get('be', 2)
    for i in range(min(early, 1)):
        nb()
    A('v_permlane32_swap_b32 v%d, v%d' % (vT0, vT1))
    A('v_max_f32 v%d, v%d, v%d' % (vT0, vT0, vT1))
    A('v_mov_b32 v%d, v%d' % (vT1, vT0))
    for i in range(max(early - 1, 0)):
        nb()
    A('v_permlane16_swap_b32 v%d, v%d' % (vT0, vT1))
    A('v_max_f32 v%d, v%d, v%d' % (vT0, vT0, vT1))
    A('v_mul_f32 v%d, s%d, v%d' % (vT0, sScale, vT0))
    fma = lambda r_: A('v_fma_f32 v%d, v%d, s%d, -v%d' % (r_, r_, sScale, vT0))
    ex = lambda r_: A('v_exp_f32 v%d, v%d' % (r_, r_))
    cvt = lambda d, x: A('v_cvt_pk_bf16_f32 v%d, v%d, v%d' % (d, x, x + 1))
    shr = lambda d, x: A('v_mov_b32_dpp v%d, v%d row_shr:8 row_mask:0xf bank_mask:0xc' % (d, x))
    for i in range(8):
        fma(vS + i)
    stamp('vw')
    A('s_waitcnt vmcnt(%d)' % early)
    stamp('vl')
    for o in chk4(vVm, vT3) + chk4more(vVm + 4, vT3):
        A(o)
    A(cmpv(vT3))
    for i in range(3):
        ex(vS + i)
    A('s_cbranch_vccnz L_r2v')
    A.label('L_h2v')
    stamp('Send')
    vom = lambda u, n: A('v_smfmac_f32_16x16x64_bf16 %s, %s, %s, v%d' % (v(vT + 4 * n, 4), v(vVm + 4 * u, 4), a(WO(n, 2 * u), 8), vIdx))
    for i in range(8):
        vom(i & 1, i >> 1)
        if i & 1:
            nb()
        if i < 5:
            ex(vS + 3 + i)
        else:
            cvt(vP + i - 5, vS + 2 * (i - 5))
    stamp('vomend')
    cvt(vP + 3, vS + 6)
    fma(MM); fma(MM + 1)
    m32 = lambda d, x, p, c_: A('v_mfma_f32_16x16x32_bf16 %s, %s, %s, %s' % (v(d, 4), v(x, 4), v(p, 4), v(d, 4) if c_ else '0'))
    m16 = lambda d, x, p: A('v_mfma_f32_16x16x16_bf16 %s, %s, %s, %s' % (v(d, 4), v(x, 2), v(p, 2), v(d, 4)))
    cvm = lambda k: cvt(vVOm + k, vT + 2 * k)
    m32(vO, vVOx, vP, 0)
    nb()
    ex(MM)
    m32(vO + 4, vVOx + 8, vP, 0)
    ex(MM + 1)
    m32(vLs, vOne, vP, 0)
    nb()
    shr(vPs, vP); shr(vPs + 1, vP + 1); shr(vPs + 2, vP + 2); shr(vPs + 3, vP + 3)
    cvt(vPm, MM)
    cvt(vPm + 1, MM)
    m32(vO, vVOx + 4, vPs, 1)
    cvm(0)
    A('v_permlane32_swap_b32 v%d, v%d' % (vPm, vPm + 1))
    m32(vO + 4, vVOx + 12, vPs, 1)
    nb()
    cvm(1); cvm(2)
    stamp('m16')
    m16(vLs, vHalf, vPm)
    shr(vPms, vPm); shr(vPms + 1, vPm + 1)
    m16(vO, vVOm, vPm)
    nb()
    cvm(3); cvm(4); cvm(5)
    m16(vO, vVOm + 2, vPms)
    cvm(6); cvm(7)
    m16(vO + 4, vVOm + 4, vPm)
    nb()
    A('v_rcp_f32 v%d, v%d' % (vT1, vLs))
    m16(vO + 4, vVOm + 6, vPms)
    stamp('mend')
    A('ds_write_b32 v%d, v%d' % (vW2l, vT1))
    A('ds_write_b128 v%d, %s' % (vW2, v(vO, 4)))
    while bulk:
        nb()
    A('ds_write_b128 v%d, %s offset:1024' % (vW2, v(vO + 4, 4)))
    A('s_add_u32 s%d, s%d, 0x40000' % (sPf, sPf))
    A('s_waitcnt lgkmcnt(0)')
    stamp('st2end')
    A('s_barrier')
    stamp('bar2')
    A('ds_read_b128 %s, v%d' % (v(vR2d + 8, 4), vR2l))
    for w in range(4):
        A('ds_read_b64 %s, v%d offset:%d' % (v(vR2d + 2 * w, 2), vR2, w * 2048))
    side = []
    if not opt.get('nokvm'):
        side += [st4(vQK, vKst, sKvm, ' sc1'), st4(vVv, vVst, sKvm, ' sc1')]
    if opt.get('pf', 1):
        side += [ldx4(252, sPf, 0)]
    side += ['buffer_load_dword v%d, v%d, %s, s%d offen sc1' % (vFv, vFa, S4(WS), sFo)]
    nse = opt.get('nse', 3)
    for o in side[:nse]:
        A(o)
    for w in range(4):
        A('s_waitcnt lgkmcnt(%d)' % (0 if prof else 3 - w))
        sel = 'op_sel:[0,%d%s] op_sel_hi:[1,%d%s]' % (w & 1, ',0' if w else '', w & 1, ',1' if w else '')
        if w == 0:
            A('v_pk_mul_f32 %s, %s, %s %s' % (v(vR2d, 2), v(vR2d, 2), v(vR2d + 8, 2), sel))
        else:
            A('v_pk_fma_f32 %s, %s, %s, %s %s' % (v(vR2d, 2), v(vR2d + 2 * w, 2), v(vR2d + 8 + (w & 2), 2), v(vR2d, 2), sel))
    cvt(vT0, vR2d)
    A('v_min_u32 v%d, -2, v%d' % (vT0, vT0))
    A(st4(vT0, vL4, sPartA, ' sc1'))
    if not opt.get('nofar'):
        A(st4(vT0, vL4, sPartW, ' sc1'))
    stamp('partst')
    A('s_waitcnt vmcnt(%d)' % (2 - opt.get('nofar', 0) + nbulk - 8 + len(side[:nse])))
    stamp('vxok')
    pre = [st4(vSent, vL4, sMemW, loc),
           's_xor_b32 s%d, s%d, 0x8000' % (sQkvW, sQkvW),
           st4(vSent, vQst, sQkvW, loc), st4(vSent, vVst, sQkvW, loc)]
    pre = side[nse:] + pre
    pre += ['s_xor_b32 s%d, s%d, 0x8000' % (sQkvR, sQkvR), 's_xor_b32 s%d, s%d, 0x8000' % (sQkvR2, sQkvR2),
            's_add_u32 s%d, s%d, 0x20000' % (sKvm, sKvm), 's_xor_b32 s%d, s%d, 0x4000' % (sMemW, sMemW),
            's_xor_b32 s%d, s%d, 0x4000' % (sMemR, sMemR),
            's_add_u32 s%d, s%d, 0x%x' % (sVx, sVx, SEG), 's_add_u32 s%d, s%d, 0x%x' % (sVx2, sVx2, SEG)]
    gpos = opt.get('gpos', 26)
    fill = {}
    for i, o in enumerate(pre):
        fill.setdefault(i, []).append(o)
    sl = ['s_memtime s[26:27]'] if prof else []
    fill.setdefault(gpos, []).extend(['s_nop 15'] * opt.get('w3', 0) + sl + ld_part)
    vox(fill)
    zz = [o for o in zeros(vA, 24) + zeros(vT, 16) + zeros(MM, 4) if o not in zq]
    zz += ['s_nop 0'] * len(zq)
    zw = opt.get('zw', 4)
    paced(zeros(vM, 16, '-1') + vox_tail() + (zeros(vQ, 4, '-1') + zeros(vQ + 8, 4, '-1') + zeros(vKm, 8, '-1') if h2m else []) + zz[:zw])
    zz = zz[zw:]
    if lite and not prof:
        A('s_and_b32 s%d, s%d, %d' % (sA, sStep, 48 if opt.get('trs') else 3))
        A('s_cbranch_scc1 L_notr')
        A('s_memtime s[12:13]')
        A('s_memrealtime s[14:15]')
        A('s_%s_b32 s%d, s%d, 1' % ('lshl' if opt.get('trs') else 'lshr', sA, sStep))
        A('s_mov_b32 m0, s%d' % sA)
        A('s_waitcnt lgkmcnt(0)')
        A('v_writelane_b32 v%d, s%d, m0' % (vTr, sKn if opt.get('trs') else 12))
        A('s_add_u32 m0, s%d, 1' % sA)
        A('v_writelane_b32 v%d, s14, m0' % vTr)
        A.label('L_notr')
    if prof:
        A('s_waitcnt lgkmcnt(0)')
        A('s_sub_u32 s%d, s%d, 33' % (sA, sStep))
        A('s_cmp_lt_u32 s%d, 6' % sA)
        A('s_cbranch_scc0 L_notr')
        A('s_mul_i32 s%d, s%d, 9' % (sA, sA))
        A('s_add_u32 s%d, s%d, 8' % (sA, sA))
        for i in [8] + list(range(8)):
            A('s_mov_b32 m0, s%d' % sA)
            A('v_writelane_b32 v%d, s%d, m0' % (vTr, 12 + 2 * i))
            A('s_add_u32 s%d, s%d, 1' % (sA, sA))
        A.label('L_notr')
    A.label('L_h3')
    lo = vP
    A('s_waitcnt vmcnt(1)')
    A('v_mfma_f32_16x16x32_bf16 %s, %s, %s, 0' % (v(lo, 4), v(vSel, 4), v(vPt, 4)))
    for o in chk4(vPt, vT0):
        A(o)
    A('s_waitcnt vmcnt(0)')
    A('v_mfma_f32_16x16x32_bf16 %s, %s, %s, %s' % (v(lo, 4), v(vSel, 4), v(vPt + 4, 4), v(lo, 4)))
    for o in chk4more(vPt + 4, vT0):
        A(o)
    A(cmpv(vT0))
    A('s_cbranch_vccnz L_r3')
    A.label('L_h3ok')
    stamp('gathok')
    cvt(vT0, lo)
    A('v_min_u32 v%d, -2, v%d' % (vT0, vT0))
    A(st4(vT0, vL4, sMemW, loc))
    stamp('memst')
    A('s_add_u32 s%d, s%d, 1' % (sStep, sStep))
    A('s_bitcmp1_b64 %s, s%d' % (s(sLo, 2), sStep))
    A('s_cselect_b32 s%d, 0, 0x%x' % (sFo, OOB))
    A('s_add_u32 s%d, s%d, 0x40000' % (sPo, sPo))
    A('s_and_b32 s%d, s%d, 0x1c0000' % (sA, sPo))
    A('s_cmp_eq_u32 s%d, 0x1c0000' % sA)
    A('s_cselect_b32 s%d, 0x40000, 0' % sA)
    A('s_add_u32 s%d, s%d, s%d' % (sPo, sPo, sA))
    z0 = opt.get('h1d', 10)
    zs = opt.get('h1s', 12)
    paced(zz[:z0]); zz = zz[z0:]
    for t in range(4):
        ld_mem(t)
        stamp('mi%d' % t)
        if t == 2:
            part_slots()
            paced(zz); zz = []
        paced(zz[:zs]); zz = zz[zs:]
    kv_check('L_kvw')
    A.label('L_kvc')
    A('s_branch L_loop')
    poll_nodes()
    A.label('L_sp')
    A('s_cmp_eq_u32 s%d, 63' % sStep)
    A('s_cbranch_scc1 L_c_tail')
    A('s_mov_b32 s%d, 63' % sD)
    A.label('L_sp1')
    A(ld_flags)
    A('s_waitcnt vmcnt(0)')
    kv_check('L_sp2')
    A('s_branch L_spr')
    A.label('L_sp2')
    timeout_stub(A, 'L_sp1')
    hook(True)
    A.label('L_kvw')
    A(ld_flags)
    A('s_waitcnt vmcnt(0)')
    kv_check('L_kvw2')
    A('s_branch L_kvc')
    A.label('L_kvw2')
    timeout_stub(A, 'L_kvw')
    if h2m:
        for fam, full, cont in (('A', 15, 'L_SA'), ('K', 12, 'L_SK')):
            for Sm in sorted(range(1, 16), key=lambda x: -bin(x).count('1')):
                if Sm & ~full:
                    continue
                ts = [t for t in range(4) if Sm >> t & 1]
                hook(True)
                for t in ts:
                    rest = Sm & ~(1 << t)
                    A.label('L_P%s%d_%d' % (fam, Sm, t))
                    A('s_waitcnt vmcnt(%d)' % opt.get('lim2', 4 if opt.get('split', 1) else 3))
                    ck(t)
                    A(cmpv(vT3))
                    A('s_cbranch_vccz %s' % ('L_P%s%d_%d' % (fam, rest, nxt(rest, t)) if rest else cont))
                    A.label('L_F%s%d_%d' % (fam, Sm, t))
                    A(qk[t])
                    cnt(sN2)
                timeout_stub(A, 'L_P%s%d_%d' % (fam, Sm, ts[0]))
                if len(ts) > 1:
                    hook()
        hook(True)
        A.label('L_SA')
        stamp('q1l'); stamp('q0ok'); stamp('k0w'); stamp('k1w'); stamp('k1l')
        mx(0, 0, True); ror(vQ); ror(vQ + 1)
        mx(1, 0, True); ror(vQ + 2); ror(vQ + 3)
        mx(0, 2); A(ld_v[0]); ror(vQ + 8); ror(vQ + 9)
        mx(1, 2); A(ld_v[1]); ror(vQ + 10); ror(vQ + 11)
        smm(0); smm(1)
        mx(0, 1); mx(0, 3); mx(1, 1); A(swm[0]); mx(1, 3); A(swm[1])
        for o in mxo:
            A(o)
        s_end()
        A('s_branch L_sj')
        hook()
        hook(True)
        A.label('L_SK')
        stamp('k1w'); stamp('k1l')
        for o in zeros(MM, 4):
            A(o)
        smm(0); smm(1)
        for o in mxo + swm:
            A(o)
        s_end()
        A('s_branch L_sj')
        hook()
    else:
        hook(True)
        A.label('L_r2')
        for o in order_q:
            A(o)
        cnt(sN2)
        timeout_stub(A, 'L_h2')
        hook(True)
        A.label('L_r2k')
        for o in order_k + zeros(MM, 4):
            A(o)
        cnt(sN2)
        timeout_stub(A, 'L_h2k')
        hook()
    hook(True)
    A.label('L_r2v')
    for o in ld_v:
        A(o)
    cnt(sN2)
    A('s_waitcnt vmcnt(0)')
    for o in chk4(vVm, vT3) + chk4more(vVm + 4, vT3):
        A(o)
    A(cmpv(vT3))
    A('s_cbranch_vccz L_h2v')
    timeout_stub(A, 'L_r2v')
    hook()
    hook(True)
    A.label('L_r3')
    for o in ld_part:
        A(o)
    cnt(sN3)
    if opt.get('lim3', -1) < 0:
        timeout_stub(A, 'L_h3')
    A('s_waitcnt vmcnt(%d)' % max(opt.get('lim3', -1), 0))
    for o in chk4(vPt, vT0) + chk4more(vPt + 4, vT0):
        A(o)
    A(cmpv(vT0))
    A('v_mfma_f32_16x16x32_bf16 %s, %s, %s, 0' % (v(lo, 4), v(vSel, 4), v(vPt, 4)))
    A('v_mfma_f32_16x16x32_bf16 %s, %s, %s, %s' % (v(lo, 4), v(vSel, 4), v(vPt + 4, 4), v(lo, 4)))
    A('s_nop 2')
    A('s_cbranch_vccz L_h3ok')
    timeout_stub(A, 'L_r3')
    hook()
    A.label('L_loop_end')
    body = [re.sub(r'@HK(\d+)@', lambda m: 'L_hk%d' % (int(m.group(1)) + 4) if int(m.group(1)) + 4 < len(hooks) else 'L_hkret', l) for l in A.lines[loop_start:]]
    labs = [l[:-1] for l in body if l.endswith(':')]
    pat = re.compile(r'\b(' + '|'.join(labs) + r')\b')
    A.lines[loop_start:] = [l.replace('@LOC@', '') for l in body] + [pat.sub(r'\1_i', l).replace('@LOC@', ' sc1') for l in body]
    A.label('L_c_tail')
    A(st4(vQK, vKst, sKvm, ' sc1'))
    if opt.get('split', 1):
        A('s_waitcnt lgkmcnt(0)')
        A('s_barrier')
        rd1(vR1v)
        red1(vVv)
    A(st4(vVv, vVst, sKvm, ' sc1'))
    if lite:
        A('s_mov_b32 s66, s78')
        sN3 = 66
    tstamp(A, opt, 7, vT2, vT3, sA)
    if lite:
        A('s_memtime s[12:13]')
        A('s_memrealtime s[14:15]')
        A('s_waitcnt lgkmcnt(0)')
        A('s_sub_u32 s12, s12, s96')
        A('s_sub_u32 s14, s14, s98')
        A('v_mov_b32 v%d, s12' % (vM + 3))
        A('v_mov_b32 v%d, s14' % (vM + 4))
        A('s_lshl_b32 s%d, s%d, 4' % (sA, sG))
        A('s_add_u32 s%d, s%d, s%d' % (sA, sA, sC))
        A('s_lshl_b32 s%d, s%d, 2' % (sA, sA))
        A('s_add_u32 s%d, s%d, s%d' % (sA, sA, sW))
        A('s_lshl_b32 s%d, s%d, 6' % (sA, sA))
        A('s_add_u32 s%d, s%d, 0x%x' % (sA, sA, PROF))
        A('v_mov_b32 v%d, s%d' % (vM, sN1))
        A('v_mov_b32 v%d, s%d' % (vM + 1, sN2))
        A('v_mov_b32 v%d, s%d' % (vM + 2, sN3))
        A('v_mov_b32 v%d, 0' % vT0)
        for i in range(9, 14):
            A('buffer_store_dword v%d, v%d, %s, s%d offen offset:%d' % (vM + i - 9, vT0, S4(WS), sA, 4 * i))
    if lite:
        A('v_mov_b32 v%d, s96' % vT1)
        A('buffer_store_dword v%d, v%d, %s, s%d offen offset:56' % (vT1, vT0, S4(WS), sA))
        A('v_mov_b32 v%d, s98' % vT2)
        A('buffer_store_dword v%d, v%d, %s, s%d offen offset:60' % (vT2, vT0, S4(WS), sA))
        A('s_sub_u32 s%d, s%d, 0x%x' % (sA, sA, PROF))
        A('s_lshl_b32 s%d, s%d, 2' % (sA, sA))
        A('s_add_u32 s%d, s%d, 0x%x' % (sA, sA, PROF + MB))
        A('buffer_store_dword v%d, v%d, %s, s%d offen' % (vTr, vL4, S4(WS), sA))
    A('s_waitcnt vmcnt(0)')
    A('s_endpgm')


def build(opt):
    A = Asm()
    prologue(A, opt)
    chain(A, opt)
    for kind in 'kvq':
        proj(A, opt, kind)
    orole(A, opt)
    body, nn = fix_hazards(A.lines, verbose=True)
    hdr = open('cdna_kernels/%s.s.ref' % NAME).read().split('\n')
    hdr = [l for l in hdr if l.startswith(';') and '@launch' not in l]
    hdr.append('; opts ' + ' '.join('%s=%s' % kv for kv in opt.items()))
    if opt.get('prof'):
        hdr.append('; marks=' + opt.get('marks', 'm0ok,st1end,qkvst,q0ok,Send,st2end,partst') + ',gath,gathok')
    out = hdr + ['; @launch grid=(256,1,1) block=(256,1,1) lds=%d' % opt.get('lds', 163840),
                 '.amdgcn_target "amdgcn-amd-amdhsa--gfx950"', '.text', '.globl %s_kernel' % NAME, '.p2align 8',
                 '.type %s_kernel,@function' % NAME, '%s_kernel:' % NAME]
    out += body
    out += ['.section .rodata,"a"', '.p2align 6', '.amdhsa_kernel %s_kernel' % NAME,
            '  .amdhsa_next_free_vgpr 512', '  .amdhsa_next_free_sgpr 102', '  .amdhsa_accum_offset 256',
            '  .amdhsa_group_segment_fixed_size 0', '  .amdhsa_kernarg_size 128', '  .amdhsa_user_sgpr_count 2',
            '  .amdhsa_user_sgpr_kernarg_segment_ptr 1', '  .amdhsa_system_sgpr_workgroup_id_x 1',
            '  .amdhsa_float_denorm_mode_32 3', '.end_amdhsa_kernel', '']
    return '\n'.join(out), nn


if __name__ == '__main__':
    opt = {}
    outp = sys.argv[1]
    for a_ in sys.argv[2:]:
        k, val = a_.split('=')
        opt[k] = int(val) if val.lstrip('-').isdigit() else val
    txt, nn = build(opt)
    open(outp, 'w').write(txt)
    print('wrote', outp, 'nops inserted:', nn)
```

```python
import struct, math
from asmlib import *
from layout import *

NAME = 'gated_mix__memory_aug_recurrent_mem_tr__moe_arch_mod__prompt'


def f32(x):
    return '0x%08x' % struct.unpack('<I', struct.pack('<f', x))[0]


P_X, P_MEM0, P_WQ, P_WK, P_WV, P_WO = 64, 66, 68, 70, 72, 74
P_WR, P_WG, P_WU, P_WD, P_GW, P_OUT, P_DBG, P_WS = 80, 82, 84, 86, 88, 90, 92, 94
WS, DBG = 4, 8
SRD_A, SRD_B, SRD_C, SRD_D, SRD_E = 12, 16, 20, 24, 28
sW, sG, sC, sTO = 32, 33, 34, 35
sX = 100
sPure = 101
NPURE = 32
sR = 63
sT0 = 76
TIMEOUT = 1 << 20
LOG2E = math.log2(math.e)


def srd(A, d, p, nbytes):
    A('s_mov_b32 s%d, s%d' % (d, p))
    A('s_and_b32 s%d, s%d, 0xffff' % (d + 1, p + 1))
    A('s_mov_b32 s%d, 0x%x' % (d + 2, nbytes))
    A('s_mov_b32 s%d, 0x20000' % (d + 3))


def S4(d):
    return s(d, 4)


def timeout_stub(A, back):
    A('s_sub_u32 s%d, s%d, 1' % (sTO, sTO))
    A('s_cbranch_scc0 %s' % back)
    A('s_endpgm')


def sum8(A, vx, sa, sb):
    A('v_readlane_b32 s%d, v%d, 0' % (sa, vx))
    for i in range(1, 8):
        A('v_readlane_b32 s%d, v%d, %d' % (sb, vx, i))
        A('s_add_u32 s%d, s%d, s%d' % (sa, sa, sb))


def init_load(A, t0, t1):
    A('v_lshlrev_b32 v%d, 5, v0' % t1)
    A('buffer_load_dword v%d, v%d, %s, 0 offen sc1' % (t0, t1, S4(DBG)))


def wait_init(A, t0, t1, sa, sb, issued=False):
    L, L2 = A.newlabel('L_wi'), A.newlabel('L_wiok')
    L3 = A.newlabel('L_wi')
    if issued:
        A('s_branch ' + L3)
    A.label(L)
    init_load(A, t0, t1)
    A.label(L3)
    A('s_waitcnt vmcnt(0)')
    sum8(A, t0, sa, sb)
    A('s_cmp_ge_u32 s%d, 256' % sa)
    A('s_cbranch_scc1 %s' % L2)
    A('s_sleep 16')
    timeout_stub(A, L)
    A.label(L2)
    A('s_lshr_b32 s%d, s%d, 5' % (sa, sR))
    A('v_readlane_b32 s%d, v%d, s%d' % (sPure, t0, sa))


def poll_data(A, loads, regs, tmp, sleep):
    L, L2 = A.newlabel('L_pd'), A.newlabel('L_pdok')
    A.label(L)
    for o in loads:
        A(o)
    A('s_waitcnt vmcnt(0)')
    maxall(A, regs, tmp)
    A('v_cmp_eq_u32 vcc, -1, v%d' % tmp)
    A('s_cbranch_vccz %s' % L2)
    if sleep:
        A('s_sleep %d' % sleep)
    timeout_stub(A, L)
    A.label(L2)


def maxall(A, regs, tmp):
    regs = list(regs)
    A('v_max_u32 v%d, v%d, v%d' % (tmp, regs[0], regs[-1]))
    regs = regs[1:-1]
    while regs:
        x = regs[:2]
        regs = regs[2:]
        A('v_max3_u32 v%d, v%d, v%d, v%d' % (tmp, tmp, x[0], x[-1]))


def wait_flags(A, vf, vaddr, need, sleep=1):
    L, L2 = A.newlabel('L_wf'), A.newlabel('L_wfok')
    A.label(L)
    A('buffer_load_dword v%d, v%d, %s, 0 offen sc1' % (vf, vaddr, S4(WS)))
    A('s_waitcnt vmcnt(0)')
    A('v_cmp_gt_i32 vcc, %s, v%d' % (need, vf))
    A('s_cbranch_vccz %s' % L2)
    if sleep:
        A('s_sleep %d' % sleep)
    timeout_stub(A, L)
    A.label(L2)


def lane0_addr(A, dst, sval, tmp):
    A('v_mov_b32 v%d, 0x%x' % (tmp, OOB))
    A('v_mov_b32 v%d, s%d' % (dst, sval))
    A('v_cmp_eq_u32 vcc, 0, v0')
    A('v_cndmask_b32 v%d, v%d, v%d, vcc' % (dst, tmp, dst))


def bits(A, dst, terms, tmp, base=None):
    first = True
    for (si, wd, so) in terms:
        A('v_bfe_u32 v%d, v0, %d, %d' % (tmp, si, wd))
        if first:
            A('v_lshlrev_b32 v%d, %d, v%d' % (dst, so, tmp))
            first = False
        else:
            A('v_lshl_add_u32 v%d, v%d, %d, v%d' % (dst, tmp, so, dst))
    if base is not None:
        A('v_add_u32 v%d, %s, v%d' % (dst, base, dst))


def tstamp(A, opt, slot, t0, t1, sa, now=True):
    if not opt.get('prof'):
        return
    if now:
        A('s_memrealtime s[78:79]')
    A('s_lshl_b32 s%d, s%d, 2' % (sa, sR))
    A('s_add_u32 s%d, s%d, s%d' % (sa, sa, sW))
    A('s_lshl_b32 s%d, s%d, 6' % (sa, sa))
    A('s_add_u32 s%d, s%d, 0x%x' % (sa, sa, PROF + 2 * MB + slot * 4))
    A('s_waitcnt lgkmcnt(0)')
    A('v_mov_b32 v%d, s78' % t0)
    A('v_mov_b32 v%d, 0' % t1)
    A('buffer_store_dword v%d, v%d, %s, s%d offen' % (t0, t1, S4(WS), sa))
    A('s_memtime s[78:79]')
    A('s_add_u32 s%d, s%d, 0x100000' % (sa, sa))
    A('s_waitcnt lgkmcnt(0)')
    A('v_mov_b32 v%d, s78' % t0)
    A('buffer_store_dword v%d, v%d, %s, s%d offen' % (t0, t1, S4(WS), sa))


def cap_vm(A, start, already=28):
    out, n, done = [], already, False
    for l in A.lines[start:]:
        t = l.strip()
        if t.startswith('s_waitcnt') and 'vmcnt' in t:
            done = True
        if not done and t.startswith('buffer_'):
            n += 1
            if n > 60:
                out.append('    s_waitcnt vmcnt(59)')
        out.append(l)
    A.lines[start:] = out


def help_kv(A, opt, ptr, sh, t0, t1, sa):
    hk = opt.get('hk', 0)
    if not hk:
        return
    srd(A, SRD_C, ptr, 8 * MB)
    bits(A, t1, [(1, 3, 13), (4, 2, 20), (0, 1, 7)], t0)
    A('s_lshl_b32 s%d, s%d, 16' % (sa, sW))
    A('v_add_u32 v%d, s%d, v%d' % (t1, sa, t1))
    A('s_lshl_b32 s%d, s%d, 8' % (sa, sh))
    A('s_add_u32 s%d, s%d, 0x400000' % (sa, sa))
    for i in range(4):
        A('buffer_load_dword v252, v%d, %s, s%d offen%s' % (t1, S4(SRD_C), sa, ' nt' if hk == 2 else ''))
        A('s_add_u32 s%d, s%d, 0x40000' % (sa, sa))


def dbg_mark(A, opt, word, t0, t1):
    if not opt.get('diag'):
        return
    A('s_memrealtime s[78:79]')
    A('s_waitcnt lgkmcnt(0)')
    A('s_sub_u32 s78, s78, s76')
    A('v_mov_b32 v%d, s78' % t0)
    A('v_mov_b32 v%d, %d' % (t1, 4 * word))
    A('s_mov_b64 exec, 1')
    A('buffer_atomic_umax v%d, v%d, %s, 0 offen sc1' % (t0, t1, S4(DBG)))
    A('s_mov_b64 exec, -1')
    A('s_waitcnt vmcnt(0)')


def diag_hold(A, opt):
    if opt.get('diag', 0) > 1:
        L = A.newlabel('L_hold')
        A.label(L)
        A('s_memrealtime s[78:79]')
        A('s_waitcnt lgkmcnt(0)')
        A('s_sub_u32 s78, s78, s76')
        A('s_cmp_lt_u32 s78, %d' % (opt['diag'] * 100))
        A('s_cbranch_scc1 ' + L)
```

```python
from common import *
from workers import load_weights, vote


def orole(A, opt):
    S = Alloc(36, 63)
    sI = S('i')
    sA, sB, sCc, sD, sSeg, sBase, sRot, sHi, sPrev, sCnt = [S(n) for n in 'a b cc d seg base rot hi prev cnt'.split()]
    sIdx = S('idx', 8)
    cvt = lambda d, x, y: A('v_cvt_pk_bf16_f32 v%d, v%d, v%d' % (d, x, y))

    def rnd2(x, y, t):
        cvt(t, x, y)
        A('v_lshlrev_b32 v%d, 16, v%d' % (x, t))
        A('v_and_b32 v%d, s%d, v%d' % (y, sHi, t))

    def sigmoid(d, x):
        A('v_mul_f32 v%d, %s, v%d' % (d, f32(-LOG2E), x))
        A('v_exp_f32 v%d, v%d' % (d, d))
        A('v_add_f32 v%d, 1.0, v%d' % (d, d))
        A('v_rcp_f32 v%d, v%d' % (d, d))

    V = Alloc(1, 252)
    vL16, vL4, vFl, vKey, vRaw = [V(n) for n in 'l16 l4 fl key raw'.split()]
    t0, t1, t2, t3, t4, t5 = [V('t%d' % i) for i in range(6)]
    vAcc = V('acc', 8, 4)
    vPm = V('perm', 32, 4)
    NB = 6
    vRing = V('ring', 32 * NB, 4)
    A.label('L_o')
    cap0 = len(A.lines)
    help_kv(A, opt, P_WV, sI, t0, t1, sA)
    srd(A, SRD_A, P_WR, 2048)
    srd(A, SRD_B, P_X, 4 * MB)
    srd(A, SRD_C, P_GW, 2048)
    srd(A, SRD_D, P_WG, 7 * MB)
    srd(A, SRD_E, P_WU, 7 * MB)
    A('s_mov_b32 s%d, 0xffff0000' % sHi)
    A('v_lshlrev_b32 v%d, 4, v0' % vL16)
    A('v_lshlrev_b32 v%d, 2, v0' % vL4)
    wait_init(A, t0, t1, sA, sB)
    vote(A, sI, t0, t1, t2, sA, sB, sCc, sD, sSeg, sBase)
    tstamp(A, opt, 1, t0, t1, sA)
    if opt.get('chainonly'):
        A('s_endpgm')
    for i in range(2):
        A('buffer_load_dwordx4 %s, v%d, %s, 0 offen offset:%d' % (v(vPm + 4 * i, 4), vL16, S4(SRD_A), 1024 * i))
    for i in range(2):
        A('buffer_load_dwordx4 %s, v%d, %s, 0 offen offset:%d' % (v(vPm + 8 + 4 * i, 4), vL16, S4(SRD_C), 1024 * i))
    bits(A, t2, [(0, 4, 11), (4, 2, 4)], t0)
    A('s_lshl_b32 s%d, s%d, 2' % (sA, sI))
    A('s_add_u32 s%d, s%d, s%d' % (sA, sA, sW))
    A('s_lshl_b32 s%d, s%d, 4' % (sD, sA))
    A('s_lshl_b32 s%d, s%d, 15' % (sA, sA))
    for ks in range(32):
        A('buffer_load_dwordx4 %s, v%d, %s, s%d offen offset:%d' % (a(4 * ks, 4), t2, S4(SRD_B), sA, 64 * ks))
    A('v_lshrrev_b32 v%d, 4, v0' % t0)
    A('v_mul_u32_u24 v%d, %d, v%d' % (t0, 8 * 7168, t0))
    A('v_and_b32 v%d, 15, v0' % t3)
    A('v_lshl_add_u32 v%d, v%d, 4, v%d' % (vRaw, t3, t0))
    A('s_cmp_lt_u32 s%d, 28' % sI)
    A('s_cselect_b32 s%d, 0, 0x%x' % (sB, OOB))
    A('v_add_u32 v%d, s%d, v%d' % (vRaw, sB, vRaw))
    A('s_mul_i32 s%d, s%d, %d' % (sBase, sW, 256 * 7168))
    A('s_lshl_b32 s%d, s%d, 8' % (sA, sI))
    A('s_add_u32 s%d, s%d, s%d' % (sBase, sBase, sA))

    def batch(b):
        for i in range(8):
            A('s_add_u32 s%d, s%d, 0x%x' % (sA, sBase, (32 * (b >> 1) + i) * 7168))
            A('buffer_load_dwordx4 %s, v%d, %s, s%d offen%s' % (v(vRing + 32 * (b % NB) + 4 * i, 4), vRaw, S4((SRD_D, SRD_E)[b & 1]), sA, ' nt' if opt.get('nt', 31) & 4 else ''))
    batch(0); batch(1)
    A('s_lshl_b32 s%d, s%d, 12' % (sA, sW))
    A('v_add_u32 v%d, s%d, v%d' % (t3, sA, vL16))
    bits(A, t4, [(0, 1, 11), (4, 2, 4)], t0, 's%d' % sA)
    A('s_waitcnt vmcnt(48)')
    for i in range(4):
        A('ds_write_b128 v%d, %s offset:%d' % (t3, v(vPm + 4 * i, 4), 1024 * i))
    A('s_waitcnt vmcnt(16) lgkmcnt(0)')
    for k0 in range(0, 32, 8):
        for ks in range(k0, k0 + 8):
            A('ds_read_b128 %s, v%d offset:%d' % (v(vPm + 4 * (ks & 7), 4), t4, 64 * ks))
        A('s_waitcnt lgkmcnt(0)')
        for ks in range(k0, k0 + 8):
            A('v_mfma_f32_16x16x32_bf16 %s, %s, %s, %s' % (v(vAcc, 4), v(vPm + 4 * (ks & 7), 4), a(4 * ks, 4), v(vAcc, 4) if ks else '0'))
    rnd2(vAcc + 1, vAcc, t0)
    sigmoid(t1, vAcc + 1)
    A('v_ashrrev_i32 v%d, 31, v%d' % (t2, vAcc))
    A('v_or_b32 v%d, 0x80000000, v%d' % (t2, t2))
    cvt(t1, t1, t1)
    A('v_and_b32 v%d, s%d, v%d' % (t1, sHi, t1))
    A('v_xor_b32 v%d, v%d, v%d' % (t2, t2, vAcc))
    A('s_sub_u32 s%d, 2047, s%d' % (sA, sD))
    A('v_sub_u32 v%d, s%d, v0' % (t3, sA))
    A('v_and_or_b32 v%d, v%d, s%d, v%d' % (t2, t2, sHi, t3))
    A('v_mov_b32 v%d, 0x%x' % (t3, OOB))
    A('v_cmp_gt_u32 vcc, 16, v0')
    A('v_cndmask_b32 v%d, v%d, v%d, vcc' % (t3, t3, vL4))
    A('s_lshl_b32 s%d, s%d, 2' % (sA, sD))
    A('s_add_u32 s%d, s%d, 0x%x' % (sB, sA, KEYS))
    A('s_add_u32 s%d, s%d, 0x%x' % (sA, sA, GATE))
    A('buffer_store_dword v%d, v%d, %s, s%d offen sc1' % (t1, t3, S4(WS), sA))
    A('s_waitcnt vmcnt(0)')
    A('buffer_store_dword v%d, v%d, %s, s%d offen sc1' % (t2, t3, S4(WS), sB))
    for b in range(2, NB):
        batch(b)
    A('s_mov_b32 s%d, 0x%x' % (sA, KEYS))
    A('s_mov_b32 s%d, 0x%x' % (sB, KEYS + 4096))
    A('s_waitcnt vmcnt(16)')
    poll_data(A, ['buffer_load_dwordx4 %s, v%d, %s, s%d offen offset:%d sc1' % (v(vPm + 4 * i, 4), vL16, S4(WS), (sA, sB)[i >> 2], 1024 * (i & 3)) for i in range(8)],
              range(vPm, vPm + 32), t0, 16)
    tstamp(A, opt, 3, t0, t1, sA)
    A('s_mov_b32 s%d, 0' % sPrev)
    A('s_mov_b32 s%d, 0' % sCc)
    A('v_mov_b32 v%d, 0' % vKey)
    A.label('L_top')
    A('v_mov_b32 v%d, 0' % t0)
    for i in range(0, 32, 2):
        A('v_subrev_u32 v%d, s%d, v%d' % (t1, sPrev, vPm + i))
        A('v_subrev_u32 v%d, s%d, v%d' % (t2, sPrev, vPm + i + 1))
        A('v_max3_u32 v%d, v%d, v%d, v%d' % (t0, t0, t1, t2))
    for sh in (8, 4, 2, 1):
        A('v_max_u32_dpp v%d, v%d, v%d row_ror:%d row_mask:0xf bank_mask:0xf' % (t0, t0, t0, sh))
    for sw in ('v_permlane32_swap_b32', 'v_permlane16_swap_b32'):
        A('v_mov_b32 v%d, v%d' % (t1, t0))
        A('%s v%d, v%d' % (sw, t0, t1))
        A('v_max_u32 v%d, v%d, v%d' % (t0, t0, t1))
    A('v_readfirstlane_b32 s%d, v%d' % (sA, t0))
    A('s_mov_b32 m0, s%d' % sCc)
    A('s_add_u32 s%d, s%d, s%d' % (sPrev, sPrev, sA))
    A('v_writelane_b32 v%d, s%d, m0' % (vKey, sPrev))
    A('s_add_u32 s%d, s%d, 1' % (sCc, sCc))
    A('s_cmp_lt_u32 s%d, 8' % sCc)
    A('s_cbranch_scc1 L_top')
    bits(A, t1, [(0, 3, 2)], t0)
    A('ds_bpermute_b32 v%d, v%d, v%d' % (t2, t1, vKey))
    A('s_waitcnt lgkmcnt(0)')
    A('v_and_b32 v%d, 0x7ff, v%d' % (t2, t2))
    A('v_sub_u32 v%d, 2047, v%d' % (t2, t2))
    A('v_lshlrev_b32 v%d, 11, v%d' % (t2, t2))
    A('v_lshrrev_b32 v%d, 4, v0' % t0)
    A('v_lshl_add_u32 v%d, v%d, 4, v%d' % (t2, t0, t2))
    A('s_lshl_b32 s%d, s%d, 9' % (sA, sW))
    for ks in range(8):
        A('buffer_load_dwordx4 %s, v%d, %s, s%d offen offset:%d' % (a(128 + 4 * ks, 4), t2, S4(SRD_B), sA, 64 * ks))
    A('s_mov_b32 s%d, 0x05040100' % sCc)
    A('s_mov_b32 s%d, 0x07060302' % sD)
    A('s_waitcnt vmcnt(0)')
    for b in range(16):
        if b >= NB:
            A('s_waitcnt vmcnt(%d)' % (8 * min(NB - 1, 15 - b)))
        r0 = vRing + 32 * (b % NB)
        for t in range(8):
            for p in range(4):
                A('v_perm_b32 v%d, v%d, v%d, s%d' % (vPm + 4 * t + p, r0 + 4 * (2 * p + 1) + (t >> 1), r0 + 4 * (2 * p) + (t >> 1), (sCc, sD)[t & 1]))
            if t:
                acc = a(160 + 32 * (b & 1) + 4 * (t - 1), 4)
                A('v_mfma_f32_16x16x32_bf16 %s, %s, %s, %s' % (acc, a(128 + 4 * (b >> 1), 4), v(vPm + 4 * (t - 1), 4), acc if b > 1 else '0'))
        if b + NB < 16:
            batch(b + NB)
        acc = a(160 + 32 * (b & 1) + 28, 4)
        A('v_mfma_f32_16x16x32_bf16 %s, %s, %s, %s' % (acc, a(128 + 4 * (b >> 1), 4), v(vPm + 28, 4), acc if b > 1 else '0'))
    A('s_lshl_b32 s%d, s%d, 14' % (sA, sW))
    A('v_add_u32 v%d, s%d, v%d' % (t3, sA, vL16))
    A('s_barrier')
    for i in range(16):
        A('ds_write_b128 v%d, %s offset:%d' % (t3, a(160 + 4 * i, 4), 1024 * i))
        if i == 7:
            A('s_waitcnt lgkmcnt(0)')
    A('s_and_b32 s%d, s%d, 1' % (sA, sW))
    A('s_lshl_b32 s%d, s%d, 8' % (sA, sA))
    A('s_lshr_b32 s%d, s%d, 1' % (sB, sW))
    A('s_lshl_b32 s%d, s%d, 3' % (sB, sB))
    A('s_add_u32 s%d, s%d, s%d' % (sA, sA, sB))
    bits(A, t3, [(0, 2, 11), (2, 4, 4)], t0, 's%d' % sA)
    A('s_waitcnt lgkmcnt(0)')
    A('s_barrier')
    for m in range(2):
        for tt in range(2):
            for wv in range(4):
                A('ds_read_b64 %s, v%d offset:%d' % (v(vPm + ((m * 2 + tt) * 4 + wv) * 2, 2), t3, wv * 16384 + m * 8192 + tt * 1024))
        A('s_waitcnt lgkmcnt(0)')
    for q in range(4):
        b0 = vPm + 8 * q
        A('v_pk_add_f32 %s, %s, %s' % (v(b0, 2), v(b0, 2), v(b0 + 2, 2)))
        A('v_pk_add_f32 %s, %s, %s' % (v(b0 + 4, 2), v(b0 + 4, 2), v(b0 + 6, 2)))
        A('v_pk_add_f32 %s, %s, %s' % (v(b0, 2), v(b0, 2), v(b0 + 4, 2)))
        rnd2(b0, b0 + 1, t0)
    for tt in range(2):
        b0 = vPm + 8 * tt
        for j in range(2):
            sigmoid(b0 + 2 + j, b0 + j)
            A('v_mul_f32 v%d, v%d, v%d' % (b0 + j, b0 + j, b0 + 2 + j))
        rnd2(b0, b0 + 1, t0)
        for j in range(2):
            A('v_mul_f32 v%d, v%d, v%d' % (b0 + j, b0 + j, b0 + 16 + j))
    cvt(t1, vPm, vPm + 8)
    cvt(t2, vPm + 1, vPm + 9)
    A('v_min_u32 v%d, -2, v%d' % (t1, t1))
    A('v_min_u32 v%d, -2, v%d' % (t2, t2))
    A('s_and_b32 s%d, s%d, 1' % (sA, sW))
    A('s_lshl_b32 s%d, s%d, 2' % (sA, sA))
    A('s_and_b32 s%d, s%d, 2' % (sB, sW))
    A('s_add_u32 s%d, s%d, s%d' % (sA, sA, sB))
    A('s_mul_i32 s%d, s%d, 7168' % (sA, sA))
    A('s_lshl_b32 s%d, s%d, 8' % (sB, sI))
    A('s_add_u32 s%d, s%d, s%d' % (sA, sA, sB))
    A('s_add_u32 s%d, s%d, 0x%x' % (sA, sA, HH))
    A('s_add_u32 s%d, s%d, 7168' % (sB, sA))
    A('s_cmp_lt_u32 s%d, 28' % sI)
    A('s_cselect_b32 s%d, 0, 0x%x' % (sD, OOB))
    A('v_add_u32 v%d, s%d, v%d' % (t3, sD, vL4))
    A('buffer_store_dword v%d, v%d, %s, s%d offen sc1' % (t1, t3, S4(WS), sA))
    A('buffer_store_dword v%d, v%d, %s, s%d offen sc1' % (t2, t3, S4(WS), sB))
    tstamp(A, opt, 4, t0, t4, sA)
    srd(A, SRD_A, P_WD, 7 * MB)
    A('s_mul_i32 s%d, s%d, %d' % (sBase, sW, 896 * 2048))
    A('s_lshl_b32 s%d, s%d, 6' % (sA, sI))
    A('s_add_u32 s%d, s%d, s%d' % (sBase, sBase, sA))

    load_weights(A, SRD_A, sBase, 2048, lambda gi, i: 64 * gi + 16 * i, [(4, 2, 9), (2, 2, 6), (0, 2, 3)],
                 lambda ksl, pp, tile: (32 * ksl + 4 * pp) * 64 + tile * 32, 14, vRaw, t3, t4, t0, sA, sB, 65536, None, 8, ' nt' if opt.get('nt', 31) & 8 else '')
    A('v_and_b32 v%d, 7, v0' % t0)
    A('v_mul_u32_u24 v%d, 7168, v%d' % (t2, t0))
    A('v_lshrrev_b32 v%d, 4, v0' % t0)
    A('v_lshl_add_u32 v%d, v%d, 4, v%d' % (t2, t0, t2))
    A('s_mul_i32 s%d, s%d, 1792' % (sA, sW))
    A('s_add_u32 s%d, s%d, 0x%x' % (sA, sA, HH))
    poll_data(A, ['buffer_load_dwordx4 %s, v%d, %s, s%d offen offset:%d sc1' % (v(vRing + 4 * ks, 4), t2, S4(WS), sA, 64 * ks) for ks in range(28)],
              range(vRing, vRing + 112), t0, 16)
    A('s_barrier')
    bits(A, t1, [(3, 3, 2)], t0)
    A('ds_bpermute_b32 v%d, v%d, v%d' % (t5, t1, vKey))
    A('s_lshl_b32 s%d, s%d, 11' % (sA, sW))
    A('v_add_u32 v%d, s%d, v%d' % (t3, sA, vL16))
    bits(A, t4, [(2, 1, 10), (0, 2, 8), (3, 3, 4)], t0)
    A('s_waitcnt lgkmcnt(0)')
    A('v_not_b32 v%d, v%d' % (t1, t5))
    A('v_ashrrev_i32 v%d, 31, v%d' % (t1, t1))
    A('v_or_b32 v%d, 0x80000000, v%d' % (t1, t1))
    A('v_xor_b32 v%d, v%d, v%d' % (t5, t5, t1))
    A('v_and_b32 v%d, s%d, v%d' % (t5, sHi, t5))
    sigmoid(t5, t5)
    cvt(t5, t5, t5)
    A('v_and_b32 v%d, s%d, v%d' % (t5, sHi, t5))
    A('s_waitcnt vmcnt(0)')
    for ks in range(28):
        for ct in range(2):
            acc = v(vAcc + 4 * ct, 4)
            A('v_mfma_f32_16x16x32_bf16 %s, %s, %s, %s' % (acc, a((ks * 2 + ct) * 4, 4), v(vRing + 4 * ks, 4), acc if ks else '0'))
    A('ds_write_b128 v%d, %s' % (t3, v(vAcc, 4)))
    A('ds_write_b128 v%d, %s offset:1024' % (t3, v(vAcc + 4, 4)))
    A('s_waitcnt lgkmcnt(0)')
    A('s_barrier')
    for wv in range(4):
        A('ds_read_b128 %s, v%d offset:%d' % (v(vPm + 4 * wv, 4), t4, wv * 2048))
    A('s_waitcnt lgkmcnt(0)')
    for wv in range(1, 4):
        for h in range(2):
            A('v_pk_add_f32 %s, %s, %s' % (v(vPm + 2 * h, 2), v(vPm + 2 * h, 2), v(vPm + 4 * wv + 2 * h, 2)))
    rnd2(vPm, vPm + 1, t0)
    rnd2(vPm + 2, vPm + 3, t0)
    for i in range(4):
        A('v_mul_f32 v%d, v%d, v%d' % (vPm + i, vPm + i, t5))
    cvt(vPm + 4, vPm, vPm + 1)
    cvt(vPm + 5, vPm + 2, vPm + 3)
    A('v_min_u32 v%d, -2, v%d' % (vPm + 4, vPm + 4))
    A('v_min_u32 v%d, -2, v%d' % (vPm + 5, vPm + 5))
    A('v_and_b32 v%d, 0x7ff, v%d' % (t1, vKey))
    A('v_sub_u32 v%d, 2047, v%d' % (t1, t1))
    A('s_cmp_lg_u32 s%d, 0' % sW)
    A('s_cbranch_scc1 L_o_join')
    A('s_lshl_b32 s%d, s%d, 10' % (sA, sI))
    A('s_add_u32 s%d, s%d, 0x%x' % (sA, sA, YY))
    A('v_lshlrev_b32 v%d, 3, v0' % t2)
    A('buffer_store_dwordx2 %s, v%d, %s, s%d offen sc1' % (v(vPm + 4, 2), t2, S4(WS), sA))
    A('buffer_store_dword v%d, v%d, %s, s%d offen offset:512 sc1' % (t1, vL4, S4(WS), sA))

    V = Alloc(1, 256)
    vL16, vFa, vFv, vFn, vWr, vRr, vXa, vLw, vG = [V(n) for n in 'l16 fa fv fn wr rr xa lw g'.split()]
    t0, t1 = V('t0'), V('t1')
    vXv = V('xv', 2)
    vU = V('u', 2)
    vY = V('y', 16, 4)
    vD = V('d', 16, 4)
    vZ = V('z', 12, 4)
    vO = V('o', 64, 4)
    vW = V('w', 128, 4)
    t2, t3 = vXv, vXv + 1
    LW, LRED = 0, 131072
    sTeam, sU, sUn, sNb, sPre = sPrev, sSeg, S('un'), S('nb'), S('pre')
    U0 = opt.get('u0', 48)
    assert U0 % 2 == 0
    A.label('L_o_join')
    tstamp(A, opt, 5, t0, t1, sA)
    srd(A, SRD_A, P_WO, 8 * MB)
    srd(A, SRD_B, P_X, 4 * MB)
    srd(A, SRD_C, P_OUT, 4 * MB)
    A('s_mov_b32 s%d, 0xffff0000' % sHi)
    A('v_lshlrev_b32 v%d, 4, v0' % vL16)
    A('s_add_u32 s%d, s%d, 1' % (sTeam, sC))
    A('s_and_b32 s%d, s%d, 3' % (sTeam, sTeam))
    A('s_lshl_b32 s%d, s%d, 1' % (sTeam, sTeam))
    A('s_lshr_b32 s%d, s%d, 4' % (sA, sI))
    A('s_add_u32 s%d, s%d, s%d' % (sTeam, sTeam, sA))
    A('s_and_b32 s%d, s%d, 15' % (sI, sI))
    A('s_and_b32 s%d, s%d, 7' % (sRot, sI))
    A('s_barrier')
    for hl in range(8):
        A('s_add_u32 s%d, s%d, %d' % (sA, sRot, hl))
        A('s_and_b32 s%d, s%d, 7' % (sA, sA))
        A('s_lshl_b32 s%d, s%d, 3' % (sB, sW))
        A('s_add_u32 s%d, s%d, s%d' % (sA, sA, sB))
        A('s_lshl_b32 s%d, s%d, 18' % (sA, sA))
        A('s_lshl_b32 s%d, s%d, 7' % (sB, sI))
        A('s_add_u32 s%d, s%d, s%d' % (sIdx + hl, sA, sB))
    vRaw, vTr = vFa, vFv
    bits(A, vRaw, [(3, 3, 11), (0, 3, 4)], t0)
    A('s_lshl_b32 s%d, s%d, 13' % (sA, sW))
    A('s_add_u32 s%d, s%d, %d' % (sA, sA, LRED))
    A('v_add_u32 v%d, s%d, v%d' % (vWr, sA, vL16))
    bits(A, vTr, [(2, 1, 11), (4, 2, 9), (3, 1, 7), (0, 2, 3)], t0, 's%d' % sA)
    A('s_lshl_b32 s%d, s%d, 15' % (sA, sW))
    A('v_add_u32 v%d, s%d, v%d' % (vLw, sA, vL16))
    home = lambda ks, i: (a(8 * ks + 4 * i, 4) if i < 2 else v(vW + 4 * ks, 4) if i == 2 else v(vO + 4 * (ks & 15), 4))
    home2 = lambda ks, i, pp: (a(8 * ks + 4 * i + 2 * pp, 2) if i < 2 else v(vW + 4 * ks + 2 * pp, 2) if i == 2 else v(vD + 4 * (ks & 1) + 2 * pp, 2))

    def wissue(ks):
        for i in range(4):
            A('s_add_u32 s%d, s%d, 0x%x' % (sB, sIdx + (ks >> 2), (32 * (ks & 3) + 8 * i) * 2048))
            A('buffer_load_dwordx4 %s, v%d, %s, s%d offen%s' % (home(ks, i), vRaw, S4(SRD_A), sB, ' nt' if opt.get('nt', 31) & 16 else ''))
    DEP = opt.get('depo', 4)
    for ks in range(DEP):
        wissue(ks)
    for ks in range(32):
        A('s_waitcnt vmcnt(%d)' % (4 * (min(32, ks + DEP) - 1 - ks)))
        sl = (ks & 1) * 4096
        for i in range(4):
            A('ds_write_b128 v%d, %s offset:%d' % (vWr, home(ks, i), sl + i * 1024))
        if ks + DEP < 32:
            wissue(ks + DEP)
        if ks:
            A('s_waitcnt lgkmcnt(4)')
            A('ds_write_b128 v%d, %s offset:%d' % (vLw, v(vD + 4 * ((ks - 1) & 1), 4), (ks - 1) * 1024))
        for ct in range(4):
            for pp in range(2):
                A('ds_read_b64_tr_b16 %s, v%d offset:%d' % (home2(ks, ct, pp), vTr, sl + 2 * pp * 128 + ct * 32))
    A('s_waitcnt lgkmcnt(0)')
    A('ds_write_b128 v%d, %s offset:%d' % (vLw, v(vD + 4, 4), 31 * 1024))
    tstamp(A, opt, 6, t0, t1, sA)
    if opt.get('diag'):
        A('s_cmp_lg_u32 s%d, 0' % sW)
        A('s_cbranch_scc1 L_o_e3')
        A('s_cmp_lg_u32 s%d, 3' % sC)
        A('s_cbranch_scc1 L_o_e4')
        dbg_mark(A, opt, 6, t0, t1)
        A.label('L_o_e4')
        dbg_mark(A, opt, 7, t0, t1)
        A.label('L_o_e3')
    A('s_lshl_b32 s%d, s%d, 11' % (sA, sI))
    A('s_add_u32 s%d, s%d, 0x%x' % (sA, sA, YY))
    bits(A, t1, [(3, 1, 10), (0, 3, 3)], t0)
    A('v_lshlrev_b32 v%d, 2, v0' % t2)
    poll_data(A, ['buffer_load_dwordx2 %s, v%d, %s, s%d offen offset:%d sc1' % (v(vY + 2 * j, 2), t1, S4(WS), sA, 64 * j) for j in range(8)]
              + ['buffer_load_dword v%d, v%d, %s, s%d offen offset:512 sc1' % (t3, t2, S4(WS), sA)], list(range(vY, vY + 16)) + [t3], t0, 16)
    for j in range(8):
        A('v_readlane_b32 s%d, v%d, %d' % (sIdx + j, t3, j))
    A('s_lshl_b32 s%d, s%d, 2' % (sA, sX))
    A('s_add_u32 s%d, s%d, s%d' % (sA, sA, sW))
    A('s_lshl_b32 s%d, s%d, 10' % (sA, sA))
    A('s_add_u32 s%d, s%d, 0x%x' % (sA, sA, F_O))
    bits(A, vFa, [(0, 3, 7)], t0, 's%d' % sA)
    A('s_lshl_b32 s%d, s%d, 12' % (sA, sW))
    A('s_add_u32 s%d, s%d, %d' % (sA, sA, LRED))
    A('v_and_b32 v%d, 0x30, v0' % t0)
    A('v_xor_b32 v%d, v%d, v%d' % (t0, t0, vL16))
    A('v_add_u32 v%d, s%d, v%d' % (vWr, sA, t0))
    A('s_lshl_b32 s%d, s%d, 2' % (sA, sW))
    A('v_lshrrev_b32 v%d, 4, v0' % t0)
    A('v_add_u32 v%d, s%d, v%d' % (t0, sA, t0))
    A('v_and_b32 v%d, 15, v0' % t1)
    A('v_xor_b32 v%d, v%d, v%d' % (t0, t0, t1))
    A('v_lshlrev_b32 v%d, 4, v%d' % (t0, t0))
    A('v_lshl_add_u32 v%d, v%d, 8, v%d' % (t0, t1, t0))
    A('v_add_u32 v%d, %d, v%d' % (vRr, LRED, t0))
    A('s_lshl_b32 s%d, s%d, 13' % (sA, sW))
    A('s_lshl_b32 s%d, s%d, 7' % (sB, sI))
    A('s_add_u32 s%d, s%d, s%d' % (sA, sA, sB))
    bits(A, vXa, [(4, 2, 11), (0, 4, 3)], t0, 's%d' % sA)
    A('v_mov_b32 v%d, 0' % vFv)
    A('s_cmp_lt_u32 s%d, 2' % sTeam)
    A('s_cselect_b32 s%d, 0, %d' % (sUn, U0))
    A('s_add_u32 s%d, s%d, s%d' % (sUn, sUn, sTeam))
    A('s_mov_b32 s%d, 0' % sPre)
    A('s_mov_b32 s%d, 0' % sCnt)
    A('s_waitcnt lgkmcnt(0)')
    A('s_barrier')

    def ubase(dst, u):
        return ['s_lshr_b32 s%d, s%d, 1' % (dst, u), 's_lshl_b32 s%d, s%d, 18' % (dst, dst), 's_and_b32 s%d, s%d, 1' % (sA, u),
                's_lshl_b32 s%d, s%d, 12' % (sA, sA), 's_add_u32 s%d, s%d, s%d' % (dst, dst, sA), 's_lshl_b32 s%d, s%d, 16' % (sA, sW),
                's_add_u32 s%d, s%d, s%d' % (dst, dst, sA), 's_add_u32 s%d, s%d, 0x%x' % (dst, dst, OO)]

    def hbase(base, hl):
        return ['s_add_u32 s%d, s%d, %d' % (sB, sRot, hl), 's_and_b32 s%d, s%d, 7' % (sB, sB), 's_lshl_b32 s%d, s%d, 13' % (sB, sB),
                's_add_u32 s%d, s%d, s%d' % (sB, sB, base)]
    old_ = lambda ks: 'buffer_load_dwordx4 %s, v%d, %s, s%d offen offset:%d sc1' % (v(vO + 4 * (ks & 15), 4), vL16, S4(WS), sB, (ks & 3) * 1024)
    zrd = lambda ks: 'ds_read_b128 %s, v%d offset:%d' % (v(vZ + 4 * (ks % 3), 4), vLw, ks * 1024)

    A('.p2align 6')
    A.label('L_o_loop')
    A('s_mov_b32 s%d, s%d' % (sU, sUn))
    A('s_cmp_ge_u32 s%d, 128' % sU)
    A('s_cbranch_scc1 L_o_end')
    A('s_cmp_lt_u32 s%d, %d' % (sU, U0))
    A('s_cselect_b32 s%d, 2, 6' % sA)
    A('s_add_u32 s%d, s%d, s%d' % (sUn, sU, sA))
    for o in ubase(sBase, sU):
        A(o)
    A('s_cmp_eq_u32 s%d, 1' % sPre)
    A('s_cbranch_scc1 L_o_go')
    A('s_lshr_b32 s%d, s%d, 1' % (sD, sU))
    A('s_add_u32 s%d, s%d, 1' % (sD, sD))
    wait_flags(A, vFv, vFa, 's%d' % sD, opt.get('osl', 2))
    for ks in range(16):
        if ks & 3 == 0:
            for o in hbase(sBase, ks >> 2):
                A(o)
        A(old_(ks))
    A('v_mov_b32 v%d, 0x%x' % (t0, OOB))
    A('buffer_load_dword v%d, v%d, %s, 0 offen' % (vFn, t0, S4(WS)))
    A.label('L_o_go')
    A(zrd(0)); A(zrd(1))
    A('s_lshr_b32 s%d, s%d, 1' % (sD, sUn))
    A('s_add_u32 s%d, s%d, 1' % (sD, sD))
    A('v_cmp_gt_i32 vcc, s%d, v%d' % (sD, vFv))
    A('s_lshl_b32 s%d, s%d, 15' % (sCc, sU))
    A('s_cmp_lg_u64 vcc, 0')
    A('s_cselect_b32 s%d, 0, 0x%x' % (sA, OOB))
    A('buffer_load_dword v%d, v%d, %s, s%d offen sc1' % (vFn, vFa, S4(WS), sA))
    A('s_lshl_b32 s%d, s%d, 2' % (sA, sU))
    A('s_add_u32 s%d, s%d, s%d' % (sA, sA, sW))
    A('s_lshl_b32 s%d, s%d, 2' % (sA, sA))
    A('v_lshrrev_b32 v%d, 4, v0' % t1)
    A('v_add_u32 v%d, s%d, v%d' % (t1, sA, t1))
    A('v_lshlrev_b32 v%d, 2, v%d' % (t0, t1))
    A('s_mov_b32 s%d, 0x%x' % (sA, GATE))
    A('buffer_load_dwordx2 %s, v%d, %s, s%d offen' % (v(vXv, 2), vXa, S4(SRD_B), sCc))
    A('buffer_load_dword v%d, v%d, %s, s%d offen sc1' % (vG, t0, S4(WS), sA))
    upd = ['v_mov_b32 v%d, 0' % vU, 'v_mov_b32 v%d, 0' % (vU + 1)]
    for j in range(8):
        upd += ['v_cmp_eq_u32 vcc, s%d, v%d' % (sIdx + j, t1), None, 'v_cndmask_b32 v%d, v%d, v%d, vcc' % (vU, vU, vY + 2 * j),
                'v_cndmask_b32 v%d, v%d, v%d, vcc' % (vU + 1, vU + 1, vY + 2 * j + 1)]
    for ks in range(32):
        A('s_waitcnt vmcnt(%d) lgkmcnt(1)' % (19 if ks < 16 else 15) if ks < 31 else 's_waitcnt vmcnt(15) lgkmcnt(0)')
        extra = []
        if ks == 16:
            A('v_max_i32 v%d, v%d, v%d' % (vFv, vFv, vFn))
            A('v_cmp_gt_i32 vcc, s%d, v%d' % (sD, vFv))
            extra = ubase(sNb, sUn) + ['s_cmp_eq_u64 vcc, 0', 's_cselect_b32 s%d, 1, 0' % sPre, 's_cselect_b32 s%d, s%d, 0x%x' % (sNb, sNb, OOB)]
        if ks & 3 == 0:
            extra += hbase(sBase if ks < 16 else sNb, ((ks + 16) >> 2) & 7)
        for ct in range(4):
            acc = v(vD + 4 * ct, 4)
            src = home(ks, ct) if ct < 3 else v(vZ + 4 * (ks % 3), 4)
            A('v_mfma_f32_16x16x32_bf16 %s, %s, %s, %s' % (acc, src, v(vO + 4 * (ks & 15), 4), acc if ks else '0'))
            if ct == 0 and ks + 2 < 32:
                A(zrd(ks + 2))
            n_ = (len(extra) + 2 - ct) // (3 - ct) if ct < 3 else 0
            for o in extra[:n_]:
                A(o)
            extra = extra[n_:]
            if 2 <= ks < 16 and ct in (1, 2):
                for o in upd[:2]:
                    if o:
                        A(o)
                upd = upd[2:]
        A(old_(ks + 16))
    assert not upd
    vB, vR = vZ, vD
    for h in range(2):
        A('v_lshlrev_b32 v%d, 16, v%d' % (vB + 2 * h, vXv + h))
        A('v_and_b32 v%d, s%d, v%d' % (vB + 2 * h + 1, sHi, vXv + h))
        A('v_lshlrev_b32 v%d, 16, v%d' % (vB + 8 + 2 * h, vU + h))
        A('v_and_b32 v%d, s%d, v%d' % (vB + 8 + 2 * h + 1, sHi, vU + h))
    for i in range(4):
        A('ds_write_b128 v%d, %s offset:%d' % (vWr, v(vD + 4 * i, 4), 1024 * i))
        A('v_xor_b32 v%d, 0x%x, v%d' % (vWr, (0x40, 0xc0, 0x40, 0x40c0)[i], vWr))
    for h in range(2):
        A('v_pk_add_f32 %s, %s, %s' % (v(vB + 2 * h, 2), v(vB + 2 * h, 2), v(vB + 8 + 2 * h, 2)))
        rnd2(vB + 2 * h, vB + 2 * h + 1, t0)
    A('v_sub_f32 v%d, 1.0, v%d' % (t1, vG))
    cvt(t1, t1, t1)
    A('v_and_b32 v%d, s%d, v%d' % (t1, sHi, t1))
    A('s_waitcnt lgkmcnt(0)')
    A('s_barrier')
    for wv in range(4):
        A('ds_read_b128 %s, v%d offset:%d' % (v(vR + 4 * wv, 4), vRr, wv * 4096))
    for i in range(4):
        A('v_mul_f32 v%d, v%d, v%d' % (vB + i, vB + i, t1))
    rnd2(vB, vB + 1, t0)
    rnd2(vB + 2, vB + 3, t0)
    A('v_xor_b32 v%d, 0x4000, v%d' % (vRr, vRr))
    for wv in range(1, 4):
        A('s_waitcnt lgkmcnt(%d)' % (3 - wv))
        for h in range(2):
            A('v_pk_add_f32 %s, %s, %s' % (v(vR + 2 * h, 2), v(vR + 2 * h, 2), v(vR + 4 * wv + 2 * h, 2)))
    rnd2(vR, vR + 1, t0)
    rnd2(vR + 2, vR + 3, t0)
    for i in range(4):
        A('v_mul_f32 v%d, v%d, v%d' % (vR + i, vR + i, vG))
    rnd2(vR, vR + 1, t0)
    rnd2(vR + 2, vR + 3, t0)
    for h in range(2):
        A('v_pk_add_f32 %s, %s, %s' % (v(vR + 2 * h, 2), v(vR + 2 * h, 2), v(vB + 2 * h, 2)))
        cvt(vU + h, vR + 2 * h, vR + 2 * h + 1)
    A('buffer_store_dwordx2 %s, v%d, %s, s%d offen%s' % (v(vU, 2), vXa, S4(SRD_C), sCc, ('', ' sc1', ' nt', ' sc0 sc1', ' sc1 nt')[opt.get('ost', 0)]))
    if opt.get('prof'):
        A('s_add_u32 s%d, s%d, 1' % (sCnt, sCnt))
        A('s_cmp_lg_u32 s%d, 3' % sC)
        A('s_cbranch_scc1 L_o_loop')
        for sg, sl_ in ((4, 9), (16, 11)):
            Lx = A.newlabel('L_pf')
            A('s_cmp_lg_u32 s%d, %d' % (sCnt, sg))
            A('s_cbranch_scc1 ' + Lx)
            tstamp(A, opt, sl_, t0, t1, sA)
            A('s_waitcnt vmcnt(0)')
            A.label(Lx)
    A('s_branch L_o_loop')
    A.label('L_o_end')
    if opt.get('diag'):
        A('s_cmp_lg_u32 s%d, 0' % sW)
        A('s_cbranch_scc1 L_o_e2')
        dbg_mark(A, opt, 5, t0, t1)
        diag_hold(A, opt)
        A.label('L_o_e2')
    tstamp(A, opt, 7, t0, t1, sA)
    if opt.get('prof'):
        A('s_mov_b32 s78, s%d' % sCnt)
        tstamp(A, opt, 10, t0, t1, sA, now=False)
    A('s_endpgm')
```

```python
import sys, re
from common import *
from workers import proj
from orole import orole


def prologue(A, opt):
    A('s_cmp_ge_u32 s2, 256')
    A('s_cbranch_scc1 L_end0')
    A('s_load_dwordx16 s[64:79], s[0:1], 0')
    A('s_load_dwordx16 s[80:95], s[0:1], 64')
    A('s_getreg_b32 s%d, hwreg(HW_REG_XCC_ID)' % sX)
    A('s_and_b32 s%d, s%d, 7' % (sX, sX))
    A('v_lshrrev_b32 v1, 6, v0')
    A('v_and_b32 v0, 63, v0')
    A('v_readfirstlane_b32 s%d, v1' % sW)
    A('s_mov_b32 s%d, %d' % (sTO, TIMEOUT))
    A('s_waitcnt lgkmcnt(0)')
    srd(A, WS, P_WS, WS_BYTES)
    srd(A, DBG, P_DBG, 256)
    if opt.get('prof') or opt.get('diag'):
        A('s_memrealtime s[76:77]')
    for i in range(4):
        A('v_mov_b32 v%d, -1' % (4 + i))
    A('s_lshl_b32 s36, s2, 2')
    A('s_add_u32 s36, s36, s%d' % sW)
    A('s_lshl_b32 s37, s36, 10')
    A('s_add_u32 s37, s37, 0x%x' % INIT1)
    A('s_lshl_b32 s36, s36, 8')
    A('s_add_u32 s36, s36, 0x%x' % INIT2)
    A('v_lshlrev_b32 v2, 4, v0')
    A('v_lshlrev_b32 v3, 2, v0')
    A('buffer_store_dwordx4 v[4:7], v2, %s, s37 offen sc1' % S4(WS))
    A('buffer_store_dword v4, v3, %s, s36 offen sc1' % S4(WS))
    wu = opt.get('wu', 1)
    wu = 2 * wu
    npre = opt.get('wupre', 0)

    def warm(lo, hi):
        for o in ['buffer_load_dword v252, v8, %s, s38 offen' % S4(SRD_A), 'buffer_load_dword v252, v9, %s, s38 offen offset:0x780' % S4(SRD_A)][lo:hi]:
            A(o)
    if wu:
        A('s_lshr_b32 s38, s2, 3')
        A('s_lshl_b32 s38, s38, 2')
        A('s_add_u32 s38, s38, s%d' % sW)
        A('s_lshr_b32 s39, s38, 5')
        A('s_and_b32 s38, s38, 31')
        A('s_and_b32 s42, s%d, 3' % sX)
        A('s_mov_b64 s[40:41], s[%d:%d]' % (P_WK, P_WK + 1))
        for m_, p_ in ((1, P_WV), (2, P_WQ), (3, P_WO)):
            A('s_cmp_eq_u32 s39, %d' % m_)
            A('s_cselect_b64 s[40:41], s[%d:%d], s[40:41]' % (p_, p_ + 1))
        A('s_cselect_b32 s43, 11, 13')
        A('s_cselect_b32 s44, 21, 11')
        A('s_lshl_b32 s42, s42, s44')
        A('s_add_u32 s44, s43, 5')
        A('s_lshl_b32 s38, s38, s44')
        A('s_add_u32 s38, s38, s42')
        A('v_lshrrev_b32 v8, 1, v0')
        A('v_lshlrev_b32 v8, s43, v8')
        A('v_and_b32 v9, 1, v0')
        A('v_lshl_add_u32 v8, v9, 10, v8')
        A('s_and_b32 s42, s%d, 3' % sX)
        A('s_cmp_eq_u32 s42, 3')
        A('s_cselect_b32 s42, 0, 0x%x' % OOB)
        A('v_lshlrev_b32 v9, 29, v9')
        A('v_add3_u32 v9, v8, v9, s42')
        A('v_add_u32 v8, 384, v8')
        A('s_mov_b32 s43, 0x%x' % (8 * MB))
        A('s_lshr_b32 s42, s%d, 2' % sX)
        A('s_lshr_b32 s39, s39, 1')
        A('s_and_b32 s39, s39, s42')
        A('s_cbranch_scc0 L_wu')
        A('s_mov_b64 s[40:41], s[%d:%d]' % (P_X, P_X + 1))
        A('s_mov_b32 s43, 0x%x' % (4 * MB))
        A('s_bfe_u32 s38, s2, 0x40003')
        A('s_lshl_b32 s38, s38, 2')
        A('s_add_u32 s38, s38, s%d' % sW)
        A('s_lshl_b32 s38, s38, 13')
        A('v_lshlrev_b32 v8, 7, v0')
        A('v_mov_b32 v9, 0x%x' % OOB)
        A.label('L_wu')
        srd(A, SRD_A, 40, 0)
        A('s_mov_b32 s%d, s43' % (SRD_A + 2))
        warm(0, npre)
    A('s_waitcnt vmcnt(%d)' % npre)
    A('s_barrier')
    A('v_mov_b32 v12, 0')
    A('s_cmp_eq_u32 s%d, 0' % sW)
    A('s_cbranch_scc1 L_tk0')
    if wu:
        A('s_nop 7')
        warm(npre, wu)
    A('s_branch L_tk')
    A.label('L_tk0')
    A('s_lshl_b32 s36, s%d, 5' % sX)
    if opt.get('fakex'):
        A('s_cmp_eq_u32 s%d, 3' % sX)
        A('s_cbranch_scc0 L_fk')
        A('v_lshlrev_b32 v3, 5, v0')
        A.label('L_fk1')
        A('buffer_load_dword v1, v3, %s, 0 offen sc1' % S4(DBG))
        A('s_waitcnt vmcnt(0)')
        A('v_readlane_b32 s37, v1, 2')
        A('s_cmp_lt_u32 s37, 32')
        A('s_cbranch_scc1 L_fk1')
        A('s_bitcmp1_b32 s2, 3')
        A('s_cbranch_scc1 L_fk2')
        A('s_bitcmp1_b32 s2, 4')
        A('s_cbranch_scc0 L_fk')
        A.label('L_fk2')
        A('s_mov_b32 s36, 0x40')
        A.label('L_fk')
    A('v_mov_b32 v1, 1')
    A('s_mov_b64 exec, 1')
    A('buffer_atomic_add v1, v12, %s, s36 offen sc0 sc1' % S4(DBG))
    A('s_mov_b64 exec, -1')
    if wu:
        warm(npre, wu)
    A('s_waitcnt vmcnt(%d)' % (wu - npre))
    A('v_readfirstlane_b32 s37, v1')
    A('s_add_u32 s36, s36, s37')
    A('s_cmp_lt_u32 s37, 32')
    A('s_cbranch_scc1 L_tk_w')
    A('v_mov_b32 v1, 1')
    A('s_mov_b64 exec, 1')
    A('buffer_atomic_add v1, v12, %s, 0 offen offset:8 sc0 sc1' % S4(DBG))
    A('s_mov_b64 exec, -1')
    A('s_waitcnt vmcnt(0)')
    A('v_readfirstlane_b32 s37, v1')
    A('v_lshlrev_b32 v3, 5, v0')
    A.label('L_ov')
    A('buffer_load_dword v1, v3, %s, 0 offen sc1' % S4(DBG))
    A('s_waitcnt vmcnt(0)')
    sum8(A, 1, 38, 39)
    A('s_cmp_ge_u32 s38, 256')
    A('s_cbranch_scc1 L_ov1')
    A('s_sleep 4')
    timeout_stub(A, 'L_ov')
    A.label('L_ov1')
    for x in range(8):
        A('v_readlane_b32 s38, v1, %d' % x)
        A('s_min_u32 s38, s38, 32')
        A('s_add_u32 s36, s38, s37')
        A('s_cmp_lt_u32 s36, 32')
        A('s_cselect_b32 s39, 1, 0')
        A('s_sub_u32 s37, s36, 32')
        A('s_add_u32 s36, s36, %d' % (32 * x))
        A('s_cmp_eq_u32 s39, 1')
        A('s_cbranch_scc1 L_tk_w')
    A('s_mov_b32 s36, 256')
    A.label('L_tk_w')
    A('v_mov_b32 v1, s36')
    A('ds_write_b32 v12, v1')
    A('s_waitcnt lgkmcnt(0)')
    A.label('L_tk')
    A('s_barrier')
    A('ds_read_b32 v1, v12')
    A('s_waitcnt lgkmcnt(0)')
    A('v_readfirstlane_b32 s%d, v1' % sR)
    A('s_barrier')
    A('s_cmp_ge_u32 s%d, 256' % sR)
    A('s_cbranch_scc1 L_end0')
    if opt.get('prof'):
        A('s_mov_b32 s78, s76')
        tstamp(A, opt, 8, 1, 2, 36, now=False)
        tstamp(A, opt, 0, 1, 2, 36)
    A('s_lshr_b32 s%d, s%d, 4' % (sG, sR))
    A('s_and_b32 s%d, s%d, 15' % (sC, sR))
    A('s_cmp_lt_u32 s%d, 128' % sR)
    A('s_cbranch_scc1 L_chain')
    A('s_bfe_u32 s%d, s%d, 0x20005' % (sG, sR))
    A('s_lshl_b32 s%d, s%d, 3' % (sG, sG))
    A('s_and_b32 s36, s%d, 7' % sR)
    A('s_add_u32 s36, s36, s%d' % sG)
    A('s_bfe_u32 s%d, s%d, 0x20003' % (sC, sR))
    A('s_cmp_eq_u32 s%d, 0' % sC)
    A('s_cbranch_scc1 L_k')
    A('s_cmp_eq_u32 s%d, 1' % sC)
    A('s_cbranch_scc1 L_v')
    A('s_cmp_eq_u32 s%d, 2' % sC)
    A('s_cbranch_scc1 L_q')
    A('s_branch L_o')
    A.label('L_end0')
    A('s_endpgm')


def chain(A, opt):
    prof = opt.get('prof', 0) == 1
    lite = opt.get('prof', 0) >= 1
    V = Alloc(1, 252)
    vL16, vL4, vQst, vVst, vKst, vIdx, vSent = [V(n) for n in 'l16 l4 qst vst kst idx sent'.split()]
    vW1q, vW1k, vR1, vR1v = V('w1q'), V('w1k'), V('r1'), V('r1v')
    vW2, vR2, vW2l, vR2l = V('w2'), V('r2'), V('w2l'), V('r2l')
    vT0, vT1, vT2, vT3 = V('t0'), V('t1'), V('t2'), V('t3')
    vQK, vVv, vBias = V('qk'), V('vv'), V('bias')
    vFa, vFv = V('fa'), V('fv')
    vM = V('m', 16, 4)
    vA = V('acc', 24, 4)
    vQ = V('q', 16, 4)
    vKm, vVm = V('km', 8, 4), V('vm', 8, 4)
    vKx, vVx = V('kx', 32, 4), V('vx', 32, 4)
    vS = V('s', 8, 4)
    MM = V('mm', 4, 4)
    vP, vPs = V('p', 4, 4), V('ps', 4, 4)
    vPm, vPms = V('pm', 2), V('pms', 2)
    vOne, vSel, vHalf = V('one', 4, 4), V('sel', 4, 4), V('half', 2)
    vVOx = V('vox', 16, 4)
    vT = V('tacc', 32, 4)
    vVOm = vT + 16
    vF = vT + 16
    vR = vVm
    vO = vA
    vLs = vA + 8
    vR2d = vA + 12
    vPt = vS
    S = Alloc(36, 63)
    sStep, sMemR, sMemW, sQkvW, sQkvR, sQkvR2 = S('step'), S('memr'), S('memw'), S('qkvw'), S('qkvr'), S('qkvr2')
    sKx, sKx2, sVx, sVx2, sPartW, sPartR, sPartA, sPartB, sKvm = [S(n) for n in 'kx kx2 vx vx2 pw pr pa pb kvm'.split()]
    sA, sB, sCc, sD = S('a'), S('b'), S('cc'), S('d')
    sScale, sFo, sPf = S('scale'), S('fo'), S('pf')
    sN1, sN2, sN3 = 64, 65, 78
    sLo = 0
    sHome, sPo, sKn = S('home'), S('po'), S('kn')
    sSide = 3
    LDSL = 20480
    LDS1, LDS2, LDSW = 0, 12288, 32768
    W1 = lambda t, m, tt: (t * 3 + m) * 16 + tt * 8
    WO = lambda n, j: 192 + n * 16 + j * 4

    A.label('L_chain')
    cap0 = len(A.lines)
    A('s_bitcmp1_b32 s%d, 0' % sC)
    A('s_cselect_b64 s[2:3], s[%d:%d], s[%d:%d]' % (P_WK, P_WK + 1, P_WQ, P_WQ + 1))
    srd(A, SRD_A, 2, 8 * MB)
    srd(A, SRD_C, P_WV, 8 * MB)
    srd(A, SRD_D, P_WO, 8 * MB)
    srd(A, SRD_E, P_MEM0, 16384)
    if opt.get('iw', 0):
        A('s_getpc_b64 s[2:3]')
        A.label('L_pc')
        A('s_add_u32 s2, s2, L_loop-L_pc')
        A('s_addc_u32 s3, s3, 0')
        srd(A, SRD_B, 2, 0)
        A('s_mov_b32 s%d, L_loop_end-L_loop' % (SRD_B + 2))
        A('s_lshl_b32 s%d, s%d, 13' % (sA, sW))
        A('v_lshlrev_b32 v%d, 7, v0' % vT0)
        A('buffer_load_dword v252, v%d, %s, s%d offen' % (vT0, S4(SRD_B), sA))
    vWa, vWb, vWc, vWd, vWe = vA, vA + 1, vA + 2, vA + 3, vA + 4
    nt = ' nt' if opt.get('nt', 31) & 1 else ''
    bits(A, vWd, [(3, 3, 11), (0, 3, 4)], vT0)
    A('s_lshl_b32 s%d, s%d, 2' % (sA, sG))
    A('s_add_u32 s%d, s%d, s%d' % (sA, sA, sW))
    A('s_lshl_b32 s%d, s%d, 18' % (sA, sA))
    A('s_lshl_b32 s%d, s%d, 7' % (sB, sC))
    A('s_add_u32 s%d, s%d, s%d' % (sA, sA, sB))
    if opt.get('wox'):
        A('s_xor_b32 s%d, s%d, %d' % (sA, sA, opt['wox']))
    for k in range(16):
        A('s_add_u32 s%d, s%d, 0x%x' % (sB, sA, k * 8 * 2048))
        A('buffer_load_dwordx4 %s, v%d, %s, s%d offen%s' % (a(192 + 4 * k, 4), vWd, S4(SRD_D), sB, (nt, '', ' sc1')[opt.get('opl', 0)]))
    bits(A, vWa, [(2, 4, 13), (0, 2, 4)], vT0)
    bits(A, vWe, [(3, 3, 13), (0, 3, 4)], vT0)
    sW1v, sW1q = sHome, sKn
    A('s_lshl_b32 s%d, s%d, 21' % (sA, sW))
    A('s_lshl_b32 s%d, s%d, 10' % (sB, sG))
    A('s_add_u32 s%d, s%d, s%d' % (sA, sA, sB))
    A('s_lshl_b32 s%d, s%d, 6' % (sB, sC))
    A('s_add_u32 s%d, s%d, s%d' % (sW1v, sA, sB))
    A('s_and_b32 s%d, s%d, 0xffffff80' % (sW1q, sW1v))

    def w1q(t):
        for i in range(8):
            A('s_add_u32 s%d, s%d, 0x%x' % (sB, sW1q, (64 * t + 8 * i) * 8192))
            A('buffer_load_dwordx4 %s, v%d, %s, s%d offen%s' % (a(W1(t, 0, 0) + 4 * i, 4), vWe, S4(SRD_A), sB, nt))

    def w1v(t):
        for i in range(4):
            A('s_add_u32 s%d, s%d, 0x%x' % (sB, sW1v, (64 * t + 16 * i) * 8192))
            A('buffer_load_dwordx4 %s, v%d, %s, s%d offen%s' % (a(W1(t, 2, 0) + 4 * i, 4), vWa, S4(SRD_C), sB, (nt, '', ' sc1')[opt.get('vpl', 0)]))
    A('v_lshlrev_b32 v%d, 4, v0' % vL16)
    A('v_lshlrev_b32 v%d, 2, v0' % vL4)
    A('v_mov_b32 v%d, -1' % vSent)
    A('v_and_b32 v%d, 8, v0' % vT0)
    A('v_cmp_eq_u32 vcc, 0, v%d' % vT0)
    A('v_mov_b32 v%d, 0xeeee' % vT1)
    A('v_mov_b32 v%d, 0x4444' % vT2)
    A('v_cndmask_b32 v%d, v%d, v%d, vcc' % (vIdx, vT1, vT2))
    A('s_mov_b32 s%d, 0' % sStep)
    A('s_lshl_b32 s%d, s%d, 15' % (sA, sG))
    A('s_add_u32 s%d, s%d, 0x%x' % (sA, sA, MEMR))
    A('s_lshl_b32 s%d, s%d, 12' % (sB, sW))
    A('s_add_u32 s%d, s%d, s%d' % (sMemR, sA, sB))
    A('s_lshl_b32 s%d, s%d, 10' % (sB, sC))
    A('s_add_u32 s%d, s%d, s%d' % (sA, sA, sB))
    A('s_lshl_b32 s%d, s%d, 8' % (sB, sW))
    A('s_add_u32 s%d, s%d, s%d' % (sMemW, sA, sB))
    A('s_lshl_b32 s%d, s%d, 16' % (sA, sG))
    A('s_add_u32 s%d, s%d, 0x%x' % (sQkvW, sA, QKVR))
    A('s_mul_i32 s%d, s%d, 6144' % (sB, sW))
    A('s_add_u32 s%d, s%d, s%d' % (sQkvR, sQkvW, sB))
    A('s_add_u32 s%d, s%d, 4096' % (sQkvR2, sQkvR))
    A('s_lshr_b32 s%d, s%d, 2' % (sB, sC))
    A('s_mul_i32 s%d, s%d, 6144' % (sB, sB))
    A('s_add_u32 s%d, s%d, s%d' % (sQkvW, sQkvW, sB))
    A('s_lshl_b32 s%d, s%d, 2' % (sA, sG))
    A('s_add_u32 s%d, s%d, s%d' % (sA, sA, sW))
    A('s_lshl_b32 s%d, s%d, 13' % (sA, sA))
    A('s_add_u32 s%d, s%d, 0x%x' % (sKx, sA, KX))
    A('s_add_u32 s%d, s%d, 4096' % (sKx2, sKx))
    A('s_add_u32 s%d, s%d, 0x%x' % (sVx, sA, VX))
    A('s_add_u32 s%d, s%d, 4096' % (sVx2, sVx))
    A('s_and_b32 s%d, s%d, 7' % (sB, sC))
    A('s_lshl_b32 s%d, s%d, 10' % (sB, sB))
    A('s_cmp_lt_u32 s%d, 8' % sC)
    A('s_cselect_b32 s%d, s%d, s%d' % (sPf, sKx, sVx))
    A('s_add_u32 s%d, s%d, s%d' % (sPf, sPf, sB))
    A('s_add_u32 s%d, s%d, 0x40000' % (sPf, sPf))
    A('s_lshl_b32 s%d, s%d, 3' % (sA, sC))
    A('s_add_u32 s%d, s%d, s%d' % (sA, sA, sW))
    A('s_lshl_b32 s%d, s%d, 11' % (sA, sA))
    A('s_add_u32 s%d, s%d, 0x%x' % (sPartB, sA, PART))
    A('s_lshl_b32 s%d, s%d, 2' % (sA, sG))
    A('s_lshr_b32 s%d, s%d, 2' % (sB, sC))
    A('s_add_u32 s%d, s%d, s%d' % (sA, sA, sB))
    A('s_lshl_b32 s%d, s%d, 12' % (sKvm, sA))
    A('s_add_u32 s%d, s%d, 0x%x' % (sKvm, sKvm, KVM - 2048))
    A('s_mov_b32 s%d, %s' % (sScale, f32(128 ** -0.5 * LOG2E)))
    A('s_and_b32 s%d, s%d, 1' % (sA, sW))
    A('s_lshl_b32 s%d, s%d, 1' % (sA, sA))
    A('v_lshrrev_b32 v%d, 5, v0' % vT0)
    A('v_add_u32 v%d, s%d, v%d' % (vT0, sA, vT0))
    A('v_and_b32 v%d, 31, v0' % vT1)
    A('v_lshlrev_b32 v%d, 2, v%d' % (vT1, vT1))
    A('s_bfe_u32 s%d, s%d, 0x10001' % (sB, sC))
    A('s_lshl_b32 s%d, s%d, 10' % (sB, sB))
    A('s_lshr_b32 s%d, s%d, 1' % (sA, sW))
    A('s_lshl_b32 s%d, s%d, 7' % (sCc, sA))
    A('s_add_u32 s%d, s%d, s%d' % (sCc, sCc, sB))
    A('s_lshl_b32 s%d, s%d, 9' % (sA, sA))
    A('s_add_u32 s%d, s%d, s%d' % (sA, sA, sB))
    A('s_add_u32 s%d, s%d, 2048' % (sA, sA))
    A('v_lshl_add_u32 v%d, v%d, 8, v%d' % (vT2, vT0, vT1))
    A('v_add_u32 v%d, s%d, v%d' % (vT2, sCc, vT2))
    A('v_lshl_add_u32 v%d, v%d, 7, v%d' % (vT1, vT0, vT1))
    A('v_add_u32 v%d, s%d, v%d' % (vT3, sA, vT1))
    A('s_bitcmp1_b32 s%d, 0' % sC)
    A('s_cselect_b64 %s, -1, 0' % s(sLo, 2))
    A('s_cselect_b32 s%d, 0, 0x%x' % (sA, OOB))
    A('v_cndmask_b32 v%d, v%d, v%d, %s' % (vQst, vT2, vT3, s(sLo, 2)))
    A('v_add_u32 v%d, s%d, v%d' % (vKst, sA, vT3))
    A('s_and_b32 s%d, s%d, 1' % (sA, sC))
    A('s_lshl_b32 s%d, s%d, 9' % (sA, sA))
    A('s_add_u32 s%d, s%d, s%d' % (sA, sA, sB))
    A('s_add_u32 s%d, s%d, 4096' % (sA, sA))
    A('s_cmp_lt_u32 s%d, 2' % sW)
    A('s_cselect_b32 s%d, s%d, 0x%x' % (sA, sA, OOB))
    A('v_add_u32 v%d, s%d, v%d' % (vVst, sA, vT1))
    A('v_bfe_u32 v%d, v0, 3, 2' % vT1)
    A('v_xor_b32 v%d, v%d, v%d' % (vT1, vT1, vT0))
    A('v_lshlrev_b32 v%d, 5, v%d' % (vT1, vT1))
    A('v_lshl_add_u32 v%d, v%d, 7, v%d' % (vT1, vT0, vT1))
    A('v_and_b32 v%d, 3, v0' % vT2)
    A('v_lshl_add_u32 v%d, v%d, 3, v%d' % (vT1, vT2, vT1))
    A('v_bfe_u32 v%d, v0, 2, 1' % vT2)
    A('v_lshl_add_u32 v%d, v%d, 2, v%d' % (vT1, vT2, vT1))
    A('v_add_u32 v%d, 2048, v%d' % (vR1v, vT1))
    A('s_lshr_b32 s%d, s%d, 1' % (sA, sW))
    A('s_lshl_b32 s%d, s%d, 10' % (sA, sA))
    A('v_add_u32 v%d, s%d, v%d' % (vR1, sA, vT1))
    A('v_bfe_u32 v%d, v0, 4, 1' % vT0)
    A('v_lshrrev_b32 v%d, 5, v0' % vT1)
    A('v_lshl_add_u32 v%d, v%d, 1, v%d' % (vT0, vT0, vT1))
    A('s_mul_i32 s%d, s%d, 3072' % (sA, sW))
    for (dst, kind) in ((vW1q, 0), (vW1k, 1)):
        if kind == 0:
            A('v_bfe_u32 v%d, v0, 2, 2' % vT1)
            A('v_and_b32 v%d, 3, v0' % vT3)
        else:
            A('v_bfe_u32 v%d, v0, 3, 1' % vT1)
            A('v_and_b32 v%d, 1, v0' % vT2)
            A('v_lshl_add_u32 v%d, v%d, 1, v%d' % (vT1, vT1, vT2))
            A('v_bfe_u32 v%d, v0, 1, 2' % vT3)
        A('v_xor_b32 v%d, v%d, v%d' % (vT2, vT1, vT0))
        A('v_lshlrev_b32 v%d, 5, v%d' % (vT2, vT2))
        A('v_lshl_add_u32 v%d, v%d, 7, v%d' % (vT2, vT1, vT2))
        A('v_lshl_add_u32 v%d, v%d, 3, v%d' % (vT2, vT3, vT2))
        A('v_add_u32 v%d, s%d, v%d' % (dst, sA, vT2))
    A('v_cndmask_b32 v%d, v%d, v%d, %s' % (vW1q, vW1q, vW1k, s(sLo, 2)))
    for i in range(4):
        A('v_mov_b32 v%d, 0x3f803f80' % (vOne + i))
        A('v_mov_b32 v%d, 0' % (vPs + i))
    for i in range(2):
        A('v_mov_b32 v%d, 0x3f003f00' % (vHalf + i))
        A('v_mov_b32 v%d, 0' % (vPms + i))
    A('v_and_b32 v%d, 8, v0' % vT0)
    A('v_cmp_eq_u32 vcc, 0, v%d' % vT0)
    A('v_mov_b32 v%d, 0x7f800000' % vT1)
    A('v_mov_b32 v%d, 0xff800000' % vT2)
    A('v_cndmask_b32 v%d, v%d, v%d, vcc' % (vBias, vT1, vT2))
    A('v_and_b32 v%d, 3, v0' % vT0)
    A('v_lshlrev_b32 v%d, 4, v%d' % (vT1, vT0))
    A('v_mov_b32 v%d, 0x3f80' % vT2)
    A('v_lshlrev_b32 v%d, v%d, v%d' % (vT1, vT1, vT2))
    A('v_cmp_gt_u32 vcc, 2, v%d' % vT0)
    A('v_cndmask_b32 v%d, 0, v%d, vcc' % (vT1, vT1))
    A('v_bfe_u32 v%d, v0, 2, 2' % vT0)
    for i in range(4):
        A('v_cmp_eq_u32 vcc, %d, v%d' % (i, vT0))
        A('v_cndmask_b32 v%d, 0, v%d, vcc' % (vSel + i, vT1))
    A('s_lshl_b32 s%d, s%d, 2' % (sA, sW))
    A('s_add_u32 s%d, s%d, %d' % (sA, sA, LDSL))
    A('v_add_u32 v%d, s%d, v%d' % (vW2l, sA, vL16))
    A('v_and_b32 v%d, 1, v0' % vT0)
    A('v_lshrrev_b32 v%d, 4, v0' % vT1)
    A('v_lshl_add_u32 v%d, v%d, 2, v%d' % (vT0, vT0, vT1))
    A('v_lshlrev_b32 v%d, 4, v%d' % (vT1, vT0))
    A('v_add_u32 v%d, %d, v%d' % (vR2l, LDSL, vT1))
    A('v_and_b32 v%d, 2, v0' % vT1)
    A('v_xor_b32 v%d, v%d, v%d' % (vT0, vT0, vT1))
    A('v_lshlrev_b32 v%d, 4, v%d' % (vT0, vT0))
    A('v_lshl_add_u32 v%d, v%d, 7, v%d' % (vT0, vT1, vT0))
    A('v_bfe_u32 v%d, v0, 3, 1' % vT1)
    A('v_lshl_add_u32 v%d, v%d, 7, v%d' % (vT0, vT1, vT0))
    A('v_bfe_u32 v%d, v0, 2, 1' % vT1)
    A('v_lshl_add_u32 v%d, v%d, 3, v%d' % (vT0, vT1, vT0))
    A('s_lshl_b32 s%d, s%d, 9' % (sA, sW))
    A('s_add_u32 s%d, s%d, %d' % (sA, sA, LDS2))
    A('v_add_u32 v%d, s%d, v%d' % (vR2, sA, vT0))
    A('v_bfe_u32 v%d, v0, 3, 1' % vT0)
    A('v_lshlrev_b32 v%d, 9, v%d' % (vT0, vT0))
    A('v_lshrrev_b32 v%d, 4, v0' % vT1)
    A('v_lshl_add_u32 v%d, v%d, 7, v%d' % (vT0, vT1, vT0))
    A('v_and_b32 v%d, 2, v%d' % (vT1, vT1))
    A('v_and_b32 v%d, 7, v0' % vT2)
    A('v_xor_b32 v%d, v%d, v%d' % (vT1, vT1, vT2))
    A('v_lshl_add_u32 v%d, v%d, 4, v%d' % (vT0, vT1, vT0))
    A('s_lshl_b32 s%d, s%d, 11' % (sA, sW))
    A('s_add_u32 s%d, s%d, %d' % (sA, sA, LDS2))
    A('v_add_u32 v%d, s%d, v%d' % (vW2, sA, vT0))

    A('s_lshl_b32 s%d, s%d, 10' % (sA, sG))
    A('s_lshl_b32 s%d, s%d, 8' % (sB, sW))
    A('s_add_u32 s%d, s%d, s%d' % (sA, sA, sB))
    A('s_add_u32 s%d, s%d, 0x%x' % (sA, sA, F_KV))
    bits(A, vT1, [(0, 1, 7)], vT0, 's%d' % sA)
    bits(A, vT2, [(0, 4, 6)], vT0, '0x%x' % F_VOTE)
    A('v_and_b32 v%d, 48, v0' % vT0)
    A('v_cmp_eq_u32 vcc, 16, v%d' % vT0)
    A('v_cndmask_b32 v%d, v%d, v%d, vcc' % (vFa, vT1, vT2))

    if opt.get('iw', 0):
        A('s_barrier')
        for w in range(3):
            A('s_cmp_eq_u32 s%d, %d' % (sW, w))
            A('s_cbranch_scc1 L_hk%d' % w)
        A('s_branch L_hk3')
        A.label('L_hkret')
    def mem0_loads():
        bits(A, vT2, [(0, 3, 11), (3, 3, 4)], vT0)
        A('s_lshl_b32 s%d, s%d, 9' % (sA, sW))
        for t in range(4):
            A('buffer_load_dwordx4 %s, v%d, %s, s%d offen offset:%d' % (v(vM + 4 * t, 4), vT2, S4(SRD_E), sA, t * 128))
    A('s_lshl_b32 s%d, s%d, 14' % (sCc, sW))
    A('s_add_u32 s%d, s%d, %d' % (sCc, sCc, LDSW))
    A('v_add_u32 v%d, s%d, v%d' % (vWb, sCc, vL16))
    bits(A, vWc, [(2, 1, 11), (4, 2, 9), (3, 1, 7), (0, 2, 3)], vT0, 's%d' % sCc)
    w1q(0); w1v(0)
    A('s_waitcnt vmcnt(12)')
    for k in range(16):
        A('ds_write_b128 v%d, %s offset:%d' % (vWb, a(192 + 4 * k, 4), k * 1024))
        if k == 7:
            A('s_waitcnt lgkmcnt(0)')
    A('s_waitcnt lgkmcnt(0)')
    for n in range(4):
        for j in range(4):
            for pp in range(2):
                A('ds_read_b64_tr_b16 %s, v%d offset:%d' % (a(WO(n, j) + 2 * pp, 2), vWc, (32 * j + 2 * pp) * 128 + n * 32))
        A('s_waitcnt lgkmcnt(0)')
    if opt.get('prof'):
        A('s_memrealtime s[98:99]')
    bits(A, vWc, [(5, 1, 11), (4, 1, 9), (3, 1, 10), (2, 1, 7), (0, 2, 3)], vT0, 's%d' % sCc)
    bits(A, vWd, [(5, 1, 10), (4, 1, 8), (3, 1, 9), (2, 1, 6), (0, 2, 3)], vT0, 's%d' % sCc)
    for t in range(4):
        if t < 3:
            w1q(t + 1)
        A('s_waitcnt vmcnt(%d)' % (12 if t < 3 else 4))
        for i in range(8):
            A('ds_write_b128 v%d, %s offset:%d' % (vWb, a(W1(t, 0, 0) + 4 * i, 4), i * 1024))
        for m in range(2):
            A('s_waitcnt lgkmcnt(4)')
            for tt in range(2):
                for pp in range(4):
                    A('ds_read_b64_tr_b16 %s, v%d offset:%d' % (a(W1(t, m, tt) + 2 * pp, 2), vWc, (32 * (pp >> 1) + 2 * (pp & 1)) * 128 + m * 64 + tt * 32))
        if t < 3:
            w1v(t + 1)
        else:
            mem0_loads()
            init_load(A, vT0, vT1)
        A('s_waitcnt vmcnt(%d) lgkmcnt(0)' % (12 if t < 3 else 5))
        for i in range(4):
            A('ds_write_b128 v%d, %s offset:%d' % (vWb, a(W1(t, 2, 0) + 4 * i, 4), 8192 + i * 1024))
        for tt in range(2):
            for pp in range(4):
                A('ds_read_b64_tr_b16 %s, v%d offset:%d' % (a(W1(t, 2, tt) + 2 * pp, 2), vWd, 8192 + (32 * (pp >> 1) + 2 * (pp & 1)) * 64 + tt * 32))
        A('s_waitcnt lgkmcnt(0)')
    def vox(fill=None):
        fill = fill or {}
        k = 0
        for n in range(4):
            for j in range(4):
                for tt in range(2):
                    acc = v(vT + (n * 2 + tt) * 4, 4)
                    if opt.get('xnovox') and fill:
                        A('s_nop 3')
                    else:
                        A('v_mfma_f32_16x16x32_bf16 %s, %s, %s, %s' % (acc, v(vVx + (tt * 4 + j) * 4, 4), a(WO(n, j), 4), acc if j else '0'))
                    for o in fill.get(k, []):
                        A(o)
                    k += 1
                    if n > 0 and j in (1, 2):
                        jj = 2 * (j - 1) + tt
                        b = vT + (n - 1) * 8 + 2 * jj
                        A('v_cvt_pk_bf16_f32 v%d, v%d, v%d' % (vVOx + (n - 1) * 4 + jj, b, b + 1))

    def vox_tail():
        return ['v_cvt_pk_bf16_f32 v%d, v%d, v%d' % (vVOx + 12 + jj, vT + 24 + 2 * jj, vT + 25 + 2 * jj) for jj in range(4)]

    def paced(ops, every=4):
        for i, o in enumerate(ops):
            A(o)
            if i % every == every - 1 and i != len(ops) - 1:
                A('s_nop 0')

    def zeros(base, n, val='0'):
        return ['v_mov_b32 v%d, %s' % (base + i, val) for i in range(n)]

    cap_vm(A, cap0)
    tstamp(A, opt, 1, vT2, vT3, sA)
    if opt.get('prof'):
        A('s_mov_b32 s78, s98')
        tstamp(A, opt, 3, vT2, vT3, sA, now=False)
    wait_init(A, vT0, vT1, sA, sB, True)
    A('s_lshr_b32 s%d, s%d, 2' % (sSide, sX))
    A('s_sub_u32 s%d, 0, s%d' % (sSide, sSide))

    def kv_ops(lab, ahead=2):
        return ['v_readlane_b32 s%d, v%d, 0' % (sCc, vFv), 'v_readlane_b32 s%d, v%d, 1' % (sB, vFv),
                's_add_u32 s%d, s%d, %d' % (sA, sStep, ahead), 's_min_u32 s%d, s%d, 64' % (sA, sA),
                's_min_i32 s%d, s%d, s%d' % (sB, sB, sCc), 's_max_i32 s%d, s%d, s%d' % (sKn, sKn, sB),
                's_cmp_lt_i32 s%d, s%d' % (sKn, sA), 's_cbranch_scc1 %s' % lab]

    def kv_check(lab, ahead=2):
        for o in kv_ops(lab, ahead):
            A(o)

    ld_flags = 'buffer_load_dword v%d, v%d, %s, 0 offen sc1' % (vFv, vFa, S4(WS))
    A('s_mov_b32 s%d, 0' % sKn)
    A.label('L_c_kv0')
    A(ld_flags)
    A('s_waitcnt vmcnt(0)')
    kv_check('L_c_kv1', 1)
    A('s_branch L_c_kv2')
    A.label('L_c_kv1')
    A('s_sleep 1')
    timeout_stub(A, 'L_c_kv0')
    A.label('L_c_kv2')
    A('v_cmp_lt_i32 vcc, -1, v%d' % vFv)
    A('s_xor_b32 s%d, vcc_lo, s%d' % (sHome, sSide))
    A('s_lshr_b32 s%d, s%d, 3' % (sA, sHome))
    A('s_andn2_b32 s%d, 0x2000, s%d' % (sA, sA))
    A('v_readlane_b32 s%d, v%d, 0' % (sB, vFa))
    A('s_add_u32 s%d, s%d, s%d' % (sA, sA, sB))
    bits(A, vFa, [(0, 1, 7)], vT0, 's%d' % sA)
    rmask = sum(1 << int(x) for x in str(opt.get('rf', '0.1.2.4.7.11.17.26.38.48')).split('.'))
    A('s_mov_b32 s%d, 0x%x' % (sLo, rmask & 0xffffffff))
    A('s_mov_b32 s%d, 0x%x' % (sLo + 1, rmask >> 32))
    A('s_mov_b32 s%d, 0' % sFo)
    for f in range(8):
        A('buffer_load_dwordx4 %s, v%d, %s, s%d offen offset:%d sc1' % (v(vVx + 4 * f, 4), vL16, S4(WS), (sVx, sVx2)[f >> 2], (f & 3) * 1024))
    for f in range(8):
        A('buffer_load_dwordx4 %s, v%d, %s, s%d offen offset:%d sc1' % (v(vKx + 4 * f, 4), vL16, S4(WS), (sKx, sKx2)[f >> 2], (f & 3) * 1024))
    for i in range(16):
        A('v_min_u32 v%d, -2, v%d' % (vM + i, vM + i))
    A('s_add_u32 s%d, s%d, 0x40000' % (sVx, sVx))
    A('s_add_u32 s%d, s%d, 0x40000' % (sVx2, sVx2))
    A('s_mov_b32 s%d, 0' % sPo)
    A('s_mov_b32 s%d, 0' % sD)
    A('s_waitcnt vmcnt(8)')
    vox()
    paced(zeros(vA, 24) + vox_tail() + zeros(vT, 16) + zeros(MM, 4) + zeros(vQ, 4, '-1') + zeros(vQ + 8, 4, '-1') + zeros(vKm, 8, '-1'))
    A('s_waitcnt vmcnt(0)')
    tstamp(A, opt, 2, vT0, vT1, sA)
    if opt.get('diag'):
        A('s_memrealtime s[96:97]')
        A('s_memtime s[98:99]')
        A('s_waitcnt lgkmcnt(0)')

    def part_slots():
        A('s_lshr_b32 s%d, s%d, 21' % (sA, sPo))
        A('s_add_u32 s%d, s%d, 3' % (sA, sA))
        A('s_lshr_b32 s%d, s%d, s%d' % (sA, sHome, sA))
        A('s_and_b32 s%d, s%d, 0x2000' % (sA, sA))
        A('s_add_u32 s%d, s%d, s%d' % (sA, sA, sPo))
        A('s_add_u32 s%d, s%d, s%d' % (sPartR, sPartB, sA))
        A('s_lshl_b32 s%d, s%d, 8' % (sB, sG))
        A('s_add_u32 s%d, s%d, s%d' % (sPartA, sPartR, sB))
        A('s_xor_b32 s%d, s%d, 0x2000' % (sPartW, sPartA))
    part_slots()

    PT = 96
    stamps = []

    names = opt.get('marks', 'm0ok,st1end,qkvst,q0ok,Send,st2end,partst').split(',') + ['gath', 'gathok']
    assert len(names) == 9

    def stamp(nm):
        if prof and nm in names:
            i = names.index(nm)
            A('s_memtime s[%d:%d]' % (12 + 2 * i, 13 + 2 * i))

    if lite:
        vTr = V('trace')
        A('v_mov_b32 v%d, 0' % vTr)
        A('s_memtime s[28:29]')
        A('s_memtime s[96:97]')
        A('s_memrealtime s[98:99]')
        A('s_waitcnt lgkmcnt(0)')
        for n_ in (sN1, sN2, sN3):
            A('s_mov_b32 s%d, 0' % n_)

    SEG = 0 if opt.get('sameseg') else 0x40000
    if opt.get('xnobulk'):
        for n_ in (sKx, sKx2, sVx, sVx2)[:opt['xnobulk']]:
            A('s_mov_b32 s%d, 0x%x' % (n_, OOB))
    loc = '@LOC@'

    def ldx4(dst, so, off):
        return 'buffer_load_dwordx4 %s, v%d, %s, s%d offen offset:%d sc1' % (v(dst, 4), vL16, S4(WS), so, off)

    def ld_mem(t):
        A(ldx4(vM + 4 * t, sMemR, t * 1024))

    def chk4(b, tmp):
        return ['v_max3_u32 v%d, v%d, v%d, v%d' % (tmp, b, b + 1, b + 2), 'v_max_u32 v%d, v%d, v%d' % (tmp, tmp, b + 3)]

    def chk4more(b, tmp):
        return ['v_max3_u32 v%d, v%d, v%d, v%d' % (tmp, tmp, b, b + 1), 'v_max3_u32 v%d, v%d, v%d, v%d' % (tmp, tmp, b + 2, b + 3)]

    def cmpv(tmp):
        return 'v_cmp_eq_u32 vcc, -1, v%d' % tmp

    def smf1(t, m, tt):
        A('v_smfmac_f32_16x16x64_bf16 %s, %s, %s, v%d' % (v(vA + 8 * m + 4 * tt, 4), v(vM + 4 * t, 4), a(W1(t, m, tt), 8), vIdx))

    def add2(d, x, y):
        if opt.get('pk', 1):
            A('v_pk_add_f32 %s, %s, %s' % (v(d, 2), v(x, 2), v(y, 2)))
        else:
            A('v_add_f32 v%d, v%d, v%d' % (d, x, y))
            A('v_add_f32 v%d, v%d, v%d' % (d + 1, x + 1, y + 1))

    def fold(m, vs=None):
        b = vA + 8 * m
        f = vF + 4 * m
        n_ = 0
        for tt in range(2):
            for j in range(2):
                A('v_permlane32_swap_b32 v%d, v%d' % (b + 4 * tt + j, b + 4 * tt + j + 2))
                if vs and n_ < 3:
                    smf1(*vs.pop(0))
                n_ += 1
        for tt in range(2):
            add2(f + 2 * tt, b + 4 * tt, b + 4 * tt + 2)
        if vs:
            smf1(*vs.pop(0))
        A('ds_write2st64_b64 v%d, %s, %s offset0:%d offset1:%d' % (vW1q if m < 2 else vW1k, v(f, 2), v(f + 2, 2), 2 * m, 2 * m + 1))

    def rd1(ad, r_=None):
        r_ = vR if r_ is None else r_
        for w in range(4):
            A('ds_read2st64_b32 %s, v%d offset0:%d offset1:%d' % (v(r_ + 2 * w, 2), ad, 12 * w, 12 * w + 2))

    def red1(dst, extra='', r_=None, more=0):
        r_ = vR if r_ is None else r_
        A('s_waitcnt lgkmcnt(%d)' % (0 if prof else 2 + more))
        A(extra)
        add2(r_, r_, r_ + 2)
        A('s_waitcnt lgkmcnt(%d)' % (0 if prof else more))
        add2(r_ + 4, r_ + 4, r_ + 6)
        add2(r_, r_, r_ + 4)
        A('v_cvt_pk_bf16_f32 v%d, v%d, v%d' % (dst, r_, r_ + 1))
        A('v_min_u32 v%d, -2, v%d' % (dst, dst))

    def st4(src, ad, so, mod):
        return 'buffer_store_dword v%d, v%d, %s, s%d offen%s' % (src, ad, S4(WS), so, mod)

    ld_q = [ldx4(vQ, sQkvR, 0), ldx4(vQ + 8, sQkvR, 1024)]
    ld_k = [ldx4(vKm, sQkvR, 2048), ldx4(vKm + 4, sQkvR, 3072)]
    ld_v = [ldx4(vVm, sQkvR2, 0), ldx4(vVm + 4, sQkvR2, 1024)]
    st_v = st4(vVv, vVst, sQkvW, loc)
    ld_part = [ldx4(vPt, sPartR, 0), ldx4(vPt + 4, sPartR, 1024)]
    X0, X1 = vS, vS + 4
    cnt = lambda n_: A('s_add_u32 s%d, s%d, 1' % (n_, n_)) if lite else None

    hooks = []

    def hook(align=False):
        if not opt.get('iw', 0):
            return
        if align:
            A('.p2align 6')
        hooks.append(len(hooks))
        A.label('L_hk%d' % hooks[-1])
        A('s_branch @HK%d@' % hooks[-1])

    def nxt(Sm, t):
        for d in range(1, 5):
            if Sm >> ((t + d) & 3) & 1:
                return (t + d) & 3

    def block(Sm, t, wait=None):
        rest = Sm & ~(1 << t)
        n = nxt(rest, t) if rest else None
        smf1(t, 0, 0)
        if rest:
            if wait is not None:
                A('s_waitcnt vmcnt(%d)' % wait)
            for o in chk4(vM + 4 * n, vT0):
                A(o)
        smf1(t, 0, 1)
        if rest:
            A(cmpv(vT0))
        smf1(t, 1, 0)
        smf1(t, 1, 1)
        return rest, n

    def first_pass():
        A('s_waitcnt vmcnt(3)')
        for o in chk4(vM, vT0):
            A(o)
        A(cmpv(vT0))
        A('s_cbranch_vccnz L_F15_0')
        stamp('m0ok')
        Sm = 15
        for t in range(4):
            stamp('B%d' % t)
            Sm, n = block(Sm, t, 2 - t)
            if Sm:
                A('s_cbranch_vccnz L_F%d_%d' % (Sm, n))

    def poll_nodes_ooo():
        for Sm in sorted(range(1, 16), key=lambda x: -bin(x).count('1')):
            ts = [t for t in range(4) if Sm >> t & 1]
            hook(True)
            for t in ts:
                A.label('L_P%d_%d' % (Sm, t))
                A('s_waitcnt vmcnt(3)')
                for o in chk4(vM + 4 * t, vT0):
                    A(o)
                A(cmpv(vT0))
                A('s_cbranch_vccz L_V%d_%d' % (Sm, t))
                A.label('L_F%d_%d' % (Sm, t))
                ld_mem(t)
                cnt(sN1)
            timeout_stub(A, 'L_P%d_%d' % (Sm, ts[0]))
            if len(ts) > 1:
                hook()
            for t in ts:
                hook(True)
                A.label('L_V%d_%d' % (Sm, t))
                if Sm == 15:
                    stamp('m0ok')
                stamp('B%d' % (4 - len(ts)))
                rest, n = block(Sm, t)
                if rest:
                    A('s_cbranch_vccz L_V%d_%d' % (rest, n))
                    A('s_branch L_F%d_%d' % (rest, n))
                else:
                    A('s_branch L_T1')

    def poll_nodes():
        if opt.get('ooo', 1):
            return poll_nodes_ooo()
        for k in range(4):
            full = 15 & ~((1 << k) - 1)
            for Sm in sorted(range(1, 16), key=lambda x: -bin(x).count('1')):
                if Sm & ~full:
                    continue
                ts = [t for t in range(4) if Sm >> t & 1]
                for t in ts:
                    rest = Sm & ~(1 << t)
                    A.label('L_P%d_%d_%d' % (k, Sm, t))
                    A('s_waitcnt vmcnt(%d)' % opt.get('lim', 3))
                    for o in chk4(vM + 4 * t, vT0):
                        A(o)
                    A(cmpv(vT0))
                    A('s_cbranch_vccz %s' % ('L_P%d_%d_%d' % (k, rest, nxt(rest, t)) if rest else 'L_G%d' % k))
                    if Sm == full and t == k:
                        A.label('L_F%d_%d' % (Sm, t))
                    ld_mem(t)
                    cnt(sN1)
                timeout_stub(A, 'L_P%d_%d_%d' % (k, Sm, ts[0]))
        for k in range(4):
            A.label('L_G%d' % k)
            if k == 0:
                stamp('m0ok')
            stamp('B%d' % k)
            block(1 << k, k)
        A('s_branch L_T1')

    A('s_cmp_lt_u32 s%d, %d' % (sPure, NPURE))
    A('s_cbranch_scc1 L_loop_i')
    loop_start = len(A.lines)
    A('.p2align 6')
    A.label('L_loop')
    first_pass()
    A.label('L_T1')
    stamp('T1')
    kxl = [ldx4(vKx + 4 * f, (sKx, sKx2)[f >> 2], (f & 3) * 1024) for f in range(8)]
    na = opt.get('na', 3)
    ka = kxl[8 - na:]
    nk = lambda: A(ka.pop(0)) if ka else None
    qk = ld_q + ld_k
    order = []
    zq = []
    if opt.get('split', 1):
        fold(0)
        stamp('f0')
        fold(1)
        stamp('f1')
        for t in range(3):
            smf1(t, 2, 0)
            nk()
            smf1(t, 2, 1)
        A('s_waitcnt lgkmcnt(0)')
        stamp('st1end')
        A('s_barrier')
        stamp('bar1')
        rd1(vR1)
        smf1(3, 2, 0); nk(); smf1(3, 2, 1)
        while ka:
            nk()
        red1(vQK)
        A(st4(vQK, vQst, sQkvW, loc))
        stamp('qkvst')
        slots = [int(ch) for ch in str(opt.get('h2s', '2244')).zfill(4)]

        def slot(i):
            for n_, sl_ in enumerate(slots):
                if sl_ == i:
                    A(qk[n_]); order.append(qk[n_])
        fold(2)
        slot(0)
        A('s_add_u32 s%d, s%d, 0x%x' % (sKx, sKx, SEG))
        A('s_add_u32 s%d, s%d, 0x%x' % (sKx2, sKx2, SEG))
        A('s_cmp_eq_u32 s%d, s%d' % (sStep, sD))
        A('s_cbranch_scc1 L_sp')
        A.label('L_spr')
        A('s_waitcnt lgkmcnt(0)')
        A('s_barrier')
        stamp('bar1b')
        slot(1)
        rd1(vR1v)
        slot(2)
        A('s_waitcnt lgkmcnt(%d)' % (0 if prof else 3))
        slot(3)
        red1(vVv)
        A(st_v); order.append(st_v)
        stamp('vst')
        slot(4)
    else:
        vs = [(t, 2, tt) for t in range(4) for tt in range(2)]
        fold(0, vs)
        stamp('f0')
        fold(1, vs)
        stamp('f1')
        fold(2)
        while ka:
            nk()
        A('s_add_u32 s%d, s%d, 0x%x' % (sKx, sKx, SEG))
        A('s_add_u32 s%d, s%d, 0x%x' % (sKx2, sKx2, SEG))
        A('s_waitcnt lgkmcnt(0)')
        stamp('st1end')
        A('s_barrier')
        stamp('bar1')
        rd1(vR1)
        rd1(vR1v, vA)
        red1(vQK, '', vR, 4)
        A(st4(vQK, vQst, sQkvW, loc))
        stamp('qkvst')
        red1(vVv, '', vA)
        A(st_v)
        stamp('vst')
        A('s_cmp_eq_u32 s%d, s%d' % (sStep, sD))
        A('s_cbranch_scc1 L_sp')
        A.label('L_spr')
        zq = zeros(vT, 16) + zeros(MM, 4)
        fz = zq + ['s_nop 0'] * 60
        for i, n_ in enumerate([opt.get('h2d', 6)] + [opt.get('h2p', 10)] * 3):
            paced(fz[:n_]); fz = fz[n_:]
            A(qk[i]); order.append(qk[i])
        paced([o for o in fz if o.startswith('v_')])
    younger = lambda o: len(order) - 1 - order.index(o)
    A.label('L_h2')
    mx = lambda tt, j, first=False: A('v_mfma_f32_16x16x32_bf16 %s, %s, %s, %s' % (v(vS + 4 * tt, 4), v(vKx + (tt * 4 + j) * 4, 4), v(vQ + 4 * j, 4), '0' if first else v(vS + 4 * tt, 4)))
    ror = lambda r_: A('v_mov_b32_dpp v%d, v%d row_ror:8 row_mask:0xf bank_mask:0xf' % (r_ + 4, r_))
    smm = lambda u: A('v_smfmac_f32_16x16x64_bf16 %s, %s, %s, v%d' % (v(MM, 4), v(vKm + 4 * u, 4), v(vQ + 8 * u, 8), vIdx))
    qkr = [vQ, vQ + 8, vKm, vKm + 4]
    mxo = ['v_max3_f32 v%d, v%d, v%d, v%d' % (vT0, vBias, X0, X0 + 1), 'v_max3_f32 v%d, v%d, v%d, v%d' % (vT0, vT0, X0 + 2, X0 + 3),
           'v_max3_f32 v%d, v%d, v%d, v%d' % (vT0, vT0, X1, X1 + 1), 'v_max3_f32 v%d, v%d, v%d, v%d' % (vT0, vT0, X1 + 2, X1 + 3)]
    swm = ['v_permlane32_swap_b32 v%d, v%d' % (MM, MM + 2), 'v_permlane32_swap_b32 v%d, v%d' % (MM + 1, MM + 3)]

    def ck(i):
        for o in chk4(qkr[i], vT3):
            A(o)

    def s_end():
        add2(MM, MM, MM + 2)
        A('v_max3_f32 v%d, v%d, v%d, v%d' % (vT0, vT0, MM, MM + 1))
        A('v_mov_b32 v%d, v%d' % (vT1, vT0))
    h2m = opt.get('h2m', 0)
    if h2m == 2:
        stamp('q0w')
        A('s_waitcnt vmcnt(%d)' % younger(qk[0]))
        stamp('q0l')
        mx(0, 0, True); ck(0)
        mx(1, 0, True); A(cmpv(vT3)); ror(vQ); ror(vQ + 1); ror(vQ + 2); ror(vQ + 3)
        A('s_cbranch_vccnz L_FA15_0')
        mx(0, 1)
        A('s_waitcnt vmcnt(%d)' % younger(qk[1]))
        stamp('q1l')
        ck(1)
        mx(1, 1); A(cmpv(vT3)); ror(vQ + 8)
        mx(0, 2); ror(vQ + 9); ror(vQ + 10)
        mx(1, 2); ror(vQ + 11)
        A('s_cbranch_vccnz L_FA14_1')
        stamp('q0ok')
        mx(0, 3); A(ld_v[0])
        mx(1, 3); A(ld_v[1])
        order += ld_v
        stamp('k0w')
        A('s_waitcnt vmcnt(%d)' % younger(qk[2]))
        smm(0)
        if opt.get('k0c', 1):
            ck(2); A(cmpv(vT3)); A(mxo[0]); A(mxo[1]); A(mxo[2]); A(mxo[3])
            A('s_cbranch_vccnz L_FK12_2')
            stamp('k1w')
            A('s_waitcnt vmcnt(%d)' % younger(qk[3]))
            stamp('k1l')
            smm(1)
            ck(3); A(cmpv(vT3))
            A(swm[0]); A(swm[1])
            s_end()
            A('s_cbranch_vccnz L_FK8_3')
        else:
            stamp('k1w')
            A('s_waitcnt vmcnt(%d)' % younger(qk[3]))
            stamp('k1l')
            smm(1)
            for o in chk4(vKm, vT3) + chk4more(vKm + 4, vT3):
                A(o)
            A(cmpv(vT3))
            A(mxo[0]); A(swm[0]); A(swm[1]); A(mxo[1]); A(mxo[2]); A(mxo[3])
            s_end()
            A('s_cbranch_vccnz L_PK12_2')
    else:
        stamp('q0w')
        A('s_waitcnt vmcnt(%d)' % younger(qk[0]))
        stamp('q0l')
        mx(0, 0, True); ror(vQ); ror(vQ + 1)
        mx(1, 0, True); ror(vQ + 2); ror(vQ + 3)
        A('s_waitcnt vmcnt(%d)' % younger(qk[1]))
        stamp('q1l')
        c1, c2 = chk4(vQ, vT3), chk4more(vQ + 8, vT3)
        mx(0, 2); A(c1[0]); A(c1[1])
        mx(1, 2); A(c2[0]); A(c2[1])
        mx(0, 1); A(cmpv(vT3)); ror(vQ + 8); ror(vQ + 9)
        mx(1, 1); ror(vQ + 10); ror(vQ + 11)
        A('s_cbranch_vccnz %s' % ('L_r2' if h2m == 0 else 'L_PA15_0'))
        stamp('q0ok')
        order_q = list(order)
        mx(0, 3); A(ld_v[0])
        mx(1, 3); A(ld_v[1])
        order += ld_v
        A.label('L_h2k')
        stamp('k0w')
        A('s_waitcnt vmcnt(%d)' % younger(qk[2]))
        smm(0)
        stamp('k1w')
        A('s_waitcnt vmcnt(%d)' % younger(qk[3]))
        stamp('k1l')
        smm(1)
        for o in chk4(vKm, vT3) + chk4more(vKm + 4, vT3):
            A(o)
        A(cmpv(vT3))
        A(mxo[0]); A(swm[0]); A(swm[1]); A(mxo[1]); A(mxo[2]); A(mxo[3])
        order_k = order[order.index(qk[2]):]
        s_end()
        A('s_cbranch_vccnz %s' % ('L_r2k' if h2m == 0 else 'L_PK12_2'))
    A.label('L_sj')
    stamp('kok')
    vxl = [ldx4(vVx + 4 * f, (sVx, sVx2)[f >> 2], (f & 3) * 1024) for f in range(8)]
    bulk = vxl + kxl[:8 - na]
    nbulk = len(bulk)
    nb = lambda: A(bulk.pop(0)) if bulk else None
    early = opt.get('be', 2)
    for i in range(min(early, 1)):
        nb()
    A('v_permlane32_swap_b32 v%d, v%d' % (vT0, vT1))
    A('v_max_f32 v%d, v%d, v%d' % (vT0, vT0, vT1))
    A('v_mov_b32 v%d, v%d' % (vT1, vT0))
    for i in range(max(early - 1, 0)):
        nb()
    A('v_permlane16_swap_b32 v%d, v%d' % (vT0, vT1))
    A('v_max_f32 v%d, v%d, v%d' % (vT0, vT0, vT1))
    A('v_mul_f32 v%d, s%d, v%d' % (vT0, sScale, vT0))
    fma = lambda r_: A('v_fma_f32 v%d, v%d, s%d, -v%d' % (r_, r_, sScale, vT0))
    ex = lambda r_: A('v_exp_f32 v%d, v%d' % (r_, r_))
    cvt = lambda d, x: A('v_cvt_pk_bf16_f32 v%d, v%d, v%d' % (d, x, x + 1))
    shr = lambda d, x: A('v_mov_b32_dpp v%d, v%d row_shr:8 row_mask:0xf bank_mask:0xc' % (d, x))
    for i in range(8):
        fma(vS + i)
    stamp('vw')
    A('s_waitcnt vmcnt(%d)' % early)
    stamp('vl')
    for o in chk4(vVm, vT3) + chk4more(vVm + 4, vT3):
        A(o)
    A(cmpv(vT3))
    for i in range(3):
        ex(vS + i)
    A('s_cbranch_vccnz L_r2v')
    A.label('L_h2v')
    stamp('Send')
    vom = lambda u, n: A('v_smfmac_f32_16x16x64_bf16 %s, %s, %s, v%d' % (v(vT + 4 * n, 4), v(vVm + 4 * u, 4), a(WO(n, 2 * u), 8), vIdx))
    for i in range(8):
        vom(i & 1, i >> 1)
        if i & 1:
            nb()
        if i < 5:
            ex(vS + 3 + i)
        else:
            cvt(vP + i - 5, vS + 2 * (i - 5))
    stamp('vomend')
    cvt(vP + 3, vS + 6)
    fma(MM); fma(MM + 1)
    m32 = lambda d, x, p, c_: A('v_mfma_f32_16x16x32_bf16 %s, %s, %s, %s' % (v(d, 4), v(x, 4), v(p, 4), v(d, 4) if c_ else '0'))
    m16 = lambda d, x, p: A('v_mfma_f32_16x16x16_bf16 %s, %s, %s, %s' % (v(d, 4), v(x, 2), v(p, 2), v(d, 4)))
    cvm = lambda k: cvt(vVOm + k, vT + 2 * k)
    m32(vO, vVOx, vP, 0)
    nb()
    ex(MM)
    m32(vO + 4, vVOx + 8, vP, 0)
    ex(MM + 1)
    m32(vLs, vOne, vP, 0)
    nb()
    shr(vPs, vP); shr(vPs + 1, vP + 1); shr(vPs + 2, vP + 2); shr(vPs + 3, vP + 3)
    cvt(vPm, MM)
    cvt(vPm + 1, MM)
    m32(vO, vVOx + 4, vPs, 1)
    cvm(0)
    A('v_permlane32_swap_b32 v%d, v%d' % (vPm, vPm + 1))
    m32(vO + 4, vVOx + 12, vPs, 1)
    nb()
    cvm(1); cvm(2)
    stamp('m16')
    m16(vLs, vHalf, vPm)
    shr(vPms, vPm); shr(vPms + 1, vPm + 1)
    m16(vO, vVOm, vPm)
    nb()
    cvm(3); cvm(4); cvm(5)
    m16(vO, vVOm + 2, vPms)
    cvm(6); cvm(7)
    m16(vO + 4, vVOm + 4, vPm)
    nb()
    A('v_rcp_f32 v%d, v%d' % (vT1, vLs))
    m16(vO + 4, vVOm + 6, vPms)
    stamp('mend')
    A('ds_write_b32 v%d, v%d' % (vW2l, vT1))
    A('ds_write_b128 v%d, %s' % (vW2, v(vO, 4)))
    while bulk:
        nb()
    A('ds_write_b128 v%d, %s offset:1024' % (vW2, v(vO + 4, 4)))
    A('s_add_u32 s%d, s%d, 0x40000' % (sPf, sPf))
    A('s_waitcnt lgkmcnt(0)')
    stamp('st2end')
    A('s_barrier')
    stamp('bar2')
    A('ds_read_b128 %s, v%d' % (v(vR2d + 8, 4), vR2l))
    for w in range(4):
        A('ds_read_b64 %s, v%d offset:%d' % (v(vR2d + 2 * w, 2), vR2, w * 2048))
    side = []
    if not opt.get('nokvm'):
        side += [st4(vQK, vKst, sKvm, ' sc1'), st4(vVv, vVst, sKvm, ' sc1')]
    if opt.get('pf', 1):
        side += [ldx4(252, sPf, 0)]
    side += ['buffer_load_dword v%d, v%d, %s, s%d offen sc1' % (vFv, vFa, S4(WS), sFo)]
    nse = opt.get('nse', 3)
    for o in side[:nse]:
        A(o)
    for w in range(4):
        A('s_waitcnt lgkmcnt(%d)' % (0 if prof else 3 - w))
        sel = 'op_sel:[0,%d%s] op_sel_hi:[1,%d%s]' % (w & 1, ',0' if w else '', w & 1, ',1' if w else '')
        if w == 0:
            A('v_pk_mul_f32 %s, %s, %s %s' % (v(vR2d, 2), v(vR2d, 2), v(vR2d + 8, 2), sel))
        else:
            A('v_pk_fma_f32 %s, %s, %s, %s %s' % (v(vR2d, 2), v(vR2d + 2 * w, 2), v(vR2d + 8 + (w & 2), 2), v(vR2d, 2), sel))
    cvt(vT0, vR2d)
    A('v_min_u32 v%d, -2, v%d' % (vT0, vT0))
    A(st4(vT0, vL4, sPartA, ' sc1'))
    if not opt.get('nofar'):
        A(st4(vT0, vL4, sPartW, ' sc1'))
    stamp('partst')
    A('s_waitcnt vmcnt(%d)' % (2 - opt.get('nofar', 0) + nbulk - 8 + len(side[:nse])))
    stamp('vxok')
    pre = [st4(vSent, vL4, sMemW, loc),
           's_xor_b32 s%d, s%d, 0x8000' % (sQkvW, sQkvW),
           st4(vSent, vQst, sQkvW, loc), st4(vSent, vVst, sQkvW, loc)]
    pre = side[nse:] + pre
    pre += ['s_xor_b32 s%d, s%d, 0x8000' % (sQkvR, sQkvR), 's_xor_b32 s%d, s%d, 0x8000' % (sQkvR2, sQkvR2),
            's_add_u32 s%d, s%d, 0x20000' % (sKvm, sKvm), 's_xor_b32 s%d, s%d, 0x4000' % (sMemW, sMemW),
            's_xor_b32 s%d, s%d, 0x4000' % (sMemR, sMemR),
            's_add_u32 s%d, s%d, 0x%x' % (sVx, sVx, SEG), 's_add_u32 s%d, s%d, 0x%x' % (sVx2, sVx2, SEG)]
    gpos = opt.get('gpos', 26)
    fill = {}
    for i, o in enumerate(pre):
        fill.setdefault(i, []).append(o)
    sl = ['s_memtime s[26:27]'] if prof else []
    fill.setdefault(gpos, []).extend(['s_nop 15'] * opt.get('w3', 0) + sl + ld_part)
    vox(fill)
    zz = [o for o in zeros(vA, 24) + zeros(vT, 16) + zeros(MM, 4) if o not in zq]
    zz += ['s_nop 0'] * len(zq)
    zw = opt.get('zw', 4)
    paced(zeros(vM, 16, '-1') + vox_tail() + (zeros(vQ, 4, '-1') + zeros(vQ + 8, 4, '-1') + zeros(vKm, 8, '-1') if h2m else []) + zz[:zw])
    zz = zz[zw:]
    if lite and not prof:
        A('s_and_b32 s%d, s%d, %d' % (sA, sStep, 48 if opt.get('trs') else 3))
        A('s_cbranch_scc1 L_notr')
        A('s_memtime s[12:13]')
        A('s_memrealtime s[14:15]')
        A('s_%s_b32 s%d, s%d, 1' % ('lshl' if opt.get('trs') else 'lshr', sA, sStep))
        A('s_mov_b32 m0, s%d' % sA)
        A('s_waitcnt lgkmcnt(0)')
        A('v_writelane_b32 v%d, s%d, m0' % (vTr, sKn if opt.get('trs') else 12))
        A('s_add_u32 m0, s%d, 1' % sA)
        A('v_writelane_b32 v%d, s14, m0' % vTr)
        A.label('L_notr')
    if prof:
        A('s_waitcnt lgkmcnt(0)')
        A('s_sub_u32 s%d, s%d, 33' % (sA, sStep))
        A('s_cmp_lt_u32 s%d, 6' % sA)
        A('s_cbranch_scc0 L_notr')
        A('s_mul_i32 s%d, s%d, 9' % (sA, sA))
        A('s_add_u32 s%d, s%d, 8' % (sA, sA))
        for i in [8] + list(range(8)):
            A('s_mov_b32 m0, s%d' % sA)
            A('v_writelane_b32 v%d, s%d, m0' % (vTr, 12 + 2 * i))
            A('s_add_u32 s%d, s%d, 1' % (sA, sA))
        A.label('L_notr')
    A.label('L_h3')
    lo = vP
    A('s_waitcnt vmcnt(1)')
    A('v_mfma_f32_16x16x32_bf16 %s, %s, %s, 0' % (v(lo, 4), v(vSel, 4), v(vPt, 4)))
    for o in chk4(vPt, vT0):
        A(o)
    A('s_waitcnt vmcnt(0)')
    A('v_mfma_f32_16x16x32_bf16 %s, %s, %s, %s' % (v(lo, 4), v(vSel, 4), v(vPt + 4, 4), v(lo, 4)))
    for o in chk4more(vPt + 4, vT0):
        A(o)
    A(cmpv(vT0))
    A('s_cbranch_vccnz L_r3')
    A.label('L_h3ok')
    stamp('gathok')
    cvt(vT0, lo)
    A('v_min_u32 v%d, -2, v%d' % (vT0, vT0))
    A(st4(vT0, vL4, sMemW, loc))
    stamp('memst')
    A('s_add_u32 s%d, s%d, 1' % (sStep, sStep))
    A('s_bitcmp1_b64 %s, s%d' % (s(sLo, 2), sStep))
    A('s_cselect_b32 s%d, 0, 0x%x' % (sFo, OOB))
    A('s_add_u32 s%d, s%d, 0x40000' % (sPo, sPo))
    A('s_and_b32 s%d, s%d, 0x1c0000' % (sA, sPo))
    A('s_cmp_eq_u32 s%d, 0x1c0000' % sA)
    A('s_cselect_b32 s%d, 0x40000, 0' % sA)
    A('s_add_u32 s%d, s%d, s%d' % (sPo, sPo, sA))
    z0 = opt.get('h1d', 10)
    zs = opt.get('h1s', 12)
    paced(zz[:z0]); zz = zz[z0:]
    for t in range(4):
        ld_mem(t)
        stamp('mi%d' % t)
        if t == 2:
            part_slots()
            paced(zz); zz = []
        paced(zz[:zs]); zz = zz[zs:]
    kv_check('L_kvw')
    A.label('L_kvc')
    A('s_branch L_loop')
    poll_nodes()
    A.label('L_sp')
    A('s_cmp_eq_u32 s%d, 63' % sStep)
    A('s_cbranch_scc1 L_c_tail')
    A('s_mov_b32 s%d, 63' % sD)
    A.label('L_sp1')
    A(ld_flags)
    A('s_waitcnt vmcnt(0)')
    kv_check('L_sp2')
    A('s_branch L_spr')
    A.label('L_sp2')
    timeout_stub(A, 'L_sp1')
    hook(True)
    A.label('L_kvw')
    A(ld_flags)
    A('s_waitcnt vmcnt(0)')
    kv_check('L_kvw2')
    A('s_branch L_kvc')
    A.label('L_kvw2')
    timeout_stub(A, 'L_kvw')
    if h2m:
        for fam, full, cont in (('A', 15, 'L_SA'), ('K', 12, 'L_SK')):
            for Sm in sorted(range(1, 16), key=lambda x: -bin(x).count('1')):
                if Sm & ~full:
                    continue
                ts = [t for t in range(4) if Sm >> t & 1]
                hook(True)
                for t in ts:
                    rest = Sm & ~(1 << t)
                    A.label('L_P%s%d_%d' % (fam, Sm, t))
                    A('s_waitcnt vmcnt(%d)' % opt.get('lim2', 4 if opt.get('split', 1) else 3))
                    ck(t)
                    A(cmpv(vT3))
                    A('s_cbranch_vccz %s' % ('L_P%s%d_%d' % (fam, rest, nxt(rest, t)) if rest else cont))
                    A.label('L_F%s%d_%d' % (fam, Sm, t))
                    A(qk[t])
                    cnt(sN2)
                timeout_stub(A, 'L_P%s%d_%d' % (fam, Sm, ts[0]))
                if len(ts) > 1:
                    hook()
        hook(True)
        A.label('L_SA')
        stamp('q1l'); stamp('q0ok'); stamp('k0w'); stamp('k1w'); stamp('k1l')
        mx(0, 0, True); ror(vQ); ror(vQ + 1)
        mx(1, 0, True); ror(vQ + 2); ror(vQ + 3)
        mx(0, 2); A(ld_v[0]); ror(vQ + 8); ror(vQ + 9)
        mx(1, 2); A(ld_v[1]); ror(vQ + 10); ror(vQ + 11)
        smm(0); smm(1)
        mx(0, 1); mx(0, 3); mx(1, 1); A(swm[0]); mx(1, 3); A(swm[1])
        for o in mxo:
            A(o)
        s_end()
        A('s_branch L_sj')
        hook()
        hook(True)
        A.label('L_SK')
        stamp('k1w'); stamp('k1l')
        for o in zeros(MM, 4):
            A(o)
        smm(0); smm(1)
        for o in mxo + swm:
            A(o)
        s_end()
        A('s_branch L_sj')
        hook()
    else:
        hook(True)
        A.label('L_r2')
        for o in order_q:
            A(o)
        cnt(sN2)
        timeout_stub(A, 'L_h2')
        hook(True)
        A.label('L_r2k')
        for o in order_k + zeros(MM, 4):
            A(o)
        cnt(sN2)
        timeout_stub(A, 'L_h2k')
        hook()
    hook(True)
    A.label('L_r2v')
    for o in ld_v:
        A(o)
    cnt(sN2)
    A('s_waitcnt vmcnt(0)')
    for o in chk4(vVm, vT3) + chk4more(vVm + 4, vT3):
        A(o)
    A(cmpv(vT3))
    A('s_cbranch_vccz L_h2v')
    timeout_stub(A, 'L_r2v')
    hook()
    hook(True)
    A.label('L_r3')
    for o in ld_part:
        A(o)
    cnt(sN3)
    if opt.get('lim3', -1) < 0:
        timeout_stub(A, 'L_h3')
    A('s_waitcnt vmcnt(%d)' % max(opt.get('lim3', -1), 0))
    for o in chk4(vPt, vT0) + chk4more(vPt + 4, vT0):
        A(o)
    A(cmpv(vT0))
    A('v_mfma_f32_16x16x32_bf16 %s, %s, %s, 0' % (v(lo, 4), v(vSel, 4), v(vPt, 4)))
    A('v_mfma_f32_16x16x32_bf16 %s, %s, %s, %s' % (v(lo, 4), v(vSel, 4), v(vPt + 4, 4), v(lo, 4)))
    A('s_nop 2')
    A('s_cbranch_vccz L_h3ok')
    timeout_stub(A, 'L_r3')
    hook()
    A.label('L_loop_end')
    body = [re.sub(r'@HK(\d+)@', lambda m: 'L_hk%d' % (int(m.group(1)) + 4) if int(m.group(1)) + 4 < len(hooks) else 'L_hkret', l) for l in A.lines[loop_start:]]
    labs = [l[:-1] for l in body if l.endswith(':')]
    pat = re.compile(r'\b(' + '|'.join(labs) + r')\b')
    A.lines[loop_start:] = [l.replace('@LOC@', '') for l in body] + [pat.sub(r'\1_i', l).replace('@LOC@', ' sc1') for l in body]
    A.label('L_c_tail')
    A(st4(vQK, vKst, sKvm, ' sc1'))
    if opt.get('split', 1):
        A('s_waitcnt lgkmcnt(0)')
        A('s_barrier')
        rd1(vR1v)
        red1(vVv)
    A(st4(vVv, vVst, sKvm, ' sc1'))
    if lite:
        A('s_mov_b32 s66, s78')
        sN3 = 66
    if opt.get('diag'):
        A('s_cmp_lg_u32 s%d, 0' % sC)
        A('s_cbranch_scc1 L_dg')
        A('s_cmp_lg_u32 s%d, 0' % sW)
        A('s_cbranch_scc1 L_dg')
        dbg_mark(A, opt, 4, vT2, vT3)
        A('s_memtime s[78:79]')
        A('s_waitcnt lgkmcnt(0)')
        A('s_sub_u32 s78, s78, s98')
        A('s_sub_u32 s79, s96, s76')
        A('v_mov_b32 v%d, s78' % vT2)
        A('v_mov_b32 v%d, s79' % vT1)
        A('v_mov_b32 v%d, 0' % vT3)
        A('s_mov_b64 exec, 1')
        A('buffer_atomic_umax v%d, v%d, %s, 0 offen offset:36 sc1' % (vT2, vT3, S4(DBG)))
        A('buffer_atomic_umax v%d, v%d, %s, 0 offen offset:12 sc1' % (vT1, vT3, S4(DBG)))
        A('v_not_b32 v%d, v%d' % (vT2, vT2))
        A('buffer_atomic_umax v%d, v%d, %s, 0 offen offset:40 sc1' % (vT2, vT3, S4(DBG)))
        A('s_mov_b64 exec, -1')
        A.label('L_dg')
    tstamp(A, opt, 7, vT2, vT3, sA)
    if lite:
        A('s_memtime s[12:13]')
        A('s_memrealtime s[14:15]')
        A('s_waitcnt lgkmcnt(0)')
        A('s_sub_u32 s12, s12, s96')
        A('s_sub_u32 s14, s14, s98')
        A('v_mov_b32 v%d, s12' % (vM + 3))
        A('v_mov_b32 v%d, s14' % (vM + 4))
        A('s_lshl_b32 s%d, s%d, 4' % (sA, sG))
        A('s_add_u32 s%d, s%d, s%d' % (sA, sA, sC))
        A('s_lshl_b32 s%d, s%d, 2' % (sA, sA))
        A('s_add_u32 s%d, s%d, s%d' % (sA, sA, sW))
        A('s_lshl_b32 s%d, s%d, 6' % (sA, sA))
        A('s_add_u32 s%d, s%d, 0x%x' % (sA, sA, PROF))
        A('v_mov_b32 v%d, s%d' % (vM, sN1))
        A('v_mov_b32 v%d, s%d' % (vM + 1, sN2))
        A('v_mov_b32 v%d, s%d' % (vM + 2, sN3))
        A('v_mov_b32 v%d, 0' % vT0)
        for i in range(9, 14):
            A('buffer_store_dword v%d, v%d, %s, s%d offen offset:%d' % (vM + i - 9, vT0, S4(WS), sA, 4 * i))
    if lite:
        A('v_mov_b32 v%d, s96' % vT1)
        A('buffer_store_dword v%d, v%d, %s, s%d offen offset:56' % (vT1, vT0, S4(WS), sA))
        A('v_mov_b32 v%d, s98' % vT2)
        A('buffer_store_dword v%d, v%d, %s, s%d offen offset:60' % (vT2, vT0, S4(WS), sA))
        A('s_sub_u32 s%d, s%d, 0x%x' % (sA, sA, PROF))
        A('s_lshl_b32 s%d, s%d, 2' % (sA, sA))
        A('s_add_u32 s%d, s%d, 0x%x' % (sA, sA, PROF + MB))
        A('buffer_store_dword v%d, v%d, %s, s%d offen' % (vTr, vL4, S4(WS), sA))
    A('s_waitcnt vmcnt(0)')
    A('s_endpgm')


def build(opt):
    A = Asm()
    prologue(A, opt)
    chain(A, opt)
    for kind in 'kvq':
        proj(A, opt, kind)
    orole(A, opt)
    body, nn = fix_hazards(A.lines, verbose=True)
    hdr = open('cdna_kernels/%s.s.ref' % NAME).read().split('\n')
    hdr = [l for l in hdr if l.startswith(';') and '@launch' not in l]
    hdr.append('; opts ' + ' '.join('%s=%s' % kv for kv in opt.items()))
    if opt.get('prof'):
        hdr.append('; marks=' + opt.get('marks', 'm0ok,st1end,qkvst,q0ok,Send,st2end,partst') + ',gath,gathok')
    out = hdr + ['; @launch grid=(256,1,1) block=(256,1,1) lds=%d' % opt.get('lds', 163840),
                 '.amdgcn_target "amdgcn-amd-amdhsa--gfx950"', '.text', '.globl %s_kernel' % NAME, '.p2align 8',
                 '.type %s_kernel,@function' % NAME, '%s_kernel:' % NAME]
    out += body
    out += ['.section .rodata,"a"', '.p2align 6', '.amdhsa_kernel %s_kernel' % NAME,
            '  .amdhsa_next_free_vgpr 512', '  .amdhsa_next_free_sgpr 102', '  .amdhsa_accum_offset 256',
            '  .amdhsa_group_segment_fixed_size 0', '  .amdhsa_kernarg_size 128', '  .amdhsa_user_sgpr_count 2',
            '  .amdhsa_user_sgpr_kernarg_segment_ptr 1', '  .amdhsa_system_sgpr_workgroup_id_x 1',
            '  .amdhsa_float_denorm_mode_32 3', '.end_amdhsa_kernel', '']
    return '\n'.join(out), nn


if __name__ == '__main__':
    opt = {}
    outp = sys.argv[1]
    for a_ in sys.argv[2:]:
        k, val = a_.split('=')
        opt[k] = int(val) if val.lstrip('-').isdigit() else val
    txt, nn = build(opt)
    open(outp, 'w').write(txt)
    print('wrote', outp, 'nops inserted:', nn)
```

```python
import re

REG_RE = re.compile(r'^(-|abs\()?([vas])(\d+)\)?$')
RNG_RE = re.compile(r'^(-|abs\()?([vas])\[(\d+):(\d+)\]\)?$')
SPECIAL = {'vcc': ['vcc_lo', 'vcc_hi'], 'vcc_lo': ['vcc_lo'], 'vcc_hi': ['vcc_hi'],
           'exec': ['exec_lo', 'exec_hi'], 'exec_lo': ['exec_lo'], 'exec_hi': ['exec_hi'], 'm0': ['m0']}
TRANS = ('v_exp_f32', 'v_log_f32', 'v_rcp_f32', 'v_rsq_f32', 'v_sqrt_f32', 'v_sin_f32', 'v_cos_f32',
         'v_rcp_iflag_f32')


def regs_of(op):
    op = op.strip()
    if op.startswith('|') and op.endswith('|'):
        op = op[1:-1]
    m = REG_RE.match(op)
    if m:
        return [m.group(2) + m.group(3)]
    m = RNG_RE.match(op)
    if m:
        return [m.group(2) + str(i) for i in range(int(m.group(3)), int(m.group(4)) + 1)]
    return list(SPECIAL.get(op, []))


class Ins:
    def __init__(self, text):
        self.text = text
        self.label = None
        self.pre = 0
        self.kind = 'other'
        self.rd = set()
        self.wr = set()
        t = text.split(';')[0].strip()
        if not t or t.startswith('.') and not t.endswith(':'):
            self.kind = 'none'
            return
        if t.endswith(':'):
            self.kind = 'label'
            self.label = t[:-1]
            return
        parts = t.split(None, 1)
        mn = parts[0]
        self.mn = mn
        rest = parts[1] if len(parts) > 1 else ''
        mods0 = ''
        mo = re.search(r'\s(op_sel|neg_lo|neg_hi|quad_perm)', rest)
        if mo:
            mods0 = rest[mo.start():]
            rest = rest[:mo.start()]
        ops = [o.strip() for o in rest.split(',')] if rest else []
        mods = ''
        if ops:
            last = ops[-1].split(None, 1)
            ops[-1] = last[0]
            mods = last[1] if len(last) > 1 else ''
        mods += mods0
        self.ops, self.mods = ops, mods
        R = lambda i: set(regs_of(ops[i])) if i < len(ops) else set()
        allr = lambda a: set().union(*[R(i) for i in range(a, len(ops))]) if len(ops) > a else set()
        self.target = None
        if mn.startswith('v_mfma') or mn.startswith('v_smfmac'):
            self.kind = 'mfma'
            self.passes = 8 if '32x32' in mn else 4
            self.wr = R(0)
            if mn.startswith('v_smfmac'):
                self.ab = R(1) | R(2) | R(3)
                self.c = R(0)
            else:
                self.ab = R(1) | R(2)
                self.c = R(3)
            self.rd = self.ab | self.c
        elif mn.startswith('v_'):
            self.kind = 'valu'
            base = mn.replace('_e32', '').replace('_e64', '').replace('_dpp', '').replace('_sdwa', '')
            self.base = base
            self.dpp = mn.endswith('_dpp') or 'row_' in mods or 'quad_perm' in mods
            self.sdwa = mn.endswith('_sdwa') or ('op_sel' in mods and not mn.startswith('v_pk_'))
            self.trans = base in TRANS
            self.perm = base.startswith('v_permlane')
            self.dot = base.startswith('v_dot')
            self.lane = base in ('v_readlane_b32', 'v_readfirstlane_b32', 'v_writelane_b32')
            if base == 'v_nop':
                pass
            elif self.perm or base == 'v_swap_b32':
                self.wr = R(0) | R(1)
                self.rd = R(0) | R(1)
            elif '_co_' in base or base.startswith('v_div_scale') or base.startswith('v_mad_u64'):
                self.wr = R(0) | R(1)
                self.rd = allr(2)
            else:
                self.wr = R(0)
                self.rd = allr(1)
                if base.startswith('v_fmac') or base.startswith('v_dot2c') or self.dpp or base == 'v_writelane_b32' or self.sdwa:
                    self.rd |= R(0)
                if base.startswith('v_cmpx'):
                    self.wr |= {'exec_lo', 'exec_hi'}
                if base.startswith('v_div_fmas'):
                    self.rd |= {'vcc_lo', 'vcc_hi'}
        elif mn.startswith('buffer_') or mn.startswith('global_'):
            self.kind = 'vmem'
            self.lds = (' lds' in ' ' + mods) or 'load_lds' in mn
            self.wide = False
            self.data = set()
            if mn in ('buffer_wbl2', 'buffer_inv'):
                pass
            elif 'load' in mn and not self.lds:
                self.wr = R(0)
                self.rd = allr(1)
            elif 'load' in mn:
                self.rd = allr(0) | {'m0'}
            elif 'store' in mn:
                self.rd = allr(0)
                self.data = R(0) if mn.startswith('buffer_') else R(1)
                self.wide = 'x3' in mn or 'x4' in mn
            else:
                self.rd = allr(0)
                if 'sc0' in mods:
                    self.wr = R(0)
        elif mn.startswith('ds_'):
            self.kind = 'ds'
            if 'read' in mn or 'permute' in mn or 'swizzle' in mn or 'rtn' in mn:
                self.wr = R(0)
                self.rd = allr(1)
            else:
                self.rd = allr(0)
        elif mn == 's_nop':
            self.kind = 'nop'
            self.n = int(ops[0], 0) + 1
        elif mn.startswith('s_cbranch') or mn == 's_branch':
            self.kind = 'branch'
            self.target = ops[0]
        elif mn == 's_endpgm':
            self.kind = 'end'
        elif mn.startswith('s_'):
            self.kind = 'salu'
            if mn.startswith('s_cmp') or mn.startswith('s_bitcmp') or mn in ('s_waitcnt', 's_barrier', 's_sleep', 's_setprio'):
                self.rd = allr(0)
            else:
                self.wr = R(0)
                self.rd = allr(1)
                if 'saveexec' in mn:
                    self.wr |= {'exec_lo', 'exec_hi'}
        else:
            raise ValueError('unknown instruction: ' + text)


def is_s(r):
    return r[0] == 's' or r.startswith('vcc')


def need(p, c):
    n = 0
    if p.kind == 'valu':
        vw = {r for r in p.wr if r[0] in 'va' and not r.startswith('vcc')}
        sw = {r for r in p.wr if is_s(r)}
        ew = {r for r in p.wr if r.startswith('exec')}
        if c.kind == 'mfma':
            if vw & c.rd:
                n = max(n, 3 if p.dot else 2)
            if ew:
                n = max(n, 4)
        if c.kind == 'valu':
            if vw & c.rd:
                if c.dpp or c.perm:
                    n = max(n, 2)
                if c.lane:
                    n = max(n, 1)
                if p.trans and not c.trans:
                    n = max(n, 1)
                if p.sdwa:
                    n = max(n, 1)
            if p.dot and (vw & (c.rd | c.wr)):
                same_c = c.dot and c.base == p.base and not (vw & set().union(*[set(regs_of(o)) for o in c.ops[1:3]]))
                if not same_c:
                    n = max(n, 3)
            if sw & c.rd:
                n = max(n, 4 if (c.lane or c.base.startswith('v_div_fmas')) else 2)
            if ew:
                if c.dpp:
                    n = max(n, 5)
                if c.lane or c.perm:
                    n = max(n, 4)
                if ew & c.rd:
                    n = max(n, 2)
        if c.kind in ('vmem', 'ds') and p.dot and (vw & c.rd):
            n = max(n, 3)
        if c.kind == 'vmem' and (sw & c.rd):
            n = max(n, 5)
        if c.kind == 'salu' and (sw & c.rd):
            n = max(n, 1)
    if p.kind == 'mfma':
        big = {4: 8, 8: 12}[p.passes]
        if c.kind == 'mfma':
            if p.wr & c.ab:
                n = max(n, big)
            if p.wr & c.c:
                if not (p.wr == c.c and p.passes == c.passes):
                    n = max(n, {4: 6, 8: 10}[p.passes])
            elif p.wr & c.wr:
                if not (p.wr == c.wr and p.passes == c.passes):
                    n = max(n, {4: 6, 8: 10}[p.passes])
        elif c.kind in ('valu', 'vmem', 'ds'):
            if p.wr & (c.rd | c.wr):
                n = max(n, big)
            if c.kind == 'valu' and (p.c & c.wr):
                n = max(n, {4: 3, 8: 7}[p.passes])
    if p.kind == 'vmem' and getattr(p, 'wide', False):
        if p.data & c.wr:
            n = max(n, 2 if c.kind in ('valu', 'mfma') else 1)
    if p.kind == 'salu' and 'm0' in p.wr and c.kind == 'vmem' and getattr(c, 'lds', False):
        n = max(n, 1)
    return n


def fix_hazards(lines, verbose=False):
    ins = [Ins(l) for l in lines]
    lab = {x.label: i for i, x in enumerate(ins) if x.kind == 'label'}
    preds_br = {}
    for i, x in enumerate(ins):
        if x.kind == 'branch':
            preds_br.setdefault(lab[x.target], []).append(i)
    MAXD = 12

    def preds(i):
        out = []
        if i > 0:
            p = ins[i - 1]
            if not (p.kind == 'end' or (p.kind == 'branch' and p.mn == 's_branch')):
                out.append(i - 1)
        if ins[i].kind == 'label':
            out += preds_br.get(i, [])
        return out

    def ws(x):
        if x.kind in ('label', 'none'):
            return 0
        return (x.n if x.kind == 'nop' else 1)

    def hold(x):
        if x.kind == 'mfma':
            return 3 if x.mn.startswith('v_smfmac') else 2
        if x.kind == 'valu' and (x.trans or x.perm):
            return 2
        return 0

    def dist(path):
        t = 0
        tm = path[0].passes if path[0].kind == 'mfma' else 0
        tv = hold(path[0])
        tc = None
        prev = path[0]
        for x in path[1:]:
            if x.kind in ('label', 'none'):
                continue
            t += ws(prev) + x.pre
            if prev.kind == 'branch' and 'vcc' in prev.mn and tc is not None:
                t = max(t, tc + 6)
            if prev.kind == 'ds' and prev.mn in ('ds_write_b128', 'ds_write2st64_b64'):
                t += 2
            if x.kind == 'valu' and 'vcc_lo' in x.wr:
                tc = max(t, tv)
            if x.kind in ('mfma', 'valu'):
                t = max(t, tv)
            if x.kind == 'mfma':
                t = max(t, tm)
                tm = t + x.passes
            if x.kind in ('mfma', 'valu'):
                tv = t + hold(x)
            prev = x
        return t - 1

    changed = True
    total = 0
    while changed:
        changed = False
        for i, c in enumerate(ins):
            if c.kind in ('label', 'none', 'nop', 'end', 'branch'):
                continue
            worst = 0
            stack = [(j, c.pre, [c]) for j in preds(i)]
            while stack:
                j, d, path = stack.pop()
                if d >= MAXD or len(path) > 40:
                    continue
                p = ins[j]
                path = [p] + path
                n = need(p, c)
                if n > d:
                    dd = dist(path) if p.kind == 'mfma' or c.kind == 'mfma' else d
                    if n - dd > worst:
                        worst = n - dd
                        why = p.text
                d2 = d + ws(p) + p.pre
                for k in preds(j):
                    stack.append((k, d2, path))
            if worst > 0:
                c.pre += worst
                c.why = why
                total += worst
                changed = True
    out = []
    for x in ins:
        if x.pre:
            out.append('    s_nop %d' % (x.pre - 1) + ('   ; hz: ' + x.why.split(';')[0].strip() if verbose else ''))
        out.append(x.text)
    return out, total


class Asm:
    def __init__(self):
        self.lines = []
        self.uid = 0

    def __call__(self, s):
        for l in s.split('\n'):
            l = l.strip()
            if not l:
                continue
            self.lines.append(l if l.endswith(':') else '    ' + l)

    def label(self, name):
        self.lines.append(name + ':')

    def newlabel(self, prefix='L'):
        self.uid += 1
        return '%s_%d' % (prefix, self.uid)

    def c(self, s):
        self.lines.append('    ; ' + s)


def v(a, n=1):
    return 'v%d' % a if n == 1 else 'v[%d:%d]' % (a, a + n - 1)


def a(a_, n=1):
    return 'a%d' % a_ if n == 1 else 'a[%d:%d]' % (a_, a_ + n - 1)


def s(a_, n=1):
    return 's%d' % a_ if n == 1 else 's[%d:%d]' % (a_, a_ + n - 1)


class Alloc:
    def __init__(self, start, end):
        self.p, self.end = start, end
        self.names = {}

    def __call__(self, name, n=1, align=1):
        if n >= 2:
            align = max(align, 2)
        self.p = (self.p + align - 1) // align * align
        r = self.p
        self.p += n
        assert self.p <= self.end, 'out of registers at ' + name
        self.names[name] = (r, n)
        return r
```

```python
import struct, math
from asmlib import *
from layout import *

NAME = 'gated_mix__memory_aug_recurrent_mem_tr__moe_arch_mod__prompt'


def f32(x):
    return '0x%08x' % struct.unpack('<I', struct.pack('<f', x))[0]


P_X, P_MEM0, P_WQ, P_WK, P_WV, P_WO = 64, 66, 68, 70, 72, 74
P_WR, P_WG, P_WU, P_WD, P_GW, P_OUT, P_DBG, P_WS = 80, 82, 84, 86, 88, 90, 92, 94
WS, DBG = 4, 8
SRD_A, SRD_B, SRD_C, SRD_D, SRD_E = 12, 16, 20, 24, 28
sW, sG, sC, sTO = 32, 33, 34, 35
sX = 100
sPure = 101
NPURE = 32
sP = 62
VOTE = 0xe4
sR = 63
sT0 = 76
TIMEOUT = 1 << 20
LOG2E = math.log2(math.e)


def srd(A, d, p, nbytes):
    A('s_mov_b32 s%d, s%d' % (d, p))
    A('s_and_b32 s%d, s%d, 0xffff' % (d + 1, p + 1))
    A('s_mov_b32 s%d, 0x%x' % (d + 2, nbytes))
    A('s_mov_b32 s%d, 0x20000' % (d + 3))


def S4(d):
    return s(d, 4)


def timeout_stub(A, back):
    A('s_sub_u32 s%d, s%d, 1' % (sTO, sTO))
    A('s_cbranch_scc0 %s' % back)
    A('s_endpgm')


def sum8(A, vx, sa, sb):
    A('v_readlane_b32 s%d, v%d, 0' % (sa, vx))
    for i in range(1, 8):
        A('v_readlane_b32 s%d, v%d, %d' % (sb, vx, i))
        A('s_add_u32 s%d, s%d, s%d' % (sa, sa, sb))


def init_load(A, t0, t1):
    A('v_lshlrev_b32 v%d, 5, v0' % t1)
    A('v_min_u32 v%d, 0x%x, v%d' % (t1, VOTE, t1))
    A('buffer_load_dword v%d, v%d, %s, 0 offen sc1' % (t0, t1, S4(DBG)))


def near(A, r, tmp):
    A('s_lshr_b32 s%d, s%d, 8' % (tmp, r))
    A('s_xor_b32 s%d, s%d, s%d' % (tmp, tmp, sP))
    A('s_and_b32 s%d, s%d, 0x2000' % (tmp, tmp))
    A('s_xor_b32 s%d, s%d, s%d' % (r, r, tmp))


def wait_init(A, t0, t1, sa, sb, issued=False):
    L, L2 = A.newlabel('L_wi'), A.newlabel('L_wiok')
    L3 = A.newlabel('L_wi')
    if issued:
        A('s_branch ' + L3)
    A.label(L)
    init_load(A, t0, t1)
    A.label(L3)
    A('s_waitcnt vmcnt(0)')
    sum8(A, t0, sa, sb)
    A('v_readlane_b32 s%d, v%d, 8' % (sP, t0))
    A('s_lshr_b32 s%d, s%d, 16' % (sb, sP))
    A('s_add_u32 s%d, s%d, s%d' % (sa, sa, sb))
    A('s_cmp_ge_u32 s%d, 288' % sa)
    A('s_cbranch_scc1 %s' % L2)
    A('s_sleep 16')
    timeout_stub(A, L)
    A.label(L2)
    A('s_and_b32 s%d, s%d, 0xffff' % (sP, sP))
    A('s_cmp_gt_u32 s%d, 16' % sP)
    A('s_cselect_b32 s%d, 0x2000, 0' % sP)
    A('s_lshr_b32 s%d, s%d, 5' % (sa, sR))
    A('v_readlane_b32 s%d, v%d, s%d' % (sPure, t0, sa))


def poll_data(A, loads, regs, tmp, sleep):
    L, L2 = A.newlabel('L_pd'), A.newlabel('L_pdok')
    A.label(L)
    for o in loads:
        A(o)
    A('s_waitcnt vmcnt(0)')
    maxall(A, regs, tmp)
    A('v_cmp_eq_u32 vcc, -1, v%d' % tmp)
    A('s_cbranch_vccz %s' % L2)
    if sleep:
        A('s_sleep %d' % sleep)
    timeout_stub(A, L)
    A.label(L2)


def maxall(A, regs, tmp):
    regs = list(regs)
    A('v_max_u32 v%d, v%d, v%d' % (tmp, regs[0], regs[-1]))
    regs = regs[1:-1]
    while regs:
        x = regs[:2]
        regs = regs[2:]
        A('v_max3_u32 v%d, v%d, v%d, v%d' % (tmp, tmp, x[0], x[-1]))


def wait_flags(A, vf, vaddr, need, sleep=1):
    L, L2 = A.newlabel('L_wf'), A.newlabel('L_wfok')
    A.label(L)
    A('buffer_load_dword v%d, v%d, %s, 0 offen sc1' % (vf, vaddr, S4(WS)))
    A('s_waitcnt vmcnt(0)')
    A('v_cmp_gt_i32 vcc, %s, v%d' % (need, vf))
    A('s_cbranch_vccz %s' % L2)
    if sleep:
        A('s_sleep %d' % sleep)
    timeout_stub(A, L)
    A.label(L2)


def lane0_addr(A, dst, sval, tmp):
    A('v_mov_b32 v%d, 0x%x' % (tmp, OOB))
    A('v_mov_b32 v%d, s%d' % (dst, sval))
    A('v_cmp_eq_u32 vcc, 0, v0')
    A('v_cndmask_b32 v%d, v%d, v%d, vcc' % (dst, tmp, dst))


def bits(A, dst, terms, tmp, base=None):
    first = True
    for (si, wd, so) in terms:
        A('v_bfe_u32 v%d, v0, %d, %d' % (tmp, si, wd))
        if first:
            A('v_lshlrev_b32 v%d, %d, v%d' % (dst, so, tmp))
            first = False
        else:
            A('v_lshl_add_u32 v%d, v%d, %d, v%d' % (dst, tmp, so, dst))
    if base is not None:
        A('v_add_u32 v%d, %s, v%d' % (dst, base, dst))


def tstamp(A, opt, slot, t0, t1, sa, now=True):
    if not opt.get('prof'):
        return
    if now:
        A('s_memrealtime s[78:79]')
    A('s_lshl_b32 s%d, s%d, 2' % (sa, sR))
    A('s_add_u32 s%d, s%d, s%d' % (sa, sa, sW))
    A('s_lshl_b32 s%d, s%d, 6' % (sa, sa))
    A('s_add_u32 s%d, s%d, 0x%x' % (sa, sa, PROF + 2 * MB + slot * 4))
    A('s_waitcnt lgkmcnt(0)')
    A('v_mov_b32 v%d, s78' % t0)
    A('v_mov_b32 v%d, 0' % t1)
    A('buffer_store_dword v%d, v%d, %s, s%d offen' % (t0, t1, S4(WS), sa))
    A('s_memtime s[78:79]')
    A('s_add_u32 s%d, s%d, 0x100000' % (sa, sa))
    A('s_waitcnt lgkmcnt(0)')
    A('v_mov_b32 v%d, s78' % t0)
    A('buffer_store_dword v%d, v%d, %s, s%d offen' % (t0, t1, S4(WS), sa))


def cap_vm(A, start, already=28):
    out, n, done = [], already, False
    for l in A.lines[start:]:
        t = l.strip()
        if t.startswith('s_waitcnt') and 'vmcnt' in t:
            done = True
        if not done and t.startswith('buffer_'):
            n += 1
            if n > 60:
                out.append('    s_waitcnt vmcnt(59)')
        out.append(l)
    A.lines[start:] = out


def help_kv(A, opt, ptr, sh, t0, t1, sa):
    hk = opt.get('hk', 0)
    if not hk:
        return
    srd(A, SRD_C, ptr, 8 * MB)
    bits(A, t1, [(1, 3, 13), (4, 2, 20), (0, 1, 7)], t0)
    A('s_lshl_b32 s%d, s%d, 16' % (sa, sW))
    A('v_add_u32 v%d, s%d, v%d' % (t1, sa, t1))
    A('s_lshl_b32 s%d, s%d, 8' % (sa, sh))
    A('s_add_u32 s%d, s%d, 0x400000' % (sa, sa))
    for i in range(4):
        A('buffer_load_dword v252, v%d, %s, s%d offen%s' % (t1, S4(SRD_C), sa, ' nt' if hk == 2 else ''))
        A('s_add_u32 s%d, s%d, 0x40000' % (sa, sa))


def dbg_mark(A, opt, word, t0, t1):
    if not opt.get('diag'):
        return
    A('s_memrealtime s[78:79]')
    A('s_waitcnt lgkmcnt(0)')
    A('s_sub_u32 s78, s78, s76')
    A('v_mov_b32 v%d, s78' % t0)
    A('v_mov_b32 v%d, %d' % (t1, 4 * word))
    A('s_mov_b64 exec, 1')
    A('buffer_atomic_umax v%d, v%d, %s, 0 offen sc1' % (t0, t1, S4(DBG)))
    A('s_mov_b64 exec, -1')
    A('s_waitcnt vmcnt(0)')


def diag_hold(A, opt):
    if opt.get('diag', 0) > 1:
        L = A.newlabel('L_hold')
        A.label(L)
        A('s_memrealtime s[78:79]')
        A('s_waitcnt lgkmcnt(0)')
        A('s_sub_u32 s78, s78, s76')
        A('s_cmp_lt_u32 s78, %d' % (opt['diag'] * 100))
        A('s_cbranch_scc1 ' + L)


def touch_code(A, lab0, lab1, sidx, d, tmp):
    L = A.newlabel('L_pc')
    A('s_getpc_b64 s[%d:%d]' % (d, d + 1))
    A.label(L)
    A('s_add_u32 s%d, s%d, %s-%s' % (d, d, lab0, L))
    A('s_addc_u32 s%d, s%d, 0' % (d + 1, d + 1))
    A('s_and_b32 s%d, s%d, 0xffff' % (d + 1, d + 1))
    A('s_mov_b32 s%d, %s-%s' % (d + 2, lab1, lab0))
    A('s_mov_b32 s%d, 0x20000' % (d + 3))
    A('v_lshlrev_b32 v%d, 7, v0' % tmp)
    A('v_lshl_add_u32 v%d, s%d, 13, v%d' % (tmp, sidx, tmp))
    A('buffer_load_dword v253, v%d, %s, 0 offen' % (tmp, S4(d)))
```

```python
MB = 1 << 20
KB = 1024
SEG = 0x4000
ROW = 0x208000
KX = 0 * MB
VT = KX + 0x2000
VX = 64 * MB
OO = VX + 0x2000
KVM = 128 * MB
PART = 160 * MB
PROF = 232 * MB
INIT2 = 228 * MB
INIT1 = INIT2 + 256 * KB
MEMR = INIT1
QKVR = INIT1 + 256 * KB
F_KV = INIT2 + 0x30000
YK = INIT2
KEYS = INIT2 + 0x4000
GATE = INIT2 + 0x6000
F_O = INIT2 + 0x8000
HH = INIT2 + 0x10000
YY = INIT2 + 0x20000
WS_BYTES = 256 * MB
SENT = 0xFFFFFFFF
OOB = 0x40000000
```

```python
from common import *
from workers import load_weights, vote


def orole(A, opt):
    S = Alloc(36, 62)
    sI = S('i')
    sA, sB, sCc, sD, sSeg, sBase, sRot, sHi, sPrev, sCnt = [S(n) for n in 'a b cc d seg base rot hi prev cnt'.split()]
    sIdx = S('idx', 8)
    cvt = lambda d, x, y: A('v_cvt_pk_bf16_f32 v%d, v%d, v%d' % (d, x, y))

    def rnd2(x, y, t):
        cvt(t, x, y)
        A('v_lshlrev_b32 v%d, 16, v%d' % (x, t))
        A('v_and_b32 v%d, s%d, v%d' % (y, sHi, t))

    def sigmoid(d, x):
        A('v_mul_f32 v%d, %s, v%d' % (d, f32(-LOG2E), x))
        A('v_exp_f32 v%d, v%d' % (d, d))
        A('v_add_f32 v%d, 1.0, v%d' % (d, d))
        A('v_rcp_f32 v%d, v%d' % (d, d))

    def touch_slow(t0, d):
        if not opt.get('tw', 1):
            return
        srd(A, d, P_WO, 8 * MB)
        A('s_and_b32 s%d, s%d, 7' % (sA, sI))
        A('s_lshl_b32 s%d, s%d, 3' % (sB, sW))
        A('s_add_u32 s%d, s%d, s%d' % (sA, sA, sB))
        A('s_lshl_b32 s%d, s%d, 18' % (sA, sA))
        A('s_and_b32 s%d, s%d, 8' % (sB, sI))
        A('s_lshl_b32 s%d, s%d, 7' % (sB, sB))
        A('s_add_u32 s%d, s%d, s%d' % (sA, sA, sB))
        A('s_add_u32 s%d, s%d, 0x20000' % (sB, sA))
        A('v_lshlrev_b32 v%d, 11, v0' % t0)
        A('buffer_load_dword v255, v%d, %s, s%d offen offset:384' % (t0, S4(d), sA))
        A('buffer_load_dword v255, v%d, %s, s%d offen offset:384' % (t0, S4(d), sB))

    V = Alloc(1, 252)
    vL16, vL4, vFl, vKey, vRaw = [V(n) for n in 'l16 l4 fl key raw'.split()]
    t0, t1, t2, t3, t4, t5 = [V('t%d' % i) for i in range(6)]
    vAcc = V('acc', 8, 4)
    vPm = V('perm', 32, 4)
    NB = 6
    vRing = V('ring', 32 * NB, 4)
    A.label('L_o')
    cap0 = len(A.lines)
    help_kv(A, opt, P_WV, sI, t0, t1, sA)
    srd(A, SRD_A, P_WR, 2048)
    srd(A, SRD_B, P_X, 4 * MB)
    srd(A, SRD_C, P_GW, 2048)
    srd(A, SRD_D, P_WG, 7 * MB)
    srd(A, SRD_E, P_WU, 7 * MB)
    A('s_mov_b32 s%d, 0xffff0000' % sHi)
    A('v_lshlrev_b32 v%d, 4, v0' % vL16)
    A('v_lshlrev_b32 v%d, 2, v0' % vL4)
    vote(A, sI, t0, t1, t2, sA, sB, sD, sSeg, sBase)
    tstamp(A, opt, 1, t0, t1, sA)
    if opt.get('chainonly'):
        A('s_endpgm')
    for i in range(opt.get('odl', 3)):
        A('s_sleep 32')
    for i in range(2):
        A('buffer_load_dwordx4 %s, v%d, %s, 0 offen offset:%d' % (v(vPm + 4 * i, 4), vL16, S4(SRD_A), 1024 * i))
    for i in range(2):
        A('buffer_load_dwordx4 %s, v%d, %s, 0 offen offset:%d' % (v(vPm + 8 + 4 * i, 4), vL16, S4(SRD_C), 1024 * i))
    bits(A, t2, [(0, 4, 11), (4, 2, 4)], t0)
    A('s_lshl_b32 s%d, s%d, 2' % (sA, sI))
    A('s_add_u32 s%d, s%d, s%d' % (sA, sA, sW))
    A('s_lshl_b32 s%d, s%d, 4' % (sD, sA))
    A('s_lshl_b32 s%d, s%d, 15' % (sA, sA))
    for ks in range(32):
        A('buffer_load_dwordx4 %s, v%d, %s, s%d offen offset:%d' % (a(4 * ks, 4), t2, S4(SRD_B), sA, 64 * ks))
    A('v_lshrrev_b32 v%d, 4, v0' % t0)
    A('v_mul_u32_u24 v%d, %d, v%d' % (t0, 8 * 7168, t0))
    A('v_and_b32 v%d, 15, v0' % t3)
    A('v_lshl_add_u32 v%d, v%d, 4, v%d' % (vRaw, t3, t0))
    A('s_cmp_lt_u32 s%d, 28' % sI)
    A('s_cselect_b32 s%d, 0, 0x%x' % (sB, OOB))
    A('v_add_u32 v%d, s%d, v%d' % (vRaw, sB, vRaw))
    A('s_mul_i32 s%d, s%d, %d' % (sBase, sW, 256 * 7168))
    A('s_lshl_b32 s%d, s%d, 8' % (sA, sI))
    A('s_add_u32 s%d, s%d, s%d' % (sBase, sBase, sA))

    def batch(b):
        for i in range(8):
            A('s_add_u32 s%d, s%d, 0x%x' % (sA, sBase, (32 * (b >> 1) + i) * 7168))
            A('buffer_load_dwordx4 %s, v%d, %s, s%d offen%s' % (v(vRing + 32 * (b % NB) + 4 * i, 4), vRaw, S4((SRD_D, SRD_E)[b & 1]), sA, ' nt' if opt.get('nt', 31) & 4 else ''))
    batch(0); batch(1)
    A('s_lshl_b32 s%d, s%d, 12' % (sA, sW))
    A('v_add_u32 v%d, s%d, v%d' % (t3, sA, vL16))
    bits(A, t4, [(0, 1, 11), (4, 2, 4)], t0, 's%d' % sA)
    A('s_waitcnt vmcnt(48)')
    for i in range(4):
        A('ds_write_b128 v%d, %s offset:%d' % (t3, v(vPm + 4 * i, 4), 1024 * i))
    A('s_waitcnt vmcnt(16) lgkmcnt(0)')
    for k0 in range(0, 32, 8):
        for ks in range(k0, k0 + 8):
            A('ds_read_b128 %s, v%d offset:%d' % (v(vPm + 4 * (ks & 7), 4), t4, 64 * ks))
        A('s_waitcnt lgkmcnt(0)')
        for ks in range(k0, k0 + 8):
            A('v_mfma_f32_16x16x32_bf16 %s, %s, %s, %s' % (v(vAcc, 4), v(vPm + 4 * (ks & 7), 4), a(4 * ks, 4), v(vAcc, 4) if ks else '0'))
    rnd2(vAcc + 1, vAcc, t0)
    sigmoid(t1, vAcc + 1)
    A('v_ashrrev_i32 v%d, 31, v%d' % (t2, vAcc))
    A('v_or_b32 v%d, 0x80000000, v%d' % (t2, t2))
    cvt(t1, t1, t1)
    A('v_and_b32 v%d, s%d, v%d' % (t1, sHi, t1))
    A('v_xor_b32 v%d, v%d, v%d' % (t2, t2, vAcc))
    A('s_sub_u32 s%d, 2047, s%d' % (sA, sD))
    A('v_sub_u32 v%d, s%d, v0' % (t3, sA))
    A('v_and_or_b32 v%d, v%d, s%d, v%d' % (t2, t2, sHi, t3))
    A('v_mov_b32 v%d, 0x%x' % (t3, OOB))
    A('v_cmp_gt_u32 vcc, 16, v0')
    A('v_cndmask_b32 v%d, v%d, v%d, vcc' % (t3, t3, vL4))
    wait_init(A, t0, t4, sA, sB)
    A('s_lshl_b32 s%d, s%d, 2' % (sA, sD))
    A('s_add_u32 s%d, s%d, 0x%x' % (sB, sA, KEYS))
    A('s_add_u32 s%d, s%d, 0x%x' % (sA, sA, GATE))
    A('buffer_store_dword v%d, v%d, %s, s%d offen sc1' % (t1, t3, S4(WS), sA))
    A('s_waitcnt vmcnt(0)')
    A('buffer_store_dword v%d, v%d, %s, s%d offen sc1' % (t2, t3, S4(WS), sB))
    for b in range(2, NB):
        batch(b)
    A('s_mov_b32 s%d, 0x%x' % (sA, KEYS))
    A('s_mov_b32 s%d, 0x%x' % (sB, KEYS + 4096))
    A('s_waitcnt vmcnt(16)')
    poll_data(A, ['buffer_load_dwordx4 %s, v%d, %s, s%d offen offset:%d sc1' % (v(vPm + 4 * i, 4), vL16, S4(WS), (sA, sB)[i >> 2], 1024 * (i & 3)) for i in range(8)],
              range(vPm, vPm + 32), t0, 16)
    tstamp(A, opt, 3, t0, t1, sA)
    if opt.get('cw', 0) > 1:
        touch_code(A, 'L_top', 'L_code1', sW, SRD_C, t0)
    A('s_mov_b32 s%d, 0' % sPrev)
    A('s_mov_b32 s%d, 0' % sCc)
    A('v_mov_b32 v%d, 0' % vKey)
    A.label('L_top')
    A('v_mov_b32 v%d, 0' % t0)
    for i in range(0, 32, 2):
        A('v_subrev_u32 v%d, s%d, v%d' % (t1, sPrev, vPm + i))
        A('v_subrev_u32 v%d, s%d, v%d' % (t2, sPrev, vPm + i + 1))
        A('v_max3_u32 v%d, v%d, v%d, v%d' % (t0, t0, t1, t2))
    for sh in (8, 4, 2, 1):
        A('v_max_u32_dpp v%d, v%d, v%d row_ror:%d row_mask:0xf bank_mask:0xf' % (t0, t0, t0, sh))
    for sw in ('v_permlane32_swap_b32', 'v_permlane16_swap_b32'):
        A('v_mov_b32 v%d, v%d' % (t1, t0))
        A('%s v%d, v%d' % (sw, t0, t1))
        A('v_max_u32 v%d, v%d, v%d' % (t0, t0, t1))
    A('v_readfirstlane_b32 s%d, v%d' % (sA, t0))
    A('s_mov_b32 m0, s%d' % sCc)
    A('s_add_u32 s%d, s%d, s%d' % (sPrev, sPrev, sA))
    A('v_writelane_b32 v%d, s%d, m0' % (vKey, sPrev))
    A('s_add_u32 s%d, s%d, 1' % (sCc, sCc))
    A('s_cmp_lt_u32 s%d, 8' % sCc)
    A('s_cbranch_scc1 L_top')
    bits(A, t1, [(0, 3, 2)], t0)
    A('ds_bpermute_b32 v%d, v%d, v%d' % (t2, t1, vKey))
    A('s_waitcnt lgkmcnt(0)')
    A('v_and_b32 v%d, 0x7ff, v%d' % (t2, t2))
    A('v_sub_u32 v%d, 2047, v%d' % (t2, t2))
    A('v_lshlrev_b32 v%d, 11, v%d' % (t2, t2))
    A('v_lshrrev_b32 v%d, 4, v0' % t0)
    A('v_lshl_add_u32 v%d, v%d, 4, v%d' % (t2, t0, t2))
    A('s_lshl_b32 s%d, s%d, 9' % (sA, sW))
    for ks in range(8):
        A('buffer_load_dwordx4 %s, v%d, %s, s%d offen offset:%d' % (a(128 + 4 * ks, 4), t2, S4(SRD_B), sA, 64 * ks))
    A('s_mov_b32 s%d, 0x05040100' % sCc)
    A('s_mov_b32 s%d, 0x07060302' % sD)
    A('s_waitcnt vmcnt(0)')
    for b in range(16):
        if b >= NB:
            A('s_waitcnt vmcnt(%d)' % (8 * min(NB - 1, 15 - b)))
        r0 = vRing + 32 * (b % NB)
        for t in range(8):
            for p in range(4):
                A('v_perm_b32 v%d, v%d, v%d, s%d' % (vPm + 4 * t + p, r0 + 4 * (2 * p + 1) + (t >> 1), r0 + 4 * (2 * p) + (t >> 1), (sCc, sD)[t & 1]))
            if t:
                acc = a(160 + 32 * (b & 1) + 4 * (t - 1), 4)
                A('v_mfma_f32_16x16x32_bf16 %s, %s, %s, %s' % (acc, a(128 + 4 * (b >> 1), 4), v(vPm + 4 * (t - 1), 4), acc if b > 1 else '0'))
        if b + NB < 16:
            batch(b + NB)
        acc = a(160 + 32 * (b & 1) + 28, 4)
        A('v_mfma_f32_16x16x32_bf16 %s, %s, %s, %s' % (acc, a(128 + 4 * (b >> 1), 4), v(vPm + 28, 4), acc if b > 1 else '0'))
    A('s_lshl_b32 s%d, s%d, 14' % (sA, sW))
    A('v_add_u32 v%d, s%d, v%d' % (t3, sA, vL16))
    A('s_barrier')
    for i in range(16):
        A('ds_write_b128 v%d, %s offset:%d' % (t3, a(160 + 4 * i, 4), 1024 * i))
        if i == 7:
            A('s_waitcnt lgkmcnt(0)')
    A('s_and_b32 s%d, s%d, 1' % (sA, sW))
    A('s_lshl_b32 s%d, s%d, 8' % (sA, sA))
    A('s_lshr_b32 s%d, s%d, 1' % (sB, sW))
    A('s_lshl_b32 s%d, s%d, 3' % (sB, sB))
    A('s_add_u32 s%d, s%d, s%d' % (sA, sA, sB))
    bits(A, t3, [(0, 2, 11), (2, 4, 4)], t0, 's%d' % sA)
    A('s_waitcnt lgkmcnt(0)')
    A('s_barrier')
    for m in range(2):
        for tt in range(2):
            for wv in range(4):
                A('ds_read_b64 %s, v%d offset:%d' % (v(vPm + ((m * 2 + tt) * 4 + wv) * 2, 2), t3, wv * 16384 + m * 8192 + tt * 1024))
        A('s_waitcnt lgkmcnt(0)')
    for q in range(4):
        b0 = vPm + 8 * q
        A('v_pk_add_f32 %s, %s, %s' % (v(b0, 2), v(b0, 2), v(b0 + 2, 2)))
        A('v_pk_add_f32 %s, %s, %s' % (v(b0 + 4, 2), v(b0 + 4, 2), v(b0 + 6, 2)))
        A('v_pk_add_f32 %s, %s, %s' % (v(b0, 2), v(b0, 2), v(b0 + 4, 2)))
        rnd2(b0, b0 + 1, t0)
    for tt in range(2):
        b0 = vPm + 8 * tt
        for j in range(2):
            sigmoid(b0 + 2 + j, b0 + j)
            A('v_mul_f32 v%d, v%d, v%d' % (b0 + j, b0 + j, b0 + 2 + j))
        rnd2(b0, b0 + 1, t0)
        for j in range(2):
            A('v_mul_f32 v%d, v%d, v%d' % (b0 + j, b0 + j, b0 + 16 + j))
    cvt(t1, vPm, vPm + 8)
    cvt(t2, vPm + 1, vPm + 9)
    A('v_min_u32 v%d, -2, v%d' % (t1, t1))
    A('v_min_u32 v%d, -2, v%d' % (t2, t2))
    A('s_and_b32 s%d, s%d, 1' % (sA, sW))
    A('s_lshl_b32 s%d, s%d, 2' % (sA, sA))
    A('s_and_b32 s%d, s%d, 2' % (sB, sW))
    A('s_add_u32 s%d, s%d, s%d' % (sA, sA, sB))
    A('s_mul_i32 s%d, s%d, 7168' % (sA, sA))
    A('s_lshl_b32 s%d, s%d, 8' % (sB, sI))
    A('s_add_u32 s%d, s%d, s%d' % (sA, sA, sB))
    A('s_add_u32 s%d, s%d, 0x%x' % (sA, sA, HH))
    A('s_add_u32 s%d, s%d, 7168' % (sB, sA))
    A('s_cmp_lt_u32 s%d, 28' % sI)
    A('s_cselect_b32 s%d, 0, 0x%x' % (sD, OOB))
    A('v_add_u32 v%d, s%d, v%d' % (t3, sD, vL4))
    A('buffer_store_dword v%d, v%d, %s, s%d offen sc1' % (t1, t3, S4(WS), sA))
    A('buffer_store_dword v%d, v%d, %s, s%d offen sc1' % (t2, t3, S4(WS), sB))
    tstamp(A, opt, 4, t0, t4, sA)
    srd(A, SRD_A, P_WD, 7 * MB)
    A('s_lshr_b32 s%d, s%d, 4' % (sD, sI))
    A('s_lshl_b32 s%d, s%d, 2' % (sA, sD))
    A('s_add_u32 s%d, s%d, s%d' % (sCc, sA, sW))
    A('s_mul_i32 s%d, s%d, %d' % (sBase, sCc, 448 * 2048))
    A('s_add_u32 s%d, s%d, 4' % (sA, sI))
    A('s_and_b32 s%d, s%d, 15' % (sA, sA))
    A('s_lshl_b32 s%d, s%d, 1' % (sB, sA))
    A('s_add_u32 s%d, s%d, s%d' % (sD, sD, sB))
    A('s_lshl_b32 s%d, s%d, 7' % (sA, sA))
    A('s_add_u32 s%d, s%d, s%d' % (sBase, sBase, sA))
    bits(A, vRaw, [(3, 3, 11), (0, 3, 4)], t0)
    A('s_lshl_b32 s%d, s%d, 12' % (sA, sW))
    A('s_add_u32 s%d, s%d, 65536' % (sA, sA))
    A('v_add_u32 v%d, s%d, v%d' % (t3, sA, vL16))
    bits(A, t4, [(4, 2, 10), (2, 2, 7), (0, 2, 3)], t0, 's%d' % sA)

    def dissue(ks):
        for i in range(4):
            A('s_add_u32 s%d, s%d, 0x%x' % (sB, sBase, (32 * ks + 8 * i) * 2048))
            A('buffer_load_dwordx4 %s, v%d, %s, s%d offen%s' % (a(16 * ks + 4 * i, 4), vRaw, S4(SRD_A), sB, ' nt' if opt.get('nt', 31) & 8 else ''))
    for ks in range(4):
        dissue(ks)
    for ks in range(14):
        A('s_waitcnt vmcnt(%d) lgkmcnt(0)' % (4 * (min(14, ks + 4) - 1 - ks)))
        for i in range(4):
            A('ds_write_b128 v%d, %s offset:%d' % (t3, a(16 * ks + 4 * i, 4), i * 1024))
        for ct in range(4):
            for pp in range(2):
                A('ds_read_b64_tr_b16 %s, v%d offset:%d' % (a(16 * ks + 4 * ct + 2 * pp, 2), t4, 4 * pp * 128 + ct * 32))
        if ks + 4 < 14:
            dissue(ks + 4)
    A('v_and_b32 v%d, 7, v0' % t0)
    A('v_mul_u32_u24 v%d, 7168, v%d' % (t2, t0))
    A('v_lshrrev_b32 v%d, 4, v0' % t0)
    A('v_lshl_add_u32 v%d, v%d, 4, v%d' % (t2, t0, t2))
    A('s_mul_i32 s%d, s%d, 896' % (sA, sCc))
    A('s_add_u32 s%d, s%d, 0x%x' % (sA, sA, HH))
    poll_data(A, ['buffer_load_dwordx4 %s, v%d, %s, s%d offen offset:%d sc1' % (v(vRing + 4 * ks, 4), t2, S4(WS), sA, 64 * ks) for ks in range(14)],
              range(vRing, vRing + 56), t0, 16)
    A('s_waitcnt lgkmcnt(0)')
    for ks in range(14):
        for ct in range(4):
            acc = v(vPm + 4 * ct, 4)
            A('v_mfma_f32_16x16x32_bf16 %s, %s, %s, %s' % (acc, a(16 * ks + 4 * ct, 4), v(vRing + 4 * ks, 4), acc if ks else '0'))
    for ct in range(4):
        A('ds_write_b128 v%d, %s offset:%d' % (t3, v(vPm + 4 * ct, 4), 1024 * ct))
    A('s_lshl_b32 s%d, s%d, 6' % (sA, sW))
    A('s_add_u32 s%d, s%d, 65536' % (sA, sA))
    bits(A, t4, [(0, 4, 8), (4, 2, 4)], t0, 's%d' % sA)
    A('s_waitcnt lgkmcnt(0)')
    A('s_barrier')
    for wv in range(4):
        A('ds_read_b128 %s, v%d offset:%d' % (v(vPm + 16 + 4 * wv, 4), t4, wv * 4096))
    A('s_waitcnt lgkmcnt(0)')
    for wv in range(1, 4):
        for h in range(2):
            A('v_pk_add_f32 %s, %s, %s' % (v(vPm + 16 + 2 * h, 2), v(vPm + 16 + 2 * h, 2), v(vPm + 16 + 4 * wv + 2 * h, 2)))
    for i in range(4):
        A('v_min_u32 v%d, -2, v%d' % (vPm + 16 + i, vPm + 16 + i))
    A('s_cmp_ge_u32 s%d, 2' % sW)
    A('s_cbranch_scc1 L_o_join')
    A('s_lshl_b32 s%d, s%d, 1' % (sA, sD))
    A('s_add_u32 s%d, s%d, s%d' % (sA, sA, sW))
    A('s_lshl_b32 s%d, s%d, 10' % (sA, sA))
    A('s_add_u32 s%d, s%d, 0x%x' % (sA, sA, YY))
    A('buffer_store_dwordx4 %s, v%d, %s, s%d offen sc1' % (v(vPm + 16, 4), vL16, S4(WS), sA))
    A('s_lshl_b32 s%d, s%d, 8' % (sA, sI))
    A('s_add_u32 s%d, s%d, 0x%x' % (sA, sA, YK))
    A('buffer_store_dword v%d, v%d, %s, s%d offen sc1' % (vKey, vL4, S4(WS), sA))

    V = Alloc(1, 256)
    vL16, vFa, vFv, vFn, vWr, vRr, vXa, vLw, vG = [V(n) for n in 'l16 fa fv fn wr rr xa lw g'.split()]
    vGa = 255
    t0, t1 = V('t0'), V('t1')
    vXv = V('xv', 2)
    vU = V('u', 2)
    vY = V('y', 16, 4)
    vD = V('d', 16, 4)
    vZ = V('z', 12, 4)
    vO = V('o', 64, 4)
    vW = V('w', 128, 4)
    t2, t3 = vXv, vXv + 1
    vXn, vGn = 252, 254
    assert V.p <= 252
    LW, LRED = 0, 131072
    sTeam, sU, sUn, sNb, sPre = sPrev, sSeg, S('un'), S('nb'), S('pre')
    U0 = opt.get('u0', 60)
    assert U0 % 2 == 0
    A.label('L_o_join2')
    A.label('L_o_join')
    touch_slow(t0, SRD_C)
    if opt.get('cw', 0) > 1:
        touch_code(A, 'L_oj1', 'L_code1', sW, SRD_C, t0)
        A.label('L_oj1')
    tstamp(A, opt, 5, t0, t1, sA)
    srd(A, SRD_A, P_WO, 8 * MB)
    srd(A, SRD_B, P_X, 4 * MB)
    srd(A, SRD_C, P_OUT, 4 * MB)
    A('s_mov_b32 s%d, 0xffff0000' % sHi)
    A('v_lshlrev_b32 v%d, 4, v0' % vL16)
    A('s_add_u32 s%d, s%d, 1' % (sTeam, sC))
    A('s_and_b32 s%d, s%d, 3' % (sTeam, sTeam))
    A('s_lshl_b32 s%d, s%d, 1' % (sTeam, sTeam))
    A('s_lshr_b32 s%d, s%d, 4' % (sA, sI))
    A('s_add_u32 s%d, s%d, s%d' % (sTeam, sTeam, sA))
    A('s_and_b32 s%d, s%d, 15' % (sI, sI))
    A('s_and_b32 s%d, s%d, 7' % (sRot, sI))
    A('s_barrier')
    for hl in range(8):
        A('s_add_u32 s%d, s%d, %d' % (sA, sRot, hl))
        A('s_and_b32 s%d, s%d, 7' % (sA, sA))
        A('s_lshl_b32 s%d, s%d, 3' % (sB, sW))
        A('s_add_u32 s%d, s%d, s%d' % (sA, sA, sB))
        A('s_lshl_b32 s%d, s%d, 18' % (sA, sA))
        A('s_lshl_b32 s%d, s%d, 7' % (sB, sI))
        A('s_add_u32 s%d, s%d, s%d' % (sIdx + hl, sA, sB))
    vRaw, vTr = vFa, vFv
    bits(A, vRaw, [(3, 3, 11), (0, 3, 4)], t0)
    A('s_lshl_b32 s%d, s%d, 13' % (sA, sW))
    A('s_add_u32 s%d, s%d, %d' % (sA, sA, LRED))
    A('v_add_u32 v%d, s%d, v%d' % (vWr, sA, vL16))
    bits(A, vTr, [(2, 1, 11), (4, 2, 9), (3, 1, 7), (0, 2, 3)], t0, 's%d' % sA)
    A('s_lshl_b32 s%d, s%d, 15' % (sA, sW))
    A('v_add_u32 v%d, s%d, v%d' % (vLw, sA, vL16))
    home = lambda ks, i: (a(8 * ks + 4 * i, 4) if i < 2 else v(vW + 4 * ks, 4) if i == 2 else v(vO + 4 * (ks & 15), 4))
    home2 = lambda ks, i, pp: (a(8 * ks + 4 * i + 2 * pp, 2) if i < 2 else v(vW + 4 * ks + 2 * pp, 2) if i == 2 else v(vD + 4 * (ks & 1) + 2 * pp, 2))

    def wissue(ks):
        for i in range(4):
            A('s_add_u32 s%d, s%d, 0x%x' % (sB, sIdx + (ks >> 2), (32 * (ks & 3) + 8 * i) * 2048))
            A('buffer_load_dwordx4 %s, v%d, %s, s%d offen%s' % (home(ks, i), vRaw, S4(SRD_A), sB, ' nt' if opt.get('nt', 31) & 16 else ''))
    DEP = opt.get('depo', 4)
    for ks in range(DEP):
        wissue(ks)
    for ks in range(32):
        A('s_waitcnt vmcnt(%d)' % (4 * (min(32, ks + DEP) - 1 - ks)))
        sl = (ks & 1) * 4096
        for i in range(4):
            A('ds_write_b128 v%d, %s offset:%d' % (vWr, home(ks, i), sl + i * 1024))
        if ks + DEP < 32:
            wissue(ks + DEP)
        if ks:
            A('s_waitcnt lgkmcnt(4)')
            A('ds_write_b128 v%d, %s offset:%d' % (vLw, v(vD + 4 * ((ks - 1) & 1), 4), (ks - 1) * 1024))
        for ct in range(4):
            for pp in range(2):
                A('ds_read_b64_tr_b16 %s, v%d offset:%d' % (home2(ks, ct, pp), vTr, sl + 2 * pp * 128 + ct * 32))
    A('s_waitcnt lgkmcnt(0)')
    A('ds_write_b128 v%d, %s offset:%d' % (vLw, v(vD + 4, 4), 31 * 1024))
    tstamp(A, opt, 6, t0, t1, sA)
    if opt.get('diag'):
        A('s_cmp_lg_u32 s%d, 0' % sW)
        A('s_cbranch_scc1 L_o_e3')
        A('s_cmp_lg_u32 s%d, 3' % sC)
        A('s_cbranch_scc1 L_o_e4')
        dbg_mark(A, opt, 6, t0, t1)
        A.label('L_o_e4')
        dbg_mark(A, opt, 7, t0, t1)
        A.label('L_o_e3')
    A('s_lshl_b32 s%d, s%d, 12' % (sA, sI))
    A('s_add_u32 s%d, s%d, 0x%x' % (sA, sA, YY))
    A('s_lshl_b32 s%d, s%d, 8' % (sB, sI))
    A('s_add_u32 s%d, s%d, 0x%x' % (sB, sB, YK))
    bits(A, t1, [(0, 4, 4)], t0)
    A('v_lshlrev_b32 v%d, 2, v0' % t2)
    poll_data(A, ['buffer_load_dwordx4 %s, v%d, %s, s%d offen offset:%d sc1' % (v(vO + 4 * j, 4), t1, S4(WS), sA, 256 * j) for j in range(16)]
              + ['buffer_load_dword v%d, v%d, %s, s%d offen sc1' % (t3, t2, S4(WS), sB)], list(range(vO, vO + 64)) + [t3], t0, 16)
    A('v_not_b32 v%d, v%d' % (t1, t3))
    A('v_ashrrev_i32 v%d, 31, v%d' % (t1, t1))
    A('v_or_b32 v%d, 0x80000000, v%d' % (t1, t1))
    A('v_xor_b32 v%d, v%d, v%d' % (t1, t3, t1))
    A('v_and_b32 v%d, s%d, v%d' % (t1, sHi, t1))
    sigmoid(t1, t1)
    cvt(t1, t1, t1)
    A('v_and_b32 v%d, s%d, v%d' % (t1, sHi, t1))
    A('v_and_b32 v%d, 0x7ff, v%d' % (t3, t3))
    A('v_sub_u32 v%d, 2047, v%d' % (t3, t3))
    for j in range(8):
        A('v_readlane_b32 s%d, v%d, %d' % (sA, t1, j))
        A('v_readlane_b32 s%d, v%d, %d' % (sIdx + j, t3, j))
        b0 = vO + 4 * j
        for h in range(2):
            A('v_pk_add_f32 %s, %s, %s' % (v(b0 + 2 * h, 2), v(b0 + 2 * h, 2), v(b0 + 32 + 2 * h, 2)))
            rnd2(b0 + 2 * h, b0 + 2 * h + 1, t0)
            A('v_mul_f32 v%d, s%d, v%d' % (b0 + 2 * h, sA, b0 + 2 * h))
            A('v_mul_f32 v%d, s%d, v%d' % (b0 + 2 * h + 1, sA, b0 + 2 * h + 1))
            cvt(vY + 2 * j + h, b0 + 2 * h, b0 + 2 * h + 1)
    A('s_lshl_b32 s%d, s%d, 2' % (sA, sX))
    A('s_add_u32 s%d, s%d, s%d' % (sA, sA, sW))
    A('s_lshl_b32 s%d, s%d, 10' % (sA, sA))
    A('s_add_u32 s%d, s%d, 0x%x' % (sA, sA, F_O))
    bits(A, vFa, [(0, 3, 7)], t0, 's%d' % sA)
    A('s_lshl_b32 s%d, s%d, 12' % (sA, sW))
    A('s_add_u32 s%d, s%d, %d' % (sA, sA, LRED))
    A('v_and_b32 v%d, 0x30, v0' % t0)
    A('v_xor_b32 v%d, v%d, v%d' % (t0, t0, vL16))
    A('v_add_u32 v%d, s%d, v%d' % (vWr, sA, t0))
    A('s_lshl_b32 s%d, s%d, 2' % (sA, sW))
    A('v_lshrrev_b32 v%d, 4, v0' % t0)
    A('v_add_u32 v%d, s%d, v%d' % (t0, sA, t0))
    A('v_and_b32 v%d, 15, v0' % t1)
    A('v_xor_b32 v%d, v%d, v%d' % (t0, t0, t1))
    A('v_lshlrev_b32 v%d, 4, v%d' % (t0, t0))
    A('v_lshl_add_u32 v%d, v%d, 8, v%d' % (t0, t1, t0))
    A('v_add_u32 v%d, %d, v%d' % (vRr, LRED, t0))
    A('s_lshl_b32 s%d, s%d, 13' % (sA, sW))
    A('s_lshl_b32 s%d, s%d, 7' % (sB, sI))
    A('s_add_u32 s%d, s%d, s%d' % (sA, sA, sB))
    bits(A, vXa, [(4, 2, 11), (0, 4, 3)], t0, 's%d' % sA)
    A('s_lshl_b32 s%d, s%d, 4' % (sA, sW))
    A('s_add_u32 s%d, s%d, 0x%x' % (sA, sA, GATE))
    bits(A, vGa, [(4, 2, 2)], t0, 's%d' % sA)
    A('v_mov_b32 v%d, 0' % vFv)
    A('s_cmp_lt_u32 s%d, 2' % sTeam)
    A('s_cselect_b32 s%d, 0, %d' % (sUn, U0))
    A('s_add_u32 s%d, s%d, s%d' % (sUn, sUn, sTeam))
    A('s_mov_b32 s%d, 0' % sPre)
    A('s_mov_b32 s%d, 0' % sCnt)
    A('s_waitcnt lgkmcnt(0)')
    A('s_barrier')

    def ubase(dst, u):
        return ['s_lshr_b32 s%d, s%d, 1' % (dst, u), 's_lshl_b32 s%d, s%d, 14' % (dst, dst), 's_and_b32 s%d, s%d, 1' % (sA, u),
                's_lshl_b32 s%d, s%d, 12' % (sA, sA), 's_add_u32 s%d, s%d, s%d' % (dst, dst, sA)]

    def hbase(base, hl):
        return ['s_add_u32 s%d, s%d, s%d' % (sB, sHb + hl, base)]
    sHb = 64
    for hl in range(8):
        A('s_add_u32 s%d, s%d, %d' % (sA, sRot, hl))
        A('s_and_b32 s%d, s%d, 7' % (sA, sA))
        A('s_lshl_b32 s%d, s%d, 3' % (sB, sW))
        A('s_add_u32 s%d, s%d, s%d' % (sA, sA, sB))
        A('s_mul_i32 s%d, s%d, 0x%x' % (sA, sA, ROW))
        A('s_add_u32 s%d, s%d, 0x%x' % (sHb + hl, sA, OO))
        near(A, sHb + hl, sA)
    old_ = lambda ks: 'buffer_load_dwordx4 %s, v%d, %s, s%d offen offset:%d sc1' % (v(vO + 4 * (ks & 15), 4), vL16, S4(WS), sB, (ks & 3) * 1024)
    zrd = lambda ks: 'ds_read_b128 %s, v%d offset:%d' % (v(vZ + 4 * (ks % 3), 4), vLw, ks * 1024)

    A('.p2align 6')
    A.label('L_o_loop')
    A('s_mov_b32 s%d, s%d' % (sU, sUn))
    A('s_cmp_ge_u32 s%d, 128' % sU)
    A('s_cbranch_scc1 L_o_end')
    A('s_cmp_lt_u32 s%d, %d' % (sU, U0))
    A('s_cselect_b32 s%d, 2, 6' % sA)
    A('s_add_u32 s%d, s%d, s%d' % (sUn, sU, sA))
    for o in ubase(sBase, sU):
        A(o)
    A('s_cmp_eq_u32 s%d, 1' % sPre)
    A('s_cbranch_scc1 L_o_go')
    A('s_lshr_b32 s%d, s%d, 1' % (sD, sU))
    A('s_add_u32 s%d, s%d, 1' % (sD, sD))
    wait_flags(A, vFv, vFa, 's%d' % sD, opt.get('osl', 2))
    def xg(u, oob=None):
        ops = ['s_lshl_b32 s%d, s%d, 15' % (sA, u)]
        if oob is not None:
            ops += ['s_and_b32 s%d, s%d, 0x%x' % (sB, oob, OOB), 's_or_b32 s%d, s%d, s%d' % (sA, sA, sB)]
        ops += ['buffer_load_dwordx2 %s, v%d, %s, s%d offen' % (v(vXn, 2), vXa, S4(SRD_B), sA), 's_lshl_b32 s%d, s%d, 6' % (sA, u)]
        if oob is not None:
            ops += ['s_or_b32 s%d, s%d, s%d' % (sA, sA, sB)]
        return ops + ['buffer_load_dword v%d, v%d, %s, s%d offen sc1' % (vGn, vGa, S4(WS), sA)]
    for o in xg(sU):
        A(o)
    for ks in range(16):
        if ks & 3 == 0:
            for o in hbase(sBase, ks >> 2):
                A(o)
        A(old_(ks))
    A('v_mov_b32 v%d, 0x%x' % (t0, OOB))
    A('buffer_load_dword v%d, v%d, %s, 0 offen' % (vFn, t0, S4(WS)))
    A.label('L_o_go')
    A(zrd(0)); A(zrd(1))
    A('s_lshr_b32 s%d, s%d, 1' % (sD, sUn))
    A('s_add_u32 s%d, s%d, 1' % (sD, sD))
    A('v_cmp_gt_i32 vcc, s%d, v%d' % (sD, vFv))
    A('s_lshl_b32 s%d, s%d, 15' % (sCc, sU))
    A('s_cmp_lg_u64 vcc, 0')
    A('s_cselect_b32 s%d, 0, 0x%x' % (sA, OOB))
    A('buffer_load_dword v%d, v%d, %s, s%d offen sc1' % (vFn, vFa, S4(WS), sA))
    A('s_lshl_b32 s%d, s%d, 2' % (sA, sU))
    A('s_add_u32 s%d, s%d, s%d' % (sA, sA, sW))
    A('s_lshl_b32 s%d, s%d, 2' % (sA, sA))
    A('v_lshrrev_b32 v%d, 4, v0' % t1)
    A('v_add_u32 v%d, s%d, v%d' % (t1, sA, t1))
    upd = ['v_mov_b32 v%d, 0' % vU, 'v_mov_b32 v%d, 0' % (vU + 1), 'v_mov_b32 v%d, v%d' % (vXv, vXn), 'v_mov_b32 v%d, v%d' % (vXv + 1, vXn + 1),
           'v_mov_b32 v%d, v%d' % (vG, vGn), None]
    for j in range(8):
        upd += ['v_cmp_eq_u32 vcc, s%d, v%d' % (sIdx + j, t1), None, 'v_cndmask_b32 v%d, v%d, v%d, vcc' % (vU, vU, vY + 2 * j),
                'v_cndmask_b32 v%d, v%d, v%d, vcc' % (vU + 1, vU + 1, vY + 2 * j + 1)]
    for ks in range(32):
        A('s_waitcnt vmcnt(%d) lgkmcnt(%d)' % (15 if ks == 16 else 17, ks < 31))
        extra = []
        if ks == 16:
            A('v_max_i32 v%d, v%d, v%d' % (vFv, vFv, vFn))
            A('v_cmp_gt_i32 vcc, s%d, v%d' % (sD, vFv))
            extra = ubase(sNb, sUn) + ['s_cmp_eq_u64 vcc, 0', 's_cselect_b32 s%d, 1, 0' % sPre, 's_cselect_b32 s%d, s%d, 0x%x' % (sNb, sNb, OOB)] + xg(sUn, sNb)
        if ks & 3 == 0:
            extra += hbase(sBase if ks < 16 else sNb, ((ks + 16) >> 2) & 7)
        for ct in range(4):
            acc = v(vD + 4 * ct, 4)
            src = home(ks, ct) if ct < 3 else v(vZ + 4 * (ks % 3), 4)
            A('v_mfma_f32_16x16x32_bf16 %s, %s, %s, %s' % (acc, src, v(vO + 4 * (ks & 15), 4), acc if ks else '0'))
            if ct == 0 and ks + 2 < 32:
                A(zrd(ks + 2))
            n_ = (len(extra) + 2 - ct) // (3 - ct) if ct < 3 else 0
            for o in extra[:n_]:
                A(o)
            extra = extra[n_:]
            if 2 <= ks < 16 and ct in (1, 2):
                for o in upd[:2]:
                    if o:
                        A(o)
                upd = upd[2:]
        A(old_(ks + 16))
    assert not upd
    vB, vR = vZ, vD
    for h in range(2):
        A('v_lshlrev_b32 v%d, 16, v%d' % (vB + 2 * h, vXv + h))
        A('v_and_b32 v%d, s%d, v%d' % (vB + 2 * h + 1, sHi, vXv + h))
        A('v_lshlrev_b32 v%d, 16, v%d' % (vB + 8 + 2 * h, vU + h))
        A('v_and_b32 v%d, s%d, v%d' % (vB + 8 + 2 * h + 1, sHi, vU + h))
    for i in range(4):
        A('ds_write_b128 v%d, %s offset:%d' % (vWr, v(vD + 4 * i, 4), 1024 * i))
        A('v_xor_b32 v%d, 0x%x, v%d' % (vWr, (0x40, 0xc0, 0x40, 0x40c0)[i], vWr))
    for h in range(2):
        A('v_pk_add_f32 %s, %s, %s' % (v(vB + 2 * h, 2), v(vB + 2 * h, 2), v(vB + 8 + 2 * h, 2)))
        rnd2(vB + 2 * h, vB + 2 * h + 1, t0)
    A('v_sub_f32 v%d, 1.0, v%d' % (t1, vG))
    cvt(t1, t1, t1)
    A('v_and_b32 v%d, s%d, v%d' % (t1, sHi, t1))
    A('s_waitcnt lgkmcnt(0)')
    A('s_barrier')
    for wv in range(4):
        A('ds_read_b128 %s, v%d offset:%d' % (v(vR + 4 * wv, 4), vRr, wv * 4096))
    for i in range(4):
        A('v_mul_f32 v%d, v%d, v%d' % (vB + i, vB + i, t1))
    rnd2(vB, vB + 1, t0)
    rnd2(vB + 2, vB + 3, t0)
    A('v_xor_b32 v%d, 0x4000, v%d' % (vRr, vRr))
    for wv in range(1, 4):
        A('s_waitcnt lgkmcnt(%d)' % (3 - wv))
        for h in range(2):
            A('v_pk_add_f32 %s, %s, %s' % (v(vR + 2 * h, 2), v(vR + 2 * h, 2), v(vR + 4 * wv + 2 * h, 2)))
    rnd2(vR, vR + 1, t0)
    rnd2(vR + 2, vR + 3, t0)
    for i in range(4):
        A('v_mul_f32 v%d, v%d, v%d' % (vR + i, vR + i, vG))
    rnd2(vR, vR + 1, t0)
    rnd2(vR + 2, vR + 3, t0)
    for h in range(2):
        A('v_pk_add_f32 %s, %s, %s' % (v(vR + 2 * h, 2), v(vR + 2 * h, 2), v(vB + 2 * h, 2)))
        cvt(vU + h, vR + 2 * h, vR + 2 * h + 1)
    A('buffer_store_dwordx2 %s, v%d, %s, s%d offen%s' % (v(vU, 2), vXa, S4(SRD_C), sCc, ('', ' sc1', ' nt', ' sc0 sc1', ' sc1 nt')[opt.get('ost', 0)]))
    if opt.get('prof'):
        A('s_add_u32 s%d, s%d, 1' % (sCnt, sCnt))
        A('s_cmp_lg_u32 s%d, 3' % sC)
        A('s_cbranch_scc1 L_o_loop')
        for sg, sl_ in ((4, 9), (16, 11)):
            Lx = A.newlabel('L_pf')
            A('s_cmp_lg_u32 s%d, %d' % (sCnt, sg))
            A('s_cbranch_scc1 ' + Lx)
            tstamp(A, opt, sl_, t0, t1, sA)
            A('s_waitcnt vmcnt(0)')
            A.label(Lx)
    A('s_branch L_o_loop')
    A.label('L_o_end')
    if opt.get('diag'):
        A('s_cmp_lg_u32 s%d, 0' % sW)
        A('s_cbranch_scc1 L_o_e2')
        dbg_mark(A, opt, 5, t0, t1)
        diag_hold(A, opt)
        A.label('L_o_e2')
    tstamp(A, opt, 7, t0, t1, sA)
    if opt.get('prof'):
        A('s_mov_b32 s78, s%d' % sCnt)
        tstamp(A, opt, 10, t0, t1, sA, now=False)
    A('s_endpgm')
```

```python
from common import *

XROW = 2064
XBUF = 32 * XROW
LSCR = 2 * XBUF


def load_weights(A, srdw, sBase, row_bytes, rows_of, tr_lane_terms, tr_off, ngroups, vRaw, vWr, vTr, t0, sa, sb,
                 scr, after_first=None, pre_out=0, mod=''):
    bits(A, vRaw, [(0, 2, 4)], t0)
    A('v_lshrrev_b32 v%d, 2, v0' % t0)
    A('s_mov_b32 s%d, %d' % (sa, row_bytes))
    A('v_mul_lo_u32 v%d, v%d, s%d' % (t0, t0, sa))
    A('v_add_u32 v%d, v%d, v%d' % (vRaw, vRaw, t0))
    A('s_lshl_b32 s%d, s%d, 12' % (sa, sW))
    A('s_add_u32 s%d, s%d, %d' % (sa, sa, scr))
    bits(A, vWr, [(0, 6, 4)], t0, 's%d' % sa)
    bits(A, vTr, tr_lane_terms, t0, 's%d' % sa)
    depth = 4

    def issue(gi):
        for i in range(4):
            A('s_add_u32 s%d, s%d, 0x%x' % (sb, sBase(gi) if callable(sBase) else sBase, rows_of(gi, i) * row_bytes))
            A('buffer_load_dwordx4 %s, v%d, %s, s%d offen%s' % (a(16 * gi + 4 * i, 4), vRaw, S4(srdw), sb, mod))
    for gi in range(depth):
        issue(gi)
    issued = depth
    for gi in range(ngroups):
        A('s_waitcnt vmcnt(%d)' % ((issued - 1 - gi) * 4))
        if gi == 0 and after_first:
            after_first()
        while issued < ngroups and issued - (gi + 1) < depth:
            issue(issued)
            issued += 1
        for i in range(4):
            A('ds_write_b128 v%d, %s offset:%d' % (vWr, a(16 * gi + 4 * i, 4), i * 1024))
        for ksl in range(2):
            for tile in range(2):
                for pp in range(2):
                    A('ds_read_b64_tr_b16 %s, v%d offset:%d' % (a(16 * gi + (ksl * 2 + tile) * 4 + 2 * pp, 2), vTr, tr_off(ksl, pp, tile)))
        A('s_waitcnt lgkmcnt(0)')


def sel_frag(A, dst, et, t0, t1):
    A('v_bfe_u32 v%d, v0, 2, 2' % t0)
    A('v_lshrrev_b32 v%d, 4, v0' % t1)
    A('v_cmp_eq_u32 vcc, v%d, v%d' % (t0, t1))
    A('v_mov_b32 v%d, 0x%x' % (t1, 0x3f80 << (16 * et)))
    A('v_cndmask_b32 v%d, 0, v%d, vcc' % (t1, t1))
    A('v_and_b32 v%d, 3, v0' % t0)
    for i in range(4):
        A('v_cmp_eq_u32 vcc, %d, v%d' % (i, t0))
        A('v_cndmask_b32 v%d, 0, v%d, vcc' % (dst + i, t1))


def proj(A, opt, kind):
    P = 'L_' + kind
    V = Alloc(1, 252)
    vL16, vRd, vRdSum, vFl, vArm = [V(n) for n in 'l16 rd rdsum fl arm'.split()]
    t0, t1, t2, t3 = V('t0'), V('t1'), V('t2'), V('t3')
    vX = V('x', 32, 4)
    vD = V('d', 16, 4)
    vF = V('f', 8, 4)
    vJ = V('junk', 4, 4)
    vDb, vXb = (V('db', 16, 4), V('xb', 16, 4)) if kind != 'q' else (0, 0)
    S = Alloc(36, 62)
    sH, sSeg, sXo, sM, sMsum, sOut, sOut2, sArm, sPf, sA, sB, sCc = [S(n) for n in 'h seg xo m msum out out2 arm pf a b cc'.split()]
    base = {'k': 16, 'v': 20, 'q': 24}[kind]
    A.label(P)
    if kind == 'q' and opt.get('chainonly'):
        A('s_endpgm')
    cap0 = len(A.lines)
    srd(A, SRD_A, {'k': P_WK, 'v': P_WV, 'q': P_WQ}[kind], 8 * MB)
    srd(A, SRD_B, P_X, 4 * MB)
    assert sH == 36
    if kind == 'q':
        help_kv(A, opt, P_WK, sH, t0, t1, sA)
    A('v_lshlrev_b32 v%d, 4, v0' % vL16)
    A('s_lshl_b32 s%d, s%d, 7' % (sA, sH))
    if kind == 'q':
        A('s_add_u32 s%d, s%d, 0x%x' % (sA, sA, F_O))
        A('s_cmp_eq_u32 s%d, 0' % sW)
        A('s_cselect_b32 s%d, 8, 0' % sB)
        bits(A, vFl, [(0, 3, 12)], t0, 's%d' % sA)
        A('v_mov_b32 v%d, 0x%x' % (t0, OOB))
        A('v_cmp_gt_u32 vcc, s%d, v0' % sB)
        A('v_cndmask_b32 v%d, v%d, v%d, vcc' % (vFl, t0, vFl))
    else:
        A('s_lshl_b32 s%d, s%d, 1' % (sA, sA))
        A('s_add_u32 s%d, s%d, 0x%x' % (sA, sA, F_KV + (128 if kind == 'v' else 0)))
        A('s_cmp_eq_u32 s%d, 0' % sW)
        A('s_cselect_b32 s%d, 2, 0' % sB)
        bits(A, vFl, [(0, 1, 13)], t0, 's%d' % sA)
        A('v_mov_b32 v%d, 0x%x' % (t0, OOB))
        A('v_cmp_gt_u32 vcc, s%d, v0' % sB)
        A('v_cndmask_b32 v%d, v%d, v%d, vcc' % (vFl, t0, vFl))
    npre = 1
    A('v_and_b32 v%d, 15, v0' % t0)
    A('v_mul_u32_u24 v%d, %d, v%d' % (vRd, XROW, t0))
    A('v_lshrrev_b32 v%d, 4, v0' % t0)
    A('v_lshl_add_u32 v%d, v%d, 8, v%d' % (vRd, t0, vRd))
    A('v_lshlrev_b32 v%d, 1, v%d' % (vRdSum, vRd))
    A('v_add_u32 v%d, %d, v%d' % (vRdSum, XBUF, vRdSum))
    A('s_mul_i32 s%d, s%d, %d' % (sM, sW, 8 * XROW))
    A('s_lshl_b32 s%d, s%d, 1' % (sMsum, sM))
    A('s_add_u32 s%d, s%d, %d' % (sMsum, sMsum, XBUF))
    A('s_lshl_b32 s%d, s%d, 14' % (sXo, sW))

    def dma_row(i):
        return ['s_add_u32 m0, s%d, %d' % (sM, i * XROW), 's_add_u32 s%d, s%d, %d' % (sA, sXo, i * 2048),
                'buffer_load_dwordx4 v%d, %s, s%d offen lds' % (vL16, S4(SRD_B), sA),
                'buffer_load_dwordx4 v%d, %s, s%d offen offset:1024 lds' % (vL16, S4(SRD_B), sA)]
    def dma_all():
        for i in range(8):
            for o in dma_row(i):
                A(o)
        A('s_sub_u32 s%d, s%d, s%d' % (sM, sMsum, sM))
        A('s_add_u32 s%d, s%d, 0x10000' % (sXo, sXo))
    nfuse = 0 if kind == 'q' else opt.get('nf', 2)
    WSCR = LSCR if nfuse == 2 else XBUF
    for i in range(max(nfuse, 1)):
        dma_all()
    nt = ' nt' if opt.get('nt', 31) & 2 else ''
    vRaw, vWr, vTr = vX, vX + 1, vX + 2
    A('s_and_b32 s%d, s%d, 1' % (sA, sW))
    A('s_lshl_b32 s%d, s%d, 3' % (sA, sA))
    bits(A, t1, [(4, 2, 1)], t0, 's%d' % sA)
    A('v_and_b32 v%d, 15, v0' % t0)
    A('v_xor_b32 v%d, v%d, v%d' % (t1, t1, t0))
    bits(A, vRaw, [(4, 2, 13)], t0)
    A('v_lshl_add_u32 v%d, v%d, 4, v%d' % (vRaw, t1, vRaw))
    A('s_lshl_b32 s%d, s%d, 12' % (sA, sW))
    A('s_add_u32 s%d, s%d, %d' % (sA, sA, WSCR))
    A('v_add_u32 v%d, s%d, v%d' % (vWr, sA, vL16))
    A('s_lshl_b32 s%d, s%d, 1' % (sA, sW))
    A('v_bfe_u32 v%d, v0, 2, 3' % t1)
    A('v_xor_b32 v%d, s%d, v%d' % (t1, sA, t1))
    bits(A, vTr, [(4, 2, 12), (2, 2, 8), (0, 2, 3)], t0, '%d' % WSCR)
    A('v_lshl_add_u32 v%d, v%d, 5, v%d' % (vTr, t1, vTr))
    A('v_xor_b32 v%d, 32, v%d' % (vTr + 1, vTr))
    A('s_lshl_b32 s%d, s%d, 8' % (sCc, sH))
    A('s_lshl_b32 s%d, s%d, 20' % (sA, sW))
    A('s_add_u32 s%d, s%d, s%d' % (sCc, sCc, sA))

    def wissue(gi):
        for i in range(4):
            A('s_add_u32 s%d, s%d, 0x%x' % (sB, sCc, (16 * (gi & 7) + 4 * i + 512 * (gi >> 3)) * 8192))
            A('buffer_load_dwordx4 %s, v%d, %s, s%d offen%s' % (a(16 * gi + 4 * i, 4), vRaw, S4(SRD_A), sB, nt))
    if kind == 'q':
        for i in range(opt.get('qdl', 6)):
            A('s_sleep 32')
    DEP = opt.get('dep', 3)
    for gi in range(DEP):
        wissue(gi)
    cap_vm(A, cap0)

    def weights_rest():
        if nfuse == 2:
            A('v_add_u32 v%d, %d, v%d' % (vX + 4, XBUF, vRd))

        def mm(gi):
            for sg in range(nfuse):
                for ksl in range(2):
                    for tt2 in range(2):
                        for tt in range(2):
                            acc = v((vD, vDb)[sg] + (tt * 2 + tt2) * 4, 4)
                            A('v_mfma_f32_16x16x32_bf16 %s, %s, %s, %s' % (acc, a(16 * gi + (ksl * 2 + tt) * 4, 4), v((vX + 16, vXb)[sg] + ksl * 8 + tt2 * 4, 4), acc if gi or ksl else '0'))
        for gi in range(16):
            A('s_waitcnt lgkmcnt(0)')
            if nfuse == 2:
                A('s_barrier')
            if gi:
                mm(gi - 1)
            A('s_waitcnt vmcnt(%d)' % (4 * (min(16, gi + DEP) - 1 - gi) + (gi > 16 - DEP)))
            sl = (gi & 1) * 16384 if nfuse < 2 else 0
            for i in range(4):
                A('ds_write_b128 v%d, %s offset:%d' % (vWr, a(16 * gi + 4 * i, 4), sl + i * 1024))
            if gi + DEP < 16:
                wissue(gi + DEP)
            if gi + DEP == 16:
                init_load(A, t0, t1)
            A('s_waitcnt lgkmcnt(0)')
            A('s_barrier')
            for ksl in range(2):
                for tile in range(2):
                    for pp in range(2):
                        A('ds_read_b64_tr_b16 %s, v%d offset:%d' % (a(16 * gi + (ksl * 2 + tile) * 4 + 2 * pp, 2), vTr + tile, sl + (8 * ksl + 4 * pp) * 256))
            for sg in range(nfuse):
                if sg:
                    A('s_waitcnt lgkmcnt(8)')
                for ksl in range(2):
                    ks = 2 * gi + ksl
                    for tt2 in range(2):
                        A('ds_read_b128 %s, v%d offset:%d' % (v((vX + 16, vXb)[sg] + ksl * 8 + tt2 * 4, 4), (vRd, vX + 4)[sg], tt2 * 16 * XROW + 16 * (ks & 15) + 1024 * (ks >> 4)))
        A('s_waitcnt lgkmcnt(0)')
        mm(15)
        wait_init(A, t0, t1, sA, sB, True)
        tstamp(A, opt, 1, t0, t1, sA)
    A('s_mul_i32 s%d, s%d, 0x%x' % (sOut, sH, ROW))
    fixups = []
    if kind != 'q':
        A('s_lshl_b32 s%d, s%d, 11' % (sA, sW))
        A('s_add_u32 s%d, s%d, s%d' % (sOut2, sOut, sA))
        A('s_add_u32 s%d, s%d, 0x%x' % (sOut2, sOut2, VT))
        A('s_lshl_b32 s%d, s%d, 10' % (sA, sW))
        A('s_add_u32 s%d, s%d, s%d' % (sOut, sOut, sA))
        A('s_add_u32 s%d, s%d, 0x%x' % (sOut, sOut, KX if kind == 'k' else VX))
        bits(A, vArm, [(4, 2, 22), (4, 2, 16), (0, 4, 4)], t0)
        A('s_lshl_b32 s%d, s%d, 3' % (sArm, sW))
        A('s_bfe_u32 s%d, s%d, 0x10001' % (sA, sH))
        A('s_add_u32 s%d, s%d, s%d' % (sArm, sArm, sA))
        A('s_mul_i32 s%d, s%d, 0x%x' % (sArm, sArm, ROW))
        A('s_and_b32 s%d, s%d, 1' % (sA, sH))
        A('s_lshl_b32 s%d, s%d, 12' % (sA, sA))
        A('s_add_u32 s%d, s%d, s%d' % (sArm, sArm, sA))
        A('s_lshr_b32 s%d, s%d, 2' % (sA, sH))
        A('s_lshl_b32 s%d, s%d, 8' % (sA, sA))
        A('s_add_u32 s%d, s%d, s%d' % (sArm, sArm, sA))
        A('s_add_u32 s%d, s%d, 0x%x' % (sArm, sArm, PART))
        sKa = S('ka')
        A('s_lshr_b32 s%d, s%d, 1' % (sKa, sH))
        A('s_mul_i32 s%d, s%d, 0x%x' % (sKa, sKa, ROW))
        A('s_and_b32 s%d, s%d, 1' % (sA, sH))
        A('s_lshl_b32 s%d, s%d, 2' % (sA, sA))
        A('s_add_u32 s%d, s%d, s%d' % (sA, sA, sW))
        A('s_lshl_b32 s%d, s%d, 10' % (sA, sA))
        A('s_add_u32 s%d, s%d, s%d' % (sKa, sKa, sA))
        A('s_add_u32 s%d, s%d, 0x%x' % (sKa, sKa, KVM))
        fixups = [sOut, sOut2, sKa, sArm]
        vSent = V('sent', 4, 4)
        for i in range(4):
            A('v_mov_b32 v%d, -1' % (vSent + i))
        A('s_and_b32 s%d, s%d, 15' % (sPf, sR))
        A('s_lshl_b32 s%d, s%d, 2' % (sPf, sPf))
        A('s_add_u32 s%d, s%d, s%d' % (sPf, sPf, sW))
        A('s_lshl_b32 s%d, s%d, 10' % (sPf, sPf))
        A('s_add_u32 s%d, s%d, 0x20000' % (sPf, sPf))
    if kind == 'v':
        vSel = V('sel', 8, 4)
        vD2 = V('d2', 16, 4)
        vG = V('g', 8, 4)
        sel_frag(A, vSel, 0, t0, t1)
        sel_frag(A, vSel + 4, 1, t0, t1)
    cvt = lambda d, x, y: A('v_cvt_pk_bf16_f32 v%d, v%d, v%d' % (d, x, y))
    ldx4 = lambda dst, so, off: 'buffer_load_dwordx4 %s, v%d, %s, s%d offen offset:%d sc1' % (v(dst, 4), vL16, S4(WS), so, off)
    stx4 = lambda src, so, off: 'buffer_store_dwordx4 %s, v%d, %s, s%d offen offset:%d sc1' % (v(src, 4), vL16, S4(WS), so, off)
    LQ, LKV = LSCR, LSCR + 8192
    if kind == 'q':
        vQw, vIdx, vFm, vFv, vKr = V('qw'), V('idx'), V('fm'), V('fv'), V('kr')
        vQr = vArm
        vKx = V('kx', 32, 4)
        vVT = V('vt', 16, 4)
        vKm, vVm = V('km', 8, 4), V('vm', 4, 4)
        vQ = V('q', 16, 4)
        vD3 = vKx
        vO = vKx + 16
        vG = vQ
        vVmT = vQ + 8
        vS = V('s', 8, 4)
        MM = V('mm', 4, 4)
        vBias = V('bias', 8, 4)
        vStrip = V('strip', 20, 4)
        vLs = V('ls', 4, 4)
        vP = V('p', 4, 4)
        vOne = V('one', 4, 4)
        vPm, vHalf = V('pm', 2), V('half', 2)
        sKs, sKm, sVm, sScale, sMk = [S(n) for n in 'ks km vm scale mk'.split()]
        assert VT == KX + 8192
        A('s_lshl_b32 s%d, s%d, 12' % (sB, sW))
        A('s_add_u32 s%d, s%d, %d' % (sMk, sB, LKV))
        A('s_add_u32 s%d, s%d, s%d' % (sKs, sB, sOut))
        fixups = [sKs, sKm, sVm, sOut]
        A('s_add_u32 s%d, s%d, 0x%x' % (sKs, sKs, KX))
        A('s_lshr_b32 s%d, s%d, 1' % (sA, sW))
        A('s_lshl_b32 s%d, s%d, 12' % (sB, sA))
        A('s_add_u32 s%d, s%d, %d' % (sB, sB, LKV + 8192))
        A('v_add_u32 v%d, s%d, v%d' % (t2, sB, vL16))
        vVr = V('vr')
        A('v_mov_b32 v%d, v%d' % (vVr, t2))
        A('v_add_u32 v%d, %d, v%d' % (vKr, LKV, vL16))
        A('s_lshr_b32 s%d, s%d, 1' % (sKm, sH))
        A('s_mul_i32 s%d, s%d, 0x%x' % (sKm, sKm, ROW))
        A('s_and_b32 s%d, s%d, 1' % (sB, sH))
        A('s_lshl_b32 s%d, s%d, 12' % (sB, sB))
        A('s_add_u32 s%d, s%d, s%d' % (sKm, sKm, sB))
        A('s_add_u32 s%d, s%d, 0x%x' % (sKm, sKm, KVM))
        A('s_lshl_b32 s%d, s%d, 10' % (sB, sA))
        A('s_add_u32 s%d, s%d, s%d' % (sVm, sKm, sB))
        A('s_lshl_b32 s%d, s%d, 11' % (sB, sA))
        A('s_add_u32 s%d, s%d, s%d' % (sOut, sOut, sB))
        A('s_and_b32 s%d, s%d, 1' % (sA, sW))
        A('s_lshl_b32 s%d, s%d, 12' % (sB, sA))
        A('s_add_u32 s%d, s%d, s%d' % (sOut, sOut, sB))
        A('s_add_u32 s%d, s%d, 0x%x' % (sOut, sOut, OO))
        A('s_add_u32 s%d, s%d, %d' % (sB, sB, LQ))
        A('v_add_u32 v%d, s%d, v%d' % (vQr, sB, vL16))
        A('s_lshl_b32 s%d, s%d, 10' % (sB, sW))
        A('s_add_u32 s%d, s%d, %d' % (sB, sB, LQ))
        A('v_add_u32 v%d, s%d, v%d' % (vQw, sB, vL16))
        A('s_mov_b32 s%d, %s' % (sScale, f32(128 ** -0.5 * LOG2E)))
        A('s_lshl_b32 s%d, s%d, 4' % (sA, sA))
        A('v_and_b32 v%d, 15, v0' % t0)
        A('v_add_u32 v%d, s%d, v%d' % (t0, sA, t0))
        A('v_lshrrev_b32 v%d, 4, v0' % t1)
        A('v_lshlrev_b32 v%d, 2, v%d' % (t1, t1))
        A('v_sub_u32 v%d, v%d, v%d' % (t0, t0, t1))
        A('v_mov_b32 v%d, %s' % (t1, f32(-1e30)))
        for i in range(8):
            A('v_cmp_gt_i32 vcc, %d, v%d' % (16 * (i >> 2) + (i & 3), t0))
            A('v_cndmask_b32 v%d, 0, v%d, vcc' % (vBias + i, t1))
        for i in range(20):
            A('v_mov_b32 v%d, 0' % (vStrip + i))
        sel_frag(A, vStrip + 4, 0, t0, t1)
        sel_frag(A, vStrip + 12, 1, t0, t1)
        for i in range(4):
            A('v_mov_b32 v%d, 0x3f803f80' % (vOne + i))
        for i in range(2):
            A('v_mov_b32 v%d, 0x3f003f00' % (vHalf + i))
        A('v_and_b32 v%d, 8, v0' % t0)
        A('v_cmp_eq_u32 vcc, 0, v%d' % t0)
        A('v_mov_b32 v%d, 0xeeee' % t1)
        A('v_mov_b32 v%d, 0x4444' % t2)
        A('v_cndmask_b32 v%d, v%d, v%d, vcc' % (vIdx, t1, t2))
        A('s_lshl_b32 s%d, s%d, 8' % (sA, sH))
        A('s_add_u32 s%d, s%d, 0x%x' % (sB, sA, F_KV))
        bits(A, t3, [(0, 1, 7)], t0, 's%d' % sB)
        if opt.get('qpl', 1) == 32:
            bits(A, vFm, [(0, 5, 7), (5, 1, 30)], t0)
        else:
            A('s_lshl_b32 s%d, s%d, 10' % (sA, sW))
            lane0_addr(A, vFm, sA, t0)

    weights_rest()
    for r_ in fixups:
        near(A, r_, sA)
    A('s_mov_b32 s%d, 0' % sSeg)
    A('s_barrier')
    flag_st = 'buffer_store_dword v%d, v%d, %s, 0 offen sc1' % (t3, vFl, S4(WS))
    mfma = lambda d, x, y, c_: 'v_mfma_f32_16x16x32_bf16 %s, %s, %s, %s' % (d, x, y, c_)
    cv = lambda d, x, y: 'v_cvt_pk_bf16_f32 v%d, v%d, v%d' % (d, x, y)

    class Order:
        def __init__(self, name, lim):
            self.name, self.lim, self.ops = name, lim, []

        def add(self, tag):
            self.ops.append(tag)

        def wait(self, tag):
            last = max(i for i, t in enumerate(self.ops) if t == tag)
            n = len(self.ops) - 1 - last
            n = min(n, self.lim)
            return 's_waitcnt %s(%d)' % (self.name, n)

    def gemm(fill, stream=(), start=0, vsp=4):
        L, M = Order('lgkmcnt', 15), Order('vmcnt', 63)
        M.add('old')
        stream = list(stream)

        def emit(o):
            if isinstance(o, tuple):
                if o[0] in ('lds', 'vm'):
                    (L if o[0] == 'lds' else M).add(o[1])
                    A(o[2])
                else:
                    A((L if o[0] == 'wl' else M).wait(o[1]))
            else:
                assert not o.startswith('ds_') and not o.startswith('buffer_'), o
                A(o)

        def cost(o):
            if isinstance(o, tuple) or not o.startswith('v_'):
                return 1
            if 'mfma' in o:
                return 0
            return 4 if (o.startswith('v_exp') or o.startswith('v_rcp') or o.startswith('v_perml')) else 2

        def rd(ks, tt2):
            emit(('lds', 'x%d' % ks, 'ds_read_b128 %s, v%d offset:%d' % (v(vX + (ks & 3) * 8 + tt2 * 4, 4), vRd, tt2 * 16 * XROW + 16 * (ks & 15) + 1024 * (ks >> 4))))
        for o in fill.get('head', []):
            emit(o)
        for ks in range(3):
            rd(ks, 0); rd(ks, 1)
        last_vm = -99
        for ks in range(32):
            emit(('wl', 'x%d' % ks))
            n = 0
            for tt2 in range(2):
                for tt in range(2):
                    acc = v(vD + (tt * 2 + tt2) * 4, 4)
                    A(mfma(acc, a((ks * 2 + tt) * 4, 4), v(vX + (ks & 3) * 8 + tt2 * 4, 4), acc if ks else '0'))
                    budget = 4
                    if n in (0, 2) and ks + 3 < 32:
                        rd(ks + 3, n >> 1)
                    for o in fill.get((ks, n), []):
                        emit(o)
                        budget -= 2
                    while stream and ks >= start and (cost(stream[0]) <= budget):
                        if isinstance(stream[0], tuple) and stream[0][0] == 'vm':
                            if n != 1 and vsp or 4 * ks + n - last_vm < vsp:
                                break
                            last_vm = 4 * ks + n
                        o = stream.pop(0)
                        emit(o)
                        budget = (2 if 'smfmac' in o else 4) if cost(o) == 0 else budget - cost(o)
                    n += 1
        for o in stream:
            emit(o)
        A('v_sub_u32 v%d, v%d, v%d' % (vRd, vRdSum, vRd))
        for tt2 in range(2):
            for j in range(4):
                A(cv(vF + 4 * tt2 + j, vD + 4 * tt2 + j, vD + 8 + 4 * tt2 + j))
        return L, M, emit

    dsp = opt.get('dsp' + ('q' if kind == 'q' else ''), 4)
    dend = (16 * dsp + 3) // 4

    def base_fill(d0=0):
        fill = {}
        put = lambda g_, os_: fill.setdefault(((g_ >> 2) + d0, g_ & 3), []).extend(os_)
        for i in range(8):
            d = dma_row(i)
            put(2 * i * dsp, d[0:2])
            put(2 * i * dsp + 1, [('vm', 'dma', d[2])])
            put((2 * i + 1) * dsp + 1, [('vm', 'dma', d[3])])
        put(15 * dsp + 2, ['s_sub_u32 s%d, s%d, s%d' % (sM, sMsum, sM), 's_add_u32 s%d, s%d, 0x10000' % (sXo, sXo)])
        return fill

    if kind != 'q':
        adv = lambda r_: 's_add_u32 s%d, s%d, 0x%x' % (r_, r_, SEG)
        outs = ['s_add_u32 s%d, s%d, 4096' % (sB, sOut), ('vm', 'st', stx4(vF, sOut, 0)), ('vm', 'st', stx4(vF + 4, sB, 0)), adv(sOut)]
        if kind == 'k':
            outs += [('vm', 'st', 'buffer_store_dwordx4 %s, v%d, %s, s%d offen sc1' % (v(vSent, 4), vArm, S4(WS), sArm)),
                     ('vm', 'st', stx4(vSent, sKa, 0)), adv(sArm), adv(sKa)]
        else:
            outs += [('vm', 'st', stx4(vG + 4 * et, sOut2, et * 1024)) for et in range(2)] + [adv(sOut2)]
        pf = [('vm', 'pf', 'buffer_load_dwordx4 %s, v%d, %s, s%d offen' % (v(vJ, 4), vL16, S4(SRD_B), sPf)), 's_add_u32 s%d, s%d, 0x10000' % (sPf, sPf)]

        def transpose_v():
            if kind == 'v':
                for et in range(2):
                    for tt2 in range(2):
                        A(mfma(v(vD2 + (et * 2 + tt2) * 4, 4), v(vF + 4 * tt2, 4), v(vSel + 4 * et, 4), '0'))
                for i in range(8):
                    A(cv(vG + i, vD2 + 2 * i, vD2 + 2 * i + 1))
        NI = opt.get('ni', 6)
        if nfuse == 1:
            A('v_sub_u32 v%d, v%d, v%d' % (vRd, vRdSum, vRd))
        for sg in range(nfuse):
            d_ = (vD, vDb)[sg]
            for tt2 in range(2):
                for j in range(4):
                    A(cv(vF + 4 * tt2 + j, d_ + 4 * tt2 + j, d_ + 8 + 4 * tt2 + j))
            transpose_v()
            for o in outs:
                A(o[2] if isinstance(o, tuple) else o)
        dma_all()
        A('s_add_u32 s%d, s%d, 0x%x' % (sPf, sPf, 0x10000 * nfuse))
        A('s_mov_b32 s%d, %d' % (sSeg, nfuse))
        A('v_mov_b32 v%d, %d' % (t3, nfuse))
        A('s_waitcnt vmcnt(16)')
        A('s_barrier')
        A(flag_st)
        A('s_waitcnt vmcnt(1)')
        A('s_barrier')
        if opt.get('kvm', 1):
            L, M, emit = gemm(base_fill(), pf, dend)
            transpose_v()
            A('s_mov_b32 s%d, %d' % (sSeg, nfuse + 1))
            A(M.wait('dma'))
            A('s_barrier')
            NE = opt.get('ne', 12)
            A.label(P + '_loope')
            nst = sum(isinstance(o, tuple) for o in outs)
            fill = base_fill(nst)
            fk = opt.get('fk', 20)
            fill.setdefault((fk, 3), []).extend([('wv', 'st'), 's_barrier', ('vm', 'fl', flag_st)])
            fill.setdefault((nst + dend, 1), []).extend(pf)
            L, M, emit = gemm(fill, outs + ['v_mov_b32 v%d, s%d' % (t3, sSeg)], 0)
            transpose_v()
            A('s_add_u32 s%d, s%d, 1' % (sSeg, sSeg))
            A('s_cmp_le_u32 s%d, %d' % (sSeg, NE))
            A(M.wait('dma'))
            A('s_barrier')
            A('s_cbranch_scc1 %s_loope' % P)
            A('.p2align 6')
            A.label(P + '_loop')
            L, M, emit = gemm(base_fill(), ['s_sub_u32 s%d, s%d, 2' % (sB, sSeg), 's_max_u32 s%d, s%d, %d' % (sB, sB, NE), 'v_mov_b32 v%d, s%d' % (t3, sB), ('vm', 'fl', flag_st)] + outs + pf, dend)
            transpose_v()
            A('s_add_u32 s%d, s%d, 1' % (sSeg, sSeg))
        else:
            A.label(P + '_loop0')
            L, M, emit = gemm(base_fill(), pf, dend)
            transpose_v()
            A('s_add_u32 s%d, s%d, 1' % (sSeg, sSeg))
            A('s_cmp_gt_u32 s%d, %d' % (sSeg, NI))
            A('s_cbranch_scc1 %s_ent0' % P)
            for o in outs:
                emit(o)
            A('v_mov_b32 v%d, s%d' % (t3, sSeg))
            A('s_waitcnt vmcnt(0)')
            A('s_barrier')
            A(flag_st)
            A('s_branch %s_loop0' % P)
            A.label(P + '_ent0')
            A('s_waitcnt vmcnt(0)')
            A('s_barrier')
            A('.p2align 6')
            A.label(P + '_loop')
            L, M, emit = gemm(base_fill(), ['s_sub_u32 s%d, s%d, 2' % (sB, sSeg), 's_max_u32 s%d, s%d, %d' % (sB, sB, NI), 'v_mov_b32 v%d, s%d' % (t3, sB), ('vm', 'fl', flag_st)] + outs + pf, dend)
            transpose_v()
            A('s_add_u32 s%d, s%d, 1' % (sSeg, sSeg))
        if opt.get('prof'):
            for sg, sl_ in ((16, 11), (48, 12)):
                Lx = A.newlabel('L_pf')
                A('s_cmp_lg_u32 s%d, %d' % (sSeg, sg))
                A('s_cbranch_scc1 ' + Lx)
                tstamp(A, opt, sl_, t0, t1, sA)
                A('s_waitcnt vmcnt(0)')
                A.label(Lx)
        A('s_cmp_lt_u32 s%d, 64' % sSeg)
        A(M.wait('dma'))
        A('s_barrier')
        A('s_cbranch_scc1 %s_loop' % P)
        A('s_xor_b32 s%d, s%d, 0x2000' % (sKa, sKa))
        for o in outs:
            emit(o)
    else:
        ld_m = [ldx4(vKm, sKm, 0), ldx4(vKm + 4, sKm, 1024), ldx4(vVm, sVm, 2048)]
        mregs = list(range(vKm, vKm + 8)) + list(range(vVm, vVm + 4))
        probe = ['v_mov_b32 v%d, 0' % vFv, 'buffer_atomic_add v%d, v%d, %s, s%d offen sc0 sc1' % (vFv, vFm, S4(WS), sKm)]
        stage = ['s_mov_b32 m0, s%d' % sMk, 's_nop 0'] + [('vm', 'kv', 'buffer_load_dwordx4 v%d, %s, s%d offen offset:%d sc1 lds' % (vL16, S4(WS), sKs, 1024 * f)) for f in range(4)] \
            + ['s_add_u32 s%d, s%d, 0x%x' % (sKs, sKs, SEG)]
        reads = [('lds', 'q', 'ds_read_b128 %s, v%d offset:%d' % (v(vQ + 4 * j, 4), vQr, j * 1024)) for j in range(4)] \
            + [('lds', 'k', 'ds_read_b128 %s, v%d offset:%d' % (v(vKx + 4 * f, 4), vKr, f * 1024)) for f in range(8)] \
            + [('lds', 'vt', 'ds_read_b128 %s, v%d offset:%d' % (v(vVT + 4 * f, 4), vVr, f * 1024)) for f in range(4)]

        def attention(tag):
            p1 = ['v_mov_b32 v%d, 0' % (MM + i) for i in range(4)]
            for j in range(4):
                for tt in range(2):
                    acc = v(vS + 4 * tt, 4)
                    p1.append(mfma(acc, v(vKx + (tt * 4 + j) * 4, 4), v(vQ + 4 * j, 4), acc if j else v(vBias + 4 * tt, 4)))
            T = Asm()
            maxall(T, mregs, t0)
            p2 = [('wv', 'm')] + [l.strip() for l in T.lines] + ['v_cmp_eq_u32 vcc, -1, v%d' % t0]
            p2 += ['v_mov_b32 v%d, 0' % (vD3 + i) for i in range(16)]
            p2 += ['s_cbranch_vccnz L_q_bad%s' % tag, 'L_q_ok%s:' % tag]
            T = Asm()
            for u in range(2):
                T('v_smfmac_f32_16x16x64_bf16 %s, %s, %s, v%d' % (v(MM, 4), v(vKm + 4 * u, 4), v(vQ + 8 * u, 8), vIdx))
            win = {(0, 0): 4, (1, 0): 0, (0, 1): 12, (1, 1): 8}
            mx = ['v_max3_f32 v%d, v%d, v%d, v%d' % (t0, vS, vS + 1, vS + 2), 'v_max3_f32 v%d, v%d, v%d, v%d' % (t0, t0, vS + 3, vS + 4),
                  'v_max3_f32 v%d, v%d, v%d, v%d' % (t0, t0, vS + 5, vS + 6), 'v_max_f32 v%d, v%d, v%d' % (t0, t0, vS + 7)]
            for qp in range(2):
                for et in range(2):
                    T('v_smfmac_f32_16x16x64_bf16 %s, %s, %s, v%d' % (v(vD3 + (qp * 2 + et) * 4, 4), v(vVm, 4), v(vStrip + win[(qp, et)], 8), vIdx))
                    T(mx.pop(0))
            T('v_permlane32_swap_b32 v%d, v%d' % (MM, MM + 2))
            T('v_permlane32_swap_b32 v%d, v%d' % (MM + 1, MM + 3))
            T('v_add_f32 v%d, v%d, v%d' % (MM, MM, MM + 2))
            T('v_add_f32 v%d, v%d, v%d' % (MM + 1, MM + 1, MM + 3))
            T('v_max3_f32 v%d, v%d, v%d, v%d' % (t0, t0, MM, MM + 1))
            cm = [cv(vVmT + i, vD3 + 2 * i, vD3 + 2 * i + 1) for i in range(8)]
            for sw in ('v_permlane32_swap_b32', 'v_permlane16_swap_b32'):
                T('v_mov_b32 v%d, v%d' % (t1, t0))
                T(cm.pop(0)); T(cm.pop(0))
                T('%s v%d, v%d' % (sw, t0, t1))
                T('v_max_f32 v%d, v%d, v%d' % (t0, t0, t1))
            T('v_mul_f32 v%d, s%d, v%d' % (t0, sScale, t0))
            regs = [vS + i for i in range(8)] + [MM, MM + 1]
            for r_ in regs:
                T('v_fma_f32 v%d, v%d, s%d, -v%d' % (r_, r_, sScale, t0))
            for r_ in regs:
                T('v_exp_f32 v%d, v%d' % (r_, r_))
            for i in range(4):
                T(cv(vP + i, vS + 2 * i, vS + 2 * i + 1))
            T(cv(vPm, MM, MM + 1))
            T(cv(vPm + 1, MM, MM + 1))
            T(mfma(v(vLs, 4), v(vOne, 4), v(vP, 4), '0'))
            T(cm.pop(0))
            T('v_permlane32_swap_b32 v%d, v%d' % (vPm, vPm + 1))
            for e in range(4):
                T(mfma(v(vO + 4 * e, 4), v(vVT + 4 * e, 4), v(vP, 4), '0'))
                if cm:
                    T(cm.pop(0))
            m16 = lambda d, x: 'v_mfma_f32_16x16x16_bf16 %s, %s, %s, %s' % (v(d, 4), v(x, 2), v(vPm, 2), v(d, 4))
            T(m16(vLs, vHalf))
            for e in range(4):
                T(m16(vO + 4 * e, vVmT + 2 * e))
            T('v_rcp_f32 v%d, v%d' % (t0, vLs))
            p2 += [l.strip() for l in T.lines]
            p3 = []
            for qp in range(2):
                p3 += ['v_mul_f32 v%d, v%d, v%d' % (vO + 8 * qp + i, vO + 8 * qp + i, t0) for i in range(8)]
                p3 += [cv(vG + 4 * qp + j, vO + 8 * qp + j, vO + 8 * qp + 4 + j) for j in range(4)]
                p3 += [('vm', 'o', stx4(vG + 4 * qp, sOut, qp * 1024))]
            p3 += ['s_add_u32 s%d, s%d, 0x%x' % (sOut, sOut, SEG)]
            return p1, p2, p3

        qwr = [('lds', 'qw', 'ds_write_b128 v%d, %s' % (vQw, v(vF, 4))), ('lds', 'qw', 'ds_write_b128 v%d, %s offset:4096' % (vQw, v(vF + 4, 4)))]

        def q_end(M, tags):
            A(min((M.wait(t) for t in tags), key=lambda x: int(x[x.index('(') + 1:-1])))
            A('v_cmp_eq_u32 vcc, -1, v%d' % vFv)
            A('s_barrier')
        xt = []
        if opt.get('qxt', 1):
            vXt = V('xt')
            bits(A, vXt, [(0, 4, 7), (4, 2, 30)], t0)
            A('s_and_b32 s%d, s%d, 7' % (sA, sH))
            A('s_lshl_b32 s%d, s%d, 13' % (sA, sA))
            A('s_mul_i32 s%d, s%d, %d' % (sB, sW, 2048 - 16384))
            A('s_add_u32 s%d, s%d, s%d' % (sA, sA, sB))
            A('s_add_u32 s%d, s%d, 0x10000' % (sA, sA))
            A('v_add_u32 v%d, s%d, v%d' % (vXt, sA, vXt))
            xt = [('vm', 'xt', 'buffer_load_dword v252, v%d, %s, s%d offen' % (vXt, S4(SRD_B), sXo))]
        if opt.get('prof'):
            A('s_mov_b64 s[98:99], 0')
            A('v_mov_b32 v251, 0')
        L, M, emit = gemm(base_fill())
        A(qwr[0][2]); A(qwr[1][2])
        A('s_waitcnt vmcnt(0) lgkmcnt(0)')
        wait_flags(A, t0, t3, '1', 4)
        A('s_barrier')
        L, M, emit = gemm(base_fill(), stage + [probe[0], ('vm', 'pr', probe[1])], dend)
        q_end(M, ['pr'])
        A('.p2align 6')
        A.label('L_q_loop')
        A('s_cbranch_vccz L_q_go')
        if opt.get('prof'):
            A('s_bitset1_b64 s[98:99], s%d' % sSeg)
        poll_data(A, probe, [vFv, vFv], t0, opt.get('qsl', 4))
        A.label('L_q_go')
        if opt.get('prof'):
            A('s_memrealtime s[96:97]')
            A('s_mov_b32 m0, s%d' % sSeg)
            A('s_waitcnt lgkmcnt(0)')
            A('v_writelane_b32 v251, s96, m0')
        fill = base_fill()
        fill['head'] = [('vm', 'm', o) for o in ld_m]
        for i in range(8):
            fill.setdefault((i, 2), []).append(reads[2 * i])
            fill.setdefault((i, 3), []).append(reads[2 * i + 1])
        fill.setdefault((dend, 0), []).extend(['; stage', stage[0]])
        for i in range(4):
            fill.setdefault((dend + i, 1), []).append(stage[2 + i])
        pp_ = opt.get('qpp', 2)
        fill.setdefault((dend + pp_, 2), []).append(probe[0])
        fill.setdefault((dend + pp_, 3), []).append(('vm', 'pr', probe[1]))
        fill.setdefault((dend + 4, 1), []).extend([stage[6]] + xt)
        fill.setdefault((dend + max(5, pp_ + 1), 3), []).append(('vm', 'fl', flag_st))
        fill.setdefault((dend + 5, 1), []).append(qwr[0])
        fill.setdefault((dend + 6, 1), []).append(qwr[1])
        p1, p2, p3 = attention('')
        adv = ['s_add_u32 s%d, s%d, 0x%x' % (n_, n_, SEG) for n_ in (sKm, sVm)]
        mid = [('wl', 'vt'), ('wv', 'old'), 'v_mov_b32 v%d, s%d' % (t3, sSeg), 's_barrier']
        k1 = p2.index('L_q_ok:') + 1
        L, M, emit = gemm(fill, [('wl', 'k')] + p1 + p2[:k1] + adv + mid + p2[k1:] + p3, opt.get('qst', 9), 0)
        A('s_add_u32 s%d, s%d, 1' % (sSeg, sSeg))
        A('s_cmp_lt_u32 s%d, 62' % sSeg)
        q_end(M, ['pr', 'kv'])
        body = A.lines[A.lines.index('L_q_go:'):]
        assert body.index('    s_barrier') < body.index('    ; stage')
        A('s_cbranch_scc1 L_q_loop')
        plain = lambda ops: [A(o[2] if isinstance(o, tuple) else o) for o in ops]
        for tag in 'yz':
            p1, p2, p3 = attention(tag)
            if tag == 'y':
                A('s_cbranch_vccz L_q_go2')
                poll_data(A, probe, [vFv, vFv], t0, 1)
                A.label('L_q_go2')
                plain(ld_m)
            else:
                plain(probe)
            for i, o in enumerate(reads):
                A(o[2])
                if i == 11:
                    A('s_waitcnt lgkmcnt(0)')
            plain(p1)
            A('v_mov_b32 v%d, %d' % (t3, 62 if tag == 'y' else 63))
            A('s_waitcnt vmcnt(0) lgkmcnt(0)')
            A('s_barrier')
            if tag == 'z':
                A('v_cmp_eq_u32 vcc, -1, v%d' % vFv)
                A('s_cbranch_vccz L_q_go3')
                A(flag_st)
                poll_data(A, probe, [vFv, vFv], t0, 0)
                A.label('L_q_go3')
                plain(ld_m)
                A(flag_st)
                A('s_waitcnt vmcnt(1)')
            k1 = p2.index('L_q_ok%s:' % tag) + 1
            plain(p2[1:k1])
            if tag == 'y':
                plain(qwr + stage + adv + [flag_st])
                for n_ in (sKm, sVm):
                    A('s_xor_b32 s%d, s%d, 0x2000' % (n_, n_))
            plain(p2[k1:] + p3)
            if tag == 'y':
                A('s_waitcnt vmcnt(3) lgkmcnt(0)')
                A('s_barrier')
        A('s_branch L_q_fin')
        for tag in ('', 'y', 'z'):
            A.label('L_q_bad' + tag)
            poll_data(A, ld_m, mregs, t0, 1)
            A('s_branch L_q_ok' + tag)
        A.label('L_q_fin')
        if opt.get('prof'):
            A('v_writelane_b32 v251, s98, 62')
            A('v_writelane_b32 v251, s99, 63')
            A('s_lshl_b32 s%d, s%d, 2' % (sA, sH))
            A('s_add_u32 s%d, s%d, s%d' % (sA, sA, sW))
            A('s_lshl_b32 s%d, s%d, 8' % (sA, sA))
            A('s_add_u32 s%d, s%d, 0x%x' % (sA, sA, PROF + 4 * MB))
            A('v_lshlrev_b32 v%d, 2, v0' % t0)
            A('buffer_store_dword v251, v%d, %s, s%d offen' % (t0, S4(WS), sA))
    A('s_waitcnt vmcnt(0)')
    A('v_mov_b32 v%d, 64' % t3)
    A('s_barrier')
    A(flag_st)
    tstamp(A, opt, 2, t0, t1, sA)
    if kind == 'q' or opt.get('chainonly'):
        A('s_endpgm')
    else:
        A('s_branch L_o_join2')


def vote(A, sH, t0, t1, t2, sA, sB, sBase, sL0, sL1):
    A('s_cmp_lg_u32 s%d, 0' % sW)
    A('s_cbranch_scc1 L_vote_done')
    A('v_lshlrev_b32 v%d, 2, v0' % t1)
    A('v_mov_b32 v%d, 0' % t2)
    A('s_mul_i32 s%d, s%d, 0x600000' % (sBase, sH))
    A('s_add_u32 s%d, s%d, 0x1f8000' % (sBase, sBase))
    A('s_mov_b32 s%d, -1' % sL0)
    A('s_mov_b32 s%d, -1' % sL1)
    for smp in range(3):
        for par in range(2):
            A('s_memtime s[96:97]')
            A('s_waitcnt vmcnt(0) lgkmcnt(0)')
            A('buffer_store_dword v%d, v%d, %s, s%d offen offset:%d sc1' % (t2, t1, S4(WS), sBase, smp * 256))
            A('s_waitcnt vmcnt(0)')
            A('s_memtime s[98:99]')
            A('s_xor_b32 s%d, s%d, 0x2000' % (sBase, sBase))
            A('s_waitcnt lgkmcnt(0)')
            A('s_sub_u32 s98, s98, s96')
            A('s_min_u32 s%d, s%d, s98' % ((sL0, sL1)[par], (sL0, sL1)[par]))
    A('s_cmp_lt_u32 s%d, s%d' % (sL1, sL0))
    A('s_cselect_b32 s%d, 1, 0' % sA)
    A('s_lshr_b32 s%d, s%d, 2' % (sB, sX))
    A('s_xor_b32 s%d, s%d, s%d' % (sA, sA, sB))
    A('s_bfe_u32 s%d, s%d, 0x10015' % (sB, sBase))
    A('s_xor_b32 s%d, s%d, s%d' % (sA, sA, sB))
    A('s_add_u32 s%d, s%d, 0x10000' % (sA, sA))
    A('v_mov_b32 v%d, s%d' % (t0, sA))
    A('s_mov_b64 exec, 1')
    A('buffer_atomic_add v%d, v%d, %s, 0 offen offset:%d sc1' % (t0, t2, S4(DBG), VOTE))
    A('s_mov_b64 exec, -1')
    A.label('L_vote_done')
    A('s_barrier')
```

```python
import sys, re
from common import *
from workers import proj
from orole import orole


def prologue(A, opt):
    A('s_cmp_ge_u32 s2, 256')
    A('s_cbranch_scc1 L_end0')
    A('s_load_dwordx16 s[64:79], s[0:1], 0')
    A('s_load_dwordx16 s[80:95], s[0:1], 64')
    A('s_getreg_b32 s%d, hwreg(HW_REG_XCC_ID)' % sX)
    A('s_and_b32 s%d, s%d, 7' % (sX, sX))
    A('v_lshrrev_b32 v1, 6, v0')
    A('v_and_b32 v0, 63, v0')
    A('v_readfirstlane_b32 s%d, v1' % sW)
    A('s_mov_b32 s%d, %d' % (sTO, TIMEOUT))
    if opt.get('cw', 0):
        A('s_lshr_b32 s36, s2, 3')
        A('s_lshl_b32 s37, s%d, 5' % sW)
        A('s_add_u32 s36, s36, s37')
        touch_code(A, 'L_code0', 'L_code1', 36, SRD_E, 2)
        A.label('L_code0')
    A('s_waitcnt lgkmcnt(0)')
    srd(A, WS, P_WS, WS_BYTES)
    srd(A, DBG, P_DBG, 256)
    if opt.get('prof') or opt.get('diag'):
        A('s_memrealtime s[76:77]')
    for i in range(4):
        A('v_mov_b32 v%d, -1' % (4 + i))
    A('s_lshl_b32 s36, s2, 2')
    A('s_add_u32 s36, s36, s%d' % sW)
    A('s_lshl_b32 s37, s36, 10')
    A('s_add_u32 s37, s37, 0x%x' % INIT1)
    A('s_bfe_u32 s38, s36, 0x50003')
    A('s_mul_i32 s38, s38, 0x%x' % ROW)
    A('s_bfe_u32 s39, s36, 0x20001')
    A('s_lshl_b32 s39, s39, 12')
    A('s_add_u32 s38, s38, s39')
    A('s_and_b32 s39, s36, 1')
    A('s_lshl_b32 s39, s39, 10')
    A('s_add_u32 s38, s38, s39')
    A('s_add_u32 s38, s38, 0x%x' % PART)
    A('s_cmp_ge_u32 s36, 768')
    A('s_cselect_b32 s37, s38, s37')
    A('s_lshl_b32 s36, s36, 8')
    A('s_add_u32 s36, s36, 0x%x' % INIT2)
    A('v_lshlrev_b32 v2, 4, v0')
    A('v_lshlrev_b32 v3, 2, v0')
    A('buffer_store_dwordx4 v[4:7], v2, %s, s37 offen sc1' % S4(WS))
    A('buffer_store_dword v4, v3, %s, s36 offen sc1' % S4(WS))
    wu = opt.get('wu', 1)
    wu = 2 * wu
    npre = opt.get('wupre', 0)

    def warm(lo, hi):
        for o in ['buffer_load_dword v252, v8, %s, s38 offen' % S4(SRD_A), 'buffer_load_dword v252, v9, %s, s38 offen offset:0x780' % S4(SRD_A)][lo:hi]:
            A(o)
    if wu:
        A('s_lshr_b32 s38, s2, 3')
        A('s_lshl_b32 s38, s38, 2')
        A('s_add_u32 s38, s38, s%d' % sW)
        A('s_lshr_b32 s39, s38, 5')
        A('s_and_b32 s38, s38, 31')
        A('s_and_b32 s42, s%d, 3' % sX)
        A('s_mov_b64 s[40:41], s[%d:%d]' % (P_WK, P_WK + 1))
        for m_, p_ in ((1, P_WV), (2, P_WQ), (3, P_WO)):
            A('s_cmp_eq_u32 s39, %d' % m_)
            A('s_cselect_b64 s[40:41], s[%d:%d], s[40:41]' % (p_, p_ + 1))
        A('s_cselect_b32 s43, 11, 13')
        A('s_cselect_b32 s44, 21, 11')
        A('s_lshl_b32 s42, s42, s44')
        A('s_add_u32 s44, s43, 5')
        A('s_lshl_b32 s38, s38, s44')
        A('s_add_u32 s38, s38, s42')
        A('v_lshrrev_b32 v8, 1, v0')
        A('v_lshlrev_b32 v8, s43, v8')
        A('v_and_b32 v9, 1, v0')
        A('v_lshl_add_u32 v8, v9, 10, v8')
        A('s_and_b32 s42, s%d, 3' % sX)
        A('s_cmp_eq_u32 s42, 3')
        A('s_cselect_b32 s42, 0, 0x%x' % OOB)
        A('v_lshlrev_b32 v9, 29, v9')
        A('v_add3_u32 v9, v8, v9, s42')
        A('v_add_u32 v8, 384, v8')
        A('s_mov_b32 s43, 0x%x' % (8 * MB))
        A('s_lshr_b32 s42, s%d, 2' % sX)
        A('s_lshr_b32 s39, s39, 1')
        A('s_and_b32 s39, s39, s42')
        A('s_cbranch_scc0 L_wu')
        A('s_mov_b64 s[40:41], s[%d:%d]' % (P_X, P_X + 1))
        A('s_mov_b32 s43, 0x%x' % (4 * MB))
        A('s_bfe_u32 s38, s2, 0x40003')
        A('s_lshl_b32 s38, s38, 2')
        A('s_add_u32 s38, s38, s%d' % sW)
        A('s_lshl_b32 s38, s38, 13')
        A('v_lshlrev_b32 v8, 7, v0')
        A('v_mov_b32 v9, 0x%x' % OOB)
        A.label('L_wu')
        srd(A, SRD_A, 40, 0)
        A('s_mov_b32 s%d, s43' % (SRD_A + 2))
        warm(0, npre)
    A('s_waitcnt vmcnt(%d)' % npre)
    A('s_barrier')
    A('v_mov_b32 v12, 0')
    A('s_cmp_eq_u32 s%d, 0' % sW)
    A('s_cbranch_scc1 L_tk0')
    if wu:
        A('s_nop 7')
        warm(npre, wu)
    A('s_branch L_tk')
    A.label('L_tk0')
    A('s_lshl_b32 s36, s%d, 5' % sX)
    if opt.get('fakex'):
        A('s_cmp_eq_u32 s%d, 3' % sX)
        A('s_cbranch_scc0 L_fk')
        A('v_lshlrev_b32 v3, 5, v0')
        A.label('L_fk1')
        A('buffer_load_dword v1, v3, %s, 0 offen sc1' % S4(DBG))
        A('s_waitcnt vmcnt(0)')
        A('v_readlane_b32 s37, v1, 2')
        A('s_cmp_lt_u32 s37, 32')
        A('s_cbranch_scc1 L_fk1')
        A('s_bitcmp1_b32 s2, 3')
        A('s_cbranch_scc1 L_fk2')
        A('s_bitcmp1_b32 s2, 4')
        A('s_cbranch_scc0 L_fk')
        A.label('L_fk2')
        A('s_mov_b32 s36, 0x40')
        A.label('L_fk')
    A('v_mov_b32 v1, 1')
    A('s_mov_b64 exec, 1')
    A('buffer_atomic_add v1, v12, %s, s36 offen sc0 sc1' % S4(DBG))
    A('s_mov_b64 exec, -1')
    if wu:
        warm(npre, wu)
    A('s_waitcnt vmcnt(%d)' % (wu - npre))
    A('v_readfirstlane_b32 s37, v1')
    A('s_add_u32 s36, s36, s37')
    A('s_cmp_lt_u32 s37, 32')
    A('s_cbranch_scc1 L_tk_w')
    A('v_mov_b32 v1, 1')
    A('s_mov_b64 exec, 1')
    A('buffer_atomic_add v1, v12, %s, 0 offen offset:8 sc0 sc1' % S4(DBG))
    A('s_mov_b64 exec, -1')
    A('s_waitcnt vmcnt(0)')
    A('v_readfirstlane_b32 s37, v1')
    A('v_lshlrev_b32 v3, 5, v0')
    A.label('L_ov')
    A('buffer_load_dword v1, v3, %s, 0 offen sc1' % S4(DBG))
    A('s_waitcnt vmcnt(0)')
    sum8(A, 1, 38, 39)
    A('s_cmp_ge_u32 s38, 256')
    A('s_cbranch_scc1 L_ov1')
    A('s_sleep 4')
    timeout_stub(A, 'L_ov')
    A.label('L_ov1')
    for x in range(8):
        A('v_readlane_b32 s38, v1, %d' % x)
        A('s_min_u32 s38, s38, 32')
        A('s_add_u32 s36, s38, s37')
        A('s_cmp_lt_u32 s36, 32')
        A('s_cselect_b32 s39, 1, 0')
        A('s_sub_u32 s37, s36, 32')
        A('s_add_u32 s36, s36, %d' % (32 * x))
        A('s_cmp_eq_u32 s39, 1')
        A('s_cbranch_scc1 L_tk_w')
    A('s_mov_b32 s36, 256')
    A.label('L_tk_w')
    A('v_mov_b32 v1, s36')
    A('ds_write_b32 v12, v1')
    A('s_waitcnt lgkmcnt(0)')
    A.label('L_tk')
    A('s_barrier')
    A('ds_read_b32 v1, v12')
    A('s_waitcnt lgkmcnt(0)')
    A('v_readfirstlane_b32 s%d, v1' % sR)
    A('s_barrier')
    A('s_cmp_ge_u32 s%d, 256' % sR)
    A('s_cbranch_scc1 L_end0')
    if opt.get('prof'):
        A('s_mov_b32 s78, s76')
        tstamp(A, opt, 8, 1, 2, 36, now=False)
        tstamp(A, opt, 0, 1, 2, 36)
    A('s_lshr_b32 s%d, s%d, 4' % (sG, sR))
    A('s_and_b32 s%d, s%d, 15' % (sC, sR))
    A('s_cmp_lt_u32 s%d, 128' % sR)
    A('s_cbranch_scc1 L_chain')
    A('s_bfe_u32 s%d, s%d, 0x20005' % (sG, sR))
    A('s_lshl_b32 s%d, s%d, 3' % (sG, sG))
    A('s_and_b32 s36, s%d, 7' % sR)
    A('s_add_u32 s36, s36, s%d' % sG)
    A('s_bfe_u32 s%d, s%d, 0x20003' % (sC, sR))
    A('s_cmp_eq_u32 s%d, 0' % sC)
    A('s_cbranch_scc1 L_k')
    A('s_cmp_eq_u32 s%d, 1' % sC)
    A('s_cbranch_scc1 L_v')
    A('s_cmp_eq_u32 s%d, 2' % sC)
    A('s_cbranch_scc1 L_q')
    A('s_branch L_o')
    A.label('L_end0')
    A('s_endpgm')


def chain(A, opt):
    prof = opt.get('prof', 0) == 1
    lite = opt.get('prof', 0) >= 1
    V = Alloc(1, 252)
    vL16, vL4, vQst, vVst, vKst, vIdx, vSent = [V(n) for n in 'l16 l4 qst vst kst idx sent'.split()]
    vW1q, vW1k, vR1, vR1v = V('w1q'), V('w1k'), V('r1'), V('r1v')
    vW2, vR2, vW2l, vR2l = V('w2'), V('r2'), V('w2l'), V('r2l')
    vT0, vT1, vT2, vT3 = V('t0'), V('t1'), V('t2'), V('t3')
    vQK, vVv, vBias = V('qk'), V('vv'), V('bias')
    vFa, vFv = V('fa'), V('fv')
    vM = V('m', 16, 4)
    vA = V('acc', 24, 4)
    vQ = V('q', 16, 4)
    vKm, vVm = V('km', 8, 4), V('vm', 8, 4)
    vKx, vVx = V('kx', 32, 4), V('vx', 32, 4)
    vS = V('s', 8, 4)
    MM = V('mm', 4, 4)
    vP, vPs = V('p', 4, 4), V('ps', 4, 4)
    vPm, vPms = V('pm', 2), V('pms', 2)
    vOne, vSel, vHalf = V('one', 4, 4), V('sel', 4, 4), V('half', 2)
    vVOx = V('vox', 16, 4)
    vT = V('tacc', 32, 4)
    vVOm = vT + 16
    vF = vT + 16
    vR = vVm
    vO = vA
    vLs = vA + 8
    vR2d = vA + 12
    vPt = vS
    S = Alloc(36, 62)
    sStep, sMemR, sMemW, sQkvW, sQkvR, sQkvR2 = S('step'), S('memr'), S('memw'), S('qkvw'), S('qkvr'), S('qkvr2')
    sKx, sKx2, sVx, sVx2, sPartR, sPartA, sKvm = [S(n) for n in 'kx kx2 vx vx2 pr pa kvm'.split()]
    sA, sB, sCc, sD = S('a'), S('b'), S('cc'), S('d')
    sScale, sFo, sPf = S('scale'), S('fo'), S('pf')
    sN1, sN2, sN3 = 64, 65, 78
    sLo = 0
    sKn = S('kn')
    sSide = 3
    sSc2 = 2
    assert vT0 % 2 == 0
    LDSL = 20480
    LDS1, LDS2, LDSW = 0, 12288, 32768
    W1 = lambda t, m, tt: (t * 3 + m) * 16 + tt * 8
    WO = lambda n, j: 192 + n * 16 + j * 4

    A.label('L_chain')
    cap0 = len(A.lines)
    A('s_bitcmp1_b32 s%d, 0' % sC)
    A('s_cselect_b64 s[2:3], s[%d:%d], s[%d:%d]' % (P_WK, P_WK + 1, P_WQ, P_WQ + 1))
    srd(A, SRD_A, 2, 8 * MB)
    srd(A, SRD_C, P_WV, 8 * MB)
    srd(A, SRD_D, P_WO, 8 * MB)
    srd(A, SRD_E, P_MEM0, 16384)
    if opt.get('iw', 0):
        A('s_getpc_b64 s[2:3]')
        A.label('L_pc')
        A('s_add_u32 s2, s2, L_loop-L_pc')
        A('s_addc_u32 s3, s3, 0')
        srd(A, SRD_B, 2, 0)
        A('s_mov_b32 s%d, L_loop_end-L_loop' % (SRD_B + 2))
        A('s_lshl_b32 s%d, s%d, 13' % (sA, sW))
        A('v_lshlrev_b32 v%d, 7, v0' % vT0)
        A('buffer_load_dword v252, v%d, %s, s%d offen' % (vT0, S4(SRD_B), sA))
    vWa, vWb, vWc, vWd, vWe = vA, vA + 1, vA + 2, vA + 3, vA + 4
    nt = ' nt' if opt.get('nt', 31) & 1 else ''
    bits(A, vWd, [(3, 3, 11), (0, 3, 4)], vT0)
    A('s_lshl_b32 s%d, s%d, 2' % (sA, sG))
    A('s_add_u32 s%d, s%d, s%d' % (sA, sA, sW))
    A('s_lshl_b32 s%d, s%d, 18' % (sA, sA))
    A('s_lshl_b32 s%d, s%d, 7' % (sB, sC))
    A('s_add_u32 s%d, s%d, s%d' % (sA, sA, sB))
    if opt.get('wox'):
        A('s_xor_b32 s%d, s%d, %d' % (sA, sA, opt['wox']))
    for k in range(16):
        A('s_add_u32 s%d, s%d, 0x%x' % (sB, sA, k * 8 * 2048))
        A('buffer_load_dwordx4 %s, v%d, %s, s%d offen%s' % (a(192 + 4 * k, 4), vWd, S4(SRD_D), sB, (nt, '', ' sc1')[opt.get('opl', 0)]))
    bits(A, vWa, [(2, 4, 13), (0, 2, 4)], vT0)
    bits(A, vWe, [(3, 3, 13), (0, 3, 4)], vT0)
    sW1v, sW1q = sFo, sKn
    A('s_lshl_b32 s%d, s%d, 21' % (sA, sW))
    A('s_lshl_b32 s%d, s%d, 10' % (sB, sG))
    A('s_add_u32 s%d, s%d, s%d' % (sA, sA, sB))
    A('s_lshl_b32 s%d, s%d, 6' % (sB, sC))
    A('s_add_u32 s%d, s%d, s%d' % (sW1v, sA, sB))
    A('s_and_b32 s%d, s%d, 0xffffff80' % (sW1q, sW1v))

    def w1q(t):
        for i in range(8):
            A('s_add_u32 s%d, s%d, 0x%x' % (sB, sW1q, (64 * t + 8 * i) * 8192))
            A('buffer_load_dwordx4 %s, v%d, %s, s%d offen%s' % (a(W1(t, 0, 0) + 4 * i, 4), vWe, S4(SRD_A), sB, nt))

    def w1v(t):
        for i in range(4):
            A('s_add_u32 s%d, s%d, 0x%x' % (sB, sW1v, (64 * t + 16 * i) * 8192))
            A('buffer_load_dwordx4 %s, v%d, %s, s%d offen%s' % (a(W1(t, 2, 0) + 4 * i, 4), vWa, S4(SRD_C), sB, (nt, '', ' sc1')[opt.get('vpl', 0)]))
    A('v_lshlrev_b32 v%d, 4, v0' % vL16)
    A('v_lshlrev_b32 v%d, 2, v0' % vL4)
    A('v_mov_b32 v%d, -1' % vSent)
    A('v_and_b32 v%d, 8, v0' % vT0)
    A('v_cmp_eq_u32 vcc, 0, v%d' % vT0)
    A('v_mov_b32 v%d, 0xeeee' % vT1)
    A('v_mov_b32 v%d, 0x4444' % vT2)
    A('v_cndmask_b32 v%d, v%d, v%d, vcc' % (vIdx, vT1, vT2))
    A('s_mov_b32 s%d, 0' % sStep)
    A('s_lshl_b32 s%d, s%d, 15' % (sA, sG))
    A('s_add_u32 s%d, s%d, 0x%x' % (sA, sA, MEMR))
    A('s_lshl_b32 s%d, s%d, 12' % (sB, sW))
    A('s_add_u32 s%d, s%d, s%d' % (sMemR, sA, sB))
    A('s_lshl_b32 s%d, s%d, 10' % (sB, sC))
    A('s_add_u32 s%d, s%d, s%d' % (sA, sA, sB))
    A('s_lshl_b32 s%d, s%d, 8' % (sB, sW))
    A('s_add_u32 s%d, s%d, s%d' % (sMemW, sA, sB))
    A('s_lshl_b32 s%d, s%d, 16' % (sA, sG))
    A('s_add_u32 s%d, s%d, 0x%x' % (sQkvW, sA, QKVR))
    A('s_mul_i32 s%d, s%d, 6144' % (sB, sW))
    A('s_add_u32 s%d, s%d, s%d' % (sQkvR, sQkvW, sB))
    A('s_add_u32 s%d, s%d, 4096' % (sQkvR2, sQkvR))
    A('s_lshr_b32 s%d, s%d, 2' % (sB, sC))
    A('s_mul_i32 s%d, s%d, 6144' % (sB, sB))
    A('s_add_u32 s%d, s%d, s%d' % (sQkvW, sQkvW, sB))
    A('s_mov_b32 s%d, %s' % (sScale, f32(128 ** -0.5 * LOG2E)))
    A('s_and_b32 s%d, s%d, 1' % (sA, sW))
    A('s_lshl_b32 s%d, s%d, 1' % (sA, sA))
    A('v_lshrrev_b32 v%d, 5, v0' % vT0)
    A('v_add_u32 v%d, s%d, v%d' % (vT0, sA, vT0))
    A('v_and_b32 v%d, 31, v0' % vT1)
    A('v_lshlrev_b32 v%d, 2, v%d' % (vT1, vT1))
    A('s_bfe_u32 s%d, s%d, 0x10001' % (sB, sC))
    A('s_lshl_b32 s%d, s%d, 10' % (sB, sB))
    A('s_lshr_b32 s%d, s%d, 1' % (sA, sW))
    A('s_lshl_b32 s%d, s%d, 7' % (sCc, sA))
    A('s_add_u32 s%d, s%d, s%d' % (sCc, sCc, sB))
    A('s_lshl_b32 s%d, s%d, 9' % (sA, sA))
    A('s_add_u32 s%d, s%d, s%d' % (sA, sA, sB))
    A('s_add_u32 s%d, s%d, 2048' % (sA, sA))
    A('v_lshl_add_u32 v%d, v%d, 8, v%d' % (vT2, vT0, vT1))
    A('v_add_u32 v%d, s%d, v%d' % (vT2, sCc, vT2))
    A('v_lshl_add_u32 v%d, v%d, 7, v%d' % (vT1, vT0, vT1))
    A('v_add_u32 v%d, s%d, v%d' % (vT3, sA, vT1))
    A('s_bitcmp1_b32 s%d, 0' % sC)
    A('s_cselect_b64 %s, -1, 0' % s(sLo, 2))
    A('s_cselect_b32 s%d, 0, 0x%x' % (sA, OOB))
    A('v_cndmask_b32 v%d, v%d, v%d, %s' % (vQst, vT2, vT3, s(sLo, 2)))
    A('v_add_u32 v%d, s%d, v%d' % (vKst, sA, vT3))
    A('s_and_b32 s%d, s%d, 1' % (sA, sC))
    A('s_lshl_b32 s%d, s%d, 9' % (sA, sA))
    A('s_add_u32 s%d, s%d, s%d' % (sA, sA, sB))
    A('s_add_u32 s%d, s%d, 4096' % (sA, sA))
    A('s_cmp_lt_u32 s%d, 2' % sW)
    A('s_cselect_b32 s%d, s%d, 0x%x' % (sA, sA, OOB))
    A('v_add_u32 v%d, s%d, v%d' % (vVst, sA, vT1))
    A('v_bfe_u32 v%d, v0, 3, 2' % vT1)
    A('v_xor_b32 v%d, v%d, v%d' % (vT1, vT1, vT0))
    A('v_lshlrev_b32 v%d, 5, v%d' % (vT1, vT1))
    A('v_lshl_add_u32 v%d, v%d, 7, v%d' % (vT1, vT0, vT1))
    A('v_and_b32 v%d, 3, v0' % vT2)
    A('v_lshl_add_u32 v%d, v%d, 3, v%d' % (vT1, vT2, vT1))
    A('v_bfe_u32 v%d, v0, 2, 1' % vT2)
    A('v_lshl_add_u32 v%d, v%d, 2, v%d' % (vT1, vT2, vT1))
    A('v_add_u32 v%d, 2048, v%d' % (vR1v, vT1))
    A('s_lshr_b32 s%d, s%d, 1' % (sA, sW))
    A('s_lshl_b32 s%d, s%d, 10' % (sA, sA))
    A('v_add_u32 v%d, s%d, v%d' % (vR1, sA, vT1))
    A('v_bfe_u32 v%d, v0, 4, 1' % vT0)
    A('v_lshrrev_b32 v%d, 5, v0' % vT1)
    A('v_lshl_add_u32 v%d, v%d, 1, v%d' % (vT0, vT0, vT1))
    A('s_mul_i32 s%d, s%d, 3072' % (sA, sW))
    for (dst, kind) in ((vW1q, 0), (vW1k, 1)):
        if kind == 0:
            A('v_bfe_u32 v%d, v0, 2, 2' % vT1)
            A('v_and_b32 v%d, 3, v0' % vT3)
        else:
            A('v_bfe_u32 v%d, v0, 3, 1' % vT1)
            A('v_and_b32 v%d, 1, v0' % vT2)
            A('v_lshl_add_u32 v%d, v%d, 1, v%d' % (vT1, vT1, vT2))
            A('v_bfe_u32 v%d, v0, 1, 2' % vT3)
        A('v_xor_b32 v%d, v%d, v%d' % (vT2, vT1, vT0))
        A('v_lshlrev_b32 v%d, 5, v%d' % (vT2, vT2))
        A('v_lshl_add_u32 v%d, v%d, 7, v%d' % (vT2, vT1, vT2))
        A('v_lshl_add_u32 v%d, v%d, 3, v%d' % (vT2, vT3, vT2))
        A('v_add_u32 v%d, s%d, v%d' % (dst, sA, vT2))
    A('v_cndmask_b32 v%d, v%d, v%d, %s' % (vW1q, vW1q, vW1k, s(sLo, 2)))
    for i in range(4):
        A('v_mov_b32 v%d, 0x3f803f80' % (vOne + i))
        A('v_mov_b32 v%d, 0' % (vPs + i))
    for i in range(2):
        A('v_mov_b32 v%d, 0x3f003f00' % (vHalf + i))
        A('v_mov_b32 v%d, 0' % (vPms + i))
    A('v_and_b32 v%d, 8, v0' % vT0)
    A('v_cmp_eq_u32 vcc, 0, v%d' % vT0)
    A('v_mov_b32 v%d, 0x7f800000' % vT1)
    A('v_mov_b32 v%d, 0xff800000' % vT2)
    A('v_cndmask_b32 v%d, v%d, v%d, vcc' % (vBias, vT1, vT2))
    A('v_and_b32 v%d, 3, v0' % vT0)
    A('v_lshlrev_b32 v%d, 4, v%d' % (vT1, vT0))
    A('v_mov_b32 v%d, 0x3f80' % vT2)
    A('v_lshlrev_b32 v%d, v%d, v%d' % (vT1, vT1, vT2))
    A('v_cmp_gt_u32 vcc, 2, v%d' % vT0)
    A('v_cndmask_b32 v%d, 0, v%d, vcc' % (vT1, vT1))
    A('v_bfe_u32 v%d, v0, 2, 2' % vT0)
    for i in range(4):
        A('v_cmp_eq_u32 vcc, %d, v%d' % (i, vT0))
        A('v_cndmask_b32 v%d, 0, v%d, vcc' % (vSel + i, vT1))
    A('s_lshl_b32 s%d, s%d, 2' % (sA, sW))
    A('s_add_u32 s%d, s%d, %d' % (sA, sA, LDSL))
    A('v_add_u32 v%d, s%d, v%d' % (vW2l, sA, vL16))
    A('v_and_b32 v%d, 1, v0' % vT0)
    A('v_lshrrev_b32 v%d, 4, v0' % vT1)
    A('v_lshl_add_u32 v%d, v%d, 2, v%d' % (vT0, vT0, vT1))
    A('v_lshlrev_b32 v%d, 4, v%d' % (vT1, vT0))
    A('v_add_u32 v%d, %d, v%d' % (vR2l, LDSL, vT1))
    A('v_and_b32 v%d, 2, v0' % vT1)
    A('v_xor_b32 v%d, v%d, v%d' % (vT0, vT0, vT1))
    A('v_lshlrev_b32 v%d, 4, v%d' % (vT0, vT0))
    A('v_lshl_add_u32 v%d, v%d, 7, v%d' % (vT0, vT1, vT0))
    A('v_bfe_u32 v%d, v0, 3, 1' % vT1)
    A('v_lshl_add_u32 v%d, v%d, 7, v%d' % (vT0, vT1, vT0))
    A('v_bfe_u32 v%d, v0, 2, 1' % vT1)
    A('v_lshl_add_u32 v%d, v%d, 3, v%d' % (vT0, vT1, vT0))
    A('s_lshl_b32 s%d, s%d, 9' % (sA, sW))
    A('s_add_u32 s%d, s%d, %d' % (sA, sA, LDS2))
    A('v_add_u32 v%d, s%d, v%d' % (vR2, sA, vT0))
    A('v_bfe_u32 v%d, v0, 3, 1' % vT0)
    A('v_lshlrev_b32 v%d, 9, v%d' % (vT0, vT0))
    A('v_lshrrev_b32 v%d, 4, v0' % vT1)
    A('v_lshl_add_u32 v%d, v%d, 7, v%d' % (vT0, vT1, vT0))
    A('v_and_b32 v%d, 2, v%d' % (vT1, vT1))
    A('v_and_b32 v%d, 7, v0' % vT2)
    A('v_xor_b32 v%d, v%d, v%d' % (vT1, vT1, vT2))
    A('v_lshl_add_u32 v%d, v%d, 4, v%d' % (vT0, vT1, vT0))
    A('s_lshl_b32 s%d, s%d, 11' % (sA, sW))
    A('s_add_u32 s%d, s%d, %d' % (sA, sA, LDS2))
    A('v_add_u32 v%d, s%d, v%d' % (vW2, sA, vT0))

    if opt.get('iw', 0):
        A('s_barrier')
        for w in range(3):
            A('s_cmp_eq_u32 s%d, %d' % (sW, w))
            A('s_cbranch_scc1 L_hk%d' % w)
        A('s_branch L_hk3')
        A.label('L_hkret')
    def mem0_loads():
        bits(A, vT2, [(0, 3, 11), (3, 3, 4)], vT0)
        A('s_lshl_b32 s%d, s%d, 9' % (sA, sW))
        for t in range(4):
            A('buffer_load_dwordx4 %s, v%d, %s, s%d offen offset:%d' % (v(vM + 4 * t, 4), vT2, S4(SRD_E), sA, t * 128))
    A('s_lshl_b32 s%d, s%d, 14' % (sCc, sW))
    A('s_add_u32 s%d, s%d, %d' % (sCc, sCc, LDSW))
    A('v_add_u32 v%d, s%d, v%d' % (vWb, sCc, vL16))
    bits(A, vWc, [(2, 1, 11), (4, 2, 9), (3, 1, 7), (0, 2, 3)], vT0, 's%d' % sCc)
    w1q(0); w1v(0)
    A('s_waitcnt vmcnt(12)')
    for k in range(16):
        A('ds_write_b128 v%d, %s offset:%d' % (vWb, a(192 + 4 * k, 4), k * 1024))
        if k == 7:
            A('s_waitcnt lgkmcnt(0)')
    A('s_waitcnt lgkmcnt(0)')
    for n in range(4):
        for j in range(4):
            for pp in range(2):
                A('ds_read_b64_tr_b16 %s, v%d offset:%d' % (a(WO(n, j) + 2 * pp, 2), vWc, (32 * j + 2 * pp) * 128 + n * 32))
        A('s_waitcnt lgkmcnt(0)')
    if opt.get('prof'):
        A('s_memrealtime s[98:99]')
    bits(A, vWc, [(5, 1, 11), (4, 1, 9), (3, 1, 10), (2, 1, 7), (0, 2, 3)], vT0, 's%d' % sCc)
    bits(A, vWd, [(5, 1, 10), (4, 1, 8), (3, 1, 9), (2, 1, 6), (0, 2, 3)], vT0, 's%d' % sCc)
    for t in range(4):
        if t < 3:
            w1q(t + 1)
        A('s_waitcnt vmcnt(%d)' % (12 if t < 3 else 4))
        for i in range(8):
            A('ds_write_b128 v%d, %s offset:%d' % (vWb, a(W1(t, 0, 0) + 4 * i, 4), i * 1024))
        for m in range(2):
            A('s_waitcnt lgkmcnt(4)')
            for tt in range(2):
                for pp in range(4):
                    A('ds_read_b64_tr_b16 %s, v%d offset:%d' % (a(W1(t, m, tt) + 2 * pp, 2), vWc, (32 * (pp >> 1) + 2 * (pp & 1)) * 128 + m * 64 + tt * 32))
        if t < 3:
            w1v(t + 1)
        else:
            mem0_loads()
            init_load(A, vT0, vT1)
        A('s_waitcnt vmcnt(%d) lgkmcnt(0)' % (12 if t < 3 else 5))
        for i in range(4):
            A('ds_write_b128 v%d, %s offset:%d' % (vWb, a(W1(t, 2, 0) + 4 * i, 4), 8192 + i * 1024))
        for tt in range(2):
            for pp in range(4):
                A('ds_read_b64_tr_b16 %s, v%d offset:%d' % (a(W1(t, 2, tt) + 2 * pp, 2), vWd, 8192 + (32 * (pp >> 1) + 2 * (pp & 1)) * 64 + tt * 32))
        A('s_waitcnt lgkmcnt(0)')
    def vox(fill=None):
        fill = fill or {}
        k = 0
        for n in range(4):
            for j in range(4):
                for tt in range(2):
                    acc = v(vT + (n * 2 + tt) * 4, 4)
                    if opt.get('xnovox') and fill:
                        A('s_nop 3')
                    else:
                        A('v_mfma_f32_16x16x32_bf16 %s, %s, %s, %s' % (acc, v(vVx + (tt * 4 + j) * 4, 4), a(WO(n, j), 4), acc if j else '0'))
                    for o in fill.get(k, []):
                        A(o)
                    k += 1
                    if n > 0 and j in (1, 2):
                        jj = 2 * (j - 1) + tt
                        b = vT + (n - 1) * 8 + 2 * jj
                        A('v_cvt_pk_bf16_f32 v%d, v%d, v%d' % (vVOx + (n - 1) * 4 + jj, b, b + 1))

    def vox_tail():
        return ['v_cvt_pk_bf16_f32 v%d, v%d, v%d' % (vVOx + 12 + jj, vT + 24 + 2 * jj, vT + 25 + 2 * jj) for jj in range(4)]

    def paced(ops, every=4):
        for i, o in enumerate(ops):
            A(o)
            if i % every == every - 1 and i != len(ops) - 1:
                A('s_nop 0')

    def zeros(base, n, val='0'):
        return ['v_mov_b32 v%d, %s' % (base + i, val) for i in range(n)]

    cap_vm(A, cap0)
    tstamp(A, opt, 1, vT2, vT3, sA)
    if opt.get('prof'):
        A('s_mov_b32 s78, s98')
        tstamp(A, opt, 3, vT2, vT3, sA, now=False)
    wait_init(A, vT0, vT1, sA, sB, True)
    if opt.get('rt', 1):
        bits(A, vT1, [(0, 5, 7), (5, 1, 14)], vT0)
        A('buffer_load_dword v252, v%d, %s, s%d offen sc1' % (vT1, S4(WS), sMemR))
        A('v_lshlrev_b32 v%d, 7, v0' % vT1)
        A('s_xor_b32 s%d, s%d, 0x8000' % (sA, sQkvR))
        A('buffer_load_dword v252, v%d, %s, s%d offen sc1' % (vT1, S4(WS), sQkvR))
        A('buffer_load_dword v252, v%d, %s, s%d offen sc1' % (vT1, S4(WS), sA))
    A('s_lshl_b32 s%d, s%d, 2' % (sA, sG))
    A('s_add_u32 s%d, s%d, s%d' % (sA, sA, sW))
    A('s_lshl_b32 s%d, s%d, 8' % (sCc, sA))
    A('s_add_u32 s%d, s%d, 0x%x' % (sCc, sCc, F_KV))
    near(A, sCc, sB)
    bits(A, vFa, [(0, 1, 7)], vT0, 's%d' % sCc)
    A('s_mul_i32 s%d, s%d, 0x%x' % (sKx, sA, ROW))
    near(A, sKx, sB)
    A('s_add_u32 s%d, s%d, 0x%x' % (sVx, sKx, VX))
    A('s_add_u32 s%d, s%d, 0x%x' % (sKx, sKx, KX))
    A('s_add_u32 s%d, s%d, 4096' % (sKx2, sKx))
    A('s_add_u32 s%d, s%d, 4096' % (sVx2, sVx))
    A('s_and_b32 s%d, s%d, 7' % (sB, sC))
    A('s_lshl_b32 s%d, s%d, 10' % (sB, sB))
    A('s_cmp_lt_u32 s%d, 8' % sC)
    A('s_cselect_b32 s%d, s%d, s%d' % (sPf, sKx, sVx))
    A('s_add_u32 s%d, s%d, s%d' % (sPf, sPf, sB))
    A('s_add_u32 s%d, s%d, 0x%x' % (sPf, sPf, SEG))
    A('s_lshl_b32 s%d, s%d, 1' % (sPartR, sC))
    A('s_lshr_b32 s%d, s%d, 1' % (sB, sW))
    A('s_add_u32 s%d, s%d, s%d' % (sPartR, sPartR, sB))
    A('s_mul_i32 s%d, s%d, 0x%x' % (sPartR, sPartR, ROW))
    A('s_and_b32 s%d, s%d, 1' % (sB, sW))
    A('s_lshl_b32 s%d, s%d, 12' % (sB, sB))
    A('s_add_u32 s%d, s%d, s%d' % (sPartR, sPartR, sB))
    A('s_add_u32 s%d, s%d, 0x%x' % (sPartR, sPartR, PART))
    near(A, sPartR, sB)
    A('s_lshl_b32 s%d, s%d, 8' % (sB, sG))
    A('s_add_u32 s%d, s%d, s%d' % (sPartA, sPartR, sB))
    A('s_lshl_b32 s%d, s%d, 1' % (sA, sG))
    A('s_lshr_b32 s%d, s%d, 3' % (sB, sC))
    A('s_add_u32 s%d, s%d, s%d' % (sA, sA, sB))
    A('s_mul_i32 s%d, s%d, 0x%x' % (sKvm, sA, ROW))
    near(A, sKvm, sB)
    A('s_bfe_u32 s%d, s%d, 0x10002' % (sB, sC))
    A('s_lshl_b32 s%d, s%d, 12' % (sB, sB))
    A('s_add_u32 s%d, s%d, s%d' % (sKvm, sKvm, sB))
    A('s_add_u32 s%d, s%d, 0x%x' % (sKvm, sKvm, KVM - 2048))

    def kv_ops(lab, ahead=2):
        return ['v_readlane_b32 s%d, v%d, 0' % (sCc, vFv), 'v_readlane_b32 s%d, v%d, 1' % (sB, vFv),
                's_add_u32 s%d, s%d, %d' % (sA, sStep, ahead), 's_min_u32 s%d, s%d, 64' % (sA, sA),
                's_min_i32 s%d, s%d, s%d' % (sB, sB, sCc), 's_max_i32 s%d, s%d, s%d' % (sKn, sKn, sB),
                's_cmp_lt_i32 s%d, s%d' % (sKn, sA), 's_cbranch_scc1 %s' % lab]

    def kv_check(lab, ahead=2):
        for o in kv_ops(lab, ahead):
            A(o)

    ld_flags = 'buffer_load_dword v%d, v%d, %s, 0 offen sc1' % (vFv, vFa, S4(WS))
    A('s_mov_b32 s%d, 0' % sKn)
    A.label('L_c_kv0')
    A(ld_flags)
    A('s_waitcnt vmcnt(0)')
    kv_check('L_c_kv1', opt.get('nf', 2))
    A('s_branch L_c_kv2')
    A.label('L_c_kv1')
    A('s_sleep 1')
    timeout_stub(A, 'L_c_kv0')
    A.label('L_c_kv2')
    rmask = sum(1 << int(x) for x in str(opt.get('rf', '0.1.2.4.6.9.13.18.24.32.41.49')).split('.'))
    A('s_mov_b32 s%d, 0x%x' % (sLo, rmask & 0xffffffff))
    A('s_mov_b32 s%d, 0x%x' % (sLo + 1, rmask >> 32))
    A('s_mov_b32 s%d, 0' % sFo)
    A('s_mov_b32 s%d, s%d' % (sSc2, sScale))
    for f in range(8):
        A('buffer_load_dwordx4 %s, v%d, %s, s%d offen offset:%d sc1' % (v(vVx + 4 * f, 4), vL16, S4(WS), (sVx, sVx2)[f >> 2], (f & 3) * 1024))
    for f in range(8):
        A('buffer_load_dwordx4 %s, v%d, %s, s%d offen offset:%d sc1' % (v(vKx + 4 * f, 4), vL16, S4(WS), (sKx, sKx2)[f >> 2], (f & 3) * 1024))
    for i in range(16):
        A('v_min_u32 v%d, -2, v%d' % (vM + i, vM + i))
    A('s_add_u32 s%d, s%d, 0x%x' % (sVx, sVx, SEG))
    A('s_add_u32 s%d, s%d, 0x%x' % (sVx2, sVx2, SEG))
    A('s_mov_b32 s%d, %d' % (sD, 63 if opt.get('nf', 2) == 2 else 0))
    A('s_waitcnt vmcnt(8)')
    vox()
    paced(zeros(vA, 24) + vox_tail() + zeros(vT, 16) + zeros(MM, 4) + zeros(vQ, 4, '-1') + zeros(vQ + 8, 4, '-1') + zeros(vKm, 8, '-1'))
    A('s_waitcnt vmcnt(0)')
    tstamp(A, opt, 2, vT0, vT1, sA)
    if opt.get('diag'):
        A('s_memrealtime s[96:97]')
        A('s_memtime s[98:99]')
        A('s_waitcnt lgkmcnt(0)')

    PT = 96
    stamps = []

    names = opt.get('marks', 'm0ok,st1end,qkvst,q0ok,Send,st2end,partst').split(',') + ['gath', 'gathok']
    assert len(names) == 9

    def stamp(nm):
        if prof and nm in names:
            i = names.index(nm)
            A('s_memtime s[%d:%d]' % (12 + 2 * i, 13 + 2 * i))

    if lite:
        vTr = V('trace')
        A('v_mov_b32 v%d, 0' % vTr)
        A('s_memtime s[28:29]')
        A('s_memtime s[96:97]')
        A('s_memrealtime s[98:99]')
        A('s_waitcnt lgkmcnt(0)')
        for n_ in (sN1, sN2, sN3):
            A('s_mov_b32 s%d, 0' % n_)

    if opt.get('xnobulk'):
        for n_ in (sKx, sKx2, sVx, sVx2)[:opt['xnobulk']]:
            A('s_mov_b32 s%d, 0x%x' % (n_, OOB))
    loc = '@LOC@'

    def ldx4(dst, so, off):
        return 'buffer_load_dwordx4 %s, v%d, %s, s%d offen offset:%d sc1' % (v(dst, 4), vL16, S4(WS), so, off)

    def ld_mem(t):
        A(ldx4(vM + 4 * t, sMemR, t * 1024))

    def chk4(b, tmp):
        return ['v_max3_u32 v%d, v%d, v%d, v%d' % (tmp, b, b + 1, b + 2), 'v_max_u32 v%d, v%d, v%d' % (tmp, tmp, b + 3)]

    def chk4more(b, tmp):
        return ['v_max3_u32 v%d, v%d, v%d, v%d' % (tmp, tmp, b, b + 1), 'v_max3_u32 v%d, v%d, v%d, v%d' % (tmp, tmp, b + 2, b + 3)]

    def cmpv(tmp):
        return 'v_cmp_eq_u32 vcc, -1, v%d' % tmp

    rx = opt.get('rx', 1)

    def wchk(bases, tmp):
        if not rx:
            ops = chk4(bases[0], tmp)
            for b in bases[1:]:
                ops += chk4more(b, tmp)
            return ops, cmpv(tmp)
        if len(bases) == 1:
            return [], cmpv(bases[0] + 3)
        return ['v_max_u32 v%d, v%d, v%d' % (tmp, bases[0] + 3, bases[1] + 3)], cmpv(tmp)

    def guard(r_):
        if not opt.get('nomin', 1):
            A('v_min_u32 v%d, -2, v%d' % (r_, r_))

    def smf1(t, m, tt):
        A('v_smfmac_f32_16x16x64_bf16 %s, %s, %s, v%d' % (v(vA + 8 * m + 4 * tt, 4), v(vM + 4 * t, 4), a(W1(t, m, tt), 8), vIdx))

    def add2(d, x, y):
        if opt.get('pk', 1):
            A('v_pk_add_f32 %s, %s, %s' % (v(d, 2), v(x, 2), v(y, 2)))
        else:
            A('v_add_f32 v%d, v%d, v%d' % (d, x, y))
            A('v_add_f32 v%d, v%d, v%d' % (d + 1, x + 1, y + 1))

    def fold(m, vs=None):
        b = vA + 8 * m
        f = vF + 4 * m
        n_ = 0
        for tt in range(2):
            for j in range(2):
                A('v_permlane32_swap_b32 v%d, v%d' % (b + 4 * tt + j, b + 4 * tt + j + 2))
                if vs and n_ < 3:
                    smf1(*vs.pop(0))
                n_ += 1
        for tt in range(2):
            add2(f + 2 * tt, b + 4 * tt, b + 4 * tt + 2)
        if vs:
            smf1(*vs.pop(0))
        A('ds_write2st64_b64 v%d, %s, %s offset0:%d offset1:%d' % (vW1q if m < 2 else vW1k, v(f, 2), v(f + 2, 2), 2 * m, 2 * m + 1))

    def rd1(ad, r_=None):
        r_ = vR if r_ is None else r_
        for w in range(4):
            A('ds_read2st64_b32 %s, v%d offset0:%d offset1:%d' % (v(r_ + 2 * w, 2), ad, 12 * w, 12 * w + 2))

    def red1(dst, extra='', r_=None, more=0):
        r_ = vR if r_ is None else r_
        A('s_waitcnt lgkmcnt(%d)' % (0 if prof else 2 + more))
        A(extra)
        add2(r_, r_, r_ + 2)
        A('s_waitcnt lgkmcnt(%d)' % (0 if prof else more))
        add2(r_ + 4, r_ + 4, r_ + 6)
        add2(r_, r_, r_ + 4)
        A('v_cvt_pk_bf16_f32 v%d, v%d, v%d' % (dst, r_, r_ + 1))
        guard(dst)

    def st4(src, ad, so, mod):
        return 'buffer_store_dword v%d, v%d, %s, s%d offen%s' % (src, ad, S4(WS), so, mod)

    ld_q = [ldx4(vQ, sQkvR, 0), ldx4(vQ + 8, sQkvR, 1024)]
    ld_k = [ldx4(vKm, sQkvR, 2048), ldx4(vKm + 4, sQkvR, 3072)]
    ld_v = [ldx4(vVm, sQkvR2, 0), ldx4(vVm + 4, sQkvR2, 1024)]
    st_v = st4(vVv, vVst, sQkvW, loc)
    ld_part = [ldx4(vPt, sPartR, 0), ldx4(vPt + 4, sPartR, 1024)]
    X0, X1 = vS, vS + 4
    cnt = lambda n_: A('s_add_u32 s%d, s%d, 1' % (n_, n_)) if lite else None

    hooks = []

    def hook(align=False):
        if not opt.get('iw', 0):
            return
        if align:
            A('.p2align 6')
        hooks.append(len(hooks))
        A.label('L_hk%d' % hooks[-1])
        A('s_branch @HK%d@' % hooks[-1])

    def nxt(Sm, t):
        for d in range(1, 5):
            if Sm >> ((t + d) & 3) & 1:
                return (t + d) & 3

    def block(Sm, t, wait=None):
        rest = Sm & ~(1 << t)
        n = nxt(rest, t) if rest else None
        if rest:
            ops, cm = wchk([vM + 4 * n], vT0) if wait is not None else (chk4(vM + 4 * n, vT0), cmpv(vT0))
        smf1(t, 0, 0)
        if rest and ops:
            if wait is not None:
                A('s_waitcnt vmcnt(%d)' % wait)
            for o in ops:
                A(o)
        smf1(t, 0, 1)
        if rest:
            if not ops:
                A('s_waitcnt vmcnt(%d)' % wait)
            A(cm)
        smf1(t, 1, 0)
        smf1(t, 1, 1)
        return rest, n

    fc = opt.get('fc', 3)

    def fast_chains():
        def chain_(lab, Sm, que, fail2):
            hook(True)
            A.label(lab)
            ld_mem(que[-1])
            cnt(sN1)
            A('s_waitcnt vmcnt(%d)' % (len(que) - 1))
            ops, cm = wchk([vM + 4 * que[0]], vT0)
            for o in ops + [cm]:
                A(o)
            A('s_cbranch_vccnz %s' % (fail2 or 'L_F%d_%d' % (Sm, que[0])))
            if Sm == 15:
                stamp('m0ok')
            for i, t in enumerate(que):
                stamp('B%d' % (4 - len(que) + i))
                last = i + 2 == len(que)
                if last and len(que) < 4:
                    block(1 << t, t)
                    Sm &= ~(1 << t)
                    n = que[-1]
                    A('s_waitcnt vmcnt(0)')
                    ops, cm = wchk([vM + 4 * n], vT0)
                    for o in ops + [cm]:
                        A(o)
                else:
                    Sm, n = block(Sm, t, len(que) - 2 - i)
                if Sm:
                    assert n == que[i + 1]
                    A('s_cbranch_vccnz L_F%d_%d' % (Sm, n))
            A('s_branch L_T1')
        chain_('L_G15_0', 15, [1, 2, 3, 0], 'L_G15_1' if fc > 1 else None)
        if fc > 1:
            chain_('L_G15_1', 15, [2, 3, 0, 1], 'L_G15_2' if fc > 2 else None)
        if fc > 2:
            chain_('L_G15_2', 15, [3, 0, 1, 2], None)
        chain_('L_G14_1', 14, [2, 3, 1], None)
        chain_('L_G12_2', 12, [3, 2], None)

    def first_pass():
        A('s_waitcnt vmcnt(3)')
        ops, cm = wchk([vM], vT0)
        for o in ops:
            A(o)
        A(cm)
        A('s_cbranch_vccnz L_%s15_0' % ('G' if fc else 'F'))
        stamp('m0ok')
        Sm = 15
        for t in range(4):
            stamp('B%d' % t)
            Sm, n = block(Sm, t, 2 - t)
            if Sm:
                A('s_cbranch_vccnz L_%s%d_%d' % ('G' if fc and n < 3 else 'F', Sm, n))

    def poll_nodes_ooo():
        for Sm in sorted(range(1, 16), key=lambda x: -bin(x).count('1')):
            ts = [t for t in range(4) if Sm >> t & 1]
            hook(True)
            for t in ts:
                A.label('L_P%d_%d' % (Sm, t))
                A('s_waitcnt vmcnt(3)')
                for o in chk4(vM + 4 * t, vT0):
                    A(o)
                A(cmpv(vT0))
                A('s_cbranch_vccz L_V%d_%d' % (Sm, t))
                A.label('L_F%d_%d' % (Sm, t))
                ld_mem(t)
                cnt(sN1)
            timeout_stub(A, 'L_P%d_%d' % (Sm, ts[0]))
            if len(ts) > 1:
                hook()
            for t in ts:
                hook(True)
                A.label('L_V%d_%d' % (Sm, t))
                if Sm == 15:
                    stamp('m0ok')
                stamp('B%d' % (4 - len(ts)))
                rest, n = block(Sm, t)
                if rest:
                    A('s_cbranch_vccz L_V%d_%d' % (rest, n))
                    A('s_branch L_F%d_%d' % (rest, n))
                else:
                    A('s_branch L_T1')

    def poll_nodes():
        if opt.get('ooo', 1):
            return poll_nodes_ooo()
        for k in range(4):
            full = 15 & ~((1 << k) - 1)
            for Sm in sorted(range(1, 16), key=lambda x: -bin(x).count('1')):
                if Sm & ~full:
                    continue
                ts = [t for t in range(4) if Sm >> t & 1]
                for t in ts:
                    rest = Sm & ~(1 << t)
                    A.label('L_P%d_%d_%d' % (k, Sm, t))
                    A('s_waitcnt vmcnt(%d)' % opt.get('lim', 3))
                    for o in chk4(vM + 4 * t, vT0):
                        A(o)
                    A(cmpv(vT0))
                    A('s_cbranch_vccz %s' % ('L_P%d_%d_%d' % (k, rest, nxt(rest, t)) if rest else 'L_G%d' % k))
                    if Sm == full and t == k:
                        A.label('L_F%d_%d' % (Sm, t))
                    ld_mem(t)
                    cnt(sN1)
                timeout_stub(A, 'L_P%d_%d_%d' % (k, Sm, ts[0]))
        for k in range(4):
            A.label('L_G%d' % k)
            if k == 0:
                stamp('m0ok')
            stamp('B%d' % k)
            block(1 << k, k)
        A('s_branch L_T1')

    A('s_cmp_lt_u32 s%d, %d' % (sPure, NPURE))
    A('s_cbranch_scc1 L_loop_i')
    loop_start = len(A.lines)
    A('.p2align 6')
    A.label('L_loop')
    first_pass()
    A.label('L_T1')
    stamp('T1')
    kxl = [ldx4(vKx + 4 * f, (sKx, sKx2)[f >> 2], (f & 3) * 1024) for f in range(8)]
    na = opt.get('na', 3)
    ka = kxl[8 - na:]
    nk = lambda: A(ka.pop(0)) if ka else None
    qk = ld_q + ld_k
    order = []
    zq = []
    if opt.get('split', 1):
        fold(0)
        stamp('f0')
        fold(1)
        stamp('f1')
        nv1 = opt.get('nv', 2)
        for t in range(nv1):
            smf1(t, 2, 0)
            nk()
            smf1(t, 2, 1)
        A('s_waitcnt lgkmcnt(0)')
        stamp('st1end')
        A('s_barrier')
        stamp('bar1')
        rd1(vR1)
        for t in range(nv1, 4):
            smf1(t, 2, 0); nk(); smf1(t, 2, 1)
        while ka:
            nk()
        red1(vQK)
        A(st4(vQK, vQst, sQkvW, loc))
        stamp('qkvst')
        slots = [int(ch) for ch in str(opt.get('h2s', '2244')).zfill(4)]

        def slot(i):
            for n_, sl_ in enumerate(slots):
                if sl_ == i:
                    A(qk[n_]); order.append(qk[n_])
        fold(2)
        slot(0)
        A('s_add_u32 s%d, s%d, 0x%x' % (sKx, sKx, SEG))
        A('s_add_u32 s%d, s%d, 0x%x' % (sKx2, sKx2, SEG))
        A('s_cmp_eq_u32 s%d, s%d' % (sStep, sD))
        A('s_cbranch_scc1 L_sp')
        A.label('L_spr')
        A('s_waitcnt lgkmcnt(0)')
        A('s_barrier')
        stamp('bar1b')
        slot(1)
        rd1(vR1v)
        slot(2)
        A('s_waitcnt lgkmcnt(%d)' % (0 if prof else 3))
        slot(3)
        red1(vVv)
        A(st_v); order.append(st_v)
        stamp('vst')
        slot(4)
    else:
        vs = [(t, 2, tt) for t in range(4) for tt in range(2)]
        fold(0, vs)
        stamp('f0')
        fold(1, vs)
        stamp('f1')
        fold(2)
        while ka:
            nk()
        A('s_add_u32 s%d, s%d, 0x%x' % (sKx, sKx, SEG))
        A('s_add_u32 s%d, s%d, 0x%x' % (sKx2, sKx2, SEG))
        A('s_waitcnt lgkmcnt(0)')
        stamp('st1end')
        A('s_barrier')
        stamp('bar1')
        rd1(vR1)
        rd1(vR1v, vA)
        red1(vQK, '', vR, 4)
        A(st4(vQK, vQst, sQkvW, loc))
        stamp('qkvst')
        red1(vVv, '', vA)
        A(st_v)
        stamp('vst')
        A('s_cmp_eq_u32 s%d, s%d' % (sStep, sD))
        A('s_cbranch_scc1 L_sp')
        A.label('L_spr')
        zq = zeros(vT, 16) + zeros(MM, 4)
        fz = zq + ['s_nop 0'] * 60
        for i, n_ in enumerate([opt.get('h2d', 6)] + [opt.get('h2p', 10)] * 3):
            paced(fz[:n_]); fz = fz[n_:]
            A(qk[i]); order.append(qk[i])
        paced([o for o in fz if o.startswith('v_')])
    younger = lambda o: len(order) - 1 - order.index(o)
    A.label('L_h2')
    mx = lambda tt, j, first=False: A('v_mfma_f32_16x16x32_bf16 %s, %s, %s, %s' % (v(vS + 4 * tt, 4), v(vKx + (tt * 4 + j) * 4, 4), v(vQ + 4 * j, 4), '0' if first else v(vS + 4 * tt, 4)))
    ror = lambda r_: A('v_mov_b32_dpp v%d, v%d row_ror:8 row_mask:0xf bank_mask:0xf' % (r_ + 4, r_))
    smm = lambda u: A('v_smfmac_f32_16x16x64_bf16 %s, %s, %s, v%d' % (v(MM, 4), v(vKm + 4 * u, 4), v(vQ + 8 * u, 8), vIdx))
    qkr = [vQ, vQ + 8, vKm, vKm + 4]
    mxo = ['v_max3_f32 v%d, v%d, v%d, v%d' % (vT0, vBias, X0, X0 + 1), 'v_max3_f32 v%d, v%d, v%d, v%d' % (vT0, vT0, X0 + 2, X0 + 3),
           'v_max3_f32 v%d, v%d, v%d, v%d' % (vT0, vT0, X1, X1 + 1), 'v_max3_f32 v%d, v%d, v%d, v%d' % (vT0, vT0, X1 + 2, X1 + 3)]
    swm = ['v_permlane32_swap_b32 v%d, v%d' % (MM, MM + 2), 'v_permlane32_swap_b32 v%d, v%d' % (MM + 1, MM + 3)]

    def ck(i):
        for o in chk4(qkr[i], vT3):
            A(o)

    def s_end():
        add2(MM, MM, MM + 2)
        A('v_max3_f32 v%d, v%d, v%d, v%d' % (vT0, vT0, MM, MM + 1))
        A('v_mov_b32 v%d, v%d' % (vT1, vT0))
    h2m = opt.get('h2m', 0)
    if h2m == 2:
        stamp('q0w')
        A('s_waitcnt vmcnt(%d)' % younger(qk[0]))
        stamp('q0l')
        mx(0, 0, True); ck(0)
        mx(1, 0, True); A(cmpv(vT3)); ror(vQ); ror(vQ + 1); ror(vQ + 2); ror(vQ + 3)
        A('s_cbranch_vccnz L_FA15_0')
        mx(0, 1)
        A('s_waitcnt vmcnt(%d)' % younger(qk[1]))
        stamp('q1l')
        ck(1)
        mx(1, 1); A(cmpv(vT3)); ror(vQ + 8)
        mx(0, 2); ror(vQ + 9); ror(vQ + 10)
        mx(1, 2); ror(vQ + 11)
        A('s_cbranch_vccnz L_FA14_1')
        stamp('q0ok')
        mx(0, 3); A(ld_v[0])
        mx(1, 3); A(ld_v[1])
        order += ld_v
        stamp('k0w')
        A('s_waitcnt vmcnt(%d)' % younger(qk[2]))
        smm(0)
        if opt.get('k0c', 1):
            ck(2); A(cmpv(vT3)); A(mxo[0]); A(mxo[1]); A(mxo[2]); A(mxo[3])
            A('s_cbranch_vccnz L_FK12_2')
            stamp('k1w')
            A('s_waitcnt vmcnt(%d)' % younger(qk[3]))
            stamp('k1l')
            smm(1)
            ck(3); A(cmpv(vT3))
            A(swm[0]); A(swm[1])
            s_end()
            A('s_cbranch_vccnz L_FK8_3')
        else:
            stamp('k1w')
            A('s_waitcnt vmcnt(%d)' % younger(qk[3]))
            stamp('k1l')
            smm(1)
            for o in chk4(vKm, vT3) + chk4more(vKm + 4, vT3):
                A(o)
            A(cmpv(vT3))
            A(mxo[0]); A(swm[0]); A(swm[1]); A(mxo[1]); A(mxo[2]); A(mxo[3])
            s_end()
            A('s_cbranch_vccnz L_PK12_2')
    else:
        stamp('q0w')
        A('s_waitcnt vmcnt(%d)' % younger(qk[0]))
        stamp('q0l')
        mx(0, 0, True); ror(vQ); ror(vQ + 1)
        mx(1, 0, True); ror(vQ + 2); ror(vQ + 3)
        A('s_waitcnt vmcnt(%d)' % younger(qk[1]))
        stamp('q1l')
        ops, cm = wchk([vQ, vQ + 8], vT3)
        if rx:
            mx(0, 2); A(ops[0]); A(cm)
            mx(1, 2); ror(vQ + 8); ror(vQ + 9)
            mx(0, 1); ror(vQ + 10); ror(vQ + 11)
            mx(1, 1)
        else:
            mx(0, 2); A(ops[0]); A(ops[1])
            mx(1, 2); A(ops[2]); A(ops[3])
            mx(0, 1); A(cm); ror(vQ + 8); ror(vQ + 9)
            mx(1, 1); ror(vQ + 10); ror(vQ + 11)
        A('s_cbranch_vccnz %s' % ('L_r2' if h2m == 0 else 'L_PA15_0'))
        stamp('q0ok')
        order_q = list(order)
        vpos = opt.get('vpos', 1)
        mx(0, 3)
        if vpos == 0:
            A(ld_v[0])
        mx(1, 3)
        if vpos == 0:
            A(ld_v[1])
            order += ld_v
        A.label('L_h2k')
        stamp('k0w')
        A('s_waitcnt vmcnt(%d)' % younger(qk[2]))
        smm(0)
        stamp('k1w')
        A('s_waitcnt vmcnt(%d)' % younger(qk[3]))
        stamp('k1l')
        smm(1)
        if vpos == 1:
            A(ld_v[0]); A(ld_v[1])
        ops, cm = wchk([vKm, vKm + 4], vT3)
        for o in ops + [cm] + (mxo + swm if rx else [mxo[0]] + swm + mxo[1:]):
            A(o)
        order_k = order[order.index(qk[2]):]
        s_end()
        A('s_cbranch_vccnz %s' % ('L_r2k' if h2m == 0 else 'L_PK12_2'))
    A.label('L_sj')
    stamp('kok')
    vxl = [ldx4(vVx + 4 * f, (sVx, sVx2)[f >> 2], (f & 3) * 1024) for f in range(8)]
    nc = opt.get('nc', 3)
    bulk = vxl + kxl[nc:8 - na]
    if opt.get('xdrop'):
        bulk = bulk[:len(bulk) - opt['xdrop']]
    nbulk = len(bulk)
    nb = lambda: A(bulk.pop(0)) if bulk else None
    early = opt.get('be', 2)
    for i in range(min(early, 1)):
        nb()
    A('v_permlane32_swap_b32 v%d, v%d' % (vT0, vT1))
    A('v_max_f32 v%d, v%d, v%d' % (vT0, vT0, vT1))
    A('v_mov_b32 v%d, v%d' % (vT1, vT0))
    for i in range(max(early - 1, 0)):
        nb()
    A('v_permlane16_swap_b32 v%d, v%d' % (vT0, vT1))
    A('v_max_f32 v%d, v%d, v%d' % (vT0, vT0, vT1))
    A('v_mul_f32 v%d, s%d, v%d' % (vT0, sScale, vT0))
    fma = lambda r_: A('v_fma_f32 v%d, v%d, s%d, -v%d' % (r_, r_, sScale, vT0))
    ex = lambda r_: A('v_exp_f32 v%d, v%d' % (r_, r_))
    cvt = lambda d, x: A('v_cvt_pk_bf16_f32 v%d, v%d, v%d' % (d, x, x + 1))
    shr = lambda d, x: A('v_mov_b32_dpp v%d, v%d row_shr:8 row_mask:0xf bank_mask:0xc' % (d, x))
    def fma2(r_):
        if opt.get('pkf', 1):
            A('v_pk_fma_f32 %s, %s, %s, %s op_sel_hi:[1,0,0] neg_lo:[0,0,1] neg_hi:[0,0,1]' % (v(r_, 2), v(r_, 2), s(sSc2, 2), v(vT0, 2)))
        else:
            fma(r_); fma(r_ + 1)
    vom = lambda u, n: A('v_smfmac_f32_16x16x64_bf16 %s, %s, %s, v%d' % (v(vT + 4 * n, 4), v(vVm + 4 * u, 4), a(WO(n, 2 * u), 8), vIdx))
    m32 = lambda d, x, p, c_: A('v_mfma_f32_16x16x32_bf16 %s, %s, %s, %s' % (v(d, 4), v(x, 4), v(p, 4), v(d, 4) if c_ else '0'))
    m16 = lambda d, x, p: A('v_mfma_f32_16x16x16_bf16 %s, %s, %s, %s' % (v(d, 4), v(x, 2), v(p, 2), v(d, 4)))
    cvm = lambda k: cvt(vVOm + k, vT + 2 * k)
    s2 = opt.get('s2', 2)
    if s2:
        assert vPms == vPm + 2 and vPm % 4 == 0
        er = [MM, MM + 1] + [vS + i for i in range(8)]
        fma2(MM)
        for i in range(4):
            fma2(vS + 2 * i)
        for r_ in er[:7]:
            ex(r_)

        def vcheck(between):
            stamp('vw')
            A('s_waitcnt vmcnt(%d)' % (nbulk - len(bulk)))
            stamp('vl')
            ops, cm = wchk([vVm, vVm + 4], vT3)
            for o in ops + [cm]:
                A(o)
            between()
            A('s_cbranch_vccnz L_r2v')
            A.label('L_h2v')
            stamp('Send')
        swp = lambda: A('v_permlane32_swap_b32 v%d, v%d' % (vPm, vPm + 1))
        if s2 == 1:
            vcheck(lambda: [ex(r_) for r_ in er[7:]])
            gaps = [lambda: cvt(vPm, MM), lambda: cvt(vPm + 1, MM), lambda: cvt(vP, vS), lambda: cvt(vP + 1, vS + 2),
                    lambda: cvt(vP + 2, vS + 4), lambda: cvt(vP + 3, vS + 6), swp, lambda: shr(vPs, vP)]
            for i in range(8):
                vom(i & 1, i >> 1)
                if i & 1:
                    nb()
                gaps[i]()
            stamp('vomend')
            m32(vLs, vOne, vP, 0); nb(); shr(vPs + 1, vP + 1); shr(vPs + 2, vP + 2)
            m16(vLs, vHalf, vPm); shr(vPs + 3, vP + 3); shr(vPms, vPm)
            m32(vO, vVOx, vP, 0); nb(); shr(vPms + 1, vPm + 1); cvm(0)
            m32(vO, vVOx + 4, vPs, 1); cvm(1); cvm(2); cvm(3)
            m32(vO + 4, vVOx + 8, vP, 0); nb(); cvm(4); cvm(5)
            stamp('m16')
            m32(vO, vVOm, vPm, 1); nb(); cvm(6); cvm(7)
            m32(vO + 4, vVOx + 12, vPs, 1); nb()
            A('v_rcp_f32 v%d, v%d' % (vT1, vLs))
            m32(vO + 4, vVOm + 4, vPm, 1)
        else:
            bs = str(opt.get('bs', '0101001')).zfill(7)
            for r_ in er[7:]:
                ex(r_)
            for i in range(int(bs[0])):
                nb()
            for i in range(4):
                cvt(vP + i, vS + 2 * i)
            cvt(vPm, MM); cvt(vPm + 1, MM)
            nbi = lambda i: nb() if int(bs[i]) else None
            m32(vLs, vOne, vP, 0); nbi(1); shr(vPs, vP); shr(vPs + 1, vP + 1)
            m32(vO, vVOx, vP, 0); nbi(2); shr(vPs + 2, vP + 2); shr(vPs + 3, vP + 3)
            m32(vO + 4, vVOx + 8, vP, 0); nbi(3); swp()
            m32(vO, vVOx + 4, vPs, 1)
            vcheck(lambda: [m32(vO + 4, vVOx + 12, vPs, 1), nbi(4), shr(vPms, vPm), shr(vPms + 1, vPm + 1), m16(vLs, vHalf, vPm)])
            gaps = {3: [0], 4: [1], 5: [2], 6: [3], 7: [4]}
            for i in range(8):
                vom(i & 1, i >> 1)
                if i % int(bs[6]) == 0:
                    nb()
                if i == 2:
                    A('v_rcp_f32 v%d, v%d' % (vT1, vLs))
                for k in gaps.get(i, []):
                    cvm(k)
            stamp('vomend')
            m32(vO, vVOm, vPm, 1); cvm(5)
            stamp('m16')
            cvm(6); cvm(7)
            m32(vO + 4, vVOm + 4, vPm, 1)
    else:
        for i in range(4):
            fma2(vS + 2 * i)
        stamp('vw')
        A('s_waitcnt vmcnt(%d)' % early)
        stamp('vl')
        ops, cm = wchk([vVm, vVm + 4], vT3)
        for o in ops + [cm]:
            A(o)
        for i in range(3):
            ex(vS + i)
        A('s_cbranch_vccnz L_r2v')
        A.label('L_h2v')
        stamp('Send')
        vom = lambda u, n: A('v_smfmac_f32_16x16x64_bf16 %s, %s, %s, v%d' % (v(vT + 4 * n, 4), v(vVm + 4 * u, 4), a(WO(n, 2 * u), 8), vIdx))
        for i in range(8):
            vom(i & 1, i >> 1)
            if i & 1:
                nb()
            if i < 5:
                ex(vS + 3 + i)
            else:
                cvt(vP + i - 5, vS + 2 * (i - 5))
        stamp('vomend')
        cvt(vP + 3, vS + 6)
        fma2(MM)
        m32 = lambda d, x, p, c_: A('v_mfma_f32_16x16x32_bf16 %s, %s, %s, %s' % (v(d, 4), v(x, 4), v(p, 4), v(d, 4) if c_ else '0'))
        m16 = lambda d, x, p: A('v_mfma_f32_16x16x16_bf16 %s, %s, %s, %s' % (v(d, 4), v(x, 2), v(p, 2), v(d, 4)))
        cvm = lambda k: cvt(vVOm + k, vT + 2 * k)
        m32(vO, vVOx, vP, 0)
        nb()
        ex(MM)
        m32(vO + 4, vVOx + 8, vP, 0)
        ex(MM + 1)
        m32(vLs, vOne, vP, 0)
        nb()
        shr(vPs, vP); shr(vPs + 1, vP + 1); shr(vPs + 2, vP + 2); shr(vPs + 3, vP + 3)
        cvt(vPm, MM)
        cvt(vPm + 1, MM)
        if opt.get('mm', 1):
            assert vPms == vPm + 2 and vPm % 4 == 0
            m32(vO, vVOx + 4, vPs, 1)
            cvm(0)
            A('v_permlane32_swap_b32 v%d, v%d' % (vPm, vPm + 1))
            m32(vO + 4, vVOx + 12, vPs, 1)
            nb()
            cvm(1); cvm(2)
            stamp('m16')
            m16(vLs, vHalf, vPm)
            nb()
            shr(vPms, vPm); shr(vPms + 1, vPm + 1); cvm(3); cvm(4); cvm(5)
            m32(vO, vVOm, vPm, 1)
            nb()
            cvm(6); cvm(7)
            A('v_rcp_f32 v%d, v%d' % (vT1, vLs))
            m32(vO + 4, vVOm + 4, vPm, 1)
        else:
            m32(vO, vVOx + 4, vPs, 1)
            cvm(0)
            A('v_permlane32_swap_b32 v%d, v%d' % (vPm, vPm + 1))
            m32(vO + 4, vVOx + 12, vPs, 1)
            nb()
            cvm(1); cvm(2)
            stamp('m16')
            m16(vLs, vHalf, vPm)
            shr(vPms, vPm); shr(vPms + 1, vPm + 1)
            m16(vO, vVOm, vPm)
            nb()
            cvm(3); cvm(4); cvm(5)
            m16(vO, vVOm + 2, vPms)
            cvm(6); cvm(7)
            m16(vO + 4, vVOm + 4, vPm)
            nb()
            A('v_rcp_f32 v%d, v%d' % (vT1, vLs))
            m16(vO + 4, vVOm + 6, vPms)
    stamp('mend')
    A('ds_write_b32 v%d, v%d' % (vW2l, vT1))
    A('ds_write_b128 v%d, %s' % (vW2, v(vO, 4)))
    while bulk:
        nb()
    A('ds_write_b128 v%d, %s offset:1024' % (vW2, v(vO + 4, 4)))
    A('s_add_u32 s%d, s%d, 0x%x' % (sPf, sPf, SEG))
    A('s_waitcnt lgkmcnt(0)')
    stamp('st2end')
    A('s_barrier')
    stamp('bar2')
    A('ds_read_b128 %s, v%d' % (v(vR2d + 8, 4), vR2l))
    for w in range(4):
        A('ds_read_b64 %s, v%d offset:%d' % (v(vR2d + 2 * w, 2), vR2, w * 2048))
    side = []
    if not opt.get('nokvm'):
        side += [st4(vQK, vKst, sKvm, ' sc1'), st4(vVv, vVst, sKvm, ' sc1')]
    if opt.get('pf', 1):
        side += [ldx4(252, sPf, 0)]
    side += ['buffer_load_dword v%d, v%d, %s, s%d offen sc1' % (vFv, vFa, S4(WS), sFo)]
    nse = opt.get('nse', 3)
    for o in side[:nse]:
        A(o)
    for w in range(4):
        A('s_waitcnt lgkmcnt(%d)' % (0 if prof else 3 - w))
        sel = 'op_sel:[0,%d%s] op_sel_hi:[1,%d%s]' % (w & 1, ',0' if w else '', w & 1, ',1' if w else '')
        if w == 0:
            A('v_pk_mul_f32 %s, %s, %s %s' % (v(vR2d, 2), v(vR2d, 2), v(vR2d + 8, 2), sel))
        else:
            A('v_pk_fma_f32 %s, %s, %s, %s %s' % (v(vR2d, 2), v(vR2d + 2 * w, 2), v(vR2d + 8 + (w & 2), 2), v(vR2d, 2), sel))
    cvt(vT0, vR2d)
    guard(vT0)
    A(st4(vT0, vL4, sPartA, ' sc1'))
    stamp('partst')
    A('s_waitcnt vmcnt(%d)' % (1 + max(nbulk - 8, 0) + len(side[:nse])))
    stamp('vxok')
    pre = [st4(vSent, vL4, sMemW, loc),
           's_xor_b32 s%d, s%d, 0x8000' % (sQkvW, sQkvW),
           st4(vSent, vQst, sQkvW, loc), st4(vSent, vVst, sQkvW, loc)]
    pre = kxl[:nc] + side[nse:] + pre
    pre += ['s_xor_b32 s%d, s%d, 0x8000' % (sQkvR, sQkvR), 's_xor_b32 s%d, s%d, 0x8000' % (sQkvR2, sQkvR2),
            's_add_u32 s%d, s%d, 0x%x' % (sKvm, sKvm, SEG), 's_add_u32 s%d, s%d, 0x%x' % (sPartA, sPartA, SEG), 's_xor_b32 s%d, s%d, 0x4000' % (sMemW, sMemW),
            's_xor_b32 s%d, s%d, 0x4000' % (sMemR, sMemR),
            's_add_u32 s%d, s%d, 0x%x' % (sVx, sVx, SEG), 's_add_u32 s%d, s%d, 0x%x' % (sVx2, sVx2, SEG)]
    gpos = opt.get('gpos', 26)
    fill = {}
    for i, o in enumerate(pre):
        fill.setdefault(i, []).append(o)
    sl = ['s_memtime s[26:27]'] if prof else []
    fill.setdefault(gpos, []).extend(['s_nop 15'] * opt.get('w3', 0) + sl + ld_part)
    vox(fill)
    zz = [o for o in zeros(vA, 24) + zeros(vT, 16) + zeros(MM, 4) if o not in zq]
    zz += ['s_nop 0'] * len(zq)
    zw = opt.get('zw', 0)
    paced(zeros(vM, 16, '-1') + vox_tail() + (zeros(vQ, 4, '-1') + zeros(vQ + 8, 4, '-1') + zeros(vKm, 8, '-1') if h2m else []) + zz[:zw])
    zz = zz[zw:]
    if lite and not prof:
        A('s_and_b32 s%d, s%d, %d' % (sA, sStep, 48 if opt.get('trs') else 3))
        A('s_cbranch_scc1 L_notr')
        A('s_memtime s[12:13]')
        A('s_memrealtime s[14:15]')
        A('s_%s_b32 s%d, s%d, 1' % ('lshl' if opt.get('trs') else 'lshr', sA, sStep))
        A('s_mov_b32 m0, s%d' % sA)
        A('s_waitcnt lgkmcnt(0)')
        A('v_writelane_b32 v%d, s%d, m0' % (vTr, sKn if opt.get('trs') else 12))
        A('s_add_u32 m0, s%d, 1' % sA)
        A('v_writelane_b32 v%d, s14, m0' % vTr)
        A.label('L_notr')
    if prof:
        A('s_waitcnt lgkmcnt(0)')
        A('s_sub_u32 s%d, s%d, %d' % (sA, sStep, opt.get('ts', 33)))
        A('s_cmp_lt_u32 s%d, 6' % sA)
        A('s_cbranch_scc0 L_notr')
        A('s_mul_i32 s%d, s%d, 9' % (sA, sA))
        A('s_add_u32 s%d, s%d, 8' % (sA, sA))
        for i in [8] + list(range(8)):
            A('s_mov_b32 m0, s%d' % sA)
            A('v_writelane_b32 v%d, s%d, m0' % (vTr, 12 + 2 * i))
            A('s_add_u32 s%d, s%d, 1' % (sA, sA))
        A.label('L_notr')
    A.label('L_h3')
    lo = vP
    A('s_waitcnt vmcnt(1)')
    A('v_mfma_f32_16x16x32_bf16 %s, %s, %s, 0' % (v(lo, 4), v(vSel, 4), v(vPt, 4)))
    ops, cm = wchk([vPt, vPt + 4], vT0)
    for o in ([] if rx else ops[:2]):
        A(o)
    A('s_waitcnt vmcnt(0)')
    A('v_mfma_f32_16x16x32_bf16 %s, %s, %s, %s' % (v(lo, 4), v(vSel, 4), v(vPt + 4, 4), v(lo, 4)))
    for o in (ops if rx else ops[2:]):
        A(o)
    A(cm)
    A('s_cbranch_vccnz L_r3')
    A.label('L_h3ok')
    stamp('gathok')
    cvt(vT0, lo)
    guard(vT0)
    A(st4(vT0, vL4, sMemW, loc))
    stamp('memst')
    A('s_add_u32 s%d, s%d, 1' % (sStep, sStep))
    A('s_bitcmp1_b64 %s, s%d' % (s(sLo, 2), sStep))
    A('s_cselect_b32 s%d, 0, 0x%x' % (sFo, OOB))
    A('s_add_u32 s%d, s%d, 0x%x' % (sPartR, sPartR, SEG))
    z0 = opt.get('h1d', 20)
    zs = opt.get('h1s', 10)
    paced(zz[:z0]); zz = zz[z0:]
    for t in range(4):
        ld_mem(t)
        stamp('mi%d' % t)
        if t == 2:
            paced(zz); zz = []
            kvo = kv_ops('L_kvw')
            for o in kvo[:-1]:
                A(o)
        paced(zz[:zs]); zz = zz[zs:]
    A('s_cbranch_scc0 L_loop')
    A('s_branch L_kvw')
    if fc:
        fast_chains()
    poll_nodes()
    A.label('L_sp')
    A('s_cmp_eq_u32 s%d, 63' % sStep)
    A('s_cbranch_scc1 L_c_tail')
    A('s_mov_b32 s%d, 63' % sD)
    A.label('L_sp1')
    A(ld_flags)
    A('s_waitcnt vmcnt(0)')
    kv_check('L_sp2')
    A('s_branch L_spr')
    A.label('L_sp2')
    timeout_stub(A, 'L_sp1')
    hook(True)
    A.label('L_kvw')
    if lite:
        A('s_add_u32 s%d, s%d, 6300' % (sN2, sN2))
    A(ld_flags)
    A('s_waitcnt vmcnt(0)')
    kv_check('L_kvw2')
    A('s_branch L_loop')
    A.label('L_kvw2')
    timeout_stub(A, 'L_kvw')
    if h2m:
        for fam, full, cont in (('A', 15, 'L_SA'), ('K', 12, 'L_SK')):
            for Sm in sorted(range(1, 16), key=lambda x: -bin(x).count('1')):
                if Sm & ~full:
                    continue
                ts = [t for t in range(4) if Sm >> t & 1]
                hook(True)
                for t in ts:
                    rest = Sm & ~(1 << t)
                    A.label('L_P%s%d_%d' % (fam, Sm, t))
                    A('s_waitcnt vmcnt(%d)' % opt.get('lim2', 4 if opt.get('split', 1) else 3))
                    ck(t)
                    A(cmpv(vT3))
                    A('s_cbranch_vccz %s' % ('L_P%s%d_%d' % (fam, rest, nxt(rest, t)) if rest else cont))
                    A.label('L_F%s%d_%d' % (fam, Sm, t))
                    A(qk[t])
                    cnt(sN2)
                timeout_stub(A, 'L_P%s%d_%d' % (fam, Sm, ts[0]))
                if len(ts) > 1:
                    hook()
        hook(True)
        A.label('L_SA')
        stamp('q1l'); stamp('q0ok'); stamp('k0w'); stamp('k1w'); stamp('k1l')
        mx(0, 0, True); ror(vQ); ror(vQ + 1)
        mx(1, 0, True); ror(vQ + 2); ror(vQ + 3)
        mx(0, 2); A(ld_v[0]); ror(vQ + 8); ror(vQ + 9)
        mx(1, 2); A(ld_v[1]); ror(vQ + 10); ror(vQ + 11)
        smm(0); smm(1)
        mx(0, 1); mx(0, 3); mx(1, 1); A(swm[0]); mx(1, 3); A(swm[1])
        for o in mxo:
            A(o)
        s_end()
        A('s_branch L_sj')
        hook()
        hook(True)
        A.label('L_SK')
        stamp('k1w'); stamp('k1l')
        for o in zeros(MM, 4):
            A(o)
        smm(0); smm(1)
        for o in mxo + swm:
            A(o)
        s_end()
        A('s_branch L_sj')
        hook()
    else:
        hook(True)
        A.label('L_r2')
        for o in order_q:
            A(o)
        cnt(sN2)
        timeout_stub(A, 'L_h2')
        hook(True)
        A.label('L_r2k')
        for o in order_k + zeros(MM, 4):
            A(o)
        cnt(sN2)
        timeout_stub(A, 'L_h2k')
        hook()
    hook(True)
    A.label('L_r2v')
    for o in ld_v:
        A(o)
    cnt(sN2)
    A('s_waitcnt vmcnt(0)')
    for o in chk4(vVm, vT3) + chk4more(vVm + 4, vT3):
        A(o)
    A(cmpv(vT3))
    A('s_cbranch_vccz L_h2v')
    timeout_stub(A, 'L_r2v')
    hook()
    hook(True)
    A.label('L_r3')
    for o in ld_part:
        A(o)
    cnt(sN3)
    if opt.get('lim3', -1) < 0:
        timeout_stub(A, 'L_h3')
    A('s_waitcnt vmcnt(%d)' % max(opt.get('lim3', -1), 0))
    for o in chk4(vPt, vT0) + chk4more(vPt + 4, vT0):
        A(o)
    A(cmpv(vT0))
    A('v_mfma_f32_16x16x32_bf16 %s, %s, %s, 0' % (v(lo, 4), v(vSel, 4), v(vPt, 4)))
    A('v_mfma_f32_16x16x32_bf16 %s, %s, %s, %s' % (v(lo, 4), v(vSel, 4), v(vPt + 4, 4), v(lo, 4)))
    A('s_nop 6')
    A('s_cbranch_vccz L_h3ok')
    timeout_stub(A, 'L_r3')
    hook()
    A.label('L_loop_end')
    body = [re.sub(r'@HK(\d+)@', lambda m: 'L_hk%d' % (int(m.group(1)) + 4) if int(m.group(1)) + 4 < len(hooks) else 'L_hkret', l) for l in A.lines[loop_start:]]
    labs = [l[:-1] for l in body if l.endswith(':')]
    pat = re.compile(r'\b(' + '|'.join(labs) + r')\b')
    A.lines[loop_start:] = [l.replace('@LOC@', '') for l in body] + [pat.sub(r'\1_i', l).replace('@LOC@', ' sc1') for l in body]
    A.label('L_c_tail')
    A('s_add_u32 s%d, s%d, 2048' % (sKvm, sKvm))
    A('s_xor_b32 s%d, s%d, 0x2000' % (sKvm, sKvm))
    A('s_sub_u32 s%d, s%d, 2048' % (sKvm, sKvm))
    A(st4(vQK, vKst, sKvm, ' sc1'))
    if opt.get('split', 1):
        A('s_waitcnt lgkmcnt(0)')
        A('s_barrier')
        rd1(vR1v)
        red1(vVv)
    A(st4(vVv, vVst, sKvm, ' sc1'))
    if lite:
        A('s_mov_b32 s66, s78')
        sN3 = 66
    if opt.get('diag'):
        A('s_cmp_lg_u32 s%d, 0' % sC)
        A('s_cbranch_scc1 L_dg')
        A('s_cmp_lg_u32 s%d, 0' % sW)
        A('s_cbranch_scc1 L_dg')
        dbg_mark(A, opt, 4, vT2, vT3)
        A('s_memtime s[78:79]')
        A('s_waitcnt lgkmcnt(0)')
        A('s_sub_u32 s78, s78, s98')
        A('s_sub_u32 s79, s96, s76')
        A('v_mov_b32 v%d, s78' % vT2)
        A('v_mov_b32 v%d, s79' % vT1)
        A('v_mov_b32 v%d, 0' % vT3)
        A('s_mov_b64 exec, 1')
        A('buffer_atomic_umax v%d, v%d, %s, 0 offen offset:36 sc1' % (vT2, vT3, S4(DBG)))
        A('buffer_atomic_umax v%d, v%d, %s, 0 offen offset:12 sc1' % (vT1, vT3, S4(DBG)))
        A('v_not_b32 v%d, v%d' % (vT2, vT2))
        A('buffer_atomic_umax v%d, v%d, %s, 0 offen offset:40 sc1' % (vT2, vT3, S4(DBG)))
        A('s_mov_b64 exec, -1')
        A.label('L_dg')
    tstamp(A, opt, 7, vT2, vT3, sA)
    if lite:
        A('s_memtime s[12:13]')
        A('s_memrealtime s[14:15]')
        A('s_waitcnt lgkmcnt(0)')
        A('s_sub_u32 s12, s12, s96')
        A('s_sub_u32 s14, s14, s98')
        A('v_mov_b32 v%d, s12' % (vM + 3))
        A('v_mov_b32 v%d, s14' % (vM + 4))
        A('s_lshl_b32 s%d, s%d, 4' % (sA, sG))
        A('s_add_u32 s%d, s%d, s%d' % (sA, sA, sC))
        A('s_lshl_b32 s%d, s%d, 2' % (sA, sA))
        A('s_add_u32 s%d, s%d, s%d' % (sA, sA, sW))
        A('s_lshl_b32 s%d, s%d, 6' % (sA, sA))
        A('s_add_u32 s%d, s%d, 0x%x' % (sA, sA, PROF))
        A('v_mov_b32 v%d, s%d' % (vM, sN1))
        A('v_mov_b32 v%d, s%d' % (vM + 1, sN2))
        A('v_mov_b32 v%d, s%d' % (vM + 2, sN3))
        A('v_mov_b32 v%d, 0' % vT0)
        for i in range(9, 14):
            A('buffer_store_dword v%d, v%d, %s, s%d offen offset:%d' % (vM + i - 9, vT0, S4(WS), sA, 4 * i))
    if lite:
        A('v_mov_b32 v%d, s96' % vT1)
        A('buffer_store_dword v%d, v%d, %s, s%d offen offset:56' % (vT1, vT0, S4(WS), sA))
        A('v_mov_b32 v%d, s98' % vT2)
        A('buffer_store_dword v%d, v%d, %s, s%d offen offset:60' % (vT2, vT0, S4(WS), sA))
        A('s_sub_u32 s%d, s%d, 0x%x' % (sA, sA, PROF))
        A('s_lshl_b32 s%d, s%d, 2' % (sA, sA))
        A('s_add_u32 s%d, s%d, 0x%x' % (sA, sA, PROF + MB))
        A('buffer_store_dword v%d, v%d, %s, s%d offen' % (vTr, vL4, S4(WS), sA))
    A('s_waitcnt vmcnt(0)')
    A('s_endpgm')


def build(opt):
    A = Asm()
    prologue(A, opt)
    chain(A, opt)
    for kind in 'kvq':
        proj(A, opt, kind)
    orole(A, opt)
    A.label('L_code1')
    A('s_endpgm')
    body, nn = fix_hazards(A.lines, verbose=True)
    hdr = open('cdna_kernels/%s.s.ref' % NAME).read().split('\n')
    hdr = [l for l in hdr if l.startswith(';') and '@launch' not in l]
    hdr.append('; opts ' + ' '.join('%s=%s' % kv for kv in opt.items()))
    if opt.get('prof'):
        hdr.append('; marks=' + opt.get('marks', 'm0ok,st1end,qkvst,q0ok,Send,st2end,partst') + ',gath,gathok')
    out = hdr + ['; @launch grid=(256,1,1) block=(256,1,1) lds=%d' % opt.get('lds', 163840),
                 '.amdgcn_target "amdgcn-amd-amdhsa--gfx950"', '.text', '.globl %s_kernel' % NAME, '.p2align 8',
                 '.type %s_kernel,@function' % NAME, '%s_kernel:' % NAME]
    out += body
    out += ['.section .rodata,"a"', '.p2align 6', '.amdhsa_kernel %s_kernel' % NAME,
            '  .amdhsa_next_free_vgpr 512', '  .amdhsa_next_free_sgpr 102', '  .amdhsa_accum_offset 256',
            '  .amdhsa_group_segment_fixed_size 0', '  .amdhsa_kernarg_size 128', '  .amdhsa_user_sgpr_count 2',
            '  .amdhsa_user_sgpr_kernarg_segment_ptr 1', '  .amdhsa_system_sgpr_workgroup_id_x 1',
            '  .amdhsa_float_denorm_mode_32 3', '.end_amdhsa_kernel', '']
    return '\n'.join(out), nn


if __name__ == '__main__':
    opt = {}
    outp = sys.argv[1]
    for a_ in sys.argv[2:]:
        k, val = a_.split('=')
        opt[k] = int(val) if val.lstrip('-').isdigit() else val
    txt, nn = build(opt)
    open(outp, 'w').write(txt)
    print('wrote', outp, 'nops inserted:', nn)
```

```python
import struct, math
from asmlib import *
from layout import *

NAME = 'gated_mix__memory_aug_recurrent_mem_tr__moe_arch_mod__prompt'


def f32(x):
    return '0x%08x' % struct.unpack('<I', struct.pack('<f', x))[0]


P_X, P_MEM0, P_WQ, P_WK, P_WV, P_WO = 64, 66, 68, 70, 72, 74
P_WR, P_WG, P_WU, P_WD, P_GW, P_OUT, P_DBG, P_WS = 80, 82, 84, 86, 88, 90, 92, 94
WS, DBG = 4, 8
SRD_A, SRD_B, SRD_C, SRD_D, SRD_E = 12, 16, 20, 24, 28
sW, sG, sC, sTO = 32, 33, 34, 35
sX = 100
sPure = 101
NPURE = 32
sP = 62
VOTE = 0xe4
sR = 63
sT0 = 76
TIMEOUT = 1 << 20
LOG2E = math.log2(math.e)


def srd(A, d, p, nbytes):
    A('s_mov_b32 s%d, s%d' % (d, p))
    A('s_and_b32 s%d, s%d, 0xffff' % (d + 1, p + 1))
    A('s_mov_b32 s%d, 0x%x' % (d + 2, nbytes))
    A('s_mov_b32 s%d, 0x20000' % (d + 3))


def S4(d):
    return s(d, 4)


def timeout_stub(A, back):
    A('s_sub_u32 s%d, s%d, 1' % (sTO, sTO))
    A('s_cbranch_scc0 %s' % back)
    A('s_endpgm')


def sum8(A, vx, sa, sb):
    A('v_readlane_b32 s%d, v%d, 0' % (sa, vx))
    for i in range(1, 8):
        A('v_readlane_b32 s%d, v%d, %d' % (sb, vx, i))
        A('s_add_u32 s%d, s%d, s%d' % (sa, sa, sb))


def init_load(A, t0, t1):
    A('v_lshlrev_b32 v%d, 5, v0' % t1)
    A('v_min_u32 v%d, 0x%x, v%d' % (t1, VOTE, t1))
    A('buffer_load_dword v%d, v%d, %s, 0 offen sc1' % (t0, t1, S4(DBG)))


def near(A, r, tmp):
    A('s_lshr_b32 s%d, s%d, 8' % (tmp, r))
    A('s_xor_b32 s%d, s%d, s%d' % (tmp, tmp, sP))
    A('s_and_b32 s%d, s%d, 0x2000' % (tmp, tmp))
    A('s_xor_b32 s%d, s%d, s%d' % (r, r, tmp))


def wait_init(A, t0, t1, sa, sb, issued=False):
    L, L2 = A.newlabel('L_wi'), A.newlabel('L_wiok')
    L3 = A.newlabel('L_wi')
    if issued:
        A('s_branch ' + L3)
    A.label(L)
    init_load(A, t0, t1)
    A.label(L3)
    A('s_waitcnt vmcnt(0)')
    sum8(A, t0, sa, sb)
    A('v_readlane_b32 s%d, v%d, 8' % (sP, t0))
    A('s_lshr_b32 s%d, s%d, 16' % (sb, sP))
    A('s_add_u32 s%d, s%d, s%d' % (sa, sa, sb))
    A('s_cmp_ge_u32 s%d, 288' % sa)
    A('s_cbranch_scc1 %s' % L2)
    A('s_sleep 16')
    timeout_stub(A, L)
    A.label(L2)
    A('s_and_b32 s%d, s%d, 0xffff' % (sP, sP))
    A('s_cmp_gt_u32 s%d, 16' % sP)
    A('s_cselect_b32 s%d, 0x2000, 0' % sP)
    A('s_lshr_b32 s%d, s%d, 5' % (sa, sR))
    A('v_readlane_b32 s%d, v%d, s%d' % (sPure, t0, sa))


def poll_data(A, loads, regs, tmp, sleep):
    L, L2 = A.newlabel('L_pd'), A.newlabel('L_pdok')
    A.label(L)
    for o in loads:
        A(o)
    A('s_waitcnt vmcnt(0)')
    maxall(A, regs, tmp)
    A('v_cmp_eq_u32 vcc, -1, v%d' % tmp)
    A('s_cbranch_vccz %s' % L2)
    if sleep:
        A('s_sleep %d' % sleep)
    timeout_stub(A, L)
    A.label(L2)


def maxall(A, regs, tmp):
    regs = list(regs)
    A('v_max_u32 v%d, v%d, v%d' % (tmp, regs[0], regs[-1]))
    regs = regs[1:-1]
    while regs:
        x = regs[:2]
        regs = regs[2:]
        A('v_max3_u32 v%d, v%d, v%d, v%d' % (tmp, tmp, x[0], x[-1]))


def wait_flags(A, vf, vaddr, need, sleep=1):
    L, L2 = A.newlabel('L_wf'), A.newlabel('L_wfok')
    A.label(L)
    A('buffer_load_dword v%d, v%d, %s, 0 offen sc1' % (vf, vaddr, S4(WS)))
    A('s_waitcnt vmcnt(0)')
    A('v_cmp_gt_i32 vcc, %s, v%d' % (need, vf))
    A('s_cbranch_vccz %s' % L2)
    if sleep:
        A('s_sleep %d' % sleep)
    timeout_stub(A, L)
    A.label(L2)


def lane0_addr(A, dst, sval, tmp):
    A('v_mov_b32 v%d, 0x%x' % (tmp, OOB))
    A('v_mov_b32 v%d, s%d' % (dst, sval))
    A('v_cmp_eq_u32 vcc, 0, v0')
    A('v_cndmask_b32 v%d, v%d, v%d, vcc' % (dst, tmp, dst))


def bits(A, dst, terms, tmp, base=None):
    first = True
    for (si, wd, so) in terms:
        A('v_bfe_u32 v%d, v0, %d, %d' % (tmp, si, wd))
        if first:
            A('v_lshlrev_b32 v%d, %d, v%d' % (dst, so, tmp))
            first = False
        else:
            A('v_lshl_add_u32 v%d, v%d, %d, v%d' % (dst, tmp, so, dst))
    if base is not None:
        A('v_add_u32 v%d, %s, v%d' % (dst, base, dst))


def tstamp(A, opt, slot, t0, t1, sa, now=True):
    if not opt.get('prof'):
        return
    if now:
        A('s_memrealtime s[78:79]')
    A('s_lshl_b32 s%d, s%d, 2' % (sa, sR))
    A('s_add_u32 s%d, s%d, s%d' % (sa, sa, sW))
    A('s_lshl_b32 s%d, s%d, 6' % (sa, sa))
    A('s_add_u32 s%d, s%d, 0x%x' % (sa, sa, PROF + 2 * MB + slot * 4))
    A('s_waitcnt lgkmcnt(0)')
    A('v_mov_b32 v%d, s78' % t0)
    A('v_mov_b32 v%d, 0' % t1)
    A('buffer_store_dword v%d, v%d, %s, s%d offen' % (t0, t1, S4(WS), sa))
    A('s_memtime s[78:79]')
    A('s_add_u32 s%d, s%d, 0x100000' % (sa, sa))
    A('s_waitcnt lgkmcnt(0)')
    A('v_mov_b32 v%d, s78' % t0)
    A('buffer_store_dword v%d, v%d, %s, s%d offen' % (t0, t1, S4(WS), sa))


def cap_vm(A, start, already=28):
    out, n, done = [], already, False
    for l in A.lines[start:]:
        t = l.strip()
        if t.startswith('s_waitcnt') and 'vmcnt' in t:
            done = True
        if not done and t.startswith('buffer_'):
            n += 1
            if n > 60:
                out.append('    s_waitcnt vmcnt(59)')
        out.append(l)
    A.lines[start:] = out


def help_kv(A, opt, ptr, sh, t0, t1, sa):
    hk = opt.get('hk', 0)
    if not hk:
        return
    srd(A, SRD_C, ptr, 8 * MB)
    bits(A, t1, [(1, 3, 13), (4, 2, 20), (0, 1, 7)], t0)
    A('s_lshl_b32 s%d, s%d, 16' % (sa, sW))
    A('v_add_u32 v%d, s%d, v%d' % (t1, sa, t1))
    A('s_lshl_b32 s%d, s%d, 8' % (sa, sh))
    A('s_add_u32 s%d, s%d, 0x400000' % (sa, sa))
    for i in range(4):
        A('buffer_load_dword v252, v%d, %s, s%d offen%s' % (t1, S4(SRD_C), sa, ' nt' if hk == 2 else ''))
        A('s_add_u32 s%d, s%d, 0x40000' % (sa, sa))


def dbg_mark(A, opt, word, t0, t1):
    if not opt.get('diag'):
        return
    A('s_memrealtime s[78:79]')
    A('s_waitcnt lgkmcnt(0)')
    A('s_sub_u32 s78, s78, s76')
    A('v_mov_b32 v%d, s78' % t0)
    A('v_mov_b32 v%d, %d' % (t1, 4 * word))
    A('s_mov_b64 exec, 1')
    A('buffer_atomic_umax v%d, v%d, %s, 0 offen sc1' % (t0, t1, S4(DBG)))
    A('s_mov_b64 exec, -1')
    A('s_waitcnt vmcnt(0)')


def diag_hold(A, opt):
    if opt.get('diag', 0) > 1:
        L = A.newlabel('L_hold')
        A.label(L)
        A('s_memrealtime s[78:79]')
        A('s_waitcnt lgkmcnt(0)')
        A('s_sub_u32 s78, s78, s76')
        A('s_cmp_lt_u32 s78, %d' % (opt['diag'] * 100))
        A('s_cbranch_scc1 ' + L)


def touch_code(A, lab0, lab1, sidx, d, tmp):
    L = A.newlabel('L_pc')
    A('s_getpc_b64 s[%d:%d]' % (d, d + 1))
    A.label(L)
    A('s_add_u32 s%d, s%d, %s-%s' % (d, d, lab0, L))
    A('s_addc_u32 s%d, s%d, 0' % (d + 1, d + 1))
    A('s_and_b32 s%d, s%d, 0xffff' % (d + 1, d + 1))
    A('s_mov_b32 s%d, %s-%s' % (d + 2, lab1, lab0))
    A('s_mov_b32 s%d, 0x20000' % (d + 3))
    A('v_lshlrev_b32 v%d, 7, v0' % tmp)
    A('v_lshl_add_u32 v%d, s%d, 13, v%d' % (tmp, sidx, tmp))
    A('buffer_load_dword v253, v%d, %s, 0 offen' % (tmp, S4(d)))


def hold_after(A, us, ref=None):
    L = A.newlabel('L_hold')
    if ref is None:
        A('s_memrealtime s[76:77]')
        ref = 76
    A.label(L)
    A('s_sleep 8')
    A('s_memrealtime s[78:79]')
    A('s_waitcnt lgkmcnt(0)')
    A('s_sub_u32 s78, s78, s%d' % ref)
    A('s_cmp_lt_u32 s78, %d' % (us * 100))
    A('s_cbranch_scc1 ' + L)
```

```python
from common import *

XROW = 2064
XBUF = 32 * XROW
LSCR = 2 * XBUF


def load_weights(A, srdw, sBase, row_bytes, rows_of, tr_lane_terms, tr_off, ngroups, vRaw, vWr, vTr, t0, sa, sb,
                 scr, after_first=None, pre_out=0, mod=''):
    bits(A, vRaw, [(0, 2, 4)], t0)
    A('v_lshrrev_b32 v%d, 2, v0' % t0)
    A('s_mov_b32 s%d, %d' % (sa, row_bytes))
    A('v_mul_lo_u32 v%d, v%d, s%d' % (t0, t0, sa))
    A('v_add_u32 v%d, v%d, v%d' % (vRaw, vRaw, t0))
    A('s_lshl_b32 s%d, s%d, 12' % (sa, sW))
    A('s_add_u32 s%d, s%d, %d' % (sa, sa, scr))
    bits(A, vWr, [(0, 6, 4)], t0, 's%d' % sa)
    bits(A, vTr, tr_lane_terms, t0, 's%d' % sa)
    depth = 4

    def issue(gi):
        for i in range(4):
            A('s_add_u32 s%d, s%d, 0x%x' % (sb, sBase(gi) if callable(sBase) else sBase, rows_of(gi, i) * row_bytes))
            A('buffer_load_dwordx4 %s, v%d, %s, s%d offen%s' % (a(16 * gi + 4 * i, 4), vRaw, S4(srdw), sb, mod))
    for gi in range(depth):
        issue(gi)
    issued = depth
    for gi in range(ngroups):
        A('s_waitcnt vmcnt(%d)' % ((issued - 1 - gi) * 4))
        if gi == 0 and after_first:
            after_first()
        while issued < ngroups and issued - (gi + 1) < depth:
            issue(issued)
            issued += 1
        for i in range(4):
            A('ds_write_b128 v%d, %s offset:%d' % (vWr, a(16 * gi + 4 * i, 4), i * 1024))
        for ksl in range(2):
            for tile in range(2):
                for pp in range(2):
                    A('ds_read_b64_tr_b16 %s, v%d offset:%d' % (a(16 * gi + (ksl * 2 + tile) * 4 + 2 * pp, 2), vTr, tr_off(ksl, pp, tile)))
        A('s_waitcnt lgkmcnt(0)')


def sel_frag(A, dst, et, t0, t1):
    A('v_bfe_u32 v%d, v0, 2, 2' % t0)
    A('v_lshrrev_b32 v%d, 4, v0' % t1)
    A('v_cmp_eq_u32 vcc, v%d, v%d' % (t0, t1))
    A('v_mov_b32 v%d, 0x%x' % (t1, 0x3f80 << (16 * et)))
    A('v_cndmask_b32 v%d, 0, v%d, vcc' % (t1, t1))
    A('v_and_b32 v%d, 3, v0' % t0)
    for i in range(4):
        A('v_cmp_eq_u32 vcc, %d, v%d' % (i, t0))
        A('v_cndmask_b32 v%d, 0, v%d, vcc' % (dst + i, t1))


def proj(A, opt, kind):
    P = 'L_' + kind
    V = Alloc(1, 252)
    vL16, vRd, vRdSum, vFl, vArm = [V(n) for n in 'l16 rd rdsum fl arm'.split()]
    t0, t1, t2, t3 = V('t0'), V('t1'), V('t2'), V('t3')
    vX = V('x', 32, 4)
    vD = V('d', 16, 4)
    vF = V('f', 8, 4)
    vJ = V('junk', 4, 4)
    vDb, vXb = (V('db', 16, 4), V('xb', 16, 4)) if kind != 'q' else (0, 0)
    S = Alloc(36, 62)
    sH, sSeg, sXo, sM, sMsum, sOut, sOut2, sArm, sPf, sA, sB, sCc = [S(n) for n in 'h seg xo m msum out out2 arm pf a b cc'.split()]
    base = {'k': 16, 'v': 20, 'q': 24}[kind]
    A.label(P)
    if kind == 'q' and opt.get('chainonly'):
        A('s_endpgm')
    cap0 = len(A.lines)
    srd(A, SRD_A, {'k': P_WK, 'v': P_WV, 'q': P_WQ}[kind], 8 * MB)
    srd(A, SRD_B, P_X, 4 * MB)
    assert sH == 36
    if kind == 'q':
        help_kv(A, opt, P_WK, sH, t0, t1, sA)
    A('v_lshlrev_b32 v%d, 4, v0' % vL16)
    A('s_lshl_b32 s%d, s%d, 7' % (sA, sH))
    if kind == 'q':
        A('s_add_u32 s%d, s%d, 0x%x' % (sA, sA, F_O))
        A('s_cmp_eq_u32 s%d, 0' % sW)
        A('s_cselect_b32 s%d, 8, 0' % sB)
        bits(A, vFl, [(0, 3, 12)], t0, 's%d' % sA)
        A('v_mov_b32 v%d, 0x%x' % (t0, OOB))
        A('v_cmp_gt_u32 vcc, s%d, v0' % sB)
        A('v_cndmask_b32 v%d, v%d, v%d, vcc' % (vFl, t0, vFl))
    else:
        A('s_lshl_b32 s%d, s%d, 1' % (sA, sA))
        A('s_add_u32 s%d, s%d, 0x%x' % (sA, sA, F_KV + (128 if kind == 'v' else 0)))
        A('s_cmp_eq_u32 s%d, 0' % sW)
        A('s_cselect_b32 s%d, 2, 0' % sB)
        bits(A, vFl, [(0, 1, 13)], t0, 's%d' % sA)
        A('v_mov_b32 v%d, 0x%x' % (t0, OOB))
        A('v_cmp_gt_u32 vcc, s%d, v0' % sB)
        A('v_cndmask_b32 v%d, v%d, v%d, vcc' % (vFl, t0, vFl))
    npre = 1
    A('v_and_b32 v%d, 15, v0' % t0)
    A('v_mul_u32_u24 v%d, %d, v%d' % (vRd, XROW, t0))
    A('v_lshrrev_b32 v%d, 4, v0' % t0)
    A('v_lshl_add_u32 v%d, v%d, 8, v%d' % (vRd, t0, vRd))
    A('v_lshlrev_b32 v%d, 1, v%d' % (vRdSum, vRd))
    A('v_add_u32 v%d, %d, v%d' % (vRdSum, XBUF, vRdSum))
    A('s_mul_i32 s%d, s%d, %d' % (sM, sW, 8 * XROW))
    A('s_lshl_b32 s%d, s%d, 1' % (sMsum, sM))
    A('s_add_u32 s%d, s%d, %d' % (sMsum, sMsum, XBUF))
    A('s_lshl_b32 s%d, s%d, 14' % (sXo, sW))

    def dma_row(i):
        return ['s_add_u32 m0, s%d, %d' % (sM, i * XROW), 's_add_u32 s%d, s%d, %d' % (sA, sXo, i * 2048),
                'buffer_load_dwordx4 v%d, %s, s%d offen lds' % (vL16, S4(SRD_B), sA),
                'buffer_load_dwordx4 v%d, %s, s%d offen offset:1024 lds' % (vL16, S4(SRD_B), sA)]
    def dma_all():
        for i in range(8):
            for o in dma_row(i):
                A(o)
        A('s_sub_u32 s%d, s%d, s%d' % (sM, sMsum, sM))
        A('s_add_u32 s%d, s%d, 0x10000' % (sXo, sXo))
    nfuse = 0 if kind == 'q' else opt.get('nf', 2)
    WSCR = LSCR if nfuse == 2 else XBUF
    for i in range(max(nfuse, 1)):
        dma_all()
    nt = ' nt' if opt.get('nt', 31) & 2 else ''
    vRaw, vWr, vTr = vX, vX + 1, vX + 2
    A('s_and_b32 s%d, s%d, 1' % (sA, sW))
    A('s_lshl_b32 s%d, s%d, 3' % (sA, sA))
    bits(A, t1, [(4, 2, 1)], t0, 's%d' % sA)
    A('v_and_b32 v%d, 15, v0' % t0)
    A('v_xor_b32 v%d, v%d, v%d' % (t1, t1, t0))
    bits(A, vRaw, [(4, 2, 13)], t0)
    A('v_lshl_add_u32 v%d, v%d, 4, v%d' % (vRaw, t1, vRaw))
    A('s_lshl_b32 s%d, s%d, 12' % (sA, sW))
    A('s_add_u32 s%d, s%d, %d' % (sA, sA, WSCR))
    A('v_add_u32 v%d, s%d, v%d' % (vWr, sA, vL16))
    A('s_lshl_b32 s%d, s%d, 1' % (sA, sW))
    A('v_bfe_u32 v%d, v0, 2, 3' % t1)
    A('v_xor_b32 v%d, s%d, v%d' % (t1, sA, t1))
    bits(A, vTr, [(4, 2, 12), (2, 2, 8), (0, 2, 3)], t0, '%d' % WSCR)
    A('v_lshl_add_u32 v%d, v%d, 5, v%d' % (vTr, t1, vTr))
    A('v_xor_b32 v%d, 32, v%d' % (vTr + 1, vTr))
    A('s_lshl_b32 s%d, s%d, 8' % (sCc, sH))
    A('s_lshl_b32 s%d, s%d, 20' % (sA, sW))
    A('s_add_u32 s%d, s%d, s%d' % (sCc, sCc, sA))

    def wissue(gi):
        for i in range(4):
            A('s_add_u32 s%d, s%d, 0x%x' % (sB, sCc, (16 * (gi & 7) + 4 * i + 512 * (gi >> 3)) * 8192))
            A('buffer_load_dwordx4 %s, v%d, %s, s%d offen%s' % (a(16 * gi + 4 * i, 4), vRaw, S4(SRD_A), sB, nt))
    if kind == 'q':
        for i in range(opt.get('qdl', 6)):
            A('s_sleep 32')
    DEP = opt.get('dep', 3)
    for gi in range(DEP):
        wissue(gi)
    cap_vm(A, cap0)

    def weights_rest():
        if nfuse == 2:
            A('v_add_u32 v%d, %d, v%d' % (vX + 4, XBUF, vRd))

        def mm(gi):
            for sg in range(nfuse):
                for ksl in range(2):
                    for tt2 in range(2):
                        for tt in range(2):
                            acc = v((vD, vDb)[sg] + (tt * 2 + tt2) * 4, 4)
                            A('v_mfma_f32_16x16x32_bf16 %s, %s, %s, %s' % (acc, a(16 * gi + (ksl * 2 + tt) * 4, 4), v((vX + 16, vXb)[sg] + ksl * 8 + tt2 * 4, 4), acc if gi or ksl else '0'))
        for gi in range(16):
            A('s_waitcnt lgkmcnt(0)')
            if nfuse == 2:
                A('s_barrier')
            if gi:
                mm(gi - 1)
            A('s_waitcnt vmcnt(%d)' % (4 * (min(16, gi + DEP) - 1 - gi) + (gi > 16 - DEP)))
            sl = (gi & 1) * 16384 if nfuse < 2 else 0
            for i in range(4):
                A('ds_write_b128 v%d, %s offset:%d' % (vWr, a(16 * gi + 4 * i, 4), sl + i * 1024))
            if gi + DEP < 16:
                wissue(gi + DEP)
            if gi + DEP == 16:
                init_load(A, t0, t1)
            A('s_waitcnt lgkmcnt(0)')
            A('s_barrier')
            for ksl in range(2):
                for tile in range(2):
                    for pp in range(2):
                        A('ds_read_b64_tr_b16 %s, v%d offset:%d' % (a(16 * gi + (ksl * 2 + tile) * 4 + 2 * pp, 2), vTr + tile, sl + (8 * ksl + 4 * pp) * 256))
            for sg in range(nfuse):
                if sg:
                    A('s_waitcnt lgkmcnt(8)')
                for ksl in range(2):
                    ks = 2 * gi + ksl
                    for tt2 in range(2):
                        A('ds_read_b128 %s, v%d offset:%d' % (v((vX + 16, vXb)[sg] + ksl * 8 + tt2 * 4, 4), (vRd, vX + 4)[sg], tt2 * 16 * XROW + 16 * (ks & 15) + 1024 * (ks >> 4)))
        A('s_waitcnt lgkmcnt(0)')
        mm(15)
        wait_init(A, t0, t1, sA, sB, True)
        tstamp(A, opt, 1, t0, t1, sA)
    A('s_mul_i32 s%d, s%d, 0x%x' % (sOut, sH, ROW))
    fixups = []
    if kind != 'q':
        A('s_lshl_b32 s%d, s%d, 11' % (sA, sW))
        A('s_add_u32 s%d, s%d, s%d' % (sOut2, sOut, sA))
        A('s_add_u32 s%d, s%d, 0x%x' % (sOut2, sOut2, VT))
        A('s_lshl_b32 s%d, s%d, 10' % (sA, sW))
        A('s_add_u32 s%d, s%d, s%d' % (sOut, sOut, sA))
        A('s_add_u32 s%d, s%d, 0x%x' % (sOut, sOut, KX if kind == 'k' else VX))
        bits(A, vArm, [(4, 2, 22), (4, 2, 16), (0, 4, 4)], t0)
        A('s_lshl_b32 s%d, s%d, 3' % (sArm, sW))
        A('s_bfe_u32 s%d, s%d, 0x10001' % (sA, sH))
        A('s_add_u32 s%d, s%d, s%d' % (sArm, sArm, sA))
        A('s_mul_i32 s%d, s%d, 0x%x' % (sArm, sArm, ROW))
        A('s_and_b32 s%d, s%d, 1' % (sA, sH))
        A('s_lshl_b32 s%d, s%d, 12' % (sA, sA))
        A('s_add_u32 s%d, s%d, s%d' % (sArm, sArm, sA))
        A('s_lshr_b32 s%d, s%d, 2' % (sA, sH))
        A('s_lshl_b32 s%d, s%d, 8' % (sA, sA))
        A('s_add_u32 s%d, s%d, s%d' % (sArm, sArm, sA))
        A('s_add_u32 s%d, s%d, 0x%x' % (sArm, sArm, PART))
        sKa = S('ka')
        A('s_lshr_b32 s%d, s%d, 1' % (sKa, sH))
        A('s_mul_i32 s%d, s%d, 0x%x' % (sKa, sKa, ROW))
        A('s_and_b32 s%d, s%d, 1' % (sA, sH))
        A('s_lshl_b32 s%d, s%d, 2' % (sA, sA))
        A('s_add_u32 s%d, s%d, s%d' % (sA, sA, sW))
        A('s_lshl_b32 s%d, s%d, 10' % (sA, sA))
        A('s_add_u32 s%d, s%d, s%d' % (sKa, sKa, sA))
        A('s_add_u32 s%d, s%d, 0x%x' % (sKa, sKa, KVM))
        fixups = [sOut, sOut2, sKa, sArm]
        vSent = V('sent', 4, 4)
        for i in range(4):
            A('v_mov_b32 v%d, -1' % (vSent + i))
        A('s_and_b32 s%d, s%d, 15' % (sPf, sR))
        A('s_lshl_b32 s%d, s%d, 2' % (sPf, sPf))
        A('s_add_u32 s%d, s%d, s%d' % (sPf, sPf, sW))
        A('s_lshl_b32 s%d, s%d, 10' % (sPf, sPf))
        A('s_add_u32 s%d, s%d, 0x20000' % (sPf, sPf))
    if kind == 'v':
        vSel = V('sel', 8, 4)
        vD2 = V('d2', 16, 4)
        vG = V('g', 8, 4)
        sel_frag(A, vSel, 0, t0, t1)
        sel_frag(A, vSel + 4, 1, t0, t1)
    cvt = lambda d, x, y: A('v_cvt_pk_bf16_f32 v%d, v%d, v%d' % (d, x, y))
    ldx4 = lambda dst, so, off: 'buffer_load_dwordx4 %s, v%d, %s, s%d offen offset:%d sc1' % (v(dst, 4), vL16, S4(WS), so, off)
    stx4 = lambda src, so, off: 'buffer_store_dwordx4 %s, v%d, %s, s%d offen offset:%d sc1' % (v(src, 4), vL16, S4(WS), so, off)
    LQ, LKV = LSCR, LSCR + 8192
    if kind == 'q':
        vQw, vIdx, vFm, vFv, vKr = V('qw'), V('idx'), V('fm'), V('fv'), V('kr')
        vQr = vArm
        vKx = V('kx', 32, 4)
        vVT = V('vt', 16, 4)
        vKm, vVm = V('km', 8, 4), V('vm', 4, 4)
        vQ = V('q', 16, 4)
        vD3 = vKx
        vO = vKx + 16
        vG = vQ
        vVmT = vQ + 8
        vS = V('s', 8, 4)
        MM = V('mm', 4, 4)
        vBias = V('bias', 8, 4)
        vStrip = V('strip', 20, 4)
        vLs = V('ls', 4, 4)
        vP = V('p', 4, 4)
        vOne = V('one', 4, 4)
        vPm, vHalf = V('pm', 2), V('half', 2)
        sKs, sKm, sVm, sMk = [S(n) for n in 'ks km vm mk'.split()]
        sScale = S('scale', 2)
        assert t0 % 2 == 0
        assert VT == KX + 8192
        A('s_lshl_b32 s%d, s%d, 12' % (sB, sW))
        A('s_add_u32 s%d, s%d, %d' % (sMk, sB, LKV))
        A('s_add_u32 s%d, s%d, s%d' % (sKs, sB, sOut))
        fixups = [sKs, sKm, sVm, sOut]
        A('s_add_u32 s%d, s%d, 0x%x' % (sKs, sKs, KX))
        A('s_lshr_b32 s%d, s%d, 1' % (sA, sW))
        A('s_lshl_b32 s%d, s%d, 12' % (sB, sA))
        A('s_add_u32 s%d, s%d, %d' % (sB, sB, LKV + 8192))
        A('v_add_u32 v%d, s%d, v%d' % (t2, sB, vL16))
        vVr = V('vr')
        A('v_mov_b32 v%d, v%d' % (vVr, t2))
        A('v_add_u32 v%d, %d, v%d' % (vKr, LKV, vL16))
        A('s_lshr_b32 s%d, s%d, 1' % (sKm, sH))
        A('s_mul_i32 s%d, s%d, 0x%x' % (sKm, sKm, ROW))
        A('s_and_b32 s%d, s%d, 1' % (sB, sH))
        A('s_lshl_b32 s%d, s%d, 12' % (sB, sB))
        A('s_add_u32 s%d, s%d, s%d' % (sKm, sKm, sB))
        A('s_add_u32 s%d, s%d, 0x%x' % (sKm, sKm, KVM))
        A('s_lshl_b32 s%d, s%d, 10' % (sB, sA))
        A('s_add_u32 s%d, s%d, s%d' % (sVm, sKm, sB))
        A('s_lshl_b32 s%d, s%d, 11' % (sB, sA))
        A('s_add_u32 s%d, s%d, s%d' % (sOut, sOut, sB))
        A('s_and_b32 s%d, s%d, 1' % (sA, sW))
        A('s_lshl_b32 s%d, s%d, 12' % (sB, sA))
        A('s_add_u32 s%d, s%d, s%d' % (sOut, sOut, sB))
        A('s_add_u32 s%d, s%d, 0x%x' % (sOut, sOut, OO))
        A('s_add_u32 s%d, s%d, %d' % (sB, sB, LQ))
        A('v_add_u32 v%d, s%d, v%d' % (vQr, sB, vL16))
        A('s_lshl_b32 s%d, s%d, 10' % (sB, sW))
        A('s_add_u32 s%d, s%d, %d' % (sB, sB, LQ))
        A('v_add_u32 v%d, s%d, v%d' % (vQw, sB, vL16))
        A('s_mov_b32 s%d, %s' % (sScale, f32(128 ** -0.5 * LOG2E)))
        A('s_lshl_b32 s%d, s%d, 4' % (sA, sA))
        A('v_and_b32 v%d, 15, v0' % t0)
        A('v_add_u32 v%d, s%d, v%d' % (t0, sA, t0))
        A('v_lshrrev_b32 v%d, 4, v0' % t1)
        A('v_lshlrev_b32 v%d, 2, v%d' % (t1, t1))
        A('v_sub_u32 v%d, v%d, v%d' % (t0, t0, t1))
        A('v_mov_b32 v%d, %s' % (t1, f32(-1e30)))
        for i in range(8):
            A('v_cmp_gt_i32 vcc, %d, v%d' % (16 * (i >> 2) + (i & 3), t0))
            A('v_cndmask_b32 v%d, 0, v%d, vcc' % (vBias + i, t1))
        for i in range(20):
            A('v_mov_b32 v%d, 0' % (vStrip + i))
        sel_frag(A, vStrip + 4, 0, t0, t1)
        sel_frag(A, vStrip + 12, 1, t0, t1)
        for i in range(4):
            A('v_mov_b32 v%d, 0x3f803f80' % (vOne + i))
        for i in range(2):
            A('v_mov_b32 v%d, 0x3f003f00' % (vHalf + i))
        A('v_and_b32 v%d, 8, v0' % t0)
        A('v_cmp_eq_u32 vcc, 0, v%d' % t0)
        A('v_mov_b32 v%d, 0xeeee' % t1)
        A('v_mov_b32 v%d, 0x4444' % t2)
        A('v_cndmask_b32 v%d, v%d, v%d, vcc' % (vIdx, t1, t2))
        A('s_lshl_b32 s%d, s%d, 8' % (sA, sH))
        A('s_add_u32 s%d, s%d, 0x%x' % (sB, sA, F_KV))
        bits(A, t3, [(0, 1, 7)], t0, 's%d' % sB)
        if opt.get('qpl', 1) == 32:
            bits(A, vFm, [(0, 5, 7), (5, 1, 30)], t0)
        else:
            A('s_lshl_b32 s%d, s%d, 10' % (sA, sW))
            lane0_addr(A, vFm, sA, t0)

    weights_rest()
    for r_ in fixups:
        near(A, r_, sA)
    A('s_mov_b32 s%d, 0' % sSeg)
    A('s_barrier')
    flag_st = 'buffer_store_dword v%d, v%d, %s, 0 offen sc1' % (t3, vFl, S4(WS))
    mfma = lambda d, x, y, c_: 'v_mfma_f32_16x16x32_bf16 %s, %s, %s, %s' % (d, x, y, c_)
    cv = lambda d, x, y: 'v_cvt_pk_bf16_f32 v%d, v%d, v%d' % (d, x, y)

    class Order:
        def __init__(self, name, lim):
            self.name, self.lim, self.ops = name, lim, []

        def add(self, tag):
            self.ops.append(tag)

        def wait(self, tag):
            last = max(i for i, t in enumerate(self.ops) if t == tag)
            n = len(self.ops) - 1 - last
            n = min(n, self.lim)
            return 's_waitcnt %s(%d)' % (self.name, n)

    def gemm(fill, stream=(), start=0, vsp=4):
        L, M = Order('lgkmcnt', 15), Order('vmcnt', 63)
        M.add('old')
        stream = list(stream)

        def emit(o):
            if isinstance(o, tuple):
                if o[0] in ('lds', 'vm'):
                    (L if o[0] == 'lds' else M).add(o[1])
                    A(o[2])
                else:
                    A((L if o[0] == 'wl' else M).wait(o[1]))
            else:
                assert not o.startswith('ds_') and not o.startswith('buffer_'), o
                A(o)

        def txt(o):
            return o[2] if isinstance(o, tuple) and len(o) == 3 else ('s_waitcnt' if isinstance(o, tuple) else o)

        gap = {'t': 4, 'v': 8}

        def fits(o, force=False):
            x = txt(o)
            if x.startswith(';') or x.endswith(':'):
                return True
            if 'mfma' in x:
                gap['t'], gap['v'] = 4, (12 if 'smfmac' in x else 8)
                return True
            if x.startswith('v_'):
                e = max(gap['t'], gap['v']) + (8 if x[:7] in ('v_exp_f', 'v_rcp_f', 'v_perml') else 4)
            elif x.startswith('buffer_') or x.startswith('ds_write'):
                e = gap['t'] + 12
            elif x.startswith('s_cbranch') or x == 's_barrier':
                e = gap['t'] + 8
            else:
                e = gap['t'] + 4
            if e > 16 and not force:
                return False
            gap['t'] = e
            return True

        def put_(o):
            fits(o, True)
            emit(o)

        def rd(ks, tt2):
            put_(('lds', 'x%d' % ks, 'ds_read_b128 %s, v%d offset:%d' % (v(vX + (ks & 3) * 8 + tt2 * 4, 4), vRd, tt2 * 16 * XROW + 16 * (ks & 15) + 1024 * (ks >> 4))))
        for o in fill.get('head', []):
            emit(o)
        for ks in range(3):
            rd(ks, 0); rd(ks, 1)
        emit(('wl', 'x0'))
        last_vm = -99
        for ks in range(32):
            n = 0
            for tt2 in range(2):
                for tt in range(2):
                    acc = v(vD + (tt * 2 + tt2) * 4, 4)
                    put_(mfma(acc, a((ks * 2 + tt) * 4, 4), v(vX + (ks & 3) * 8 + tt2 * 4, 4), acc if ks else '0'))
                    if n in (0, 2) and ks + 3 < 32:
                        rd(ks + 3, n >> 1)
                    if n == 3 and ks < 31:
                        put_(('wl', 'x%d' % (ks + 1)))
                    for o in fill.get((ks, n), []):
                        put_(o)
                    while stream and ks >= start:
                        o = stream[0]
                        if isinstance(o, tuple) and o[0] == 'at':
                            if ks < o[1]:
                                break
                            stream.pop(0)
                            continue
                        if isinstance(o, tuple) and o[0] == 'vm' and 4 * ks + n - last_vm < vsp:
                            break
                        if not fits(o):
                            break
                        if isinstance(o, tuple) and o[0] == 'vm':
                            last_vm = 4 * ks + n
                        emit(stream.pop(0))
                    n += 1
        for o in stream:
            emit(o)
        A('v_sub_u32 v%d, v%d, v%d' % (vRd, vRdSum, vRd))
        for tt2 in range(2):
            for j in range(4):
                A(cv(vF + 4 * tt2 + j, vD + 4 * tt2 + j, vD + 8 + 4 * tt2 + j))
        return L, M, emit

    dsp = opt.get('dsp' + ('q' if kind == 'q' else ''), 4)
    dend = (16 * dsp + 3) // 4

    def base_fill(d0=0):
        fill = {}
        put = lambda g_, os_: fill.setdefault(((g_ >> 2) + d0, g_ & 3), []).extend(os_)
        for i in range(8):
            d = dma_row(i)
            put(2 * i * dsp, d[0:2])
            put(2 * i * dsp + 1, [('vm', 'dma', d[2])])
            put((2 * i + 1) * dsp + 1, [('vm', 'dma', d[3])])
        put(15 * dsp + 2, ['s_sub_u32 s%d, s%d, s%d' % (sM, sMsum, sM), 's_add_u32 s%d, s%d, 0x10000' % (sXo, sXo)])
        return fill

    if kind != 'q':
        adv = lambda r_: 's_add_u32 s%d, s%d, 0x%x' % (r_, r_, SEG)
        outs = ['s_add_u32 s%d, s%d, 4096' % (sB, sOut), ('vm', 'st', stx4(vF, sOut, 0)), ('vm', 'st', stx4(vF + 4, sB, 0)), adv(sOut)]
        if kind == 'k':
            outs += [('vm', 'st', 'buffer_store_dwordx4 %s, v%d, %s, s%d offen sc1' % (v(vSent, 4), vArm, S4(WS), sArm)),
                     ('vm', 'st', stx4(vSent, sKa, 0)), adv(sArm), adv(sKa)]
        else:
            outs += [('vm', 'st', stx4(vG + 4 * et, sOut2, et * 1024)) for et in range(2)] + [adv(sOut2)]
        pf = [('vm', 'pf', 'buffer_load_dwordx4 %s, v%d, %s, s%d offen' % (v(vJ, 4), vL16, S4(SRD_B), sPf)), 's_add_u32 s%d, s%d, 0x10000' % (sPf, sPf)]

        def transpose_v():
            if kind == 'v':
                for et in range(2):
                    for tt2 in range(2):
                        A(mfma(v(vD2 + (et * 2 + tt2) * 4, 4), v(vF + 4 * tt2, 4), v(vSel + 4 * et, 4), '0'))
                for i in range(8):
                    A(cv(vG + i, vD2 + 2 * i, vD2 + 2 * i + 1))
        NI = opt.get('ni', 6)
        if nfuse == 1:
            A('v_sub_u32 v%d, v%d, v%d' % (vRd, vRdSum, vRd))
        for sg in range(nfuse):
            d_ = (vD, vDb)[sg]
            for tt2 in range(2):
                for j in range(4):
                    A(cv(vF + 4 * tt2 + j, d_ + 4 * tt2 + j, d_ + 8 + 4 * tt2 + j))
            transpose_v()
            for o in outs:
                A(o[2] if isinstance(o, tuple) else o)
        dma_all()
        A('s_add_u32 s%d, s%d, 0x%x' % (sPf, sPf, 0x10000 * nfuse))
        A('s_mov_b32 s%d, %d' % (sSeg, nfuse))
        A('v_mov_b32 v%d, %d' % (t3, nfuse))
        A('s_waitcnt vmcnt(16)')
        A('s_barrier')
        A(flag_st)
        A('s_waitcnt vmcnt(1)')
        A('s_barrier')
        if opt.get('kvm', 1):
            L, M, emit = gemm(base_fill(), pf, dend)
            transpose_v()
            A('s_mov_b32 s%d, %d' % (sSeg, nfuse + 1))
            A(M.wait('dma'))
            A('s_barrier')
            NE = opt.get('ne', 12)
            A.label(P + '_loope')
            nst = sum(isinstance(o, tuple) for o in outs)
            fill = base_fill(nst)
            fk = opt.get('fk', 20)
            fill.setdefault((fk, 3), []).extend([('wv', 'st'), 's_barrier', ('vm', 'fl', flag_st)])
            fill.setdefault((nst + dend, 1), []).extend(pf)
            L, M, emit = gemm(fill, outs + ['v_mov_b32 v%d, s%d' % (t3, sSeg)], 0)
            transpose_v()
            A('s_add_u32 s%d, s%d, 1' % (sSeg, sSeg))
            A('s_cmp_le_u32 s%d, %d' % (sSeg, NE))
            A(M.wait('dma'))
            A('s_barrier')
            A('s_cbranch_scc1 %s_loope' % P)
            A('.p2align 6')
            A.label(P + '_loop')
            L, M, emit = gemm(base_fill(), ['s_sub_u32 s%d, s%d, 2' % (sB, sSeg), 's_max_u32 s%d, s%d, %d' % (sB, sB, NE), 'v_mov_b32 v%d, s%d' % (t3, sB), ('vm', 'fl', flag_st)] + outs + pf, dend)
            transpose_v()
            A('s_add_u32 s%d, s%d, 1' % (sSeg, sSeg))
        else:
            A.label(P + '_loop0')
            L, M, emit = gemm(base_fill(), pf, dend)
            transpose_v()
            A('s_add_u32 s%d, s%d, 1' % (sSeg, sSeg))
            A('s_cmp_gt_u32 s%d, %d' % (sSeg, NI))
            A('s_cbranch_scc1 %s_ent0' % P)
            for o in outs:
                emit(o)
            A('v_mov_b32 v%d, s%d' % (t3, sSeg))
            A('s_waitcnt vmcnt(0)')
            A('s_barrier')
            A(flag_st)
            A('s_branch %s_loop0' % P)
            A.label(P + '_ent0')
            A('s_waitcnt vmcnt(0)')
            A('s_barrier')
            A('.p2align 6')
            A.label(P + '_loop')
            L, M, emit = gemm(base_fill(), ['s_sub_u32 s%d, s%d, 2' % (sB, sSeg), 's_max_u32 s%d, s%d, %d' % (sB, sB, NI), 'v_mov_b32 v%d, s%d' % (t3, sB), ('vm', 'fl', flag_st)] + outs + pf, dend)
            transpose_v()
            A('s_add_u32 s%d, s%d, 1' % (sSeg, sSeg))
        if opt.get('prof'):
            for sg, sl_ in ((16, 11), (48, 12)):
                Lx = A.newlabel('L_pf')
                A('s_cmp_lg_u32 s%d, %d' % (sSeg, sg))
                A('s_cbranch_scc1 ' + Lx)
                tstamp(A, opt, sl_, t0, t1, sA)
                A('s_waitcnt vmcnt(0)')
                A.label(Lx)
        A('s_cmp_lt_u32 s%d, 64' % sSeg)
        A(M.wait('dma'))
        A('s_barrier')
        A('s_cbranch_scc1 %s_loop' % P)
        A('s_xor_b32 s%d, s%d, 0x2000' % (sKa, sKa))
        for o in outs:
            emit(o)
    else:
        ld_m = [ldx4(vKm, sKm, 0), ldx4(vKm + 4, sKm, 1024), ldx4(vVm, sVm, 2048)]
        mregs = list(range(vKm, vKm + 8)) + list(range(vVm, vVm + 4))
        probe = ['v_mov_b32 v%d, 0' % vFv, 'buffer_atomic_add v%d, v%d, %s, s%d offen sc0 sc1' % (vFv, vFm, S4(WS), sKm)]
        stage = ['s_mov_b32 m0, s%d' % sMk, 's_nop 0'] + [('vm', 'kv', 'buffer_load_dwordx4 v%d, %s, s%d offen offset:%d sc1 lds' % (vL16, S4(WS), sKs, 1024 * f)) for f in range(4)] \
            + ['s_add_u32 s%d, s%d, 0x%x' % (sKs, sKs, SEG)]
        reads = [('lds', 'q', 'ds_read_b128 %s, v%d offset:%d' % (v(vQ + 4 * j, 4), vQr, j * 1024)) for j in range(4)] \
            + [('lds', 'k', 'ds_read_b128 %s, v%d offset:%d' % (v(vKx + 4 * f, 4), vKr, f * 1024)) for f in range(8)] \
            + [('lds', 'vt', 'ds_read_b128 %s, v%d offset:%d' % (v(vVT + 4 * f, 4), vVr, f * 1024)) for f in range(4)]

        def attention(tag):
            qpk = opt.get('qpk', 0)
            zr = lambda b, n_: ['v_mov_b64 %s, 0' % v(b + i, 2) for i in range(0, n_, 2)] if qpk & 1 else ['v_mov_b32 v%d, 0' % (b + i) for i in range(n_)]
            p1 = zr(MM, 4)
            for j in range(4):
                for tt in range(2):
                    acc = v(vS + 4 * tt, 4)
                    p1.append(mfma(acc, v(vKx + (tt * 4 + j) * 4, 4), v(vQ + 4 * j, 4), acc if j else v(vBias + 4 * tt, 4)))
            T = Asm()
            maxall(T, mregs, t0)
            p2 = [('wv', 'm')] + [l.strip() for l in T.lines] + ['v_cmp_eq_u32 vcc, -1, v%d' % t0]
            p2 += zr(vD3, 16)
            p2 += ['s_cbranch_vccnz L_q_bad%s' % tag, 'L_q_ok%s:' % tag]
            T = Asm()
            for u in range(2):
                T('v_smfmac_f32_16x16x64_bf16 %s, %s, %s, v%d' % (v(MM, 4), v(vKm + 4 * u, 4), v(vQ + 8 * u, 8), vIdx))
            win = {(0, 0): 4, (1, 0): 0, (0, 1): 12, (1, 1): 8}
            mx = ['v_max3_f32 v%d, v%d, v%d, v%d' % (t0, vS, vS + 1, vS + 2), 'v_max3_f32 v%d, v%d, v%d, v%d' % (t0, t0, vS + 3, vS + 4),
                  'v_max3_f32 v%d, v%d, v%d, v%d' % (t0, t0, vS + 5, vS + 6), 'v_max_f32 v%d, v%d, v%d' % (t0, t0, vS + 7)]
            for qp in range(2):
                for et in range(2):
                    T('v_smfmac_f32_16x16x64_bf16 %s, %s, %s, v%d' % (v(vD3 + (qp * 2 + et) * 4, 4), v(vVm, 4), v(vStrip + win[(qp, et)], 8), vIdx))
                    T(mx.pop(0))
            T('v_permlane32_swap_b32 v%d, v%d' % (MM, MM + 2))
            T('v_permlane32_swap_b32 v%d, v%d' % (MM + 1, MM + 3))
            T('v_add_f32 v%d, v%d, v%d' % (MM, MM, MM + 2))
            T('v_add_f32 v%d, v%d, v%d' % (MM + 1, MM + 1, MM + 3))
            T('v_max3_f32 v%d, v%d, v%d, v%d' % (t0, t0, MM, MM + 1))
            cm = [cv(vVmT + i, vD3 + 2 * i, vD3 + 2 * i + 1) for i in range(8)]
            for sw in ('v_permlane32_swap_b32', 'v_permlane16_swap_b32'):
                T('v_mov_b32 v%d, v%d' % (t1, t0))
                T(cm.pop(0)); T(cm.pop(0))
                T('%s v%d, v%d' % (sw, t0, t1))
                T('v_max_f32 v%d, v%d, v%d' % (t0, t0, t1))
            T('v_mul_f32 v%d, s%d, v%d' % (t0, sScale, t0))
            regs = [vS + i for i in range(8)] + [MM, MM + 1]
            for r_ in regs:
                if not qpk & 2:
                    T('v_fma_f32 v%d, v%d, s%d, -v%d' % (r_, r_, sScale, t0))
                elif r_ & 1 == 0:
                    T('v_pk_fma_f32 %s, %s, %s, %s op_sel_hi:[1,0,0] neg_lo:[0,0,1] neg_hi:[0,0,1]' % (v(r_, 2), v(r_, 2), s(sScale, 2), v(t0, 2)))
            for r_ in regs:
                T('v_exp_f32 v%d, v%d' % (r_, r_))
            for i in range(4):
                T(cv(vP + i, vS + 2 * i, vS + 2 * i + 1))
            T(cv(vPm, MM, MM + 1))
            T(cv(vPm + 1, MM, MM + 1))
            T(mfma(v(vLs, 4), v(vOne, 4), v(vP, 4), '0'))
            T(cm.pop(0))
            T('v_permlane32_swap_b32 v%d, v%d' % (vPm, vPm + 1))
            for e in range(4):
                T(mfma(v(vO + 4 * e, 4), v(vVT + 4 * e, 4), v(vP, 4), '0'))
                if cm:
                    T(cm.pop(0))
            m16 = lambda d, x: 'v_mfma_f32_16x16x16_bf16 %s, %s, %s, %s' % (v(d, 4), v(x, 2), v(vPm, 2), v(d, 4))
            T(m16(vLs, vHalf))
            for e in range(4):
                T(m16(vO + 4 * e, vVmT + 2 * e))
            T('v_rcp_f32 v%d, v%d' % (t0, vLs))
            p2 += [l.strip() for l in T.lines]
            p3 = []
            for qp in range(2):
                if qpk & 4:
                    p3 += ['v_pk_mul_f32 %s, %s, %s op_sel_hi:[1,0]' % (v(vO + 8 * qp + i, 2), v(vO + 8 * qp + i, 2), v(t0, 2)) for i in range(0, 8, 2)]
                else:
                    p3 += ['v_mul_f32 v%d, v%d, v%d' % (vO + 8 * qp + i, vO + 8 * qp + i, t0) for i in range(8)]
                p3 += [cv(vG + 4 * qp + j, vO + 8 * qp + j, vO + 8 * qp + 4 + j) for j in range(4)]
                p3 += [('vm', 'o', stx4(vG + 4 * qp, sOut, qp * 1024))]
            p3 += ['s_add_u32 s%d, s%d, 0x%x' % (sOut, sOut, SEG)]
            return p1, p2, p3

        qwr = [('lds', 'qw', 'ds_write_b128 v%d, %s' % (vQw, v(vF, 4))), ('lds', 'qw', 'ds_write_b128 v%d, %s offset:4096' % (vQw, v(vF + 4, 4)))]
        if opt.get('qw64', 1):
            qwr = [('lds', 'qw', 'ds_write_b64 v%d, %s offset:%d' % (vQw, v(vF + 2 * i, 2), 4096 * (i >> 1) + 8 * (i & 1))) for i in range(4)]

        def q_end(M, tags):
            A(min((M.wait(t) for t in tags), key=lambda x: int(x[x.index('(') + 1:-1])))
            A('v_cmp_eq_u32 vcc, -1, v%d' % vFv)
            A('s_barrier')
        xt = []
        if opt.get('qxt', 1):
            vXt = V('xt')
            bits(A, vXt, [(0, 4, 7), (4, 2, 30)], t0)
            A('s_and_b32 s%d, s%d, 7' % (sA, sH))
            A('s_lshl_b32 s%d, s%d, 13' % (sA, sA))
            A('s_mul_i32 s%d, s%d, %d' % (sB, sW, 2048 - 16384))
            A('s_add_u32 s%d, s%d, s%d' % (sA, sA, sB))
            A('s_add_u32 s%d, s%d, 0x10000' % (sA, sA))
            A('v_add_u32 v%d, s%d, v%d' % (vXt, sA, vXt))
            xt = [('vm', 'xt', 'buffer_load_dword v252, v%d, %s, s%d offen' % (vXt, S4(SRD_B), sXo))]
        if opt.get('prof'):
            A('s_mov_b64 s[98:99], 0')
            A('v_mov_b32 v251, 0')
        L, M, emit = gemm(base_fill())
        for o in qwr:
            A(o[2])
        A('s_waitcnt vmcnt(0) lgkmcnt(0)')
        wait_flags(A, t0, t3, '1', 4)
        A('s_barrier')
        qv = opt.get('qv', 3)
        L, M, emit = gemm(base_fill(), (stage if qv != 2 else []) + [probe[0], ('vm', 'pr', probe[1])], dend)
        q_end(M, ['pr'])
        A('.p2align 6')
        A.label('L_q_loop')
        A('s_cbranch_vccz L_q_go')
        if opt.get('prof'):
            A('s_bitset1_b64 s[98:99], s%d' % sSeg)
        poll_data(A, probe, [vFv, vFv], t0, opt.get('qsl', 4))
        A.label('L_q_go')
        if opt.get('prof'):
            A('s_memrealtime s[96:97]')
            A('s_mov_b32 m0, s%d' % sSeg)
            A('s_waitcnt lgkmcnt(0)')
            A('v_writelane_b32 v251, s96, m0')
        adv = ['s_add_u32 s%d, s%d, 0x%x' % (n_, n_, SEG) for n_ in (sKm, sVm)]
        if qv == 2:
            d0, kb = opt.get('qd0', 7), opt.get('qkb', 10)
            fill = base_fill(d0)
            put = lambda k_, n_, os_: fill.setdefault((k_, n_), []).extend(os_)
            fill['head'] = stage[:3]
            slow = stage[3:6] + [('vm', 'm', o) for o in ld_m] + xt
            for i, o in enumerate(slow):
                put(i >> 1, 1 + 2 * (i & 1), [o])
            put(4, 1, [stage[6]])
            for i in range(4):
                put(4 + (i >> 1), 1 + 2 * (i & 1), [reads[i]])
            put(kb - 1, 3, ['v_mov_b32 v%d, s%d' % (t3, sSeg), ('wl', 'q'), ('wv', 'kv'), 's_barrier'])
            for i in range(12):
                put(kb + i // 3, (0, 2, 3)[i % 3], [reads[4 + i]])
            pk_ = d0 + dend
            put(pk_, 1, [probe[0]])
            put(pk_, 3, [('vm', 'pr', probe[1])])
            put(pk_ + 1, 3, [('vm', 'fl', flag_st)])
            put(pk_ + 2, 1, [qwr[0]])
            put(pk_ + 3, 1, [qwr[1]])
            p1, p2, p3 = attention('')
            k1 = p2.index('L_q_ok:') + 1
            zd = [o for o in p2[:k1] if isinstance(o, str) and o.startswith('v_mov_b32')]
            chk_ = [o for o in p2[:k1] if o not in zd]
            L, M, emit = gemm(fill, p1[:4] + chk_ + adv + ['; adv', ('at', kb + 3), ('wl', 'k')] + p1[4:] + zd + [('wl', 'vt')] + p2[k1:] + p3, kb, 0)
            A('s_add_u32 s%d, s%d, 1' % (sSeg, sSeg))
            A('s_cmp_lt_u32 s%d, 62' % sSeg)
            q_end(M, ['pr'])
            body = A.lines[A.lines.index('L_q_go:'):]
            assert body.index('    ; adv') < body.index('    ' + probe[1])
        else:
            d0 = opt.get('qd0', 3)
            fill = base_fill(d0)
            dend += d0
            put = lambda k_, n_, os_: fill.setdefault((k_, n_), []).extend(os_)
            for i in range(3):
                put(i, 1, [('vm', 'm', ld_m[i])])
            rs_ = opt.get('qrs', 4)
            pos = [(k_, n_) for k_ in range(24) for n_ in ((3,) if (rs_ == 2 or (rs_ == 3 and k_ & 1)) else (2, 3))]
            for i in range(16):
                put(pos[i][0], pos[i][1], [reads[i]])
            put(dend, 0, ['; stage', stage[0], probe[0]])
            tail_ = [('vm', 'pr', probe[1])] + stage[2:6] + xt + [('vm', 'fl', flag_st)] + qwr
            for i, o in enumerate(tail_):
                put(dend + i, 1, [o])
            put(dend + 5, 2, [stage[6]])
            p1, p2, p3 = attention('')
            mid = [('at', pos[15][0] + 2), ('wv', 'old'), 'v_mov_b32 v%d, s%d' % (t3, sSeg), ('wl', 'vt'), 's_barrier']
            k1 = p2.index('L_q_ok:') + 1
            zd = [o for o in p2[:k1] if isinstance(o, str) and o.startswith('v_mov_b')]
            chk_ = [o for o in p2[:k1] if o not in zd]
            nz = len([o for o in p1 if o.startswith('v_mov_b')])
            seq = p1[:nz] + [('at', pos[11][0] + 2), ('wl', 'k')] + p1[nz:] + zd + chk_ + adv + ['; adv'] + mid + p2[k1:] + p3
            L, M, emit = gemm(fill, seq, 1, 0)
            A('s_add_u32 s%d, s%d, 1' % (sSeg, sSeg))
            A('s_cmp_lt_u32 s%d, 62' % sSeg)
            q_end(M, ['pr', 'kv'])
            body = A.lines[A.lines.index('L_q_go:'):]
            assert body.index('    s_barrier') < body.index('    ; stage') and body.index('    ; adv') < body.index('    ; stage')
        A('s_cbranch_scc1 L_q_loop')
        plain = lambda ops: [A(o[2] if isinstance(o, tuple) else o) for o in ops]
        for tag in 'yz':
            p1, p2, p3 = attention(tag)
            if tag == 'y':
                if qv == 2:
                    plain(stage)
                A('s_cbranch_vccz L_q_go2')
                poll_data(A, probe, [vFv, vFv], t0, 1)
                A.label('L_q_go2')
                plain(ld_m)
                if qv == 2:
                    A('s_waitcnt vmcnt(3)')
                    A('s_barrier')
            else:
                plain(probe)
            for i, o in enumerate(reads):
                A(o[2])
                if i == 11:
                    A('s_waitcnt lgkmcnt(0)')
            plain(p1)
            A('v_mov_b32 v%d, %d' % (t3, 62 if tag == 'y' else 63))
            A('s_waitcnt vmcnt(0) lgkmcnt(0)')
            A('s_barrier')
            if tag == 'z':
                A('v_cmp_eq_u32 vcc, -1, v%d' % vFv)
                A('s_cbranch_vccz L_q_go3')
                A(flag_st)
                poll_data(A, probe, [vFv, vFv], t0, 0)
                A.label('L_q_go3')
                plain(ld_m)
                A(flag_st)
                A('s_waitcnt vmcnt(1)')
            k1 = p2.index('L_q_ok%s:' % tag) + 1
            plain(p2[1:k1])
            if tag == 'y':
                plain(qwr + stage + adv + [flag_st])
                for n_ in (sKm, sVm):
                    A('s_xor_b32 s%d, s%d, 0x2000' % (n_, n_))
            plain(p2[k1:] + p3)
            if tag == 'y':
                A('s_waitcnt vmcnt(3) lgkmcnt(0)')
                A('s_barrier')
        A('s_branch L_q_fin')
        for tag in ('', 'y', 'z'):
            A.label('L_q_bad' + tag)
            poll_data(A, ld_m, mregs, t0, 1)
            A('s_branch L_q_ok' + tag)
        A.label('L_q_fin')
        if opt.get('prof'):
            A('v_writelane_b32 v251, s98, 62')
            A('v_writelane_b32 v251, s99, 63')
            A('s_lshl_b32 s%d, s%d, 2' % (sA, sH))
            A('s_add_u32 s%d, s%d, s%d' % (sA, sA, sW))
            A('s_lshl_b32 s%d, s%d, 8' % (sA, sA))
            A('s_add_u32 s%d, s%d, 0x%x' % (sA, sA, PROF + 4 * MB))
            A('v_lshlrev_b32 v%d, 2, v0' % t0)
            A('buffer_store_dword v251, v%d, %s, s%d offen' % (t0, S4(WS), sA))
    A('s_waitcnt vmcnt(0)')
    A('v_mov_b32 v%d, 64' % t3)
    A('s_barrier')
    A(flag_st)
    tstamp(A, opt, 2, t0, t1, sA)
    if opt.get('hold') == 3 and kind == 'q':
        hold_after(A, 40)
    if kind == 'q' or opt.get('chainonly'):
        A('s_endpgm')
    else:
        A('s_branch L_o_join2')


def vote(A, sH, t0, t1, t2, sA, sB, sBase, sL0, sL1):
    A('s_cmp_lg_u32 s%d, 0' % sW)
    A('s_cbranch_scc1 L_vote_done')
    A('v_lshlrev_b32 v%d, 2, v0' % t1)
    A('v_mov_b32 v%d, 0' % t2)
    A('s_mul_i32 s%d, s%d, 0x600000' % (sBase, sH))
    A('s_add_u32 s%d, s%d, 0x1f8000' % (sBase, sBase))
    A('s_mov_b32 s%d, -1' % sL0)
    A('s_mov_b32 s%d, -1' % sL1)
    for smp in range(3):
        for par in range(2):
            A('s_memtime s[96:97]')
            A('s_waitcnt vmcnt(0) lgkmcnt(0)')
            A('buffer_store_dword v%d, v%d, %s, s%d offen offset:%d sc1' % (t2, t1, S4(WS), sBase, smp * 256))
            A('s_waitcnt vmcnt(0)')
            A('s_memtime s[98:99]')
            A('s_xor_b32 s%d, s%d, 0x2000' % (sBase, sBase))
            A('s_waitcnt lgkmcnt(0)')
            A('s_sub_u32 s98, s98, s96')
            A('s_min_u32 s%d, s%d, s98' % ((sL0, sL1)[par], (sL0, sL1)[par]))
    A('s_cmp_lt_u32 s%d, s%d' % (sL1, sL0))
    A('s_cselect_b32 s%d, 1, 0' % sA)
    A('s_lshr_b32 s%d, s%d, 2' % (sB, sX))
    A('s_xor_b32 s%d, s%d, s%d' % (sA, sA, sB))
    A('s_bfe_u32 s%d, s%d, 0x10015' % (sB, sBase))
    A('s_xor_b32 s%d, s%d, s%d' % (sA, sA, sB))
    A('s_add_u32 s%d, s%d, 0x10000' % (sA, sA))
    A('v_mov_b32 v%d, s%d' % (t0, sA))
    A('s_mov_b64 exec, 1')
    A('buffer_atomic_add v%d, v%d, %s, 0 offen offset:%d sc1' % (t0, t2, S4(DBG), VOTE))
    A('s_mov_b64 exec, -1')
    A.label('L_vote_done')
    A('s_barrier')
```

```python
import sys, re
from common import *
from workers import proj
from orole import orole


def prologue(A, opt):
    A('s_cmp_ge_u32 s2, 256')
    A('s_cbranch_scc1 L_end0')
    A('s_load_dwordx16 s[64:79], s[0:1], 0')
    A('s_load_dwordx16 s[80:95], s[0:1], 64')
    A('s_getreg_b32 s%d, hwreg(HW_REG_XCC_ID)' % sX)
    A('s_and_b32 s%d, s%d, 7' % (sX, sX))
    A('v_lshrrev_b32 v1, 6, v0')
    A('v_and_b32 v0, 63, v0')
    A('v_readfirstlane_b32 s%d, v1' % sW)
    A('s_mov_b32 s%d, %d' % (sTO, TIMEOUT))
    if opt.get('cw', 0):
        A('s_lshr_b32 s36, s2, 3')
        A('s_lshl_b32 s37, s%d, 5' % sW)
        A('s_add_u32 s36, s36, s37')
        touch_code(A, 'L_code0', 'L_code1', 36, SRD_E, 2)
        A.label('L_code0')
    A('s_waitcnt lgkmcnt(0)')
    srd(A, WS, P_WS, WS_BYTES)
    srd(A, DBG, P_DBG, 256)
    if opt.get('prof') or opt.get('diag'):
        A('s_memrealtime s[76:77]')
    for i in range(4):
        A('v_mov_b32 v%d, -1' % (4 + i))
    A('s_lshl_b32 s36, s2, 2')
    A('s_add_u32 s36, s36, s%d' % sW)
    A('s_lshl_b32 s37, s36, 10')
    A('s_add_u32 s37, s37, 0x%x' % INIT1)
    A('s_bfe_u32 s38, s36, 0x50003')
    A('s_mul_i32 s38, s38, 0x%x' % ROW)
    A('s_bfe_u32 s39, s36, 0x20001')
    A('s_lshl_b32 s39, s39, 12')
    A('s_add_u32 s38, s38, s39')
    A('s_and_b32 s39, s36, 1')
    A('s_lshl_b32 s39, s39, 10')
    A('s_add_u32 s38, s38, s39')
    A('s_add_u32 s38, s38, 0x%x' % PART)
    A('s_cmp_ge_u32 s36, 768')
    A('s_cselect_b32 s37, s38, s37')
    A('s_lshl_b32 s36, s36, 8')
    A('s_add_u32 s36, s36, 0x%x' % INIT2)
    A('v_lshlrev_b32 v2, 4, v0')
    A('v_lshlrev_b32 v3, 2, v0')
    A('buffer_store_dwordx4 v[4:7], v2, %s, s37 offen sc1' % S4(WS))
    A('buffer_store_dword v4, v3, %s, s36 offen sc1' % S4(WS))
    wu = opt.get('wu', 1)
    wu = 2 * wu
    npre = opt.get('wupre', 0)

    def warm(lo, hi):
        for o in ['buffer_load_dword v252, v8, %s, s38 offen' % S4(SRD_A), 'buffer_load_dword v252, v9, %s, s38 offen offset:0x780' % S4(SRD_A)][lo:hi]:
            A(o)
    if wu:
        A('s_lshr_b32 s38, s2, 3')
        A('s_lshl_b32 s38, s38, 2')
        A('s_add_u32 s38, s38, s%d' % sW)
        A('s_lshr_b32 s39, s38, 5')
        A('s_and_b32 s38, s38, 31')
        A('s_and_b32 s42, s%d, 3' % sX)
        A('s_mov_b64 s[40:41], s[%d:%d]' % (P_WK, P_WK + 1))
        for m_, p_ in ((1, P_WV), (2, P_WQ), (3, P_WO)):
            A('s_cmp_eq_u32 s39, %d' % m_)
            A('s_cselect_b64 s[40:41], s[%d:%d], s[40:41]' % (p_, p_ + 1))
        A('s_cselect_b32 s43, 11, 13')
        A('s_cselect_b32 s44, 21, 11')
        A('s_lshl_b32 s42, s42, s44')
        A('s_add_u32 s44, s43, 5')
        A('s_lshl_b32 s38, s38, s44')
        A('s_add_u32 s38, s38, s42')
        A('v_lshrrev_b32 v8, 1, v0')
        A('v_lshlrev_b32 v8, s43, v8')
        A('v_and_b32 v9, 1, v0')
        A('v_lshl_add_u32 v8, v9, 10, v8')
        A('s_and_b32 s42, s%d, 3' % sX)
        A('s_cmp_eq_u32 s42, 3')
        A('s_cselect_b32 s42, 0, 0x%x' % OOB)
        A('v_lshlrev_b32 v9, 29, v9')
        A('v_add3_u32 v9, v8, v9, s42')
        A('v_add_u32 v8, 384, v8')
        A('s_mov_b32 s43, 0x%x' % (8 * MB))
        A('s_lshr_b32 s42, s%d, 2' % sX)
        A('s_lshr_b32 s39, s39, 1')
        A('s_and_b32 s39, s39, s42')
        A('s_cbranch_scc0 L_wu')
        A('s_mov_b64 s[40:41], s[%d:%d]' % (P_X, P_X + 1))
        A('s_mov_b32 s43, 0x%x' % (4 * MB))
        A('s_bfe_u32 s38, s2, 0x40003')
        A('s_lshl_b32 s38, s38, 2')
        A('s_add_u32 s38, s38, s%d' % sW)
        A('s_lshl_b32 s38, s38, 13')
        A('v_lshlrev_b32 v8, 7, v0')
        A('v_mov_b32 v9, 0x%x' % OOB)
        A.label('L_wu')
        srd(A, SRD_A, 40, 0)
        A('s_mov_b32 s%d, s43' % (SRD_A + 2))
        warm(0, npre)
    A('s_waitcnt vmcnt(%d)' % npre)
    A('s_barrier')
    A('v_mov_b32 v12, 0')
    A('s_cmp_eq_u32 s%d, 0' % sW)
    A('s_cbranch_scc1 L_tk0')
    if wu:
        A('s_nop 7')
        warm(npre, wu)
    A('s_branch L_tk')
    A.label('L_tk0')
    A('s_lshl_b32 s36, s%d, 5' % sX)
    if opt.get('fakex'):
        A('s_cmp_eq_u32 s%d, 3' % sX)
        A('s_cbranch_scc0 L_fk')
        A('v_lshlrev_b32 v3, 5, v0')
        A.label('L_fk1')
        A('buffer_load_dword v1, v3, %s, 0 offen sc1' % S4(DBG))
        A('s_waitcnt vmcnt(0)')
        A('v_readlane_b32 s37, v1, 2')
        A('s_cmp_lt_u32 s37, 32')
        A('s_cbranch_scc1 L_fk1')
        A('s_bitcmp1_b32 s2, 3')
        A('s_cbranch_scc1 L_fk2')
        A('s_bitcmp1_b32 s2, 4')
        A('s_cbranch_scc0 L_fk')
        A.label('L_fk2')
        A('s_mov_b32 s36, 0x40')
        A.label('L_fk')
    A('v_mov_b32 v1, 1')
    A('s_mov_b64 exec, 1')
    A('buffer_atomic_add v1, v12, %s, s36 offen sc0 sc1' % S4(DBG))
    A('s_mov_b64 exec, -1')
    if wu:
        warm(npre, wu)
    A('s_waitcnt vmcnt(%d)' % (wu - npre))
    A('v_readfirstlane_b32 s37, v1')
    A('s_add_u32 s36, s36, s37')
    A('s_cmp_lt_u32 s37, 32')
    A('s_cbranch_scc1 L_tk_w')
    A('v_mov_b32 v1, 1')
    A('s_mov_b64 exec, 1')
    A('buffer_atomic_add v1, v12, %s, 0 offen offset:8 sc0 sc1' % S4(DBG))
    A('s_mov_b64 exec, -1')
    A('s_waitcnt vmcnt(0)')
    A('v_readfirstlane_b32 s37, v1')
    A('v_lshlrev_b32 v3, 5, v0')
    A.label('L_ov')
    A('buffer_load_dword v1, v3, %s, 0 offen sc1' % S4(DBG))
    A('s_waitcnt vmcnt(0)')
    sum8(A, 1, 38, 39)
    A('s_cmp_ge_u32 s38, 256')
    A('s_cbranch_scc1 L_ov1')
    A('s_sleep 4')
    timeout_stub(A, 'L_ov')
    A.label('L_ov1')
    for x in range(8):
        A('v_readlane_b32 s38, v1, %d' % x)
        A('s_min_u32 s38, s38, 32')
        A('s_add_u32 s36, s38, s37')
        A('s_cmp_lt_u32 s36, 32')
        A('s_cselect_b32 s39, 1, 0')
        A('s_sub_u32 s37, s36, 32')
        A('s_add_u32 s36, s36, %d' % (32 * x))
        A('s_cmp_eq_u32 s39, 1')
        A('s_cbranch_scc1 L_tk_w')
    A('s_mov_b32 s36, 256')
    A.label('L_tk_w')
    A('v_mov_b32 v1, s36')
    A('ds_write_b32 v12, v1')
    A('s_waitcnt lgkmcnt(0)')
    A.label('L_tk')
    A('s_barrier')
    A('ds_read_b32 v1, v12')
    A('s_waitcnt lgkmcnt(0)')
    A('v_readfirstlane_b32 s%d, v1' % sR)
    A('s_barrier')
    A('s_cmp_ge_u32 s%d, 256' % sR)
    A('s_cbranch_scc1 L_end0')
    if opt.get('prof'):
        A('s_mov_b32 s78, s76')
        tstamp(A, opt, 8, 1, 2, 36, now=False)
        tstamp(A, opt, 0, 1, 2, 36)
    A('s_lshr_b32 s%d, s%d, 4' % (sG, sR))
    A('s_and_b32 s%d, s%d, 15' % (sC, sR))
    A('s_cmp_lt_u32 s%d, 128' % sR)
    A('s_cbranch_scc1 L_chain')
    A('s_bfe_u32 s%d, s%d, 0x20005' % (sG, sR))
    A('s_lshl_b32 s%d, s%d, 3' % (sG, sG))
    A('s_and_b32 s36, s%d, 7' % sR)
    A('s_add_u32 s36, s36, s%d' % sG)
    A('s_bfe_u32 s%d, s%d, 0x20003' % (sC, sR))
    A('s_cmp_eq_u32 s%d, 0' % sC)
    A('s_cbranch_scc1 L_k')
    A('s_cmp_eq_u32 s%d, 1' % sC)
    A('s_cbranch_scc1 L_v')
    A('s_cmp_eq_u32 s%d, 2' % sC)
    A('s_cbranch_scc1 L_q')
    A('s_branch L_o')
    A.label('L_end0')
    A('s_endpgm')


def chain(A, opt):
    prof = opt.get('prof', 0) == 1
    lite = opt.get('prof', 0) >= 1
    V = Alloc(1, 252)
    vL16, vL4, vQst, vVst, vKst, vIdx, vSent = [V(n) for n in 'l16 l4 qst vst kst idx sent'.split()]
    vW1q, vW1k, vR1, vR1v = V('w1q'), V('w1k'), V('r1'), V('r1v')
    vW2, vR2, vW2l, vR2l = V('w2'), V('r2'), V('w2l'), V('r2l')
    vT0, vT1, vT2, vT3 = V('t0'), V('t1'), V('t2'), V('t3')
    vQK, vVv, vBias = V('qk'), V('vv'), V('bias')
    vFa, vFv = V('fa'), V('fv')
    vM = V('m', 16, 4)
    vA = V('acc', 24, 4)
    vQ = V('q', 16, 4)
    vKm, vVm = V('km', 8, 4), V('vm', 8, 4)
    vKx, vVx = V('kx', 32, 4), V('vx', 32, 4)
    vS = V('s', 8, 4)
    MM = V('mm', 4, 4)
    vP, vPs = V('p', 4, 4), V('ps', 4, 4)
    vPm, vPms = V('pm', 2), V('pms', 2)
    vOne, vSel, vHalf = V('one', 4, 4), V('sel', 4, 4), V('half', 2)
    vVOx = V('vox', 16, 4)
    vT = V('tacc', 32, 4)
    vVOm = vT + 16
    vF = vT + 16
    vR = vVm
    vO = vA
    vLs = vA + 8
    vR2d = vA + 12
    vPt = vS
    S = Alloc(36, 62)
    sStep, sMemR, sMemW, sQkvW, sQkvR, sQkvR2 = S('step'), S('memr'), S('memw'), S('qkvw'), S('qkvr'), S('qkvr2')
    sKx, sKx2, sVx, sVx2, sPartR, sPartA, sKvm = [S(n) for n in 'kx kx2 vx vx2 pr pa kvm'.split()]
    sA, sB, sCc, sD = S('a'), S('b'), S('cc'), S('d')
    sScale, sFo, sPf = S('scale'), S('fo'), S('pf')
    sN1, sN2, sN3 = 64, 65, 78
    sLo = 0
    sKn = S('kn')
    sSide = 3
    sSc2 = 2
    assert vT0 % 2 == 0
    LDSL = 20480
    LDS1, LDS2, LDSW = 0, 12288, 32768
    W1 = lambda t, m, tt: (t * 3 + m) * 16 + tt * 8
    WO = lambda n, j: 192 + n * 16 + j * 4

    A.label('L_chain')
    cap0 = len(A.lines)
    A('s_bitcmp1_b32 s%d, 0' % sC)
    A('s_cselect_b64 s[2:3], s[%d:%d], s[%d:%d]' % (P_WK, P_WK + 1, P_WQ, P_WQ + 1))
    srd(A, SRD_A, 2, 8 * MB)
    srd(A, SRD_C, P_WV, 8 * MB)
    srd(A, SRD_D, P_WO, 8 * MB)
    srd(A, SRD_E, P_MEM0, 16384)
    if opt.get('iw', 0):
        A('s_getpc_b64 s[2:3]')
        A.label('L_pc')
        A('s_add_u32 s2, s2, L_loop-L_pc')
        A('s_addc_u32 s3, s3, 0')
        srd(A, SRD_B, 2, 0)
        A('s_mov_b32 s%d, L_loop_end-L_loop' % (SRD_B + 2))
        A('s_lshl_b32 s%d, s%d, 13' % (sA, sW))
        A('v_lshlrev_b32 v%d, 7, v0' % vT0)
        A('buffer_load_dword v252, v%d, %s, s%d offen' % (vT0, S4(SRD_B), sA))
    vWa, vWb, vWc, vWd, vWe = vA, vA + 1, vA + 2, vA + 3, vA + 4
    nt = ' nt' if opt.get('nt', 31) & 1 else ''
    bits(A, vWd, [(3, 3, 11), (0, 3, 4)], vT0)
    A('s_lshl_b32 s%d, s%d, 2' % (sA, sG))
    A('s_add_u32 s%d, s%d, s%d' % (sA, sA, sW))
    A('s_lshl_b32 s%d, s%d, 18' % (sA, sA))
    A('s_lshl_b32 s%d, s%d, 7' % (sB, sC))
    A('s_add_u32 s%d, s%d, s%d' % (sA, sA, sB))
    if opt.get('wox'):
        A('s_xor_b32 s%d, s%d, %d' % (sA, sA, opt['wox']))
    for k in range(16):
        A('s_add_u32 s%d, s%d, 0x%x' % (sB, sA, k * 8 * 2048))
        A('buffer_load_dwordx4 %s, v%d, %s, s%d offen%s' % (a(192 + 4 * k, 4), vWd, S4(SRD_D), sB, (nt, '', ' sc1')[opt.get('opl', 0)]))
    bits(A, vWa, [(2, 4, 13), (0, 2, 4)], vT0)
    bits(A, vWe, [(3, 3, 13), (0, 3, 4)], vT0)
    sW1v, sW1q = sFo, sKn
    A('s_lshl_b32 s%d, s%d, 21' % (sA, sW))
    A('s_lshl_b32 s%d, s%d, 10' % (sB, sG))
    A('s_add_u32 s%d, s%d, s%d' % (sA, sA, sB))
    A('s_lshl_b32 s%d, s%d, 6' % (sB, sC))
    A('s_add_u32 s%d, s%d, s%d' % (sW1v, sA, sB))
    A('s_and_b32 s%d, s%d, 0xffffff80' % (sW1q, sW1v))

    def w1q(t):
        for i in range(8):
            A('s_add_u32 s%d, s%d, 0x%x' % (sB, sW1q, (64 * t + 8 * i) * 8192))
            A('buffer_load_dwordx4 %s, v%d, %s, s%d offen%s' % (a(W1(t, 0, 0) + 4 * i, 4), vWe, S4(SRD_A), sB, nt))

    def w1v(t):
        for i in range(4):
            A('s_add_u32 s%d, s%d, 0x%x' % (sB, sW1v, (64 * t + 16 * i) * 8192))
            A('buffer_load_dwordx4 %s, v%d, %s, s%d offen%s' % (a(W1(t, 2, 0) + 4 * i, 4), vWa, S4(SRD_C), sB, (nt, '', ' sc1')[opt.get('vpl', 0)]))
    A('v_lshlrev_b32 v%d, 4, v0' % vL16)
    A('v_lshlrev_b32 v%d, 2, v0' % vL4)
    A('v_mov_b32 v%d, -1' % vSent)
    A('v_and_b32 v%d, 8, v0' % vT0)
    A('v_cmp_eq_u32 vcc, 0, v%d' % vT0)
    A('v_mov_b32 v%d, 0xeeee' % vT1)
    A('v_mov_b32 v%d, 0x4444' % vT2)
    A('v_cndmask_b32 v%d, v%d, v%d, vcc' % (vIdx, vT1, vT2))
    A('s_mov_b32 s%d, 0' % sStep)
    A('s_lshl_b32 s%d, s%d, 15' % (sA, sG))
    A('s_add_u32 s%d, s%d, 0x%x' % (sA, sA, MEMR))
    A('s_lshl_b32 s%d, s%d, 12' % (sB, sW))
    A('s_add_u32 s%d, s%d, s%d' % (sMemR, sA, sB))
    A('s_lshl_b32 s%d, s%d, 10' % (sB, sC))
    A('s_add_u32 s%d, s%d, s%d' % (sA, sA, sB))
    A('s_lshl_b32 s%d, s%d, 8' % (sB, sW))
    A('s_add_u32 s%d, s%d, s%d' % (sMemW, sA, sB))
    A('s_lshl_b32 s%d, s%d, 16' % (sA, sG))
    A('s_add_u32 s%d, s%d, 0x%x' % (sQkvW, sA, QKVR))
    A('s_mul_i32 s%d, s%d, 6144' % (sB, sW))
    A('s_add_u32 s%d, s%d, s%d' % (sQkvR, sQkvW, sB))
    A('s_add_u32 s%d, s%d, 4096' % (sQkvR2, sQkvR))
    A('s_lshr_b32 s%d, s%d, 2' % (sB, sC))
    A('s_mul_i32 s%d, s%d, 6144' % (sB, sB))
    A('s_add_u32 s%d, s%d, s%d' % (sQkvW, sQkvW, sB))
    A('s_mov_b32 s%d, %s' % (sScale, f32(128 ** -0.5 * LOG2E)))
    A('s_and_b32 s%d, s%d, 1' % (sA, sW))
    A('s_lshl_b32 s%d, s%d, 1' % (sA, sA))
    A('v_lshrrev_b32 v%d, 5, v0' % vT0)
    A('v_add_u32 v%d, s%d, v%d' % (vT0, sA, vT0))
    A('v_and_b32 v%d, 31, v0' % vT1)
    A('v_lshlrev_b32 v%d, 2, v%d' % (vT1, vT1))
    A('s_bfe_u32 s%d, s%d, 0x10001' % (sB, sC))
    A('s_lshl_b32 s%d, s%d, 10' % (sB, sB))
    A('s_lshr_b32 s%d, s%d, 1' % (sA, sW))
    A('s_lshl_b32 s%d, s%d, 7' % (sCc, sA))
    A('s_add_u32 s%d, s%d, s%d' % (sCc, sCc, sB))
    A('s_lshl_b32 s%d, s%d, 9' % (sA, sA))
    A('s_add_u32 s%d, s%d, s%d' % (sA, sA, sB))
    A('s_add_u32 s%d, s%d, 2048' % (sA, sA))
    A('v_lshl_add_u32 v%d, v%d, 8, v%d' % (vT2, vT0, vT1))
    A('v_add_u32 v%d, s%d, v%d' % (vT2, sCc, vT2))
    A('v_lshl_add_u32 v%d, v%d, 7, v%d' % (vT1, vT0, vT1))
    A('v_add_u32 v%d, s%d, v%d' % (vT3, sA, vT1))
    A('s_bitcmp1_b32 s%d, 0' % sC)
    A('s_cselect_b64 %s, -1, 0' % s(sLo, 2))
    A('s_cselect_b32 s%d, 0, 0x%x' % (sA, OOB))
    A('v_cndmask_b32 v%d, v%d, v%d, %s' % (vQst, vT2, vT3, s(sLo, 2)))
    A('v_add_u32 v%d, s%d, v%d' % (vKst, sA, vT3))
    A('s_and_b32 s%d, s%d, 1' % (sA, sC))
    A('s_lshl_b32 s%d, s%d, 9' % (sA, sA))
    A('s_add_u32 s%d, s%d, s%d' % (sA, sA, sB))
    A('s_add_u32 s%d, s%d, 4096' % (sA, sA))
    A('s_cmp_lt_u32 s%d, 2' % sW)
    A('s_cselect_b32 s%d, s%d, 0x%x' % (sA, sA, OOB))
    A('v_add_u32 v%d, s%d, v%d' % (vVst, sA, vT1))
    A('v_bfe_u32 v%d, v0, 3, 2' % vT1)
    A('v_xor_b32 v%d, v%d, v%d' % (vT1, vT1, vT0))
    A('v_lshlrev_b32 v%d, 5, v%d' % (vT1, vT1))
    A('v_lshl_add_u32 v%d, v%d, 7, v%d' % (vT1, vT0, vT1))
    A('v_and_b32 v%d, 3, v0' % vT2)
    A('v_lshl_add_u32 v%d, v%d, 3, v%d' % (vT1, vT2, vT1))
    A('v_bfe_u32 v%d, v0, 2, 1' % vT2)
    A('v_lshl_add_u32 v%d, v%d, 2, v%d' % (vT1, vT2, vT1))
    A('v_add_u32 v%d, 2048, v%d' % (vR1v, vT1))
    A('s_lshr_b32 s%d, s%d, 1' % (sA, sW))
    A('s_lshl_b32 s%d, s%d, 10' % (sA, sA))
    A('v_add_u32 v%d, s%d, v%d' % (vR1, sA, vT1))
    A('v_bfe_u32 v%d, v0, 4, 1' % vT0)
    A('v_lshrrev_b32 v%d, 5, v0' % vT1)
    A('v_lshl_add_u32 v%d, v%d, 1, v%d' % (vT0, vT0, vT1))
    A('s_mul_i32 s%d, s%d, 3072' % (sA, sW))
    for (dst, kind) in ((vW1q, 0), (vW1k, 1)):
        if kind == 0:
            A('v_bfe_u32 v%d, v0, 2, 2' % vT1)
            A('v_and_b32 v%d, 3, v0' % vT3)
        else:
            A('v_bfe_u32 v%d, v0, 3, 1' % vT1)
            A('v_and_b32 v%d, 1, v0' % vT2)
            A('v_lshl_add_u32 v%d, v%d, 1, v%d' % (vT1, vT1, vT2))
            A('v_bfe_u32 v%d, v0, 1, 2' % vT3)
        A('v_xor_b32 v%d, v%d, v%d' % (vT2, vT1, vT0))
        A('v_lshlrev_b32 v%d, 5, v%d' % (vT2, vT2))
        A('v_lshl_add_u32 v%d, v%d, 7, v%d' % (vT2, vT1, vT2))
        A('v_lshl_add_u32 v%d, v%d, 3, v%d' % (vT2, vT3, vT2))
        A('v_add_u32 v%d, s%d, v%d' % (dst, sA, vT2))
    A('v_cndmask_b32 v%d, v%d, v%d, %s' % (vW1q, vW1q, vW1k, s(sLo, 2)))
    for i in range(4):
        A('v_mov_b32 v%d, 0x3f803f80' % (vOne + i))
        A('v_mov_b32 v%d, 0' % (vPs + i))
    for i in range(2):
        A('v_mov_b32 v%d, 0x3f003f00' % (vHalf + i))
        A('v_mov_b32 v%d, 0' % (vPms + i))
    A('v_and_b32 v%d, 8, v0' % vT0)
    A('v_cmp_eq_u32 vcc, 0, v%d' % vT0)
    A('v_mov_b32 v%d, 0x7f800000' % vT1)
    A('v_mov_b32 v%d, 0xff800000' % vT2)
    A('v_cndmask_b32 v%d, v%d, v%d, vcc' % (vBias, vT1, vT2))
    A('v_and_b32 v%d, 3, v0' % vT0)
    A('v_lshlrev_b32 v%d, 4, v%d' % (vT1, vT0))
    A('v_mov_b32 v%d, 0x3f80' % vT2)
    A('v_lshlrev_b32 v%d, v%d, v%d' % (vT1, vT1, vT2))
    A('v_cmp_gt_u32 vcc, 2, v%d' % vT0)
    A('v_cndmask_b32 v%d, 0, v%d, vcc' % (vT1, vT1))
    A('v_bfe_u32 v%d, v0, 2, 2' % vT0)
    for i in range(4):
        A('v_cmp_eq_u32 vcc, %d, v%d' % (i, vT0))
        A('v_cndmask_b32 v%d, 0, v%d, vcc' % (vSel + i, vT1))
    A('s_lshl_b32 s%d, s%d, 2' % (sA, sW))
    A('s_add_u32 s%d, s%d, %d' % (sA, sA, LDSL))
    A('v_add_u32 v%d, s%d, v%d' % (vW2l, sA, vL16))
    A('v_and_b32 v%d, 1, v0' % vT0)
    A('v_lshrrev_b32 v%d, 4, v0' % vT1)
    A('v_lshl_add_u32 v%d, v%d, 2, v%d' % (vT0, vT0, vT1))
    A('v_lshlrev_b32 v%d, 4, v%d' % (vT1, vT0))
    A('v_add_u32 v%d, %d, v%d' % (vR2l, LDSL, vT1))
    A('v_and_b32 v%d, 2, v0' % vT1)
    A('v_xor_b32 v%d, v%d, v%d' % (vT0, vT0, vT1))
    A('v_lshlrev_b32 v%d, 4, v%d' % (vT0, vT0))
    A('v_lshl_add_u32 v%d, v%d, 7, v%d' % (vT0, vT1, vT0))
    A('v_bfe_u32 v%d, v0, 3, 1' % vT1)
    A('v_lshl_add_u32 v%d, v%d, 7, v%d' % (vT0, vT1, vT0))
    A('v_bfe_u32 v%d, v0, 2, 1' % vT1)
    A('v_lshl_add_u32 v%d, v%d, 3, v%d' % (vT0, vT1, vT0))
    A('s_lshl_b32 s%d, s%d, 9' % (sA, sW))
    A('s_add_u32 s%d, s%d, %d' % (sA, sA, LDS2))
    A('v_add_u32 v%d, s%d, v%d' % (vR2, sA, vT0))
    A('v_bfe_u32 v%d, v0, 3, 1' % vT0)
    A('v_lshlrev_b32 v%d, 9, v%d' % (vT0, vT0))
    A('v_lshrrev_b32 v%d, 4, v0' % vT1)
    A('v_lshl_add_u32 v%d, v%d, 7, v%d' % (vT0, vT1, vT0))
    A('v_and_b32 v%d, 2, v%d' % (vT1, vT1))
    A('v_and_b32 v%d, 7, v0' % vT2)
    A('v_xor_b32 v%d, v%d, v%d' % (vT1, vT1, vT2))
    A('v_lshl_add_u32 v%d, v%d, 4, v%d' % (vT0, vT1, vT0))
    A('s_lshl_b32 s%d, s%d, 11' % (sA, sW))
    A('s_add_u32 s%d, s%d, %d' % (sA, sA, LDS2))
    A('v_add_u32 v%d, s%d, v%d' % (vW2, sA, vT0))

    if opt.get('iw', 0):
        A('s_barrier')
        for w in range(3):
            A('s_cmp_eq_u32 s%d, %d' % (sW, w))
            A('s_cbranch_scc1 L_hk%d' % w)
        A('s_branch L_hk3')
        A.label('L_hkret')
    def mem0_loads():
        bits(A, vT2, [(0, 3, 11), (3, 3, 4)], vT0)
        A('s_lshl_b32 s%d, s%d, 9' % (sA, sW))
        for t in range(4):
            A('buffer_load_dwordx4 %s, v%d, %s, s%d offen offset:%d' % (v(vM + 4 * t, 4), vT2, S4(SRD_E), sA, t * 128))
    A('s_lshl_b32 s%d, s%d, 14' % (sCc, sW))
    A('s_add_u32 s%d, s%d, %d' % (sCc, sCc, LDSW))
    A('v_add_u32 v%d, s%d, v%d' % (vWb, sCc, vL16))
    bits(A, vWc, [(2, 1, 11), (4, 2, 9), (3, 1, 7), (0, 2, 3)], vT0, 's%d' % sCc)
    w1q(0); w1v(0)
    A('s_waitcnt vmcnt(12)')
    for k in range(16):
        A('ds_write_b128 v%d, %s offset:%d' % (vWb, a(192 + 4 * k, 4), k * 1024))
        if k == 7:
            A('s_waitcnt lgkmcnt(0)')
    A('s_waitcnt lgkmcnt(0)')
    for n in range(4):
        for j in range(4):
            for pp in range(2):
                A('ds_read_b64_tr_b16 %s, v%d offset:%d' % (a(WO(n, j) + 2 * pp, 2), vWc, (32 * j + 2 * pp) * 128 + n * 32))
        A('s_waitcnt lgkmcnt(0)')
    if opt.get('prof'):
        A('s_memrealtime s[98:99]')
    bits(A, vWc, [(5, 1, 11), (4, 1, 9), (3, 1, 10), (2, 1, 7), (0, 2, 3)], vT0, 's%d' % sCc)
    bits(A, vWd, [(5, 1, 10), (4, 1, 8), (3, 1, 9), (2, 1, 6), (0, 2, 3)], vT0, 's%d' % sCc)
    for t in range(4):
        if t < 3:
            w1q(t + 1)
        A('s_waitcnt vmcnt(%d)' % (12 if t < 3 else 4))
        for i in range(8):
            A('ds_write_b128 v%d, %s offset:%d' % (vWb, a(W1(t, 0, 0) + 4 * i, 4), i * 1024))
        for m in range(2):
            A('s_waitcnt lgkmcnt(4)')
            for tt in range(2):
                for pp in range(4):
                    A('ds_read_b64_tr_b16 %s, v%d offset:%d' % (a(W1(t, m, tt) + 2 * pp, 2), vWc, (32 * (pp >> 1) + 2 * (pp & 1)) * 128 + m * 64 + tt * 32))
        if t < 3:
            w1v(t + 1)
        else:
            mem0_loads()
            init_load(A, vT0, vT1)
        A('s_waitcnt vmcnt(%d) lgkmcnt(0)' % (12 if t < 3 else 5))
        for i in range(4):
            A('ds_write_b128 v%d, %s offset:%d' % (vWb, a(W1(t, 2, 0) + 4 * i, 4), 8192 + i * 1024))
        for tt in range(2):
            for pp in range(4):
                A('ds_read_b64_tr_b16 %s, v%d offset:%d' % (a(W1(t, 2, tt) + 2 * pp, 2), vWd, 8192 + (32 * (pp >> 1) + 2 * (pp & 1)) * 64 + tt * 32))
        A('s_waitcnt lgkmcnt(0)')
    def vox(fill=None):
        fill = fill or {}
        k = 0
        for n in range(4):
            for j in range(4):
                for tt in range(2):
                    acc = v(vT + (n * 2 + tt) * 4, 4)
                    if opt.get('xnovox') and fill:
                        A('s_nop 3')
                    else:
                        A('v_mfma_f32_16x16x32_bf16 %s, %s, %s, %s' % (acc, v(vVx + (tt * 4 + j) * 4, 4), a(WO(n, j), 4), acc if j else '0'))
                    for o in fill.get(k, []):
                        A(o)
                    k += 1
                    if n > 0 and j in (1, 2):
                        jj = 2 * (j - 1) + tt
                        b = vT + (n - 1) * 8 + 2 * jj
                        A('v_cvt_pk_bf16_f32 v%d, v%d, v%d' % (vVOx + (n - 1) * 4 + jj, b, b + 1))

    def vox_tail():
        return ['v_cvt_pk_bf16_f32 v%d, v%d, v%d' % (vVOx + 12 + jj, vT + 24 + 2 * jj, vT + 25 + 2 * jj) for jj in range(4)]

    def paced(ops, every=4):
        for i, o in enumerate(ops):
            A(o)
            if i % every == every - 1 and i != len(ops) - 1:
                A('s_nop 0')

    def zeros(base, n, val='0'):
        return ['v_mov_b32 v%d, %s' % (base + i, val) for i in range(n)]

    cap_vm(A, cap0)
    tstamp(A, opt, 1, vT2, vT3, sA)
    if opt.get('prof'):
        A('s_mov_b32 s78, s98')
        tstamp(A, opt, 3, vT2, vT3, sA, now=False)
    wait_init(A, vT0, vT1, sA, sB, True)
    if opt.get('rt', 1):
        bits(A, vT1, [(0, 5, 7), (5, 1, 14)], vT0)
        A('buffer_load_dword v252, v%d, %s, s%d offen sc1' % (vT1, S4(WS), sMemR))
        A('v_lshlrev_b32 v%d, 7, v0' % vT1)
        A('s_xor_b32 s%d, s%d, 0x8000' % (sA, sQkvR))
        A('buffer_load_dword v252, v%d, %s, s%d offen sc1' % (vT1, S4(WS), sQkvR))
        A('buffer_load_dword v252, v%d, %s, s%d offen sc1' % (vT1, S4(WS), sA))
    A('s_lshl_b32 s%d, s%d, 2' % (sA, sG))
    A('s_add_u32 s%d, s%d, s%d' % (sA, sA, sW))
    A('s_lshl_b32 s%d, s%d, 8' % (sCc, sA))
    A('s_add_u32 s%d, s%d, 0x%x' % (sCc, sCc, F_KV))
    near(A, sCc, sB)
    bits(A, vFa, [(0, 1, 7)], vT0, 's%d' % sCc)
    A('s_mul_i32 s%d, s%d, 0x%x' % (sKx, sA, ROW))
    near(A, sKx, sB)
    A('s_add_u32 s%d, s%d, 0x%x' % (sVx, sKx, VX))
    A('s_add_u32 s%d, s%d, 0x%x' % (sKx, sKx, KX))
    A('s_add_u32 s%d, s%d, 4096' % (sKx2, sKx))
    A('s_add_u32 s%d, s%d, 4096' % (sVx2, sVx))
    A('s_and_b32 s%d, s%d, 7' % (sB, sC))
    A('s_lshl_b32 s%d, s%d, 10' % (sB, sB))
    A('s_cmp_lt_u32 s%d, 8' % sC)
    A('s_cselect_b32 s%d, s%d, s%d' % (sPf, sKx, sVx))
    A('s_add_u32 s%d, s%d, s%d' % (sPf, sPf, sB))
    A('s_add_u32 s%d, s%d, 0x%x' % (sPf, sPf, SEG))
    A('s_lshl_b32 s%d, s%d, 1' % (sPartR, sC))
    A('s_lshr_b32 s%d, s%d, 1' % (sB, sW))
    A('s_add_u32 s%d, s%d, s%d' % (sPartR, sPartR, sB))
    A('s_mul_i32 s%d, s%d, 0x%x' % (sPartR, sPartR, ROW))
    A('s_and_b32 s%d, s%d, 1' % (sB, sW))
    A('s_lshl_b32 s%d, s%d, 12' % (sB, sB))
    A('s_add_u32 s%d, s%d, s%d' % (sPartR, sPartR, sB))
    A('s_add_u32 s%d, s%d, 0x%x' % (sPartR, sPartR, PART))
    near(A, sPartR, sB)
    A('s_lshl_b32 s%d, s%d, 8' % (sB, sG))
    A('s_add_u32 s%d, s%d, s%d' % (sPartA, sPartR, sB))
    A('s_lshl_b32 s%d, s%d, 1' % (sA, sG))
    A('s_lshr_b32 s%d, s%d, 3' % (sB, sC))
    A('s_add_u32 s%d, s%d, s%d' % (sA, sA, sB))
    A('s_mul_i32 s%d, s%d, 0x%x' % (sKvm, sA, ROW))
    near(A, sKvm, sB)
    A('s_bfe_u32 s%d, s%d, 0x10002' % (sB, sC))
    A('s_lshl_b32 s%d, s%d, 12' % (sB, sB))
    A('s_add_u32 s%d, s%d, s%d' % (sKvm, sKvm, sB))
    A('s_add_u32 s%d, s%d, 0x%x' % (sKvm, sKvm, KVM - 2048))

    def kv_ops(lab, ahead=2):
        return ['v_readlane_b32 s%d, v%d, 0' % (sCc, vFv), 'v_readlane_b32 s%d, v%d, 1' % (sB, vFv),
                's_add_u32 s%d, s%d, %d' % (sA, sStep, ahead), 's_min_u32 s%d, s%d, 64' % (sA, sA),
                's_min_i32 s%d, s%d, s%d' % (sB, sB, sCc), 's_max_i32 s%d, s%d, s%d' % (sKn, sKn, sB),
                's_cmp_lt_i32 s%d, s%d' % (sKn, sA), 's_cbranch_scc1 %s' % lab]

    def kv_check(lab, ahead=2):
        for o in kv_ops(lab, ahead):
            A(o)

    ld_flags = 'buffer_load_dword v%d, v%d, %s, 0 offen sc1' % (vFv, vFa, S4(WS))
    A('s_mov_b32 s%d, 0' % sKn)
    A.label('L_c_kv0')
    A(ld_flags)
    A('s_waitcnt vmcnt(0)')
    kv_check('L_c_kv1', opt.get('nf', 2))
    A('s_branch L_c_kv2')
    A.label('L_c_kv1')
    A('s_sleep 1')
    timeout_stub(A, 'L_c_kv0')
    A.label('L_c_kv2')
    rmask = sum(1 << int(x) for x in str(opt.get('rf', '0.1.2.4.6.9.13.18.24.32.41.49')).split('.'))
    A('s_mov_b32 s%d, 0x%x' % (sLo, rmask & 0xffffffff))
    A('s_mov_b32 s%d, 0x%x' % (sLo + 1, rmask >> 32))
    A('s_mov_b32 s%d, 0' % sFo)
    A('s_mov_b32 s%d, s%d' % (sSc2, sScale))
    for f in range(8):
        A('buffer_load_dwordx4 %s, v%d, %s, s%d offen offset:%d sc1' % (v(vVx + 4 * f, 4), vL16, S4(WS), (sVx, sVx2)[f >> 2], (f & 3) * 1024))
    for f in range(8):
        A('buffer_load_dwordx4 %s, v%d, %s, s%d offen offset:%d sc1' % (v(vKx + 4 * f, 4), vL16, S4(WS), (sKx, sKx2)[f >> 2], (f & 3) * 1024))
    for i in range(16):
        A('v_min_u32 v%d, -2, v%d' % (vM + i, vM + i))
    A('s_add_u32 s%d, s%d, 0x%x' % (sVx, sVx, SEG))
    A('s_add_u32 s%d, s%d, 0x%x' % (sVx2, sVx2, SEG))
    A('s_mov_b32 s%d, %d' % (sD, 63 if opt.get('nf', 2) == 2 else 0))
    A('s_waitcnt vmcnt(8)')
    vox()
    paced(zeros(vA, 24) + vox_tail() + zeros(vT, 16) + zeros(MM, 4) + zeros(vQ, 4, '-1') + zeros(vQ + 8, 4, '-1') + zeros(vKm, 8, '-1'))
    A('s_waitcnt vmcnt(0)')
    tstamp(A, opt, 2, vT0, vT1, sA)
    if opt.get('diag') or opt.get('hold'):
        A('s_memrealtime s[96:97]')
        A('s_memtime s[98:99]')
        A('s_waitcnt lgkmcnt(0)')

    PT = 96
    stamps = []

    names = opt.get('marks', 'm0ok,st1end,qkvst,q0ok,Send,st2end,partst').split(',') + ['gath', 'gathok']
    assert len(names) == 9

    def stamp(nm):
        if prof and nm in names:
            i = names.index(nm)
            A('s_memtime s[%d:%d]' % (12 + 2 * i, 13 + 2 * i))

    if lite:
        vTr = V('trace')
        A('v_mov_b32 v%d, 0' % vTr)
        A('s_memtime s[28:29]')
        A('s_memtime s[96:97]')
        A('s_memrealtime s[98:99]')
        A('s_waitcnt lgkmcnt(0)')
        for n_ in (sN1, sN2, sN3):
            A('s_mov_b32 s%d, 0' % n_)

    if opt.get('xnobulk'):
        for n_ in (sKx, sKx2, sVx, sVx2)[:opt['xnobulk']]:
            A('s_mov_b32 s%d, 0x%x' % (n_, OOB))
    loc = '@LOC@'

    def ldx4(dst, so, off):
        return 'buffer_load_dwordx4 %s, v%d, %s, s%d offen offset:%d sc1' % (v(dst, 4), vL16, S4(WS), so, off)

    def ld_mem(t):
        A(ldx4(vM + 4 * t, sMemR, t * 1024))

    def chk4(b, tmp):
        return ['v_max3_u32 v%d, v%d, v%d, v%d' % (tmp, b, b + 1, b + 2), 'v_max_u32 v%d, v%d, v%d' % (tmp, tmp, b + 3)]

    def chk4more(b, tmp):
        return ['v_max3_u32 v%d, v%d, v%d, v%d' % (tmp, tmp, b, b + 1), 'v_max3_u32 v%d, v%d, v%d, v%d' % (tmp, tmp, b + 2, b + 3)]

    def cmpv(tmp):
        return 'v_cmp_eq_u32 vcc, -1, v%d' % tmp

    rx = opt.get('rx', 1)

    def wchk(bases, tmp):
        if not rx:
            ops = chk4(bases[0], tmp)
            for b in bases[1:]:
                ops += chk4more(b, tmp)
            return ops, cmpv(tmp)
        if len(bases) == 1:
            return [], cmpv(bases[0] + 3)
        return ['v_max_u32 v%d, v%d, v%d' % (tmp, bases[0] + 3, bases[1] + 3)], cmpv(tmp)

    def guard(r_):
        if not opt.get('nomin', 1):
            A('v_min_u32 v%d, -2, v%d' % (r_, r_))

    def smf1(t, m, tt):
        A('v_smfmac_f32_16x16x64_bf16 %s, %s, %s, v%d' % (v(vA + 8 * m + 4 * tt, 4), v(vM + 4 * t, 4), a(W1(t, m, tt), 8), vIdx))

    def add2(d, x, y):
        if opt.get('pk', 1):
            A('v_pk_add_f32 %s, %s, %s' % (v(d, 2), v(x, 2), v(y, 2)))
        else:
            A('v_add_f32 v%d, v%d, v%d' % (d, x, y))
            A('v_add_f32 v%d, v%d, v%d' % (d + 1, x + 1, y + 1))

    def fold(m, vs=None):
        b = vA + 8 * m
        f = vF + 4 * m
        n_ = 0
        for tt in range(2):
            for j in range(2):
                A('v_permlane32_swap_b32 v%d, v%d' % (b + 4 * tt + j, b + 4 * tt + j + 2))
                if vs and n_ < 3:
                    smf1(*vs.pop(0))
                n_ += 1
        for tt in range(2):
            add2(f + 2 * tt, b + 4 * tt, b + 4 * tt + 2)
        if vs:
            smf1(*vs.pop(0))
        A('ds_write2st64_b64 v%d, %s, %s offset0:%d offset1:%d' % (vW1q if m < 2 else vW1k, v(f, 2), v(f + 2, 2), 2 * m, 2 * m + 1))

    def rd1(ad, r_=None):
        r_ = vR if r_ is None else r_
        for w in range(4):
            A('ds_read2st64_b32 %s, v%d offset0:%d offset1:%d' % (v(r_ + 2 * w, 2), ad, 12 * w, 12 * w + 2))

    def red1(dst, extra='', r_=None, more=0):
        r_ = vR if r_ is None else r_
        A('s_waitcnt lgkmcnt(%d)' % (0 if prof else 2 + more))
        A(extra)
        add2(r_, r_, r_ + 2)
        A('s_waitcnt lgkmcnt(%d)' % (0 if prof else more))
        add2(r_ + 4, r_ + 4, r_ + 6)
        add2(r_, r_, r_ + 4)
        A('v_cvt_pk_bf16_f32 v%d, v%d, v%d' % (dst, r_, r_ + 1))
        guard(dst)

    def st4(src, ad, so, mod):
        return 'buffer_store_dword v%d, v%d, %s, s%d offen%s' % (src, ad, S4(WS), so, mod)

    ld_q = [ldx4(vQ, sQkvR, 0), ldx4(vQ + 8, sQkvR, 1024)]
    ld_k = [ldx4(vKm, sQkvR, 2048), ldx4(vKm + 4, sQkvR, 3072)]
    ld_v = [ldx4(vVm, sQkvR2, 0), ldx4(vVm + 4, sQkvR2, 1024)]
    st_v = st4(vVv, vVst, sQkvW, loc)
    ld_part = [ldx4(vPt, sPartR, 0), ldx4(vPt + 4, sPartR, 1024)]
    X0, X1 = vS, vS + 4
    cnt = lambda n_: A('s_add_u32 s%d, s%d, 1' % (n_, n_)) if lite else None

    hooks = []

    def hook(align=False):
        if not opt.get('iw', 0):
            return
        if align:
            A('.p2align 6')
        hooks.append(len(hooks))
        A.label('L_hk%d' % hooks[-1])
        A('s_branch @HK%d@' % hooks[-1])

    def nxt(Sm, t):
        for d in range(1, 5):
            if Sm >> ((t + d) & 3) & 1:
                return (t + d) & 3

    def block(Sm, t, wait=None):
        rest = Sm & ~(1 << t)
        n = nxt(rest, t) if rest else None
        if rest:
            ops, cm = wchk([vM + 4 * n], vT0) if wait is not None else (chk4(vM + 4 * n, vT0), cmpv(vT0))
        smf1(t, 0, 0)
        if rest and ops:
            if wait is not None:
                A('s_waitcnt vmcnt(%d)' % wait)
            for o in ops:
                A(o)
        smf1(t, 0, 1)
        if rest:
            if not ops:
                A('s_waitcnt vmcnt(%d)' % wait)
            A(cm)
        smf1(t, 1, 0)
        smf1(t, 1, 1)
        return rest, n

    fc = opt.get('fc', 3)

    def fast_chains():
        def chain_(lab, Sm, que, fail2):
            hook(True)
            A.label(lab)
            ld_mem(que[-1])
            cnt(sN1)
            A('s_waitcnt vmcnt(%d)' % (len(que) - 1))
            ops, cm = wchk([vM + 4 * que[0]], vT0)
            for o in ops + [cm]:
                A(o)
            A('s_cbranch_vccnz %s' % (fail2 or 'L_F%d_%d' % (Sm, que[0])))
            if Sm == 15:
                stamp('m0ok')
            for i, t in enumerate(que):
                stamp('B%d' % (4 - len(que) + i))
                last = i + 2 == len(que)
                if last and len(que) < 4:
                    block(1 << t, t)
                    Sm &= ~(1 << t)
                    n = que[-1]
                    A('s_waitcnt vmcnt(0)')
                    ops, cm = wchk([vM + 4 * n], vT0)
                    for o in ops + [cm]:
                        A(o)
                else:
                    Sm, n = block(Sm, t, len(que) - 2 - i)
                if Sm:
                    assert n == que[i + 1]
                    A('s_cbranch_vccnz L_F%d_%d' % (Sm, n))
            A('s_branch L_T1')
        chain_('L_G15_0', 15, [1, 2, 3, 0], 'L_G15_1' if fc > 1 else None)
        if fc > 1:
            chain_('L_G15_1', 15, [2, 3, 0, 1], 'L_G15_2' if fc > 2 else None)
        if fc > 2:
            chain_('L_G15_2', 15, [3, 0, 1, 2], None)
        chain_('L_G14_1', 14, [2, 3, 1], None)
        chain_('L_G12_2', 12, [3, 2], None)

    def first_pass():
        A('s_waitcnt vmcnt(3)')
        ops, cm = wchk([vM], vT0)
        for o in ops:
            A(o)
        A(cm)
        A('s_cbranch_vccnz L_%s15_0' % ('G' if fc else 'F'))
        stamp('m0ok')
        Sm = 15
        for t in range(4):
            stamp('B%d' % t)
            Sm, n = block(Sm, t, 2 - t)
            if Sm:
                A('s_cbranch_vccnz L_%s%d_%d' % ('G' if fc and n < 3 else 'F', Sm, n))

    def poll_nodes_ooo():
        for Sm in sorted(range(1, 16), key=lambda x: -bin(x).count('1')):
            ts = [t for t in range(4) if Sm >> t & 1]
            hook(True)
            for t in ts:
                A.label('L_P%d_%d' % (Sm, t))
                A('s_waitcnt vmcnt(3)')
                for o in chk4(vM + 4 * t, vT0):
                    A(o)
                A(cmpv(vT0))
                A('s_cbranch_vccz L_V%d_%d' % (Sm, t))
                A.label('L_F%d_%d' % (Sm, t))
                ld_mem(t)
                cnt(sN1)
            timeout_stub(A, 'L_P%d_%d' % (Sm, ts[0]))
            if len(ts) > 1:
                hook()
            for t in ts:
                hook(True)
                A.label('L_V%d_%d' % (Sm, t))
                if Sm == 15:
                    stamp('m0ok')
                stamp('B%d' % (4 - len(ts)))
                rest, n = block(Sm, t)
                if rest:
                    A('s_cbranch_vccz L_V%d_%d' % (rest, n))
                    A('s_branch L_F%d_%d' % (rest, n))
                else:
                    A('s_branch L_T1')

    def poll_nodes():
        if opt.get('ooo', 1):
            return poll_nodes_ooo()
        for k in range(4):
            full = 15 & ~((1 << k) - 1)
            for Sm in sorted(range(1, 16), key=lambda x: -bin(x).count('1')):
                if Sm & ~full:
                    continue
                ts = [t for t in range(4) if Sm >> t & 1]
                for t in ts:
                    rest = Sm & ~(1 << t)
                    A.label('L_P%d_%d_%d' % (k, Sm, t))
                    A('s_waitcnt vmcnt(%d)' % opt.get('lim', 3))
                    for o in chk4(vM + 4 * t, vT0):
                        A(o)
                    A(cmpv(vT0))
                    A('s_cbranch_vccz %s' % ('L_P%d_%d_%d' % (k, rest, nxt(rest, t)) if rest else 'L_G%d' % k))
                    if Sm == full and t == k:
                        A.label('L_F%d_%d' % (Sm, t))
                    ld_mem(t)
                    cnt(sN1)
                timeout_stub(A, 'L_P%d_%d_%d' % (k, Sm, ts[0]))
        for k in range(4):
            A.label('L_G%d' % k)
            if k == 0:
                stamp('m0ok')
            stamp('B%d' % k)
            block(1 << k, k)
        A('s_branch L_T1')

    A('s_cmp_lt_u32 s%d, %d' % (sPure, NPURE))
    A('s_cbranch_scc1 L_loop_i')
    loop_start = len(A.lines)
    A('.p2align 6')
    A.label('L_loop')
    first_pass()
    A.label('L_T1')
    stamp('T1')
    kxl = [ldx4(vKx + 4 * f, (sKx, sKx2)[f >> 2], (f & 3) * 1024) for f in range(8)]
    na = opt.get('na', 3)
    ka = kxl[8 - na:]
    nk = lambda: A(ka.pop(0)) if ka else None
    qk = ld_q + ld_k
    order = []
    zq = []
    if opt.get('split', 1):
        fold(0)
        stamp('f0')
        fold(1)
        stamp('f1')
        nv1 = opt.get('nv', 2)
        for t in range(nv1):
            smf1(t, 2, 0)
            nk()
            smf1(t, 2, 1)
        A('s_waitcnt lgkmcnt(0)')
        stamp('st1end')
        A('s_barrier')
        stamp('bar1')
        rd1(vR1)
        for t in range(nv1, 4):
            smf1(t, 2, 0); nk(); smf1(t, 2, 1)
        while ka:
            nk()
        red1(vQK)
        A(st4(vQK, vQst, sQkvW, loc))
        stamp('qkvst')
        slots = [int(ch) for ch in str(opt.get('h2s', '2244')).zfill(4)]

        def slot(i):
            for n_, sl_ in enumerate(slots):
                if sl_ == i:
                    A(qk[n_]); order.append(qk[n_])
        fold(2)
        slot(0)
        A('s_add_u32 s%d, s%d, 0x%x' % (sKx, sKx, SEG))
        A('s_add_u32 s%d, s%d, 0x%x' % (sKx2, sKx2, SEG))
        A('s_cmp_eq_u32 s%d, s%d' % (sStep, sD))
        A('s_cbranch_scc1 L_sp')
        A.label('L_spr')
        A('s_waitcnt lgkmcnt(0)')
        A('s_barrier')
        stamp('bar1b')
        slot(1)
        rd1(vR1v)
        slot(2)
        A('s_waitcnt lgkmcnt(%d)' % (0 if prof else 3))
        slot(3)
        red1(vVv)
        A(st_v); order.append(st_v)
        stamp('vst')
        slot(4)
    else:
        vs = [(t, 2, tt) for t in range(4) for tt in range(2)]
        fold(0, vs)
        stamp('f0')
        fold(1, vs)
        stamp('f1')
        fold(2)
        while ka:
            nk()
        A('s_add_u32 s%d, s%d, 0x%x' % (sKx, sKx, SEG))
        A('s_add_u32 s%d, s%d, 0x%x' % (sKx2, sKx2, SEG))
        A('s_waitcnt lgkmcnt(0)')
        stamp('st1end')
        A('s_barrier')
        stamp('bar1')
        rd1(vR1)
        rd1(vR1v, vA)
        red1(vQK, '', vR, 4)
        A(st4(vQK, vQst, sQkvW, loc))
        stamp('qkvst')
        red1(vVv, '', vA)
        A(st_v)
        stamp('vst')
        A('s_cmp_eq_u32 s%d, s%d' % (sStep, sD))
        A('s_cbranch_scc1 L_sp')
        A.label('L_spr')
        zq = zeros(vT, 16) + zeros(MM, 4)
        fz = zq + ['s_nop 0'] * 60
        for i, n_ in enumerate([opt.get('h2d', 6)] + [opt.get('h2p', 10)] * 3):
            paced(fz[:n_]); fz = fz[n_:]
            A(qk[i]); order.append(qk[i])
        paced([o for o in fz if o.startswith('v_')])
    younger = lambda o: len(order) - 1 - order.index(o)
    A.label('L_h2')
    mx = lambda tt, j, first=False: A('v_mfma_f32_16x16x32_bf16 %s, %s, %s, %s' % (v(vS + 4 * tt, 4), v(vKx + (tt * 4 + j) * 4, 4), v(vQ + 4 * j, 4), '0' if first else v(vS + 4 * tt, 4)))
    ror = lambda r_: A('v_mov_b32_dpp v%d, v%d row_ror:8 row_mask:0xf bank_mask:0xf' % (r_ + 4, r_))
    smm = lambda u: A('v_smfmac_f32_16x16x64_bf16 %s, %s, %s, v%d' % (v(MM, 4), v(vKm + 4 * u, 4), v(vQ + 8 * u, 8), vIdx))
    qkr = [vQ, vQ + 8, vKm, vKm + 4]
    mxo = ['v_max3_f32 v%d, v%d, v%d, v%d' % (vT0, vBias, X0, X0 + 1), 'v_max3_f32 v%d, v%d, v%d, v%d' % (vT0, vT0, X0 + 2, X0 + 3),
           'v_max3_f32 v%d, v%d, v%d, v%d' % (vT0, vT0, X1, X1 + 1), 'v_max3_f32 v%d, v%d, v%d, v%d' % (vT0, vT0, X1 + 2, X1 + 3)]
    swm = ['v_permlane32_swap_b32 v%d, v%d' % (MM, MM + 2), 'v_permlane32_swap_b32 v%d, v%d' % (MM + 1, MM + 3)]

    def ck(i):
        for o in chk4(qkr[i], vT3):
            A(o)

    def s_end():
        add2(MM, MM, MM + 2)
        A('v_max3_f32 v%d, v%d, v%d, v%d' % (vT0, vT0, MM, MM + 1))
        A('v_mov_b32 v%d, v%d' % (vT1, vT0))
    h2m = opt.get('h2m', 0)
    if h2m == 2:
        stamp('q0w')
        A('s_waitcnt vmcnt(%d)' % younger(qk[0]))
        stamp('q0l')
        mx(0, 0, True); ck(0)
        mx(1, 0, True); A(cmpv(vT3)); ror(vQ); ror(vQ + 1); ror(vQ + 2); ror(vQ + 3)
        A('s_cbranch_vccnz L_FA15_0')
        mx(0, 1)
        A('s_waitcnt vmcnt(%d)' % younger(qk[1]))
        stamp('q1l')
        ck(1)
        mx(1, 1); A(cmpv(vT3)); ror(vQ + 8)
        mx(0, 2); ror(vQ + 9); ror(vQ + 10)
        mx(1, 2); ror(vQ + 11)
        A('s_cbranch_vccnz L_FA14_1')
        stamp('q0ok')
        mx(0, 3); A(ld_v[0])
        mx(1, 3); A(ld_v[1])
        order += ld_v
        stamp('k0w')
        A('s_waitcnt vmcnt(%d)' % younger(qk[2]))
        smm(0)
        if opt.get('k0c', 1):
            ck(2); A(cmpv(vT3)); A(mxo[0]); A(mxo[1]); A(mxo[2]); A(mxo[3])
            A('s_cbranch_vccnz L_FK12_2')
            stamp('k1w')
            A('s_waitcnt vmcnt(%d)' % younger(qk[3]))
            stamp('k1l')
            smm(1)
            ck(3); A(cmpv(vT3))
            A(swm[0]); A(swm[1])
            s_end()
            A('s_cbranch_vccnz L_FK8_3')
        else:
            stamp('k1w')
            A('s_waitcnt vmcnt(%d)' % younger(qk[3]))
            stamp('k1l')
            smm(1)
            for o in chk4(vKm, vT3) + chk4more(vKm + 4, vT3):
                A(o)
            A(cmpv(vT3))
            A(mxo[0]); A(swm[0]); A(swm[1]); A(mxo[1]); A(mxo[2]); A(mxo[3])
            s_end()
            A('s_cbranch_vccnz L_PK12_2')
    else:
        stamp('q0w')
        A('s_waitcnt vmcnt(%d)' % younger(qk[0]))
        stamp('q0l')
        mx(0, 0, True); ror(vQ); ror(vQ + 1)
        mx(1, 0, True); ror(vQ + 2); ror(vQ + 3)
        A('s_waitcnt vmcnt(%d)' % younger(qk[1]))
        stamp('q1l')
        ops, cm = wchk([vQ, vQ + 8], vT3)
        if rx:
            mx(0, 2); A(ops[0]); A(cm)
            mx(1, 2); ror(vQ + 8); ror(vQ + 9)
            mx(0, 1); ror(vQ + 10); ror(vQ + 11)
            mx(1, 1)
        else:
            mx(0, 2); A(ops[0]); A(ops[1])
            mx(1, 2); A(ops[2]); A(ops[3])
            mx(0, 1); A(cm); ror(vQ + 8); ror(vQ + 9)
            mx(1, 1); ror(vQ + 10); ror(vQ + 11)
        A('s_cbranch_vccnz %s' % ('L_r2' if h2m == 0 else 'L_PA15_0'))
        stamp('q0ok')
        order_q = list(order)
        vpos = opt.get('vpos', 1)
        mx(0, 3)
        if vpos == 0:
            A(ld_v[0])
        mx(1, 3)
        if vpos == 0:
            A(ld_v[1])
            order += ld_v
        A.label('L_h2k')
        stamp('k0w')
        A('s_waitcnt vmcnt(%d)' % younger(qk[2]))
        smm(0)
        stamp('k1w')
        A('s_waitcnt vmcnt(%d)' % younger(qk[3]))
        stamp('k1l')
        smm(1)
        if vpos == 1:
            A(ld_v[0]); A(ld_v[1])
        ops, cm = wchk([vKm, vKm + 4], vT3)
        for o in ops + [cm] + (mxo + swm if rx else [mxo[0]] + swm + mxo[1:]):
            A(o)
        order_k = order[order.index(qk[2]):]
        s_end()
        A('s_cbranch_vccnz %s' % ('L_r2k' if h2m == 0 else 'L_PK12_2'))
    A.label('L_sj')
    stamp('kok')
    vxl = [ldx4(vVx + 4 * f, (sVx, sVx2)[f >> 2], (f & 3) * 1024) for f in range(8)]
    nc = opt.get('nc', 3)
    bulk = vxl + kxl[nc:8 - na]
    if opt.get('xdrop'):
        bulk = bulk[:len(bulk) - opt['xdrop']]
    nbulk = len(bulk)
    nb = lambda: A(bulk.pop(0)) if bulk else None
    early = opt.get('be', 2)
    for i in range(min(early, 1)):
        nb()
    A('v_permlane32_swap_b32 v%d, v%d' % (vT0, vT1))
    A('v_max_f32 v%d, v%d, v%d' % (vT0, vT0, vT1))
    A('v_mov_b32 v%d, v%d' % (vT1, vT0))
    for i in range(max(early - 1, 0)):
        nb()
    A('v_permlane16_swap_b32 v%d, v%d' % (vT0, vT1))
    A('v_max_f32 v%d, v%d, v%d' % (vT0, vT0, vT1))
    A('v_mul_f32 v%d, s%d, v%d' % (vT0, sScale, vT0))
    fma = lambda r_: A('v_fma_f32 v%d, v%d, s%d, -v%d' % (r_, r_, sScale, vT0))
    ex = lambda r_: A('v_exp_f32 v%d, v%d' % (r_, r_))
    cvt = lambda d, x: A('v_cvt_pk_bf16_f32 v%d, v%d, v%d' % (d, x, x + 1))
    shr = lambda d, x: A('v_mov_b32_dpp v%d, v%d row_shr:8 row_mask:0xf bank_mask:0xc' % (d, x))
    def fma2(r_):
        if opt.get('pkf', 1):
            A('v_pk_fma_f32 %s, %s, %s, %s op_sel_hi:[1,0,0] neg_lo:[0,0,1] neg_hi:[0,0,1]' % (v(r_, 2), v(r_, 2), s(sSc2, 2), v(vT0, 2)))
        else:
            fma(r_); fma(r_ + 1)
    vom = lambda u, n: A('v_smfmac_f32_16x16x64_bf16 %s, %s, %s, v%d' % (v(vT + 4 * n, 4), v(vVm + 4 * u, 4), a(WO(n, 2 * u), 8), vIdx))
    m32 = lambda d, x, p, c_: A('v_mfma_f32_16x16x32_bf16 %s, %s, %s, %s' % (v(d, 4), v(x, 4), v(p, 4), v(d, 4) if c_ else '0'))
    m16 = lambda d, x, p: A('v_mfma_f32_16x16x16_bf16 %s, %s, %s, %s' % (v(d, 4), v(x, 2), v(p, 2), v(d, 4)))
    cvm = lambda k: cvt(vVOm + k, vT + 2 * k)
    s2 = opt.get('s2', 2)
    if s2:
        assert vPms == vPm + 2 and vPm % 4 == 0
        er = [MM, MM + 1] + [vS + i for i in range(8)]
        fma2(MM)
        for i in range(4):
            fma2(vS + 2 * i)
        for r_ in er[:7]:
            ex(r_)

        def vcheck(between):
            stamp('vw')
            A('s_waitcnt vmcnt(%d)' % (nbulk - len(bulk)))
            stamp('vl')
            ops, cm = wchk([vVm, vVm + 4], vT3)
            for o in ops + [cm]:
                A(o)
            between()
            A('s_cbranch_vccnz L_r2v')
            A.label('L_h2v')
            stamp('Send')
        swp = lambda: A('v_permlane32_swap_b32 v%d, v%d' % (vPm, vPm + 1))
        if s2 == 1:
            vcheck(lambda: [ex(r_) for r_ in er[7:]])
            gaps = [lambda: cvt(vPm, MM), lambda: cvt(vPm + 1, MM), lambda: cvt(vP, vS), lambda: cvt(vP + 1, vS + 2),
                    lambda: cvt(vP + 2, vS + 4), lambda: cvt(vP + 3, vS + 6), swp, lambda: shr(vPs, vP)]
            for i in range(8):
                vom(i & 1, i >> 1)
                if i & 1:
                    nb()
                gaps[i]()
            stamp('vomend')
            m32(vLs, vOne, vP, 0); nb(); shr(vPs + 1, vP + 1); shr(vPs + 2, vP + 2)
            m16(vLs, vHalf, vPm); shr(vPs + 3, vP + 3); shr(vPms, vPm)
            m32(vO, vVOx, vP, 0); nb(); shr(vPms + 1, vPm + 1); cvm(0)
            m32(vO, vVOx + 4, vPs, 1); cvm(1); cvm(2); cvm(3)
            m32(vO + 4, vVOx + 8, vP, 0); nb(); cvm(4); cvm(5)
            stamp('m16')
            m32(vO, vVOm, vPm, 1); nb(); cvm(6); cvm(7)
            m32(vO + 4, vVOx + 12, vPs, 1); nb()
            A('v_rcp_f32 v%d, v%d' % (vT1, vLs))
            m32(vO + 4, vVOm + 4, vPm, 1)
        else:
            bs = str(opt.get('bs', '0101001')).zfill(7)
            for r_ in er[7:]:
                ex(r_)
            for i in range(int(bs[0])):
                nb()
            for i in range(4):
                cvt(vP + i, vS + 2 * i)
            cvt(vPm, MM); cvt(vPm + 1, MM)
            nbi = lambda i: nb() if int(bs[i]) else None
            m32(vLs, vOne, vP, 0); nbi(1); shr(vPs, vP); shr(vPs + 1, vP + 1)
            m32(vO, vVOx, vP, 0); nbi(2); shr(vPs + 2, vP + 2); shr(vPs + 3, vP + 3)
            m32(vO + 4, vVOx + 8, vP, 0); nbi(3); swp()
            m32(vO, vVOx + 4, vPs, 1)
            vcheck(lambda: [m32(vO + 4, vVOx + 12, vPs, 1), nbi(4), shr(vPms, vPm), shr(vPms + 1, vPm + 1), m16(vLs, vHalf, vPm)])
            gaps = {3: [0], 4: [1], 5: [2], 6: [3], 7: [4]}
            for i in range(8):
                vom(i & 1, i >> 1)
                if i % int(bs[6]) == 0:
                    nb()
                if i == 2:
                    A('v_rcp_f32 v%d, v%d' % (vT1, vLs))
                for k in gaps.get(i, []):
                    cvm(k)
            stamp('vomend')
            m32(vO, vVOm, vPm, 1); cvm(5)
            stamp('m16')
            cvm(6); cvm(7)
            m32(vO + 4, vVOm + 4, vPm, 1)
    else:
        for i in range(4):
            fma2(vS + 2 * i)
        stamp('vw')
        A('s_waitcnt vmcnt(%d)' % early)
        stamp('vl')
        ops, cm = wchk([vVm, vVm + 4], vT3)
        for o in ops + [cm]:
            A(o)
        for i in range(3):
            ex(vS + i)
        A('s_cbranch_vccnz L_r2v')
        A.label('L_h2v')
        stamp('Send')
        vom = lambda u, n: A('v_smfmac_f32_16x16x64_bf16 %s, %s, %s, v%d' % (v(vT + 4 * n, 4), v(vVm + 4 * u, 4), a(WO(n, 2 * u), 8), vIdx))
        for i in range(8):
            vom(i & 1, i >> 1)
            if i & 1:
                nb()
            if i < 5:
                ex(vS + 3 + i)
            else:
                cvt(vP + i - 5, vS + 2 * (i - 5))
        stamp('vomend')
        cvt(vP + 3, vS + 6)
        fma2(MM)
        m32 = lambda d, x, p, c_: A('v_mfma_f32_16x16x32_bf16 %s, %s, %s, %s' % (v(d, 4), v(x, 4), v(p, 4), v(d, 4) if c_ else '0'))
        m16 = lambda d, x, p: A('v_mfma_f32_16x16x16_bf16 %s, %s, %s, %s' % (v(d, 4), v(x, 2), v(p, 2), v(d, 4)))
        cvm = lambda k: cvt(vVOm + k, vT + 2 * k)
        m32(vO, vVOx, vP, 0)
        nb()
        ex(MM)
        m32(vO + 4, vVOx + 8, vP, 0)
        ex(MM + 1)
        m32(vLs, vOne, vP, 0)
        nb()
        shr(vPs, vP); shr(vPs + 1, vP + 1); shr(vPs + 2, vP + 2); shr(vPs + 3, vP + 3)
        cvt(vPm, MM)
        cvt(vPm + 1, MM)
        if opt.get('mm', 1):
            assert vPms == vPm + 2 and vPm % 4 == 0
            m32(vO, vVOx + 4, vPs, 1)
            cvm(0)
            A('v_permlane32_swap_b32 v%d, v%d' % (vPm, vPm + 1))
            m32(vO + 4, vVOx + 12, vPs, 1)
            nb()
            cvm(1); cvm(2)
            stamp('m16')
            m16(vLs, vHalf, vPm)
            nb()
            shr(vPms, vPm); shr(vPms + 1, vPm + 1); cvm(3); cvm(4); cvm(5)
            m32(vO, vVOm, vPm, 1)
            nb()
            cvm(6); cvm(7)
            A('v_rcp_f32 v%d, v%d' % (vT1, vLs))
            m32(vO + 4, vVOm + 4, vPm, 1)
        else:
            m32(vO, vVOx + 4, vPs, 1)
            cvm(0)
            A('v_permlane32_swap_b32 v%d, v%d' % (vPm, vPm + 1))
            m32(vO + 4, vVOx + 12, vPs, 1)
            nb()
            cvm(1); cvm(2)
            stamp('m16')
            m16(vLs, vHalf, vPm)
            shr(vPms, vPm); shr(vPms + 1, vPm + 1)
            m16(vO, vVOm, vPm)
            nb()
            cvm(3); cvm(4); cvm(5)
            m16(vO, vVOm + 2, vPms)
            cvm(6); cvm(7)
            m16(vO + 4, vVOm + 4, vPm)
            nb()
            A('v_rcp_f32 v%d, v%d' % (vT1, vLs))
            m16(vO + 4, vVOm + 6, vPms)
    stamp('mend')
    A('ds_write_b32 v%d, v%d' % (vW2l, vT1))
    A('ds_write_b128 v%d, %s' % (vW2, v(vO, 4)))
    while bulk:
        nb()
    A('ds_write_b128 v%d, %s offset:1024' % (vW2, v(vO + 4, 4)))
    A('s_add_u32 s%d, s%d, 0x%x' % (sPf, sPf, SEG))
    A('s_waitcnt lgkmcnt(0)')
    stamp('st2end')
    A('s_barrier')
    stamp('bar2')
    A('ds_read_b128 %s, v%d' % (v(vR2d + 8, 4), vR2l))
    for w in range(4):
        A('ds_read_b64 %s, v%d offset:%d' % (v(vR2d + 2 * w, 2), vR2, w * 2048))
    side = []
    if not opt.get('nokvm'):
        side += [st4(vQK, vKst, sKvm, ' sc1'), st4(vVv, vVst, sKvm, ' sc1')]
    if opt.get('pf', 1):
        side += [ldx4(252, sPf, 0)]
    side += ['buffer_load_dword v%d, v%d, %s, s%d offen sc1' % (vFv, vFa, S4(WS), sFo)]
    nse = opt.get('nse', 3)
    for o in side[:nse]:
        A(o)
    for w in range(4):
        A('s_waitcnt lgkmcnt(%d)' % (0 if prof else 3 - w))
        sel = 'op_sel:[0,%d%s] op_sel_hi:[1,%d%s]' % (w & 1, ',0' if w else '', w & 1, ',1' if w else '')
        if w == 0:
            A('v_pk_mul_f32 %s, %s, %s %s' % (v(vR2d, 2), v(vR2d, 2), v(vR2d + 8, 2), sel))
        else:
            A('v_pk_fma_f32 %s, %s, %s, %s %s' % (v(vR2d, 2), v(vR2d + 2 * w, 2), v(vR2d + 8 + (w & 2), 2), v(vR2d, 2), sel))
    cvt(vT0, vR2d)
    guard(vT0)
    A(st4(vT0, vL4, sPartA, ' sc1'))
    stamp('partst')
    A('s_waitcnt vmcnt(%d)' % (1 + max(nbulk - 8, 0) + len(side[:nse])))
    stamp('vxok')
    pre = [st4(vSent, vL4, sMemW, loc),
           's_xor_b32 s%d, s%d, 0x8000' % (sQkvW, sQkvW),
           st4(vSent, vQst, sQkvW, loc), st4(vSent, vVst, sQkvW, loc)]
    pre = kxl[:nc] + side[nse:] + pre
    pre += ['s_xor_b32 s%d, s%d, 0x8000' % (sQkvR, sQkvR), 's_xor_b32 s%d, s%d, 0x8000' % (sQkvR2, sQkvR2),
            's_add_u32 s%d, s%d, 0x%x' % (sKvm, sKvm, SEG), 's_add_u32 s%d, s%d, 0x%x' % (sPartA, sPartA, SEG), 's_xor_b32 s%d, s%d, 0x4000' % (sMemW, sMemW),
            's_xor_b32 s%d, s%d, 0x4000' % (sMemR, sMemR),
            's_add_u32 s%d, s%d, 0x%x' % (sVx, sVx, SEG), 's_add_u32 s%d, s%d, 0x%x' % (sVx2, sVx2, SEG)]
    gpos = opt.get('gpos', 26)
    fill = {}
    for i, o in enumerate(pre):
        fill.setdefault(i, []).append(o)
    sl = ['s_memtime s[26:27]'] if prof else []
    fill.setdefault(gpos, []).extend(['s_nop 15'] * opt.get('w3', 0) + sl + ld_part)
    vox(fill)
    zz = [o for o in zeros(vA, 24) + zeros(vT, 16) + zeros(MM, 4) if o not in zq]
    zz += ['s_nop 0'] * len(zq)
    zw = opt.get('zw', 0)
    paced(zeros(vM, 16, '-1') + vox_tail() + (zeros(vQ, 4, '-1') + zeros(vQ + 8, 4, '-1') + zeros(vKm, 8, '-1') if h2m else []) + zz[:zw])
    zz = zz[zw:]
    if lite and not prof:
        A('s_and_b32 s%d, s%d, %d' % (sA, sStep, 48 if opt.get('trs') else 3))
        A('s_cbranch_scc1 L_notr')
        A('s_memtime s[12:13]')
        A('s_memrealtime s[14:15]')
        A('s_%s_b32 s%d, s%d, 1' % ('lshl' if opt.get('trs') else 'lshr', sA, sStep))
        A('s_mov_b32 m0, s%d' % sA)
        A('s_waitcnt lgkmcnt(0)')
        A('v_writelane_b32 v%d, s%d, m0' % (vTr, sKn if opt.get('trs') else 12))
        A('s_add_u32 m0, s%d, 1' % sA)
        A('v_writelane_b32 v%d, s14, m0' % vTr)
        A.label('L_notr')
    if prof:
        A('s_waitcnt lgkmcnt(0)')
        A('s_sub_u32 s%d, s%d, %d' % (sA, sStep, opt.get('ts', 33)))
        A('s_cmp_lt_u32 s%d, 6' % sA)
        A('s_cbranch_scc0 L_notr')
        A('s_mul_i32 s%d, s%d, 9' % (sA, sA))
        A('s_add_u32 s%d, s%d, 8' % (sA, sA))
        for i in [8] + list(range(8)):
            A('s_mov_b32 m0, s%d' % sA)
            A('v_writelane_b32 v%d, s%d, m0' % (vTr, 12 + 2 * i))
            A('s_add_u32 s%d, s%d, 1' % (sA, sA))
        A.label('L_notr')
    A.label('L_h3')
    lo = vP
    A('s_waitcnt vmcnt(1)')
    A('v_mfma_f32_16x16x32_bf16 %s, %s, %s, 0' % (v(lo, 4), v(vSel, 4), v(vPt, 4)))
    ops, cm = wchk([vPt, vPt + 4], vT0)
    for o in ([] if rx else ops[:2]):
        A(o)
    A('s_waitcnt vmcnt(0)')
    A('v_mfma_f32_16x16x32_bf16 %s, %s, %s, %s' % (v(lo, 4), v(vSel, 4), v(vPt + 4, 4), v(lo, 4)))
    for o in (ops if rx else ops[2:]):
        A(o)
    A(cm)
    A('s_cbranch_vccnz L_r3')
    A.label('L_h3ok')
    stamp('gathok')
    cvt(vT0, lo)
    guard(vT0)
    A(st4(vT0, vL4, sMemW, loc))
    stamp('memst')
    A('s_add_u32 s%d, s%d, 1' % (sStep, sStep))
    A('s_bitcmp1_b64 %s, s%d' % (s(sLo, 2), sStep))
    A('s_cselect_b32 s%d, 0, 0x%x' % (sFo, OOB))
    A('s_add_u32 s%d, s%d, 0x%x' % (sPartR, sPartR, SEG))
    z0 = opt.get('h1d', 20)
    zs = opt.get('h1s', 10)
    paced(zz[:z0]); zz = zz[z0:]
    for t in range(4):
        ld_mem(t)
        stamp('mi%d' % t)
        if t == 2:
            paced(zz); zz = []
            kvo = kv_ops('L_kvw')
            for o in kvo[:-1]:
                A(o)
        paced(zz[:zs]); zz = zz[zs:]
    A('s_cbranch_scc0 L_loop')
    A('s_branch L_kvw')
    if fc:
        fast_chains()
    poll_nodes()
    A.label('L_sp')
    A('s_cmp_eq_u32 s%d, 63' % sStep)
    A('s_cbranch_scc1 L_c_tail')
    A('s_mov_b32 s%d, 63' % sD)
    A.label('L_sp1')
    A(ld_flags)
    A('s_waitcnt vmcnt(0)')
    kv_check('L_sp2')
    A('s_branch L_spr')
    A.label('L_sp2')
    timeout_stub(A, 'L_sp1')
    hook(True)
    A.label('L_kvw')
    if lite:
        A('s_add_u32 s%d, s%d, 6300' % (sN2, sN2))
    A(ld_flags)
    A('s_waitcnt vmcnt(0)')
    kv_check('L_kvw2')
    A('s_branch L_loop')
    A.label('L_kvw2')
    timeout_stub(A, 'L_kvw')
    if h2m:
        for fam, full, cont in (('A', 15, 'L_SA'), ('K', 12, 'L_SK')):
            for Sm in sorted(range(1, 16), key=lambda x: -bin(x).count('1')):
                if Sm & ~full:
                    continue
                ts = [t for t in range(4) if Sm >> t & 1]
                hook(True)
                for t in ts:
                    rest = Sm & ~(1 << t)
                    A.label('L_P%s%d_%d' % (fam, Sm, t))
                    A('s_waitcnt vmcnt(%d)' % opt.get('lim2', 4 if opt.get('split', 1) else 3))
                    ck(t)
                    A(cmpv(vT3))
                    A('s_cbranch_vccz %s' % ('L_P%s%d_%d' % (fam, rest, nxt(rest, t)) if rest else cont))
                    A.label('L_F%s%d_%d' % (fam, Sm, t))
                    A(qk[t])
                    cnt(sN2)
                timeout_stub(A, 'L_P%s%d_%d' % (fam, Sm, ts[0]))
                if len(ts) > 1:
                    hook()
        hook(True)
        A.label('L_SA')
        stamp('q1l'); stamp('q0ok'); stamp('k0w'); stamp('k1w'); stamp('k1l')
        mx(0, 0, True); ror(vQ); ror(vQ + 1)
        mx(1, 0, True); ror(vQ + 2); ror(vQ + 3)
        mx(0, 2); A(ld_v[0]); ror(vQ + 8); ror(vQ + 9)
        mx(1, 2); A(ld_v[1]); ror(vQ + 10); ror(vQ + 11)
        smm(0); smm(1)
        mx(0, 1); mx(0, 3); mx(1, 1); A(swm[0]); mx(1, 3); A(swm[1])
        for o in mxo:
            A(o)
        s_end()
        A('s_branch L_sj')
        hook()
        hook(True)
        A.label('L_SK')
        stamp('k1w'); stamp('k1l')
        for o in zeros(MM, 4):
            A(o)
        smm(0); smm(1)
        for o in mxo + swm:
            A(o)
        s_end()
        A('s_branch L_sj')
        hook()
    else:
        hook(True)
        A.label('L_r2')
        for o in order_q:
            A(o)
        cnt(sN2)
        timeout_stub(A, 'L_h2')
        hook(True)
        A.label('L_r2k')
        for o in order_k + zeros(MM, 4):
            A(o)
        cnt(sN2)
        timeout_stub(A, 'L_h2k')
        hook()
    hook(True)
    A.label('L_r2v')
    for o in ld_v:
        A(o)
    cnt(sN2)
    A('s_waitcnt vmcnt(0)')
    for o in chk4(vVm, vT3) + chk4more(vVm + 4, vT3):
        A(o)
    A(cmpv(vT3))
    A('s_cbranch_vccz L_h2v')
    timeout_stub(A, 'L_r2v')
    hook()
    hook(True)
    A.label('L_r3')
    for o in ld_part:
        A(o)
    cnt(sN3)
    if opt.get('lim3', -1) < 0:
        timeout_stub(A, 'L_h3')
    A('s_waitcnt vmcnt(%d)' % max(opt.get('lim3', -1), 0))
    for o in chk4(vPt, vT0) + chk4more(vPt + 4, vT0):
        A(o)
    A(cmpv(vT0))
    A('v_mfma_f32_16x16x32_bf16 %s, %s, %s, 0' % (v(lo, 4), v(vSel, 4), v(vPt, 4)))
    A('v_mfma_f32_16x16x32_bf16 %s, %s, %s, %s' % (v(lo, 4), v(vSel, 4), v(vPt + 4, 4), v(lo, 4)))
    A('s_nop 6')
    A('s_cbranch_vccz L_h3ok')
    timeout_stub(A, 'L_r3')
    hook()
    A.label('L_loop_end')
    body = [re.sub(r'@HK(\d+)@', lambda m: 'L_hk%d' % (int(m.group(1)) + 4) if int(m.group(1)) + 4 < len(hooks) else 'L_hkret', l) for l in A.lines[loop_start:]]
    labs = [l[:-1] for l in body if l.endswith(':')]
    pat = re.compile(r'\b(' + '|'.join(labs) + r')\b')
    A.lines[loop_start:] = [l.replace('@LOC@', '') for l in body] + [pat.sub(r'\1_i', l).replace('@LOC@', ' sc1') for l in body]
    A.label('L_c_tail')
    A('s_add_u32 s%d, s%d, 2048' % (sKvm, sKvm))
    A('s_xor_b32 s%d, s%d, 0x2000' % (sKvm, sKvm))
    A('s_sub_u32 s%d, s%d, 2048' % (sKvm, sKvm))
    A(st4(vQK, vKst, sKvm, ' sc1'))
    if opt.get('split', 1):
        A('s_waitcnt lgkmcnt(0)')
        A('s_barrier')
        rd1(vR1v)
        red1(vVv)
    A(st4(vVv, vVst, sKvm, ' sc1'))
    if lite:
        A('s_mov_b32 s66, s78')
        sN3 = 66
    if opt.get('diag'):
        A('s_cmp_lg_u32 s%d, 0' % sC)
        A('s_cbranch_scc1 L_dg')
        A('s_cmp_lg_u32 s%d, 0' % sW)
        A('s_cbranch_scc1 L_dg')
        dbg_mark(A, opt, 4, vT2, vT3)
        A('s_memtime s[78:79]')
        A('s_waitcnt lgkmcnt(0)')
        A('s_sub_u32 s78, s78, s98')
        A('s_sub_u32 s79, s96, s76')
        A('v_mov_b32 v%d, s78' % vT2)
        A('v_mov_b32 v%d, s79' % vT1)
        A('v_mov_b32 v%d, 0' % vT3)
        A('s_mov_b64 exec, 1')
        A('buffer_atomic_umax v%d, v%d, %s, 0 offen offset:36 sc1' % (vT2, vT3, S4(DBG)))
        A('buffer_atomic_umax v%d, v%d, %s, 0 offen offset:12 sc1' % (vT1, vT3, S4(DBG)))
        A('v_not_b32 v%d, v%d' % (vT2, vT2))
        A('buffer_atomic_umax v%d, v%d, %s, 0 offen offset:40 sc1' % (vT2, vT3, S4(DBG)))
        A('s_mov_b64 exec, -1')
        A.label('L_dg')
    if opt.get('hold') == 1:
        hold_after(A, 40)
    if opt.get('hold') == 2:
        hold_after(A, 170, 96)
    tstamp(A, opt, 7, vT2, vT3, sA)
    if lite:
        A('s_memtime s[12:13]')
        A('s_memrealtime s[14:15]')
        A('s_waitcnt lgkmcnt(0)')
        A('s_sub_u32 s12, s12, s96')
        A('s_sub_u32 s14, s14, s98')
        A('v_mov_b32 v%d, s12' % (vM + 3))
        A('v_mov_b32 v%d, s14' % (vM + 4))
        A('s_lshl_b32 s%d, s%d, 4' % (sA, sG))
        A('s_add_u32 s%d, s%d, s%d' % (sA, sA, sC))
        A('s_lshl_b32 s%d, s%d, 2' % (sA, sA))
        A('s_add_u32 s%d, s%d, s%d' % (sA, sA, sW))
        A('s_lshl_b32 s%d, s%d, 6' % (sA, sA))
        A('s_add_u32 s%d, s%d, 0x%x' % (sA, sA, PROF))
        A('v_mov_b32 v%d, s%d' % (vM, sN1))
        A('v_mov_b32 v%d, s%d' % (vM + 1, sN2))
        A('v_mov_b32 v%d, s%d' % (vM + 2, sN3))
        A('v_mov_b32 v%d, 0' % vT0)
        for i in range(9, 14):
            A('buffer_store_dword v%d, v%d, %s, s%d offen offset:%d' % (vM + i - 9, vT0, S4(WS), sA, 4 * i))
    if lite:
        A('v_mov_b32 v%d, s96' % vT1)
        A('buffer_store_dword v%d, v%d, %s, s%d offen offset:56' % (vT1, vT0, S4(WS), sA))
        A('v_mov_b32 v%d, s98' % vT2)
        A('buffer_store_dword v%d, v%d, %s, s%d offen offset:60' % (vT2, vT0, S4(WS), sA))
        A('s_sub_u32 s%d, s%d, 0x%x' % (sA, sA, PROF))
        A('s_lshl_b32 s%d, s%d, 2' % (sA, sA))
        A('s_add_u32 s%d, s%d, 0x%x' % (sA, sA, PROF + MB))
        A('buffer_store_dword v%d, v%d, %s, s%d offen' % (vTr, vL4, S4(WS), sA))
    A('s_waitcnt vmcnt(0)')
    A('s_endpgm')


def build(opt):
    A = Asm()
    prologue(A, opt)
    chain(A, opt)
    for kind in 'kvq':
        proj(A, opt, kind)
    orole(A, opt)
    A.label('L_code1')
    A('s_endpgm')
    body, nn = fix_hazards(A.lines, verbose=True)
    hdr = open('cdna_kernels/%s.s.ref' % NAME).read().split('\n')
    hdr = [l for l in hdr if l.startswith(';') and '@launch' not in l]
    hdr.append('; opts ' + ' '.join('%s=%s' % kv for kv in opt.items()))
    if opt.get('prof'):
        hdr.append('; marks=' + opt.get('marks', 'm0ok,st1end,qkvst,q0ok,Send,st2end,partst') + ',gath,gathok')
    out = hdr + ['; @launch grid=(256,1,1) block=(256,1,1) lds=%d' % opt.get('lds', 163840),
                 '.amdgcn_target "amdgcn-amd-amdhsa--gfx950"', '.text', '.globl %s_kernel' % NAME, '.p2align 8',
                 '.type %s_kernel,@function' % NAME, '%s_kernel:' % NAME]
    out += body
    out += ['.section .rodata,"a"', '.p2align 6', '.amdhsa_kernel %s_kernel' % NAME,
            '  .amdhsa_next_free_vgpr 512', '  .amdhsa_next_free_sgpr 102', '  .amdhsa_accum_offset 256',
            '  .amdhsa_group_segment_fixed_size 0', '  .amdhsa_kernarg_size 128', '  .amdhsa_user_sgpr_count 2',
            '  .amdhsa_user_sgpr_kernarg_segment_ptr 1', '  .amdhsa_system_sgpr_workgroup_id_x 1',
            '  .amdhsa_float_denorm_mode_32 3', '.end_amdhsa_kernel', '']
    return '\n'.join(out), nn


if __name__ == '__main__':
    opt = {}
    outp = sys.argv[1]
    for a_ in sys.argv[2:]:
        k, val = a_.split('=')
        opt[k] = int(val) if val.lstrip('-').isdigit() else val
    txt, nn = build(opt)
    open(outp, 'w').write(txt)
    print('wrote', outp, 'nops inserted:', nn)
```

```python
import struct, math
from asmlib import *
from layout import *

NAME = 'gated_mix__memory_aug_recurrent_mem_tr__moe_arch_mod__prompt'


def f32(x):
    return '0x%08x' % struct.unpack('<I', struct.pack('<f', x))[0]


P_X, P_MEM0, P_WQ, P_WK, P_WV, P_WO = 64, 66, 68, 70, 72, 74
P_WR, P_WG, P_WU, P_WD, P_GW, P_OUT, P_DBG, P_WS = 80, 82, 84, 86, 88, 90, 92, 94
WS, DBG = 4, 8
SRD_A, SRD_B, SRD_C, SRD_D, SRD_E = 12, 16, 20, 24, 28
sW, sG, sC, sTO = 32, 33, 34, 35
sX = 100
sPure = 101
NPURE = 32
sP = 62
VOTE = 0xe4
NVOTE = 16
LTOP = 163832
sR = 63
sT0 = 76
TIMEOUT = 1 << 20
LOG2E = math.log2(math.e)


def srd(A, d, p, nbytes):
    A('s_mov_b32 s%d, s%d' % (d, p))
    A('s_and_b32 s%d, s%d, 0xffff' % (d + 1, p + 1))
    A('s_mov_b32 s%d, 0x%x' % (d + 2, nbytes))
    A('s_mov_b32 s%d, 0x20000' % (d + 3))


def S4(d):
    return s(d, 4)


def timeout_stub(A, back):
    A('s_sub_u32 s%d, s%d, 1' % (sTO, sTO))
    A('s_cbranch_scc0 %s' % back)
    A('s_endpgm')


def sum8(A, vx, sa, sb):
    A('v_readlane_b32 s%d, v%d, 0' % (sa, vx))
    for i in range(1, 8):
        A('v_readlane_b32 s%d, v%d, %d' % (sb, vx, i))
        A('s_add_u32 s%d, s%d, s%d' % (sa, sa, sb))


def init_load(A, t0, t1):
    A('v_lshlrev_b32 v%d, 5, v0' % t1)
    A('v_min_u32 v%d, 0x%x, v%d' % (t1, VOTE, t1))
    A('v_cmp_eq_u32 vcc, 9, v0')
    A('v_cndmask_b32 v%d, 0, 4, vcc' % t0)
    A('v_add_u32 v%d, v%d, v%d' % (t1, t1, t0))
    A('buffer_load_dword v%d, v%d, %s, 0 offen sc1' % (t0, t1, S4(DBG)))


def arrived(A, t0, t1, sa, sb):
    A('v_bcnt_u32_b32 v%d, v%d, 0' % (t1, t0))
    sum8(A, t1, sa, sb)
    A('v_readlane_b32 s%d, v%d, 9' % (sb, t0))
    A('s_add_u32 s%d, s%d, s%d' % (sa, sa, sb))


def confirm(A, opt, t0, t1, sa):
    L = A.newlabel('L_cf')
    A('v_mov_b32 v%d, %d' % (t1, LTOP))
    A('s_cmp_lg_u32 s%d, 0' % sW)
    A('s_cbranch_scc1 ' + L)
    A('v_readfirstlane_b32 s%d, v254' % sa)
    A('v_mov_b32 v%d, s%d' % (t0, sa))
    A('ds_write_b32 v%d, v%d' % (t1, t0))
    A('s_waitcnt lgkmcnt(0)')
    A.label(L)
    A('s_barrier')
    A('ds_read_b32 v%d, v%d' % (t0, t1))
    A('s_waitcnt lgkmcnt(0)')
    A('v_readfirstlane_b32 s%d, v%d' % (sa, t0))
    A('s_bitcmp1_b32 s%d, s%d' % (sa, sR))
    A('s_cbranch_scc1 L_redo')
    if opt.get('prof'):
        A('s_mov_b32 s78, s76')
        tstamp(A, opt, 8, t0, t1, sa, now=False)
        tstamp(A, opt, 0, t0, t1, sa)


def near(A, r, tmp):
    A('s_lshr_b32 s%d, s%d, 8' % (tmp, r))
    A('s_xor_b32 s%d, s%d, s%d' % (tmp, tmp, sP))
    A('s_and_b32 s%d, s%d, 0x2000' % (tmp, tmp))
    A('s_xor_b32 s%d, s%d, s%d' % (r, r, tmp))


def wait_init(A, t0, t1, sa, sb, issued=False):
    L, L2 = A.newlabel('L_wi'), A.newlabel('L_wiok')
    L3 = A.newlabel('L_wi')
    if issued:
        A('s_branch ' + L3)
    A.label(L)
    init_load(A, t0, t1)
    A.label(L3)
    A('s_waitcnt vmcnt(0)')
    arrived(A, t0, t1, sa, sb)
    A('v_readlane_b32 s%d, v%d, 8' % (sP, t0))
    A('s_lshr_b32 s%d, s%d, 16' % (sb, sP))
    A('s_add_u32 s%d, s%d, s%d' % (sa, sa, sb))
    A('s_cmp_ge_u32 s%d, %d' % (sa, 256 + NVOTE))
    A('s_cbranch_scc1 %s' % L2)
    A('s_sleep 8')
    timeout_stub(A, L)
    A.label(L2)
    A('s_and_b32 s%d, s%d, 0xffff' % (sP, sP))
    A('s_cmp_gt_u32 s%d, %d' % (sP, NVOTE // 2))
    A('s_cselect_b32 s%d, 0x2000, 0' % sP)
    A('s_lshr_b32 s%d, s%d, 5' % (sa, sR))
    A('v_readlane_b32 s%d, v%d, s%d' % (sPure, t1, sa))


def poll_data(A, loads, regs, tmp, sleep):
    L, L2 = A.newlabel('L_pd'), A.newlabel('L_pdok')
    A.label(L)
    for o in loads:
        A(o)
    A('s_waitcnt vmcnt(0)')
    maxall(A, regs, tmp)
    A('v_cmp_eq_u32 vcc, -1, v%d' % tmp)
    A('s_cbranch_vccz %s' % L2)
    if sleep:
        A('s_sleep %d' % sleep)
    timeout_stub(A, L)
    A.label(L2)


def maxall(A, regs, tmp):
    regs = list(regs)
    A('v_max_u32 v%d, v%d, v%d' % (tmp, regs[0], regs[-1]))
    regs = regs[1:-1]
    while regs:
        x = regs[:2]
        regs = regs[2:]
        A('v_max3_u32 v%d, v%d, v%d, v%d' % (tmp, tmp, x[0], x[-1]))


def wait_flags(A, vf, vaddr, need, sleep=1):
    L, L2 = A.newlabel('L_wf'), A.newlabel('L_wfok')
    A.label(L)
    A('buffer_load_dword v%d, v%d, %s, 0 offen sc1' % (vf, vaddr, S4(WS)))
    A('s_waitcnt vmcnt(0)')
    A('v_cmp_gt_i32 vcc, %s, v%d' % (need, vf))
    A('s_cbranch_vccz %s' % L2)
    if sleep:
        A('s_sleep %d' % sleep)
    timeout_stub(A, L)
    A.label(L2)


def lane0_addr(A, dst, sval, tmp):
    A('v_mov_b32 v%d, 0x%x' % (tmp, OOB))
    A('v_mov_b32 v%d, s%d' % (dst, sval))
    A('v_cmp_eq_u32 vcc, 0, v0')
    A('v_cndmask_b32 v%d, v%d, v%d, vcc' % (dst, tmp, dst))


def bits(A, dst, terms, tmp, base=None):
    first = True
    for (si, wd, so) in terms:
        A('v_bfe_u32 v%d, v0, %d, %d' % (tmp, si, wd))
        if first:
            A('v_lshlrev_b32 v%d, %d, v%d' % (dst, so, tmp))
            first = False
        else:
            A('v_lshl_add_u32 v%d, v%d, %d, v%d' % (dst, tmp, so, dst))
    if base is not None:
        A('v_add_u32 v%d, %s, v%d' % (dst, base, dst))


def tstamp(A, opt, slot, t0, t1, sa, now=True):
    if not opt.get('prof'):
        return
    if now:
        A('s_memrealtime s[78:79]')
    A('s_lshl_b32 s%d, s%d, 2' % (sa, sR))
    A('s_add_u32 s%d, s%d, s%d' % (sa, sa, sW))
    A('s_lshl_b32 s%d, s%d, 6' % (sa, sa))
    A('s_add_u32 s%d, s%d, 0x%x' % (sa, sa, PROF + 2 * MB + slot * 4))
    A('s_waitcnt lgkmcnt(0)')
    A('v_mov_b32 v%d, s78' % t0)
    A('v_mov_b32 v%d, 0' % t1)
    A('buffer_store_dword v%d, v%d, %s, s%d offen' % (t0, t1, S4(WS), sa))
    A('s_memtime s[78:79]')
    A('s_add_u32 s%d, s%d, 0x100000' % (sa, sa))
    A('s_waitcnt lgkmcnt(0)')
    A('v_mov_b32 v%d, s78' % t0)
    A('buffer_store_dword v%d, v%d, %s, s%d offen' % (t0, t1, S4(WS), sa))


def cap_vm(A, start, already=8):
    out, n, done = [], already, False
    for l in A.lines[start:]:
        t = l.strip()
        if t.startswith('s_waitcnt') and 'vmcnt' in t:
            done = True
        if not done and t.startswith('buffer_'):
            n += 1
            if n > 60:
                out.append('    s_waitcnt vmcnt(59)')
        out.append(l)
    A.lines[start:] = out


def help_kv(A, opt, ptr, sh, t0, t1, sa, sb, between=None):
    hk = opt.get('hk', 3)
    mod = ' nt' if opt.get('hnt', 0) else ''
    srd(A, SRD_C, P_X, 4 * MB)
    A('s_and_b32 s%d, s%d, 15' % (sa, sR))
    A('s_lshl_b32 s%d, s%d, 2' % (sa, sa))
    A('s_add_u32 s%d, s%d, s%d' % (sa, sa, sW))
    A('s_lshl_b32 s%d, s%d, 11' % (sa, sa))
    bits(A, t1, [(0, 4, 7), (4, 1, 17), (5, 1, 30)], t0)
    A('buffer_load_dword v252, v%d, %s, s%d offen' % (t1, S4(SRD_C), sa))
    srd(A, SRD_C, ptr, 8 * MB)
    A('s_and_b32 s%d, s%d, 3' % (sa, sh))
    A('s_lshl_b32 s%d, s%d, 2' % (sa, sa))
    A('s_add_u32 s%d, s%d, s%d' % (sa, sa, sW))
    A('s_lshl_b32 s%d, s%d, 16' % (sa, sa))
    A('s_and_b32 s%d, s%d, 28' % (sb, sh))
    A('s_lshl_b32 s%d, s%d, 8' % (sb, sb))
    A('s_add_u32 s%d, s%d, s%d' % (sb, sb, sa))
    bits(A, t1, [(0, 3, 13), (3, 3, 20)], t0)
    A('buffer_load_dword v252, v%d, %s, s%d offen offset:384' % (t1, S4(SRD_C), sb))
    A('s_cmp_ge_u32 s%d, 28' % sh)
    A('s_cselect_b32 s%d, s%d, 0x%x' % (sb, sb, OOB))
    A('buffer_load_dword v252, v%d, %s, s%d offen offset:896' % (t1, S4(SRD_C), sb))
    if between:
        between()
    A('s_lshl_b32 s%d, s%d, 8' % (sa, sh))
    bits(A, t1, [(1, 3, 13), (4, 2, 20), (0, 1, 7)], t0)
    A('v_lshl_add_u32 v%d, s%d, 16, v%d' % (t1, sW, t1))
    A('s_add_u32 s%d, s%d, 0x%x' % (sa, sa, 0x400000 + (4 - hk) * 0x40000))
    for i in range(hk):
        A('buffer_load_dword v252, v%d, %s, s%d offen%s' % (t1, S4(SRD_C), sa, mod))
        A('s_add_u32 s%d, s%d, 0x40000' % (sa, sa))


def dbg_mark(A, opt, word, t0, t1):
    if not opt.get('diag'):
        return
    A('s_memrealtime s[78:79]')
    A('s_waitcnt lgkmcnt(0)')
    A('s_sub_u32 s78, s78, s76')
    A('v_mov_b32 v%d, s78' % t0)
    A('v_mov_b32 v%d, %d' % (t1, 4 * word))
    A('s_mov_b64 exec, 1')
    A('buffer_atomic_umax v%d, v%d, %s, 0 offen sc1' % (t0, t1, S4(DBG)))
    A('s_mov_b64 exec, -1')
    A('s_waitcnt vmcnt(0)')


def diag_hold(A, opt):
    if opt.get('diag', 0) > 1:
        L = A.newlabel('L_hold')
        A.label(L)
        A('s_memrealtime s[78:79]')
        A('s_waitcnt lgkmcnt(0)')
        A('s_sub_u32 s78, s78, s76')
        A('s_cmp_lt_u32 s78, %d' % (opt['diag'] * 100))
        A('s_cbranch_scc1 ' + L)


def touch_code(A, lab0, lab1, sidx, d, tmp):
    L = A.newlabel('L_pc')
    A('s_getpc_b64 s[%d:%d]' % (d, d + 1))
    A.label(L)
    A('s_add_u32 s%d, s%d, %s-%s' % (d, d, lab0, L))
    A('s_addc_u32 s%d, s%d, 0' % (d + 1, d + 1))
    A('s_and_b32 s%d, s%d, 0xffff' % (d + 1, d + 1))
    A('s_mov_b32 s%d, %s-%s' % (d + 2, lab1, lab0))
    A('s_mov_b32 s%d, 0x20000' % (d + 3))
    A('v_lshlrev_b32 v%d, 7, v0' % tmp)
    A('v_lshl_add_u32 v%d, s%d, 13, v%d' % (tmp, sidx, tmp))
    A('buffer_load_dword v253, v%d, %s, 0 offen' % (tmp, S4(d)))


def hold_after(A, us, ref=None):
    L = A.newlabel('L_hold')
    if ref is None:
        A('s_memrealtime s[76:77]')
        ref = 76
    A.label(L)
    A('s_sleep 8')
    A('s_memrealtime s[78:79]')
    A('s_waitcnt lgkmcnt(0)')
    A('s_sub_u32 s78, s78, s%d' % ref)
    A('s_cmp_lt_u32 s78, %d' % (us * 100))
    A('s_cbranch_scc1 ' + L)


def touch_pages(A, opt, sregs, t0, sa, vaddr=None):
    if not opt.get('tp', 0):
        return 0
    A('v_mov_b32 v%d, 0' % t0)
    for r in sregs:
        A('s_or_b32 s%d, s%d, 0x1fff00' % (sa, r))
        A('buffer_load_dword v253, v%d, %s, s%d offen' % (t0, S4(WS), sa))
    return len(sregs)
```

```python
from common import *
from workers import vote, kv_first


def orole(A, opt):
    S = Alloc(36, 62)
    sI = S('i')
    sA, sB, sCc, sD, sSeg, sBase, sRot, sHi, sPrev, sCnt = [S(n) for n in 'a b cc d seg base rot hi prev cnt'.split()]
    sIdx = S('idx', 8)
    cvt = lambda d, x, y: A('v_cvt_pk_bf16_f32 v%d, v%d, v%d' % (d, x, y))

    def rnd2(x, y, t):
        cvt(t, x, y)
        A('v_lshlrev_b32 v%d, 16, v%d' % (x, t))
        A('v_and_b32 v%d, s%d, v%d' % (y, sHi, t))

    def sigmoid(d, x):
        A('v_mul_f32 v%d, %s, v%d' % (d, f32(-LOG2E), x))
        A('v_exp_f32 v%d, v%d' % (d, d))
        A('v_add_f32 v%d, 1.0, v%d' % (d, d))
        A('v_rcp_f32 v%d, v%d' % (d, d))

    def touch_slow(t0, d):
        if not opt.get('tw', 1):
            return
        srd(A, d, P_WO, 8 * MB)
        A('s_and_b32 s%d, s%d, 7' % (sA, sI))
        A('s_lshl_b32 s%d, s%d, 3' % (sB, sW))
        A('s_add_u32 s%d, s%d, s%d' % (sA, sA, sB))
        A('s_lshl_b32 s%d, s%d, 18' % (sA, sA))
        A('s_and_b32 s%d, s%d, 8' % (sB, sI))
        A('s_lshl_b32 s%d, s%d, 7' % (sB, sB))
        A('s_add_u32 s%d, s%d, s%d' % (sA, sA, sB))
        A('s_add_u32 s%d, s%d, 0x20000' % (sB, sA))
        A('v_lshlrev_b32 v%d, 11, v0' % t0)
        A('buffer_load_dword v255, v%d, %s, s%d offen offset:384' % (t0, S4(d), sA))
        A('buffer_load_dword v255, v%d, %s, s%d offen offset:384' % (t0, S4(d), sB))

    V = Alloc(1, 252)
    vL16, vL4, vFl, vKey, vRaw = [V(n) for n in 'l16 l4 fl key raw'.split()]
    t0, t1, t2, t3, t4, t5 = [V('t%d' % i) for i in range(6)]
    vAcc = V('acc', 8, 4)
    vPm = V('perm', 32, 4)
    NB = 6
    vRing = V('ring', 32 * NB, 4)
    A.label('L_o')
    cap0 = len(A.lines)

    def voting():
        A('s_waitcnt vmcnt(0)')
        confirm(A, opt, t0, t1, sA)
        vote(A, sI, t0, t1, t2, sA, sB, sD, sSeg, sBase)
        tstamp(A, opt, 1, t0, t1, sA)
    help_kv(A, opt, P_WV, sI, t0, t1, sA, sB, voting)
    srd(A, SRD_A, P_WR, 2048)
    srd(A, SRD_B, P_X, 4 * MB)
    srd(A, SRD_C, P_GW, 2048)
    srd(A, SRD_D, P_WG, 7 * MB)
    srd(A, SRD_E, P_WU, 7 * MB)
    A('s_mov_b32 s%d, 0xffff0000' % sHi)
    A('v_lshlrev_b32 v%d, 4, v0' % vL16)
    A('v_lshlrev_b32 v%d, 2, v0' % vL4)
    if opt.get('chainonly'):
        A('s_endpgm')
    for i in range(opt.get('odl', 0)):
        A('s_sleep 32')
    for i in range(2):
        A('buffer_load_dwordx4 %s, v%d, %s, 0 offen offset:%d' % (v(vPm + 4 * i, 4), vL16, S4(SRD_A), 1024 * i))
    for i in range(2):
        A('buffer_load_dwordx4 %s, v%d, %s, 0 offen offset:%d' % (v(vPm + 8 + 4 * i, 4), vL16, S4(SRD_C), 1024 * i))
    bits(A, t2, [(0, 4, 11), (4, 2, 4)], t0)
    A('s_lshl_b32 s%d, s%d, 2' % (sA, sI))
    A('s_add_u32 s%d, s%d, s%d' % (sA, sA, sW))
    A('s_lshl_b32 s%d, s%d, 4' % (sD, sA))
    A('s_lshl_b32 s%d, s%d, 15' % (sA, sA))
    for ks in range(32):
        A('buffer_load_dwordx4 %s, v%d, %s, s%d offen offset:%d' % (a(4 * ks, 4), t2, S4(SRD_B), sA, 64 * ks))
    A('v_lshrrev_b32 v%d, 4, v0' % t0)
    A('v_mul_u32_u24 v%d, %d, v%d' % (t0, 8 * 7168, t0))
    A('v_and_b32 v%d, 15, v0' % t3)
    A('v_lshl_add_u32 v%d, v%d, 4, v%d' % (vRaw, t3, t0))
    A('s_cmp_lt_u32 s%d, 28' % sI)
    A('s_cselect_b32 s%d, 0, 0x%x' % (sB, OOB))
    A('v_add_u32 v%d, s%d, v%d' % (vRaw, sB, vRaw))
    A('s_mul_i32 s%d, s%d, %d' % (sBase, sW, 256 * 7168))
    A('s_lshl_b32 s%d, s%d, 8' % (sA, sI))
    A('s_add_u32 s%d, s%d, s%d' % (sBase, sBase, sA))

    def batch(b):
        for i in range(8):
            A('s_add_u32 s%d, s%d, 0x%x' % (sA, sBase, (32 * (b >> 1) + i) * 7168))
            A('buffer_load_dwordx4 %s, v%d, %s, s%d offen%s' % (v(vRing + 32 * (b % NB) + 4 * i, 4), vRaw, S4((SRD_D, SRD_E)[b & 1]), sA, ' nt' if opt.get('nt', 31) & 4 else ''))
    early = not opt.get('owait')
    if early:
        batch(0); batch(1)
    A('s_lshl_b32 s%d, s%d, 12' % (sA, sW))
    A('v_add_u32 v%d, s%d, v%d' % (t3, sA, vL16))
    bits(A, t4, [(0, 1, 11), (4, 2, 4)], t0, 's%d' % sA)
    A('s_waitcnt vmcnt(%d)' % (48 if early else 32))
    for i in range(4):
        A('ds_write_b128 v%d, %s offset:%d' % (t3, v(vPm + 4 * i, 4), 1024 * i))
    A('s_waitcnt vmcnt(%d) lgkmcnt(0)' % (16 if early else 0))
    for k0 in range(0, 32, 8):
        for ks in range(k0, k0 + 8):
            A('ds_read_b128 %s, v%d offset:%d' % (v(vPm + 4 * (ks & 7), 4), t4, 64 * ks))
        A('s_waitcnt lgkmcnt(0)')
        for ks in range(k0, k0 + 8):
            A('v_mfma_f32_16x16x32_bf16 %s, %s, %s, %s' % (v(vAcc, 4), v(vPm + 4 * (ks & 7), 4), a(4 * ks, 4), v(vAcc, 4) if ks else '0'))
    rnd2(vAcc + 1, vAcc, t0)
    sigmoid(t1, vAcc + 1)
    A('v_ashrrev_i32 v%d, 31, v%d' % (t2, vAcc))
    A('v_or_b32 v%d, 0x80000000, v%d' % (t2, t2))
    cvt(t1, t1, t1)
    A('v_and_b32 v%d, s%d, v%d' % (t1, sHi, t1))
    A('v_xor_b32 v%d, v%d, v%d' % (t2, t2, vAcc))
    A('s_sub_u32 s%d, 2047, s%d' % (sA, sD))
    A('v_sub_u32 v%d, s%d, v0' % (t3, sA))
    A('v_and_or_b32 v%d, v%d, s%d, v%d' % (t2, t2, sHi, t3))
    A('v_mov_b32 v%d, 0x%x' % (t3, OOB))
    A('v_cmp_gt_u32 vcc, 16, v0')
    A('v_cndmask_b32 v%d, v%d, v%d, vcc' % (t3, t3, vL4))
    wait_init(A, t0, t4, sA, sB)
    A('s_lshl_b32 s%d, s%d, 2' % (sA, sD))
    A('s_add_u32 s%d, s%d, 0x%x' % (sB, sA, KEYS))
    A('s_add_u32 s%d, s%d, 0x%x' % (sA, sA, GATE))
    A('buffer_store_dword v%d, v%d, %s, s%d offen sc1' % (t1, t3, S4(WS), sA))
    A('s_waitcnt vmcnt(0)')
    A('buffer_store_dword v%d, v%d, %s, s%d offen sc1' % (t2, t3, S4(WS), sB))
    for b in range(2, NB if early else 2):
        batch(b)
    A('s_mov_b32 s%d, 0x%x' % (sA, KEYS))
    A('s_mov_b32 s%d, 0x%x' % (sB, KEYS + 4096))
    A('s_waitcnt vmcnt(%d)' % (16 if early else 0))
    poll_data(A, ['buffer_load_dwordx4 %s, v%d, %s, s%d offen offset:%d sc1' % (v(vPm + 4 * i, 4), vL16, S4(WS), (sA, sB)[i >> 2], 1024 * (i & 3)) for i in range(8)],
              range(vPm, vPm + 32), t0, 16)
    tstamp(A, opt, 3, t0, t1, sA)
    if opt.get('cw', 0) > 1:
        touch_code(A, 'L_top', 'L_code1', sW, SRD_C, t0)
    A('s_mov_b32 s%d, 0' % sPrev)
    A('s_mov_b32 s%d, 0' % sCc)
    A('v_mov_b32 v%d, 0' % vKey)
    A.label('L_top')
    A('v_mov_b32 v%d, 0' % t0)
    for i in range(0, 32, 2):
        A('v_subrev_u32 v%d, s%d, v%d' % (t1, sPrev, vPm + i))
        A('v_subrev_u32 v%d, s%d, v%d' % (t2, sPrev, vPm + i + 1))
        A('v_max3_u32 v%d, v%d, v%d, v%d' % (t0, t0, t1, t2))
    for sh in (8, 4, 2, 1):
        A('v_max_u32_dpp v%d, v%d, v%d row_ror:%d row_mask:0xf bank_mask:0xf' % (t0, t0, t0, sh))
    for sw in ('v_permlane32_swap_b32', 'v_permlane16_swap_b32'):
        A('v_mov_b32 v%d, v%d' % (t1, t0))
        A('%s v%d, v%d' % (sw, t0, t1))
        A('v_max_u32 v%d, v%d, v%d' % (t0, t0, t1))
    A('v_readfirstlane_b32 s%d, v%d' % (sA, t0))
    A('s_mov_b32 m0, s%d' % sCc)
    A('s_add_u32 s%d, s%d, s%d' % (sPrev, sPrev, sA))
    A('v_writelane_b32 v%d, s%d, m0' % (vKey, sPrev))
    A('s_add_u32 s%d, s%d, 1' % (sCc, sCc))
    A('s_cmp_lt_u32 s%d, 8' % sCc)
    A('s_cbranch_scc1 L_top')
    bits(A, t1, [(0, 3, 2)], t0)
    A('ds_bpermute_b32 v%d, v%d, v%d' % (t2, t1, vKey))
    A('s_waitcnt lgkmcnt(0)')
    A('v_and_b32 v%d, 0x7ff, v%d' % (t2, t2))
    A('v_sub_u32 v%d, 2047, v%d' % (t2, t2))
    A('v_lshlrev_b32 v%d, 11, v%d' % (t2, t2))
    A('v_lshrrev_b32 v%d, 4, v0' % t0)
    A('v_lshl_add_u32 v%d, v%d, 4, v%d' % (t2, t0, t2))
    A('s_lshl_b32 s%d, s%d, 9' % (sA, sW))
    for ks in range(8):
        A('buffer_load_dwordx4 %s, v%d, %s, s%d offen offset:%d' % (a(128 + 4 * ks, 4), t2, S4(SRD_B), sA, 64 * ks))
    A('s_mov_b32 s%d, 0x05040100' % sCc)
    A('s_mov_b32 s%d, 0x07060302' % sD)
    A('s_waitcnt vmcnt(0)')
    if not early:
        kv_first(A, sI, t0, t1, sA, sB)
        NB = 3
        for b in range(NB):
            batch(b)
    for b in range(16):
        if b >= NB or not early:
            A('s_waitcnt vmcnt(%d)' % (8 * min(NB - 1, 15 - b)))
        r0 = vRing + 32 * (b % NB)
        for t in range(8):
            for p in range(4):
                A('v_perm_b32 v%d, v%d, v%d, s%d' % (vPm + 4 * t + p, r0 + 4 * (2 * p + 1) + (t >> 1), r0 + 4 * (2 * p) + (t >> 1), (sCc, sD)[t & 1]))
            if t:
                acc = a(160 + 32 * (b & 1) + 4 * (t - 1), 4)
                A('v_mfma_f32_16x16x32_bf16 %s, %s, %s, %s' % (acc, a(128 + 4 * (b >> 1), 4), v(vPm + 4 * (t - 1), 4), acc if b > 1 else '0'))
        if b + NB < 16:
            batch(b + NB)
        acc = a(160 + 32 * (b & 1) + 28, 4)
        A('v_mfma_f32_16x16x32_bf16 %s, %s, %s, %s' % (acc, a(128 + 4 * (b >> 1), 4), v(vPm + 28, 4), acc if b > 1 else '0'))
    A('s_lshl_b32 s%d, s%d, 14' % (sA, sW))
    A('v_add_u32 v%d, s%d, v%d' % (t3, sA, vL16))
    A('s_barrier')
    for i in range(16):
        A('ds_write_b128 v%d, %s offset:%d' % (t3, a(160 + 4 * i, 4), 1024 * i))
        if i == 7:
            A('s_waitcnt lgkmcnt(0)')
    A('s_and_b32 s%d, s%d, 1' % (sA, sW))
    A('s_lshl_b32 s%d, s%d, 8' % (sA, sA))
    A('s_lshr_b32 s%d, s%d, 1' % (sB, sW))
    A('s_lshl_b32 s%d, s%d, 3' % (sB, sB))
    A('s_add_u32 s%d, s%d, s%d' % (sA, sA, sB))
    bits(A, t3, [(0, 2, 11), (2, 4, 4)], t0, 's%d' % sA)
    A('s_waitcnt lgkmcnt(0)')
    A('s_barrier')
    for m in range(2):
        for tt in range(2):
            for wv in range(4):
                A('ds_read_b64 %s, v%d offset:%d' % (v(vPm + ((m * 2 + tt) * 4 + wv) * 2, 2), t3, wv * 16384 + m * 8192 + tt * 1024))
        A('s_waitcnt lgkmcnt(0)')
    for q in range(4):
        b0 = vPm + 8 * q
        A('v_pk_add_f32 %s, %s, %s' % (v(b0, 2), v(b0, 2), v(b0 + 2, 2)))
        A('v_pk_add_f32 %s, %s, %s' % (v(b0 + 4, 2), v(b0 + 4, 2), v(b0 + 6, 2)))
        A('v_pk_add_f32 %s, %s, %s' % (v(b0, 2), v(b0, 2), v(b0 + 4, 2)))
        rnd2(b0, b0 + 1, t0)
    for tt in range(2):
        b0 = vPm + 8 * tt
        for j in range(2):
            sigmoid(b0 + 2 + j, b0 + j)
            A('v_mul_f32 v%d, v%d, v%d' % (b0 + j, b0 + j, b0 + 2 + j))
        rnd2(b0, b0 + 1, t0)
        for j in range(2):
            A('v_mul_f32 v%d, v%d, v%d' % (b0 + j, b0 + j, b0 + 16 + j))
    cvt(t1, vPm, vPm + 8)
    cvt(t2, vPm + 1, vPm + 9)
    A('v_min_u32 v%d, -2, v%d' % (t1, t1))
    A('v_min_u32 v%d, -2, v%d' % (t2, t2))
    A('s_and_b32 s%d, s%d, 1' % (sA, sW))
    A('s_lshl_b32 s%d, s%d, 2' % (sA, sA))
    A('s_and_b32 s%d, s%d, 2' % (sB, sW))
    A('s_add_u32 s%d, s%d, s%d' % (sA, sA, sB))
    A('s_mul_i32 s%d, s%d, 7168' % (sA, sA))
    A('s_lshl_b32 s%d, s%d, 8' % (sB, sI))
    A('s_add_u32 s%d, s%d, s%d' % (sA, sA, sB))
    A('s_add_u32 s%d, s%d, 0x%x' % (sA, sA, HH))
    A('s_add_u32 s%d, s%d, 7168' % (sB, sA))
    A('s_cmp_lt_u32 s%d, 28' % sI)
    A('s_cselect_b32 s%d, 0, 0x%x' % (sD, OOB))
    A('v_add_u32 v%d, s%d, v%d' % (t3, sD, vL4))
    A('buffer_store_dword v%d, v%d, %s, s%d offen sc1' % (t1, t3, S4(WS), sA))
    A('buffer_store_dword v%d, v%d, %s, s%d offen sc1' % (t2, t3, S4(WS), sB))
    tstamp(A, opt, 4, t0, t4, sA)
    srd(A, SRD_A, P_WD, 7 * MB)
    A('s_lshr_b32 s%d, s%d, 4' % (sD, sI))
    A('s_lshl_b32 s%d, s%d, 2' % (sA, sD))
    A('s_add_u32 s%d, s%d, s%d' % (sCc, sA, sW))
    A('s_mul_i32 s%d, s%d, %d' % (sBase, sCc, 448 * 2048))
    A('s_add_u32 s%d, s%d, 4' % (sA, sI))
    A('s_and_b32 s%d, s%d, 15' % (sA, sA))
    A('s_lshl_b32 s%d, s%d, 1' % (sB, sA))
    A('s_add_u32 s%d, s%d, s%d' % (sD, sD, sB))
    A('s_lshl_b32 s%d, s%d, 7' % (sA, sA))
    A('s_add_u32 s%d, s%d, s%d' % (sBase, sBase, sA))
    bits(A, vRaw, [(3, 3, 11), (0, 3, 4)], t0)
    A('s_lshl_b32 s%d, s%d, 12' % (sA, sW))
    A('s_add_u32 s%d, s%d, 65536' % (sA, sA))
    A('v_add_u32 v%d, s%d, v%d' % (t3, sA, vL16))
    bits(A, t4, [(4, 2, 10), (2, 2, 7), (0, 2, 3)], t0, 's%d' % sA)

    def dissue(ks):
        for i in range(4):
            A('s_add_u32 s%d, s%d, 0x%x' % (sB, sBase, (32 * ks + 8 * i) * 2048))
            A('buffer_load_dwordx4 %s, v%d, %s, s%d offen%s' % (a(16 * ks + 4 * i, 4), vRaw, S4(SRD_A), sB, ' nt' if opt.get('nt', 31) & 8 else ''))
    for ks in range(4):
        dissue(ks)
    for ks in range(14):
        A('s_waitcnt vmcnt(%d) lgkmcnt(0)' % (4 * (min(14, ks + 4) - 1 - ks)))
        for i in range(4):
            A('ds_write_b128 v%d, %s offset:%d' % (t3, a(16 * ks + 4 * i, 4), i * 1024))
        for ct in range(4):
            for pp in range(2):
                A('ds_read_b64_tr_b16 %s, v%d offset:%d' % (a(16 * ks + 4 * ct + 2 * pp, 2), t4, 4 * pp * 128 + ct * 32))
        if ks + 4 < 14:
            dissue(ks + 4)
    A('v_and_b32 v%d, 7, v0' % t0)
    A('v_mul_u32_u24 v%d, 7168, v%d' % (t2, t0))
    A('v_lshrrev_b32 v%d, 4, v0' % t0)
    A('v_lshl_add_u32 v%d, v%d, 4, v%d' % (t2, t0, t2))
    A('s_mul_i32 s%d, s%d, 896' % (sA, sCc))
    A('s_add_u32 s%d, s%d, 0x%x' % (sA, sA, HH))
    poll_data(A, ['buffer_load_dwordx4 %s, v%d, %s, s%d offen offset:%d sc1' % (v(vRing + 4 * ks, 4), t2, S4(WS), sA, 64 * ks) for ks in range(14)],
              range(vRing, vRing + 56), t0, 16)
    A('s_waitcnt lgkmcnt(0)')
    for ks in range(14):
        for ct in range(4):
            acc = v(vPm + 4 * ct, 4)
            A('v_mfma_f32_16x16x32_bf16 %s, %s, %s, %s' % (acc, a(16 * ks + 4 * ct, 4), v(vRing + 4 * ks, 4), acc if ks else '0'))
    for ct in range(4):
        A('ds_write_b128 v%d, %s offset:%d' % (t3, v(vPm + 4 * ct, 4), 1024 * ct))
    A('s_lshl_b32 s%d, s%d, 6' % (sA, sW))
    A('s_add_u32 s%d, s%d, 65536' % (sA, sA))
    bits(A, t4, [(0, 4, 8), (4, 2, 4)], t0, 's%d' % sA)
    A('s_waitcnt lgkmcnt(0)')
    A('s_barrier')
    for wv in range(4):
        A('ds_read_b128 %s, v%d offset:%d' % (v(vPm + 16 + 4 * wv, 4), t4, wv * 4096))
    A('s_waitcnt lgkmcnt(0)')
    for wv in range(1, 4):
        for h in range(2):
            A('v_pk_add_f32 %s, %s, %s' % (v(vPm + 16 + 2 * h, 2), v(vPm + 16 + 2 * h, 2), v(vPm + 16 + 4 * wv + 2 * h, 2)))
    for i in range(4):
        A('v_min_u32 v%d, -2, v%d' % (vPm + 16 + i, vPm + 16 + i))
    A('s_cmp_ge_u32 s%d, 2' % sW)
    A('s_cbranch_scc1 L_o_join')
    A('s_lshl_b32 s%d, s%d, 1' % (sA, sD))
    A('s_add_u32 s%d, s%d, s%d' % (sA, sA, sW))
    A('s_lshl_b32 s%d, s%d, 10' % (sA, sA))
    A('s_add_u32 s%d, s%d, 0x%x' % (sA, sA, YY))
    A('buffer_store_dwordx4 %s, v%d, %s, s%d offen sc1' % (v(vPm + 16, 4), vL16, S4(WS), sA))
    A('s_lshl_b32 s%d, s%d, 8' % (sA, sI))
    A('s_add_u32 s%d, s%d, 0x%x' % (sA, sA, YK))
    A('buffer_store_dword v%d, v%d, %s, s%d offen sc1' % (vKey, vL4, S4(WS), sA))

    V = Alloc(1, 256)
    vL16, vFa, vFv, vFn, vWr, vRr, vXa, vLw, vG = [V(n) for n in 'l16 fa fv fn wr rr xa lw g'.split()]
    vGa = 255
    t0, t1 = V('t0'), V('t1')
    vXv = V('xv', 2)
    vU = V('u', 2)
    vY = V('y', 16, 4)
    vD = V('d', 16, 4)
    vZ = V('z', 12, 4)
    vO = V('o', 64, 4)
    vW = V('w', 128, 4)
    t2, t3 = vXv, vXv + 1
    vXn, vGn = 252, 254
    assert V.p <= 252
    LW, LRED = 0, 131072
    sTeam, sU, sUn, sNb, sPre = sPrev, sSeg, S('un'), S('nb'), S('pre')
    U0 = opt.get('u0', 60)
    assert U0 % 2 == 0
    A.label('L_o_join2')
    A.label('L_o_join')
    touch_slow(t0, SRD_C)
    if opt.get('cw', 0) > 1:
        touch_code(A, 'L_oj1', 'L_code1', sW, SRD_C, t0)
        A.label('L_oj1')
    tstamp(A, opt, 5, t0, t1, sA)
    srd(A, SRD_A, P_WO, 8 * MB)
    srd(A, SRD_B, P_X, 4 * MB)
    srd(A, SRD_C, P_OUT, 4 * MB)
    A('s_mov_b32 s%d, 0xffff0000' % sHi)
    A('v_lshlrev_b32 v%d, 4, v0' % vL16)
    A('s_add_u32 s%d, s%d, 1' % (sTeam, sC))
    A('s_and_b32 s%d, s%d, 3' % (sTeam, sTeam))
    A('s_lshl_b32 s%d, s%d, 1' % (sTeam, sTeam))
    A('s_lshr_b32 s%d, s%d, 4' % (sA, sI))
    A('s_add_u32 s%d, s%d, s%d' % (sTeam, sTeam, sA))
    A('s_and_b32 s%d, s%d, 15' % (sI, sI))
    A('s_and_b32 s%d, s%d, 7' % (sRot, sI))
    A('s_barrier')
    for hl in range(8):
        A('s_add_u32 s%d, s%d, %d' % (sA, sRot, hl))
        A('s_and_b32 s%d, s%d, 7' % (sA, sA))
        A('s_lshl_b32 s%d, s%d, 3' % (sB, sW))
        A('s_add_u32 s%d, s%d, s%d' % (sA, sA, sB))
        A('s_lshl_b32 s%d, s%d, 18' % (sA, sA))
        A('s_lshl_b32 s%d, s%d, 7' % (sB, sI))
        A('s_add_u32 s%d, s%d, s%d' % (sIdx + hl, sA, sB))
    vRaw, vTr = vFa, vFv
    bits(A, vRaw, [(3, 3, 11), (0, 3, 4)], t0)
    A('s_lshl_b32 s%d, s%d, 13' % (sA, sW))
    A('s_add_u32 s%d, s%d, %d' % (sA, sA, LRED))
    A('v_add_u32 v%d, s%d, v%d' % (vWr, sA, vL16))
    bits(A, vTr, [(2, 1, 11), (4, 2, 9), (3, 1, 7), (0, 2, 3)], t0, 's%d' % sA)
    A('s_lshl_b32 s%d, s%d, 15' % (sA, sW))
    A('v_add_u32 v%d, s%d, v%d' % (vLw, sA, vL16))
    home = lambda ks, i: (a(8 * ks + 4 * i, 4) if i < 2 else v(vW + 4 * ks, 4) if i == 2 else v(vO + 4 * (ks & 15), 4))
    home2 = lambda ks, i, pp: (a(8 * ks + 4 * i + 2 * pp, 2) if i < 2 else v(vW + 4 * ks + 2 * pp, 2) if i == 2 else v(vD + 4 * (ks & 1) + 2 * pp, 2))

    def wissue(ks):
        for i in range(4):
            A('s_add_u32 s%d, s%d, 0x%x' % (sB, sIdx + (ks >> 2), (32 * (ks & 3) + 8 * i) * 2048))
            A('buffer_load_dwordx4 %s, v%d, %s, s%d offen%s' % (home(ks, i), vRaw, S4(SRD_A), sB, ' nt' if opt.get('nt', 31) & 16 else ''))
    DEP = opt.get('depo', 4)
    for ks in range(DEP):
        wissue(ks)
    for ks in range(32):
        A('s_waitcnt vmcnt(%d)' % (4 * (min(32, ks + DEP) - 1 - ks)))
        sl = (ks & 1) * 4096
        for i in range(4):
            A('ds_write_b128 v%d, %s offset:%d' % (vWr, home(ks, i), sl + i * 1024))
        if ks + DEP < 32:
            wissue(ks + DEP)
        if ks:
            A('s_waitcnt lgkmcnt(4)')
            A('ds_write_b128 v%d, %s offset:%d' % (vLw, v(vD + 4 * ((ks - 1) & 1), 4), (ks - 1) * 1024))
        for ct in range(4):
            for pp in range(2):
                A('ds_read_b64_tr_b16 %s, v%d offset:%d' % (home2(ks, ct, pp), vTr, sl + 2 * pp * 128 + ct * 32))
    A('s_waitcnt lgkmcnt(0)')
    A('ds_write_b128 v%d, %s offset:%d' % (vLw, v(vD + 4, 4), 31 * 1024))
    tstamp(A, opt, 6, t0, t1, sA)
    if opt.get('diag'):
        A('s_cmp_lg_u32 s%d, 0' % sW)
        A('s_cbranch_scc1 L_o_e3')
        A('s_cmp_lg_u32 s%d, 3' % sC)
        A('s_cbranch_scc1 L_o_e4')
        dbg_mark(A, opt, 6, t0, t1)
        A.label('L_o_e4')
        dbg_mark(A, opt, 7, t0, t1)
        A.label('L_o_e3')
    A('s_lshl_b32 s%d, s%d, 12' % (sA, sI))
    A('s_add_u32 s%d, s%d, 0x%x' % (sA, sA, YY))
    A('s_lshl_b32 s%d, s%d, 8' % (sB, sI))
    A('s_add_u32 s%d, s%d, 0x%x' % (sB, sB, YK))
    bits(A, t1, [(0, 4, 4)], t0)
    A('v_lshlrev_b32 v%d, 2, v0' % t2)
    poll_data(A, ['buffer_load_dwordx4 %s, v%d, %s, s%d offen offset:%d sc1' % (v(vO + 4 * j, 4), t1, S4(WS), sA, 256 * j) for j in range(16)]
              + ['buffer_load_dword v%d, v%d, %s, s%d offen sc1' % (t3, t2, S4(WS), sB)], list(range(vO, vO + 64)) + [t3], t0, 16)
    A('v_not_b32 v%d, v%d' % (t1, t3))
    A('v_ashrrev_i32 v%d, 31, v%d' % (t1, t1))
    A('v_or_b32 v%d, 0x80000000, v%d' % (t1, t1))
    A('v_xor_b32 v%d, v%d, v%d' % (t1, t3, t1))
    A('v_and_b32 v%d, s%d, v%d' % (t1, sHi, t1))
    sigmoid(t1, t1)
    cvt(t1, t1, t1)
    A('v_and_b32 v%d, s%d, v%d' % (t1, sHi, t1))
    A('v_and_b32 v%d, 0x7ff, v%d' % (t3, t3))
    A('v_sub_u32 v%d, 2047, v%d' % (t3, t3))
    for j in range(8):
        A('v_readlane_b32 s%d, v%d, %d' % (sA, t1, j))
        A('v_readlane_b32 s%d, v%d, %d' % (sIdx + j, t3, j))
        b0 = vO + 4 * j
        for h in range(2):
            A('v_pk_add_f32 %s, %s, %s' % (v(b0 + 2 * h, 2), v(b0 + 2 * h, 2), v(b0 + 32 + 2 * h, 2)))
            rnd2(b0 + 2 * h, b0 + 2 * h + 1, t0)
            A('v_mul_f32 v%d, s%d, v%d' % (b0 + 2 * h, sA, b0 + 2 * h))
            A('v_mul_f32 v%d, s%d, v%d' % (b0 + 2 * h + 1, sA, b0 + 2 * h + 1))
            cvt(vY + 2 * j + h, b0 + 2 * h, b0 + 2 * h + 1)
    A('s_lshl_b32 s%d, s%d, 2' % (sA, sX))
    A('s_add_u32 s%d, s%d, s%d' % (sA, sA, sW))
    A('s_lshl_b32 s%d, s%d, 10' % (sA, sA))
    A('s_add_u32 s%d, s%d, 0x%x' % (sA, sA, F_O))
    bits(A, vFa, [(0, 3, 7)], t0, 's%d' % sA)
    A('s_lshl_b32 s%d, s%d, 12' % (sA, sW))
    A('s_add_u32 s%d, s%d, %d' % (sA, sA, LRED))
    A('v_and_b32 v%d, 0x30, v0' % t0)
    A('v_xor_b32 v%d, v%d, v%d' % (t0, t0, vL16))
    A('v_add_u32 v%d, s%d, v%d' % (vWr, sA, t0))
    A('s_lshl_b32 s%d, s%d, 2' % (sA, sW))
    A('v_lshrrev_b32 v%d, 4, v0' % t0)
    A('v_add_u32 v%d, s%d, v%d' % (t0, sA, t0))
    A('v_and_b32 v%d, 15, v0' % t1)
    A('v_xor_b32 v%d, v%d, v%d' % (t0, t0, t1))
    A('v_lshlrev_b32 v%d, 4, v%d' % (t0, t0))
    A('v_lshl_add_u32 v%d, v%d, 8, v%d' % (t0, t1, t0))
    A('v_add_u32 v%d, %d, v%d' % (vRr, LRED, t0))
    A('s_lshl_b32 s%d, s%d, 13' % (sA, sW))
    A('s_lshl_b32 s%d, s%d, 7' % (sB, sI))
    A('s_add_u32 s%d, s%d, s%d' % (sA, sA, sB))
    bits(A, vXa, [(4, 2, 11), (0, 4, 3)], t0, 's%d' % sA)
    A('s_lshl_b32 s%d, s%d, 4' % (sA, sW))
    A('s_add_u32 s%d, s%d, 0x%x' % (sA, sA, GATE))
    bits(A, vGa, [(4, 2, 2)], t0, 's%d' % sA)
    A('v_mov_b32 v%d, 0' % vFv)
    A('s_cmp_lt_u32 s%d, 2' % sTeam)
    A('s_cselect_b32 s%d, 0, %d' % (sUn, U0))
    A('s_add_u32 s%d, s%d, s%d' % (sUn, sUn, sTeam))
    A('s_mov_b32 s%d, 0' % sPre)
    A('s_mov_b32 s%d, 0' % sCnt)
    A('s_waitcnt lgkmcnt(0)')
    A('s_barrier')

    def ubase(dst, u):
        return ['s_lshr_b32 s%d, s%d, 1' % (dst, u), 's_lshl_b32 s%d, s%d, 14' % (dst, dst), 's_and_b32 s%d, s%d, 1' % (sA, u),
                's_lshl_b32 s%d, s%d, 12' % (sA, sA), 's_add_u32 s%d, s%d, s%d' % (dst, dst, sA)]

    def hbase(base, hl):
        return ['s_add_u32 s%d, s%d, s%d' % (sB, sHb + hl, base)]
    sHb = 64
    for hl in range(8):
        A('s_add_u32 s%d, s%d, %d' % (sA, sRot, hl))
        A('s_and_b32 s%d, s%d, 7' % (sA, sA))
        A('s_lshl_b32 s%d, s%d, 3' % (sB, sW))
        A('s_add_u32 s%d, s%d, s%d' % (sA, sA, sB))
        A('s_mul_i32 s%d, s%d, 0x%x' % (sA, sA, ROW))
        A('s_add_u32 s%d, s%d, 0x%x' % (sHb + hl, sA, OO))
        near(A, sHb + hl, sA)
    old_ = lambda ks: 'buffer_load_dwordx4 %s, v%d, %s, s%d offen offset:%d sc1' % (v(vO + 4 * (ks & 15), 4), vL16, S4(WS), sB, (ks & 3) * 1024)
    zrd = lambda ks: 'ds_read_b128 %s, v%d offset:%d' % (v(vZ + 4 * (ks % 3), 4), vLw, ks * 1024)

    A('.p2align 6')
    A.label('L_o_loop')
    A('s_mov_b32 s%d, s%d' % (sU, sUn))
    A('s_cmp_ge_u32 s%d, 128' % sU)
    A('s_cbranch_scc1 L_o_end')
    A('s_cmp_lt_u32 s%d, %d' % (sU, U0))
    A('s_cselect_b32 s%d, 2, 6' % sA)
    A('s_add_u32 s%d, s%d, s%d' % (sUn, sU, sA))
    for o in ubase(sBase, sU):
        A(o)
    A('s_cmp_eq_u32 s%d, 1' % sPre)
    A('s_cbranch_scc1 L_o_go')
    A('s_lshr_b32 s%d, s%d, 1' % (sD, sU))
    A('s_add_u32 s%d, s%d, 1' % (sD, sD))
    wait_flags(A, vFv, vFa, 's%d' % sD, opt.get('osl', 2))
    def xg(u, oob=None):
        ops = ['s_lshl_b32 s%d, s%d, 15' % (sA, u)]
        if oob is not None:
            ops += ['s_and_b32 s%d, s%d, 0x%x' % (sB, oob, OOB), 's_or_b32 s%d, s%d, s%d' % (sA, sA, sB)]
        ops += ['buffer_load_dwordx2 %s, v%d, %s, s%d offen' % (v(vXn, 2), vXa, S4(SRD_B), sA), 's_lshl_b32 s%d, s%d, 6' % (sA, u)]
        if oob is not None:
            ops += ['s_or_b32 s%d, s%d, s%d' % (sA, sA, sB)]
        return ops + ['buffer_load_dword v%d, v%d, %s, s%d offen sc1' % (vGn, vGa, S4(WS), sA)]
    for o in xg(sU):
        A(o)
    for ks in range(16):
        if ks & 3 == 0:
            for o in hbase(sBase, ks >> 2):
                A(o)
        A(old_(ks))
    A('v_mov_b32 v%d, 0x%x' % (t0, OOB))
    A('buffer_load_dword v%d, v%d, %s, 0 offen' % (vFn, t0, S4(WS)))
    A.label('L_o_go')
    A(zrd(0)); A(zrd(1))
    A('s_lshr_b32 s%d, s%d, 1' % (sD, sUn))
    A('s_add_u32 s%d, s%d, 1' % (sD, sD))
    A('v_cmp_gt_i32 vcc, s%d, v%d' % (sD, vFv))
    A('s_lshl_b32 s%d, s%d, 15' % (sCc, sU))
    A('s_cmp_lg_u64 vcc, 0')
    A('s_cselect_b32 s%d, 0, 0x%x' % (sA, OOB))
    A('buffer_load_dword v%d, v%d, %s, s%d offen sc1' % (vFn, vFa, S4(WS), sA))
    A('s_lshl_b32 s%d, s%d, 2' % (sA, sU))
    A('s_add_u32 s%d, s%d, s%d' % (sA, sA, sW))
    A('s_lshl_b32 s%d, s%d, 2' % (sA, sA))
    A('v_lshrrev_b32 v%d, 4, v0' % t1)
    A('v_add_u32 v%d, s%d, v%d' % (t1, sA, t1))
    upd = ['v_mov_b32 v%d, 0' % vU, 'v_mov_b32 v%d, 0' % (vU + 1), 'v_mov_b32 v%d, v%d' % (vXv, vXn), 'v_mov_b32 v%d, v%d' % (vXv + 1, vXn + 1),
           'v_mov_b32 v%d, v%d' % (vG, vGn), None]
    for j in range(8):
        upd += ['v_cmp_eq_u32 vcc, s%d, v%d' % (sIdx + j, t1), None, 'v_cndmask_b32 v%d, v%d, v%d, vcc' % (vU, vU, vY + 2 * j),
                'v_cndmask_b32 v%d, v%d, v%d, vcc' % (vU + 1, vU + 1, vY + 2 * j + 1)]
    for ks in range(32):
        A('s_waitcnt vmcnt(%d) lgkmcnt(%d)' % (15 if ks == 16 else 17, ks < 31))
        extra = []
        if ks == 16:
            A('v_max_i32 v%d, v%d, v%d' % (vFv, vFv, vFn))
            A('v_cmp_gt_i32 vcc, s%d, v%d' % (sD, vFv))
            extra = ubase(sNb, sUn) + ['s_cmp_eq_u64 vcc, 0', 's_cselect_b32 s%d, 1, 0' % sPre, 's_cselect_b32 s%d, s%d, 0x%x' % (sNb, sNb, OOB)] + xg(sUn, sNb)
        if ks & 3 == 0:
            extra += hbase(sBase if ks < 16 else sNb, ((ks + 16) >> 2) & 7)
        for ct in range(4):
            acc = v(vD + 4 * ct, 4)
            src = home(ks, ct) if ct < 3 else v(vZ + 4 * (ks % 3), 4)
            A('v_mfma_f32_16x16x32_bf16 %s, %s, %s, %s' % (acc, src, v(vO + 4 * (ks & 15), 4), acc if ks else '0'))
            if ct == 0 and ks + 2 < 32:
                A(zrd(ks + 2))
            n_ = (len(extra) + 2 - ct) // (3 - ct) if ct < 3 else 0
            for o in extra[:n_]:
                A(o)
            extra = extra[n_:]
            if 2 <= ks < 16 and ct in (1, 2):
                for o in upd[:2]:
                    if o:
                        A(o)
                upd = upd[2:]
        A(old_(ks + 16))
    assert not upd
    vB, vR = vZ, vD
    for h in range(2):
        A('v_lshlrev_b32 v%d, 16, v%d' % (vB + 2 * h, vXv + h))
        A('v_and_b32 v%d, s%d, v%d' % (vB + 2 * h + 1, sHi, vXv + h))
        A('v_lshlrev_b32 v%d, 16, v%d' % (vB + 8 + 2 * h, vU + h))
        A('v_and_b32 v%d, s%d, v%d' % (vB + 8 + 2 * h + 1, sHi, vU + h))
    for i in range(4):
        A('ds_write_b128 v%d, %s offset:%d' % (vWr, v(vD + 4 * i, 4), 1024 * i))
        A('v_xor_b32 v%d, 0x%x, v%d' % (vWr, (0x40, 0xc0, 0x40, 0x40c0)[i], vWr))
    for h in range(2):
        A('v_pk_add_f32 %s, %s, %s' % (v(vB + 2 * h, 2), v(vB + 2 * h, 2), v(vB + 8 + 2 * h, 2)))
        rnd2(vB + 2 * h, vB + 2 * h + 1, t0)
    A('v_sub_f32 v%d, 1.0, v%d' % (t1, vG))
    cvt(t1, t1, t1)
    A('v_and_b32 v%d, s%d, v%d' % (t1, sHi, t1))
    A('s_waitcnt lgkmcnt(0)')
    A('s_barrier')
    for wv in range(4):
        A('ds_read_b128 %s, v%d offset:%d' % (v(vR + 4 * wv, 4), vRr, wv * 4096))
    for i in range(4):
        A('v_mul_f32 v%d, v%d, v%d' % (vB + i, vB + i, t1))
    rnd2(vB, vB + 1, t0)
    rnd2(vB + 2, vB + 3, t0)
    A('v_xor_b32 v%d, 0x4000, v%d' % (vRr, vRr))
    for wv in range(1, 4):
        A('s_waitcnt lgkmcnt(%d)' % (3 - wv))
        for h in range(2):
            A('v_pk_add_f32 %s, %s, %s' % (v(vR + 2 * h, 2), v(vR + 2 * h, 2), v(vR + 4 * wv + 2 * h, 2)))
    rnd2(vR, vR + 1, t0)
    rnd2(vR + 2, vR + 3, t0)
    for i in range(4):
        A('v_mul_f32 v%d, v%d, v%d' % (vR + i, vR + i, vG))
    rnd2(vR, vR + 1, t0)
    rnd2(vR + 2, vR + 3, t0)
    for h in range(2):
        A('v_pk_add_f32 %s, %s, %s' % (v(vR + 2 * h, 2), v(vR + 2 * h, 2), v(vB + 2 * h, 2)))
        cvt(vU + h, vR + 2 * h, vR + 2 * h + 1)
    A('buffer_store_dwordx2 %s, v%d, %s, s%d offen%s' % (v(vU, 2), vXa, S4(SRD_C), sCc, ('', ' sc1', ' nt', ' sc0 sc1', ' sc1 nt')[opt.get('ost', 0)]))
    if opt.get('prof'):
        A('s_add_u32 s%d, s%d, 1' % (sCnt, sCnt))
        A('s_cmp_lg_u32 s%d, 3' % sC)
        A('s_cbranch_scc1 L_o_loop')
        for sg, sl_ in ((4, 9), (16, 11)):
            Lx = A.newlabel('L_pf')
            A('s_cmp_lg_u32 s%d, %d' % (sCnt, sg))
            A('s_cbranch_scc1 ' + Lx)
            tstamp(A, opt, sl_, t0, t1, sA)
            A('s_waitcnt vmcnt(0)')
            A.label(Lx)
    A('s_branch L_o_loop')
    A.label('L_o_end')
    if opt.get('diag'):
        A('s_cmp_lg_u32 s%d, 0' % sW)
        A('s_cbranch_scc1 L_o_e2')
        dbg_mark(A, opt, 5, t0, t1)
        diag_hold(A, opt)
        A.label('L_o_e2')
    tstamp(A, opt, 7, t0, t1, sA)
    if opt.get('prof'):
        A('s_mov_b32 s78, s%d' % sCnt)
        tstamp(A, opt, 10, t0, t1, sA, now=False)
    A('s_endpgm')
```

```python
from common import *

XROW = 2064
XBUF = 32 * XROW
LSCR = 2 * XBUF


def load_weights(A, srdw, sBase, row_bytes, rows_of, tr_lane_terms, tr_off, ngroups, vRaw, vWr, vTr, t0, sa, sb,
                 scr, after_first=None, pre_out=0, mod=''):
    bits(A, vRaw, [(0, 2, 4)], t0)
    A('v_lshrrev_b32 v%d, 2, v0' % t0)
    A('s_mov_b32 s%d, %d' % (sa, row_bytes))
    A('v_mul_lo_u32 v%d, v%d, s%d' % (t0, t0, sa))
    A('v_add_u32 v%d, v%d, v%d' % (vRaw, vRaw, t0))
    A('s_lshl_b32 s%d, s%d, 12' % (sa, sW))
    A('s_add_u32 s%d, s%d, %d' % (sa, sa, scr))
    bits(A, vWr, [(0, 6, 4)], t0, 's%d' % sa)
    bits(A, vTr, tr_lane_terms, t0, 's%d' % sa)
    depth = 4

    def issue(gi):
        for i in range(4):
            A('s_add_u32 s%d, s%d, 0x%x' % (sb, sBase(gi) if callable(sBase) else sBase, rows_of(gi, i) * row_bytes))
            A('buffer_load_dwordx4 %s, v%d, %s, s%d offen%s' % (a(16 * gi + 4 * i, 4), vRaw, S4(srdw), sb, mod))
    for gi in range(depth):
        issue(gi)
    issued = depth
    for gi in range(ngroups):
        A('s_waitcnt vmcnt(%d)' % ((issued - 1 - gi) * 4))
        if gi == 0 and after_first:
            after_first()
        while issued < ngroups and issued - (gi + 1) < depth:
            issue(issued)
            issued += 1
        for i in range(4):
            A('ds_write_b128 v%d, %s offset:%d' % (vWr, a(16 * gi + 4 * i, 4), i * 1024))
        for ksl in range(2):
            for tile in range(2):
                for pp in range(2):
                    A('ds_read_b64_tr_b16 %s, v%d offset:%d' % (a(16 * gi + (ksl * 2 + tile) * 4 + 2 * pp, 2), vTr, tr_off(ksl, pp, tile)))
        A('s_waitcnt lgkmcnt(0)')


def kv_first(A, sh, t0, t1, sa, sb):
    A('s_lshl_b32 s%d, s%d, 8' % (sa, sh))
    A('s_add_u32 s%d, s%d, 0x%x' % (sa, sa, F_KV + 0x2000))
    near(A, sa, sb)
    bits(A, t1, [(0, 1, 7)], t0, 's%d' % sa)
    wait_flags(A, t0, t1, '1', 8)


def sel_frag(A, dst, et, t0, t1):
    A('v_bfe_u32 v%d, v0, 2, 2' % t0)
    A('v_lshrrev_b32 v%d, 4, v0' % t1)
    A('v_cmp_eq_u32 vcc, v%d, v%d' % (t0, t1))
    A('v_mov_b32 v%d, 0x%x' % (t1, 0x3f80 << (16 * et)))
    A('v_cndmask_b32 v%d, 0, v%d, vcc' % (t1, t1))
    A('v_and_b32 v%d, 3, v0' % t0)
    for i in range(4):
        A('v_cmp_eq_u32 vcc, %d, v%d' % (i, t0))
        A('v_cndmask_b32 v%d, 0, v%d, vcc' % (dst + i, t1))


def proj(A, opt, kind):
    P = 'L_' + kind
    V = Alloc(1, 252)
    vL16, vRd, vRdSum, vFl, vArm = [V(n) for n in 'l16 rd rdsum fl arm'.split()]
    t0, t1, t2, t3 = V('t0'), V('t1'), V('t2'), V('t3')
    vX = V('x', 32, 4)
    vD = V('d', 16, 4)
    vF = V('f', 8, 4)
    vJ = V('junk', 4, 4)
    vDb, vXb = (V('db', 16, 4), V('xb', 16, 4)) if kind != 'q' else (0, 0)
    S = Alloc(36, 62)
    sH, sSeg, sXo, sM, sMsum, sOut, sOut2, sArm, sPf, sA, sB, sCc = [S(n) for n in 'h seg xo m msum out out2 arm pf a b cc'.split()]
    base = {'k': 16, 'v': 20, 'q': 24}[kind]
    A.label(P)
    if kind == 'q' and opt.get('chainonly'):
        A('s_endpgm')
    cap0 = len(A.lines)
    srd(A, SRD_A, {'k': P_WK, 'v': P_WV, 'q': P_WQ}[kind], 8 * MB)
    srd(A, SRD_B, P_X, 4 * MB)
    assert sH == 36
    if kind == 'q':
        help_kv(A, opt, P_WK, sH, t0, t1, sA, sB)
    A('v_lshlrev_b32 v%d, 4, v0' % vL16)
    A('s_lshl_b32 s%d, s%d, 7' % (sA, sH))
    if kind == 'q':
        A('s_add_u32 s%d, s%d, 0x%x' % (sA, sA, F_O))
        A('s_cmp_eq_u32 s%d, 0' % sW)
        A('s_cselect_b32 s%d, 8, 0' % sB)
        bits(A, vFl, [(0, 3, 12)], t0, 's%d' % sA)
        A('v_mov_b32 v%d, 0x%x' % (t0, OOB))
        A('v_cmp_gt_u32 vcc, s%d, v0' % sB)
        A('v_cndmask_b32 v%d, v%d, v%d, vcc' % (vFl, t0, vFl))
    else:
        A('s_lshl_b32 s%d, s%d, 1' % (sA, sA))
        A('s_add_u32 s%d, s%d, 0x%x' % (sA, sA, F_KV + (128 if kind == 'v' else 0)))
        A('s_cmp_eq_u32 s%d, 0' % sW)
        A('s_cselect_b32 s%d, 2, 0' % sB)
        bits(A, vFl, [(0, 1, 13)], t0, 's%d' % sA)
        A('v_mov_b32 v%d, 0x%x' % (t0, OOB))
        A('v_cmp_gt_u32 vcc, s%d, v0' % sB)
        A('v_cndmask_b32 v%d, v%d, v%d, vcc' % (vFl, t0, vFl))
    npre = 1
    A('v_and_b32 v%d, 15, v0' % t0)
    A('v_mul_u32_u24 v%d, %d, v%d' % (vRd, XROW, t0))
    A('v_lshrrev_b32 v%d, 4, v0' % t0)
    A('v_lshl_add_u32 v%d, v%d, 8, v%d' % (vRd, t0, vRd))
    A('v_lshlrev_b32 v%d, 1, v%d' % (vRdSum, vRd))
    A('v_add_u32 v%d, %d, v%d' % (vRdSum, XBUF, vRdSum))
    A('s_mul_i32 s%d, s%d, %d' % (sM, sW, 8 * XROW))
    A('s_lshl_b32 s%d, s%d, 1' % (sMsum, sM))
    A('s_add_u32 s%d, s%d, %d' % (sMsum, sMsum, XBUF))
    A('s_lshl_b32 s%d, s%d, 14' % (sXo, sW))

    def dma_row(i):
        return ['s_add_u32 m0, s%d, %d' % (sM, i * XROW), 's_add_u32 s%d, s%d, %d' % (sA, sXo, i * 2048),
                'buffer_load_dwordx4 v%d, %s, s%d offen lds' % (vL16, S4(SRD_B), sA),
                'buffer_load_dwordx4 v%d, %s, s%d offen offset:1024 lds' % (vL16, S4(SRD_B), sA)]
    def dma_all():
        for i in range(8):
            for o in dma_row(i):
                A(o)
        A('s_sub_u32 s%d, s%d, s%d' % (sM, sMsum, sM))
        A('s_add_u32 s%d, s%d, 0x10000' % (sXo, sXo))
    nfuse = 0 if kind == 'q' else opt.get('nf', 2)
    WSCR = LSCR
    nx = max(nfuse, 1)

    def xpiece(sg, i, hh):
        return ['s_add_u32 m0, s%d, %d' % (sM, sg * XBUF + i * XROW), 's_add_u32 s%d, s%d, %d' % (sA, sXo, sg * 0x10000 + i * 2048),
                'buffer_load_dwordx4 v%d, %s, s%d offen offset:%d lds' % (vL16, S4(SRD_B), sA, 1024 * hh)]
    xlate = [xpiece(sg, i, 1) for i in range(8) for sg in range(nx)]

    def xfirst():
        for i in range(8):
            for sg in range(nx):
                for o in xpiece(sg, i, 0):
                    A(o)
    nt = ' nt' if opt.get('nt', 31) & 2 else ''
    vRaw, vWr, vTr = vX, vX + 1, vX + 2
    A('s_and_b32 s%d, s%d, 1' % (sA, sW))
    A('s_lshl_b32 s%d, s%d, 3' % (sA, sA))
    bits(A, t1, [(4, 2, 1)], t0, 's%d' % sA)
    A('v_and_b32 v%d, 15, v0' % t0)
    A('v_xor_b32 v%d, v%d, v%d' % (t1, t1, t0))
    bits(A, vRaw, [(4, 2, 13)], t0)
    A('v_lshl_add_u32 v%d, v%d, 4, v%d' % (vRaw, t1, vRaw))
    A('s_lshl_b32 s%d, s%d, 11' % (sA, sW))
    A('s_add_u32 s%d, s%d, %d' % (sA, sA, WSCR))
    A('v_add_u32 v%d, s%d, v%d' % (vWr, sA, vL16))
    A('s_lshl_b32 s%d, s%d, 1' % (sA, sW))
    A('v_bfe_u32 v%d, v0, 2, 3' % t1)
    A('v_xor_b32 v%d, s%d, v%d' % (t1, sA, t1))
    bits(A, vTr, [(4, 2, 11), (2, 2, 8), (0, 2, 3)], t0, '%d' % WSCR)
    A('v_lshl_add_u32 v%d, v%d, 5, v%d' % (vTr, t1, vTr))
    A('v_xor_b32 v%d, 32, v%d' % (vTr + 1, vTr))
    A('s_lshl_b32 s%d, s%d, 8' % (sCc, sH))
    A('s_lshl_b32 s%d, s%d, 20' % (sA, sW))
    A('s_add_u32 s%d, s%d, s%d' % (sCc, sCc, sA))

    def wload(ks, i):
        return ['s_add_u32 s%d, s%d, 0x%x' % (sB, sCc, (8 * (ks & 15) + 4 * i + 512 * (ks >> 4)) * 8192),
                'buffer_load_dwordx4 %s, v%d, %s, s%d offen%s' % (a(8 * ks + 4 * i, 4), vRaw, S4(SRD_A), sB, nt)]
    if kind == 'q':
        A('s_waitcnt vmcnt(0)')
        confirm(A, opt, t0, t1, sA)
        for i in range(opt.get('qdl', 0)):
            A('s_sleep 32')
        if opt.get('qwait'):
            wait_init(A, t0, t1, sA, sB)
            kv_first(A, sH, t0, t1, sA, sB)
    DEP = opt.get('dep', 7)
    vq = []
    xl = opt.get('xl', 3)
    for ks in range(DEP):
        if ks == xl:
            xfirst()
        for i in range(2):
            for o in wload(ks, i):
                A(o)
            vq.append(ks)
    cap_vm(A, cap0)

    def weights_rest():
        if nfuse == 2:
            A('v_add_u32 v%d, %d, v%d' % (vX + 4, XBUF, vRd))
        xr = lambda ks, sg, tt2: (vX + 16, vXb)[ks & 1] + sg * 8 + tt2 * 4

        def ktr(i):
            if opt.get('ktr') and kind == 'k':
                A('s_memrealtime s[96:97]')
                A('s_waitcnt lgkmcnt(0)')
                A('v_writelane_b32 v250, s96, %d' % i)

        def wr(ks):
            return ['ds_write_b128 v%d, %s offset:%d' % (vWr, a(8 * ks + 4 * i, 4), (ks & 1) * 8192 + i * 1024) for i in range(2)]
        A('s_waitcnt vmcnt(%d)' % min(vq[::-1].index(0), vq[::-1].index(xl) + 2))
        if kind != 'q':
            confirm(A, opt, t0, t1, sA)
        for o in wr(0):
            A(o)
        for ks in range(33):
            if ks & 1 == 0:
                ktr(ks)
            A('s_waitcnt lgkmcnt(0)')
            side = []
            if ks < 32:
                A('s_barrier')
                for tile in range(2):
                    for pp in range(2):
                        A('ds_read_b64_tr_b16 %s, v%d offset:%d' % (a(8 * ks + 4 * tile + 2 * pp, 2), vTr + tile, (ks & 1) * 8192 + 4 * pp * 256))
                for sg in range(nfuse):
                    for tt2 in range(2):
                        A('ds_read_b128 %s, v%d offset:%d' % (v(xr(ks, sg, tt2), 4), (vRd, vX + 4)[sg], tt2 * 16 * XROW + 16 * (ks & 15) + 1024 * (ks >> 4)))
                for n_ in range(2 if len(xlate) > 15 - DEP - ks else 1):
                    if xlate:
                        side.append(xlate.pop(0)); vq.append('x')
                if ks + DEP < 32:
                    side += [wload(ks + DEP, 0), wload(ks + DEP, 1)]
                    vq.extend([ks + DEP] * 2)
                if ks + DEP == 32:
                    T = Asm()
                    init_load(T, t0, t1)
                    side.append([l.strip() for l in T.lines]); vq.append('i')
                if ks < 31:
                    if ks == 15:
                        assert vq[::-1].index(16) < vq[::-1].index('x')
                    w_ = wr(ks + 1)
                    side += [['s_waitcnt vmcnt(%d)' % vq[::-1].index(ks + 1), w_[0]], [w_[1]]]
            ms = []
            if ks:
                for sg in range(nfuse):
                    for tt2 in range(2):
                        for tt in range(2):
                            acc = v((vD, vDb)[sg] + (tt * 2 + tt2) * 4, 4)
                            ms.append('v_mfma_f32_16x16x32_bf16 %s, %s, %s, %s' % (acc, a(8 * (ks - 1) + 4 * tt, 4), v(xr(ks - 1, sg, tt2), 4), acc if ks > 1 else '0'))
            while ms or side:
                if ms:
                    A(ms.pop(0))
                if side:
                    for o in side.pop(0):
                        A(o)
        if nx == 1:
            A('s_sub_u32 s%d, s%d, s%d' % (sM, sMsum, sM))
        A('s_add_u32 s%d, s%d, 0x%x' % (sXo, sXo, 0x10000 * nx))
        wait_init(A, t0, t1, sA, sB, True)
        tstamp(A, opt, 1, t0, t1, sA)
        if opt.get('ktr') and kind == 'k':
            ktr(33)
            A('s_lshl_b32 s%d, s%d, 2' % (sA, sH))
            A('s_add_u32 s%d, s%d, s%d' % (sA, sA, sW))
            A('s_lshl_b32 s%d, s%d, 8' % (sA, sA))
            A('s_add_u32 s%d, s%d, 0x%x' % (sA, sA, PROF + 5 * MB))
            A('v_lshlrev_b32 v%d, 2, v0' % t0)
            A('buffer_store_dword v250, v%d, %s, s%d offen' % (t0, S4(WS), sA))
    A('s_mul_i32 s%d, s%d, 0x%x' % (sOut, sH, ROW))
    fixups = []
    if kind != 'q':
        A('s_lshl_b32 s%d, s%d, 11' % (sA, sW))
        A('s_add_u32 s%d, s%d, s%d' % (sOut2, sOut, sA))
        A('s_add_u32 s%d, s%d, 0x%x' % (sOut2, sOut2, VT))
        A('s_lshl_b32 s%d, s%d, 10' % (sA, sW))
        A('s_add_u32 s%d, s%d, s%d' % (sOut, sOut, sA))
        A('s_add_u32 s%d, s%d, 0x%x' % (sOut, sOut, KX if kind == 'k' else VX))
        bits(A, vArm, [(4, 2, 22), (4, 2, 16), (0, 4, 4)], t0)
        A('s_lshl_b32 s%d, s%d, 3' % (sArm, sW))
        A('s_bfe_u32 s%d, s%d, 0x10001' % (sA, sH))
        A('s_add_u32 s%d, s%d, s%d' % (sArm, sArm, sA))
        A('s_mul_i32 s%d, s%d, 0x%x' % (sArm, sArm, ROW))
        A('s_and_b32 s%d, s%d, 1' % (sA, sH))
        A('s_lshl_b32 s%d, s%d, 12' % (sA, sA))
        A('s_add_u32 s%d, s%d, s%d' % (sArm, sArm, sA))
        A('s_lshr_b32 s%d, s%d, 2' % (sA, sH))
        A('s_lshl_b32 s%d, s%d, 8' % (sA, sA))
        A('s_add_u32 s%d, s%d, s%d' % (sArm, sArm, sA))
        A('s_add_u32 s%d, s%d, 0x%x' % (sArm, sArm, PART))
        sKa = S('ka')
        A('s_lshr_b32 s%d, s%d, 1' % (sKa, sH))
        A('s_mul_i32 s%d, s%d, 0x%x' % (sKa, sKa, ROW))
        A('s_and_b32 s%d, s%d, 1' % (sA, sH))
        A('s_lshl_b32 s%d, s%d, 2' % (sA, sA))
        A('s_add_u32 s%d, s%d, s%d' % (sA, sA, sW))
        A('s_lshl_b32 s%d, s%d, 10' % (sA, sA))
        A('s_add_u32 s%d, s%d, s%d' % (sKa, sKa, sA))
        A('s_add_u32 s%d, s%d, 0x%x' % (sKa, sKa, KVM))
        fixups = [sOut, sOut2, sKa, sArm]
        vSent = V('sent', 4, 4)
        for i in range(4):
            A('v_mov_b32 v%d, -1' % (vSent + i))
        A('s_and_b32 s%d, s%d, 15' % (sPf, sR))
        A('s_lshl_b32 s%d, s%d, 2' % (sPf, sPf))
        A('s_add_u32 s%d, s%d, s%d' % (sPf, sPf, sW))
        A('s_lshl_b32 s%d, s%d, 10' % (sPf, sPf))
        A('s_add_u32 s%d, s%d, 0x20000' % (sPf, sPf))
    if kind == 'v':
        vSel = V('sel', 8, 4)
        vD2 = V('d2', 16, 4)
        vG = V('g', 8, 4)
        sel_frag(A, vSel, 0, t0, t1)
        sel_frag(A, vSel + 4, 1, t0, t1)
    cvt = lambda d, x, y: A('v_cvt_pk_bf16_f32 v%d, v%d, v%d' % (d, x, y))
    ldx4 = lambda dst, so, off: 'buffer_load_dwordx4 %s, v%d, %s, s%d offen offset:%d sc1' % (v(dst, 4), vL16, S4(WS), so, off)
    stx4 = lambda src, so, off: 'buffer_store_dwordx4 %s, v%d, %s, s%d offen offset:%d sc1' % (v(src, 4), vL16, S4(WS), so, off)
    LQ, LKV = LSCR, LSCR + 8192
    if kind == 'q':
        vQw, vIdx, vFm, vFv, vKr = V('qw'), V('idx'), V('fm'), V('fv'), V('kr')
        vQr = vArm
        vKx = V('kx', 32, 4)
        vVT = V('vt', 16, 4)
        vKm, vVm = V('km', 8, 4), V('vm', 4, 4)
        vQ = V('q', 16, 4)
        vD3 = vKx
        vO = vKx + 16
        vG = vQ
        vVmT = vQ + 8
        vS = V('s', 8, 4)
        MM = V('mm', 4, 4)
        vBias = V('bias', 8, 4)
        vStrip = V('strip', 20, 4)
        vLs = V('ls', 4, 4)
        vP = V('p', 4, 4)
        vOne = V('one', 4, 4)
        vPm, vHalf = V('pm', 2), V('half', 2)
        sKs, sKm, sVm, sMk = [S(n) for n in 'ks km vm mk'.split()]
        sScale = S('scale', 2)
        assert t0 % 2 == 0
        assert VT == KX + 8192
        A('s_lshl_b32 s%d, s%d, 12' % (sB, sW))
        A('s_add_u32 s%d, s%d, %d' % (sMk, sB, LKV))
        A('s_add_u32 s%d, s%d, s%d' % (sKs, sB, sOut))
        fixups = [sKs, sKm, sVm, sOut]
        A('s_add_u32 s%d, s%d, 0x%x' % (sKs, sKs, KX))
        A('s_lshr_b32 s%d, s%d, 1' % (sA, sW))
        A('s_lshl_b32 s%d, s%d, 12' % (sB, sA))
        A('s_add_u32 s%d, s%d, %d' % (sB, sB, LKV + 8192))
        A('v_add_u32 v%d, s%d, v%d' % (t2, sB, vL16))
        vVr = V('vr')
        A('v_mov_b32 v%d, v%d' % (vVr, t2))
        A('v_add_u32 v%d, %d, v%d' % (vKr, LKV, vL16))
        A('s_lshr_b32 s%d, s%d, 1' % (sKm, sH))
        A('s_mul_i32 s%d, s%d, 0x%x' % (sKm, sKm, ROW))
        A('s_and_b32 s%d, s%d, 1' % (sB, sH))
        A('s_lshl_b32 s%d, s%d, 12' % (sB, sB))
        A('s_add_u32 s%d, s%d, s%d' % (sKm, sKm, sB))
        A('s_add_u32 s%d, s%d, 0x%x' % (sKm, sKm, KVM))
        A('s_lshl_b32 s%d, s%d, 10' % (sB, sA))
        A('s_add_u32 s%d, s%d, s%d' % (sVm, sKm, sB))
        A('s_lshl_b32 s%d, s%d, 11' % (sB, sA))
        A('s_add_u32 s%d, s%d, s%d' % (sOut, sOut, sB))
        A('s_and_b32 s%d, s%d, 1' % (sA, sW))
        A('s_lshl_b32 s%d, s%d, 12' % (sB, sA))
        A('s_add_u32 s%d, s%d, s%d' % (sOut, sOut, sB))
        A('s_add_u32 s%d, s%d, 0x%x' % (sOut, sOut, OO))
        A('s_add_u32 s%d, s%d, %d' % (sB, sB, LQ))
        A('v_add_u32 v%d, s%d, v%d' % (vQr, sB, vL16))
        A('s_lshl_b32 s%d, s%d, 10' % (sB, sW))
        A('s_add_u32 s%d, s%d, %d' % (sB, sB, LQ))
        A('v_add_u32 v%d, s%d, v%d' % (vQw, sB, vL16))
        A('s_mov_b32 s%d, %s' % (sScale, f32(128 ** -0.5 * LOG2E)))
        A('s_lshl_b32 s%d, s%d, 4' % (sA, sA))
        A('v_and_b32 v%d, 15, v0' % t0)
        A('v_add_u32 v%d, s%d, v%d' % (t0, sA, t0))
        A('v_lshrrev_b32 v%d, 4, v0' % t1)
        A('v_lshlrev_b32 v%d, 2, v%d' % (t1, t1))
        A('v_sub_u32 v%d, v%d, v%d' % (t0, t0, t1))
        A('v_mov_b32 v%d, %s' % (t1, f32(-1e30)))
        for i in range(8):
            A('v_cmp_gt_i32 vcc, %d, v%d' % (16 * (i >> 2) + (i & 3), t0))
            A('v_cndmask_b32 v%d, 0, v%d, vcc' % (vBias + i, t1))
        for i in range(20):
            A('v_mov_b32 v%d, 0' % (vStrip + i))
        sel_frag(A, vStrip + 4, 0, t0, t1)
        sel_frag(A, vStrip + 12, 1, t0, t1)
        for i in range(4):
            A('v_mov_b32 v%d, 0x3f803f80' % (vOne + i))
        for i in range(2):
            A('v_mov_b32 v%d, 0x3f003f00' % (vHalf + i))
        A('v_and_b32 v%d, 8, v0' % t0)
        A('v_cmp_eq_u32 vcc, 0, v%d' % t0)
        A('v_mov_b32 v%d, 0xeeee' % t1)
        A('v_mov_b32 v%d, 0x4444' % t2)
        A('v_cndmask_b32 v%d, v%d, v%d, vcc' % (vIdx, t1, t2))
        A('s_lshl_b32 s%d, s%d, 8' % (sA, sH))
        A('s_add_u32 s%d, s%d, 0x%x' % (sB, sA, F_KV))
        bits(A, t3, [(0, 1, 7)], t0, 's%d' % sB)
        if opt.get('qpl', 1) == 32:
            bits(A, vFm, [(0, 5, 7), (5, 1, 30)], t0)
        else:
            A('s_lshl_b32 s%d, s%d, 10' % (sA, sW))
            lane0_addr(A, vFm, sA, t0)

    A('s_mov_b32 s%d, 0x%x' % (sSeg, INIT2))
    vq.extend(['t'] * touch_pages(A, opt, {'k': [sOut, sKa, sSeg], 'v': [sOut, sOut2, sSeg]}[kind] if kind != 'q' else [sKs, sKm, sOut], t0, sA))
    if kind == 'k' and opt.get('tp', 0):
        A('v_and_b32 v%d, 0xc00000, v%d' % (t0, vArm))
        A('s_or_b32 s%d, s%d, 0x1fff00' % (sA, sArm))
        A('buffer_load_dword v253, v%d, %s, s%d offen' % (t0, S4(WS), sA))
        vq.append('t')
    weights_rest()
    for r_ in fixups:
        near(A, r_, sA)
    A('s_mov_b32 s%d, 0' % sSeg)
    A('s_barrier')
    flag_st = 'buffer_store_dword v%d, v%d, %s, 0 offen sc1' % (t3, vFl, S4(WS))
    mfma = lambda d, x, y, c_: 'v_mfma_f32_16x16x32_bf16 %s, %s, %s, %s' % (d, x, y, c_)
    cv = lambda d, x, y: 'v_cvt_pk_bf16_f32 v%d, v%d, v%d' % (d, x, y)

    class Order:
        def __init__(self, name, lim):
            self.name, self.lim, self.ops = name, lim, []

        def add(self, tag):
            self.ops.append(tag)

        def wait(self, tag):
            last = max(i for i, t in enumerate(self.ops) if t == tag)
            n = len(self.ops) - 1 - last
            n = min(n, self.lim)
            return 's_waitcnt %s(%d)' % (self.name, n)

    def gemm(fill, stream=(), start=0, vsp=4):
        L, M = Order('lgkmcnt', 15), Order('vmcnt', 63)
        M.add('old')
        stream = list(stream)

        def emit(o):
            if isinstance(o, tuple):
                if o[0] in ('lds', 'vm'):
                    (L if o[0] == 'lds' else M).add(o[1])
                    A(o[2])
                else:
                    A((L if o[0] == 'wl' else M).wait(o[1]))
            else:
                assert not o.startswith('ds_') and not o.startswith('buffer_'), o
                A(o)

        def txt(o):
            return o[2] if isinstance(o, tuple) and len(o) == 3 else ('s_waitcnt' if isinstance(o, tuple) else o)

        gap = {'t': 4, 'v': 8}

        def fits(o, force=False):
            x = txt(o)
            if x.startswith(';') or x.endswith(':'):
                return True
            if 'mfma' in x:
                gap['t'], gap['v'] = 4, (12 if 'smfmac' in x else 8)
                return True
            if x.startswith('v_'):
                e = max(gap['t'], gap['v']) + (8 if x[:7] in ('v_exp_f', 'v_rcp_f', 'v_perml') else 4)
            elif x.startswith('buffer_') or x.startswith('ds_write'):
                e = gap['t'] + 12
            elif x.startswith('s_cbranch') or x == 's_barrier':
                e = gap['t'] + 8
            else:
                e = gap['t'] + 4
            if e > 16 and not force:
                return False
            gap['t'] = e
            return True

        def put_(o):
            fits(o, True)
            emit(o)

        def rd(ks, tt2):
            put_(('lds', 'x%d' % ks, 'ds_read_b128 %s, v%d offset:%d' % (v(vX + (ks & 3) * 8 + tt2 * 4, 4), vRd, tt2 * 16 * XROW + 16 * (ks & 15) + 1024 * (ks >> 4))))
        for o in fill.get('head', []):
            emit(o)
        for ks in range(3):
            rd(ks, 0); rd(ks, 1)
        emit(('wl', 'x0'))
        last_vm = -99
        for ks in range(32):
            n = 0
            for tt2 in range(2):
                for tt in range(2):
                    acc = v(vD + (tt * 2 + tt2) * 4, 4)
                    put_(mfma(acc, a((ks * 2 + tt) * 4, 4), v(vX + (ks & 3) * 8 + tt2 * 4, 4), acc if ks else '0'))
                    if n in (0, 2) and ks + 3 < 32:
                        rd(ks + 3, n >> 1)
                    if n == 3 and ks < 31:
                        put_(('wl', 'x%d' % (ks + 1)))
                    for o in fill.get((ks, n), []):
                        put_(o)
                    while stream and ks >= start:
                        o = stream[0]
                        if isinstance(o, tuple) and o[0] == 'at':
                            if ks < o[1]:
                                break
                            stream.pop(0)
                            continue
                        if isinstance(o, tuple) and o[0] == 'vm' and 4 * ks + n - last_vm < vsp:
                            break
                        if not fits(o):
                            break
                        if isinstance(o, tuple) and o[0] == 'vm':
                            last_vm = 4 * ks + n
                        emit(stream.pop(0))
                    n += 1
        for o in stream:
            emit(o)
        A('v_sub_u32 v%d, v%d, v%d' % (vRd, vRdSum, vRd))
        for tt2 in range(2):
            for j in range(4):
                A(cv(vF + 4 * tt2 + j, vD + 4 * tt2 + j, vD + 8 + 4 * tt2 + j))
        return L, M, emit

    dsp = opt.get('dsp' + ('q' if kind == 'q' else ''), 4)
    dend = (16 * dsp + 3) // 4

    def base_fill(d0=0):
        fill = {}
        put = lambda g_, os_: fill.setdefault(((g_ >> 2) + d0, g_ & 3), []).extend(os_)
        for i in range(8):
            d = dma_row(i)
            put(2 * i * dsp, d[0:2])
            put(2 * i * dsp + 1, [('vm', 'dma', d[2])])
            put((2 * i + 1) * dsp + 1, [('vm', 'dma', d[3])])
        put(15 * dsp + 2, ['s_sub_u32 s%d, s%d, s%d' % (sM, sMsum, sM), 's_add_u32 s%d, s%d, 0x10000' % (sXo, sXo)])
        return fill

    if kind != 'q':
        adv = lambda r_: 's_add_u32 s%d, s%d, 0x%x' % (r_, r_, SEG)
        outs = ['s_add_u32 s%d, s%d, 4096' % (sB, sOut), ('vm', 'st', stx4(vF, sOut, 0)), ('vm', 'st', stx4(vF + 4, sB, 0)), adv(sOut)]
        if kind == 'k':
            outs += [('vm', 'st', 'buffer_store_dwordx4 %s, v%d, %s, s%d offen sc1' % (v(vSent, 4), vArm, S4(WS), sArm)),
                     ('vm', 'st', stx4(vSent, sKa, 0)), adv(sArm), adv(sKa)]
        else:
            outs += [('vm', 'st', stx4(vG + 4 * et, sOut2, et * 1024)) for et in range(2)] + [adv(sOut2)]
        pf = [('vm', 'pf', 'buffer_load_dwordx4 %s, v%d, %s, s%d offen' % (v(vJ, 4), vL16, S4(SRD_B), sPf)), 's_add_u32 s%d, s%d, 0x10000' % (sPf, sPf)]

        def transpose_v():
            if kind == 'v':
                for et in range(2):
                    for tt2 in range(2):
                        A(mfma(v(vD2 + (et * 2 + tt2) * 4, 4), v(vF + 4 * tt2, 4), v(vSel + 4 * et, 4), '0'))
                for i in range(8):
                    A(cv(vG + i, vD2 + 2 * i, vD2 + 2 * i + 1))
        NI = opt.get('ni', 6)
        if nfuse == 1:
            A('v_sub_u32 v%d, v%d, v%d' % (vRd, vRdSum, vRd))
        for sg in range(nfuse):
            d_ = (vD, vDb)[sg]
            for tt2 in range(2):
                for j in range(4):
                    A(cv(vF + 4 * tt2 + j, d_ + 4 * tt2 + j, d_ + 8 + 4 * tt2 + j))
            transpose_v()
            for o in outs:
                A(o[2] if isinstance(o, tuple) else o)
        nr = opt.get('nr', 2)
        for i in range(nr):
            for o in dma_row(i):
                A(o)
        A('s_add_u32 s%d, s%d, 0x%x' % (sPf, sPf, 0x10000 * nfuse))
        A('s_mov_b32 s%d, %d' % (sSeg, nfuse))
        A('v_mov_b32 v%d, %d' % (t3, nfuse))
        A('s_waitcnt vmcnt(%d)' % (2 * nr))
        A('s_barrier')
        A(flag_st)
        tstamp(A, opt, 3, t0, t1, sA)
        for i in range(nr, 8):
            for o in dma_row(i):
                A(o)
        A('s_sub_u32 s%d, s%d, s%d' % (sM, sMsum, sM))
        A('s_add_u32 s%d, s%d, 0x10000' % (sXo, sXo))
        A('s_waitcnt vmcnt(0)')
        A('s_barrier')
        if opt.get('kvm', 1):
            L, M, emit = gemm(base_fill(), pf, dend)
            transpose_v()
            A('s_mov_b32 s%d, %d' % (sSeg, nfuse + 1))
            A(M.wait('dma'))
            A('s_barrier')
            NE = opt.get('ne', 12)
            A.label(P + '_loope')
            nst = sum(isinstance(o, tuple) for o in outs)
            fill = base_fill(nst)
            fk = opt.get('fk', 20)
            fill.setdefault((fk, 3), []).extend([('wv', 'st'), 's_barrier', ('vm', 'fl', flag_st)])
            fill.setdefault((nst + dend, 1), []).extend(pf)
            L, M, emit = gemm(fill, outs + ['v_mov_b32 v%d, s%d' % (t3, sSeg)], 0)
            transpose_v()
            A('s_add_u32 s%d, s%d, 1' % (sSeg, sSeg))
            A('s_cmp_le_u32 s%d, %d' % (sSeg, NE))
            A(M.wait('dma'))
            A('s_barrier')
            A('s_cbranch_scc1 %s_loope' % P)
            A('.p2align 6')
            A.label(P + '_loop')
            L, M, emit = gemm(base_fill(), ['s_sub_u32 s%d, s%d, 2' % (sB, sSeg), 's_max_u32 s%d, s%d, %d' % (sB, sB, NE), 'v_mov_b32 v%d, s%d' % (t3, sB), ('vm', 'fl', flag_st)] + outs + pf, dend)
            transpose_v()
            A('s_add_u32 s%d, s%d, 1' % (sSeg, sSeg))
        else:
            A.label(P + '_loop0')
            L, M, emit = gemm(base_fill(), pf, dend)
            transpose_v()
            A('s_add_u32 s%d, s%d, 1' % (sSeg, sSeg))
            A('s_cmp_gt_u32 s%d, %d' % (sSeg, NI))
            A('s_cbranch_scc1 %s_ent0' % P)
            for o in outs:
                emit(o)
            A('v_mov_b32 v%d, s%d' % (t3, sSeg))
            A('s_waitcnt vmcnt(0)')
            A('s_barrier')
            A(flag_st)
            A('s_branch %s_loop0' % P)
            A.label(P + '_ent0')
            A('s_waitcnt vmcnt(0)')
            A('s_barrier')
            A('.p2align 6')
            A.label(P + '_loop')
            L, M, emit = gemm(base_fill(), ['s_sub_u32 s%d, s%d, 2' % (sB, sSeg), 's_max_u32 s%d, s%d, %d' % (sB, sB, NI), 'v_mov_b32 v%d, s%d' % (t3, sB), ('vm', 'fl', flag_st)] + outs + pf, dend)
            transpose_v()
            A('s_add_u32 s%d, s%d, 1' % (sSeg, sSeg))
        if opt.get('prof'):
            for sg, sl_ in ((16, 11), (48, 12)):
                Lx = A.newlabel('L_pf')
                A('s_cmp_lg_u32 s%d, %d' % (sSeg, sg))
                A('s_cbranch_scc1 ' + Lx)
                tstamp(A, opt, sl_, t0, t1, sA)
                A('s_waitcnt vmcnt(0)')
                A.label(Lx)
        A('s_cmp_lt_u32 s%d, 64' % sSeg)
        A(M.wait('dma'))
        A('s_barrier')
        A('s_cbranch_scc1 %s_loop' % P)
        A('s_xor_b32 s%d, s%d, 0x2000' % (sKa, sKa))
        for o in outs:
            emit(o)
    else:
        ld_m = [ldx4(vKm, sKm, 0), ldx4(vKm + 4, sKm, 1024), ldx4(vVm, sVm, 2048)]
        mregs = list(range(vKm, vKm + 8)) + list(range(vVm, vVm + 4))
        probe = ['v_mov_b32 v%d, 0' % vFv, 'buffer_atomic_add v%d, v%d, %s, s%d offen sc0 sc1' % (vFv, vFm, S4(WS), sKm)]
        stage = ['s_mov_b32 m0, s%d' % sMk, 's_nop 0'] + [('vm', 'kv', 'buffer_load_dwordx4 v%d, %s, s%d offen offset:%d sc1 lds' % (vL16, S4(WS), sKs, 1024 * f)) for f in range(4)] \
            + ['s_add_u32 s%d, s%d, 0x%x' % (sKs, sKs, SEG)]
        reads = [('lds', 'q', 'ds_read_b128 %s, v%d offset:%d' % (v(vQ + 4 * j, 4), vQr, j * 1024)) for j in range(4)] \
            + [('lds', 'k', 'ds_read_b128 %s, v%d offset:%d' % (v(vKx + 4 * f, 4), vKr, f * 1024)) for f in range(8)] \
            + [('lds', 'vt', 'ds_read_b128 %s, v%d offset:%d' % (v(vVT + 4 * f, 4), vVr, f * 1024)) for f in range(4)]

        def attention(tag):
            qpk = opt.get('qpk', 0)
            zr = lambda b, n_: ['v_mov_b64 %s, 0' % v(b + i, 2) for i in range(0, n_, 2)] if qpk & 1 else ['v_mov_b32 v%d, 0' % (b + i) for i in range(n_)]
            p1 = zr(MM, 4)
            for j in range(4):
                for tt in range(2):
                    acc = v(vS + 4 * tt, 4)
                    p1.append(mfma(acc, v(vKx + (tt * 4 + j) * 4, 4), v(vQ + 4 * j, 4), acc if j else v(vBias + 4 * tt, 4)))
            T = Asm()
            maxall(T, mregs, t0)
            p2 = [('wv', 'm')] + [l.strip() for l in T.lines] + ['v_cmp_eq_u32 vcc, -1, v%d' % t0]
            p2 += zr(vD3, 16)
            p2 += ['s_cbranch_vccnz L_q_bad%s' % tag, 'L_q_ok%s:' % tag]
            T = Asm()
            for u in range(2):
                T('v_smfmac_f32_16x16x64_bf16 %s, %s, %s, v%d' % (v(MM, 4), v(vKm + 4 * u, 4), v(vQ + 8 * u, 8), vIdx))
            win = {(0, 0): 4, (1, 0): 0, (0, 1): 12, (1, 1): 8}
            mx = ['v_max3_f32 v%d, v%d, v%d, v%d' % (t0, vS, vS + 1, vS + 2), 'v_max3_f32 v%d, v%d, v%d, v%d' % (t0, t0, vS + 3, vS + 4),
                  'v_max3_f32 v%d, v%d, v%d, v%d' % (t0, t0, vS + 5, vS + 6), 'v_max_f32 v%d, v%d, v%d' % (t0, t0, vS + 7)]
            for qp in range(2):
                for et in range(2):
                    T('v_smfmac_f32_16x16x64_bf16 %s, %s, %s, v%d' % (v(vD3 + (qp * 2 + et) * 4, 4), v(vVm, 4), v(vStrip + win[(qp, et)], 8), vIdx))
                    T(mx.pop(0))
            T('v_permlane32_swap_b32 v%d, v%d' % (MM, MM + 2))
            T('v_permlane32_swap_b32 v%d, v%d' % (MM + 1, MM + 3))
            T('v_add_f32 v%d, v%d, v%d' % (MM, MM, MM + 2))
            T('v_add_f32 v%d, v%d, v%d' % (MM + 1, MM + 1, MM + 3))
            T('v_max3_f32 v%d, v%d, v%d, v%d' % (t0, t0, MM, MM + 1))
            cm = [cv(vVmT + i, vD3 + 2 * i, vD3 + 2 * i + 1) for i in range(8)]
            for sw in ('v_permlane32_swap_b32', 'v_permlane16_swap_b32'):
                T('v_mov_b32 v%d, v%d' % (t1, t0))
                T(cm.pop(0)); T(cm.pop(0))
                T('%s v%d, v%d' % (sw, t0, t1))
                T('v_max_f32 v%d, v%d, v%d' % (t0, t0, t1))
            T('v_mul_f32 v%d, s%d, v%d' % (t0, sScale, t0))
            regs = [vS + i for i in range(8)] + [MM, MM + 1]
            for r_ in regs:
                if not qpk & 2:
                    T('v_fma_f32 v%d, v%d, s%d, -v%d' % (r_, r_, sScale, t0))
                elif r_ & 1 == 0:
                    T('v_pk_fma_f32 %s, %s, %s, %s op_sel_hi:[1,0,0] neg_lo:[0,0,1] neg_hi:[0,0,1]' % (v(r_, 2), v(r_, 2), s(sScale, 2), v(t0, 2)))
            for r_ in regs:
                T('v_exp_f32 v%d, v%d' % (r_, r_))
            for i in range(4):
                T(cv(vP + i, vS + 2 * i, vS + 2 * i + 1))
            T(cv(vPm, MM, MM + 1))
            T(cv(vPm + 1, MM, MM + 1))
            T(mfma(v(vLs, 4), v(vOne, 4), v(vP, 4), '0'))
            T(cm.pop(0))
            T('v_permlane32_swap_b32 v%d, v%d' % (vPm, vPm + 1))
            for e in range(4):
                T(mfma(v(vO + 4 * e, 4), v(vVT + 4 * e, 4), v(vP, 4), '0'))
                if cm:
                    T(cm.pop(0))
            m16 = lambda d, x: 'v_mfma_f32_16x16x16_bf16 %s, %s, %s, %s' % (v(d, 4), v(x, 2), v(vPm, 2), v(d, 4))
            T(m16(vLs, vHalf))
            for e in range(4):
                T(m16(vO + 4 * e, vVmT + 2 * e))
            T('v_rcp_f32 v%d, v%d' % (t0, vLs))
            p2 += [l.strip() for l in T.lines]
            p3 = []
            for qp in range(2):
                if qpk & 4:
                    p3 += ['v_pk_mul_f32 %s, %s, %s op_sel_hi:[1,0]' % (v(vO + 8 * qp + i, 2), v(vO + 8 * qp + i, 2), v(t0, 2)) for i in range(0, 8, 2)]
                else:
                    p3 += ['v_mul_f32 v%d, v%d, v%d' % (vO + 8 * qp + i, vO + 8 * qp + i, t0) for i in range(8)]
                p3 += [cv(vG + 4 * qp + j, vO + 8 * qp + j, vO + 8 * qp + 4 + j) for j in range(4)]
                p3 += [('vm', 'o', stx4(vG + 4 * qp, sOut, qp * 1024))]
            p3 += ['s_add_u32 s%d, s%d, 0x%x' % (sOut, sOut, SEG)]
            return p1, p2, p3

        qwr = [('lds', 'qw', 'ds_write_b128 v%d, %s' % (vQw, v(vF, 4))), ('lds', 'qw', 'ds_write_b128 v%d, %s offset:4096' % (vQw, v(vF + 4, 4)))]
        if opt.get('qw64', 1):
            qwr = [('lds', 'qw', 'ds_write_b64 v%d, %s offset:%d' % (vQw, v(vF + 2 * i, 2), 4096 * (i >> 1) + 8 * (i & 1))) for i in range(4)]

        def q_end(M, tags):
            A(min((M.wait(t) for t in tags), key=lambda x: int(x[x.index('(') + 1:-1])))
            A('v_cmp_eq_u32 vcc, -1, v%d' % vFv)
            A('s_barrier')
        xt = []
        if opt.get('qxt', 1):
            vXt = V('xt')
            bits(A, vXt, [(0, 4, 7), (4, 2, 30)], t0)
            A('s_and_b32 s%d, s%d, 7' % (sA, sH))
            A('s_lshl_b32 s%d, s%d, 13' % (sA, sA))
            A('s_mul_i32 s%d, s%d, %d' % (sB, sW, 2048 - 16384))
            A('s_add_u32 s%d, s%d, s%d' % (sA, sA, sB))
            A('s_add_u32 s%d, s%d, 0x10000' % (sA, sA))
            A('v_add_u32 v%d, s%d, v%d' % (vXt, sA, vXt))
            xt = [('vm', 'xt', 'buffer_load_dword v252, v%d, %s, s%d offen' % (vXt, S4(SRD_B), sXo))]
        if opt.get('prof'):
            A('s_mov_b64 s[98:99], 0')
            A('v_mov_b32 v251, 0')
        L, M, emit = gemm(base_fill())
        for o in qwr:
            A(o[2])
        A('s_waitcnt vmcnt(0) lgkmcnt(0)')
        wait_flags(A, t0, t3, '1', 4)
        A('s_barrier')
        qv = opt.get('qv', 3)
        L, M, emit = gemm(base_fill(), (stage if qv != 2 else []) + [probe[0], ('vm', 'pr', probe[1])], dend)
        q_end(M, ['pr'])
        A('.p2align 6')
        A.label('L_q_loop')
        A('s_cbranch_vccz L_q_go')
        if opt.get('prof'):
            A('s_bitset1_b64 s[98:99], s%d' % sSeg)
        poll_data(A, probe, [vFv, vFv], t0, opt.get('qsl', 4))
        A.label('L_q_go')
        if opt.get('prof'):
            A('s_memrealtime s[96:97]')
            A('s_mov_b32 m0, s%d' % sSeg)
            A('s_waitcnt lgkmcnt(0)')
            A('v_writelane_b32 v251, s96, m0')
        adv = ['s_add_u32 s%d, s%d, 0x%x' % (n_, n_, SEG) for n_ in (sKm, sVm)]
        if qv == 2:
            d0, kb = opt.get('qd0', 7), opt.get('qkb', 10)
            fill = base_fill(d0)
            put = lambda k_, n_, os_: fill.setdefault((k_, n_), []).extend(os_)
            fill['head'] = stage[:3]
            slow = stage[3:6] + [('vm', 'm', o) for o in ld_m] + xt
            for i, o in enumerate(slow):
                put(i >> 1, 1 + 2 * (i & 1), [o])
            put(4, 1, [stage[6]])
            for i in range(4):
                put(4 + (i >> 1), 1 + 2 * (i & 1), [reads[i]])
            put(kb - 1, 3, ['v_mov_b32 v%d, s%d' % (t3, sSeg), ('wl', 'q'), ('wv', 'kv'), 's_barrier'])
            for i in range(12):
                put(kb + i // 3, (0, 2, 3)[i % 3], [reads[4 + i]])
            pk_ = d0 + dend
            put(pk_, 1, [probe[0]])
            put(pk_, 3, [('vm', 'pr', probe[1])])
            put(pk_ + 1, 3, [('vm', 'fl', flag_st)])
            put(pk_ + 2, 1, [qwr[0]])
            put(pk_ + 3, 1, [qwr[1]])
            p1, p2, p3 = attention('')
            k1 = p2.index('L_q_ok:') + 1
            zd = [o for o in p2[:k1] if isinstance(o, str) and o.startswith('v_mov_b32')]
            chk_ = [o for o in p2[:k1] if o not in zd]
            L, M, emit = gemm(fill, p1[:4] + chk_ + adv + ['; adv', ('at', kb + 3), ('wl', 'k')] + p1[4:] + zd + [('wl', 'vt')] + p2[k1:] + p3, kb, 0)
            A('s_add_u32 s%d, s%d, 1' % (sSeg, sSeg))
            A('s_cmp_lt_u32 s%d, 62' % sSeg)
            q_end(M, ['pr'])
            body = A.lines[A.lines.index('L_q_go:'):]
            assert body.index('    ; adv') < body.index('    ' + probe[1])
        else:
            d0 = opt.get('qd0', 3)
            fill = base_fill(d0)
            dend += d0
            put = lambda k_, n_, os_: fill.setdefault((k_, n_), []).extend(os_)
            for i in range(3):
                put(i, 1, [('vm', 'm', ld_m[i])])
            rs_ = opt.get('qrs', 4)
            pos = [(k_, n_) for k_ in range(24) for n_ in ((3,) if (rs_ == 2 or (rs_ == 3 and k_ & 1)) else (2, 3))]
            for i in range(16):
                put(pos[i][0], pos[i][1], [reads[i]])
            put(dend, 0, ['; stage', stage[0], probe[0]])
            tail_ = [('vm', 'pr', probe[1])] + stage[2:6] + xt + [('vm', 'fl', flag_st)] + qwr
            for i, o in enumerate(tail_):
                put(dend + i, 1, [o])
            put(dend + 5, 2, [stage[6]])
            p1, p2, p3 = attention('')
            mid = [('at', pos[15][0] + 2), ('wv', 'old'), 'v_mov_b32 v%d, s%d' % (t3, sSeg), ('wl', 'vt'), 's_barrier']
            k1 = p2.index('L_q_ok:') + 1
            zd = [o for o in p2[:k1] if isinstance(o, str) and o.startswith('v_mov_b')]
            chk_ = [o for o in p2[:k1] if o not in zd]
            nz = len([o for o in p1 if o.startswith('v_mov_b')])
            seq = p1[:nz] + [('at', pos[11][0] + 2), ('wl', 'k')] + p1[nz:] + zd + chk_ + adv + ['; adv'] + mid + p2[k1:] + p3
            L, M, emit = gemm(fill, seq, 1, 0)
            A('s_add_u32 s%d, s%d, 1' % (sSeg, sSeg))
            A('s_cmp_lt_u32 s%d, 62' % sSeg)
            q_end(M, ['pr', 'kv'])
            body = A.lines[A.lines.index('L_q_go:'):]
            assert body.index('    s_barrier') < body.index('    ; stage') and body.index('    ; adv') < body.index('    ; stage')
        A('s_cbranch_scc1 L_q_loop')
        plain = lambda ops: [A(o[2] if isinstance(o, tuple) else o) for o in ops]
        for tag in 'yz':
            p1, p2, p3 = attention(tag)
            if tag == 'y':
                if qv == 2:
                    plain(stage)
                A('s_cbranch_vccz L_q_go2')
                poll_data(A, probe, [vFv, vFv], t0, 1)
                A.label('L_q_go2')
                plain(ld_m)
                if qv == 2:
                    A('s_waitcnt vmcnt(3)')
                    A('s_barrier')
            else:
                plain(probe)
            for i, o in enumerate(reads):
                A(o[2])
                if i == 11:
                    A('s_waitcnt lgkmcnt(0)')
            plain(p1)
            A('v_mov_b32 v%d, %d' % (t3, 62 if tag == 'y' else 63))
            A('s_waitcnt vmcnt(0) lgkmcnt(0)')
            A('s_barrier')
            if tag == 'z':
                A('v_cmp_eq_u32 vcc, -1, v%d' % vFv)
                A('s_cbranch_vccz L_q_go3')
                A(flag_st)
                poll_data(A, probe, [vFv, vFv], t0, 0)
                A.label('L_q_go3')
                plain(ld_m)
                A(flag_st)
                A('s_waitcnt vmcnt(1)')
            k1 = p2.index('L_q_ok%s:' % tag) + 1
            plain(p2[1:k1])
            if tag == 'y':
                plain(qwr + stage + adv + [flag_st])
                for n_ in (sKm, sVm):
                    A('s_xor_b32 s%d, s%d, 0x2000' % (n_, n_))
            plain(p2[k1:] + p3)
            if tag == 'y':
                A('s_waitcnt vmcnt(3) lgkmcnt(0)')
                A('s_barrier')
        A('s_branch L_q_fin')
        for tag in ('', 'y', 'z'):
            A.label('L_q_bad' + tag)
            poll_data(A, ld_m, mregs, t0, 1)
            A('s_branch L_q_ok' + tag)
        A.label('L_q_fin')
        if opt.get('prof'):
            A('v_writelane_b32 v251, s98, 62')
            A('v_writelane_b32 v251, s99, 63')
            A('s_lshl_b32 s%d, s%d, 2' % (sA, sH))
            A('s_add_u32 s%d, s%d, s%d' % (sA, sA, sW))
            A('s_lshl_b32 s%d, s%d, 8' % (sA, sA))
            A('s_add_u32 s%d, s%d, 0x%x' % (sA, sA, PROF + 4 * MB))
            A('v_lshlrev_b32 v%d, 2, v0' % t0)
            A('buffer_store_dword v251, v%d, %s, s%d offen' % (t0, S4(WS), sA))
    A('s_waitcnt vmcnt(0)')
    A('v_mov_b32 v%d, 64' % t3)
    A('s_barrier')
    A(flag_st)
    tstamp(A, opt, 2, t0, t1, sA)
    if opt.get('hold') == 3 and kind == 'q':
        hold_after(A, 40)
    if kind == 'q' or opt.get('chainonly'):
        A('s_endpgm')
    else:
        A('s_branch L_o_join2')


def vote(A, sH, t0, t1, t2, sA, sB, sBase, sL0, sL1):
    A('s_and_b32 s%d, s%d, 1' % (sA, sH))
    A('s_or_b32 s%d, s%d, s%d' % (sA, sA, sW))
    A('s_cbranch_scc1 L_vote_done')
    A('v_lshlrev_b32 v%d, 2, v0' % t1)
    A('v_mov_b32 v%d, 0' % t2)
    A('s_mul_i32 s%d, s%d, 0x700000' % (sBase, sH))
    A('s_add_u32 s%d, s%d, 0x1f8000' % (sBase, sBase))
    A('s_mov_b32 s%d, -1' % sL0)
    A('s_mov_b32 s%d, -1' % sL1)
    for smp in range(3):
        for par in range(2):
            A('s_memtime s[96:97]')
            A('s_waitcnt vmcnt(0) lgkmcnt(0)')
            A('buffer_store_dword v%d, v%d, %s, s%d offen offset:%d sc1' % (t2, t1, S4(WS), sBase, smp * 256))
            A('s_waitcnt vmcnt(0)')
            A('s_memtime s[98:99]')
            A('s_xor_b32 s%d, s%d, 0x2000' % (sBase, sBase))
            A('s_waitcnt lgkmcnt(0)')
            A('s_sub_u32 s98, s98, s96')
            A('s_min_u32 s%d, s%d, s98' % ((sL0, sL1)[par], (sL0, sL1)[par]))
    A('s_cmp_lt_u32 s%d, s%d' % (sL1, sL0))
    A('s_cselect_b32 s%d, 1, 0' % sA)
    A('s_lshr_b32 s%d, s%d, 2' % (sB, sX))
    A('s_xor_b32 s%d, s%d, s%d' % (sA, sA, sB))
    A('s_bfe_u32 s%d, s%d, 0x10015' % (sB, sBase))
    A('s_xor_b32 s%d, s%d, s%d' % (sA, sA, sB))
    A('s_add_u32 s%d, s%d, 0x10000' % (sA, sA))
    A('v_mov_b32 v%d, s%d' % (t0, sA))
    A('s_mov_b64 exec, 1')
    A('buffer_atomic_add v%d, v%d, %s, 0 offen offset:%d sc1' % (t0, t2, S4(DBG), VOTE))
    A('s_mov_b64 exec, -1')
    A.label('L_vote_done')
    A('s_barrier')
```

```python
import sys, re
from common import *
from workers import proj
from orole import orole


def prologue(A, opt):
    A('s_cmp_ge_u32 s2, 256')
    A('s_cbranch_scc1 L_end0')
    A('s_load_dwordx16 s[64:79], s[0:1], 0')
    A('s_load_dwordx16 s[80:95], s[0:1], 64')
    A('s_getreg_b32 s%d, hwreg(HW_REG_XCC_ID)' % sX)
    A('s_and_b32 s%d, s%d, 7' % (sX, sX))
    A('v_lshrrev_b32 v1, 6, v0')
    A('v_and_b32 v0, 63, v0')
    A('v_readfirstlane_b32 s%d, v1' % sW)
    A('s_mov_b32 s%d, %d' % (sTO, TIMEOUT))
    if opt.get('cw', 0):
        A('s_lshr_b32 s36, s2, 3')
        A('s_lshl_b32 s37, s%d, 5' % sW)
        A('s_add_u32 s36, s36, s37')
        touch_code(A, 'L_code0', 'L_code1', 36, SRD_E, 2)
        A.label('L_code0')
    A('s_waitcnt lgkmcnt(0)')
    srd(A, WS, P_WS, WS_BYTES)
    srd(A, DBG, P_DBG, 256)
    if opt.get('prof') or opt.get('diag'):
        A('s_memrealtime s[76:77]')
    for i in range(4):
        A('v_mov_b32 v%d, -1' % (4 + i))
    A('s_lshl_b32 s36, s2, 2')
    A('s_add_u32 s36, s36, s%d' % sW)
    A('s_lshl_b32 s37, s36, 10')
    A('s_add_u32 s37, s37, 0x%x' % INIT1)
    A('s_bfe_u32 s38, s36, 0x50003')
    A('s_mul_i32 s38, s38, 0x%x' % ROW)
    A('s_bfe_u32 s39, s36, 0x20001')
    A('s_lshl_b32 s39, s39, 12')
    A('s_add_u32 s38, s38, s39')
    A('s_and_b32 s39, s36, 1')
    A('s_lshl_b32 s39, s39, 10')
    A('s_add_u32 s38, s38, s39')
    A('s_add_u32 s38, s38, 0x%x' % PART)
    A('s_cmp_ge_u32 s36, 768')
    A('s_cselect_b32 s37, s38, s37')
    A('s_lshl_b32 s36, s36, 8')
    A('s_add_u32 s36, s36, 0x%x' % INIT2)
    A('v_lshlrev_b32 v2, 4, v0')
    A('v_lshlrev_b32 v3, 2, v0')
    A('buffer_store_dwordx4 v[4:7], v2, %s, s37 offen sc1' % S4(WS))
    A('buffer_store_dword v4, v3, %s, s36 offen sc1' % S4(WS))
    wu = opt.get('wu', 1)
    wu = 2 * wu
    npre = opt.get('wupre', 0)

    def warm(lo, hi):
        for o in ['buffer_load_dword v252, v8, %s, s38 offen' % S4(SRD_A), 'buffer_load_dword v252, v9, %s, s38 offen offset:0x780' % S4(SRD_A)][lo:hi]:
            A(o)
    if wu:
        A('s_lshr_b32 s38, s2, 3')
        A('s_lshl_b32 s38, s38, 2')
        A('s_add_u32 s38, s38, s%d' % sW)
        A('s_lshr_b32 s39, s38, 5')
        A('s_and_b32 s38, s38, 31')
        A('s_and_b32 s42, s%d, 3' % sX)
        A('s_mov_b64 s[40:41], s[%d:%d]' % (P_WK, P_WK + 1))
        for m_, p_ in ((1, P_WV), (2, P_WQ), (3, P_WO)):
            A('s_cmp_eq_u32 s39, %d' % m_)
            A('s_cselect_b64 s[40:41], s[%d:%d], s[40:41]' % (p_, p_ + 1))
        A('s_cselect_b32 s43, 11, 13')
        A('s_cselect_b32 s44, 21, 11')
        A('s_lshl_b32 s42, s42, s44')
        A('s_add_u32 s44, s43, 5')
        A('s_lshl_b32 s38, s38, s44')
        A('s_add_u32 s38, s38, s42')
        A('v_lshrrev_b32 v8, 1, v0')
        A('v_lshlrev_b32 v8, s43, v8')
        A('v_and_b32 v9, 1, v0')
        A('v_lshl_add_u32 v8, v9, 10, v8')
        A('s_and_b32 s42, s%d, 3' % sX)
        A('s_cmp_eq_u32 s42, 3')
        A('s_cselect_b32 s42, 0, 0x%x' % OOB)
        A('v_lshlrev_b32 v9, 29, v9')
        A('v_add3_u32 v9, v8, v9, s42')
        A('v_add_u32 v8, 384, v8')
        A('s_lshr_b32 s42, s%d, 2' % sX)
        A('s_lshl_b32 s42, s42, 30')
        A('s_add_u32 s38, s38, s42')
        srd(A, SRD_A, 40, 8 * MB)
        warm(0, npre)
    A('s_waitcnt vmcnt(%d)' % npre)
    A('s_barrier')
    A('s_lshl_b32 s%d, s%d, 5' % (sR, sX))
    if opt.get('fakex'):
        A('s_cmp_eq_u32 s%d, 3' % sX)
        A('s_cbranch_scc0 L_fk')
        A('s_and_b32 s37, s2, 24')
        A('s_cbranch_scc0 L_fk')
        A('v_lshlrev_b32 v3, 5, v0')
        A.label('L_fk1')
        A('buffer_load_dword v1, v3, %s, 0 offen sc1' % S4(DBG))
        A('s_waitcnt vmcnt(0)')
        A('v_readlane_b32 s37, v1, 2')
        A('s_cmp_lg_u32 s37, -1')
        A('s_cbranch_scc1 L_fk1')
        A('s_mov_b32 s%d, 0x40' % sR)
        A.label('L_fk')
    A('s_lshr_b32 s37, s2, 3')
    A('s_lshl_b32 s36, 1, s37')
    A('v_mov_b32 v254, s36')
    A('s_cmp_eq_u32 s%d, 0' % sW)
    A('s_cselect_b32 s36, 0, 0x%x' % OOB)
    lane0_addr(A, 12, 36, 13)
    A('buffer_atomic_or v254, v12, %s, s%d offen sc0 sc1' % (S4(DBG), sR))
    A('s_add_u32 s%d, s%d, s37' % (sR, sR))
    warm(npre, wu)
    A('s_branch L_go')
    A.label('L_redo')
    A('v_mov_b32 v12, 0')
    A('v_mov_b32 v13, %d' % (LTOP + 4))
    A('s_waitcnt vmcnt(0) lgkmcnt(0)')
    A('s_cmp_lg_u32 s%d, 0' % sW)
    A('s_cbranch_scc1 L_tk')
    A('s_and_b32 s36, s%d, 0xe0' % sR)
    A.label('L_cl')
    A('v_readfirstlane_b32 s38, v254')
    A('s_ff0_i32_b32 s37, s38')
    A('s_cmp_lt_i32 s37, 0')
    A('s_cbranch_scc1 L_full')
    A('s_lshl_b32 s38, 1, s37')
    A('v_mov_b32 v254, s38')
    A('s_mov_b64 exec, 1')
    A('buffer_atomic_or v254, v12, %s, s36 offen sc0 sc1' % S4(DBG))
    A('s_mov_b64 exec, -1')
    A('s_waitcnt vmcnt(0)')
    A('v_readfirstlane_b32 s38, v254')
    A('s_bitcmp1_b32 s38, s37')
    A('s_cbranch_scc1 L_cl')
    A('s_add_u32 s36, s36, s37')
    A('s_branch L_tk_w')
    A.label('L_full')
    A('v_mov_b32 v1, 1')
    A('s_mov_b64 exec, 1')
    A('buffer_atomic_add v1, v12, %s, 0 offen offset:%d sc0 sc1' % (S4(DBG), VOTE + 4))
    A('s_mov_b64 exec, -1')
    A('s_waitcnt vmcnt(0)')
    A('v_readfirstlane_b32 s37, v1')
    A.label('L_ov')
    init_load(A, 1, 3)
    A('s_waitcnt vmcnt(0)')
    arrived(A, 1, 3, 38, 39)
    A('s_cmp_ge_u32 s38, 256')
    A('s_cbranch_scc1 L_ov1')
    A('s_sleep 4')
    timeout_stub(A, 'L_ov')
    A.label('L_ov1')
    A('s_mov_b32 s36, -1')
    A.label('L_ov2')
    A('s_add_u32 s36, s36, 1')
    A('s_cmp_ge_u32 s36, 256')
    A('s_cbranch_scc1 L_tk_w')
    A('s_lshr_b32 s39, s36, 5')
    A('v_readlane_b32 s38, v1, s39')
    A('s_bitcmp1_b32 s38, s36')
    A('s_cbranch_scc1 L_ov2')
    A('s_sub_u32 s37, s37, 1')
    A('s_cbranch_scc0 L_ov2')
    A.label('L_tk_w')
    A('v_mov_b32 v1, s36')
    A('ds_write_b32 v13, v1')
    A('s_waitcnt lgkmcnt(0)')
    A.label('L_tk')
    A('s_barrier')
    A('ds_read_b32 v1, v13')
    A('v_mov_b32 v254, 0')
    A('s_waitcnt lgkmcnt(0)')
    A('v_readfirstlane_b32 s%d, v1' % sR)
    A('s_cmp_ge_u32 s%d, 256' % sR)
    A('s_cbranch_scc1 L_end0')
    A.label('L_go')
    A('s_lshr_b32 s%d, s%d, 4' % (sG, sR))
    A('s_and_b32 s%d, s%d, 15' % (sC, sR))
    A('s_cmp_lt_u32 s%d, 128' % sR)
    A('s_cbranch_scc1 L_chain')
    A('s_bfe_u32 s%d, s%d, 0x20005' % (sG, sR))
    A('s_lshl_b32 s%d, s%d, 3' % (sG, sG))
    A('s_and_b32 s36, s%d, 7' % sR)
    A('s_add_u32 s36, s36, s%d' % sG)
    A('s_bfe_u32 s%d, s%d, 0x20003' % (sC, sR))
    A('s_cmp_eq_u32 s%d, 0' % sC)
    A('s_cbranch_scc1 L_k')
    A('s_cmp_eq_u32 s%d, 1' % sC)
    A('s_cbranch_scc1 L_v')
    A('s_cmp_eq_u32 s%d, 2' % sC)
    A('s_cbranch_scc1 L_q')
    A('s_branch L_o')
    A.label('L_end0')
    A('s_endpgm')


def chain(A, opt):
    prof = opt.get('prof', 0) == 1
    lite = opt.get('prof', 0) >= 1
    V = Alloc(1, 252)
    vL16, vL4, vQst, vVst, vKst, vIdx, vSent = [V(n) for n in 'l16 l4 qst vst kst idx sent'.split()]
    vW1q, vW1k, vR1, vR1v = V('w1q'), V('w1k'), V('r1'), V('r1v')
    vW2, vR2, vW2l, vR2l = V('w2'), V('r2'), V('w2l'), V('r2l')
    vT0, vT1, vT2, vT3 = V('t0'), V('t1'), V('t2'), V('t3')
    vQK, vVv, vBias = V('qk'), V('vv'), V('bias')
    vFa, vFv = V('fa'), V('fv')
    vM = V('m', 16, 4)
    vA = V('acc', 24, 4)
    vQ = V('q', 16, 4)
    vKm, vVm = V('km', 8, 4), V('vm', 8, 4)
    vKx, vVx = V('kx', 32, 4), V('vx', 32, 4)
    vS = V('s', 8, 4)
    MM = V('mm', 4, 4)
    vP, vPs = V('p', 4, 4), V('ps', 4, 4)
    vPm, vPms = V('pm', 2), V('pms', 2)
    vOne, vSel, vHalf = V('one', 4, 4), V('sel', 4, 4), V('half', 2)
    vVOx = V('vox', 16, 4)
    vT = V('tacc', 32, 4)
    vVOm = vT + 16
    vF = vT + 16
    vR = vVm
    vO = vA
    vLs = vA + 8
    vR2d = vA + 12
    vPt = vS
    S = Alloc(36, 62)
    sStep, sMemR, sMemW, sQkvW, sQkvR, sQkvR2 = S('step'), S('memr'), S('memw'), S('qkvw'), S('qkvr'), S('qkvr2')
    sKx, sKx2, sVx, sVx2, sPartR, sPartA, sKvm = [S(n) for n in 'kx kx2 vx vx2 pr pa kvm'.split()]
    sA, sB, sCc, sD = S('a'), S('b'), S('cc'), S('d')
    sScale, sFo, sPf = S('scale'), S('fo'), S('pf')
    sN1, sN2, sN3 = 64, 65, 66
    sLo = 0
    sKn, sPartR2, sGp = S('kn'), S('pr2'), S('gp')
    sSide = 3
    sSc2 = 2
    assert vT0 % 2 == 0
    LDSL = 20480
    LDS1, LDS2, LDSW = 0, 12288, 32768
    W1 = lambda t, m, tt: (t * 3 + m) * 16 + tt * 8
    WO = lambda n, j: 192 + n * 16 + j * 4

    A.label('L_chain')
    cap0 = len(A.lines)
    A('s_bitcmp1_b32 s%d, 0' % sC)
    A('s_cselect_b64 s[2:3], s[%d:%d], s[%d:%d]' % (P_WK, P_WK + 1, P_WQ, P_WQ + 1))
    srd(A, SRD_A, 2, 8 * MB)
    srd(A, SRD_C, P_WV, 8 * MB)
    srd(A, SRD_D, P_WO, 8 * MB)
    srd(A, SRD_E, P_MEM0, 16384)
    if opt.get('iw', 0):
        A('s_getpc_b64 s[2:3]')
        A.label('L_pc')
        A('s_add_u32 s2, s2, L_loop-L_pc')
        A('s_addc_u32 s3, s3, 0')
        srd(A, SRD_B, 2, 0)
        A('s_mov_b32 s%d, L_loop_end-L_loop' % (SRD_B + 2))
        A('s_lshl_b32 s%d, s%d, 13' % (sA, sW))
        A('v_lshlrev_b32 v%d, 7, v0' % vT0)
        A('buffer_load_dword v252, v%d, %s, s%d offen' % (vT0, S4(SRD_B), sA))
    vWa, vWb, vWc, vWd, vWe = vA, vA + 1, vA + 2, vA + 3, vA + 4
    nt = ' nt' if opt.get('nt', 31) & 1 else ''
    bits(A, vWd, [(3, 3, 11), (0, 3, 4)], vT0)
    A('s_lshl_b32 s%d, s%d, 2' % (sA, sG))
    A('s_add_u32 s%d, s%d, s%d' % (sA, sA, sW))
    A('s_lshl_b32 s%d, s%d, 18' % (sA, sA))
    A('s_lshl_b32 s%d, s%d, 7' % (sB, sC))
    A('s_add_u32 s%d, s%d, s%d' % (sA, sA, sB))
    if opt.get('wox'):
        A('s_xor_b32 s%d, s%d, %d' % (sA, sA, opt['wox']))
    for k in range(16):
        A('s_add_u32 s%d, s%d, 0x%x' % (sB, sA, k * 8 * 2048))
        A('buffer_load_dwordx4 %s, v%d, %s, s%d offen%s' % (a(192 + 4 * k, 4), vWd, S4(SRD_D), sB, (nt, '', ' sc1')[opt.get('opl', 0)]))
    bits(A, vWa, [(2, 4, 13), (0, 2, 4)], vT0)
    bits(A, vWe, [(3, 3, 13), (0, 3, 4)], vT0)
    sW1v, sW1q = sFo, sKn
    A('s_lshl_b32 s%d, s%d, 21' % (sA, sW))
    A('s_lshl_b32 s%d, s%d, 10' % (sB, sG))
    A('s_add_u32 s%d, s%d, s%d' % (sA, sA, sB))
    A('s_lshl_b32 s%d, s%d, 6' % (sB, sC))
    A('s_add_u32 s%d, s%d, s%d' % (sW1v, sA, sB))
    A('s_and_b32 s%d, s%d, 0xffffff80' % (sW1q, sW1v))

    def w1q(t):
        for i in range(8):
            A('s_add_u32 s%d, s%d, 0x%x' % (sB, sW1q, (64 * t + 8 * i) * 8192))
            A('buffer_load_dwordx4 %s, v%d, %s, s%d offen%s' % (a(W1(t, 0, 0) + 4 * i, 4), vWe, S4(SRD_A), sB, nt))

    def w1v(t):
        for i in range(4):
            A('s_add_u32 s%d, s%d, 0x%x' % (sB, sW1v, (64 * t + 16 * i) * 8192))
            A('buffer_load_dwordx4 %s, v%d, %s, s%d offen%s' % (a(W1(t, 2, 0) + 4 * i, 4), vWa, S4(SRD_C), sB, (nt, '', ' sc1')[opt.get('vpl', 0)]))
    A('v_lshlrev_b32 v%d, 4, v0' % vL16)
    A('v_lshlrev_b32 v%d, 2, v0' % vL4)
    A('v_mov_b32 v%d, -1' % vSent)
    A('v_and_b32 v%d, 8, v0' % vT0)
    A('v_cmp_eq_u32 vcc, 0, v%d' % vT0)
    A('v_mov_b32 v%d, 0xeeee' % vT1)
    A('v_mov_b32 v%d, 0x4444' % vT2)
    A('v_cndmask_b32 v%d, v%d, v%d, vcc' % (vIdx, vT1, vT2))
    A('s_mov_b32 s%d, 0' % sStep)
    A('s_lshl_b32 s%d, s%d, 15' % (sA, sG))
    A('s_add_u32 s%d, s%d, 0x%x' % (sA, sA, MEMR))
    A('s_lshl_b32 s%d, s%d, 12' % (sB, sW))
    A('s_add_u32 s%d, s%d, s%d' % (sMemR, sA, sB))
    A('s_lshl_b32 s%d, s%d, 10' % (sB, sC))
    A('s_add_u32 s%d, s%d, s%d' % (sA, sA, sB))
    A('s_lshl_b32 s%d, s%d, 8' % (sB, sW))
    A('s_add_u32 s%d, s%d, s%d' % (sMemW, sA, sB))
    A('s_lshl_b32 s%d, s%d, 16' % (sA, sG))
    A('s_add_u32 s%d, s%d, 0x%x' % (sQkvW, sA, QKVR))
    A('s_mul_i32 s%d, s%d, 6144' % (sB, sW))
    A('s_add_u32 s%d, s%d, s%d' % (sQkvR, sQkvW, sB))
    A('s_add_u32 s%d, s%d, 4096' % (sQkvR2, sQkvR))
    A('s_lshr_b32 s%d, s%d, 2' % (sB, sC))
    A('s_mul_i32 s%d, s%d, 6144' % (sB, sB))
    A('s_add_u32 s%d, s%d, s%d' % (sQkvW, sQkvW, sB))
    A('s_mov_b32 s%d, %s' % (sScale, f32(128 ** -0.5 * LOG2E)))
    A('s_and_b32 s%d, s%d, 1' % (sA, sW))
    A('s_lshl_b32 s%d, s%d, 1' % (sA, sA))
    A('v_lshrrev_b32 v%d, 5, v0' % vT0)
    A('v_add_u32 v%d, s%d, v%d' % (vT0, sA, vT0))
    A('v_and_b32 v%d, 31, v0' % vT1)
    A('v_lshlrev_b32 v%d, 2, v%d' % (vT1, vT1))
    A('s_bfe_u32 s%d, s%d, 0x10001' % (sB, sC))
    A('s_lshl_b32 s%d, s%d, 10' % (sB, sB))
    A('s_lshr_b32 s%d, s%d, 1' % (sA, sW))
    A('s_lshl_b32 s%d, s%d, 7' % (sCc, sA))
    A('s_add_u32 s%d, s%d, s%d' % (sCc, sCc, sB))
    A('s_lshl_b32 s%d, s%d, 9' % (sA, sA))
    A('s_add_u32 s%d, s%d, s%d' % (sA, sA, sB))
    A('s_add_u32 s%d, s%d, 2048' % (sA, sA))
    A('v_lshl_add_u32 v%d, v%d, 8, v%d' % (vT2, vT0, vT1))
    A('v_add_u32 v%d, s%d, v%d' % (vT2, sCc, vT2))
    A('v_lshl_add_u32 v%d, v%d, 7, v%d' % (vT1, vT0, vT1))
    A('v_add_u32 v%d, s%d, v%d' % (vT3, sA, vT1))
    A('s_bitcmp1_b32 s%d, 0' % sC)
    A('s_cselect_b64 %s, -1, 0' % s(sLo, 2))
    A('s_cselect_b32 s%d, 0, 0x%x' % (sA, OOB))
    A('v_cndmask_b32 v%d, v%d, v%d, %s' % (vQst, vT2, vT3, s(sLo, 2)))
    A('v_add_u32 v%d, s%d, v%d' % (vKst, sA, vT3))
    A('s_and_b32 s%d, s%d, 1' % (sA, sC))
    A('s_lshl_b32 s%d, s%d, 9' % (sA, sA))
    A('s_add_u32 s%d, s%d, s%d' % (sA, sA, sB))
    A('s_add_u32 s%d, s%d, 4096' % (sA, sA))
    A('s_cmp_lt_u32 s%d, 2' % sW)
    A('s_cselect_b32 s%d, s%d, 0x%x' % (sA, sA, OOB))
    A('v_add_u32 v%d, s%d, v%d' % (vVst, sA, vT1))
    A('v_bfe_u32 v%d, v0, 3, 2' % vT1)
    A('v_xor_b32 v%d, v%d, v%d' % (vT1, vT1, vT0))
    A('v_lshlrev_b32 v%d, 5, v%d' % (vT1, vT1))
    A('v_lshl_add_u32 v%d, v%d, 7, v%d' % (vT1, vT0, vT1))
    A('v_and_b32 v%d, 3, v0' % vT2)
    A('v_lshl_add_u32 v%d, v%d, 3, v%d' % (vT1, vT2, vT1))
    A('v_bfe_u32 v%d, v0, 2, 1' % vT2)
    A('v_lshl_add_u32 v%d, v%d, 2, v%d' % (vT1, vT2, vT1))
    A('v_add_u32 v%d, 2048, v%d' % (vR1v, vT1))
    A('s_lshr_b32 s%d, s%d, 1' % (sA, sW))
    A('s_lshl_b32 s%d, s%d, 10' % (sA, sA))
    A('v_add_u32 v%d, s%d, v%d' % (vR1, sA, vT1))
    A('v_bfe_u32 v%d, v0, 4, 1' % vT0)
    A('v_lshrrev_b32 v%d, 5, v0' % vT1)
    A('v_lshl_add_u32 v%d, v%d, 1, v%d' % (vT0, vT0, vT1))
    A('s_mul_i32 s%d, s%d, 3072' % (sA, sW))
    for (dst, kind) in ((vW1q, 0), (vW1k, 1)):
        if kind == 0:
            A('v_bfe_u32 v%d, v0, 2, 2' % vT1)
            A('v_and_b32 v%d, 3, v0' % vT3)
        else:
            A('v_bfe_u32 v%d, v0, 3, 1' % vT1)
            A('v_and_b32 v%d, 1, v0' % vT2)
            A('v_lshl_add_u32 v%d, v%d, 1, v%d' % (vT1, vT1, vT2))
            A('v_bfe_u32 v%d, v0, 1, 2' % vT3)
        A('v_xor_b32 v%d, v%d, v%d' % (vT2, vT1, vT0))
        A('v_lshlrev_b32 v%d, 5, v%d' % (vT2, vT2))
        A('v_lshl_add_u32 v%d, v%d, 7, v%d' % (vT2, vT1, vT2))
        A('v_lshl_add_u32 v%d, v%d, 3, v%d' % (vT2, vT3, vT2))
        A('v_add_u32 v%d, s%d, v%d' % (dst, sA, vT2))
    A('v_cndmask_b32 v%d, v%d, v%d, %s' % (vW1q, vW1q, vW1k, s(sLo, 2)))
    for i in range(4):
        A('v_mov_b32 v%d, 0x3f803f80' % (vOne + i))
        A('v_mov_b32 v%d, 0' % (vPs + i))
    for i in range(2):
        A('v_mov_b32 v%d, 0x3f003f00' % (vHalf + i))
        A('v_mov_b32 v%d, 0' % (vPms + i))
    A('v_and_b32 v%d, 8, v0' % vT0)
    A('v_cmp_eq_u32 vcc, 0, v%d' % vT0)
    A('v_mov_b32 v%d, 0x7f800000' % vT1)
    A('v_mov_b32 v%d, 0xff800000' % vT2)
    A('v_cndmask_b32 v%d, v%d, v%d, vcc' % (vBias, vT1, vT2))
    A('v_and_b32 v%d, 3, v0' % vT0)
    A('v_lshlrev_b32 v%d, 4, v%d' % (vT1, vT0))
    A('v_mov_b32 v%d, 0x3f80' % vT2)
    A('v_lshlrev_b32 v%d, v%d, v%d' % (vT1, vT1, vT2))
    A('v_cmp_gt_u32 vcc, 2, v%d' % vT0)
    A('v_cndmask_b32 v%d, 0, v%d, vcc' % (vT1, vT1))
    A('v_bfe_u32 v%d, v0, 2, 2' % vT0)
    for i in range(4):
        A('v_cmp_eq_u32 vcc, %d, v%d' % (i, vT0))
        A('v_cndmask_b32 v%d, 0, v%d, vcc' % (vSel + i, vT1))
    A('s_lshl_b32 s%d, s%d, 2' % (sA, sW))
    A('s_add_u32 s%d, s%d, %d' % (sA, sA, LDSL))
    A('v_add_u32 v%d, s%d, v%d' % (vW2l, sA, vL16))
    A('v_and_b32 v%d, 1, v0' % vT0)
    A('v_lshrrev_b32 v%d, 4, v0' % vT1)
    A('v_lshl_add_u32 v%d, v%d, 2, v%d' % (vT0, vT0, vT1))
    A('v_lshlrev_b32 v%d, 4, v%d' % (vT1, vT0))
    A('v_add_u32 v%d, %d, v%d' % (vR2l, LDSL, vT1))
    A('v_and_b32 v%d, 2, v0' % vT1)
    A('v_xor_b32 v%d, v%d, v%d' % (vT0, vT0, vT1))
    A('v_lshlrev_b32 v%d, 4, v%d' % (vT0, vT0))
    A('v_lshl_add_u32 v%d, v%d, 7, v%d' % (vT0, vT1, vT0))
    A('v_bfe_u32 v%d, v0, 3, 1' % vT1)
    A('v_lshl_add_u32 v%d, v%d, 7, v%d' % (vT0, vT1, vT0))
    A('v_bfe_u32 v%d, v0, 2, 1' % vT1)
    A('v_lshl_add_u32 v%d, v%d, 3, v%d' % (vT0, vT1, vT0))
    A('s_lshl_b32 s%d, s%d, 9' % (sA, sW))
    A('s_add_u32 s%d, s%d, %d' % (sA, sA, LDS2))
    A('v_add_u32 v%d, s%d, v%d' % (vR2, sA, vT0))
    A('v_bfe_u32 v%d, v0, 3, 1' % vT0)
    A('v_lshlrev_b32 v%d, 9, v%d' % (vT0, vT0))
    A('v_lshrrev_b32 v%d, 4, v0' % vT1)
    A('v_lshl_add_u32 v%d, v%d, 7, v%d' % (vT0, vT1, vT0))
    A('v_and_b32 v%d, 2, v%d' % (vT1, vT1))
    A('v_and_b32 v%d, 7, v0' % vT2)
    A('v_xor_b32 v%d, v%d, v%d' % (vT1, vT1, vT2))
    A('v_lshl_add_u32 v%d, v%d, 4, v%d' % (vT0, vT1, vT0))
    A('s_lshl_b32 s%d, s%d, 11' % (sA, sW))
    A('s_add_u32 s%d, s%d, %d' % (sA, sA, LDS2))
    A('v_add_u32 v%d, s%d, v%d' % (vW2, sA, vT0))

    if opt.get('iw', 0):
        A('s_barrier')
        for w in range(3):
            A('s_cmp_eq_u32 s%d, %d' % (sW, w))
            A('s_cbranch_scc1 L_hk%d' % w)
        A('s_branch L_hk3')
        A.label('L_hkret')
    def mem0_loads():
        bits(A, vT2, [(0, 3, 11), (3, 3, 4)], vT0)
        A('s_lshl_b32 s%d, s%d, 9' % (sA, sW))
        for t in range(4):
            A('buffer_load_dwordx4 %s, v%d, %s, s%d offen offset:%d' % (v(vM + 4 * t, 4), vT2, S4(SRD_E), sA, t * 128))
    A('s_lshl_b32 s%d, s%d, 14' % (sCc, sW))
    A('s_add_u32 s%d, s%d, %d' % (sCc, sCc, LDSW))
    A('v_add_u32 v%d, s%d, v%d' % (vWb, sCc, vL16))
    bits(A, vWc, [(2, 1, 11), (4, 2, 9), (3, 1, 7), (0, 2, 3)], vT0, 's%d' % sCc)
    w1q(0); w1v(0)
    A('s_waitcnt vmcnt(12)')
    confirm(A, opt, vT0, vT1, sA)
    for k in range(16):
        A('ds_write_b128 v%d, %s offset:%d' % (vWb, a(192 + 4 * k, 4), k * 1024))
        if k == 7:
            A('s_waitcnt lgkmcnt(0)')
    A('s_waitcnt lgkmcnt(0)')
    for n in range(4):
        for j in range(4):
            for pp in range(2):
                A('ds_read_b64_tr_b16 %s, v%d offset:%d' % (a(WO(n, j) + 2 * pp, 2), vWc, (32 * j + 2 * pp) * 128 + n * 32))
        A('s_waitcnt lgkmcnt(0)')
    if opt.get('prof'):
        A('s_memrealtime s[98:99]')
    bits(A, vWc, [(5, 1, 11), (4, 1, 9), (3, 1, 10), (2, 1, 7), (0, 2, 3)], vT0, 's%d' % sCc)
    bits(A, vWd, [(5, 1, 10), (4, 1, 8), (3, 1, 9), (2, 1, 6), (0, 2, 3)], vT0, 's%d' % sCc)
    for t in range(4):
        if t < 3:
            w1q(t + 1)
        A('s_waitcnt vmcnt(%d)' % (12 if t < 3 else 4))
        for i in range(8):
            A('ds_write_b128 v%d, %s offset:%d' % (vWb, a(W1(t, 0, 0) + 4 * i, 4), i * 1024))
        for m in range(2):
            A('s_waitcnt lgkmcnt(4)')
            for tt in range(2):
                for pp in range(4):
                    A('ds_read_b64_tr_b16 %s, v%d offset:%d' % (a(W1(t, m, tt) + 2 * pp, 2), vWc, (32 * (pp >> 1) + 2 * (pp & 1)) * 128 + m * 64 + tt * 32))
        if t < 3:
            w1v(t + 1)
        else:
            mem0_loads()
            init_load(A, vT0, vT1)
        A('s_waitcnt vmcnt(%d) lgkmcnt(0)' % (12 if t < 3 else 5))
        for i in range(4):
            A('ds_write_b128 v%d, %s offset:%d' % (vWb, a(W1(t, 2, 0) + 4 * i, 4), 8192 + i * 1024))
        for tt in range(2):
            for pp in range(4):
                A('ds_read_b64_tr_b16 %s, v%d offset:%d' % (a(W1(t, 2, tt) + 2 * pp, 2), vWd, 8192 + (32 * (pp >> 1) + 2 * (pp & 1)) * 64 + tt * 32))
        A('s_waitcnt lgkmcnt(0)')
    def vox(fill=None):
        fill = fill or {}
        k = 0
        for n in range(4):
            for j in range(4):
                for tt in range(2):
                    acc = v(vT + (n * 2 + tt) * 4, 4)
                    if opt.get('xnovox') and fill:
                        A('s_nop 3')
                    else:
                        A('v_mfma_f32_16x16x32_bf16 %s, %s, %s, %s' % (acc, v(vVx + (tt * 4 + j) * 4, 4), a(WO(n, j), 4), acc if j else '0'))
                    for o in fill.get(k, []):
                        A(o)
                    k += 1
                    if n > 0 and j in (1, 2):
                        jj = 2 * (j - 1) + tt
                        b = vT + (n - 1) * 8 + 2 * jj
                        A('v_cvt_pk_bf16_f32 v%d, v%d, v%d' % (vVOx + (n - 1) * 4 + jj, b, b + 1))

    def vox_tail():
        return ['v_cvt_pk_bf16_f32 v%d, v%d, v%d' % (vVOx + 12 + jj, vT + 24 + 2 * jj, vT + 25 + 2 * jj) for jj in range(4)]

    def paced(ops, every=4):
        for i, o in enumerate(ops):
            A(o)
            if i % every == every - 1 and i != len(ops) - 1:
                A('s_nop 0')

    def zeros(base, n, val='0'):
        return ['v_mov_b32 v%d, %s' % (base + i, val) for i in range(n)]

    cap_vm(A, cap0)
    tstamp(A, opt, 1, vT2, vT3, sA)
    if opt.get('prof'):
        A('s_mov_b32 s78, s98')
        tstamp(A, opt, 3, vT2, vT3, sA, now=False)
    wait_init(A, vT0, vT1, sA, sB, True)
    if opt.get('rt', 1):
        bits(A, vT1, [(0, 5, 7), (5, 1, 14)], vT0)
        A('buffer_load_dword v252, v%d, %s, s%d offen sc1' % (vT1, S4(WS), sMemR))
        A('v_lshlrev_b32 v%d, 7, v0' % vT1)
        A('s_xor_b32 s%d, s%d, 0x8000' % (sA, sQkvR))
        A('buffer_load_dword v252, v%d, %s, s%d offen sc1' % (vT1, S4(WS), sQkvR))
        A('buffer_load_dword v252, v%d, %s, s%d offen sc1' % (vT1, S4(WS), sA))
    if opt.get('dyn'):
        A('s_lshl_b32 s%d, s%d, 2' % (sA, sX))
        A('v_mov_b32 v%d, 0x%x' % (vT1, PROF + 6 * MB))
        A('buffer_load_dword v%d, v%d, %s, s%d offen sc1' % (vT0, vT1, S4(WS), sA))
        A('s_waitcnt vmcnt(0)')
        A('v_readfirstlane_b32 s%d, v%d' % (sGp, vT0))
    A('s_lshl_b32 s%d, s%d, 2' % (sA, sG))
    A('s_add_u32 s%d, s%d, s%d' % (sA, sA, sW))
    A('s_lshl_b32 s%d, s%d, 8' % (sCc, sA))
    A('s_add_u32 s%d, s%d, 0x%x' % (sCc, sCc, F_KV))
    near(A, sCc, sB)
    bits(A, vFa, [(0, 1, 7)], vT0, 's%d' % sCc)
    A('s_mul_i32 s%d, s%d, 0x%x' % (sKx, sA, ROW))
    near(A, sKx, sB)
    A('s_add_u32 s%d, s%d, 0x%x' % (sVx, sKx, VX))
    A('s_add_u32 s%d, s%d, 0x%x' % (sKx, sKx, KX))
    A('s_add_u32 s%d, s%d, 4096' % (sKx2, sKx))
    A('s_add_u32 s%d, s%d, 4096' % (sVx2, sVx))
    A('s_and_b32 s%d, s%d, 7' % (sB, sC))
    A('s_lshl_b32 s%d, s%d, 10' % (sB, sB))
    A('s_cmp_lt_u32 s%d, 8' % sC)
    A('s_cselect_b32 s%d, s%d, s%d' % (sPf, sKx, sVx))
    A('s_add_u32 s%d, s%d, s%d' % (sPf, sPf, sB))
    A('s_add_u32 s%d, s%d, 0x%x' % (sPf, sPf, SEG))
    A('s_lshl_b32 s%d, s%d, 1' % (sPartR, sC))
    A('s_lshr_b32 s%d, s%d, 1' % (sB, sW))
    A('s_add_u32 s%d, s%d, s%d' % (sPartR, sPartR, sB))
    A('s_mul_i32 s%d, s%d, 0x%x' % (sPartR, sPartR, ROW))
    A('s_and_b32 s%d, s%d, 1' % (sB, sW))
    A('s_lshl_b32 s%d, s%d, 12' % (sB, sB))
    A('s_add_u32 s%d, s%d, s%d' % (sPartR, sPartR, sB))
    A('s_add_u32 s%d, s%d, 0x%x' % (sPartR, sPartR, PART))
    near(A, sPartR, sB)
    A('s_lshl_b32 s%d, s%d, 8' % (sB, sG))
    A('s_add_u32 s%d, s%d, s%d' % (sPartA, sPartR, sB))
    A('s_and_b32 s%d, s%d, %d' % (sB, sB, 1024 if opt.get('gx', 1) else 0))
    A('s_add_u32 s%d, s%d, s%d' % (sPartR, sPartR, sB))
    A('s_xor_b32 s%d, s%d, 1024' % (sPartR2, sPartR))
    A('s_lshl_b32 s%d, s%d, 1' % (sA, sG))
    A('s_lshr_b32 s%d, s%d, 3' % (sB, sC))
    A('s_add_u32 s%d, s%d, s%d' % (sA, sA, sB))
    A('s_mul_i32 s%d, s%d, 0x%x' % (sKvm, sA, ROW))
    near(A, sKvm, sB)
    A('s_bfe_u32 s%d, s%d, 0x10002' % (sB, sC))
    A('s_lshl_b32 s%d, s%d, 12' % (sB, sB))
    A('s_add_u32 s%d, s%d, s%d' % (sKvm, sKvm, sB))
    A('s_add_u32 s%d, s%d, 0x%x' % (sKvm, sKvm, KVM - 2048))

    def kv_ops(lab, ahead=2):
        return ['v_readlane_b32 s%d, v%d, 0' % (sCc, vFv), 'v_readlane_b32 s%d, v%d, 1' % (sB, vFv),
                's_add_u32 s%d, s%d, %d' % (sA, sStep, ahead), 's_min_u32 s%d, s%d, 64' % (sA, sA),
                's_min_i32 s%d, s%d, s%d' % (sB, sB, sCc), 's_max_i32 s%d, s%d, s%d' % (sKn, sKn, sB),
                's_cmp_lt_i32 s%d, s%d' % (sKn, sA), 's_cbranch_scc1 %s' % lab]

    def kv_check(lab, ahead=2):
        for o in kv_ops(lab, ahead):
            A(o)

    ld_flags = 'buffer_load_dword v%d, v%d, %s, 0 offen sc1' % (vFv, vFa, S4(WS))
    A('s_mov_b32 s%d, 0' % sKn)
    rmask = sum(1 << int(x) for x in str(opt.get('rf', '0.1.2.4.6.9.13.18.24.32.41.49')).split('.'))
    A('s_mov_b32 s%d, 0x%x' % (sLo, rmask & 0xffffffff))
    A('s_mov_b32 s%d, 0x%x' % (sLo + 1, rmask >> 32))
    A('s_mov_b32 s%d, 0' % sFo)
    A('s_mov_b32 s%d, s%d' % (sSc2, sScale))
    A('s_add_u32 s%d, s%d, 2048' % (sB, sKvm))
    touch_pages(A, opt, [sKx, sVx, sPartR, sB], vT0, sA)
    paced(['v_min_u32 v%d, -2, v%d' % (vM + i, vM + i) for i in range(16)])
    A('s_add_u32 s%d, s%d, 0x%x' % (sKx, sKx, OOB - SEG))
    A('s_add_u32 s%d, s%d, 0x%x' % (sKx2, sKx2, OOB - SEG))
    A('s_mov_b32 s%d, 0' % sD)
    paced(zeros(vA, 24) + zeros(MM, 4) + (zeros(vQ, 4, '-1') + zeros(vQ + 8, 4, '-1') + zeros(vKm, 8, '-1') if opt.get('h2m') else []))
    tstamp(A, opt, 2, vT0, vT1, sA)
    if opt.get('diag') or opt.get('hold'):
        A('s_memrealtime s[96:97]')
        A('s_memtime s[98:99]')
        A('s_waitcnt lgkmcnt(0)')

    PT = 96
    stamps = []

    names = opt.get('marks', 'm0ok,st1end,qkvst,q0ok,Send,st2end,partst').split(',') + ['gath', 'gathok']
    assert len(names) == 9

    def stamp(nm):
        if prof and nm in names:
            i = names.index(nm)
            A('s_memtime s[%d:%d]' % (12 + 2 * i, 13 + 2 * i))

    if lite:
        vTr = V('trace')
        A('v_mov_b32 v%d, 0' % vTr)
        A('s_memtime s[28:29]')
        A('s_memtime s[96:97]')
        A('s_memrealtime s[98:99]')
        A('s_waitcnt lgkmcnt(0)')
        for n_ in (sN1, sN2, sN3):
            A('s_mov_b32 s%d, 0' % n_)

    if opt.get('xnobulk'):
        for n_ in (sKx, sKx2, sVx, sVx2)[:opt['xnobulk']]:
            A('s_mov_b32 s%d, 0x%x' % (n_, OOB))
    loc = '@LOC@'

    def ldx4(dst, so, off):
        return 'buffer_load_dwordx4 %s, v%d, %s, s%d offen offset:%d sc1' % (v(dst, 4), vL16, S4(WS), so, off)

    def ld_mem(t):
        A(ldx4(vM + 4 * t, sMemR, t * 1024))

    def chk4(b, tmp):
        return ['v_max3_u32 v%d, v%d, v%d, v%d' % (tmp, b, b + 1, b + 2), 'v_max_u32 v%d, v%d, v%d' % (tmp, tmp, b + 3)]

    def chk4more(b, tmp):
        return ['v_max3_u32 v%d, v%d, v%d, v%d' % (tmp, tmp, b, b + 1), 'v_max3_u32 v%d, v%d, v%d, v%d' % (tmp, tmp, b + 2, b + 3)]

    def cmpv(tmp):
        return 'v_cmp_eq_u32 vcc, -1, v%d' % tmp

    rx = opt.get('rx', 1)

    def wchk(bases, tmp):
        if not rx:
            ops = chk4(bases[0], tmp)
            for b in bases[1:]:
                ops += chk4more(b, tmp)
            return ops, cmpv(tmp)
        if len(bases) == 1:
            return [], cmpv(bases[0] + 3)
        return ['v_max_u32 v%d, v%d, v%d' % (tmp, bases[0] + 3, bases[1] + 3)], cmpv(tmp)

    def guard(r_):
        if not opt.get('nomin', 1):
            A('v_min_u32 v%d, -2, v%d' % (r_, r_))

    def smf1(t, m, tt):
        A('v_smfmac_f32_16x16x64_bf16 %s, %s, %s, v%d' % (v(vA + 8 * m + 4 * tt, 4), v(vM + 4 * t, 4), a(W1(t, m, tt), 8), vIdx))

    def add2(d, x, y):
        if opt.get('pk', 1):
            A('v_pk_add_f32 %s, %s, %s' % (v(d, 2), v(x, 2), v(y, 2)))
        else:
            A('v_add_f32 v%d, v%d, v%d' % (d, x, y))
            A('v_add_f32 v%d, v%d, v%d' % (d + 1, x + 1, y + 1))

    def fold(m, vs=None):
        b = vA + 8 * m
        f = vF + 4 * m
        n_ = 0
        for tt in range(2):
            for j in range(2):
                A('v_permlane32_swap_b32 v%d, v%d' % (b + 4 * tt + j, b + 4 * tt + j + 2))
                if vs and n_ < 3:
                    smf1(*vs.pop(0))
                n_ += 1
        for tt in range(2):
            add2(f + 2 * tt, b + 4 * tt, b + 4 * tt + 2)
        if vs:
            smf1(*vs.pop(0))
        A('ds_write2st64_b64 v%d, %s, %s offset0:%d offset1:%d' % (vW1q if m < 2 else vW1k, v(f, 2), v(f + 2, 2), 2 * m, 2 * m + 1))

    def rd1(ad, r_=None):
        r_ = vR if r_ is None else r_
        for w in range(4):
            A('ds_read2st64_b32 %s, v%d offset0:%d offset1:%d' % (v(r_ + 2 * w, 2), ad, 12 * w, 12 * w + 2))

    def red1(dst, extra='', r_=None, more=0):
        r_ = vR if r_ is None else r_
        A('s_waitcnt lgkmcnt(%d)' % (0 if prof else 2 + more))
        A(extra)
        add2(r_, r_, r_ + 2)
        A('s_waitcnt lgkmcnt(%d)' % (0 if prof else more))
        add2(r_ + 4, r_ + 4, r_ + 6)
        add2(r_, r_, r_ + 4)
        A('v_cvt_pk_bf16_f32 v%d, v%d, v%d' % (dst, r_, r_ + 1))
        guard(dst)

    def st4(src, ad, so, mod):
        return 'buffer_store_dword v%d, v%d, %s, s%d offen%s' % (src, ad, S4(WS), so, mod)

    ld_q = [ldx4(vQ, sQkvR, 0), ldx4(vQ + 8, sQkvR, 1024)]
    ld_k = [ldx4(vKm, sQkvR, 2048), ldx4(vKm + 4, sQkvR, 3072)]
    ld_v = [ldx4(vVm, sQkvR2, 0), ldx4(vVm + 4, sQkvR2, 1024)]
    st_v = st4(vVv, vVst, sQkvW, loc)
    ld_part = [ldx4(vPt, sPartR, 0), ldx4(vPt + 4, sPartR2, 0)]
    X0, X1 = vS, vS + 4
    cnt = lambda n_, k_=1: A('s_add_u32 s%d, s%d, %d' % (n_, n_, k_)) if lite else None

    hooks = []

    def hook(align=False):
        if not opt.get('iw', 0):
            return
        if align:
            A('.p2align 6')
        hooks.append(len(hooks))
        A.label('L_hk%d' % hooks[-1])
        A('s_branch @HK%d@' % hooks[-1])

    def nxt(Sm, t):
        for d in range(1, 5):
            if Sm >> ((t + d) & 3) & 1:
                return (t + d) & 3

    def block(Sm, t, wait=None):
        rest = Sm & ~(1 << t)
        n = nxt(rest, t) if rest else None
        if rest:
            ops, cm = wchk([vM + 4 * n], vT0) if wait is not None else (chk4(vM + 4 * n, vT0), cmpv(vT0))
        smf1(t, 0, 0)
        if rest and ops:
            if wait is not None:
                A('s_waitcnt vmcnt(%d)' % wait)
            for o in ops:
                A(o)
        smf1(t, 0, 1)
        if rest:
            if not ops:
                A('s_waitcnt vmcnt(%d)' % wait)
            A(cm)
        smf1(t, 1, 0)
        smf1(t, 1, 1)
        return rest, n

    fc = opt.get('fc', 3)

    def fast_chains():
        def chain_(lab, Sm, que, fail2):
            hook(True)
            A.label(lab)
            ld_mem(que[-1])
            cnt(sN1)
            A('s_waitcnt vmcnt(%d)' % (len(que) - 1))
            ops, cm = wchk([vM + 4 * que[0]], vT0)
            for o in ops + [cm]:
                A(o)
            A('s_cbranch_vccnz %s' % (fail2 or 'L_F%d_%d' % (Sm, que[0])))
            if Sm == 15:
                stamp('m0ok')
            for i, t in enumerate(que):
                stamp('B%d' % (4 - len(que) + i))
                last = i + 2 == len(que)
                if last and len(que) < 4:
                    block(1 << t, t)
                    Sm &= ~(1 << t)
                    n = que[-1]
                    A('s_waitcnt vmcnt(0)')
                    ops, cm = wchk([vM + 4 * n], vT0)
                    for o in ops + [cm]:
                        A(o)
                else:
                    Sm, n = block(Sm, t, len(que) - 2 - i)
                if Sm:
                    assert n == que[i + 1]
                    A('s_cbranch_vccnz L_F%d_%d' % (Sm, n))
            A('s_branch L_T1')
        chain_('L_G15_0', 15, [1, 2, 3, 0], 'L_G15_1' if fc > 1 else None)
        if fc > 1:
            chain_('L_G15_1', 15, [2, 3, 0, 1], 'L_G15_2' if fc > 2 else None)
        if fc > 2:
            chain_('L_G15_2', 15, [3, 0, 1, 2], None)
        chain_('L_G14_1', 14, [2, 3, 1], None)
        chain_('L_G12_2', 12, [3, 2], None)

    def first_pass():
        A('s_waitcnt vmcnt(3)')
        ops, cm = wchk([vM], vT0)
        for o in ops:
            A(o)
        A(cm)
        A('s_cbranch_vccnz L_%s15_0' % ('G' if fc else 'F'))
        stamp('m0ok')
        Sm = 15
        for t in range(4):
            stamp('B%d' % t)
            Sm, n = block(Sm, t, 2 - t)
            if Sm:
                A('s_cbranch_vccnz L_%s%d_%d' % ('G' if fc and n < 3 else 'F', Sm, n))

    def poll_nodes_ooo():
        for Sm in sorted(range(1, 16), key=lambda x: -bin(x).count('1')):
            ts = [t for t in range(4) if Sm >> t & 1]
            hook(True)
            for t in ts:
                A.label('L_P%d_%d' % (Sm, t))
                A('s_waitcnt vmcnt(3)')
                for o in chk4(vM + 4 * t, vT0):
                    A(o)
                A(cmpv(vT0))
                A('s_cbranch_vccz L_V%d_%d' % (Sm, t))
                A.label('L_F%d_%d' % (Sm, t))
                ld_mem(t)
                cnt(sN1)
            timeout_stub(A, 'L_P%d_%d' % (Sm, ts[0]))
            if len(ts) > 1:
                hook()
            for t in ts:
                hook(True)
                A.label('L_V%d_%d' % (Sm, t))
                if Sm == 15:
                    stamp('m0ok')
                stamp('B%d' % (4 - len(ts)))
                rest, n = block(Sm, t)
                if rest:
                    A('s_cbranch_vccz L_V%d_%d' % (rest, n))
                    A('s_branch L_F%d_%d' % (rest, n))
                else:
                    A('s_branch L_T1')

    def poll_nodes():
        if opt.get('ooo', 1):
            return poll_nodes_ooo()
        for k in range(4):
            full = 15 & ~((1 << k) - 1)
            for Sm in sorted(range(1, 16), key=lambda x: -bin(x).count('1')):
                if Sm & ~full:
                    continue
                ts = [t for t in range(4) if Sm >> t & 1]
                for t in ts:
                    rest = Sm & ~(1 << t)
                    A.label('L_P%d_%d_%d' % (k, Sm, t))
                    A('s_waitcnt vmcnt(%d)' % opt.get('lim', 3))
                    for o in chk4(vM + 4 * t, vT0):
                        A(o)
                    A(cmpv(vT0))
                    A('s_cbranch_vccz %s' % ('L_P%d_%d_%d' % (k, rest, nxt(rest, t)) if rest else 'L_G%d' % k))
                    if Sm == full and t == k:
                        A.label('L_F%d_%d' % (Sm, t))
                    ld_mem(t)
                    cnt(sN1)
                timeout_stub(A, 'L_P%d_%d_%d' % (k, Sm, ts[0]))
        for k in range(4):
            A.label('L_G%d' % k)
            if k == 0:
                stamp('m0ok')
            stamp('B%d' % k)
            block(1 << k, k)
        A('s_branch L_T1')

    A('s_cmp_lt_u32 s%d, %d' % (sPure, NPURE))
    A('s_cbranch_scc1 L_loop_i')
    loop_start = len(A.lines)
    A('.p2align 6')
    A.label('L_loop')
    first_pass()
    A.label('L_T1')
    stamp('T1')
    kxl = [ldx4(vKx + 4 * f, (sKx, sKx2)[f >> 2], (f & 3) * 1024) for f in range(8)]
    vxl = [ldx4(vVx + 4 * f, (sVx, sVx2)[f >> 2], (f & 3) * 1024) for f in range(8)]
    na, nc, nd, ne = opt.get('na', 3), opt.get('nc', 3), opt.get('nd', 0), opt.get('nq', 0)
    kb_ = max(8 - nc - nd - na, 0)
    ka = kxl[nc + nd + kb_:]
    nva = na - len(ka)
    ka = ka + vxl[:nva]
    ke = vxl[nva:nva + ne]
    bulk = vxl[nva + ne:] + kxl[nc + nd:nc + nd + kb_]
    nk = lambda: A(ka.pop(0)) if ka else None
    qk = ld_q + ld_k
    order = []
    zq = []
    if opt.get('split', 1):
        for i in range(opt.get('na0', 0)):
            nk()
        fold(0)
        stamp('f0')
        for i in range(opt.get('na1', 0)):
            nk()
        fold(1)
        stamp('f1')
        nv1 = opt.get('nv', 2)
        for t in range(nv1):
            smf1(t, 2, 0)
            nk()
            smf1(t, 2, 1)
        A('s_waitcnt lgkmcnt(0)')
        stamp('st1end')
        A('s_barrier')
        stamp('bar1')
        rd1(vR1)
        for t in range(nv1, 4):
            smf1(t, 2, 0); nk(); smf1(t, 2, 1)
        while ka:
            nk()
        red1(vQK)
        A(st4(vQK, vQst, sQkvW, loc))
        stamp('qkvst')
        slots = [int(ch) for ch in str(opt.get('h2s', '2244')).zfill(4)]

        def slot(i):
            for n_, sl_ in enumerate(slots):
                if sl_ == i:
                    A(qk[n_]); order.append(qk[n_])
        for o in ke[:1]:
            A(o)
        fold(2)
        for o in ke[1:]:
            A(o)
        slot(0)
        A('s_add_u32 s%d, s%d, 0x%x' % (sKx, sKx, SEG))
        A('s_add_u32 s%d, s%d, 0x%x' % (sKx2, sKx2, SEG))
        A('s_cmp_eq_u32 s%d, s%d' % (sStep, sD))
        A('s_cbranch_scc1 L_sp')
        A.label('L_spr')
        A('s_waitcnt lgkmcnt(0)')
        A('s_barrier')
        stamp('bar1b')
        slot(1)
        rd1(vR1v)
        for i in range(opt.get('h2x', 0)):
            A('s_nop 3')
        slot(2)
        if 3 in slots:
            A('s_waitcnt lgkmcnt(%d)' % (0 if prof else 3))
        slot(3)
        red1(vVv)
        A(st_v); order.append(st_v)
        stamp('vst')
        slot(4)
    else:
        vs = [(t, 2, tt) for t in range(4) for tt in range(2)]
        fold(0, vs)
        stamp('f0')
        fold(1, vs)
        stamp('f1')
        fold(2)
        while ka:
            nk()
        A('s_add_u32 s%d, s%d, 0x%x' % (sKx, sKx, SEG))
        A('s_add_u32 s%d, s%d, 0x%x' % (sKx2, sKx2, SEG))
        A('s_waitcnt lgkmcnt(0)')
        stamp('st1end')
        A('s_barrier')
        stamp('bar1')
        rd1(vR1)
        rd1(vR1v, vA)
        red1(vQK, '', vR, 4)
        A(st4(vQK, vQst, sQkvW, loc))
        stamp('qkvst')
        red1(vVv, '', vA)
        A(st_v)
        stamp('vst')
        A('s_cmp_eq_u32 s%d, s%d' % (sStep, sD))
        A('s_cbranch_scc1 L_sp')
        A.label('L_spr')
        zq = zeros(vT, 16) + zeros(MM, 4)
        fz = zq + ['s_nop 0'] * 60
        for i, n_ in enumerate([opt.get('h2d', 6)] + [opt.get('h2p', 10)] * 3):
            paced(fz[:n_]); fz = fz[n_:]
            A(qk[i]); order.append(qk[i])
        paced([o for o in fz if o.startswith('v_')])
    younger = lambda o: len(order) - 1 - order.index(o)
    A.label('L_h2')
    mx = lambda tt, j, first=False: A('v_mfma_f32_16x16x32_bf16 %s, %s, %s, %s' % (v(vS + 4 * tt, 4), v(vKx + (tt * 4 + j) * 4, 4), v(vQ + 4 * j, 4), '0' if first else v(vS + 4 * tt, 4)))
    ror = lambda r_: A('v_mov_b32_dpp v%d, v%d row_ror:8 row_mask:0xf bank_mask:0xf' % (r_ + 4, r_))
    smm = lambda u: A('v_smfmac_f32_16x16x64_bf16 %s, %s, %s, v%d' % (v(MM, 4), v(vKm + 4 * u, 4), v(vQ + 8 * u, 8), vIdx))
    qkr = [vQ, vQ + 8, vKm, vKm + 4]
    mxo = ['v_max3_f32 v%d, v%d, v%d, v%d' % (vT0, vBias, X0, X0 + 1), 'v_max3_f32 v%d, v%d, v%d, v%d' % (vT0, vT0, X0 + 2, X0 + 3),
           'v_max3_f32 v%d, v%d, v%d, v%d' % (vT0, vT0, X1, X1 + 1), 'v_max3_f32 v%d, v%d, v%d, v%d' % (vT0, vT0, X1 + 2, X1 + 3)]
    swm = ['v_permlane32_swap_b32 v%d, v%d' % (MM, MM + 2), 'v_permlane32_swap_b32 v%d, v%d' % (MM + 1, MM + 3)]

    def ck(i):
        for o in chk4(qkr[i], vT3):
            A(o)

    def s_end():
        add2(MM, MM, MM + 2)
        A('v_max3_f32 v%d, v%d, v%d, v%d' % (vT0, vT0, MM, MM + 1))
        A('v_mov_b32 v%d, v%d' % (vT1, vT0))
    h2m = opt.get('h2m', 0)
    if h2m == 2:
        stamp('q0w')
        A('s_waitcnt vmcnt(%d)' % younger(qk[0]))
        stamp('q0l')
        mx(0, 0, True); ck(0)
        mx(1, 0, True); A(cmpv(vT3)); ror(vQ); ror(vQ + 1); ror(vQ + 2); ror(vQ + 3)
        A('s_cbranch_vccnz L_FA15_0')
        mx(0, 1)
        A('s_waitcnt vmcnt(%d)' % younger(qk[1]))
        stamp('q1l')
        ck(1)
        mx(1, 1); A(cmpv(vT3)); ror(vQ + 8)
        mx(0, 2); ror(vQ + 9); ror(vQ + 10)
        mx(1, 2); ror(vQ + 11)
        A('s_cbranch_vccnz L_FA14_1')
        stamp('q0ok')
        mx(0, 3); A(ld_v[0])
        mx(1, 3); A(ld_v[1])
        order += ld_v
        stamp('k0w')
        A('s_waitcnt vmcnt(%d)' % younger(qk[2]))
        smm(0)
        if opt.get('k0c', 1):
            ck(2); A(cmpv(vT3)); A(mxo[0]); A(mxo[1]); A(mxo[2]); A(mxo[3])
            A('s_cbranch_vccnz L_FK12_2')
            stamp('k1w')
            A('s_waitcnt vmcnt(%d)' % younger(qk[3]))
            stamp('k1l')
            smm(1)
            ck(3); A(cmpv(vT3))
            A(swm[0]); A(swm[1])
            s_end()
            A('s_cbranch_vccnz L_FK8_3')
        else:
            stamp('k1w')
            A('s_waitcnt vmcnt(%d)' % younger(qk[3]))
            stamp('k1l')
            smm(1)
            for o in chk4(vKm, vT3) + chk4more(vKm + 4, vT3):
                A(o)
            A(cmpv(vT3))
            A(mxo[0]); A(swm[0]); A(swm[1]); A(mxo[1]); A(mxo[2]); A(mxo[3])
            s_end()
            A('s_cbranch_vccnz L_PK12_2')
    else:
        stamp('q0w')
        A('s_waitcnt vmcnt(%d)' % younger(qk[0]))
        stamp('q0l')
        mx(0, 0, True); ror(vQ); ror(vQ + 1)
        mx(1, 0, True); ror(vQ + 2); ror(vQ + 3)
        A('s_waitcnt vmcnt(%d)' % younger(qk[1]))
        stamp('q1l')
        ops, cm = wchk([vQ, vQ + 8], vT3)
        if rx:
            mx(0, 2); A(ops[0]); A(cm)
            mx(1, 2); ror(vQ + 8); ror(vQ + 9)
            mx(0, 1); ror(vQ + 10); ror(vQ + 11)
            mx(1, 1)
        else:
            mx(0, 2); A(ops[0]); A(ops[1])
            mx(1, 2); A(ops[2]); A(ops[3])
            mx(0, 1); A(cm); ror(vQ + 8); ror(vQ + 9)
            mx(1, 1); ror(vQ + 10); ror(vQ + 11)
        A('s_cbranch_vccnz %s' % ('L_r2' if h2m == 0 else 'L_PA15_0'))
        stamp('q0ok')
        order_q = list(order)
        vpos = opt.get('vpos', 1)
        mx(0, 3)
        if vpos == 0:
            A(ld_v[0])
        mx(1, 3)
        if vpos == 0:
            A(ld_v[1])
            order += ld_v
        A.label('L_h2k')
        stamp('k0w')
        A('s_waitcnt vmcnt(%d)' % younger(qk[2]))
        smm(0)
        stamp('k1w')
        A('s_waitcnt vmcnt(%d)' % younger(qk[3]))
        stamp('k1l')
        smm(1)
        if vpos == 1:
            A(ld_v[0]); A(ld_v[1])
        ops, cm = wchk([vKm, vKm + 4], vT3)
        for o in ops + [cm] + (mxo + swm if rx else [mxo[0]] + swm + mxo[1:]):
            A(o)
        order_k = order[order.index(qk[2]):]
        s_end()
        A('s_cbranch_vccnz %s' % ('L_r2k' if h2m == 0 else 'L_PK12_2'))
    A.label('L_sj')
    stamp('kok')
    if opt.get('xdrop'):
        bulk = bulk[:len(bulk) - opt['xdrop']]
    nbulk = len(bulk)
    nb = lambda: A(bulk.pop(0)) if bulk else None
    early = opt.get('be', 2)
    if vpos == 2:
        A(ld_v[0])
    for i in range(min(early, 1) if vpos < 2 else 0):
        nb()
    A('v_permlane32_swap_b32 v%d, v%d' % (vT0, vT1))
    A('v_max_f32 v%d, v%d, v%d' % (vT0, vT0, vT1))
    A('v_mov_b32 v%d, v%d' % (vT1, vT0))
    if vpos == 2:
        A(ld_v[1])
    for i in range(max(early - 1, 0)):
        nb()
    A('v_permlane16_swap_b32 v%d, v%d' % (vT0, vT1))
    A('v_max_f32 v%d, v%d, v%d' % (vT0, vT0, vT1))
    A('v_mul_f32 v%d, s%d, v%d' % (vT0, sScale, vT0))
    fma = lambda r_: A('v_fma_f32 v%d, v%d, s%d, -v%d' % (r_, r_, sScale, vT0))
    ex = lambda r_: A('v_exp_f32 v%d, v%d' % (r_, r_))
    cvt = lambda d, x: A('v_cvt_pk_bf16_f32 v%d, v%d, v%d' % (d, x, x + 1))
    shr = lambda d, x: A('v_mov_b32_dpp v%d, v%d row_shr:8 row_mask:0xf bank_mask:0xc' % (d, x))
    def fma2(r_):
        if opt.get('pkf', 1):
            A('v_pk_fma_f32 %s, %s, %s, %s op_sel_hi:[1,0,0] neg_lo:[0,0,1] neg_hi:[0,0,1]' % (v(r_, 2), v(r_, 2), s(sSc2, 2), v(vT0, 2)))
        else:
            fma(r_); fma(r_ + 1)
    vom = lambda u, n: A('v_smfmac_f32_16x16x64_bf16 %s, %s, %s, v%d' % (v(vT + 4 * n, 4), v(vVm + 4 * u, 4), a(WO(n, 2 * u), 8), vIdx))
    m32 = lambda d, x, p, c_: A('v_mfma_f32_16x16x32_bf16 %s, %s, %s, %s' % (v(d, 4), v(x, 4), v(p, 4), v(d, 4) if c_ else '0'))
    m16 = lambda d, x, p: A('v_mfma_f32_16x16x16_bf16 %s, %s, %s, %s' % (v(d, 4), v(x, 2), v(p, 2), v(d, 4)))
    cvm = lambda k: cvt(vVOm + k, vT + 2 * k)
    s2 = opt.get('s2', 2)
    if s2:
        assert vPms == vPm + 2 and vPm % 4 == 0
        er = [MM, MM + 1] + [vS + i for i in range(8)]
        fma2(MM)
        for i in range(4):
            fma2(vS + 2 * i)
        for r_ in er[:7]:
            ex(r_)

        def vcheck(between):
            stamp('vw')
            A('s_waitcnt vmcnt(%d)' % (nbulk - len(bulk)))
            stamp('vl')
            ops, cm = wchk([vVm, vVm + 4], vT3)
            for o in ops + [cm]:
                A(o)
            between()
            A('s_cbranch_vccnz L_r2v')
            A.label('L_h2v')
            stamp('Send')
        swp = lambda: A('v_permlane32_swap_b32 v%d, v%d' % (vPm, vPm + 1))
        if s2 == 1:
            vcheck(lambda: [ex(r_) for r_ in er[7:]])
            gaps = [lambda: cvt(vPm, MM), lambda: cvt(vPm + 1, MM), lambda: cvt(vP, vS), lambda: cvt(vP + 1, vS + 2),
                    lambda: cvt(vP + 2, vS + 4), lambda: cvt(vP + 3, vS + 6), swp, lambda: shr(vPs, vP)]
            for i in range(8):
                vom(i & 1, i >> 1)
                if i & 1:
                    nb()
                gaps[i]()
            stamp('vomend')
            m32(vLs, vOne, vP, 0); nb(); shr(vPs + 1, vP + 1); shr(vPs + 2, vP + 2)
            m16(vLs, vHalf, vPm); shr(vPs + 3, vP + 3); shr(vPms, vPm)
            m32(vO, vVOx, vP, 0); nb(); shr(vPms + 1, vPm + 1); cvm(0)
            m32(vO, vVOx + 4, vPs, 1); cvm(1); cvm(2); cvm(3)
            m32(vO + 4, vVOx + 8, vP, 0); nb(); cvm(4); cvm(5)
            stamp('m16')
            m32(vO, vVOm, vPm, 1); nb(); cvm(6); cvm(7)
            m32(vO + 4, vVOx + 12, vPs, 1); nb()
            A('v_rcp_f32 v%d, v%d' % (vT1, vLs))
            m32(vO + 4, vVOm + 4, vPm, 1)
        else:
            bs = str(opt.get('bs', '0101001')).zfill(7)
            for r_ in er[7:]:
                ex(r_)
            for i in range(int(bs[0])):
                nb()
            for i in range(4):
                cvt(vP + i, vS + 2 * i)
            cvt(vPm, MM); cvt(vPm + 1, MM)
            nbi = lambda i: nb() if int(bs[i]) else None
            m32(vLs, vOne, vP, 0); nbi(1); shr(vPs, vP); shr(vPs + 1, vP + 1)
            m32(vO, vVOx, vP, 0); nbi(2); shr(vPs + 2, vP + 2); shr(vPs + 3, vP + 3)
            m32(vO + 4, vVOx + 8, vP, 0); nbi(3); swp()
            m32(vO, vVOx + 4, vPs, 1)
            vcheck(lambda: [m32(vO + 4, vVOx + 12, vPs, 1), nbi(4), shr(vPms, vPm), shr(vPms + 1, vPm + 1), m16(vLs, vHalf, vPm)])
            gaps = {3: [0], 4: [1], 5: [2], 6: [3], 7: [4]}
            for i in range(8):
                vom(i & 1, i >> 1)
                if i % int(bs[6]) == 0:
                    nb()
                if i == 2:
                    A('v_rcp_f32 v%d, v%d' % (vT1, vLs))
                for k in gaps.get(i, []):
                    cvm(k)
            stamp('vomend')
            m32(vO, vVOm, vPm, 1); cvm(5)
            stamp('m16')
            cvm(6); cvm(7)
            m32(vO + 4, vVOm + 4, vPm, 1)
    else:
        for i in range(4):
            fma2(vS + 2 * i)
        stamp('vw')
        A('s_waitcnt vmcnt(%d)' % early)
        stamp('vl')
        ops, cm = wchk([vVm, vVm + 4], vT3)
        for o in ops + [cm]:
            A(o)
        for i in range(3):
            ex(vS + i)
        A('s_cbranch_vccnz L_r2v')
        A.label('L_h2v')
        stamp('Send')
        vom = lambda u, n: A('v_smfmac_f32_16x16x64_bf16 %s, %s, %s, v%d' % (v(vT + 4 * n, 4), v(vVm + 4 * u, 4), a(WO(n, 2 * u), 8), vIdx))
        for i in range(8):
            vom(i & 1, i >> 1)
            if i & 1:
                nb()
            if i < 5:
                ex(vS + 3 + i)
            else:
                cvt(vP + i - 5, vS + 2 * (i - 5))
        stamp('vomend')
        cvt(vP + 3, vS + 6)
        fma2(MM)
        m32 = lambda d, x, p, c_: A('v_mfma_f32_16x16x32_bf16 %s, %s, %s, %s' % (v(d, 4), v(x, 4), v(p, 4), v(d, 4) if c_ else '0'))
        m16 = lambda d, x, p: A('v_mfma_f32_16x16x16_bf16 %s, %s, %s, %s' % (v(d, 4), v(x, 2), v(p, 2), v(d, 4)))
        cvm = lambda k: cvt(vVOm + k, vT + 2 * k)
        m32(vO, vVOx, vP, 0)
        nb()
        ex(MM)
        m32(vO + 4, vVOx + 8, vP, 0)
        ex(MM + 1)
        m32(vLs, vOne, vP, 0)
        nb()
        shr(vPs, vP); shr(vPs + 1, vP + 1); shr(vPs + 2, vP + 2); shr(vPs + 3, vP + 3)
        cvt(vPm, MM)
        cvt(vPm + 1, MM)
        if opt.get('mm', 1):
            assert vPms == vPm + 2 and vPm % 4 == 0
            m32(vO, vVOx + 4, vPs, 1)
            cvm(0)
            A('v_permlane32_swap_b32 v%d, v%d' % (vPm, vPm + 1))
            m32(vO + 4, vVOx + 12, vPs, 1)
            nb()
            cvm(1); cvm(2)
            stamp('m16')
            m16(vLs, vHalf, vPm)
            nb()
            shr(vPms, vPm); shr(vPms + 1, vPm + 1); cvm(3); cvm(4); cvm(5)
            m32(vO, vVOm, vPm, 1)
            nb()
            cvm(6); cvm(7)
            A('v_rcp_f32 v%d, v%d' % (vT1, vLs))
            m32(vO + 4, vVOm + 4, vPm, 1)
        else:
            m32(vO, vVOx + 4, vPs, 1)
            cvm(0)
            A('v_permlane32_swap_b32 v%d, v%d' % (vPm, vPm + 1))
            m32(vO + 4, vVOx + 12, vPs, 1)
            nb()
            cvm(1); cvm(2)
            stamp('m16')
            m16(vLs, vHalf, vPm)
            shr(vPms, vPm); shr(vPms + 1, vPm + 1)
            m16(vO, vVOm, vPm)
            nb()
            cvm(3); cvm(4); cvm(5)
            m16(vO, vVOm + 2, vPms)
            cvm(6); cvm(7)
            m16(vO + 4, vVOm + 4, vPm)
            nb()
            A('v_rcp_f32 v%d, v%d' % (vT1, vLs))
            m16(vO + 4, vVOm + 6, vPms)
    stamp('mend')
    A('ds_write_b32 v%d, v%d' % (vW2l, vT1))
    A('ds_write_b128 v%d, %s' % (vW2, v(vO, 4)))
    while bulk:
        nb()
    A('ds_write_b128 v%d, %s offset:1024' % (vW2, v(vO + 4, 4)))
    A('s_add_u32 s%d, s%d, 0x%x' % (sPf, sPf, SEG))
    A('s_waitcnt lgkmcnt(0)')
    stamp('st2end')
    A('s_barrier')
    stamp('bar2')
    A('ds_read_b128 %s, v%d' % (v(vR2d + 8, 4), vR2l))
    for w in range(4):
        A('ds_read_b64 %s, v%d offset:%d' % (v(vR2d + 2 * w, 2), vR2, w * 2048))
    side = []
    if not opt.get('nokvm'):
        side += [st4(vQK, vKst, sKvm, ' sc1'), st4(vVv, vVst, sKvm, ' sc1')]
    if opt.get('pf', 1):
        side += [ldx4(252, sPf, 0)]
    side += ['buffer_load_dword v%d, v%d, %s, s%d offen sc1' % (vFv, vFa, S4(WS), sFo)]
    nse = opt.get('nse', 3)
    for o in side[:nse]:
        A(o)
    for w in range(4):
        A('s_waitcnt lgkmcnt(%d)' % (0 if prof else 3 - w))
        sel = 'op_sel:[0,%d%s] op_sel_hi:[1,%d%s]' % (w & 1, ',0' if w else '', w & 1, ',1' if w else '')
        if w == 0:
            A('v_pk_mul_f32 %s, %s, %s %s' % (v(vR2d, 2), v(vR2d, 2), v(vR2d + 8, 2), sel))
        else:
            A('v_pk_fma_f32 %s, %s, %s, %s %s' % (v(vR2d, 2), v(vR2d + 2 * w, 2), v(vR2d + 8 + (w & 2), 2), v(vR2d, 2), sel))
    cvt(vT0, vR2d)
    guard(vT0)
    A(st4(vT0, vL4, sPartA, ' sc1'))
    stamp('partst')
    A('s_waitcnt vmcnt(%d)' % (1 + kb_ + len(side[:nse])))
    stamp('vxok')
    pre = [st4(vSent, vL4, sMemW, loc),
           's_xor_b32 s%d, s%d, 0x8000' % (sQkvW, sQkvW),
           st4(vSent, vQst, sQkvW, loc), st4(vSent, vVst, sQkvW, loc)]
    pre = kxl[:nc] + side[nse:] + pre
    pre += ['s_xor_b32 s%d, s%d, 0x8000' % (sQkvR, sQkvR), 's_xor_b32 s%d, s%d, 0x8000' % (sQkvR2, sQkvR2),
            's_add_u32 s%d, s%d, 0x%x' % (sKvm, sKvm, SEG), 's_add_u32 s%d, s%d, 0x%x' % (sPartA, sPartA, SEG), 's_xor_b32 s%d, s%d, 0x4000' % (sMemW, sMemW),
            's_xor_b32 s%d, s%d, 0x4000' % (sMemR, sMemR),
            's_add_u32 s%d, s%d, 0x%x' % (sVx, sVx, SEG), 's_add_u32 s%d, s%d, 0x%x' % (sVx2, sVx2, SEG)]
    gpos = opt.get('gpos', 26)
    fill = {}
    for i, o in enumerate(pre):
        fill.setdefault(i, []).append(o)
    sl = ['s_memtime s[26:27]'] if prof else []
    if opt.get('dyn'):
        for p_ in range(17, 32, 2):
            fill.setdefault(p_ - 1, []).append('s_cmp_eq_u32 s%d, %d' % (sGp, p_))
            fill.setdefault(p_, []).extend(['s_cbranch_scc0 L_gp%d' % p_] + ld_part + ['L_gp%d:' % p_])
    else:
        fill.setdefault(gpos - opt.get('gd', 0), []).append(ld_part[0])
        fill.setdefault(gpos, []).extend(sl + ld_part[1:])
    vox(fill)
    zz = [o for o in zeros(vA, 24) + zeros(vT, 16) + zeros(MM, 4) if o not in zq]
    zz += ['s_nop 0'] * len(zq)
    zw = opt.get('zw', 0)
    kd = kxl[nc:nc + nd]
    for i in range(4):
        for o in zeros(vM + 4 * i, 4, '-1'):
            A(o)
        A(kd.pop(0) if kd and (i or nd > 3) else 's_nop 0')
    for o in kd:
        A(o)
    paced(vox_tail() + (zeros(vQ, 4, '-1') + zeros(vQ + 8, 4, '-1') + zeros(vKm, 8, '-1') if h2m else []) + zz[:zw])
    zz = zz[zw:]
    if lite and not prof:
        A('s_and_b32 s%d, s%d, %d' % (sA, sStep, 48 if opt.get('trs') else 3))
        A('s_cbranch_scc1 L_notr')
        A('s_memtime s[12:13]')
        A('s_memrealtime s[14:15]')
        A('s_%s_b32 s%d, s%d, 1' % ('lshl' if opt.get('trs') else 'lshr', sA, sStep))
        A('s_mov_b32 m0, s%d' % sA)
        A('s_waitcnt lgkmcnt(0)')
        A('v_writelane_b32 v%d, s%d, m0' % (vTr, sKn if opt.get('trs') else 12))
        A('s_add_u32 m0, s%d, 1' % sA)
        A('v_writelane_b32 v%d, s14, m0' % vTr)
        A.label('L_notr')
    if prof:
        A('s_waitcnt lgkmcnt(0)')
        A('s_sub_u32 s%d, s%d, %d' % (sA, sStep, opt.get('ts', 33)))
        A('s_cmp_lt_u32 s%d, 6' % sA)
        A('s_cbranch_scc0 L_notr')
        A('s_mul_i32 s%d, s%d, 9' % (sA, sA))
        A('s_add_u32 s%d, s%d, 8' % (sA, sA))
        for i in [8] + list(range(8)):
            A('s_mov_b32 m0, s%d' % sA)
            A('v_writelane_b32 v%d, s%d, m0' % (vTr, 12 + 2 * i))
            A('s_add_u32 s%d, s%d, 1' % (sA, sA))
        A.label('L_notr')
    A.label('L_h3')
    lo = vP
    A('s_waitcnt vmcnt(%d)' % (1 + nd))
    A('v_mfma_f32_16x16x32_bf16 %s, %s, %s, 0' % (v(lo, 4), v(vSel, 4), v(vPt, 4)))
    ops, cm = wchk([vPt, vPt + 4], vT0)
    for o in ([] if rx else ops[:2]):
        A(o)
    A('s_waitcnt vmcnt(%d)' % nd)
    A('v_mfma_f32_16x16x32_bf16 %s, %s, %s, %s' % (v(lo, 4), v(vSel, 4), v(vPt + 4, 4), v(lo, 4)))
    for o in (ops if rx else ops[2:]):
        A(o)
    A(cm)
    A('s_cbranch_vccnz L_r3')
    A.label('L_h3ok')
    stamp('gathok')
    cvt(vT0, lo)
    guard(vT0)
    A(st4(vT0, vL4, sMemW, loc))
    stamp('memst')
    A('s_add_u32 s%d, s%d, 1' % (sStep, sStep))
    A('s_bitcmp1_b64 %s, s%d' % (s(sLo, 2), sStep))
    A('s_cselect_b32 s%d, 0, 0x%x' % (sFo, OOB))
    A('s_add_u32 s%d, s%d, 0x%x' % (sPartR, sPartR, SEG))
    A('s_add_u32 s%d, s%d, 0x%x' % (sPartR2, sPartR2, SEG))
    z0 = opt.get('h1d', 20)
    zs = opt.get('h1s', 10)
    paced(zz[:z0]); zz = zz[z0:]
    for t in range(4):
        ld_mem(t)
        stamp('mi%d' % t)
        if t == 2:
            paced(zz); zz = []
            kvo = kv_ops('L_kvw')
            for o in kvo[:-1]:
                A(o)
        paced(zz[:zs]); zz = zz[zs:]
    A('s_cbranch_scc0 L_loop')
    A('s_branch L_kvw')
    if fc:
        fast_chains()
    poll_nodes()
    A.label('L_sp')
    A('s_cmp_eq_u32 s%d, 63' % sStep)
    A('s_cbranch_scc1 L_c_tail')
    A('s_mov_b32 s%d, 63' % sD)
    A.label('L_sp1')
    A(ld_flags)
    A('s_waitcnt vmcnt(0)')
    kv_check('L_sp2')
    assert nva <= 0 and not ke
    for n_ in (sKx, sKx2):
        A('s_sub_u32 s%d, s%d, 0x%x' % (n_, n_, OOB))
    A('s_sub_u32 s%d, s%d, 0x%x' % (sA, sPf, SEG))
    A(ldx4(252, sA, 0))
    for o in vxl + kxl + [ldx4(252, sPf, 0)]:
        A(o)
    for n_ in (sKx, sKx2, sVx, sVx2):
        A('s_add_u32 s%d, s%d, 0x%x' % (n_, n_, SEG))
    A('s_waitcnt vmcnt(9) lgkmcnt(0)')
    vox()
    paced(zeros(vT, 16) + vox_tail())
    tstamp(A, opt, 4, vT0, vT1, sA)
    A('s_branch L_spr')
    A.label('L_sp2')
    A('s_sleep 1')
    timeout_stub(A, 'L_sp1')
    hook(True)
    A.label('L_kvw')
    A(ld_flags)
    A('s_waitcnt vmcnt(0)')
    kv_check('L_kvw2')
    A('s_branch L_loop')
    A.label('L_kvw2')
    timeout_stub(A, 'L_kvw')
    if h2m:
        for fam, full, cont in (('A', 15, 'L_SA'), ('K', 12, 'L_SK')):
            for Sm in sorted(range(1, 16), key=lambda x: -bin(x).count('1')):
                if Sm & ~full:
                    continue
                ts = [t for t in range(4) if Sm >> t & 1]
                hook(True)
                for t in ts:
                    rest = Sm & ~(1 << t)
                    A.label('L_P%s%d_%d' % (fam, Sm, t))
                    A('s_waitcnt vmcnt(%d)' % opt.get('lim2', 4 if opt.get('split', 1) else 3))
                    ck(t)
                    A(cmpv(vT3))
                    A('s_cbranch_vccz %s' % ('L_P%s%d_%d' % (fam, rest, nxt(rest, t)) if rest else cont))
                    A.label('L_F%s%d_%d' % (fam, Sm, t))
                    A(qk[t])
                    cnt(sN2)
                timeout_stub(A, 'L_P%s%d_%d' % (fam, Sm, ts[0]))
                if len(ts) > 1:
                    hook()
        hook(True)
        A.label('L_SA')
        stamp('q1l'); stamp('q0ok'); stamp('k0w'); stamp('k1w'); stamp('k1l')
        mx(0, 0, True); ror(vQ); ror(vQ + 1)
        mx(1, 0, True); ror(vQ + 2); ror(vQ + 3)
        mx(0, 2); A(ld_v[0]); ror(vQ + 8); ror(vQ + 9)
        mx(1, 2); A(ld_v[1]); ror(vQ + 10); ror(vQ + 11)
        smm(0); smm(1)
        mx(0, 1); mx(0, 3); mx(1, 1); A(swm[0]); mx(1, 3); A(swm[1])
        for o in mxo:
            A(o)
        s_end()
        A('s_branch L_sj')
        hook()
        hook(True)
        A.label('L_SK')
        stamp('k1w'); stamp('k1l')
        for o in zeros(MM, 4):
            A(o)
        smm(0); smm(1)
        for o in mxo + swm:
            A(o)
        s_end()
        A('s_branch L_sj')
        hook()
    else:
        hook(True)
        A.label('L_r2')
        for o in order_q:
            A(o)
        cnt(sN2)
        timeout_stub(A, 'L_h2')
        hook(True)
        A.label('L_r2k')
        for o in order_k + zeros(MM, 4):
            A(o)
        cnt(sN2, 1024)
        timeout_stub(A, 'L_h2k')
        hook()
    hook(True)
    A.label('L_r2v')
    for o in ld_v:
        A(o)
    cnt(sN2, 1 << 20)
    A('s_waitcnt vmcnt(0)')
    for o in chk4(vVm, vT3) + chk4more(vVm + 4, vT3):
        A(o)
    A(cmpv(vT3))
    A('s_cbranch_vccz L_h2v')
    timeout_stub(A, 'L_r2v')
    hook()
    hook(True)
    A.label('L_r3')
    for o in ld_part:
        A(o)
    cnt(sN3)
    if opt.get('lim3', -1) < 0:
        if nd:
            A('s_waitcnt vmcnt(0)')
        timeout_stub(A, 'L_h3')
    A('s_waitcnt vmcnt(%d)' % max(opt.get('lim3', -1), 0))
    for o in chk4(vPt, vT0) + chk4more(vPt + 4, vT0):
        A(o)
    A(cmpv(vT0))
    A('v_mfma_f32_16x16x32_bf16 %s, %s, %s, 0' % (v(lo, 4), v(vSel, 4), v(vPt, 4)))
    A('v_mfma_f32_16x16x32_bf16 %s, %s, %s, %s' % (v(lo, 4), v(vSel, 4), v(vPt + 4, 4), v(lo, 4)))
    A('s_nop 6')
    A('s_cbranch_vccz L_h3ok')
    timeout_stub(A, 'L_r3')
    hook()
    A.label('L_loop_end')
    body = [re.sub(r'@HK(\d+)@', lambda m: 'L_hk%d' % (int(m.group(1)) + 4) if int(m.group(1)) + 4 < len(hooks) else 'L_hkret', l) for l in A.lines[loop_start:]]
    labs = [l[:-1] for l in body if l.endswith(':')]
    pat = re.compile(r'\b(' + '|'.join(labs) + r')\b')
    A.lines[loop_start:] = [l.replace('@LOC@', '') for l in body] + [pat.sub(r'\1_i', l).replace('@LOC@', ' sc1') for l in body]
    A.label('L_c_tail')
    A('s_add_u32 s%d, s%d, 2048' % (sKvm, sKvm))
    A('s_xor_b32 s%d, s%d, 0x2000' % (sKvm, sKvm))
    A('s_sub_u32 s%d, s%d, 2048' % (sKvm, sKvm))
    A(st4(vQK, vKst, sKvm, ' sc1'))
    if opt.get('split', 1):
        A('s_waitcnt lgkmcnt(0)')
        A('s_barrier')
        rd1(vR1v)
        red1(vVv)
    A(st4(vVv, vVst, sKvm, ' sc1'))
    if opt.get('diag'):
        A('s_cmp_lg_u32 s%d, 0' % sC)
        A('s_cbranch_scc1 L_dg')
        A('s_cmp_lg_u32 s%d, 0' % sW)
        A('s_cbranch_scc1 L_dg')
        dbg_mark(A, opt, 4, vT2, vT3)
        A('s_memtime s[78:79]')
        A('s_waitcnt lgkmcnt(0)')
        A('s_sub_u32 s78, s78, s98')
        A('s_sub_u32 s79, s96, s76')
        A('v_mov_b32 v%d, s78' % vT2)
        A('v_mov_b32 v%d, s79' % vT1)
        A('v_mov_b32 v%d, 0' % vT3)
        A('s_mov_b64 exec, 1')
        A('buffer_atomic_umax v%d, v%d, %s, 0 offen offset:36 sc1' % (vT2, vT3, S4(DBG)))
        A('buffer_atomic_umax v%d, v%d, %s, 0 offen offset:12 sc1' % (vT1, vT3, S4(DBG)))
        A('v_not_b32 v%d, v%d' % (vT2, vT2))
        A('buffer_atomic_umax v%d, v%d, %s, 0 offen offset:40 sc1' % (vT2, vT3, S4(DBG)))
        A('s_mov_b64 exec, -1')
        A.label('L_dg')
    if opt.get('hold') == 1:
        hold_after(A, 40)
    if opt.get('hold') == 2:
        hold_after(A, 170, 96)
    tstamp(A, opt, 7, vT2, vT3, sA)
    if lite:
        A('s_memtime s[12:13]')
        A('s_memrealtime s[14:15]')
        A('s_waitcnt lgkmcnt(0)')
        A('s_sub_u32 s12, s12, s96')
        A('s_sub_u32 s14, s14, s98')
        A('v_mov_b32 v%d, s12' % (vM + 3))
        A('v_mov_b32 v%d, s14' % (vM + 4))
        A('s_lshl_b32 s%d, s%d, 4' % (sA, sG))
        A('s_add_u32 s%d, s%d, s%d' % (sA, sA, sC))
        A('s_lshl_b32 s%d, s%d, 2' % (sA, sA))
        A('s_add_u32 s%d, s%d, s%d' % (sA, sA, sW))
        A('s_lshl_b32 s%d, s%d, 6' % (sA, sA))
        A('s_add_u32 s%d, s%d, 0x%x' % (sA, sA, PROF))
        A('v_mov_b32 v%d, s%d' % (vM, sN1))
        A('v_mov_b32 v%d, s%d' % (vM + 1, sN2))
        A('v_mov_b32 v%d, s%d' % (vM + 2, sN3))
        A('v_mov_b32 v%d, 0' % vT0)
        for i in range(9, 14):
            A('buffer_store_dword v%d, v%d, %s, s%d offen offset:%d' % (vM + i - 9, vT0, S4(WS), sA, 4 * i))
    if lite:
        A('v_mov_b32 v%d, s96' % vT1)
        A('buffer_store_dword v%d, v%d, %s, s%d offen offset:56' % (vT1, vT0, S4(WS), sA))
        A('v_mov_b32 v%d, s98' % vT2)
        A('buffer_store_dword v%d, v%d, %s, s%d offen offset:60' % (vT2, vT0, S4(WS), sA))
        A('s_sub_u32 s%d, s%d, 0x%x' % (sA, sA, PROF))
        A('s_lshl_b32 s%d, s%d, 2' % (sA, sA))
        A('s_add_u32 s%d, s%d, 0x%x' % (sA, sA, PROF + MB))
        A('buffer_store_dword v%d, v%d, %s, s%d offen' % (vTr, vL4, S4(WS), sA))
    A('s_waitcnt vmcnt(0)')
    A('s_endpgm')


def build(opt):
    A = Asm()
    prologue(A, opt)
    chain(A, opt)
    for kind in 'kvq':
        proj(A, opt, kind)
    orole(A, opt)
    A.label('L_code1')
    A('s_endpgm')
    body, nn = fix_hazards(A.lines, verbose=True)
    hdr = open('cdna_kernels/%s.s.ref' % NAME).read().split('\n')
    hdr = [l for l in hdr if l.startswith(';') and '@launch' not in l]
    hdr.append('; opts ' + ' '.join('%s=%s' % kv for kv in opt.items()))
    if opt.get('prof'):
        hdr.append('; marks=' + opt.get('marks', 'm0ok,st1end,qkvst,q0ok,Send,st2end,partst') + ',gath,gathok')
    out = hdr + ['; @launch grid=(256,1,1) block=(256,1,1) lds=%d' % opt.get('lds', 163840),
                 '.amdgcn_target "amdgcn-amd-amdhsa--gfx950"', '.text', '.globl %s_kernel' % NAME, '.p2align 8',
                 '.type %s_kernel,@function' % NAME, '%s_kernel:' % NAME]
    out += body
    out += ['.section .rodata,"a"', '.p2align 6', '.amdhsa_kernel %s_kernel' % NAME,
            '  .amdhsa_next_free_vgpr 512', '  .amdhsa_next_free_sgpr 102', '  .amdhsa_accum_offset 256',
            '  .amdhsa_group_segment_fixed_size 0', '  .amdhsa_kernarg_size 128', '  .amdhsa_user_sgpr_count 2',
            '  .amdhsa_user_sgpr_kernarg_segment_ptr 1', '  .amdhsa_system_sgpr_workgroup_id_x 1',
            '  .amdhsa_float_denorm_mode_32 3', '.end_amdhsa_kernel', '']
    return '\n'.join(out), nn


if __name__ == '__main__':
    opt = {}
    outp = sys.argv[1]
    for a_ in sys.argv[2:]:
        k, val = a_.split('=')
        opt[k] = int(val) if val.lstrip('-').isdigit() else val
    txt, nn = build(opt)
    open(outp, 'w').write(txt)
    print('wrote', outp, 'nops inserted:', nn)
```

```python
import struct, math
from asmlib import *
from layout import *

NAME = 'gated_mix__memory_aug_recurrent_mem_tr__moe_arch_mod__prompt'


def f32(x):
    return '0x%08x' % struct.unpack('<I', struct.pack('<f', x))[0]


P_X, P_MEM0, P_WQ, P_WK, P_WV, P_WO = 64, 66, 68, 70, 72, 74
P_WR, P_WG, P_WU, P_WD, P_GW, P_OUT, P_DBG, P_WS = 80, 82, 84, 86, 88, 90, 92, 94
WS, DBG = 4, 8
SRD_A, SRD_B, SRD_C, SRD_D, SRD_E = 12, 16, 20, 24, 28
sW, sG, sC, sTO = 32, 33, 34, 35
sX = 100
sPure = 101
NPURE = 32
sP = 62
VOTE = 0xe4
NVOTE = 16
LTOP = 163832
sR = 63
sT0 = 76
TIMEOUT = 1 << 20
LOG2E = math.log2(math.e)


def srd(A, d, p, nbytes):
    A('s_mov_b32 s%d, s%d' % (d, p))
    A('s_and_b32 s%d, s%d, 0xffff' % (d + 1, p + 1))
    A('s_mov_b32 s%d, 0x%x' % (d + 2, nbytes))
    A('s_mov_b32 s%d, 0x20000' % (d + 3))


def S4(d):
    return s(d, 4)


def timeout_stub(A, back):
    A('s_sub_u32 s%d, s%d, 1' % (sTO, sTO))
    A('s_cbranch_scc0 %s' % back)
    A('s_endpgm')


def sum8(A, vx, sa, sb):
    A('v_readlane_b32 s%d, v%d, 0' % (sa, vx))
    for i in range(1, 8):
        A('v_readlane_b32 s%d, v%d, %d' % (sb, vx, i))
        A('s_add_u32 s%d, s%d, s%d' % (sa, sa, sb))


def init_load(A, t0, t1):
    A('v_lshlrev_b32 v%d, 5, v0' % t1)
    A('v_min_u32 v%d, 0x%x, v%d' % (t1, VOTE, t1))
    A('v_cmp_eq_u32 vcc, 9, v0')
    A('v_cndmask_b32 v%d, 0, 4, vcc' % t0)
    A('v_add_u32 v%d, v%d, v%d' % (t1, t1, t0))
    A('buffer_load_dword v%d, v%d, %s, 0 offen sc1' % (t0, t1, S4(DBG)))


def arrived(A, t0, t1, sa, sb):
    A('v_bcnt_u32_b32 v%d, v%d, 0' % (t1, t0))
    sum8(A, t1, sa, sb)
    A('v_readlane_b32 s%d, v%d, 9' % (sb, t0))
    A('s_add_u32 s%d, s%d, s%d' % (sa, sa, sb))


def confirm(A, opt, t0, t1, sa):
    L = A.newlabel('L_cf')
    A('v_mov_b32 v%d, %d' % (t1, LTOP))
    A('s_cmp_lg_u32 s%d, 0' % sW)
    A('s_cbranch_scc1 ' + L)
    A('v_readfirstlane_b32 s%d, v254' % sa)
    A('v_mov_b32 v%d, s%d' % (t0, sa))
    A('ds_write_b32 v%d, v%d' % (t1, t0))
    A('s_waitcnt lgkmcnt(0)')
    A.label(L)
    A('s_barrier')
    A('ds_read_b32 v%d, v%d' % (t0, t1))
    A('s_waitcnt lgkmcnt(0)')
    A('v_readfirstlane_b32 s%d, v%d' % (sa, t0))
    A('s_bitcmp1_b32 s%d, s%d' % (sa, sR))
    A('s_cbranch_scc1 L_redo')
    if opt.get('prof'):
        A('s_mov_b32 s78, s76')
        tstamp(A, opt, 8, t0, t1, sa, now=False)
        tstamp(A, opt, 0, t0, t1, sa)


def near(A, r, tmp):
    A('s_lshr_b32 s%d, s%d, 8' % (tmp, r))
    A('s_xor_b32 s%d, s%d, s%d' % (tmp, tmp, sP))
    A('s_and_b32 s%d, s%d, 0x2000' % (tmp, tmp))
    A('s_xor_b32 s%d, s%d, s%d' % (r, r, tmp))


def wait_init(A, t0, t1, sa, sb, issued=False):
    L, L2 = A.newlabel('L_wi'), A.newlabel('L_wiok')
    L3 = A.newlabel('L_wi')
    if issued:
        A('s_branch ' + L3)
    A.label(L)
    init_load(A, t0, t1)
    if issued != 2:
        A.label(L3)
    A('s_waitcnt vmcnt(0)')
    if issued == 2:
        A.label(L3)
    arrived(A, t0, t1, sa, sb)
    A('v_readlane_b32 s%d, v%d, 8' % (sP, t0))
    A('s_lshr_b32 s%d, s%d, 16' % (sb, sP))
    A('s_add_u32 s%d, s%d, s%d' % (sa, sa, sb))
    A('s_cmp_ge_u32 s%d, %d' % (sa, 256 + NVOTE))
    A('s_cbranch_scc1 %s' % L2)
    A('s_sleep 8')
    timeout_stub(A, L)
    A.label(L2)
    A('s_and_b32 s%d, s%d, 0xffff' % (sP, sP))
    A('s_cmp_gt_u32 s%d, %d' % (sP, NVOTE // 2))
    A('s_cselect_b32 s%d, 0x2000, 0' % sP)
    A('s_lshr_b32 s%d, s%d, 5' % (sa, sR))
    A('v_readlane_b32 s%d, v%d, s%d' % (sPure, t1, sa))


def poll_data(A, loads, regs, tmp, sleep):
    L, L2 = A.newlabel('L_pd'), A.newlabel('L_pdok')
    A.label(L)
    for o in loads:
        A(o)
    A('s_waitcnt vmcnt(0)')
    maxall(A, regs, tmp)
    A('v_cmp_eq_u32 vcc, -1, v%d' % tmp)
    A('s_cbranch_vccz %s' % L2)
    if sleep:
        A('s_sleep %d' % sleep)
    timeout_stub(A, L)
    A.label(L2)


def maxall(A, regs, tmp):
    regs = list(regs)
    A('v_max_u32 v%d, v%d, v%d' % (tmp, regs[0], regs[-1]))
    regs = regs[1:-1]
    while regs:
        x = regs[:2]
        regs = regs[2:]
        A('v_max3_u32 v%d, v%d, v%d, v%d' % (tmp, tmp, x[0], x[-1]))


def wait_flags(A, vf, vaddr, need, sleep=1, atomic=False):
    L, L2 = A.newlabel('L_wf'), A.newlabel('L_wfok')
    A.label(L)
    if atomic:
        A('s_mov_b64 exec, 0xff')
        A('v_mov_b32 v%d, 0' % vf)
        A('buffer_atomic_add v%d, v%d, %s, 0 offen sc0 sc1' % (vf, vaddr, S4(WS)))
        A('s_mov_b64 exec, -1')
    else:
        A('buffer_load_dword v%d, v%d, %s, 0 offen sc1' % (vf, vaddr, S4(WS)))
    A('s_waitcnt vmcnt(0)')
    A('v_cmp_gt_i32 vcc, %s, v%d' % (need, vf))
    A('s_cbranch_vccz %s' % L2)
    if sleep:
        A('s_sleep %d' % sleep)
    timeout_stub(A, L)
    A.label(L2)


def lane0_addr(A, dst, sval, tmp):
    A('v_mov_b32 v%d, 0x%x' % (tmp, OOB))
    A('v_mov_b32 v%d, s%d' % (dst, sval))
    A('v_cmp_eq_u32 vcc, 0, v0')
    A('v_cndmask_b32 v%d, v%d, v%d, vcc' % (dst, tmp, dst))


def bits(A, dst, terms, tmp, base=None):
    first = True
    for (si, wd, so) in terms:
        A('v_bfe_u32 v%d, v0, %d, %d' % (tmp, si, wd))
        if first:
            A('v_lshlrev_b32 v%d, %d, v%d' % (dst, so, tmp))
            first = False
        else:
            A('v_lshl_add_u32 v%d, v%d, %d, v%d' % (dst, tmp, so, dst))
    if base is not None:
        A('v_add_u32 v%d, %s, v%d' % (dst, base, dst))


def tstamp(A, opt, slot, t0, t1, sa, now=True):
    if not opt.get('prof'):
        return
    if now:
        A('s_memrealtime s[78:79]')
    A('s_lshl_b32 s%d, s%d, 2' % (sa, sR))
    A('s_add_u32 s%d, s%d, s%d' % (sa, sa, sW))
    A('s_lshl_b32 s%d, s%d, 6' % (sa, sa))
    A('s_add_u32 s%d, s%d, 0x%x' % (sa, sa, PROF + 2 * MB + slot * 4))
    A('s_waitcnt lgkmcnt(0)')
    A('v_mov_b32 v%d, s78' % t0)
    A('v_mov_b32 v%d, 0' % t1)
    A('buffer_store_dword v%d, v%d, %s, s%d offen' % (t0, t1, S4(WS), sa))
    A('s_memtime s[78:79]')
    A('s_add_u32 s%d, s%d, 0x100000' % (sa, sa))
    A('s_waitcnt lgkmcnt(0)')
    A('v_mov_b32 v%d, s78' % t0)
    A('buffer_store_dword v%d, v%d, %s, s%d offen' % (t0, t1, S4(WS), sa))


def cap_vm(A, start, already=8):
    out, n, done = [], already, False
    for l in A.lines[start:]:
        t = l.strip()
        if t.startswith('s_waitcnt') and 'vmcnt' in t:
            done = True
        if not done and t.startswith('buffer_'):
            n += 1
            if n > 60:
                out.append('    s_waitcnt vmcnt(59)')
        out.append(l)
    A.lines[start:] = out


def help_kv(A, opt, ptr, sh, t0, t1, sa, sb, between=None):
    hk = opt.get('hk', 4)
    mod = ' nt' if opt.get('hnt', 0) else ''
    srd(A, SRD_C, P_X, 4 * MB)
    A('s_and_b32 s%d, s%d, 15' % (sa, sR))
    A('s_lshl_b32 s%d, s%d, 2' % (sa, sa))
    A('s_add_u32 s%d, s%d, s%d' % (sa, sa, sW))
    A('s_lshl_b32 s%d, s%d, 11' % (sa, sa))
    bits(A, t1, [(0, 4, 7), (4, 1, 17), (5, 1, 30)], t0)
    A('buffer_load_dword v252, v%d, %s, s%d offen' % (t1, S4(SRD_C), sa))
    srd(A, SRD_C, ptr, 8 * MB)
    A('s_and_b32 s%d, s%d, 3' % (sa, sh))
    A('s_lshl_b32 s%d, s%d, 2' % (sa, sa))
    A('s_add_u32 s%d, s%d, s%d' % (sa, sa, sW))
    A('s_lshl_b32 s%d, s%d, 16' % (sa, sa))
    A('s_and_b32 s%d, s%d, 28' % (sb, sh))
    A('s_lshl_b32 s%d, s%d, 8' % (sb, sb))
    A('s_add_u32 s%d, s%d, s%d' % (sb, sb, sa))
    bits(A, t1, [(0, 3, 13), (3, 3, 20)], t0)
    A('buffer_load_dword v252, v%d, %s, s%d offen offset:384' % (t1, S4(SRD_C), sb))
    A('s_cmp_ge_u32 s%d, 28' % sh)
    A('s_cselect_b32 s%d, s%d, 0x%x' % (sb, sb, OOB))
    A('buffer_load_dword v252, v%d, %s, s%d offen offset:896' % (t1, S4(SRD_C), sb))
    if between:
        between()
    A('s_lshl_b32 s%d, s%d, 8' % (sa, sh))
    bits(A, t1, [(1, 3, 13), (4, 2, 20), (0, 1, 7)], t0)
    A('v_lshl_add_u32 v%d, s%d, 16, v%d' % (t1, sW, t1))
    A('s_add_u32 s%d, s%d, 0x%x' % (sa, sa, 0x400000 + (4 - hk) * 0x40000))
    for i in range(hk):
        A('buffer_load_dword v252, v%d, %s, s%d offen%s' % (t1, S4(SRD_C), sa, mod))
        A('s_add_u32 s%d, s%d, 0x40000' % (sa, sa))


def dbg_mark(A, opt, word, t0, t1):
    if not opt.get('diag'):
        return
    A('s_memrealtime s[78:79]')
    A('s_waitcnt lgkmcnt(0)')
    A('s_sub_u32 s78, s78, s76')
    A('v_mov_b32 v%d, s78' % t0)
    A('v_mov_b32 v%d, %d' % (t1, 4 * word))
    A('s_mov_b64 exec, 1')
    A('buffer_atomic_umax v%d, v%d, %s, 0 offen sc1' % (t0, t1, S4(DBG)))
    A('s_mov_b64 exec, -1')
    A('s_waitcnt vmcnt(0)')


def diag_hold(A, opt):
    if opt.get('diag', 0) > 1:
        L = A.newlabel('L_hold')
        A.label(L)
        A('s_memrealtime s[78:79]')
        A('s_waitcnt lgkmcnt(0)')
        A('s_sub_u32 s78, s78, s76')
        A('s_cmp_lt_u32 s78, %d' % (opt['diag'] * 100))
        A('s_cbranch_scc1 ' + L)


def touch_code(A, lab0, lab1, sidx, d, tmp):
    L = A.newlabel('L_pc')
    A('s_getpc_b64 s[%d:%d]' % (d, d + 1))
    A.label(L)
    A('s_add_u32 s%d, s%d, %s-%s' % (d, d, lab0, L))
    A('s_addc_u32 s%d, s%d, 0' % (d + 1, d + 1))
    A('s_and_b32 s%d, s%d, 0xffff' % (d + 1, d + 1))
    A('s_mov_b32 s%d, %s-%s' % (d + 2, lab1, lab0))
    A('s_mov_b32 s%d, 0x20000' % (d + 3))
    A('v_lshlrev_b32 v%d, 7, v0' % tmp)
    A('v_lshl_add_u32 v%d, s%d, 13, v%d' % (tmp, sidx, tmp))
    A('buffer_load_dword v253, v%d, %s, 0 offen' % (tmp, S4(d)))


def hold_after(A, us, ref=None):
    L = A.newlabel('L_hold')
    if ref is None:
        A('s_memrealtime s[76:77]')
        ref = 76
    A.label(L)
    A('s_sleep 8')
    A('s_memrealtime s[78:79]')
    A('s_waitcnt lgkmcnt(0)')
    A('s_sub_u32 s78, s78, s%d' % ref)
    A('s_cmp_lt_u32 s78, %d' % (us * 100))
    A('s_cbranch_scc1 ' + L)


def touch_pages(A, opt, sregs, t0, sa, vaddr=None):
    if not opt.get('tp', 0):
        return 0
    A('v_mov_b32 v%d, 0' % t0)
    for r in sregs:
        A('s_or_b32 s%d, s%d, 0x1fff00' % (sa, r))
        A('buffer_load_dword v253, v%d, %s, s%d offen' % (t0, S4(WS), sa))
    return len(sregs)


def mark(A, opt, i):
    if opt.get('prof'):
        A('s_memrealtime s[%d:%d]' % (80 + 2 * i, 81 + 2 * i))


def mark_dump(A, opt, n, slot0, t0, t1, sa):
    if opt.get('prof'):
        A('s_waitcnt lgkmcnt(0)')
        for i in range(n):
            A('s_mov_b32 s78, s%d' % (80 + 2 * i))
            tstamp(A, opt, slot0 + i, t0, t1, sa, now=False)
```

```python
from common import *
from workers import vote, kv_first


def orole(A, opt):
    S = Alloc(36, 62)
    sI = S('i')
    sA, sB, sCc, sD, sSeg, sBase, sRot, sHi, sPrev, sCnt = [S(n) for n in 'a b cc d seg base rot hi prev cnt'.split()]
    sIdx = S('idx', 8)
    cvt = lambda d, x, y: A('v_cvt_pk_bf16_f32 v%d, v%d, v%d' % (d, x, y))

    def rnd2(x, y, t):
        cvt(t, x, y)
        A('v_lshlrev_b32 v%d, 16, v%d' % (x, t))
        A('v_and_b32 v%d, s%d, v%d' % (y, sHi, t))

    def sigmoid(d, x):
        A('v_mul_f32 v%d, %s, v%d' % (d, f32(-LOG2E), x))
        A('v_exp_f32 v%d, v%d' % (d, d))
        A('v_add_f32 v%d, 1.0, v%d' % (d, d))
        A('v_rcp_f32 v%d, v%d' % (d, d))

    def touch_slow(t0, d):
        if not opt.get('tw', 1):
            return
        srd(A, d, P_WO, 8 * MB)
        A('s_and_b32 s%d, s%d, 7' % (sA, sI))
        A('s_lshl_b32 s%d, s%d, 3' % (sB, sW))
        A('s_add_u32 s%d, s%d, s%d' % (sA, sA, sB))
        A('s_lshl_b32 s%d, s%d, 18' % (sA, sA))
        A('s_and_b32 s%d, s%d, 8' % (sB, sI))
        A('s_lshl_b32 s%d, s%d, 7' % (sB, sB))
        A('s_add_u32 s%d, s%d, s%d' % (sA, sA, sB))
        A('s_add_u32 s%d, s%d, 0x20000' % (sB, sA))
        A('v_lshlrev_b32 v%d, 11, v0' % t0)
        A('buffer_load_dword v255, v%d, %s, s%d offen offset:384' % (t0, S4(d), sA))
        A('buffer_load_dword v255, v%d, %s, s%d offen offset:384' % (t0, S4(d), sB))

    V = Alloc(1, 252)
    vL16, vL4, vFl, vKey, vRaw = [V(n) for n in 'l16 l4 fl key raw'.split()]
    t0, t1, t2, t3, t4, t5 = [V('t%d' % i) for i in range(6)]
    vAcc = V('acc', 8, 4)
    vPm = V('perm', 32, 4)
    NB = 6
    vRing = V('ring', 32 * NB, 4)
    A.label('L_o')
    cap0 = len(A.lines)

    def voting():
        A('s_waitcnt vmcnt(0)')
        confirm(A, opt, t0, t1, sA)
        vote(A, sI, t0, t1, t2, sA, sB, sD, sSeg, sBase)
        tstamp(A, opt, 1, t0, t1, sA)
    help_kv(A, opt, P_WV, sI, t0, t1, sA, sB, voting)
    srd(A, SRD_A, P_WR, 2048)
    srd(A, SRD_B, P_X, 4 * MB)
    srd(A, SRD_C, P_GW, 2048)
    srd(A, SRD_D, P_WG, 7 * MB)
    srd(A, SRD_E, P_WU, 7 * MB)
    A('s_mov_b32 s%d, 0xffff0000' % sHi)
    A('v_lshlrev_b32 v%d, 4, v0' % vL16)
    A('v_lshlrev_b32 v%d, 2, v0' % vL4)
    if opt.get('chainonly'):
        A('s_endpgm')
    for i in range(opt.get('odl', 0)):
        A('s_sleep 32')
    for i in range(2):
        A('buffer_load_dwordx4 %s, v%d, %s, 0 offen offset:%d' % (v(vPm + 4 * i, 4), vL16, S4(SRD_A), 1024 * i))
    for i in range(2):
        A('buffer_load_dwordx4 %s, v%d, %s, 0 offen offset:%d' % (v(vPm + 8 + 4 * i, 4), vL16, S4(SRD_C), 1024 * i))
    bits(A, t2, [(0, 4, 11), (4, 2, 4)], t0)
    A('s_lshl_b32 s%d, s%d, 2' % (sA, sI))
    A('s_add_u32 s%d, s%d, s%d' % (sA, sA, sW))
    A('s_lshl_b32 s%d, s%d, 4' % (sD, sA))
    A('s_lshl_b32 s%d, s%d, 15' % (sA, sA))
    for ks in range(32):
        A('buffer_load_dwordx4 %s, v%d, %s, s%d offen offset:%d' % (a(4 * ks, 4), t2, S4(SRD_B), sA, 64 * ks))
    A('v_lshrrev_b32 v%d, 4, v0' % t0)
    A('v_mul_u32_u24 v%d, %d, v%d' % (t0, 8 * 7168, t0))
    A('v_and_b32 v%d, 15, v0' % t3)
    A('v_lshl_add_u32 v%d, v%d, 4, v%d' % (vRaw, t3, t0))
    A('s_cmp_lt_u32 s%d, 28' % sI)
    A('s_cselect_b32 s%d, 0, 0x%x' % (sB, OOB))
    A('v_add_u32 v%d, s%d, v%d' % (vRaw, sB, vRaw))
    A('s_mul_i32 s%d, s%d, %d' % (sBase, sW, 256 * 7168))
    A('s_lshl_b32 s%d, s%d, 8' % (sA, sI))
    A('s_add_u32 s%d, s%d, s%d' % (sBase, sBase, sA))

    def batch(b):
        for i in range(8):
            A('s_add_u32 s%d, s%d, 0x%x' % (sA, sBase, (32 * (b >> 1) + i) * 7168))
            A('buffer_load_dwordx4 %s, v%d, %s, s%d offen%s' % (v(vRing + 32 * (b % NB) + 4 * i, 4), vRaw, S4((SRD_D, SRD_E)[b & 1]), sA, ' nt' if opt.get('nt', 31) & 4 else ''))
    early = not opt.get('owait')
    if early:
        batch(0); batch(1)
    A('s_lshl_b32 s%d, s%d, 12' % (sA, sW))
    A('v_add_u32 v%d, s%d, v%d' % (t3, sA, vL16))
    bits(A, t4, [(0, 1, 11), (4, 2, 4)], t0, 's%d' % sA)
    A('s_waitcnt vmcnt(%d)' % (48 if early else 32))
    for i in range(4):
        A('ds_write_b128 v%d, %s offset:%d' % (t3, v(vPm + 4 * i, 4), 1024 * i))
    A('s_waitcnt vmcnt(%d) lgkmcnt(0)' % (16 if early else 0))
    for k0 in range(0, 32, 8):
        for ks in range(k0, k0 + 8):
            A('ds_read_b128 %s, v%d offset:%d' % (v(vPm + 4 * (ks & 7), 4), t4, 64 * ks))
        A('s_waitcnt lgkmcnt(0)')
        for ks in range(k0, k0 + 8):
            A('v_mfma_f32_16x16x32_bf16 %s, %s, %s, %s' % (v(vAcc, 4), v(vPm + 4 * (ks & 7), 4), a(4 * ks, 4), v(vAcc, 4) if ks else '0'))
    rnd2(vAcc + 1, vAcc, t0)
    sigmoid(t1, vAcc + 1)
    A('v_ashrrev_i32 v%d, 31, v%d' % (t2, vAcc))
    A('v_or_b32 v%d, 0x80000000, v%d' % (t2, t2))
    cvt(t1, t1, t1)
    A('v_and_b32 v%d, s%d, v%d' % (t1, sHi, t1))
    A('v_xor_b32 v%d, v%d, v%d' % (t2, t2, vAcc))
    A('s_sub_u32 s%d, 2047, s%d' % (sA, sD))
    A('v_sub_u32 v%d, s%d, v0' % (t3, sA))
    A('v_and_or_b32 v%d, v%d, s%d, v%d' % (t2, t2, sHi, t3))
    A('v_mov_b32 v%d, 0x%x' % (t3, OOB))
    A('v_cmp_gt_u32 vcc, 16, v0')
    A('v_cndmask_b32 v%d, v%d, v%d, vcc' % (t3, t3, vL4))
    wait_init(A, t0, t4, sA, sB)
    A('s_lshl_b32 s%d, s%d, 2' % (sA, sD))
    A('s_add_u32 s%d, s%d, 0x%x' % (sB, sA, KEYS))
    A('s_add_u32 s%d, s%d, 0x%x' % (sA, sA, GATE))
    A('buffer_store_dword v%d, v%d, %s, s%d offen sc1' % (t1, t3, S4(WS), sA))
    A('s_waitcnt vmcnt(0)')
    A('buffer_store_dword v%d, v%d, %s, s%d offen sc1' % (t2, t3, S4(WS), sB))
    for b in range(2, NB if early else 2):
        batch(b)
    A('s_mov_b32 s%d, 0x%x' % (sA, KEYS))
    A('s_mov_b32 s%d, 0x%x' % (sB, KEYS + 4096))
    A('s_waitcnt vmcnt(%d)' % (16 if early else 0))
    poll_data(A, ['buffer_load_dwordx4 %s, v%d, %s, s%d offen offset:%d sc1' % (v(vPm + 4 * i, 4), vL16, S4(WS), (sA, sB)[i >> 2], 1024 * (i & 3)) for i in range(8)],
              range(vPm, vPm + 32), t0, 16)
    tstamp(A, opt, 3, t0, t1, sA)
    if opt.get('cw', 1) > 1:
        touch_code(A, 'L_top', 'L_code1', sW, SRD_C, t0)
    A('s_mov_b32 s%d, 0' % sPrev)
    A('s_mov_b32 s%d, 0' % sCc)
    A('v_mov_b32 v%d, 0' % vKey)
    A.label('L_top')
    A('v_mov_b32 v%d, 0' % t0)
    for i in range(0, 32, 2):
        A('v_subrev_u32 v%d, s%d, v%d' % (t1, sPrev, vPm + i))
        A('v_subrev_u32 v%d, s%d, v%d' % (t2, sPrev, vPm + i + 1))
        A('v_max3_u32 v%d, v%d, v%d, v%d' % (t0, t0, t1, t2))
    for sh in (8, 4, 2, 1):
        A('v_max_u32_dpp v%d, v%d, v%d row_ror:%d row_mask:0xf bank_mask:0xf' % (t0, t0, t0, sh))
    for sw in ('v_permlane32_swap_b32', 'v_permlane16_swap_b32'):
        A('v_mov_b32 v%d, v%d' % (t1, t0))
        A('%s v%d, v%d' % (sw, t0, t1))
        A('v_max_u32 v%d, v%d, v%d' % (t0, t0, t1))
    A('v_readfirstlane_b32 s%d, v%d' % (sA, t0))
    A('s_mov_b32 m0, s%d' % sCc)
    A('s_add_u32 s%d, s%d, s%d' % (sPrev, sPrev, sA))
    A('v_writelane_b32 v%d, s%d, m0' % (vKey, sPrev))
    A('s_add_u32 s%d, s%d, 1' % (sCc, sCc))
    A('s_cmp_lt_u32 s%d, 8' % sCc)
    A('s_cbranch_scc1 L_top')
    bits(A, t1, [(0, 3, 2)], t0)
    A('ds_bpermute_b32 v%d, v%d, v%d' % (t2, t1, vKey))
    A('s_waitcnt lgkmcnt(0)')
    A('v_and_b32 v%d, 0x7ff, v%d' % (t2, t2))
    A('v_sub_u32 v%d, 2047, v%d' % (t2, t2))
    A('v_lshlrev_b32 v%d, 11, v%d' % (t2, t2))
    A('v_lshrrev_b32 v%d, 4, v0' % t0)
    A('v_lshl_add_u32 v%d, v%d, 4, v%d' % (t2, t0, t2))
    A('s_lshl_b32 s%d, s%d, 9' % (sA, sW))
    for ks in range(8):
        A('buffer_load_dwordx4 %s, v%d, %s, s%d offen offset:%d' % (a(128 + 4 * ks, 4), t2, S4(SRD_B), sA, 64 * ks))
    A('s_mov_b32 s%d, 0x05040100' % sCc)
    A('s_mov_b32 s%d, 0x07060302' % sD)
    A('s_waitcnt vmcnt(0)')
    if not early:
        kv_first(A, sI, t0, t1, sA, sB)
        NB = 3
        for b in range(NB):
            batch(b)
    for b in range(16):
        if b >= NB or not early:
            A('s_waitcnt vmcnt(%d)' % (8 * min(NB - 1, 15 - b)))
        r0 = vRing + 32 * (b % NB)
        for t in range(8):
            for p in range(4):
                A('v_perm_b32 v%d, v%d, v%d, s%d' % (vPm + 4 * t + p, r0 + 4 * (2 * p + 1) + (t >> 1), r0 + 4 * (2 * p) + (t >> 1), (sCc, sD)[t & 1]))
            if t:
                acc = a(160 + 32 * (b & 1) + 4 * (t - 1), 4)
                A('v_mfma_f32_16x16x32_bf16 %s, %s, %s, %s' % (acc, a(128 + 4 * (b >> 1), 4), v(vPm + 4 * (t - 1), 4), acc if b > 1 else '0'))
        if b + NB < 16:
            batch(b + NB)
        acc = a(160 + 32 * (b & 1) + 28, 4)
        A('v_mfma_f32_16x16x32_bf16 %s, %s, %s, %s' % (acc, a(128 + 4 * (b >> 1), 4), v(vPm + 28, 4), acc if b > 1 else '0'))
    A('s_lshl_b32 s%d, s%d, 14' % (sA, sW))
    A('v_add_u32 v%d, s%d, v%d' % (t3, sA, vL16))
    A('s_barrier')
    for i in range(16):
        A('ds_write_b128 v%d, %s offset:%d' % (t3, a(160 + 4 * i, 4), 1024 * i))
        if i == 7:
            A('s_waitcnt lgkmcnt(0)')
    A('s_and_b32 s%d, s%d, 1' % (sA, sW))
    A('s_lshl_b32 s%d, s%d, 8' % (sA, sA))
    A('s_lshr_b32 s%d, s%d, 1' % (sB, sW))
    A('s_lshl_b32 s%d, s%d, 3' % (sB, sB))
    A('s_add_u32 s%d, s%d, s%d' % (sA, sA, sB))
    bits(A, t3, [(0, 2, 11), (2, 4, 4)], t0, 's%d' % sA)
    A('s_waitcnt lgkmcnt(0)')
    A('s_barrier')
    for m in range(2):
        for tt in range(2):
            for wv in range(4):
                A('ds_read_b64 %s, v%d offset:%d' % (v(vPm + ((m * 2 + tt) * 4 + wv) * 2, 2), t3, wv * 16384 + m * 8192 + tt * 1024))
        A('s_waitcnt lgkmcnt(0)')
    for q in range(4):
        b0 = vPm + 8 * q
        A('v_pk_add_f32 %s, %s, %s' % (v(b0, 2), v(b0, 2), v(b0 + 2, 2)))
        A('v_pk_add_f32 %s, %s, %s' % (v(b0 + 4, 2), v(b0 + 4, 2), v(b0 + 6, 2)))
        A('v_pk_add_f32 %s, %s, %s' % (v(b0, 2), v(b0, 2), v(b0 + 4, 2)))
        rnd2(b0, b0 + 1, t0)
    for tt in range(2):
        b0 = vPm + 8 * tt
        for j in range(2):
            sigmoid(b0 + 2 + j, b0 + j)
            A('v_mul_f32 v%d, v%d, v%d' % (b0 + j, b0 + j, b0 + 2 + j))
        rnd2(b0, b0 + 1, t0)
        for j in range(2):
            A('v_mul_f32 v%d, v%d, v%d' % (b0 + j, b0 + j, b0 + 16 + j))
    cvt(t1, vPm, vPm + 8)
    cvt(t2, vPm + 1, vPm + 9)
    A('v_min_u32 v%d, -2, v%d' % (t1, t1))
    A('v_min_u32 v%d, -2, v%d' % (t2, t2))
    A('s_and_b32 s%d, s%d, 1' % (sA, sW))
    A('s_lshl_b32 s%d, s%d, 2' % (sA, sA))
    A('s_and_b32 s%d, s%d, 2' % (sB, sW))
    A('s_add_u32 s%d, s%d, s%d' % (sA, sA, sB))
    A('s_mul_i32 s%d, s%d, 7168' % (sA, sA))
    A('s_lshl_b32 s%d, s%d, 8' % (sB, sI))
    A('s_add_u32 s%d, s%d, s%d' % (sA, sA, sB))
    A('s_add_u32 s%d, s%d, 0x%x' % (sA, sA, HH))
    A('s_add_u32 s%d, s%d, 7168' % (sB, sA))
    A('s_cmp_lt_u32 s%d, 28' % sI)
    A('s_cselect_b32 s%d, 0, 0x%x' % (sD, OOB))
    A('v_add_u32 v%d, s%d, v%d' % (t3, sD, vL4))
    A('buffer_store_dword v%d, v%d, %s, s%d offen sc1' % (t1, t3, S4(WS), sA))
    A('buffer_store_dword v%d, v%d, %s, s%d offen sc1' % (t2, t3, S4(WS), sB))
    tstamp(A, opt, 4, t0, t4, sA)
    srd(A, SRD_A, P_WD, 7 * MB)
    A('s_lshr_b32 s%d, s%d, 4' % (sD, sI))
    A('s_lshl_b32 s%d, s%d, 2' % (sA, sD))
    A('s_add_u32 s%d, s%d, s%d' % (sCc, sA, sW))
    A('s_mul_i32 s%d, s%d, %d' % (sBase, sCc, 448 * 2048))
    A('s_add_u32 s%d, s%d, 4' % (sA, sI))
    A('s_and_b32 s%d, s%d, 15' % (sA, sA))
    A('s_lshl_b32 s%d, s%d, 1' % (sB, sA))
    A('s_add_u32 s%d, s%d, s%d' % (sD, sD, sB))
    A('s_lshl_b32 s%d, s%d, 7' % (sA, sA))
    A('s_add_u32 s%d, s%d, s%d' % (sBase, sBase, sA))
    bits(A, vRaw, [(3, 3, 11), (0, 3, 4)], t0)
    A('s_lshl_b32 s%d, s%d, 12' % (sA, sW))
    A('s_add_u32 s%d, s%d, 65536' % (sA, sA))
    A('v_add_u32 v%d, s%d, v%d' % (t3, sA, vL16))
    bits(A, t4, [(4, 2, 10), (2, 2, 7), (0, 2, 3)], t0, 's%d' % sA)

    def dissue(ks):
        for i in range(4):
            A('s_add_u32 s%d, s%d, 0x%x' % (sB, sBase, (32 * ks + 8 * i) * 2048))
            A('buffer_load_dwordx4 %s, v%d, %s, s%d offen%s' % (a(16 * ks + 4 * i, 4), vRaw, S4(SRD_A), sB, ' nt' if opt.get('nt', 31) & 8 else ''))
    for ks in range(4):
        dissue(ks)
    for ks in range(14):
        A('s_waitcnt vmcnt(%d) lgkmcnt(0)' % (4 * (min(14, ks + 4) - 1 - ks)))
        for i in range(4):
            A('ds_write_b128 v%d, %s offset:%d' % (t3, a(16 * ks + 4 * i, 4), i * 1024))
        for ct in range(4):
            for pp in range(2):
                A('ds_read_b64_tr_b16 %s, v%d offset:%d' % (a(16 * ks + 4 * ct + 2 * pp, 2), t4, 4 * pp * 128 + ct * 32))
        if ks + 4 < 14:
            dissue(ks + 4)
    A('v_and_b32 v%d, 7, v0' % t0)
    A('v_mul_u32_u24 v%d, 7168, v%d' % (t2, t0))
    A('v_lshrrev_b32 v%d, 4, v0' % t0)
    A('v_lshl_add_u32 v%d, v%d, 4, v%d' % (t2, t0, t2))
    A('s_mul_i32 s%d, s%d, 896' % (sA, sCc))
    A('s_add_u32 s%d, s%d, 0x%x' % (sA, sA, HH))
    poll_data(A, ['buffer_load_dwordx4 %s, v%d, %s, s%d offen offset:%d sc1' % (v(vRing + 4 * ks, 4), t2, S4(WS), sA, 64 * ks) for ks in range(14)],
              range(vRing, vRing + 56), t0, 16)
    A('s_waitcnt lgkmcnt(0)')
    for ks in range(14):
        for ct in range(4):
            acc = v(vPm + 4 * ct, 4)
            A('v_mfma_f32_16x16x32_bf16 %s, %s, %s, %s' % (acc, a(16 * ks + 4 * ct, 4), v(vRing + 4 * ks, 4), acc if ks else '0'))
    for ct in range(4):
        A('ds_write_b128 v%d, %s offset:%d' % (t3, v(vPm + 4 * ct, 4), 1024 * ct))
    A('s_lshl_b32 s%d, s%d, 6' % (sA, sW))
    A('s_add_u32 s%d, s%d, 65536' % (sA, sA))
    bits(A, t4, [(0, 4, 8), (4, 2, 4)], t0, 's%d' % sA)
    A('s_waitcnt lgkmcnt(0)')
    A('s_barrier')
    for wv in range(4):
        A('ds_read_b128 %s, v%d offset:%d' % (v(vPm + 16 + 4 * wv, 4), t4, wv * 4096))
    A('s_waitcnt lgkmcnt(0)')
    for wv in range(1, 4):
        for h in range(2):
            A('v_pk_add_f32 %s, %s, %s' % (v(vPm + 16 + 2 * h, 2), v(vPm + 16 + 2 * h, 2), v(vPm + 16 + 4 * wv + 2 * h, 2)))
    for i in range(4):
        A('v_min_u32 v%d, -2, v%d' % (vPm + 16 + i, vPm + 16 + i))
    A('s_cmp_ge_u32 s%d, 2' % sW)
    A('s_cbranch_scc1 L_o_join')
    A('s_lshl_b32 s%d, s%d, 1' % (sA, sD))
    A('s_add_u32 s%d, s%d, s%d' % (sA, sA, sW))
    A('s_lshl_b32 s%d, s%d, 10' % (sA, sA))
    A('s_add_u32 s%d, s%d, 0x%x' % (sA, sA, YY))
    A('buffer_store_dwordx4 %s, v%d, %s, s%d offen sc1' % (v(vPm + 16, 4), vL16, S4(WS), sA))
    A('s_lshl_b32 s%d, s%d, 8' % (sA, sI))
    A('s_add_u32 s%d, s%d, 0x%x' % (sA, sA, YK))
    A('buffer_store_dword v%d, v%d, %s, s%d offen sc1' % (vKey, vL4, S4(WS), sA))

    V = Alloc(1, 256)
    vL16, vFa, vFv, vFn, vWr, vRr, vXa, vLw, vG = [V(n) for n in 'l16 fa fv fn wr rr xa lw g'.split()]
    vGa = 255
    t0, t1 = V('t0'), V('t1')
    vXv = V('xv', 2)
    vU = V('u', 2)
    vY = V('y', 16, 4)
    vD = V('d', 16, 4)
    vZ = V('z', 12, 4)
    vO = V('o', 64, 4)
    vW = V('w', 128, 4)
    t2, t3 = vXv, vXv + 1
    vXn, vGn = 252, 254
    assert V.p <= 252
    LW, LRED = 0, 131072
    sTeam, sU, sUn, sNb, sPre, sE = sPrev, sSeg, S('un'), S('nb'), S('pre'), S('e')
    U0 = opt.get('u0', 60)
    assert U0 % 2 == 0
    A.label('L_o_join2')
    A.label('L_o_join')
    touch_slow(t0, SRD_C)
    if opt.get('cw', 1) > 1:
        touch_code(A, 'L_oj1', 'L_code1', sW, SRD_C, t0)
        A.label('L_oj1')
    tstamp(A, opt, 5, t0, t1, sA)
    srd(A, SRD_A, P_WO, 8 * MB)
    srd(A, SRD_B, P_X, 4 * MB)
    srd(A, SRD_C, P_OUT, 4 * MB)
    A('s_mov_b32 s%d, 0xffff0000' % sHi)
    A('v_lshlrev_b32 v%d, 4, v0' % vL16)
    A('s_add_u32 s%d, s%d, 1' % (sTeam, sC))
    A('s_and_b32 s%d, s%d, 3' % (sTeam, sTeam))
    A('s_lshl_b32 s%d, s%d, 1' % (sTeam, sTeam))
    A('s_lshr_b32 s%d, s%d, 4' % (sA, sI))
    A('s_add_u32 s%d, s%d, s%d' % (sTeam, sTeam, sA))
    A('s_and_b32 s%d, s%d, 15' % (sI, sI))
    A('s_and_b32 s%d, s%d, 7' % (sRot, sI))
    A('s_barrier')
    for hl in range(8):
        A('s_add_u32 s%d, s%d, %d' % (sA, sRot, hl))
        A('s_and_b32 s%d, s%d, 7' % (sA, sA))
        A('s_lshl_b32 s%d, s%d, 3' % (sB, sW))
        A('s_add_u32 s%d, s%d, s%d' % (sA, sA, sB))
        A('s_lshl_b32 s%d, s%d, 18' % (sA, sA))
        A('s_lshl_b32 s%d, s%d, 7' % (sB, sI))
        A('s_add_u32 s%d, s%d, s%d' % (sIdx + hl, sA, sB))
    vRaw, vTr = vFa, vFv
    bits(A, vRaw, [(3, 3, 11), (0, 3, 4)], t0)
    A('s_lshl_b32 s%d, s%d, 13' % (sA, sW))
    A('s_add_u32 s%d, s%d, %d' % (sA, sA, LRED))
    A('v_add_u32 v%d, s%d, v%d' % (vWr, sA, vL16))
    bits(A, vTr, [(2, 1, 11), (4, 2, 9), (3, 1, 7), (0, 2, 3)], t0, 's%d' % sA)
    A('s_lshl_b32 s%d, s%d, 15' % (sA, sW))
    A('v_add_u32 v%d, s%d, v%d' % (vLw, sA, vL16))
    home = lambda ks, i: (a(8 * ks + 4 * i, 4) if i < 2 else v(vW + 4 * ks, 4) if i == 2 else v(vO + 4 * (ks & 15), 4))
    home2 = lambda ks, i, pp: (a(8 * ks + 4 * i + 2 * pp, 2) if i < 2 else v(vW + 4 * ks + 2 * pp, 2) if i == 2 else v(vD + 4 * (ks & 1) + 2 * pp, 2))

    def wissue(ks):
        for i in range(4):
            A('s_add_u32 s%d, s%d, 0x%x' % (sB, sIdx + (ks >> 2), (32 * (ks & 3) + 8 * i) * 2048))
            A('buffer_load_dwordx4 %s, v%d, %s, s%d offen%s' % (home(ks, i), vRaw, S4(SRD_A), sB, ' nt' if opt.get('nt', 31) & 16 else ''))
    DEP = opt.get('depo', 4)
    for ks in range(DEP):
        wissue(ks)
    for ks in range(32):
        A('s_waitcnt vmcnt(%d)' % (4 * (min(32, ks + DEP) - 1 - ks)))
        sl = (ks & 1) * 4096
        for i in range(4):
            A('ds_write_b128 v%d, %s offset:%d' % (vWr, home(ks, i), sl + i * 1024))
        if ks + DEP < 32:
            wissue(ks + DEP)
        if ks:
            A('s_waitcnt lgkmcnt(4)')
            A('ds_write_b128 v%d, %s offset:%d' % (vLw, v(vD + 4 * ((ks - 1) & 1), 4), (ks - 1) * 1024))
        for ct in range(4):
            for pp in range(2):
                A('ds_read_b64_tr_b16 %s, v%d offset:%d' % (home2(ks, ct, pp), vTr, sl + 2 * pp * 128 + ct * 32))
    A('s_waitcnt lgkmcnt(0)')
    A('ds_write_b128 v%d, %s offset:%d' % (vLw, v(vD + 4, 4), 31 * 1024))
    tstamp(A, opt, 6, t0, t1, sA)
    if opt.get('diag'):
        A('s_cmp_lg_u32 s%d, 0' % sW)
        A('s_cbranch_scc1 L_o_e3')
        A('s_cmp_lg_u32 s%d, 3' % sC)
        A('s_cbranch_scc1 L_o_e4')
        dbg_mark(A, opt, 6, t0, t1)
        A.label('L_o_e4')
        dbg_mark(A, opt, 7, t0, t1)
        A.label('L_o_e3')
    A('s_lshl_b32 s%d, s%d, 12' % (sA, sI))
    A('s_add_u32 s%d, s%d, 0x%x' % (sA, sA, YY))
    A('s_lshl_b32 s%d, s%d, 8' % (sB, sI))
    A('s_add_u32 s%d, s%d, 0x%x' % (sB, sB, YK))
    bits(A, t1, [(0, 4, 4)], t0)
    A('v_lshlrev_b32 v%d, 2, v0' % t2)
    poll_data(A, ['buffer_load_dwordx4 %s, v%d, %s, s%d offen offset:%d sc1' % (v(vO + 4 * j, 4), t1, S4(WS), sA, 256 * j) for j in range(16)]
              + ['buffer_load_dword v%d, v%d, %s, s%d offen sc1' % (t3, t2, S4(WS), sB)], list(range(vO, vO + 64)) + [t3], t0, 16)
    A('v_not_b32 v%d, v%d' % (t1, t3))
    A('v_ashrrev_i32 v%d, 31, v%d' % (t1, t1))
    A('v_or_b32 v%d, 0x80000000, v%d' % (t1, t1))
    A('v_xor_b32 v%d, v%d, v%d' % (t1, t3, t1))
    A('v_and_b32 v%d, s%d, v%d' % (t1, sHi, t1))
    sigmoid(t1, t1)
    cvt(t1, t1, t1)
    A('v_and_b32 v%d, s%d, v%d' % (t1, sHi, t1))
    A('v_and_b32 v%d, 0x7ff, v%d' % (t3, t3))
    A('v_sub_u32 v%d, 2047, v%d' % (t3, t3))
    for j in range(8):
        A('v_readlane_b32 s%d, v%d, %d' % (sA, t1, j))
        A('v_readlane_b32 s%d, v%d, %d' % (sIdx + j, t3, j))
        b0 = vO + 4 * j
        for h in range(2):
            A('v_pk_add_f32 %s, %s, %s' % (v(b0 + 2 * h, 2), v(b0 + 2 * h, 2), v(b0 + 32 + 2 * h, 2)))
            rnd2(b0 + 2 * h, b0 + 2 * h + 1, t0)
            A('v_mul_f32 v%d, s%d, v%d' % (b0 + 2 * h, sA, b0 + 2 * h))
            A('v_mul_f32 v%d, s%d, v%d' % (b0 + 2 * h + 1, sA, b0 + 2 * h + 1))
            cvt(vY + 2 * j + h, b0 + 2 * h, b0 + 2 * h + 1)
    A('s_and_b32 s%d, s%d, 1' % (sA, sX))
    A('s_lshl_b32 s%d, s%d, 2' % (sA, sA))
    A('s_add_u32 s%d, s%d, s%d' % (sA, sA, sW))
    A('s_lshl_b32 s%d, s%d, 10' % (sA, sA))
    A('s_and_b32 s%d, s%d, 2' % (sB, sX))
    A('s_lshl_b32 s%d, s%d, 13' % (sB, sB))
    A('s_add_u32 s%d, s%d, s%d' % (sA, sA, sB))
    A('s_add_u32 s%d, s%d, 0x%x' % (sA, sA, F_O + 0x2000))
    near(A, sA, sB)
    bits(A, vFa, [(0, 3, 7)], t0, 's%d' % sA)
    A('s_lshl_b32 s%d, s%d, 12' % (sA, sW))
    A('s_add_u32 s%d, s%d, %d' % (sA, sA, LRED))
    A('v_and_b32 v%d, 0x30, v0' % t0)
    A('v_xor_b32 v%d, v%d, v%d' % (t0, t0, vL16))
    A('v_add_u32 v%d, s%d, v%d' % (vWr, sA, t0))
    A('s_lshl_b32 s%d, s%d, 2' % (sA, sW))
    A('v_lshrrev_b32 v%d, 4, v0' % t0)
    A('v_add_u32 v%d, s%d, v%d' % (t0, sA, t0))
    A('v_and_b32 v%d, 15, v0' % t1)
    A('v_xor_b32 v%d, v%d, v%d' % (t0, t0, t1))
    A('v_lshlrev_b32 v%d, 4, v%d' % (t0, t0))
    A('v_lshl_add_u32 v%d, v%d, 8, v%d' % (t0, t1, t0))
    A('v_add_u32 v%d, %d, v%d' % (vRr, LRED, t0))
    A('s_lshl_b32 s%d, s%d, 13' % (sA, sW))
    A('s_lshl_b32 s%d, s%d, 7' % (sB, sI))
    A('s_add_u32 s%d, s%d, s%d' % (sA, sA, sB))
    bits(A, vXa, [(4, 2, 11), (0, 4, 3)], t0, 's%d' % sA)
    A('s_lshl_b32 s%d, s%d, 4' % (sA, sW))
    A('s_add_u32 s%d, s%d, 0x%x' % (sA, sA, GATE))
    bits(A, vGa, [(4, 2, 2)], t0, 's%d' % sA)
    oat = opt.get('oat', 0)
    A('v_mov_b32 v%d, 0' % vFv)
    if oat:
        A('v_cmp_gt_u32 vcc, 8, v0')
        A('v_cndmask_b32 v%d, 64, v%d, vcc' % (vFv, vFv))
        A('v_mov_b32 v%d, 0x%x' % (t0, OOB))
        A('v_cndmask_b32 v%d, v%d, v%d, vcc' % (vFa, t0, vFa))
    A('s_cmp_lt_u32 s%d, 2' % sTeam)
    A('s_cselect_b32 s%d, 0, %d' % (sUn, U0))
    A('s_add_u32 s%d, s%d, s%d' % (sUn, sUn, sTeam))
    A('s_mov_b32 s%d, 0' % sPre)
    A('s_mov_b32 s%d, 0' % sCnt)
    A('s_waitcnt lgkmcnt(0)')
    A('s_barrier')

    def ubase(dst, u):
        return ['s_lshr_b32 s%d, s%d, 1' % (dst, u), 's_lshl_b32 s%d, s%d, 14' % (dst, dst), 's_and_b32 s%d, s%d, 1' % (sA, u),
                's_lshl_b32 s%d, s%d, 12' % (sA, sA), 's_add_u32 s%d, s%d, s%d' % (dst, dst, sA)]

    def hbase(base, hl):
        return ['s_add_u32 s%d, s%d, s%d' % (sB, sHb + hl, base)]
    sHb = 64
    for hl in range(8):
        A('s_add_u32 s%d, s%d, %d' % (sA, sRot, hl))
        A('s_and_b32 s%d, s%d, 7' % (sA, sA))
        A('s_lshl_b32 s%d, s%d, 3' % (sB, sW))
        A('s_add_u32 s%d, s%d, s%d' % (sA, sA, sB))
        A('s_mul_i32 s%d, s%d, 0x%x' % (sA, sA, ROW))
        A('s_add_u32 s%d, s%d, 0x%x' % (sHb + hl, sA, OO))
        near(A, sHb + hl, sA)
    old_ = lambda ks: 'buffer_load_dwordx4 %s, v%d, %s, s%d offen offset:%d sc1' % (v(vO + 4 * (ks & 15), 4), vL16, S4(WS), sB, (ks & 3) * 1024)
    zrd = lambda ks: 'ds_read_b128 %s, v%d offset:%d' % (v(vZ + 4 * (ks % 3), 4), vLw, ks * 1024)

    A(zrd(0)); A(zrd(1))
    A('.p2align 6')
    A.label('L_o_loop')
    A('s_mov_b32 s%d, s%d' % (sU, sUn))
    A('s_cmp_ge_u32 s%d, 128' % sU)
    A('s_cbranch_scc1 L_o_end')
    A('s_cmp_lt_u32 s%d, %d' % (sU, U0))
    A('s_cselect_b32 s%d, 2, 6' % sA)
    A('s_add_u32 s%d, s%d, s%d' % (sUn, sU, sA))
    for o in ubase(sBase, sU):
        A(o)
    A('s_cmp_eq_u32 s%d, 1' % sPre)
    A('s_cbranch_scc1 L_o_go')
    A('s_lshr_b32 s%d, s%d, 1' % (sD, sU))
    A('s_add_u32 s%d, s%d, 1' % (sD, sD))
    def xg(u, oob=None, sB=None):
        ops = ['s_lshl_b32 s%d, s%d, 15' % (sA, u)]
        if oob is not None:
            ops += ['s_and_b32 s%d, s%d, 0x%x' % (sB, oob, OOB), 's_or_b32 s%d, s%d, s%d' % (sA, sA, sB)]
        ops += ['buffer_load_dwordx2 %s, v%d, %s, s%d offen' % (v(vXn, 2), vXa, S4(SRD_B), sA), 's_lshl_b32 s%d, s%d, 6' % (sA, u)]
        if oob is not None:
            ops += ['s_or_b32 s%d, s%d, s%d' % (sA, sA, sB)]
        return ops + ['buffer_load_dword v%d, v%d, %s, s%d offen sc1' % (vGn, vGa, S4(WS), sA)]
    for o in xg(sU):
        A(o)
    wait_flags(A, vFv, vFa, 's%d' % sD, opt.get('osl', 1), oat)
    mark(A, opt, 0)
    if opt.get('prof'):
        A('s_waitcnt lgkmcnt(0)')
    for ks in range(16):
        if ks & 3 == 0:
            for o in hbase(sBase, ks >> 2):
                A(o)
        A(old_(ks))
    A('v_mov_b32 v%d, 0x%x' % (t0, OOB))
    A('buffer_store_dword v%d, v%d, %s, 0 offen' % (t0, t0, S4(WS)))
    A.label('L_o_go')
    cv = lambda d, x, y: 'v_cvt_pk_bf16_f32 v%d, v%d, v%d' % (d, x, y)
    w1 = ['s_lshr_b32 s%d, s%d, 1' % (sD, sUn), 's_add_u32 s%d, s%d, 1' % (sD, sD),
          'v_cmp_gt_i32 vcc, s%d, v%d' % (sD, vFv),
          's_lshl_b32 s%d, s%d, 15' % (sCc, sU), 's_lshl_b32 s%d, s%d, 2' % (sA, sU), 's_add_u32 s%d, s%d, s%d' % (sA, sA, sW),
          's_lshl_b32 s%d, s%d, 2' % (sA, sA), 'v_lshrrev_b32 v%d, 4, v0' % t1, 'v_add_u32 v%d, s%d, v%d' % (t1, sA, t1),
          'v_mov_b32 v%d, 0' % vU, 'v_mov_b32 v%d, 0' % (vU + 1), 'v_mov_b32 v%d, -1' % vFn,
          's_cmp_lg_u64 vcc, 0', 's_cselect_b32 s%d, 0, 0x%x' % (sA, OOB),
          ('buffer_atomic_umin v%d, v%d, %s, s%d offen sc0 sc1' if oat == 1 else 'buffer_load_dword v%d, v%d, %s, s%d offen sc1') % (vFn, vFa, S4(WS), sA),
          'v_mov_b32 v%d, v%d' % (vXv, vXn), 'v_mov_b32 v%d, v%d' % (vXv + 1, vXn + 1), 'v_mov_b32 v%d, v%d' % (vG, vGn)]
    for j in range(8):
        w1 += ['v_cmp_eq_u32 vcc, s%d, v%d' % (sIdx + j, t1), None, 'v_cndmask_b32 v%d, v%d, v%d, vcc' % (vU, vU, vY + 2 * j),
               'v_cndmask_b32 v%d, v%d, v%d, vcc' % (vU + 1, vU + 1, vY + 2 * j + 1)]
    w1 += ubase(sNb, sUn)
    w2 = ['@wf', 'v_max_i32 v%d, v%d, v%d' % (vFv, vFv, vFn), 'v_cmp_gt_i32 vcc, s%d, v%d' % (sD, vFv), None, None,
          's_cmp_eq_u64 vcc, 0', 's_cselect_b32 s%d, 1, 0' % sPre, 's_cselect_b32 s%d, s%d, 0x%x' % (sNb, sNb, OOB)]
    w3 = xg(sUn, sNb, sE) + ['v_sub_f32 v%d, 1.0, v%d' % (vFn, vG), cv(vFn, vFn, vFn), 'v_and_b32 v%d, s%d, v%d' % (vFn, sHi, vFn)]
    for h in range(2):
        x_, u_ = vXv + h, vU + h
        w3 += ['v_lshlrev_b32 v%d, 16, v%d' % (t0, x_), 'v_lshlrev_b32 v%d, 16, v%d' % (t1, u_), 'v_add_f32 v%d, v%d, v%d' % (t0, t0, t1),
               'v_and_b32 v%d, s%d, v%d' % (x_, sHi, x_), 'v_and_b32 v%d, s%d, v%d' % (u_, sHi, u_), 'v_add_f32 v%d, v%d, v%d' % (x_, x_, u_),
               cv(x_, t0, x_), 'v_lshlrev_b32 v%d, 16, v%d' % (t0, x_), 'v_and_b32 v%d, s%d, v%d' % (x_, sHi, x_),
               'v_mul_f32 v%d, v%d, v%d' % (t0, t0, vFn), 'v_mul_f32 v%d, v%d, v%d' % (x_, x_, vFn), cv(x_, t0, x_)]
    vq = ['o%d' % k for k in range(16)] + ['st']
    young = lambda t: vq[::-1].index(t)
    A('s_waitcnt vmcnt(%d) lgkmcnt(1)' % young('o0'))
    for ks in range(32):
        if ks == 14:
            assert not w1
        if ks == 16:
            assert not w2
        work = w1 if ks < 14 else w2 if ks < 16 else w3
        for ct in range(4):
            acc = v(vD + 4 * ct, 4)
            src = home(ks, ct) if ct < 3 else v(vZ + 4 * (ks % 3), 4)
            A('v_mfma_f32_16x16x32_bf16 %s, %s, %s, %s' % (acc, src, v(vO + 4 * (ks & 15), 4), acc if ks else '0'))
            t_ = 4
            if ct == 0 and ks + 2 < 32:
                A(zrd(ks + 2)); t_ += 4
            if ct == 0 and ks & 3 == 0:
                A(hbase(sBase if ks < 16 else sNb, ((ks + 16) >> 2) & 7)[0]); t_ += 4
            if ct == 2 and ks < 31:
                A('s_waitcnt vmcnt(%d) lgkmcnt(%d)' % (young('o%d' % (ks + 1)), ks < 30)); t_ += 4
            if ct == 3:
                A(old_(ks + 16)); vq.append('o%d' % (ks + 16))
                continue
            while work:
                x = work[0]
                if x is None:
                    work.pop(0)
                    break
                if 'v%d, v%d' % (vXv, vXn) in x and ks < 2:
                    break
                e = (max(t_, 8) + 4) if x.startswith('v_') else t_ + (12 if x.startswith('buffer_') else 4)
                if e > 16:
                    break
                t_ = e
                work.pop(0)
                if x == '@wf':
                    x = 's_waitcnt vmcnt(%d)' % young('fl')
                if x.startswith('buffer_'):
                    vq.append('fl' if 'v%d,' % vFn in x else 'xg')
                    if 'xg' == vq[-1]:
                        assert 'o34' not in vq
                A(x)
    assert not w3
    mark(A, opt, 1)
    vR = vD
    for i in range(4):
        A('ds_write_b128 v%d, %s offset:%d' % (vWr, v(vD + 4 * i, 4), 1024 * i))
        A('v_xor_b32 v%d, 0x%x, v%d' % (vWr, (0x40, 0xc0, 0x40, 0x40c0)[i], vWr))
    A('s_waitcnt lgkmcnt(0)')
    A('s_barrier')
    for wv in range(4):
        A('ds_read_b128 %s, v%d offset:%d' % (v(vR + 4 * wv, 4), vRr, wv * 4096))
    A(zrd(0)); A(zrd(1))
    vB = vZ + 8
    for h in range(2):
        A('v_lshlrev_b32 v%d, 16, v%d' % (vB + 2 * h, vXv + h))
        A('v_and_b32 v%d, s%d, v%d' % (vB + 2 * h + 1, sHi, vXv + h))
    A('v_xor_b32 v%d, 0x4000, v%d' % (vRr, vRr))
    for wv in range(1, 4):
        A('s_waitcnt lgkmcnt(%d)' % (5 - wv))
        for h in range(2):
            A('v_pk_add_f32 %s, %s, %s' % (v(vR + 2 * h, 2), v(vR + 2 * h, 2), v(vR + 4 * wv + 2 * h, 2)))
    rnd2(vR, vR + 1, t0)
    rnd2(vR + 2, vR + 3, t1)
    A('s_nop 0')
    for i in range(4):
        A('v_mul_f32 v%d, v%d, v%d' % (vR + i, vR + i, vG))
    A('s_nop 0')
    rnd2(vR, vR + 1, t0)
    rnd2(vR + 2, vR + 3, t1)
    for h in range(2):
        A('v_pk_add_f32 %s, %s, %s' % (v(vR + 2 * h, 2), v(vR + 2 * h, 2), v(vB + 2 * h, 2)))
        cvt(vU + h, vR + 2 * h, vR + 2 * h + 1)
    A('buffer_store_dwordx2 %s, v%d, %s, s%d offen%s' % (v(vU, 2), vXa, S4(SRD_C), sCc, ('', ' sc1', ' nt', ' sc0 sc1', ' sc1 nt')[opt.get('ost', 0)]))
    if opt.get('prof'):
        A('s_add_u32 s%d, s%d, 1' % (sCnt, sCnt))
        A('s_cmp_lg_u32 s%d, 3' % sC)
        A('s_cbranch_scc1 L_o_loop')
        for sg, sl_ in ((4, 9), (16, 11)):
            Lx = A.newlabel('L_pf')
            A('s_cmp_lg_u32 s%d, %d' % (sCnt, sg))
            A('s_cbranch_scc1 ' + Lx)
            tstamp(A, opt, sl_, t0, t1, sA)
            A('s_waitcnt vmcnt(0)')
            A.label(Lx)
    A('s_branch L_o_loop')
    A.label('L_o_end')
    if opt.get('diag'):
        A('s_cmp_lg_u32 s%d, 0' % sW)
        A('s_cbranch_scc1 L_o_e2')
        dbg_mark(A, opt, 5, t0, t1)
        diag_hold(A, opt)
        A.label('L_o_e2')
    tstamp(A, opt, 7, t0, t1, sA)
    mark_dump(A, opt, 2, 12, t0, t1, sA)
    if opt.get('prof'):
        A('s_mov_b32 s78, s%d' % sCnt)
        tstamp(A, opt, 10, t0, t1, sA, now=False)
    A('s_endpgm')
```

```python
from common import *

XROW = 2064
XBUF = 32 * XROW
LSCR = 2 * XBUF


def load_weights(A, srdw, sBase, row_bytes, rows_of, tr_lane_terms, tr_off, ngroups, vRaw, vWr, vTr, t0, sa, sb,
                 scr, after_first=None, pre_out=0, mod=''):
    bits(A, vRaw, [(0, 2, 4)], t0)
    A('v_lshrrev_b32 v%d, 2, v0' % t0)
    A('s_mov_b32 s%d, %d' % (sa, row_bytes))
    A('v_mul_lo_u32 v%d, v%d, s%d' % (t0, t0, sa))
    A('v_add_u32 v%d, v%d, v%d' % (vRaw, vRaw, t0))
    A('s_lshl_b32 s%d, s%d, 12' % (sa, sW))
    A('s_add_u32 s%d, s%d, %d' % (sa, sa, scr))
    bits(A, vWr, [(0, 6, 4)], t0, 's%d' % sa)
    bits(A, vTr, tr_lane_terms, t0, 's%d' % sa)
    depth = 4

    def issue(gi):
        for i in range(4):
            A('s_add_u32 s%d, s%d, 0x%x' % (sb, sBase(gi) if callable(sBase) else sBase, rows_of(gi, i) * row_bytes))
            A('buffer_load_dwordx4 %s, v%d, %s, s%d offen%s' % (a(16 * gi + 4 * i, 4), vRaw, S4(srdw), sb, mod))
    for gi in range(depth):
        issue(gi)
    issued = depth
    for gi in range(ngroups):
        A('s_waitcnt vmcnt(%d)' % ((issued - 1 - gi) * 4))
        if gi == 0 and after_first:
            after_first()
        while issued < ngroups and issued - (gi + 1) < depth:
            issue(issued)
            issued += 1
        for i in range(4):
            A('ds_write_b128 v%d, %s offset:%d' % (vWr, a(16 * gi + 4 * i, 4), i * 1024))
        for ksl in range(2):
            for tile in range(2):
                for pp in range(2):
                    A('ds_read_b64_tr_b16 %s, v%d offset:%d' % (a(16 * gi + (ksl * 2 + tile) * 4 + 2 * pp, 2), vTr, tr_off(ksl, pp, tile)))
        A('s_waitcnt lgkmcnt(0)')


def kv_first(A, sh, t0, t1, sa, sb):
    A('s_lshl_b32 s%d, s%d, 8' % (sa, sh))
    A('s_add_u32 s%d, s%d, 0x%x' % (sa, sa, F_KV + 0x2000))
    near(A, sa, sb)
    bits(A, t1, [(0, 1, 7)], t0, 's%d' % sa)
    wait_flags(A, t0, t1, '1', 8)


def sel_frag(A, dst, et, t0, t1):
    A('v_bfe_u32 v%d, v0, 2, 2' % t0)
    A('v_lshrrev_b32 v%d, 4, v0' % t1)
    A('v_cmp_eq_u32 vcc, v%d, v%d' % (t0, t1))
    A('v_mov_b32 v%d, 0x%x' % (t1, 0x3f80 << (16 * et)))
    A('v_cndmask_b32 v%d, 0, v%d, vcc' % (t1, t1))
    A('v_and_b32 v%d, 3, v0' % t0)
    for i in range(4):
        A('v_cmp_eq_u32 vcc, %d, v%d' % (i, t0))
        A('v_cndmask_b32 v%d, 0, v%d, vcc' % (dst + i, t1))


def proj(A, opt, kind):
    P = 'L_' + kind
    V = Alloc(1, 252)
    vL16, vRd, vRdSum, vFl, vArm = [V(n) for n in 'l16 rd rdsum fl arm'.split()]
    t0, t1, t2, t3 = V('t0'), V('t1'), V('t2'), V('t3')
    vX = V('x', 32, 4)
    vD = V('d', 16, 4)
    vF = V('f', 8, 4)
    vJ = V('junk', 4, 4)
    vDb, vXb = (V('db', 16, 4), V('xb', 16, 4)) if kind != 'q' else (0, 0)
    S = Alloc(36, 62)
    sH, sSeg, sXo, sM, sMsum, sOut, sOut2, sArm, sPf, sA, sB, sCc = [S(n) for n in 'h seg xo m msum out out2 arm pf a b cc'.split()]
    base = {'k': 16, 'v': 20, 'q': 24}[kind]
    A.label(P)
    if kind == 'q' and opt.get('chainonly'):
        A('s_endpgm')
    cap0 = len(A.lines)
    srd(A, SRD_A, {'k': P_WK, 'v': P_WV, 'q': P_WQ}[kind], 8 * MB)
    srd(A, SRD_B, P_X, 4 * MB)
    assert sH == 36
    if kind == 'q':
        help_kv(A, opt, P_WK, sH, t0, t1, sA, sB)
    A('v_lshlrev_b32 v%d, 4, v0' % vL16)
    A('s_lshl_b32 s%d, s%d, 7' % (sA, sH))
    if kind == 'q':
        assert F_O & 0x203fff == 0
        A('s_add_u32 s%d, s%d, 0x%x' % (sA, sA, F_O + 0x2000))
        A('s_cmp_eq_u32 s%d, 0' % sW)
        A('s_cselect_b32 s%d, 4, 0' % sB)
        bits(A, vFl, [(0, 1, 12), (1, 1, 14)], t0, 's%d' % sA)
        A('v_mov_b32 v%d, 0x%x' % (t0, OOB))
        A('v_cmp_gt_u32 vcc, s%d, v0' % sB)
        A('v_cndmask_b32 v%d, v%d, v%d, vcc' % (vFl, t0, vFl))
    else:
        A('s_lshl_b32 s%d, s%d, 1' % (sA, sA))
        A('s_add_u32 s%d, s%d, 0x%x' % (sA, sA, F_KV + (128 if kind == 'v' else 0)))
        A('s_cmp_eq_u32 s%d, 0' % sW)
        A('s_cselect_b32 s%d, 2, 0' % sB)
        bits(A, vFl, [(0, 1, 13)], t0, 's%d' % sA)
        A('v_mov_b32 v%d, 0x%x' % (t0, OOB))
        A('v_cmp_gt_u32 vcc, s%d, v0' % sB)
        A('v_cndmask_b32 v%d, v%d, v%d, vcc' % (vFl, t0, vFl))
    npre = 1
    A('v_and_b32 v%d, 15, v0' % t0)
    A('v_mul_u32_u24 v%d, %d, v%d' % (vRd, XROW, t0))
    A('v_lshrrev_b32 v%d, 4, v0' % t0)
    A('v_lshl_add_u32 v%d, v%d, 8, v%d' % (vRd, t0, vRd))
    A('v_lshlrev_b32 v%d, 1, v%d' % (vRdSum, vRd))
    A('v_add_u32 v%d, %d, v%d' % (vRdSum, XBUF, vRdSum))
    A('s_mul_i32 s%d, s%d, %d' % (sM, sW, 8 * XROW))
    A('s_lshl_b32 s%d, s%d, 1' % (sMsum, sM))
    A('s_add_u32 s%d, s%d, %d' % (sMsum, sMsum, XBUF))
    A('s_lshl_b32 s%d, s%d, 14' % (sXo, sW))

    def dma_row(i):
        return ['s_add_u32 m0, s%d, %d' % (sM, i * XROW), 's_add_u32 s%d, s%d, %d' % (sA, sXo, i * 2048),
                'buffer_load_dwordx4 v%d, %s, s%d offen lds' % (vL16, S4(SRD_B), sA),
                'buffer_load_dwordx4 v%d, %s, s%d offen offset:1024 lds' % (vL16, S4(SRD_B), sA)]
    def dma_all():
        for i in range(8):
            for o in dma_row(i):
                A(o)
        A('s_sub_u32 s%d, s%d, s%d' % (sM, sMsum, sM))
        A('s_add_u32 s%d, s%d, 0x10000' % (sXo, sXo))
    nfuse = 0 if kind == 'q' else opt.get('nf', 2)
    WSCR = LSCR
    nx = max(nfuse, 1)

    def xpiece(sg, i, hh):
        return ['s_add_u32 m0, s%d, %d' % (sM, (sg & 1) * XBUF + i * XROW), 's_add_u32 s%d, s%d, %d' % (sA, sXo, sg * 0x10000 + i * 2048),
                'buffer_load_dwordx4 v%d, %s, s%d offen offset:%d lds' % (vL16, S4(SRD_B), sA, 1024 * hh)]
    xlate = [xpiece(sg, i, 1) for i in range(8) for sg in range(nx)]

    def xfirst():
        for i in range(8):
            for sg in range(nx):
                for o in xpiece(sg, i, 0):
                    A(o)
    nt = ' nt' if opt.get('nt', 31) & 2 else ''
    vRaw, vWr, vTr = vX, vX + 1, vX + 2
    A('s_and_b32 s%d, s%d, 1' % (sA, sW))
    A('s_lshl_b32 s%d, s%d, 3' % (sA, sA))
    bits(A, t1, [(4, 2, 1)], t0, 's%d' % sA)
    A('v_and_b32 v%d, 15, v0' % t0)
    A('v_xor_b32 v%d, v%d, v%d' % (t1, t1, t0))
    bits(A, vRaw, [(4, 2, 13)], t0)
    A('v_lshl_add_u32 v%d, v%d, 4, v%d' % (vRaw, t1, vRaw))
    A('s_lshl_b32 s%d, s%d, 11' % (sA, sW))
    A('s_add_u32 s%d, s%d, %d' % (sA, sA, WSCR))
    A('v_add_u32 v%d, s%d, v%d' % (vWr, sA, vL16))
    A('s_lshl_b32 s%d, s%d, 1' % (sA, sW))
    A('v_bfe_u32 v%d, v0, 2, 3' % t1)
    A('v_xor_b32 v%d, s%d, v%d' % (t1, sA, t1))
    bits(A, vTr, [(4, 2, 11), (2, 2, 8), (0, 2, 3)], t0, '%d' % WSCR)
    A('v_lshl_add_u32 v%d, v%d, 5, v%d' % (vTr, t1, vTr))
    A('v_xor_b32 v%d, 32, v%d' % (vTr + 1, vTr))
    A('s_lshl_b32 s%d, s%d, 8' % (sCc, sH))
    A('s_lshl_b32 s%d, s%d, 20' % (sA, sW))
    A('s_add_u32 s%d, s%d, s%d' % (sCc, sCc, sA))

    def wload(ks, i):
        return ['s_add_u32 s%d, s%d, 0x%x' % (sB, sCc, (8 * (ks & 15) + 4 * i + 512 * (ks >> 4)) * 8192),
                'buffer_load_dwordx4 %s, v%d, %s, s%d offen%s' % (a(8 * ks + 4 * i, 4), vRaw, S4(SRD_A), sB, nt)]
    if kind == 'q':
        A('s_waitcnt vmcnt(0)')
        confirm(A, opt, t0, t1, sA)
        for i in range(opt.get('qdl', 0)):
            A('s_sleep 32')
        if opt.get('qwait'):
            wait_init(A, t0, t1, sA, sB)
            kv_first(A, sH, t0, t1, sA, sB)
    DEP = opt.get('dep', 7)
    vq = []
    xl = opt.get('xl', 3)
    for ks in range(DEP):
        if ks == xl:
            xfirst()
        for i in range(2):
            for o in wload(ks, i):
                A(o)
            vq.append(ks)
    cap_vm(A, cap0)

    def weights_rest():
        if nfuse == 2:
            A('v_add_u32 v%d, %d, v%d' % (vX + 4, XBUF, vRd))
        xr = lambda ks, sg, tt2: (vX + 16, vXb)[ks & 1] + sg * 8 + tt2 * 4

        def ktr(i):
            if opt.get('ktr') and kind == 'k':
                A('s_memrealtime s[96:97]')
                A('s_waitcnt lgkmcnt(0)')
                A('v_writelane_b32 v250, s96, %d' % i)

        def wr(ks):
            return ['ds_write_b128 v%d, %s offset:%d' % (vWr, a(8 * ks + 4 * i, 4), (ks & 1) * 8192 + i * 1024) for i in range(2)]
        A('s_waitcnt vmcnt(%d)' % min(vq[::-1].index(0), vq[::-1].index(xl) + 2))
        if kind != 'q':
            confirm(A, opt, t0, t1, sA)
        for o in wr(0):
            A(o)
        for ks in range(33):
            if ks & 1 == 0:
                ktr(ks)
            A('s_waitcnt lgkmcnt(0)')
            side = []
            if ks < 32:
                A('s_barrier')
                for tile in range(2):
                    for pp in range(2):
                        A('ds_read_b64_tr_b16 %s, v%d offset:%d' % (a(8 * ks + 4 * tile + 2 * pp, 2), vTr + tile, (ks & 1) * 8192 + 4 * pp * 256))
                for sg in range(nfuse):
                    for tt2 in range(2):
                        A('ds_read_b128 %s, v%d offset:%d' % (v(xr(ks, sg, tt2), 4), (vRd, vX + 4)[sg], tt2 * 16 * XROW + 16 * (ks & 15) + 1024 * (ks >> 4)))
                for n_ in range(2 if len(xlate) > 15 - DEP - ks else 1):
                    if xlate:
                        side.append(xlate.pop(0)); vq.append('x')
                if nfuse == 2 and 18 <= ks < 26:
                    side.append(xpiece(2, ks - 18, 0)); vq.append('x2')
                if ks + DEP < 32:
                    side += [wload(ks + DEP, 0), wload(ks + DEP, 1)]
                    vq.extend([ks + DEP] * 2)
                if ks + DEP == 29:
                    T = Asm()
                    init_load(T, t0, t1)
                    side.append([l.strip() for l in T.lines]); vq.append('i')
                if ks < 31:
                    if ks == 15:
                        assert vq[::-1].index(16) < vq[::-1].index('x')
                    w_ = wr(ks + 1)
                    side += [['s_waitcnt vmcnt(%d)' % vq[::-1].index(ks + 1), w_[0]], [w_[1]]]
            ms = []
            if ks:
                for sg in range(nfuse):
                    for tt2 in range(2):
                        for tt in range(2):
                            acc = v((vD, vDb)[sg] + (tt * 2 + tt2) * 4, 4)
                            ms.append('v_mfma_f32_16x16x32_bf16 %s, %s, %s, %s' % (acc, a(8 * (ks - 1) + 4 * tt, 4), v(xr(ks - 1, sg, tt2), 4), acc if ks > 1 else '0'))
            while ms or side:
                if ms:
                    A(ms.pop(0))
                if side:
                    for o in side.pop(0):
                        A(o)
            if ks == 29:
                assert vq[::-1].index(30) < vq[::-1].index('i')
                wait_init(A, t0, t1, sA, sB, 2)
                for r_ in fixups:
                    near(A, r_, sA)
        if nx == 1:
            A('s_sub_u32 s%d, s%d, s%d' % (sM, sMsum, sM))
        A('s_add_u32 s%d, s%d, 0x%x' % (sXo, sXo, 0x10000 * nx))
        tstamp(A, opt, 1, t0, t1, sA)
        if opt.get('ktr') and kind == 'k':
            ktr(33)
            A('s_lshl_b32 s%d, s%d, 2' % (sA, sH))
            A('s_add_u32 s%d, s%d, s%d' % (sA, sA, sW))
            A('s_lshl_b32 s%d, s%d, 8' % (sA, sA))
            A('s_add_u32 s%d, s%d, 0x%x' % (sA, sA, PROF + 5 * MB))
            A('v_lshlrev_b32 v%d, 2, v0' % t0)
            A('buffer_store_dword v250, v%d, %s, s%d offen' % (t0, S4(WS), sA))
    A('s_mul_i32 s%d, s%d, 0x%x' % (sOut, sH, ROW))
    fixups = []
    if kind != 'q':
        A('s_lshl_b32 s%d, s%d, 11' % (sA, sW))
        A('s_add_u32 s%d, s%d, s%d' % (sOut2, sOut, sA))
        A('s_add_u32 s%d, s%d, 0x%x' % (sOut2, sOut2, VT))
        A('s_lshl_b32 s%d, s%d, 10' % (sA, sW))
        A('s_add_u32 s%d, s%d, s%d' % (sOut, sOut, sA))
        A('s_add_u32 s%d, s%d, 0x%x' % (sOut, sOut, KX if kind == 'k' else VX))
        bits(A, vArm, [(4, 2, 22), (4, 2, 16), (0, 4, 4)], t0)
        A('s_lshl_b32 s%d, s%d, 3' % (sArm, sW))
        A('s_bfe_u32 s%d, s%d, 0x10001' % (sA, sH))
        A('s_add_u32 s%d, s%d, s%d' % (sArm, sArm, sA))
        A('s_mul_i32 s%d, s%d, 0x%x' % (sArm, sArm, ROW))
        A('s_and_b32 s%d, s%d, 1' % (sA, sH))
        A('s_lshl_b32 s%d, s%d, 12' % (sA, sA))
        A('s_add_u32 s%d, s%d, s%d' % (sArm, sArm, sA))
        A('s_lshr_b32 s%d, s%d, 2' % (sA, sH))
        A('s_lshl_b32 s%d, s%d, 8' % (sA, sA))
        A('s_add_u32 s%d, s%d, s%d' % (sArm, sArm, sA))
        A('s_add_u32 s%d, s%d, 0x%x' % (sArm, sArm, PART))
        sKa = S('ka')
        A('s_lshr_b32 s%d, s%d, 1' % (sKa, sH))
        A('s_mul_i32 s%d, s%d, 0x%x' % (sKa, sKa, ROW))
        A('s_and_b32 s%d, s%d, 1' % (sA, sH))
        A('s_lshl_b32 s%d, s%d, 2' % (sA, sA))
        A('s_add_u32 s%d, s%d, s%d' % (sA, sA, sW))
        A('s_lshl_b32 s%d, s%d, 10' % (sA, sA))
        A('s_add_u32 s%d, s%d, s%d' % (sKa, sKa, sA))
        A('s_add_u32 s%d, s%d, 0x%x' % (sKa, sKa, KVM))
        fixups = [sOut, sOut2, sKa, sArm]
        vSent = V('sent', 4, 4)
        for i in range(4):
            A('v_mov_b32 v%d, -1' % (vSent + i))
        A('s_and_b32 s%d, s%d, 15' % (sPf, sR))
        A('s_lshl_b32 s%d, s%d, 2' % (sPf, sPf))
        A('s_add_u32 s%d, s%d, s%d' % (sPf, sPf, sW))
        A('s_lshl_b32 s%d, s%d, 10' % (sPf, sPf))
        A('s_add_u32 s%d, s%d, 0x20000' % (sPf, sPf))
    if kind == 'v':
        vSel = V('sel', 8, 4)
        vD2 = V('d2', 16, 4)
        vG = V('g', 8, 4)
        sel_frag(A, vSel, 0, t0, t1)
        sel_frag(A, vSel + 4, 1, t0, t1)
    cvt = lambda d, x, y: A('v_cvt_pk_bf16_f32 v%d, v%d, v%d' % (d, x, y))
    ldx4 = lambda dst, so, off: 'buffer_load_dwordx4 %s, v%d, %s, s%d offen offset:%d sc1' % (v(dst, 4), vL16, S4(WS), so, off)
    stx4 = lambda src, so, off: 'buffer_store_dwordx4 %s, v%d, %s, s%d offen offset:%d sc1' % (v(src, 4), vL16, S4(WS), so, off)
    LQ, LKV = LSCR, LSCR + 8192
    if kind == 'q':
        vQw, vIdx, vFm, vFv, vKr = V('qw'), V('idx'), V('fm'), V('fv'), V('kr')
        vQr = vArm
        vKx = V('kx', 32, 4)
        vVT = V('vt', 16, 4)
        vKm, vVm = V('km', 8, 4), V('vm', 4, 4)
        vQ = V('q', 16, 4)
        vD3 = vKx
        vO = vKx + 16
        vG = vQ
        vVmT = vQ + 8
        vS = V('s', 8, 4)
        MM = V('mm', 4, 4)
        vBias = V('bias', 8, 4)
        vStrip = V('strip', 20, 4)
        vLs = V('ls', 4, 4)
        vP = V('p', 4, 4)
        vOne = V('one', 4, 4)
        vPm, vHalf = V('pm', 2), V('half', 2)
        sKs, sKm, sVm, sMk = [S(n) for n in 'ks km vm mk'.split()]
        sScale = S('scale', 2)
        assert t0 % 2 == 0
        assert VT == KX + 8192
        A('s_lshl_b32 s%d, s%d, 12' % (sB, sW))
        A('s_add_u32 s%d, s%d, %d' % (sMk, sB, LKV))
        A('s_add_u32 s%d, s%d, s%d' % (sKs, sB, sOut))
        fixups = [sKs, sKm, sVm, sOut]
        A('s_add_u32 s%d, s%d, 0x%x' % (sKs, sKs, KX))
        A('s_lshr_b32 s%d, s%d, 1' % (sA, sW))
        A('s_lshl_b32 s%d, s%d, 12' % (sB, sA))
        A('s_add_u32 s%d, s%d, %d' % (sB, sB, LKV + 8192))
        A('v_add_u32 v%d, s%d, v%d' % (t2, sB, vL16))
        vVr = V('vr')
        A('v_mov_b32 v%d, v%d' % (vVr, t2))
        A('v_add_u32 v%d, %d, v%d' % (vKr, LKV, vL16))
        A('s_lshr_b32 s%d, s%d, 1' % (sKm, sH))
        A('s_mul_i32 s%d, s%d, 0x%x' % (sKm, sKm, ROW))
        A('s_and_b32 s%d, s%d, 1' % (sB, sH))
        A('s_lshl_b32 s%d, s%d, 12' % (sB, sB))
        A('s_add_u32 s%d, s%d, s%d' % (sKm, sKm, sB))
        A('s_add_u32 s%d, s%d, 0x%x' % (sKm, sKm, KVM))
        A('s_lshl_b32 s%d, s%d, 10' % (sB, sA))
        A('s_add_u32 s%d, s%d, s%d' % (sVm, sKm, sB))
        A('s_lshl_b32 s%d, s%d, 11' % (sB, sA))
        A('s_add_u32 s%d, s%d, s%d' % (sOut, sOut, sB))
        A('s_and_b32 s%d, s%d, 1' % (sA, sW))
        A('s_lshl_b32 s%d, s%d, 12' % (sB, sA))
        A('s_add_u32 s%d, s%d, s%d' % (sOut, sOut, sB))
        A('s_add_u32 s%d, s%d, 0x%x' % (sOut, sOut, OO))
        A('s_add_u32 s%d, s%d, %d' % (sB, sB, LQ))
        A('v_add_u32 v%d, s%d, v%d' % (vQr, sB, vL16))
        A('s_lshl_b32 s%d, s%d, 10' % (sB, sW))
        A('s_add_u32 s%d, s%d, %d' % (sB, sB, LQ))
        A('v_add_u32 v%d, s%d, v%d' % (vQw, sB, vL16))
        A('s_mov_b32 s%d, %s' % (sScale, f32(128 ** -0.5 * LOG2E)))
        A('s_lshl_b32 s%d, s%d, 4' % (sA, sA))
        A('v_and_b32 v%d, 15, v0' % t0)
        A('v_add_u32 v%d, s%d, v%d' % (t0, sA, t0))
        A('v_lshrrev_b32 v%d, 4, v0' % t1)
        A('v_lshlrev_b32 v%d, 2, v%d' % (t1, t1))
        A('v_sub_u32 v%d, v%d, v%d' % (t0, t0, t1))
        A('v_mov_b32 v%d, %s' % (t1, f32(-1e30)))
        for i in range(8):
            A('v_cmp_gt_i32 vcc, %d, v%d' % (16 * (i >> 2) + (i & 3), t0))
            A('v_cndmask_b32 v%d, 0, v%d, vcc' % (vBias + i, t1))
        for i in range(20):
            A('v_mov_b32 v%d, 0' % (vStrip + i))
        sel_frag(A, vStrip + 4, 0, t0, t1)
        sel_frag(A, vStrip + 12, 1, t0, t1)
        for i in range(4):
            A('v_mov_b32 v%d, 0x3f803f80' % (vOne + i))
        for i in range(2):
            A('v_mov_b32 v%d, 0x3f003f00' % (vHalf + i))
        A('v_and_b32 v%d, 8, v0' % t0)
        A('v_cmp_eq_u32 vcc, 0, v%d' % t0)
        A('v_mov_b32 v%d, 0xeeee' % t1)
        A('v_mov_b32 v%d, 0x4444' % t2)
        A('v_cndmask_b32 v%d, v%d, v%d, vcc' % (vIdx, t1, t2))
        A('s_lshl_b32 s%d, s%d, 8' % (sA, sH))
        A('s_add_u32 s%d, s%d, 0x%x' % (sB, sA, F_KV))
        bits(A, t3, [(0, 1, 7)], t0, 's%d' % sB)
        if opt.get('qpl', 1) == 32:
            bits(A, vFm, [(0, 5, 7), (5, 1, 30)], t0)
        else:
            A('s_lshl_b32 s%d, s%d, 10' % (sA, sW))
            lane0_addr(A, vFm, sA, t0)

    A('s_mov_b32 s%d, 0x%x' % (sSeg, INIT2))
    vq.extend(['t'] * touch_pages(A, opt, {'k': [sOut, sKa, sSeg], 'v': [sOut, sOut2, sSeg]}[kind] if kind != 'q' else [sKs, sKm, sOut], t0, sA))
    if kind == 'k' and opt.get('tp', 0):
        A('v_and_b32 v%d, 0xc00000, v%d' % (t0, vArm))
        A('s_or_b32 s%d, s%d, 0x1fff00' % (sA, sArm))
        A('buffer_load_dword v253, v%d, %s, s%d offen' % (t0, S4(WS), sA))
        vq.append('t')
    weights_rest()
    if kind == 'q':
        A('v_xor_b32 v%d, s%d, v%d' % (vFl, sP, vFl))
    A('s_mov_b32 s%d, 0' % sSeg)
    A('s_barrier')
    flag_st = 'buffer_store_dword v%d, v%d, %s, 0 offen sc1' % (t3, vFl, S4(WS))
    mfma = lambda d, x, y, c_: 'v_mfma_f32_16x16x32_bf16 %s, %s, %s, %s' % (d, x, y, c_)
    cv = lambda d, x, y: 'v_cvt_pk_bf16_f32 v%d, v%d, v%d' % (d, x, y)

    class Order:
        def __init__(self, name, lim):
            self.name, self.lim, self.ops = name, lim, []

        def add(self, tag):
            self.ops.append(tag)

        def wait(self, tag):
            last = max(i for i, t in enumerate(self.ops) if t == tag)
            n = len(self.ops) - 1 - last
            n = min(n, self.lim)
            return 's_waitcnt %s(%d)' % (self.name, n)

    def gemm(fill, stream=(), start=0, vsp=4):
        L, M = Order('lgkmcnt', 15), Order('vmcnt', 63)
        M.add('old')
        stream = list(stream)

        def emit(o):
            if isinstance(o, tuple):
                if o[0] in ('lds', 'vm'):
                    (L if o[0] == 'lds' else M).add(o[1])
                    A(o[2])
                else:
                    A((L if o[0] == 'wl' else M).wait(o[1]))
            else:
                assert not o.startswith('ds_') and not o.startswith('buffer_'), o
                A(o)

        def txt(o):
            return o[2] if isinstance(o, tuple) and len(o) == 3 else ('s_waitcnt' if isinstance(o, tuple) else o)

        gap = {'t': 4, 'v': 8}

        def fits(o, force=False):
            x = txt(o)
            if x.startswith(';') or x.endswith(':'):
                return True
            if 'mfma' in x:
                gap['t'], gap['v'] = 4, (12 if 'smfmac' in x else 8)
                return True
            if x.startswith('v_'):
                e = max(gap['t'], gap['v']) + (8 if x[:7] in ('v_exp_f', 'v_rcp_f', 'v_perml') else 4)
            elif x.startswith('buffer_') or x.startswith('ds_write'):
                e = gap['t'] + 12
            elif x.startswith('s_cbranch') or x == 's_barrier':
                e = gap['t'] + 8
            else:
                e = gap['t'] + 4
            if e > 16 and not force:
                return False
            gap['t'] = e
            return True

        def put_(o):
            fits(o, True)
            emit(o)

        def rd(ks, tt2):
            put_(('lds', 'x%d' % ks, 'ds_read_b128 %s, v%d offset:%d' % (v(vX + (ks & 3) * 8 + tt2 * 4, 4), vRd, tt2 * 16 * XROW + 16 * (ks & 15) + 1024 * (ks >> 4))))
        for o in fill.get('head', []):
            emit(o)
        for ks in range(3):
            rd(ks, 0); rd(ks, 1)
        emit(('wl', 'x0'))
        last_vm = -99
        for ks in range(32):
            n = 0
            for tt2 in range(2):
                for tt in range(2):
                    acc = v(vD + (tt * 2 + tt2) * 4, 4)
                    put_(mfma(acc, a((ks * 2 + tt) * 4, 4), v(vX + (ks & 3) * 8 + tt2 * 4, 4), acc if ks else '0'))
                    if n in (0, 2) and ks + 3 < 32:
                        rd(ks + 3, n >> 1)
                    if n == 3 and ks < 31:
                        put_(('wl', 'x%d' % (ks + 1)))
                    for o in fill.get((ks, n), []):
                        put_(o)
                    while stream and ks >= start:
                        o = stream[0]
                        if isinstance(o, tuple) and o[0] == 'at':
                            if ks < o[1]:
                                break
                            stream.pop(0)
                            continue
                        if isinstance(o, tuple) and o[0] == 'vm' and 4 * ks + n - last_vm < vsp:
                            break
                        if not fits(o):
                            break
                        if isinstance(o, tuple) and o[0] == 'vm':
                            last_vm = 4 * ks + n
                        emit(stream.pop(0))
                    n += 1
        for o in stream:
            emit(o)
        A('v_sub_u32 v%d, v%d, v%d' % (vRd, vRdSum, vRd))
        for tt2 in range(2):
            for j in range(4):
                A(cv(vF + 4 * tt2 + j, vD + 4 * tt2 + j, vD + 8 + 4 * tt2 + j))
        return L, M, emit

    dsp = opt.get('dsp' + ('q' if kind == 'q' else ''), 4)
    dend = (16 * dsp + 3) // 4

    def base_fill(d0=0):
        fill = {}
        put = lambda g_, os_: fill.setdefault(((g_ >> 2) + d0, g_ & 3), []).extend(os_)
        for i in range(8):
            d = dma_row(i)
            put(2 * i * dsp, d[0:2])
            put(2 * i * dsp + 1, [('vm', 'dma', d[2])])
            put((2 * i + 1) * dsp + 1, [('vm', 'dma', d[3])])
        put(15 * dsp + 2, ['s_sub_u32 s%d, s%d, s%d' % (sM, sMsum, sM), 's_add_u32 s%d, s%d, 0x10000' % (sXo, sXo)])
        return fill

    if kind != 'q':
        adv = lambda r_: 's_add_u32 s%d, s%d, 0x%x' % (r_, r_, SEG)
        outs = ['s_add_u32 s%d, s%d, 4096' % (sB, sOut), ('vm', 'st', stx4(vF, sOut, 0)), ('vm', 'st', stx4(vF + 4, sB, 0)), adv(sOut)]
        if kind == 'k':
            outs += [('vm', 'st', 'buffer_store_dwordx4 %s, v%d, %s, s%d offen sc1' % (v(vSent, 4), vArm, S4(WS), sArm)),
                     ('vm', 'st', stx4(vSent, sKa, 0)), adv(sArm), adv(sKa)]
        else:
            outs += [('vm', 'st', stx4(vG + 4 * et, sOut2, et * 1024)) for et in range(2)] + [adv(sOut2)]
        pf = [('vm', 'pf', 'buffer_load_dwordx4 %s, v%d, %s, s%d offen' % (v(vJ, 4), vL16, S4(SRD_B), sPf)), 's_add_u32 s%d, s%d, 0x10000' % (sPf, sPf)]

        def transpose_v():
            if kind == 'v':
                for et in range(2):
                    for tt2 in range(2):
                        A(mfma(v(vD2 + (et * 2 + tt2) * 4, 4), v(vF + 4 * tt2, 4), v(vSel + 4 * et, 4), '0'))
                for i in range(8):
                    A(cv(vG + i, vD2 + 2 * i, vD2 + 2 * i + 1))
        NI = opt.get('ni', 6)
        assert nfuse == 2 and opt.get('kvm', 1)
        if True:
            cvs = lambda d_: [cv(vF + 4 * tt2 + j, d_ + 4 * tt2 + j, d_ + 8 + 4 * tt2 + j) for tt2 in range(2) for j in range(4)]
            T = Asm()
            A0, A.lines = A.lines, T.lines
            transpose_v()
            A.lines = A0
            tv = [l.strip() for l in T.lines]
            mk = lambda i: ['s_memrealtime s[%d:%d]' % (80 + 2 * i, 81 + 2 * i), 's_waitcnt lgkmcnt(0)'] if opt.get('prof') else []
            fb, fa = opt.get('fb', 12), opt.get('fa', 4)
            fill = base_fill(fb + 1)
            first = [(o[0], 's0', o[2]) if isinstance(o, tuple) else o for o in outs[:4]]
            fill['head'] = cvs(vD) + first + mk(0) + tv + outs[4:] + cvs(vDb) + tv + outs + ['v_mov_b32 v%d, 1' % t3]
            for i in range(8):
                d = xpiece(0, i, 1)
                fill.setdefault((i, 0), []).extend(d[:2])
                fill.setdefault((i, 1), []).append(('vm', 'x2', d[2]))
            fill.setdefault((fa, 3), []).extend(mk(1) + [('wv', 's0'), 's_barrier', ('vm', 'fl', flag_st)] + mk(2))
            fill.setdefault((8, 1), []).extend(['s_sub_u32 s%d, s%d, s%d' % (sM, sMsum, sM), 's_add_u32 s%d, s%d, 0x10000' % (sXo, sXo),
                                                'v_mov_b32 v%d, 2' % t3])
            fill.setdefault((fb, 3), []).extend([('wv', 'x2'), 's_barrier', ('vm', 'fl', flag_st)])
            A('s_add_u32 s%d, s%d, 0x20000' % (sPf, sPf))
            L, M, emit = gemm(fill, pf, fb + 1 + dend)
            transpose_v()
            A('s_mov_b32 s%d, 3' % sSeg)
            A(M.wait('dma'))
            A('s_barrier')
            NE = opt.get('ne', 14)
            A.label(P + '_loope')
            nst = sum(isinstance(o, tuple) for o in outs)
            fill = base_fill(nst)
            fk = opt.get('fk', 20)
            fill.setdefault((fk, 3), []).extend([('wv', 'st'), 's_barrier', ('vm', 'fl', flag_st)])
            fill.setdefault((nst + dend, 1), []).extend(pf)
            L, M, emit = gemm(fill, outs + ['v_mov_b32 v%d, s%d' % (t3, sSeg)], 0)
            transpose_v()
            A('s_add_u32 s%d, s%d, 1' % (sSeg, sSeg))
            A('s_cmp_le_u32 s%d, %d' % (sSeg, NE))
            A(M.wait('dma'))
            A('s_barrier')
            A('s_cbranch_scc1 %s_loope' % P)
            A('.p2align 6')
            A.label(P + '_loop')
            L, M, emit = gemm(base_fill(), ['s_sub_u32 s%d, s%d, 2' % (sB, sSeg), 's_max_u32 s%d, s%d, %d' % (sB, sB, NE), 'v_mov_b32 v%d, s%d' % (t3, sB), ('vm', 'fl', flag_st)] + outs + pf, dend)
            transpose_v()
            A('s_add_u32 s%d, s%d, 1' % (sSeg, sSeg))
        else:
            A.label(P + '_loop0')
            L, M, emit = gemm(base_fill(), pf, dend)
            transpose_v()
            A('s_add_u32 s%d, s%d, 1' % (sSeg, sSeg))
            A('s_cmp_gt_u32 s%d, %d' % (sSeg, NI))
            A('s_cbranch_scc1 %s_ent0' % P)
            for o in outs:
                emit(o)
            A('v_mov_b32 v%d, s%d' % (t3, sSeg))
            A('s_waitcnt vmcnt(0)')
            A('s_barrier')
            A(flag_st)
            A('s_branch %s_loop0' % P)
            A.label(P + '_ent0')
            A('s_waitcnt vmcnt(0)')
            A('s_barrier')
            A('.p2align 6')
            A.label(P + '_loop')
            L, M, emit = gemm(base_fill(), ['s_sub_u32 s%d, s%d, 2' % (sB, sSeg), 's_max_u32 s%d, s%d, %d' % (sB, sB, NI), 'v_mov_b32 v%d, s%d' % (t3, sB), ('vm', 'fl', flag_st)] + outs + pf, dend)
            transpose_v()
            A('s_add_u32 s%d, s%d, 1' % (sSeg, sSeg))
        if opt.get('prof'):
            for sg, sl_ in ((16, 11), (48, 12)):
                Lx = A.newlabel('L_pf')
                A('s_cmp_lg_u32 s%d, %d' % (sSeg, sg))
                A('s_cbranch_scc1 ' + Lx)
                tstamp(A, opt, sl_, t0, t1, sA)
                A('s_waitcnt vmcnt(0)')
                A.label(Lx)
        A('s_cmp_lt_u32 s%d, 64' % sSeg)
        A(M.wait('dma'))
        A('s_barrier')
        A('s_cbranch_scc1 %s_loop' % P)
        A('s_xor_b32 s%d, s%d, 0x2000' % (sKa, sKa))
        for o in outs:
            emit(o)
    else:
        ld_m = [ldx4(vKm, sKm, 0), ldx4(vKm + 4, sKm, 1024), ldx4(vVm, sVm, 2048)]
        mregs = list(range(vKm, vKm + 8)) + list(range(vVm, vVm + 4))
        probe = ['v_mov_b32 v%d, 0' % vFv, 'buffer_atomic_add v%d, v%d, %s, s%d offen sc0 sc1' % (vFv, vFm, S4(WS), sKm)]
        stage = ['s_mov_b32 m0, s%d' % sMk, 's_nop 0'] + [('vm', 'kv', 'buffer_load_dwordx4 v%d, %s, s%d offen offset:%d sc1 lds' % (vL16, S4(WS), sKs, 1024 * f)) for f in range(4)] \
            + ['s_add_u32 s%d, s%d, 0x%x' % (sKs, sKs, SEG)]
        reads = [('lds', 'q', 'ds_read_b128 %s, v%d offset:%d' % (v(vQ + 4 * j, 4), vQr, j * 1024)) for j in range(4)] \
            + [('lds', 'k', 'ds_read_b128 %s, v%d offset:%d' % (v(vKx + 4 * f, 4), vKr, f * 1024)) for f in range(8)] \
            + [('lds', 'vt', 'ds_read_b128 %s, v%d offset:%d' % (v(vVT + 4 * f, 4), vVr, f * 1024)) for f in range(4)]

        def attention(tag):
            qpk = opt.get('qpk', 0)
            zr = lambda b, n_: ['v_mov_b64 %s, 0' % v(b + i, 2) for i in range(0, n_, 2)] if qpk & 1 else ['v_mov_b32 v%d, 0' % (b + i) for i in range(n_)]
            p1 = zr(MM, 4)
            for j in range(4):
                for tt in range(2):
                    acc = v(vS + 4 * tt, 4)
                    p1.append(mfma(acc, v(vKx + (tt * 4 + j) * 4, 4), v(vQ + 4 * j, 4), acc if j else v(vBias + 4 * tt, 4)))
            T = Asm()
            maxall(T, mregs, t0)
            p2 = [('wv', 'm')] + [l.strip() for l in T.lines] + ['v_cmp_eq_u32 vcc, -1, v%d' % t0]
            p2 += zr(vD3, 16)
            p2 += ['s_cbranch_vccnz L_q_bad%s' % tag, 'L_q_ok%s:' % tag]
            T = Asm()
            for u in range(2):
                T('v_smfmac_f32_16x16x64_bf16 %s, %s, %s, v%d' % (v(MM, 4), v(vKm + 4 * u, 4), v(vQ + 8 * u, 8), vIdx))
            win = {(0, 0): 4, (1, 0): 0, (0, 1): 12, (1, 1): 8}
            mx = ['v_max3_f32 v%d, v%d, v%d, v%d' % (t0, vS, vS + 1, vS + 2), 'v_max3_f32 v%d, v%d, v%d, v%d' % (t0, t0, vS + 3, vS + 4),
                  'v_max3_f32 v%d, v%d, v%d, v%d' % (t0, t0, vS + 5, vS + 6), 'v_max_f32 v%d, v%d, v%d' % (t0, t0, vS + 7)]
            for qp in range(2):
                for et in range(2):
                    T('v_smfmac_f32_16x16x64_bf16 %s, %s, %s, v%d' % (v(vD3 + (qp * 2 + et) * 4, 4), v(vVm, 4), v(vStrip + win[(qp, et)], 8), vIdx))
                    T(mx.pop(0))
            T('v_permlane32_swap_b32 v%d, v%d' % (MM, MM + 2))
            T('v_permlane32_swap_b32 v%d, v%d' % (MM + 1, MM + 3))
            T('v_add_f32 v%d, v%d, v%d' % (MM, MM, MM + 2))
            T('v_add_f32 v%d, v%d, v%d' % (MM + 1, MM + 1, MM + 3))
            T('v_max3_f32 v%d, v%d, v%d, v%d' % (t0, t0, MM, MM + 1))
            cm = [cv(vVmT + i, vD3 + 2 * i, vD3 + 2 * i + 1) for i in range(8)]
            for sw in ('v_permlane32_swap_b32', 'v_permlane16_swap_b32'):
                T('v_mov_b32 v%d, v%d' % (t1, t0))
                T(cm.pop(0)); T(cm.pop(0))
                T('%s v%d, v%d' % (sw, t0, t1))
                T('v_max_f32 v%d, v%d, v%d' % (t0, t0, t1))
            T('v_mul_f32 v%d, s%d, v%d' % (t0, sScale, t0))
            regs = [vS + i for i in range(8)] + [MM, MM + 1]
            for r_ in regs:
                if not qpk & 2:
                    T('v_fma_f32 v%d, v%d, s%d, -v%d' % (r_, r_, sScale, t0))
                elif r_ & 1 == 0:
                    T('v_pk_fma_f32 %s, %s, %s, %s op_sel_hi:[1,0,0] neg_lo:[0,0,1] neg_hi:[0,0,1]' % (v(r_, 2), v(r_, 2), s(sScale, 2), v(t0, 2)))
            for r_ in regs:
                T('v_exp_f32 v%d, v%d' % (r_, r_))
            for i in range(4):
                T(cv(vP + i, vS + 2 * i, vS + 2 * i + 1))
            T(cv(vPm, MM, MM + 1))
            T(cv(vPm + 1, MM, MM + 1))
            T(mfma(v(vLs, 4), v(vOne, 4), v(vP, 4), '0'))
            T(cm.pop(0))
            T('v_permlane32_swap_b32 v%d, v%d' % (vPm, vPm + 1))
            for e in range(4):
                T(mfma(v(vO + 4 * e, 4), v(vVT + 4 * e, 4), v(vP, 4), '0'))
                if cm:
                    T(cm.pop(0))
            m16 = lambda d, x: 'v_mfma_f32_16x16x16_bf16 %s, %s, %s, %s' % (v(d, 4), v(x, 2), v(vPm, 2), v(d, 4))
            T(m16(vLs, vHalf))
            for e in range(4):
                T(m16(vO + 4 * e, vVmT + 2 * e))
            T('v_rcp_f32 v%d, v%d' % (t0, vLs))
            p2 += [l.strip() for l in T.lines]
            p3 = []
            for qp in range(2):
                if qpk & 4:
                    p3 += ['v_pk_mul_f32 %s, %s, %s op_sel_hi:[1,0]' % (v(vO + 8 * qp + i, 2), v(vO + 8 * qp + i, 2), v(t0, 2)) for i in range(0, 8, 2)]
                else:
                    p3 += ['v_mul_f32 v%d, v%d, v%d' % (vO + 8 * qp + i, vO + 8 * qp + i, t0) for i in range(8)]
                p3 += [cv(vG + 4 * qp + j, vO + 8 * qp + j, vO + 8 * qp + 4 + j) for j in range(4)]
                p3 += [('vm', 'o', stx4(vG + 4 * qp, sOut, qp * 1024))]
            p3 += ['s_add_u32 s%d, s%d, 0x%x' % (sOut, sOut, SEG)]
            return p1, p2, p3

        qwr = [('lds', 'qw', 'ds_write_b128 v%d, %s' % (vQw, v(vF, 4))), ('lds', 'qw', 'ds_write_b128 v%d, %s offset:4096' % (vQw, v(vF + 4, 4)))]
        if opt.get('qw64', 1):
            qwr = [('lds', 'qw', 'ds_write_b64 v%d, %s offset:%d' % (vQw, v(vF + 2 * i, 2), 4096 * (i >> 1) + 8 * (i & 1))) for i in range(4)]

        def q_end(M, tags):
            A(min((M.wait(t) for t in tags), key=lambda x: int(x[x.index('(') + 1:-1])))
            A('v_cmp_eq_u32 vcc, -1, v%d' % vFv)
            A('s_barrier')
        xt = []
        if opt.get('qxt', 1):
            vXt = V('xt')
            bits(A, vXt, [(0, 4, 7), (4, 2, 30)], t0)
            A('s_and_b32 s%d, s%d, 7' % (sA, sH))
            A('s_lshl_b32 s%d, s%d, 13' % (sA, sA))
            A('s_mul_i32 s%d, s%d, %d' % (sB, sW, 2048 - 16384))
            A('s_add_u32 s%d, s%d, s%d' % (sA, sA, sB))
            A('s_add_u32 s%d, s%d, 0x10000' % (sA, sA))
            A('v_add_u32 v%d, s%d, v%d' % (vXt, sA, vXt))
            xt = [('vm', 'xt', 'buffer_load_dword v252, v%d, %s, s%d offen' % (vXt, S4(SRD_B), sXo))]
        if opt.get('prof'):
            A('s_mov_b64 s[98:99], 0')
            A('v_mov_b32 v251, 0')
        L, M, emit = gemm(base_fill())
        for o in qwr:
            A(o[2])
        A('s_waitcnt vmcnt(0) lgkmcnt(0)')
        wait_flags(A, t0, t3, '2', 4)
        A('s_barrier')
        qv = opt.get('qv', 3)
        L, M, emit = gemm(base_fill(), (stage if qv != 2 else []) + [probe[0], ('vm', 'pr', probe[1])], dend)
        q_end(M, ['pr'])
        A('.p2align 6')
        A.label('L_q_loop')
        A('s_cbranch_vccz L_q_go')
        if opt.get('prof'):
            A('s_bitset1_b64 s[98:99], s%d' % sSeg)
        poll_data(A, probe, [vFv, vFv], t0, opt.get('qsl', 4))
        A.label('L_q_go')
        if opt.get('prof'):
            A('s_memrealtime s[96:97]')
            A('s_mov_b32 m0, s%d' % sSeg)
            A('s_waitcnt lgkmcnt(0)')
            A('v_writelane_b32 v251, s96, m0')
        adv = ['s_add_u32 s%d, s%d, 0x%x' % (n_, n_, SEG) for n_ in (sKm, sVm)]
        if qv == 2:
            d0, kb = opt.get('qd0', 7), opt.get('qkb', 10)
            fill = base_fill(d0)
            put = lambda k_, n_, os_: fill.setdefault((k_, n_), []).extend(os_)
            fill['head'] = stage[:3]
            slow = stage[3:6] + [('vm', 'm', o) for o in ld_m] + xt
            for i, o in enumerate(slow):
                put(i >> 1, 1 + 2 * (i & 1), [o])
            put(4, 1, [stage[6]])
            for i in range(4):
                put(4 + (i >> 1), 1 + 2 * (i & 1), [reads[i]])
            put(kb - 1, 3, ['v_mov_b32 v%d, s%d' % (t3, sSeg), ('wl', 'q'), ('wv', 'kv'), 's_barrier'])
            for i in range(12):
                put(kb + i // 3, (0, 2, 3)[i % 3], [reads[4 + i]])
            pk_ = d0 + dend
            put(pk_, 1, [probe[0]])
            put(pk_, 3, [('vm', 'pr', probe[1])])
            put(pk_ + 1, 3, [('vm', 'fl', flag_st)])
            put(pk_ + 2, 1, [qwr[0]])
            put(pk_ + 3, 1, [qwr[1]])
            p1, p2, p3 = attention('')
            k1 = p2.index('L_q_ok:') + 1
            zd = [o for o in p2[:k1] if isinstance(o, str) and o.startswith('v_mov_b32')]
            chk_ = [o for o in p2[:k1] if o not in zd]
            L, M, emit = gemm(fill, p1[:4] + chk_ + adv + ['; adv', ('at', kb + 3), ('wl', 'k')] + p1[4:] + zd + [('wl', 'vt')] + p2[k1:] + p3, kb, 0)
            A('s_add_u32 s%d, s%d, 1' % (sSeg, sSeg))
            A('s_cmp_lt_u32 s%d, 62' % sSeg)
            q_end(M, ['pr'])
            body = A.lines[A.lines.index('L_q_go:'):]
            assert body.index('    ; adv') < body.index('    ' + probe[1])
        else:
            d0 = opt.get('qd0', 3)
            fill = base_fill(d0)
            dend += d0
            put = lambda k_, n_, os_: fill.setdefault((k_, n_), []).extend(os_)
            for i in range(3):
                put(i, 1, [('vm', 'm', ld_m[i])])
            rs_ = opt.get('qrs', 4)
            pos = [(k_, n_) for k_ in range(24) for n_ in ((3,) if (rs_ == 2 or (rs_ == 3 and k_ & 1)) else (2, 3))]
            for i in range(16):
                put(pos[i][0], pos[i][1], [reads[i]])
            put(dend, 0, ['; stage', stage[0], probe[0]])
            tail_ = [('vm', 'pr', probe[1])] + stage[2:6] + xt + [('vm', 'fl', flag_st)] + qwr
            for i, o in enumerate(tail_):
                put(dend + i, 1, [o])
            put(dend + 5, 2, [stage[6]])
            p1, p2, p3 = attention('')
            mid = [('at', pos[15][0] + 2), ('wv', 'old'), 'v_mov_b32 v%d, s%d' % (t3, sSeg), ('wl', 'vt'), 's_barrier']
            k1 = p2.index('L_q_ok:') + 1
            zd = [o for o in p2[:k1] if isinstance(o, str) and o.startswith('v_mov_b')]
            chk_ = [o for o in p2[:k1] if o not in zd]
            nz = len([o for o in p1 if o.startswith('v_mov_b')])
            seq = p1[:nz] + [('at', pos[11][0] + 2), ('wl', 'k')] + p1[nz:] + zd + chk_ + adv + ['; adv'] + mid + p2[k1:] + p3
            L, M, emit = gemm(fill, seq, 1, 0)
            A('s_add_u32 s%d, s%d, 1' % (sSeg, sSeg))
            A('s_cmp_lt_u32 s%d, 62' % sSeg)
            q_end(M, ['pr', 'kv'])
            body = A.lines[A.lines.index('L_q_go:'):]
            assert body.index('    s_barrier') < body.index('    ; stage') and body.index('    ; adv') < body.index('    ; stage')
        A('s_cbranch_scc1 L_q_loop')
        plain = lambda ops: [A(o[2] if isinstance(o, tuple) else o) for o in ops]
        for tag in 'yz':
            p1, p2, p3 = attention(tag)
            if tag == 'y':
                if qv == 2:
                    plain(stage)
                A('s_cbranch_vccz L_q_go2')
                poll_data(A, probe, [vFv, vFv], t0, 1)
                A.label('L_q_go2')
                plain(ld_m)
                if qv == 2:
                    A('s_waitcnt vmcnt(3)')
                    A('s_barrier')
            else:
                plain(probe)
            for i, o in enumerate(reads):
                A(o[2])
                if i == 11:
                    A('s_waitcnt lgkmcnt(0)')
            plain(p1)
            A('v_mov_b32 v%d, %d' % (t3, 62 if tag == 'y' else 63))
            A('s_waitcnt vmcnt(0) lgkmcnt(0)')
            A('s_barrier')
            if tag == 'z':
                mark(A, opt, 0)
                A('v_cmp_eq_u32 vcc, -1, v%d' % vFv)
                A('s_cbranch_vccz L_q_go3')
                poll_data(A, probe, [vFv, vFv], t0, 0)
                A.label('L_q_go3')
                mark(A, opt, 1)
                plain(ld_m)
                A(flag_st)
                A('s_waitcnt vmcnt(1)')
                mark(A, opt, 2)
            k1 = p2.index('L_q_ok%s:' % tag) + 1
            plain(p2[1:k1])
            if tag == 'y':
                plain(qwr + stage + adv + ([flag_st] if opt.get('f62', 1) else []))
                for n_ in (sKm, sVm):
                    A('s_xor_b32 s%d, s%d, 0x2000' % (n_, n_))
            plain(p2[k1:] + p3)
            if tag == 'y':
                A('s_waitcnt vmcnt(%d) lgkmcnt(0)' % (2 + opt.get('f62', 1)))
                A('s_barrier')
        mark(A, opt, 3)
        A('s_branch L_q_fin')
        for tag in ('', 'y', 'z'):
            A.label('L_q_bad' + tag)
            poll_data(A, ld_m, mregs, t0, 1)
            A('s_branch L_q_ok' + tag)
        A.label('L_q_fin')
        if opt.get('prof'):
            A('v_writelane_b32 v251, s98, 62')
            A('v_writelane_b32 v251, s99, 63')
            A('s_lshl_b32 s%d, s%d, 2' % (sA, sH))
            A('s_add_u32 s%d, s%d, s%d' % (sA, sA, sW))
            A('s_lshl_b32 s%d, s%d, 8' % (sA, sA))
            A('s_add_u32 s%d, s%d, 0x%x' % (sA, sA, PROF + 4 * MB))
            A('v_lshlrev_b32 v%d, 2, v0' % t0)
            A('buffer_store_dword v251, v%d, %s, s%d offen' % (t0, S4(WS), sA))
    A('s_waitcnt vmcnt(0)')
    A('v_mov_b32 v%d, 64' % t3)
    A('s_barrier')
    A(flag_st)
    tstamp(A, opt, 2, t0, t1, sA)
    if kind != 'q':
        mark_dump(A, opt, 2, 3, t0, t1, sA)
        if opt.get('prof'):
            A('s_mov_b32 s78, s84')
            tstamp(A, opt, 14, t0, t1, sA, now=False)
    if kind == 'q':
        mark_dump(A, opt, 4, 11, t0, t1, sA)
    if opt.get('hold') == 3 and kind == 'q':
        hold_after(A, 40)
    if kind == 'q' or opt.get('chainonly'):
        A('s_endpgm')
    else:
        A('s_branch L_o_join2')


def vote(A, sH, t0, t1, t2, sA, sB, sBase, sL0, sL1):
    A('s_and_b32 s%d, s%d, 1' % (sA, sH))
    A('s_or_b32 s%d, s%d, s%d' % (sA, sA, sW))
    A('s_cbranch_scc1 L_vote_done')
    A('v_lshlrev_b32 v%d, 2, v0' % t1)
    A('v_mov_b32 v%d, 0' % t2)
    A('s_mul_i32 s%d, s%d, 0x700000' % (sBase, sH))
    A('s_add_u32 s%d, s%d, 0x1f8000' % (sBase, sBase))
    A('s_mov_b32 s%d, -1' % sL0)
    A('s_mov_b32 s%d, -1' % sL1)
    for smp in range(3):
        for par in range(2):
            A('s_memtime s[96:97]')
            A('s_waitcnt vmcnt(0) lgkmcnt(0)')
            A('buffer_store_dword v%d, v%d, %s, s%d offen offset:%d sc1' % (t2, t1, S4(WS), sBase, smp * 256))
            A('s_waitcnt vmcnt(0)')
            A('s_memtime s[98:99]')
            A('s_xor_b32 s%d, s%d, 0x2000' % (sBase, sBase))
            A('s_waitcnt lgkmcnt(0)')
            A('s_sub_u32 s98, s98, s96')
            A('s_min_u32 s%d, s%d, s98' % ((sL0, sL1)[par], (sL0, sL1)[par]))
    A('s_cmp_lt_u32 s%d, s%d' % (sL1, sL0))
    A('s_cselect_b32 s%d, 1, 0' % sA)
    A('s_lshr_b32 s%d, s%d, 2' % (sB, sX))
    A('s_xor_b32 s%d, s%d, s%d' % (sA, sA, sB))
    A('s_bfe_u32 s%d, s%d, 0x10015' % (sB, sBase))
    A('s_xor_b32 s%d, s%d, s%d' % (sA, sA, sB))
    A('s_add_u32 s%d, s%d, 0x10000' % (sA, sA))
    A('v_mov_b32 v%d, s%d' % (t0, sA))
    A('s_mov_b64 exec, 1')
    A('buffer_atomic_add v%d, v%d, %s, 0 offen offset:%d sc1' % (t0, t2, S4(DBG), VOTE))
    A('s_mov_b64 exec, -1')
    A.label('L_vote_done')
    A('s_barrier')
```

```python
import sys, re
from common import *
from workers import proj
from orole import orole


def prologue(A, opt):
    A('s_cmp_ge_u32 s2, 256')
    A('s_cbranch_scc1 L_end0')
    A('s_load_dwordx16 s[64:79], s[0:1], 0')
    A('s_load_dwordx16 s[80:95], s[0:1], 64')
    A('s_getreg_b32 s%d, hwreg(HW_REG_XCC_ID)' % sX)
    A('s_and_b32 s%d, s%d, 7' % (sX, sX))
    if opt.get('sw'):
        A('s_xor_b32 s%d, s%d, 4' % (sX, sX))
    A('v_lshrrev_b32 v1, 6, v0')
    A('v_and_b32 v0, 63, v0')
    A('v_readfirstlane_b32 s%d, v1' % sW)
    A('s_mov_b32 s%d, %d' % (sTO, TIMEOUT))
    if opt.get('cw', 0):
        A('s_lshr_b32 s36, s2, 3')
        A('s_lshl_b32 s37, s%d, 5' % sW)
        A('s_add_u32 s36, s36, s37')
        touch_code(A, 'L_code0', 'L_code1', 36, SRD_E, 2)
        A.label('L_code0')
    A('s_waitcnt lgkmcnt(0)')
    srd(A, WS, P_WS, WS_BYTES)
    srd(A, DBG, P_DBG, 256)
    if opt.get('prof') or opt.get('diag'):
        A('s_memrealtime s[76:77]')
    for i in range(4):
        A('v_mov_b32 v%d, -1' % (4 + i))
    A('s_lshl_b32 s36, s2, 2')
    A('s_add_u32 s36, s36, s%d' % sW)
    A('s_lshl_b32 s37, s36, 10')
    A('s_add_u32 s37, s37, 0x%x' % INIT1)
    A('s_bfe_u32 s38, s36, 0x50003')
    A('s_mul_i32 s38, s38, 0x%x' % ROW)
    A('s_bfe_u32 s39, s36, 0x20001')
    A('s_lshl_b32 s39, s39, 12')
    A('s_add_u32 s38, s38, s39')
    A('s_and_b32 s39, s36, 1')
    A('s_lshl_b32 s39, s39, 10')
    A('s_add_u32 s38, s38, s39')
    A('s_add_u32 s38, s38, 0x%x' % PART)
    A('s_cmp_ge_u32 s36, 768')
    A('s_cselect_b32 s37, s38, s37')
    A('s_lshl_b32 s36, s36, 8')
    A('s_add_u32 s36, s36, 0x%x' % INIT2)
    A('v_lshlrev_b32 v2, 4, v0')
    A('v_lshlrev_b32 v3, 2, v0')
    A('buffer_store_dwordx4 v[4:7], v2, %s, s37 offen sc1' % S4(WS))
    A('buffer_store_dword v4, v3, %s, s36 offen sc1' % S4(WS))
    wu = opt.get('wu', 1)
    wu = 2 * wu
    npre = opt.get('wupre', 0)

    def warm(lo, hi):
        for o in ['buffer_load_dword v252, v8, %s, s38 offen' % S4(SRD_A), 'buffer_load_dword v252, v9, %s, s38 offen offset:0x780' % S4(SRD_A)][lo:hi]:
            A(o)
    if wu:
        A('s_lshr_b32 s38, s2, 3')
        A('s_lshl_b32 s38, s38, 2')
        A('s_add_u32 s38, s38, s%d' % sW)
        A('s_lshr_b32 s39, s38, 5')
        A('s_and_b32 s38, s38, 31')
        A('s_and_b32 s42, s%d, 3' % sX)
        A('s_mov_b64 s[40:41], s[%d:%d]' % (P_WK, P_WK + 1))
        for m_, p_ in ((1, P_WV), (2, P_WQ), (3, P_WO)):
            A('s_cmp_eq_u32 s39, %d' % m_)
            A('s_cselect_b64 s[40:41], s[%d:%d], s[40:41]' % (p_, p_ + 1))
        A('s_cselect_b32 s43, 11, 13')
        A('s_cselect_b32 s44, 21, 11')
        A('s_lshl_b32 s42, s42, s44')
        A('s_add_u32 s44, s43, 5')
        A('s_lshl_b32 s38, s38, s44')
        A('s_add_u32 s38, s38, s42')
        A('v_lshrrev_b32 v8, 1, v0')
        A('v_lshlrev_b32 v8, s43, v8')
        A('v_and_b32 v9, 1, v0')
        A('v_lshl_add_u32 v8, v9, 10, v8')
        A('s_and_b32 s42, s%d, 3' % sX)
        A('s_cmp_eq_u32 s42, 3')
        A('s_cselect_b32 s42, 0, 0x%x' % OOB)
        A('v_lshlrev_b32 v9, 29, v9')
        A('v_add3_u32 v9, v8, v9, s42')
        A('v_add_u32 v8, 384, v8')
        A('s_lshr_b32 s42, s%d, 2' % sX)
        A('s_lshl_b32 s42, s42, 30')
        A('s_add_u32 s38, s38, s42')
        srd(A, SRD_A, 40, 8 * MB)
        warm(0, npre)
    A('s_waitcnt vmcnt(%d)' % npre)
    A('s_barrier')
    A('s_lshl_b32 s%d, s%d, 5' % (sR, sX))
    if opt.get('fakex'):
        A('s_cmp_eq_u32 s%d, 3' % sX)
        A('s_cbranch_scc0 L_fk')
        A('s_and_b32 s37, s2, 24')
        A('s_cbranch_scc0 L_fk')
        A('v_lshlrev_b32 v3, 5, v0')
        A.label('L_fk1')
        A('buffer_load_dword v1, v3, %s, 0 offen sc1' % S4(DBG))
        A('s_waitcnt vmcnt(0)')
        A('v_readlane_b32 s37, v1, 2')
        A('s_cmp_lg_u32 s37, -1')
        A('s_cbranch_scc1 L_fk1')
        A('s_mov_b32 s%d, 0x40' % sR)
        A.label('L_fk')
    A('s_lshr_b32 s37, s2, 3')
    A('s_lshl_b32 s36, 1, s37')
    A('v_mov_b32 v254, s36')
    A('s_cmp_eq_u32 s%d, 0' % sW)
    A('s_cselect_b32 s36, 0, 0x%x' % OOB)
    lane0_addr(A, 12, 36, 13)
    A('buffer_atomic_or v254, v12, %s, s%d offen sc0 sc1' % (S4(DBG), sR))
    A('s_add_u32 s%d, s%d, s37' % (sR, sR))
    warm(npre, wu)
    A('s_branch L_go')
    A.label('L_redo')
    A('v_mov_b32 v12, 0')
    A('v_mov_b32 v13, %d' % (LTOP + 4))
    A('s_waitcnt vmcnt(0) lgkmcnt(0)')
    A('s_cmp_lg_u32 s%d, 0' % sW)
    A('s_cbranch_scc1 L_tk')
    A('s_and_b32 s36, s%d, 0xe0' % sR)
    A.label('L_cl')
    A('v_readfirstlane_b32 s38, v254')
    A('s_ff0_i32_b32 s37, s38')
    A('s_cmp_lt_i32 s37, 0')
    A('s_cbranch_scc1 L_full')
    A('s_lshl_b32 s38, 1, s37')
    A('v_mov_b32 v254, s38')
    A('s_mov_b64 exec, 1')
    A('buffer_atomic_or v254, v12, %s, s36 offen sc0 sc1' % S4(DBG))
    A('s_mov_b64 exec, -1')
    A('s_waitcnt vmcnt(0)')
    A('v_readfirstlane_b32 s38, v254')
    A('s_bitcmp1_b32 s38, s37')
    A('s_cbranch_scc1 L_cl')
    A('s_add_u32 s36, s36, s37')
    A('s_branch L_tk_w')
    A.label('L_full')
    A('v_mov_b32 v1, 1')
    A('s_mov_b64 exec, 1')
    A('buffer_atomic_add v1, v12, %s, 0 offen offset:%d sc0 sc1' % (S4(DBG), VOTE + 4))
    A('s_mov_b64 exec, -1')
    A('s_waitcnt vmcnt(0)')
    A('v_readfirstlane_b32 s37, v1')
    A.label('L_ov')
    init_load(A, 1, 3)
    A('s_waitcnt vmcnt(0)')
    arrived(A, 1, 3, 38, 39)
    A('s_cmp_ge_u32 s38, 256')
    A('s_cbranch_scc1 L_ov1')
    A('s_sleep 4')
    timeout_stub(A, 'L_ov')
    A.label('L_ov1')
    A('s_mov_b32 s36, -1')
    A.label('L_ov2')
    A('s_add_u32 s36, s36, 1')
    A('s_cmp_ge_u32 s36, 256')
    A('s_cbranch_scc1 L_tk_w')
    A('s_lshr_b32 s39, s36, 5')
    A('v_readlane_b32 s38, v1, s39')
    A('s_bitcmp1_b32 s38, s36')
    A('s_cbranch_scc1 L_ov2')
    A('s_sub_u32 s37, s37, 1')
    A('s_cbranch_scc0 L_ov2')
    A.label('L_tk_w')
    A('v_mov_b32 v1, s36')
    A('ds_write_b32 v13, v1')
    A('s_waitcnt lgkmcnt(0)')
    A.label('L_tk')
    A('s_barrier')
    A('ds_read_b32 v1, v13')
    A('v_mov_b32 v254, 0')
    A('s_waitcnt lgkmcnt(0)')
    A('v_readfirstlane_b32 s%d, v1' % sR)
    A('s_cmp_ge_u32 s%d, 256' % sR)
    A('s_cbranch_scc1 L_end0')
    A.label('L_go')
    A('s_lshr_b32 s%d, s%d, 4' % (sG, sR))
    A('s_and_b32 s%d, s%d, 15' % (sC, sR))
    A('s_cmp_lt_u32 s%d, 128' % sR)
    A('s_cbranch_scc1 L_chain')
    A('s_bfe_u32 s%d, s%d, 0x20005' % (sG, sR))
    A('s_lshl_b32 s%d, s%d, 3' % (sG, sG))
    A('s_and_b32 s36, s%d, 7' % sR)
    A('s_add_u32 s36, s36, s%d' % sG)
    A('s_bfe_u32 s%d, s%d, 0x20003' % (sC, sR))
    A('s_cmp_eq_u32 s%d, 0' % sC)
    A('s_cbranch_scc1 L_k')
    A('s_cmp_eq_u32 s%d, 1' % sC)
    A('s_cbranch_scc1 L_v')
    A('s_cmp_eq_u32 s%d, 2' % sC)
    A('s_cbranch_scc1 L_q')
    A('s_branch L_o')
    A.label('L_end0')
    A('s_endpgm')


def chain(A, opt):
    prof = opt.get('prof', 0) == 1
    shr_ = opt.get('shr', 1)
    lite = opt.get('prof', 0) >= 1
    V = Alloc(1, 252)
    vL16, vL4, vQst, vVst, vKst, vIdx, vSent = [V(n) for n in 'l16 l4 qst vst kst idx sent'.split()]
    vW1q, vW1k, vR1, vR1v = V('w1q'), V('w1k'), V('r1'), V('r1v')
    vW2, vR2, vW2l, vR2l = V('w2'), V('r2'), V('w2l'), V('r2l')
    vT0, vT1, vT2, vT3 = V('t0'), V('t1'), V('t2'), V('t3')
    vQK, vVv, vBias = V('qk'), V('vv'), V('bias')
    vFa, vFv = V('fa'), V('fv')
    vM = V('m', 16, 4)
    vA = V('acc', 24, 4)
    vQ = V('q', 16, 4)
    vKm, vVm = V('km', 8, 4), V('vm', 8, 4)
    vKx, vVx = V('kx', 32, 4), V('vx', 32, 4)
    vS = V('s', 8, 4)
    MM = V('mm', 4, 4)
    vP, vPs = V('p', 4, 4), V('ps', 4, 4)
    vPm, vPms = V('pm', 2), V('pms', 2)
    vOne, vSel, vHalf = V('one', 4, 4), V('sel', 4, 4), V('half', 2)
    vVOx = V('vox', 16, 4)
    vT = V('tacc', 32, 4)
    vVOm = vT + 16
    vF = vT + 16
    vR = vVm
    vO = vA
    vLs = vA + 8
    vR2d = vA + 12
    vPt = vS
    S = Alloc(36, 62)
    sStep, sMemR, sMemW, sQkvW, sQkvR, sQkvR2 = S('step'), S('memr'), S('memw'), S('qkvw'), S('qkvr'), S('qkvr2')
    sKx, sKx2, sVx, sVx2, sPartR, sPartA, sKvm = [S(n) for n in 'kx kx2 vx vx2 pr pa kvm'.split()]
    sA, sB, sCc, sD = S('a'), S('b'), S('cc'), S('d')
    sScale, sFo, sPf = S('scale'), S('fo'), S('pf')
    sN1, sN2, sN3 = 64, 65, 66
    sLo = 0
    sKn, sPartR2, sGp = S('kn'), S('pr2'), S('gp')
    sSide = 3
    sSc2 = 2
    assert vT0 % 2 == 0
    LDSL = 20480
    LDS1, LDS2, LDSW = 0, 12288, 32768
    W1 = lambda t, m, tt: (t * 3 + m) * 16 + tt * 8
    WO = lambda n, j: 192 + n * 16 + j * 4

    A.label('L_chain')
    cap0 = len(A.lines)
    A('s_bitcmp1_b32 s%d, 0' % sC)
    A('s_cselect_b64 s[2:3], s[%d:%d], s[%d:%d]' % (P_WK, P_WK + 1, P_WQ, P_WQ + 1))
    srd(A, SRD_A, 2, 8 * MB)
    srd(A, SRD_C, P_WV, 8 * MB)
    srd(A, SRD_D, P_WO, 8 * MB)
    srd(A, SRD_E, P_MEM0, 16384)
    if opt.get('iw', 0):
        A('s_getpc_b64 s[2:3]')
        A.label('L_pc')
        A('s_add_u32 s2, s2, L_loop-L_pc')
        A('s_addc_u32 s3, s3, 0')
        srd(A, SRD_B, 2, 0)
        A('s_mov_b32 s%d, L_loop_end-L_loop' % (SRD_B + 2))
        A('s_lshl_b32 s%d, s%d, 13' % (sA, sW))
        A('v_lshlrev_b32 v%d, 7, v0' % vT0)
        A('buffer_load_dword v252, v%d, %s, s%d offen' % (vT0, S4(SRD_B), sA))
    vWa, vWb, vWc, vWd, vWe = vT, vT + 1, vT + 2, vT + 3, vT + 4
    nt = ' nt' if opt.get('nt', 31) & 1 else ''
    bits(A, vWd, [(3, 3, 11), (0, 3, 4)], vT0)
    A('s_lshl_b32 s%d, s%d, 2' % (sA, sG))
    A('s_add_u32 s%d, s%d, s%d' % (sA, sA, sW))
    A('s_lshl_b32 s%d, s%d, 18' % (sA, sA))
    A('s_lshl_b32 s%d, s%d, 7' % (sB, sC))
    A('s_add_u32 s%d, s%d, s%d' % (sA, sA, sB))
    if opt.get('wox'):
        A('s_xor_b32 s%d, s%d, %d' % (sA, sA, opt['wox']))
    for k in range(16):
        A('s_add_u32 s%d, s%d, 0x%x' % (sB, sA, k * 8 * 2048))
        A('buffer_load_dwordx4 %s, v%d, %s, s%d offen%s' % (a(192 + 4 * k, 4), vWd, S4(SRD_D), sB, (nt, '', ' sc1')[opt.get('opl', 0)]))
    bits(A, vWa, [(2, 4, 13), (0, 2, 4)], vT0)
    bits(A, vWe, [(3, 3, 13), (0, 3, 4)], vT0)
    sW1v, sW1q = sFo, sKn
    A('s_lshl_b32 s%d, s%d, 21' % (sA, sW))
    A('s_lshl_b32 s%d, s%d, 10' % (sB, sG))
    A('s_add_u32 s%d, s%d, s%d' % (sA, sA, sB))
    A('s_lshl_b32 s%d, s%d, 6' % (sB, sC))
    A('s_add_u32 s%d, s%d, s%d' % (sW1v, sA, sB))
    A('s_and_b32 s%d, s%d, 0xffffff80' % (sW1q, sW1v))

    def w1q(t):
        for i in range(8):
            A('s_add_u32 s%d, s%d, 0x%x' % (sB, sW1q, (64 * t + 8 * i) * 8192))
            A('buffer_load_dwordx4 %s, v%d, %s, s%d offen%s' % (a(W1(t, 0, 0) + 4 * i, 4), vWe, S4(SRD_A), sB, nt))

    def w1v(t):
        for i in range(4):
            A('s_add_u32 s%d, s%d, 0x%x' % (sB, sW1v, (64 * t + 16 * i) * 8192))
            A('buffer_load_dwordx4 %s, v%d, %s, s%d offen%s' % (a(W1(t, 2, 0) + 4 * i, 4), vWa, S4(SRD_C), sB, (nt, '', ' sc1')[opt.get('vpl', 0)]))
    A('v_lshlrev_b32 v%d, 4, v0' % vL16)
    A('v_lshlrev_b32 v%d, 2, v0' % vL4)
    A('v_mov_b32 v%d, -1' % vSent)
    A('v_and_b32 v%d, 8, v0' % vT0)
    A('v_cmp_eq_u32 vcc, 0, v%d' % vT0)
    A('v_mov_b32 v%d, 0xeeee' % vT1)
    A('v_mov_b32 v%d, 0x4444' % vT2)
    A('v_cndmask_b32 v%d, v%d, v%d, vcc' % (vIdx, vT1, vT2))
    A('s_mov_b32 s%d, 0' % sStep)
    A('s_lshl_b32 s%d, s%d, 15' % (sA, sG))
    if shr_:
        A('s_and_b32 s%d, s%d, 0x30000' % (sA, sA))
    A('s_add_u32 s%d, s%d, 0x%x' % (sA, sA, MEMR))
    A('s_lshl_b32 s%d, s%d, 12' % (sB, sW))
    A('s_add_u32 s%d, s%d, s%d' % (sMemR, sA, sB))
    A('s_lshl_b32 s%d, s%d, 10' % (sB, sC))
    A('s_add_u32 s%d, s%d, s%d' % (sA, sA, sB))
    A('s_lshl_b32 s%d, s%d, 8' % (sB, sW))
    A('s_add_u32 s%d, s%d, s%d' % (sMemW, sA, sB))
    if shr_:
        A('s_and_b32 s%d, s%d, 1' % (sB, sG))
        A('s_lshl_b32 s%d, s%d, 7' % (sB, sB))
        A('s_add_u32 s%d, s%d, s%d' % (sMemW, sMemW, sB))
        vM4, vG8 = vSel + 2, vSel + 3
    A('s_lshl_b32 s%d, s%d, 16' % (sA, sG))
    A('s_add_u32 s%d, s%d, 0x%x' % (sQkvW, sA, QKVR))
    A('s_mul_i32 s%d, s%d, 6144' % (sB, sW))
    A('s_add_u32 s%d, s%d, s%d' % (sQkvR, sQkvW, sB))
    A('s_add_u32 s%d, s%d, 4096' % (sQkvR2, sQkvR))
    A('s_lshr_b32 s%d, s%d, 2' % (sB, sC))
    A('s_mul_i32 s%d, s%d, 6144' % (sB, sB))
    A('s_add_u32 s%d, s%d, s%d' % (sQkvW, sQkvW, sB))
    A('s_mov_b32 s%d, %s' % (sScale, f32(128 ** -0.5 * LOG2E)))
    A('s_and_b32 s%d, s%d, 1' % (sA, sW))
    A('s_lshl_b32 s%d, s%d, 1' % (sA, sA))
    A('v_lshrrev_b32 v%d, 5, v0' % vT0)
    A('v_add_u32 v%d, s%d, v%d' % (vT0, sA, vT0))
    A('v_and_b32 v%d, 31, v0' % vT1)
    A('v_lshlrev_b32 v%d, 2, v%d' % (vT1, vT1))
    A('s_bfe_u32 s%d, s%d, 0x10001' % (sB, sC))
    A('s_lshl_b32 s%d, s%d, 10' % (sB, sB))
    A('s_lshr_b32 s%d, s%d, 1' % (sA, sW))
    A('s_lshl_b32 s%d, s%d, 7' % (sCc, sA))
    A('s_add_u32 s%d, s%d, s%d' % (sCc, sCc, sB))
    A('s_lshl_b32 s%d, s%d, 9' % (sA, sA))
    A('s_add_u32 s%d, s%d, s%d' % (sA, sA, sB))
    A('s_add_u32 s%d, s%d, 2048' % (sA, sA))
    A('v_lshl_add_u32 v%d, v%d, 8, v%d' % (vT2, vT0, vT1))
    A('v_add_u32 v%d, s%d, v%d' % (vT2, sCc, vT2))
    A('v_lshl_add_u32 v%d, v%d, 7, v%d' % (vT1, vT0, vT1))
    A('v_add_u32 v%d, s%d, v%d' % (vT3, sA, vT1))
    A('s_bitcmp1_b32 s%d, 0' % sC)
    A('s_cselect_b64 %s, -1, 0' % s(sLo, 2))
    A('s_cselect_b32 s%d, 0, 0x%x' % (sA, OOB))
    A('v_cndmask_b32 v%d, v%d, v%d, %s' % (vQst, vT2, vT3, s(sLo, 2)))
    A('v_add_u32 v%d, s%d, v%d' % (vKst, sA, vT3))
    A('s_and_b32 s%d, s%d, 1' % (sA, sC))
    A('s_lshl_b32 s%d, s%d, 9' % (sA, sA))
    A('s_add_u32 s%d, s%d, s%d' % (sA, sA, sB))
    A('s_add_u32 s%d, s%d, 4096' % (sA, sA))
    A('s_cmp_lt_u32 s%d, 2' % sW)
    A('s_cselect_b32 s%d, s%d, 0x%x' % (sA, sA, OOB))
    A('v_add_u32 v%d, s%d, v%d' % (vVst, sA, vT1))
    A('v_bfe_u32 v%d, v0, 3, 2' % vT1)
    A('v_xor_b32 v%d, v%d, v%d' % (vT1, vT1, vT0))
    A('v_lshlrev_b32 v%d, 5, v%d' % (vT1, vT1))
    A('v_lshl_add_u32 v%d, v%d, 7, v%d' % (vT1, vT0, vT1))
    A('v_and_b32 v%d, 3, v0' % vT2)
    A('v_lshl_add_u32 v%d, v%d, 3, v%d' % (vT1, vT2, vT1))
    A('v_bfe_u32 v%d, v0, 2, 1' % vT2)
    A('v_lshl_add_u32 v%d, v%d, 2, v%d' % (vT1, vT2, vT1))
    A('v_add_u32 v%d, 2048, v%d' % (vR1v, vT1))
    A('s_lshr_b32 s%d, s%d, 1' % (sA, sW))
    A('s_lshl_b32 s%d, s%d, 10' % (sA, sA))
    A('v_add_u32 v%d, s%d, v%d' % (vR1, sA, vT1))
    A('v_bfe_u32 v%d, v0, 4, 1' % vT0)
    A('v_lshrrev_b32 v%d, 5, v0' % vT1)
    A('v_lshl_add_u32 v%d, v%d, 1, v%d' % (vT0, vT0, vT1))
    A('s_mul_i32 s%d, s%d, 3072' % (sA, sW))
    for (dst, kind) in ((vW1q, 0), (vW1k, 1)):
        if kind == 0:
            A('v_bfe_u32 v%d, v0, 2, 2' % vT1)
            A('v_and_b32 v%d, 3, v0' % vT3)
        else:
            A('v_bfe_u32 v%d, v0, 3, 1' % vT1)
            A('v_and_b32 v%d, 1, v0' % vT2)
            A('v_lshl_add_u32 v%d, v%d, 1, v%d' % (vT1, vT1, vT2))
            A('v_bfe_u32 v%d, v0, 1, 2' % vT3)
        A('v_xor_b32 v%d, v%d, v%d' % (vT2, vT1, vT0))
        A('v_lshlrev_b32 v%d, 5, v%d' % (vT2, vT2))
        A('v_lshl_add_u32 v%d, v%d, 7, v%d' % (vT2, vT1, vT2))
        A('v_lshl_add_u32 v%d, v%d, 3, v%d' % (vT2, vT3, vT2))
        A('v_add_u32 v%d, s%d, v%d' % (dst, sA, vT2))
    A('v_cndmask_b32 v%d, v%d, v%d, %s' % (vW1q, vW1q, vW1k, s(sLo, 2)))
    for i in range(4):
        A('v_mov_b32 v%d, 0x3f803f80' % (vOne + i))
        A('v_mov_b32 v%d, 0' % (vPs + i))
    for i in range(2):
        A('v_mov_b32 v%d, 0x3f003f00' % (vHalf + i))
        A('v_mov_b32 v%d, 0' % (vPms + i))
    A('v_and_b32 v%d, 8, v0' % vT0)
    A('v_cmp_eq_u32 vcc, 0, v%d' % vT0)
    A('v_mov_b32 v%d, 0x7f800000' % vT1)
    A('v_mov_b32 v%d, 0xff800000' % vT2)
    A('v_cndmask_b32 v%d, v%d, v%d, vcc' % (vBias, vT1, vT2))
    A('v_and_b32 v%d, 3, v0' % vT0)
    A('v_lshlrev_b32 v%d, 4, v%d' % (vT1, vT0))
    A('v_mov_b32 v%d, 0x3f80' % vT2)
    A('v_lshlrev_b32 v%d, v%d, v%d' % (vT1, vT1, vT2))
    A('v_cmp_gt_u32 vcc, 2, v%d' % vT0)
    A('v_cndmask_b32 v%d, 0, v%d, vcc' % (vT1, vT1))
    A('v_bfe_u32 v%d, v0, 2, 2' % vT0)
    for i in range(4):
        A('v_cmp_eq_u32 vcc, %d, v%d' % (i, vT0))
        A('v_cndmask_b32 v%d, 0, v%d, vcc' % (vSel + i, vT1))
    if shr_:
        bits(A, vM4, [(0, 5, 2), (5, 1, 30)], vT0)
        A('s_and_b32 s%d, s%d, 1' % (sB, sG))
        A('s_lshl_b32 s%d, s%d, 7' % (sB, sB))
        bits(A, vG8, [(4, 2, 8), (0, 4, 3)], vT0, None if opt.get('xhalf') else 's%d' % sB)
    A('s_lshl_b32 s%d, s%d, 2' % (sA, sW))
    A('s_add_u32 s%d, s%d, %d' % (sA, sA, LDSL))
    A('v_add_u32 v%d, s%d, v%d' % (vW2l, sA, vL16))
    hb, rb, db = (5, 3, 1) if shr_ else (1, 4, 2)
    bits(A, vT0, [(0, 1, 2), (rb, 2, 0)], vT1)
    A('v_lshlrev_b32 v%d, 4, v%d' % (vT1, vT0))
    A('v_add_u32 v%d, %d, v%d' % (vR2l, LDSL, vT1))
    bits(A, vT1, [(hb, 1, 1)], vT2)
    A('v_xor_b32 v%d, v%d, v%d' % (vT0, vT0, vT1))
    A('v_lshlrev_b32 v%d, 4, v%d' % (vT0, vT0))
    A('v_lshl_add_u32 v%d, v%d, 7, v%d' % (vT0, vT1, vT0))
    A('v_bfe_u32 v%d, v0, %d, 1' % (vT1, db + 1))
    A('v_lshl_add_u32 v%d, v%d, 7, v%d' % (vT0, vT1, vT0))
    A('v_bfe_u32 v%d, v0, %d, 1' % (vT1, db))
    A('v_lshl_add_u32 v%d, v%d, 3, v%d' % (vT0, vT1, vT0))
    A('s_lshl_b32 s%d, s%d, 9' % (sA, sW))
    A('s_add_u32 s%d, s%d, %d' % (sA, sA, LDS2))
    A('v_add_u32 v%d, s%d, v%d' % (vR2, sA, vT0))
    A('v_bfe_u32 v%d, v0, 3, 1' % vT0)
    A('v_lshlrev_b32 v%d, 9, v%d' % (vT0, vT0))
    A('v_lshrrev_b32 v%d, 4, v0' % vT1)
    A('v_lshl_add_u32 v%d, v%d, 7, v%d' % (vT0, vT1, vT0))
    A('v_and_b32 v%d, 2, v%d' % (vT1, vT1))
    A('v_and_b32 v%d, 7, v0' % vT2)
    A('v_xor_b32 v%d, v%d, v%d' % (vT1, vT1, vT2))
    A('v_lshl_add_u32 v%d, v%d, 4, v%d' % (vT0, vT1, vT0))
    A('s_lshl_b32 s%d, s%d, 11' % (sA, sW))
    A('s_add_u32 s%d, s%d, %d' % (sA, sA, LDS2))
    A('v_add_u32 v%d, s%d, v%d' % (vW2, sA, vT0))

    if opt.get('iw', 0):
        A('s_barrier')
        for w in range(3):
            A('s_cmp_eq_u32 s%d, %d' % (sW, w))
            A('s_cbranch_scc1 L_hk%d' % w)
        A('s_branch L_hk3')
        A.label('L_hkret')
    def mem0_loads():
        bits(A, vT2, [(0, 3, 11), (3, 3, 4)], vT0)
        A('s_lshl_b32 s%d, s%d, 9' % (sA, sW))
        for t in range(4):
            A('buffer_load_dwordx4 %s, v%d, %s, s%d offen offset:%d' % (v(vM + 4 * t, 4), vT2, S4(SRD_E), sA, t * 128))
    A('s_lshl_b32 s%d, s%d, 14' % (sCc, sW))
    A('s_add_u32 s%d, s%d, %d' % (sCc, sCc, LDSW))
    A('v_add_u32 v%d, s%d, v%d' % (vWb, sCc, vL16))
    bits(A, vWc, [(2, 1, 11), (4, 2, 9), (3, 1, 7), (0, 2, 3)], vT0, 's%d' % sCc)
    w1q(0); w1v(0)
    A('s_waitcnt vmcnt(12)')
    confirm(A, opt, vT0, vT1, sA)
    for k in range(16):
        A('ds_write_b128 v%d, %s offset:%d' % (vWb, a(192 + 4 * k, 4), k * 1024))
        if k == 7:
            A('s_waitcnt lgkmcnt(0)')
    A('s_waitcnt lgkmcnt(0)')
    for n in range(4):
        for j in range(4):
            for pp in range(2):
                A('ds_read_b64_tr_b16 %s, v%d offset:%d' % (a(WO(n, j) + 2 * pp, 2), vWc, (32 * j + 2 * pp) * 128 + n * 32))
        A('s_waitcnt lgkmcnt(0)')
    if opt.get('prof'):
        A('s_memrealtime s[98:99]')
    bits(A, vWc, [(5, 1, 11), (4, 1, 9), (3, 1, 10), (2, 1, 7), (0, 2, 3)], vT0, 's%d' % sCc)
    bits(A, vWd, [(5, 1, 10), (4, 1, 8), (3, 1, 9), (2, 1, 6), (0, 2, 3)], vT0, 's%d' % sCc)
    def w1_round(t, extra=0):
        if t == 2:
            mem0_loads()
            init_load(A, vT0, vT1)
        if t < 3:
            w1q(t + 1)
        A('s_waitcnt vmcnt(%d)' % ((12, 12, 17, 4 + extra)[t]))
        for i in range(8):
            A('ds_write_b128 v%d, %s offset:%d' % (vWb, a(W1(t, 0, 0) + 4 * i, 4), i * 1024))
        for m in range(2):
            A('s_waitcnt lgkmcnt(4)')
            for tt in range(2):
                for pp in range(4):
                    A('ds_read_b64_tr_b16 %s, v%d offset:%d' % (a(W1(t, m, tt) + 2 * pp, 2), vWc, (32 * (pp >> 1) + 2 * (pp & 1)) * 128 + m * 64 + tt * 32))
        if t < 3:
            w1v(t + 1)
        A('s_waitcnt vmcnt(%d) lgkmcnt(0)' % (12 if t < 3 else extra))
        for i in range(4):
            A('ds_write_b128 v%d, %s offset:%d' % (vWb, a(W1(t, 2, 0) + 4 * i, 4), 8192 + i * 1024))
        for tt in range(2):
            for pp in range(4):
                A('ds_read_b64_tr_b16 %s, v%d offset:%d' % (a(W1(t, 2, tt) + 2 * pp, 2), vWd, 8192 + (32 * (pp >> 1) + 2 * (pp & 1)) * 64 + tt * 32))
        A('s_waitcnt lgkmcnt(0)')
    for t in range(3):
        w1_round(t)

    def vox(fill=None):
        fill = fill or {}
        k = 0
        for n in range(4):
            for j in range(4):
                for tt in range(2):
                    acc = v(vT + (n * 2 + tt) * 4, 4)
                    if opt.get('xnovox') and fill:
                        A('s_nop 3')
                    else:
                        A('v_mfma_f32_16x16x32_bf16 %s, %s, %s, %s' % (acc, v(vVx + (tt * 4 + j) * 4, 4), a(WO(n, j), 4), acc if j else '0'))
                    for o in fill.get(k, []):
                        A(o)
                    k += 1
                    if n > 0 and j in (1, 2):
                        jj = 2 * (j - 1) + tt
                        b = vT + (n - 1) * 8 + 2 * jj
                        A('v_cvt_pk_bf16_f32 v%d, v%d, v%d' % (vVOx + (n - 1) * 4 + jj, b, b + 1))

    def vox_tail():
        return ['v_cvt_pk_bf16_f32 v%d, v%d, v%d' % (vVOx + 12 + jj, vT + 24 + 2 * jj, vT + 25 + 2 * jj) for jj in range(4)]

    def paced(ops, every=4):
        for i, o in enumerate(ops):
            A(o)
            if i % every == every - 1 and i != len(ops) - 1:
                A('s_nop 0')

    def zeros(base, n, val='0'):
        return ['v_mov_b32 v%d, %s' % (base + i, val) for i in range(n)]

    cap_vm(A, cap0)
    wait_init(A, vT0, vT1, sA, sB, 2)
    if opt.get('rt', 1):
        bits(A, vT1, [(0, 5, 7), (5, 1, 14)], vT0)
        A('s_and_b32 s%d, s%d, %d' % (sA, sG, shr_))
        A('s_lshl_b32 s%d, s%d, 15' % (sA, sA))
        A('s_add_u32 s%d, s%d, s%d' % (sA, sA, sMemR))
        A('buffer_load_dword v252, v%d, %s, s%d offen sc1' % (vT1, S4(WS), sA))
        A('v_lshlrev_b32 v%d, 7, v0' % vT1)
        A('s_xor_b32 s%d, s%d, 0x8000' % (sA, sQkvR))
        A('buffer_load_dword v252, v%d, %s, s%d offen sc1' % (vT1, S4(WS), sQkvR))
        A('buffer_load_dword v252, v%d, %s, s%d offen sc1' % (vT1, S4(WS), sA))
    if opt.get('dyn'):
        A('s_lshl_b32 s%d, s%d, 2' % (sA, sX))
        A('v_mov_b32 v%d, 0x%x' % (vT1, PROF + 6 * MB))
        A('buffer_load_dword v%d, v%d, %s, s%d offen sc1' % (vT0, vT1, S4(WS), sA))
        A('s_waitcnt vmcnt(0)')
        A('v_readfirstlane_b32 s%d, v%d' % (sGp, vT0))
    A('s_lshl_b32 s%d, s%d, 2' % (sA, sG))
    A('s_add_u32 s%d, s%d, s%d' % (sA, sA, sW))
    A('s_lshl_b32 s%d, s%d, 8' % (sCc, sA))
    A('s_add_u32 s%d, s%d, 0x%x' % (sCc, sCc, F_KV))
    near(A, sCc, sB)
    bits(A, vFa, [(0, 1, 7)], vT0, 's%d' % sCc)
    A('s_mul_i32 s%d, s%d, 0x%x' % (sKx, sA, ROW))
    near(A, sKx, sB)
    A('s_add_u32 s%d, s%d, 0x%x' % (sVx, sKx, VX))
    A('s_add_u32 s%d, s%d, 0x%x' % (sKx, sKx, KX))
    A('s_add_u32 s%d, s%d, 4096' % (sKx2, sKx))
    A('s_add_u32 s%d, s%d, 4096' % (sVx2, sVx))
    A('s_and_b32 s%d, s%d, 7' % (sB, sC))
    A('s_lshl_b32 s%d, s%d, 10' % (sB, sB))
    A('s_cmp_lt_u32 s%d, 8' % sC)
    A('s_cselect_b32 s%d, s%d, s%d' % (sPf, sKx, sVx))
    A('s_add_u32 s%d, s%d, s%d' % (sPf, sPf, sB))
    A('s_add_u32 s%d, s%d, 0x%x' % (sPf, sPf, SEG))
    A('s_lshl_b32 s%d, s%d, 1' % (sPartR, sC))
    A('s_lshr_b32 s%d, s%d, 1' % (sB, sW))
    A('s_add_u32 s%d, s%d, s%d' % (sPartR, sPartR, sB))
    A('s_mul_i32 s%d, s%d, 0x%x' % (sPartR, sPartR, ROW))
    A('s_and_b32 s%d, s%d, 1' % (sB, sW))
    A('s_lshl_b32 s%d, s%d, 12' % (sB, sB))
    A('s_add_u32 s%d, s%d, s%d' % (sPartR, sPartR, sB))
    A('s_add_u32 s%d, s%d, 0x%x' % (sPartR, sPartR, PART))
    near(A, sPartR, sB)
    A('s_lshl_b32 s%d, s%d, 8' % (sB, sG))
    A('s_add_u32 s%d, s%d, s%d' % (sPartA, sPartR, sB))
    A('s_and_b32 s%d, s%d, %d' % (sB, sB, 1024 if opt.get('gx', 1) else 0))
    A('s_add_u32 s%d, s%d, s%d' % (sPartR, sPartR, sB))
    A('s_xor_b32 s%d, s%d, 1024' % (sPartR2, sPartR))
    A('s_lshl_b32 s%d, s%d, 1' % (sA, sG))
    A('s_lshr_b32 s%d, s%d, 3' % (sB, sC))
    A('s_add_u32 s%d, s%d, s%d' % (sA, sA, sB))
    A('s_mul_i32 s%d, s%d, 0x%x' % (sKvm, sA, ROW))
    near(A, sKvm, sB)
    A('s_bfe_u32 s%d, s%d, 0x10002' % (sB, sC))
    A('s_lshl_b32 s%d, s%d, 12' % (sB, sB))
    A('s_add_u32 s%d, s%d, s%d' % (sKvm, sKvm, sB))
    A('s_add_u32 s%d, s%d, 0x%x' % (sKvm, sKvm, KVM - 2048))

    def kv_ops(lab, ahead=2):
        return ['v_readlane_b32 s%d, v%d, 0' % (sCc, vFv), 'v_readlane_b32 s%d, v%d, 1' % (sB, vFv),
                's_add_u32 s%d, s%d, %d' % (sA, sStep, ahead), 's_min_u32 s%d, s%d, 64' % (sA, sA),
                's_min_i32 s%d, s%d, s%d' % (sB, sB, sCc), 's_max_i32 s%d, s%d, s%d' % (sKn, sKn, sB),
                's_cmp_lt_i32 s%d, s%d' % (sKn, sA), 's_cbranch_scc1 %s' % lab]

    def kv_check(lab, ahead=2):
        for o in kv_ops(lab, ahead):
            A(o)

    ld_flags = 'buffer_load_dword v%d, v%d, %s, 0 offen sc1' % (vFv, vFa, S4(WS))
    A('s_mov_b32 s%d, 0' % sKn)
    rmask = sum(1 << int(x) for x in str(opt.get('rf', '0.1.2.3.5.7.9.12.15.19.24.31.39.47')).split('.'))
    A('s_mov_b32 s%d, 0x%x' % (sLo, rmask & 0xffffffff))
    A('s_mov_b32 s%d, 0x%x' % (sLo + 1, rmask >> 32))
    A('s_mov_b32 s%d, 0' % sFo)
    A('s_mov_b32 s%d, s%d' % (sSc2, sScale))
    A(ld_flags)
    paced(['v_min_u32 v%d, -2, v%d' % (vM + i, vM + i) for i in range(16)])
    A('s_mov_b32 s%d, 0' % sD)
    paced(zeros(vA, 24) + zeros(MM, 4) + (zeros(vQ, 4, '-1') + zeros(vQ + 8, 4, '-1') + zeros(vKm, 8, '-1') if opt.get('h2m') else []))
    w1_round(3, 4)
    assert opt.get('rt', 1)

    def first_kv():
        ld = lambda dst, so, off: 'buffer_load_dwordx4 %s, v%d, %s, s%d offen offset:%d sc1' % (v(dst, 4), vL16, S4(WS), so, off)
        A('s_sub_u32 s%d, s%d, 0x%x' % (sA, sPf, SEG))
        A(ld(252, sA, 0))
        for (b_, p_) in ((vVx, (sVx, sVx2)), (vKx, (sKx, sKx2))):
            for f in range(8):
                A(ld(b_ + 4 * f, p_[f >> 2], (f & 3) * 1024))
    A('s_waitcnt vmcnt(0)')
    kv_check('L_c_nokv', 1)
    first_kv()
    A('s_branch L_c_kvok')
    A.label('L_c_nokv')
    A('s_add_u32 s%d, s%d, 0x%x' % (sKx, sKx, OOB))
    A('s_add_u32 s%d, s%d, 0x%x' % (sKx2, sKx2, OOB))
    A.label('L_c_kvok')
    tstamp(A, opt, 1, vT2, vT3, sA)
    tstamp(A, opt, 2, vT0, vT1, sA)
    if opt.get('diag') or opt.get('hold'):
        A('s_memrealtime s[96:97]')
        A('s_memtime s[98:99]')
        A('s_waitcnt lgkmcnt(0)')

    PT = 96
    stamps = []

    names = opt.get('marks', 'm0ok,st1end,qkvst,q0ok,Send,st2end,partst').split(',') + ['gath', 'gathok']
    assert len(names) == 9

    def stamp(nm):
        if prof and nm in names:
            i = names.index(nm)
            A('s_memtime s[%d:%d]' % (12 + 2 * i, 13 + 2 * i))

    if lite:
        vTr = V('trace')
        A('v_mov_b32 v%d, 0' % vTr)
        A('s_memtime s[28:29]')
        A('s_memtime s[96:97]')
        A('s_memrealtime s[98:99]')
        A('s_waitcnt lgkmcnt(0)')
        for n_ in (sN1, sN2, sN3):
            A('s_mov_b32 s%d, 0' % n_)

    if opt.get('xnobulk'):
        for n_ in (sKx, sKx2, sVx, sVx2)[:opt['xnobulk']]:
            A('s_mov_b32 s%d, 0x%x' % (n_, OOB))
    loc = '@LOC@'

    def ldx4(dst, so, off):
        return 'buffer_load_dwordx4 %s, v%d, %s, s%d offen offset:%d sc1' % (v(dst, 4), vL16, S4(WS), so, off)

    def ld_mem(t):
        A(ldx4(vM + 4 * t, sMemR, t * 1024))

    def chk4(b, tmp):
        return ['v_max3_u32 v%d, v%d, v%d, v%d' % (tmp, b, b + 1, b + 2), 'v_max_u32 v%d, v%d, v%d' % (tmp, tmp, b + 3)]

    def chk4more(b, tmp):
        return ['v_max3_u32 v%d, v%d, v%d, v%d' % (tmp, tmp, b, b + 1), 'v_max3_u32 v%d, v%d, v%d, v%d' % (tmp, tmp, b + 2, b + 3)]

    def cmpv(tmp):
        return 'v_cmp_eq_u32 vcc, -1, v%d' % tmp

    rx = opt.get('rx', 1)

    def wchk(bases, tmp):
        if not rx:
            ops = chk4(bases[0], tmp)
            for b in bases[1:]:
                ops += chk4more(b, tmp)
            return ops, cmpv(tmp)
        if len(bases) == 1:
            return [], cmpv(bases[0] + 3)
        return ['v_max_u32 v%d, v%d, v%d' % (tmp, bases[0] + 3, bases[1] + 3)], cmpv(tmp)

    def guard(r_):
        if not opt.get('nomin', 1):
            A('v_min_u32 v%d, -2, v%d' % (r_, r_))

    def smf1(t, m, tt):
        A('v_smfmac_f32_16x16x64_bf16 %s, %s, %s, v%d' % (v(vA + 8 * m + 4 * tt, 4), v(vM + 4 * t, 4), a(W1(t, m, tt), 8), vIdx))

    def add2(d, x, y):
        if opt.get('pk', 1):
            A('v_pk_add_f32 %s, %s, %s' % (v(d, 2), v(x, 2), v(y, 2)))
        else:
            A('v_add_f32 v%d, v%d, v%d' % (d, x, y))
            A('v_add_f32 v%d, v%d, v%d' % (d + 1, x + 1, y + 1))

    def fold(m, vs=None):
        b = vA + 8 * m
        f = vF + 4 * m
        n_ = 0
        for tt in range(2):
            for j in range(2):
                A('v_permlane32_swap_b32 v%d, v%d' % (b + 4 * tt + j, b + 4 * tt + j + 2))
                if vs and n_ < 3:
                    smf1(*vs.pop(0))
                n_ += 1
        for tt in range(2):
            add2(f + 2 * tt, b + 4 * tt, b + 4 * tt + 2)
        if vs:
            smf1(*vs.pop(0))
        A('ds_write2st64_b64 v%d, %s, %s offset0:%d offset1:%d' % (vW1q if m < 2 else vW1k, v(f, 2), v(f + 2, 2), 2 * m, 2 * m + 1))

    def rd1(ad, r_=None):
        r_ = vR if r_ is None else r_
        for w in range(4):
            A('ds_read2st64_b32 %s, v%d offset0:%d offset1:%d' % (v(r_ + 2 * w, 2), ad, 12 * w, 12 * w + 2))

    def red1(dst, extra='', r_=None, more=0):
        r_ = vR if r_ is None else r_
        A('s_waitcnt lgkmcnt(%d)' % (0 if prof else 2 + more))
        A(extra)
        add2(r_, r_, r_ + 2)
        A('s_waitcnt lgkmcnt(%d)' % (0 if prof else more))
        add2(r_ + 4, r_ + 4, r_ + 6)
        add2(r_, r_, r_ + 4)
        A('v_cvt_pk_bf16_f32 v%d, v%d, v%d' % (dst, r_, r_ + 1))
        guard(dst)

    def st4(src, ad, so, mod):
        return 'buffer_store_dword v%d, v%d, %s, s%d offen%s' % (src, ad, S4(WS), so, mod)

    ld_q = [ldx4(vQ, sQkvR, 0), ldx4(vQ + 8, sQkvR, 1024)]
    ld_k = [ldx4(vKm, sQkvR, 2048), ldx4(vKm + 4, sQkvR, 3072)]
    ld_v = [ldx4(vVm, sQkvR2, 0), ldx4(vVm + 4, sQkvR2, 1024)]
    st_v = st4(vVv, vVst, sQkvW, loc)
    ld_part = [ldx4(vPt, sPartR, 0), ldx4(vPt + 4, sPartR2, 0)]
    red3 = ['v_mfma_f32_16x16x32_bf16 %s, %s, %s, %s' % (v(vP, 4), v(vSel, 4), v(vPt + 4 * i, 4), v(vP, 4) if i else '0') for i in range(2)]
    vMa = vL4
    if shr_:
        ld_part = ['buffer_load_dwordx2 %s, v%d, %s, s%d offen sc1' % (v(vPt + 2 + 4 * i, 2), vG8, S4(WS), (sPartR, sPartR2)[i]) for i in range(2)]
        red3 = ['v_mfma_f32_16x16x16_bf16 %s, %s, %s, %s' % (v(vP, 4), v(vSel, 2), v(vPt + 2 + 4 * i, 2), v(vP, 4) if i else '0') for i in range(2)]
        vMa = vM4
        assert rx and opt.get('lim3', -1) < 0
    X0, X1 = vS, vS + 4
    cnt = lambda n_, k_=1: A('s_add_u32 s%d, s%d, %d' % (n_, n_, k_)) if lite else None

    hooks = []

    def hook(align=False):
        if not opt.get('iw', 0):
            return
        if align:
            A('.p2align 6')
        hooks.append(len(hooks))
        A.label('L_hk%d' % hooks[-1])
        A('s_branch @HK%d@' % hooks[-1])

    def nxt(Sm, t):
        for d in range(1, 5):
            if Sm >> ((t + d) & 3) & 1:
                return (t + d) & 3

    def block(Sm, t, wait=None):
        rest = Sm & ~(1 << t)
        n = nxt(rest, t) if rest else None
        if rest:
            ops, cm = wchk([vM + 4 * n], vT0) if wait is not None else (chk4(vM + 4 * n, vT0), cmpv(vT0))
        smf1(t, 0, 0)
        if rest and ops:
            if wait is not None:
                A('s_waitcnt vmcnt(%d)' % wait)
            for o in ops:
                A(o)
        smf1(t, 0, 1)
        if rest:
            if not ops:
                A('s_waitcnt vmcnt(%d)' % wait)
            A(cm)
        smf1(t, 1, 0)
        smf1(t, 1, 1)
        return rest, n

    fc = opt.get('fc', 3)

    def fast_chains():
        def chain_(lab, Sm, que, fail2):
            hook(True)
            A.label(lab)
            ld_mem(que[-1])
            cnt(sN1)
            A('s_waitcnt vmcnt(%d)' % (len(que) - 1))
            ops, cm = wchk([vM + 4 * que[0]], vT0)
            for o in ops + [cm]:
                A(o)
            A('s_cbranch_vccnz %s' % (fail2 or 'L_F%d_%d' % (Sm, que[0])))
            if Sm == 15:
                stamp('m0ok')
            for i, t in enumerate(que):
                stamp('B%d' % (4 - len(que) + i))
                last = i + 2 == len(que)
                if last and len(que) < 4:
                    block(1 << t, t)
                    Sm &= ~(1 << t)
                    n = que[-1]
                    A('s_waitcnt vmcnt(0)')
                    ops, cm = wchk([vM + 4 * n], vT0)
                    for o in ops + [cm]:
                        A(o)
                else:
                    Sm, n = block(Sm, t, len(que) - 2 - i)
                if Sm:
                    assert n == que[i + 1]
                    A('s_cbranch_vccnz L_F%d_%d' % (Sm, n))
            A('s_branch L_T1')
        chain_('L_G15_0', 15, [1, 2, 3, 0], 'L_G15_1' if fc > 1 else None)
        if fc > 1:
            chain_('L_G15_1', 15, [2, 3, 0, 1], 'L_G15_2' if fc > 2 else None)
        if fc > 2:
            chain_('L_G15_2', 15, [3, 0, 1, 2], None)
        chain_('L_G14_1', 14, [2, 3, 1], None)
        chain_('L_G12_2', 12, [3, 2], None)

    def first_pass():
        A('s_waitcnt vmcnt(3)')
        ops, cm = wchk([vM], vT0)
        for o in ops:
            A(o)
        A(cm)
        A('s_cbranch_vccnz L_%s15_0' % ('G' if fc else 'F'))
        stamp('m0ok')
        Sm = 15
        for t in range(4):
            stamp('B%d' % t)
            Sm, n = block(Sm, t, 2 - t)
            if Sm:
                A('s_cbranch_vccnz L_%s%d_%d' % ('G' if fc and n < 3 else 'F', Sm, n))

    def poll_nodes_ooo():
        for Sm in sorted(range(1, 16), key=lambda x: -bin(x).count('1')):
            ts = [t for t in range(4) if Sm >> t & 1]
            hook(True)
            for t in ts:
                A.label('L_P%d_%d' % (Sm, t))
                A('s_waitcnt vmcnt(3)')
                for o in chk4(vM + 4 * t, vT0):
                    A(o)
                A(cmpv(vT0))
                A('s_cbranch_vccz L_V%d_%d' % (Sm, t))
                A.label('L_F%d_%d' % (Sm, t))
                ld_mem(t)
                cnt(sN1)
            timeout_stub(A, 'L_P%d_%d' % (Sm, ts[0]))
            if len(ts) > 1:
                hook()
            for t in ts:
                hook(True)
                A.label('L_V%d_%d' % (Sm, t))
                if Sm == 15:
                    stamp('m0ok')
                stamp('B%d' % (4 - len(ts)))
                rest, n = block(Sm, t)
                if rest:
                    A('s_cbranch_vccz L_V%d_%d' % (rest, n))
                    A('s_branch L_F%d_%d' % (rest, n))
                else:
                    A('s_branch L_T1')

    def poll_nodes():
        if opt.get('ooo', 1):
            return poll_nodes_ooo()
        for k in range(4):
            full = 15 & ~((1 << k) - 1)
            for Sm in sorted(range(1, 16), key=lambda x: -bin(x).count('1')):
                if Sm & ~full:
                    continue
                ts = [t for t in range(4) if Sm >> t & 1]
                for t in ts:
                    rest = Sm & ~(1 << t)
                    A.label('L_P%d_%d_%d' % (k, Sm, t))
                    A('s_waitcnt vmcnt(%d)' % opt.get('lim', 3))
                    for o in chk4(vM + 4 * t, vT0):
                        A(o)
                    A(cmpv(vT0))
                    A('s_cbranch_vccz %s' % ('L_P%d_%d_%d' % (k, rest, nxt(rest, t)) if rest else 'L_G%d' % k))
                    if Sm == full and t == k:
                        A.label('L_F%d_%d' % (Sm, t))
                    ld_mem(t)
                    cnt(sN1)
                timeout_stub(A, 'L_P%d_%d_%d' % (k, Sm, ts[0]))
        for k in range(4):
            A.label('L_G%d' % k)
            if k == 0:
                stamp('m0ok')
            stamp('B%d' % k)
            block(1 << k, k)
        A('s_branch L_T1')

    A('s_cmp_lt_u32 s%d, %d' % (sPure, NPURE))
    A('s_cbranch_scc1 L_V15_0_i')
    A('s_branch L_V15_0')
    loop_start = len(A.lines)
    A('.p2align 6')
    A.label('L_loop')
    first_pass()
    A.label('L_T1')
    stamp('T1')
    kxl = [ldx4(vKx + 4 * f, (sKx, sKx2)[f >> 2], (f & 3) * 1024) for f in range(8)]
    vxl = [ldx4(vVx + 4 * f, (sVx, sVx2)[f >> 2], (f & 3) * 1024) for f in range(8)]
    na, nc, nd, ne = opt.get('na', 3), opt.get('nc', 3), opt.get('nd', 0), opt.get('nq', 0)
    kb_ = max(8 - nc - nd - na, 0)
    ka = kxl[nc + nd + kb_:]
    nva = na - len(ka)
    ka = ka + vxl[:nva]
    ke = vxl[nva:nva + ne]
    bulk = vxl[nva + ne:] + kxl[nc + nd:nc + nd + kb_]
    nk = lambda: A(ka.pop(0)) if ka else None
    qk = ld_q + ld_k
    order = []
    zq = []
    if opt.get('split', 1):
        for i in range(opt.get('na0', 0)):
            nk()
        fold(0)
        stamp('f0')
        for i in range(opt.get('na1', 0)):
            nk()
        fold(1)
        stamp('f1')
        nv1 = opt.get('nv', 2)
        for t in range(nv1):
            smf1(t, 2, 0)
            nk()
            smf1(t, 2, 1)
        A('s_waitcnt lgkmcnt(0)')
        stamp('st1end')
        A('s_barrier')
        stamp('bar1')
        rd1(vR1)
        for t in range(nv1, 4):
            smf1(t, 2, 0); nk(); smf1(t, 2, 1)
        while ka:
            nk()
        red1(vQK)
        A(st4(vQK, vQst, sQkvW, loc))
        stamp('qkvst')
        slots = [int(ch) for ch in str(opt.get('h2s', '2244')).zfill(4)]

        def slot(i):
            for n_, sl_ in enumerate(slots):
                if sl_ == i:
                    A(qk[n_]); order.append(qk[n_])
        for o in ke[:1]:
            A(o)
        fold(2)
        for o in ke[1:]:
            A(o)
        slot(0)
        A('s_add_u32 s%d, s%d, 0x%x' % (sKx, sKx, SEG))
        A('s_add_u32 s%d, s%d, 0x%x' % (sKx2, sKx2, SEG))
        A('s_cmp_eq_u32 s%d, s%d' % (sStep, sD))
        A('s_cbranch_scc1 L_sp')
        A.label('L_spr')
        A('s_waitcnt lgkmcnt(0)')
        A('s_barrier')
        stamp('bar1b')
        slot(1)
        rd1(vR1v)
        for i in range(opt.get('h2x', 0)):
            A('s_nop 3')
        slot(2)
        if 3 in slots:
            A('s_waitcnt lgkmcnt(%d)' % (0 if prof else 3))
        slot(3)
        red1(vVv)
        A(st_v); order.append(st_v)
        stamp('vst')
        slot(4)
    else:
        vs = [(t, 2, tt) for t in range(4) for tt in range(2)]
        fold(0, vs)
        stamp('f0')
        fold(1, vs)
        stamp('f1')
        fold(2)
        while ka:
            nk()
        A('s_add_u32 s%d, s%d, 0x%x' % (sKx, sKx, SEG))
        A('s_add_u32 s%d, s%d, 0x%x' % (sKx2, sKx2, SEG))
        A('s_waitcnt lgkmcnt(0)')
        stamp('st1end')
        A('s_barrier')
        stamp('bar1')
        rd1(vR1)
        rd1(vR1v, vA)
        red1(vQK, '', vR, 4)
        A(st4(vQK, vQst, sQkvW, loc))
        stamp('qkvst')
        red1(vVv, '', vA)
        A(st_v)
        stamp('vst')
        A('s_cmp_eq_u32 s%d, s%d' % (sStep, sD))
        A('s_cbranch_scc1 L_sp')
        A.label('L_spr')
        zq = zeros(vT, 16) + zeros(MM, 4)
        fz = zq + ['s_nop 0'] * 60
        for i, n_ in enumerate([opt.get('h2d', 6)] + [opt.get('h2p', 10)] * 3):
            paced(fz[:n_]); fz = fz[n_:]
            A(qk[i]); order.append(qk[i])
        paced([o for o in fz if o.startswith('v_')])
    younger = lambda o: len(order) - 1 - order.index(o)
    A.label('L_h2')
    mx = lambda tt, j, first=False: A('v_mfma_f32_16x16x32_bf16 %s, %s, %s, %s' % (v(vS + 4 * tt, 4), v(vKx + (tt * 4 + j) * 4, 4), v(vQ + 4 * j, 4), '0' if first else v(vS + 4 * tt, 4)))
    ror = lambda r_: A('v_mov_b32_dpp v%d, v%d row_ror:8 row_mask:0xf bank_mask:0xf' % (r_ + 4, r_))
    smm = lambda u: A('v_smfmac_f32_16x16x64_bf16 %s, %s, %s, v%d' % (v(MM, 4), v(vKm + 4 * u, 4), v(vQ + 8 * u, 8), vIdx))
    qkr = [vQ, vQ + 8, vKm, vKm + 4]
    mxo = ['v_max3_f32 v%d, v%d, v%d, v%d' % (vT0, vBias, X0, X0 + 1), 'v_max3_f32 v%d, v%d, v%d, v%d' % (vT0, vT0, X0 + 2, X0 + 3),
           'v_max3_f32 v%d, v%d, v%d, v%d' % (vT0, vT0, X1, X1 + 1), 'v_max3_f32 v%d, v%d, v%d, v%d' % (vT0, vT0, X1 + 2, X1 + 3)]
    swm = ['v_permlane32_swap_b32 v%d, v%d' % (MM, MM + 2), 'v_permlane32_swap_b32 v%d, v%d' % (MM + 1, MM + 3)]

    def ck(i):
        for o in chk4(qkr[i], vT3):
            A(o)

    def s_end():
        add2(MM, MM, MM + 2)
        A('v_max3_f32 v%d, v%d, v%d, v%d' % (vT0, vT0, MM, MM + 1))
        A('v_mov_b32 v%d, v%d' % (vT1, vT0))
    h2m = opt.get('h2m', 0)
    if h2m == 2:
        stamp('q0w')
        A('s_waitcnt vmcnt(%d)' % younger(qk[0]))
        stamp('q0l')
        mx(0, 0, True); ck(0)
        mx(1, 0, True); A(cmpv(vT3)); ror(vQ); ror(vQ + 1); ror(vQ + 2); ror(vQ + 3)
        A('s_cbranch_vccnz L_FA15_0')
        mx(0, 1)
        A('s_waitcnt vmcnt(%d)' % younger(qk[1]))
        stamp('q1l')
        ck(1)
        mx(1, 1); A(cmpv(vT3)); ror(vQ + 8)
        mx(0, 2); ror(vQ + 9); ror(vQ + 10)
        mx(1, 2); ror(vQ + 11)
        A('s_cbranch_vccnz L_FA14_1')
        stamp('q0ok')
        mx(0, 3); A(ld_v[0])
        mx(1, 3); A(ld_v[1])
        order += ld_v
        stamp('k0w')
        A('s_waitcnt vmcnt(%d)' % younger(qk[2]))
        smm(0)
        if opt.get('k0c', 1):
            ck(2); A(cmpv(vT3)); A(mxo[0]); A(mxo[1]); A(mxo[2]); A(mxo[3])
            A('s_cbranch_vccnz L_FK12_2')
            stamp('k1w')
            A('s_waitcnt vmcnt(%d)' % younger(qk[3]))
            stamp('k1l')
            smm(1)
            ck(3); A(cmpv(vT3))
            A(swm[0]); A(swm[1])
            s_end()
            A('s_cbranch_vccnz L_FK8_3')
        else:
            stamp('k1w')
            A('s_waitcnt vmcnt(%d)' % younger(qk[3]))
            stamp('k1l')
            smm(1)
            for o in chk4(vKm, vT3) + chk4more(vKm + 4, vT3):
                A(o)
            A(cmpv(vT3))
            A(mxo[0]); A(swm[0]); A(swm[1]); A(mxo[1]); A(mxo[2]); A(mxo[3])
            s_end()
            A('s_cbranch_vccnz L_PK12_2')
    else:
        stamp('q0w')
        A('s_waitcnt vmcnt(%d)' % younger(qk[0]))
        stamp('q0l')
        mx(0, 0, True); ror(vQ); ror(vQ + 1)
        mx(1, 0, True); ror(vQ + 2); ror(vQ + 3)
        A('s_waitcnt vmcnt(%d)' % younger(qk[1]))
        stamp('q1l')
        ops, cm = wchk([vQ, vQ + 8], vT3)
        if rx:
            mx(0, 2); A(ops[0]); A(cm)
            mx(1, 2); ror(vQ + 8); ror(vQ + 9)
            mx(0, 1); ror(vQ + 10); ror(vQ + 11)
            mx(1, 1)
        else:
            mx(0, 2); A(ops[0]); A(ops[1])
            mx(1, 2); A(ops[2]); A(ops[3])
            mx(0, 1); A(cm); ror(vQ + 8); ror(vQ + 9)
            mx(1, 1); ror(vQ + 10); ror(vQ + 11)
        A('s_cbranch_vccnz %s' % ('L_r2' if h2m == 0 else 'L_PA15_0'))
        stamp('q0ok')
        order_q = list(order)
        vpos = opt.get('vpos', 1)
        mx(0, 3)
        if vpos == 0:
            A(ld_v[0])
        mx(1, 3)
        if vpos == 0:
            A(ld_v[1])
            order += ld_v
        A.label('L_h2k')
        stamp('k0w')
        A('s_waitcnt vmcnt(%d)' % younger(qk[2]))
        smm(0)
        stamp('k1w')
        A('s_waitcnt vmcnt(%d)' % younger(qk[3]))
        stamp('k1l')
        smm(1)
        if vpos == 1:
            A(ld_v[0]); A(ld_v[1])
        ops, cm = wchk([vKm, vKm + 4], vT3)
        for o in ops + [cm] + (mxo + swm if rx else [mxo[0]] + swm + mxo[1:]):
            A(o)
        order_k = order[order.index(qk[2]):]
        s_end()
        A('s_cbranch_vccnz %s' % ('L_r2k' if h2m == 0 else 'L_PK12_2'))
    A.label('L_sj')
    stamp('kok')
    if opt.get('xdrop'):
        bulk = bulk[:len(bulk) - opt['xdrop']]
    nbulk = len(bulk)
    nb = lambda: A(bulk.pop(0)) if bulk else None
    early = opt.get('be', 2)
    if vpos == 2:
        A(ld_v[0])
    for i in range(min(early, 1) if vpos < 2 else 0):
        nb()
    A('v_permlane32_swap_b32 v%d, v%d' % (vT0, vT1))
    A('v_max_f32 v%d, v%d, v%d' % (vT0, vT0, vT1))
    A('v_mov_b32 v%d, v%d' % (vT1, vT0))
    if vpos == 2:
        A(ld_v[1])
    for i in range(max(early - 1, 0)):
        nb()
    A('v_permlane16_swap_b32 v%d, v%d' % (vT0, vT1))
    A('v_max_f32 v%d, v%d, v%d' % (vT0, vT0, vT1))
    A('v_mul_f32 v%d, s%d, v%d' % (vT0, sScale, vT0))
    fma = lambda r_: A('v_fma_f32 v%d, v%d, s%d, -v%d' % (r_, r_, sScale, vT0))
    ex = lambda r_: A('v_exp_f32 v%d, v%d' % (r_, r_))
    cvt = lambda d, x: A('v_cvt_pk_bf16_f32 v%d, v%d, v%d' % (d, x, x + 1))
    shr = lambda d, x: A('v_mov_b32_dpp v%d, v%d row_shr:8 row_mask:0xf bank_mask:0xc' % (d, x))
    def fma2(r_):
        if opt.get('pkf', 1):
            A('v_pk_fma_f32 %s, %s, %s, %s op_sel_hi:[1,0,0] neg_lo:[0,0,1] neg_hi:[0,0,1]' % (v(r_, 2), v(r_, 2), s(sSc2, 2), v(vT0, 2)))
        else:
            fma(r_); fma(r_ + 1)
    vom = lambda u, n: A('v_smfmac_f32_16x16x64_bf16 %s, %s, %s, v%d' % (v(vT + 4 * n, 4), v(vVm + 4 * u, 4), a(WO(n, 2 * u), 8), vIdx))
    m32 = lambda d, x, p, c_: A('v_mfma_f32_16x16x32_bf16 %s, %s, %s, %s' % (v(d, 4), v(x, 4), v(p, 4), v(d, 4) if c_ else '0'))
    m16 = lambda d, x, p: A('v_mfma_f32_16x16x16_bf16 %s, %s, %s, %s' % (v(d, 4), v(x, 2), v(p, 2), v(d, 4)))
    cvm = lambda k: cvt(vVOm + k, vT + 2 * k)
    s2 = opt.get('s2', 2)
    if s2:
        assert vPms == vPm + 2 and vPm % 4 == 0
        er = [MM, MM + 1] + [vS + i for i in range(8)]
        fma2(MM)
        for i in range(4):
            fma2(vS + 2 * i)
        for r_ in er[:7]:
            ex(r_)

        def vcheck(between):
            stamp('vw')
            A('s_waitcnt vmcnt(%d)' % (nbulk - len(bulk)))
            stamp('vl')
            ops, cm = wchk([vVm, vVm + 4], vT3)
            for o in ops + [cm]:
                A(o)
            between()
            A('s_cbranch_vccnz L_r2v')
            A.label('L_h2v')
            stamp('Send')
        swp = lambda: A('v_permlane32_swap_b32 v%d, v%d' % (vPm, vPm + 1))
        if s2 == 1:
            vcheck(lambda: [ex(r_) for r_ in er[7:]])
            gaps = [lambda: cvt(vPm, MM), lambda: cvt(vPm + 1, MM), lambda: cvt(vP, vS), lambda: cvt(vP + 1, vS + 2),
                    lambda: cvt(vP + 2, vS + 4), lambda: cvt(vP + 3, vS + 6), swp, lambda: shr(vPs, vP)]
            for i in range(8):
                vom(i & 1, i >> 1)
                if i & 1:
                    nb()
                gaps[i]()
            stamp('vomend')
            m32(vLs, vOne, vP, 0); nb(); shr(vPs + 1, vP + 1); shr(vPs + 2, vP + 2)
            m16(vLs, vHalf, vPm); shr(vPs + 3, vP + 3); shr(vPms, vPm)
            m32(vO, vVOx, vP, 0); nb(); shr(vPms + 1, vPm + 1); cvm(0)
            m32(vO, vVOx + 4, vPs, 1); cvm(1); cvm(2); cvm(3)
            m32(vO + 4, vVOx + 8, vP, 0); nb(); cvm(4); cvm(5)
            stamp('m16')
            m32(vO, vVOm, vPm, 1); nb(); cvm(6); cvm(7)
            m32(vO + 4, vVOx + 12, vPs, 1); nb()
            A('v_rcp_f32 v%d, v%d' % (vT1, vLs))
            m32(vO + 4, vVOm + 4, vPm, 1)
        else:
            bs = str(opt.get('bs', '0101001')).zfill(7)
            for r_ in er[7:]:
                ex(r_)
            for i in range(int(bs[0])):
                nb()
            for i in range(4):
                cvt(vP + i, vS + 2 * i)
            cvt(vPm, MM); cvt(vPm + 1, MM)
            nbi = lambda i: nb() if int(bs[i]) else None
            m32(vLs, vOne, vP, 0); nbi(1); shr(vPs, vP); shr(vPs + 1, vP + 1)
            m32(vO, vVOx, vP, 0); nbi(2); shr(vPs + 2, vP + 2); shr(vPs + 3, vP + 3)
            m32(vO + 4, vVOx + 8, vP, 0); nbi(3); swp()
            m32(vO, vVOx + 4, vPs, 1)
            vcheck(lambda: [m32(vO + 4, vVOx + 12, vPs, 1), nbi(4), shr(vPms, vPm), shr(vPms + 1, vPm + 1), m16(vLs, vHalf, vPm)])
            gaps = {3: [0], 4: [1], 5: [2], 6: [3], 7: [4]}
            for i in range(8):
                vom(i & 1, i >> 1)
                if i % int(bs[6]) == 0:
                    nb()
                if i == 2:
                    A('v_rcp_f32 v%d, v%d' % (vT1, vLs))
                for k in gaps.get(i, []):
                    cvm(k)
            stamp('vomend')
            m32(vO, vVOm, vPm, 1); cvm(5)
            stamp('m16')
            cvm(6); cvm(7)
            m32(vO + 4, vVOm + 4, vPm, 1)
    else:
        for i in range(4):
            fma2(vS + 2 * i)
        stamp('vw')
        A('s_waitcnt vmcnt(%d)' % early)
        stamp('vl')
        ops, cm = wchk([vVm, vVm + 4], vT3)
        for o in ops + [cm]:
            A(o)
        for i in range(3):
            ex(vS + i)
        A('s_cbranch_vccnz L_r2v')
        A.label('L_h2v')
        stamp('Send')
        vom = lambda u, n: A('v_smfmac_f32_16x16x64_bf16 %s, %s, %s, v%d' % (v(vT + 4 * n, 4), v(vVm + 4 * u, 4), a(WO(n, 2 * u), 8), vIdx))
        for i in range(8):
            vom(i & 1, i >> 1)
            if i & 1:
                nb()
            if i < 5:
                ex(vS + 3 + i)
            else:
                cvt(vP + i - 5, vS + 2 * (i - 5))
        stamp('vomend')
        cvt(vP + 3, vS + 6)
        fma2(MM)
        m32 = lambda d, x, p, c_: A('v_mfma_f32_16x16x32_bf16 %s, %s, %s, %s' % (v(d, 4), v(x, 4), v(p, 4), v(d, 4) if c_ else '0'))
        m16 = lambda d, x, p: A('v_mfma_f32_16x16x16_bf16 %s, %s, %s, %s' % (v(d, 4), v(x, 2), v(p, 2), v(d, 4)))
        cvm = lambda k: cvt(vVOm + k, vT + 2 * k)
        m32(vO, vVOx, vP, 0)
        nb()
        ex(MM)
        m32(vO + 4, vVOx + 8, vP, 0)
        ex(MM + 1)
        m32(vLs, vOne, vP, 0)
        nb()
        shr(vPs, vP); shr(vPs + 1, vP + 1); shr(vPs + 2, vP + 2); shr(vPs + 3, vP + 3)
        cvt(vPm, MM)
        cvt(vPm + 1, MM)
        if opt.get('mm', 1):
            assert vPms == vPm + 2 and vPm % 4 == 0
            m32(vO, vVOx + 4, vPs, 1)
            cvm(0)
            A('v_permlane32_swap_b32 v%d, v%d' % (vPm, vPm + 1))
            m32(vO + 4, vVOx + 12, vPs, 1)
            nb()
            cvm(1); cvm(2)
            stamp('m16')
            m16(vLs, vHalf, vPm)
            nb()
            shr(vPms, vPm); shr(vPms + 1, vPm + 1); cvm(3); cvm(4); cvm(5)
            m32(vO, vVOm, vPm, 1)
            nb()
            cvm(6); cvm(7)
            A('v_rcp_f32 v%d, v%d' % (vT1, vLs))
            m32(vO + 4, vVOm + 4, vPm, 1)
        else:
            m32(vO, vVOx + 4, vPs, 1)
            cvm(0)
            A('v_permlane32_swap_b32 v%d, v%d' % (vPm, vPm + 1))
            m32(vO + 4, vVOx + 12, vPs, 1)
            nb()
            cvm(1); cvm(2)
            stamp('m16')
            m16(vLs, vHalf, vPm)
            shr(vPms, vPm); shr(vPms + 1, vPm + 1)
            m16(vO, vVOm, vPm)
            nb()
            cvm(3); cvm(4); cvm(5)
            m16(vO, vVOm + 2, vPms)
            cvm(6); cvm(7)
            m16(vO + 4, vVOm + 4, vPm)
            nb()
            A('v_rcp_f32 v%d, v%d' % (vT1, vLs))
            m16(vO + 4, vVOm + 6, vPms)
    stamp('mend')
    A('ds_write_b32 v%d, v%d' % (vW2l, vT1))
    A('ds_write_b128 v%d, %s' % (vW2, v(vO, 4)))
    while bulk:
        nb()
    A('ds_write_b128 v%d, %s offset:1024' % (vW2, v(vO + 4, 4)))
    A('s_add_u32 s%d, s%d, 0x%x' % (sPf, sPf, SEG))
    A('s_waitcnt lgkmcnt(0)')
    stamp('st2end')
    A('s_barrier')
    stamp('bar2')
    A('ds_read_b128 %s, v%d' % (v(vR2d + 8, 4), vR2l))
    for w in range(4):
        A('ds_read_b64 %s, v%d offset:%d' % (v(vR2d + 2 * w, 2), vR2, w * 2048))
    side = []
    if not opt.get('nokvm'):
        side += [st4(vQK, vKst, sKvm, ' sc1'), st4(vVv, vVst, sKvm, ' sc1')]
    if opt.get('pf', 1):
        side += [ldx4(252, sPf, 0)]
    side += ['buffer_load_dword v%d, v%d, %s, s%d offen sc1' % (vFv, vFa, S4(WS), sFo)]
    nse = opt.get('nse', 3)
    for o in side[:nse]:
        A(o)
    for w in range(4):
        A('s_waitcnt lgkmcnt(%d)' % (0 if prof else 3 - w))
        sel = 'op_sel:[0,%d%s] op_sel_hi:[1,%d%s]' % (w & 1, ',0' if w else '', w & 1, ',1' if w else '')
        if w == 0:
            A('v_pk_mul_f32 %s, %s, %s %s' % (v(vR2d, 2), v(vR2d, 2), v(vR2d + 8, 2), sel))
        else:
            A('v_pk_fma_f32 %s, %s, %s, %s %s' % (v(vR2d, 2), v(vR2d + 2 * w, 2), v(vR2d + 8 + (w & 2), 2), v(vR2d, 2), sel))
    cvt(vT0, vR2d)
    guard(vT0)
    A(st4(vT0, vL4, sPartA, ' sc1'))
    stamp('partst')
    A('s_waitcnt vmcnt(%d)' % (1 + kb_ + len(side[:nse])))
    stamp('vxok')
    if shr_:
        mem_ = ['s_bitcmp1_b32 s%d, 14' % sMemW, 's_cselect_b32 s%d, 3, 1' % sA, 's_lshl_b32 s%d, s%d, 14' % (sA, sA),
                's_xor_b32 s%d, s%d, s%d' % (sMemW, sMemW, sA), 's_xor_b32 s%d, s%d, s%d' % (sMemR, sMemR, sA),
                's_xor_b32 s%d, s%d, 0x8000' % (sA, sMemW), st4(vSent, vMa, sA, loc)]
    else:
        mem_ = [st4(vSent, vL4, sMemW, loc), 's_xor_b32 s%d, s%d, 0x4000' % (sMemW, sMemW), 's_xor_b32 s%d, s%d, 0x4000' % (sMemR, sMemR)]
    pre = mem_ + [
           's_xor_b32 s%d, s%d, 0x8000' % (sQkvW, sQkvW),
           st4(vSent, vQst, sQkvW, loc), st4(vSent, vVst, sQkvW, loc)]
    pre = kxl[:nc] + side[nse:] + pre
    pre += ['s_xor_b32 s%d, s%d, 0x8000' % (sQkvR, sQkvR), 's_xor_b32 s%d, s%d, 0x8000' % (sQkvR2, sQkvR2),
            's_add_u32 s%d, s%d, 0x%x' % (sKvm, sKvm, SEG), 's_add_u32 s%d, s%d, 0x%x' % (sPartA, sPartA, SEG),
            's_add_u32 s%d, s%d, 0x%x' % (sVx, sVx, SEG), 's_add_u32 s%d, s%d, 0x%x' % (sVx2, sVx2, SEG)]
    gpos = opt.get('gpos', 26)
    fill = {}
    for i, o in enumerate(pre):
        fill.setdefault(i, []).append(o)
    sl = ['s_memtime s[26:27]'] if prof else []
    if opt.get('dyn'):
        for p_ in range(17, 32, 2):
            fill.setdefault(p_ - 1, []).append('s_cmp_eq_u32 s%d, %d' % (sGp, p_))
            fill.setdefault(p_, []).extend(['s_cbranch_scc0 L_gp%d' % p_] + ld_part + ['L_gp%d:' % p_])
    else:
        fill.setdefault(gpos - opt.get('gd', 0), []).append(ld_part[0])
        fill.setdefault(gpos, []).extend(sl + ld_part[1:])
    vox(fill)
    zz = [o for o in zeros(vA, 24) + zeros(vT, 16) + zeros(MM, 4) if o not in zq]
    zz += ['s_nop 0'] * len(zq)
    zw = opt.get('zw', 0)
    kd = kxl[nc:nc + nd]
    for i in range(4):
        for o in zeros(vM + 4 * i, 4, '-1'):
            A(o)
        A(kd.pop(0) if kd and (i or nd > 3) else 's_nop 0')
    for o in kd:
        A(o)
    paced(vox_tail() + (zeros(vQ, 4, '-1') + zeros(vQ + 8, 4, '-1') + zeros(vKm, 8, '-1') if h2m else []) + zz[:zw])
    zz = zz[zw:]
    if lite and not prof:
        A('s_and_b32 s%d, s%d, %d' % (sA, sStep, 48 if opt.get('trs') else 3))
        A('s_cbranch_scc1 L_notr')
        A('s_memtime s[12:13]')
        A('s_memrealtime s[14:15]')
        A('s_%s_b32 s%d, s%d, 1' % ('lshl' if opt.get('trs') else 'lshr', sA, sStep))
        A('s_mov_b32 m0, s%d' % sA)
        A('s_waitcnt lgkmcnt(0)')
        A('v_writelane_b32 v%d, s%d, m0' % (vTr, sKn if opt.get('trs') else 12))
        A('s_add_u32 m0, s%d, 1' % sA)
        A('v_writelane_b32 v%d, s14, m0' % vTr)
        A.label('L_notr')
    if prof:
        A('s_waitcnt lgkmcnt(0)')
        A('s_sub_u32 s%d, s%d, %d' % (sA, sStep, opt.get('ts', 33)))
        A('s_cmp_lt_u32 s%d, 6' % sA)
        A('s_cbranch_scc0 L_notr')
        A('s_mul_i32 s%d, s%d, 9' % (sA, sA))
        A('s_add_u32 s%d, s%d, 8' % (sA, sA))
        for i in [8] + list(range(8)):
            A('s_mov_b32 m0, s%d' % sA)
            A('v_writelane_b32 v%d, s%d, m0' % (vTr, 12 + 2 * i))
            A('s_add_u32 s%d, s%d, 1' % (sA, sA))
        A.label('L_notr')
    A.label('L_h3')
    lo = vP
    A('s_waitcnt vmcnt(%d)' % (1 + nd))
    A(red3[0])
    ops, cm = wchk([vPt, vPt + 4], vT0)
    for o in ([] if rx else ops[:2]):
        A(o)
    A('s_waitcnt vmcnt(%d)' % nd)
    A(red3[1])
    for o in (ops if rx else ops[2:]):
        A(o)
    A(cm)
    A('s_cbranch_vccnz L_r3')
    A.label('L_h3ok')
    stamp('gathok')
    cvt(vT0, lo)
    guard(vT0)
    A(st4(vT0, vMa, sMemW, loc))
    stamp('memst')
    A('s_add_u32 s%d, s%d, 1' % (sStep, sStep))
    A('s_bitcmp1_b64 %s, s%d' % (s(sLo, 2), sStep))
    A('s_cselect_b32 s%d, 0, 0x%x' % (sFo, OOB))
    A('s_add_u32 s%d, s%d, 0x%x' % (sPartR, sPartR, SEG))
    A('s_add_u32 s%d, s%d, 0x%x' % (sPartR2, sPartR2, SEG))
    z0 = opt.get('h1d', 20)
    zs = opt.get('h1s', 10)
    paced(zz[:z0]); zz = zz[z0:]
    for t in range(4):
        ld_mem(t)
        stamp('mi%d' % t)
        if t == 2:
            paced(zz); zz = []
            kvo = kv_ops('L_kvw')
            for o in kvo[:-1]:
                A(o)
        paced(zz[:zs]); zz = zz[zs:]
    A('s_cbranch_scc0 L_loop')
    A('s_branch L_kvw')
    if fc:
        fast_chains()
    poll_nodes()
    A.label('L_sp')
    A('s_cmp_eq_u32 s%d, 63' % sStep)
    A('s_cbranch_scc1 L_c_tail')
    A('s_mov_b32 s%d, 63' % sD)
    mark(A, opt, 0)
    assert nva <= 0 and not ke
    A('s_cmp_ge_i32 s%d, 1' % sKn)
    A('s_cbranch_scc1 L_sp3')
    A.label('L_sp1')
    A(ld_flags)
    A('s_waitcnt vmcnt(0)')
    kv_check('L_sp2', 1)
    mark(A, opt, 0)
    for n_ in (sKx, sKx2):
        A('s_sub_u32 s%d, s%d, 0x%x' % (n_, n_, OOB + SEG))
    first_kv()
    for n_ in (sKx, sKx2):
        A('s_add_u32 s%d, s%d, 0x%x' % (n_, n_, SEG))
    A.label('L_sp3')
    mark(A, opt, 1)
    for n_ in (sVx, sVx2):
        A('s_add_u32 s%d, s%d, 0x%x' % (n_, n_, SEG))
    A('s_waitcnt vmcnt(8) lgkmcnt(0)')
    mark(A, opt, 2)
    vox({16: [ld_flags]})
    paced(zeros(vT, 16) + vox_tail())
    A('s_branch L_sp5')
    A.label('L_sp4')
    timeout_stub(A, 'L_sp6')
    A.label('L_sp6')
    A(ld_flags)
    A.label('L_sp5')
    A('s_waitcnt vmcnt(0)')
    kv_check('L_sp4')
    A(ldx4(252, sPf, 0))
    tstamp(A, opt, 4, vT0, vT1, sA)
    A('s_branch L_spr')
    A.label('L_sp2')
    A('s_sleep 1')
    timeout_stub(A, 'L_sp1')
    hook(True)
    A.label('L_kvw')
    A(ld_flags)
    A('s_waitcnt vmcnt(0)')
    kv_check('L_kvw2')
    A('s_branch L_loop')
    A.label('L_kvw2')
    timeout_stub(A, 'L_kvw')
    if h2m:
        for fam, full, cont in (('A', 15, 'L_SA'), ('K', 12, 'L_SK')):
            for Sm in sorted(range(1, 16), key=lambda x: -bin(x).count('1')):
                if Sm & ~full:
                    continue
                ts = [t for t in range(4) if Sm >> t & 1]
                hook(True)
                for t in ts:
                    rest = Sm & ~(1 << t)
                    A.label('L_P%s%d_%d' % (fam, Sm, t))
                    A('s_waitcnt vmcnt(%d)' % opt.get('lim2', 4 if opt.get('split', 1) else 3))
                    ck(t)
                    A(cmpv(vT3))
                    A('s_cbranch_vccz %s' % ('L_P%s%d_%d' % (fam, rest, nxt(rest, t)) if rest else cont))
                    A.label('L_F%s%d_%d' % (fam, Sm, t))
                    A(qk[t])
                    cnt(sN2)
                timeout_stub(A, 'L_P%s%d_%d' % (fam, Sm, ts[0]))
                if len(ts) > 1:
                    hook()
        hook(True)
        A.label('L_SA')
        stamp('q1l'); stamp('q0ok'); stamp('k0w'); stamp('k1w'); stamp('k1l')
        mx(0, 0, True); ror(vQ); ror(vQ + 1)
        mx(1, 0, True); ror(vQ + 2); ror(vQ + 3)
        mx(0, 2); A(ld_v[0]); ror(vQ + 8); ror(vQ + 9)
        mx(1, 2); A(ld_v[1]); ror(vQ + 10); ror(vQ + 11)
        smm(0); smm(1)
        mx(0, 1); mx(0, 3); mx(1, 1); A(swm[0]); mx(1, 3); A(swm[1])
        for o in mxo:
            A(o)
        s_end()
        A('s_branch L_sj')
        hook()
        hook(True)
        A.label('L_SK')
        stamp('k1w'); stamp('k1l')
        for o in zeros(MM, 4):
            A(o)
        smm(0); smm(1)
        for o in mxo + swm:
            A(o)
        s_end()
        A('s_branch L_sj')
        hook()
    else:
        hook(True)
        A.label('L_r2')
        for o in order_q:
            A(o)
        cnt(sN2)
        timeout_stub(A, 'L_h2')
        hook(True)
        A.label('L_r2k')
        for o in order_k + zeros(MM, 4):
            A(o)
        cnt(sN2, 1024)
        timeout_stub(A, 'L_h2k')
        hook()
    hook(True)
    A.label('L_r2v')
    for o in ld_v:
        A(o)
    cnt(sN2, 1 << 20)
    A('s_waitcnt vmcnt(0)')
    for o in chk4(vVm, vT3) + chk4more(vVm + 4, vT3):
        A(o)
    A(cmpv(vT3))
    A('s_cbranch_vccz L_h2v')
    timeout_stub(A, 'L_r2v')
    hook()
    hook(True)
    A.label('L_r3')
    for o in ld_part:
        A(o)
    cnt(sN3)
    if opt.get('lim3', -1) < 0:
        if nd:
            A('s_waitcnt vmcnt(0)')
        timeout_stub(A, 'L_h3')
    A('s_waitcnt vmcnt(%d)' % max(opt.get('lim3', -1), 0))
    for o in chk4(vPt, vT0) + chk4more(vPt + 4, vT0):
        A(o)
    A(cmpv(vT0))
    A(red3[0])
    A(red3[1])
    A('s_nop 6')
    A('s_cbranch_vccz L_h3ok')
    timeout_stub(A, 'L_r3')
    hook()
    A.label('L_loop_end')
    body = [re.sub(r'@HK(\d+)@', lambda m: 'L_hk%d' % (int(m.group(1)) + 4) if int(m.group(1)) + 4 < len(hooks) else 'L_hkret', l) for l in A.lines[loop_start:]]
    labs = [l[:-1] for l in body if l.endswith(':')]
    pat = re.compile(r'\b(' + '|'.join(labs) + r')\b')
    A.lines[loop_start:] = [l.replace('@LOC@', '') for l in body] + [pat.sub(r'\1_i', l).replace('@LOC@', ' sc1') for l in body]
    A.label('L_c_tail')
    A('s_add_u32 s%d, s%d, 2048' % (sKvm, sKvm))
    A('s_xor_b32 s%d, s%d, 0x2000' % (sKvm, sKvm))
    A('s_sub_u32 s%d, s%d, 2048' % (sKvm, sKvm))
    A(st4(vQK, vKst, sKvm, ' sc1'))
    if opt.get('split', 1):
        A('s_waitcnt lgkmcnt(0)')
        A('s_barrier')
        rd1(vR1v)
        red1(vVv)
    A(st4(vVv, vVst, sKvm, ' sc1'))
    if opt.get('diag'):
        A('s_cmp_lg_u32 s%d, 0' % sC)
        A('s_cbranch_scc1 L_dg')
        A('s_cmp_lg_u32 s%d, 0' % sW)
        A('s_cbranch_scc1 L_dg')
        dbg_mark(A, opt, 4, vT2, vT3)
        A('s_memtime s[78:79]')
        A('s_waitcnt lgkmcnt(0)')
        A('s_sub_u32 s78, s78, s98')
        A('s_sub_u32 s79, s96, s76')
        A('v_mov_b32 v%d, s78' % vT2)
        A('v_mov_b32 v%d, s79' % vT1)
        A('v_mov_b32 v%d, 0' % vT3)
        A('s_mov_b64 exec, 1')
        A('buffer_atomic_umax v%d, v%d, %s, 0 offen offset:36 sc1' % (vT2, vT3, S4(DBG)))
        A('buffer_atomic_umax v%d, v%d, %s, 0 offen offset:12 sc1' % (vT1, vT3, S4(DBG)))
        A('v_not_b32 v%d, v%d' % (vT2, vT2))
        A('buffer_atomic_umax v%d, v%d, %s, 0 offen offset:40 sc1' % (vT2, vT3, S4(DBG)))
        A('s_mov_b64 exec, -1')
        A.label('L_dg')
    if opt.get('hold') == 1:
        hold_after(A, 40)
    if opt.get('hold') == 2:
        hold_after(A, 170, 96)
    tstamp(A, opt, 7, vT2, vT3, sA)
    mark_dump(A, opt, 3, 11, vT2, vT3, sA)
    if lite:
        A('s_memtime s[12:13]')
        A('s_memrealtime s[14:15]')
        A('s_waitcnt lgkmcnt(0)')
        A('s_sub_u32 s12, s12, s96')
        A('s_sub_u32 s14, s14, s98')
        A('v_mov_b32 v%d, s12' % (vM + 3))
        A('v_mov_b32 v%d, s14' % (vM + 4))
        A('s_lshl_b32 s%d, s%d, 4' % (sA, sG))
        A('s_add_u32 s%d, s%d, s%d' % (sA, sA, sC))
        A('s_lshl_b32 s%d, s%d, 2' % (sA, sA))
        A('s_add_u32 s%d, s%d, s%d' % (sA, sA, sW))
        A('s_lshl_b32 s%d, s%d, 6' % (sA, sA))
        A('s_add_u32 s%d, s%d, 0x%x' % (sA, sA, PROF))
        A('v_mov_b32 v%d, s%d' % (vM, sN1))
        A('v_mov_b32 v%d, s%d' % (vM + 1, sN2))
        A('v_mov_b32 v%d, s%d' % (vM + 2, sN3))
        A('v_mov_b32 v%d, 0' % vT0)
        for i in range(9, 14):
            A('buffer_store_dword v%d, v%d, %s, s%d offen offset:%d' % (vM + i - 9, vT0, S4(WS), sA, 4 * i))
    if lite:
        A('v_mov_b32 v%d, s96' % vT1)
        A('buffer_store_dword v%d, v%d, %s, s%d offen offset:56' % (vT1, vT0, S4(WS), sA))
        A('v_mov_b32 v%d, s98' % vT2)
        A('buffer_store_dword v%d, v%d, %s, s%d offen offset:60' % (vT2, vT0, S4(WS), sA))
        A('s_sub_u32 s%d, s%d, 0x%x' % (sA, sA, PROF))
        A('s_lshl_b32 s%d, s%d, 2' % (sA, sA))
        A('s_add_u32 s%d, s%d, 0x%x' % (sA, sA, PROF + MB))
        A('buffer_store_dword v%d, v%d, %s, s%d offen' % (vTr, vL4, S4(WS), sA))
    A('s_waitcnt vmcnt(0)')
    A('s_endpgm')


def build(opt):
    A = Asm()
    prologue(A, opt)
    chain(A, opt)
    for kind in 'kvq':
        proj(A, opt, kind)
    orole(A, opt)
    A.label('L_code1')
    A('s_endpgm')
    body, nn = fix_hazards(A.lines, verbose=True)
    hdr = open('cdna_kernels/%s.s.ref' % NAME).read().split('\n')
    hdr = [l for l in hdr if l.startswith(';') and '@launch' not in l]
    hdr.append('; opts ' + ' '.join('%s=%s' % kv for kv in opt.items()))
    if opt.get('prof'):
        hdr.append('; marks=' + opt.get('marks', 'm0ok,st1end,qkvst,q0ok,Send,st2end,partst') + ',gath,gathok')
    out = hdr + ['; @launch grid=(256,1,1) block=(256,1,1) lds=%d' % opt.get('lds', 163840),
                 '.amdgcn_target "amdgcn-amd-amdhsa--gfx950"', '.text', '.globl %s_kernel' % NAME, '.p2align 8',
                 '.type %s_kernel,@function' % NAME, '%s_kernel:' % NAME]
    out += body
    out += ['.section .rodata,"a"', '.p2align 6', '.amdhsa_kernel %s_kernel' % NAME,
            '  .amdhsa_next_free_vgpr 512', '  .amdhsa_next_free_sgpr 102', '  .amdhsa_accum_offset 256',
            '  .amdhsa_group_segment_fixed_size 0', '  .amdhsa_kernarg_size 128', '  .amdhsa_user_sgpr_count 2',
            '  .amdhsa_user_sgpr_kernarg_segment_ptr 1', '  .amdhsa_system_sgpr_workgroup_id_x 1',
            '  .amdhsa_float_denorm_mode_32 3', '.end_amdhsa_kernel', '']
    return '\n'.join(out), nn


if __name__ == '__main__':
    opt = {}
    outp = sys.argv[1]
    for a_ in sys.argv[2:]:
        k, val = a_.split('=')
        opt[k] = int(val) if val.lstrip('-').isdigit() else val
    txt, nn = build(opt)
    open(outp, 'w').write(txt)
    print('wrote', outp, 'nops inserted:', nn)
```

```python
import re

REG_RE = re.compile(r'^(-|abs\()?([vas])(\d+)\)?$')
RNG_RE = re.compile(r'^(-|abs\()?([vas])\[(\d+):(\d+)\]\)?$')
SPECIAL = {'vcc': ['vcc_lo', 'vcc_hi'], 'vcc_lo': ['vcc_lo'], 'vcc_hi': ['vcc_hi'],
           'exec': ['exec_lo', 'exec_hi'], 'exec_lo': ['exec_lo'], 'exec_hi': ['exec_hi'], 'm0': ['m0']}
TRANS = ('v_exp_f32', 'v_log_f32', 'v_rcp_f32', 'v_rsq_f32', 'v_sqrt_f32', 'v_sin_f32', 'v_cos_f32',
         'v_rcp_iflag_f32')


def regs_of(op):
    op = op.strip()
    if op.startswith('|') and op.endswith('|'):
        op = op[1:-1]
    m = REG_RE.match(op)
    if m:
        return [m.group(2) + m.group(3)]
    m = RNG_RE.match(op)
    if m:
        return [m.group(2) + str(i) for i in range(int(m.group(3)), int(m.group(4)) + 1)]
    return list(SPECIAL.get(op, []))


class Ins:
    def __init__(self, text):
        self.text = text
        self.label = None
        self.pre = 0
        self.kind = 'other'
        self.rd = set()
        self.wr = set()
        t = text.split(';')[0].strip()
        if not t or t.startswith('.') and not t.endswith(':'):
            self.kind = 'none'
            return
        if t.endswith(':'):
            self.kind = 'label'
            self.label = t[:-1]
            return
        parts = t.split(None, 1)
        mn = parts[0]
        self.mn = mn
        rest = parts[1] if len(parts) > 1 else ''
        mods0 = ''
        mo = re.search(r'\s(op_sel|neg_lo|neg_hi|quad_perm)', rest)
        if mo:
            mods0 = rest[mo.start():]
            rest = rest[:mo.start()]
        ops = [o.strip() for o in rest.split(',')] if rest else []
        mods = ''
        if ops:
            last = ops[-1].split(None, 1)
            ops[-1] = last[0]
            mods = last[1] if len(last) > 1 else ''
        mods += mods0
        self.ops, self.mods = ops, mods
        R = lambda i: set(regs_of(ops[i])) if i < len(ops) else set()
        allr = lambda a: set().union(*[R(i) for i in range(a, len(ops))]) if len(ops) > a else set()
        self.target = None
        if mn.startswith('v_mfma') or mn.startswith('v_smfmac'):
            self.kind = 'mfma'
            self.passes = 8 if '32x32' in mn else 4
            self.wr = R(0)
            if mn.startswith('v_smfmac'):
                self.ab = R(1) | R(2) | R(3)
                self.c = R(0)
            else:
                self.ab = R(1) | R(2)
                self.c = R(3)
            self.rd = self.ab | self.c
        elif mn.startswith('v_'):
            self.kind = 'valu'
            base = mn.replace('_e32', '').replace('_e64', '').replace('_dpp', '').replace('_sdwa', '')
            self.base = base
            self.dpp = mn.endswith('_dpp') or 'row_' in mods or 'quad_perm' in mods
            self.sdwa = mn.endswith('_sdwa') or ('op_sel' in mods and not mn.startswith('v_pk_'))
            self.trans = base in TRANS
            self.perm = base.startswith('v_permlane')
            self.dot = base.startswith('v_dot')
            self.lane = base in ('v_readlane_b32', 'v_readfirstlane_b32', 'v_writelane_b32')
            if base == 'v_nop':
                pass
            elif self.perm or base == 'v_swap_b32':
                self.wr = R(0) | R(1)
                self.rd = R(0) | R(1)
            elif '_co_' in base or base.startswith('v_div_scale') or base.startswith('v_mad_u64'):
                self.wr = R(0) | R(1)
                self.rd = allr(2)
            else:
                self.wr = R(0)
                self.rd = allr(1)
                if base.startswith('v_fmac') or base.startswith('v_dot2c') or self.dpp or base == 'v_writelane_b32' or self.sdwa:
                    self.rd |= R(0)
                if base.startswith('v_cmpx'):
                    self.wr |= {'exec_lo', 'exec_hi'}
                if base.startswith('v_div_fmas'):
                    self.rd |= {'vcc_lo', 'vcc_hi'}
        elif mn.startswith('buffer_') or mn.startswith('global_'):
            self.kind = 'vmem'
            self.lds = (' lds' in ' ' + mods) or 'load_lds' in mn
            self.wide = False
            self.data = set()
            if mn in ('buffer_wbl2', 'buffer_inv'):
                pass
            elif 'load' in mn and not self.lds:
                self.wr = R(0)
                self.rd = allr(1)
            elif 'load' in mn:
                self.rd = allr(0) | {'m0'}
            elif 'store' in mn:
                self.rd = allr(0)
                self.data = R(0) if mn.startswith('buffer_') else R(1)
                self.wide = 'x3' in mn or 'x4' in mn
            else:
                self.rd = allr(0)
                if 'sc0' in mods:
                    self.wr = R(0)
        elif mn.startswith('ds_'):
            self.kind = 'ds'
            if 'read' in mn or 'permute' in mn or 'swizzle' in mn or 'rtn' in mn:
                self.wr = R(0)
                self.rd = allr(1)
            else:
                self.rd = allr(0)
        elif mn == 's_nop':
            self.kind = 'nop'
            self.n = int(ops[0], 0) + 1
        elif mn.startswith('s_cbranch') or mn == 's_branch':
            self.kind = 'branch'
            self.target = ops[0]
        elif mn == 's_call_b64':
            self.kind = 'branch'
            self.target = ops[1]
        elif mn in ('s_endpgm', 's_setpc_b64'):
            self.kind = 'end'
        elif mn.startswith('s_'):
            self.kind = 'salu'
            if mn.startswith('s_cmp') or mn.startswith('s_bitcmp') or mn in ('s_waitcnt', 's_barrier', 's_sleep', 's_setprio'):
                self.rd = allr(0)
            else:
                self.wr = R(0)
                self.rd = allr(1)
                if 'saveexec' in mn:
                    self.wr |= {'exec_lo', 'exec_hi'}
        else:
            raise ValueError('unknown instruction: ' + text)


def is_s(r):
    return r[0] == 's' or r.startswith('vcc')


def need(p, c):
    n = 0
    if p.kind == 'valu':
        vw = {r for r in p.wr if r[0] in 'va' and not r.startswith('vcc')}
        sw = {r for r in p.wr if is_s(r)}
        ew = {r for r in p.wr if r.startswith('exec')}
        if c.kind == 'mfma':
            if vw & c.rd:
                n = max(n, 3 if p.dot else 2)
            if ew:
                n = max(n, 4)
        if c.kind == 'valu':
            if vw & c.rd:
                if c.dpp or c.perm:
                    n = max(n, 2)
                if c.lane:
                    n = max(n, 1)
                if p.trans and not c.trans:
                    n = max(n, 1)
                if p.sdwa:
                    n = max(n, 1)
            if p.dot and (vw & (c.rd | c.wr)):
                same_c = c.dot and c.base == p.base and not (vw & set().union(*[set(regs_of(o)) for o in c.ops[1:3]]))
                if not same_c:
                    n = max(n, 3)
            if sw & c.rd:
                n = max(n, 4 if (c.lane or c.base.startswith('v_div_fmas')) else 2)
            if ew:
                if c.dpp:
                    n = max(n, 5)
                if c.lane or c.perm:
                    n = max(n, 4)
                if ew & c.rd:
                    n = max(n, 2)
        if c.kind in ('vmem', 'ds') and p.dot and (vw & c.rd):
            n = max(n, 3)
        if c.kind == 'vmem' and (sw & c.rd):
            n = max(n, 5)
        if c.kind == 'salu' and (sw & c.rd):
            n = max(n, 1)
    if p.kind == 'mfma':
        big = {4: 8, 8: 12}[p.passes]
        if c.kind == 'mfma':
            if p.wr & c.ab:
                n = max(n, big)
            if p.wr & c.c:
                if not (p.wr == c.c and p.passes == c.passes):
                    n = max(n, {4: 6, 8: 10}[p.passes])
            elif p.wr & c.wr:
                if not (p.wr == c.wr and p.passes == c.passes):
                    n = max(n, {4: 6, 8: 10}[p.passes])
        elif c.kind in ('valu', 'vmem', 'ds'):
            if p.wr & (c.rd | c.wr):
                n = max(n, big)
            if c.kind == 'valu' and (p.c & c.wr):
                n = max(n, {4: 3, 8: 7}[p.passes])
    if p.kind == 'vmem' and getattr(p, 'wide', False):
        if p.data & c.wr:
            n = max(n, 2 if c.kind in ('valu', 'mfma') else 1)
    if p.kind == 'salu' and 'm0' in p.wr and c.kind == 'vmem' and getattr(c, 'lds', False):
        n = max(n, 1)
    return n


def fix_hazards(lines, verbose=False):
    ins = [Ins(l) for l in lines]
    lab = {x.label: i for i, x in enumerate(ins) if x.kind == 'label'}
    preds_br = {}
    for i, x in enumerate(ins):
        if x.kind == 'branch':
            preds_br.setdefault(lab[x.target], []).append(i)
    MAXD = 12

    def preds(i):
        out = []
        if i > 0:
            p = ins[i - 1]
            if not (p.kind == 'end' or (p.kind == 'branch' and p.mn == 's_branch')):
                out.append(i - 1)
        if ins[i].kind == 'label':
            out += preds_br.get(i, [])
        return out

    def ws(x):
        if x.kind in ('label', 'none'):
            return 0
        return (x.n if x.kind == 'nop' else 1)

    def hold(x):
        if x.kind == 'mfma':
            return 3 if x.mn.startswith('v_smfmac') else 2
        if x.kind == 'valu' and (x.trans or x.perm):
            return 2
        return 0

    def dist(path):
        t = 0
        tm = path[0].passes if path[0].kind == 'mfma' else 0
        tv = hold(path[0])
        tc = None
        prev = path[0]
        for x in path[1:]:
            if x.kind in ('label', 'none'):
                continue
            t += ws(prev) + x.pre
            if prev.kind == 'branch' and 'vcc' in prev.mn and tc is not None:
                t = max(t, tc + 6)
            if prev.kind == 'ds' and prev.mn in ('ds_write_b128', 'ds_write2st64_b64'):
                t += 2
            if x.kind == 'valu' and 'vcc_lo' in x.wr:
                tc = max(t, tv)
            if x.kind in ('mfma', 'valu'):
                t = max(t, tv)
            if x.kind == 'mfma':
                t = max(t, tm)
                tm = t + x.passes
            if x.kind in ('mfma', 'valu'):
                tv = t + hold(x)
            prev = x
        return t - 1

    changed = True
    total = 0
    while changed:
        changed = False
        for i, c in enumerate(ins):
            if c.kind in ('label', 'none', 'nop', 'end', 'branch'):
                continue
            worst = 0
            stack = [(j, c.pre, [c]) for j in preds(i)]
            while stack:
                j, d, path = stack.pop()
                if d >= MAXD or len(path) > 40:
                    continue
                p = ins[j]
                path = [p] + path
                n = need(p, c)
                if n > d:
                    dd = dist(path) if p.kind == 'mfma' or c.kind == 'mfma' else d
                    if n - dd > worst:
                        worst = n - dd
                        why = p.text
                d2 = d + ws(p) + p.pre
                for k in preds(j):
                    stack.append((k, d2, path))
            if worst > 0:
                c.pre += worst
                c.why = why
                total += worst
                changed = True
    out = []
    for x in ins:
        if x.pre:
            out.append('    s_nop %d' % (x.pre - 1) + ('   ; hz: ' + x.why.split(';')[0].strip() if verbose else ''))
        out.append(x.text)
    return out, total


class Asm:
    def __init__(self):
        self.lines = []
        self.uid = 0

    def __call__(self, s):
        for l in s.split('\n'):
            l = l.strip()
            if not l:
                continue
            self.lines.append(l if l.endswith(':') else '    ' + l)

    def label(self, name):
        self.lines.append(name + ':')

    def newlabel(self, prefix='L'):
        self.uid += 1
        return '%s_%d' % (prefix, self.uid)

    def c(self, s):
        self.lines.append('    ; ' + s)


def v(a, n=1):
    return 'v%d' % a if n == 1 else 'v[%d:%d]' % (a, a + n - 1)


def a(a_, n=1):
    return 'a%d' % a_ if n == 1 else 'a[%d:%d]' % (a_, a_ + n - 1)


def s(a_, n=1):
    return 's%d' % a_ if n == 1 else 's[%d:%d]' % (a_, a_ + n - 1)


class Alloc:
    def __init__(self, start, end):
        self.p, self.end = start, end
        self.names = {}

    def __call__(self, name, n=1, align=1):
        if n >= 2:
            align = max(align, 2)
        self.p = (self.p + align - 1) // align * align
        r = self.p
        self.p += n
        assert self.p <= self.end, 'out of registers at ' + name
        self.names[name] = (r, n)
        return r
```

```python
import sys, re
from common import *
from workers import proj
from orole import orole


def prologue(A, opt):
    A('s_cmp_ge_u32 s2, 256')
    A('s_cbranch_scc1 L_end0')
    A('s_load_dwordx16 s[64:79], s[0:1], 0')
    A('s_load_dwordx16 s[80:95], s[0:1], 64')
    A('s_getreg_b32 s%d, hwreg(HW_REG_XCC_ID)' % sX)
    A('s_and_b32 s%d, s%d, 7' % (sX, sX))
    if opt.get('sw'):
        A('s_xor_b32 s%d, s%d, 4' % (sX, sX))
    A('v_lshrrev_b32 v1, 6, v0')
    A('v_and_b32 v0, 63, v0')
    A('v_readfirstlane_b32 s%d, v1' % sW)
    A('s_mov_b32 s%d, %d' % (sTO, TIMEOUT))
    if opt.get('cw', 1):
        A('s_lshr_b32 s36, s2, 3')
        A('s_lshl_b32 s37, s%d, 5' % sW)
        A('s_add_u32 s36, s36, s37')
        touch_code(A, 'L_code0', 'L_code1', 36, SRD_E, 2)
        A.label('L_code0')
    A('s_waitcnt lgkmcnt(0)')
    srd(A, WS, P_WS, WS_BYTES)
    srd(A, DBG, P_DBG, 256)
    if opt.get('prof') or opt.get('diag'):
        A('s_memrealtime s[76:77]')
    for i in range(4):
        A('v_mov_b32 v%d, -1' % (4 + i))
    A('s_lshl_b32 s36, s2, 2')
    A('s_add_u32 s36, s36, s%d' % sW)
    A('s_lshl_b32 s37, s36, 10')
    A('s_add_u32 s37, s37, 0x%x' % INIT1)
    A('s_bfe_u32 s38, s36, 0x50003')
    A('s_mul_i32 s38, s38, 0x%x' % ROW)
    A('s_bfe_u32 s39, s36, 0x20001')
    A('s_lshl_b32 s39, s39, 12')
    A('s_add_u32 s38, s38, s39')
    A('s_and_b32 s39, s36, 1')
    A('s_lshl_b32 s39, s39, 10')
    A('s_add_u32 s38, s38, s39')
    A('s_add_u32 s38, s38, 0x%x' % PART)
    A('s_cmp_ge_u32 s36, 768')
    A('s_cselect_b32 s37, s38, s37')
    A('s_lshl_b32 s36, s36, 8')
    A('s_add_u32 s36, s36, 0x%x' % INIT2)
    A('v_lshlrev_b32 v2, 4, v0')
    A('v_lshlrev_b32 v3, 2, v0')
    A('buffer_store_dwordx4 v[4:7], v2, %s, s37 offen sc1' % S4(WS))
    A('buffer_store_dword v4, v3, %s, s36 offen sc1' % S4(WS))
    wu = opt.get('wu', 1)
    wu = 2 * wu
    npre = opt.get('wupre', 0)

    def warm(lo, hi):
        for o in ['buffer_load_dword v252, v8, %s, s38 offen' % S4(SRD_A), 'buffer_load_dword v252, v9, %s, s38 offen offset:0x780' % S4(SRD_A)][lo:hi]:
            A(o)
    if wu:
        A('s_lshr_b32 s38, s2, 3')
        A('s_lshl_b32 s38, s38, 2')
        A('s_add_u32 s38, s38, s%d' % sW)
        A('s_lshr_b32 s39, s38, 5')
        A('s_and_b32 s38, s38, 31')
        A('s_and_b32 s42, s%d, 3' % sX)
        A('s_mov_b64 s[40:41], s[%d:%d]' % (P_WK, P_WK + 1))
        for m_, p_ in ((1, P_WV), (2, P_WQ), (3, P_WO)):
            A('s_cmp_eq_u32 s39, %d' % m_)
            A('s_cselect_b64 s[40:41], s[%d:%d], s[40:41]' % (p_, p_ + 1))
        A('s_cselect_b32 s43, 11, 13')
        A('s_cselect_b32 s44, 21, 11')
        A('s_lshl_b32 s42, s42, s44')
        A('s_add_u32 s44, s43, 5')
        A('s_lshl_b32 s38, s38, s44')
        A('s_add_u32 s38, s38, s42')
        A('v_lshrrev_b32 v8, 1, v0')
        A('v_lshlrev_b32 v8, s43, v8')
        A('v_and_b32 v9, 1, v0')
        A('v_lshl_add_u32 v8, v9, 10, v8')
        A('s_and_b32 s42, s%d, 3' % sX)
        A('s_cmp_eq_u32 s42, 3')
        A('s_cselect_b32 s42, 0, 0x%x' % OOB)
        A('v_lshlrev_b32 v9, 29, v9')
        A('v_add3_u32 v9, v8, v9, s42')
        A('v_add_u32 v8, 384, v8')
        A('s_lshr_b32 s42, s%d, 2' % sX)
        A('s_lshl_b32 s42, s42, 30')
        A('s_add_u32 s38, s38, s42')
        srd(A, SRD_A, 40, 8 * MB)
        warm(0, npre)
    A('s_waitcnt vmcnt(%d)' % npre)
    A('s_barrier')
    A('s_lshl_b32 s%d, s%d, 5' % (sR, sX))
    if opt.get('fakex'):
        A('s_cmp_eq_u32 s%d, 3' % sX)
        A('s_cbranch_scc0 L_fk')
        A('s_and_b32 s37, s2, 24')
        A('s_cbranch_scc0 L_fk')
        A('v_lshlrev_b32 v3, 5, v0')
        A.label('L_fk1')
        A('buffer_load_dword v1, v3, %s, 0 offen sc1' % S4(DBG))
        A('s_waitcnt vmcnt(0)')
        A('v_readlane_b32 s37, v1, 2')
        A('s_cmp_lg_u32 s37, -1')
        A('s_cbranch_scc1 L_fk1')
        A('s_mov_b32 s%d, 0x40' % sR)
        A.label('L_fk')
    A('s_lshr_b32 s37, s2, 3')
    A('s_lshl_b32 s36, 1, s37')
    A('v_mov_b32 v254, s36')
    A('s_cmp_eq_u32 s%d, 0' % sW)
    A('s_cselect_b32 s36, 0, 0x%x' % OOB)
    lane0_addr(A, 12, 36, 13)
    A('buffer_atomic_or v254, v12, %s, s%d offen sc0 sc1' % (S4(DBG), sR))
    A('s_add_u32 s%d, s%d, s37' % (sR, sR))
    warm(npre, wu)
    A('s_branch L_go')
    A.label('L_redo')
    A('v_mov_b32 v12, 0')
    A('v_mov_b32 v13, %d' % (LTOP + 4))
    A('s_waitcnt vmcnt(0) lgkmcnt(0)')
    A('s_cmp_lg_u32 s%d, 0' % sW)
    A('s_cbranch_scc1 L_tk')
    A('s_and_b32 s36, s%d, 0xe0' % sR)
    A.label('L_cl')
    A('v_readfirstlane_b32 s38, v254')
    A('s_ff0_i32_b32 s37, s38')
    A('s_cmp_lt_i32 s37, 0')
    A('s_cbranch_scc1 L_full')
    A('s_lshl_b32 s38, 1, s37')
    A('v_mov_b32 v254, s38')
    A('s_mov_b64 exec, 1')
    A('buffer_atomic_or v254, v12, %s, s36 offen sc0 sc1' % S4(DBG))
    A('s_mov_b64 exec, -1')
    A('s_waitcnt vmcnt(0)')
    A('v_readfirstlane_b32 s38, v254')
    A('s_bitcmp1_b32 s38, s37')
    A('s_cbranch_scc1 L_cl')
    A('s_add_u32 s36, s36, s37')
    A('s_branch L_tk_w')
    A.label('L_full')
    A('v_mov_b32 v1, 1')
    A('s_mov_b64 exec, 1')
    A('buffer_atomic_add v1, v12, %s, 0 offen offset:%d sc0 sc1' % (S4(DBG), VOTE + 4))
    A('s_mov_b64 exec, -1')
    A('s_waitcnt vmcnt(0)')
    A('v_readfirstlane_b32 s37, v1')
    A.label('L_ov')
    init_load(A, 1, 3)
    A('s_waitcnt vmcnt(0)')
    arrived(A, 1, 3, 38, 39)
    A('s_cmp_ge_u32 s38, 256')
    A('s_cbranch_scc1 L_ov1')
    A('s_sleep 4')
    timeout_stub(A, 'L_ov')
    A.label('L_ov1')
    A('s_mov_b32 s36, -1')
    A.label('L_ov2')
    A('s_add_u32 s36, s36, 1')
    A('s_cmp_ge_u32 s36, 256')
    A('s_cbranch_scc1 L_tk_w')
    A('s_lshr_b32 s39, s36, 5')
    A('v_readlane_b32 s38, v1, s39')
    A('s_bitcmp1_b32 s38, s36')
    A('s_cbranch_scc1 L_ov2')
    A('s_sub_u32 s37, s37, 1')
    A('s_cbranch_scc0 L_ov2')
    A.label('L_tk_w')
    A('v_mov_b32 v1, s36')
    A('ds_write_b32 v13, v1')
    A('s_waitcnt lgkmcnt(0)')
    A.label('L_tk')
    A('s_barrier')
    A('ds_read_b32 v1, v13')
    A('v_mov_b32 v254, 0')
    A('s_waitcnt lgkmcnt(0)')
    A('v_readfirstlane_b32 s%d, v1' % sR)
    A('s_cmp_ge_u32 s%d, 256' % sR)
    A('s_cbranch_scc1 L_end0')
    A.label('L_go')
    A('s_lshr_b32 s%d, s%d, 4' % (sG, sR))
    A('s_and_b32 s%d, s%d, 15' % (sC, sR))
    A('s_cmp_lt_u32 s%d, 128' % sR)
    A('s_cbranch_scc1 L_chain')
    A('s_bfe_u32 s%d, s%d, 0x20005' % (sG, sR))
    A('s_lshl_b32 s%d, s%d, 3' % (sG, sG))
    A('s_and_b32 s36, s%d, 7' % sR)
    A('s_add_u32 s36, s36, s%d' % sG)
    A('s_bfe_u32 s%d, s%d, 0x20003' % (sC, sR))
    A('s_cmp_eq_u32 s%d, 0' % sC)
    A('s_cbranch_scc1 L_k')
    A('s_cmp_eq_u32 s%d, 1' % sC)
    A('s_cbranch_scc1 L_v')
    A('s_cmp_eq_u32 s%d, 2' % sC)
    A('s_cbranch_scc1 L_q')
    A('s_branch L_o')
    A.label('L_end0')
    A('s_endpgm')


def chain(A, opt):
    prof = opt.get('prof', 0) == 1
    shr_ = opt.get('shr', 1)
    lite = opt.get('prof', 0) >= 1
    V = Alloc(1, 252)
    vL16, vL4, vQst, vVst, vKst, vIdx, vSent = [V(n) for n in 'l16 l4 qst vst kst idx sent'.split()]
    vW1q, vW1k, vR1, vR1v = V('w1q'), V('w1k'), V('r1'), V('r1v')
    vW2, vR2, vW2l, vR2l = V('w2'), V('r2'), V('w2l'), V('r2l')
    vT0, vT1, vT2, vT3 = V('t0'), V('t1'), V('t2'), V('t3')
    vQK, vVv, vBias = V('qk'), V('vv'), V('bias')
    vFa, vFv = V('fa'), V('fv')
    vM = V('m', 16, 4)
    vA = V('acc', 24, 4)
    vQ = V('q', 16, 4)
    vKm, vVm = V('km', 8, 4), V('vm', 8, 4)
    vKx, vVx = V('kx', 32, 4), V('vx', 32, 4)
    vS = V('s', 8, 4)
    MM = V('mm', 4, 4)
    vP, vPs = V('p', 4, 4), V('ps', 4, 4)
    vPm, vPms = V('pm', 2), V('pms', 2)
    vOne, vSel, vHalf = V('one', 4, 4), V('sel', 4, 4), V('half', 2)
    vVOx = V('vox', 16, 4)
    vT = V('tacc', 32, 4)
    vVOm = vT + 16
    vF = vT + 16
    vR = vVm
    vO = vA
    vLs = vA + 8
    vR2d = vA + 12
    vPt = vS
    S = Alloc(36, 62)
    sStep, sMemR, sMemW, sQkvW, sQkvR, sQkvR2 = S('step'), S('memr'), S('memw'), S('qkvw'), S('qkvr'), S('qkvr2')
    sKx, sKx2, sVx, sVx2, sPartR, sPartA, sKvm = [S(n) for n in 'kx kx2 vx vx2 pr pa kvm'.split()]
    sA, sB, sCc, sD = S('a'), S('b'), S('cc'), S('d')
    sScale, sFo, sPf = S('scale'), S('fo'), S('pf')
    sN1, sN2, sN3 = 64, 65, 66
    sLo = 0
    sKn, sPartR2, sGp = S('kn'), S('pr2'), S('gp')
    sSide = 3
    sSc2 = 2
    assert vT0 % 2 == 0
    LDSL = 20480
    LDS1, LDS2, LDSW = 0, 12288, 32768
    W1 = lambda t, m, tt: (t * 3 + m) * 16 + tt * 8
    WO = lambda n, j: 192 + n * 16 + j * 4

    A.label('L_chain')
    cap0 = len(A.lines)
    A('s_bitcmp1_b32 s%d, 0' % sC)
    A('s_cselect_b64 s[2:3], s[%d:%d], s[%d:%d]' % (P_WK, P_WK + 1, P_WQ, P_WQ + 1))
    srd(A, SRD_A, 2, 8 * MB)
    srd(A, SRD_C, P_WV, 8 * MB)
    srd(A, SRD_D, P_WO, 8 * MB)
    srd(A, SRD_E, P_MEM0, 16384)
    if opt.get('iw', 1):
        A('s_getpc_b64 s[2:3]')
        A.label('L_pc')
        A('s_add_u32 s2, s2, L_loop-L_pc')
        A('s_addc_u32 s3, s3, 0')
        srd(A, SRD_B, 2, 0)
        A('s_mov_b32 s%d, L_loop_end-L_loop' % (SRD_B + 2))
        A('s_lshl_b32 s%d, s%d, 13' % (sA, sW))
        A('v_lshlrev_b32 v%d, 7, v0' % vT0)
        A('buffer_load_dword v252, v%d, %s, s%d offen' % (vT0, S4(SRD_B), sA))
    vWa, vWb, vWc, vWd, vWe = vT, vT + 1, vT + 2, vT + 3, vT + 4
    nt = ' nt' if opt.get('nt', 31) & 1 else ''
    bits(A, vWd, [(3, 3, 11), (0, 3, 4)], vT0)
    A('s_lshl_b32 s%d, s%d, 2' % (sA, sG))
    A('s_add_u32 s%d, s%d, s%d' % (sA, sA, sW))
    A('s_lshl_b32 s%d, s%d, 18' % (sA, sA))
    A('s_lshl_b32 s%d, s%d, 7' % (sB, sC))
    A('s_add_u32 s%d, s%d, s%d' % (sA, sA, sB))
    if opt.get('wox'):
        A('s_xor_b32 s%d, s%d, %d' % (sA, sA, opt['wox']))
    for k in range(16):
        A('s_add_u32 s%d, s%d, 0x%x' % (sB, sA, k * 8 * 2048))
        A('buffer_load_dwordx4 %s, v%d, %s, s%d offen%s' % (a(192 + 4 * k, 4), vWd, S4(SRD_D), sB, (nt, '', ' sc1')[opt.get('opl', 0)]))
    bits(A, vWa, [(2, 4, 13), (0, 2, 4)], vT0)
    bits(A, vWe, [(3, 3, 13), (0, 3, 4)], vT0)
    sW1v, sW1q = sFo, sKn
    A('s_lshl_b32 s%d, s%d, 21' % (sA, sW))
    A('s_lshl_b32 s%d, s%d, 10' % (sB, sG))
    A('s_add_u32 s%d, s%d, s%d' % (sA, sA, sB))
    A('s_lshl_b32 s%d, s%d, 6' % (sB, sC))
    A('s_add_u32 s%d, s%d, s%d' % (sW1v, sA, sB))
    A('s_and_b32 s%d, s%d, 0xffffff80' % (sW1q, sW1v))

    def w1q(t):
        for i in range(8):
            A('s_add_u32 s%d, s%d, 0x%x' % (sB, sW1q, (64 * t + 8 * i) * 8192))
            A('buffer_load_dwordx4 %s, v%d, %s, s%d offen%s' % (a(W1(t, 0, 0) + 4 * i, 4), vWe, S4(SRD_A), sB, nt))

    def w1v(t):
        for i in range(4):
            A('s_add_u32 s%d, s%d, 0x%x' % (sB, sW1v, (64 * t + 16 * i) * 8192))
            A('buffer_load_dwordx4 %s, v%d, %s, s%d offen%s' % (a(W1(t, 2, 0) + 4 * i, 4), vWa, S4(SRD_C), sB, (nt, '', ' sc1')[opt.get('vpl', 0)]))
    A('v_lshlrev_b32 v%d, 4, v0' % vL16)
    A('v_lshlrev_b32 v%d, 2, v0' % vL4)
    A('v_mov_b32 v%d, -1' % vSent)
    A('v_and_b32 v%d, 8, v0' % vT0)
    A('v_cmp_eq_u32 vcc, 0, v%d' % vT0)
    A('v_mov_b32 v%d, 0xeeee' % vT1)
    A('v_mov_b32 v%d, 0x4444' % vT2)
    A('v_cndmask_b32 v%d, v%d, v%d, vcc' % (vIdx, vT1, vT2))
    A('s_mov_b32 s%d, 0' % sStep)
    A('s_lshl_b32 s%d, s%d, 15' % (sA, sG))
    if shr_:
        A('s_and_b32 s%d, s%d, 0x30000' % (sA, sA))
    A('s_add_u32 s%d, s%d, 0x%x' % (sA, sA, MEMR))
    A('s_lshl_b32 s%d, s%d, 12' % (sB, sW))
    A('s_add_u32 s%d, s%d, s%d' % (sMemR, sA, sB))
    A('s_lshl_b32 s%d, s%d, 10' % (sB, sC))
    A('s_add_u32 s%d, s%d, s%d' % (sA, sA, sB))
    A('s_lshl_b32 s%d, s%d, 8' % (sB, sW))
    A('s_add_u32 s%d, s%d, s%d' % (sMemW, sA, sB))
    if shr_:
        A('s_and_b32 s%d, s%d, 1' % (sB, sG))
        A('s_lshl_b32 s%d, s%d, 7' % (sB, sB))
        A('s_add_u32 s%d, s%d, s%d' % (sMemW, sMemW, sB))
        vM4, vG8 = vSel + 2, vSel + 3
    A('s_lshl_b32 s%d, s%d, 16' % (sA, sG))
    A('s_add_u32 s%d, s%d, 0x%x' % (sQkvW, sA, QKVR))
    A('s_mul_i32 s%d, s%d, 6144' % (sB, sW))
    A('s_add_u32 s%d, s%d, s%d' % (sQkvR, sQkvW, sB))
    A('s_add_u32 s%d, s%d, 4096' % (sQkvR2, sQkvR))
    A('s_lshr_b32 s%d, s%d, 2' % (sB, sC))
    A('s_mul_i32 s%d, s%d, 6144' % (sB, sB))
    A('s_add_u32 s%d, s%d, s%d' % (sQkvW, sQkvW, sB))
    A('s_mov_b32 s%d, %s' % (sScale, f32(128 ** -0.5 * LOG2E)))
    A('s_and_b32 s%d, s%d, 1' % (sA, sW))
    A('s_lshl_b32 s%d, s%d, 1' % (sA, sA))
    A('v_lshrrev_b32 v%d, 5, v0' % vT0)
    A('v_add_u32 v%d, s%d, v%d' % (vT0, sA, vT0))
    A('v_and_b32 v%d, 31, v0' % vT1)
    A('v_lshlrev_b32 v%d, 2, v%d' % (vT1, vT1))
    A('s_bfe_u32 s%d, s%d, 0x10001' % (sB, sC))
    A('s_lshl_b32 s%d, s%d, 10' % (sB, sB))
    A('s_lshr_b32 s%d, s%d, 1' % (sA, sW))
    A('s_lshl_b32 s%d, s%d, 7' % (sCc, sA))
    A('s_add_u32 s%d, s%d, s%d' % (sCc, sCc, sB))
    A('s_lshl_b32 s%d, s%d, 9' % (sA, sA))
    A('s_add_u32 s%d, s%d, s%d' % (sA, sA, sB))
    A('s_add_u32 s%d, s%d, 2048' % (sA, sA))
    A('v_lshl_add_u32 v%d, v%d, 8, v%d' % (vT2, vT0, vT1))
    A('v_add_u32 v%d, s%d, v%d' % (vT2, sCc, vT2))
    A('v_lshl_add_u32 v%d, v%d, 7, v%d' % (vT1, vT0, vT1))
    A('v_add_u32 v%d, s%d, v%d' % (vT3, sA, vT1))
    A('s_bitcmp1_b32 s%d, 0' % sC)
    A('s_cselect_b64 %s, -1, 0' % s(sLo, 2))
    A('s_cselect_b32 s%d, 0, 0x%x' % (sA, OOB))
    A('v_cndmask_b32 v%d, v%d, v%d, %s' % (vQst, vT2, vT3, s(sLo, 2)))
    A('v_add_u32 v%d, s%d, v%d' % (vKst, sA, vT3))
    A('s_and_b32 s%d, s%d, 1' % (sA, sC))
    A('s_lshl_b32 s%d, s%d, 9' % (sA, sA))
    A('s_add_u32 s%d, s%d, s%d' % (sA, sA, sB))
    A('s_add_u32 s%d, s%d, 4096' % (sA, sA))
    A('s_cmp_lt_u32 s%d, 2' % sW)
    A('s_cselect_b32 s%d, s%d, 0x%x' % (sA, sA, OOB))
    A('v_add_u32 v%d, s%d, v%d' % (vVst, sA, vT1))
    A('v_bfe_u32 v%d, v0, 3, 2' % vT1)
    A('v_xor_b32 v%d, v%d, v%d' % (vT1, vT1, vT0))
    A('v_lshlrev_b32 v%d, 5, v%d' % (vT1, vT1))
    A('v_lshl_add_u32 v%d, v%d, 7, v%d' % (vT1, vT0, vT1))
    A('v_and_b32 v%d, 3, v0' % vT2)
    A('v_lshl_add_u32 v%d, v%d, 3, v%d' % (vT1, vT2, vT1))
    A('v_bfe_u32 v%d, v0, 2, 1' % vT2)
    A('v_lshl_add_u32 v%d, v%d, 2, v%d' % (vT1, vT2, vT1))
    A('v_add_u32 v%d, 2048, v%d' % (vR1v, vT1))
    A('s_lshr_b32 s%d, s%d, 1' % (sA, sW))
    A('s_lshl_b32 s%d, s%d, 10' % (sA, sA))
    A('v_add_u32 v%d, s%d, v%d' % (vR1, sA, vT1))
    A('v_bfe_u32 v%d, v0, 4, 1' % vT0)
    A('v_lshrrev_b32 v%d, 5, v0' % vT1)
    A('v_lshl_add_u32 v%d, v%d, 1, v%d' % (vT0, vT0, vT1))
    A('s_mul_i32 s%d, s%d, 3072' % (sA, sW))
    for (dst, kind) in ((vW1q, 0), (vW1k, 1)):
        if kind == 0:
            A('v_bfe_u32 v%d, v0, 2, 2' % vT1)
            A('v_and_b32 v%d, 3, v0' % vT3)
        else:
            A('v_bfe_u32 v%d, v0, 3, 1' % vT1)
            A('v_and_b32 v%d, 1, v0' % vT2)
            A('v_lshl_add_u32 v%d, v%d, 1, v%d' % (vT1, vT1, vT2))
            A('v_bfe_u32 v%d, v0, 1, 2' % vT3)
        A('v_xor_b32 v%d, v%d, v%d' % (vT2, vT1, vT0))
        A('v_lshlrev_b32 v%d, 5, v%d' % (vT2, vT2))
        A('v_lshl_add_u32 v%d, v%d, 7, v%d' % (vT2, vT1, vT2))
        A('v_lshl_add_u32 v%d, v%d, 3, v%d' % (vT2, vT3, vT2))
        A('v_add_u32 v%d, s%d, v%d' % (dst, sA, vT2))
    A('v_cndmask_b32 v%d, v%d, v%d, %s' % (vW1q, vW1q, vW1k, s(sLo, 2)))
    for i in range(4):
        A('v_mov_b32 v%d, 0x3f803f80' % (vOne + i))
        A('v_mov_b32 v%d, 0' % (vPs + i))
    for i in range(2):
        A('v_mov_b32 v%d, 0x3f003f00' % (vHalf + i))
        A('v_mov_b32 v%d, 0' % (vPms + i))
    A('v_and_b32 v%d, 8, v0' % vT0)
    A('v_cmp_eq_u32 vcc, 0, v%d' % vT0)
    A('v_mov_b32 v%d, 0x7f800000' % vT1)
    A('v_mov_b32 v%d, 0xff800000' % vT2)
    A('v_cndmask_b32 v%d, v%d, v%d, vcc' % (vBias, vT1, vT2))
    A('v_and_b32 v%d, 3, v0' % vT0)
    A('v_lshlrev_b32 v%d, 4, v%d' % (vT1, vT0))
    A('v_mov_b32 v%d, 0x3f80' % vT2)
    A('v_lshlrev_b32 v%d, v%d, v%d' % (vT1, vT1, vT2))
    A('v_cmp_gt_u32 vcc, 2, v%d' % vT0)
    A('v_cndmask_b32 v%d, 0, v%d, vcc' % (vT1, vT1))
    A('v_bfe_u32 v%d, v0, 2, 2' % vT0)
    for i in range(4):
        A('v_cmp_eq_u32 vcc, %d, v%d' % (i, vT0))
        A('v_cndmask_b32 v%d, 0, v%d, vcc' % (vSel + i, vT1))
    if shr_:
        bits(A, vM4, [(0, 5, 2), (5, 1, 30)], vT0)
        A('s_and_b32 s%d, s%d, 1' % (sB, sG))
        A('s_lshl_b32 s%d, s%d, 7' % (sB, sB))
        bits(A, vG8, [(4, 2, 8), (0, 4, 3)], vT0, None if opt.get('xhalf') else 's%d' % sB)
    A('s_lshl_b32 s%d, s%d, 2' % (sA, sW))
    A('s_add_u32 s%d, s%d, %d' % (sA, sA, LDSL))
    A('v_add_u32 v%d, s%d, v%d' % (vW2l, sA, vL16))
    hb, rb, db = (5, 3, 1) if shr_ else (1, 4, 2)
    bits(A, vT0, [(0, 1, 2), (rb, 2, 0)], vT1)
    A('v_lshlrev_b32 v%d, 4, v%d' % (vT1, vT0))
    A('v_add_u32 v%d, %d, v%d' % (vR2l, LDSL, vT1))
    bits(A, vT1, [(hb, 1, 1)], vT2)
    A('v_xor_b32 v%d, v%d, v%d' % (vT0, vT0, vT1))
    A('v_lshlrev_b32 v%d, 4, v%d' % (vT0, vT0))
    A('v_lshl_add_u32 v%d, v%d, 7, v%d' % (vT0, vT1, vT0))
    A('v_bfe_u32 v%d, v0, %d, 1' % (vT1, db + 1))
    A('v_lshl_add_u32 v%d, v%d, 7, v%d' % (vT0, vT1, vT0))
    A('v_bfe_u32 v%d, v0, %d, 1' % (vT1, db))
    A('v_lshl_add_u32 v%d, v%d, 3, v%d' % (vT0, vT1, vT0))
    A('s_lshl_b32 s%d, s%d, 9' % (sA, sW))
    A('s_add_u32 s%d, s%d, %d' % (sA, sA, LDS2))
    A('v_add_u32 v%d, s%d, v%d' % (vR2, sA, vT0))
    A('v_bfe_u32 v%d, v0, 3, 1' % vT0)
    A('v_lshlrev_b32 v%d, 9, v%d' % (vT0, vT0))
    A('v_lshrrev_b32 v%d, 4, v0' % vT1)
    A('v_lshl_add_u32 v%d, v%d, 7, v%d' % (vT0, vT1, vT0))
    A('v_and_b32 v%d, 2, v%d' % (vT1, vT1))
    A('v_and_b32 v%d, 7, v0' % vT2)
    A('v_xor_b32 v%d, v%d, v%d' % (vT1, vT1, vT2))
    A('v_lshl_add_u32 v%d, v%d, 4, v%d' % (vT0, vT1, vT0))
    A('s_lshl_b32 s%d, s%d, 11' % (sA, sW))
    A('s_add_u32 s%d, s%d, %d' % (sA, sA, LDS2))
    A('v_add_u32 v%d, s%d, v%d' % (vW2, sA, vT0))

    if opt.get('iw', 1):
        A('s_barrier')
        for w in range(3):
            A('s_cmp_eq_u32 s%d, %d' % (sW, w))
            A('s_cbranch_scc1 L_hk%d' % w)
        A('s_branch L_hk3')
        A.label('L_hkret')
    def mem0_loads():
        bits(A, vT2, [(0, 3, 11), (3, 3, 4)], vT0)
        A('s_lshl_b32 s%d, s%d, 9' % (sA, sW))
        for t in range(4):
            A('buffer_load_dwordx4 %s, v%d, %s, s%d offen offset:%d' % (v(vM + 4 * t, 4), vT2, S4(SRD_E), sA, t * 128))
    A('s_lshl_b32 s%d, s%d, 14' % (sCc, sW))
    A('s_add_u32 s%d, s%d, %d' % (sCc, sCc, LDSW))
    A('v_add_u32 v%d, s%d, v%d' % (vWb, sCc, vL16))
    bits(A, vWc, [(2, 1, 11), (4, 2, 9), (3, 1, 7), (0, 2, 3)], vT0, 's%d' % sCc)
    w1q(0); w1v(0)
    A('s_waitcnt vmcnt(12)')
    confirm(A, opt, vT0, vT1, sA)
    for k in range(16):
        A('ds_write_b128 v%d, %s offset:%d' % (vWb, a(192 + 4 * k, 4), k * 1024))
        if k == 7:
            A('s_waitcnt lgkmcnt(0)')
    A('s_waitcnt lgkmcnt(0)')
    for n in range(4):
        for j in range(4):
            for pp in range(2):
                A('ds_read_b64_tr_b16 %s, v%d offset:%d' % (a(WO(n, j) + 2 * pp, 2), vWc, (32 * j + 2 * pp) * 128 + n * 32))
        A('s_waitcnt lgkmcnt(0)')
    if opt.get('prof'):
        A('s_memrealtime s[98:99]')
    bits(A, vWc, [(5, 1, 11), (4, 1, 9), (3, 1, 10), (2, 1, 7), (0, 2, 3)], vT0, 's%d' % sCc)
    bits(A, vWd, [(5, 1, 10), (4, 1, 8), (3, 1, 9), (2, 1, 6), (0, 2, 3)], vT0, 's%d' % sCc)
    def w1_round(t, extra=0):
        if t == 2:
            mem0_loads()
            init_load(A, vT0, vT1)
        if t < 3:
            w1q(t + 1)
        A('s_waitcnt vmcnt(%d)' % ((12, 12, 17, 4 + extra)[t]))
        for i in range(8):
            A('ds_write_b128 v%d, %s offset:%d' % (vWb, a(W1(t, 0, 0) + 4 * i, 4), i * 1024))
        for m in range(2):
            A('s_waitcnt lgkmcnt(4)')
            for tt in range(2):
                for pp in range(4):
                    A('ds_read_b64_tr_b16 %s, v%d offset:%d' % (a(W1(t, m, tt) + 2 * pp, 2), vWc, (32 * (pp >> 1) + 2 * (pp & 1)) * 128 + m * 64 + tt * 32))
        if t < 3:
            w1v(t + 1)
        A('s_waitcnt vmcnt(%d) lgkmcnt(0)' % (12 if t < 3 else extra))
        for i in range(4):
            A('ds_write_b128 v%d, %s offset:%d' % (vWb, a(W1(t, 2, 0) + 4 * i, 4), 8192 + i * 1024))
        for tt in range(2):
            for pp in range(4):
                A('ds_read_b64_tr_b16 %s, v%d offset:%d' % (a(W1(t, 2, tt) + 2 * pp, 2), vWd, 8192 + (32 * (pp >> 1) + 2 * (pp & 1)) * 64 + tt * 32))
        A('s_waitcnt lgkmcnt(0)')
    for t in range(3):
        w1_round(t)

    def vox(fill=None):
        fill = fill or {}
        k = 0
        for n in range(4):
            for j in range(4):
                for tt in range(2):
                    acc = v(vT + (n * 2 + tt) * 4, 4)
                    if opt.get('xnovox') and fill:
                        A('s_nop 3')
                    else:
                        A('v_mfma_f32_16x16x32_bf16 %s, %s, %s, %s' % (acc, v(vVx + (tt * 4 + j) * 4, 4), a(WO(n, j), 4), acc if j else '0'))
                    for o in fill.get(k, []):
                        A(o)
                    k += 1
                    if n > 0 and j in (1, 2):
                        jj = 2 * (j - 1) + tt
                        b = vT + (n - 1) * 8 + 2 * jj
                        A('v_cvt_pk_bf16_f32 v%d, v%d, v%d' % (vVOx + (n - 1) * 4 + jj, b, b + 1))

    def vox_tail():
        return ['v_cvt_pk_bf16_f32 v%d, v%d, v%d' % (vVOx + 12 + jj, vT + 24 + 2 * jj, vT + 25 + 2 * jj) for jj in range(4)]

    def paced(ops, every=4):
        for i, o in enumerate(ops):
            A(o)
            if i % every == every - 1 and i != len(ops) - 1:
                A('s_nop 0')

    def zeros(base, n, val='0'):
        return ['v_mov_b32 v%d, %s' % (base + i, val) for i in range(n)]

    cap_vm(A, cap0)
    wait_init(A, vT0, vT1, sA, sB, 2)
    if opt.get('rt', 1):
        bits(A, vT1, [(0, 5, 7), (5, 1, 14)], vT0)
        A('s_and_b32 s%d, s%d, %d' % (sA, sG, shr_))
        A('s_lshl_b32 s%d, s%d, 15' % (sA, sA))
        A('s_add_u32 s%d, s%d, s%d' % (sA, sA, sMemR))
        A('buffer_load_dword v252, v%d, %s, s%d offen sc1' % (vT1, S4(WS), sA))
        A('v_lshlrev_b32 v%d, 7, v0' % vT1)
        A('s_xor_b32 s%d, s%d, 0x8000' % (sA, sQkvR))
        A('buffer_load_dword v252, v%d, %s, s%d offen sc1' % (vT1, S4(WS), sQkvR))
        A('buffer_load_dword v252, v%d, %s, s%d offen sc1' % (vT1, S4(WS), sA))
    if opt.get('dyn'):
        A('s_lshl_b32 s%d, s%d, 2' % (sA, sX))
        A('v_mov_b32 v%d, 0x%x' % (vT1, PROF + 6 * MB))
        A('buffer_load_dword v%d, v%d, %s, s%d offen sc1' % (vT0, vT1, S4(WS), sA))
        A('s_waitcnt vmcnt(0)')
        A('v_readfirstlane_b32 s%d, v%d' % (sGp, vT0))
    bits(A, 253, [(0, 3, 7), (3, 3, 28)], vT0)
    A('s_lshl_b32 s%d, s%d, 2' % (sA, sG))
    A('s_add_u32 s%d, s%d, s%d' % (sA, sA, sW))
    A('s_lshl_b32 s%d, s%d, 8' % (sCc, sA))
    A('s_add_u32 s%d, s%d, 0x%x' % (sCc, sCc, F_KV))
    near(A, sCc, sB)
    bits(A, vFa, [(0, 1, 7)], vT0, 's%d' % sCc)
    A('s_mul_i32 s%d, s%d, 0x%x' % (sKx, sA, ROW))
    near(A, sKx, sB)
    A('s_add_u32 s%d, s%d, 0x%x' % (sVx, sKx, VX))
    A('s_add_u32 s%d, s%d, 0x%x' % (sKx, sKx, KX))
    A('s_add_u32 s%d, s%d, 4096' % (sKx2, sKx))
    A('s_add_u32 s%d, s%d, 4096' % (sVx2, sVx))
    A('s_and_b32 s%d, s%d, 7' % (sB, sC))
    A('s_lshl_b32 s%d, s%d, 10' % (sB, sB))
    A('s_cmp_lt_u32 s%d, 8' % sC)
    A('s_cselect_b32 s%d, s%d, s%d' % (sPf, sKx, sVx))
    A('s_add_u32 s%d, s%d, s%d' % (sPf, sPf, sB))
    A('s_add_u32 s%d, s%d, 0x%x' % (sPf, sPf, SEG))
    A('s_lshl_b32 s%d, s%d, 1' % (sPartR, sC))
    A('s_lshr_b32 s%d, s%d, 1' % (sB, sW))
    A('s_add_u32 s%d, s%d, s%d' % (sPartR, sPartR, sB))
    A('s_mul_i32 s%d, s%d, 0x%x' % (sPartR, sPartR, ROW))
    A('s_and_b32 s%d, s%d, 1' % (sB, sW))
    A('s_lshl_b32 s%d, s%d, 12' % (sB, sB))
    A('s_add_u32 s%d, s%d, s%d' % (sPartR, sPartR, sB))
    A('s_add_u32 s%d, s%d, 0x%x' % (sPartR, sPartR, PART))
    near(A, sPartR, sB)
    A('s_lshl_b32 s%d, s%d, 8' % (sB, sG))
    A('s_add_u32 s%d, s%d, s%d' % (sPartA, sPartR, sB))
    A('s_and_b32 s%d, s%d, %d' % (sB, sB, 1024 if opt.get('gx', 1) else 0))
    A('s_add_u32 s%d, s%d, s%d' % (sPartR, sPartR, sB))
    A('s_xor_b32 s%d, s%d, 1024' % (sPartR2, sPartR))
    A('s_lshl_b32 s%d, s%d, 1' % (sA, sG))
    A('s_lshr_b32 s%d, s%d, 3' % (sB, sC))
    A('s_add_u32 s%d, s%d, s%d' % (sA, sA, sB))
    A('s_mul_i32 s%d, s%d, 0x%x' % (sKvm, sA, ROW))
    near(A, sKvm, sB)
    A('s_bfe_u32 s%d, s%d, 0x10002' % (sB, sC))
    A('s_lshl_b32 s%d, s%d, 12' % (sB, sB))
    A('s_add_u32 s%d, s%d, s%d' % (sKvm, sKvm, sB))
    A('s_add_u32 s%d, s%d, 0x%x' % (sKvm, sKvm, KVM - 2048))

    def kv_ops(lab, ahead=2):
        return ['v_readlane_b32 s%d, v%d, 0' % (sCc, vFv), 'v_readlane_b32 s%d, v%d, 1' % (sB, vFv),
                's_add_u32 s%d, s%d, %d' % (sA, sStep, ahead), 's_min_u32 s%d, s%d, 64' % (sA, sA),
                's_min_i32 s%d, s%d, s%d' % (sB, sB, sCc), 's_max_i32 s%d, s%d, s%d' % (sKn, sKn, sB),
                's_cmp_lt_i32 s%d, s%d' % (sKn, sA), 's_cbranch_scc1 %s' % lab]

    def kv_check(lab, ahead=2):
        for o in kv_ops(lab, ahead):
            A(o)

    ld_flags = 'buffer_load_dword v%d, v%d, %s, 0 offen sc1' % (vFv, vFa, S4(WS))
    A('s_mov_b32 s%d, 0' % sKn)
    rmask = sum(1 << int(x) for x in str(opt.get('rf', '0.1.2.3.5.7.9.12.15.19.24.31.39.47')).split('.'))
    A('s_mov_b32 s%d, 0x%x' % (sLo, rmask & 0xffffffff))
    A('s_mov_b32 s%d, 0x%x' % (sLo + 1, rmask >> 32))
    A('s_mov_b32 s%d, 0' % sFo)
    A('s_mov_b32 s%d, s%d' % (sSc2, sScale))
    A(ld_flags)
    paced(['v_min_u32 v%d, -2, v%d' % (vM + i, vM + i) for i in range(16)])
    A('s_mov_b32 s%d, 0' % sD)
    paced(zeros(vA, 24) + zeros(MM, 4) + (zeros(vQ, 4, '-1') + zeros(vQ + 8, 4, '-1') + zeros(vKm, 8, '-1') if opt.get('h2m') else []))
    w1_round(3, 4)
    assert opt.get('rt', 1)

    def first_kv():
        ld = lambda dst, so, off: 'buffer_load_dwordx4 %s, v%d, %s, s%d offen offset:%d sc1' % (v(dst, 4), vL16, S4(WS), so, off)
        A('s_sub_u32 s%d, s%d, 0x%x' % (sA, sPf, SEG))
        A('buffer_load_dword v252, v253, %s, s%d offen sc1' % (S4(WS), sA))
        for (b_, p_) in ((vVx, (sVx, sVx2)), (vKx, (sKx, sKx2))):
            for f in range(8):
                A(ld(b_ + 4 * f, p_[f >> 2], (f & 3) * 1024))
    A('s_waitcnt vmcnt(0)')
    kv_check('L_c_nokv', 1)
    first_kv()
    A('s_branch L_c_kvok')
    A.label('L_c_nokv')
    A('s_add_u32 s%d, s%d, 0x%x' % (sKx, sKx, OOB))
    A('s_add_u32 s%d, s%d, 0x%x' % (sKx2, sKx2, OOB))
    A('s_add_u32 s%d, s%d, 0x%x' % (sVx, sVx, OOB))
    A.label('L_c_kvok')
    tstamp(A, opt, 1, vT2, vT3, sA)
    tstamp(A, opt, 2, vT0, vT1, sA)
    if opt.get('diag') or opt.get('hold'):
        A('s_memrealtime s[96:97]')
        A('s_memtime s[98:99]')
        A('s_waitcnt lgkmcnt(0)')

    PT = 96
    stamps = []

    names = opt.get('marks', 'm0ok,st1end,qkvst,q0ok,Send,st2end,partst').split(',') + ['gath', 'gathok']
    assert len(names) == 9

    def stamp(nm):
        if prof and nm in names:
            i = names.index(nm)
            A('s_memtime s[%d:%d]' % (12 + 2 * i, 13 + 2 * i))

    if lite:
        vTr = V('trace')
        A('v_mov_b32 v%d, 0' % vTr)
        A('s_memtime s[28:29]')
        A('s_memtime s[96:97]')
        A('s_memrealtime s[98:99]')
        A('s_waitcnt lgkmcnt(0)')
        for n_ in (sN1, sN2, sN3):
            A('s_mov_b32 s%d, 0' % n_)

    if opt.get('xnobulk'):
        for n_ in (sKx, sKx2, sVx, sVx2)[:opt['xnobulk']]:
            A('s_mov_b32 s%d, 0x%x' % (n_, OOB))
    loc = '@LOC@'

    def ldx4(dst, so, off):
        mod = 'sc1'
        if so in (sKx, sKx2, sVx, sVx2):
            mod = ('sc1', '', 'nt', 'sc0 sc1')[opt.get('blm', 0)]
        elif so in (sMemR, sQkvR, sQkvR2):
            mod = ('sc1', 'sc0 sc1', 'nt')[opt.get('hlm', 0)]
        return 'buffer_load_dwordx4 %s, v%d, %s, s%d offen offset:%d %s' % (v(dst, 4), vL16, S4(WS), so, off, mod)

    def ld_mem(t):
        A(ldx4(vM + 4 * t, sMemR, t * 1024))

    def chk4(b, tmp):
        return ['v_max3_u32 v%d, v%d, v%d, v%d' % (tmp, b, b + 1, b + 2), 'v_max_u32 v%d, v%d, v%d' % (tmp, tmp, b + 3)]

    def chk4more(b, tmp):
        return ['v_max3_u32 v%d, v%d, v%d, v%d' % (tmp, tmp, b, b + 1), 'v_max3_u32 v%d, v%d, v%d, v%d' % (tmp, tmp, b + 2, b + 3)]

    def cmpv(tmp):
        return 'v_cmp_eq_u32 vcc, -1, v%d' % tmp

    rx = opt.get('rx', 1)

    def wchk(bases, tmp):
        if not rx:
            ops = chk4(bases[0], tmp)
            for b in bases[1:]:
                ops += chk4more(b, tmp)
            return ops, cmpv(tmp)
        if len(bases) == 1:
            return [], cmpv(bases[0] + 3)
        return ['v_max_u32 v%d, v%d, v%d' % (tmp, bases[0] + 3, bases[1] + 3)], cmpv(tmp)

    def guard(r_):
        if not opt.get('nomin', 1):
            A('v_min_u32 v%d, -2, v%d' % (r_, r_))

    def smf1(t, m, tt):
        A('v_smfmac_f32_16x16x64_bf16 %s, %s, %s, v%d' % (v(vA + 8 * m + 4 * tt, 4), v(vM + 4 * t, 4), a(W1(t, m, tt), 8), vIdx))

    def add2(d, x, y):
        if opt.get('pk', 1):
            A('v_pk_add_f32 %s, %s, %s' % (v(d, 2), v(x, 2), v(y, 2)))
        else:
            A('v_add_f32 v%d, v%d, v%d' % (d, x, y))
            A('v_add_f32 v%d, v%d, v%d' % (d + 1, x + 1, y + 1))

    def fold(m, vs=None, mid=3, part=3):
        b = vA + 8 * m
        f = vF + 4 * m
        n_ = 0
        for tt in range(2 if part & 1 else 0):
            for j in range(2):
                A('v_permlane32_swap_b32 v%d, v%d' % (b + 4 * tt + j, b + 4 * tt + j + 2))
                if vs and n_ < mid:
                    smf1(*vs.pop(0))
                n_ += 1
        for tt in range(2 if part & 1 else 0):
            add2(f + 2 * tt, b + 4 * tt, b + 4 * tt + 2)
        if vs:
            smf1(*vs.pop(0))
        if not part & 2:
            return
        A('ds_write2st64_b64 v%d, %s, %s offset0:%d offset1:%d' % (vW1q if m < 2 else vW1k, v(f, 2), v(f + 2, 2), 2 * m, 2 * m + 1))

    def rd1(ad, r_=None):
        r_ = vR if r_ is None else r_
        for w in range(4):
            A('ds_read2st64_b32 %s, v%d offset0:%d offset1:%d' % (v(r_ + 2 * w, 2), ad, 12 * w, 12 * w + 2))

    def red1(dst, extra='', r_=None, more=0):
        r_ = vR if r_ is None else r_
        A('s_waitcnt lgkmcnt(%d)' % (0 if prof else 2 + more))
        A(extra)
        add2(r_, r_, r_ + 2)
        A('s_waitcnt lgkmcnt(%d)' % (0 if prof else more))
        add2(r_ + 4, r_ + 4, r_ + 6)
        add2(r_, r_, r_ + 4)
        A('v_cvt_pk_bf16_f32 v%d, v%d, v%d' % (dst, r_, r_ + 1))
        guard(dst)

    def st4(src, ad, so, mod):
        return 'buffer_store_dword v%d, v%d, %s, s%d offen%s' % (src, ad, S4(WS), so, mod)

    ld_q = [ldx4(vQ, sQkvR, 0), ldx4(vQ + 8, sQkvR, 1024)]
    ld_k = [ldx4(vKm, sQkvR, 2048), ldx4(vKm + 4, sQkvR, 3072)]
    ld_v = [ldx4(vVm, sQkvR2, 0), ldx4(vVm + 4, sQkvR2, 1024)]
    st_v = st4(vVv, vVst, sQkvW, loc)
    ld_part = [ldx4(vPt, sPartR, 0), ldx4(vPt + 4, sPartR2, 0)]
    red3 = ['v_mfma_f32_16x16x32_bf16 %s, %s, %s, %s' % (v(vP, 4), v(vSel, 4), v(vPt + 4 * i, 4), v(vP, 4) if i else '0') for i in range(2)]
    vMa = vL4
    if shr_:
        ld_part = ['buffer_load_dwordx2 %s, v%d, %s, s%d offen sc1' % (v(vPt + 2 + 4 * i, 2), vG8, S4(WS), (sPartR, sPartR2)[i]) for i in range(2)]
        red3 = ['v_mfma_f32_16x16x16_bf16 %s, %s, %s, %s' % (v(vP, 4), v(vSel, 2), v(vPt + 2 + 4 * i, 2), v(vP, 4) if i else '0') for i in range(2)]
        vMa = vM4
        assert rx and opt.get('lim3', -1) < 0
    X0, X1 = vS, vS + 4
    cnt = lambda n_, k_=1: A('s_add_u32 s%d, s%d, %d' % (n_, n_, k_)) if lite else None

    hooks = []
    dry = []

    def hook(align=False):
        if not opt.get('iw', 1):
            return
        if align:
            A('.p2align 6')
        hooks.append(len(hooks))
        A.label('L_hk%d' % hooks[-1])
        A('s_branch @HK%d@' % hooks[-1])

    def nxt(Sm, t):
        for d in range(1, 5):
            if Sm >> ((t + d) & 3) & 1:
                return (t + d) & 3

    def block(Sm, t, wait=None):
        rest = Sm & ~(1 << t)
        n = nxt(rest, t) if rest else None
        if rest:
            ops, cm = wchk([vM + 4 * n], vT0) if wait is not None else (chk4(vM + 4 * n, vT0), cmpv(vT0))
        smf1(t, 0, 0)
        if rest and ops:
            if wait is not None:
                A('s_waitcnt vmcnt(%d)' % wait)
            for o in ops:
                A(o)
        smf1(t, 0, 1)
        if rest:
            if not ops:
                A('s_waitcnt vmcnt(%d)' % wait)
            A(cm)
        smf1(t, 1, 0)
        smf1(t, 1, 1)
        return rest, n

    fc = opt.get('fc', 5)

    def fast_chains():
        def flab(Sm, t, again=False):
            n_ = bin(Sm).count('1')
            if fc < 4 or n_ < 2 or (again and n_ < (3 if fc == 4 else 2 if fc == 5 else 4)):
                return 'L_F%d_%d' % (Sm, t)
            return 'L_G%d_%d' % (Sm, t)

        def chain_(lab, Sm, que, fail2):
            if opt.get('iw', 1) == 2:
                A('.p2align 6')
            else:
                hook(True)
            A.label(lab)
            if lab == 'L_G15_0' and opt.get('spec', 1):
                A.label('L_Z')
            ld_mem(que[-1])
            if lab == 'L_G15_0' and opt.get('spec', 1):
                for i in range(0, 8, 2):
                    A('v_mov_b64 %s, 0' % v(vA + i, 2))
            cnt(sN1)
            if fc >= 4 and que[-1] == max(que):
                A('s_sub_u32 s%d, s%d, 1' % (sTO, sTO))
                A('s_cbranch_scc1 L_end0')
            dry.append(len(dry))
            A.label('L_dr%d' % dry[-1])
            A('s_waitcnt vmcnt(%d)' % (len(que) - 1))
            ops, cm = wchk([vM + 4 * que[0]], vT0)
            for o in ops + [cm]:
                A(o)
            A('s_cbranch_vccnz %s' % (fail2 or 'L_F%d_%d' % (Sm, que[0])))
            if Sm == 15:
                stamp('m0ok')
            for i, t in enumerate(que):
                stamp('B%d' % (4 - len(que) + i))
                last = i + 2 == len(que)
                if last and len(que) < 4:
                    block(1 << t, t)
                    Sm &= ~(1 << t)
                    n = que[-1]
                    dp = opt.get('dp', 0) >= len(que)
                    if dp:
                        ld_mem(n)
                    A('s_waitcnt vmcnt(%d)' % dp)
                    ops, cm = wchk([vM + 4 * n], vT0) if not dp else (chk4(vM + 4 * n, vT0), cmpv(vT0))
                    for o in ops + [cm]:
                        A(o)
                else:
                    Sm, n = block(Sm, t, len(que) - 2 - i)
                if Sm:
                    assert n == que[i + 1]
                    A('s_cbranch_vccnz ' + flab(Sm, n))
            if opt.get('iw', 1) >= 2:
                A('s_cbranch_execnz L_T1')
                if opt.get('iw', 1) == 3:
                    A('s_call_b64 s[68:69], L_drp')
                A('s_branch @DR%d@' % dry[-1])
            else:
                A('s_branch L_T1')
                if opt.get('he', 0):
                    hook()
        if fc >= 4:
            for Sm in sorted(range(1, 16), key=lambda x: -bin(x).count('1')):
                ts = [t for t in range(4) if Sm >> t & 1]
                if len(ts) < 2:
                    continue
                for t in ts:
                    que = [u for u in ((t + d) & 3 for d in range(1, 5)) if Sm >> u & 1]
                    chain_('L_G%d_%d' % (Sm, t), Sm, que, flab(Sm, que[0], True))
            return
        chain_('L_G15_0', 15, [1, 2, 3, 0], 'L_G15_1' if fc > 1 else None)
        if fc > 1:
            chain_('L_G15_1', 15, [2, 3, 0, 1], 'L_G15_2' if fc > 2 else None)
        if fc > 2:
            chain_('L_G15_2', 15, [3, 0, 1, 2], None)
        chain_('L_G14_1', 14, [2, 3, 1], None)
        chain_('L_G12_2', 12, [3, 2], None)

    def first_pass():
        A('s_waitcnt vmcnt(3)')
        if opt.get('spec', 1):
            assert rx and fc
            A(cmpv(vM + 3))
            smf1(0, 0, 0); smf1(0, 0, 1)
            A('s_cbranch_vccnz L_Z')
            stamp('m0ok')
            A('s_waitcnt vmcnt(2)')
            A(cmpv(vM + 7))
            smf1(0, 1, 0); smf1(0, 1, 1)
            A('s_cbranch_vccnz L_G14_1')
            Sm = 14
            for t in range(1, 4):
                stamp('B%d' % t)
                Sm, n = block(Sm, t, 2 - t)
                if Sm:
                    A('s_cbranch_vccnz L_%s%d_%d' % ('G' if n < 3 else 'F', Sm, n))
            return
        ops, cm = wchk([vM], vT0)
        for o in ops:
            A(o)
        A(cm)
        A('s_cbranch_vccnz L_%s15_0' % ('G' if fc else 'F'))
        stamp('m0ok')
        Sm = 15
        for t in range(4):
            stamp('B%d' % t)
            Sm, n = block(Sm, t, 2 - t)
            if Sm:
                A('s_cbranch_vccnz L_%s%d_%d' % ('G' if fc and n < 3 else 'F', Sm, n))

    def poll_nodes_ooo():
        for Sm in sorted(range(1, 16), key=lambda x: -bin(x).count('1')):
            ts = [t for t in range(4) if Sm >> t & 1]
            if fc == 5 and len(ts) > 1:
                continue
            hook(True)
            for t in ts:
                A.label('L_P%d_%d' % (Sm, t))
                A('s_waitcnt vmcnt(3)')
                for o in chk4(vM + 4 * t, vT0):
                    A(o)
                A(cmpv(vT0))
                A('s_cbranch_vccz L_V%d_%d' % (Sm, t))
                A.label('L_F%d_%d' % (Sm, t))
                ld_mem(t)
                cnt(sN1)
            timeout_stub(A, 'L_P%d_%d' % (Sm, ts[0]))
            if len(ts) > 1:
                hook()
            for t in ts:
                hook(True)
                A.label('L_V%d_%d' % (Sm, t))
                if Sm == 15:
                    stamp('m0ok')
                stamp('B%d' % (4 - len(ts)))
                rest, n = block(Sm, t)
                if rest:
                    A('s_cbranch_vccz L_V%d_%d' % (rest, n))
                    A('s_branch L_F%d_%d' % (rest, n))
                else:
                    A('s_branch L_T1')

    def poll_nodes():
        if opt.get('ooo', 1):
            return poll_nodes_ooo()
        for k in range(4):
            full = 15 & ~((1 << k) - 1)
            for Sm in sorted(range(1, 16), key=lambda x: -bin(x).count('1')):
                if Sm & ~full:
                    continue
                ts = [t for t in range(4) if Sm >> t & 1]
                for t in ts:
                    rest = Sm & ~(1 << t)
                    A.label('L_P%d_%d_%d' % (k, Sm, t))
                    A('s_waitcnt vmcnt(%d)' % opt.get('lim', 3))
                    for o in chk4(vM + 4 * t, vT0):
                        A(o)
                    A(cmpv(vT0))
                    A('s_cbranch_vccz %s' % ('L_P%d_%d_%d' % (k, rest, nxt(rest, t)) if rest else 'L_G%d' % k))
                    if Sm == full and t == k:
                        A.label('L_F%d_%d' % (Sm, t))
                    ld_mem(t)
                    cnt(sN1)
                timeout_stub(A, 'L_P%d_%d_%d' % (k, Sm, ts[0]))
        for k in range(4):
            A.label('L_G%d' % k)
            if k == 0:
                stamp('m0ok')
            stamp('B%d' % k)
            block(1 << k, k)
        A('s_branch L_T1')

    A('s_cmp_lt_u32 s%d, %d' % (sPure, NPURE))
    for t in range(4):
        block(1 << t, t)
    A('s_cbranch_scc1 L_T1_i')
    A('s_branch L_T1')
    loop_start = len(A.lines)
    A('.p2align 6')
    for i in range(opt.get('al', 0)):
        A('s_nop 0')
    A.label('L_loop')
    first_pass()
    A.label('L_T1')
    stamp('T1')
    kxl = [ldx4(vKx + 4 * f, (sKx, sKx2)[f >> 2], (f & 3) * 1024) for f in range(8)]
    vxl = [ldx4(vVx + 4 * f, (sVx, sVx2)[f >> 2], (f & 3) * 1024) for f in range(8)]
    na, nc, nd, ne = opt.get('na', 3), opt.get('nc', 4), opt.get('nd', 1), opt.get('nq', 0)
    kb_ = max(8 - nc - nd - na, 0)
    ka = kxl[nc + nd + kb_:]
    nva = na - len(ka)
    ka = ka + vxl[:nva]
    ke = vxl[nva:nva + ne]
    bulk = vxl[nva + ne:] + kxl[nc + nd:nc + nd + kb_]
    nk = lambda: A(ka.pop(0)) if ka else None
    qk = ld_q + ld_k
    order = []
    zq = []
    if opt.get('split', 1):
        vf = str(opt.get('vf', '0')).zfill(4)
        vs = [(t, 2, tt) for t in range(4) for tt in range(2)]
        for i in range(opt.get('na0', 0)):
            nk()
        fold(0, vs if int(vf[0]) else None, int(vf[1]))
        stamp('f0')
        for i in range(opt.get('na1', 0)):
            nk()
        fold(1, vs if int(vf[0]) else None, int(vf[2]))
        stamp('f1')
        for i in range(int(vf[3]) if int(vf[0]) else 2 * opt.get('nv', 2)):
            smf1(*vs.pop(0))
            if i & 1 == 0:
                nk()
        A('s_waitcnt lgkmcnt(0)')
        stamp('st1end')
        A('s_barrier')
        stamp('bar1')
        rd1(vR1)
        i = 0
        while vs:
            smf1(*vs.pop(0))
            if i & 1 == 0:
                nk()
            i += 1
        while ka:
            nk()
        if int(vf[0]) == 2:
            fold(2, part=1)
        red1(vQK)
        A(st4(vQK, vQst, sQkvW, loc))
        stamp('qkvst')
        slots = [int(ch) for ch in str(opt.get('h2s', '2244')).zfill(4)]

        def slot(i):
            for n_, sl_ in enumerate(slots):
                if sl_ == i:
                    A(qk[n_]); order.append(qk[n_])
        for o in ke[:1]:
            A(o)
        fold(2, part=2 if int(vf[0]) == 2 else 3)
        for o in ke[1:]:
            A(o)
        slot(0)
        A('s_add_u32 s%d, s%d, 0x%x' % (sKx, sKx, SEG))
        A('s_add_u32 s%d, s%d, 0x%x' % (sKx2, sKx2, SEG))
        A('s_cmp_eq_u32 s%d, s%d' % (sStep, sD))
        A('s_cbranch_scc1 L_sp')
        A.label('L_spr')
        A('s_waitcnt lgkmcnt(0)')
        A('s_barrier')
        stamp('bar1b')
        slot(1)
        rd1(vR1v)
        for i in range(opt.get('h2x', 0)):
            A('s_nop 3')
        slot(2)
        if 3 in slots:
            A('s_waitcnt lgkmcnt(%d)' % (0 if prof else 3))
        slot(3)
        red1(vVv)
        A(st_v); order.append(st_v)
        stamp('vst')
        slot(4)
    else:
        vs = [(t, 2, tt) for t in range(4) for tt in range(2)]
        fold(0, vs)
        stamp('f0')
        fold(1, vs)
        stamp('f1')
        fold(2)
        while ka:
            nk()
        A('s_add_u32 s%d, s%d, 0x%x' % (sKx, sKx, SEG))
        A('s_add_u32 s%d, s%d, 0x%x' % (sKx2, sKx2, SEG))
        A('s_waitcnt lgkmcnt(0)')
        stamp('st1end')
        A('s_barrier')
        stamp('bar1')
        rd1(vR1)
        rd1(vR1v, vA)
        red1(vQK, '', vR, 4)
        A(st4(vQK, vQst, sQkvW, loc))
        stamp('qkvst')
        red1(vVv, '', vA)
        A(st_v)
        stamp('vst')
        A('s_cmp_eq_u32 s%d, s%d' % (sStep, sD))
        A('s_cbranch_scc1 L_sp')
        A.label('L_spr')
        zq = zeros(vT, 16) + zeros(MM, 4)
        fz = zq + ['s_nop 0'] * 60
        for i, n_ in enumerate([opt.get('h2d', 6)] + [opt.get('h2p', 10)] * 3):
            paced(fz[:n_]); fz = fz[n_:]
            A(qk[i]); order.append(qk[i])
        paced([o for o in fz if o.startswith('v_')])
    younger = lambda o: len(order) - 1 - order.index(o)
    A.label('L_h2')
    mx = lambda tt, j, first=False: A('v_mfma_f32_16x16x32_bf16 %s, %s, %s, %s' % (v(vS + 4 * tt, 4), v(vKx + (tt * 4 + j) * 4, 4), v(vQ + 4 * j, 4), '0' if first else v(vS + 4 * tt, 4)))
    ror = lambda r_: A('v_mov_b32_dpp v%d, v%d row_ror:8 row_mask:0xf bank_mask:0xf' % (r_ + 4, r_))
    smm = lambda u: A('v_smfmac_f32_16x16x64_bf16 %s, %s, %s, v%d' % (v(MM, 4), v(vKm + 4 * u, 4), v(vQ + 8 * u, 8), vIdx))
    qkr = [vQ, vQ + 8, vKm, vKm + 4]
    mxo = ['v_max3_f32 v%d, v%d, v%d, v%d' % (vT0, vBias, X0, X0 + 1), 'v_max3_f32 v%d, v%d, v%d, v%d' % (vT0, vT0, X0 + 2, X0 + 3),
           'v_max3_f32 v%d, v%d, v%d, v%d' % (vT0, vT0, X1, X1 + 1), 'v_max3_f32 v%d, v%d, v%d, v%d' % (vT0, vT0, X1 + 2, X1 + 3)]
    swm = ['v_permlane32_swap_b32 v%d, v%d' % (MM, MM + 2), 'v_permlane32_swap_b32 v%d, v%d' % (MM + 1, MM + 3)]

    def ck(i):
        for o in chk4(qkr[i], vT3):
            A(o)

    def s_end():
        add2(MM, MM, MM + 2)
        A('v_max3_f32 v%d, v%d, v%d, v%d' % (vT0, vT0, MM, MM + 1))
        A('v_mov_b32 v%d, v%d' % (vT1, vT0))
    h2m = opt.get('h2m', 0)
    if h2m == 2:
        stamp('q0w')
        A('s_waitcnt vmcnt(%d)' % younger(qk[0]))
        stamp('q0l')
        mx(0, 0, True); ck(0)
        mx(1, 0, True); A(cmpv(vT3)); ror(vQ); ror(vQ + 1); ror(vQ + 2); ror(vQ + 3)
        A('s_cbranch_vccnz L_FA15_0')
        mx(0, 1)
        A('s_waitcnt vmcnt(%d)' % younger(qk[1]))
        stamp('q1l')
        ck(1)
        mx(1, 1); A(cmpv(vT3)); ror(vQ + 8)
        mx(0, 2); ror(vQ + 9); ror(vQ + 10)
        mx(1, 2); ror(vQ + 11)
        A('s_cbranch_vccnz L_FA14_1')
        stamp('q0ok')
        mx(0, 3); A(ld_v[0])
        mx(1, 3); A(ld_v[1])
        order += ld_v
        stamp('k0w')
        A('s_waitcnt vmcnt(%d)' % younger(qk[2]))
        smm(0)
        if opt.get('k0c', 1):
            ck(2); A(cmpv(vT3)); A(mxo[0]); A(mxo[1]); A(mxo[2]); A(mxo[3])
            A('s_cbranch_vccnz L_FK12_2')
            stamp('k1w')
            A('s_waitcnt vmcnt(%d)' % younger(qk[3]))
            stamp('k1l')
            smm(1)
            ck(3); A(cmpv(vT3))
            A(swm[0]); A(swm[1])
            s_end()
            A('s_cbranch_vccnz L_FK8_3')
        else:
            stamp('k1w')
            A('s_waitcnt vmcnt(%d)' % younger(qk[3]))
            stamp('k1l')
            smm(1)
            for o in chk4(vKm, vT3) + chk4more(vKm + 4, vT3):
                A(o)
            A(cmpv(vT3))
            A(mxo[0]); A(swm[0]); A(swm[1]); A(mxo[1]); A(mxo[2]); A(mxo[3])
            s_end()
            A('s_cbranch_vccnz L_PK12_2')
    else:
        stamp('q0w')
        A('s_waitcnt vmcnt(%d)' % younger(qk[0]))
        stamp('q0l')
        mx(0, 0, True); ror(vQ); ror(vQ + 1)
        mx(1, 0, True); ror(vQ + 2); ror(vQ + 3)
        A('s_waitcnt vmcnt(%d)' % younger(qk[1]))
        stamp('q1l')
        ops, cm = wchk([vQ, vQ + 8], vT3)
        if rx:
            mx(0, 2); A(ops[0]); A(cm)
            mx(1, 2); ror(vQ + 8); ror(vQ + 9)
            mx(0, 1); ror(vQ + 10); ror(vQ + 11)
            mx(1, 1)
        else:
            mx(0, 2); A(ops[0]); A(ops[1])
            mx(1, 2); A(ops[2]); A(ops[3])
            mx(0, 1); A(cm); ror(vQ + 8); ror(vQ + 9)
            mx(1, 1); ror(vQ + 10); ror(vQ + 11)
        A('s_cbranch_vccnz %s' % ('L_r2' if h2m == 0 else 'L_PA15_0'))
        stamp('q0ok')
        order_q = list(order)
        vpos = opt.get('vpos', 1)
        mx(0, 3)
        if vpos == 0:
            A(ld_v[0])
        mx(1, 3)
        if vpos == 0:
            A(ld_v[1])
            order += ld_v
        A.label('L_h2k')
        stamp('k0w')
        A('s_waitcnt vmcnt(%d)' % younger(qk[2]))
        smm(0)
        stamp('k1w')
        A('s_waitcnt vmcnt(%d)' % younger(qk[3]))
        stamp('k1l')
        smm(1)
        if vpos == 1:
            A(ld_v[0]); A(ld_v[1])
        ops, cm = wchk([vKm, vKm + 4], vT3)
        for o in ops + [cm] + (mxo + swm if rx else [mxo[0]] + swm + mxo[1:]):
            A(o)
        order_k = order[order.index(qk[2]):]
        s_end()
        A('s_cbranch_vccnz %s' % ('L_r2k' if h2m == 0 else 'L_PK12_2'))
    A.label('L_sj')
    stamp('kok')
    if opt.get('xdrop'):
        bulk = bulk[:len(bulk) - opt['xdrop']]
    nbulk = len(bulk)
    nb = lambda: A(bulk.pop(0)) if bulk else None
    early = opt.get('be', 2)
    if vpos == 2:
        A(ld_v[0])
    for i in range(min(early, 1) if vpos < 2 else 0):
        nb()
    A('v_permlane32_swap_b32 v%d, v%d' % (vT0, vT1))
    A('v_max_f32 v%d, v%d, v%d' % (vT0, vT0, vT1))
    A('v_mov_b32 v%d, v%d' % (vT1, vT0))
    if vpos == 2:
        A(ld_v[1])
    for i in range(max(early - 1, 0)):
        nb()
    A('v_permlane16_swap_b32 v%d, v%d' % (vT0, vT1))
    A('v_max_f32 v%d, v%d, v%d' % (vT0, vT0, vT1))
    A('v_mul_f32 v%d, s%d, v%d' % (vT0, sScale, vT0))
    fma = lambda r_: A('v_fma_f32 v%d, v%d, s%d, -v%d' % (r_, r_, sScale, vT0))
    ex = lambda r_: A('v_exp_f32 v%d, v%d' % (r_, r_))
    cvt = lambda d, x: A('v_cvt_pk_bf16_f32 v%d, v%d, v%d' % (d, x, x + 1))
    shr = lambda d, x: A('v_mov_b32_dpp v%d, v%d row_shr:8 row_mask:0xf bank_mask:0xc' % (d, x))
    def fma2(r_):
        if opt.get('pkf', 0):
            A('v_pk_fma_f32 %s, %s, %s, %s op_sel_hi:[1,0,0] neg_lo:[0,0,1] neg_hi:[0,0,1]' % (v(r_, 2), v(r_, 2), s(sSc2, 2), v(vT0, 2)))
        else:
            fma(r_); fma(r_ + 1)
    vom = lambda u, n: A('v_smfmac_f32_16x16x64_bf16 %s, %s, %s, v%d' % (v(vT + 4 * n, 4), v(vVm + 4 * u, 4), a(WO(n, 2 * u), 8), vIdx))
    m32 = lambda d, x, p, c_: A('v_mfma_f32_16x16x32_bf16 %s, %s, %s, %s' % (v(d, 4), v(x, 4), v(p, 4), v(d, 4) if c_ else '0'))
    m16 = lambda d, x, p: A('v_mfma_f32_16x16x16_bf16 %s, %s, %s, %s' % (v(d, 4), v(x, 2), v(p, 2), v(d, 4)))
    cvm = lambda k: cvt(vVOm + k, vT + 2 * k)
    s2 = opt.get('s2', 2)
    if s2:
        assert vPms == vPm + 2 and vPm % 4 == 0
        er = [MM, MM + 1] + [vS + i for i in range(8)]
        fma2(MM)
        for i in range(4):
            fma2(vS + 2 * i)
        for r_ in er[:7]:
            ex(r_)

        def vcheck(between):
            stamp('vw')
            A('s_waitcnt vmcnt(%d)' % (nbulk - len(bulk)))
            stamp('vl')
            ops, cm = wchk([vVm, vVm + 4], vT3)
            for o in ops + [cm]:
                A(o)
            between()
            A('s_cbranch_vccnz L_r2v')
            A.label('L_h2v')
            stamp('Send')
        swp = lambda: A('v_permlane32_swap_b32 v%d, v%d' % (vPm, vPm + 1))
        if s2 == 1:
            vcheck(lambda: [ex(r_) for r_ in er[7:]])
            gaps = [lambda: cvt(vPm, MM), lambda: cvt(vPm + 1, MM), lambda: cvt(vP, vS), lambda: cvt(vP + 1, vS + 2),
                    lambda: cvt(vP + 2, vS + 4), lambda: cvt(vP + 3, vS + 6), swp, lambda: shr(vPs, vP)]
            for i in range(8):
                vom(i & 1, i >> 1)
                if i & 1:
                    nb()
                gaps[i]()
            stamp('vomend')
            m32(vLs, vOne, vP, 0); nb(); shr(vPs + 1, vP + 1); shr(vPs + 2, vP + 2)
            m16(vLs, vHalf, vPm); shr(vPs + 3, vP + 3); shr(vPms, vPm)
            m32(vO, vVOx, vP, 0); nb(); shr(vPms + 1, vPm + 1); cvm(0)
            m32(vO, vVOx + 4, vPs, 1); cvm(1); cvm(2); cvm(3)
            m32(vO + 4, vVOx + 8, vP, 0); nb(); cvm(4); cvm(5)
            stamp('m16')
            m32(vO, vVOm, vPm, 1); nb(); cvm(6); cvm(7)
            m32(vO + 4, vVOx + 12, vPs, 1); nb()
            A('v_rcp_f32 v%d, v%d' % (vT1, vLs))
            m32(vO + 4, vVOm + 4, vPm, 1)
        else:
            bs = str(opt.get('bs', '0101001')).zfill(7)
            for r_ in er[7:]:
                ex(r_)
            for i in range(int(bs[0])):
                nb()
            for i in range(4):
                cvt(vP + i, vS + 2 * i)
            cvt(vPm, MM); cvt(vPm + 1, MM)
            nbi = lambda i: nb() if int(bs[i]) else None
            m32(vLs, vOne, vP, 0); nbi(1); shr(vPs, vP); shr(vPs + 1, vP + 1)
            m32(vO, vVOx, vP, 0); nbi(2); shr(vPs + 2, vP + 2); shr(vPs + 3, vP + 3)
            m32(vO + 4, vVOx + 8, vP, 0); nbi(3); swp()
            m32(vO, vVOx + 4, vPs, 1)
            vcheck(lambda: [m32(vO + 4, vVOx + 12, vPs, 1), nbi(4), shr(vPms, vPm), shr(vPms + 1, vPm + 1), m16(vLs, vHalf, vPm)])
            gaps = {3: [0], 4: [1], 5: [2], 6: [3], 7: [4]}
            for i in range(8):
                vom(i & 1, i >> 1)
                if i % int(bs[6]) == 0:
                    nb()
                if i == 2:
                    A('v_rcp_f32 v%d, v%d' % (vT1, vLs))
                if i == 6 and opt.get('le', 1):
                    A('ds_write_b32 v%d, v%d' % (vW2l, vT1))
                for k in gaps.get(i, []):
                    cvm(k)
            stamp('vomend')
            m32(vO, vVOm, vPm, 1); cvm(5)
            stamp('m16')
            cvm(6); cvm(7)
            m32(vO + 4, vVOm + 4, vPm, 1)
    else:
        for i in range(4):
            fma2(vS + 2 * i)
        stamp('vw')
        A('s_waitcnt vmcnt(%d)' % early)
        stamp('vl')
        ops, cm = wchk([vVm, vVm + 4], vT3)
        for o in ops + [cm]:
            A(o)
        for i in range(3):
            ex(vS + i)
        A('s_cbranch_vccnz L_r2v')
        A.label('L_h2v')
        stamp('Send')
        vom = lambda u, n: A('v_smfmac_f32_16x16x64_bf16 %s, %s, %s, v%d' % (v(vT + 4 * n, 4), v(vVm + 4 * u, 4), a(WO(n, 2 * u), 8), vIdx))
        for i in range(8):
            vom(i & 1, i >> 1)
            if i & 1:
                nb()
            if i < 5:
                ex(vS + 3 + i)
            else:
                cvt(vP + i - 5, vS + 2 * (i - 5))
        stamp('vomend')
        cvt(vP + 3, vS + 6)
        fma2(MM)
        m32 = lambda d, x, p, c_: A('v_mfma_f32_16x16x32_bf16 %s, %s, %s, %s' % (v(d, 4), v(x, 4), v(p, 4), v(d, 4) if c_ else '0'))
        m16 = lambda d, x, p: A('v_mfma_f32_16x16x16_bf16 %s, %s, %s, %s' % (v(d, 4), v(x, 2), v(p, 2), v(d, 4)))
        cvm = lambda k: cvt(vVOm + k, vT + 2 * k)
        m32(vO, vVOx, vP, 0)
        nb()
        ex(MM)
        m32(vO + 4, vVOx + 8, vP, 0)
        ex(MM + 1)
        m32(vLs, vOne, vP, 0)
        nb()
        shr(vPs, vP); shr(vPs + 1, vP + 1); shr(vPs + 2, vP + 2); shr(vPs + 3, vP + 3)
        cvt(vPm, MM)
        cvt(vPm + 1, MM)
        if opt.get('mm', 1):
            assert vPms == vPm + 2 and vPm % 4 == 0
            m32(vO, vVOx + 4, vPs, 1)
            cvm(0)
            A('v_permlane32_swap_b32 v%d, v%d' % (vPm, vPm + 1))
            m32(vO + 4, vVOx + 12, vPs, 1)
            nb()
            cvm(1); cvm(2)
            stamp('m16')
            m16(vLs, vHalf, vPm)
            nb()
            shr(vPms, vPm); shr(vPms + 1, vPm + 1); cvm(3); cvm(4); cvm(5)
            m32(vO, vVOm, vPm, 1)
            nb()
            cvm(6); cvm(7)
            A('v_rcp_f32 v%d, v%d' % (vT1, vLs))
            m32(vO + 4, vVOm + 4, vPm, 1)
        else:
            m32(vO, vVOx + 4, vPs, 1)
            cvm(0)
            A('v_permlane32_swap_b32 v%d, v%d' % (vPm, vPm + 1))
            m32(vO + 4, vVOx + 12, vPs, 1)
            nb()
            cvm(1); cvm(2)
            stamp('m16')
            m16(vLs, vHalf, vPm)
            shr(vPms, vPm); shr(vPms + 1, vPm + 1)
            m16(vO, vVOm, vPm)
            nb()
            cvm(3); cvm(4); cvm(5)
            m16(vO, vVOm + 2, vPms)
            cvm(6); cvm(7)
            m16(vO + 4, vVOm + 4, vPm)
            nb()
            A('v_rcp_f32 v%d, v%d' % (vT1, vLs))
            m16(vO + 4, vVOm + 6, vPms)
    stamp('mend')
    if not opt.get('le', 1):
        A('ds_write_b32 v%d, v%d' % (vW2l, vT1))
    A('ds_write_b128 v%d, %s' % (vW2, v(vO, 4)))
    while bulk:
        nb()
    A('ds_write_b128 v%d, %s offset:1024' % (vW2, v(vO + 4, 4)))
    A('s_add_u32 s%d, s%d, 0x%x' % (sPf, sPf, SEG))
    side = []
    if not opt.get('nokvm'):
        side += [st4(vQK, vKst, sKvm, ' sc1'), st4(vVv, vVst, sKvm, ' sc1')]
    if opt.get('pf', 1):
        side += ['buffer_load_dword v252, v253, %s, s%d offen sc1' % (S4(WS), sPf)]
    side += ['buffer_load_dword v%d, v%d, %s, s%d offen sc1' % (vFv, vFa, S4(WS), sFo)]
    side = [side[int(ch)] for ch in str(opt.get('so', '0123')).zfill(4)]
    nse = opt.get('nse', 3)
    nsb = opt.get('nsb', 2)
    for o in side[:nsb]:
        A(o)
    A('s_waitcnt lgkmcnt(0)')
    stamp('st2end')
    A('s_barrier')
    stamp('bar2')
    A('ds_read_b128 %s, v%d' % (v(vR2d + 8, 4), vR2l))
    for w in range(4):
        A('ds_read_b64 %s, v%d offset:%d' % (v(vR2d + 2 * w, 2), vR2, w * 2048))
    for o in side[nsb:nse]:
        A(o)
    for w in range(4):
        A('s_waitcnt lgkmcnt(%d)' % (0 if prof else 3 - w))
        sel = 'op_sel:[0,%d%s] op_sel_hi:[1,%d%s]' % (w & 1, ',0' if w else '', w & 1, ',1' if w else '')
        if w == 0:
            A('v_pk_mul_f32 %s, %s, %s %s' % (v(vR2d, 2), v(vR2d, 2), v(vR2d + 8, 2), sel))
        else:
            A('v_pk_fma_f32 %s, %s, %s, %s %s' % (v(vR2d, 2), v(vR2d + 2 * w, 2), v(vR2d + 8 + (w & 2), 2), v(vR2d, 2), sel))
    cvt(vT0, vR2d)
    guard(vT0)
    A(st4(vT0, vL4, sPartA, (' sc1', ' sc0 sc1')[opt.get('psm', 0)]))
    stamp('partst')
    A('s_waitcnt vmcnt(%d)' % (1 + kb_ + len(side[:nse])))
    stamp('vxok')
    if shr_:
        mem_ = ['s_bitcmp1_b32 s%d, 14' % sMemW, 's_cselect_b32 s%d, 3, 1' % sA, 's_lshl_b32 s%d, s%d, 14' % (sA, sA),
                's_xor_b32 s%d, s%d, s%d' % (sMemW, sMemW, sA), 's_xor_b32 s%d, s%d, s%d' % (sMemR, sMemR, sA),
                's_xor_b32 s%d, s%d, 0x8000' % (sA, sMemW), st4(vSent, vMa, sA, loc)]
    else:
        mem_ = [st4(vSent, vL4, sMemW, loc), 's_xor_b32 s%d, s%d, 0x4000' % (sMemW, sMemW), 's_xor_b32 s%d, s%d, 0x4000' % (sMemR, sMemR)]
    pre = mem_ + [
           's_xor_b32 s%d, s%d, 0x8000' % (sQkvW, sQkvW),
           st4(vSent, vQst, sQkvW, loc), st4(vSent, vVst, sQkvW, loc)]
    po = opt.get('po', 1)
    arm = [o for o in pre if o.startswith('buffer_')]
    if po == 0:
        pre = kxl[:nc] + side[nse:] + pre
    elif po == 1:
        pre = side[nse:] + kxl[:nc] + pre
    elif po == 2:
        pre = side[nse:] + pre + kxl[:nc]
    elif po == 3:
        p2_, pre_ = side[nse:] + pre, []
        for o in kxl[:nc]:
            pre_ += [o] + p2_[:3]
            p2_ = p2_[3:]
        pre = pre_ + p2_
    pre += ['s_xor_b32 s%d, s%d, 0x8000' % (sQkvR, sQkvR), 's_xor_b32 s%d, s%d, 0x8000' % (sQkvR2, sQkvR2),
            's_add_u32 s%d, s%d, 0x%x' % (sKvm, sKvm, SEG), 's_add_u32 s%d, s%d, 0x%x' % (sPartA, sPartA, SEG),
            's_add_u32 s%d, s%d, 0x%x' % (sVx, sVx, SEG), 's_add_u32 s%d, s%d, 0x%x' % (sVx2, sVx2, SEG)]
    gpos = opt.get('gpos', 24)
    fill = {}
    for i, o in enumerate(pre):
        fill.setdefault(i, []).append(o)
    sl = ['s_memtime s[26:27]'] if prof else []
    if opt.get('dyn'):
        for p_ in range(17, 32, 2):
            fill.setdefault(p_ - 1, []).append('s_cmp_eq_u32 s%d, %d' % (sGp, p_))
            fill.setdefault(p_, []).extend(['s_cbranch_scc0 L_gp%d' % p_] + ld_part + ['L_gp%d:' % p_])
    else:
        fill.setdefault(gpos - opt.get('gd', 0), []).append(ld_part[0])
        fill.setdefault(gpos, []).extend(sl + ld_part[1:])
    vox(fill)
    zz = [o for o in zeros(vA, 24) + zeros(vT, 16) + zeros(MM, 4) if o not in zq]
    zz += ['s_nop 0'] * len(zq)
    zw = opt.get('zw', 0)
    kd = kxl[nc:nc + nd]
    for i in range(4):
        for o in (zeros(vM + 4 * i, 4, '-1') if fc != 5 else ['s_nop 3'] if i <= opt.get('d0', 1) else []):
            A(o)
        A(kd.pop(0) if kd and i >= opt.get('d0', 1) else 's_nop 0')
    for o in kd:
        A(o)
    paced(vox_tail() + (zeros(vQ, 4, '-1') + zeros(vQ + 8, 4, '-1') + zeros(vKm, 8, '-1') if h2m else []) + zz[:zw])
    zz = zz[zw:]
    if lite and not prof:
        A('s_and_b32 s%d, s%d, %d' % (sA, sStep, 48 if opt.get('trs') else 3))
        A('s_cbranch_scc1 L_notr')
        A('s_memtime s[12:13]')
        A('s_memrealtime s[14:15]')
        A('s_%s_b32 s%d, s%d, 1' % ('lshl' if opt.get('trs') else 'lshr', sA, sStep))
        A('s_mov_b32 m0, s%d' % sA)
        A('s_waitcnt lgkmcnt(0)')
        A('v_writelane_b32 v%d, s%d, m0' % (vTr, sKn if opt.get('trs') else 12))
        A('s_add_u32 m0, s%d, 1' % sA)
        A('v_writelane_b32 v%d, s14, m0' % vTr)
        A.label('L_notr')
    if prof:
        A('s_waitcnt lgkmcnt(0)')
        A('s_sub_u32 s%d, s%d, %d' % (sA, sStep, opt.get('ts', 33)))
        A('s_cmp_lt_u32 s%d, 6' % sA)
        A('s_cbranch_scc0 L_notr')
        A('s_mul_i32 s%d, s%d, 9' % (sA, sA))
        A('s_add_u32 s%d, s%d, 8' % (sA, sA))
        for i in [8] + list(range(8)):
            A('s_mov_b32 m0, s%d' % sA)
            A('v_writelane_b32 v%d, s%d, m0' % (vTr, 12 + 2 * i))
            A('s_add_u32 s%d, s%d, 1' % (sA, sA))
        A.label('L_notr')
    A.label('L_h3')
    lo = vP
    A('s_waitcnt vmcnt(%d)' % (1 + nd))
    A(red3[0])
    ops, cm = wchk([vPt, vPt + 4], vT0)
    for o in ([] if rx else ops[:2]):
        A(o)
    A('s_waitcnt vmcnt(%d)' % nd)
    A(red3[1])
    for o in (ops if rx else ops[2:]):
        A(o)
    A(cm)
    A('s_cbranch_vccnz L_r3')
    A.label('L_h3ok')
    stamp('gathok')
    cvt(vT0, lo)
    guard(vT0)
    A(st4(vT0, vMa, sMemW, loc))
    stamp('memst')
    A('s_add_u32 s%d, s%d, 1' % (sStep, sStep))
    A('s_bitcmp1_b64 %s, s%d' % (s(sLo, 2), sStep))
    A('s_cselect_b32 s%d, 0, 0x%x' % (sFo, OOB))
    A('s_add_u32 s%d, s%d, 0x%x' % (sPartR, sPartR, SEG))
    A('s_add_u32 s%d, s%d, 0x%x' % (sPartR2, sPartR2, SEG))
    z0 = opt.get('h1d', 16)
    zs = opt.get('h1s', 12)
    paced(zz[:z0]); zz = zz[z0:]
    for t in range(4):
        ld_mem(t)
        stamp('mi%d' % t)
        if t == 2:
            paced(zz); zz = []
            kvo = kv_ops('L_kvw')
            for o in kvo[:-1]:
                A(o)
        paced(zz[:zs]); zz = zz[zs:]
    A('s_cbranch_scc0 L_loop')
    A('s_branch L_kvw')
    if fc:
        fast_chains()
    poll_nodes()
    A.label('L_sp')
    A('s_cmp_eq_u32 s%d, 63' % sStep)
    A('s_cbranch_scc1 L_c_tail')
    A('s_mov_b32 s%d, 63' % sD)
    mark(A, opt, 0)
    A('s_cmp_ge_i32 s%d, 1' % sKn)
    A('s_cbranch_scc1 L_sp3')
    if opt.get('iw', 1) >= 2:
        if opt.get('iw', 1) == 3:
            A(ld_flags)
            A('s_call_b64 s[68:69], L_drp')
        A('s_mov_b64 exec, 0')
        for w in range(3):
            A('s_cmp_eq_u32 s%d, %d' % (sW, w))
            A('s_cbranch_scc1 L_dr%d' % w)
        A('s_branch L_dr3')
        A.label('L_drret')
        A('s_mov_b64 exec, -1')
    A.label('L_sp1')
    A(ld_flags)
    A('s_waitcnt vmcnt(0)')
    kv_check('L_sp2', 1)
    A.label('L_sp7')
    mark(A, opt, 0)
    for n_ in (sKx, sKx2):
        A('s_sub_u32 s%d, s%d, 0x%x' % (n_, n_, OOB + SEG))
    A('s_sub_u32 s%d, s%d, 0x%x' % (sVx, sVx, OOB))
    assert nva + ne <= 4
    first_kv()
    for n_ in (sKx, sKx2):
        A('s_add_u32 s%d, s%d, 0x%x' % (n_, n_, SEG))
    A.label('L_sp3')
    mark(A, opt, 1)
    for n_ in (sVx, sVx2):
        A('s_add_u32 s%d, s%d, 0x%x' % (n_, n_, SEG))
    A('s_waitcnt vmcnt(%d) lgkmcnt(0)' % (8 if nva + ne == 0 else 0))
    mark(A, opt, 2)
    vox({16: [ld_flags]})
    paced(zeros(vT, 16) + vox_tail())
    A('s_branch L_sp5')
    A.label('L_sp4')
    timeout_stub(A, 'L_sp6')
    A.label('L_sp6')
    A(ld_flags)
    A.label('L_sp5')
    A('s_waitcnt vmcnt(0)')
    kv_check('L_sp4')
    for o in vxl[:nva + ne]:
        A(o)
    A('buffer_load_dword v252, v253, %s, s%d offen sc1' % (S4(WS), sPf))
    tstamp(A, opt, 4, vT0, vT1, sA)
    A('s_branch L_spr')
    if opt.get('iw', 1) == 3:
        A.label('L_drp')
        A('s_mov_b64 exec, -1')
        A('s_waitcnt vmcnt(0)')
        kv_check('L_drq', 1)
        A('s_branch L_sp7')
        A.label('L_drq')
        A(ld_flags)
        A('s_mov_b64 exec, 0')
        A('s_setpc_b64 s[68:69]')
    A.label('L_sp2')
    A('s_sleep 1')
    timeout_stub(A, 'L_sp1')
    hook(True)
    A.label('L_kvw')
    A(ld_flags)
    A('s_waitcnt vmcnt(0)')
    kv_check('L_kvw2')
    A('s_branch L_loop')
    A.label('L_kvw2')
    timeout_stub(A, 'L_kvw')
    if h2m:
        for fam, full, cont in (('A', 15, 'L_SA'), ('K', 12, 'L_SK')):
            for Sm in sorted(range(1, 16), key=lambda x: -bin(x).count('1')):
                if Sm & ~full:
                    continue
                ts = [t for t in range(4) if Sm >> t & 1]
                hook(True)
                for t in ts:
                    rest = Sm & ~(1 << t)
                    A.label('L_P%s%d_%d' % (fam, Sm, t))
                    A('s_waitcnt vmcnt(%d)' % opt.get('lim2', 4 if opt.get('split', 1) else 3))
                    ck(t)
                    A(cmpv(vT3))
                    A('s_cbranch_vccz %s' % ('L_P%s%d_%d' % (fam, rest, nxt(rest, t)) if rest else cont))
                    A.label('L_F%s%d_%d' % (fam, Sm, t))
                    A(qk[t])
                    cnt(sN2)
                timeout_stub(A, 'L_P%s%d_%d' % (fam, Sm, ts[0]))
                if len(ts) > 1:
                    hook()
        hook(True)
        A.label('L_SA')
        stamp('q1l'); stamp('q0ok'); stamp('k0w'); stamp('k1w'); stamp('k1l')
        mx(0, 0, True); ror(vQ); ror(vQ + 1)
        mx(1, 0, True); ror(vQ + 2); ror(vQ + 3)
        mx(0, 2); A(ld_v[0]); ror(vQ + 8); ror(vQ + 9)
        mx(1, 2); A(ld_v[1]); ror(vQ + 10); ror(vQ + 11)
        smm(0); smm(1)
        mx(0, 1); mx(0, 3); mx(1, 1); A(swm[0]); mx(1, 3); A(swm[1])
        for o in mxo:
            A(o)
        s_end()
        A('s_branch L_sj')
        hook()
        hook(True)
        A.label('L_SK')
        stamp('k1w'); stamp('k1l')
        for o in zeros(MM, 4):
            A(o)
        smm(0); smm(1)
        for o in mxo + swm:
            A(o)
        s_end()
        A('s_branch L_sj')
        hook()
    else:
        hook(True)
        A.label('L_r2')
        for o in (order_q if not opt.get('r2q', 0) else ld_q + ['s_waitcnt vmcnt(0)']):
            A(o)
        cnt(sN2)
        timeout_stub(A, 'L_h2')
        hook(True)
        A.label('L_r2k')
        for o in (order_k + zeros(MM, 4) if not opt.get('r2q', 0) else ld_k + zeros(MM, 4) + ['s_waitcnt vmcnt(0)']):
            A(o)
        cnt(sN2, 1024)
        timeout_stub(A, 'L_h2k')
        hook()
    hook(True)
    A.label('L_r2v')
    for o in ld_v:
        A(o)
    cnt(sN2, 1 << 20)
    A('s_waitcnt vmcnt(0)')
    for o in chk4(vVm, vT3) + chk4more(vVm + 4, vT3):
        A(o)
    A(cmpv(vT3))
    A('s_cbranch_vccz L_h2v')
    timeout_stub(A, 'L_r2v')
    hook()
    hook(True)
    A.label('L_r3')
    for o in ld_part:
        A(o)
    cnt(sN3)
    if opt.get('lim3', -1) < 0:
        if nd:
            A('s_waitcnt vmcnt(0)')
        timeout_stub(A, 'L_h3')
    A('s_waitcnt vmcnt(%d)' % max(opt.get('lim3', -1), 0))
    for o in chk4(vPt, vT0) + chk4more(vPt + 4, vT0):
        A(o)
    A(cmpv(vT0))
    A(red3[0])
    A(red3[1])
    A('s_nop 6')
    A('s_cbranch_vccz L_h3ok')
    timeout_stub(A, 'L_r3')
    hook()
    A.label('L_loop_end')
    body = [re.sub(r'@HK(\d+)@', lambda m: 'L_hk%d' % (int(m.group(1)) + 4) if int(m.group(1)) + 4 < len(hooks) else 'L_hkret', l) for l in A.lines[loop_start:]]
    body = [re.sub(r'@DR(\d+)@', lambda m: 'L_dr%d' % (int(m.group(1)) + 4) if int(m.group(1)) + 4 < len(dry) else 'L_drret', l) for l in body]
    labs = [l[:-1] for l in body if l.endswith(':')]
    pat = re.compile(r'\b(' + '|'.join(labs) + r')\b')
    A.lines[loop_start:] = [l.replace('@LOC@', ('', ' sc0', ' nt', ' sc0 nt')[opt.get('locm', 0)]) for l in body] + [pat.sub(r'\1_i', l).replace('@LOC@', ' sc1') for l in body]
    A.label('L_c_tail')
    A('s_add_u32 s%d, s%d, 2048' % (sKvm, sKvm))
    A('s_xor_b32 s%d, s%d, 0x2000' % (sKvm, sKvm))
    A('s_sub_u32 s%d, s%d, 2048' % (sKvm, sKvm))
    A(st4(vQK, vKst, sKvm, ' sc1'))
    if opt.get('split', 1):
        A('s_waitcnt lgkmcnt(0)')
        A('s_barrier')
        rd1(vR1v)
        red1(vVv)
    A(st4(vVv, vVst, sKvm, ' sc1'))
    if opt.get('diag'):
        A('s_cmp_lg_u32 s%d, 0' % sC)
        A('s_cbranch_scc1 L_dg')
        A('s_cmp_lg_u32 s%d, 0' % sW)
        A('s_cbranch_scc1 L_dg')
        dbg_mark(A, opt, 4, vT2, vT3)
        A('s_memtime s[78:79]')
        A('s_waitcnt lgkmcnt(0)')
        A('s_sub_u32 s78, s78, s98')
        A('s_sub_u32 s79, s96, s76')
        A('v_mov_b32 v%d, s78' % vT2)
        A('v_mov_b32 v%d, s79' % vT1)
        A('v_mov_b32 v%d, 0' % vT3)
        A('s_mov_b64 exec, 1')
        A('buffer_atomic_umax v%d, v%d, %s, 0 offen offset:36 sc1' % (vT2, vT3, S4(DBG)))
        A('buffer_atomic_umax v%d, v%d, %s, 0 offen offset:12 sc1' % (vT1, vT3, S4(DBG)))
        A('v_not_b32 v%d, v%d' % (vT2, vT2))
        A('buffer_atomic_umax v%d, v%d, %s, 0 offen offset:40 sc1' % (vT2, vT3, S4(DBG)))
        A('s_mov_b64 exec, -1')
        A.label('L_dg')
    if opt.get('hold') == 1:
        hold_after(A, 40)
    if opt.get('hold') == 2:
        hold_after(A, 170, 96)
    tstamp(A, opt, 7, vT2, vT3, sA)
    mark_dump(A, opt, 3, 11, vT2, vT3, sA)
    if lite:
        A('s_memtime s[12:13]')
        A('s_memrealtime s[14:15]')
        A('s_waitcnt lgkmcnt(0)')
        A('s_sub_u32 s12, s12, s96')
        A('s_sub_u32 s14, s14, s98')
        A('v_mov_b32 v%d, s12' % (vM + 3))
        A('v_mov_b32 v%d, s14' % (vM + 4))
        A('s_lshl_b32 s%d, s%d, 4' % (sA, sG))
        A('s_add_u32 s%d, s%d, s%d' % (sA, sA, sC))
        A('s_lshl_b32 s%d, s%d, 2' % (sA, sA))
        A('s_add_u32 s%d, s%d, s%d' % (sA, sA, sW))
        A('s_lshl_b32 s%d, s%d, 6' % (sA, sA))
        A('s_add_u32 s%d, s%d, 0x%x' % (sA, sA, PROF))
        A('v_mov_b32 v%d, s%d' % (vM, sN1))
        A('v_mov_b32 v%d, s%d' % (vM + 1, sN2))
        A('v_mov_b32 v%d, s%d' % (vM + 2, sN3))
        A('v_mov_b32 v%d, 0' % vT0)
        for i in range(9, 14):
            A('buffer_store_dword v%d, v%d, %s, s%d offen offset:%d' % (vM + i - 9, vT0, S4(WS), sA, 4 * i))
    if lite:
        A('v_mov_b32 v%d, s96' % vT1)
        A('buffer_store_dword v%d, v%d, %s, s%d offen offset:56' % (vT1, vT0, S4(WS), sA))
        A('v_mov_b32 v%d, s98' % vT2)
        A('buffer_store_dword v%d, v%d, %s, s%d offen offset:60' % (vT2, vT0, S4(WS), sA))
        A('s_sub_u32 s%d, s%d, 0x%x' % (sA, sA, PROF))
        A('s_lshl_b32 s%d, s%d, 2' % (sA, sA))
        A('s_add_u32 s%d, s%d, 0x%x' % (sA, sA, PROF + MB))
        A('buffer_store_dword v%d, v%d, %s, s%d offen' % (vTr, vL4, S4(WS), sA))
    A('s_waitcnt vmcnt(0)')
    A('s_endpgm')


def build(opt):
    A = Asm()
    prologue(A, opt)
    chain(A, opt)
    for kind in 'kvq':
        proj(A, opt, kind)
    orole(A, opt)
    A.label('L_code1')
    A('s_endpgm')
    body, nn = fix_hazards(A.lines, verbose=True)
    hdr = open('cdna_kernels/%s.s.ref' % NAME).read().split('\n')
    hdr = [l for l in hdr if l.startswith(';') and '@launch' not in l]
    hdr.append('; opts ' + ' '.join('%s=%s' % kv for kv in opt.items()))
    if opt.get('prof'):
        hdr.append('; marks=' + opt.get('marks', 'm0ok,st1end,qkvst,q0ok,Send,st2end,partst') + ',gath,gathok')
    out = hdr + ['; @launch grid=(256,1,1) block=(256,1,1) lds=%d' % opt.get('lds', 163840),
                 '.amdgcn_target "amdgcn-amd-amdhsa--gfx950"', '.text', '.globl %s_kernel' % NAME, '.p2align 8',
                 '.type %s_kernel,@function' % NAME, '%s_kernel:' % NAME]
    out += body
    out += ['.section .rodata,"a"', '.p2align 6', '.amdhsa_kernel %s_kernel' % NAME,
            '  .amdhsa_next_free_vgpr 512', '  .amdhsa_next_free_sgpr 102', '  .amdhsa_accum_offset 256',
            '  .amdhsa_group_segment_fixed_size 0', '  .amdhsa_kernarg_size 128', '  .amdhsa_user_sgpr_count 2',
            '  .amdhsa_user_sgpr_kernarg_segment_ptr 1', '  .amdhsa_system_sgpr_workgroup_id_x 1',
            '  .amdhsa_float_denorm_mode_32 3', '.end_amdhsa_kernel', '']
    return '\n'.join(out), nn


if __name__ == '__main__':
    opt = {}
    outp = sys.argv[1]
    for a_ in sys.argv[2:]:
        k, val = a_.split('=')
        opt[k] = int(val) if val.lstrip('-').isdigit() else val
    txt, nn = build(opt)
    open(outp, 'w').write(txt)
    print('wrote', outp, 'nops inserted:', nn)
```

```python
import struct, math
from asmlib import *
from layout import *

NAME = 'gated_mix__memory_aug_recurrent_mem_tr__moe_arch_mod__prompt'


def f32(x):
    return '0x%08x' % struct.unpack('<I', struct.pack('<f', x))[0]


P_X, P_MEM0, P_WQ, P_WK, P_WV, P_WO = 64, 66, 68, 70, 72, 74
P_WR, P_WG, P_WU, P_WD, P_GW, P_OUT, P_DBG, P_WS = 80, 82, 84, 86, 88, 90, 92, 94
WS, DBG = 4, 8
SRD_A, SRD_B, SRD_C, SRD_D, SRD_E = 12, 16, 20, 24, 28
sW, sG, sC, sTO = 32, 33, 34, 35
sX = 100
sPure = 101
NPURE = 32
sP = 62
VOTE = 0xe4
NVOTE = 16
LTOP = 163832
sR = 63
sT0 = 76
TIMEOUT = 1 << 20
LOG2E = math.log2(math.e)


def srd(A, d, p, nbytes):
    A('s_mov_b32 s%d, s%d' % (d, p))
    A('s_and_b32 s%d, s%d, 0xffff' % (d + 1, p + 1))
    A('s_mov_b32 s%d, 0x%x' % (d + 2, nbytes))
    A('s_mov_b32 s%d, 0x20000' % (d + 3))


def S4(d):
    return s(d, 4)


def timeout_stub(A, back):
    A('s_sub_u32 s%d, s%d, 1' % (sTO, sTO))
    A('s_cbranch_scc0 %s' % back)
    A('s_endpgm')


def sum8(A, vx, sa, sb):
    A('v_readlane_b32 s%d, v%d, 0' % (sa, vx))
    for i in range(1, 8):
        A('v_readlane_b32 s%d, v%d, %d' % (sb, vx, i))
        A('s_add_u32 s%d, s%d, s%d' % (sa, sa, sb))


def init_load(A, t0, t1):
    A('v_lshlrev_b32 v%d, 5, v0' % t1)
    A('v_min_u32 v%d, 0x%x, v%d' % (t1, VOTE, t1))
    A('v_cmp_eq_u32 vcc, 9, v0')
    A('v_cndmask_b32 v%d, 0, 4, vcc' % t0)
    A('v_add_u32 v%d, v%d, v%d' % (t1, t1, t0))
    A('buffer_load_dword v%d, v%d, %s, 0 offen sc1' % (t0, t1, S4(DBG)))


def arrived(A, t0, t1, sa, sb):
    A('v_bcnt_u32_b32 v%d, v%d, 0' % (t1, t0))
    sum8(A, t1, sa, sb)
    A('v_readlane_b32 s%d, v%d, 9' % (sb, t0))
    A('s_add_u32 s%d, s%d, s%d' % (sa, sa, sb))


def claim(A, opt, younger):
    if opt.get('lc', 1):
        A('s_waitcnt vmcnt(%d)' % younger)
        A('s_barrier')
        A('buffer_atomic_or v254, v255, %s, 0 offen sc0 sc1' % S4(DBG))


def confirm(A, opt, t0, t1, sa):
    L = A.newlabel('L_cf')
    A('v_mov_b32 v%d, %d' % (t1, LTOP))
    A('s_cmp_lg_u32 s%d, 0' % sW)
    A('s_cbranch_scc1 ' + L)
    A('v_readfirstlane_b32 s%d, v254' % sa)
    A('v_mov_b32 v%d, s%d' % (t0, sa))
    A('ds_write_b32 v%d, v%d' % (t1, t0))
    A('s_waitcnt lgkmcnt(0)')
    A.label(L)
    A('s_barrier')
    A('ds_read_b32 v%d, v%d' % (t0, t1))
    A('s_waitcnt lgkmcnt(0)')
    A('v_readfirstlane_b32 s%d, v%d' % (sa, t0))
    A('s_bitcmp1_b32 s%d, s%d' % (sa, sR))
    A('s_cbranch_scc1 L_redo')
    if opt.get('prof'):
        A('s_mov_b32 s78, s76')
        tstamp(A, opt, 8, t0, t1, sa, now=False)
        tstamp(A, opt, 0, t0, t1, sa)


def near(A, r, tmp):
    A('s_lshr_b32 s%d, s%d, 8' % (tmp, r))
    A('s_xor_b32 s%d, s%d, s%d' % (tmp, tmp, sP))
    A('s_and_b32 s%d, s%d, 0x2000' % (tmp, tmp))
    A('s_xor_b32 s%d, s%d, s%d' % (r, r, tmp))


def wait_init(A, t0, t1, sa, sb, issued=False):
    L, L2 = A.newlabel('L_wi'), A.newlabel('L_wiok')
    L3 = A.newlabel('L_wi')
    if issued:
        A('s_branch ' + L3)
    A.label(L)
    init_load(A, t0, t1)
    if issued != 2:
        A.label(L3)
    A('s_waitcnt vmcnt(0)')
    if issued == 2:
        A.label(L3)
    arrived(A, t0, t1, sa, sb)
    A('v_readlane_b32 s%d, v%d, 8' % (sP, t0))
    A('s_lshr_b32 s%d, s%d, 16' % (sb, sP))
    A('s_add_u32 s%d, s%d, s%d' % (sa, sa, sb))
    A('s_cmp_ge_u32 s%d, %d' % (sa, 256 + NVOTE))
    A('s_cbranch_scc1 %s' % L2)
    A('s_sleep 8')
    timeout_stub(A, L)
    A.label(L2)
    A('s_and_b32 s%d, s%d, 0xffff' % (sP, sP))
    A('s_cmp_gt_u32 s%d, %d' % (sP, NVOTE // 2))
    A('s_cselect_b32 s%d, 0x2000, 0' % sP)
    A('s_lshr_b32 s%d, s%d, 5' % (sa, sR))
    A('v_readlane_b32 s%d, v%d, s%d' % (sPure, t1, sa))


def poll_data(A, loads, regs, tmp, sleep):
    L, L2 = A.newlabel('L_pd'), A.newlabel('L_pdok')
    A.label(L)
    for o in loads:
        A(o)
    A('s_waitcnt vmcnt(0)')
    maxall(A, regs, tmp)
    A('v_cmp_eq_u32 vcc, -1, v%d' % tmp)
    A('s_cbranch_vccz %s' % L2)
    if sleep:
        A('s_sleep %d' % sleep)
    timeout_stub(A, L)
    A.label(L2)


def maxall(A, regs, tmp):
    regs = list(regs)
    A('v_max_u32 v%d, v%d, v%d' % (tmp, regs[0], regs[-1]))
    regs = regs[1:-1]
    while regs:
        x = regs[:2]
        regs = regs[2:]
        A('v_max3_u32 v%d, v%d, v%d, v%d' % (tmp, tmp, x[0], x[-1]))


def wait_flags(A, vf, vaddr, need, sleep=1, atomic=False):
    L, L2 = A.newlabel('L_wf'), A.newlabel('L_wfok')
    A.label(L)
    if atomic:
        A('s_mov_b64 exec, 0xff')
        A('v_mov_b32 v%d, 0' % vf)
        A('buffer_atomic_add v%d, v%d, %s, 0 offen sc0 sc1' % (vf, vaddr, S4(WS)))
        A('s_mov_b64 exec, -1')
    else:
        A('buffer_load_dword v%d, v%d, %s, 0 offen sc1' % (vf, vaddr, S4(WS)))
    A('s_waitcnt vmcnt(0)')
    A('v_cmp_gt_i32 vcc, %s, v%d' % (need, vf))
    A('s_cbranch_vccz %s' % L2)
    if sleep:
        A('s_sleep %d' % sleep)
    timeout_stub(A, L)
    A.label(L2)


def lane0_addr(A, dst, sval, tmp):
    A('v_mov_b32 v%d, 0x%x' % (tmp, OOB))
    A('v_mov_b32 v%d, s%d' % (dst, sval))
    A('v_cmp_eq_u32 vcc, 0, v0')
    A('v_cndmask_b32 v%d, v%d, v%d, vcc' % (dst, tmp, dst))


def bits(A, dst, terms, tmp, base=None):
    first = True
    for (si, wd, so) in terms:
        A('v_bfe_u32 v%d, v0, %d, %d' % (tmp, si, wd))
        if first:
            A('v_lshlrev_b32 v%d, %d, v%d' % (dst, so, tmp))
            first = False
        else:
            A('v_lshl_add_u32 v%d, v%d, %d, v%d' % (dst, tmp, so, dst))
    if base is not None:
        A('v_add_u32 v%d, %s, v%d' % (dst, base, dst))


def tstamp(A, opt, slot, t0, t1, sa, now=True):
    if not opt.get('prof'):
        return
    if now:
        A('s_memrealtime s[78:79]')
    A('s_lshl_b32 s%d, s%d, 2' % (sa, sR))
    A('s_add_u32 s%d, s%d, s%d' % (sa, sa, sW))
    A('s_lshl_b32 s%d, s%d, 6' % (sa, sa))
    A('s_add_u32 s%d, s%d, 0x%x' % (sa, sa, PROF + 2 * MB + slot * 4))
    A('s_waitcnt lgkmcnt(0)')
    A('v_mov_b32 v%d, s78' % t0)
    A('v_mov_b32 v%d, 0' % t1)
    A('buffer_store_dword v%d, v%d, %s, s%d offen' % (t0, t1, S4(WS), sa))
    A('s_memtime s[78:79]')
    A('s_add_u32 s%d, s%d, 0x100000' % (sa, sa))
    A('s_waitcnt lgkmcnt(0)')
    A('v_mov_b32 v%d, s78' % t0)
    A('buffer_store_dword v%d, v%d, %s, s%d offen' % (t0, t1, S4(WS), sa))


def cap_vm(A, start, already=8):
    out, n, done = [], already, False
    for l in A.lines[start:]:
        t = l.strip()
        if t.startswith('s_waitcnt') and 'vmcnt' in t:
            done = True
        if not done and t.startswith('buffer_'):
            n += 1
            if n > 60:
                out.append('    s_waitcnt vmcnt(59)')
        out.append(l)
    A.lines[start:] = out


def help_kv(A, opt, ptr, sh, t0, t1, sa, sb, between=None):
    hk = opt.get('hk', 3)
    mod = ' nt' if opt.get('hnt', 0) else ''
    srd(A, SRD_C, P_X, 4 * MB)
    A('s_and_b32 s%d, s%d, 15' % (sa, sR))
    A('s_lshl_b32 s%d, s%d, 2' % (sa, sa))
    A('s_add_u32 s%d, s%d, s%d' % (sa, sa, sW))
    A('s_lshl_b32 s%d, s%d, 11' % (sa, sa))
    bits(A, t1, [(0, 4, 7), (4, 1, 17), (5, 1, 30)], t0)
    A('buffer_load_dword v252, v%d, %s, s%d offen' % (t1, S4(SRD_C), sa))
    claim(A, opt, 1)
    srd(A, SRD_C, ptr, 8 * MB)
    A('s_and_b32 s%d, s%d, 3' % (sa, sh))
    A('s_lshl_b32 s%d, s%d, 2' % (sa, sa))
    A('s_add_u32 s%d, s%d, s%d' % (sa, sa, sW))
    A('s_lshl_b32 s%d, s%d, 16' % (sa, sa))
    A('s_and_b32 s%d, s%d, 28' % (sb, sh))
    A('s_lshl_b32 s%d, s%d, 8' % (sb, sb))
    A('s_add_u32 s%d, s%d, s%d' % (sb, sb, sa))
    bits(A, t1, [(0, 3, 13), (3, 3, 20)], t0)
    A('buffer_load_dword v252, v%d, %s, s%d offen offset:384' % (t1, S4(SRD_C), sb))
    A('s_cmp_ge_u32 s%d, 28' % sh)
    A('s_cselect_b32 s%d, s%d, 0x%x' % (sb, sb, OOB))
    A('buffer_load_dword v252, v%d, %s, s%d offen offset:896' % (t1, S4(SRD_C), sb))
    if between:
        between()
    A('s_lshl_b32 s%d, s%d, 8' % (sa, sh))
    bits(A, t1, [(1, 3, 13), (4, 2, 20), (0, 1, 7)], t0)
    A('v_lshl_add_u32 v%d, s%d, 16, v%d' % (t1, sW, t1))
    A('s_add_u32 s%d, s%d, 0x%x' % (sa, sa, 0x400000 + (4 - hk) * 0x40000))
    for i in range(hk):
        A('buffer_load_dword v252, v%d, %s, s%d offen%s' % (t1, S4(SRD_C), sa, mod))
        A('s_add_u32 s%d, s%d, 0x40000' % (sa, sa))


def dbg_mark(A, opt, word, t0, t1):
    if not opt.get('diag'):
        return
    A('s_memrealtime s[78:79]')
    A('s_waitcnt lgkmcnt(0)')
    A('s_sub_u32 s78, s78, s76')
    A('v_mov_b32 v%d, s78' % t0)
    A('v_mov_b32 v%d, %d' % (t1, 4 * word))
    A('s_mov_b64 exec, 1')
    A('buffer_atomic_umax v%d, v%d, %s, 0 offen sc1' % (t0, t1, S4(DBG)))
    A('s_mov_b64 exec, -1')
    A('s_waitcnt vmcnt(0)')


def diag_hold(A, opt):
    if opt.get('diag', 0) > 1:
        L = A.newlabel('L_hold')
        A.label(L)
        A('s_memrealtime s[78:79]')
        A('s_waitcnt lgkmcnt(0)')
        A('s_sub_u32 s78, s78, s76')
        A('s_cmp_lt_u32 s78, %d' % (opt['diag'] * 100))
        A('s_cbranch_scc1 ' + L)


def touch_code(A, lab0, lab1, sidx, d, tmp):
    L = A.newlabel('L_pc')
    A('s_getpc_b64 s[%d:%d]' % (d, d + 1))
    A.label(L)
    A('s_add_u32 s%d, s%d, %s-%s' % (d, d, lab0, L))
    A('s_addc_u32 s%d, s%d, 0' % (d + 1, d + 1))
    A('s_and_b32 s%d, s%d, 0xffff' % (d + 1, d + 1))
    A('s_mov_b32 s%d, %s-%s' % (d + 2, lab1, lab0))
    A('s_mov_b32 s%d, 0x20000' % (d + 3))
    A('v_lshlrev_b32 v%d, 7, v0' % tmp)
    A('v_lshl_add_u32 v%d, s%d, 13, v%d' % (tmp, sidx, tmp))
    A('buffer_load_dword v253, v%d, %s, 0 offen' % (tmp, S4(d)))


def hold_after(A, us, ref=None):
    L = A.newlabel('L_hold')
    if ref is None:
        A('s_memrealtime s[76:77]')
        ref = 76
    A.label(L)
    A('s_sleep 8')
    A('s_memrealtime s[78:79]')
    A('s_waitcnt lgkmcnt(0)')
    A('s_sub_u32 s78, s78, s%d' % ref)
    A('s_cmp_lt_u32 s78, %d' % (us * 100))
    A('s_cbranch_scc1 ' + L)


def touch_pages(A, opt, sregs, t0, sa, vaddr=None):
    if not opt.get('tp', 0):
        return 0
    A('v_mov_b32 v%d, 0' % t0)
    for r in sregs:
        A('s_or_b32 s%d, s%d, 0x1fff00' % (sa, r))
        A('buffer_load_dword v253, v%d, %s, s%d offen' % (t0, S4(WS), sa))
    return len(sregs)


def mark(A, opt, i):
    if opt.get('prof'):
        A('s_memrealtime s[%d:%d]' % (80 + 2 * i, 81 + 2 * i))


def mark_dump(A, opt, n, slot0, t0, t1, sa):
    if opt.get('prof'):
        A('s_waitcnt lgkmcnt(0)')
        for i in range(n):
            A('s_mov_b32 s78, s%d' % (80 + 2 * i))
            tstamp(A, opt, slot0 + i, t0, t1, sa, now=False)
```

```python
from common import *

XROW = 2064
XBUF = 32 * XROW
LSCR = 2 * XBUF


def load_weights(A, srdw, sBase, row_bytes, rows_of, tr_lane_terms, tr_off, ngroups, vRaw, vWr, vTr, t0, sa, sb,
                 scr, after_first=None, pre_out=0, mod=''):
    bits(A, vRaw, [(0, 2, 4)], t0)
    A('v_lshrrev_b32 v%d, 2, v0' % t0)
    A('s_mov_b32 s%d, %d' % (sa, row_bytes))
    A('v_mul_lo_u32 v%d, v%d, s%d' % (t0, t0, sa))
    A('v_add_u32 v%d, v%d, v%d' % (vRaw, vRaw, t0))
    A('s_lshl_b32 s%d, s%d, 12' % (sa, sW))
    A('s_add_u32 s%d, s%d, %d' % (sa, sa, scr))
    bits(A, vWr, [(0, 6, 4)], t0, 's%d' % sa)
    bits(A, vTr, tr_lane_terms, t0, 's%d' % sa)
    depth = 4

    def issue(gi):
        for i in range(4):
            A('s_add_u32 s%d, s%d, 0x%x' % (sb, sBase(gi) if callable(sBase) else sBase, rows_of(gi, i) * row_bytes))
            A('buffer_load_dwordx4 %s, v%d, %s, s%d offen%s' % (a(16 * gi + 4 * i, 4), vRaw, S4(srdw), sb, mod))
    for gi in range(depth):
        issue(gi)
    issued = depth
    for gi in range(ngroups):
        A('s_waitcnt vmcnt(%d)' % ((issued - 1 - gi) * 4))
        if gi == 0 and after_first:
            after_first()
        while issued < ngroups and issued - (gi + 1) < depth:
            issue(issued)
            issued += 1
        for i in range(4):
            A('ds_write_b128 v%d, %s offset:%d' % (vWr, a(16 * gi + 4 * i, 4), i * 1024))
        for ksl in range(2):
            for tile in range(2):
                for pp in range(2):
                    A('ds_read_b64_tr_b16 %s, v%d offset:%d' % (a(16 * gi + (ksl * 2 + tile) * 4 + 2 * pp, 2), vTr, tr_off(ksl, pp, tile)))
        A('s_waitcnt lgkmcnt(0)')


def kv_first(A, sh, t0, t1, sa, sb):
    A('s_lshl_b32 s%d, s%d, 8' % (sa, sh))
    A('s_add_u32 s%d, s%d, 0x%x' % (sa, sa, F_KV + 0x2000))
    near(A, sa, sb)
    bits(A, t1, [(0, 1, 7)], t0, 's%d' % sa)
    wait_flags(A, t0, t1, '1', 8)


def sel_frag(A, dst, et, t0, t1):
    A('v_bfe_u32 v%d, v0, 2, 2' % t0)
    A('v_lshrrev_b32 v%d, 4, v0' % t1)
    A('v_cmp_eq_u32 vcc, v%d, v%d' % (t0, t1))
    A('v_mov_b32 v%d, 0x%x' % (t1, 0x3f80 << (16 * et)))
    A('v_cndmask_b32 v%d, 0, v%d, vcc' % (t1, t1))
    A('v_and_b32 v%d, 3, v0' % t0)
    for i in range(4):
        A('v_cmp_eq_u32 vcc, %d, v%d' % (i, t0))
        A('v_cndmask_b32 v%d, 0, v%d, vcc' % (dst + i, t1))


def proj(A, opt, kind):
    P = 'L_' + kind
    V = Alloc(1, 252)
    vL16, vRd, vRdSum, vFl, vArm = [V(n) for n in 'l16 rd rdsum fl arm'.split()]
    t0, t1, t2, t3 = V('t0'), V('t1'), V('t2'), V('t3')
    vX = V('x', 32, 4)
    vD = V('d', 16, 4)
    vF = V('f', 8, 4)
    vJ = V('junk', 4, 4)
    vDb, vXb = (V('db', 16, 4), V('xb', 16, 4)) if kind != 'q' else (0, 0)
    S = Alloc(36, 62)
    sH, sSeg, sXo, sM, sMsum, sOut, sOut2, sArm, sPf, sA, sB, sCc = [S(n) for n in 'h seg xo m msum out out2 arm pf a b cc'.split()]
    base = {'k': 16, 'v': 20, 'q': 24}[kind]
    A.label(P)
    if kind == 'q' and opt.get('chainonly'):
        A('s_endpgm')
    cap0 = len(A.lines)
    srd(A, SRD_A, {'k': P_WK, 'v': P_WV, 'q': P_WQ}[kind], 8 * MB)
    srd(A, SRD_B, P_X, 4 * MB)
    assert sH == 36
    if kind == 'q':
        help_kv(A, opt, P_WK, sH, t0, t1, sA, sB)
    A('v_lshlrev_b32 v%d, 4, v0' % vL16)
    A('s_lshl_b32 s%d, s%d, 7' % (sA, sH))
    if kind == 'q':
        assert F_O & 0x203fff == 0
        A('s_add_u32 s%d, s%d, 0x%x' % (sA, sA, F_O + 0x2000))
        A('s_cmp_eq_u32 s%d, 0' % sW)
        A('s_cselect_b32 s%d, 4, 0' % sB)
        bits(A, vFl, [(0, 1, 12), (1, 1, 14)], t0, 's%d' % sA)
        A('v_mov_b32 v%d, 0x%x' % (t0, OOB))
        A('v_cmp_gt_u32 vcc, s%d, v0' % sB)
        A('v_cndmask_b32 v%d, v%d, v%d, vcc' % (vFl, t0, vFl))
    else:
        A('s_lshl_b32 s%d, s%d, 1' % (sA, sA))
        A('s_add_u32 s%d, s%d, 0x%x' % (sA, sA, F_KV + (128 if kind == 'v' else 0)))
        A('s_cmp_eq_u32 s%d, 0' % sW)
        A('s_cselect_b32 s%d, 2, 0' % sB)
        bits(A, vFl, [(0, 1, 13)], t0, 's%d' % sA)
        A('v_mov_b32 v%d, 0x%x' % (t0, OOB))
        A('v_cmp_gt_u32 vcc, s%d, v0' % sB)
        A('v_cndmask_b32 v%d, v%d, v%d, vcc' % (vFl, t0, vFl))
    npre = 1
    A('v_and_b32 v%d, 15, v0' % t0)
    A('v_mul_u32_u24 v%d, %d, v%d' % (vRd, XROW, t0))
    A('v_lshrrev_b32 v%d, 4, v0' % t0)
    A('v_lshl_add_u32 v%d, v%d, 8, v%d' % (vRd, t0, vRd))
    A('v_lshlrev_b32 v%d, 1, v%d' % (vRdSum, vRd))
    A('v_add_u32 v%d, %d, v%d' % (vRdSum, XBUF, vRdSum))
    A('s_mul_i32 s%d, s%d, %d' % (sM, sW, 8 * XROW))
    A('s_lshl_b32 s%d, s%d, 1' % (sMsum, sM))
    A('s_add_u32 s%d, s%d, %d' % (sMsum, sMsum, XBUF))
    A('s_lshl_b32 s%d, s%d, 14' % (sXo, sW))

    def dma_row(i):
        return ['s_add_u32 m0, s%d, %d' % (sM, i * XROW), 's_add_u32 s%d, s%d, %d' % (sA, sXo, i * 2048),
                'buffer_load_dwordx4 v%d, %s, s%d offen lds' % (vL16, S4(SRD_B), sA),
                'buffer_load_dwordx4 v%d, %s, s%d offen offset:1024 lds' % (vL16, S4(SRD_B), sA)]
    def dma_all():
        for i in range(8):
            for o in dma_row(i):
                A(o)
        A('s_sub_u32 s%d, s%d, s%d' % (sM, sMsum, sM))
        A('s_add_u32 s%d, s%d, 0x10000' % (sXo, sXo))
    nfuse = 0 if kind == 'q' else opt.get('nf', 2)
    WSCR = LSCR
    nx = max(nfuse, 1)

    def xpiece(sg, i, hh):
        return ['s_add_u32 m0, s%d, %d' % (sM, (sg & 1) * XBUF + i * XROW), 's_add_u32 s%d, s%d, %d' % (sA, sXo, sg * 0x10000 + i * 2048),
                'buffer_load_dwordx4 v%d, %s, s%d offen offset:%d lds' % (vL16, S4(SRD_B), sA, 1024 * hh)]
    xlate = [xpiece(sg, i, 1) for i in range(8) for sg in range(nx)]

    def xfirst():
        for i in range(8):
            for sg in range(nx):
                for o in xpiece(sg, i, 0):
                    A(o)
    nt = ' nt' if opt.get('nt', 31) & 2 else ''
    vRaw, vWr, vTr = vX, vX + 1, vX + 2
    A('s_and_b32 s%d, s%d, 1' % (sA, sW))
    A('s_lshl_b32 s%d, s%d, 3' % (sA, sA))
    bits(A, t1, [(4, 2, 1)], t0, 's%d' % sA)
    A('v_and_b32 v%d, 15, v0' % t0)
    A('v_xor_b32 v%d, v%d, v%d' % (t1, t1, t0))
    bits(A, vRaw, [(4, 2, 13)], t0)
    A('v_lshl_add_u32 v%d, v%d, 4, v%d' % (vRaw, t1, vRaw))
    A('s_lshl_b32 s%d, s%d, 11' % (sA, sW))
    A('s_add_u32 s%d, s%d, %d' % (sA, sA, WSCR))
    A('v_add_u32 v%d, s%d, v%d' % (vWr, sA, vL16))
    A('s_lshl_b32 s%d, s%d, 1' % (sA, sW))
    A('v_bfe_u32 v%d, v0, 2, 3' % t1)
    A('v_xor_b32 v%d, s%d, v%d' % (t1, sA, t1))
    bits(A, vTr, [(4, 2, 11), (2, 2, 8), (0, 2, 3)], t0, '%d' % WSCR)
    A('v_lshl_add_u32 v%d, v%d, 5, v%d' % (vTr, t1, vTr))
    A('v_xor_b32 v%d, 32, v%d' % (vTr + 1, vTr))
    A('s_lshl_b32 s%d, s%d, 8' % (sCc, sH))
    A('s_lshl_b32 s%d, s%d, 20' % (sA, sW))
    A('s_add_u32 s%d, s%d, s%d' % (sCc, sCc, sA))

    def wload(ks, i):
        return ['s_add_u32 s%d, s%d, 0x%x' % (sB, sCc, (8 * (ks & 15) + 4 * i + 512 * (ks >> 4)) * 8192),
                'buffer_load_dwordx4 %s, v%d, %s, s%d offen%s' % (a(8 * ks + 4 * i, 4), vRaw, S4(SRD_A), sB, nt)]
    if kind == 'q':
        A('s_waitcnt vmcnt(0)')
        confirm(A, opt, t0, t1, sA)
        for i in range(opt.get('qdl', 0)):
            A('s_sleep 32')
        if opt.get('qwait'):
            wait_init(A, t0, t1, sA, sB)
            kv_first(A, sH, t0, t1, sA, sB)
    DEP = opt.get('dep', 6)
    vq = []
    xl = opt.get('xl', 3)
    for ks in range(DEP):
        if ks == xl:
            if kind != 'q':
                claim(A, opt, 2 * xl)
            xfirst()
        for i in range(2):
            for o in wload(ks, i):
                A(o)
            vq.append(ks)
    cap_vm(A, cap0)

    def weights_rest():
        if nfuse == 2:
            A('v_add_u32 v%d, %d, v%d' % (vX + 4, XBUF, vRd))
        xr = lambda ks, sg, tt2: (vX + 16, vXb)[ks & 1] + sg * 8 + tt2 * 4

        def ktr(i):
            if opt.get('ktr') and kind == 'k':
                A('s_memrealtime s[96:97]')
                A('s_waitcnt lgkmcnt(0)')
                A('v_writelane_b32 v250, s96, %d' % i)

        def wr(ks):
            return ['ds_write_b128 v%d, %s offset:%d' % (vWr, a(8 * ks + 4 * i, 4), (ks & 1) * 8192 + i * 1024) for i in range(2)]
        A('s_waitcnt vmcnt(%d)' % min(vq[::-1].index(0), vq[::-1].index(xl) + 2))
        if kind != 'q':
            confirm(A, opt, t0, t1, sA)
        for o in wr(0):
            A(o)
        for ks in range(33):
            if ks & 1 == 0:
                ktr(ks)
            A('s_waitcnt lgkmcnt(0)')
            side = []
            if ks < 32:
                A('s_barrier')
                for tile in range(2):
                    for pp in range(2):
                        A('ds_read_b64_tr_b16 %s, v%d offset:%d' % (a(8 * ks + 4 * tile + 2 * pp, 2), vTr + tile, (ks & 1) * 8192 + 4 * pp * 256))
                for sg in range(nfuse):
                    for tt2 in range(2):
                        A('ds_read_b128 %s, v%d offset:%d' % (v(xr(ks, sg, tt2), 4), (vRd, vX + 4)[sg], tt2 * 16 * XROW + 16 * (ks & 15) + 1024 * (ks >> 4)))
                wf = ks >= opt.get('wf', 14)
                if ks < 31 and wf:
                    w_ = wr(ks + 1)
                    side += [['s_waitcnt vmcnt(%d)' % vq[::-1].index(ks + 1), w_[0]], [w_[1]]]
                for n_ in range(2 if len(xlate) > 15 - DEP - ks else 1):
                    if xlate:
                        side.append(xlate.pop(0)); vq.append('x')
                if nfuse == 2 and 18 <= ks < 26:
                    side.append(xpiece(2, ks - 18, 0)); vq.append('x2')
                if ks + DEP < 32:
                    side += [wload(ks + DEP, 0), wload(ks + DEP, 1)]
                    vq.extend([ks + DEP] * 2)
                if ks + DEP == 29:
                    T = Asm()
                    init_load(T, t0, t1)
                    side.append([l.strip() for l in T.lines]); vq.append('i')
                if ks < 31:
                    if ks == 15:
                        assert vq[::-1].index(16) < vq[::-1].index('x')
                    if not wf:
                        w_ = wr(ks + 1)
                        side += [['s_waitcnt vmcnt(%d)' % vq[::-1].index(ks + 1), w_[0]], [w_[1]]]
            ms = []
            if ks:
                for sg in range(nfuse):
                    for tt2 in range(2):
                        for tt in range(2):
                            acc = v((vD, vDb)[sg] + (tt * 2 + tt2) * 4, 4)
                            ms.append('v_mfma_f32_16x16x32_bf16 %s, %s, %s, %s' % (acc, a(8 * (ks - 1) + 4 * tt, 4), v(xr(ks - 1, sg, tt2), 4), acc if ks > 1 else '0'))
            while ms or side:
                if ms:
                    A(ms.pop(0))
                if side:
                    for o in side.pop(0):
                        A(o)
            if ks == 29:
                assert vq[::-1].index(30) < vq[::-1].index('i')
                wait_init(A, t0, t1, sA, sB, 2)
                for r_ in fixups:
                    near(A, r_, sA)
        if nx == 1:
            A('s_sub_u32 s%d, s%d, s%d' % (sM, sMsum, sM))
        A('s_add_u32 s%d, s%d, 0x%x' % (sXo, sXo, 0x10000 * nx))
        tstamp(A, opt, 1, t0, t1, sA)
        if opt.get('ktr') and kind == 'k':
            ktr(33)
            A('s_lshl_b32 s%d, s%d, 2' % (sA, sH))
            A('s_add_u32 s%d, s%d, s%d' % (sA, sA, sW))
            A('s_lshl_b32 s%d, s%d, 8' % (sA, sA))
            A('s_add_u32 s%d, s%d, 0x%x' % (sA, sA, PROF + 5 * MB))
            A('v_lshlrev_b32 v%d, 2, v0' % t0)
            A('buffer_store_dword v250, v%d, %s, s%d offen' % (t0, S4(WS), sA))
    A('s_mul_i32 s%d, s%d, 0x%x' % (sOut, sH, ROW))
    fixups = []
    if kind != 'q':
        A('s_lshl_b32 s%d, s%d, 11' % (sA, sW))
        A('s_add_u32 s%d, s%d, s%d' % (sOut2, sOut, sA))
        A('s_add_u32 s%d, s%d, 0x%x' % (sOut2, sOut2, VT))
        A('s_lshl_b32 s%d, s%d, 10' % (sA, sW))
        A('s_add_u32 s%d, s%d, s%d' % (sOut, sOut, sA))
        A('s_add_u32 s%d, s%d, 0x%x' % (sOut, sOut, KX if kind == 'k' else VX))
        bits(A, vArm, [(4, 2, 22), (4, 2, 16), (0, 4, 4)], t0)
        A('s_lshl_b32 s%d, s%d, 3' % (sArm, sW))
        A('s_bfe_u32 s%d, s%d, 0x10001' % (sA, sH))
        A('s_add_u32 s%d, s%d, s%d' % (sArm, sArm, sA))
        A('s_mul_i32 s%d, s%d, 0x%x' % (sArm, sArm, ROW))
        A('s_and_b32 s%d, s%d, 1' % (sA, sH))
        A('s_lshl_b32 s%d, s%d, 12' % (sA, sA))
        A('s_add_u32 s%d, s%d, s%d' % (sArm, sArm, sA))
        A('s_lshr_b32 s%d, s%d, 2' % (sA, sH))
        A('s_lshl_b32 s%d, s%d, 8' % (sA, sA))
        A('s_add_u32 s%d, s%d, s%d' % (sArm, sArm, sA))
        A('s_add_u32 s%d, s%d, 0x%x' % (sArm, sArm, PART))
        sKa = S('ka')
        A('s_lshr_b32 s%d, s%d, 1' % (sKa, sH))
        A('s_mul_i32 s%d, s%d, 0x%x' % (sKa, sKa, ROW))
        A('s_and_b32 s%d, s%d, 1' % (sA, sH))
        A('s_lshl_b32 s%d, s%d, 2' % (sA, sA))
        A('s_add_u32 s%d, s%d, s%d' % (sA, sA, sW))
        A('s_lshl_b32 s%d, s%d, 10' % (sA, sA))
        A('s_add_u32 s%d, s%d, s%d' % (sKa, sKa, sA))
        A('s_add_u32 s%d, s%d, 0x%x' % (sKa, sKa, KVM))
        fixups = [sOut, sOut2, sKa, sArm]
        vSent = V('sent', 4, 4)
        for i in range(4):
            A('v_mov_b32 v%d, -1' % (vSent + i))
        A('s_and_b32 s%d, s%d, 15' % (sPf, sR))
        A('s_lshl_b32 s%d, s%d, 2' % (sPf, sPf))
        A('s_add_u32 s%d, s%d, s%d' % (sPf, sPf, sW))
        A('s_lshl_b32 s%d, s%d, 10' % (sPf, sPf))
        A('s_add_u32 s%d, s%d, 0x20000' % (sPf, sPf))
    if kind == 'v':
        vSel = V('sel', 8, 4)
        vD2 = V('d2', 16, 4)
        vG = V('g', 8, 4)
        sel_frag(A, vSel, 0, t0, t1)
        sel_frag(A, vSel + 4, 1, t0, t1)
    cvt = lambda d, x, y: A('v_cvt_pk_bf16_f32 v%d, v%d, v%d' % (d, x, y))
    ldx4 = lambda dst, so, off: 'buffer_load_dwordx4 %s, v%d, %s, s%d offen offset:%d sc1' % (v(dst, 4), vL16, S4(WS), so, off)
    stx4 = lambda src, so, off: 'buffer_store_dwordx4 %s, v%d, %s, s%d offen offset:%d sc1' % (v(src, 4), vL16, S4(WS), so, off)
    LQ, LKV = LSCR, LSCR + 8192
    if kind == 'q':
        vQw, vIdx, vFm, vFv, vKr = V('qw'), V('idx'), V('fm'), V('fv'), V('kr')
        vQr = vArm
        vKx = V('kx', 32, 4)
        vVT = V('vt', 16, 4)
        vKm, vVm = V('km', 8, 4), V('vm', 4, 4)
        vQ = V('q', 16, 4)
        vD3 = vKx
        vO = vKx + 16
        vG = vQ
        vVmT = vQ + 8
        vS = V('s', 8, 4)
        MM = V('mm', 4, 4)
        vBias = V('bias', 8, 4)
        vStrip = V('strip', 20, 4)
        vLs = V('ls', 4, 4)
        vP = V('p', 4, 4)
        vOne = V('one', 4, 4)
        vPm, vHalf = V('pm', 2), V('half', 2)
        sKs, sKm, sVm, sMk = [S(n) for n in 'ks km vm mk'.split()]
        sScale = S('scale', 2)
        assert t0 % 2 == 0
        assert VT == KX + 8192
        A('s_lshl_b32 s%d, s%d, 12' % (sB, sW))
        A('s_add_u32 s%d, s%d, %d' % (sMk, sB, LKV))
        A('s_add_u32 s%d, s%d, s%d' % (sKs, sB, sOut))
        fixups = [sKs, sKm, sVm, sOut]
        A('s_add_u32 s%d, s%d, 0x%x' % (sKs, sKs, KX))
        A('s_lshr_b32 s%d, s%d, 1' % (sA, sW))
        A('s_lshl_b32 s%d, s%d, 12' % (sB, sA))
        A('s_add_u32 s%d, s%d, %d' % (sB, sB, LKV + 8192))
        A('v_add_u32 v%d, s%d, v%d' % (t2, sB, vL16))
        vVr = V('vr')
        A('v_mov_b32 v%d, v%d' % (vVr, t2))
        A('v_add_u32 v%d, %d, v%d' % (vKr, LKV, vL16))
        A('s_lshr_b32 s%d, s%d, 1' % (sKm, sH))
        A('s_mul_i32 s%d, s%d, 0x%x' % (sKm, sKm, ROW))
        A('s_and_b32 s%d, s%d, 1' % (sB, sH))
        A('s_lshl_b32 s%d, s%d, 12' % (sB, sB))
        A('s_add_u32 s%d, s%d, s%d' % (sKm, sKm, sB))
        A('s_add_u32 s%d, s%d, 0x%x' % (sKm, sKm, KVM))
        A('s_lshl_b32 s%d, s%d, 10' % (sB, sA))
        A('s_add_u32 s%d, s%d, s%d' % (sVm, sKm, sB))
        A('s_lshl_b32 s%d, s%d, 11' % (sB, sA))
        A('s_add_u32 s%d, s%d, s%d' % (sOut, sOut, sB))
        A('s_and_b32 s%d, s%d, 1' % (sA, sW))
        A('s_lshl_b32 s%d, s%d, 12' % (sB, sA))
        A('s_add_u32 s%d, s%d, s%d' % (sOut, sOut, sB))
        A('s_add_u32 s%d, s%d, 0x%x' % (sOut, sOut, OO))
        A('s_add_u32 s%d, s%d, %d' % (sB, sB, LQ))
        A('v_add_u32 v%d, s%d, v%d' % (vQr, sB, vL16))
        A('s_lshl_b32 s%d, s%d, 10' % (sB, sW))
        A('s_add_u32 s%d, s%d, %d' % (sB, sB, LQ))
        A('v_add_u32 v%d, s%d, v%d' % (vQw, sB, vL16))
        A('s_mov_b32 s%d, %s' % (sScale, f32(128 ** -0.5 * LOG2E)))
        A('s_lshl_b32 s%d, s%d, 4' % (sA, sA))
        A('v_and_b32 v%d, 15, v0' % t0)
        A('v_add_u32 v%d, s%d, v%d' % (t0, sA, t0))
        A('v_lshrrev_b32 v%d, 4, v0' % t1)
        A('v_lshlrev_b32 v%d, 2, v%d' % (t1, t1))
        A('v_sub_u32 v%d, v%d, v%d' % (t0, t0, t1))
        A('v_mov_b32 v%d, %s' % (t1, f32(-1e30)))
        for i in range(8):
            A('v_cmp_gt_i32 vcc, %d, v%d' % (16 * (i >> 2) + (i & 3), t0))
            A('v_cndmask_b32 v%d, 0, v%d, vcc' % (vBias + i, t1))
        for i in range(20):
            A('v_mov_b32 v%d, 0' % (vStrip + i))
        sel_frag(A, vStrip + 4, 0, t0, t1)
        sel_frag(A, vStrip + 12, 1, t0, t1)
        for i in range(4):
            A('v_mov_b32 v%d, 0x3f803f80' % (vOne + i))
        for i in range(2):
            A('v_mov_b32 v%d, 0x3f003f00' % (vHalf + i))
        A('v_and_b32 v%d, 8, v0' % t0)
        A('v_cmp_eq_u32 vcc, 0, v%d' % t0)
        A('v_mov_b32 v%d, 0xeeee' % t1)
        A('v_mov_b32 v%d, 0x4444' % t2)
        A('v_cndmask_b32 v%d, v%d, v%d, vcc' % (vIdx, t1, t2))
        A('s_lshl_b32 s%d, s%d, 8' % (sA, sH))
        A('s_add_u32 s%d, s%d, 0x%x' % (sB, sA, F_KV))
        bits(A, t3, [(0, 1, 7)], t0, 's%d' % sB)
        if opt.get('qpl', 1) == 32:
            bits(A, vFm, [(0, 5, 7), (5, 1, 30)], t0)
        else:
            A('s_lshl_b32 s%d, s%d, 10' % (sA, sW))
            lane0_addr(A, vFm, sA, t0)

    A('s_mov_b32 s%d, 0x%x' % (sSeg, INIT2))
    vq.extend(['t'] * touch_pages(A, opt, {'k': [sOut, sKa, sSeg], 'v': [sOut, sOut2, sSeg]}[kind] if kind != 'q' else [sKs, sKm, sOut], t0, sA))
    if kind == 'k' and opt.get('tp', 0):
        A('v_and_b32 v%d, 0xc00000, v%d' % (t0, vArm))
        A('s_or_b32 s%d, s%d, 0x1fff00' % (sA, sArm))
        A('buffer_load_dword v253, v%d, %s, s%d offen' % (t0, S4(WS), sA))
        vq.append('t')
    weights_rest()
    if kind == 'q':
        A('v_xor_b32 v%d, s%d, v%d' % (vFl, sP, vFl))
    A('s_mov_b32 s%d, 0' % sSeg)
    A('s_barrier')
    flag_st = 'buffer_store_dword v%d, v%d, %s, 0 offen sc1' % (t3, vFl, S4(WS))
    mfma = lambda d, x, y, c_: 'v_mfma_f32_16x16x32_bf16 %s, %s, %s, %s' % (d, x, y, c_)
    cv = lambda d, x, y: 'v_cvt_pk_bf16_f32 v%d, v%d, v%d' % (d, x, y)

    class Order:
        def __init__(self, name, lim):
            self.name, self.lim, self.ops = name, lim, []

        def add(self, tag):
            self.ops.append(tag)

        def wait(self, tag):
            last = max(i for i, t in enumerate(self.ops) if t == tag)
            n = len(self.ops) - 1 - last
            n = min(n, self.lim)
            return 's_waitcnt %s(%d)' % (self.name, n)

    def gemm(fill, stream=(), start=0, vsp=4):
        L, M = Order('lgkmcnt', 15), Order('vmcnt', 63)
        M.add('old')
        stream = list(stream)

        def emit(o):
            if isinstance(o, tuple):
                if o[0] in ('lds', 'vm'):
                    (L if o[0] == 'lds' else M).add(o[1])
                    A(o[2])
                else:
                    A((L if o[0] == 'wl' else M).wait(o[1]))
            else:
                assert not o.startswith('ds_') and not o.startswith('buffer_'), o
                A(o)

        def txt(o):
            return o[2] if isinstance(o, tuple) and len(o) == 3 else ('s_waitcnt' if isinstance(o, tuple) else o)

        gap = {'t': 4, 'v': 8}

        def fits(o, force=False):
            x = txt(o)
            if x.startswith(';') or x.endswith(':'):
                return True
            if 'mfma' in x:
                gap['t'], gap['v'] = 4, (12 if 'smfmac' in x else 8)
                return True
            if x.startswith('v_'):
                e = max(gap['t'], gap['v']) + (8 if x[:7] in ('v_exp_f', 'v_rcp_f', 'v_perml') else 4)
            elif x.startswith('buffer_') or x.startswith('ds_write'):
                e = gap['t'] + 12
            elif x.startswith('s_cbranch') or x == 's_barrier':
                e = gap['t'] + 8
            else:
                e = gap['t'] + 4
            if e > 16 and not force:
                return False
            gap['t'] = e
            return True

        def put_(o):
            fits(o, True)
            emit(o)

        def rd(ks, tt2):
            put_(('lds', 'x%d' % ks, 'ds_read_b128 %s, v%d offset:%d' % (v(vX + (ks & 3) * 8 + tt2 * 4, 4), vRd, tt2 * 16 * XROW + 16 * (ks & 15) + 1024 * (ks >> 4))))
        for o in fill.get('head', []):
            emit(o)
        for ks in range(3):
            rd(ks, 0); rd(ks, 1)
        emit(('wl', 'x0'))
        last_vm = -99
        for ks in range(32):
            n = 0
            for tt2 in range(2):
                for tt in range(2):
                    acc = v(vD + (tt * 2 + tt2) * 4, 4)
                    put_(mfma(acc, a((ks * 2 + tt) * 4, 4), v(vX + (ks & 3) * 8 + tt2 * 4, 4), acc if ks else '0'))
                    if n in (0, 2) and ks + 3 < 32:
                        rd(ks + 3, n >> 1)
                    if n == 3 and ks < 31:
                        put_(('wl', 'x%d' % (ks + 1)))
                    for o in fill.get((ks, n), []):
                        put_(o)
                    while stream and ks >= start:
                        o = stream[0]
                        if isinstance(o, tuple) and o[0] == 'at':
                            if ks < o[1]:
                                break
                            stream.pop(0)
                            continue
                        if isinstance(o, tuple) and o[0] == 'vm' and 4 * ks + n - last_vm < vsp:
                            break
                        if not fits(o):
                            break
                        if isinstance(o, tuple) and o[0] == 'vm':
                            last_vm = 4 * ks + n
                        emit(stream.pop(0))
                    n += 1
        for o in stream:
            emit(o)
        A('v_sub_u32 v%d, v%d, v%d' % (vRd, vRdSum, vRd))
        for tt2 in range(2):
            for j in range(4):
                A(cv(vF + 4 * tt2 + j, vD + 4 * tt2 + j, vD + 8 + 4 * tt2 + j))
        return L, M, emit

    dsp = opt.get('dsp' + ('q' if kind == 'q' else ''), 4)
    dend = (16 * dsp + 3) // 4

    def base_fill(d0=0):
        fill = {}
        put = lambda g_, os_: fill.setdefault(((g_ >> 2) + d0, g_ & 3), []).extend(os_)
        for i in range(8):
            d = dma_row(i)
            put(2 * i * dsp, d[0:2])
            put(2 * i * dsp + 1, [('vm', 'dma', d[2])])
            put((2 * i + 1) * dsp + 1, [('vm', 'dma', d[3])])
        put(15 * dsp + 2, ['s_sub_u32 s%d, s%d, s%d' % (sM, sMsum, sM), 's_add_u32 s%d, s%d, 0x10000' % (sXo, sXo)])
        return fill

    if kind != 'q':
        adv = lambda r_: 's_add_u32 s%d, s%d, 0x%x' % (r_, r_, SEG)
        outs = ['s_add_u32 s%d, s%d, 4096' % (sB, sOut), ('vm', 'st', stx4(vF, sOut, 0)), ('vm', 'st', stx4(vF + 4, sB, 0)), adv(sOut)]
        if kind == 'k':
            outs += [('vm', 'st', 'buffer_store_dwordx4 %s, v%d, %s, s%d offen sc1' % (v(vSent, 4), vArm, S4(WS), sArm)),
                     ('vm', 'st', stx4(vSent, sKa, 0)), adv(sArm), adv(sKa)]
        else:
            outs += [('vm', 'st', stx4(vG + 4 * et, sOut2, et * 1024)) for et in range(2)] + [adv(sOut2)]
        pf = [('vm', 'pf', 'buffer_load_dwordx4 %s, v%d, %s, s%d offen' % (v(vJ, 4), vL16, S4(SRD_B), sPf)), 's_add_u32 s%d, s%d, 0x10000' % (sPf, sPf)]

        def transpose_v():
            if kind == 'v':
                for et in range(2):
                    for tt2 in range(2):
                        A(mfma(v(vD2 + (et * 2 + tt2) * 4, 4), v(vF + 4 * tt2, 4), v(vSel + 4 * et, 4), '0'))
                for i in range(8):
                    A(cv(vG + i, vD2 + 2 * i, vD2 + 2 * i + 1))
        NI = opt.get('ni', 6)
        assert nfuse == 2 and opt.get('kvm', 1)
        if True:
            cvs = lambda d_: [cv(vF + 4 * tt2 + j, d_ + 4 * tt2 + j, d_ + 8 + 4 * tt2 + j) for tt2 in range(2) for j in range(4)]
            T = Asm()
            A0, A.lines = A.lines, T.lines
            transpose_v()
            A.lines = A0
            tv = [l.strip() for l in T.lines]
            mk = lambda i: ['s_memrealtime s[%d:%d]' % (80 + 2 * i, 81 + 2 * i), 's_waitcnt lgkmcnt(0)'] if opt.get('prof') else []
            fb, fa = opt.get('fb', 12), opt.get('fa', 4)
            fill = base_fill(fb + 1)
            first = [(o[0], 's0', o[2]) if isinstance(o, tuple) else o for o in outs[:4]]
            fill['head'] = cvs(vD) + first + mk(0) + tv + outs[4:] + cvs(vDb) + tv + outs + ['v_mov_b32 v%d, 1' % t3]
            for i in range(8):
                d = xpiece(0, i, 1)
                fill.setdefault((i, 0), []).extend(d[:2])
                fill.setdefault((i, 1), []).append(('vm', 'x2', d[2]))
            fill.setdefault((fa, 3), []).extend(mk(1) + [('wv', 's0'), 's_barrier', ('vm', 'fl', flag_st)] + mk(2))
            fill.setdefault((8, 1), []).extend(['s_sub_u32 s%d, s%d, s%d' % (sM, sMsum, sM), 's_add_u32 s%d, s%d, 0x10000' % (sXo, sXo),
                                                'v_mov_b32 v%d, 2' % t3])
            fill.setdefault((fb, 3), []).extend([('wv', 'x2'), 's_barrier', ('vm', 'fl', flag_st)])
            A('s_add_u32 s%d, s%d, 0x20000' % (sPf, sPf))
            L, M, emit = gemm(fill, pf, fb + 1 + dend)
            transpose_v()
            A('s_mov_b32 s%d, 3' % sSeg)
            A(M.wait('dma'))
            A('s_barrier')
            NE = opt.get('ne', 14)
            A.label(P + '_loope')
            nst = sum(isinstance(o, tuple) for o in outs)
            fill = base_fill(nst)
            fk = opt.get('fk', 20)
            fill.setdefault((fk, 3), []).extend([('wv', 'st'), 's_barrier', ('vm', 'fl', flag_st)])
            fill.setdefault((nst + dend, 1), []).extend(pf)
            L, M, emit = gemm(fill, outs + ['v_mov_b32 v%d, s%d' % (t3, sSeg)], 0)
            transpose_v()
            A('s_add_u32 s%d, s%d, 1' % (sSeg, sSeg))
            A('s_cmp_le_u32 s%d, %d' % (sSeg, NE))
            A(M.wait('dma'))
            A('s_barrier')
            A('s_cbranch_scc1 %s_loope' % P)
            A('.p2align 6')
            A.label(P + '_loop')
            L, M, emit = gemm(base_fill(), ['s_sub_u32 s%d, s%d, 2' % (sB, sSeg), 's_max_u32 s%d, s%d, %d' % (sB, sB, NE), 'v_mov_b32 v%d, s%d' % (t3, sB), ('vm', 'fl', flag_st)] + outs + pf, dend)
            transpose_v()
            A('s_add_u32 s%d, s%d, 1' % (sSeg, sSeg))
        else:
            A.label(P + '_loop0')
            L, M, emit = gemm(base_fill(), pf, dend)
            transpose_v()
            A('s_add_u32 s%d, s%d, 1' % (sSeg, sSeg))
            A('s_cmp_gt_u32 s%d, %d' % (sSeg, NI))
            A('s_cbranch_scc1 %s_ent0' % P)
            for o in outs:
                emit(o)
            A('v_mov_b32 v%d, s%d' % (t3, sSeg))
            A('s_waitcnt vmcnt(0)')
            A('s_barrier')
            A(flag_st)
            A('s_branch %s_loop0' % P)
            A.label(P + '_ent0')
            A('s_waitcnt vmcnt(0)')
            A('s_barrier')
            A('.p2align 6')
            A.label(P + '_loop')
            L, M, emit = gemm(base_fill(), ['s_sub_u32 s%d, s%d, 2' % (sB, sSeg), 's_max_u32 s%d, s%d, %d' % (sB, sB, NI), 'v_mov_b32 v%d, s%d' % (t3, sB), ('vm', 'fl', flag_st)] + outs + pf, dend)
            transpose_v()
            A('s_add_u32 s%d, s%d, 1' % (sSeg, sSeg))
        if opt.get('prof'):
            for sg, sl_ in ((16, 11), (48, 12)):
                Lx = A.newlabel('L_pf')
                A('s_cmp_lg_u32 s%d, %d' % (sSeg, sg))
                A('s_cbranch_scc1 ' + Lx)
                tstamp(A, opt, sl_, t0, t1, sA)
                A('s_waitcnt vmcnt(0)')
                A.label(Lx)
        A('s_cmp_lt_u32 s%d, 64' % sSeg)
        A(M.wait('dma'))
        A('s_barrier')
        A('s_cbranch_scc1 %s_loop' % P)
        A('s_xor_b32 s%d, s%d, 0x2000' % (sKa, sKa))
        for o in outs:
            emit(o)
    else:
        ld_m = [ldx4(vKm, sKm, 0), ldx4(vKm + 4, sKm, 1024), ldx4(vVm, sVm, 2048)]
        mregs = list(range(vKm, vKm + 8)) + list(range(vVm, vVm + 4))
        probe = ['v_mov_b32 v%d, 0' % vFv, 'buffer_atomic_add v%d, v%d, %s, s%d offen sc0 sc1' % (vFv, vFm, S4(WS), sKm)]
        stage = ['s_mov_b32 m0, s%d' % sMk, 's_nop 0'] + [('vm', 'kv', 'buffer_load_dwordx4 v%d, %s, s%d offen offset:%d sc1 lds' % (vL16, S4(WS), sKs, 1024 * f)) for f in range(4)] \
            + ['s_add_u32 s%d, s%d, 0x%x' % (sKs, sKs, SEG)]
        reads = [('lds', 'q', 'ds_read_b128 %s, v%d offset:%d' % (v(vQ + 4 * j, 4), vQr, j * 1024)) for j in range(4)] \
            + [('lds', 'k', 'ds_read_b128 %s, v%d offset:%d' % (v(vKx + 4 * f, 4), vKr, f * 1024)) for f in range(8)] \
            + [('lds', 'vt', 'ds_read_b128 %s, v%d offset:%d' % (v(vVT + 4 * f, 4), vVr, f * 1024)) for f in range(4)]

        def attention(tag):
            qpk = opt.get('qpk', 0)
            zr = lambda b, n_: ['v_mov_b64 %s, 0' % v(b + i, 2) for i in range(0, n_, 2)] if qpk & 1 else ['v_mov_b32 v%d, 0' % (b + i) for i in range(n_)]
            p1 = zr(MM, 4)
            for j in range(4):
                for tt in range(2):
                    acc = v(vS + 4 * tt, 4)
                    p1.append(mfma(acc, v(vKx + (tt * 4 + j) * 4, 4), v(vQ + 4 * j, 4), acc if j else v(vBias + 4 * tt, 4)))
            T = Asm()
            maxall(T, mregs, t0)
            p2 = [('wv', 'm')] + [l.strip() for l in T.lines] + ['v_cmp_eq_u32 vcc, -1, v%d' % t0]
            p2 += zr(vD3, 16)
            p2 += ['s_cbranch_vccnz L_q_bad%s' % tag, 'L_q_ok%s:' % tag]
            T = Asm()
            for u in range(2):
                T('v_smfmac_f32_16x16x64_bf16 %s, %s, %s, v%d' % (v(MM, 4), v(vKm + 4 * u, 4), v(vQ + 8 * u, 8), vIdx))
            win = {(0, 0): 4, (1, 0): 0, (0, 1): 12, (1, 1): 8}
            mx = ['v_max3_f32 v%d, v%d, v%d, v%d' % (t0, vS, vS + 1, vS + 2), 'v_max3_f32 v%d, v%d, v%d, v%d' % (t0, t0, vS + 3, vS + 4),
                  'v_max3_f32 v%d, v%d, v%d, v%d' % (t0, t0, vS + 5, vS + 6), 'v_max_f32 v%d, v%d, v%d' % (t0, t0, vS + 7)]
            for qp in range(2):
                for et in range(2):
                    T('v_smfmac_f32_16x16x64_bf16 %s, %s, %s, v%d' % (v(vD3 + (qp * 2 + et) * 4, 4), v(vVm, 4), v(vStrip + win[(qp, et)], 8), vIdx))
                    T(mx.pop(0))
            T('v_permlane32_swap_b32 v%d, v%d' % (MM, MM + 2))
            T('v_permlane32_swap_b32 v%d, v%d' % (MM + 1, MM + 3))
            T('v_add_f32 v%d, v%d, v%d' % (MM, MM, MM + 2))
            T('v_add_f32 v%d, v%d, v%d' % (MM + 1, MM + 1, MM + 3))
            T('v_max3_f32 v%d, v%d, v%d, v%d' % (t0, t0, MM, MM + 1))
            cm = [cv(vVmT + i, vD3 + 2 * i, vD3 + 2 * i + 1) for i in range(8)]
            for sw in ('v_permlane32_swap_b32', 'v_permlane16_swap_b32'):
                T('v_mov_b32 v%d, v%d' % (t1, t0))
                T(cm.pop(0)); T(cm.pop(0))
                T('%s v%d, v%d' % (sw, t0, t1))
                T('v_max_f32 v%d, v%d, v%d' % (t0, t0, t1))
            T('v_mul_f32 v%d, s%d, v%d' % (t0, sScale, t0))
            regs = [vS + i for i in range(8)] + [MM, MM + 1]
            for r_ in regs:
                if not qpk & 2:
                    T('v_fma_f32 v%d, v%d, s%d, -v%d' % (r_, r_, sScale, t0))
                elif r_ & 1 == 0:
                    T('v_pk_fma_f32 %s, %s, %s, %s op_sel_hi:[1,0,0] neg_lo:[0,0,1] neg_hi:[0,0,1]' % (v(r_, 2), v(r_, 2), s(sScale, 2), v(t0, 2)))
            for r_ in regs:
                T('v_exp_f32 v%d, v%d' % (r_, r_))
            for i in range(4):
                T(cv(vP + i, vS + 2 * i, vS + 2 * i + 1))
            T(cv(vPm, MM, MM + 1))
            T(cv(vPm + 1, MM, MM + 1))
            T(mfma(v(vLs, 4), v(vOne, 4), v(vP, 4), '0'))
            T(cm.pop(0))
            T('v_permlane32_swap_b32 v%d, v%d' % (vPm, vPm + 1))
            for e in range(4):
                T(mfma(v(vO + 4 * e, 4), v(vVT + 4 * e, 4), v(vP, 4), '0'))
                if cm:
                    T(cm.pop(0))
            m16 = lambda d, x: 'v_mfma_f32_16x16x16_bf16 %s, %s, %s, %s' % (v(d, 4), v(x, 2), v(vPm, 2), v(d, 4))
            T(m16(vLs, vHalf))
            for e in range(4):
                T(m16(vO + 4 * e, vVmT + 2 * e))
            T('v_rcp_f32 v%d, v%d' % (t0, vLs))
            p2 += [l.strip() for l in T.lines]
            p3 = []
            for qp in range(2):
                if qpk & 4:
                    p3 += ['v_pk_mul_f32 %s, %s, %s op_sel_hi:[1,0]' % (v(vO + 8 * qp + i, 2), v(vO + 8 * qp + i, 2), v(t0, 2)) for i in range(0, 8, 2)]
                else:
                    p3 += ['v_mul_f32 v%d, v%d, v%d' % (vO + 8 * qp + i, vO + 8 * qp + i, t0) for i in range(8)]
                p3 += [cv(vG + 4 * qp + j, vO + 8 * qp + j, vO + 8 * qp + 4 + j) for j in range(4)]
                p3 += [('vm', 'o', stx4(vG + 4 * qp, sOut, qp * 1024))]
            p3 += ['s_add_u32 s%d, s%d, 0x%x' % (sOut, sOut, SEG)]
            return p1, p2, p3

        qwr = [('lds', 'qw', 'ds_write_b128 v%d, %s' % (vQw, v(vF, 4))), ('lds', 'qw', 'ds_write_b128 v%d, %s offset:4096' % (vQw, v(vF + 4, 4)))]
        if opt.get('qw64', 1):
            qwr = [('lds', 'qw', 'ds_write_b64 v%d, %s offset:%d' % (vQw, v(vF + 2 * i, 2), 4096 * (i >> 1) + 8 * (i & 1))) for i in range(4)]

        def q_end(M, tags):
            A(min((M.wait(t) for t in tags), key=lambda x: int(x[x.index('(') + 1:-1])))
            A('v_cmp_eq_u32 vcc, -1, v%d' % vFv)
            A('s_barrier')
        xt = []
        if opt.get('qxt', 1):
            vXt = V('xt')
            bits(A, vXt, [(0, 4, 7), (4, 2, 30)], t0)
            A('s_and_b32 s%d, s%d, 7' % (sA, sH))
            A('s_lshl_b32 s%d, s%d, 13' % (sA, sA))
            A('s_mul_i32 s%d, s%d, %d' % (sB, sW, 2048 - 16384))
            A('s_add_u32 s%d, s%d, s%d' % (sA, sA, sB))
            A('s_add_u32 s%d, s%d, 0x10000' % (sA, sA))
            A('v_add_u32 v%d, s%d, v%d' % (vXt, sA, vXt))
            xt = [('vm', 'xt', 'buffer_load_dword v252, v%d, %s, s%d offen' % (vXt, S4(SRD_B), sXo))]
        if opt.get('prof'):
            A('s_mov_b64 s[98:99], 0')
            A('v_mov_b32 v251, 0')
        L, M, emit = gemm(base_fill())
        for o in qwr:
            A(o[2])
        A('s_waitcnt vmcnt(0) lgkmcnt(0)')
        wait_flags(A, t0, t3, '2', 4)
        A('s_barrier')
        qv = opt.get('qv', 3)
        L, M, emit = gemm(base_fill(), (stage if qv != 2 else []) + [probe[0], ('vm', 'pr', probe[1])], dend)
        q_end(M, ['pr'])
        A('.p2align 6')
        A.label('L_q_loop')
        A('s_cbranch_vccz L_q_go')
        if opt.get('prof'):
            A('s_bitset1_b64 s[98:99], s%d' % sSeg)
        poll_data(A, probe, [vFv, vFv], t0, opt.get('qsl', 4))
        A.label('L_q_go')
        if opt.get('prof'):
            A('s_memrealtime s[96:97]')
            A('s_mov_b32 m0, s%d' % sSeg)
            A('s_waitcnt lgkmcnt(0)')
            A('v_writelane_b32 v251, s96, m0')
        adv = ['s_add_u32 s%d, s%d, 0x%x' % (n_, n_, SEG) for n_ in (sKm, sVm)]
        if qv == 2:
            d0, kb = opt.get('qd0', 7), opt.get('qkb', 10)
            fill = base_fill(d0)
            put = lambda k_, n_, os_: fill.setdefault((k_, n_), []).extend(os_)
            fill['head'] = stage[:3]
            slow = stage[3:6] + [('vm', 'm', o) for o in ld_m] + xt
            for i, o in enumerate(slow):
                put(i >> 1, 1 + 2 * (i & 1), [o])
            put(4, 1, [stage[6]])
            for i in range(4):
                put(4 + (i >> 1), 1 + 2 * (i & 1), [reads[i]])
            put(kb - 1, 3, ['v_mov_b32 v%d, s%d' % (t3, sSeg), ('wl', 'q'), ('wv', 'kv'), 's_barrier'])
            for i in range(12):
                put(kb + i // 3, (0, 2, 3)[i % 3], [reads[4 + i]])
            pk_ = d0 + dend
            put(pk_, 1, [probe[0]])
            put(pk_, 3, [('vm', 'pr', probe[1])])
            put(pk_ + 1, 3, [('vm', 'fl', flag_st)])
            put(pk_ + 2, 1, [qwr[0]])
            put(pk_ + 3, 1, [qwr[1]])
            p1, p2, p3 = attention('')
            k1 = p2.index('L_q_ok:') + 1
            zd = [o for o in p2[:k1] if isinstance(o, str) and o.startswith('v_mov_b32')]
            chk_ = [o for o in p2[:k1] if o not in zd]
            L, M, emit = gemm(fill, p1[:4] + chk_ + adv + ['; adv', ('at', kb + 3), ('wl', 'k')] + p1[4:] + zd + [('wl', 'vt')] + p2[k1:] + p3, kb, 0)
            A('s_add_u32 s%d, s%d, 1' % (sSeg, sSeg))
            A('s_cmp_lt_u32 s%d, 62' % sSeg)
            q_end(M, ['pr'])
            body = A.lines[A.lines.index('L_q_go:'):]
            assert body.index('    ; adv') < body.index('    ' + probe[1])
        else:
            d0 = opt.get('qd0', 3)
            fill = base_fill(d0)
            dend += d0
            put = lambda k_, n_, os_: fill.setdefault((k_, n_), []).extend(os_)
            for i in range(3):
                put(i, 1, [('vm', 'm', ld_m[i])])
            rs_ = opt.get('qrs', 4)
            pos = [(k_, n_) for k_ in range(24) for n_ in ((3,) if (rs_ == 2 or (rs_ == 3 and k_ & 1)) else (2, 3))]
            for i in range(16):
                put(pos[i][0], pos[i][1], [reads[i]])
            put(dend, 0, ['; stage', stage[0], probe[0]])
            tail_ = [('vm', 'pr', probe[1])] + stage[2:6] + xt + [('vm', 'fl', flag_st)] + qwr
            for i, o in enumerate(tail_):
                put(dend + i, 1, [o])
            put(dend + 5, 2, [stage[6]])
            p1, p2, p3 = attention('')
            mid = [('at', pos[15][0] + 2), ('wv', 'old'), 'v_mov_b32 v%d, s%d' % (t3, sSeg), ('wl', 'vt'), 's_barrier']
            k1 = p2.index('L_q_ok:') + 1
            zd = [o for o in p2[:k1] if isinstance(o, str) and o.startswith('v_mov_b')]
            chk_ = [o for o in p2[:k1] if o not in zd]
            nz = len([o for o in p1 if o.startswith('v_mov_b')])
            seq = p1[:nz] + [('at', pos[11][0] + 2), ('wl', 'k')] + p1[nz:] + zd + chk_ + adv + ['; adv'] + mid + p2[k1:] + p3
            L, M, emit = gemm(fill, seq, 1, 0)
            A('s_add_u32 s%d, s%d, 1' % (sSeg, sSeg))
            A('s_cmp_lt_u32 s%d, 62' % sSeg)
            q_end(M, ['pr', 'kv'])
            body = A.lines[A.lines.index('L_q_go:'):]
            assert body.index('    s_barrier') < body.index('    ; stage') and body.index('    ; adv') < body.index('    ; stage')
        A('s_cbranch_scc1 L_q_loop')
        plain = lambda ops: [A(o[2] if isinstance(o, tuple) else o) for o in ops]
        for tag in 'yz':
            p1, p2, p3 = attention(tag)
            if tag == 'y':
                if qv == 2:
                    plain(stage)
                A('s_cbranch_vccz L_q_go2')
                poll_data(A, probe, [vFv, vFv], t0, 1)
                A.label('L_q_go2')
                plain(ld_m)
                if qv == 2:
                    A('s_waitcnt vmcnt(3)')
                    A('s_barrier')
            else:
                plain(probe)
            for i, o in enumerate(reads):
                A(o[2])
                if i == 11:
                    A('s_waitcnt lgkmcnt(0)')
            plain(p1)
            A('v_mov_b32 v%d, %d' % (t3, 62 if tag == 'y' else 63))
            A('s_waitcnt vmcnt(0) lgkmcnt(0)')
            A('s_barrier')
            if tag == 'z':
                mark(A, opt, 0)
                A('v_cmp_eq_u32 vcc, -1, v%d' % vFv)
                A('s_cbranch_vccz L_q_go3')
                poll_data(A, probe, [vFv, vFv], t0, 0)
                A.label('L_q_go3')
                mark(A, opt, 1)
                plain(ld_m)
                A(flag_st)
                A('s_waitcnt vmcnt(1)')
                mark(A, opt, 2)
            k1 = p2.index('L_q_ok%s:' % tag) + 1
            plain(p2[1:k1])
            if tag == 'y':
                plain(qwr + stage + adv + ([flag_st] if opt.get('f62', 1) else []))
                for n_ in (sKm, sVm):
                    A('s_xor_b32 s%d, s%d, 0x2000' % (n_, n_))
            plain(p2[k1:] + p3)
            if tag == 'y':
                A('s_waitcnt vmcnt(%d) lgkmcnt(0)' % (2 + opt.get('f62', 1)))
                A('s_barrier')
        mark(A, opt, 3)
        A('s_branch L_q_fin')
        for tag in ('', 'y', 'z'):
            A.label('L_q_bad' + tag)
            poll_data(A, ld_m, mregs, t0, 1)
            A('s_branch L_q_ok' + tag)
        A.label('L_q_fin')
        if opt.get('prof'):
            A('v_writelane_b32 v251, s98, 62')
            A('v_writelane_b32 v251, s99, 63')
            A('s_lshl_b32 s%d, s%d, 2' % (sA, sH))
            A('s_add_u32 s%d, s%d, s%d' % (sA, sA, sW))
            A('s_lshl_b32 s%d, s%d, 8' % (sA, sA))
            A('s_add_u32 s%d, s%d, 0x%x' % (sA, sA, PROF + 4 * MB))
            A('v_lshlrev_b32 v%d, 2, v0' % t0)
            A('buffer_store_dword v251, v%d, %s, s%d offen' % (t0, S4(WS), sA))
    A('s_waitcnt vmcnt(0)')
    A('v_mov_b32 v%d, 64' % t3)
    A('s_barrier')
    A(flag_st)
    tstamp(A, opt, 2, t0, t1, sA)
    if kind != 'q':
        mark_dump(A, opt, 2, 3, t0, t1, sA)
        if opt.get('prof'):
            A('s_mov_b32 s78, s84')
            tstamp(A, opt, 14, t0, t1, sA, now=False)
    if kind == 'q':
        mark_dump(A, opt, 4, 11, t0, t1, sA)
    if opt.get('hold') == 3 and kind == 'q':
        hold_after(A, 40)
    if kind == 'q' or opt.get('chainonly'):
        A('s_endpgm')
    else:
        A('s_branch L_o_join2')


def vote(A, sH, t0, t1, t2, sA, sB, sBase, sL0, sL1):
    A('s_and_b32 s%d, s%d, 1' % (sA, sH))
    A('s_or_b32 s%d, s%d, s%d' % (sA, sA, sW))
    A('s_cbranch_scc1 L_vote_done')
    A('v_lshlrev_b32 v%d, 2, v0' % t1)
    A('v_mov_b32 v%d, 0' % t2)
    A('s_mul_i32 s%d, s%d, 0x700000' % (sBase, sH))
    A('s_add_u32 s%d, s%d, 0x1f8000' % (sBase, sBase))
    A('s_mov_b32 s%d, -1' % sL0)
    A('s_mov_b32 s%d, -1' % sL1)
    for smp in range(3):
        for par in range(2):
            A('s_memtime s[96:97]')
            A('s_waitcnt vmcnt(0) lgkmcnt(0)')
            A('buffer_store_dword v%d, v%d, %s, s%d offen offset:%d sc1' % (t2, t1, S4(WS), sBase, smp * 256))
            A('s_waitcnt vmcnt(0)')
            A('s_memtime s[98:99]')
            A('s_xor_b32 s%d, s%d, 0x2000' % (sBase, sBase))
            A('s_waitcnt lgkmcnt(0)')
            A('s_sub_u32 s98, s98, s96')
            A('s_min_u32 s%d, s%d, s98' % ((sL0, sL1)[par], (sL0, sL1)[par]))
    A('s_cmp_lt_u32 s%d, s%d' % (sL1, sL0))
    A('s_cselect_b32 s%d, 1, 0' % sA)
    A('s_lshr_b32 s%d, s%d, 2' % (sB, sX))
    A('s_xor_b32 s%d, s%d, s%d' % (sA, sA, sB))
    A('s_bfe_u32 s%d, s%d, 0x10015' % (sB, sBase))
    A('s_xor_b32 s%d, s%d, s%d' % (sA, sA, sB))
    A('s_add_u32 s%d, s%d, 0x10000' % (sA, sA))
    A('v_mov_b32 v%d, s%d' % (t0, sA))
    A('s_mov_b64 exec, 1')
    A('buffer_atomic_add v%d, v%d, %s, 0 offen offset:%d sc1' % (t0, t2, S4(DBG), VOTE))
    A('s_mov_b64 exec, -1')
    A.label('L_vote_done')
    A('s_barrier')
```

```python
import sys, re
from common import *
from workers import proj
from orole import orole


def prologue(A, opt):
    A('s_cmp_ge_u32 s2, 256')
    A('s_cbranch_scc1 L_end0')
    A('s_load_dwordx16 s[64:79], s[0:1], 0')
    A('s_load_dwordx16 s[80:95], s[0:1], 64')
    A('s_getreg_b32 s%d, hwreg(HW_REG_XCC_ID)' % sX)
    A('s_and_b32 s%d, s%d, 7' % (sX, sX))
    if opt.get('sw'):
        A('s_xor_b32 s%d, s%d, 4' % (sX, sX))
    A('v_lshrrev_b32 v1, 6, v0')
    A('v_and_b32 v0, 63, v0')
    A('v_readfirstlane_b32 s%d, v1' % sW)
    A('s_mov_b32 s%d, %d' % (sTO, TIMEOUT))
    if opt.get('cw', 1):
        A('s_lshr_b32 s36, s2, 3')
        A('s_lshl_b32 s37, s%d, 5' % sW)
        A('s_add_u32 s36, s36, s37')
        touch_code(A, 'L_code0', 'L_code1', 36, SRD_E, 2)
        A.label('L_code0')
    A('s_waitcnt lgkmcnt(0)')
    srd(A, WS, P_WS, WS_BYTES)
    srd(A, DBG, P_DBG, 256)
    if opt.get('prof') or opt.get('diag'):
        A('s_memrealtime s[76:77]')
    for i in range(4):
        A('v_mov_b32 v%d, -1' % (4 + i))
    A('s_lshl_b32 s36, s2, 2')
    A('s_add_u32 s36, s36, s%d' % sW)
    A('s_lshl_b32 s37, s36, 10')
    A('s_add_u32 s37, s37, 0x%x' % INIT1)
    A('s_bfe_u32 s38, s36, 0x50003')
    A('s_mul_i32 s38, s38, 0x%x' % ROW)
    A('s_bfe_u32 s39, s36, 0x20001')
    A('s_lshl_b32 s39, s39, 12')
    A('s_add_u32 s38, s38, s39')
    A('s_and_b32 s39, s36, 1')
    A('s_lshl_b32 s39, s39, 10')
    A('s_add_u32 s38, s38, s39')
    A('s_add_u32 s38, s38, 0x%x' % PART)
    A('s_cmp_ge_u32 s36, 768')
    A('s_cselect_b32 s37, s38, s37')
    A('s_lshl_b32 s36, s36, 8')
    A('s_add_u32 s36, s36, 0x%x' % INIT2)
    A('v_lshlrev_b32 v2, 4, v0')
    A('v_lshlrev_b32 v3, 2, v0')
    A('buffer_store_dwordx4 v[4:7], v2, %s, s37 offen sc1' % S4(WS))
    A('buffer_store_dword v4, v3, %s, s36 offen sc1' % S4(WS))
    wu = opt.get('wu', 1)
    wu = 2 * wu
    npre = opt.get('wupre', 0)

    def warm(lo, hi):
        for o in ['buffer_load_dword v252, v8, %s, s38 offen' % S4(SRD_A), 'buffer_load_dword v252, v9, %s, s38 offen offset:0x780' % S4(SRD_A)][lo:hi]:
            A(o)
    if wu:
        A('s_lshr_b32 s38, s2, 3')
        A('s_lshl_b32 s38, s38, 2')
        A('s_add_u32 s38, s38, s%d' % sW)
        A('s_lshr_b32 s39, s38, 5')
        A('s_and_b32 s38, s38, 31')
        A('s_and_b32 s42, s%d, 3' % sX)
        A('s_mov_b64 s[40:41], s[%d:%d]' % (P_WK, P_WK + 1))
        for m_, p_ in ((1, P_WV), (2, P_WQ), (3, P_WO)):
            A('s_cmp_eq_u32 s39, %d' % m_)
            A('s_cselect_b64 s[40:41], s[%d:%d], s[40:41]' % (p_, p_ + 1))
        A('s_cselect_b32 s43, 11, 13')
        A('s_cselect_b32 s44, 21, 11')
        A('s_lshl_b32 s42, s42, s44')
        A('s_add_u32 s44, s43, 5')
        A('s_lshl_b32 s38, s38, s44')
        A('s_add_u32 s38, s38, s42')
        A('v_lshrrev_b32 v8, 1, v0')
        A('v_lshlrev_b32 v8, s43, v8')
        A('v_and_b32 v9, 1, v0')
        A('v_lshl_add_u32 v8, v9, 10, v8')
        A('s_and_b32 s42, s%d, 3' % sX)
        A('s_cmp_eq_u32 s42, 3')
        A('s_cselect_b32 s42, 0, 0x%x' % OOB)
        A('v_lshlrev_b32 v9, 29, v9')
        A('v_add3_u32 v9, v8, v9, s42')
        A('v_add_u32 v8, 384, v8')
        A('s_lshr_b32 s42, s%d, 2' % sX)
        A('s_lshl_b32 s42, s42, 30')
        A('s_add_u32 s38, s38, s42')
        srd(A, SRD_A, 40, 8 * MB)
        warm(0, npre)
    A('s_lshl_b32 s%d, s%d, 5' % (sR, sX))
    if opt.get('fakex'):
        A('s_cmp_eq_u32 s%d, 3' % sX)
        A('s_cbranch_scc0 L_fk')
        A('s_and_b32 s37, s2, 24')
        A('s_cbranch_scc0 L_fk')
        A('v_lshlrev_b32 v3, 5, v0')
        A.label('L_fk1')
        A('buffer_load_dword v1, v3, %s, 0 offen sc1' % S4(DBG))
        A('s_waitcnt vmcnt(0)')
        A('v_readlane_b32 s37, v1, 2')
        A('s_cmp_lg_u32 s37, -1')
        A('s_cbranch_scc1 L_fk1')
        A('s_mov_b32 s%d, 0x40' % sR)
        A.label('L_fk')
    A('s_lshr_b32 s37, s2, 3')
    A('s_lshl_b32 s36, 1, s37')
    A('v_mov_b32 v254, s36')
    A('s_cmp_eq_u32 s%d, 0' % sW)
    A('s_cselect_b32 s36, s%d, 0x%x' % (sR, OOB))
    lane0_addr(A, 255, 36, 13)
    A('s_add_u32 s%d, s%d, s37' % (sR, sR))
    if not opt.get('lc', 1):
        claim(A, {}, npre)
    warm(npre, wu)
    A('s_branch L_go')
    A.label('L_redo')
    A('v_mov_b32 v12, 0')
    A('v_mov_b32 v13, %d' % (LTOP + 4))
    A('s_waitcnt vmcnt(0) lgkmcnt(0)')
    A('s_cmp_lg_u32 s%d, 0' % sW)
    A('s_cbranch_scc1 L_tk')
    A('s_and_b32 s36, s%d, 0xe0' % sR)
    A.label('L_cl')
    A('v_readfirstlane_b32 s38, v254')
    A('s_ff0_i32_b32 s37, s38')
    A('s_cmp_lt_i32 s37, 0')
    A('s_cbranch_scc1 L_full')
    A('s_lshl_b32 s38, 1, s37')
    A('v_mov_b32 v254, s38')
    A('s_mov_b64 exec, 1')
    A('buffer_atomic_or v254, v12, %s, s36 offen sc0 sc1' % S4(DBG))
    A('s_mov_b64 exec, -1')
    A('s_waitcnt vmcnt(0)')
    A('v_readfirstlane_b32 s38, v254')
    A('s_bitcmp1_b32 s38, s37')
    A('s_cbranch_scc1 L_cl')
    A('s_add_u32 s36, s36, s37')
    A('s_branch L_tk_w')
    A.label('L_full')
    A('v_mov_b32 v1, 1')
    A('s_mov_b64 exec, 1')
    A('buffer_atomic_add v1, v12, %s, 0 offen offset:%d sc0 sc1' % (S4(DBG), VOTE + 4))
    A('s_mov_b64 exec, -1')
    A('s_waitcnt vmcnt(0)')
    A('v_readfirstlane_b32 s37, v1')
    A.label('L_ov')
    init_load(A, 1, 3)
    A('s_waitcnt vmcnt(0)')
    arrived(A, 1, 3, 38, 39)
    A('s_cmp_ge_u32 s38, 256')
    A('s_cbranch_scc1 L_ov1')
    A('s_sleep 4')
    timeout_stub(A, 'L_ov')
    A.label('L_ov1')
    A('s_mov_b32 s36, -1')
    A.label('L_ov2')
    A('s_add_u32 s36, s36, 1')
    A('s_cmp_ge_u32 s36, 256')
    A('s_cbranch_scc1 L_tk_w')
    A('s_lshr_b32 s39, s36, 5')
    A('v_readlane_b32 s38, v1, s39')
    A('s_bitcmp1_b32 s38, s36')
    A('s_cbranch_scc1 L_ov2')
    A('s_sub_u32 s37, s37, 1')
    A('s_cbranch_scc0 L_ov2')
    A.label('L_tk_w')
    A('v_mov_b32 v1, s36')
    A('ds_write_b32 v13, v1')
    A('s_waitcnt lgkmcnt(0)')
    A.label('L_tk')
    A('s_barrier')
    A('ds_read_b32 v1, v13')
    A('v_mov_b32 v254, 0')
    A('v_mov_b32 v255, 0x%x' % OOB)
    A('s_waitcnt lgkmcnt(0)')
    A('v_readfirstlane_b32 s%d, v1' % sR)
    A('s_cmp_ge_u32 s%d, 256' % sR)
    A('s_cbranch_scc1 L_end0')
    A.label('L_go')
    A('s_lshr_b32 s%d, s%d, 4' % (sG, sR))
    A('s_and_b32 s%d, s%d, 15' % (sC, sR))
    A('s_cmp_lt_u32 s%d, 128' % sR)
    A('s_cbranch_scc1 L_chain')
    A('s_bfe_u32 s%d, s%d, 0x20005' % (sG, sR))
    A('s_lshl_b32 s%d, s%d, 3' % (sG, sG))
    A('s_and_b32 s36, s%d, 7' % sR)
    A('s_add_u32 s36, s36, s%d' % sG)
    A('s_bfe_u32 s%d, s%d, 0x20003' % (sC, sR))
    A('s_cmp_eq_u32 s%d, 0' % sC)
    A('s_cbranch_scc1 L_k')
    A('s_cmp_eq_u32 s%d, 1' % sC)
    A('s_cbranch_scc1 L_v')
    A('s_cmp_eq_u32 s%d, 2' % sC)
    A('s_cbranch_scc1 L_q')
    A('s_branch L_o')
    A.label('L_end0')
    A('s_endpgm')


def chain(A, opt):
    prof = opt.get('prof', 0) == 1
    shr_ = opt.get('shr', 1)
    lite = opt.get('prof', 0) >= 1
    V = Alloc(1, 252)
    vL16, vL4, vQst, vVst, vKst, vIdx, vSent = [V(n) for n in 'l16 l4 qst vst kst idx sent'.split()]
    vW1q, vW1k, vR1, vR1v = V('w1q'), V('w1k'), V('r1'), V('r1v')
    vW2, vR2, vW2l, vR2l = V('w2'), V('r2'), V('w2l'), V('r2l')
    vT0, vT1, vT2, vT3 = V('t0'), V('t1'), V('t2'), V('t3')
    vQK, vVv, vBias = V('qk'), V('vv'), V('bias')
    vFa, vFv = V('fa'), V('fv')
    vM = V('m', 16, 4)
    vA = V('acc', 24, 4)
    vQ = V('q', 16, 4)
    vKm, vVm = V('km', 8, 4), V('vm', 8, 4)
    vKx, vVx = V('kx', 32, 4), V('vx', 32, 4)
    vS = V('s', 8, 4)
    MM = V('mm', 4, 4)
    vP, vPs = V('p', 4, 4), V('ps', 4, 4)
    vPm, vPms = V('pm', 2), V('pms', 2)
    vOne, vSel, vHalf = V('one', 4, 4), V('sel', 4, 4), V('half', 2)
    vVOx = V('vox', 16, 4)
    vT = V('tacc', 32, 4)
    vVOm = vT + 16
    vF = vT + 16
    vR = vVm
    vO = vA
    vLs = vA + 8
    vR2d = vA + 12
    vPt = vS
    S = Alloc(36, 62)
    sStep, sMemR, sMemW, sQkvW, sQkvR, sQkvR2 = S('step'), S('memr'), S('memw'), S('qkvw'), S('qkvr'), S('qkvr2')
    sKx, sKx2, sVx, sVx2, sPartR, sPartA, sKvm = [S(n) for n in 'kx kx2 vx vx2 pr pa kvm'.split()]
    sA, sB, sCc, sD = S('a'), S('b'), S('cc'), S('d')
    sScale, sFo, sPf = S('scale'), S('fo'), S('pf')
    sN1, sN2, sN3 = 64, 65, 66
    sLo = 0
    sKn, sPartR2, sGp = S('kn'), S('pr2'), S('gp')
    sSide = 3
    sSc2 = 2
    assert vT0 % 2 == 0
    LDSL = 20480
    LDS1, LDS2, LDSW = 0, 12288, 32768
    W1 = lambda t, m, tt: (t * 3 + m) * 16 + tt * 8
    WO = lambda n, j: 192 + n * 16 + j * 4

    A.label('L_chain')
    cap0 = len(A.lines)
    A('s_bitcmp1_b32 s%d, 0' % sC)
    A('s_cselect_b64 s[2:3], s[%d:%d], s[%d:%d]' % (P_WK, P_WK + 1, P_WQ, P_WQ + 1))
    srd(A, SRD_A, 2, 8 * MB)
    srd(A, SRD_C, P_WV, 8 * MB)
    srd(A, SRD_D, P_WO, 8 * MB)
    srd(A, SRD_E, P_MEM0, 16384)
    if opt.get('iw', 1):
        A('s_getpc_b64 s[2:3]')
        A.label('L_pc')
        A('s_add_u32 s2, s2, L_loop-L_pc')
        A('s_addc_u32 s3, s3, 0')
        srd(A, SRD_B, 2, 0)
        A('s_mov_b32 s%d, L_loop_end-L_loop' % (SRD_B + 2))
        A('s_lshl_b32 s%d, s%d, 13' % (sA, sW))
        A('v_lshlrev_b32 v%d, 7, v0' % vT0)
        A('buffer_load_dword v252, v%d, %s, s%d offen' % (vT0, S4(SRD_B), sA))
    vWa, vWb, vWc, vWd, vWe = vT, vT + 1, vT + 2, vT + 3, vT + 4
    nt = ' nt' if opt.get('nt', 31) & 1 else ''
    bits(A, vWd, [(3, 3, 11), (0, 3, 4)], vT0)
    A('s_lshl_b32 s%d, s%d, 2' % (sA, sG))
    A('s_add_u32 s%d, s%d, s%d' % (sA, sA, sW))
    A('s_lshl_b32 s%d, s%d, 18' % (sA, sA))
    A('s_lshl_b32 s%d, s%d, 7' % (sB, sC))
    A('s_add_u32 s%d, s%d, s%d' % (sA, sA, sB))
    if opt.get('wox'):
        A('s_xor_b32 s%d, s%d, %d' % (sA, sA, opt['wox']))
    for k in range(16):
        A('s_add_u32 s%d, s%d, 0x%x' % (sB, sA, k * 8 * 2048))
        A('buffer_load_dwordx4 %s, v%d, %s, s%d offen%s' % (a(192 + 4 * k, 4), vWd, S4(SRD_D), sB, (nt, '', ' sc1')[opt.get('opl', 0)]))
    bits(A, vWa, [(2, 4, 13), (0, 2, 4)], vT0)
    bits(A, vWe, [(3, 3, 13), (0, 3, 4)], vT0)
    sW1v, sW1q = sFo, sKn
    A('s_lshl_b32 s%d, s%d, 21' % (sA, sW))
    A('s_lshl_b32 s%d, s%d, 10' % (sB, sG))
    A('s_add_u32 s%d, s%d, s%d' % (sA, sA, sB))
    A('s_lshl_b32 s%d, s%d, 6' % (sB, sC))
    A('s_add_u32 s%d, s%d, s%d' % (sW1v, sA, sB))
    A('s_and_b32 s%d, s%d, 0xffffff80' % (sW1q, sW1v))

    def w1q(t):
        for i in range(8):
            A('s_add_u32 s%d, s%d, 0x%x' % (sB, sW1q, (64 * t + 8 * i) * 8192))
            A('buffer_load_dwordx4 %s, v%d, %s, s%d offen%s' % (a(W1(t, 0, 0) + 4 * i, 4), vWe, S4(SRD_A), sB, nt))

    def w1v(t):
        for i in range(4):
            A('s_add_u32 s%d, s%d, 0x%x' % (sB, sW1v, (64 * t + 16 * i) * 8192))
            A('buffer_load_dwordx4 %s, v%d, %s, s%d offen%s' % (a(W1(t, 2, 0) + 4 * i, 4), vWa, S4(SRD_C), sB, (nt, '', ' sc1')[opt.get('vpl', 1)]))
    A('v_lshlrev_b32 v%d, 4, v0' % vL16)
    A('v_lshlrev_b32 v%d, 2, v0' % vL4)
    A('v_mov_b32 v%d, -1' % vSent)
    A('v_and_b32 v%d, 8, v0' % vT0)
    A('v_cmp_eq_u32 vcc, 0, v%d' % vT0)
    A('v_mov_b32 v%d, 0xeeee' % vT1)
    A('v_mov_b32 v%d, 0x4444' % vT2)
    A('v_cndmask_b32 v%d, v%d, v%d, vcc' % (vIdx, vT1, vT2))
    A('s_mov_b32 s%d, 0' % sStep)
    A('s_lshl_b32 s%d, s%d, 15' % (sA, sG))
    if shr_:
        A('s_and_b32 s%d, s%d, 0x30000' % (sA, sA))
    A('s_add_u32 s%d, s%d, 0x%x' % (sA, sA, MEMR))
    A('s_lshl_b32 s%d, s%d, 12' % (sB, sW))
    A('s_add_u32 s%d, s%d, s%d' % (sMemR, sA, sB))
    A('s_lshl_b32 s%d, s%d, 10' % (sB, sC))
    A('s_add_u32 s%d, s%d, s%d' % (sA, sA, sB))
    A('s_lshl_b32 s%d, s%d, 8' % (sB, sW))
    A('s_add_u32 s%d, s%d, s%d' % (sMemW, sA, sB))
    if shr_:
        A('s_and_b32 s%d, s%d, 1' % (sB, sG))
        A('s_lshl_b32 s%d, s%d, 7' % (sB, sB))
        A('s_add_u32 s%d, s%d, s%d' % (sMemW, sMemW, sB))
        vM4, vG8 = vSel + 2, vSel + 3
    A('s_lshl_b32 s%d, s%d, 16' % (sA, sG))
    A('s_add_u32 s%d, s%d, 0x%x' % (sQkvW, sA, QKVR))
    A('s_mul_i32 s%d, s%d, 6144' % (sB, sW))
    A('s_add_u32 s%d, s%d, s%d' % (sQkvR, sQkvW, sB))
    A('s_add_u32 s%d, s%d, 4096' % (sQkvR2, sQkvR))
    A('s_lshr_b32 s%d, s%d, 2' % (sB, sC))
    A('s_mul_i32 s%d, s%d, 6144' % (sB, sB))
    A('s_add_u32 s%d, s%d, s%d' % (sQkvW, sQkvW, sB))
    A('s_mov_b32 s%d, %s' % (sScale, f32(128 ** -0.5 * LOG2E)))
    A('s_and_b32 s%d, s%d, 1' % (sA, sW))
    A('s_lshl_b32 s%d, s%d, 1' % (sA, sA))
    A('v_lshrrev_b32 v%d, 5, v0' % vT0)
    A('v_add_u32 v%d, s%d, v%d' % (vT0, sA, vT0))
    A('v_and_b32 v%d, 31, v0' % vT1)
    A('v_lshlrev_b32 v%d, 2, v%d' % (vT1, vT1))
    A('s_bfe_u32 s%d, s%d, 0x10001' % (sB, sC))
    A('s_lshl_b32 s%d, s%d, 10' % (sB, sB))
    A('s_lshr_b32 s%d, s%d, 1' % (sA, sW))
    A('s_lshl_b32 s%d, s%d, 7' % (sCc, sA))
    A('s_add_u32 s%d, s%d, s%d' % (sCc, sCc, sB))
    A('s_lshl_b32 s%d, s%d, 9' % (sA, sA))
    A('s_add_u32 s%d, s%d, s%d' % (sA, sA, sB))
    A('s_add_u32 s%d, s%d, 2048' % (sA, sA))
    A('v_lshl_add_u32 v%d, v%d, 8, v%d' % (vT2, vT0, vT1))
    A('v_add_u32 v%d, s%d, v%d' % (vT2, sCc, vT2))
    A('v_lshl_add_u32 v%d, v%d, 7, v%d' % (vT1, vT0, vT1))
    A('v_add_u32 v%d, s%d, v%d' % (vT3, sA, vT1))
    A('s_bitcmp1_b32 s%d, 0' % sC)
    A('s_cselect_b64 %s, -1, 0' % s(sLo, 2))
    A('s_cselect_b32 s%d, 0, 0x%x' % (sA, OOB))
    A('v_cndmask_b32 v%d, v%d, v%d, %s' % (vQst, vT2, vT3, s(sLo, 2)))
    A('v_add_u32 v%d, s%d, v%d' % (vKst, sA, vT3))
    A('s_and_b32 s%d, s%d, 1' % (sA, sC))
    A('s_lshl_b32 s%d, s%d, 9' % (sA, sA))
    A('s_add_u32 s%d, s%d, s%d' % (sA, sA, sB))
    A('s_add_u32 s%d, s%d, 4096' % (sA, sA))
    A('s_cmp_lt_u32 s%d, 2' % sW)
    A('s_cselect_b32 s%d, s%d, 0x%x' % (sA, sA, OOB))
    A('v_add_u32 v%d, s%d, v%d' % (vVst, sA, vT1))
    A('v_bfe_u32 v%d, v0, 3, 2' % vT1)
    A('v_xor_b32 v%d, v%d, v%d' % (vT1, vT1, vT0))
    A('v_lshlrev_b32 v%d, 5, v%d' % (vT1, vT1))
    A('v_lshl_add_u32 v%d, v%d, 7, v%d' % (vT1, vT0, vT1))
    A('v_and_b32 v%d, 3, v0' % vT2)
    A('v_lshl_add_u32 v%d, v%d, 3, v%d' % (vT1, vT2, vT1))
    A('v_bfe_u32 v%d, v0, 2, 1' % vT2)
    A('v_lshl_add_u32 v%d, v%d, 2, v%d' % (vT1, vT2, vT1))
    A('v_add_u32 v%d, 2048, v%d' % (vR1v, vT1))
    A('s_lshr_b32 s%d, s%d, 1' % (sA, sW))
    A('s_lshl_b32 s%d, s%d, 10' % (sA, sA))
    A('v_add_u32 v%d, s%d, v%d' % (vR1, sA, vT1))
    A('v_bfe_u32 v%d, v0, 4, 1' % vT0)
    A('v_lshrrev_b32 v%d, 5, v0' % vT1)
    A('v_lshl_add_u32 v%d, v%d, 1, v%d' % (vT0, vT0, vT1))
    A('s_mul_i32 s%d, s%d, 3072' % (sA, sW))
    for (dst, kind) in ((vW1q, 0), (vW1k, 1)):
        if kind == 0:
            A('v_bfe_u32 v%d, v0, 2, 2' % vT1)
            A('v_and_b32 v%d, 3, v0' % vT3)
        else:
            A('v_bfe_u32 v%d, v0, 3, 1' % vT1)
            A('v_and_b32 v%d, 1, v0' % vT2)
            A('v_lshl_add_u32 v%d, v%d, 1, v%d' % (vT1, vT1, vT2))
            A('v_bfe_u32 v%d, v0, 1, 2' % vT3)
        A('v_xor_b32 v%d, v%d, v%d' % (vT2, vT1, vT0))
        A('v_lshlrev_b32 v%d, 5, v%d' % (vT2, vT2))
        A('v_lshl_add_u32 v%d, v%d, 7, v%d' % (vT2, vT1, vT2))
        A('v_lshl_add_u32 v%d, v%d, 3, v%d' % (vT2, vT3, vT2))
        A('v_add_u32 v%d, s%d, v%d' % (dst, sA, vT2))
    A('v_cndmask_b32 v%d, v%d, v%d, %s' % (vW1q, vW1q, vW1k, s(sLo, 2)))
    for i in range(4):
        A('v_mov_b32 v%d, 0x3f803f80' % (vOne + i))
        A('v_mov_b32 v%d, 0' % (vPs + i))
    for i in range(2):
        A('v_mov_b32 v%d, 0x3f003f00' % (vHalf + i))
        A('v_mov_b32 v%d, 0' % (vPms + i))
    A('v_and_b32 v%d, 8, v0' % vT0)
    A('v_cmp_eq_u32 vcc, 0, v%d' % vT0)
    A('v_mov_b32 v%d, 0x7f800000' % vT1)
    A('v_mov_b32 v%d, 0xff800000' % vT2)
    A('v_cndmask_b32 v%d, v%d, v%d, vcc' % (vBias, vT1, vT2))
    A('v_and_b32 v%d, 3, v0' % vT0)
    A('v_lshlrev_b32 v%d, 4, v%d' % (vT1, vT0))
    A('v_mov_b32 v%d, 0x3f80' % vT2)
    A('v_lshlrev_b32 v%d, v%d, v%d' % (vT1, vT1, vT2))
    A('v_cmp_gt_u32 vcc, 2, v%d' % vT0)
    A('v_cndmask_b32 v%d, 0, v%d, vcc' % (vT1, vT1))
    A('v_bfe_u32 v%d, v0, 2, 2' % vT0)
    for i in range(4):
        A('v_cmp_eq_u32 vcc, %d, v%d' % (i, vT0))
        A('v_cndmask_b32 v%d, 0, v%d, vcc' % (vSel + i, vT1))
    if shr_:
        bits(A, vM4, [(0, 5, 2), (5, 1, 30)], vT0)
        A('s_and_b32 s%d, s%d, 1' % (sB, sG))
        A('s_lshl_b32 s%d, s%d, 7' % (sB, sB))
        bits(A, vG8, [(4, 2, 8), (0, 4, 3)], vT0, None if opt.get('xhalf') else 's%d' % sB)
    A('s_lshl_b32 s%d, s%d, 2' % (sA, sW))
    A('s_add_u32 s%d, s%d, %d' % (sA, sA, LDSL))
    A('v_add_u32 v%d, s%d, v%d' % (vW2l, sA, vL16))
    hb, rb, db = (5, 3, 1) if shr_ else (1, 4, 2)
    bits(A, vT0, [(0, 1, 2), (rb, 2, 0)], vT1)
    A('v_lshlrev_b32 v%d, 4, v%d' % (vT1, vT0))
    A('v_add_u32 v%d, %d, v%d' % (vR2l, LDSL, vT1))
    bits(A, vT1, [(hb, 1, 1)], vT2)
    A('v_xor_b32 v%d, v%d, v%d' % (vT0, vT0, vT1))
    A('v_lshlrev_b32 v%d, 4, v%d' % (vT0, vT0))
    A('v_lshl_add_u32 v%d, v%d, 7, v%d' % (vT0, vT1, vT0))
    A('v_bfe_u32 v%d, v0, %d, 1' % (vT1, db + 1))
    A('v_lshl_add_u32 v%d, v%d, 7, v%d' % (vT0, vT1, vT0))
    A('v_bfe_u32 v%d, v0, %d, 1' % (vT1, db))
    A('v_lshl_add_u32 v%d, v%d, 3, v%d' % (vT0, vT1, vT0))
    A('s_lshl_b32 s%d, s%d, 9' % (sA, sW))
    A('s_add_u32 s%d, s%d, %d' % (sA, sA, LDS2))
    A('v_add_u32 v%d, s%d, v%d' % (vR2, sA, vT0))
    A('v_bfe_u32 v%d, v0, 3, 1' % vT0)
    A('v_lshlrev_b32 v%d, 9, v%d' % (vT0, vT0))
    A('v_lshrrev_b32 v%d, 4, v0' % vT1)
    A('v_lshl_add_u32 v%d, v%d, 7, v%d' % (vT0, vT1, vT0))
    A('v_and_b32 v%d, 2, v%d' % (vT1, vT1))
    A('v_and_b32 v%d, 7, v0' % vT2)
    A('v_xor_b32 v%d, v%d, v%d' % (vT1, vT1, vT2))
    A('v_lshl_add_u32 v%d, v%d, 4, v%d' % (vT0, vT1, vT0))
    A('s_lshl_b32 s%d, s%d, 11' % (sA, sW))
    A('s_add_u32 s%d, s%d, %d' % (sA, sA, LDS2))
    A('v_add_u32 v%d, s%d, v%d' % (vW2, sA, vT0))

    NHP = opt.get('nhp', 7)

    def walk(p):
        if opt.get('iw', 1) and p < NHP:
            for w in range(3):
                A('s_cmp_eq_u32 s%d, %d' % (sW, w))
                A('s_cbranch_scc1 L_hk%d' % (4 * p + w))
            A('s_branch L_hk%d' % (4 * p + 3))
            A.label('L_hkret%d' % p)

    def mem0_loads():
        bits(A, vT2, [(0, 3, 11), (3, 3, 4)], vT0)
        A('s_lshl_b32 s%d, s%d, 9' % (sA, sW))
        for t in range(4):
            A('buffer_load_dwordx4 %s, v%d, %s, s%d offen offset:%d' % (v(vM + 4 * t, 4), vT2, S4(SRD_E), sA, t * 128))
    A('s_mul_i32 s%d, s%d, 20480' % (sCc, sW))
    A('s_add_u32 s%d, s%d, %d' % (sCc, sCc, LDSW))
    vWf = vT + 5
    bits(A, vWb, [(0, 6, 4), (5, 1, 5)], vT0, 's%d' % sCc)
    bits(A, vWf, [(0, 6, 4), (4, 1, 5), (5, 1, 7)], vT0, 's%d' % sCc)
    bits(A, vWc, [(2, 1, 11), (2, 1, 6), (4, 2, 9), (4, 1, 5), (5, 1, 5), (3, 1, 7), (0, 2, 3)], vT0, 's%d' % sCc)
    claim(A, opt, 16)
    w1q(0); w1v(0)
    walk(0)
    A('s_waitcnt vmcnt(12)')
    confirm(A, opt, vT0, vT1, sA)
    for k in range(16):
        A('ds_write_b128 v%d, %s offset:%d' % (vWb, a(192 + 4 * k, 4), k * 1056))
        if k == 7:
            A('s_waitcnt lgkmcnt(0)')
    A('s_waitcnt lgkmcnt(0)')
    for n in range(4):
        for j in range(4):
            for pp in range(2):
                A('ds_read_b64_tr_b16 %s, v%d offset:%d' % (a(WO(n, j) + 2 * pp, 2), vWc, 4 * j * 1056 + 2 * pp * 128 + n * 32))
        A('s_waitcnt lgkmcnt(0)')
    if opt.get('prof'):
        A('s_memrealtime s[98:99]')
    bits(A, vWc, [(5, 1, 11), (5, 1, 7), (4, 1, 9), (4, 1, 5), (3, 1, 10), (3, 1, 6), (2, 1, 7), (0, 2, 3)], vT0, 's%d' % sCc)
    bits(A, vWd, [(5, 1, 10), (5, 1, 8), (4, 1, 8), (4, 1, 5), (3, 1, 9), (3, 1, 7), (2, 1, 6), (0, 2, 3)], vT0, 's%d' % sCc)
    def w1_round(t, extra=0):
        if t == 2:
            mem0_loads()
            init_load(A, vT0, vT1)
        if t < 3:
            w1q(t + 1)
            walk(t + 1)
        A('s_waitcnt vmcnt(%d)' % ((12, 12, 17, 4 + extra)[t]))
        for i in range(8):
            A('ds_write_b128 v%d, %s offset:%d' % (vWb, a(W1(t, 0, 0) + 4 * i, 4), i * 1088))
        for m in range(2):
            A('s_waitcnt lgkmcnt(4)')
            for tt in range(2):
                for pp in range(4):
                    A('ds_read_b64_tr_b16 %s, v%d offset:%d' % (a(W1(t, m, tt) + 2 * pp, 2), vWc, 4352 * (pp >> 1) + 256 * (pp & 1) + m * 64 + tt * 32))
        if t < 3:
            w1v(t + 1)
            walk(t + 4)
        A('s_waitcnt vmcnt(%d) lgkmcnt(0)' % (12 if t < 3 else extra))
        for i in range(4):
            A('ds_write_b128 v%d, %s offset:%d' % (vWf, a(W1(t, 2, 0) + 4 * i, 4), 9216 + i * 1280))
        for tt in range(2):
            for pp in range(4):
                A('ds_read_b64_tr_b16 %s, v%d offset:%d' % (a(W1(t, 2, tt) + 2 * pp, 2), vWd, 9216 + 2560 * (pp >> 1) + 128 * (pp & 1) + tt * 32))
        A('s_waitcnt lgkmcnt(0)')
    for t in range(3):
        w1_round(t)

    def vox(fill=None):
        fill = fill or {}
        k = 0
        for n in range(4):
            for j in range(4):
                for tt in range(2):
                    acc = v(vT + (n * 2 + tt) * 4, 4)
                    if opt.get('xnovox') and fill:
                        A('s_nop 3')
                    else:
                        A('v_mfma_f32_16x16x32_bf16 %s, %s, %s, %s' % (acc, v(vVx + (tt * 4 + j) * 4, 4), a(WO(n, j), 4), acc if j else '0'))
                    for o in fill.get(k, []):
                        A(o)
                    k += 1
                    if n > 0 and j in (1, 2):
                        jj = 2 * (j - 1) + tt
                        b = vT + (n - 1) * 8 + 2 * jj
                        A('v_cvt_pk_bf16_f32 v%d, v%d, v%d' % (vVOx + (n - 1) * 4 + jj, b, b + 1))

    def vox_tail():
        return ['v_cvt_pk_bf16_f32 v%d, v%d, v%d' % (vVOx + 12 + jj, vT + 24 + 2 * jj, vT + 25 + 2 * jj) for jj in range(4)]

    def paced(ops, every=4):
        for i, o in enumerate(ops):
            A(o)
            if i % every == every - 1 and i != len(ops) - 1:
                A('s_nop 0')

    def zeros(base, n, val='0'):
        return ['v_mov_b32 v%d, %s' % (base + i, val) for i in range(n)]

    cap_vm(A, cap0)
    wait_init(A, vT0, vT1, sA, sB, 2)
    if opt.get('rt', 1):
        A('s_lshl_b32 s%d, s%d, 2' % (sA, sR))
        A('s_add_u32 s%d, s%d, s%d' % (sA, sA, sW))
        A('s_lshl_b32 s%d, s%d, 9' % (sA, sA))
        A('s_add_u32 s%d, s%d, 0x%x' % (sB, sA, QKVR - MEMR - 512))
        A('v_cmp_gt_u32 vcc, 4, v0')
        A('v_mov_b32 v%d, s%d' % (vT0, sB))
        A('v_cndmask_b32 v%d, v%d, 0, vcc' % (vT0, vT0))
        A('v_min_u32 v%d, 11, v0' % vT1)
        A('v_lshl_add_u32 v%d, v%d, 7, v%d' % (vT1, vT1, vT0))
        A('s_add_u32 s%d, s%d, 0x%x' % (sA, sA, MEMR))
        A('buffer_load_dword v252, v%d, %s, s%d offen sc1' % (vT1, S4(WS), sA))
    if opt.get('dyn'):
        A('s_lshl_b32 s%d, s%d, 2' % (sA, sX))
        A('v_mov_b32 v%d, 0x%x' % (vT1, PROF + 6 * MB))
        A('buffer_load_dword v%d, v%d, %s, s%d offen sc1' % (vT0, vT1, S4(WS), sA))
        A('s_waitcnt vmcnt(0)')
        A('v_readfirstlane_b32 s%d, v%d' % (sGp, vT0))
    bits(A, 253, [(0, 3, 7), (3, 3, 28)], vT0)
    A('s_lshl_b32 s%d, s%d, 2' % (sA, sG))
    A('s_add_u32 s%d, s%d, s%d' % (sA, sA, sW))
    A('s_lshl_b32 s%d, s%d, 8' % (sCc, sA))
    A('s_add_u32 s%d, s%d, 0x%x' % (sCc, sCc, F_KV))
    near(A, sCc, sB)
    bits(A, vFa, [(0, 1, 7)], vT0, 's%d' % sCc)
    A('s_mul_i32 s%d, s%d, 0x%x' % (sKx, sA, ROW))
    near(A, sKx, sB)
    A('s_add_u32 s%d, s%d, 0x%x' % (sVx, sKx, VX))
    A('s_add_u32 s%d, s%d, 0x%x' % (sKx, sKx, KX))
    A('s_add_u32 s%d, s%d, 4096' % (sKx2, sKx))
    A('s_add_u32 s%d, s%d, 4096' % (sVx2, sVx))
    A('s_and_b32 s%d, s%d, 7' % (sB, sC))
    A('s_lshl_b32 s%d, s%d, 10' % (sB, sB))
    A('s_cmp_lt_u32 s%d, 8' % sC)
    A('s_cselect_b32 s%d, s%d, s%d' % (sPf, sKx, sVx))
    A('s_add_u32 s%d, s%d, s%d' % (sPf, sPf, sB))
    A('s_add_u32 s%d, s%d, 0x%x' % (sPf, sPf, SEG))
    A('s_lshl_b32 s%d, s%d, 1' % (sPartR, sC))
    A('s_lshr_b32 s%d, s%d, 1' % (sB, sW))
    A('s_add_u32 s%d, s%d, s%d' % (sPartR, sPartR, sB))
    A('s_mul_i32 s%d, s%d, 0x%x' % (sPartR, sPartR, ROW))
    A('s_and_b32 s%d, s%d, 1' % (sB, sW))
    A('s_lshl_b32 s%d, s%d, 12' % (sB, sB))
    A('s_add_u32 s%d, s%d, s%d' % (sPartR, sPartR, sB))
    A('s_add_u32 s%d, s%d, 0x%x' % (sPartR, sPartR, PART))
    near(A, sPartR, sB)
    A('s_lshl_b32 s%d, s%d, 8' % (sB, sG))
    A('s_add_u32 s%d, s%d, s%d' % (sPartA, sPartR, sB))
    A('s_and_b32 s%d, s%d, %d' % (sB, sB, 1024 if opt.get('gx', 1) else 0))
    A('s_add_u32 s%d, s%d, s%d' % (sPartR, sPartR, sB))
    A('s_xor_b32 s%d, s%d, 1024' % (sPartR2, sPartR))
    A('s_lshl_b32 s%d, s%d, 1' % (sA, sG))
    A('s_lshr_b32 s%d, s%d, 3' % (sB, sC))
    A('s_add_u32 s%d, s%d, s%d' % (sA, sA, sB))
    A('s_mul_i32 s%d, s%d, 0x%x' % (sKvm, sA, ROW))
    near(A, sKvm, sB)
    A('s_bfe_u32 s%d, s%d, 0x10002' % (sB, sC))
    A('s_lshl_b32 s%d, s%d, 12' % (sB, sB))
    A('s_add_u32 s%d, s%d, s%d' % (sKvm, sKvm, sB))
    A('s_add_u32 s%d, s%d, 0x%x' % (sKvm, sKvm, KVM - 2048))

    def kv_ops(lab, ahead=2):
        return ['v_readlane_b32 s%d, v%d, 0' % (sCc, vFv), 'v_readlane_b32 s%d, v%d, 1' % (sB, vFv),
                's_add_u32 s%d, s%d, %d' % (sA, sStep, ahead), 's_min_u32 s%d, s%d, 64' % (sA, sA),
                's_min_i32 s%d, s%d, s%d' % (sB, sB, sCc), 's_max_i32 s%d, s%d, s%d' % (sKn, sKn, sB),
                's_cmp_lt_i32 s%d, s%d' % (sKn, sA), 's_cbranch_scc1 %s' % lab]

    def kv_check(lab, ahead=2):
        for o in kv_ops(lab, ahead):
            A(o)

    ld_flags = 'buffer_load_dword v%d, v%d, %s, 0 offen sc1' % (vFv, vFa, S4(WS))
    A('s_mov_b32 s%d, 0' % sKn)
    rmask = sum(1 << int(x) for x in str(opt.get('rf', '0.1.2.3.5.7.9.12.15.19.24.31.39.47')).split('.'))
    A('s_mov_b32 s%d, 0x%x' % (sLo, rmask & 0xffffffff))
    A('s_mov_b32 s%d, 0x%x' % (sLo + 1, rmask >> 32))
    A('s_mov_b32 s%d, 0' % sFo)
    A('s_mov_b32 s%d, s%d' % (sSc2, sScale))
    A(ld_flags)
    paced(['v_min_u32 v%d, -2, v%d' % (vM + i, vM + i) for i in range(16)])
    A('s_mov_b32 s%d, 0' % sD)
    paced(zeros(vA, 24) + zeros(MM, 4) + (zeros(vQ, 4, '-1') + zeros(vQ + 8, 4, '-1') + zeros(vKm, 8, '-1') if opt.get('h2m') else []))
    w1_round(3, 2)
    assert opt.get('rt', 1)

    def first_kv():
        ld = lambda dst, so, off: 'buffer_load_dwordx4 %s, v%d, %s, s%d offen offset:%d sc1' % (v(dst, 4), vL16, S4(WS), so, off)
        A('s_sub_u32 s%d, s%d, 0x%x' % (sA, sPf, SEG))
        A('buffer_load_dword v252, v253, %s, s%d offen sc1' % (S4(WS), sA))
        for (b_, p_) in ((vVx, (sVx, sVx2)), (vKx, (sKx, sKx2))):
            for f in range(8):
                A(ld(b_ + 4 * f, p_[f >> 2], (f & 3) * 1024))
    A('s_waitcnt vmcnt(0)')
    kv_check('L_c_nokv', 1)
    first_kv()
    A('s_branch L_c_kvok')
    A.label('L_c_nokv')
    A('s_add_u32 s%d, s%d, 0x%x' % (sKx, sKx, OOB))
    A('s_add_u32 s%d, s%d, 0x%x' % (sKx2, sKx2, OOB))
    A('s_add_u32 s%d, s%d, 0x%x' % (sVx, sVx, OOB))
    A.label('L_c_kvok')
    tstamp(A, opt, 1, vT2, vT3, sA)
    tstamp(A, opt, 2, vT0, vT1, sA)
    if opt.get('diag') or opt.get('hold'):
        A('s_memrealtime s[96:97]')
        A('s_memtime s[98:99]')
        A('s_waitcnt lgkmcnt(0)')

    PT = 96
    stamps = []

    names = opt.get('marks', 'm0ok,st1end,qkvst,q0ok,Send,st2end,partst').split(',') + ['gath', 'gathok']
    assert len(names) == 9

    def stamp(nm):
        if prof and nm in names:
            i = names.index(nm)
            A('s_memtime s[%d:%d]' % (12 + 2 * i, 13 + 2 * i))

    if lite:
        vTr = V('trace')
        A('v_mov_b32 v%d, 0' % vTr)
        A('s_memtime s[28:29]')
        A('s_memtime s[96:97]')
        A('s_memrealtime s[98:99]')
        A('s_waitcnt lgkmcnt(0)')
        for n_ in (sN1, sN2, sN3):
            A('s_mov_b32 s%d, 0' % n_)

    if opt.get('xnobulk'):
        for n_ in (sKx, sKx2, sVx, sVx2)[:opt['xnobulk']]:
            A('s_mov_b32 s%d, 0x%x' % (n_, OOB))
    loc = '@LOC@'

    def ldx4(dst, so, off):
        mod = 'sc1'
        if so in (sKx, sKx2, sVx, sVx2):
            mod = ('sc1', '', 'nt', 'sc0 sc1')[opt.get('blm', 0)]
        elif so in (sMemR, sQkvR, sQkvR2):
            mod = ('sc1', 'sc0 sc1', 'nt')[opt.get('hlm', 0)]
        return 'buffer_load_dwordx4 %s, v%d, %s, s%d offen offset:%d %s' % (v(dst, 4), vL16, S4(WS), so, off, mod)

    def ld_mem(t):
        A(ldx4(vM + 4 * t, sMemR, t * 1024))

    def chk4(b, tmp):
        return ['v_max3_u32 v%d, v%d, v%d, v%d' % (tmp, b, b + 1, b + 2), 'v_max_u32 v%d, v%d, v%d' % (tmp, tmp, b + 3)]

    def chk4more(b, tmp):
        return ['v_max3_u32 v%d, v%d, v%d, v%d' % (tmp, tmp, b, b + 1), 'v_max3_u32 v%d, v%d, v%d, v%d' % (tmp, tmp, b + 2, b + 3)]

    def cmpv(tmp):
        return 'v_cmp_eq_u32 vcc, -1, v%d' % tmp

    rx = opt.get('rx', 1)

    def wchk(bases, tmp):
        if not rx:
            ops = chk4(bases[0], tmp)
            for b in bases[1:]:
                ops += chk4more(b, tmp)
            return ops, cmpv(tmp)
        if len(bases) == 1:
            return [], cmpv(bases[0] + 3)
        return ['v_max_u32 v%d, v%d, v%d' % (tmp, bases[0] + 3, bases[1] + 3)], cmpv(tmp)

    def guard(r_):
        if not opt.get('nomin', 1):
            A('v_min_u32 v%d, -2, v%d' % (r_, r_))

    def smf1(t, m, tt):
        A('v_smfmac_f32_16x16x64_bf16 %s, %s, %s, v%d' % (v(vA + 8 * m + 4 * tt, 4), v(vM + 4 * t, 4), a(W1(t, m, tt), 8), vIdx))

    def add2(d, x, y):
        if opt.get('pk', 1):
            A('v_pk_add_f32 %s, %s, %s' % (v(d, 2), v(x, 2), v(y, 2)))
        else:
            A('v_add_f32 v%d, v%d, v%d' % (d, x, y))
            A('v_add_f32 v%d, v%d, v%d' % (d + 1, x + 1, y + 1))

    def fold(m, vs=None, mid=3, part=3):
        b = vA + 8 * m
        f = vF + 4 * m
        n_ = 0
        for tt in range(2 if part & 1 else 0):
            for j in range(2):
                A('v_permlane32_swap_b32 v%d, v%d' % (b + 4 * tt + j, b + 4 * tt + j + 2))
                if vs and n_ < mid:
                    smf1(*vs.pop(0))
                n_ += 1
        for tt in range(2 if part & 1 else 0):
            add2(f + 2 * tt, b + 4 * tt, b + 4 * tt + 2)
        if vs:
            smf1(*vs.pop(0))
        if not part & 2:
            return
        A('ds_write2st64_b64 v%d, %s, %s offset0:%d offset1:%d' % (vW1q if m < 2 else vW1k, v(f, 2), v(f + 2, 2), 2 * m, 2 * m + 1))

    def rd1(ad, r_=None):
        r_ = vR if r_ is None else r_
        for w in range(4):
            A('ds_read2st64_b32 %s, v%d offset0:%d offset1:%d' % (v(r_ + 2 * w, 2), ad, 12 * w, 12 * w + 2))

    def red1(dst, extra='', r_=None, more=0):
        r_ = vR if r_ is None else r_
        A('s_waitcnt lgkmcnt(%d)' % (0 if prof else 2 + more))
        A(extra)
        add2(r_, r_, r_ + 2)
        A('s_waitcnt lgkmcnt(%d)' % (0 if prof else more))
        add2(r_ + 4, r_ + 4, r_ + 6)
        add2(r_, r_, r_ + 4)
        A('v_cvt_pk_bf16_f32 v%d, v%d, v%d' % (dst, r_, r_ + 1))
        guard(dst)

    def st4(src, ad, so, mod):
        return 'buffer_store_dword v%d, v%d, %s, s%d offen%s' % (src, ad, S4(WS), so, mod)

    ld_q = [ldx4(vQ, sQkvR, 0), ldx4(vQ + 8, sQkvR, 1024)]
    ld_k = [ldx4(vKm, sQkvR, 2048), ldx4(vKm + 4, sQkvR, 3072)]
    ld_v = [ldx4(vVm, sQkvR2, 0), ldx4(vVm + 4, sQkvR2, 1024)]
    st_v = st4(vVv, vVst, sQkvW, loc)
    ld_part = [ldx4(vPt, sPartR, 0), ldx4(vPt + 4, sPartR2, 0)]
    red3 = ['v_mfma_f32_16x16x32_bf16 %s, %s, %s, %s' % (v(vP, 4), v(vSel, 4), v(vPt + 4 * i, 4), v(vP, 4) if i else '0') for i in range(2)]
    vMa = vL4
    if shr_:
        ld_part = ['buffer_load_dwordx2 %s, v%d, %s, s%d offen sc1' % (v(vPt + 2 + 4 * i, 2), vG8, S4(WS), (sPartR, sPartR2)[i]) for i in range(2)]
        red3 = ['v_mfma_f32_16x16x16_bf16 %s, %s, %s, %s' % (v(vP, 4), v(vSel, 2), v(vPt + 2 + 4 * i, 2), v(vP, 4) if i else '0') for i in range(2)]
        vMa = vM4
        assert rx and opt.get('lim3', -1) < 0
    X0, X1 = vS, vS + 4
    cnt = lambda n_, k_=1: A('s_add_u32 s%d, s%d, %d' % (n_, n_, k_)) if lite else None

    hooks = []
    dry = []

    def hook(align=False):
        if not opt.get('iw', 1):
            return
        if align:
            A('.p2align 6')
        hooks.append(len(hooks))
        A.label('L_hk%d' % hooks[-1])
        A('s_branch @HK%d@' % hooks[-1])

    def nxt(Sm, t):
        for d in range(1, 5):
            if Sm >> ((t + d) & 3) & 1:
                return (t + d) & 3

    def block(Sm, t, wait=None):
        rest = Sm & ~(1 << t)
        n = nxt(rest, t) if rest else None
        if rest:
            ops, cm = wchk([vM + 4 * n], vT0) if wait is not None else (chk4(vM + 4 * n, vT0), cmpv(vT0))
        smf1(t, 0, 0)
        if rest and ops:
            if wait is not None:
                A('s_waitcnt vmcnt(%d)' % wait)
            for o in ops:
                A(o)
        smf1(t, 0, 1)
        if rest:
            if not ops:
                A('s_waitcnt vmcnt(%d)' % wait)
            A(cm)
        smf1(t, 1, 0)
        smf1(t, 1, 1)
        return rest, n

    fc = opt.get('fc', 5)

    def fast_chains():
        def flab(Sm, t, again=False):
            n_ = bin(Sm).count('1')
            if fc < 4 or n_ < 2 or (again and n_ < (3 if fc == 4 else 2 if fc == 5 else 4)):
                return 'L_F%d_%d' % (Sm, t)
            return 'L_G%d_%d' % (Sm, t)

        def chain_(lab, Sm, que, fail2):
            if opt.get('iw', 1) == 2:
                A('.p2align 6')
            else:
                hook(True)
            A.label(lab)
            if lab == 'L_G15_0' and opt.get('spec', 1):
                A.label('L_Z')
            ld_mem(que[-1])
            if lab == 'L_G15_0' and opt.get('spec', 1):
                for i in range(0, 8, 2):
                    A('v_mov_b64 %s, 0' % v(vA + i, 2))
            cnt(sN1)
            if fc >= 4 and que[-1] == max(que):
                A('s_sub_u32 s%d, s%d, 1' % (sTO, sTO))
                A('s_cbranch_scc1 L_end0')
            dry.append(len(dry))
            A.label('L_dr%d' % dry[-1])
            A('s_waitcnt vmcnt(%d)' % (len(que) - 1))
            ops, cm = wchk([vM + 4 * que[0]], vT0)
            for o in ops + [cm]:
                A(o)
            A('s_cbranch_vccnz %s' % (fail2 or 'L_F%d_%d' % (Sm, que[0])))
            if Sm == 15:
                stamp('m0ok')
            for i, t in enumerate(que):
                stamp('B%d' % (4 - len(que) + i))
                last = i + 2 == len(que)
                if last and len(que) < 4:
                    block(1 << t, t)
                    Sm &= ~(1 << t)
                    n = que[-1]
                    dp = opt.get('dp', 0) >= len(que)
                    if dp:
                        ld_mem(n)
                    A('s_waitcnt vmcnt(%d)' % dp)
                    ops, cm = wchk([vM + 4 * n], vT0) if not dp else (chk4(vM + 4 * n, vT0), cmpv(vT0))
                    for o in ops + [cm]:
                        A(o)
                else:
                    Sm, n = block(Sm, t, len(que) - 2 - i)
                if Sm:
                    assert n == que[i + 1]
                    A('s_cbranch_vccnz ' + flab(Sm, n))
            if opt.get('iw', 1) >= 2:
                A('s_cbranch_execnz L_T1')
                if opt.get('iw', 1) == 3:
                    A('s_call_b64 s[68:69], L_drp')
                A('s_branch @DR%d@' % dry[-1])
            else:
                A('s_branch L_T1')
                if opt.get('he', 1):
                    hook()
        if fc >= 4:
            for Sm in sorted(range(1, 16), key=lambda x: -bin(x).count('1')):
                ts = [t for t in range(4) if Sm >> t & 1]
                if len(ts) < 2:
                    continue
                for t in ts:
                    que = [u for u in ((t + d) & 3 for d in range(1, 5)) if Sm >> u & 1]
                    chain_('L_G%d_%d' % (Sm, t), Sm, que, flab(Sm, que[0], True))
            return
        chain_('L_G15_0', 15, [1, 2, 3, 0], 'L_G15_1' if fc > 1 else None)
        if fc > 1:
            chain_('L_G15_1', 15, [2, 3, 0, 1], 'L_G15_2' if fc > 2 else None)
        if fc > 2:
            chain_('L_G15_2', 15, [3, 0, 1, 2], None)
        chain_('L_G14_1', 14, [2, 3, 1], None)
        chain_('L_G12_2', 12, [3, 2], None)

    def first_pass():
        A('s_waitcnt vmcnt(3)')
        if opt.get('spec', 1):
            assert rx and fc
            A(cmpv(vM + 3))
            smf1(0, 0, 0); smf1(0, 0, 1)
            A('s_cbranch_vccnz L_Z')
            stamp('m0ok')
            A('s_waitcnt vmcnt(2)')
            A(cmpv(vM + 7))
            smf1(0, 1, 0); smf1(0, 1, 1)
            A('s_cbranch_vccnz L_G14_1')
            Sm = 14
            for t in range(1, 4):
                stamp('B%d' % t)
                Sm, n = block(Sm, t, 2 - t)
                if Sm:
                    A('s_cbranch_vccnz L_%s%d_%d' % ('G' if n < 3 else 'F', Sm, n))
            return
        ops, cm = wchk([vM], vT0)
        for o in ops:
            A(o)
        A(cm)
        A('s_cbranch_vccnz L_%s15_0' % ('G' if fc else 'F'))
        stamp('m0ok')
        Sm = 15
        for t in range(4):
            stamp('B%d' % t)
            Sm, n = block(Sm, t, 2 - t)
            if Sm:
                A('s_cbranch_vccnz L_%s%d_%d' % ('G' if fc and n < 3 else 'F', Sm, n))

    def poll_nodes_ooo():
        for Sm in sorted(range(1, 16), key=lambda x: -bin(x).count('1')):
            ts = [t for t in range(4) if Sm >> t & 1]
            if fc == 5 and len(ts) > 1:
                continue
            hook(True)
            for t in ts:
                A.label('L_P%d_%d' % (Sm, t))
                A('s_waitcnt vmcnt(3)')
                for o in chk4(vM + 4 * t, vT0):
                    A(o)
                A(cmpv(vT0))
                A('s_cbranch_vccz L_V%d_%d' % (Sm, t))
                A.label('L_F%d_%d' % (Sm, t))
                ld_mem(t)
                cnt(sN1)
            timeout_stub(A, 'L_P%d_%d' % (Sm, ts[0]))
            if len(ts) > 1:
                hook()
            for t in ts:
                hook(True)
                A.label('L_V%d_%d' % (Sm, t))
                if Sm == 15:
                    stamp('m0ok')
                stamp('B%d' % (4 - len(ts)))
                rest, n = block(Sm, t)
                if rest:
                    A('s_cbranch_vccz L_V%d_%d' % (rest, n))
                    A('s_branch L_F%d_%d' % (rest, n))
                else:
                    A('s_branch L_T1')

    def poll_nodes():
        if opt.get('ooo', 1):
            return poll_nodes_ooo()
        for k in range(4):
            full = 15 & ~((1 << k) - 1)
            for Sm in sorted(range(1, 16), key=lambda x: -bin(x).count('1')):
                if Sm & ~full:
                    continue
                ts = [t for t in range(4) if Sm >> t & 1]
                for t in ts:
                    rest = Sm & ~(1 << t)
                    A.label('L_P%d_%d_%d' % (k, Sm, t))
                    A('s_waitcnt vmcnt(%d)' % opt.get('lim', 3))
                    for o in chk4(vM + 4 * t, vT0):
                        A(o)
                    A(cmpv(vT0))
                    A('s_cbranch_vccz %s' % ('L_P%d_%d_%d' % (k, rest, nxt(rest, t)) if rest else 'L_G%d' % k))
                    if Sm == full and t == k:
                        A.label('L_F%d_%d' % (Sm, t))
                    ld_mem(t)
                    cnt(sN1)
                timeout_stub(A, 'L_P%d_%d_%d' % (k, Sm, ts[0]))
        for k in range(4):
            A.label('L_G%d' % k)
            if k == 0:
                stamp('m0ok')
            stamp('B%d' % k)
            block(1 << k, k)
        A('s_branch L_T1')

    A('s_cmp_lt_u32 s%d, %d' % (sPure, NPURE))
    for t in range(4):
        block(1 << t, t)
    A('s_cbranch_scc1 L_T1_i')
    A('s_branch L_T1')
    loop_start = len(A.lines)
    A('.p2align 6')
    for i in range(opt.get('al', 0)):
        A('s_nop 0')
    A.label('L_loop')
    first_pass()
    A.label('L_T1')
    stamp('T1')
    kxl = [ldx4(vKx + 4 * f, (sKx, sKx2)[f >> 2], (f & 3) * 1024) for f in range(8)]
    vxl = [ldx4(vVx + 4 * f, (sVx, sVx2)[f >> 2], (f & 3) * 1024) for f in range(8)]
    na, nc, nd, ne = opt.get('na', 3), opt.get('nc', 4), opt.get('nd', 1), opt.get('nq', 0)
    kb_ = max(8 - nc - nd - na, 0)
    ka = kxl[nc + nd + kb_:]
    nva = na - len(ka)
    ka = ka + vxl[:nva]
    ke = vxl[nva:nva + ne]
    bulk = vxl[nva + ne:] + kxl[nc + nd:nc + nd + kb_]
    nk = lambda: A(ka.pop(0)) if ka else None
    qk = ld_q + ld_k
    order = []
    zq = []
    if opt.get('split', 1):
        vf = str(opt.get('vf', '0')).zfill(4)
        vs = [(t, 2, tt) for t in range(4) for tt in range(2)]
        for i in range(opt.get('na0', 0)):
            nk()
        fold(0, vs if int(vf[0]) else None, int(vf[1]))
        stamp('f0')
        for i in range(opt.get('na1', 0)):
            nk()
        fold(1, vs if int(vf[0]) else None, int(vf[2]))
        stamp('f1')
        for i in range(int(vf[3]) if int(vf[0]) else 2 * opt.get('nv', 2)):
            smf1(*vs.pop(0))
            if i & 1 == 0:
                nk()
        A('s_waitcnt lgkmcnt(0)')
        stamp('st1end')
        A('s_barrier')
        stamp('bar1')
        rd1(vR1)
        i = 0
        while vs:
            smf1(*vs.pop(0))
            if i & 1 == 0:
                nk()
            i += 1
        while ka:
            nk()
        if int(vf[0]) == 2:
            fold(2, part=1)
        red1(vQK)
        A(st4(vQK, vQst, sQkvW, loc))
        stamp('qkvst')
        slots = [int(ch) for ch in str(opt.get('h2s', '2244')).zfill(4)]

        def slot(i):
            for n_, sl_ in enumerate(slots):
                if sl_ == i:
                    A(qk[n_]); order.append(qk[n_])
        for o in ke[:1]:
            A(o)
        fold(2, part=2 if int(vf[0]) == 2 else 3)
        for o in ke[1:]:
            A(o)
        slot(0)
        A('s_add_u32 s%d, s%d, 0x%x' % (sKx, sKx, SEG))
        A('s_add_u32 s%d, s%d, 0x%x' % (sKx2, sKx2, SEG))
        A('s_cmp_eq_u32 s%d, s%d' % (sStep, sD))
        A('s_cbranch_scc1 L_sp')
        A.label('L_spr')
        A('s_waitcnt lgkmcnt(0)')
        A('s_barrier')
        stamp('bar1b')
        slot(1)
        rd1(vR1v)
        for i in range(opt.get('h2x', 0)):
            A('s_nop 3')
        slot(2)
        if 3 in slots:
            A('s_waitcnt lgkmcnt(%d)' % (0 if prof else 3))
        slot(3)
        red1(vVv)
        A(st_v); order.append(st_v)
        stamp('vst')
        slot(4)
    else:
        vs = [(t, 2, tt) for t in range(4) for tt in range(2)]
        fold(0, vs)
        stamp('f0')
        fold(1, vs)
        stamp('f1')
        fold(2)
        while ka:
            nk()
        A('s_add_u32 s%d, s%d, 0x%x' % (sKx, sKx, SEG))
        A('s_add_u32 s%d, s%d, 0x%x' % (sKx2, sKx2, SEG))
        A('s_waitcnt lgkmcnt(0)')
        stamp('st1end')
        A('s_barrier')
        stamp('bar1')
        rd1(vR1)
        rd1(vR1v, vA)
        red1(vQK, '', vR, 4)
        A(st4(vQK, vQst, sQkvW, loc))
        stamp('qkvst')
        red1(vVv, '', vA)
        A(st_v)
        stamp('vst')
        A('s_cmp_eq_u32 s%d, s%d' % (sStep, sD))
        A('s_cbranch_scc1 L_sp')
        A.label('L_spr')
        zq = zeros(vT, 16) + zeros(MM, 4)
        fz = zq + ['s_nop 0'] * 60
        for i, n_ in enumerate([opt.get('h2d', 6)] + [opt.get('h2p', 10)] * 3):
            paced(fz[:n_]); fz = fz[n_:]
            A(qk[i]); order.append(qk[i])
        paced([o for o in fz if o.startswith('v_')])
    younger = lambda o: len(order) - 1 - order.index(o)
    A.label('L_h2')
    mx = lambda tt, j, first=False: A('v_mfma_f32_16x16x32_bf16 %s, %s, %s, %s' % (v(vS + 4 * tt, 4), v(vKx + (tt * 4 + j) * 4, 4), v(vQ + 4 * j, 4), '0' if first else v(vS + 4 * tt, 4)))
    ror = lambda r_: A('v_mov_b32_dpp v%d, v%d row_ror:8 row_mask:0xf bank_mask:0xf' % (r_ + 4, r_))
    smm = lambda u: A('v_smfmac_f32_16x16x64_bf16 %s, %s, %s, v%d' % (v(MM, 4), v(vKm + 4 * u, 4), v(vQ + 8 * u, 8), vIdx))
    qkr = [vQ, vQ + 8, vKm, vKm + 4]
    mxo = ['v_max3_f32 v%d, v%d, v%d, v%d' % (vT0, vBias, X0, X0 + 1), 'v_max3_f32 v%d, v%d, v%d, v%d' % (vT0, vT0, X0 + 2, X0 + 3),
           'v_max3_f32 v%d, v%d, v%d, v%d' % (vT0, vT0, X1, X1 + 1), 'v_max3_f32 v%d, v%d, v%d, v%d' % (vT0, vT0, X1 + 2, X1 + 3)]
    swm = ['v_permlane32_swap_b32 v%d, v%d' % (MM, MM + 2), 'v_permlane32_swap_b32 v%d, v%d' % (MM + 1, MM + 3)]

    def ck(i):
        for o in chk4(qkr[i], vT3):
            A(o)

    def s_end():
        add2(MM, MM, MM + 2)
        A('v_max3_f32 v%d, v%d, v%d, v%d' % (vT0, vT0, MM, MM + 1))
        A('v_mov_b32 v%d, v%d' % (vT1, vT0))
    h2m = opt.get('h2m', 0)
    if h2m == 2:
        stamp('q0w')
        A('s_waitcnt vmcnt(%d)' % younger(qk[0]))
        stamp('q0l')
        mx(0, 0, True); ck(0)
        mx(1, 0, True); A(cmpv(vT3)); ror(vQ); ror(vQ + 1); ror(vQ + 2); ror(vQ + 3)
        A('s_cbranch_vccnz L_FA15_0')
        mx(0, 1)
        A('s_waitcnt vmcnt(%d)' % younger(qk[1]))
        stamp('q1l')
        ck(1)
        mx(1, 1); A(cmpv(vT3)); ror(vQ + 8)
        mx(0, 2); ror(vQ + 9); ror(vQ + 10)
        mx(1, 2); ror(vQ + 11)
        A('s_cbranch_vccnz L_FA14_1')
        stamp('q0ok')
        mx(0, 3); A(ld_v[0])
        mx(1, 3); A(ld_v[1])
        order += ld_v
        stamp('k0w')
        A('s_waitcnt vmcnt(%d)' % younger(qk[2]))
        smm(0)
        if opt.get('k0c', 1):
            ck(2); A(cmpv(vT3)); A(mxo[0]); A(mxo[1]); A(mxo[2]); A(mxo[3])
            A('s_cbranch_vccnz L_FK12_2')
            stamp('k1w')
            A('s_waitcnt vmcnt(%d)' % younger(qk[3]))
            stamp('k1l')
            smm(1)
            ck(3); A(cmpv(vT3))
            A(swm[0]); A(swm[1])
            s_end()
            A('s_cbranch_vccnz L_FK8_3')
        else:
            stamp('k1w')
            A('s_waitcnt vmcnt(%d)' % younger(qk[3]))
            stamp('k1l')
            smm(1)
            for o in chk4(vKm, vT3) + chk4more(vKm + 4, vT3):
                A(o)
            A(cmpv(vT3))
            A(mxo[0]); A(swm[0]); A(swm[1]); A(mxo[1]); A(mxo[2]); A(mxo[3])
            s_end()
            A('s_cbranch_vccnz L_PK12_2')
    else:
        stamp('q0w')
        A('s_waitcnt vmcnt(%d)' % younger(qk[0]))
        stamp('q0l')
        mx(0, 0, True); ror(vQ); ror(vQ + 1)
        mx(1, 0, True); ror(vQ + 2); ror(vQ + 3)
        A('s_waitcnt vmcnt(%d)' % younger(qk[1]))
        stamp('q1l')
        ops, cm = wchk([vQ, vQ + 8], vT3)
        if rx:
            mx(0, 2); A(ops[0]); A(cm)
            mx(1, 2); ror(vQ + 8); ror(vQ + 9)
            mx(0, 1); ror(vQ + 10); ror(vQ + 11)
            mx(1, 1)
        else:
            mx(0, 2); A(ops[0]); A(ops[1])
            mx(1, 2); A(ops[2]); A(ops[3])
            mx(0, 1); A(cm); ror(vQ + 8); ror(vQ + 9)
            mx(1, 1); ror(vQ + 10); ror(vQ + 11)
        A('s_cbranch_vccnz %s' % ('L_r2' if h2m == 0 else 'L_PA15_0'))
        stamp('q0ok')
        order_q = list(order)
        vpos = opt.get('vpos', 1)
        mx(0, 3)
        if vpos == 0:
            A(ld_v[0])
        mx(1, 3)
        if vpos == 0:
            A(ld_v[1])
            order += ld_v
        A.label('L_h2k')
        stamp('k0w')
        A('s_waitcnt vmcnt(%d)' % younger(qk[2]))
        smm(0)
        stamp('k1w')
        A('s_waitcnt vmcnt(%d)' % younger(qk[3]))
        stamp('k1l')
        smm(1)
        if vpos == 1:
            A(ld_v[0]); A(ld_v[1])
        ops, cm = wchk([vKm, vKm + 4], vT3)
        for o in ops + [cm] + (mxo + swm if rx else [mxo[0]] + swm + mxo[1:]):
            A(o)
        order_k = order[order.index(qk[2]):]
        s_end()
        A('s_cbranch_vccnz %s' % ('L_r2k' if h2m == 0 else 'L_PK12_2'))
    A.label('L_sj')
    stamp('kok')
    if opt.get('xdrop'):
        bulk = bulk[:len(bulk) - opt['xdrop']]
    nbulk = len(bulk)
    nb = lambda: A(bulk.pop(0)) if bulk else None
    early = opt.get('be', 2)
    if vpos == 2:
        A(ld_v[0])
    for i in range(min(early, 1) if vpos < 2 else 0):
        nb()
    A('v_permlane32_swap_b32 v%d, v%d' % (vT0, vT1))
    A('v_max_f32 v%d, v%d, v%d' % (vT0, vT0, vT1))
    A('v_mov_b32 v%d, v%d' % (vT1, vT0))
    if vpos == 2:
        A(ld_v[1])
    for i in range(max(early - 1, 0)):
        nb()
    A('v_permlane16_swap_b32 v%d, v%d' % (vT0, vT1))
    A('v_max_f32 v%d, v%d, v%d' % (vT0, vT0, vT1))
    A('v_mul_f32 v%d, s%d, v%d' % (vT0, sScale, vT0))
    fma = lambda r_: A('v_fma_f32 v%d, v%d, s%d, -v%d' % (r_, r_, sScale, vT0))
    ex = lambda r_: A('v_exp_f32 v%d, v%d' % (r_, r_))
    cvt = lambda d, x: A('v_cvt_pk_bf16_f32 v%d, v%d, v%d' % (d, x, x + 1))
    shr = lambda d, x: A('v_mov_b32_dpp v%d, v%d row_shr:8 row_mask:0xf bank_mask:0xc' % (d, x))
    def fma2(r_):
        if opt.get('pkf', 0):
            A('v_pk_fma_f32 %s, %s, %s, %s op_sel_hi:[1,0,0] neg_lo:[0,0,1] neg_hi:[0,0,1]' % (v(r_, 2), v(r_, 2), s(sSc2, 2), v(vT0, 2)))
        else:
            fma(r_); fma(r_ + 1)
    vom = lambda u, n: A('v_smfmac_f32_16x16x64_bf16 %s, %s, %s, v%d' % (v(vT + 4 * n, 4), v(vVm + 4 * u, 4), a(WO(n, 2 * u), 8), vIdx))
    m32 = lambda d, x, p, c_: A('v_mfma_f32_16x16x32_bf16 %s, %s, %s, %s' % (v(d, 4), v(x, 4), v(p, 4), v(d, 4) if c_ else '0'))
    m16 = lambda d, x, p: A('v_mfma_f32_16x16x16_bf16 %s, %s, %s, %s' % (v(d, 4), v(x, 2), v(p, 2), v(d, 4)))
    cvm = lambda k: cvt(vVOm + k, vT + 2 * k)
    s2 = opt.get('s2', 2)
    if s2:
        assert vPms == vPm + 2 and vPm % 4 == 0
        er = [MM, MM + 1] + [vS + i for i in range(8)]
        fma2(MM)
        for i in range(4):
            fma2(vS + 2 * i)
        for r_ in er[:7]:
            ex(r_)

        def vcheck(between):
            stamp('vw')
            A('s_waitcnt vmcnt(%d)' % (nbulk - len(bulk)))
            stamp('vl')
            ops, cm = wchk([vVm, vVm + 4], vT3)
            for o in ops + [cm]:
                A(o)
            between()
            A('s_cbranch_vccnz L_r2v')
            A.label('L_h2v')
            stamp('Send')
        swp = lambda: A('v_permlane32_swap_b32 v%d, v%d' % (vPm, vPm + 1))
        if s2 == 1:
            vcheck(lambda: [ex(r_) for r_ in er[7:]])
            gaps = [lambda: cvt(vPm, MM), lambda: cvt(vPm + 1, MM), lambda: cvt(vP, vS), lambda: cvt(vP + 1, vS + 2),
                    lambda: cvt(vP + 2, vS + 4), lambda: cvt(vP + 3, vS + 6), swp, lambda: shr(vPs, vP)]
            for i in range(8):
                vom(i & 1, i >> 1)
                if i & 1:
                    nb()
                gaps[i]()
            stamp('vomend')
            m32(vLs, vOne, vP, 0); nb(); shr(vPs + 1, vP + 1); shr(vPs + 2, vP + 2)
            m16(vLs, vHalf, vPm); shr(vPs + 3, vP + 3); shr(vPms, vPm)
            m32(vO, vVOx, vP, 0); nb(); shr(vPms + 1, vPm + 1); cvm(0)
            m32(vO, vVOx + 4, vPs, 1); cvm(1); cvm(2); cvm(3)
            m32(vO + 4, vVOx + 8, vP, 0); nb(); cvm(4); cvm(5)
            stamp('m16')
            m32(vO, vVOm, vPm, 1); nb(); cvm(6); cvm(7)
            m32(vO + 4, vVOx + 12, vPs, 1); nb()
            A('v_rcp_f32 v%d, v%d' % (vT1, vLs))
            m32(vO + 4, vVOm + 4, vPm, 1)
        else:
            bs = str(opt.get('bs', '0101001')).zfill(7)
            for r_ in er[7:]:
                ex(r_)
            for i in range(int(bs[0])):
                nb()
            for i in range(4):
                cvt(vP + i, vS + 2 * i)
            cvt(vPm, MM); cvt(vPm + 1, MM)
            nbi = lambda i: nb() if int(bs[i]) else None
            m32(vLs, vOne, vP, 0); nbi(1); shr(vPs, vP); shr(vPs + 1, vP + 1)
            m32(vO, vVOx, vP, 0); nbi(2); shr(vPs + 2, vP + 2); shr(vPs + 3, vP + 3)
            m32(vO + 4, vVOx + 8, vP, 0); nbi(3); swp()
            m32(vO, vVOx + 4, vPs, 1)
            vcheck(lambda: [m32(vO + 4, vVOx + 12, vPs, 1), nbi(4), shr(vPms, vPm), shr(vPms + 1, vPm + 1), m16(vLs, vHalf, vPm)])
            gaps = {3: [0], 4: [1], 5: [2], 6: [3], 7: [4]}
            for i in range(8):
                vom(i & 1, i >> 1)
                if i % int(bs[6]) == 0:
                    nb()
                if i == 2:
                    A('v_rcp_f32 v%d, v%d' % (vT1, vLs))
                if i == 6 and opt.get('le', 1):
                    A('ds_write_b32 v%d, v%d' % (vW2l, vT1))
                for k in gaps.get(i, []):
                    cvm(k)
            stamp('vomend')
            m32(vO, vVOm, vPm, 1); cvm(5)
            stamp('m16')
            cvm(6); cvm(7)
            m32(vO + 4, vVOm + 4, vPm, 1)
    else:
        for i in range(4):
            fma2(vS + 2 * i)
        stamp('vw')
        A('s_waitcnt vmcnt(%d)' % early)
        stamp('vl')
        ops, cm = wchk([vVm, vVm + 4], vT3)
        for o in ops + [cm]:
            A(o)
        for i in range(3):
            ex(vS + i)
        A('s_cbranch_vccnz L_r2v')
        A.label('L_h2v')
        stamp('Send')
        vom = lambda u, n: A('v_smfmac_f32_16x16x64_bf16 %s, %s, %s, v%d' % (v(vT + 4 * n, 4), v(vVm + 4 * u, 4), a(WO(n, 2 * u), 8), vIdx))
        for i in range(8):
            vom(i & 1, i >> 1)
            if i & 1:
                nb()
            if i < 5:
                ex(vS + 3 + i)
            else:
                cvt(vP + i - 5, vS + 2 * (i - 5))
        stamp('vomend')
        cvt(vP + 3, vS + 6)
        fma2(MM)
        m32 = lambda d, x, p, c_: A('v_mfma_f32_16x16x32_bf16 %s, %s, %s, %s' % (v(d, 4), v(x, 4), v(p, 4), v(d, 4) if c_ else '0'))
        m16 = lambda d, x, p: A('v_mfma_f32_16x16x16_bf16 %s, %s, %s, %s' % (v(d, 4), v(x, 2), v(p, 2), v(d, 4)))
        cvm = lambda k: cvt(vVOm + k, vT + 2 * k)
        m32(vO, vVOx, vP, 0)
        nb()
        ex(MM)
        m32(vO + 4, vVOx + 8, vP, 0)
        ex(MM + 1)
        m32(vLs, vOne, vP, 0)
        nb()
        shr(vPs, vP); shr(vPs + 1, vP + 1); shr(vPs + 2, vP + 2); shr(vPs + 3, vP + 3)
        cvt(vPm, MM)
        cvt(vPm + 1, MM)
        if opt.get('mm', 1):
            assert vPms == vPm + 2 and vPm % 4 == 0
            m32(vO, vVOx + 4, vPs, 1)
            cvm(0)
            A('v_permlane32_swap_b32 v%d, v%d' % (vPm, vPm + 1))
            m32(vO + 4, vVOx + 12, vPs, 1)
            nb()
            cvm(1); cvm(2)
            stamp('m16')
            m16(vLs, vHalf, vPm)
            nb()
            shr(vPms, vPm); shr(vPms + 1, vPm + 1); cvm(3); cvm(4); cvm(5)
            m32(vO, vVOm, vPm, 1)
            nb()
            cvm(6); cvm(7)
            A('v_rcp_f32 v%d, v%d' % (vT1, vLs))
            m32(vO + 4, vVOm + 4, vPm, 1)
        else:
            m32(vO, vVOx + 4, vPs, 1)
            cvm(0)
            A('v_permlane32_swap_b32 v%d, v%d' % (vPm, vPm + 1))
            m32(vO + 4, vVOx + 12, vPs, 1)
            nb()
            cvm(1); cvm(2)
            stamp('m16')
            m16(vLs, vHalf, vPm)
            shr(vPms, vPm); shr(vPms + 1, vPm + 1)
            m16(vO, vVOm, vPm)
            nb()
            cvm(3); cvm(4); cvm(5)
            m16(vO, vVOm + 2, vPms)
            cvm(6); cvm(7)
            m16(vO + 4, vVOm + 4, vPm)
            nb()
            A('v_rcp_f32 v%d, v%d' % (vT1, vLs))
            m16(vO + 4, vVOm + 6, vPms)
    stamp('mend')
    if not opt.get('le', 1):
        A('ds_write_b32 v%d, v%d' % (vW2l, vT1))
    A('ds_write_b128 v%d, %s' % (vW2, v(vO, 4)))
    while bulk:
        nb()
    A('ds_write_b128 v%d, %s offset:1024' % (vW2, v(vO + 4, 4)))
    A('s_add_u32 s%d, s%d, 0x%x' % (sPf, sPf, SEG))
    side = []
    if not opt.get('nokvm'):
        side += [st4(vQK, vKst, sKvm, ' sc1'), st4(vVv, vVst, sKvm, ' sc1')]
    if opt.get('pf', 1):
        side += ['buffer_load_dword v252, v253, %s, s%d offen sc1' % (S4(WS), sPf)]
    side += ['buffer_load_dword v%d, v%d, %s, s%d offen sc1' % (vFv, vFa, S4(WS), sFo)]
    side = [side[int(ch)] for ch in str(opt.get('so', '0123')).zfill(4)]
    nse = opt.get('nse', 3)
    nsb = opt.get('nsb', 2)
    for o in side[:nsb]:
        A(o)
    A('s_waitcnt lgkmcnt(0)')
    stamp('st2end')
    A('s_barrier')
    stamp('bar2')
    A('ds_read_b128 %s, v%d' % (v(vR2d + 8, 4), vR2l))
    for w in range(4):
        A('ds_read_b64 %s, v%d offset:%d' % (v(vR2d + 2 * w, 2), vR2, w * 2048))
    for o in side[nsb:nse]:
        A(o)
    for w in range(4):
        A('s_waitcnt lgkmcnt(%d)' % (0 if prof else 3 - w))
        sel = 'op_sel:[0,%d%s] op_sel_hi:[1,%d%s]' % (w & 1, ',0' if w else '', w & 1, ',1' if w else '')
        if w == 0:
            A('v_pk_mul_f32 %s, %s, %s %s' % (v(vR2d, 2), v(vR2d, 2), v(vR2d + 8, 2), sel))
        else:
            A('v_pk_fma_f32 %s, %s, %s, %s %s' % (v(vR2d, 2), v(vR2d + 2 * w, 2), v(vR2d + 8 + (w & 2), 2), v(vR2d, 2), sel))
    cvt(vT0, vR2d)
    guard(vT0)
    A(st4(vT0, vL4, sPartA, (' sc1', ' sc0 sc1')[opt.get('psm', 0)]))
    stamp('partst')
    A('s_waitcnt vmcnt(%d)' % (1 + kb_ + len(side[:nse])))
    stamp('vxok')
    if shr_:
        mem_ = ['s_bitcmp1_b32 s%d, 14' % sMemW, 's_cselect_b32 s%d, 3, 1' % sA, 's_lshl_b32 s%d, s%d, 14' % (sA, sA),
                's_xor_b32 s%d, s%d, s%d' % (sMemW, sMemW, sA), 's_xor_b32 s%d, s%d, s%d' % (sMemR, sMemR, sA),
                's_xor_b32 s%d, s%d, 0x8000' % (sA, sMemW), st4(vSent, vMa, sA, loc)]
    else:
        mem_ = [st4(vSent, vL4, sMemW, loc), 's_xor_b32 s%d, s%d, 0x4000' % (sMemW, sMemW), 's_xor_b32 s%d, s%d, 0x4000' % (sMemR, sMemR)]
    pre = mem_ + [
           's_xor_b32 s%d, s%d, 0x8000' % (sQkvW, sQkvW),
           st4(vSent, vQst, sQkvW, loc), st4(vSent, vVst, sQkvW, loc)]
    po = opt.get('po', 1)
    arm = [o for o in pre if o.startswith('buffer_')]
    if po == 0:
        pre = kxl[:nc] + side[nse:] + pre
    elif po == 1:
        pre = side[nse:] + kxl[:nc] + pre
    elif po == 2:
        pre = side[nse:] + pre + kxl[:nc]
    elif po == 3:
        p2_, pre_ = side[nse:] + pre, []
        for o in kxl[:nc]:
            pre_ += [o] + p2_[:3]
            p2_ = p2_[3:]
        pre = pre_ + p2_
    pre += ['s_xor_b32 s%d, s%d, 0x8000' % (sQkvR, sQkvR), 's_xor_b32 s%d, s%d, 0x8000' % (sQkvR2, sQkvR2),
            's_add_u32 s%d, s%d, 0x%x' % (sKvm, sKvm, SEG), 's_add_u32 s%d, s%d, 0x%x' % (sPartA, sPartA, SEG),
            's_add_u32 s%d, s%d, 0x%x' % (sVx, sVx, SEG), 's_add_u32 s%d, s%d, 0x%x' % (sVx2, sVx2, SEG)]
    gpos = opt.get('gpos', 24)
    fill = {}
    for i, o in enumerate(pre):
        fill.setdefault(i, []).append(o)
    sl = ['s_memtime s[26:27]'] if prof else []
    if opt.get('dyn'):
        for p_ in range(17, 32, 2):
            fill.setdefault(p_ - 1, []).append('s_cmp_eq_u32 s%d, %d' % (sGp, p_))
            fill.setdefault(p_, []).extend(['s_cbranch_scc0 L_gp%d' % p_] + ld_part + ['L_gp%d:' % p_])
    else:
        fill.setdefault(gpos - opt.get('gd', 0), []).append(ld_part[0])
        fill.setdefault(gpos, []).extend(sl + ld_part[1:])
    vox(fill)
    zz = [o for o in zeros(vA, 24) + zeros(vT, 16) + zeros(MM, 4) if o not in zq]
    zz += ['s_nop 0'] * len(zq)
    zw = opt.get('zw', 0)
    kd = kxl[nc:nc + nd]
    for i in range(4):
        for o in (zeros(vM + 4 * i, 4, '-1') if fc != 5 else ['s_nop 3'] if i <= opt.get('d0', 1) else []):
            A(o)
        A(kd.pop(0) if kd and i >= opt.get('d0', 1) else 's_nop 0')
    for o in kd:
        A(o)
    paced(vox_tail() + (zeros(vQ, 4, '-1') + zeros(vQ + 8, 4, '-1') + zeros(vKm, 8, '-1') if h2m else []) + zz[:zw])
    zz = zz[zw:]
    if lite and not prof:
        A('s_and_b32 s%d, s%d, %d' % (sA, sStep, 48 if opt.get('trs') else 3))
        A('s_cbranch_scc1 L_notr')
        A('s_memtime s[12:13]')
        A('s_memrealtime s[14:15]')
        A('s_%s_b32 s%d, s%d, 1' % ('lshl' if opt.get('trs') else 'lshr', sA, sStep))
        A('s_mov_b32 m0, s%d' % sA)
        A('s_waitcnt lgkmcnt(0)')
        A('v_writelane_b32 v%d, s%d, m0' % (vTr, sKn if opt.get('trs') else 12))
        A('s_add_u32 m0, s%d, 1' % sA)
        A('v_writelane_b32 v%d, s14, m0' % vTr)
        A.label('L_notr')
    if prof:
        A('s_waitcnt lgkmcnt(0)')
        A('s_sub_u32 s%d, s%d, %d' % (sA, sStep, opt.get('ts', 33)))
        A('s_cmp_lt_u32 s%d, 6' % sA)
        A('s_cbranch_scc0 L_notr')
        A('s_mul_i32 s%d, s%d, 9' % (sA, sA))
        A('s_add_u32 s%d, s%d, 8' % (sA, sA))
        for i in [8] + list(range(8)):
            A('s_mov_b32 m0, s%d' % sA)
            A('v_writelane_b32 v%d, s%d, m0' % (vTr, 12 + 2 * i))
            A('s_add_u32 s%d, s%d, 1' % (sA, sA))
        A.label('L_notr')
    A.label('L_h3')
    lo = vP
    A('s_waitcnt vmcnt(%d)' % (1 + nd))
    A(red3[0])
    ops, cm = wchk([vPt, vPt + 4], vT0)
    for o in ([] if rx else ops[:2]):
        A(o)
    A('s_waitcnt vmcnt(%d)' % nd)
    A(red3[1])
    for o in (ops if rx else ops[2:]):
        A(o)
    A(cm)
    A('s_cbranch_vccnz L_r3')
    A.label('L_h3ok')
    stamp('gathok')
    cvt(vT0, lo)
    guard(vT0)
    A(st4(vT0, vMa, sMemW, loc))
    stamp('memst')
    A('s_add_u32 s%d, s%d, 1' % (sStep, sStep))
    A('s_bitcmp1_b64 %s, s%d' % (s(sLo, 2), sStep))
    A('s_cselect_b32 s%d, 0, 0x%x' % (sFo, OOB))
    A('s_add_u32 s%d, s%d, 0x%x' % (sPartR, sPartR, SEG))
    A('s_add_u32 s%d, s%d, 0x%x' % (sPartR2, sPartR2, SEG))
    z0 = opt.get('h1d', 16)
    zs = opt.get('h1s', 12)
    paced(zz[:z0]); zz = zz[z0:]
    for t in range(4):
        ld_mem(t)
        stamp('mi%d' % t)
        if t == 2:
            paced(zz); zz = []
            kvo = kv_ops('L_kvw')
            for o in kvo[:-1]:
                A(o)
        paced(zz[:zs]); zz = zz[zs:]
    A('s_cbranch_scc0 L_loop')
    A('s_branch L_kvw')
    if fc:
        fast_chains()
    poll_nodes()
    A.label('L_sp')
    A('s_cmp_eq_u32 s%d, 63' % sStep)
    A('s_cbranch_scc1 L_c_tail')
    A('s_mov_b32 s%d, 63' % sD)
    mark(A, opt, 0)
    A('s_cmp_ge_i32 s%d, 1' % sKn)
    A('s_cbranch_scc1 L_sp3')
    if opt.get('iw', 1) >= 2:
        if opt.get('iw', 1) == 3:
            A(ld_flags)
            A('s_call_b64 s[68:69], L_drp')
        A('s_mov_b64 exec, 0')
        for w in range(3):
            A('s_cmp_eq_u32 s%d, %d' % (sW, w))
            A('s_cbranch_scc1 L_dr%d' % w)
        A('s_branch L_dr3')
        A.label('L_drret')
        A('s_mov_b64 exec, -1')
    A.label('L_sp1')
    A(ld_flags)
    A('s_waitcnt vmcnt(0)')
    kv_check('L_sp2', 1)
    A.label('L_sp7')
    mark(A, opt, 0)
    for n_ in (sKx, sKx2):
        A('s_sub_u32 s%d, s%d, 0x%x' % (n_, n_, OOB + SEG))
    A('s_sub_u32 s%d, s%d, 0x%x' % (sVx, sVx, OOB))
    assert nva + ne <= 4
    first_kv()
    for n_ in (sKx, sKx2):
        A('s_add_u32 s%d, s%d, 0x%x' % (n_, n_, SEG))
    A.label('L_sp3')
    mark(A, opt, 1)
    for n_ in (sVx, sVx2):
        A('s_add_u32 s%d, s%d, 0x%x' % (n_, n_, SEG))
    A('s_waitcnt vmcnt(%d) lgkmcnt(0)' % (8 if nva + ne == 0 else 0))
    mark(A, opt, 2)
    vox({16: [ld_flags]})
    paced(zeros(vT, 16) + vox_tail())
    A('s_branch L_sp5')
    A.label('L_sp4')
    timeout_stub(A, 'L_sp6')
    A.label('L_sp6')
    A(ld_flags)
    A.label('L_sp5')
    A('s_waitcnt vmcnt(0)')
    kv_check('L_sp4')
    for o in vxl[:nva + ne]:
        A(o)
    A('buffer_load_dword v252, v253, %s, s%d offen sc1' % (S4(WS), sPf))
    tstamp(A, opt, 4, vT0, vT1, sA)
    A('s_branch L_spr')
    if opt.get('iw', 1) == 3:
        A.label('L_drp')
        A('s_mov_b64 exec, -1')
        A('s_waitcnt vmcnt(0)')
        kv_check('L_drq', 1)
        A('s_branch L_sp7')
        A.label('L_drq')
        A(ld_flags)
        A('s_mov_b64 exec, 0')
        A('s_setpc_b64 s[68:69]')
    A.label('L_sp2')
    A('s_sleep 1')
    timeout_stub(A, 'L_sp1')
    hook(True)
    A.label('L_kvw')
    A(ld_flags)
    A('s_waitcnt vmcnt(0)')
    kv_check('L_kvw2')
    A('s_branch L_loop')
    A.label('L_kvw2')
    timeout_stub(A, 'L_kvw')
    if h2m:
        for fam, full, cont in (('A', 15, 'L_SA'), ('K', 12, 'L_SK')):
            for Sm in sorted(range(1, 16), key=lambda x: -bin(x).count('1')):
                if Sm & ~full:
                    continue
                ts = [t for t in range(4) if Sm >> t & 1]
                hook(True)
                for t in ts:
                    rest = Sm & ~(1 << t)
                    A.label('L_P%s%d_%d' % (fam, Sm, t))
                    A('s_waitcnt vmcnt(%d)' % opt.get('lim2', 4 if opt.get('split', 1) else 3))
                    ck(t)
                    A(cmpv(vT3))
                    A('s_cbranch_vccz %s' % ('L_P%s%d_%d' % (fam, rest, nxt(rest, t)) if rest else cont))
                    A.label('L_F%s%d_%d' % (fam, Sm, t))
                    A(qk[t])
                    cnt(sN2)
                timeout_stub(A, 'L_P%s%d_%d' % (fam, Sm, ts[0]))
                if len(ts) > 1:
                    hook()
        hook(True)
        A.label('L_SA')
        stamp('q1l'); stamp('q0ok'); stamp('k0w'); stamp('k1w'); stamp('k1l')
        mx(0, 0, True); ror(vQ); ror(vQ + 1)
        mx(1, 0, True); ror(vQ + 2); ror(vQ + 3)
        mx(0, 2); A(ld_v[0]); ror(vQ + 8); ror(vQ + 9)
        mx(1, 2); A(ld_v[1]); ror(vQ + 10); ror(vQ + 11)
        smm(0); smm(1)
        mx(0, 1); mx(0, 3); mx(1, 1); A(swm[0]); mx(1, 3); A(swm[1])
        for o in mxo:
            A(o)
        s_end()
        A('s_branch L_sj')
        hook()
        hook(True)
        A.label('L_SK')
        stamp('k1w'); stamp('k1l')
        for o in zeros(MM, 4):
            A(o)
        smm(0); smm(1)
        for o in mxo + swm:
            A(o)
        s_end()
        A('s_branch L_sj')
        hook()
    else:
        hook(True)
        A.label('L_r2')
        for o in (order_q if not opt.get('r2q', 0) else ld_q + ['s_waitcnt vmcnt(0)']):
            A(o)
        cnt(sN2)
        timeout_stub(A, 'L_h2')
        hook(True)
        A.label('L_r2k')
        for o in (order_k + zeros(MM, 4) if not opt.get('r2q', 0) else ld_k + zeros(MM, 4) + ['s_waitcnt vmcnt(0)']):
            A(o)
        cnt(sN2, 1024)
        timeout_stub(A, 'L_h2k')
        hook()
    hook(True)
    A.label('L_r2v')
    for o in ld_v:
        A(o)
    cnt(sN2, 1 << 20)
    A('s_waitcnt vmcnt(0)')
    for o in chk4(vVm, vT3) + chk4more(vVm + 4, vT3):
        A(o)
    A(cmpv(vT3))
    A('s_cbranch_vccz L_h2v')
    timeout_stub(A, 'L_r2v')
    hook()
    hook(True)
    A.label('L_r3')
    for o in ld_part:
        A(o)
    cnt(sN3)
    if opt.get('lim3', -1) < 0:
        if nd:
            A('s_waitcnt vmcnt(0)')
        timeout_stub(A, 'L_h3')
    A('s_waitcnt vmcnt(%d)' % max(opt.get('lim3', -1), 0))
    for o in chk4(vPt, vT0) + chk4more(vPt + 4, vT0):
        A(o)
    A(cmpv(vT0))
    A(red3[0])
    A(red3[1])
    A('s_nop 6')
    A('s_cbranch_vccz L_h3ok')
    timeout_stub(A, 'L_r3')
    hook()
    A.label('L_loop_end')
    body = [re.sub(r'@HK(\d+)@', lambda m: 'L_hk%d' % (int(m.group(1)) + 4 * NHP) if int(m.group(1)) + 4 * NHP < len(hooks) else 'L_hkret%d' % (int(m.group(1)) // 4 % NHP), l) for l in A.lines[loop_start:]]
    body = [re.sub(r'@DR(\d+)@', lambda m: 'L_dr%d' % (int(m.group(1)) + 4) if int(m.group(1)) + 4 < len(dry) else 'L_drret', l) for l in body]
    labs = [l[:-1] for l in body if l.endswith(':')]
    pat = re.compile(r'\b(' + '|'.join(labs) + r')\b')
    A.lines[loop_start:] = [l.replace('@LOC@', ('', ' sc0', ' nt', ' sc0 nt')[opt.get('locm', 0)]) for l in body] + [pat.sub(r'\1_i', l).replace('@LOC@', ' sc1') for l in body]
    A.label('L_c_tail')
    A('s_add_u32 s%d, s%d, 2048' % (sKvm, sKvm))
    A('s_xor_b32 s%d, s%d, 0x2000' % (sKvm, sKvm))
    A('s_sub_u32 s%d, s%d, 2048' % (sKvm, sKvm))
    A(st4(vQK, vKst, sKvm, ' sc1'))
    if opt.get('split', 1):
        A('s_waitcnt lgkmcnt(0)')
        A('s_barrier')
        rd1(vR1v)
        red1(vVv)
    A(st4(vVv, vVst, sKvm, ' sc1'))
    if opt.get('diag'):
        A('s_cmp_lg_u32 s%d, 0' % sC)
        A('s_cbranch_scc1 L_dg')
        A('s_cmp_lg_u32 s%d, 0' % sW)
        A('s_cbranch_scc1 L_dg')
        dbg_mark(A, opt, 4, vT2, vT3)
        A('s_memtime s[78:79]')
        A('s_waitcnt lgkmcnt(0)')
        A('s_sub_u32 s78, s78, s98')
        A('s_sub_u32 s79, s96, s76')
        A('v_mov_b32 v%d, s78' % vT2)
        A('v_mov_b32 v%d, s79' % vT1)
        A('v_mov_b32 v%d, 0' % vT3)
        A('s_mov_b64 exec, 1')
        A('buffer_atomic_umax v%d, v%d, %s, 0 offen offset:36 sc1' % (vT2, vT3, S4(DBG)))
        A('buffer_atomic_umax v%d, v%d, %s, 0 offen offset:12 sc1' % (vT1, vT3, S4(DBG)))
        A('v_not_b32 v%d, v%d' % (vT2, vT2))
        A('buffer_atomic_umax v%d, v%d, %s, 0 offen offset:40 sc1' % (vT2, vT3, S4(DBG)))
        A('s_mov_b64 exec, -1')
        A.label('L_dg')
    if opt.get('hold') == 1:
        hold_after(A, 40)
    if opt.get('hold') == 2:
        hold_after(A, 170, 96)
    tstamp(A, opt, 7, vT2, vT3, sA)
    mark_dump(A, opt, 3, 11, vT2, vT3, sA)
    if lite:
        A('s_memtime s[12:13]')
        A('s_memrealtime s[14:15]')
        A('s_waitcnt lgkmcnt(0)')
        A('s_sub_u32 s12, s12, s96')
        A('s_sub_u32 s14, s14, s98')
        A('v_mov_b32 v%d, s12' % (vM + 3))
        A('v_mov_b32 v%d, s14' % (vM + 4))
        A('s_lshl_b32 s%d, s%d, 4' % (sA, sG))
        A('s_add_u32 s%d, s%d, s%d' % (sA, sA, sC))
        A('s_lshl_b32 s%d, s%d, 2' % (sA, sA))
        A('s_add_u32 s%d, s%d, s%d' % (sA, sA, sW))
        A('s_lshl_b32 s%d, s%d, 6' % (sA, sA))
        A('s_add_u32 s%d, s%d, 0x%x' % (sA, sA, PROF))
        A('v_mov_b32 v%d, s%d' % (vM, sN1))
        A('v_mov_b32 v%d, s%d' % (vM + 1, sN2))
        A('v_mov_b32 v%d, s%d' % (vM + 2, sN3))
        A('v_mov_b32 v%d, 0' % vT0)
        for i in range(9, 14):
            A('buffer_store_dword v%d, v%d, %s, s%d offen offset:%d' % (vM + i - 9, vT0, S4(WS), sA, 4 * i))
    if lite:
        A('v_mov_b32 v%d, s96' % vT1)
        A('buffer_store_dword v%d, v%d, %s, s%d offen offset:56' % (vT1, vT0, S4(WS), sA))
        A('v_mov_b32 v%d, s98' % vT2)
        A('buffer_store_dword v%d, v%d, %s, s%d offen offset:60' % (vT2, vT0, S4(WS), sA))
        A('s_sub_u32 s%d, s%d, 0x%x' % (sA, sA, PROF))
        A('s_lshl_b32 s%d, s%d, 2' % (sA, sA))
        A('s_add_u32 s%d, s%d, 0x%x' % (sA, sA, PROF + MB))
        A('buffer_store_dword v%d, v%d, %s, s%d offen' % (vTr, vL4, S4(WS), sA))
    A('s_waitcnt vmcnt(0)')
    A('s_endpgm')


def build(opt):
    A = Asm()
    prologue(A, opt)
    chain(A, opt)
    for kind in 'kvq':
        proj(A, opt, kind)
    orole(A, opt)
    A.label('L_code1')
    A('s_endpgm')
    body, nn = fix_hazards(A.lines, verbose=True)
    hdr = open('cdna_kernels/%s.s.ref' % NAME).read().split('\n')
    hdr = [l for l in hdr if l.startswith(';') and '@launch' not in l]
    hdr.append('; opts ' + ' '.join('%s=%s' % kv for kv in opt.items()))
    if opt.get('prof'):
        hdr.append('; marks=' + opt.get('marks', 'm0ok,st1end,qkvst,q0ok,Send,st2end,partst') + ',gath,gathok')
    out = hdr + ['; @launch grid=(256,1,1) block=(256,1,1) lds=%d' % opt.get('lds', 163840),
                 '.amdgcn_target "amdgcn-amd-amdhsa--gfx950"', '.text', '.globl %s_kernel' % NAME, '.p2align 8',
                 '.type %s_kernel,@function' % NAME, '%s_kernel:' % NAME]
    out += body
    out += ['.section .rodata,"a"', '.p2align 6', '.amdhsa_kernel %s_kernel' % NAME,
            '  .amdhsa_next_free_vgpr 512', '  .amdhsa_next_free_sgpr 102', '  .amdhsa_accum_offset 256',
            '  .amdhsa_group_segment_fixed_size 0', '  .amdhsa_kernarg_size 128', '  .amdhsa_user_sgpr_count 2',
            '  .amdhsa_user_sgpr_kernarg_segment_ptr 1', '  .amdhsa_system_sgpr_workgroup_id_x 1',
            '  .amdhsa_float_denorm_mode_32 3', '.end_amdhsa_kernel', '']
    return '\n'.join(out), nn


if __name__ == '__main__':
    opt = {}
    outp = sys.argv[1]
    for a_ in sys.argv[2:]:
        k, val = a_.split('=')
        opt[k] = int(val) if val.lstrip('-').isdigit() else val
    txt, nn = build(opt)
    open(outp, 'w').write(txt)
    print('wrote', outp, 'nops inserted:', nn)
```

```python
from common import *
from workers import vote, kv_first


def orole(A, opt):
    S = Alloc(36, 62)
    sI = S('i')
    sA, sB, sCc, sD, sSeg, sBase, sRot, sHi, sPrev, sCnt = [S(n) for n in 'a b cc d seg base rot hi prev cnt'.split()]
    sIdx = S('idx', 8)
    cvt = lambda d, x, y: A('v_cvt_pk_bf16_f32 v%d, v%d, v%d' % (d, x, y))

    def rnd2(x, y, t):
        cvt(t, x, y)
        A('v_lshlrev_b32 v%d, 16, v%d' % (x, t))
        A('v_and_b32 v%d, s%d, v%d' % (y, sHi, t))

    def sigmoid(d, x):
        A('v_mul_f32 v%d, %s, v%d' % (d, f32(-LOG2E), x))
        A('v_exp_f32 v%d, v%d' % (d, d))
        A('v_add_f32 v%d, 1.0, v%d' % (d, d))
        A('v_rcp_f32 v%d, v%d' % (d, d))

    def touch_slow(t0, d):
        if not opt.get('tw', 1):
            return
        srd(A, d, P_WO, 8 * MB)
        A('s_and_b32 s%d, s%d, 7' % (sA, sI))
        A('s_lshl_b32 s%d, s%d, 3' % (sB, sW))
        A('s_add_u32 s%d, s%d, s%d' % (sA, sA, sB))
        A('s_lshl_b32 s%d, s%d, 18' % (sA, sA))
        A('s_and_b32 s%d, s%d, 8' % (sB, sI))
        A('s_lshl_b32 s%d, s%d, 7' % (sB, sB))
        A('s_add_u32 s%d, s%d, s%d' % (sA, sA, sB))
        A('s_add_u32 s%d, s%d, 0x20000' % (sB, sA))
        A('v_lshlrev_b32 v%d, 11, v0' % t0)
        A('buffer_load_dword v255, v%d, %s, s%d offen offset:384' % (t0, S4(d), sA))
        A('buffer_load_dword v255, v%d, %s, s%d offen offset:384' % (t0, S4(d), sB))

    V = Alloc(1, 252)
    vL16, vL4, vFl, vKey, vRaw = [V(n) for n in 'l16 l4 fl key raw'.split()]
    t0, t1, t2, t3, t4, t5 = [V('t%d' % i) for i in range(6)]
    vAcc = V('acc', 8, 4)
    vPm = V('perm', 32, 4)
    NB = 6
    vRing = V('ring', 32 * NB, 4)
    A.label('L_o')
    cap0 = len(A.lines)

    def voting():
        A('s_waitcnt vmcnt(0)')
        confirm(A, opt, t0, t1, sA)
        vote(A, sI, t0, t1, t2, sA, sB, sD, sSeg, sBase)
        tstamp(A, opt, 1, t0, t1, sA)
    help_kv(A, opt, P_WV, sI, t0, t1, sA, sB, voting)
    srd(A, SRD_A, P_WR, 2048)
    srd(A, SRD_B, P_X, 4 * MB)
    srd(A, SRD_C, P_GW, 2048)
    srd(A, SRD_D, P_WG, 7 * MB)
    srd(A, SRD_E, P_WU, 7 * MB)
    A('s_mov_b32 s%d, 0xffff0000' % sHi)
    A('v_lshlrev_b32 v%d, 4, v0' % vL16)
    A('v_lshlrev_b32 v%d, 2, v0' % vL4)
    if opt.get('chainonly'):
        A('s_endpgm')
    for i in range(opt.get('odl', 0)):
        A('s_sleep 32')
    for i in range(2):
        A('buffer_load_dwordx4 %s, v%d, %s, 0 offen offset:%d' % (v(vPm + 4 * i, 4), vL16, S4(SRD_A), 1024 * i))
    for i in range(2):
        A('buffer_load_dwordx4 %s, v%d, %s, 0 offen offset:%d' % (v(vPm + 8 + 4 * i, 4), vL16, S4(SRD_C), 1024 * i))
    bits(A, t2, [(0, 4, 11), (4, 2, 4)], t0)
    A('s_lshl_b32 s%d, s%d, 2' % (sA, sI))
    A('s_add_u32 s%d, s%d, s%d' % (sA, sA, sW))
    A('s_lshl_b32 s%d, s%d, 4' % (sD, sA))
    A('s_lshl_b32 s%d, s%d, 15' % (sA, sA))
    for ks in range(32):
        A('buffer_load_dwordx4 %s, v%d, %s, s%d offen offset:%d' % (a(4 * ks, 4), t2, S4(SRD_B), sA, 64 * ks))
    A('v_lshrrev_b32 v%d, 4, v0' % t0)
    A('v_mul_u32_u24 v%d, %d, v%d' % (t0, 8 * 7168, t0))
    A('v_and_b32 v%d, 15, v0' % t3)
    A('v_lshl_add_u32 v%d, v%d, 4, v%d' % (vRaw, t3, t0))
    A('s_cmp_lt_u32 s%d, 28' % sI)
    A('s_cselect_b32 s%d, 0, 0x%x' % (sB, OOB))
    A('v_add_u32 v%d, s%d, v%d' % (vRaw, sB, vRaw))
    A('s_mul_i32 s%d, s%d, %d' % (sBase, sW, 256 * 7168))
    A('s_lshl_b32 s%d, s%d, 8' % (sA, sI))
    A('s_add_u32 s%d, s%d, s%d' % (sBase, sBase, sA))

    def batch(b):
        for i in range(8):
            A('s_add_u32 s%d, s%d, 0x%x' % (sA, sBase, (32 * (b >> 1) + i) * 7168))
            A('buffer_load_dwordx4 %s, v%d, %s, s%d offen%s' % (v(vRing + 32 * (b % NB) + 4 * i, 4), vRaw, S4((SRD_D, SRD_E)[b & 1]), sA, ' nt' if opt.get('nt', 31) & 4 else ''))
    early = not opt.get('owait')
    if early:
        batch(0); batch(1)
    A('s_lshl_b32 s%d, s%d, 12' % (sA, sW))
    A('v_add_u32 v%d, s%d, v%d' % (t3, sA, vL16))
    bits(A, t4, [(0, 1, 11), (4, 2, 4)], t0, 's%d' % sA)
    A('s_waitcnt vmcnt(%d)' % (48 if early else 32))
    for i in range(4):
        A('ds_write_b128 v%d, %s offset:%d' % (t3, v(vPm + 4 * i, 4), 1024 * i))
    A('s_waitcnt vmcnt(%d) lgkmcnt(0)' % (16 if early else 0))
    if opt.get('gm', 1):
        vOn, vPr = vRing + 64, vRing + 68
        for i in range(4):
            A('v_mov_b32 v%d, 0x3f803f80' % (vOn + i))
        A('v_and_b32 v%d, 0xfffff7ff, v%d' % (t4, t4))
        for k0 in range(0, 32, 4):
            for ks in range(k0, k0 + 4):
                A('ds_read_b128 %s, v%d offset:%d' % (v(vPm + 8 * (ks & 3), 4), t4, 64 * ks))
                A('ds_read_b128 %s, v%d offset:%d' % (v(vPm + 8 * (ks & 3) + 4, 4), t4, 64 * ks + 2048))
            A('s_waitcnt lgkmcnt(0)')
            for ks in range(k0, k0 + 4):
                A('v_mfma_f32_16x16x32_bf16 %s, %s, %s, %s' % (v(vAcc, 4), v(vPm + 8 * (ks & 3), 4), a(4 * ks, 4), v(vAcc, 4) if ks else '0'))
                p_ = vPr + 4 * (ks & 1)
                for i in range(4):
                    w_ = vPm + 8 * (ks & 3) + 4 + i
                    A('v_accvgpr_read_b32 v%d, a%d' % (t0, 4 * ks + i))
                    A('v_lshlrev_b32 v%d, 16, v%d' % (t2, w_))
                    A('v_lshlrev_b32 v%d, 16, v%d' % (t1, t0))
                    A('v_mul_f32 v%d, v%d, v%d' % (t1, t1, t2))
                    A('v_and_b32 v%d, s%d, v%d' % (t0, sHi, t0))
                    A('v_and_b32 v%d, s%d, v%d' % (t2, sHi, w_))
                    A('v_mul_f32 v%d, v%d, v%d' % (t0, t0, t2))
                    cvt(p_ + i, t1, t0)
                A('v_mfma_f32_16x16x32_bf16 %s, %s, %s, %s' % (v(vAcc + 4, 4), v(vOn, 4), v(p_, 4), v(vAcc + 4, 4) if ks else '0'))
        A('v_mov_b32 v%d, v%d' % (vAcc + 1, vAcc + 4))
    else:
        for k0 in range(0, 32, 8):
            for ks in range(k0, k0 + 8):
                A('ds_read_b128 %s, v%d offset:%d' % (v(vPm + 4 * (ks & 7), 4), t4, 64 * ks))
            A('s_waitcnt lgkmcnt(0)')
            for ks in range(k0, k0 + 8):
                A('v_mfma_f32_16x16x32_bf16 %s, %s, %s, %s' % (v(vAcc, 4), v(vPm + 4 * (ks & 7), 4), a(4 * ks, 4), v(vAcc, 4) if ks else '0'))
    rnd2(vAcc + 1, vAcc, t0)
    sigmoid(t1, vAcc + 1)
    A('v_ashrrev_i32 v%d, 31, v%d' % (t2, vAcc))
    A('v_or_b32 v%d, 0x80000000, v%d' % (t2, t2))
    cvt(t1, t1, t1)
    A('v_and_b32 v%d, s%d, v%d' % (t1, sHi, t1))
    A('v_xor_b32 v%d, v%d, v%d' % (t2, t2, vAcc))
    A('s_sub_u32 s%d, 2047, s%d' % (sA, sD))
    A('v_sub_u32 v%d, s%d, v0' % (t3, sA))
    A('v_and_or_b32 v%d, v%d, s%d, v%d' % (t2, t2, sHi, t3))
    A('v_mov_b32 v%d, 0x%x' % (t3, OOB))
    A('v_cmp_gt_u32 vcc, 16, v0')
    A('v_cndmask_b32 v%d, v%d, v%d, vcc' % (t3, t3, vL4))
    wait_init(A, t0, t4, sA, sB)
    A('s_lshl_b32 s%d, s%d, 2' % (sA, sD))
    A('s_add_u32 s%d, s%d, 0x%x' % (sB, sA, KEYS))
    A('s_add_u32 s%d, s%d, 0x%x' % (sA, sA, GATE))
    A('buffer_store_dword v%d, v%d, %s, s%d offen sc1' % (t1, t3, S4(WS), sA))
    A('s_waitcnt vmcnt(0)')
    A('buffer_store_dword v%d, v%d, %s, s%d offen sc1' % (t2, t3, S4(WS), sB))
    for b in range(2, NB if early else 2):
        batch(b)
    A('s_mov_b32 s%d, 0x%x' % (sA, KEYS))
    A('s_mov_b32 s%d, 0x%x' % (sB, KEYS + 4096))
    A('s_waitcnt vmcnt(%d)' % (16 if early else 0))
    poll_data(A, ['buffer_load_dwordx4 %s, v%d, %s, s%d offen offset:%d sc1' % (v(vPm + 4 * i, 4), vL16, S4(WS), (sA, sB)[i >> 2], 1024 * (i & 3)) for i in range(8)],
              range(vPm, vPm + 32), t0, 16)
    tstamp(A, opt, 3, t0, t1, sA)
    if opt.get('cw', 1) > 1:
        touch_code(A, 'L_top', 'L_code1', sW, SRD_C, t0)
    A('s_mov_b32 s%d, 0' % sPrev)
    A('s_mov_b32 s%d, 0' % sCc)
    A('v_mov_b32 v%d, 0' % vKey)
    A.label('L_top')
    A('v_mov_b32 v%d, 0' % t0)
    for i in range(0, 32, 2):
        A('v_subrev_u32 v%d, s%d, v%d' % (t1, sPrev, vPm + i))
        A('v_subrev_u32 v%d, s%d, v%d' % (t2, sPrev, vPm + i + 1))
        A('v_max3_u32 v%d, v%d, v%d, v%d' % (t0, t0, t1, t2))
    for sh in (8, 4, 2, 1):
        A('v_max_u32_dpp v%d, v%d, v%d row_ror:%d row_mask:0xf bank_mask:0xf' % (t0, t0, t0, sh))
    for sw in ('v_permlane32_swap_b32', 'v_permlane16_swap_b32'):
        A('v_mov_b32 v%d, v%d' % (t1, t0))
        A('%s v%d, v%d' % (sw, t0, t1))
        A('v_max_u32 v%d, v%d, v%d' % (t0, t0, t1))
    A('v_readfirstlane_b32 s%d, v%d' % (sA, t0))
    A('s_mov_b32 m0, s%d' % sCc)
    A('s_add_u32 s%d, s%d, s%d' % (sPrev, sPrev, sA))
    A('v_writelane_b32 v%d, s%d, m0' % (vKey, sPrev))
    A('s_add_u32 s%d, s%d, 1' % (sCc, sCc))
    A('s_cmp_lt_u32 s%d, 8' % sCc)
    A('s_cbranch_scc1 L_top')
    bits(A, t1, [(0, 3, 2)], t0)
    A('ds_bpermute_b32 v%d, v%d, v%d' % (t2, t1, vKey))
    A('s_waitcnt lgkmcnt(0)')
    A('v_and_b32 v%d, 0x7ff, v%d' % (t2, t2))
    A('v_sub_u32 v%d, 2047, v%d' % (t2, t2))
    A('v_lshlrev_b32 v%d, 11, v%d' % (t2, t2))
    A('v_lshrrev_b32 v%d, 4, v0' % t0)
    A('v_lshl_add_u32 v%d, v%d, 4, v%d' % (t2, t0, t2))
    A('s_lshl_b32 s%d, s%d, 9' % (sA, sW))
    for ks in range(8):
        A('buffer_load_dwordx4 %s, v%d, %s, s%d offen offset:%d' % (a(128 + 4 * ks, 4), t2, S4(SRD_B), sA, 64 * ks))
    A('s_mov_b32 s%d, 0x05040100' % sCc)
    A('s_mov_b32 s%d, 0x07060302' % sD)
    A('s_waitcnt vmcnt(0)')
    if not early:
        kv_first(A, sI, t0, t1, sA, sB)
        NB = 3
        for b in range(NB):
            batch(b)
    for b in range(16):
        if b >= NB or not early:
            A('s_waitcnt vmcnt(%d)' % (8 * min(NB - 1, 15 - b)))
        r0 = vRing + 32 * (b % NB)
        for t in range(8):
            for p in range(4):
                A('v_perm_b32 v%d, v%d, v%d, s%d' % (vPm + 4 * t + p, r0 + 4 * (2 * p + 1) + (t >> 1), r0 + 4 * (2 * p) + (t >> 1), (sCc, sD)[t & 1]))
            if t:
                acc = a(160 + 32 * (b & 1) + 4 * (t - 1), 4)
                A('v_mfma_f32_16x16x32_bf16 %s, %s, %s, %s' % (acc, a(128 + 4 * (b >> 1), 4), v(vPm + 4 * (t - 1), 4), acc if b > 1 else '0'))
        if b + NB < 16:
            batch(b + NB)
        acc = a(160 + 32 * (b & 1) + 28, 4)
        A('v_mfma_f32_16x16x32_bf16 %s, %s, %s, %s' % (acc, a(128 + 4 * (b >> 1), 4), v(vPm + 28, 4), acc if b > 1 else '0'))
    A('s_lshl_b32 s%d, s%d, 14' % (sA, sW))
    A('v_add_u32 v%d, s%d, v%d' % (t3, sA, vL16))
    A('s_barrier')
    for i in range(16):
        A('ds_write_b128 v%d, %s offset:%d' % (t3, a(160 + 4 * i, 4), 1024 * i))
        if i == 7:
            A('s_waitcnt lgkmcnt(0)')
    A('s_and_b32 s%d, s%d, 1' % (sA, sW))
    A('s_lshl_b32 s%d, s%d, 8' % (sA, sA))
    A('s_lshr_b32 s%d, s%d, 1' % (sB, sW))
    A('s_lshl_b32 s%d, s%d, 3' % (sB, sB))
    A('s_add_u32 s%d, s%d, s%d' % (sA, sA, sB))
    bits(A, t3, [(0, 2, 11), (2, 4, 4)], t0, 's%d' % sA)
    A('s_waitcnt lgkmcnt(0)')
    A('s_barrier')
    for m in range(2):
        for tt in range(2):
            for wv in range(4):
                A('ds_read_b64 %s, v%d offset:%d' % (v(vPm + ((m * 2 + tt) * 4 + wv) * 2, 2), t3, wv * 16384 + m * 8192 + tt * 1024))
        A('s_waitcnt lgkmcnt(0)')
    for q in range(4):
        b0 = vPm + 8 * q
        A('v_pk_add_f32 %s, %s, %s' % (v(b0, 2), v(b0, 2), v(b0 + 2, 2)))
        A('v_pk_add_f32 %s, %s, %s' % (v(b0 + 4, 2), v(b0 + 4, 2), v(b0 + 6, 2)))
        A('v_pk_add_f32 %s, %s, %s' % (v(b0, 2), v(b0, 2), v(b0 + 4, 2)))
        rnd2(b0, b0 + 1, t0)
    for tt in range(2):
        b0 = vPm + 8 * tt
        for j in range(2):
            sigmoid(b0 + 2 + j, b0 + j)
            A('v_mul_f32 v%d, v%d, v%d' % (b0 + j, b0 + j, b0 + 2 + j))
        rnd2(b0, b0 + 1, t0)
        for j in range(2):
            A('v_mul_f32 v%d, v%d, v%d' % (b0 + j, b0 + j, b0 + 16 + j))
    cvt(t1, vPm, vPm + 8)
    cvt(t2, vPm + 1, vPm + 9)
    A('v_min_u32 v%d, -2, v%d' % (t1, t1))
    A('v_min_u32 v%d, -2, v%d' % (t2, t2))
    A('s_and_b32 s%d, s%d, 1' % (sA, sW))
    A('s_lshl_b32 s%d, s%d, 2' % (sA, sA))
    A('s_and_b32 s%d, s%d, 2' % (sB, sW))
    A('s_add_u32 s%d, s%d, s%d' % (sA, sA, sB))
    A('s_mul_i32 s%d, s%d, 7168' % (sA, sA))
    A('s_lshl_b32 s%d, s%d, 8' % (sB, sI))
    A('s_add_u32 s%d, s%d, s%d' % (sA, sA, sB))
    A('s_add_u32 s%d, s%d, 0x%x' % (sA, sA, HH))
    A('s_add_u32 s%d, s%d, 7168' % (sB, sA))
    A('s_cmp_lt_u32 s%d, 28' % sI)
    A('s_cselect_b32 s%d, 0, 0x%x' % (sD, OOB))
    A('v_add_u32 v%d, s%d, v%d' % (t3, sD, vL4))
    A('buffer_store_dword v%d, v%d, %s, s%d offen sc1' % (t1, t3, S4(WS), sA))
    A('buffer_store_dword v%d, v%d, %s, s%d offen sc1' % (t2, t3, S4(WS), sB))
    tstamp(A, opt, 4, t0, t4, sA)
    srd(A, SRD_A, P_WD, 7 * MB)
    A('s_lshr_b32 s%d, s%d, 4' % (sD, sI))
    A('s_lshl_b32 s%d, s%d, 2' % (sA, sD))
    A('s_add_u32 s%d, s%d, s%d' % (sCc, sA, sW))
    A('s_mul_i32 s%d, s%d, %d' % (sBase, sCc, 448 * 2048))
    A('s_add_u32 s%d, s%d, 4' % (sA, sI))
    A('s_and_b32 s%d, s%d, 15' % (sA, sA))
    A('s_lshl_b32 s%d, s%d, 1' % (sB, sA))
    A('s_add_u32 s%d, s%d, s%d' % (sD, sD, sB))
    A('s_lshl_b32 s%d, s%d, 7' % (sA, sA))
    A('s_add_u32 s%d, s%d, s%d' % (sBase, sBase, sA))
    bits(A, vRaw, [(3, 3, 11), (0, 3, 4)], t0)
    A('s_lshl_b32 s%d, s%d, 12' % (sA, sW))
    A('s_add_u32 s%d, s%d, 65536' % (sA, sA))
    A('v_add_u32 v%d, s%d, v%d' % (t3, sA, vL16))
    bits(A, t4, [(4, 2, 10), (2, 2, 7), (0, 2, 3)], t0, 's%d' % sA)

    def dissue(ks):
        for i in range(4):
            A('s_add_u32 s%d, s%d, 0x%x' % (sB, sBase, (32 * ks + 8 * i) * 2048))
            A('buffer_load_dwordx4 %s, v%d, %s, s%d offen%s' % (a(16 * ks + 4 * i, 4), vRaw, S4(SRD_A), sB, ' nt' if opt.get('nt', 31) & 8 else ''))
    for ks in range(4):
        dissue(ks)
    for ks in range(14):
        A('s_waitcnt vmcnt(%d) lgkmcnt(0)' % (4 * (min(14, ks + 4) - 1 - ks)))
        for i in range(4):
            A('ds_write_b128 v%d, %s offset:%d' % (t3, a(16 * ks + 4 * i, 4), i * 1024))
        for ct in range(4):
            for pp in range(2):
                A('ds_read_b64_tr_b16 %s, v%d offset:%d' % (a(16 * ks + 4 * ct + 2 * pp, 2), t4, 4 * pp * 128 + ct * 32))
        if ks + 4 < 14:
            dissue(ks + 4)
    A('v_and_b32 v%d, 7, v0' % t0)
    A('v_mul_u32_u24 v%d, 7168, v%d' % (t2, t0))
    A('v_lshrrev_b32 v%d, 4, v0' % t0)
    A('v_lshl_add_u32 v%d, v%d, 4, v%d' % (t2, t0, t2))
    A('s_mul_i32 s%d, s%d, 896' % (sA, sCc))
    A('s_add_u32 s%d, s%d, 0x%x' % (sA, sA, HH))
    poll_data(A, ['buffer_load_dwordx4 %s, v%d, %s, s%d offen offset:%d sc1' % (v(vRing + 4 * ks, 4), t2, S4(WS), sA, 64 * ks) for ks in range(14)],
              range(vRing, vRing + 56), t0, 16)
    A('s_waitcnt lgkmcnt(0)')
    for ks in range(14):
        for ct in range(4):
            acc = v(vPm + 4 * ct, 4)
            A('v_mfma_f32_16x16x32_bf16 %s, %s, %s, %s' % (acc, a(16 * ks + 4 * ct, 4), v(vRing + 4 * ks, 4), acc if ks else '0'))
    for ct in range(4):
        A('ds_write_b128 v%d, %s offset:%d' % (t3, v(vPm + 4 * ct, 4), 1024 * ct))
    A('s_lshl_b32 s%d, s%d, 6' % (sA, sW))
    A('s_add_u32 s%d, s%d, 65536' % (sA, sA))
    bits(A, t4, [(0, 4, 8), (4, 2, 4)], t0, 's%d' % sA)
    A('s_waitcnt lgkmcnt(0)')
    A('s_barrier')
    for wv in range(4):
        A('ds_read_b128 %s, v%d offset:%d' % (v(vPm + 16 + 4 * wv, 4), t4, wv * 4096))
    A('s_waitcnt lgkmcnt(0)')
    for wv in range(1, 4):
        for h in range(2):
            A('v_pk_add_f32 %s, %s, %s' % (v(vPm + 16 + 2 * h, 2), v(vPm + 16 + 2 * h, 2), v(vPm + 16 + 4 * wv + 2 * h, 2)))
    for i in range(4):
        A('v_min_u32 v%d, -2, v%d' % (vPm + 16 + i, vPm + 16 + i))
    A('s_cmp_ge_u32 s%d, 2' % sW)
    A('s_cbranch_scc1 L_o_join')
    A('s_lshl_b32 s%d, s%d, 1' % (sA, sD))
    A('s_add_u32 s%d, s%d, s%d' % (sA, sA, sW))
    A('s_lshl_b32 s%d, s%d, 10' % (sA, sA))
    A('s_add_u32 s%d, s%d, 0x%x' % (sA, sA, YY))
    A('buffer_store_dwordx4 %s, v%d, %s, s%d offen sc1' % (v(vPm + 16, 4), vL16, S4(WS), sA))
    A('s_lshl_b32 s%d, s%d, 8' % (sA, sI))
    A('s_add_u32 s%d, s%d, 0x%x' % (sA, sA, YK))
    A('buffer_store_dword v%d, v%d, %s, s%d offen sc1' % (vKey, vL4, S4(WS), sA))

    V = Alloc(1, 256)
    vL16, vFa, vFv, vFn, vWr, vRr, vXa, vLw, vG = [V(n) for n in 'l16 fa fv fn wr rr xa lw g'.split()]
    vGa = 255
    t0, t1 = V('t0'), V('t1')
    vXv = V('xv', 2)
    vU = V('u', 2)
    vY = V('y', 16, 4)
    vD = V('d', 16, 4)
    vZ = V('z', 12, 4)
    vO = V('o', 64, 4)
    vW = V('w', 128, 4)
    t2, t3 = vXv, vXv + 1
    vXn, vGn = 252, 254
    assert V.p <= 252
    LW, LRED = 0, 131072
    sTeam, sU, sUn, sNb, sPre, sE = sPrev, sSeg, S('un'), S('nb'), S('pre'), S('e')
    U0 = opt.get('u0', 60)
    assert U0 % 2 == 0
    A.label('L_o_join2')
    A.label('L_o_join')
    touch_slow(t0, SRD_C)
    if opt.get('cw', 1) > 1:
        touch_code(A, 'L_oj1', 'L_code1', sW, SRD_C, t0)
        A.label('L_oj1')
    tstamp(A, opt, 5, t0, t1, sA)
    srd(A, SRD_A, P_WO, 8 * MB)
    srd(A, SRD_B, P_X, 4 * MB)
    srd(A, SRD_C, P_OUT, 4 * MB)
    A('s_mov_b32 s%d, 0xffff0000' % sHi)
    A('v_lshlrev_b32 v%d, 4, v0' % vL16)
    A('s_add_u32 s%d, s%d, 1' % (sTeam, sC))
    A('s_and_b32 s%d, s%d, 3' % (sTeam, sTeam))
    A('s_lshl_b32 s%d, s%d, 1' % (sTeam, sTeam))
    A('s_lshr_b32 s%d, s%d, 4' % (sA, sI))
    A('s_add_u32 s%d, s%d, s%d' % (sTeam, sTeam, sA))
    A('s_and_b32 s%d, s%d, 15' % (sI, sI))
    A('s_and_b32 s%d, s%d, 7' % (sRot, sI))
    A('s_barrier')
    for hl in range(8):
        A('s_add_u32 s%d, s%d, %d' % (sA, sRot, hl))
        A('s_and_b32 s%d, s%d, 7' % (sA, sA))
        A('s_lshl_b32 s%d, s%d, 3' % (sB, sW))
        A('s_add_u32 s%d, s%d, s%d' % (sA, sA, sB))
        A('s_lshl_b32 s%d, s%d, 18' % (sA, sA))
        A('s_lshl_b32 s%d, s%d, 7' % (sB, sI))
        A('s_add_u32 s%d, s%d, s%d' % (sIdx + hl, sA, sB))
    vRaw, vTr = vFa, vFv
    bits(A, vRaw, [(3, 3, 11), (0, 3, 4)], t0)
    A('s_lshl_b32 s%d, s%d, 13' % (sA, sW))
    A('s_add_u32 s%d, s%d, %d' % (sA, sA, LRED))
    A('v_add_u32 v%d, s%d, v%d' % (vWr, sA, vL16))
    bits(A, vTr, [(2, 1, 11), (4, 2, 9), (3, 1, 7), (0, 2, 3)], t0, 's%d' % sA)
    A('s_lshl_b32 s%d, s%d, 15' % (sA, sW))
    A('v_add_u32 v%d, s%d, v%d' % (vLw, sA, vL16))
    home = lambda ks, i: (a(8 * ks + 4 * i, 4) if i < 2 else v(vW + 4 * ks, 4) if i == 2 else v(vO + 4 * (ks & 15), 4))
    home2 = lambda ks, i, pp: (a(8 * ks + 4 * i + 2 * pp, 2) if i < 2 else v(vW + 4 * ks + 2 * pp, 2) if i == 2 else v(vD + 4 * (ks & 1) + 2 * pp, 2))

    def wissue(ks):
        for i in range(4):
            A('s_add_u32 s%d, s%d, 0x%x' % (sB, sIdx + (ks >> 2), (32 * (ks & 3) + 8 * i) * 2048))
            A('buffer_load_dwordx4 %s, v%d, %s, s%d offen%s' % (home(ks, i), vRaw, S4(SRD_A), sB, ' nt' if opt.get('nt', 31) & 16 else ''))
    DEP = opt.get('depo', 4)
    for ks in range(DEP):
        wissue(ks)
    for ks in range(32):
        A('s_waitcnt vmcnt(%d)' % (4 * (min(32, ks + DEP) - 1 - ks)))
        sl = (ks & 1) * 4096
        for i in range(4):
            A('ds_write_b128 v%d, %s offset:%d' % (vWr, home(ks, i), sl + i * 1024))
        if ks + DEP < 32:
            wissue(ks + DEP)
        if ks:
            A('s_waitcnt lgkmcnt(4)')
            A('ds_write_b128 v%d, %s offset:%d' % (vLw, v(vD + 4 * ((ks - 1) & 1), 4), (ks - 1) * 1024))
        for ct in range(4):
            for pp in range(2):
                A('ds_read_b64_tr_b16 %s, v%d offset:%d' % (home2(ks, ct, pp), vTr, sl + 2 * pp * 128 + ct * 32))
    A('s_waitcnt lgkmcnt(0)')
    A('ds_write_b128 v%d, %s offset:%d' % (vLw, v(vD + 4, 4), 31 * 1024))
    tstamp(A, opt, 6, t0, t1, sA)
    if opt.get('diag'):
        A('s_cmp_lg_u32 s%d, 0' % sW)
        A('s_cbranch_scc1 L_o_e3')
        A('s_cmp_lg_u32 s%d, 3' % sC)
        A('s_cbranch_scc1 L_o_e4')
        dbg_mark(A, opt, 6, t0, t1)
        A.label('L_o_e4')
        dbg_mark(A, opt, 7, t0, t1)
        A.label('L_o_e3')
    A('s_lshl_b32 s%d, s%d, 12' % (sA, sI))
    A('s_add_u32 s%d, s%d, 0x%x' % (sA, sA, YY))
    A('s_lshl_b32 s%d, s%d, 8' % (sB, sI))
    A('s_add_u32 s%d, s%d, 0x%x' % (sB, sB, YK))
    bits(A, t1, [(0, 4, 4)], t0)
    A('v_lshlrev_b32 v%d, 2, v0' % t2)
    poll_data(A, ['buffer_load_dwordx4 %s, v%d, %s, s%d offen offset:%d sc1' % (v(vO + 4 * j, 4), t1, S4(WS), sA, 256 * j) for j in range(16)]
              + ['buffer_load_dword v%d, v%d, %s, s%d offen sc1' % (t3, t2, S4(WS), sB)], list(range(vO, vO + 64)) + [t3], t0, 16)
    A('v_not_b32 v%d, v%d' % (t1, t3))
    A('v_ashrrev_i32 v%d, 31, v%d' % (t1, t1))
    A('v_or_b32 v%d, 0x80000000, v%d' % (t1, t1))
    A('v_xor_b32 v%d, v%d, v%d' % (t1, t3, t1))
    A('v_and_b32 v%d, s%d, v%d' % (t1, sHi, t1))
    sigmoid(t1, t1)
    cvt(t1, t1, t1)
    A('v_and_b32 v%d, s%d, v%d' % (t1, sHi, t1))
    A('v_and_b32 v%d, 0x7ff, v%d' % (t3, t3))
    A('v_sub_u32 v%d, 2047, v%d' % (t3, t3))
    for j in range(8):
        A('v_readlane_b32 s%d, v%d, %d' % (sA, t1, j))
        A('v_readlane_b32 s%d, v%d, %d' % (sIdx + j, t3, j))
        b0 = vO + 4 * j
        for h in range(2):
            A('v_pk_add_f32 %s, %s, %s' % (v(b0 + 2 * h, 2), v(b0 + 2 * h, 2), v(b0 + 32 + 2 * h, 2)))
            rnd2(b0 + 2 * h, b0 + 2 * h + 1, t0)
            A('v_mul_f32 v%d, s%d, v%d' % (b0 + 2 * h, sA, b0 + 2 * h))
            A('v_mul_f32 v%d, s%d, v%d' % (b0 + 2 * h + 1, sA, b0 + 2 * h + 1))
            cvt(vY + 2 * j + h, b0 + 2 * h, b0 + 2 * h + 1)
    A('s_and_b32 s%d, s%d, 1' % (sA, sX))
    A('s_lshl_b32 s%d, s%d, 2' % (sA, sA))
    A('s_add_u32 s%d, s%d, s%d' % (sA, sA, sW))
    A('s_lshl_b32 s%d, s%d, 10' % (sA, sA))
    A('s_and_b32 s%d, s%d, 2' % (sB, sX))
    A('s_lshl_b32 s%d, s%d, 13' % (sB, sB))
    A('s_add_u32 s%d, s%d, s%d' % (sA, sA, sB))
    A('s_add_u32 s%d, s%d, 0x%x' % (sA, sA, F_O + 0x2000))
    near(A, sA, sB)
    bits(A, vFa, [(0, 3, 7)], t0, 's%d' % sA)
    A('s_lshl_b32 s%d, s%d, 12' % (sA, sW))
    A('s_add_u32 s%d, s%d, %d' % (sA, sA, LRED))
    A('v_and_b32 v%d, 0x30, v0' % t0)
    A('v_xor_b32 v%d, v%d, v%d' % (t0, t0, vL16))
    A('v_add_u32 v%d, s%d, v%d' % (vWr, sA, t0))
    A('s_lshl_b32 s%d, s%d, 2' % (sA, sW))
    A('v_lshrrev_b32 v%d, 4, v0' % t0)
    A('v_add_u32 v%d, s%d, v%d' % (t0, sA, t0))
    A('v_and_b32 v%d, 15, v0' % t1)
    A('v_xor_b32 v%d, v%d, v%d' % (t0, t0, t1))
    A('v_lshlrev_b32 v%d, 4, v%d' % (t0, t0))
    A('v_lshl_add_u32 v%d, v%d, 8, v%d' % (t0, t1, t0))
    A('v_add_u32 v%d, %d, v%d' % (vRr, LRED, t0))
    A('s_lshl_b32 s%d, s%d, 13' % (sA, sW))
    A('s_lshl_b32 s%d, s%d, 7' % (sB, sI))
    A('s_add_u32 s%d, s%d, s%d' % (sA, sA, sB))
    bits(A, vXa, [(4, 2, 11), (0, 4, 3)], t0, 's%d' % sA)
    A('s_lshl_b32 s%d, s%d, 4' % (sA, sW))
    A('s_add_u32 s%d, s%d, 0x%x' % (sA, sA, GATE))
    bits(A, vGa, [(4, 2, 2)], t0, 's%d' % sA)
    oat = opt.get('oat', 0)
    A('v_mov_b32 v%d, 0' % vFv)
    if oat:
        A('v_cmp_gt_u32 vcc, 8, v0')
        A('v_cndmask_b32 v%d, 64, v%d, vcc' % (vFv, vFv))
        A('v_mov_b32 v%d, 0x%x' % (t0, OOB))
        A('v_cndmask_b32 v%d, v%d, v%d, vcc' % (vFa, t0, vFa))
    A('s_cmp_lt_u32 s%d, 2' % sTeam)
    A('s_cselect_b32 s%d, 0, %d' % (sUn, U0))
    A('s_add_u32 s%d, s%d, s%d' % (sUn, sUn, sTeam))
    A('s_mov_b32 s%d, 0' % sPre)
    A('s_mov_b32 s%d, 0' % sCnt)
    A('s_waitcnt lgkmcnt(0)')
    A('s_barrier')

    def ubase(dst, u):
        return ['s_lshr_b32 s%d, s%d, 1' % (dst, u), 's_lshl_b32 s%d, s%d, 14' % (dst, dst), 's_and_b32 s%d, s%d, 1' % (sA, u),
                's_lshl_b32 s%d, s%d, 12' % (sA, sA), 's_add_u32 s%d, s%d, s%d' % (dst, dst, sA)]

    def hbase(base, hl):
        return ['s_add_u32 s%d, s%d, s%d' % (sB, sHb + hl, base)]
    sHb = 64
    for hl in range(8):
        A('s_add_u32 s%d, s%d, %d' % (sA, sRot, hl))
        A('s_and_b32 s%d, s%d, 7' % (sA, sA))
        A('s_lshl_b32 s%d, s%d, 3' % (sB, sW))
        A('s_add_u32 s%d, s%d, s%d' % (sA, sA, sB))
        A('s_mul_i32 s%d, s%d, 0x%x' % (sA, sA, ROW))
        A('s_add_u32 s%d, s%d, 0x%x' % (sHb + hl, sA, OO))
        near(A, sHb + hl, sA)
    old_ = lambda ks: 'buffer_load_dwordx4 %s, v%d, %s, s%d offen offset:%d sc1' % (v(vO + 4 * (ks & 15), 4), vL16, S4(WS), sB, (ks & 3) * 1024)
    zrd = lambda ks: 'ds_read_b128 %s, v%d offset:%d' % (v(vZ + 4 * (ks % 3), 4), vLw, ks * 1024)

    A(zrd(0)); A(zrd(1))
    A('.p2align 6')
    A.label('L_o_loop')
    A('s_mov_b32 s%d, s%d' % (sU, sUn))
    A('s_cmp_ge_u32 s%d, 128' % sU)
    A('s_cbranch_scc1 L_o_end')
    A('s_cmp_lt_u32 s%d, %d' % (sU, U0))
    A('s_cselect_b32 s%d, 2, 6' % sA)
    A('s_add_u32 s%d, s%d, s%d' % (sUn, sU, sA))
    for o in ubase(sBase, sU):
        A(o)
    A('s_cmp_eq_u32 s%d, 1' % sPre)
    A('s_cbranch_scc1 L_o_go')
    A('s_lshr_b32 s%d, s%d, 1' % (sD, sU))
    A('s_add_u32 s%d, s%d, 1' % (sD, sD))
    def xg(u, oob=None, sB=None):
        ops = ['s_lshl_b32 s%d, s%d, 15' % (sA, u)]
        if oob is not None:
            ops += ['s_and_b32 s%d, s%d, 0x%x' % (sB, oob, OOB), 's_or_b32 s%d, s%d, s%d' % (sA, sA, sB)]
        ops += ['buffer_load_dwordx2 %s, v%d, %s, s%d offen' % (v(vXn, 2), vXa, S4(SRD_B), sA), 's_lshl_b32 s%d, s%d, 6' % (sA, u)]
        if oob is not None:
            ops += ['s_or_b32 s%d, s%d, s%d' % (sA, sA, sB)]
        return ops + ['buffer_load_dword v%d, v%d, %s, s%d offen sc1' % (vGn, vGa, S4(WS), sA)]
    for o in xg(sU):
        A(o)
    wait_flags(A, vFv, vFa, 's%d' % sD, opt.get('osl', 1), oat)
    mark(A, opt, 0)
    if opt.get('prof'):
        A('s_waitcnt lgkmcnt(0)')
    for ks in range(16):
        if ks & 3 == 0:
            for o in hbase(sBase, ks >> 2):
                A(o)
        A(old_(ks))
    A('v_mov_b32 v%d, 0x%x' % (t0, OOB))
    A('buffer_store_dword v%d, v%d, %s, 0 offen' % (t0, t0, S4(WS)))
    A.label('L_o_go')
    cv = lambda d, x, y: 'v_cvt_pk_bf16_f32 v%d, v%d, v%d' % (d, x, y)
    w1 = ['s_lshr_b32 s%d, s%d, 1' % (sD, sUn), 's_add_u32 s%d, s%d, 1' % (sD, sD),
          'v_cmp_gt_i32 vcc, s%d, v%d' % (sD, vFv),
          's_lshl_b32 s%d, s%d, 15' % (sCc, sU), 's_lshl_b32 s%d, s%d, 2' % (sA, sU), 's_add_u32 s%d, s%d, s%d' % (sA, sA, sW),
          's_lshl_b32 s%d, s%d, 2' % (sA, sA), 'v_lshrrev_b32 v%d, 4, v0' % t1, 'v_add_u32 v%d, s%d, v%d' % (t1, sA, t1),
          'v_mov_b32 v%d, 0' % vU, 'v_mov_b32 v%d, 0' % (vU + 1), 'v_mov_b32 v%d, -1' % vFn,
          's_cmp_lg_u64 vcc, 0', 's_cselect_b32 s%d, 0, 0x%x' % (sA, OOB),
          ('buffer_atomic_umin v%d, v%d, %s, s%d offen sc0 sc1' if oat == 1 else 'buffer_load_dword v%d, v%d, %s, s%d offen sc1') % (vFn, vFa, S4(WS), sA),
          'v_mov_b32 v%d, v%d' % (vXv, vXn), 'v_mov_b32 v%d, v%d' % (vXv + 1, vXn + 1), 'v_mov_b32 v%d, v%d' % (vG, vGn)]
    for j in range(8):
        w1 += ['v_cmp_eq_u32 vcc, s%d, v%d' % (sIdx + j, t1), None, 'v_cndmask_b32 v%d, v%d, v%d, vcc' % (vU, vU, vY + 2 * j),
               'v_cndmask_b32 v%d, v%d, v%d, vcc' % (vU + 1, vU + 1, vY + 2 * j + 1)]
    w1 += ubase(sNb, sUn)
    w2 = ['@wf', 'v_max_i32 v%d, v%d, v%d' % (vFv, vFv, vFn), 'v_cmp_gt_i32 vcc, s%d, v%d' % (sD, vFv), None, None,
          's_cmp_eq_u64 vcc, 0', 's_cselect_b32 s%d, 1, 0' % sPre, 's_cselect_b32 s%d, s%d, 0x%x' % (sNb, sNb, OOB)]
    w3 = xg(sUn, sNb, sE) + ['v_sub_f32 v%d, 1.0, v%d' % (vFn, vG), cv(vFn, vFn, vFn), 'v_and_b32 v%d, s%d, v%d' % (vFn, sHi, vFn)]
    for h in range(2):
        x_, u_ = vXv + h, vU + h
        w3 += ['v_lshlrev_b32 v%d, 16, v%d' % (t0, x_), 'v_lshlrev_b32 v%d, 16, v%d' % (t1, u_), 'v_add_f32 v%d, v%d, v%d' % (t0, t0, t1),
               'v_and_b32 v%d, s%d, v%d' % (x_, sHi, x_), 'v_and_b32 v%d, s%d, v%d' % (u_, sHi, u_), 'v_add_f32 v%d, v%d, v%d' % (x_, x_, u_),
               cv(x_, t0, x_), 'v_lshlrev_b32 v%d, 16, v%d' % (t0, x_), 'v_and_b32 v%d, s%d, v%d' % (x_, sHi, x_),
               'v_mul_f32 v%d, v%d, v%d' % (t0, t0, vFn), 'v_mul_f32 v%d, v%d, v%d' % (x_, x_, vFn), cv(x_, t0, x_)]
    vq = ['o%d' % k for k in range(16)] + ['st']
    young = lambda t: vq[::-1].index(t)
    A('s_waitcnt vmcnt(%d) lgkmcnt(1)' % young('o0'))
    for ks in range(32):
        if ks == 14:
            assert not w1
        if ks == 16:
            assert not w2
        work = w1 if ks < 14 else w2 if ks < 16 else w3
        for ct in range(4):
            acc = v(vD + 4 * ct, 4)
            src = home(ks, ct) if ct < 3 else v(vZ + 4 * (ks % 3), 4)
            A('v_mfma_f32_16x16x32_bf16 %s, %s, %s, %s' % (acc, src, v(vO + 4 * (ks & 15), 4), acc if ks else '0'))
            t_ = 4
            if ct == 0 and ks + 2 < 32:
                A(zrd(ks + 2)); t_ += 4
            if ct == 0 and ks & 3 == 0:
                A(hbase(sBase if ks < 16 else sNb, ((ks + 16) >> 2) & 7)[0]); t_ += 4
            if ct == 2 and ks < 31:
                A('s_waitcnt vmcnt(%d) lgkmcnt(%d)' % (young('o%d' % (ks + 1)), ks < 30)); t_ += 4
            if ct == 3:
                A(old_(ks + 16)); vq.append('o%d' % (ks + 16))
                continue
            while work:
                x = work[0]
                if x is None:
                    work.pop(0)
                    break
                if 'v%d, v%d' % (vXv, vXn) in x and ks < 2:
                    break
                e = (max(t_, 8) + 4) if x.startswith('v_') else t_ + (12 if x.startswith('buffer_') else 4)
                if e > 16:
                    break
                t_ = e
                work.pop(0)
                if x == '@wf':
                    x = 's_waitcnt vmcnt(%d)' % young('fl')
                if x.startswith('buffer_'):
                    vq.append('fl' if 'v%d,' % vFn in x else 'xg')
                    if 'xg' == vq[-1]:
                        assert 'o34' not in vq
                A(x)
    assert not w3
    mark(A, opt, 1)
    vR = vD
    for i in range(4):
        A('ds_write_b128 v%d, %s offset:%d' % (vWr, v(vD + 4 * i, 4), 1024 * i))
        A('v_xor_b32 v%d, 0x%x, v%d' % (vWr, (0x40, 0xc0, 0x40, 0x40c0)[i], vWr))
    A('s_waitcnt lgkmcnt(0)')
    A('s_barrier')
    for wv in range(4):
        A('ds_read_b128 %s, v%d offset:%d' % (v(vR + 4 * wv, 4), vRr, wv * 4096))
    A(zrd(0)); A(zrd(1))
    vB = vZ + 8
    for h in range(2):
        A('v_lshlrev_b32 v%d, 16, v%d' % (vB + 2 * h, vXv + h))
        A('v_and_b32 v%d, s%d, v%d' % (vB + 2 * h + 1, sHi, vXv + h))
    A('v_xor_b32 v%d, 0x4000, v%d' % (vRr, vRr))
    for wv in range(1, 4):
        A('s_waitcnt lgkmcnt(%d)' % (5 - wv))
        for h in range(2):
            A('v_pk_add_f32 %s, %s, %s' % (v(vR + 2 * h, 2), v(vR + 2 * h, 2), v(vR + 4 * wv + 2 * h, 2)))
    rnd2(vR, vR + 1, t0)
    rnd2(vR + 2, vR + 3, t1)
    A('s_nop 0')
    for i in range(4):
        A('v_mul_f32 v%d, v%d, v%d' % (vR + i, vR + i, vG))
    A('s_nop 0')
    rnd2(vR, vR + 1, t0)
    rnd2(vR + 2, vR + 3, t1)
    for h in range(2):
        A('v_pk_add_f32 %s, %s, %s' % (v(vR + 2 * h, 2), v(vR + 2 * h, 2), v(vB + 2 * h, 2)))
        cvt(vU + h, vR + 2 * h, vR + 2 * h + 1)
    A('buffer_store_dwordx2 %s, v%d, %s, s%d offen%s' % (v(vU, 2), vXa, S4(SRD_C), sCc, ('', ' sc1', ' nt', ' sc0 sc1', ' sc1 nt')[opt.get('ost', 0)]))
    if opt.get('prof'):
        A('s_add_u32 s%d, s%d, 1' % (sCnt, sCnt))
        A('s_cmp_lg_u32 s%d, 3' % sC)
        A('s_cbranch_scc1 L_o_loop')
        for sg, sl_ in ((4, 9), (16, 11)):
            Lx = A.newlabel('L_pf')
            A('s_cmp_lg_u32 s%d, %d' % (sCnt, sg))
            A('s_cbranch_scc1 ' + Lx)
            tstamp(A, opt, sl_, t0, t1, sA)
            A('s_waitcnt vmcnt(0)')
            A.label(Lx)
    A('s_branch L_o_loop')
    A.label('L_o_end')
    if opt.get('diag'):
        A('s_cmp_lg_u32 s%d, 0' % sW)
        A('s_cbranch_scc1 L_o_e2')
        dbg_mark(A, opt, 5, t0, t1)
        diag_hold(A, opt)
        A.label('L_o_e2')
    tstamp(A, opt, 7, t0, t1, sA)
    mark_dump(A, opt, 2, 12, t0, t1, sA)
    if opt.get('prof'):
        A('s_mov_b32 s78, s%d' % sCnt)
        tstamp(A, opt, 10, t0, t1, sA, now=False)
    A('s_endpgm')
```

```python
import sys, re
from common import *
from workers import proj
from orole import orole


def prologue(A, opt):
    A('s_cmp_ge_u32 s2, 256')
    A('s_cbranch_scc1 L_end0')
    A('s_load_dwordx16 s[64:79], s[0:1], 0')
    A('s_load_dwordx16 s[80:95], s[0:1], 64')
    A('s_getreg_b32 s%d, hwreg(HW_REG_XCC_ID)' % sX)
    A('s_and_b32 s%d, s%d, 7' % (sX, sX))
    if opt.get('sw'):
        A('s_xor_b32 s%d, s%d, 4' % (sX, sX))
    A('v_lshrrev_b32 v1, 6, v0')
    A('v_and_b32 v0, 63, v0')
    A('v_readfirstlane_b32 s%d, v1' % sW)
    A('s_mov_b32 s%d, %d' % (sTO, TIMEOUT))
    if opt.get('cw', 1):
        A('s_lshr_b32 s36, s2, 3')
        A('s_lshl_b32 s37, s%d, 5' % sW)
        A('s_add_u32 s36, s36, s37')
        touch_code(A, 'L_code0', 'L_code1', 36, SRD_E, 2)
        A.label('L_code0')
    A('s_waitcnt lgkmcnt(0)')
    srd(A, WS, P_WS, WS_BYTES)
    srd(A, DBG, P_DBG, 256)
    if opt.get('prof') or opt.get('diag'):
        A('s_memrealtime s[76:77]')
    for i in range(4):
        A('v_mov_b32 v%d, -1' % (4 + i))
    A('s_lshl_b32 s36, s2, 2')
    A('s_add_u32 s36, s36, s%d' % sW)
    A('s_lshl_b32 s37, s36, 10')
    A('s_add_u32 s37, s37, 0x%x' % INIT1)
    A('s_bfe_u32 s38, s36, 0x50003')
    A('s_mul_i32 s38, s38, 0x%x' % ROW)
    A('s_bfe_u32 s39, s36, 0x20001')
    A('s_lshl_b32 s39, s39, 12')
    A('s_add_u32 s38, s38, s39')
    A('s_and_b32 s39, s36, 1')
    A('s_lshl_b32 s39, s39, 10')
    A('s_add_u32 s38, s38, s39')
    A('s_add_u32 s38, s38, 0x%x' % PART)
    A('s_cmp_ge_u32 s36, 768')
    A('s_cselect_b32 s37, s38, s37')
    A('s_lshl_b32 s36, s36, 8')
    A('s_add_u32 s36, s36, 0x%x' % INIT2)
    A('v_lshlrev_b32 v2, 4, v0')
    A('v_lshlrev_b32 v3, 2, v0')
    A('buffer_store_dwordx4 v[4:7], v2, %s, s37 offen sc1' % S4(WS))
    A('buffer_store_dword v4, v3, %s, s36 offen sc1' % S4(WS))
    wu = opt.get('wu', 1)
    wu = 2 * wu
    npre = opt.get('wupre', 0)

    def warm(lo, hi):
        for o in ['buffer_load_dword v252, v8, %s, s38 offen' % S4(SRD_A), 'buffer_load_dword v252, v9, %s, s38 offen offset:0x780' % S4(SRD_A)][lo:hi]:
            A(o)
    if wu:
        A('s_lshr_b32 s38, s2, 3')
        A('s_lshl_b32 s38, s38, 2')
        A('s_add_u32 s38, s38, s%d' % sW)
        A('s_lshr_b32 s39, s38, 5')
        A('s_and_b32 s38, s38, 31')
        A('s_and_b32 s42, s%d, 3' % sX)
        A('s_mov_b64 s[40:41], s[%d:%d]' % (P_WK, P_WK + 1))
        for m_, p_ in ((1, P_WV), (2, P_WQ), (3, P_WO)):
            A('s_cmp_eq_u32 s39, %d' % m_)
            A('s_cselect_b64 s[40:41], s[%d:%d], s[40:41]' % (p_, p_ + 1))
        A('s_cselect_b32 s43, 11, 13')
        A('s_cselect_b32 s44, 21, 11')
        A('s_lshl_b32 s42, s42, s44')
        A('s_add_u32 s44, s43, 5')
        A('s_lshl_b32 s38, s38, s44')
        A('s_add_u32 s38, s38, s42')
        A('v_lshrrev_b32 v8, 1, v0')
        A('v_lshlrev_b32 v8, s43, v8')
        A('v_and_b32 v9, 1, v0')
        A('v_lshl_add_u32 v8, v9, 10, v8')
        A('s_and_b32 s42, s%d, 3' % sX)
        A('s_cmp_eq_u32 s42, 3')
        A('s_cselect_b32 s42, 0, 0x%x' % OOB)
        A('v_lshlrev_b32 v9, 29, v9')
        A('v_add3_u32 v9, v8, v9, s42')
        A('v_add_u32 v8, 384, v8')
        A('s_lshr_b32 s42, s%d, 2' % sX)
        A('s_lshl_b32 s42, s42, 30')
        A('s_add_u32 s38, s38, s42')
        srd(A, SRD_A, 40, 8 * MB)
        warm(0, npre)
    A('s_lshl_b32 s%d, s%d, 5' % (sR, sX))
    if opt.get('fakex'):
        A('s_cmp_eq_u32 s%d, 3' % sX)
        A('s_cbranch_scc0 L_fk')
        A('s_and_b32 s37, s2, 24')
        A('s_cbranch_scc0 L_fk')
        A('v_lshlrev_b32 v3, 5, v0')
        A.label('L_fk1')
        A('buffer_load_dword v1, v3, %s, 0 offen sc1' % S4(DBG))
        A('s_waitcnt vmcnt(0)')
        A('v_readlane_b32 s37, v1, 2')
        A('s_cmp_lg_u32 s37, -1')
        A('s_cbranch_scc1 L_fk1')
        A('s_mov_b32 s%d, 0x40' % sR)
        A.label('L_fk')
    A('s_lshr_b32 s37, s2, 3')
    A('s_lshl_b32 s36, 1, s37')
    A('v_mov_b32 v254, s36')
    A('s_cmp_eq_u32 s%d, 0' % sW)
    A('s_cselect_b32 s36, s%d, 0x%x' % (sR, OOB))
    lane0_addr(A, 255, 36, 13)
    A('s_add_u32 s%d, s%d, s37' % (sR, sR))
    if not opt.get('lc', 1):
        claim(A, {}, npre)
    warm(npre, wu)
    A('s_branch L_go')
    A.label('L_redo')
    A('v_mov_b32 v12, 0')
    A('v_mov_b32 v13, %d' % (LTOP + 4))
    A('s_waitcnt vmcnt(0) lgkmcnt(0)')
    A('s_cmp_lg_u32 s%d, 0' % sW)
    A('s_cbranch_scc1 L_tk')
    A('s_and_b32 s36, s%d, 0xe0' % sR)
    A.label('L_cl')
    A('v_readfirstlane_b32 s38, v254')
    A('s_ff0_i32_b32 s37, s38')
    A('s_cmp_lt_i32 s37, 0')
    A('s_cbranch_scc1 L_full')
    A('s_lshl_b32 s38, 1, s37')
    A('v_mov_b32 v254, s38')
    A('s_mov_b64 exec, 1')
    A('buffer_atomic_or v254, v12, %s, s36 offen sc0 sc1' % S4(DBG))
    A('s_mov_b64 exec, -1')
    A('s_waitcnt vmcnt(0)')
    A('v_readfirstlane_b32 s38, v254')
    A('s_bitcmp1_b32 s38, s37')
    A('s_cbranch_scc1 L_cl')
    A('s_add_u32 s36, s36, s37')
    A('s_branch L_tk_w')
    A.label('L_full')
    A('v_mov_b32 v1, 1')
    A('s_mov_b64 exec, 1')
    A('buffer_atomic_add v1, v12, %s, 0 offen offset:%d sc0 sc1' % (S4(DBG), VOTE + 4))
    A('s_mov_b64 exec, -1')
    A('s_waitcnt vmcnt(0)')
    A('v_readfirstlane_b32 s37, v1')
    A.label('L_ov')
    init_load(A, 1, 3)
    A('s_waitcnt vmcnt(0)')
    arrived(A, 1, 3, 38, 39)
    A('s_cmp_ge_u32 s38, 256')
    A('s_cbranch_scc1 L_ov1')
    A('s_sleep 4')
    timeout_stub(A, 'L_ov')
    A.label('L_ov1')
    A('s_mov_b32 s36, -1')
    A.label('L_ov2')
    A('s_add_u32 s36, s36, 1')
    A('s_cmp_ge_u32 s36, 256')
    A('s_cbranch_scc1 L_tk_w')
    A('s_lshr_b32 s39, s36, 5')
    A('v_readlane_b32 s38, v1, s39')
    A('s_bitcmp1_b32 s38, s36')
    A('s_cbranch_scc1 L_ov2')
    A('s_sub_u32 s37, s37, 1')
    A('s_cbranch_scc0 L_ov2')
    A.label('L_tk_w')
    A('v_mov_b32 v1, s36')
    A('ds_write_b32 v13, v1')
    A('s_waitcnt lgkmcnt(0)')
    A.label('L_tk')
    A('s_barrier')
    A('ds_read_b32 v1, v13')
    A('v_mov_b32 v254, 0')
    A('v_mov_b32 v255, 0x%x' % OOB)
    A('s_waitcnt lgkmcnt(0)')
    A('v_readfirstlane_b32 s%d, v1' % sR)
    A('s_cmp_ge_u32 s%d, 256' % sR)
    A('s_cbranch_scc1 L_end0')
    A.label('L_go')
    A('s_lshr_b32 s%d, s%d, 4' % (sG, sR))
    A('s_and_b32 s%d, s%d, 15' % (sC, sR))
    A('s_cmp_lt_u32 s%d, 128' % sR)
    A('s_cbranch_scc1 L_chain')
    A('s_bfe_u32 s%d, s%d, 0x20005' % (sG, sR))
    A('s_lshl_b32 s%d, s%d, 3' % (sG, sG))
    A('s_and_b32 s36, s%d, 7' % sR)
    A('s_add_u32 s36, s36, s%d' % sG)
    A('s_bfe_u32 s%d, s%d, 0x20003' % (sC, sR))
    A('s_cmp_eq_u32 s%d, 0' % sC)
    A('s_cbranch_scc1 L_k')
    A('s_cmp_eq_u32 s%d, 1' % sC)
    A('s_cbranch_scc1 L_v')
    A('s_cmp_eq_u32 s%d, 2' % sC)
    A('s_cbranch_scc1 L_q')
    A('s_branch L_o')
    A.label('L_end0')
    A('s_endpgm')


def chain(A, opt):
    prof = opt.get('prof', 0) == 1
    shr_ = opt.get('shr', 1)
    lite = opt.get('prof', 0) >= 1
    V = Alloc(1, 252)
    vL16, vL4, vQst, vVst, vKst, vIdx, vSent = [V(n) for n in 'l16 l4 qst vst kst idx sent'.split()]
    vW1q, vW1k, vR1, vR1v = V('w1q'), V('w1k'), V('r1'), V('r1v')
    vW2, vR2, vW2l, vR2l = V('w2'), V('r2'), V('w2l'), V('r2l')
    vT0, vT1, vT2, vT3 = V('t0'), V('t1'), V('t2'), V('t3')
    vQK, vVv, vBias = V('qk'), V('vv'), V('bias')
    vFa, vFv = V('fa'), V('fv')
    vM = V('m', 16, 4)
    vA = V('acc', 24, 4)
    vQ = V('q', 16, 4)
    vKm, vVm = V('km', 8, 4), V('vm', 8, 4)
    vKx, vVx = V('kx', 32, 4), V('vx', 32, 4)
    vS = V('s', 8, 4)
    MM = V('mm', 4, 4)
    vP, vPs = V('p', 4, 4), V('ps', 4, 4)
    vPm, vPms = V('pm', 2), V('pms', 2)
    vOne, vSel, vHalf = V('one', 4, 4), V('sel', 4, 4), V('half', 2)
    vVOx = V('vox', 16, 4)
    vT = V('tacc', 32, 4)
    vVOm = vT + 16
    vF = vT + 16
    vR = vVm
    vO = vA
    vLs = vA + 8
    vR2d = vA + 12
    vPt = vS
    S = Alloc(36, 62)
    sStep, sMemR, sMemW, sQkvW, sQkvR, sQkvR2 = S('step'), S('memr'), S('memw'), S('qkvw'), S('qkvr'), S('qkvr2')
    sKx, sKx2, sVx, sVx2, sPartR, sPartA, sKvm = [S(n) for n in 'kx kx2 vx vx2 pr pa kvm'.split()]
    sA, sB, sCc, sD = S('a'), S('b'), S('cc'), S('d')
    sScale, sFo, sPf = S('scale'), S('fo'), S('pf')
    sN1, sN2, sN3 = 64, 65, 66
    sLo = 0
    sKn, sPartR2, sGp = S('kn'), S('pr2'), S('gp')
    sSide = 3
    sSc2 = 2
    assert vT0 % 2 == 0
    LDSL = 20480
    LDS1, LDS2, LDSW = 0, 12288, 32768
    W1 = lambda t, m, tt: (t * 3 + m) * 16 + tt * 8
    WO = lambda n, j: 192 + n * 16 + j * 4

    A.label('L_chain')
    cap0 = len(A.lines)
    A('s_bitcmp1_b32 s%d, 0' % sC)
    A('s_cselect_b64 s[2:3], s[%d:%d], s[%d:%d]' % (P_WK, P_WK + 1, P_WQ, P_WQ + 1))
    srd(A, SRD_A, 2, 8 * MB)
    srd(A, SRD_C, P_WV, 8 * MB)
    srd(A, SRD_D, P_WO, 8 * MB)
    srd(A, SRD_E, P_MEM0, 16384)
    if opt.get('iw', 1):
        A('s_getpc_b64 s[2:3]')
        A.label('L_pc')
        A('s_add_u32 s2, s2, L_loop-L_pc')
        A('s_addc_u32 s3, s3, 0')
        srd(A, SRD_B, 2, 0)
        A('s_mov_b32 s%d, L_loop_end-L_loop' % (SRD_B + 2))
        A('s_lshl_b32 s%d, s%d, 13' % (sA, sW))
        A('v_lshlrev_b32 v%d, 7, v0' % vT0)
        A('buffer_load_dword v252, v%d, %s, s%d offen' % (vT0, S4(SRD_B), sA))
    vWa, vWb, vWc, vWd, vWe = vT, vT + 1, vT + 2, vT + 3, vT + 4
    nt = ' nt' if opt.get('nt', 31) & 1 else ''
    bits(A, vWd, [(3, 3, 11), (0, 3, 4)], vT0)
    A('s_lshl_b32 s%d, s%d, 2' % (sA, sG))
    A('s_add_u32 s%d, s%d, s%d' % (sA, sA, sW))
    A('s_lshl_b32 s%d, s%d, 18' % (sA, sA))
    A('s_lshl_b32 s%d, s%d, 7' % (sB, sC))
    A('s_add_u32 s%d, s%d, s%d' % (sA, sA, sB))
    if opt.get('wox'):
        A('s_xor_b32 s%d, s%d, %d' % (sA, sA, opt['wox']))
    for k in range(16):
        A('s_add_u32 s%d, s%d, 0x%x' % (sB, sA, k * 8 * 2048))
        A('buffer_load_dwordx4 %s, v%d, %s, s%d offen%s' % (a(192 + 4 * k, 4), vWd, S4(SRD_D), sB, (nt, '', ' sc1')[opt.get('opl', 0)]))
    bits(A, vWa, [(2, 4, 13), (0, 2, 4)], vT0)
    bits(A, vWe, [(3, 3, 13), (0, 3, 4)], vT0)
    sW1v, sW1q = sFo, sKn
    A('s_lshl_b32 s%d, s%d, 21' % (sA, sW))
    A('s_lshl_b32 s%d, s%d, 10' % (sB, sG))
    A('s_add_u32 s%d, s%d, s%d' % (sA, sA, sB))
    A('s_lshl_b32 s%d, s%d, 6' % (sB, sC))
    A('s_add_u32 s%d, s%d, s%d' % (sW1v, sA, sB))
    A('s_and_b32 s%d, s%d, 0xffffff80' % (sW1q, sW1v))

    def w1q(t):
        for i in range(8):
            A('s_add_u32 s%d, s%d, 0x%x' % (sB, sW1q, (64 * t + 8 * i) * 8192))
            A('buffer_load_dwordx4 %s, v%d, %s, s%d offen%s' % (a(W1(t, 0, 0) + 4 * i, 4), vWe, S4(SRD_A), sB, nt))

    def w1v(t):
        for i in range(4):
            A('s_add_u32 s%d, s%d, 0x%x' % (sB, sW1v, (64 * t + 16 * i) * 8192))
            A('buffer_load_dwordx4 %s, v%d, %s, s%d offen%s' % (a(W1(t, 2, 0) + 4 * i, 4), vWa, S4(SRD_C), sB, (nt, '', ' sc1')[opt.get('vpl', 1)]))
    A('v_lshlrev_b32 v%d, 4, v0' % vL16)
    A('v_lshlrev_b32 v%d, 2, v0' % vL4)
    A('v_mov_b32 v%d, -1' % vSent)
    A('v_and_b32 v%d, 8, v0' % vT0)
    A('v_cmp_eq_u32 vcc, 0, v%d' % vT0)
    A('v_mov_b32 v%d, 0xeeee' % vT1)
    A('v_mov_b32 v%d, 0x4444' % vT2)
    A('v_cndmask_b32 v%d, v%d, v%d, vcc' % (vIdx, vT1, vT2))
    A('s_mov_b32 s%d, 0' % sStep)
    A('s_lshl_b32 s%d, s%d, 15' % (sA, sG))
    if shr_:
        A('s_and_b32 s%d, s%d, 0x30000' % (sA, sA))
    A('s_add_u32 s%d, s%d, 0x%x' % (sA, sA, MEMR))
    A('s_lshl_b32 s%d, s%d, 12' % (sB, sW))
    A('s_add_u32 s%d, s%d, s%d' % (sMemR, sA, sB))
    A('s_lshl_b32 s%d, s%d, 10' % (sB, sC))
    A('s_add_u32 s%d, s%d, s%d' % (sA, sA, sB))
    A('s_lshl_b32 s%d, s%d, 8' % (sB, sW))
    A('s_add_u32 s%d, s%d, s%d' % (sMemW, sA, sB))
    if shr_:
        A('s_and_b32 s%d, s%d, 1' % (sB, sG))
        A('s_lshl_b32 s%d, s%d, 7' % (sB, sB))
        A('s_add_u32 s%d, s%d, s%d' % (sMemW, sMemW, sB))
        vM4, vG8 = vSel + 2, vSel + 3
    A('s_lshl_b32 s%d, s%d, 16' % (sA, sG))
    A('s_add_u32 s%d, s%d, 0x%x' % (sQkvW, sA, QKVR))
    A('s_mul_i32 s%d, s%d, 6144' % (sB, sW))
    A('s_add_u32 s%d, s%d, s%d' % (sQkvR, sQkvW, sB))
    A('s_add_u32 s%d, s%d, 4096' % (sQkvR2, sQkvR))
    A('s_lshr_b32 s%d, s%d, 2' % (sB, sC))
    A('s_mul_i32 s%d, s%d, 6144' % (sB, sB))
    A('s_add_u32 s%d, s%d, s%d' % (sQkvW, sQkvW, sB))
    A('s_mov_b32 s%d, %s' % (sScale, f32(128 ** -0.5 * LOG2E)))
    A('s_and_b32 s%d, s%d, 1' % (sA, sW))
    A('s_lshl_b32 s%d, s%d, 1' % (sA, sA))
    A('v_lshrrev_b32 v%d, 5, v0' % vT0)
    A('v_add_u32 v%d, s%d, v%d' % (vT0, sA, vT0))
    A('v_and_b32 v%d, 31, v0' % vT1)
    A('v_lshlrev_b32 v%d, 2, v%d' % (vT1, vT1))
    A('s_bfe_u32 s%d, s%d, 0x10001' % (sB, sC))
    A('s_lshl_b32 s%d, s%d, 10' % (sB, sB))
    A('s_lshr_b32 s%d, s%d, 1' % (sA, sW))
    A('s_lshl_b32 s%d, s%d, 7' % (sCc, sA))
    A('s_add_u32 s%d, s%d, s%d' % (sCc, sCc, sB))
    A('s_lshl_b32 s%d, s%d, 9' % (sA, sA))
    A('s_add_u32 s%d, s%d, s%d' % (sA, sA, sB))
    A('s_add_u32 s%d, s%d, 2048' % (sA, sA))
    A('v_lshl_add_u32 v%d, v%d, 8, v%d' % (vT2, vT0, vT1))
    A('v_add_u32 v%d, s%d, v%d' % (vT2, sCc, vT2))
    A('v_lshl_add_u32 v%d, v%d, 7, v%d' % (vT1, vT0, vT1))
    A('v_add_u32 v%d, s%d, v%d' % (vT3, sA, vT1))
    A('s_bitcmp1_b32 s%d, 0' % sC)
    A('s_cselect_b64 %s, -1, 0' % s(sLo, 2))
    A('s_cselect_b32 s%d, 0, 0x%x' % (sA, OOB))
    A('v_cndmask_b32 v%d, v%d, v%d, %s' % (vQst, vT2, vT3, s(sLo, 2)))
    A('v_add_u32 v%d, s%d, v%d' % (vKst, sA, vT3))
    A('s_and_b32 s%d, s%d, 1' % (sA, sC))
    A('s_lshl_b32 s%d, s%d, 9' % (sA, sA))
    A('s_add_u32 s%d, s%d, s%d' % (sA, sA, sB))
    A('s_add_u32 s%d, s%d, 4096' % (sA, sA))
    A('s_cmp_lt_u32 s%d, 2' % sW)
    A('s_cselect_b32 s%d, s%d, 0x%x' % (sA, sA, OOB))
    A('v_add_u32 v%d, s%d, v%d' % (vVst, sA, vT1))
    A('v_bfe_u32 v%d, v0, 3, 2' % vT1)
    A('v_xor_b32 v%d, v%d, v%d' % (vT1, vT1, vT0))
    A('v_lshlrev_b32 v%d, 5, v%d' % (vT1, vT1))
    A('v_lshl_add_u32 v%d, v%d, 7, v%d' % (vT1, vT0, vT1))
    A('v_and_b32 v%d, 3, v0' % vT2)
    A('v_lshl_add_u32 v%d, v%d, 3, v%d' % (vT1, vT2, vT1))
    A('v_bfe_u32 v%d, v0, 2, 1' % vT2)
    A('v_lshl_add_u32 v%d, v%d, 2, v%d' % (vT1, vT2, vT1))
    A('v_add_u32 v%d, 2048, v%d' % (vR1v, vT1))
    A('s_lshr_b32 s%d, s%d, 1' % (sA, sW))
    A('s_lshl_b32 s%d, s%d, 10' % (sA, sA))
    A('v_add_u32 v%d, s%d, v%d' % (vR1, sA, vT1))
    A('v_bfe_u32 v%d, v0, 4, 1' % vT0)
    A('v_lshrrev_b32 v%d, 5, v0' % vT1)
    A('v_lshl_add_u32 v%d, v%d, 1, v%d' % (vT0, vT0, vT1))
    A('s_mul_i32 s%d, s%d, 3072' % (sA, sW))
    for (dst, kind) in ((vW1q, 0), (vW1k, 1)):
        if kind == 0:
            A('v_bfe_u32 v%d, v0, 2, 2' % vT1)
            A('v_and_b32 v%d, 3, v0' % vT3)
        else:
            A('v_bfe_u32 v%d, v0, 3, 1' % vT1)
            A('v_and_b32 v%d, 1, v0' % vT2)
            A('v_lshl_add_u32 v%d, v%d, 1, v%d' % (vT1, vT1, vT2))
            A('v_bfe_u32 v%d, v0, 1, 2' % vT3)
        A('v_xor_b32 v%d, v%d, v%d' % (vT2, vT1, vT0))
        A('v_lshlrev_b32 v%d, 5, v%d' % (vT2, vT2))
        A('v_lshl_add_u32 v%d, v%d, 7, v%d' % (vT2, vT1, vT2))
        A('v_lshl_add_u32 v%d, v%d, 3, v%d' % (vT2, vT3, vT2))
        A('v_add_u32 v%d, s%d, v%d' % (dst, sA, vT2))
    A('v_cndmask_b32 v%d, v%d, v%d, %s' % (vW1q, vW1q, vW1k, s(sLo, 2)))
    for i in range(4):
        A('v_mov_b32 v%d, 0x3f803f80' % (vOne + i))
        A('v_mov_b32 v%d, 0' % (vPs + i))
    for i in range(2):
        A('v_mov_b32 v%d, 0x3f003f00' % (vHalf + i))
        A('v_mov_b32 v%d, 0' % (vPms + i))
    A('v_and_b32 v%d, 8, v0' % vT0)
    A('v_cmp_eq_u32 vcc, 0, v%d' % vT0)
    A('v_mov_b32 v%d, 0x7f800000' % vT1)
    A('v_mov_b32 v%d, 0xff800000' % vT2)
    A('v_cndmask_b32 v%d, v%d, v%d, vcc' % (vBias, vT1, vT2))
    A('v_and_b32 v%d, 3, v0' % vT0)
    A('v_lshlrev_b32 v%d, 4, v%d' % (vT1, vT0))
    A('v_mov_b32 v%d, 0x3f80' % vT2)
    A('v_lshlrev_b32 v%d, v%d, v%d' % (vT1, vT1, vT2))
    A('v_cmp_gt_u32 vcc, 2, v%d' % vT0)
    A('v_cndmask_b32 v%d, 0, v%d, vcc' % (vT1, vT1))
    A('v_bfe_u32 v%d, v0, 2, 2' % vT0)
    for i in range(4):
        A('v_cmp_eq_u32 vcc, %d, v%d' % (i, vT0))
        A('v_cndmask_b32 v%d, 0, v%d, vcc' % (vSel + i, vT1))
    if shr_:
        bits(A, vM4, [(0, 5, 2), (5, 1, 30)], vT0)
        A('s_and_b32 s%d, s%d, 1' % (sB, sG))
        A('s_lshl_b32 s%d, s%d, 7' % (sB, sB))
        bits(A, vG8, [(4, 2, 8), (0, 4, 3)], vT0, None if opt.get('xhalf') else 's%d' % sB)
    A('s_lshl_b32 s%d, s%d, 2' % (sA, sW))
    A('s_add_u32 s%d, s%d, %d' % (sA, sA, LDSL))
    A('v_add_u32 v%d, s%d, v%d' % (vW2l, sA, vL16))
    hb, rb, db = (5, 3, 1) if shr_ else (1, 4, 2)
    bits(A, vT0, [(0, 1, 2), (rb, 2, 0)], vT1)
    A('v_lshlrev_b32 v%d, 4, v%d' % (vT1, vT0))
    A('v_add_u32 v%d, %d, v%d' % (vR2l, LDSL, vT1))
    bits(A, vT1, [(hb, 1, 1)], vT2)
    A('v_xor_b32 v%d, v%d, v%d' % (vT0, vT0, vT1))
    A('v_lshlrev_b32 v%d, 4, v%d' % (vT0, vT0))
    A('v_lshl_add_u32 v%d, v%d, 7, v%d' % (vT0, vT1, vT0))
    A('v_bfe_u32 v%d, v0, %d, 1' % (vT1, db + 1))
    A('v_lshl_add_u32 v%d, v%d, 7, v%d' % (vT0, vT1, vT0))
    A('v_bfe_u32 v%d, v0, %d, 1' % (vT1, db))
    A('v_lshl_add_u32 v%d, v%d, 3, v%d' % (vT0, vT1, vT0))
    A('s_lshl_b32 s%d, s%d, 9' % (sA, sW))
    A('s_add_u32 s%d, s%d, %d' % (sA, sA, LDS2))
    A('v_add_u32 v%d, s%d, v%d' % (vR2, sA, vT0))
    A('v_bfe_u32 v%d, v0, 3, 1' % vT0)
    A('v_lshlrev_b32 v%d, 9, v%d' % (vT0, vT0))
    A('v_lshrrev_b32 v%d, 4, v0' % vT1)
    A('v_lshl_add_u32 v%d, v%d, 7, v%d' % (vT0, vT1, vT0))
    A('v_and_b32 v%d, 2, v%d' % (vT1, vT1))
    A('v_and_b32 v%d, 7, v0' % vT2)
    A('v_xor_b32 v%d, v%d, v%d' % (vT1, vT1, vT2))
    A('v_lshl_add_u32 v%d, v%d, 4, v%d' % (vT0, vT1, vT0))
    A('s_lshl_b32 s%d, s%d, 11' % (sA, sW))
    A('s_add_u32 s%d, s%d, %d' % (sA, sA, LDS2))
    A('v_add_u32 v%d, s%d, v%d' % (vW2, sA, vT0))

    NHP = opt.get('nhp', 7)

    def walk(p):
        if opt.get('iw', 1) and p < NHP:
            for w in range(3):
                A('s_cmp_eq_u32 s%d, %d' % (sW, w))
                A('s_cbranch_scc1 L_hk%d' % (4 * p + w))
            A('s_branch L_hk%d' % (4 * p + 3))
            A.label('L_hkret%d' % p)

    def mem0_loads():
        bits(A, vT2, [(0, 3, 11), (3, 3, 4)], vT0)
        A('s_lshl_b32 s%d, s%d, 9' % (sA, sW))
        for t in range(4):
            A('buffer_load_dwordx4 %s, v%d, %s, s%d offen offset:%d' % (v(vM + 4 * t, 4), vT2, S4(SRD_E), sA, t * 128))
    A('s_mul_i32 s%d, s%d, 20480' % (sCc, sW))
    A('s_add_u32 s%d, s%d, %d' % (sCc, sCc, LDSW))
    vWf = vT + 5
    bits(A, vWb, [(0, 6, 4), (5, 1, 5)], vT0, 's%d' % sCc)
    bits(A, vWf, [(0, 6, 4), (4, 1, 5), (5, 1, 7)], vT0, 's%d' % sCc)
    bits(A, vWc, [(2, 1, 11), (2, 1, 6), (4, 2, 9), (4, 1, 5), (5, 1, 5), (3, 1, 7), (0, 2, 3)], vT0, 's%d' % sCc)
    claim(A, opt, 16)
    w1q(0); w1v(0)
    walk(0)
    A('s_waitcnt vmcnt(12)')
    confirm(A, opt, vT0, vT1, sA)
    for k in range(16):
        A('ds_write_b128 v%d, %s offset:%d' % (vWb, a(192 + 4 * k, 4), k * 1056))
        if k == 7:
            A('s_waitcnt lgkmcnt(0)')
    A('s_waitcnt lgkmcnt(0)')
    for n in range(4):
        for j in range(4):
            for pp in range(2):
                A('ds_read_b64_tr_b16 %s, v%d offset:%d' % (a(WO(n, j) + 2 * pp, 2), vWc, 4 * j * 1056 + 2 * pp * 128 + n * 32))
        A('s_waitcnt lgkmcnt(0)')
    if opt.get('prof'):
        A('s_memrealtime s[98:99]')
    bits(A, vWc, [(5, 1, 11), (5, 1, 7), (4, 1, 9), (4, 1, 5), (3, 1, 10), (3, 1, 6), (2, 1, 7), (0, 2, 3)], vT0, 's%d' % sCc)
    bits(A, vWd, [(5, 1, 10), (5, 1, 8), (4, 1, 8), (4, 1, 5), (3, 1, 9), (3, 1, 7), (2, 1, 6), (0, 2, 3)], vT0, 's%d' % sCc)
    def w1_round(t, extra=0):
        if t == 2:
            mem0_loads()
            init_load(A, vT0, vT1)
        if t < 3:
            w1q(t + 1)
            walk(t + 1)
        A('s_waitcnt vmcnt(%d)' % ((12, 12, 17, 4 + extra)[t]))
        for i in range(8):
            A('ds_write_b128 v%d, %s offset:%d' % (vWb, a(W1(t, 0, 0) + 4 * i, 4), i * 1088))
        for m in range(2):
            A('s_waitcnt lgkmcnt(4)')
            for tt in range(2):
                for pp in range(4):
                    A('ds_read_b64_tr_b16 %s, v%d offset:%d' % (a(W1(t, m, tt) + 2 * pp, 2), vWc, 4352 * (pp >> 1) + 256 * (pp & 1) + m * 64 + tt * 32))
        if t < 3:
            w1v(t + 1)
            walk(t + 4)
        A('s_waitcnt vmcnt(%d) lgkmcnt(0)' % (12 if t < 3 else extra))
        for i in range(4):
            A('ds_write_b128 v%d, %s offset:%d' % (vWf, a(W1(t, 2, 0) + 4 * i, 4), 9216 + i * 1280))
        for tt in range(2):
            for pp in range(4):
                A('ds_read_b64_tr_b16 %s, v%d offset:%d' % (a(W1(t, 2, tt) + 2 * pp, 2), vWd, 9216 + 2560 * (pp >> 1) + 128 * (pp & 1) + tt * 32))
        A('s_waitcnt lgkmcnt(0)')
    for t in range(3):
        w1_round(t)

    def vox(fill=None):
        fill = fill or {}
        k = 0
        for n in range(4):
            for j in range(4):
                for tt in range(2):
                    acc = v(vT + (n * 2 + tt) * 4, 4)
                    if opt.get('xnovox') and fill:
                        A('s_nop 3')
                    else:
                        A('v_mfma_f32_16x16x32_bf16 %s, %s, %s, %s' % (acc, v(vVx + (tt * 4 + j) * 4, 4), a(WO(n, j), 4), acc if j else '0'))
                    for o in fill.get(k, []):
                        A(o)
                    if len(fill) > 4 and opt.get('vsp') and k >= opt.get('vs0', 0):
                        A('s_nop %d' % (opt['vsp'] + 1 - min(len(fill.get(k, [])), 2)))
                    k += 1
                    if n > 0 and j in (1, 2):
                        jj = 2 * (j - 1) + tt
                        b = vT + (n - 1) * 8 + 2 * jj
                        A('v_cvt_pk_bf16_f32 v%d, v%d, v%d' % (vVOx + (n - 1) * 4 + jj, b, b + 1))

    def vox_tail():
        return ['v_cvt_pk_bf16_f32 v%d, v%d, v%d' % (vVOx + 12 + jj, vT + 24 + 2 * jj, vT + 25 + 2 * jj) for jj in range(4)]

    def paced(ops, every=4):
        for i, o in enumerate(ops):
            A(o)
            if i % every == every - 1 and i != len(ops) - 1:
                A('s_nop 0')

    def zeros(base, n, val='0'):
        if opt.get('z64', 0) and n % 2 == 0:
            return [o for i in range(0, n, 2) for o in ('v_mov_b64 %s, %s' % (v(base + i, 2), val), 's_nop 0')]
        return ['v_mov_b32 v%d, %s' % (base + i, val) for i in range(n)]

    cap_vm(A, cap0)
    wait_init(A, vT0, vT1, sA, sB, 2)
    if opt.get('rt', 1):
        A('s_lshl_b32 s%d, s%d, 2' % (sA, sR))
        A('s_add_u32 s%d, s%d, s%d' % (sA, sA, sW))
        A('s_lshl_b32 s%d, s%d, 9' % (sA, sA))
        A('s_add_u32 s%d, s%d, 0x%x' % (sB, sA, QKVR - MEMR - 512))
        A('v_cmp_gt_u32 vcc, 4, v0')
        A('v_mov_b32 v%d, s%d' % (vT0, sB))
        A('v_cndmask_b32 v%d, v%d, 0, vcc' % (vT0, vT0))
        A('v_min_u32 v%d, 11, v0' % vT1)
        A('v_lshl_add_u32 v%d, v%d, 7, v%d' % (vT1, vT1, vT0))
        A('s_add_u32 s%d, s%d, 0x%x' % (sA, sA, MEMR))
        A('buffer_load_dword v252, v%d, %s, s%d offen sc1' % (vT1, S4(WS), sA))
    g4 = [int(x) for x in str(opt['g4']).split('.')] if 'g4' in opt else None
    if g4:
        A('s_and_b32 s%d, s%d, 3' % (sA, sX))
        A('s_lshl_b32 s%d, s%d, 3' % (sA, sA))
        A('s_lshr_b32 s%d, 0x%x, s%d' % (sGp, sum(g << (8 * i) for i, g in enumerate(g4)), sA))
        A('s_and_b32 s%d, s%d, 255' % (sGp, sGp))
    bits(A, 253, [(0, 3, 7), (3, 3, 28)], vT0)
    A('s_lshl_b32 s%d, s%d, 2' % (sA, sG))
    A('s_add_u32 s%d, s%d, s%d' % (sA, sA, sW))
    A('s_lshl_b32 s%d, s%d, 8' % (sCc, sA))
    A('s_add_u32 s%d, s%d, 0x%x' % (sCc, sCc, F_KV))
    near(A, sCc, sB)
    bits(A, vFa, [(0, 1, 7)], vT0, 's%d' % sCc)
    A('s_mul_i32 s%d, s%d, 0x%x' % (sKx, sA, ROW))
    near(A, sKx, sB)
    A('s_add_u32 s%d, s%d, 0x%x' % (sVx, sKx, VX))
    A('s_add_u32 s%d, s%d, 0x%x' % (sKx, sKx, KX))
    A('s_add_u32 s%d, s%d, 4096' % (sKx2, sKx))
    A('s_add_u32 s%d, s%d, 4096' % (sVx2, sVx))
    A('s_and_b32 s%d, s%d, 7' % (sB, sC))
    A('s_lshl_b32 s%d, s%d, 10' % (sB, sB))
    A('s_cmp_lt_u32 s%d, 8' % sC)
    A('s_cselect_b32 s%d, s%d, s%d' % (sPf, sKx, sVx))
    A('s_add_u32 s%d, s%d, s%d' % (sPf, sPf, sB))
    A('s_add_u32 s%d, s%d, 0x%x' % (sPf, sPf, SEG))
    A('s_lshl_b32 s%d, s%d, 1' % (sPartR, sC))
    A('s_lshr_b32 s%d, s%d, 1' % (sB, sW))
    A('s_add_u32 s%d, s%d, s%d' % (sPartR, sPartR, sB))
    A('s_mul_i32 s%d, s%d, 0x%x' % (sPartR, sPartR, ROW))
    A('s_and_b32 s%d, s%d, 1' % (sB, sW))
    A('s_lshl_b32 s%d, s%d, 12' % (sB, sB))
    A('s_add_u32 s%d, s%d, s%d' % (sPartR, sPartR, sB))
    A('s_add_u32 s%d, s%d, 0x%x' % (sPartR, sPartR, PART))
    near(A, sPartR, sB)
    A('s_lshl_b32 s%d, s%d, 8' % (sB, sG))
    A('s_add_u32 s%d, s%d, s%d' % (sPartA, sPartR, sB))
    A('s_and_b32 s%d, s%d, %d' % (sB, sB, 1024 if opt.get('gx', 1) else 0))
    A('s_add_u32 s%d, s%d, s%d' % (sPartR, sPartR, sB))
    A('s_xor_b32 s%d, s%d, 1024' % (sPartR2, sPartR))
    A('s_lshl_b32 s%d, s%d, 1' % (sA, sG))
    A('s_lshr_b32 s%d, s%d, 3' % (sB, sC))
    A('s_add_u32 s%d, s%d, s%d' % (sA, sA, sB))
    A('s_mul_i32 s%d, s%d, 0x%x' % (sKvm, sA, ROW))
    near(A, sKvm, sB)
    A('s_bfe_u32 s%d, s%d, 0x10002' % (sB, sC))
    A('s_lshl_b32 s%d, s%d, 12' % (sB, sB))
    A('s_add_u32 s%d, s%d, s%d' % (sKvm, sKvm, sB))
    A('s_add_u32 s%d, s%d, 0x%x' % (sKvm, sKvm, KVM - 2048))

    def kv_ops(lab, ahead=2):
        return ['v_readlane_b32 s%d, v%d, 0' % (sCc, vFv), 'v_readlane_b32 s%d, v%d, 1' % (sB, vFv),
                's_add_u32 s%d, s%d, %d' % (sA, sStep, ahead), 's_min_u32 s%d, s%d, 64' % (sA, sA),
                's_min_i32 s%d, s%d, s%d' % (sB, sB, sCc), 's_max_i32 s%d, s%d, s%d' % (sKn, sKn, sB),
                's_cmp_lt_i32 s%d, s%d' % (sKn, sA), 's_cbranch_scc1 %s' % lab]

    def kv_check(lab, ahead=2):
        for o in kv_ops(lab, ahead):
            A(o)

    ld_flags = 'buffer_load_dword v%d, v%d, %s, 0 offen sc1' % (vFv, vFa, S4(WS))
    A('s_mov_b32 s%d, 0' % sKn)
    rmask = sum(1 << int(x) for x in str(opt.get('rf', '0.1.2.3.5.7.9.12.15.19.24.31.39.47')).split('.'))
    A('s_mov_b32 s%d, 0x%x' % (sLo, rmask & 0xffffffff))
    A('s_mov_b32 s%d, 0x%x' % (sLo + 1, rmask >> 32))
    A('s_mov_b32 s%d, 0' % sFo)
    A('s_mov_b32 s%d, s%d' % (sSc2, sScale))
    A(ld_flags)
    paced(['v_min_u32 v%d, -2, v%d' % (vM + i, vM + i) for i in range(16)])
    A('s_mov_b32 s%d, 0' % sD)
    if opt.get('qz'):
        paced(zeros(vQ, 16))
    paced(zeros(vA, 24) + zeros(MM, 4) + (zeros(vQ, 4, '-1') + zeros(vQ + 8, 4, '-1') + zeros(vKm, 8, '-1') if opt.get('h2m') else []))
    w1_round(3, 2)
    assert opt.get('rt', 1)

    def first_kv():
        ld = lambda dst, so, off: 'buffer_load_dwordx4 %s, v%d, %s, s%d offen offset:%d sc1' % (v(dst, 4), vL16, S4(WS), so, off)
        A('s_sub_u32 s%d, s%d, 0x%x' % (sA, sPf, SEG))
        A('buffer_load_dword v252, v253, %s, s%d offen sc1' % (S4(WS), sA))
        for (b_, p_) in ((vVx, (sVx, sVx2)), (vKx, (sKx, sKx2))):
            for f in range(8):
                A(ld(b_ + 4 * f, p_[f >> 2], (f & 3) * 1024))
    A('s_waitcnt vmcnt(0)')
    kv_check('L_c_nokv', 1)
    first_kv()
    A('s_branch L_c_kvok')
    A.label('L_c_nokv')
    A('s_add_u32 s%d, s%d, 0x%x' % (sKx, sKx, OOB))
    A('s_add_u32 s%d, s%d, 0x%x' % (sKx2, sKx2, OOB))
    A('s_add_u32 s%d, s%d, 0x%x' % (sVx, sVx, OOB))
    A.label('L_c_kvok')
    tstamp(A, opt, 1, vT2, vT3, sA)
    tstamp(A, opt, 2, vT0, vT1, sA)
    if opt.get('diag') or opt.get('hold'):
        A('s_memrealtime s[96:97]')
        A('s_memtime s[98:99]')
        A('s_waitcnt lgkmcnt(0)')

    PT = 96
    stamps = []

    names = opt.get('marks', 'm0ok,st1end,qkvst,q0ok,Send,st2end,partst').split(',') + ['gath', 'gathok']
    assert len(names) == 9

    def stamp(nm):
        if prof and nm in names:
            i = names.index(nm)
            A('s_memtime s[%d:%d]' % (12 + 2 * i, 13 + 2 * i))

    if lite:
        vTr = V('trace')
        A('v_mov_b32 v%d, 0' % vTr)
        A('s_memtime s[28:29]')
        A('s_memtime s[96:97]')
        A('s_memrealtime s[98:99]')
        A('s_waitcnt lgkmcnt(0)')
        for n_ in (sN1, sN2, sN3):
            A('s_mov_b32 s%d, 0' % n_)

    if opt.get('xnobulk'):
        for n_ in (sKx, sKx2, sVx, sVx2)[:opt['xnobulk']]:
            A('s_mov_b32 s%d, 0x%x' % (n_, OOB))
    loc = '@LOC@'

    def ldx4(dst, so, off):
        mod = 'sc1'
        if so in (sKx, sKx2, sVx, sVx2):
            mod = ('sc1', '', 'nt', 'sc0 sc1')[opt.get('blm', 0)]
        elif so in (sMemR, sQkvR, sQkvR2):
            mod = ('sc1', 'sc0 sc1', 'nt')[opt.get('hlm', 0)]
        return 'buffer_load_dwordx4 %s, v%d, %s, s%d offen offset:%d %s' % (v(dst, 4), vL16, S4(WS), so, off, mod)

    def ld_mem(t):
        A(ldx4(vM + 4 * t, sMemR, t * 1024))

    def chk4(b, tmp):
        return ['v_max3_u32 v%d, v%d, v%d, v%d' % (tmp, b, b + 1, b + 2), 'v_max_u32 v%d, v%d, v%d' % (tmp, tmp, b + 3)]

    def chk4more(b, tmp):
        return ['v_max3_u32 v%d, v%d, v%d, v%d' % (tmp, tmp, b, b + 1), 'v_max3_u32 v%d, v%d, v%d, v%d' % (tmp, tmp, b + 2, b + 3)]

    def cmpv(tmp):
        return 'v_cmp_eq_u32 vcc, -1, v%d' % tmp

    rx = opt.get('rx', 1)

    def wchk(bases, tmp):
        if not rx:
            ops = chk4(bases[0], tmp)
            for b in bases[1:]:
                ops += chk4more(b, tmp)
            return ops, cmpv(tmp)
        if len(bases) == 1:
            return [], cmpv(bases[0] + 3)
        return ['v_max_u32 v%d, v%d, v%d' % (tmp, bases[0] + 3, bases[1] + 3)], cmpv(tmp)

    def guard(r_):
        if not opt.get('nomin', 1):
            A('v_min_u32 v%d, -2, v%d' % (r_, r_))

    def smf1(t, m, tt):
        A('v_smfmac_f32_16x16x64_bf16 %s, %s, %s, v%d' % (v(vA + 8 * m + 4 * tt, 4), v(vM + 4 * t, 4), a(W1(t, m, tt), 8), vIdx))

    def add2(d, x, y):
        if opt.get('pk', 1):
            A('v_pk_add_f32 %s, %s, %s' % (v(d, 2), v(x, 2), v(y, 2)))
        else:
            A('v_add_f32 v%d, v%d, v%d' % (d, x, y))
            A('v_add_f32 v%d, v%d, v%d' % (d + 1, x + 1, y + 1))

    def fold(m, vs=None, mid=3, part=3):
        b = vA + 8 * m
        f = vF + 4 * m
        n_ = 0
        for tt in range(2 if part & 1 else 0):
            for j in range(2):
                A('v_permlane32_swap_b32 v%d, v%d' % (b + 4 * tt + j, b + 4 * tt + j + 2))
                if vs and n_ < mid:
                    smf1(*vs.pop(0))
                n_ += 1
        for tt in range(2 if part & 1 else 0):
            add2(f + 2 * tt, b + 4 * tt, b + 4 * tt + 2)
        if vs:
            smf1(*vs.pop(0))
        if not part & 2:
            return
        A('ds_write2st64_b64 v%d, %s, %s offset0:%d offset1:%d' % (vW1q if m < 2 else vW1k, v(f, 2), v(f + 2, 2), 2 * m, 2 * m + 1))

    def rd1(ad, r_=None):
        r_ = vR if r_ is None else r_
        for w in range(4):
            A('ds_read2st64_b32 %s, v%d offset0:%d offset1:%d' % (v(r_ + 2 * w, 2), ad, 12 * w, 12 * w + 2))

    def red1(dst, extra='', r_=None, more=0):
        r_ = vR if r_ is None else r_
        A('s_waitcnt lgkmcnt(%d)' % (0 if prof else 2 + more))
        A(extra)
        add2(r_, r_, r_ + 2)
        A('s_waitcnt lgkmcnt(%d)' % (0 if prof else more))
        add2(r_ + 4, r_ + 4, r_ + 6)
        add2(r_, r_, r_ + 4)
        A('v_cvt_pk_bf16_f32 v%d, v%d, v%d' % (dst, r_, r_ + 1))
        guard(dst)

    def st4(src, ad, so, mod):
        return 'buffer_store_dword v%d, v%d, %s, s%d offen%s' % (src, ad, S4(WS), so, mod)

    ld_q = [ldx4(vQ, sQkvR, 0), ldx4(vQ + 8, sQkvR, 1024)]
    ld_k = [ldx4(vKm, sQkvR, 2048), ldx4(vKm + 4, sQkvR, 3072)]
    ld_v = [ldx4(vVm, sQkvR2, 0), ldx4(vVm + 4, sQkvR2, 1024)]
    st_v = st4(vVv, vVst, sQkvW, loc)
    ld_part = [ldx4(vPt, sPartR, 0), ldx4(vPt + 4, sPartR2, 0)]
    red3 = ['v_mfma_f32_16x16x32_bf16 %s, %s, %s, %s' % (v(vP, 4), v(vSel, 4), v(vPt + 4 * i, 4), v(vP, 4) if i else '0') for i in range(2)]
    vMa = vL4
    if shr_:
        ld_part = ['buffer_load_dwordx2 %s, v%d, %s, s%d offen sc1' % (v(vPt + 2 + 4 * i, 2), vG8, S4(WS), (sPartR, sPartR2)[i]) for i in range(2)]
        red3 = ['v_mfma_f32_16x16x16_bf16 %s, %s, %s, %s' % (v(vP, 4), v(vSel, 2), v(vPt + 2 + 4 * i, 2), v(vP, 4) if i else '0') for i in range(2)]
        vMa = vM4
        assert rx and opt.get('lim3', -1) < 0
    X0, X1 = vS, vS + 4
    cnt = lambda n_, k_=1: A('s_add_u32 s%d, s%d, %d' % (n_, n_, k_)) if lite else None

    hooks = []
    dry = []

    def hook(align=False):
        if not opt.get('iw', 1):
            return
        if align:
            A('.p2align 6')
        hooks.append(len(hooks))
        A.label('L_hk%d' % hooks[-1])
        A('s_branch @HK%d@' % hooks[-1])

    def nxt(Sm, t):
        for d in range(1, 5):
            if Sm >> ((t + d) & 3) & 1:
                return (t + d) & 3

    def block(Sm, t, wait=None):
        rest = Sm & ~(1 << t)
        n = nxt(rest, t) if rest else None
        if rest:
            ops, cm = wchk([vM + 4 * n], vT0) if wait is not None else (chk4(vM + 4 * n, vT0), cmpv(vT0))
        smf1(t, 0, 0)
        if rest and ops:
            if wait is not None:
                A('s_waitcnt vmcnt(%d)' % wait)
            for o in ops:
                A(o)
        smf1(t, 0, 1)
        if rest:
            if not ops:
                A('s_waitcnt vmcnt(%d)' % wait)
            A(cm)
        smf1(t, 1, 0)
        smf1(t, 1, 1)
        return rest, n

    fc = opt.get('fc', 5)

    def fast_chains():
        def flab(Sm, t, again=False):
            n_ = bin(Sm).count('1')
            if fc < 4 or n_ < 2 or (again and n_ < (3 if fc == 4 else 2 if fc == 5 else 4)):
                return 'L_F%d_%d' % (Sm, t)
            return 'L_G%d_%d' % (Sm, t)

        def chain_(lab, Sm, que, fail2):
            if opt.get('iw', 1) == 2:
                A('.p2align 6')
            else:
                hook(True)
            A.label(lab)
            if lab == 'L_G15_0' and opt.get('spec', 1):
                A.label('L_Z')
            ld_mem(que[-1])
            if lab == 'L_G15_0' and opt.get('spec', 1):
                for i in range(0, 8, 2):
                    A('v_mov_b64 %s, 0' % v(vA + i, 2))
            cnt(sN1)
            if fc >= 4 and que[-1] == max(que):
                A('s_sub_u32 s%d, s%d, 1' % (sTO, sTO))
                A('s_cbranch_scc1 L_end0')
            dry.append(len(dry))
            A.label('L_dr%d' % dry[-1])
            A('s_waitcnt vmcnt(%d)' % (len(que) - 1))
            ops, cm = wchk([vM + 4 * que[0]], vT0)
            for o in ops + [cm]:
                A(o)
            A('s_cbranch_vccnz %s' % (fail2 or 'L_F%d_%d' % (Sm, que[0])))
            if Sm == 15:
                stamp('m0ok')
            for i, t in enumerate(que):
                stamp('B%d' % (4 - len(que) + i))
                last = i + 2 == len(que)
                if last and len(que) < 4:
                    block(1 << t, t)
                    Sm &= ~(1 << t)
                    n = que[-1]
                    dp = opt.get('dp', 0) >= len(que)
                    if dp:
                        ld_mem(n)
                    A('s_waitcnt vmcnt(%d)' % dp)
                    ops, cm = wchk([vM + 4 * n], vT0) if not dp else (chk4(vM + 4 * n, vT0), cmpv(vT0))
                    for o in ops + [cm]:
                        A(o)
                else:
                    Sm, n = block(Sm, t, len(que) - 2 - i)
                if Sm:
                    assert n == que[i + 1]
                    A('s_cbranch_vccnz ' + flab(Sm, n))
            if opt.get('iw', 1) >= 2:
                A('s_cbranch_execnz L_T1')
                if opt.get('iw', 1) == 3:
                    A('s_call_b64 s[68:69], L_drp')
                A('s_branch @DR%d@' % dry[-1])
            else:
                A('s_branch L_T1')
                if opt.get('he', 1):
                    hook()
        if fc >= 4:
            for Sm in sorted(range(1, 16), key=lambda x: -bin(x).count('1')):
                ts = [t for t in range(4) if Sm >> t & 1]
                if len(ts) < 2:
                    continue
                for t in ts:
                    que = [u for u in ((t + d) & 3 for d in range(1, 5)) if Sm >> u & 1]
                    chain_('L_G%d_%d' % (Sm, t), Sm, que, flab(Sm, que[0], True))
            return
        chain_('L_G15_0', 15, [1, 2, 3, 0], 'L_G15_1' if fc > 1 else None)
        if fc > 1:
            chain_('L_G15_1', 15, [2, 3, 0, 1], 'L_G15_2' if fc > 2 else None)
        if fc > 2:
            chain_('L_G15_2', 15, [3, 0, 1, 2], None)
        chain_('L_G14_1', 14, [2, 3, 1], None)
        chain_('L_G12_2', 12, [3, 2], None)

    def first_pass():
        A('s_waitcnt vmcnt(3)')
        if opt.get('spec', 1):
            assert rx and fc
            A(cmpv(vM + 3))
            smf1(0, 0, 0); smf1(0, 0, 1)
            A('s_cbranch_vccnz L_Z')
            stamp('m0ok')
            A('s_waitcnt vmcnt(2)')
            A(cmpv(vM + 7))
            smf1(0, 1, 0); smf1(0, 1, 1)
            A('s_cbranch_vccnz L_G14_1')
            Sm = 14
            for t in range(1, 4):
                stamp('B%d' % t)
                Sm, n = block(Sm, t, 2 - t)
                if Sm:
                    A('s_cbranch_vccnz L_%s%d_%d' % ('G' if n < 3 else 'F', Sm, n))
            return
        ops, cm = wchk([vM], vT0)
        for o in ops:
            A(o)
        A(cm)
        A('s_cbranch_vccnz L_%s15_0' % ('G' if fc else 'F'))
        stamp('m0ok')
        Sm = 15
        for t in range(4):
            stamp('B%d' % t)
            Sm, n = block(Sm, t, 2 - t)
            if Sm:
                A('s_cbranch_vccnz L_%s%d_%d' % ('G' if fc and n < 3 else 'F', Sm, n))

    def poll_nodes_ooo():
        for Sm in sorted(range(1, 16), key=lambda x: -bin(x).count('1')):
            ts = [t for t in range(4) if Sm >> t & 1]
            if fc == 5 and len(ts) > 1:
                continue
            hook(True)
            for t in ts:
                A.label('L_P%d_%d' % (Sm, t))
                A('s_waitcnt vmcnt(3)')
                for o in chk4(vM + 4 * t, vT0):
                    A(o)
                A(cmpv(vT0))
                A('s_cbranch_vccz L_V%d_%d' % (Sm, t))
                A.label('L_F%d_%d' % (Sm, t))
                ld_mem(t)
                cnt(sN1)
            timeout_stub(A, 'L_P%d_%d' % (Sm, ts[0]))
            if len(ts) > 1:
                hook()
            for t in ts:
                hook(True)
                A.label('L_V%d_%d' % (Sm, t))
                if Sm == 15:
                    stamp('m0ok')
                stamp('B%d' % (4 - len(ts)))
                rest, n = block(Sm, t)
                if rest:
                    A('s_cbranch_vccz L_V%d_%d' % (rest, n))
                    A('s_branch L_F%d_%d' % (rest, n))
                else:
                    A('s_branch L_T1')

    def poll_nodes():
        if opt.get('ooo', 1):
            return poll_nodes_ooo()
        for k in range(4):
            full = 15 & ~((1 << k) - 1)
            for Sm in sorted(range(1, 16), key=lambda x: -bin(x).count('1')):
                if Sm & ~full:
                    continue
                ts = [t for t in range(4) if Sm >> t & 1]
                for t in ts:
                    rest = Sm & ~(1 << t)
                    A.label('L_P%d_%d_%d' % (k, Sm, t))
                    A('s_waitcnt vmcnt(%d)' % opt.get('lim', 3))
                    for o in chk4(vM + 4 * t, vT0):
                        A(o)
                    A(cmpv(vT0))
                    A('s_cbranch_vccz %s' % ('L_P%d_%d_%d' % (k, rest, nxt(rest, t)) if rest else 'L_G%d' % k))
                    if Sm == full and t == k:
                        A.label('L_F%d_%d' % (Sm, t))
                    ld_mem(t)
                    cnt(sN1)
                timeout_stub(A, 'L_P%d_%d_%d' % (k, Sm, ts[0]))
        for k in range(4):
            A.label('L_G%d' % k)
            if k == 0:
                stamp('m0ok')
            stamp('B%d' % k)
            block(1 << k, k)
        A('s_branch L_T1')

    A('s_cmp_lt_u32 s%d, %d' % (sPure, NPURE))
    for t in range(4):
        block(1 << t, t)
    A('s_cbranch_scc1 L_T1_i')
    A('s_branch L_T1')
    loop_start = len(A.lines)
    A('.p2align 6')
    for i in range(opt.get('al', 0)):
        A('s_nop 0')
    A.label('L_loop')
    first_pass()
    A.label('L_T1')
    stamp('T1')
    kxl = [ldx4(vKx + 4 * f, (sKx, sKx2)[f >> 2], (f & 3) * 1024) for f in range(8)]
    vxl = [ldx4(vVx + 4 * f, (sVx, sVx2)[f >> 2], (f & 3) * 1024) for f in range(8)]
    na, nc, nd, ne = opt.get('na', 3), opt.get('nc', 4), opt.get('nd', 1), opt.get('nq', 0)
    kb_ = max(8 - nc - nd - na, 0)
    ka = kxl[nc + nd + kb_:]
    nva = na - len(ka)
    ka = ka + vxl[:nva]
    ke = vxl[nva:nva + ne]
    bulk = vxl[nva + ne:] + kxl[nc + nd:nc + nd + kb_]
    nk = lambda: A(ka.pop(0)) if ka else None
    qk = ld_q + ld_k
    order = []
    zq = []
    if opt.get('split', 1):
        vf = str(opt.get('vf', '0')).zfill(4)
        vs = [(t, 2, tt) for t in range(4) for tt in range(2)]
        for i in range(opt.get('na0', 0)):
            nk()
        fold(0, vs if int(vf[0]) else None, int(vf[1]))
        stamp('f0')
        for i in range(opt.get('na1', 0)):
            nk()
        fold(1, vs if int(vf[0]) else None, int(vf[2]))
        stamp('f1')
        for i in range(int(vf[3]) if int(vf[0]) else 2 * opt.get('nv', 2)):
            smf1(*vs.pop(0))
            if i & 1 == 0:
                nk()
        A('s_waitcnt lgkmcnt(0)')
        stamp('st1end')
        A('s_barrier')
        stamp('bar1')
        rd1(vR1)
        i = 0
        while vs:
            smf1(*vs.pop(0))
            if i & 1 == 0:
                nk()
            i += 1
        while ka:
            nk()
        if int(vf[0]) == 2:
            fold(2, part=1)
        red1(vQK)
        A(st4(vQK, vQst, sQkvW, loc))
        stamp('qkvst')
        slots = [int(ch) for ch in str(opt.get('h2s', '2244')).zfill(4)]

        def slot(i):
            for n_, sl_ in enumerate(slots):
                if sl_ == i:
                    A(qk[n_]); order.append(qk[n_])
        for o in ke[:1]:
            A(o)
        fold(2, part=2 if int(vf[0]) == 2 else 3)
        for o in ke[1:]:
            A(o)
        slot(0)
        A('s_add_u32 s%d, s%d, 0x%x' % (sKx, sKx, SEG))
        A('s_add_u32 s%d, s%d, 0x%x' % (sKx2, sKx2, SEG))
        A('s_cmp_eq_u32 s%d, s%d' % (sStep, sD))
        A('s_cbranch_scc1 L_sp')
        A.label('L_spr')
        A('s_waitcnt lgkmcnt(0)')
        A('s_barrier')
        stamp('bar1b')
        slot(1)
        rd1(vR1v)
        for i in range(opt.get('h2x', 0)):
            A('s_nop 3')
        slot(2)
        if 3 in slots:
            A('s_waitcnt lgkmcnt(%d)' % (0 if prof else 3))
        slot(3)
        red1(vVv)
        A(st_v); order.append(st_v)
        stamp('vst')
        slot(4)
    else:
        vs = [(t, 2, tt) for t in range(4) for tt in range(2)]
        fold(0, vs)
        stamp('f0')
        fold(1, vs)
        stamp('f1')
        fold(2)
        while ka:
            nk()
        A('s_add_u32 s%d, s%d, 0x%x' % (sKx, sKx, SEG))
        A('s_add_u32 s%d, s%d, 0x%x' % (sKx2, sKx2, SEG))
        A('s_waitcnt lgkmcnt(0)')
        stamp('st1end')
        A('s_barrier')
        stamp('bar1')
        rd1(vR1)
        rd1(vR1v, vA)
        red1(vQK, '', vR, 4)
        A(st4(vQK, vQst, sQkvW, loc))
        stamp('qkvst')
        red1(vVv, '', vA)
        A(st_v)
        stamp('vst')
        A('s_cmp_eq_u32 s%d, s%d' % (sStep, sD))
        A('s_cbranch_scc1 L_sp')
        A.label('L_spr')
        zq = zeros(vT, 16) + zeros(MM, 4)
        fz = zq + ['s_nop 0'] * 60
        for i, n_ in enumerate([opt.get('h2d', 6)] + [opt.get('h2p', 10)] * 3):
            paced(fz[:n_]); fz = fz[n_:]
            A(qk[i]); order.append(qk[i])
        paced([o for o in fz if o.startswith('v_')])
    younger = lambda o: len(order) - 1 - order.index(o)
    A.label('L_h2')
    mx = lambda tt, j, first=False: A('v_mfma_f32_16x16x32_bf16 %s, %s, %s, %s' % (v(vS + 4 * tt, 4), v(vKx + (tt * 4 + j) * 4, 4), v(vQ + 4 * j, 4), '0' if first else v(vS + 4 * tt, 4)))
    ror = lambda r_: A('v_mov_b32_dpp v%d, v%d row_ror:8 row_mask:0xf bank_mask:%s' % (r_ + 4, r_, '0x3' if opt.get('qz') else '0xf'))
    smm = lambda u: A('v_smfmac_f32_16x16x64_bf16 %s, %s, %s, v%d' % (v(MM, 4), v(vKm + 4 * u, 4), v(vQ + 8 * u, 8), vIdx))
    qkr = [vQ, vQ + 8, vKm, vKm + 4]
    mxo = ['v_max3_f32 v%d, v%d, v%d, v%d' % (vT0, vBias, X0, X0 + 1), 'v_max3_f32 v%d, v%d, v%d, v%d' % (vT0, vT0, X0 + 2, X0 + 3),
           'v_max3_f32 v%d, v%d, v%d, v%d' % (vT0, vT0, X1, X1 + 1), 'v_max3_f32 v%d, v%d, v%d, v%d' % (vT0, vT0, X1 + 2, X1 + 3)]
    swm = ['v_permlane32_swap_b32 v%d, v%d' % (MM, MM + 2), 'v_permlane32_swap_b32 v%d, v%d' % (MM + 1, MM + 3)]

    def ck(i):
        for o in chk4(qkr[i], vT3):
            A(o)

    def s_end():
        add2(MM, MM, MM + 2)
        A('v_max3_f32 v%d, v%d, v%d, v%d' % (vT0, vT0, MM, MM + 1))
        A('v_mov_b32 v%d, v%d' % (vT1, vT0))
    h2m = opt.get('h2m', 0)
    if h2m == 2:
        stamp('q0w')
        A('s_waitcnt vmcnt(%d)' % younger(qk[0]))
        stamp('q0l')
        mx(0, 0, True); ck(0)
        mx(1, 0, True); A(cmpv(vT3)); ror(vQ); ror(vQ + 1); ror(vQ + 2); ror(vQ + 3)
        A('s_cbranch_vccnz L_FA15_0')
        mx(0, 1)
        A('s_waitcnt vmcnt(%d)' % younger(qk[1]))
        stamp('q1l')
        ck(1)
        mx(1, 1); A(cmpv(vT3)); ror(vQ + 8)
        mx(0, 2); ror(vQ + 9); ror(vQ + 10)
        mx(1, 2); ror(vQ + 11)
        A('s_cbranch_vccnz L_FA14_1')
        stamp('q0ok')
        mx(0, 3); A(ld_v[0])
        mx(1, 3); A(ld_v[1])
        order += ld_v
        stamp('k0w')
        A('s_waitcnt vmcnt(%d)' % younger(qk[2]))
        smm(0)
        if opt.get('k0c', 1):
            ck(2); A(cmpv(vT3)); A(mxo[0]); A(mxo[1]); A(mxo[2]); A(mxo[3])
            A('s_cbranch_vccnz L_FK12_2')
            stamp('k1w')
            A('s_waitcnt vmcnt(%d)' % younger(qk[3]))
            stamp('k1l')
            smm(1)
            ck(3); A(cmpv(vT3))
            A(swm[0]); A(swm[1])
            s_end()
            A('s_cbranch_vccnz L_FK8_3')
        else:
            stamp('k1w')
            A('s_waitcnt vmcnt(%d)' % younger(qk[3]))
            stamp('k1l')
            smm(1)
            for o in chk4(vKm, vT3) + chk4more(vKm + 4, vT3):
                A(o)
            A(cmpv(vT3))
            A(mxo[0]); A(swm[0]); A(swm[1]); A(mxo[1]); A(mxo[2]); A(mxo[3])
            s_end()
            A('s_cbranch_vccnz L_PK12_2')
    else:
        stamp('q0w')
        A('s_waitcnt vmcnt(%d)' % younger(qk[0]))
        stamp('q0l')
        mx(0, 0, True); ror(vQ); ror(vQ + 1)
        mx(1, 0, True); ror(vQ + 2); ror(vQ + 3)
        A('s_waitcnt vmcnt(%d)' % younger(qk[1]))
        stamp('q1l')
        ops, cm = wchk([vQ, vQ + 8], vT3)
        if rx:
            mx(0, 2); A(ops[0]); A(cm)
            mx(1, 2); ror(vQ + 8); ror(vQ + 9)
            mx(0, 1); ror(vQ + 10); ror(vQ + 11)
            mx(1, 1)
        else:
            mx(0, 2); A(ops[0]); A(ops[1])
            mx(1, 2); A(ops[2]); A(ops[3])
            mx(0, 1); A(cm); ror(vQ + 8); ror(vQ + 9)
            mx(1, 1); ror(vQ + 10); ror(vQ + 11)
        A('s_cbranch_vccnz %s' % ('L_r2' if h2m == 0 else 'L_PA15_0'))
        stamp('q0ok')
        order_q = list(order)
        vpos = opt.get('vpos', 1)
        mx(0, 3)
        if vpos == 0:
            A(ld_v[0])
        mx(1, 3)
        if vpos == 0:
            A(ld_v[1])
            order += ld_v
        A.label('L_h2k')
        stamp('k0w')
        A('s_waitcnt vmcnt(%d)' % younger(qk[2]))
        smm(0)
        stamp('k1w')
        A('s_waitcnt vmcnt(%d)' % younger(qk[3]))
        stamp('k1l')
        smm(1)
        if vpos == 1:
            A(ld_v[0]); A(ld_v[1])
        ops, cm = wchk([vKm, vKm + 4], vT3)
        for o in ops + [cm] + (mxo + swm if rx else [mxo[0]] + swm + mxo[1:]):
            A(o)
        order_k = order[order.index(qk[2]):]
        s_end()
        A('s_cbranch_vccnz %s' % ('L_r2k' if h2m == 0 else 'L_PK12_2'))
    A.label('L_sj')
    stamp('kok')
    if opt.get('xdrop'):
        bulk = bulk[:len(bulk) - opt['xdrop']]
    nbulk = len(bulk)
    nb = lambda: A(bulk.pop(0)) if bulk else None
    early = opt.get('be', 2)
    if vpos == 2:
        A(ld_v[0])
    for i in range(min(early, 1) if vpos < 2 else 0):
        nb()
    A('v_permlane32_swap_b32 v%d, v%d' % (vT0, vT1))
    A('v_max_f32 v%d, v%d, v%d' % (vT0, vT0, vT1))
    A('v_mov_b32 v%d, v%d' % (vT1, vT0))
    if vpos == 2:
        A(ld_v[1])
    for i in range(max(early - 1, 0)):
        nb()
    A('v_permlane16_swap_b32 v%d, v%d' % (vT0, vT1))
    A('v_max_f32 v%d, v%d, v%d' % (vT0, vT0, vT1))
    A('v_mul_f32 v%d, s%d, v%d' % (vT0, sScale, vT0))
    fma = lambda r_: A('v_fma_f32 v%d, v%d, s%d, -v%d' % (r_, r_, sScale, vT0))
    ex = lambda r_: A('v_exp_f32 v%d, v%d' % (r_, r_))
    cvt = lambda d, x: A('v_cvt_pk_bf16_f32 v%d, v%d, v%d' % (d, x, x + 1))
    shr = lambda d, x: A('v_mov_b32_dpp v%d, v%d row_shr:8 row_mask:0xf bank_mask:0xc' % (d, x))
    def fma2(r_):
        if opt.get('pkf', 0):
            A('v_pk_fma_f32 %s, %s, %s, %s op_sel_hi:[1,0,0] neg_lo:[0,0,1] neg_hi:[0,0,1]' % (v(r_, 2), v(r_, 2), s(sSc2, 2), v(vT0, 2)))
        else:
            fma(r_); fma(r_ + 1)
    vom = lambda u, n: A('v_smfmac_f32_16x16x64_bf16 %s, %s, %s, v%d' % (v(vT + 4 * n, 4), v(vVm + 4 * u, 4), a(WO(n, 2 * u), 8), vIdx))
    m32 = lambda d, x, p, c_: A('v_mfma_f32_16x16x32_bf16 %s, %s, %s, %s' % (v(d, 4), v(x, 4), v(p, 4), v(d, 4) if c_ else '0'))
    m16 = lambda d, x, p: A('v_mfma_f32_16x16x16_bf16 %s, %s, %s, %s' % (v(d, 4), v(x, 2), v(p, 2), v(d, 4)))
    cvm = lambda k: cvt(vVOm + k, vT + 2 * k)
    s2 = opt.get('s2', 2)
    if s2:
        assert vPms == vPm + 2 and vPm % 4 == 0
        er = [MM, MM + 1] + [vS + i for i in range(8)]
        fma2(MM)
        for i in range(4):
            fma2(vS + 2 * i)
        for r_ in er[:7]:
            ex(r_)

        def vcheck(between):
            stamp('vw')
            A('s_waitcnt vmcnt(%d)' % (nbulk - len(bulk)))
            stamp('vl')
            ops, cm = wchk([vVm, vVm + 4], vT3)
            for o in ops + [cm]:
                A(o)
            between()
            A('s_cbranch_vccnz L_r2v')
            A.label('L_h2v')
            stamp('Send')
        swp = lambda: A('v_permlane32_swap_b32 v%d, v%d' % (vPm, vPm + 1))
        if s2 == 1:
            vcheck(lambda: [ex(r_) for r_ in er[7:]])
            gaps = [lambda: cvt(vPm, MM), lambda: cvt(vPm + 1, MM), lambda: cvt(vP, vS), lambda: cvt(vP + 1, vS + 2),
                    lambda: cvt(vP + 2, vS + 4), lambda: cvt(vP + 3, vS + 6), swp, lambda: shr(vPs, vP)]
            for i in range(8):
                vom(i & 1, i >> 1)
                if i & 1:
                    nb()
                gaps[i]()
            stamp('vomend')
            m32(vLs, vOne, vP, 0); nb(); shr(vPs + 1, vP + 1); shr(vPs + 2, vP + 2)
            m16(vLs, vHalf, vPm); shr(vPs + 3, vP + 3); shr(vPms, vPm)
            m32(vO, vVOx, vP, 0); nb(); shr(vPms + 1, vPm + 1); cvm(0)
            m32(vO, vVOx + 4, vPs, 1); cvm(1); cvm(2); cvm(3)
            m32(vO + 4, vVOx + 8, vP, 0); nb(); cvm(4); cvm(5)
            stamp('m16')
            m32(vO, vVOm, vPm, 1); nb(); cvm(6); cvm(7)
            m32(vO + 4, vVOx + 12, vPs, 1); nb()
            A('v_rcp_f32 v%d, v%d' % (vT1, vLs))
            m32(vO + 4, vVOm + 4, vPm, 1)
        else:
            bs = str(opt.get('bs', '0101001')).zfill(7)
            for r_ in er[7:]:
                ex(r_)
            for i in range(int(bs[0])):
                nb()
            for i in range(4):
                cvt(vP + i, vS + 2 * i)
            cvt(vPm, MM); cvt(vPm + 1, MM)
            nbi = lambda i: nb() if int(bs[i]) else None
            m32(vLs, vOne, vP, 0); nbi(1); shr(vPs, vP); shr(vPs + 1, vP + 1)
            m32(vO, vVOx, vP, 0); nbi(2); shr(vPs + 2, vP + 2); shr(vPs + 3, vP + 3)
            m32(vO + 4, vVOx + 8, vP, 0); nbi(3); swp()
            m32(vO, vVOx + 4, vPs, 1)
            vcheck(lambda: [m32(vO + 4, vVOx + 12, vPs, 1), nbi(4), shr(vPms, vPm), shr(vPms + 1, vPm + 1), m16(vLs, vHalf, vPm)])
            gaps = {3: [0], 4: [1], 5: [2], 6: [3], 7: [4]}
            for i in range(8):
                vom(i & 1, i >> 1)
                if i % int(bs[6]) == 0:
                    nb()
                if i == 2:
                    A('v_rcp_f32 v%d, v%d' % (vT1, vLs))
                if i == 6 and opt.get('le', 1):
                    A('ds_write_b32 v%d, v%d' % (vW2l, vT1))
                for k in gaps.get(i, []):
                    cvm(k)
            stamp('vomend')
            m32(vO, vVOm, vPm, 1); cvm(5)
            stamp('m16')
            cvm(6); cvm(7)
            m32(vO + 4, vVOm + 4, vPm, 1)
    else:
        for i in range(4):
            fma2(vS + 2 * i)
        stamp('vw')
        A('s_waitcnt vmcnt(%d)' % early)
        stamp('vl')
        ops, cm = wchk([vVm, vVm + 4], vT3)
        for o in ops + [cm]:
            A(o)
        for i in range(3):
            ex(vS + i)
        A('s_cbranch_vccnz L_r2v')
        A.label('L_h2v')
        stamp('Send')
        vom = lambda u, n: A('v_smfmac_f32_16x16x64_bf16 %s, %s, %s, v%d' % (v(vT + 4 * n, 4), v(vVm + 4 * u, 4), a(WO(n, 2 * u), 8), vIdx))
        for i in range(8):
            vom(i & 1, i >> 1)
            if i & 1:
                nb()
            if i < 5:
                ex(vS + 3 + i)
            else:
                cvt(vP + i - 5, vS + 2 * (i - 5))
        stamp('vomend')
        cvt(vP + 3, vS + 6)
        fma2(MM)
        m32 = lambda d, x, p, c_: A('v_mfma_f32_16x16x32_bf16 %s, %s, %s, %s' % (v(d, 4), v(x, 4), v(p, 4), v(d, 4) if c_ else '0'))
        m16 = lambda d, x, p: A('v_mfma_f32_16x16x16_bf16 %s, %s, %s, %s' % (v(d, 4), v(x, 2), v(p, 2), v(d, 4)))
        cvm = lambda k: cvt(vVOm + k, vT + 2 * k)
        m32(vO, vVOx, vP, 0)
        nb()
        ex(MM)
        m32(vO + 4, vVOx + 8, vP, 0)
        ex(MM + 1)
        m32(vLs, vOne, vP, 0)
        nb()
        shr(vPs, vP); shr(vPs + 1, vP + 1); shr(vPs + 2, vP + 2); shr(vPs + 3, vP + 3)
        cvt(vPm, MM)
        cvt(vPm + 1, MM)
        if opt.get('mm', 1):
            assert vPms == vPm + 2 and vPm % 4 == 0
            m32(vO, vVOx + 4, vPs, 1)
            cvm(0)
            A('v_permlane32_swap_b32 v%d, v%d' % (vPm, vPm + 1))
            m32(vO + 4, vVOx + 12, vPs, 1)
            nb()
            cvm(1); cvm(2)
            stamp('m16')
            m16(vLs, vHalf, vPm)
            nb()
            shr(vPms, vPm); shr(vPms + 1, vPm + 1); cvm(3); cvm(4); cvm(5)
            m32(vO, vVOm, vPm, 1)
            nb()
            cvm(6); cvm(7)
            A('v_rcp_f32 v%d, v%d' % (vT1, vLs))
            m32(vO + 4, vVOm + 4, vPm, 1)
        else:
            m32(vO, vVOx + 4, vPs, 1)
            cvm(0)
            A('v_permlane32_swap_b32 v%d, v%d' % (vPm, vPm + 1))
            m32(vO + 4, vVOx + 12, vPs, 1)
            nb()
            cvm(1); cvm(2)
            stamp('m16')
            m16(vLs, vHalf, vPm)
            shr(vPms, vPm); shr(vPms + 1, vPm + 1)
            m16(vO, vVOm, vPm)
            nb()
            cvm(3); cvm(4); cvm(5)
            m16(vO, vVOm + 2, vPms)
            cvm(6); cvm(7)
            m16(vO + 4, vVOm + 4, vPm)
            nb()
            A('v_rcp_f32 v%d, v%d' % (vT1, vLs))
            m16(vO + 4, vVOm + 6, vPms)
    stamp('mend')
    if not opt.get('le', 1):
        A('ds_write_b32 v%d, v%d' % (vW2l, vT1))
    A('ds_write_b128 v%d, %s' % (vW2, v(vO, 4)))
    while bulk:
        nb()
    A('ds_write_b128 v%d, %s offset:1024' % (vW2, v(vO + 4, 4)))
    A('s_add_u32 s%d, s%d, 0x%x' % (sPf, sPf, SEG))
    side = []
    if not opt.get('nokvm'):
        side += [st4(vQK, vKst, sKvm, ' sc1'), st4(vVv, vVst, sKvm, ' sc1')]
    if opt.get('pf', 1):
        side += ['buffer_load_dword v252, v253, %s, s%d offen sc1' % (S4(WS), sPf)]
    side += ['buffer_load_dword v%d, v%d, %s, s%d offen sc1' % (vFv, vFa, S4(WS), sFo)]
    side = [side[int(ch)] for ch in str(opt.get('so', '0123')).zfill(4)]
    nse = opt.get('nse', 3)
    nsb = opt.get('nsb', 2)
    for o in side[:nsb]:
        A(o)
    A('s_waitcnt lgkmcnt(0)')
    stamp('st2end')
    A('s_barrier')
    stamp('bar2')
    A('ds_read_b128 %s, v%d' % (v(vR2d + 8, 4), vR2l))
    for w in range(4):
        A('ds_read_b64 %s, v%d offset:%d' % (v(vR2d + 2 * w, 2), vR2, w * 2048))
    for o in side[nsb:nse]:
        A(o)
    for w in range(4):
        A('s_waitcnt lgkmcnt(%d)' % (0 if prof else 3 - w))
        sel = 'op_sel:[0,%d%s] op_sel_hi:[1,%d%s]' % (w & 1, ',0' if w else '', w & 1, ',1' if w else '')
        if w == 0:
            A('v_pk_mul_f32 %s, %s, %s %s' % (v(vR2d, 2), v(vR2d, 2), v(vR2d + 8, 2), sel))
        else:
            A('v_pk_fma_f32 %s, %s, %s, %s %s' % (v(vR2d, 2), v(vR2d + 2 * w, 2), v(vR2d + 8 + (w & 2), 2), v(vR2d, 2), sel))
    cvt(vT0, vR2d)
    guard(vT0)
    A(st4(vT0, vL4, sPartA, (' sc1', ' sc0 sc1')[opt.get('psm', 0)]))
    stamp('partst')
    A('s_waitcnt vmcnt(%d)' % (1 + kb_ + len(side[:nse])))
    stamp('vxok')
    if shr_:
        mem_ = ['s_bitcmp1_b32 s%d, 14' % sMemW, 's_cselect_b32 s%d, 3, 1' % sA, 's_lshl_b32 s%d, s%d, 14' % (sA, sA),
                's_xor_b32 s%d, s%d, s%d' % (sMemW, sMemW, sA), 's_xor_b32 s%d, s%d, s%d' % (sMemR, sMemR, sA),
                's_xor_b32 s%d, s%d, 0x8000' % (sA, sMemW), st4(vSent, vMa, sA, loc)]
    else:
        mem_ = [st4(vSent, vL4, sMemW, loc), 's_xor_b32 s%d, s%d, 0x4000' % (sMemW, sMemW), 's_xor_b32 s%d, s%d, 0x4000' % (sMemR, sMemR)]
    pre = mem_ + [
           's_xor_b32 s%d, s%d, 0x8000' % (sQkvW, sQkvW),
           st4(vSent, vQst, sQkvW, loc), st4(vSent, vVst, sQkvW, loc)]
    po = opt.get('po', 1)
    arm = [o for o in pre if o.startswith('buffer_')]
    if po == 0:
        pre = kxl[:nc] + side[nse:] + pre
    elif po == 1:
        pre = side[nse:] + kxl[:nc] + pre
    elif po == 2:
        pre = side[nse:] + pre + kxl[:nc]
    elif po >= 3:
        p2_, pre_ = pre, side[nse:]
        for o in kxl[:nc]:
            pre_ += [o] + p2_[:po - 2]
            p2_ = p2_[po - 2:]
        pre = pre_ + p2_
    pre += ['s_xor_b32 s%d, s%d, 0x8000' % (sQkvR, sQkvR), 's_xor_b32 s%d, s%d, 0x8000' % (sQkvR2, sQkvR2),
            's_add_u32 s%d, s%d, 0x%x' % (sKvm, sKvm, SEG), 's_add_u32 s%d, s%d, 0x%x' % (sPartA, sPartA, SEG),
            's_add_u32 s%d, s%d, 0x%x' % (sVx, sVx, SEG), 's_add_u32 s%d, s%d, 0x%x' % (sVx2, sVx2, SEG)]
    gpos = opt.get('gpos', 24)
    fill = {}
    ra = opt.get('ra', 0)
    nra = 0
    if ra:
        arm = arm[len(arm) - ra:]
        nra = len(arm)
        pre = [o for o in pre if o not in arm]
        for i, o in enumerate(arm):
            fill.setdefault(min(31, (max(g4) if g4 else gpos) + opt.get('rb', 3) + 2 * i), []).append(o)
    if opt.get('pp'):
        pre2 = []
        for o in pre:
            if pre2 and o.startswith('s_') and all(x.startswith('s_') for x in pre2[-1]) and len(pre2[-1]) < 3:
                pre2[-1].append(o)
            else:
                pre2.append([o])
        pre = pre2
    else:
        pre = [[o] for o in pre]
    for i, o in enumerate(pre):
        fill.setdefault(i, []).extend(o)
    sl = ['s_memtime s[26:27]'] if prof else []
    if g4:
        assert min(g4) > max(i for i, o in enumerate(pre) if o[0].startswith('buffer_'))
        for p_ in sorted(set(g4)):
            fill.setdefault(p_, []).extend(['s_cmp_eq_u32 s%d, %d' % (sGp, p_), 's_cbranch_scc0 L_gp%d' % p_] + ld_part + ['L_gp%d:' % p_])
    else:
        fill.setdefault(gpos - opt.get('gd', 0), []).append(ld_part[0])
        fill.setdefault(gpos, []).extend(sl + ld_part[1:])
    vox(fill)
    zz = [o for o in zeros(vA, 24) + zeros(vT, 16) + zeros(MM, 4) if o not in zq]
    zz += ['s_nop 0'] * len(zq)
    zw = opt.get('zw', 0)
    kd = kxl[nc:nc + nd]
    for i in range(4):
        for o in (zeros(vM + 4 * i, 4, '-1') if fc != 5 else ['s_nop 3'] if i <= opt.get('d0', 1) else []):
            A(o)
        A(kd.pop(0) if kd and i >= opt.get('d0', 1) else 's_nop 0')
    for o in kd:
        A(o)
    paced(vox_tail() + (zeros(vQ, 4, '-1') + zeros(vQ + 8, 4, '-1') + zeros(vKm, 8, '-1') if h2m else []) + zz[:zw])
    zz = zz[zw:]
    if lite and not prof:
        A('s_and_b32 s%d, s%d, %d' % (sA, sStep, 48 if opt.get('trs') else 3))
        A('s_cbranch_scc1 L_notr')
        A('s_memtime s[12:13]')
        A('s_memrealtime s[14:15]')
        A('s_%s_b32 s%d, s%d, 1' % ('lshl' if opt.get('trs') else 'lshr', sA, sStep))
        A('s_mov_b32 m0, s%d' % sA)
        A('s_waitcnt lgkmcnt(0)')
        A('v_writelane_b32 v%d, s%d, m0' % (vTr, sKn if opt.get('trs') else 12))
        A('s_add_u32 m0, s%d, 1' % sA)
        A('v_writelane_b32 v%d, s14, m0' % vTr)
        A.label('L_notr')
    if prof:
        A('s_waitcnt lgkmcnt(0)')
        A('s_sub_u32 s%d, s%d, %d' % (sA, sStep, opt.get('ts', 33)))
        A('s_cmp_lt_u32 s%d, 6' % sA)
        A('s_cbranch_scc0 L_notr')
        A('s_mul_i32 s%d, s%d, 9' % (sA, sA))
        A('s_add_u32 s%d, s%d, 8' % (sA, sA))
        for i in [8] + list(range(8)):
            A('s_mov_b32 m0, s%d' % sA)
            A('v_writelane_b32 v%d, s%d, m0' % (vTr, 12 + 2 * i))
            A('s_add_u32 s%d, s%d, 1' % (sA, sA))
        A.label('L_notr')
    A.label('L_h3')
    lo = vP
    A('s_waitcnt vmcnt(%d)' % (1 + nd + nra))
    A(red3[0])
    ops, cm = wchk([vPt, vPt + 4], vT0)
    for o in ([] if rx else ops[:2]):
        A(o)
    A('s_waitcnt vmcnt(%d)' % (nd + nra))
    A(red3[1])
    for o in (ops if rx else ops[2:]):
        A(o)
    A(cm)
    if nra:
        A('s_waitcnt vmcnt(%d)' % nd)
    A('s_cbranch_vccnz L_r3')
    A.label('L_h3ok')
    stamp('gathok')
    cvt(vT0, lo)
    guard(vT0)
    A(st4(vT0, vMa, sMemW, loc))
    stamp('memst')
    A('s_add_u32 s%d, s%d, 1' % (sStep, sStep))
    A('s_bitcmp1_b64 %s, s%d' % (s(sLo, 2), sStep))
    A('s_cselect_b32 s%d, 0, 0x%x' % (sFo, OOB))
    A('s_add_u32 s%d, s%d, 0x%x' % (sPartR, sPartR, SEG))
    A('s_add_u32 s%d, s%d, 0x%x' % (sPartR2, sPartR2, SEG))
    z0 = opt.get('h1d', 16)
    zs = opt.get('h1s', 12)
    paced(zz[:z0]); zz = zz[z0:]
    for t in range(4):
        ld_mem(t)
        stamp('mi%d' % t)
        if t == 2:
            paced(zz); zz = []
            kvo = kv_ops('L_kvw')
            for o in kvo[:-1]:
                A(o)
        paced(zz[:zs]); zz = zz[zs:]
    A('s_cbranch_scc0 L_loop')
    A('s_branch L_kvw')
    if fc:
        fast_chains()
    poll_nodes()
    A.label('L_sp')
    A('s_cmp_eq_u32 s%d, 63' % sStep)
    A('s_cbranch_scc1 L_c_tail')
    A('s_mov_b32 s%d, 63' % sD)
    mark(A, opt, 0)
    A('s_cmp_ge_i32 s%d, 1' % sKn)
    A('s_cbranch_scc1 L_sp3')
    if opt.get('iw', 1) >= 2:
        if opt.get('iw', 1) == 3:
            A(ld_flags)
            A('s_call_b64 s[68:69], L_drp')
        A('s_mov_b64 exec, 0')
        for w in range(3):
            A('s_cmp_eq_u32 s%d, %d' % (sW, w))
            A('s_cbranch_scc1 L_dr%d' % w)
        A('s_branch L_dr3')
        A.label('L_drret')
        A('s_mov_b64 exec, -1')
    A.label('L_sp1')
    A(ld_flags)
    A('s_waitcnt vmcnt(0)')
    kv_check('L_sp2', 1)
    A.label('L_sp7')
    mark(A, opt, 0)
    for n_ in (sKx, sKx2):
        A('s_sub_u32 s%d, s%d, 0x%x' % (n_, n_, OOB + SEG))
    A('s_sub_u32 s%d, s%d, 0x%x' % (sVx, sVx, OOB))
    assert nva + ne <= 4
    first_kv()
    for n_ in (sKx, sKx2):
        A('s_add_u32 s%d, s%d, 0x%x' % (n_, n_, SEG))
    A.label('L_sp3')
    mark(A, opt, 1)
    for n_ in (sVx, sVx2):
        A('s_add_u32 s%d, s%d, 0x%x' % (n_, n_, SEG))
    A('s_waitcnt vmcnt(%d) lgkmcnt(0)' % (8 if nva + ne == 0 else 0))
    mark(A, opt, 2)
    vox({16: [ld_flags]})
    paced(zeros(vT, 16) + vox_tail())
    A('s_branch L_sp5')
    A.label('L_sp4')
    timeout_stub(A, 'L_sp6')
    A.label('L_sp6')
    A(ld_flags)
    A.label('L_sp5')
    A('s_waitcnt vmcnt(0)')
    kv_check('L_sp4')
    for o in vxl[:nva + ne]:
        A(o)
    A('buffer_load_dword v252, v253, %s, s%d offen sc1' % (S4(WS), sPf))
    tstamp(A, opt, 4, vT0, vT1, sA)
    A('s_branch L_spr')
    if opt.get('iw', 1) == 3:
        A.label('L_drp')
        A('s_mov_b64 exec, -1')
        A('s_waitcnt vmcnt(0)')
        kv_check('L_drq', 1)
        A('s_branch L_sp7')
        A.label('L_drq')
        A(ld_flags)
        A('s_mov_b64 exec, 0')
        A('s_setpc_b64 s[68:69]')
    A.label('L_sp2')
    A('s_sleep 1')
    timeout_stub(A, 'L_sp1')
    hook(True)
    A.label('L_kvw')
    A(ld_flags)
    A('s_waitcnt vmcnt(0)')
    kv_check('L_kvw2')
    A('s_branch L_loop')
    A.label('L_kvw2')
    timeout_stub(A, 'L_kvw')
    if h2m:
        for fam, full, cont in (('A', 15, 'L_SA'), ('K', 12, 'L_SK')):
            for Sm in sorted(range(1, 16), key=lambda x: -bin(x).count('1')):
                if Sm & ~full:
                    continue
                ts = [t for t in range(4) if Sm >> t & 1]
                hook(True)
                for t in ts:
                    rest = Sm & ~(1 << t)
                    A.label('L_P%s%d_%d' % (fam, Sm, t))
                    A('s_waitcnt vmcnt(%d)' % opt.get('lim2', 4 if opt.get('split', 1) else 3))
                    ck(t)
                    A(cmpv(vT3))
                    A('s_cbranch_vccz %s' % ('L_P%s%d_%d' % (fam, rest, nxt(rest, t)) if rest else cont))
                    A.label('L_F%s%d_%d' % (fam, Sm, t))
                    A(qk[t])
                    cnt(sN2)
                timeout_stub(A, 'L_P%s%d_%d' % (fam, Sm, ts[0]))
                if len(ts) > 1:
                    hook()
        hook(True)
        A.label('L_SA')
        stamp('q1l'); stamp('q0ok'); stamp('k0w'); stamp('k1w'); stamp('k1l')
        mx(0, 0, True); ror(vQ); ror(vQ + 1)
        mx(1, 0, True); ror(vQ + 2); ror(vQ + 3)
        mx(0, 2); A(ld_v[0]); ror(vQ + 8); ror(vQ + 9)
        mx(1, 2); A(ld_v[1]); ror(vQ + 10); ror(vQ + 11)
        smm(0); smm(1)
        mx(0, 1); mx(0, 3); mx(1, 1); A(swm[0]); mx(1, 3); A(swm[1])
        for o in mxo:
            A(o)
        s_end()
        A('s_branch L_sj')
        hook()
        hook(True)
        A.label('L_SK')
        stamp('k1w'); stamp('k1l')
        for o in zeros(MM, 4):
            A(o)
        smm(0); smm(1)
        for o in mxo + swm:
            A(o)
        s_end()
        A('s_branch L_sj')
        hook()
    else:
        hook(True)
        A.label('L_r2')
        for o in (order_q if not opt.get('r2q', 0) else ld_q + ['s_waitcnt vmcnt(0)']):
            A(o)
        cnt(sN2)
        timeout_stub(A, 'L_h2')
        hook(True)
        A.label('L_r2k')
        for o in (order_k + zeros(MM, 4) if not opt.get('r2q', 0) else ld_k + zeros(MM, 4) + ['s_waitcnt vmcnt(0)']):
            A(o)
        cnt(sN2, 1024)
        timeout_stub(A, 'L_h2k')
        hook()
    hook(True)
    A.label('L_r2v')
    for o in ld_v:
        A(o)
    cnt(sN2, 1 << 20)
    A('s_waitcnt vmcnt(0)')
    for o in chk4(vVm, vT3) + chk4more(vVm + 4, vT3):
        A(o)
    A(cmpv(vT3))
    A('s_cbranch_vccz L_h2v')
    timeout_stub(A, 'L_r2v')
    hook()
    hook(True)
    A.label('L_r3')
    for o in ld_part:
        A(o)
    cnt(sN3)
    if opt.get('lim3', -1) < 0:
        if nd or nra:
            A('s_waitcnt vmcnt(0)')
        timeout_stub(A, 'L_h3')
    A('s_waitcnt vmcnt(%d)' % max(opt.get('lim3', -1), 0))
    for o in chk4(vPt, vT0) + chk4more(vPt + 4, vT0):
        A(o)
    A(cmpv(vT0))
    A(red3[0])
    A(red3[1])
    A('s_nop 6')
    A('s_cbranch_vccz L_h3ok')
    timeout_stub(A, 'L_r3')
    hook()
    A.label('L_loop_end')
    body = [re.sub(r'@HK(\d+)@', lambda m: 'L_hk%d' % (int(m.group(1)) + 4 * NHP) if int(m.group(1)) + 4 * NHP < len(hooks) else 'L_hkret%d' % (int(m.group(1)) // 4 % NHP), l) for l in A.lines[loop_start:]]
    body = [re.sub(r'@DR(\d+)@', lambda m: 'L_dr%d' % (int(m.group(1)) + 4) if int(m.group(1)) + 4 < len(dry) else 'L_drret', l) for l in body]
    labs = [l[:-1] for l in body if l.endswith(':')]
    pat = re.compile(r'\b(' + '|'.join(labs) + r')\b')
    A.lines[loop_start:] = [l.replace('@LOC@', ('', ' sc0', ' nt', ' sc0 nt')[opt.get('locm', 0)]) for l in body] + [pat.sub(r'\1_i', l).replace('@LOC@', ' sc1') for l in body]
    A.label('L_c_tail')
    A('s_add_u32 s%d, s%d, 2048' % (sKvm, sKvm))
    A('s_xor_b32 s%d, s%d, 0x2000' % (sKvm, sKvm))
    A('s_sub_u32 s%d, s%d, 2048' % (sKvm, sKvm))
    A(st4(vQK, vKst, sKvm, ' sc1'))
    if opt.get('split', 1):
        A('s_waitcnt lgkmcnt(0)')
        A('s_barrier')
        rd1(vR1v)
        red1(vVv)
    A(st4(vVv, vVst, sKvm, ' sc1'))
    if opt.get('diag'):
        A('s_cmp_lg_u32 s%d, 0' % sC)
        A('s_cbranch_scc1 L_dg')
        A('s_cmp_lg_u32 s%d, 0' % sW)
        A('s_cbranch_scc1 L_dg')
        dbg_mark(A, opt, 4, vT2, vT3)
        A('s_memtime s[78:79]')
        A('s_waitcnt lgkmcnt(0)')
        A('s_sub_u32 s78, s78, s98')
        A('s_sub_u32 s79, s96, s76')
        A('v_mov_b32 v%d, s78' % vT2)
        A('v_mov_b32 v%d, s79' % vT1)
        A('v_mov_b32 v%d, 0' % vT3)
        A('s_mov_b64 exec, 1')
        A('buffer_atomic_umax v%d, v%d, %s, 0 offen offset:36 sc1' % (vT2, vT3, S4(DBG)))
        A('buffer_atomic_umax v%d, v%d, %s, 0 offen offset:12 sc1' % (vT1, vT3, S4(DBG)))
        A('v_not_b32 v%d, v%d' % (vT2, vT2))
        A('buffer_atomic_umax v%d, v%d, %s, 0 offen offset:40 sc1' % (vT2, vT3, S4(DBG)))
        A('s_mov_b64 exec, -1')
        A.label('L_dg')
    if opt.get('hold') == 1:
        hold_after(A, 40)
    if opt.get('hold') == 2:
        hold_after(A, 170, 96)
    tstamp(A, opt, 7, vT2, vT3, sA)
    mark_dump(A, opt, 3, 11, vT2, vT3, sA)
    if lite:
        A('s_memtime s[12:13]')
        A('s_memrealtime s[14:15]')
        A('s_waitcnt lgkmcnt(0)')
        A('s_sub_u32 s12, s12, s96')
        A('s_sub_u32 s14, s14, s98')
        A('v_mov_b32 v%d, s12' % (vM + 3))
        A('v_mov_b32 v%d, s14' % (vM + 4))
        A('s_lshl_b32 s%d, s%d, 4' % (sA, sG))
        A('s_add_u32 s%d, s%d, s%d' % (sA, sA, sC))
        A('s_lshl_b32 s%d, s%d, 2' % (sA, sA))
        A('s_add_u32 s%d, s%d, s%d' % (sA, sA, sW))
        A('s_lshl_b32 s%d, s%d, 6' % (sA, sA))
        A('s_add_u32 s%d, s%d, 0x%x' % (sA, sA, PROF))
        A('v_mov_b32 v%d, s%d' % (vM, sN1))
        A('v_mov_b32 v%d, s%d' % (vM + 1, sN2))
        A('v_mov_b32 v%d, s%d' % (vM + 2, sN3))
        A('v_mov_b32 v%d, 0' % vT0)
        for i in range(9, 14):
            A('buffer_store_dword v%d, v%d, %s, s%d offen offset:%d' % (vM + i - 9, vT0, S4(WS), sA, 4 * i))
    if lite:
        A('v_mov_b32 v%d, s96' % vT1)
        A('buffer_store_dword v%d, v%d, %s, s%d offen offset:56' % (vT1, vT0, S4(WS), sA))
        A('v_mov_b32 v%d, s98' % vT2)
        A('buffer_store_dword v%d, v%d, %s, s%d offen offset:60' % (vT2, vT0, S4(WS), sA))
        A('s_sub_u32 s%d, s%d, 0x%x' % (sA, sA, PROF))
        A('s_lshl_b32 s%d, s%d, 2' % (sA, sA))
        A('s_add_u32 s%d, s%d, 0x%x' % (sA, sA, PROF + MB))
        A('buffer_store_dword v%d, v%d, %s, s%d offen' % (vTr, vL4, S4(WS), sA))
    A('s_waitcnt vmcnt(0)')
    A('s_endpgm')


def build(opt):
    A = Asm()
    prologue(A, opt)
    chain(A, opt)
    for kind in 'kvq':
        proj(A, opt, kind)
    orole(A, opt)
    A.label('L_code1')
    A('s_endpgm')
    body, nn = fix_hazards(A.lines, verbose=True)
    hdr = open('cdna_kernels/%s.s.ref' % NAME).read().split('\n')
    hdr = [l for l in hdr if l.startswith(';') and '@launch' not in l]
    hdr.append('; opts ' + ' '.join('%s=%s' % kv for kv in opt.items()))
    if opt.get('prof'):
        hdr.append('; marks=' + opt.get('marks', 'm0ok,st1end,qkvst,q0ok,Send,st2end,partst') + ',gath,gathok')
    out = hdr + ['; @launch grid=(256,1,1) block=(256,1,1) lds=%d' % opt.get('lds', 163840),
                 '.amdgcn_target "amdgcn-amd-amdhsa--gfx950"', '.text', '.globl %s_kernel' % NAME, '.p2align 8',
                 '.type %s_kernel,@function' % NAME, '%s_kernel:' % NAME]
    out += body
    out += ['.section .rodata,"a"', '.p2align 6', '.amdhsa_kernel %s_kernel' % NAME,
            '  .amdhsa_next_free_vgpr 512', '  .amdhsa_next_free_sgpr 102', '  .amdhsa_accum_offset 256',
            '  .amdhsa_group_segment_fixed_size 0', '  .amdhsa_kernarg_size 128', '  .amdhsa_user_sgpr_count 2',
            '  .amdhsa_user_sgpr_kernarg_segment_ptr 1', '  .amdhsa_system_sgpr_workgroup_id_x 1',
            '  .amdhsa_float_denorm_mode_32 3', '.end_amdhsa_kernel', '']
    return '\n'.join(out), nn


if __name__ == '__main__':
    opt = {}
    outp = sys.argv[1]
    for a_ in sys.argv[2:]:
        k, val = a_.split('=')
        opt[k] = int(val) if val.lstrip('-').isdigit() else val
    txt, nn = build(opt)
    open(outp, 'w').write(txt)
    print('wrote', outp, 'nops inserted:', nn)
```
